```python
import torch

def _softmax(x, axis=-1):
    return torch.softmax(x, dim=axis)
def _gelu(x):
    return torch.nn.functional.gelu(x, approximate="tanh")
def _silu(x):
    return torch.nn.functional.silu(x)
def _sigmoid(x):
    return torch.sigmoid(x)
def _layernorm(x, axis=-1, eps=1e-5):
    m = x.mean(dim=axis, keepdim=True)
    v = x.var(dim=axis, keepdim=True, unbiased=False)
    return (x - m) / torch.sqrt(v + eps)
def _scatter_add(tgt, idx, src, axis=0):
    return tgt.clone().index_add_(axis, idx, src)
def _segment_sum(src, seg, n):
    out = torch.zeros((n,) + src.shape[1:], dtype=src.dtype)
    return out.index_add_(0, seg, src)
def _pad(x, pw):
    flat = tuple(v for pair in reversed(pw) for v in pair)
    return torch.nn.functional.pad(x, flat)

kernel_name = 'standalone__mha_block_cached__near_ridge'

def setup_inputs():

    _w = (lambda a: (lambda t: t.to(torch.bfloat16) if t.is_floating_point() else t)(torch.as_tensor(a)))
    B, Sq, D = 32, 192, 512
    H, Sk, Dh = 32, 512, 128
    return {
        "x": _w((lambda *s: torch.randn(*s, dtype=torch.bfloat16) * 0.8)(B, Sq, D)),
        "k_cache": _w((lambda *s: torch.randn(*s, dtype=torch.bfloat16) * 0.8)(B, H, Sk, Dh)),
        "v_cache": _w((lambda *s: torch.randn(*s, dtype=torch.bfloat16) * 0.05)(B, H, Sk, Dh)),
        "wq": _w((lambda *s: torch.randn(*s, dtype=torch.bfloat16) * 0.8)(D, H * Dh) * (D ** -0.5)),
        "wo": _w((lambda *s: torch.randn(*s, dtype=torch.bfloat16) * 0.05)(H * Dh, D) * ((H * Dh) ** -0.5)),
    }

def reference(x, k_cache, v_cache, wq, wo):
    B, Sq, D = x.shape
    H, Dh = 32, 128
    q = (lambda x, *d: x.permute(*d))((x @ wq).reshape(B, Sq, H, Dh), 0, 2, 1, 3)
    scores = torch.einsum("bhqd,bhkd->bhqk", q, k_cache) * (Dh ** -0.5)
    p = _softmax(scores, axis=-1)
    o = torch.einsum("bhqk,bhkd->bhqd", p, v_cache)
    return (lambda x, *d: x.permute(*d))(o, 0, 2, 1, 3).reshape(B, Sq, H * Dh) @ wo
```

```python
import re

def regs(spec):
    m = re.fullmatch(r"([vas])\[(\d+):(\d+)\]", spec)
    if m: return [f"{m.group(1)}{i}" for i in range(int(m.group(2)), int(m.group(3)) + 1)]
    return [spec]
def R(f, lo, n=1):
    return f"{f}{lo}" if n == 1 else f"{f}[{lo}:{lo+n-1}]"

class Op:
    def __init__(s, text, kind, rd=(), wr=(), e=-1, d=10**9, deps=(), tag=None, trans=False, late=False, cread=(), sdeps=(), optional=False):
        s.text, s.kind = text, kind
        s.rd = set(x for r in rd for x in regs(r)); s.wr = set(x for r in wr for x in regs(r))
        s.cread = set(x for r in cread for x in regs(r))
        s.e, s.d, s.deps, s.tag, s.trans, s.late = e, d, list(deps), tag, trans, late
        s.w = 1; s.sdeps = list(sdeps); s.optional = optional; s.pos = None
        s.gap = None; s.need_ds = []; s.need_vm = []; s.lg0 = False
    def __repr__(s): return f"<{s.text} e={s.e} d={s.d} gap={s.gap}>"

def mfma(D, A, B, C, tag=None):
    crd = [] if C == "0" else [C]
    return Op(f"v_mfma_f32_16x16x32_bf16 {D}, {A}, {B}, {C}", "mfma", rd=[A, B] + crd, wr=[D], tag=tag, cread=crd)

class Region:
    def __init__(s, name):
        s.name = name; s.mf = []; s.fill = []; s.missed = []; s.overlog = []
    def M(s, op): s.mf.append(op); op.gap = len(s.mf) - 1; return op
    def n(s): return len(s.mf)
    def F(s, op): s.fill.append(op); op.seq = len(s.fill); return op
    def schedule(s, verbose=True):
        NG = len(s.mf)
        gaps = {k: {"s": [], "m": [], "v": []} for k in range(-1, NG)}
        cost = {"v4": 1, "ds": 1, "v8": 2, "vm": 2, "dsb": 2}
        vec = [o for o in s.fill if o.kind in cost]
        sca = [o for o in s.fill if o.kind not in cost]
        for o in s.fill:
            if not o.optional: o.d = min(o.d, NG - 1)
        changed = True
        while changed:
            changed = False
            for o in s.fill:
                if o.optional: continue
                for (p, g) in o.deps + [(p, n) for (p, n) in o.sdeps]:
                    if p.kind != "mfma" and p.gap is None and p.d > o.d - g: p.d = o.d - g; changed = True
        sal = [o for o in sca if o.kind == "s"]
        for a, b in zip(sal, sal[1:]): b.deps.append((a, 0))
        changed = True
        while changed:
            changed = False
            for o in s.fill:
                if o.optional: continue
                for (p, g) in o.deps + [(p, n) for (p, n) in o.sdeps]:
                    if p.kind != "mfma" and p.gap is None and p.d > o.d - g: p.d = o.d - g; changed = True
        pending = list(s.fill)
        lastb = -10
        rk = {"s": 0, "w": 0, "ds": 1, "vm": 1, "dsb": 1, "v4": 2, "v8": 2}
        st = {"mpos": 0, "G": None}
        def sd_short(o, k):
            G = st["G"]; miss = 0
            isv = rk[o.kind] == 2
            for (p, n) in o.sdeps:
                if p.gap is None: return None
                if p.pos is not None:
                    here = st["mpos"] + 1 + ((sum(x.w for x in G["s"] + G["m"] + G["v"])) if isv else 0)
                    miss = max(miss, n - (here - p.pos - 1))
                else:
                    if not isv or rk[p.kind] != 2: return None
                    i = G["v"].index(p)
                    miss = max(miss, n - sum(x.w for x in G["v"][i+1:]))
            return max(miss, 0)
        def ready0(o, k):
            if o.e > k: return False
            for (p, g) in o.deps:
                if p.gap is None or p.gap + g > k: return False
                if p.gap == k and p.kind != "mfma" and rk[p.kind] > rk[o.kind]: return False
            return True
        over = 0; npos = 0
        for k in range(-1, NG):
            G = gaps[k]; st["G"] = G
            if k >= 0: npos += 1; s.mf[k].pos = npos
            st["mpos"] = npos
            used = 0
            while True:
                c0 = [o for o in pending if ready0(o, k)]
                cands = [o for o in c0 if sd_short(o, k) == 0]
                cands.sort(key=lambda o: (o.optional, o.d, o.seq))
                pick = None
                for o in cands:
                    forced = o.d <= k and not o.optional
                    if o.kind in ("s", "w"):
                        if o.late and o.d - k > o.late - 1: continue
                        if (G["s"] or G["m"] or G["v"]) and not forced: continue
                        pick = o; break
                if pick is None:
                    vc = []
                    for o in cands:
                        if o.kind in ("s", "w"): continue
                        forced = o.d <= k and not o.optional
                        c = cost[o.kind]
                        if not forced:
                            if o.kind == "dsb" and k - lastb < 2: continue
                            if used + c > 2: continue
                            if k == -1 and s.mf: continue
                        vc.append(o)
                    if vc:
                        pick = vc[0]
                        if used == 0 and cost[pick.kind] == 1 and pick.d > k + 1:
                            ones = [o for o in vc if cost[o.kind] == 1]
                            twos = [o for o in vc if cost[o.kind] == 2]
                            chain = any(any(p is pick for (p, g) in o.deps if g == 0) or any(p is pick and n == 0 for (p, n) in o.sdeps) for o in pending)
                            if len(ones) < 2 and not chain and twos: pick = twos[0]
                if pick is None:
                    blk = [o for o in c0 if o.d <= k and not o.optional and sd_short(o, k)]
                    if blk:
                        n = min(sd_short(o, k) for o in blk)
                        nop = Op(f"s_nop {n-1}", "v4"); nop.w = n; nop.gap = k; nop.kind = "nop"
                        if rk[blk[0].kind] == 2: G["v"].append(nop)
                        else: raise Exception(f"cannot pad for {blk[0]}")
                        used += n; continue
                    break
                o = pick
                if o.kind in ("s", "w"): G["s"].append(o)
                else:
                    (G["m"] if rk[o.kind] == 1 else G["v"]).append(o)
                    used += cost[o.kind]
                    if o.kind == "dsb": lastb = k
                o.gap = k; pending.remove(o)
            for o in G["s"] + G["m"] + G["v"]:
                o.pos = npos + 1; npos += o.w
            late_ = [o for o in pending if o.d <= k and not o.optional]
            if late_: s.missed += [(o, k) for o in late_ if o.d == k]
            ns = len(G["s"])
            extra = max(0, used - 2) + max(0, ns - 1 - max(0, 2 - used))
            if k == -1: extra = used + ns
            if extra: s.overlog.append((k, extra))
            over += extra
        s.left = [o for o in pending if o.optional]
        pending = [o for o in pending if not o.optional]
        assert not pending, f"unscheduled in {s.name}: {pending[:5]}"
        assert not s.missed, f"missed deadlines in {s.name}: {s.missed[:5]}"
        out = []
        for k in range(-1, NG):
            if k >= 0: out.append(s.mf[k])
            G = gaps[k]
            out += G["s"] + G["m"] + G["v"]
        if verbose: print(file=__import__("sys").stderr, *[f"; region {s.name}: mfma={NG} fillers={len(s.fill)} overfull_slots={over} est_cycles={NG*16+over*4}"])
        s.est = NG*16 + over*4
        s.out = out
        return out

def resolve_waits(trace, skip_tile=lambda o, n: False):
    ds = []; vm = []; fifo = []; taken = 0; seen = {}
    for o in trace:
        if o.kind in ("ds", "dsb"): ds.append(o)
        elif o.kind == "vm":
            vm.append(o)
            if getattr(o, "tile_last", False):
                seen[id(o)] = seen.get(id(o), 0) + 1
                if not skip_tile(o, seen[id(o)]): fifo.append(len(vm) - 1)
        elif o.kind == "w" and (o.need_ds or o.need_vm or o.lg0 or getattr(o, "ntiles", 0)):
            idx = -1
            if getattr(o, "ntiles", 0):
                taken += o.ntiles
                if taken <= len(fifo): idx = fifo[taken - 1]
                else: raise Exception("tile not issued yet")
            for n in o.need_vm:
                c = [i for i, x in enumerate(vm) if x is n]
                if c: idx = max(idx, c[-1])
            if idx >= 0: o.vmn = min(getattr(o, "vmn", 63), len(vm) - 1 - idx)
            parts = []
            if hasattr(o, "vmn"): parts.append(f"vmcnt({o.vmn})")
            if o.lg0: parts.append("lgkmcnt(0)")
            elif o.need_ds:
                last = max(len(ds) - 1 - ds[::-1].index(n) for n in o.need_ds)
                parts.append(f"lgkmcnt({min(len(ds) - 1 - last, 15)})")
            o.text = "s_waitcnt " + " ".join(parts) if parts else "s_nop 0"

def check(seq, name=""):
    errs = []
    pos = []; p = 0
    for o in seq:
        pos.append(p)
        m = re.match(r"s_nop (\d+)", o.text)
        p += int(m.group(1)) + 1 if m else 1
    lastw = {}
    lastC = {}
    pend_ds = []
    for i, o in enumerate(seq):
        if o.text.startswith("s_waitcnt"):
            m = re.search(r"lgkmcnt\((\d+)\)", o.text)
            if m:
                n = int(m.group(1))
                if n < len(pend_ds): pend_ds = pend_ds[len(pend_ds)-n:]
        touched = o.rd | o.wr
        for q in pend_ds:
            if q.wr & touched: errs.append(f"{name}: LDS result not waited: {q.text} -> {o.text}")
        isvalu = o.kind in ("v4", "v8")
        for r in o.rd | (o.wr if o.kind != "mfma" else set()):
            if r in lastw:
                j = lastw[r]; w = seq[j]; dist = pos[i] - pos[j] - 1
                need = 0
                if w.kind == "mfma":
                    if o.kind == "mfma":
                        if r in o.cread and o.cread == w.wr and not (r in (o.rd - o.cread)): need = 0
                        elif r in o.cread: need = 6
                        else: need = 8
                    else: need = 8
                elif w.kind in ("v4", "v8"):
                    if o.kind == "mfma" and r in o.rd: need = 2
                    elif "permlane" in o.text and r in o.rd: need = 2
                    elif w.trans and isvalu and not o.trans and r in o.rd: need = 1
                    elif "readfirstlane" in o.text or "readlane" in o.text: need = 1
                    if r.startswith("s") or r == "vcc":
                        if o.kind == "vm": need = 5
                        elif isvalu: need = 2
                elif w.kind == "s" and r == "m0" and o.kind == "vm": need = 1
                if dist < need: errs.append(f"{name}: hazard {r} need {need} got {dist}: [{w.text}] -> [{o.text}]")
        if o.kind == "mfma":
            for r in o.wr:
                if r in lastw and seq[lastw[r]].kind == "mfma" and r not in o.cread:
                    pass
        if isvalu:
            for r in o.wr:
                if r in lastC and pos[i] - pos[lastC[r]] - 1 < 3: errs.append(f"{name}: WAR srcC {r}: [{seq[lastC[r]].text}] -> [{o.text}]")
        if isvalu:
            for back in (1, 2):
                if i - back >= 0:
                    w = seq[i - back]
                    if w.kind == "vm" and "store" in w.text and (w.rd & o.wr) and pos[i] - pos[i-back] - 1 < 2:
                        errs.append(f"{name}: store WAR: [{w.text}] -> [{o.text}]")
        for r in o.wr: lastw[r] = i
        for r in o.cread: lastC[r] = i
        if o.kind in ("ds", "dsb"): pend_ds.append(o)
    return errs
```

```python
import sys, os
sys.path.insert(0, os.path.dirname(os.path.abspath(__file__)))
from sched import *

OPT = dict(stamps=0, nt=0, dump=0, mapping=84, nodma=0, samekv=0, nored=0, linsrc=0)
for a in sys.argv[1:]:
    k, v = a.split("="); OPT[k] = int(v)
KN = "standalone__mha_block_cached__near_ridge_kernel"

def OA(mt, t): return R("v", (mt*3 + t)*4, 4)
def OAr(mt, t, i): return f"v{(mt*3 + t)*4 + i}"
QV0, PV0, S0, FA0 = 96, 144, 192, 204
def QV(s, t): return R("v", QV0 + (s*3 + t)*4, 4)
def QVr(s, t, i): return f"v{QV0 + (s*3 + t)*4 + i}"
def PB(buf, sg, t): return R("v", PV0 + 24*buf + (sg*3 + t)*4, 4)
def PBr(buf, sg, t, i): return f"v{PV0 + 24*buf + (sg*3 + t)*4 + i}"
def OP(s, t): return R("v", PV0 + (s*3 + t)*4, 4)
def OPr(s, t, i): return f"v{PV0 + (s*3 + t)*4 + i}"
def FR(buf, f, half=None):
    b = FA0 + 16*buf + 4*f
    return R("v", b, 4) if half is None else R("v", b + 2*half, 2)
vK = ["v236", "v237", "v238", "v239"]
vVb, vWb, vT = "v240", "v241", ["v242", "v243"]
vDK, vDV, vDW, vXo, vBp = "v244", "v245", "v246", "v247", "v248"
vRL = ["v249", "v250", "v251"]
vLane, vDWo, vA, vB = "v252", "v253", "v254", "v255"
def XA(s, t): return R("a", (s*3 + t)*4, 4)
ZB = {0: 144, 1: 192, 2: 0}
def ZA(h, s, t): return R("a", ZB[h] + (s*3 + t)*4, 4)
def LA(t): return R("a", 240 + 4*t, 4)
ONES = "a[252:255]"

srdK, srdV, srdW, srdX, srdWS, srdO, srdD = (f"s[{i}:{i+3}]" for i in (8, 12, 16, 20, 24, 28, 32))
sP, sKb, sVb, sWb, sDK, sDV, sDW, sMA, sMB = (f"s{i}" for i in range(36, 45))
sKoff, sVoff, sWcol = "s45", "s46", "s47"
sR = [None, "s48", "s49", "s50"]
sD = [None, "s51", "s52", "s53"]
sT = ["s54", "s55", "s56", "s57"]
sW4k, sHead, sScale, sWave, sB, sG = "s58", "s59", "s60", "s61", "s62", "s63"
s16k, s32k = "s64", "s65"
sLo, sHi = "s66", "s67"
sBad = "s[84:85]"
sIt, sStA, sStB, sSig, sPoll, sExp, sLd, sOut = (f"s{i}" for i in range(86, 94))
sU = ["s94", "s95", "s96", "s97"]
sMask, sTmp, sTmp2 = "s98", "s99", "s100"
OOB = 0x40000000
FLAG_BASE = 0x3000000
STAMP_BASE = 0x3100000
DUMP_BASE = 0x4000000
WS_BYTES = 0x8000000 if OPT["dump"] else 0x3200000
ORD = [(0,0),(0,1),(0,2),(1,0),(0,3),(1,3),(1,1),(1,2)]
NT = " nt" if OPT["nt"] else ""

def S(text, rd=(), wr=(), **kw): return Op(text, "s", rd=rd, wr=wr, **kw)
def V(text, rd=(), wr=(), **kw): return Op(text, "v4", rd=rd, wr=wr, **kw)
def V8(text, rd=(), wr=(), **kw): return Op(text, "v8", rd=rd, wr=wr, **kw)
def WAIT(d, need_ds=(), need_vm=(), lg0=False, late=3, e=-1, first=None):
    o = Op("s_waitcnt ?", "w", e=e, d=d, late=late, deps=[(x, 1) for x in need_ds])
    o.need_ds, o.need_vm, o.lg0 = list(need_ds), ([need_vm] if isinstance(need_vm, str) else list(need_vm)), lg0
    o.need_first = first
    return o

class Ctx: pass
C = Ctx(); C.grp = 0

def acquire(rg, typ, e, d, after=()):
    sb, sdl = {"K": (sKb, sDK), "V": (sVb, sDV), "W": (sWb, sDW)}[typ]
    o1 = rg.F(S(f"s_sub_u32 {sdl}, {sP}, {sb}", rd=[sP, sb], wr=[sdl], e=e, d=d))
    rg.F(S(f"s_mov_b32 {sb}, {sP}", rd=[sP], wr=[sb], e=e))
    rg.F(S(f"s_add_u32 {sP}, {sP}, 0x4000", rd=[sP], wr=[sP], e=e))
    rg.F(S(f"s_cmp_eq_u32 {sP}, 0x28000", rd=[sP], e=e))
    rg.F(S(f"s_cselect_b32 {sP}, 0, {sP}", rd=[sP], wr=[sP], e=e))
    regs_ = vK if typ == "K" else [vVb if typ == "V" else vWb]
    ups = [rg.F(V(f"v_add_u32 {r}, {sdl}, {r}", rd=[r, sdl], wr=[r], e=e, d=d, deps=[(o1, 0)] + [(a, 0) for a in after])) for r in regs_]
    rg.last_up[typ] = ups
    return ups

def save_m(rg, typ, sm, e):
    sb = {"K": sKb, "V": sVb, "W": sWb}[typ]
    deps = [(x, 1) for x in rg.m_users.get(sm, [])]
    return rg.F(S(f"s_add_u32 {sm}, {sb}, {sW4k}", rd=[sb, sW4k], wr=[sm], e=e, deps=deps))

def refill(rg, typ, sm, bar, d0, step=None, spread=8):
    prev = rg.last_dma
    m0 = rg.F(S(f"s_mov_b32 m0, {sm}", rd=[sm], wr=["m0"], deps=[(x, 1) for x in prev]))
    rg.m_users[sm] = [m0]
    ops = []
    if typ in "KV":
        so, vo, srd = (sKoff, vDK, srdK) if typ == "K" else (sVoff, vDV, srdV)
        for i in range(4):
            ops.append(rg.F(Op(f"buffer_load_dwordx4 {vo}, {srd}, {so} offen offset:{i*1024}{NT} lds", "vm", rd=[vo, so, "m0"],
                               d=d0 + spread*i, deps=[(bar, 0), (m0, 1)] + ([(ops[-1], 1)] if ops else []), tag=typ)))
        rg.F(S(f"s_add_u32 {so}, {so}, 0x4000", rd=[so], wr=[so], deps=[(ops[-1], 1)]))
    else:
        hf, dg = ORD[step]
        pdeps = [(x, 1) for x in rg.last_wdma]
        if dg == 0: t0 = rg.F(S(f"s_add_u32 {sT[0]}, {sWcol}, {128*hf}", rd=[sWcol], wr=[sT[0]], deps=pdeps))
        else:
            t0 = rg.F(S(f"s_add_u32 {sT[0]}, {sWcol}, {sR[dg]}", rd=[sWcol, sR[dg]], wr=[sT[0]], deps=pdeps))
            if hf: t0 = rg.F(S(f"s_add_u32 {sT[0]}, {sT[0]}, 128", rd=[sT[0]], wr=[sT[0]]))
        ts = [t0] + [rg.F(S(f"s_add_u32 {sT[i]}, {sT[0]}, {sD[i]}", rd=[sT[0], sD[i]], wr=[sT[i]])) for i in (1, 2, 3)]
        if step == 7: rg.F(S(f"s_add_u32 {sWcol}, {sWcol}, 256", rd=[sWcol], wr=[sWcol]))
        for i in range(4):
            ops.append(rg.F(Op(f"buffer_load_dwordx4 {vDW}, {srdW}, {sT[i]} offen offset:{i*1024} lds", "vm", rd=[vDW, sT[i], "m0"],
                               d=d0 + spread*i, deps=[(bar, 0), (m0, 1), (ts[i], 0)] + ([(ops[-1], 1)] if ops else []), tag="W")))
        rg.last_wdma = ops
    rg.last_dma = ops; ops[-1].tile_last = True
    return ops

def new_region(name):
    rg = Region(name); rg.last_dma = []; rg.last_wdma = []; rg.m_users = {}; rg.last_up = {}; rg.tuse = {0: [], 1: []}
    return rg

def xor_addr(rg, base, k, ti, e, d, after=()):
    if k == 0: return base, None
    deps = [(x, 0) for x in rg.tuse[ti]] + [(a, 0) for a in after]
    o = rg.F(V(f"v_xor_b32 {vT[ti]}, {k*32}, {base}", rd=[base], wr=[vT[ti]], e=e, d=d, deps=deps))
    rg.tuse[ti] = []
    return vT[ti], o

def reads_W(rg, mt, buf, e, deps=(), ups=()):
    a, xo = xor_addr(rg, vWb, mt, mt & 1, e - 8, e, ups)
    dp = list(deps) + ([(xo, 1)] if xo else [(u, 1) for u in ups])
    ops = []
    for s in range(4):
        for p in range(2):
            ops.append(rg.F(Op(f"ds_read_b64_tr_b16 {FR(buf, s, p)}, {a} offset:{s*4096 + p*2048}", "ds", rd=[a], wr=[FR(buf, s, p)],
                               e=e, d=e + 2 + len(ops)*5//8, deps=dp + ([(ops[-1], 0)] if ops else []))))
    if xo: rg.tuse[mt & 1] = ops
    return ops, xo
def reads_K(rg, u, buf, e, deps=(), ups=()):
    ops = []
    for s in range(4):
        ops.append(rg.F(Op(f"ds_read_b128 {FR(buf, s)}, {vK[s]} offset:{u*1024}", "ds", rd=[vK[s]], wr=[FR(buf, s)],
                           e=e, d=e + 3 + len(ops), deps=list(deps) + [(x, 1) for x in ups] + ([(ops[-1], 0)] if ops else []))))
    return ops
def reads_V(rg, dp_, buf, e, deps=(), ups=()):
    ops = []; xs = []
    for k in range(2):
        dt = 2*dp_ + k
        a, xo = xor_addr(rg, vVb, dt, k, e - 10, e, ups)
        if xo: xs.append(xo)
        dd = list(deps) + ([(xo, 1)] if xo else [(u, 1) for u in ups])
        mine = []
        for sg in range(2):
            for p in range(2):
                o = rg.F(Op(f"ds_read_b64_tr_b16 {FR(buf, 2*k + sg, p)}, {a} offset:{sg*2048 + p*1024}", "ds", rd=[a], wr=[FR(buf, 2*k + sg, p)],
                            e=e, d=e + 2 + len(ops)*5//8, deps=dd + ([(ops[-1], 0)] if ops else [])))
                ops.append(o); mine.append(o)
        if xo: rg.tuse[k] = mine
    return ops, xs

def barrier(rg, gap, last_reads, ntiles, extra=()):
    w = rg.F(WAIT(gap - 1, need_ds=last_reads, need_vm=extra, lg0=True, late=1)); w.ntiles = ntiles
    w.deps += [(x, 1) for x in extra]
    b = rg.F(Op("s_barrier", "w", e=gap, d=gap, deps=[(w, 1)]))
    return b

def frag_waits(rg, rd_ops, first_use, n_first, second_use):
    if rd_ops is None: return
    rg.F(WAIT(first_use - 1, need_ds=rd_ops[:n_first], late=2))
    if n_first < len(rd_ops): rg.F(WAIT(second_use - 1, need_ds=rd_ops, late=1))

def w_step(rg, step, Bop, pend, extra, next_kind, refill_spec, czero=None):
    hf, dg = ORD[step]
    b0 = rg.n()
    zero = (step in (0, 3)) if czero is None else czero
    info = dict(b0=b0)
    xlast = None
    for mt in range(4):
        buf = C.grp & 1; C.grp += 1
        g0 = b0 + 12*mt
        if mt < 3 or True:
            if pend is not None and not (mt == 3): frag_waits(rg, pend, g0, 4, g0 + 2)
        for t in range(3):
            for s in range(4):
                acc = OA(4*hf + mt, t)
                rg.M(mfma(acc, FR(buf, s), Bop(s, t), "0" if (zero and s == 0) else acc))
        if mt < 3:
            pend, xo = reads_W(rg, mt + 1, buf ^ 1, g0 - 1 if (mt or b0) else g0)
            if mt == 0: first_reads0 = None
            if xo: xlast = xo
            if mt == 2:
                bar = barrier(rg, g0 + 11, pend, 1, extra)
        else:
            sm = save_m(rg, "W", sMA, b0)
            if next_kind == "W":
                ups = acquire(rg, "W", b0 + 24, g0 - 2, after=[xlast])
                pend, _ = reads_W(rg, 0, buf ^ 1, g0 - 1, deps=[(bar, 0)], ups=ups)
            else:
                ups = acquire(rg, "K", b0 + 24, g0 - 2)
                pend = reads_K(rg, 0, buf ^ 1, g0 - 1, deps=[(bar, 0)], ups=ups)
            typ, st = refill_spec
            info["dma"] = refill(rg, typ, sMA, bar, g0 + 6, st)
    info["bar"] = bar; info["end"] = rg.n() - 1
    return pend, info

def softmax(rg, g0, u, Sr, pbuf, d_over, d_puse):
    sg = u >> 1
    for t in range(3):
        last = rg.mf[g0 + 4*t + 3]
        dl = min(d_over(t), d_puse(t) - 3)
        ex = [rg.F(V8(f"v_exp_f32 {Sr(t,i)}, {Sr(t,i)}", rd=[Sr(t,i)], wr=[Sr(t,i)], e=last.gap, sdeps=[(last, 8)], trans=True)) for i in range(4)]
        for j in range(2):
            dst = PBr(pbuf, sg, t, 2*(u & 1) + j)
            rg.F(V(f"v_cvt_pk_bf16_f32 {dst}, {Sr(t,2*j)}, {Sr(t,2*j+1)}", rd=[Sr(t,2*j), Sr(t,2*j+1)], wr=[dst], d=dl,
                   sdeps=[(ex[2*j], 1), (ex[2*j+1], 1)]))

def k_mfmas(rg, buf, Sd):
    for t in range(3):
        for s in range(4):
            rg.M(mfma(Sd(t), FR(buf, s), QV(s, t), "0" if s == 0 else Sd(t)))
def v_mfmas(rg, dp_, buf, pbuf, zero, tmajor=False):
    order = [(k, t) for t in range(3) for k in range(2)] if tmajor else [(k, t) for k in range(2) for t in range(3)]
    last = {}
    for k, t in order:
        for sg in range(2):
            acc = OA(2*dp_ + k, t)
            last[(2*dp_ + k, t)] = rg.M(mfma(acc, FR(buf, 2*k + sg), PB(pbuf, sg, t), "0" if (zero and sg == 0) else acc))
    return last
def sum_mfmas(rg, t, pbuf, zero):
    for sg in range(2):
        o = rg.M(mfma(LA(t), ONES, PB(pbuf, sg, t), "0" if (zero and sg == 0) else LA(t)))
    return o

def o_epilogue_ops(dt, t):
    mul = [V(f"v_mul_f32 {OAr(dt,t,i)}, {vRL[t]}, {OAr(dt,t,i)}", rd=[OAr(dt,t,i), vRL[t]], wr=[OAr(dt,t,i)]) for i in range(4)]
    cvt = []
    for j in range(2):
        dst = OPr(dt >> 1, t, 2*(dt & 1) + j)
        cvt.append(V(f"v_cvt_pk_bf16_f32 {dst}, {OAr(dt,t,2*j)}, {OAr(dt,t,2*j+1)}", rd=[OAr(dt,t,2*j), OAr(dt,t,2*j+1)], wr=[dst],
                     deps=[(mul[2*j], 0), (mul[2*j+1], 0)]))
    for o in mul + cvt: o.ot = (dt, t)
    return mul, cvt

def q_epilogue(rg, sp, t, lastA, lastB, e_cvt, d_use):
    cv = []
    for k, last in ((0, lastA), (1, lastB)):
        mt = 2*sp + k
        mul = [rg.F(V(f"v_mul_f32 {OAr(mt,t,i)}, {sScale}, {OAr(mt,t,i)}", rd=[OAr(mt,t,i)], wr=[OAr(mt,t,i)],
                      e=(last.gap if last is not None else -1), sdeps=([(last, 8)] if last is not None else []))) for i in range(4)]
        for j in range(2):
            dst = QVr(sp, t, 2*k + j)
            cv.append(rg.F(V(f"v_cvt_pk_bf16_f32 {dst}, {OAr(mt,t,2*j)}, {OAr(mt,t,2*j+1)}", rd=[OAr(mt,t,2*j), OAr(mt,t,2*j+1)], wr=[dst],
                             e=e_cvt, deps=[(mul[2*j], 0), (mul[2*j+1], 0)])))
    for j in range(2):
        a, b = QVr(sp, t, j), QVr(sp, t, 2 + j)
        p1 = rg.F(V8(f"v_permlane32_swap_b32 {a}, {b}", rd=[a, b], wr=[a, b], sdeps=[(cv[j], 2), (cv[2+j], 2)]))
        rg.F(V8(f"v_permlane16_swap_b32 {a}, {b}", rd=[a, b], wr=[a, b], sdeps=[(p1, 2)], d=d_use - 3))

TILE = {}

def build_R2():
    rg = new_region("R2")
    C.grp = 24
    def Bop(st):
        dg = ORD[st][1]
        return (lambda s, t: XA(4*dg + s, t)) if dg < 3 else (lambda s, t: QV(s, t))
    pend, i6 = w_step(rg, 6, Bop(6), None, (), "W", ("V", None)); TILE["V3"] = i6["dma"]
    pend, i7 = w_step(rg, 7, Bop(7), pend, (), "K", ("K", None)); TILE["K5"] = i7["dma"]
    a0 = rg.n()
    for sp in (0, 1):
        for t in range(3): q_epilogue(rg, sp, t, None, None, -1, min(a0 + 4*t + sp, i7["b0"] + 20))
    b7 = i7["b0"]
    for sp in (2, 3):
        for t in range(3):
            mA, mB = 2*sp - 4, 2*sp - 3
            q_epilogue(rg, sp, t, rg.mf[b7 + 12*mA + 4*t + 3], rg.mf[b7 + 12*mB + 4*t + 3], -1, a0 + 4*t + sp)
    B = lambda i: a0 + 48 + 102*i
    GK = [0, 26, 52, 78]; GV = [12, 38, 64, 90]
    def puse(i, sg, t):
        return (B(i) + 12 + 2*t + sg) if i < 7 else (B(7) + 4*t + sg)
    for u in range(4):
        buf = C.grp & 1; C.grp += 1; g0 = rg.n()
        if u < 3: frag_waits(rg, pend, g0, 2, g0 + 2)
        k_mfmas(rg, buf, lambda t: OA(u, t))
        softmax(rg, g0, u, lambda t, i: OAr(u, t, i), 0, lambda t: 10**9, lambda t: puse(0, u >> 1, t))
        if u < 3:
            pend = reads_K(rg, u + 1, buf ^ 1, g0 - 1)
            if u == 2: bar = barrier(rg, g0 + 11, pend, 2); lastK = pend
        else:
            save_m(rg, "K", sMA, g0 - 24)
            ups = acquire(rg, "K", g0 - 12, g0 - 2, after=lastK)
            pend = reads_K(rg, 0, buf ^ 1, g0 - 1, deps=[(bar, 0)], ups=ups)
            upsV = acquire(rg, "V", g0 - 6, g0 + 8)
            TILE["V4"] = refill(rg, "V", sMA, bar, g0 + 6)
    REF = [(("K",None,"K6"),("V",None,"V5")), (("K",None,"K7"),("V",None,"V6")), (("V",None,"V7"),("W",0,"W0")),
           (("W",1,"W1"),("W",2,"W2")), (("W",3,"W3"),("W",4,"W4")), (("W",5,"W5"),("W",6,"W6")), (("W",7,"W7"),("K",None,"K0"))]
    for i in range(7):
        b0 = rg.n(); assert b0 == B(i)
        for u in range(4):
            buf = C.grp & 1; C.grp += 1; g0 = rg.n(); assert g0 == b0 + GK[u]
            frag_waits(rg, pend, g0, 2, g0 + 2)
            k_mfmas(rg, buf, lambda t: R("v", S0 + 4*t, 4))
            nxtK = (b0 + GK[u+1]) if u < 3 else (B(i+1) if i < 6 else None)
            softmax(rg, g0, u, lambda t, j: f"v{S0 + 4*t + j}", (i + 1) & 1,
                    (lambda t: nxtK + 4*t - 1) if nxtK else (lambda t: 10**9), lambda t: puse(i + 1, u >> 1, t))
            pend, xs = reads_V(rg, u, buf ^ 1, g0 - 1, ups=(upsV if u == 0 else ()))
            if u == 3:
                bar = barrier(rg, g0 + 11, pend, 2 if i < 6 else 1); lastV = pend; lastX = xs
            buf = C.grp & 1; C.grp += 1; g0 = rg.n(); assert g0 == b0 + GV[u]
            if u < 3: frag_waits(rg, pend, g0, 4, g0 + 6)
            v_mfmas(rg, u, buf, i & 1, i == 0)
            if u < 3:
                sum_mfmas(rg, u, i & 1, i == 0)
                pend = reads_K(rg, u + 1, buf ^ 1, g0 - 1)
                if u == 2: lastK = pend
            else:
                save_m(rg, "K", sMA, g0 - 30); save_m(rg, "V", sMB, g0 - 30)
                if i < 6:
                    ups = acquire(rg, "K", g0 - 20, g0 - 2, after=lastK)
                    pend = reads_K(rg, 0, buf ^ 1, g0 - 1, deps=[(bar, 0)], ups=ups)
                    upsV = acquire(rg, "V", g0 - 10, g0 + 8, after=lastX)
                else:
                    upsV = acquire(rg, "V", g0 - 10, g0 - 2, after=lastX)
                    pend, _ = reads_V(rg, 0, buf ^ 1, g0 - 1, deps=[(bar, 0)], ups=upsV)
                (t1, s1, n1), (t2, s2, n2) = REF[i]
                TILE[n1 + "'" if n1 in ("W0","W1","W2","W3","W4","W5","W6","W7","K0") else n1] = refill(rg, t1, sMA, bar, g0 + 8, s1, spread=8)
                TILE[n2 + "'" if n2 in ("W0","W1","W2","W3","W4","W5","W6","W7","K0") else n2] = refill(rg, t2, sMB, bar, g0 + 40, s2, spread=8)
    E = rg.n(); assert E == B(7)
    epi = []
    for p in range(4):
        buf = C.grp & 1; C.grp += 1; g0 = rg.n()
        if p == 0: frag_waits(rg, pend, g0, 4, g0 + 2)
        elif p < 3: frag_waits(rg, pend, g0, 4, g0 + 6)
        last = v_mfmas(rg, p, buf, 1, False, tmajor=(p == 0))
        if p == 0:
            rl = []
            lr = []
            for t in range(3):
                ls = sum_mfmas(rg, t, 1, False)
                lr.append(rg.F(V(f"v_accvgpr_read_b32 {vRL[t]}, a{240+4*t}", rd=[f"a{240+4*t}"], wr=[vRL[t]], e=ls.gap, sdeps=[(ls, 8)], d=E + 28)))
            mn = rg.F(V(f"v_min3_f32 {vA}, {vRL[0]}, {vRL[1]}, {vRL[2]}", rd=vRL, wr=[vA], deps=[(x, 0) for x in lr], d=E + 30))
            mx = rg.F(V(f"v_max3_f32 {vB}, {vRL[0]}, {vRL[1]}, {vRL[2]}", rd=vRL, wr=[vB], deps=[(x, 0) for x in lr], d=E + 30))
            rg.F(V(f"v_cmp_gt_f32 {sBad}, {sLo}, {vA}", rd=[vA], wr=[sBad], deps=[(mn, 0)], d=E + 40))
            rg.F(V(f"v_cmp_lt_f32 vcc, {sHi}, {vB}", rd=[vB], wr=["vcc"], deps=[(mx, 0)], d=E + 40))
            for t in range(3):
                rl.append(rg.F(V8(f"v_rcp_f32 {vRL[t]}, {vRL[t]}", rd=[vRL[t]], wr=[vRL[t]], deps=[(mn, 0), (mx, 0)], trans=True, d=E + 34)))
        for (dt, t), lm in last.items():
            mul, cvt = o_epilogue_ops(dt, t)
            for o in mul: o.e = lm.gap; o.sdeps = [(lm, 8), (rl[t], 1)]
            for o in mul + cvt:
                o.optional = True
                if dt >= 4 and o in cvt: o.e = 10**9
                rg.F(o); epi.append(o)
        if p < 3:
            pend, xs = reads_V(rg, p + 1, buf ^ 1, g0 - 1 if p != 0 else g0 + 3)
            if p == 2: bar = barrier(rg, g0 + 11, pend, 1)
        else:
            save_m(rg, "V", sMA, g0 - 20)
            ups = acquire(rg, "W", g0 - 14, g0 - 2)
            pend, _ = reads_W(rg, 0, buf ^ 1, g0 - 1, deps=[(bar, 0)], ups=ups)
            TILE["K1'"] = refill(rg, "K", sMA, bar, g0 + 4, spread=2)
    rg.pendW0 = pend; rg.epi = epi
    rg.schedule()
    return rg

def build_R1(left):
    rg = new_region("R1")
    C.grp = 0
    def Bop(st):
        dg = ORD[st][1]
        return (lambda s, t: XA(4*dg + s, t)) if dg < 3 else (lambda s, t: QV(s, t))
    REF = [("V","V0"),("K","K2"),("V","V1"),("K","K3"),("V","V2"),("K","K4")]
    pend = None; infos = []
    for st in range(6):
        pend, inf = w_step(rg, st, Bop(st), pend, (), "W", (REF[st][0], None)); TILE[REF[st][1]] = inf["dma"]; infos.append(inf)
    xl = []
    for t in range(3):
        for s in range(4):
            so = ["0", s16k, s32k][t]
            xl.append(rg.F(Op(f"buffer_load_dwordx4 {QV(s,t)}, {vXo}, {srdX}, {so} offen offset:{(12+s)*64}", "vm", rd=[vXo], wr=[QV(s,t)],
                              e=4, d=10 + 3*len(xl), deps=([(xl[-1], 1)] if xl else []))))
    wx = rg.F(WAIT(84, need_vm=xl, late=1)); wx.deps = [(x, 1) for x in xl]
    bp = []
    for t in range(3):
        for s in range(4):
            for i in range(4):
                r_ = QVr(s, t, i)
                bp.append(rg.F(Op(f"ds_bpermute_b32 {r_}, {vBp}, {r_}", "dsb", rd=[vBp, r_], wr=[r_], deps=[(wx, 0)], d=min(86 + 2*len(bp) + 4, 186))))
    rg.F(WAIT(infos[4]["b0"] - 1, need_ds=bp, late=1))
    new = {}
    for o in left:
        dt, t = o.ot
        n = V(o.text, rd=list(o.rd), wr=list(o.wr)); n.ot = o.ot; new[id(o)] = n
        n.deps = [(new[id(p)], g) for (p, g) in o.deps if id(p) in new]
        n.e = 8 if dt >= 6 else -1
        n.d = ((12*dt + 4*t) if dt < 4 else (144 + 12*(dt - 4) + 4*t)) - 1
        rg.F(n)
    rg.pend = pend
    rg.schedule()
    return rg

RLD = [[R("v", QV0 + 4*g, 4) for g in range(8)],
       [R("v", QV0 + 32 + 4*g, 4) for g in range(4)] + [R("v", S0 + 4*g, 4) for g in range(3)] + ["v[236:239]"]]
vSt, vFl, vPo, vPr, vOut = vDK, vDV, vVb, vXo, vBp
LO0 = ["v249", "v250", "v251", "v253"]
def pack_store(chunk, sbase):
    res = []
    for t in range(3):
        for np_ in range(2):
            a, b = 4*chunk + 2*np_, 4*chunk + 2*np_ + 1
            src = [(OAr(a,t,0), OAr(a,t,1)), (OAr(a,t,2), OAr(a,t,3)), (OAr(b,t,0), OAr(b,t,1)), (OAr(b,t,2), OAr(b,t,3))]
            cv = []
            for j in range(4):
                cv.append(V(f"v_cvt_pk_bf16_f32 {OAr(a,t,j)}, {src[j][0]}, {src[j][1]}", rd=list(src[j]), wr=[OAr(a,t,j)], deps=([(cv[-1], 0)] if cv else [])))
            res.append((t, np_, a, b, cv))
    return res
def reduce_ops(np_):
    X = [regs(r_) for r_ in RLD[np_]]
    lo = LO0 if np_ == 0 else regs(RLD[0][1])
    tmp = [vA, vB]
    ops = []
    lastop = {}
    n = 0
    for k in range(4):
        o1 = V(f"v_lshlrev_b32 {lo[k]}, 16, {X[0][k]}", rd=[X[0][k]], wr=[lo[k]])
        o2 = V(f"v_and_b32 {X[0][k]}, {sMask}, {X[0][k]}", rd=[X[0][k]], wr=[X[0][k]])
        ops += [o1, o2]
        for g in range(1, 8):
            tm = tmp[n & 1]; n += 1
            ops += [V(f"v_lshlrev_b32 {tm}, 16, {X[g][k]}", rd=[X[g][k]], wr=[tm]),
                    V(f"v_and_b32 {X[g][k]}, {sMask}, {X[g][k]}", rd=[X[g][k]], wr=[X[g][k]]),
                    V(f"v_add_f32 {lo[k]}, {lo[k]}, {tm}", rd=[lo[k], tm], wr=[lo[k]]),
                    V(f"v_add_f32 {X[0][k]}, {X[0][k]}, {X[g][k]}", rd=[X[0][k], X[g][k]], wr=[X[0][k]])]
        ops.append(V(f"v_cvt_pk_bf16_f32 {X[0][k]}, {lo[k]}, {X[0][k]}", rd=[lo[k], X[0][k]], wr=[X[0][k]]))
    for a, b in zip(ops, ops[1:]): b.deps.append((a, 0))
    pl = []
    for j in range(2):
        pl.append(V8(f"v_permlane32_swap_b32 {X[0][j]}, {X[0][2+j]}", rd=[X[0][j], X[0][2+j]], wr=[X[0][j], X[0][2+j]], sdeps=[(ops[-1], 2)]))
    for j in range(2):
        pl.append(V8(f"v_permlane16_swap_b32 {X[0][j]}, {X[0][2+j]}", rd=[X[0][j], X[0][2+j]], wr=[X[0][j], X[0][2+j]], sdeps=[(pl[j], 2)]))
    st = Op(f"buffer_store_dwordx4 {RLD[np_][0]}, {vOut}, {srdO}, {sOut} offen offset:{np_*64}", "vm", rd=[RLD[np_][0], vOut, sOut], deps=[(pl[2], 1), (pl[3], 1)])
    return ops, pl, st
def red_loads():
    sal = [S(f"s_add_u32 {sU[i]}, {sLd}, {4096*i}", rd=[sLd], wr=[sU[i]]) for i in range(4)]
    lds = [[], []]
    for np_ in range(2):
        for g in range(8):
            lds[np_].append(Op(f"buffer_load_dwordx4 {RLD[np_][g]}, {vSt}, {srdWS}, {sU[g >> 1]} offen offset:{(g & 1)*2048 + np_*1024} sc1", "vm",
                               rd=[vSt, sU[g >> 1]], wr=[RLD[np_][g]], deps=[(sal[g >> 1], 0)]))
    return sal, lds

def build_G():
    rg = new_region("G")
    C.grp = 0
    def Bop(st):
        h = ORD[st][1]
        return (lambda s, t: ZA(h, s, t)) if h < 3 else (lambda s, t: OP(s, t))
    po = Op(f"buffer_load_dword {vPr}, {vPo}, {srdWS}, {sPoll} offen sc1", "vm", rd=[vPo], wr=[vPr], e=340, d=352)
    wp = rg.F(WAIT(0, need_vm=[po], late=1)); wp.e = 0
    cm = rg.F(V(f"v_cmp_ne_u32 vcc, {sExp}, {vPr}", rd=[vPr], wr=["vcc"], deps=[(wp, 0)], d=1))
    br = rg.F(Op("s_cbranch_vccnz L_spinG\nL_backG:", "s", rd=["vcc"], e=4, d=4, deps=[(cm, 3)]))
    sal, lds = red_loads()
    for o in sal: rg.F(o)
    prev = None
    for i, o in enumerate(lds[0] + lds[1]):
        o.deps += [(br, 0)] + ([(prev, 1)] if prev else []); o.d = 14 + 5*i; rg.F(o); prev = o
    stores1 = []
    for (t, np_, a, b, cv) in pack_store(1, sStB):
        for o in cv: o.e = 8; rg.F(o)
        so = [sStB, "s4", "s5"][t]
        st = rg.F(Op(f"buffer_store_dwordx4 {OA(a,t)}, {vSt}, {srdWS}, {so} offen offset:{np_*1024} sc1", "vm", rd=[OA(a,t), vSt], deps=[(cv[-1], 1)],
                     d=min(144 + 12*(a - 4) + 4*t - 3, 100 + 6*len(stores1))))
        cv[-1].d = 144 + 12*(b - 4) + 4*t - 1
        stores1.append(st)
    infos = []; pend = None
    for st in range(8):
        need = stores1 if st == 4 else ()
        if st == 6:
            rg.F(S(f"s_cmp_ge_u32 {sIt}, 2", e=6*48))
            rg.F(S(f"s_cselect_b32 s18, 0, s18", wr=["s18"], rd=["s18"], deps=[(x, 1) for x in rg.last_wdma]))
        pend, inf = w_step(rg, st, Bop(st), pend, need, "W", ("W", (st + 2) & 7))
        infos.append(inf)
        if st == 4:
            sig = rg.F(Op(f"buffer_store_dword {vLane}, {vFl}, {srdWS}, {sSig} offen sc1", "vm", rd=[vLane, vFl], deps=[(inf["bar"], 0)], d=inf["end"] + 2))
    b4 = infos[4]["b0"]
    for (t, np_, a, b, cv) in pack_store(0, sStA):
        la, lb = rg.mf[b4 + 12*a + 4*t + 3], rg.mf[b4 + 12*b + 4*t + 3]
        cv[0].sdeps = [(la, 8)]; cv[0].e = la.gap; cv[2].sdeps = [(lb, 8)]; cv[2].e = lb.gap
        for o in cv: rg.F(o)
        so = [sStA, "s6", "s7"][t]
        rg.F(Op(f"buffer_store_dwordx4 {OA(a,t)}, {vSt}, {srdWS}, {so} offen offset:{np_*1024} sc1", "vm", rd=[OA(a,t), vSt], deps=[(cv[-1], 1)], d=340))
    w0 = rg.F(WAIT(150, need_vm=lds[0], late=1)); w0.deps = [(x, 1) for x in lds[0]]
    w1 = rg.F(WAIT(230, need_vm=lds[1], late=1)); w1.deps = [(x, 1) for x in lds[1]]
    o0, p0, s0_ = reduce_ops(0); o1, p1, s1_ = reduce_ops(1)
    o0[0].deps.append((w0, 0)); o1[0].deps += [(w1, 0), (o0[-1], 0)]
    for o in o0 + p0 + [s0_] + o1 + p1 + [s1_]: rg.F(o)
    s1_.d = 380
    rg.F(po); rg.po = po
    rg.schedule()
    return rg

def lin(text):
    return [Op(l.strip(), "x") for l in text.strip().split("\n") if l.strip()]

def dma_tile_linear(typ, slot, step=None):
    out = [f"s_add_u32 {sMA}, {sW4k}, {slot*16384}", f"s_mov_b32 m0, {sMA}"]
    ops = lin("\n".join(out))
    if typ in "KV":
        so, vo, srd = (sKoff, vDK, srdK) if typ == "K" else (sVoff, vDV, srdV)
        ops += lin("s_nop 0")
        d = [Op(f"buffer_load_dwordx4 {vo}, {srd}, {so} offen offset:{i*1024}{NT} lds", "vm") for i in range(4)]
        ops += d + lin(f"s_add_u32 {so}, {so}, 0x4000")
    else:
        hf, dg = ORD[step]
        t = [f"s_add_u32 {sT[0]}, {sWcol}, {128*hf}"]
        if dg: t.append(f"s_add_u32 {sT[0]}, {sT[0]}, {sR[dg]}")
        t += [f"s_add_u32 {sT[i]}, {sT[0]}, {sD[i]}" for i in (1, 2, 3)]
        if step == 7: t.append(f"s_add_u32 {sWcol}, {sWcol}, 256")
        d = [Op(f"buffer_load_dwordx4 {vDW}, {srdW}, {sT[i]} offen offset:{i*1024} lds", "vm") for i in range(4)]
        ops += lin("\n".join(t)) + d
    d[-1].tile_last = True
    return ops, d

def stamp():
    if not OPT["stamps"]: return []
    return lin(f"""s_memtime s[2:3]
s_waitcnt lgkmcnt(0)
v_mov_b32 {vA}, s2""") + [Op(f"buffer_store_dword {vA}, off, {srdWS}, s101", "vm")] + lin("s_add_u32 s101, s101, 4\ns_nop 1")

def prologue():
    o = lin(f"""
s_cmp_lt_u32 s2, 256
s_cbranch_scc1 L_go
s_endpgm
L_go:
s_load_dwordx16 s[68:83], s[0:1], 0
v_lshrrev_b32 v1, 6, v0
v_and_b32 {vLane}, 63, v0
s_and_b32 s4, s2, 7
v_readfirstlane_b32 {sWave}, v1
s_lshr_b32 s5, s2, 3""")
    if OPT["mapping"] == 84:
        o += lin(f"""
s_lshr_b32 s6, s4, 1
s_lshl_b32 s6, s6, 3
s_lshr_b32 s7, s5, 2
s_add_u32 {sB}, s6, s7
s_and_b32 s6, s4, 1
s_lshl_b32 s6, s6, 2
s_and_b32 s7, s5, 3
s_add_u32 {sG}, s6, s7""")
    elif OPT["mapping"] == 48:
        o += lin(f"""
s_lshl_b32 s6, s4, 2
s_lshr_b32 s7, s5, 3
s_add_u32 {sB}, s6, s7
s_and_b32 {sG}, s5, 7""")
    elif OPT["mapping"] == 162:
        o += lin(f"""
s_lshr_b32 s6, s4, 2
s_lshl_b32 s6, s6, 4
s_lshr_b32 s7, s5, 1
s_add_u32 {sB}, s6, s7
s_and_b32 s6, s4, 3
s_lshl_b32 s6, s6, 1
s_and_b32 s7, s5, 1
s_add_u32 {sG}, s6, s7""")
    cs = 0.12751743
    import struct, math
    cbits = struct.unpack("<I", struct.pack("<f", math.log2(math.e)/math.sqrt(128)))[0]
    o += lin(f"""
s_lshl_b32 {sW4k}, {sWave}, 12
s_mov_b32 {s16k}, 0x4000
s_mov_b32 {s32k}, 0x8000
s_mov_b32 {sScale}, {hex(cbits)}
s_mov_b32 {sLo}, 0x30800000
s_mov_b32 {sHi}, 0x4e800000
s_mov_b32 {sMask}, 0xffff0000
s_mov_b32 {sHead}, 0
s_mov_b32 {sKoff}, 0
s_mov_b32 {sVoff}, 0
s_mov_b32 {sWcol}, 0
s_mov_b32 {sR[1]}, 0x100000
s_mov_b32 {sR[2]}, 0x200000
s_mov_b32 {sR[3]}, 0x300000
s_mov_b32 {sD[1]}, {16*8192 - 1024}
s_mov_b32 {sD[2]}, {4*8192 - 2048}
s_mov_b32 {sD[3]}, {20*8192 - 3072}
s_mov_b32 {sKb}, 0
s_mov_b32 {sVb}, 0
s_mov_b32 {sWb}, 0
s_mov_b32 {sP}, 0x4000
v_lshrrev_b32 v1, 2, {vLane}
v_and_b32 v2, 3, {vLane}
v_lshlrev_b32 v1, 10, v1
v_lshl_add_u32 {vXo}, v2, 4, v1
s_mul_i32 s6, {sB}, 192
s_mul_i32 s7, {sWave}, 48
s_add_u32 s6, s6, s7
s_lshl_b32 s6, s6, 10
s_waitcnt lgkmcnt(0)
s_add_u32 s20, s68, s6
s_addc_u32 s21, s69, 0
s_mov_b32 s22, 0xc000
s_mov_b32 s23, 0x20000
s_mov_b32 s24, s82
s_mov_b32 s25, s83
s_mov_b32 s26, {hex(WS_BYTES)}
s_mov_b32 s27, 0x20000""")
    o += lin(f"""
v_lshrrev_b32 v1, 3, {vLane}
v_and_b32 v2, 7, {vLane}
v_lshlrev_b32 v1, 8, v1
v_lshl_add_u32 v1, v2, 2, v1
v_mov_b32 v3, {hex(OOB)}
v_cmp_gt_u32 vcc, 32, {vLane}
s_lshl_b32 s6, {sB}, 10
s_add_u32 s6, s6, {hex(FLAG_BASE)}
v_cndmask_b32 v1, v3, v1, vcc
s_or_b32 s7, {sG}, {sWave}
s_cmp_eq_u32 s7, 0
s_cselect_b32 {sTmp}, s6, {hex(OOB)}
v_mov_b32 v2, 0""")
    zst = Op(f"buffer_store_dword v2, v1, {srdWS}, {sTmp} offen sc1", "vm"); o.append(zst)
    xl = {}
    for qd in range(3):
        for t in range(3):
            for s in range(4):
                x = Op(f"buffer_load_dwordx4 {XA(4*qd + s, t)}, {vXo}, {srdX}, {['0', s16k, s32k][t]} offen offset:{(4*qd + s)*64}", "vm")
                xl.setdefault(qd, []).append(x); o.append(x)
    o += lin(f"""
s_lshl_b32 s6, {sB}, 22
s_lshl_b32 s7, {sG}, 19
s_add_u32 s6, s6, s7
{"s_mov_b32 s6, 0" if OPT["samekv"] else ""}
s_add_u32 s8, s70, s6
s_addc_u32 s9, s71, 0
s_mov_b32 s10, 0x80000
s_mov_b32 s11, 0x20000
s_add_u32 s12, s72, s6
s_addc_u32 s13, s73, 0
s_mov_b32 s14, 0x80000
s_mov_b32 s15, 0x20000
s_lshl_b32 s6, {sG}, 10
s_add_u32 s16, s74, s6
s_addc_u32 s17, s75, 0
s_sub_u32 s18, 0x400000, s6
s_mov_b32 s19, 0x20000
s_mov_b32 s28, s78
s_mov_b32 s29, s79
s_mov_b32 s30, 0x600000
s_mov_b32 s31, 0x20000
s_mov_b32 s32, s80
s_mov_b32 s33, s81
s_mov_b32 s34, 0x100
s_mov_b32 s35, 0x20000
v_lshrrev_b32 v1, 5, {vLane}
v_bfe_u32 v2, {vLane}, 3, 2
v_lshl_add_u32 v1, v1, 3, v2
s_lshl_b32 s6, {sWave}, 5
v_add_u32 v1, s6, v1
v_and_b32 v3, 7, {vLane}
v_bfe_u32 v4, {vLane}, 4, 2
v_lshlrev_b32 v4, 1, v4
v_xor_b32 v3, v3, v4
v_lshlrev_b32 v3, 4, v3
v_lshl_add_u32 {vDW}, v1, 13, v3
v_lshrrev_b32 v1, 3, {vLane}
v_add_u32 v1, s6, v1
v_lshl_add_u32 {vDWo}, v1, 10, v3
v_lshrrev_b32 v5, 4, {vLane}
v_and_b32 v6, 15, {vLane}
s_lshl_b32 s6, {sWave}, 4
v_add_u32 v1, s6, v5
v_lshlrev_b32 v1, 8, v1
s_lshl_b32 s6, {sWave}, 2
v_or_b32 v2, s6, v5
v_xor_b32 v2, v2, v6
v_lshl_add_u32 {vDK}, v2, 4, v1
s_and_b32 s6, {sWave}, 1
s_lshl_b32 s6, s6, 2
v_or_b32 v2, s6, v5
v_lshlrev_b32 v2, 1, v2
v_xor_b32 v2, v2, v6
v_lshl_add_u32 {vDV}, v2, 4, v1""")
    if OPT["linsrc"]:
        o += lin(f"v_lshlrev_b32 {vDK}, 4, {vLane}\nv_add_u32 {vDK}, {sW4k}, {vDK}\nv_mov_b32 {vDV}, {vDK}")
    for j in range(6): o += dma_tile_linear("W", j, j)[0]
    o += lin(f"""
v_lshrrev_b32 v1, 2, v6
v_and_b32 v2, 3, v6
v_lshl_add_u32 v3, v1, 4, v2
v_lshlrev_b32 v3, 8, v3""")
    for s in range(4):
        o += lin(f"v_add_u32 v4, {4*s}, v5\nv_xor_b32 v4, v4, v6\nv_lshl_add_u32 {vK[s]}, v4, 4, v3")
    o += lin(f"""
v_lshl_add_u32 v3, v5, 4, v1
v_lshlrev_b32 v3, 8, v3
v_and_b32 v4, 1, v5
v_lshl_add_u32 v7, v4, 2, v1
v_lshl_add_u32 v3, v7, 5, v3
v_lshl_add_u32 {vVb}, v2, 3, v3
v_lshl_add_u32 v3, v5, 2, v1
v_lshlrev_b32 v3, 7, v3
v_lshrrev_b32 v7, 1, v1
v_lshl_add_u32 v7, v4, 1, v7
v_lshl_add_u32 v3, v7, 5, v3
v_lshl_add_u32 {vWb}, v2, 3, v3
v_lshl_add_u32 v3, v6, 2, v5
v_lshlrev_b32 {vBp}, 2, v3
v_mov_b32 v3, 0x3f803f80
v_accvgpr_write_b32 a252, v3
v_accvgpr_write_b32 a253, v3
v_accvgpr_write_b32 a254, v3
v_accvgpr_write_b32 a255, v3""")
    if OPT["stamps"]:
        o += lin(f"s_lshl_b32 s101, s2, 10\ns_lshl_b32 s6, {sWave}, 8\ns_add_u32 s101, s101, s6\ns_add_u32 s101, s101, {hex(STAMP_BASE)}")
    later = [[("W", 6, 6), ("W", 7, 7), ("K", 8, None)], [("K", 9, None)], []]
    for qd in range(3):
        w = WAIT(0, need_vm=xl[qd]); o.append(w)
        if qd == 0:
            o += lin(f"""s_lshl_b32 s6, {sB}, 2
s_cmp_eq_u32 {sTmp}, {hex(OOB)}
s_cselect_b32 s6, {sTmp}, s6
v_mov_b32 v2, 1""")
            o.append(Op(f"buffer_store_dword v2, off, {srdD}, s6 sc1", "vm"))
        for a in later[qd]: o += dma_tile_linear(*a)[0]
        for r_ in range(48*qd, 48*qd + 48):
            o.append(Op(f"ds_bpermute_b32 a{r_}, {vBp}, a{r_}", "x"))
    w = WAIT(0, lg0=True); w.ntiles = 1; o.append(w)
    o += lin("s_barrier")
    for s in range(4):
        for p in range(2): o += lin(f"ds_read_b64_tr_b16 {FR(0, s, p)}, {vWb} offset:{s*4096 + p*2048}")
    o += lin("s_waitcnt lgkmcnt(0)")
    return o

def glue1():
    def mv(h): return [V(f"v_accvgpr_write_b32 a{ZB[h] + i}, v{PV0 + i}", rd=[f"v{PV0+i}"], wr=[f"a{ZB[h]+i}"]) for i in range(48)]
    paths = {}
    head = lin(f"s_cmp_eq_u32 {sHead}, 1\ns_cbranch_scc1 L_mv1\ns_cmp_eq_u32 {sHead}, 2\ns_cbranch_scc1 L_mv2\ns_cmp_eq_u32 {sHead}, 0\ns_cbranch_scc1 L_mvd")
    dbg = Op(f"buffer_load_dword {vDWo}, off, {srdD}, {sTmp} sc1", "vm")
    p3 = mv(2) + lin(f"""s_lshl_b32 s6, {sG}, 19
s_add_u32 s16, s76, s6
s_addc_u32 s17, s77, 0
s_mov_b32 s18, 0x80000
s_mov_b32 {sWcol}, 0
s_mov_b32 {sR[1]}, 0x20000
s_mov_b32 {sR[2]}, 0x40000
s_mov_b32 {sR[3]}, 0x60000
s_mov_b32 {sD[1]}, 7168
s_mov_b32 {sD[2]}, 14336
s_mov_b32 {sD[3]}, 21504
v_mov_b32 {vDW}, {vDWo}
s_lshl_b32 {sTmp}, {sB}, 2""") + [dbg] + lin("s_branch L_mvd")
    p1 = lin("L_mv1:") + mv(0) + lin("s_branch L_mvd")
    p2 = lin("L_mv2:") + mv(1)
    tail = lin("L_mvd:\ns_waitcnt lgkmcnt(0)")
    return head, p3, p1, p2, tail, dbg

def slow_path(placed, pendW0):
    vKo, vVo, vVo2 = "v202", "v203", "v201"
    vKo, vVo, vVo2 = f"v{PV0+40}", f"v{PV0+41}", f"v{PV0+42}"
    M = [f"v{PV0+36+t}" for t in range(3)]
    CN = [R("v", PV0 + 24 + 4*t, 4) for t in range(3)]
    Sx = [R("v", S0 + 4*t, 4) for t in range(3)]
    t_ = f"""
L_slow:
s_waitcnt vmcnt(0) lgkmcnt(0)
s_nop 7
v_and_b32 {vA}, 15, {vLane}
v_lshrrev_b32 {vB}, 4, {vLane}
v_lshlrev_b32 {vKo}, 8, {vA}
v_lshl_add_u32 {vKo}, {vB}, 4, {vKo}
v_lshlrev_b32 {vVo}, 10, {vB}
v_lshl_add_u32 {vVo}, {vA}, 1, {vVo}
v_add_u32 {vVo2}, 0x1000, {vVo}
s_lshl_b32 s4, {sHead}, 17
s_add_u32 s5, s4, 0x20000
s_mov_b32 s6, s4
"""
    for t in range(3): t_ += f"v_mov_b32 {M[t]}, 0xff800000\n"
    t_ += "L_slow1:\n"
    for s in range(4): t_ += f"buffer_load_dwordx4 {FR(0, s)}, {vKo}, {srdK}, s6 offen offset:{64*s}\n"
    t_ += "s_waitcnt vmcnt(0)\n"
    for t in range(3):
        for s in range(4): t_ += f"v_mfma_f32_16x16x32_bf16 {Sx[t]}, {FR(0, s)}, {QV(s, t)}, {'0' if s == 0 else Sx[t]}\n"
    t_ += "s_nop 9\n"
    for t in range(3):
        t_ += f"v_max3_f32 {M[t]}, {M[t]}, v{S0+4*t}, v{S0+4*t+1}\nv_max3_f32 {M[t]}, {M[t]}, v{S0+4*t+2}, v{S0+4*t+3}\n"
    t_ += "s_add_u32 s6, s6, 0x1000\ns_cmp_lt_u32 s6, s5\ns_cbranch_scc1 L_slow1\n"
    for t in range(3):
        t_ += f"""v_mov_b32 {vA}, {M[t]}
s_nop 1
v_permlane32_swap_b32 {vA}, {M[t]}
s_nop 1
v_max_f32 {M[t]}, {vA}, {M[t]}
v_mov_b32 {vA}, {M[t]}
s_nop 1
v_permlane16_swap_b32 {vA}, {M[t]}
s_nop 1
v_max_f32 {M[t]}, {vA}, {M[t]}
"""
        for i in range(4): t_ += f"v_sub_f32 v{PV0+24+4*t+i}, 0, {M[t]}\n"
    for i in range(96): t_ += f"v_mov_b32 v{i}, 0\n"
    for i in range(12): t_ += f"v_accvgpr_write_b32 a{240+i}, 0\n"
    t_ += "s_mov_b32 s6, s4\nL_slow2:\n"
    for u in range(2):
        for s in range(4): t_ += f"buffer_load_dwordx4 {FR(0, s)}, {vKo}, {srdK}, s6 offen offset:{64*s}\n"
        t_ += "s_waitcnt vmcnt(0)\n"
        for t in range(3):
            for s in range(4): t_ += f"v_mfma_f32_16x16x32_bf16 {Sx[t]}, {FR(0, s)}, {QV(s, t)}, {CN[t] if s == 0 else Sx[t]}\n"
        t_ += "s_nop 9\n"
        for i in range(12): t_ += f"v_exp_f32 v{S0+i}, v{S0+i}\n"
        t_ += "s_nop 0\n"
        for t in range(3):
            for j in range(2): t_ += f"v_cvt_pk_bf16_f32 {PBr(0, 0, t, 2*u + j)}, v{S0+4*t+2*j}, v{S0+4*t+2*j+1}\n"
        if u == 0: t_ += "s_mov_b32 s7, s6\ns_add_u32 s6, s6, 0x1000\n"
    f = FA0 + 16
    for dt in range(8):
        for j in range(8):
            t_ += f"buffer_load_short_d16{'_hi' if j & 1 else ''} v{f + j//2}, {vVo if j < 4 else vVo2}, {srdV}, s7 offen offset:{(j & 3)*256 + 32*dt}\n"
        t_ += "s_waitcnt vmcnt(0)\n"
        for t in range(3): t_ += f"v_mfma_f32_16x16x32_bf16 {OA(dt, t)}, v[{f}:{f+3}], {PB(0, 0, t)}, {OA(dt, t)}\n"
    for t in range(3): t_ += f"v_mfma_f32_16x16x32_bf16 {LA(t)}, {ONES}, {PB(0, 0, t)}, {LA(t)}\n"
    t_ += "s_add_u32 s6, s6, 0x1000\ns_cmp_lt_u32 s6, s5\ns_cbranch_scc1 L_slow2\ns_nop 9\n"
    for t in range(3): t_ += f"v_accvgpr_read_b32 {vRL[t]}, a{240+4*t}\n"
    for t in range(3): t_ += f"v_rcp_f32 {vRL[t]}, {vRL[t]}\n"
    t_ += "s_nop 0\n"
    for o in placed: t_ += o.text + "\n"
    for o in pendW0: t_ += o.text + "\n"
    t_ += "s_branch L_join\n"
    return lin(t_)

def spin(lbl, back, reg, off_v, srd, soff, exp):
    return lin(f"""{lbl}:
s_mov_b32 s3, 0
{lbl}_l:
buffer_load_dword {reg}, {off_v}, {srd}, {soff}{' offen' if off_v != 'off' else ''} sc1
s_add_u32 s3, s3, 1
s_waitcnt vmcnt(0)
v_cmp_ne_u32 vcc, {exp}, {reg}
s_cmp_gt_u32 s3, 0x10000
s_cbranch_scc1 {back}
s_nop 2
s_cbranch_vccnz {lbl}_l
s_branch {back}""")

ITSTRIDE = 393216
def glue3(left):
    o = lin("s_nop 7")
    o += [V(x.text, rd=list(x.rd), wr=list(x.wr)) for x in left]
    for k in (8, 9):
        o += lin(f"""s_add_u32 {sMB}, {sWb}, {k*16384}
s_cmp_ge_u32 {sMB}, 0x28000
s_cselect_b32 s6, 0x28000, 0
s_sub_u32 {sMB}, {sMB}, s6""")
        ops, d = dma_tile_linear("W", 0, k - 8)
        ops[0].text = f"s_add_u32 {sMA}, {sW4k}, {sMB}"
        o += ops
    o += lin(f"""
v_lshlrev_b32 {vSt}, 4, {vLane}
v_and_b32 {vPo}, 7, {vLane}
v_lshlrev_b32 {vPo}, 2, {vPo}
v_and_b32 {vA}, 15, {vLane}
v_lshrrev_b32 {vB}, 4, {vLane}
v_lshlrev_b32 {vA}, 10, {vA}
v_lshl_add_u32 {vOut}, {vB}, 4, {vA}
v_mov_b32 {vFl}, {hex(OOB)}
s_lshl_b32 s6, {sG}, 2
s_cmp_eq_u32 {sWave}, 0
s_cselect_b32 s6, s6, {hex(OOB)}
v_writelane_b32 {vFl}, s6, 0
v_mov_b32 {vPr}, 0
s_mov_b32 {sExp}, 0
s_mov_b32 {sIt}, 0
s_mul_i32 s6, {sB}, {4*ITSTRIDE}
s_mul_i32 s7, {sWave}, 49152
s_add_u32 {sStA}, s6, s7
s_lshl_b32 s7, {sG}, 11
s_add_u32 {sStA}, {sStA}, s7
s_mov_b32 {sStB}, {hex(OOB)}
s_mov_b32 {sSig}, {hex(OOB)}
s_mov_b32 {sPoll}, {hex(OOB)}
s_mov_b32 {sLd}, {hex(OOB)}
s_mov_b32 {sOut}, {hex(OOB)}
s_add_u32 s4, {sStB}, 0x4000
s_add_u32 s5, {sStB}, 0x8000
s_add_u32 s6, {sStA}, 0x4000
s_add_u32 s7, {sStA}, 0x8000""")
    return o

def g_update():
    return lin(f"""
s_add_u32 {sStB}, {sStA}, {ITSTRIDE//2}
s_add_u32 {sStA}, {sStA}, {ITSTRIDE}
s_cmp_eq_u32 {sIt}, 0
s_cselect_b32 {sExp}, 0, 1
s_mul_i32 {sTmp}, {sG}, 49152
s_lshl_b32 {sTmp2}, {sWave}, 14
s_add_u32 {sTmp}, {sTmp}, {sTmp2}
s_lshl_b32 {sTmp2}, {sB}, 2
s_add_u32 {sTmp2}, {sTmp2}, {sIt}
s_lshl_b32 {sSig}, {sTmp2}, 8
s_add_u32 {sSig}, {sSig}, {hex(FLAG_BASE)}
s_mov_b32 {sPoll}, {sSig}
s_sub_u32 {sTmp2}, {sTmp2}, 1
s_mul_i32 {sTmp2}, {sTmp2}, {ITSTRIDE}
s_add_u32 {sLd}, {sTmp}, {sTmp2}
s_and_b32 {sTmp}, {sG}, 3
s_mul_i32 {sTmp}, {sTmp}, 48
s_lshl_b32 {sTmp2}, {sWave}, 4
s_add_u32 {sTmp}, {sTmp}, {sTmp2}
s_mul_i32 {sTmp2}, {sB}, 192
s_add_u32 {sTmp}, {sTmp}, {sTmp2}
s_lshl_b32 {sOut}, {sTmp}, 10
s_lshr_b32 {sTmp}, {sG}, 2
s_lshl_b32 {sTmp2}, {sIt}, 1
s_add_u32 {sTmp}, {sTmp}, {sTmp2}
s_sub_u32 {sTmp}, {sTmp}, 2
s_lshl_b32 {sTmp}, {sTmp}, 7
s_add_u32 {sOut}, {sOut}, {sTmp}
s_cmp_eq_u32 {sIt}, 0
s_cselect_b32 {sTmp}, 3, {sWave}
s_cmp_eq_u32 {sTmp}, 3
s_cselect_b32 {sLd}, {hex(OOB)}, {sLd}
s_cselect_b32 {sOut}, {hex(OOB)}, {sOut}
s_add_u32 s4, {sStB}, 0x4000
s_add_u32 s5, {sStB}, 0x8000
s_add_u32 s6, {sStA}, 0x4000
s_add_u32 s7, {sStA}, 0x8000
s_add_u32 {sIt}, {sIt}, 1""")

def pad_linear(ops):
    out = []
    for o in ops:
        need = 0
        for (p, n) in o.sdeps:
            if p in out: need = max(need, n - sum(x.w for x in out[out.index(p)+1:]))
        if need > 0:
            nop = Op(f"s_nop {need-1}", "x"); nop.w = need; out.append(nop)
        out.append(o)
    return out

def tail():
    o = lin("s_nop 7")
    o += lin(f"s_waitcnt vmcnt(0)\nv_cmp_ne_u32 vcc, {sExp}, {vPr}")
    st1 = []
    for (t, np_, a, b, cv) in pack_store(1, sStB):
        o += cv
        o.append(Op(f"buffer_store_dwordx4 {OA(a,t)}, {vSt}, {srdWS}, {[sStB, 's4', 's5'][t]} offen offset:{np_*1024} sc1", "vm"))
    o += lin("s_cbranch_vccnz L_spinT\nL_backT:")
    sal, lds = red_loads()
    o += sal + lds[0] + lds[1]
    o += lin("s_waitcnt vmcnt(16)\ns_barrier")
    o.append(Op(f"buffer_store_dword {vLane}, {vFl}, {srdWS}, {sSig} offen sc1", "vm"))
    def sums():
        r = lin("s_waitcnt vmcnt(9)")
        o0, p0, s0_ = reduce_ops(0); o1, p1, s1_ = reduce_ops(1)
        r += o0 + p0 + [s0_] + lin("s_waitcnt vmcnt(2)") + o1 + p1 + [s1_]
        return pad_linear(r)
    o += sums()
    o += g_update()
    o += lin("s_branch L_spinU\nL_backU:")
    sal, lds = red_loads()
    o += sal + lds[0] + lds[1]
    r = sums(); r[0].text = "s_waitcnt vmcnt(8)"
    for x in r:
        if x.text == "s_waitcnt vmcnt(2)": x.text = "s_waitcnt vmcnt(1)"
    o += r
    return o

def main():
    R2 = build_R2()
    placed = [o for o in R2.epi if o.gap is not None]; placed.sort(key=lambda o: o.pos)
    R1 = build_R1(R2.left)
    G = build_G()
    pro = prologue()
    h, p3, p1, p2, tl, dbg = glue1()
    g2 = lin(f"s_or_b64 {sBad}, {sBad}, vcc\ns_cbranch_scc1 L_slow\nL_join:\ns_add_u32 {sHead}, {sHead}, 1\ns_cmp_lt_u32 {sHead}, 4\ns_waitcnt lgkmcnt(0)")
    g3 = glue3(R2.left)
    wd = WAIT(0, need_vm=[dbg])
    g3b = [wd] + lin(f"v_cmp_ne_u32 vcc, 1, {vDWo}\nv_mov_b32 {vLane}, 1\ns_nop 3\ns_cbranch_vccnz L_spinD\nL_backD:")
    g4 = g_update() + lin(f"s_cmp_lt_u32 {sIt}, 4\ns_waitcnt lgkmcnt(0)")
    T = tail()
    sA, sB_, sC, sD_, sE, sF = stamp(), stamp(), stamp(), stamp(), stamp(), stamp()
    tr = pro + sA
    for hd in range(4):
        tr += R1.out + h + {0: [], 1: p1, 2: p2, 3: p3}[hd] + tl + sB_ + R2.out + g2 + sC
    tr += g3 + g3b
    for it in range(4): tr += G.out + g4 + sD_
    lastK = {id(TILE["K0'"][-1]), id(TILE["K1'"][-1])}
    resolve_waits(tr, skip_tile=lambda o, n: id(o) in lastK and n == 4)
    errs = check(R2.out + g2 + R1.out + h + p3 + tl + R2.out + g2 + g3 + g3b + G.out + g4 + G.out + g4 + T, "main")
    for e in errs[:20]: print(e, file=sys.stderr)
    assert not errs
    for rg in (R1, R2, G): print(rg.name, "overfull:", rg.overlog, file=sys.stderr)
    out = [open(os.path.join(os.path.dirname(os.path.abspath(__file__)), "header.txt")).read().rstrip()]
    out.append("; @launch grid=(256,1,1) block=(256,1,1) lds=163840")
    out.append(f""".amdgcn_target "amdgcn-amd-amdhsa--gfx950"
.text
.globl {KN}
.p2align 8
.type {KN},@function
{KN}:""")
    def emit(ops):
        for o in ops:
            if OPT["nodma"] and o.text.endswith(" lds"): out.append("s_nop 0"); continue
            if OPT["nored"] and " sc1" in o.text and "dwordx4" in o.text: out.append("s_nop 0"); continue
            out.append(o.text)
    emit(pro + sA); out.append("L_loop:"); emit(R1.out + h + p3 + p1 + p2 + tl + sB_ + R2.out + g2 + sC)
    if OPT["stamps"]: out.append(f"s_cmp_lt_u32 {sHead}, 4")
    out.append("s_cbranch_scc1 L_loop")
    emit(g3 + g3b); out.append("L_G:"); emit(G.out + g4 + sD_)
    if OPT["stamps"]: out.append(f"s_cmp_lt_u32 {sIt}, 4")
    out.append("s_cbranch_scc1 L_G")
    emit(T + sE)
    out.append("s_endpgm")
    emit(spin("L_spinG", "L_backG", vPr, vPo, srdWS, "s101" if False else sU[3], sExp) if False else [])
    emit(lin(f"L_spinG:\ns_sub_u32 {sU[0]}, {sPoll}, 256\ns_branch L_spinG2")); emit(spin("L_spinG2", "L_backG", vPr, vPo, srdWS, sU[0], sExp))
    emit(lin(f"L_spinT:\ns_sub_u32 {sU[0]}, {sPoll}, 256\ns_branch L_spinT2")); emit(spin("L_spinT2", "L_backT", vPr, vPo, srdWS, sU[0], sExp))
    emit(lin(f"L_spinU:\ns_sub_u32 {sU[0]}, {sPoll}, 256\ns_branch L_spinU2")); emit(spin("L_spinU2", "L_backU", vPr, vPo, srdWS, sU[0], sExp))
    emit(lin(f"L_spinD:\ns_lshl_b32 {sTmp}, {sB}, 2\ns_branch L_spinD2")); emit(spin("L_spinD2", "L_backD", vDWo, "off", srdD, sTmp, "1"))
    emit(slow_path(placed, R2.pendW0))
    out.append(f"""s_endpgm
.section .rodata,"a"
.p2align 6
.amdhsa_kernel {KN}
  .amdhsa_next_free_vgpr 512
  .amdhsa_next_free_sgpr 102
  .amdhsa_accum_offset 256
  .amdhsa_group_segment_fixed_size 0
  .amdhsa_kernarg_size 64
  .amdhsa_user_sgpr_count 2
  .amdhsa_user_sgpr_kernarg_segment_ptr 1
  .amdhsa_system_sgpr_workgroup_id_x 1
.end_amdhsa_kernel""")
    print("\n".join(out))
main()
```

```python
import itertools, random
P = 1200
bS = [48*j + 35 for j in range(8)]; bQ = 419; bB = [521 + 102*i for i in range(7)]; bP = 1187
def needs():
    T = {}
    for a in "abc": T["X" + a] = (bP - P, bS[0])
    T["W0"] = (bP - P, bS[0])
    for j in range(1, 8): T[f"W{j}"] = (bS[j-1], bS[j])
    T["K0"] = (bS[7], bQ)
    for i in range(7):
        n = bQ if i == 0 else bB[i-1]
        T[f"K{i+1}"] = (n, bB[i]); T[f"V{i}"] = (n, bB[i])
    T["V7"] = (bB[6], bP)
    return T
KV = ["K0", "K1", "V0"] + [x for i in range(1, 7) for x in (f"K{i+1}", f"V{i}")] + ["V7"]
def plan(I0=-170, dk=75, wI=None, xI=None, verbose=False):
    T = needs()
    I = {t: I0 + dk*k for k, t in enumerate(KV)}
    I.update(wI); I.update(xI)
    iv = {t: (I[t], T[t][1]) for t in T}
    def overlap(a, b):
        for sh in (-P, 0, P):
            if iv[a][0] < iv[b][1] + sh and iv[b][0] + sh < iv[a][1]: return True
        return False
    names = sorted(T, key=lambda t: iv[t][0])
    cnt = max(sum(1 for t in T for sh in (-P, 0, P) if iv[t][0] + sh <= x < iv[t][1] + sh) for x in range(P))
    if verbose: print("max occupancy", cnt, {t: T[t][0] - I[t] for t in names})
    conf = {a: [b for b in T if b != a and overlap(a, b)] for a in T}
    best = [None, 10**9]
    def cost(s):
        c = 0
        for seq, w in (([f"K{i}" for i in range(8)], 4), ([f"V{i}" for i in range(8)], 1), ([f"W{i}" for i in range(8)], 1)):
            c += w*min_updates([s[t] for t in seq])
        return c
    rnd = random.Random(1)
    def rec(i, s, order):
        if i == len(names):
            c = cost(s)
            if c < best[1]: best[0], best[1] = dict(s), c
            return True
        t = names[i]
        used = {s[b] for b in conf[t] if b in s}
        pref = order[t[0]]
        for x in pref:
            if x not in used:
                s[t] = x
                if rec(i + 1, s, order): return True
                del s[t]
        return False
    for trial in range(3000):
        order = {}
        base = list(range(10))
        for c in "KVWX":
            o = base[:]; rnd.shuffle(o)
            if trial % 2 == 0:
                st = rnd.randrange(7); win = list(range(st, st + 4)); rnd.shuffle(win); o = win + [x for x in o if x not in win]
            order[c] = o
        rec(0, {}, order)
    return I, best[0], best[1], T
def bases(slots):
    n = len(slots); best = None
    for b0 in range(max(0, slots[0] - 3), slots[0] + 1):
        dp = {b0: (0, [b0])}
        for s in slots[1:]:
            nd = {}
            for b in range(max(0, s - 3), s + 1):
                cand = min(((c + (b != pb), path) for pb, (c, path) in dp.items()), key=lambda x: x[0])
                nd[b] = (cand[0], cand[1] + [b])
            dp = nd
        for b, (c, path) in dp.items():
            c2 = c + (b != b0)
            if best is None or c2 < best[0]: best = (c2, path)
    return best
def min_updates(slots): return bases(slots)[0]
if __name__ == "__main__":
    wI = {"W0": -125, "W1": -75, "W2": -40, "W3": 36, "W4": 69, "W5": 117, "W6": 165, "W7": 213}
    xI = {"Xa": -225, "Xb": -200, "Xc": -150}
    I, s, c, T = plan(wI=wI, xI=xI, verbose=True)
    print(I); print(s, c)
    for ch in "KVW": print(ch, [s[f"{ch}{i}"] for i in range(8)], bases([s[f"{ch}{i}"] for i in range(8)]))
```

```python
import re

def regs(spec):
    m = re.fullmatch(r"([vas])\[(\d+):(\d+)\]", spec)
    if m: return [f"{m.group(1)}{i}" for i in range(int(m.group(2)), int(m.group(3)) + 1)]
    return [spec]
def R(f, lo, n=1):
    return f"{f}{lo}" if n == 1 else f"{f}[{lo}:{lo+n-1}]"

class Op:
    def __init__(s, text, kind, rd=(), wr=(), e=-1, d=10**9, deps=(), tag=None, trans=False, late=False, cread=(), sdeps=(), optional=False):
        s.text, s.kind = text, kind
        s.rd = set(x for r in rd for x in regs(r)); s.wr = set(x for r in wr for x in regs(r))
        s.cread = set(x for r in cread for x in regs(r))
        s.e, s.d, s.deps, s.tag, s.trans, s.late = e, d, list(deps), tag, trans, late
        s.lc = 4 if 'b128' in text else 2; s.w = 1; s.sdeps = list(sdeps); s.optional = optional; s.pos = None
        s.gap = None; s.need_ds = []; s.need_vm = []; s.lg0 = False
    def __repr__(s): return f"<{s.text} e={s.e} d={s.d} gap={s.gap}>"

def mfma(D, A, B, C, tag=None):
    crd = [] if C == "0" else [C]
    return Op(f"v_mfma_f32_16x16x32_bf16 {D}, {A}, {B}, {C}", "mfma", rd=[A, B] + crd, wr=[D], tag=tag, cread=crd)

class Region:
    LDSRATE = 3; LDSBURST = 4
    def __init__(s, name):
        s.name = name; s.mf = []; s.fill = []; s.missed = []; s.overlog = []; s.vmsp = 4
    def M(s, op): s.mf.append(op); op.gap = len(s.mf) - 1; return op
    def n(s): return len(s.mf)
    def F(s, op): s.fill.append(op); op.seq = len(s.fill); return op
    def schedule(s, verbose=True):
        NG = len(s.mf)
        gaps = {k: {"s": [], "m": [], "v": []} for k in range(-1, NG)}
        cost = {"v4": 1, "ds": 1, "v8": 2, "vm": 2, "dsb": 2}
        vec = [o for o in s.fill if o.kind in cost]
        sca = [o for o in s.fill if o.kind not in cost]
        for o in s.fill:
            if not o.optional: o.d = min(o.d, NG - 1)
        changed = True
        while changed:
            changed = False
            for o in s.fill:
                if o.optional: continue
                for (p, g) in o.deps + [(p, n) for (p, n) in o.sdeps]:
                    if p.kind != "mfma" and p.gap is None and p.d > o.d - g: p.d = o.d - g; changed = True
        sal = [o for o in sca if o.kind == "s"]
        for a, b in zip(sal, sal[1:]): b.deps.append((a, 0))
        changed = True
        while changed:
            changed = False
            for o in s.fill:
                if o.optional: continue
                for (p, g) in o.deps + [(p, n) for (p, n) in o.sdeps]:
                    if p.kind != "mfma" and p.gap is None and p.d > o.d - g: p.d = o.d - g; changed = True
        pending = list(s.fill)
        lastb = -10; lastv = -10
        rk = {"s": 0, "w": 0, "t": 0, "ds": 1, "vm": 1, "dsb": 1, "v4": 2, "v8": 2}
        st = {"mpos": 0, "G": None, "scc": False}
        nxt_s = {id(a): b for a, b in zip(sal, sal[1:])}
        def sd_short(o, k):
            G = st["G"]; miss = 0
            isv = rk[o.kind] == 2
            for (p, n) in o.sdeps:
                if p.gap is None: return None
                if p.pos is not None:
                    here = st["mpos"] + 1 + ((sum(x.w for x in G["s"] + G["m"] + G["v"])) if isv else 0)
                    miss = max(miss, n - (here - p.pos - 1))
                else:
                    if not isv or rk[p.kind] != 2: return None
                    i = G["v"].index(p)
                    miss = max(miss, n - sum(x.w for x in G["v"][i+1:]))
            return max(miss, 0)
        def ready0(o, k):
            if o.e > k: return False
            for (p, g) in o.deps:
                if p.gap is None or p.gap + g > k: return False
                if p.gap == k and p.kind != "mfma" and rk[p.kind] > rk[o.kind]: return False
            return True
        over = 0; npos = 0; bucket = 0
        for k in range(-1, NG):
            G = gaps[k]; st["G"] = G
            if k >= 0: npos += 1; s.mf[k].pos = npos
            st["mpos"] = npos
            used = 0; bucket = max(0, bucket - Region.LDSRATE)
            while True:
                c0 = [o for o in pending if ready0(o, k)]
                cands = [o for o in c0 if sd_short(o, k) == 0]
                cands.sort(key=lambda o: (o.optional, o.d, o.seq))
                pick = None
                for o in cands:
                    forced = o.d <= k and not o.optional
                    if o.kind in ("s", "w", "t"):
                        if o.kind == "t" and st["scc"]: continue
                        if o.late and o.d - k > o.late - 1: continue
                        if (G["s"] or G["m"] or G["v"]) and not forced: continue
                        pick = o; break
                if pick is None:
                    vc = []
                    for o in cands:
                        if o.kind in ("s", "w", "t"): continue
                        forced = o.d <= k and not o.optional
                        c = cost[o.kind]
                        if not forced:
                            if o.kind == "dsb" and k - lastb < 2: continue
                            if o.kind == "vm" and k - lastv < s.vmsp: continue
                            if used + c > 2: continue
                            if o.kind == "ds" and bucket and bucket + o.lc > Region.LDSBURST: continue
                            if k == -1 and s.mf: continue
                        vc.append(o)
                    if vc:
                        pick = vc[0]
                        if used == 0 and cost[pick.kind] == 1 and pick.d > k + 1:
                            ones = [o for o in vc if cost[o.kind] == 1]
                            twos = [o for o in vc if cost[o.kind] == 2]
                            chain = any(any(p is pick for (p, g) in o.deps if g == 0) or any(p is pick and n == 0 for (p, n) in o.sdeps) for o in pending)
                            if len(ones) < 2 and not chain and twos: pick = twos[0]
                if pick is None:
                    blk = [o for o in c0 if o.d <= k and not o.optional and sd_short(o, k)]
                    if blk:
                        n = min(sd_short(o, k) for o in blk)
                        nop = Op(f"s_nop {n-1}", "v4"); nop.w = n; nop.gap = k; nop.kind = "nop"
                        if rk[blk[0].kind] == 2: G["v"].append(nop)
                        else: raise Exception(f"cannot pad for {blk[0]}")
                        used += n; continue
                    break
                o = pick
                if o.kind in ("s", "w", "t"):
                    G["s"].append(o)
                    if o.kind == "s":
                        nx = nxt_s.get(id(o))
                        st["scc"] = nx is not None and nx.text.startswith(("s_cselect", "s_cbranch_scc"))
                else:
                    (G["m"] if rk[o.kind] == 1 else G["v"]).append(o)
                    used += cost[o.kind]
                    if o.kind == "dsb": lastb = k
                    if o.kind == "vm": lastv = k
                    if o.kind == "ds": bucket += o.lc
                o.gap = k; pending.remove(o)
            for o in G["s"] + G["m"] + G["v"]:
                o.pos = npos + 1; npos += o.w
            late_ = [o for o in pending if o.d <= k and not o.optional]
            if late_: s.missed += [(o, k) for o in late_ if o.d == k]
            ns = len(G["s"])
            extra = max(0, used - 2) + max(0, ns - 1 - max(0, 2 - used))
            if k == -1: extra = used + ns
            if extra: s.overlog.append((k, extra))
            over += extra
        s.left = [o for o in pending if o.optional]
        pending = [o for o in pending if not o.optional]
        assert not pending, f"unscheduled in {s.name}: {pending[:5]}"
        assert not s.missed, f"missed deadlines in {s.name}: {s.missed[:5]}"
        out = []
        for k in range(-1, NG):
            if k >= 0: out.append(s.mf[k])
            G = gaps[k]
            out += G["s"] + G["m"] + G["v"]
        if verbose: print(file=__import__("sys").stderr, *[f"; region {s.name}: mfma={NG} fillers={len(s.fill)} overfull_slots={over} est_cycles={NG*16+over*4}"])
        s.est = NG*16 + over*4
        s.out = out
        return out

def resolve_waits(trace, tiles):
    ds = []; nvm = 0; lastpos = {}
    for o in trace:
        if o.kind in ("ds", "dsb"): ds.append(o)
        elif o.kind == "vm":
            lastpos[id(o)] = nvm; nvm += 1
        elif o.kind == "w" and (o.need_ds or o.need_vm or o.lg0):
            idx = -1
            for n in o.need_vm:
                if isinstance(n, str):
                    c = [lastpos[id(x)] for x in tiles[n] if id(x) in lastpos]
                    assert c, f"tile {n} not issued"
                    idx = max(idx, max(c))
                elif id(n) in lastpos: idx = max(idx, lastpos[id(n)])
            if idx >= 0: o.vmn = min(getattr(o, "vmn", 63), nvm - 1 - idx)
            parts = []
            if hasattr(o, "vmn"): parts.append(f"vmcnt({o.vmn})")
            if o.lg0: parts.append("lgkmcnt(0)")
            elif o.need_ds:
                last = max(len(ds) - 1 - ds[::-1].index(n) for n in o.need_ds)
                parts.append(f"lgkmcnt({min(len(ds) - 1 - last, 15)})")
            o.text = "s_waitcnt " + " ".join(parts) if parts else "s_nop 0"

def check(seq, name=""):
    errs = []
    pos = []; p = 0
    for o in seq:
        pos.append(p)
        m = re.match(r"s_nop (\d+)", o.text)
        p += int(m.group(1)) + 1 if m else 1
    lastw = {}
    lastC = {}
    pend_ds = []
    for i, o in enumerate(seq):
        if o.text.startswith("s_waitcnt"):
            m = re.search(r"lgkmcnt\((\d+)\)", o.text)
            if m:
                n = int(m.group(1))
                if n < len(pend_ds): pend_ds = pend_ds[len(pend_ds)-n:]
        touched = o.rd | o.wr
        for q in pend_ds:
            if q.wr & touched: errs.append(f"{name}: LDS result not waited: {q.text} -> {o.text}")
        isvalu = o.kind in ("v4", "v8")
        for r in o.rd | (o.wr if o.kind != "mfma" else set()):
            if r in lastw:
                j = lastw[r]; w = seq[j]; dist = pos[i] - pos[j] - 1
                need = 0
                if w.kind == "mfma":
                    if o.kind == "mfma":
                        if r in o.cread and o.cread == w.wr and not (r in (o.rd - o.cread)): need = 0
                        elif r in o.cread: need = 6
                        else: need = 8
                    else: need = 8
                elif w.kind in ("v4", "v8"):
                    if o.kind == "mfma" and r in o.rd: need = 2
                    elif "permlane" in o.text and r in o.rd: need = 2
                    elif w.trans and isvalu and not o.trans and r in o.rd: need = 1
                    elif "readfirstlane" in o.text or "readlane" in o.text: need = 1
                    if r.startswith("s") or r == "vcc":
                        if o.kind == "vm": need = 5
                        elif isvalu: need = 2
                elif w.kind in ("s", "t") and r == "m0" and o.kind == "vm": need = 1
                if dist < need: errs.append(f"{name}: hazard {r} need {need} got {dist}: [{w.text}] -> [{o.text}]")
        if o.kind == "mfma":
            for r in o.wr:
                if r in lastw and seq[lastw[r]].kind == "mfma" and r not in o.cread:
                    pass
        if isvalu:
            for r in o.wr:
                if r in lastC and pos[i] - pos[lastC[r]] - 1 < 3: errs.append(f"{name}: WAR srcC {r}: [{seq[lastC[r]].text}] -> [{o.text}]")
        if isvalu:
            for back in (1, 2):
                if i - back >= 0:
                    w = seq[i - back]
                    if w.kind == "vm" and "store" in w.text and (w.rd & o.wr) and pos[i] - pos[i-back] - 1 < 2:
                        errs.append(f"{name}: store WAR: [{w.text}] -> [{o.text}]")
        for r in o.wr: lastw[r] = i
        for r in o.cread: lastC[r] = i
        if o.kind in ("ds", "dsb"): pend_ds.append(o)
    return errs
```

```python
import sys, os, struct, math
sys.path.insert(0, os.path.dirname(os.path.abspath(__file__)))
from sched import *
import ringplan

OPT = dict(stamps=0, nt=1, mapping=48, nodma=0, samekv=0, nored=0, ntw=0, ntx=0, bst=0, lrate=3, lburst=4, rsp=8, rk=2, i0=-170, dk=75, ksp=12, wsp=5, gst=4, gld=4, gsig=1, gpoll=108, gsum=8, gdma=36, glc=0, rot=1, gout=189, gdsp=4, lag=1, forceslow=0, ntst=0, pf=0)
for a in sys.argv[1:]:
    k, v = a.split("="); assert k in OPT, k; OPT[k] = float(v) if "." in v else int(v)
Region.LDSRATE = OPT["lrate"]; Region.LDSBURST = OPT["lburst"]
KN = "standalone__mha_block_cached__near_ridge_kernel"

def OA(mt, t): return R("v", (mt*3 + t)*4, 4)
def OAr(mt, t, i): return f"v{(mt*3 + t)*4 + i}"
QV0, PV0, S0, FA0 = 96, 144, 192, 204
def QV(s, t): return R("v", QV0 + (s*3 + t)*4, 4)
def QVr(s, t, i): return f"v{QV0 + (s*3 + t)*4 + i}"
def PB(buf, sg, t): return R("v", PV0 + 24*buf + (sg*3 + t)*4, 4)
def PBr(buf, sg, t, i): return f"v{PV0 + 24*buf + (sg*3 + t)*4 + i}"
def OP(s, t): return R("v", PV0 + (s*3 + t)*4, 4)
def OPr(s, t, i): return f"v{PV0 + (s*3 + t)*4 + i}"
def FR(buf, f, half=None):
    b = FA0 + 16*buf + 4*f
    return R("v", b, 4) if half is None else R("v", b + 2*half, 2)
vK = ["v236", "v237", "v238", "v239"]
vVb, vWb, vT = "v240", "v241", ["v242", "v243"]
vDK, vDV, vDW, vDX, vC = "v244", "v245", "v246", "v247", "v248"
vRL = ["v249", "v250", "v251"]
vLane, vDWo, vA, vB = "v252", "v253", "v254", "v255"
def XA(s, t): return R("a", (s*3 + t)*4, 4)
ZB = {0: 144, 1: 192, 2: 0}
def ZA(h, s, t): return R("a", ZB[h] + (s*3 + t)*4, 4)
def LA(t): return R("a", 240 + 4*t, 4)
ONES = "a[252:255]"

srdK, srdV, srdW, srdX, srdWS, srdO, srdD = (f"s[{i}:{i+3}]" for i in (8, 12, 16, 20, 24, 28, 32))
sW1k, sXcc, sRot, sOc = "s36", "s37", "s38", "s39"
sC = ["s40", "s41", "s42"]
sKoff, sVoff, sWcol = "s47", "s48", "s49"
sD = [None, "s50", "s51", "s52"]
sDY = [None, "s53", "s54", "s55"]
sT = ["s56", "s57", "s58", "s59"]
sW4k, sHead, sScale, sWave, sB, sG, sLo, sHi = (f"s{i}" for i in range(60, 68))
sBad = "s[84:85]"
sN = [f"s{i}" for i in range(86, 92)]
sTmp = "s100"
sIt, sStR, sSt, sSig, sSlM, sExp, sLdR, sLd, sLd2, sOutR, sOut, sFlR, sLdMin = (f"s{i}" for i in range(86, 99))
sPoll = sSig; sPo = "s99"
sU = ["s4", "s5"]; sMask = "s6"
OOB = 0x40000000
FLAG_BASE = 0x3000000
STAMP_BASE = 0x3100000
DUMP_BASE = 0x4000000
WS_BYTES = 0x8000000 if OPT["bst"] else 0x3200000
CHUNK = 196608
ORD = [(0,0),(0,1),(0,2),(1,0),(0,3),(1,3),(1,1),(1,2)]
ORDG = [(j >> 2, j & 3) for j in range(8)]
NT = " nt" if OPT["nt"] else ""
NTW = " nt" if OPT["ntw"] else ""
NTX = " nt" if OPT["ntx"] else ""
def wq_lit(step): return ORD[step][1]*0x100000 + ORD[step][0]*128
def wo_lit(m): return (m & 3)*0x20000 + (m >> 2)*128

def S(text, rd=(), wr=(), **kw): return Op(text, "s", rd=rd, wr=wr, **kw)
def V(text, rd=(), wr=(), **kw): return Op(text, "v4", rd=rd, wr=wr, **kw)
def V8(text, rd=(), wr=(), **kw): return Op(text, "v8", rd=rd, wr=wr, **kw)
def WAIT(d, need_ds=(), need_vm=(), lg0=False, late=3, e=-1):
    o = Op("s_waitcnt ?", "w", e=e, d=d, late=late, deps=[(x, 1) for x in need_ds])
    o.need_ds, o.need_vm, o.lg0 = list(need_ds), list(need_vm), lg0
    return o
def lin(text):
    return [Op(l.strip(), "x") for l in text.strip().split("\n") if l.strip()]

class Ctx: pass
C = Ctx(); C.grp = 0

wI = {"W0": -125, "W1": -75, "W2": -40, "W3": 36, "W4": 69, "W5": 117, "W6": 165, "W7": 213}
xI = {"Xa": -225, "Xb": -200, "Xc": -150}
ISS, SLOT, _c, NEED = ringplan.plan(OPT["i0"], OPT["dk"], wI, xI)
assert SLOT is not None
SPR = {}
for t in ISS:
    m = ISS[t] % 1200
    sp = OPT["ksp"] if t[0] in "KV" else OPT["wsp"]
    if 262 <= m < 288: ISS[t] += 290 - m; m = 290
    SPR[t] = min(sp, ((288 if m < 288 else 1200) - 7 - m)//3); assert SPR[t] >= 1
BASE = {}
for ch in "KVW":
    for i, b in enumerate(ringplan.bases([SLOT[f"{ch}{i}"] for i in range(8)])[1]): BASE[f"{ch}{i}"] = b
XB = min(SLOT["Xa"], SLOT["Xb"], SLOT["Xc"]); assert max(SLOT["Xa"], SLOT["Xb"], SLOT["Xc"]) - XB <= 3
NEXT = sorted([t for t in ISS if ISS[t] < 0 and t[0] in "WX"], key=lambda t: (t != "W0", ISS[t]))
print("plan:", ISS, SLOT, BASE, NEXT, file=sys.stderr)
TILE = {}
def lit(x): return hex(x & 0xffffffff)
def rebase(rg, typ, old, new, e, d, after=()):
    if old == new: return []
    regs_ = vK if typ == "K" else [vVb if typ == "V" else vWb]
    return [rg.F(V(f"v_add_u32 {r}, {lit((new - old)*16384)}, {r}", rd=[r], wr=[r], e=e, d=d, deps=[(a, 0) for a in after if a])) for r in regs_]
def tile_src(spec):
    k = spec[0]
    if k == "W": return srdW, vDW, f"s_add_u32 {sT[0]}, {sWcol}, {hex(spec[1])}", sD, NTW
    if k == "C": return srdW, vDW, f"s_add_u32 {sT[0]}, {sC[spec[1]]}, {hex(spec[2]*0x20000)}", sD, NTW
    if k == "N": return srdW, vDW, f"s_mov_b32 {sT[0]}, {sN[spec[1]]}", sD, NTW
    if k == "Y": return srdX, vDX, f"s_mov_b32 {sT[0]}, {sN[spec[1]]}", sDY, NTX
    if k == "X": return srdX, vDX, f"s_mov_b32 {sT[0]}, {hex(spec[1]*65536 + spec[2]*256)}", sDY, NTX
def add_dmas(rg, items):
    ev = []
    for (name, spec, slot, e, sp, bar) in items:
        for i in range(4): ev.append((e + sp*i, e, i, name, spec, slot, bar))
    ev.sort(key=lambda x: (x[0], x[1]))
    prev = None; cur = None; wopen = None; ts = None; lastw = None; m0 = None
    for (t, e0, i, name, spec, slot, bar) in ev:
        deps = []
        if bar is not None: deps.append((bar, 0))
        if prev is not None: deps.append((prev, 1))
        if cur != slot:
            m0 = rg.F(Op(f"s_add_u32 m0, {sW4k}, {slot*16384}", "t", wr=["m0"], e=t - 6, deps=([(prev, 1)] if prev else []))); cur = slot
        deps.append((m0, 1))
        if spec[0] in "KV":
            so, vo, srd = (sKoff, vDK, srdK) if spec[0] == "K" else (sVoff, vDV, srdV)
            st = rg.inc.get(spec[0])
            if st is not None and i == 0: deps.append((st, 0))
            o = rg.F(Op(f"buffer_load_dwordx4 {vo}, {srd}, {so} offen offset:{i*1024}{NT} lds", "vm", rd=[vo, so, "m0"], e=t, d=t + 4, deps=deps))
            if i == 3: rg.inc[spec[0]] = rg.F(Op(f"s_add_u32 {so}, {so}, 0x4000", "t", rd=[so], wr=[so], deps=[(o, 1)], d=t + 12))
        else:
            srd, vo, t0, dl, fl = tile_src(spec)
            if i == 0:
                assert wopen is None, "W-type tiles may not interleave"
                wopen = name
                ts = [rg.F(Op(t0, "t", wr=[sT[0]], e=t - 10, deps=([(lastw, 1)] if lastw else [])))]
                ts += [rg.F(Op(f"s_add_u32 {sT[j]}, {sT[0]}, {dl[j]}", "t", wr=[sT[j]], deps=[(ts[0], 0)])) for j in (1, 2, 3)]
            o = rg.F(Op(f"buffer_load_dwordx4 {vo}, {srd}, {sT[i]} offen offset:{i*1024}{fl} lds", "vm", rd=[vo, sT[i], "m0"], e=t, d=t + 4, deps=deps + [(ts[i], 0)]))
            if i == 3: wopen = None; lastw = o
        if i == 3: TILE.setdefault(name, []).append(o)
        if i == 0: rg.first_dma[name] = o
        prev = o
    rg.lastw = lastw
def head_dmas(rg, lo, hi):
    items = []
    for t in ISS:
        m = ISS[t] % 1200
        if not (lo <= m < hi): continue
        spec = (t[0],) if t[0] in "KV" else (("W", wq_lit(int(t[1]))) if ISS[t] >= 0 else (("N" if t[0] == "W" else "Y"), NEXT.index(t)))
        cands = [g for g in rg.bars if g + lo <= m and any(SLOT[p] == SLOT[t] and NEED[p][1] % 1200 == g + lo for p in NEED)]
        bar = rg.bars[max(cands)] if cands else None
        items.append((t, spec, SLOT[t], m - lo, SPR[t], bar))
    add_dmas(rg, items)
def dma_linear(name, spec, slot):
    ops = lin(f"s_add_u32 m0, {sW4k}, {slot*16384}")
    if spec[0] in "KV":
        so, vo, srd = (sKoff, vDK, srdK) if spec[0] == "K" else (sVoff, vDV, srdV)
        d = [Op(f"buffer_load_dwordx4 {vo}, {srd}, {so} offen offset:{i*1024}{NT} lds", "vm") for i in range(4)]
        ops += lin("s_nop 0") + d + lin(f"s_add_u32 {so}, {so}, 0x4000")
    else:
        srd, vo, t0, dl, fl = tile_src(spec)
        d = [Op(f"buffer_load_dwordx4 {vo}, {srd}, {sT[i]} offen offset:{i*1024}{fl} lds", "vm") for i in range(4)]
        ops += lin(t0 + "\n" + "\n".join(f"s_add_u32 {sT[i]}, {sT[0]}, {dl[i]}" for i in (1, 2, 3))) + d
    TILE.setdefault(name, []).append(d[-1])
    return ops
def reads_X(rg, addr, slots, dst, e, d, deps, step=1):
    ops = []
    for t in range(3):
        for s in range(4):
            r_, imm = addr(slots[t], s)
            ops.append(rg.F(Op(f"ds_read_b128 {dst(s, t)}, {r_} offset:{imm}", "ds", rd=[r_], wr=[dst(s, t)], e=e, d=d + len(ops)*step,
                               deps=list(deps) + ([(ops[-1], 0)] if ops else []))))
    return ops

def new_region(name):
    rg = Region(name); rg.nst = {"R1": 0, "R1f": 0, "R2": 6, "G": 0}[name]
    rg.tuse = {0: [], 1: []}; rg.bars = {}; rg.inc = {}; rg.first_dma = {}
    return rg

def xor_addr(rg, base, k, ti, e, d, after=()):
    if k == 0: return base, None
    deps = [(x, 0) for x in rg.tuse[ti]] + [(a, 0) for a in after]
    o = rg.F(V(f"v_xor_b32 {vT[ti]}, {k*32}, {base}", rd=[base], wr=[vT[ti]], e=e, d=d, deps=deps))
    rg.tuse[ti] = []
    return vT[ti], o
def reads_W(rg, so, mt, buf, e, deps=(), ups=(), rsp=None):
    a, xo = xor_addr(rg, vWb, mt, mt & 1, e - 8, e, ups)
    dp = list(deps) + ([(xo, 1)] if xo else [(u, 1) for u in ups])
    ops = []
    for s in range(4):
        for p in range(2):
            ops.append(rg.F(Op(f"ds_read_b64_tr_b16 {FR(buf, s, p)}, {a} offset:{so + s*4096 + p*2048}", "ds", rd=[a], wr=[FR(buf, s, p)],
                               e=e, d=e + 2 + len(ops)*(rsp or OPT['rsp'])//8, deps=dp + ([(ops[-1], 0)] if ops else []))))
    if xo: rg.tuse[mt & 1] = ops
    return ops, xo
def reads_K(rg, so, u, buf, e, deps=(), ups=()):
    ops = []
    for s in range(4):
        ops.append(rg.F(Op(f"ds_read_b128 {FR(buf, s)}, {vK[s]} offset:{so + u*1024}", "ds", rd=[vK[s]], wr=[FR(buf, s)],
                           e=e, d=e + 3 + len(ops)*OPT['rk'], deps=list(deps) + [(x, 1) for x in ups] + ([(ops[-1], 0)] if ops else []))))
    return ops
def reads_V(rg, so, dp_, buf, e, deps=(), ups=()):
    ops = []; xs = []
    for k in range(2):
        dt = 2*dp_ + k
        a, xo = xor_addr(rg, vVb, dt, k, e - 10, e + 4*k, ups)
        if xo: xs.append(xo)
        dd = list(deps) + ([(xo, 1)] if xo else [(u, 1) for u in ups])
        mine = []
        for sg in range(2):
            for p in range(2):
                o = rg.F(Op(f"ds_read_b64_tr_b16 {FR(buf, 2*k + sg, p)}, {a} offset:{so + sg*2048 + p*1024}", "ds", rd=[a], wr=[FR(buf, 2*k + sg, p)],
                            e=e, d=e + 2 + len(ops)*OPT['rsp']//8, deps=dd + ([(ops[-1], 0)] if ops else [])))
                ops.append(o); mine.append(o)
        if xo: rg.tuse[k] = mine
    return ops, xs

def barrier(rg, gap, last_reads, tiles, extra=(), lg0=True, st=True):
    w = rg.F(WAIT(gap - 1, need_ds=last_reads, need_vm=list(tiles) + list(extra), lg0=lg0, late=1))
    w.deps += [(x, 1) for x in extra if x in rg.fill]
    b = rg.F(Op("s_barrier", "w", e=gap, d=gap, deps=[(w, 1)])); rg.bars[gap] = b
    if OPT["bst"] and st:
        w.pre = "s_memtime s[2:3]"
        i = rg.nst; rg.nst += 1
        rg.F(V(f"v_writelane_b32 {vLane}, s2, {i}", e=gap + 1, d=gap + 8))
    return b
def xstamp(rg, gap, idx, dep):
    if OPT["bst"] < 2: return
    w = rg.F(Op("s_memtime s[2:3]\ns_waitcnt lgkmcnt(0)", "w", e=gap, d=gap, deps=[(dep, 1)]))
    rg.F(V(f"v_writelane_b32 {vLane}, s2, {idx}", deps=[(w, 0)], d=gap))
def frag_waits(rg, rd_ops, first_use, n_first, second_use):
    if rd_ops is None: return
    rg.F(WAIT(first_use - 1, need_ds=rd_ops[:n_first], late=2))
    if n_first < len(rd_ops): rg.F(WAIT(second_use - 1, need_ds=rd_ops, late=1))

def so_(sb): return (sb[0] - sb[1])*16384
def w_step(rg, half, zero, Bop, pend, cur, nxt, need, extra=(), more_reads=(), xwait=None, post=None):
    b0 = rg.n(); info = dict(b0=b0); xlast = None
    if xwait:
        for t in range(3): rg.F(WAIT(b0 + 4*t - 1, need_ds=xwait[:4*t + 4], late=1))
        info["xbar"] = barrier(rg, b0 + 10, xwait, (), lg0=False, st=False)
    for mt in range(4):
        buf = C.grp & 1; C.grp += 1
        g0 = b0 + 12*mt
        if pend is not None and mt < 3: frag_waits(rg, pend, g0, 4, g0 + 2)
        for t in range(3):
            for s in range(4):
                acc = OA(4*half + mt, t)
                rg.M(mfma(acc, FR(buf, s), Bop(s, t), "0" if (zero and s == 0) else acc))
        if mt < 3:
            pend, xo = reads_W(rg, so_(cur[1:3]), mt + 1, buf ^ 1, g0 - 1 if (mt or b0) else g0)
            if xo: xlast = xo
            if mt == 2: bar = barrier(rg, g0 + 11, pend + list(more_reads), need, extra)
        else:
            ups = rebase(rg, nxt[0], nxt[3], nxt[2], b0 + 20, g0 - 2, after=[xlast] if nxt[0] == "W" else [])
            if nxt[0] == "W": pend, _ = reads_W(rg, so_(nxt[1:3]), 0, buf ^ 1, g0 - 1, deps=[(bar, 0)], ups=ups, rsp=(4 if post else None))
            else: pend = reads_K(rg, so_(nxt[1:3]), 0, buf ^ 1, g0 - 1, deps=[(bar, 0)], ups=ups)
            if post: info["post"] = post(g0, bar)
    info["bar"] = bar; info["end"] = rg.n() - 1
    return pend, info
def TS(name, prev=None):
    k, i = name[0], int(name[1])
    return (k, SLOT[name], BASE[name], BASE[f"{k}{(i - 1) % 8}"])

def softmax(rg, g0, u, Sr, pbuf, d_over, d_puse):
    sg = u >> 1
    for t in range(3):
        last = rg.mf[g0 + 4*t + 3]
        dl = min(d_over(t), d_puse(t) - 3)
        ex = [rg.F(V8(f"v_exp_f32 {Sr(t,i)}, {Sr(t,i)}", rd=[Sr(t,i)], wr=[Sr(t,i)], e=last.gap, sdeps=[(last, 8)], trans=True)) for i in range(4)]
        for j in range(2):
            dst = PBr(pbuf, sg, t, 2*(u & 1) + j)
            rg.F(V(f"v_cvt_pk_bf16_f32 {dst}, {Sr(t,2*j)}, {Sr(t,2*j+1)}", rd=[Sr(t,2*j), Sr(t,2*j+1)], wr=[dst], d=dl,
                   sdeps=[(ex[2*j], 1), (ex[2*j+1], 1)]))
def k_mfmas(rg, buf, Sd):
    for t in range(3):
        for s in range(4):
            rg.M(mfma(Sd(t), FR(buf, s), QV(s, t), "0" if s == 0 else Sd(t)))
def v_mfmas(rg, dp_, buf, pbuf, zero, tmajor=False):
    order = [(k, t) for t in range(3) for k in range(2)] if tmajor else [(k, t) for k in range(2) for t in range(3)]
    last = {}
    for k, t in order:
        for sg in range(2):
            acc = OA(2*dp_ + k, t)
            last[(2*dp_ + k, t)] = rg.M(mfma(acc, FR(buf, 2*k + sg), PB(pbuf, sg, t), "0" if (zero and sg == 0) else acc))
    return last
def sum_mfmas(rg, t, pbuf, zero):
    for sg in range(2):
        o = rg.M(mfma(LA(t), ONES, PB(pbuf, sg, t), "0" if (zero and sg == 0) else LA(t)))
    return o
def o_epilogue_ops(dt, t):
    mul = [V(f"v_mul_f32 {OAr(dt,t,i)}, {vRL[t]}, {OAr(dt,t,i)}", rd=[OAr(dt,t,i), vRL[t]], wr=[OAr(dt,t,i)]) for i in range(4)]
    cvt = []
    for j in range(2):
        dst = OPr(dt >> 1, t, 2*(dt & 1) + j)
        cvt.append(V(f"v_cvt_pk_bf16_f32 {dst}, {OAr(dt,t,2*j)}, {OAr(dt,t,2*j+1)}", rd=[OAr(dt,t,2*j), OAr(dt,t,2*j+1)], wr=[dst],
                     deps=[(mul[2*j], 0), (mul[2*j+1], 0)]))
    for o in mul + cvt: o.ot = (dt, t)
    return mul, cvt
def q_muls(rg, mt, t, last, **kw):
    return [rg.F(V(f"v_mul_f32 {OAr(mt,t,i)}, {sScale}, {OAr(mt,t,i)}", rd=[OAr(mt,t,i)], wr=[OAr(mt,t,i)],
                   e=(last.gap if last is not None else -1), sdeps=([(last, 8)] if last is not None else []), **kw)) for i in range(4)]
def q_epilogue(rg, sp, t, lastA, lastB, d_use, muls=True):
    cv = []
    for k, last in ((0, lastA), (1, lastB)):
        mt = 2*sp + k
        mul = q_muls(rg, mt, t, last) if muls else None
        for j in range(2):
            dst = QVr(sp, t, 2*k + j)
            cv.append(rg.F(V(f"v_cvt_pk_bf16_f32 {dst}, {OAr(mt,t,2*j)}, {OAr(mt,t,2*j+1)}", rd=[OAr(mt,t,2*j), OAr(mt,t,2*j+1)], wr=[dst],
                             deps=([(mul[2*j], 0), (mul[2*j+1], 0)] if muls else []))))
    for j in range(2):
        a, b = QVr(sp, t, j), QVr(sp, t, 2 + j)
        p1 = rg.F(V8(f"v_permlane32_swap_b32 {a}, {b}", rd=[a, b], wr=[a, b], sdeps=[(cv[j], 2), (cv[2+j], 2)]))
        rg.F(V8(f"v_permlane16_swap_b32 {a}, {b}", rd=[a, b], wr=[a, b], sdeps=[(p1, 2)], d=d_use - 3))

def BopQ(st):
    dg = ORD[st][1]
    return (lambda s, t: XA(4*dg + s, t)) if dg < 3 else (lambda s, t: QV(s, t))

def build_R2():
    rg = new_region("R2")
    C.grp = 24
    pend, i6 = w_step(rg, ORD[6][0], False, BopQ(6), None, TS("W6"), TS("W7"), ["W7"])
    pend, i7 = w_step(rg, ORD[7][0], False, BopQ(7), pend, TS("W7"), TS("K0"), ["K0"])
    a0 = rg.n(); b7 = i7["b0"]
    for sp in (0, 1):
        for t in range(3): q_epilogue(rg, sp, t, None, None, min(a0 + 4*t + sp, 30 + (sp*3 + t)*8), muls=False)
    for sp in (2, 3):
        for t in range(3):
            mA, mB = 2*sp - 4, 2*sp - 3
            q_epilogue(rg, sp, t, rg.mf[b7 + 12*mA + 4*t + 3], rg.mf[b7 + 12*mB + 4*t + 3], a0 + 4*t + sp)
    B = lambda i: a0 + 48 + 102*i
    GK = [0, 26, 52, 78]; GV = [12, 38, 64, 90]
    def puse(i, sg, t): return (B(i) + 12 + 2*t + sg) if i < 7 else (B(7) + 4*t + sg)
    def so(n): return so_(TS(n)[1:3])
    def rb(n, e, d, after=()): x = TS(n); return rebase(rg, x[0], x[3], x[2], e, d, after)
    for u in range(4):
        buf = C.grp & 1; C.grp += 1; g0 = rg.n()
        if u < 3: frag_waits(rg, pend, g0, 2, g0 + 2)
        k_mfmas(rg, buf, lambda t: OA(u, t))
        softmax(rg, g0, u, lambda t, i: OAr(u, t, i), 0, lambda t: 10**9, lambda t: puse(0, u >> 1, t))
        if u < 3:
            pend = reads_K(rg, so("K0"), u + 1, buf ^ 1, g0 - 1)
            if u == 2: bar = barrier(rg, g0 + 11, pend, ["K1", "V0"]); lastK = pend
        else:
            ups = rb("K1", g0 - 12, g0 - 2, lastK)
            pend = reads_K(rg, so("K1"), 0, buf ^ 1, g0 - 1, deps=[(bar, 0)], ups=ups)
            upsV = rb("V0", -1, g0)
    for i in range(7):
        b0 = rg.n(); assert b0 == B(i)
        for u in range(4):
            buf = C.grp & 1; C.grp += 1; g0 = rg.n(); assert g0 == b0 + GK[u]
            frag_waits(rg, pend, g0, 2, g0 + 2)
            k_mfmas(rg, buf, lambda t: R("v", S0 + 4*t, 4))
            nxtK = (b0 + GK[u+1]) if u < 3 else (B(i+1) if i < 6 else None)
            softmax(rg, g0, u, lambda t, j: f"v{S0 + 4*t + j}", (i + 1) & 1,
                    (lambda t: nxtK + 4*t - 1) if nxtK else (lambda t: 10**9), lambda t: puse(i + 1, u >> 1, t))
            pend, xs = reads_V(rg, so(f"V{i}"), u, buf ^ 1, g0 - 1, ups=(upsV if u == 0 else ()))
            if u == 3: bar = barrier(rg, g0 + 11, pend, [f"K{i+2}", f"V{i+1}"] if i < 6 else ["V7"]); lastX = xs
            buf = C.grp & 1; C.grp += 1; g0 = rg.n(); assert g0 == b0 + GV[u]
            if u < 3: frag_waits(rg, pend, g0, 4, g0 + 6)
            v_mfmas(rg, u, buf, i & 1, i == 0)
            if u < 3:
                sum_mfmas(rg, u, i & 1, i == 0)
                pend = reads_K(rg, so(f"K{i+1}"), u + 1, buf ^ 1, g0 - 1)
                if u == 2: lastK = pend
            elif i < 6:
                ups = rb(f"K{i+2}", g0 - 20, g0 - 2, lastK)
                pend = reads_K(rg, so(f"K{i+2}"), 0, buf ^ 1, g0 - 1, deps=[(bar, 0)], ups=ups)
                upsV = rb(f"V{i+1}", g0 - 10, g0 + 4, lastX)
            else:
                upsV = rb("V7", g0 - 10, g0 - 2, lastX)
                pend, _ = reads_V(rg, so("V7"), 0, buf ^ 1, g0 - 1, deps=[(bar, 0)], ups=upsV)
    E = rg.n(); assert E == B(7)
    epi = []
    for p in range(4):
        buf = C.grp & 1; C.grp += 1; g0 = rg.n()
        if p == 0: frag_waits(rg, pend, g0, 4, g0 + 2)
        elif p < 3: frag_waits(rg, pend, g0, 4, g0 + 6)
        last = v_mfmas(rg, p, buf, 1, False, tmajor=(p == 0))
        if p == 0:
            rl = []; lr = []
            for t in range(3):
                ls = sum_mfmas(rg, t, 1, False)
                lr.append(rg.F(V(f"v_accvgpr_read_b32 {vRL[t]}, a{240+4*t}", rd=[f"a{240+4*t}"], wr=[vRL[t]], e=ls.gap, sdeps=[(ls, 8)], d=E + 28)))
            mn = rg.F(V(f"v_min3_f32 {vA}, {vRL[0]}, {vRL[1]}, {vRL[2]}", rd=vRL, wr=[vA], deps=[(x, 0) for x in lr], d=E + 30))
            mx = rg.F(V(f"v_max3_f32 {vB}, {vRL[0]}, {vRL[1]}, {vRL[2]}", rd=vRL, wr=[vB], deps=[(x, 0) for x in lr], d=E + 30))
            rg.F(V(f"v_cmp_gt_f32 {sBad}, {sLo}, {vA}", rd=[vA], wr=[sBad], deps=[(mn, 0)], d=E + 40))
            rg.F(V(f"v_cmp_lt_f32 vcc, {sHi}, {vB}", rd=[vB], wr=["vcc"], deps=[(mx, 0)], d=E + 40))
            for t in range(3):
                rl.append(rg.F(V8(f"v_rcp_f32 {vRL[t]}, {vRL[t]}", rd=[vRL[t]], wr=[vRL[t]], deps=[(mn, 0), (mx, 0)], trans=True, d=E + 34)))
        for (dt, t), lm in last.items():
            mul, cvt = o_epilogue_ops(dt, t)
            for o in mul: o.e = lm.gap; o.sdeps = [(lm, 8), (rl[t], 1)]
            for o in mul + cvt:
                o.optional = True
                if dt >= 4 and o in cvt: o.e = 10**9
                rg.F(o); epi.append(o)
        if p < 3:
            pend, xs = reads_V(rg, so("V7"), p + 1, buf ^ 1, g0 - 1 if p != 0 else g0 + 3)
            if p == 2: bar = barrier(rg, g0 + 11, pend, ["W0", "Xa", "Xb", "Xc"])
        else:
            ups = rb("W0", -1, g0 - 2, [])
            for o in ups: o.e = a0
            pend, _ = reads_W(rg, so("W0"), 0, buf ^ 1, g0 - 1, deps=[(bar, 0)], ups=ups, rsp=6)
    assert sorted(g + 288 for g in rg.bars) == ringplan.bS[6:] + [ringplan.bQ] + ringplan.bB + [ringplan.bP]
    head_dmas(rg, 288, 1200)
    rg.pendW0 = pend; rg.epi = epi
    rg.schedule()
    return rg

def half0_muls(rg, b4):
    for mt in range(4):
        for t in range(3): q_muls(rg, mt, t, rg.mf[b4 + 12*mt + 4*t + 3])

def build_R1(left):
    rg = new_region("R1")
    C.grp = 0
    xa = [rg.F(V(f"v_add_u32 v{S0+s}, {sW1k}, {vK[s]}", rd=[vK[s]], wr=[f"v{S0+s}"], d=6)) for s in range(4)]
    xr = reads_X(rg, lambda sl, s: (f"v{S0+s}", (sl - XB)*16384), [SLOT["Xa"], SLOT["Xb"], SLOT["Xc"]], QV, 4, 9, [(a, 1) for a in xa], step=2)
    pend = None; infos = []
    for st in range(6):
        pend, inf = w_step(rg, ORD[st][0], st in (0, 3), BopQ(st), pend, TS(f"W{st}"), TS(f"W{st+1}"), [f"W{st+1}"], more_reads=(xr if st == 0 else ()))
        infos.append(inf)
    new = {}
    for o in left:
        dt, t = o.ot
        n = V(o.text, rd=list(o.rd), wr=list(o.wr)); n.ot = o.ot; new[id(o)] = n
        n.deps = [(new[id(p)], g) for (p, g) in o.deps if id(p) in new]
        n.e = 8 if dt >= 6 else -1
        n.d = ((12*dt + 4*t) if dt < 4 else (144 + 12*(dt - 4) + 4*t)) - 1
        rg.F(n)
    half0_muls(rg, infos[4]["b0"])
    head_dmas(rg, 0, 288)
    rg.schedule()
    return rg

def build_R1f():
    X = lambda q: [f"x{q}{a}" for a in range(3)]
    final = [t for t in ISS if ISS[t] < 288 and t[0] in "KV"] + ["W6", "W7"]
    assert set(final) == {"K0", "K1", "V0", "K2", "V1", "K3", "W6", "W7"}, final
    init = X(0) + ["w0"] + X(1) + ["w1", "K0", "K1"]
    inh = list(zip(X(2), X(0))) + [("w2", "w0")] + list(zip(["w3", "x30", "x31"], X(1))) + [("x32", "w1")] + \
          list(zip(["w4", "V0", "w5"], X(2))) + [("K2", "w2"), ("W6", "w3")] + list(zip(["V1", "W7", "K3"], X(3)))
    sl = {t: SLOT[t] for t in final}
    for new, old in reversed(inh):
        if new in sl: sl[old] = sl[new]
    free = [x for x in range(10) if x not in {sl[t] for t in init if t in sl}]
    for t in init:
        if t not in sl: sl[t] = free.pop()
    for new, old in inh: sl[new] = sl[old]
    def spec(t):
        if t[0] == "x": return ("X", int(t[2]), int(t[1]))
        if t[0] in "wW": return ("W", wq_lit(int(t[1])))
        return (t[0],)
    wsl = [sl[f"w{j}"] for j in range(6)] + [SLOT["W6"]]
    wb = [min(x, 6) for x in wsl[:6]] + [BASE["W6"]]
    rg = new_region("R1f")
    C.grp = 0
    xaddr = lambda s_, s: (f"v{S0 + 4*(s_ >> 2) + s}", (s_ & 3)*16384)
    dst = {0: (1, lambda s, t: XA(4 + s, t)), 1: (2, lambda s, t: XA(8 + s, t)), 3: (3, QV)}
    pend = None; infos = []; xw = None
    for st in range(6):
        post = None; need = [f"w{st+1}" if st < 5 else "W6"]
        if st in dst:
            q, fn = dst[st]; need += X(q)
            post = (lambda q, fn: lambda g0, bar: reads_X(rg, xaddr, [sl[t] for t in X(q)], fn, g0 + 2, g0 + 5, [(bar, 0)]))(q, fn)
        pend, inf = w_step(rg, ORD[st][0], st in (0, 3), BopQ(st), pend, ("W", wsl[st], wb[st]), ("W", wsl[st+1], wb[st+1], wb[st]), need, xwait=xw, post=post)
        xw = inf.get("post"); infos.append(inf)
    rel = {"w%d" % j: infos[j]["bar"] for j in range(6)}
    for q, st in ((1, 1), (2, 2), (3, 4)):
        for t in X(q): rel[t] = infos[st]["xbar"]
    items = []; tcur = 0
    for t in ["x20", "x21", "x22", "K0", "K1"]:
        items.append((t, spec(t), sl[t], tcur, 1, None)); tcur += 5
    for new, old in inh[3:]:
        tcur = max(tcur, rel[old].e)
        items.append((new, spec(new), sl[new], tcur, 2, rel[old])); tcur += 9
    add_dmas(rg, items)
    half0_muls(rg, infos[4]["b0"])
    rg.schedule()
    rg.init = [(t, spec(t), sl[t]) for t in init[:8]]; rg.wb0 = wb[0]; rg.wso0 = (wsl[0] - wb[0])*16384
    rg.x0 = [xaddr(sl[t], 0) for t in X(0)]; rg.xsl0 = [sl[t] for t in X(0)]; rg.xaddr = xaddr
    return rg

RLD = [[R("v", QV0 + 4*g, 4) for g in range(8)],
       [R("v", QV0 + 32 + 4*g, 4) for g in range(4)] + [R("v", S0 + 4*g, 4) for g in range(3)] + ["v[236:239]"]]
vSt, vFl, vPo, vPr, vOut = vDK, vDV, vVb, vDX, vC
LAG = OPT['lag']
NTST = ' nt' if OPT['ntst'] else ''
LO = ["v249", "v250", "v251", "v253"]
def pack_store(chunk):
    res = []
    for t in range(3):
        for np_ in range(2):
            a, b = 4*chunk + 2*np_, 4*chunk + 2*np_ + 1
            src = [(OAr(a,t,0), OAr(a,t,1)), (OAr(a,t,2), OAr(a,t,3)), (OAr(b,t,0), OAr(b,t,1)), (OAr(b,t,2), OAr(b,t,3))]
            cv = []
            for j in range(4):
                cv.append(V(f"v_cvt_pk_bf16_f32 {OAr(a,t,j)}, {src[j][0]}, {src[j][1]}", rd=list(src[j]), wr=[OAr(a,t,j)], deps=([(cv[-1], 0)] if cv else [])))
            k = 2*t + np_
            sa = S(f"s_add_u32 {sU[k & 1]}, {sSt}, {k*8192}", wr=[sU[k & 1]])
            st = Op(f"buffer_store_dwordx4 {OA(a,t)}, {vSt}, {srdWS}, {sU[k & 1]} offen@SC", "vm", rd=[OA(a,t), vSt], deps=[(cv[-1], 1), (sa, 0)])
            res.append((cv, sa, st))
    return res
def reduce_ops(set_):
    X = [regs(r_) for r_ in RLD[set_]]
    tmp = [vA, vB]; ops = []; n = 0
    for k in range(4):
        ops += [V(f"v_lshlrev_b32 {LO[k]}, 16, {X[0][k]}", rd=[X[0][k]], wr=[LO[k]]),
                V(f"v_and_b32 {X[0][k]}, {sMask}, {X[0][k]}", rd=[X[0][k]], wr=[X[0][k]])]
        for g in range(1, 8):
            tm = tmp[n & 1]; n += 1
            ops += [V(f"v_lshlrev_b32 {tm}, 16, {X[g][k]}", rd=[X[g][k]], wr=[tm]),
                    V(f"v_and_b32 {X[g][k]}, {sMask}, {X[g][k]}", rd=[X[g][k]], wr=[X[g][k]]),
                    V(f"v_add_f32 {LO[k]}, {LO[k]}, {tm}", rd=[LO[k], tm], wr=[LO[k]]),
                    V(f"v_add_f32 {X[0][k]}, {X[0][k]}, {X[g][k]}", rd=[X[0][k], X[g][k]], wr=[X[0][k]])]
        ops.append(V(f"v_cvt_pk_bf16_f32 {X[0][k]}, {LO[k]}, {X[0][k]}", rd=[LO[k], X[0][k]], wr=[X[0][k]]))
    for a, b in zip(ops, ops[1:]): b.deps.append((a, 0))
    pl = []
    for j in range(2):
        pl.append(V8(f"v_permlane32_swap_b32 {X[0][j]}, {X[0][2+j]}", rd=[X[0][j], X[0][2+j]], wr=[X[0][j], X[0][2+j]], sdeps=[(ops[-1], 2)]))
    for j in range(2):
        pl.append(V8(f"v_permlane16_swap_b32 {X[0][j]}, {X[0][2+j]}", rd=[X[0][j], X[0][2+j]], wr=[X[0][j], X[0][2+j]], sdeps=[(pl[j], 2)]))
    st = Op(f"buffer_store_dwordx4 {RLD[set_][0]}, {vOut}, {srdO}, {sOut} offen", "vm", rd=[RLD[set_][0], vOut, sOut], deps=[(pl[2], 1), (pl[3], 1)])
    return ops, pl, st
def red_loads(set_):
    return [Op(f"buffer_load_dwordx4 {RLD[set_][g]}, {vSt}, {srdWS}, {sLd if g < 4 else sLd2} offen offset:{(g & 3)*1024} sc1", "vm",
               rd=[vSt], wr=[RLD[set_][g]]) for g in range(8)]
def sig_ops():
    return [Op(f"buffer_store_dword {vSt}, {vFl}, {srdWS}, {sSig} offen@SC", "vm", rd=[vSt, vFl])]
def scal_A():
    return [f"s_sub_u32 {sTmp}, {sIt}, 1", f"s_and_b32 {sTmp}, {sTmp}, {sSlM}", f"s_mul_i32 {sTmp}, {sTmp}, {CHUNK}",
            f"s_add_u32 {sSt}, {sStR}, {sTmp}", f"s_add_u32 {sLd}, {sLdR}, {sTmp}",
            f"s_cmp_ge_u32 {sIt}, 1", f"s_cselect_b32 {sSt}, {sSt}, {hex(OOB)}", f"s_cselect_b32 {sSig}, {sFlR}, {hex(OOB)}",
            f"s_cselect_b32 {sExp}, 16, 0", f"s_cselect_b32 {sPo}, {sFlR}, {hex(FLAG_BASE + 0x20000)}",
            f"s_cmp_ge_u32 {sIt}, {sLdMin}", f"s_cselect_b32 {sLd}, {sLd}, {hex(OOB)}", f"s_add_u32 {sLd2}, {sLd}, 0x1000",
            f"s_add_u32 {sFlR}, {sFlR}, 256"]
def scal_B():
    return [f"s_add_u32 {sOut}, {sOutR}, {sOc}", f"s_cmp_ge_u32 {sIt}, 2", f"s_cselect_b32 {sOut}, {sOut}, {hex(OOB)}",
            f"s_add_u32 {sOc}, {sOc}, 128", f"s_and_b32 {sOc}, {sOc}, 0x3ff", f"s_add_u32 {sIt}, {sIt}, 1"]

def build_G():
    rg = new_region("G")
    used = [SLOT[t] for t in NEXT]
    gs = used + [SLOT["K0"]] + [x for x in range(10) if x not in used and x not in (SLOT["K0"], SLOT["K1"], SLOT["V0"])][:1]
    assert len(gs) == 8
    gb = ringplan.bases(gs)[1]; assert gb[0] == BASE["W0"]
    rg.gs = gs; items = []; bars = {}; rg.st_last = {}; rg.sB_last = {}
    C.grp = 0
    def Bop(h): return (lambda s, t: ZA(h, s, t)) if h < 3 else (lambda s, t: OP(s, t))
    LD = [red_loads(0), red_loads(1)]
    pend = None; prev_users = []
    for hf in range(2):
        h0 = 192*hf
        stores = []
        for (cv, sa, st) in pack_store(1 - hf):
            for o in cv: o.e = h0 + 8; rg.F(o)
            if len(stores) >= 2: sa.deps.append((stores[-2], 1))
            rg.F(sa); st.e = h0 + 10 + OPT['gst']*len(stores); st.d = st.e + 3; rg.F(st); stores.append(st)
        sc = [rg.F(S(x, e=h0, deps=[(u, 1) for u in prev_users])) for x in scal_B()]
        rg.sB_last[hf] = sc[-1]
        cur = hf ^ 1
        w0 = rg.F(WAIT(h0 + OPT['gsum'], need_vm=LD[cur], late=1)); w0.e = h0 + OPT['gsum']
        o0, p0, s0_ = reduce_ops(cur)
        o0[0].deps.append((w0, 0))
        for o in o0 + p0 + [s0_]: rg.F(o)
        s0_.d = h0 + OPT['gout']; s0_.deps += [(sc[2], 0), (LD[hf][-1], 1)]
        infos = []
        for j in range(4):
            st = 4*hf + j
            n1 = (st + 1) & 7
            pend, inf = w_step(rg, hf, j == 0, Bop(j), pend, ("W", gs[st], gb[st]), ("W", gs[n1], gb[n1], gb[st]), [f"G{n1}"], extra=(stores if j == 1 else ()))
            infos.append(inf); bars[st] = inf["bar"]
        sig, = sig_ops(); bs = infos[1]["bar"]
        sig.deps = [(bs, 0)]; sig.d = bs.e + 1; rg.F(sig)
        po = rg.F(S(f"s_load_dwordx8 s[68:75], s[82:83], {sPo}{' glc' if OPT['glc'] else ''}", e=h0 + OPT['gpoll'], d=h0 + OPT['gpoll'] + 4))
        b2 = infos[2]["bar"]
        ck = [rg.F(S(x, deps=[(b2, 0)])) for x in ("s_and_b32 s68, s68, s69", "s_and_b32 s70, s70, s71", "s_and_b32 s72, s72, s73", "s_and_b32 s74, s74, s75",
              "s_and_b32 s68, s68, s70", "s_and_b32 s72, s72, s74", "s_and_b32 s68, s68, s72", f"s_and_b32 s68, s68, {sExp}", f"s_cmp_lg_u32 s68, {sExp}")]
        br = rg.F(Op(f"s_cbranch_scc1 L_spinG{hf}@L\nL_backG{hf}@L:", "s", d=b2.e + 12))
        prev = None
        for i, o in enumerate(LD[hf]):
            o.deps += [(br, 0)] + ([(prev, 1)] if prev else []); o.e = b2.e + 10 + OPT['gld']*i; o.d = o.e + 3; rg.F(o); prev = o
        prev_users = [s0_]
        for i, x in enumerate(scal_A()): rg.F(S(x, deps=[(LD[hf][-1], 1)] if i == 0 else []))
        for k in range(4):
            st = (4*hf - 2 + k) & 7
            items.append((f"G{st}", ("C", (1 + (st >> 2)) if (hf or k > 1) else 0, st & 3), gs[st], h0 + OPT["gdma"] + k*(4*OPT["gdsp"] + 1), OPT["gdsp"],
                          bars[st] if (hf or k > 1) else stores[-1]))
        rg.st_last[hf] = stores[-1]
    add_dmas(rg, items)
    c1 = S(f"s_cmp_ge_u32 {sIt}, 7", deps=[(TILE["G7"][-1], 1)]); c2 = S("s_cselect_b32 s18, 0, s18", wr=["s18"], rd=["s18"])
    pos = rg.fill.index(rg.sB_last[0]) + 1
    rg.fill[pos:pos] = [c1, c2]
    for i, o in enumerate(rg.fill): o.seq = i + 1
    rg.first_dma["G0"].deps.append((c2, 0))
    rg.first_dma["G6"].deps.append((rg.st_last[0], 1)); rg.first_dma["G2"].deps.append((rg.st_last[1], 1))
    rg.LD = LD
    rg.schedule()
    return rg

def stamp(kind=0):
    if not OPT["stamps"]: return []
    def put(x): return lin(f"v_mov_b32 {vA}, {x}") + [Op(f"buffer_store_dword {vA}, off, {srdWS}, s101", "vm")] + lin("s_add_u32 s101, s101, 4\ns_nop 1")
    if kind == 1: return put("s92") + put("s94") + stamp()
    if kind == 2: return lin("s_waitcnt vmcnt(0)") + stamp() + lin("s_memrealtime s[2:3]\ns_waitcnt lgkmcnt(0)") + put("s2")
    return lin("s_memtime s[2:3]\ns_waitcnt lgkmcnt(0)") + put("s2")

def prologue(F):
    init = F.init
    o = lin(f"""
s_cmp_lt_u32 s2, 256
s_cbranch_scc1 L_go
s_endpgm
L_go:
{"s_memrealtime s[92:93]" if OPT["stamps"] else ""}
{"s_memtime s[94:95]" if OPT["stamps"] else ""}
s_load_dwordx16 s[68:83], s[0:1], 0
v_lshrrev_b32 v1, 6, v0
v_and_b32 {vLane}, 63, v0
s_and_b32 s4, s2, 7
v_readfirstlane_b32 {sWave}, v1
s_lshr_b32 s5, s2, 3""")
    mp = {84: (1, 3, 2, 1, 2, 3), 48: (0, 2, 3, 0, 3, 7), 162: (2, 4, 1, 3, 1, 1)}[OPT["mapping"]]
    o += lin(f"""
s_lshr_b32 s6, s4, {mp[0]}
s_lshl_b32 s6, s6, {mp[1]}
s_lshr_b32 s7, s5, {mp[2]}
s_add_u32 {sB}, s6, s7
s_and_b32 s6, s4, {mp[3]}
s_lshl_b32 s6, s6, {mp[4]}
s_and_b32 s7, s5, {mp[5]}
s_add_u32 {sG}, s6, s7""")
    cbits = struct.unpack("<I", struct.pack("<f", math.log2(math.e)/math.sqrt(128)))[0]
    o += lin(f"""
s_lshl_b32 {sW4k}, {sWave}, 12
v_lshrrev_b32 v5, 4, {vLane}
v_and_b32 v6, 15, {vLane}
s_lshl_b32 s6, {sWave}, 4
v_add_u32 v1, s6, v5
s_lshl_b32 s6, {sWave}, 2
v_or_b32 v2, s6, v5
v_xor_b32 v2, v2, v6
v_lshlrev_b32 v2, 4, v2
v_lshl_add_u32 {vDX}, v1, 10, v2
v_lshl_add_u32 {vDK}, v1, 8, v2
v_lshrrev_b32 v7, 5, {vLane}
v_bfe_u32 v2, {vLane}, 3, 2
v_lshl_add_u32 v7, v7, 3, v2
s_lshl_b32 s6, {sWave}, 5
v_add_u32 v7, s6, v7
v_and_b32 v3, 7, {vLane}
v_lshlrev_b32 v4, 1, v5
v_xor_b32 v3, v3, v4
v_lshlrev_b32 v3, 4, v3
v_lshl_add_u32 {vDW}, v7, 13, v3
s_mov_b32 {sDY[1]}, 3072
s_mov_b32 {sDY[2]}, 6144
s_mov_b32 {sDY[3]}, 9216
s_mov_b32 {sD[1]}, {16*8192 - 1024}
s_mov_b32 {sD[2]}, {4*8192 - 2048}
s_mov_b32 {sD[3]}, {20*8192 - 3072}
s_mov_b32 {sWcol}, 0
s_mul_i32 s7, {sB}, 196608
s_mov_b32 s22, 196608
s_mov_b32 s23, 0x20000
s_mov_b32 s19, 0x20000
s_lshl_b32 s4, {sG}, 10
s_sub_u32 s18, 0x400000, s4
s_waitcnt lgkmcnt(0)
s_add_u32 s20, s68, s7
s_addc_u32 s21, s69, 0
s_add_u32 s16, s74, s4
s_addc_u32 s17, s75, 0""")
    for j in range(4): o += dma_linear(*init[j])
    o += lin(f"""
v_lshrrev_b32 v7, 3, {vLane}
v_add_u32 v7, s6, v7
v_lshl_add_u32 {vDWo}, v7, 10, v3
s_and_b32 s6, {sWave}, 1
s_lshl_b32 s6, s6, 2
v_or_b32 v2, s6, v5
v_lshlrev_b32 v2, 1, v2
v_xor_b32 v2, v2, v6
v_lshlrev_b32 v1, 8, v1
v_lshl_add_u32 {vDV}, v2, 4, v1
s_mov_b32 s24, s82
s_mov_b32 s25, s83
s_mov_b32 s26, {hex(WS_BYTES)}
s_mov_b32 s27, 0x20000
v_lshrrev_b32 v1, 3, {vLane}
v_and_b32 v2, 7, {vLane}
v_lshlrev_b32 v1, 8, v1
v_lshl_add_u32 v8, v2, 2, v1
s_lshl_b32 s6, {sB}, 11
s_add_u32 s6, s6, {hex(FLAG_BASE)}
s_or_b32 s7, {sG}, {sWave}
s_cmp_eq_u32 s7, 0
s_cselect_b32 {sTmp}, s6, {hex(OOB)}
v_mov_b32 v9, 0""")
    zst = Op(f"buffer_store_dword v9, v8, {srdWS}, {sTmp} offen sc1", "vm"); o.append(zst)

    o += lin(f"""
s_mov_b32 {sScale}, {hex(cbits)}
s_mov_b32 {sLo}, 0x30800000
s_mov_b32 {sHi}, 0x4e800000
s_mov_b32 {sHead}, 0
s_mov_b32 {sKoff}, 0
s_mov_b32 {sVoff}, 0
s_lshl_b32 {sW1k}, {sWave}, 10
s_lshl_b32 s6, {sB}, 22
s_lshl_b32 s7, {sG}, 19
s_add_u32 s6, s6, s7
{"s_mov_b32 s6, 0" if OPT["samekv"] else ""}
s_add_u32 s8, s70, s6
s_addc_u32 s9, s71, 0
s_mov_b32 s10, 0x80000
s_mov_b32 s11, 0x20000
s_add_u32 s12, s72, s6
s_addc_u32 s13, s73, 0
s_mov_b32 s14, 0x80000
s_mov_b32 s15, 0x20000
s_mov_b32 s28, s78
s_mov_b32 s29, s79
s_mov_b32 s30, 0x600000
s_mov_b32 s31, 0x20000
s_mov_b32 s32, s80
s_mov_b32 s33, s81
s_mov_b32 s34, 0x100
s_mov_b32 s35, 0x20000
v_lshrrev_b32 v1, 2, v6
v_and_b32 v2, 3, v6
v_lshl_add_u32 v3, v1, 4, v2
v_lshlrev_b32 v3, 8, v3""")
    for s in range(4):
        o += lin(f"v_add_u32 v4, {4*s}, v5\nv_xor_b32 v4, v4, v6\nv_lshl_add_u32 {vK[s]}, v4, 4, v3")
    o += lin(f"""
v_lshl_add_u32 v3, v5, 4, v1
v_lshlrev_b32 v3, 8, v3
v_and_b32 v4, 1, v5
v_lshl_add_u32 v7, v4, 2, v1
v_lshl_add_u32 v3, v7, 5, v3
v_lshl_add_u32 v3, v2, 3, v3
v_add_u32 {vVb}, {BASE["V7"]*16384}, v3
v_lshl_add_u32 v3, v5, 2, v1
v_lshlrev_b32 v3, 7, v3
v_lshrrev_b32 v7, 1, v1
v_lshl_add_u32 v7, v4, 1, v7
v_lshl_add_u32 v3, v7, 5, v3
v_lshl_add_u32 v3, v2, 3, v3
v_add_u32 {vWb}, {F.wb0*16384}, v3
v_mov_b32 v3, 0x3f803f80
v_accvgpr_write_b32 a252, v3
v_accvgpr_write_b32 a253, v3
v_accvgpr_write_b32 a254, v3
v_accvgpr_write_b32 a255, v3
""")
    for s in range(4):
        o += lin(f"v_add_u32 v{S0+s}, {sW1k}, {vK[s]}\nv_add_u32 v{S0+4+s}, 0x10000, v{S0+s}\nv_add_u32 v{S0+8+s}, 0x20000, v{S0+s}\nv_add_u32 {vK[s]}, {BASE['K7']*16384}, {vK[s]}")
    o += lin(f"s_add_u32 {sW1k}, {sW1k}, {lit((XB - BASE['K7'])*16384)}")
    for j in range(4, 8): o += dma_linear(*init[j])
    if OPT["stamps"]:
        o += lin(f"s_lshl_b32 s101, s2, 10\ns_lshl_b32 s6, {sWave}, 8\ns_add_u32 s101, s101, s6\ns_add_u32 s101, s101, {hex(STAMP_BASE)}")
    if OPT["stamps"] == 2: o += stamp(1)
    o.append(WAIT(0, need_vm=[x[0] for x in init[:4]]))
    o += lin("s_barrier")
    if OPT["stamps"] == 2: o += stamp()
    for t in range(3):
        for s in range(4): o += lin("ds_read_b128 %s, %s offset:%d" % ((XA(s, t),) + F.xaddr(F.xsl0[t], s)))
    for s in range(4):
        for p in range(2): o += lin(f"ds_read_b64_tr_b16 {FR(0, s, p)}, {vWb} offset:{F.wso0 + s*4096 + p*2048}")
    o += lin("s_waitcnt lgkmcnt(0)\ns_barrier")
    return o, zst

def glue1(zst):
    def mv(h): return [V(f"v_accvgpr_write_b32 a{ZB[h] + i}, v{PV0 + i}", rd=[f"v{PV0+i}"], wr=[f"a{ZB[h]+i}"]) for i in range(48)]
    head = lin(f"s_cmp_eq_u32 {sHead}, 1\ns_cbranch_scc1 L_mv1\ns_cmp_eq_u32 {sHead}, 2\ns_cbranch_scc1 L_mv2")
    dbg = Op(f"buffer_load_dword {vDWo}, off, {srdD}, {sTmp} sc1", "vm")
    p3 = mv(2) + lin(f"""s_lshl_b32 s6, {sG}, 19
s_add_u32 s16, s76, s6
s_addc_u32 s17, s77, 0
s_mov_b32 s18, 0x80000
s_mov_b32 s20, s16
s_mov_b32 s21, s17
s_mov_b32 s22, 0x80000
s_mov_b32 {sWcol}, 0
v_mov_b32 {vDW}, {vDWo}
v_mov_b32 {vDX}, {vDWo}
s_lshl_b32 {sTmp}, {sB}, 2""" + "".join(f"\ns_mov_b32 {sD[i]}, {7168*i}\ns_mov_b32 {sDY[i]}, {7168*i}" for i in (1, 2, 3))
      + f"""
s_lshr_b32 {sRot}, {sB}, 2
s_and_b32 {sRot}, {sRot}, {7 if OPT["rot"] else 0}
s_lshl_b32 {sRot}, {sRot}, 7"""
      + "".join(f"\ns_add_u32 {sC[i]}, {sRot}, {128*(i+1)}\ns_and_b32 {sC[i]}, {sC[i]}, 0x3ff" for i in range(3))
      + "".join(f"\ns_add_u32 {sN[m]}, {sRot if m < 4 else sC[0]}, {hex((m & 3)*0x20000)}" for m in range(6))) + [dbg] + lin("s_branch L_mvd")
    p1 = lin("L_mv1:") + mv(0) + lin("s_branch L_mvn")
    p2 = lin("L_mv2:") + mv(1)
    nx = lin(f"L_mvn:\ns_add_u32 {sWcol}, {sWcol}, 256" + "".join(f"\ns_add_u32 {sN[k]}, {sWcol}, {hex(wq_lit(j))}" for k, j in [(NEXT.index(t), int(t[1])) for t in NEXT if t[0] == "W"]))
    tail = lin("L_mvd:\ns_waitcnt lgkmcnt(0)")
    w = WAIT(0, need_vm=[zst])
    p0 = [w] + lin(f"""s_getreg_b32 {sXcc}, hwreg(HW_REG_XCC_ID, 0, 3)
s_lshl_b32 s6, {sB}, 2
s_cmp_eq_u32 {sWave}, 0
s_cselect_b32 s6, s6, {hex(OOB)}
s_lshl_b32 {sXcc}, {sXcc}, 2
s_lshl_b32 {sXcc}, 1, {sXcc}
v_mov_b32 {vB}, {hex(OOB)}
v_writelane_b32 {vB}, 0, 0
v_mov_b32 {vA}, {sXcc}""" + "".join(f"\ns_mov_b32 {sN[NEXT.index('X' + 'abc'[a])]}, {a*65536 + 768}" for a in range(3))) + [Op(f"buffer_atomic_add {vA}, {vB}, {srdD}, s6 offen sc1", "vm")] + lin("s_branch L_mvn")
    return head, p3, p1, p2, nx, tail, p0, dbg

def slow_path(placed, pendW0):
    vKo, vVo, vVo2 = f"v{PV0+40}", f"v{PV0+41}", f"v{PV0+42}"
    M = [f"v{PV0+36+t}" for t in range(3)]
    CN = [R("v", PV0 + 24 + 4*t, 4) for t in range(3)]
    Sx = [R("v", S0 + 4*t, 4) for t in range(3)]
    t_ = f"""
L_slow:
s_waitcnt vmcnt(0) lgkmcnt(0)
s_nop 7
v_mbcnt_lo_u32_b32 {vB}, -1, 0
v_mbcnt_hi_u32_b32 {vB}, -1, {vB}
v_and_b32 {vA}, 15, {vB}
v_lshrrev_b32 {vB}, 4, {vB}
v_lshlrev_b32 {vKo}, 8, {vA}
v_lshl_add_u32 {vKo}, {vB}, 4, {vKo}
v_lshlrev_b32 {vVo}, 10, {vB}
v_lshl_add_u32 {vVo}, {vA}, 1, {vVo}
v_add_u32 {vVo2}, 0x1000, {vVo}
s_lshl_b32 s4, {sHead}, 17
s_add_u32 s5, s4, 0x20000
s_mov_b32 s6, s4
"""
    for t in range(3): t_ += f"v_mov_b32 {M[t]}, 0xff800000\n"
    t_ += "L_slow1:\n"
    for s in range(4): t_ += f"buffer_load_dwordx4 {FR(0, s)}, {vKo}, {srdK}, s6 offen offset:{64*s}\n"
    t_ += "s_waitcnt vmcnt(0)\n"
    for t in range(3):
        for s in range(4): t_ += f"v_mfma_f32_16x16x32_bf16 {Sx[t]}, {FR(0, s)}, {QV(s, t)}, {'0' if s == 0 else Sx[t]}\n"
    t_ += "s_nop 9\n"
    for t in range(3):
        t_ += f"v_max3_f32 {M[t]}, {M[t]}, v{S0+4*t}, v{S0+4*t+1}\nv_max3_f32 {M[t]}, {M[t]}, v{S0+4*t+2}, v{S0+4*t+3}\n"
    t_ += "s_add_u32 s6, s6, 0x1000\ns_cmp_lt_u32 s6, s5\ns_cbranch_scc1 L_slow1\n"
    for t in range(3):
        t_ += f"""v_mov_b32 {vA}, {M[t]}
s_nop 1
v_permlane32_swap_b32 {vA}, {M[t]}
s_nop 1
v_max_f32 {M[t]}, {vA}, {M[t]}
v_mov_b32 {vA}, {M[t]}
s_nop 1
v_permlane16_swap_b32 {vA}, {M[t]}
s_nop 1
v_max_f32 {M[t]}, {vA}, {M[t]}
"""
        for i in range(4): t_ += f"v_sub_f32 v{PV0+24+4*t+i}, 0, {M[t]}\n"
    for i in range(96): t_ += f"v_mov_b32 v{i}, 0\n"
    for i in range(12): t_ += f"v_accvgpr_write_b32 a{240+i}, 0\n"
    t_ += "s_mov_b32 s6, s4\nL_slow2:\n"
    for u in range(2):
        for s in range(4): t_ += f"buffer_load_dwordx4 {FR(0, s)}, {vKo}, {srdK}, s6 offen offset:{64*s}\n"
        t_ += "s_waitcnt vmcnt(0)\n"
        for t in range(3):
            for s in range(4): t_ += f"v_mfma_f32_16x16x32_bf16 {Sx[t]}, {FR(0, s)}, {QV(s, t)}, {CN[t] if s == 0 else Sx[t]}\n"
        t_ += "s_nop 9\n"
        for i in range(12): t_ += f"v_exp_f32 v{S0+i}, v{S0+i}\n"
        t_ += "s_nop 0\n"
        for t in range(3):
            for j in range(2): t_ += f"v_cvt_pk_bf16_f32 {PBr(0, 0, t, 2*u + j)}, v{S0+4*t+2*j}, v{S0+4*t+2*j+1}\n"
        if u == 0: t_ += "s_mov_b32 s7, s6\ns_add_u32 s6, s6, 0x1000\n"
    f = FA0 + 16
    for dt in range(8):
        for j in range(8):
            t_ += f"buffer_load_short_d16{'_hi' if j & 1 else ''} v{f + j//2}, {vVo if j < 4 else vVo2}, {srdV}, s7 offen offset:{(j & 3)*256 + 32*dt}\n"
        t_ += "s_waitcnt vmcnt(0)\n"
        for t in range(3): t_ += f"v_mfma_f32_16x16x32_bf16 {OA(dt, t)}, v[{f}:{f+3}], {PB(0, 0, t)}, {OA(dt, t)}\n"
    for t in range(3): t_ += f"v_mfma_f32_16x16x32_bf16 {LA(t)}, {ONES}, {PB(0, 0, t)}, {LA(t)}\n"
    t_ += "s_add_u32 s6, s6, 0x1000\ns_cmp_lt_u32 s6, s5\ns_cbranch_scc1 L_slow2\ns_nop 9\n"
    for t in range(3): t_ += f"v_accvgpr_read_b32 {vRL[t]}, a{240+4*t}\n"
    for t in range(3): t_ += f"v_rcp_f32 {vRL[t]}, {vRL[t]}\n"
    t_ += "s_nop 0\n"
    for o in placed: t_ += o.text + "\n"
    for o in pendW0: t_ += o.text + "\n"
    t_ += "s_branch L_join\n"
    return lin(t_)

def spin(lbl, back, reg, off_v, srd, soff, exp):
    return lin(f"""{lbl}:
s_mov_b32 s3, 0
{lbl}_l:
buffer_load_dword {reg}, {off_v}, {srd}, {soff}{' offen' if off_v != 'off' else ''} sc1
s_add_u32 s3, s3, 1
s_waitcnt vmcnt(0)
v_cmp_ne_u32 vcc, {exp}, {reg}
s_cmp_gt_u32 s3, 0x10000
s_cbranch_scc1 {back}
s_nop 2
s_cbranch_vccnz {lbl}_l
s_branch {back}""")

def glue3(left, dbg, G):
    o = lin("s_nop 7")
    o += [V(x.text, rd=list(x.rd), wr=list(x.wr)) for x in left]
    o += lin(f"""
v_mbcnt_lo_u32_b32 {vA}, -1, 0
v_mbcnt_hi_u32_b32 {vA}, -1, {vA}
v_lshlrev_b32 {vSt}, 4, {vA}
v_and_b32 {vPo}, 7, {vA}
v_lshlrev_b32 {vPo}, 2, {vPo}
v_lshrrev_b32 {vB}, 4, {vA}
v_bfe_u32 {vOut}, {vA}, 2, 2
v_and_b32 {vA}, 3, {vA}
v_lshl_add_u32 {vA}, {vOut}, 4, {vA}
v_lshlrev_b32 {vA}, 10, {vA}
v_lshl_add_u32 {vOut}, {vB}, 4, {vA}
v_mov_b32 {vFl}, {hex(OOB)}
s_lshl_b32 s6, {sG}, 2
s_cmp_eq_u32 {sWave}, 0
s_cselect_b32 s6, s6, {hex(OOB)}
v_writelane_b32 {vFl}, s6, 1
s_mov_b32 {sIt}, 0
s_mul_i32 s6, {sB}, {8*CHUNK}
s_mul_i32 s7, {sWave}, 49152
s_add_u32 {sStR}, s6, s7
s_lshl_b32 s7, {sG}, 10
s_add_u32 {sStR}, {sStR}, s7
s_mul_i32 s7, {sG}, 3
s_add_u32 s7, s7, {sWave}
s_lshl_b32 s4, s7, 13
s_add_u32 {sLdR}, s6, s4
s_lshl_b32 {sFlR}, {sB}, 11
s_add_u32 {sFlR}, {sFlR}, {hex(FLAG_BASE - 256)}
s_lshr_b32 s4, s7, 1
s_mul_i32 s5, s4, 11
s_lshr_b32 s5, s5, 5
s_mul_i32 s3, s5, 3
s_sub_u32 s4, s4, s3
s_lshl_b32 s4, s4, 6
s_lshl_b32 s5, s5, 2
s_add_u32 s4, s4, s5
s_mul_i32 s5, {sB}, 192
s_add_u32 s4, s4, s5
s_lshl_b32 s4, s4, 10
s_and_b32 s5, s7, 1
s_lshl_b32 s5, s5, 6
s_add_u32 s4, s4, s5
s_mov_b32 {sOutR}, s4
s_sub_u32 {sOc}, {sRot}, 256
s_and_b32 {sOc}, {sOc}, 0x3ff
s_cmp_eq_u32 {sWave}, 3
s_cselect_b32 {sLdR}, {hex(OOB)}, {sLdR}
s_cselect_b32 {sOutR}, {hex(OOB)}, {sOutR}
s_mov_b32 {sMask}, 0xffff0000""")
    o += [WAIT(0, need_vm=[dbg])] + lin(f"""L_chkD:
v_readfirstlane_b32 s4, {vDWo}
s_nop 3
s_lshr_b32 s5, s4, 4
s_and_b32 s5, s5, 0x0f0f0f0f
s_and_b32 s7, s4, 0x0f0f0f0f
s_add_u32 s5, s5, s7
s_mul_i32 s5, s5, 0x01010101
s_lshr_b32 s5, s5, 24
s_cmp_lg_u32 s5, 8
s_cbranch_scc1 L_spinD
L_backD:
s_lshl_b32 s5, {sXcc}, 3
{"s_mov_b32 s5, 0" if OPT["forceslow"] else ""}
s_cmp_eq_u32 s4, s5
s_cselect_b32 {sSlM}, 1, 7
s_cselect_b32 {sLdMin}, 0, 1
s_cselect_b32 {sLd}, {sLdR}, {hex(OOB)}
s_cselect_b32 s4, 256, {hex(OOB)}
s_add_u32 {sLd2}, {sLd}, 0x1000
s_add_u32 s4, s4, {sFlR}
v_lshlrev_b32 {vA}, 6, {vPo}""") + [Op(f"buffer_load_dword {vB}, {vA}, {srdWS}, s4 offen sc1", "vm")] + red_loads(0)
    o += lin("\n".join(scal_A()) + f"\ns_cmp_eq_u32 {sSlM}, 7\ns_cbranch_scc1 L_GS")
    return o

def pad_linear(ops):
    out = []
    for o in ops:
        need = 0
        for (p, n) in o.sdeps:
            if p in out: need = max(need, n - sum(x.w for x in out[out.index(p)+1:]))
        if need > 0:
            nop = Op(f"s_nop {need-1}", "x"); nop.w = need; out.append(nop)
        out.append(o)
    return out

def tail(G):
    X = (lambda: stamp()) if OPT["stamps"] == 3 else (lambda: [])
    def sums(set_, loads):
        o0, p0, s0_ = reduce_ops(set_)
        return [WAIT(0, need_vm=loads)] + pad_linear(o0 + p0 + [s0_])
    o = lin("\n".join(scal_B()) + "\ns_nop 1")
    stores = []
    for (cv, sa, st) in pack_store(1):
        o += cv + [sa, st]; stores.append(st)
    if True:
        o += X() + [WAIT(0, need_vm=stores)] + X() + lin("s_barrier") + sig_ops()
        o += sums(1, G.LD[1]) + X()
        o += lin("s_branch L_spinU@L\nL_backU@L:") + X()
        l7 = red_loads(0); o += l7
        o += lin(f"s_add_u32 {sOut}, {sOutR}, {sOc}")
        if OPT["stamps"] == 3: o += lin("s_waitcnt vmcnt(0)") + X()
        o += sums(0, l7) + X() + X()
    return o

def main():
    R2 = build_R2()
    placed = [o for o in R2.epi if o.gap is not None]; placed.sort(key=lambda o: o.pos)
    R1 = build_R1(R2.left)
    R1f = build_R1f()
    G = build_G()
    pro, zst = prologue(R1f)
    for j, t in enumerate(NEXT): TILE[f'G{j}'] += TILE[t]
    h, p3, p1, p2, nx, tl, p0, dbg = glue1(zst)
    g2 = lin(f"s_or_b64 {sBad}, {sBad}, vcc\ns_cbranch_scc1 L_slow\nL_join:\ns_add_u32 {sHead}, {sHead}, 1\ns_cmp_lt_u32 {sHead}, 4\ns_waitcnt lgkmcnt(0)")
    g3 = glue3(R2.left, dbg, G)
    g4 = lin(f"s_mov_b32 {sC[0]}, {sC[2]}\ns_add_u32 {sC[1]}, {sC[0]}, 128\ns_and_b32 {sC[1]}, {sC[1]}, 0x3ff\ns_add_u32 {sC[2]}, {sC[1]}, 128\ns_and_b32 {sC[2]}, {sC[2]}, 0x3ff\ns_cmp_lt_u32 {sIt}, 8\ns_waitcnt lgkmcnt(0)")
    T = tail(G)
    sA, sB_, sC_, sD_, sE = stamp(1 if OPT['stamps'] in (1, 3) else 0), stamp(), stamp(), stamp(), stamp(2)
    if OPT["bst"]:
        def dump():
            return lin(f"v_mbcnt_lo_u32_b32 {vA}, -1, 0\nv_mbcnt_hi_u32_b32 {vA}, -1, {vA}\nv_lshlrev_b32 {vA}, 2, {vA}") + [Op(f"buffer_store_dword {vLane}, {vA}, {srdWS}, s101 offen", "vm")] + lin("s_add_u32 s101, s101, 256\ns_nop 1")
        sA = lin(f"s_lshl_b32 s101, s2, 2\ns_add_u32 s101, s101, {sWave}\ns_lshl_b32 s101, s101, 12\ns_add_u32 s101, s101, {hex(DUMP_BASE)}")
        sC_ = dump(); sD_ = dump()
    tr = pro + sA
    for hd in range(4):
        tr += [R1f.out + p0 + nx, R1.out + h + p1 + nx, R1.out + h + p2 + nx, R1.out + h + p3][hd] + tl + sB_ + R2.out + g2 + sC_
    tr += [x for x in g3 if x.tag != "touch"]
    for it in range(4): tr += G.out + g4 + sD_
    tr += T
    resolve_waits(tr, TILE)
    errs = check(R1f.out + p0 + nx + tl + R2.out + g2 + R1.out + h + p3 + tl + R2.out + g2 + g3 + G.out + g4 + G.out + g4 + T, "main")
    for e in errs[:20]: print(e, file=sys.stderr)
    assert not errs
    for rg in (R1f, R1, R2, G): print(rg.name, "overfull:", rg.overlog, file=sys.stderr)
    out = [open(os.path.join(os.path.dirname(os.path.abspath(__file__)), "header.txt")).read().rstrip()]
    out.append("; @launch grid=(256,1,1) block=(256,1,1) lds=163840")
    out.append(f""".amdgcn_target "amdgcn-amd-amdhsa--gfx950"
.text
.globl {KN}
.p2align 8
.type {KN},@function
{KN}:""")
    def emit(ops, sc="", lb=""):
        for o in ops:
            if OPT["nodma"] and o.text.endswith(" lds"): out.append("s_nop 0"); continue
            if OPT["nored"] and " sc1" in o.text and "dwordx4" in o.text: out.append("s_nop 0"); continue
            if getattr(o, "pre", None): out.append(o.pre)
            out.append(o.text.replace("@SC", sc).replace("@L", lb))
    emit(pro + sA + R1f.out + p0); out.append("L_loop:"); emit(R1.out + h + p3 + p1 + p2 + nx + tl + sB_ + R2.out + g2 + sC_)
    if OPT["stamps"] or OPT["bst"]: out.append(f"s_cmp_lt_u32 {sHead}, 4")
    out.append("s_cbranch_scc1 L_loop")
    emit(g3)
    for sc, lb in ((NTST, ""), (" sc1", "S")):
        out.append(f"L_G{lb}:"); emit(G.out + g4 + sD_, sc, lb)
        if OPT["stamps"] or OPT["bst"]: out.append(f"s_cmp_lt_u32 {sIt}, 8")
        out.append(f"s_cbranch_scc1 L_G{lb}")
        emit(T + sE, sc, lb)
        out.append("s_endpgm")
        for nm in ("G0", "G1", "U"): emit(spin(f"L_spin{nm}{lb}", f"L_back{nm}{lb}", vPr, vPo, srdWS, sPoll, sExp))
    emit(lin(f"""L_spinD:
s_add_u32 {sHead}, {sHead}, 1
s_cmp_gt_u32 {sHead}, 0x10000
s_cbranch_scc1 L_backD
s_lshl_b32 {sTmp}, {sB}, 2
buffer_load_dword {vDWo}, off, {srdD}, {sTmp} sc1
s_waitcnt vmcnt(0)
s_branch L_chkD"""))
    emit(slow_path(placed, R2.pendW0))
    out.append(f"""s_endpgm
.section .rodata,"a"
.p2align 6
.amdhsa_kernel {KN}
  .amdhsa_next_free_vgpr 512
  .amdhsa_next_free_sgpr 102
  .amdhsa_accum_offset 256
  .amdhsa_group_segment_fixed_size 0
  .amdhsa_kernarg_size 64
  .amdhsa_user_sgpr_count 2
  .amdhsa_user_sgpr_kernarg_segment_ptr 1
  .amdhsa_system_sgpr_workgroup_id_x 1
.end_amdhsa_kernel""")
    print("\n".join(out))
main()
```

```python
import itertools, random
P = 1200
def setb(dw, da):
    global bS, bQ, bB, bP
    bS = [48*j + 35 + dw for j in range(8)]; bQ = 419 + dw; bB = [521 + da + 102*i for i in range(7)]; bP = 1187 + dw
setb(0, 0)
def needs():
    T = {}
    for a in "abc": T["X" + a] = (bP - P, bS[0])
    T["W0"] = (bP - P, bS[0])
    for j in range(1, 8): T[f"W{j}"] = (bS[j-1], bS[j])
    T["K0"] = (bS[7], bQ)
    for i in range(7):
        n = bQ if i == 0 else bB[i-1]
        T[f"K{i+1}"] = (n, bB[i]); T[f"V{i}"] = (n, bB[i])
    T["V7"] = (bB[6], bP)
    return T
KV = ["K0", "K1", "V0"] + [x for i in range(1, 7) for x in (f"K{i+1}", f"V{i}")] + ["V7"]
def plan(I0=-170, dk=75, wI=None, xI=None, verbose=False):
    T = needs()
    I = {t: I0 + dk*k for k, t in enumerate(KV)}
    I.update(wI); I.update(xI)
    iv = {t: (I[t], T[t][1]) for t in T}
    def overlap(a, b):
        for sh in (-P, 0, P):
            if iv[a][0] < iv[b][1] + sh and iv[b][0] + sh < iv[a][1]: return True
        return False
    names = sorted(T, key=lambda t: iv[t][0])
    cnt = max(sum(1 for t in T for sh in (-P, 0, P) if iv[t][0] + sh <= x < iv[t][1] + sh) for x in range(P))
    if verbose: print("max occupancy", cnt, {t: T[t][0] - I[t] for t in names})
    conf = {a: [b for b in T if b != a and overlap(a, b)] for a in T}
    best = [None, 10**9]
    def cost(s):
        c = 0
        for seq, w in (([f"K{i}" for i in range(8)], 4), ([f"V{i}" for i in range(8)], 1), ([f"W{i}" for i in range(8)], 1)):
            c += w*min_updates([s[t] for t in seq])
        return c
    rnd = random.Random(1)
    def rec(i, s, order):
        if i == len(names):
            c = cost(s)
            if c < best[1]: best[0], best[1] = dict(s), c
            return True
        t = names[i]
        used = {s[b] for b in conf[t] if b in s}
        pref = order[t[0]]
        for x in pref:
            if x not in used:
                s[t] = x
                if rec(i + 1, s, order): return True
                del s[t]
        return False
    for trial in range(3000):
        order = {}
        base = list(range(10))
        for c in "KVWX":
            o = base[:]; rnd.shuffle(o)
            if trial % 2 == 0:
                st = rnd.randrange(7); win = list(range(st, st + 4)); rnd.shuffle(win); o = win + [x for x in o if x not in win]
            order[c] = o
        rec(0, {}, order)
    return I, best[0], best[1], T
def bases(slots):
    n = len(slots); best = None
    for b0 in range(max(0, slots[0] - 3), slots[0] + 1):
        dp = {b0: (0, [b0])}
        for s in slots[1:]:
            nd = {}
            for b in range(max(0, s - 3), s + 1):
                cand = min(((c + (b != pb), path) for pb, (c, path) in dp.items()), key=lambda x: x[0])
                nd[b] = (cand[0], cand[1] + [b])
            dp = nd
        for b, (c, path) in dp.items():
            c2 = c + (b != b0)
            if best is None or c2 < best[0]: best = (c2, path)
    return best
def min_updates(slots): return bases(slots)[0]
if __name__ == "__main__":
    wI = {"W0": -125, "W1": -75, "W2": -40, "W3": 36, "W4": 69, "W5": 117, "W6": 165, "W7": 213}
    xI = {"Xa": -225, "Xb": -200, "Xc": -150}
    I, s, c, T = plan(wI=wI, xI=xI, verbose=True)
    print(I); print(s, c)
    for ch in "KVW": print(ch, [s[f"{ch}{i}"] for i in range(8)], bases([s[f"{ch}{i}"] for i in range(8)]))
```

```python
import sys, os, struct, math
sys.path.insert(0, os.path.dirname(os.path.abspath(__file__)))
from sched import *
import ringplan

OPT = dict(stamps=0, nt=1, mapping=48, nodma=0, samekv=0, nored=0, ntw=0, ntx=0, bst=0, lrate=3, lburst=4, rsp=8, rk=2, i0=-170, dk=75, ksp=12, wsp=5, gst=4, gld=4, gsig=1, gpoll=108, gsum=8, gdma=36, glc=0, rot=1, gout=189, gdsp=4, lag=1, forceslow=0, ntst=0, pf=128, hrot=0, krot=1, osc=0, nperm=1, bdw=2, bda=3, vlate=1, tch=0, gtch=1, kvlate=0, nobar=0, nolg=0, nods=0, novalu=0)
for a in sys.argv[1:]:
    k, v = a.split("="); assert k in OPT, k; OPT[k] = float(v) if "." in v else int(v)
Region.LDSRATE = OPT["lrate"]; Region.LDSBURST = OPT["lburst"]
KN = "standalone__mha_block_cached__near_ridge_kernel"

def OA(mt, t): return R("v", (mt*3 + t)*4, 4)
def OAr(mt, t, i): return f"v{(mt*3 + t)*4 + i}"
QV0, PV0, S0, FA0 = 96, 144, 192, 204
def QV(s, t): return R("v", QV0 + (s*3 + t)*4, 4)
def QVr(s, t, i): return f"v{QV0 + (s*3 + t)*4 + i}"
def PB(buf, sg, t): return R("v", PV0 + 24*buf + (sg*3 + t)*4, 4)
def PBr(buf, sg, t, i): return f"v{PV0 + 24*buf + (sg*3 + t)*4 + i}"
def OP(s, t): return R("v", PV0 + (s*3 + t)*4, 4)
def OPr(s, t, i): return f"v{PV0 + (s*3 + t)*4 + i}"
def FR(buf, f, half=None):
    b = FA0 + 16*buf + 4*f
    return R("v", b, 4) if half is None else R("v", b + 2*half, 2)
vK = ["v236", "v237", "v238", "v239"]
vVb, vWb, vT = "v240", "v241", ["v242", "v243"]
vDK, vDV, vDW, vDX, vC = "v244", "v245", "v246", "v247", "v248"
vRL = ["v249", "v250", "v251"]
vLane, vDWo, vA, vB = "v252", "v253", "v254", "v255"
def XA(s, t): return R("a", (s*3 + t)*4, 4)
ZB = {0: 144, 1: 192, 2: 0}
def ZA(h, s, t): return R("a", ZB[h] + (s*3 + t)*4, 4)
def LA(t): return R("a", 240 + 4*t, 4)
ONES = "a[252:255]"

srdK, srdV, srdW, srdX, srdWS, srdO, srdD = (f"s[{i}:{i+3}]" for i in (8, 12, 16, 20, 24, 28, 32))
sW1k, sXcc, sRot, sOc = "s36", "s37", "s38", "s39"
sC = ["s40", "s41", "s42"]
sDg = ["s43", "s44", "s45", "s46"]
sH = ["s76", "s77", "s78", "s79"]
sIdx = "s99"
sKoff, sVoff, sWcol = "s47", "s48", "s49"
sD = [None, "s50", "s51", "s52"]
sDY = [None, "s53", "s54", "s55"]
sT = ["s56", "s57", "s58", "s59"]
sW4k, sHead, sScale, sWave, sB, sG, sLo, sHi = (f"s{i}" for i in range(60, 68))
sBad = "s[84:85]"
sN = [f"s{i}" for i in range(86, 92)]
sTmp = "s100"
sIt, sStR, sSt, sSig, sSlM, sExp, sLdR, sLd, sLd2, sOutR, sOut, sFlR, sLdMin = (f"s{i}" for i in range(86, 99))
sPoll = sSig; sPo = "s99"; sTk, sTh, sTo = "s43", "s44", "s45"
sU = ["s4", "s5"]; sMask = "s6"
OOB = 0x40000000
FLAG_BASE = 0x3000000
STAMP_BASE = 0x3100000
DUMP_BASE = 0x4000000
WS_BYTES = 0x8000000 if OPT["bst"] else 0x3200000
CHUNK = 196608
ORD = [(0,0),(0,1),(0,2),(1,0),(0,3),(1,3),(1,1),(1,2)]
ORDG = [(j >> 2, j & 3) for j in range(8)]
NT = " nt" if OPT["nt"] else ""
NTW = " nt" if OPT["ntw"] else ""
NTX = " nt" if OPT["ntx"] else ""
def wq_lit(step): return ORD[step][1]*0x100000 + ORD[step][0]*128
def wo_lit(m): return (m & 3)*0x20000 + (m >> 2)*128

def S(text, rd=(), wr=(), **kw): return Op(text, "s", rd=rd, wr=wr, **kw)
def V(text, rd=(), wr=(), **kw): return Op(text, "v4", rd=rd, wr=wr, **kw)
def V8(text, rd=(), wr=(), **kw): return Op(text, "v8", rd=rd, wr=wr, **kw)
def WAIT(d, need_ds=(), need_vm=(), lg0=False, late=3, e=-1):
    o = Op("s_waitcnt ?", "w", e=e, d=d, late=late, deps=[(x, 1) for x in need_ds])
    o.need_ds, o.need_vm, o.lg0 = list(need_ds), list(need_vm), lg0
    return o
def lin(text):
    return [Op(l.strip(), "x") for l in text.strip().split("\n") if l.strip()]

class Ctx: pass
C = Ctx(); C.grp = 0

ringplan.setb(OPT["bdw"], OPT["bda"]); BDW, BDA = OPT["bdw"], OPT["bda"]
wI = {"W0": -125, "W1": -75, "W2": -40, "W3": 36 + BDW, "W4": 69, "W5": 117, "W6": 165, "W7": 213}
xI = {"Xa": -225, "Xb": -200, "Xc": -150}
ISS, SLOT, _c, NEED = ringplan.plan(OPT["i0"], OPT["dk"], wI, xI)
assert SLOT is not None
SPR = {}
for t in ISS:
    m = ISS[t] % 1200
    sp = OPT["ksp"] if t[0] in "KV" else OPT["wsp"]
    if 262 <= m < 288: ISS[t] += 290 - m; m = 290
    SPR[t] = min(sp, ((288 if m < 288 else 1200) - 7 - m)//3); assert SPR[t] >= 1
BASE = {}
for ch in "KVW":
    for i, b in enumerate(ringplan.bases([SLOT[f"{ch}{i}"] for i in range(8)])[1]): BASE[f"{ch}{i}"] = b
XB = min(SLOT["Xa"], SLOT["Xb"], SLOT["Xc"]); assert max(SLOT["Xa"], SLOT["Xb"], SLOT["Xc"]) - XB <= 3
NEXT = sorted([t for t in ISS if ISS[t] < 0 and t[0] in "WX"], key=lambda t: (t != "W0", ISS[t]))
print("plan:", ISS, SLOT, BASE, NEXT, file=sys.stderr)
TILE = {}
def lit(x): return hex(x & 0xffffffff)
def rebase(rg, typ, old, new, e, d, after=()):
    if old == new: return []
    regs_ = vK if typ == "K" else [vVb if typ == "V" else vWb]
    return [rg.F(V(f"v_add_u32 {r}, {lit((new - old)*16384)}, {r}", rd=[r], wr=[r], e=e, d=d, deps=[(a, 0) for a in after if a])) for r in regs_]
def wq_t0(dst, step):
    hf, dg = ORD[step]
    return [f"s_add_u32 {dst}, {sWcol}, {sDg[dg]}"] + ([f"s_add_u32 {dst}, {dst}, 128"] if hf else [])
def x_t0(dst, a, q):
    return [f"s_lshr_b32 {dst}, {sDg[q]}, 12"] + ([f"s_add_u32 {dst}, {dst}, {a*65536}"] if a else [])
def tile_src(spec):
    k = spec[0]
    if k == "W": return srdW, vDW, wq_t0(sT[0], spec[1]), sD, NTW
    if k == "C": return srdW, vDW, [f"s_add_u32 {sT[0]}, {sC[spec[1]]}, {sH[spec[2]]}"], sD, NTW
    if k == "N": return srdW, vDW, [f"s_mov_b32 {sT[0]}, {sN[spec[1]]}"], sD, NTW
    if k == "Y": return srdX, vDX, [f"s_mov_b32 {sT[0]}, {sN[spec[1]]}"], sDY, NTX
    if k == "X": return srdX, vDX, x_t0(sT[0], spec[1], spec[2]), sDY, NTX
def add_dmas(rg, items):
    ev = []
    for (name, spec, slot, e, sp, bar) in items:
        for i in range(4): ev.append((e + sp*i, e, i, name, spec, slot, bar))
    ev.sort(key=lambda x: (x[0], x[1]))
    prev = None; cur = None; wopen = None; ts = None; lastw = None; m0 = None
    for (t, e0, i, name, spec, slot, bar) in ev:
        deps = []
        if bar is not None: deps.append((bar, 0))
        if prev is not None: deps.append((prev, 1))
        if cur != slot:
            m0 = rg.F(Op(f"s_add_u32 m0, {sW4k}, {slot*16384}", "t", wr=["m0"], e=t - 6, deps=([(prev, 1)] if prev else []))); cur = slot
        deps.append((m0, 1))
        if spec[0] in "KV":
            so, vo, srd = (sKoff, vDK, srdK) if spec[0] == "K" else (sVoff, vDV, srdV)
            st = rg.inc.get(spec[0])
            if st is not None and i == 0: deps.append((st, 0))
            o = rg.F(Op(f"buffer_load_dwordx4 {vo}, {srd}, {so} offen offset:{i*1024}{NT} lds", "vm", rd=[vo, so, "m0"], e=t, d=t + 4, deps=deps))
            if i == 3:
                inc = rg.F(Op(f"s_add_u32 {so}, {so}, 0x4000", "t", rd=[so], wr=[so], deps=[(o, 1)], d=t + 12))
                if name[1] == "7":
                    inc = rg.F(Op(f"s_and_b32 {so}, {so}, 0x7ffff", "t", rd=[so], wr=[so], deps=[(inc, 0)], d=t + 14))
                    nr = "s10" if name[0] == "K" else "s14"
                    rg.F(S(f"s_cmp_eq_u32 {sHead}, 3", deps=[(o, 1)])); inc2 = rg.F(S(f"s_cselect_b32 {nr}, 0, {nr}", d=t + 20))
                rg.inc[spec[0]] = inc
        else:
            srd, vo, t0, dl, fl = tile_src(spec)
            if i == 0:
                assert wopen is None, "W-type tiles may not interleave"
                wopen = name
                tt = rg.F(Op(t0[0], "t", wr=[sT[0]], e=t - 12, deps=([(lastw, 1)] if lastw else [])))
                for x in t0[1:]: tt = rg.F(Op(x, "t", wr=[sT[0]], deps=[(tt, 0)]))
                ts = [tt]
                ts += [rg.F(Op(f"s_add_u32 {sT[j]}, {sT[0]}, {dl[j]}", "t", wr=[sT[j]], deps=[(ts[0], 0)])) for j in (1, 2, 3)]
            o = rg.F(Op(f"buffer_load_dwordx4 {vo}, {srd}, {sT[i]} offen offset:{i*1024}{fl} lds", "vm", rd=[vo, sT[i], "m0"], e=t, d=t + 4, deps=deps + [(ts[i], 0)]))
            if i == 3: wopen = None; lastw = o
        if i == 3: TILE.setdefault(name, []).append(o)
        if i == 0: rg.first_dma[name] = o
        prev = o
    rg.lastw = lastw
def head_dmas(rg, lo, hi):
    items = []
    for t in ISS:
        m = ISS[t] % 1200
        if not (lo <= m < hi): continue
        spec = (t[0],) if t[0] in "KV" else (("W", int(t[1])) if ISS[t] >= 0 else (("N" if t[0] == "W" else "Y"), NEXT.index(t)))
        cands = [g for g in rg.bars if g + lo <= m and any(SLOT[p] == SLOT[t] and NEED[p][1] % 1200 == g + lo for p in NEED)]
        bar = rg.bars[max(cands)] if cands else None
        items.append((t, spec, SLOT[t], m - lo, SPR[t], bar))
    add_dmas(rg, items)
def dma_linear(name, spec, slot):
    ops = lin(f"s_add_u32 m0, {sW4k}, {slot*16384}")
    if spec[0] in "KV":
        so, vo, srd = (sKoff, vDK, srdK) if spec[0] == "K" else (sVoff, vDV, srdV)
        d = [Op(f"buffer_load_dwordx4 {vo}, {srd}, {so} offen offset:{i*1024}{NT} lds", "vm") for i in range(4)]
        ops += lin("s_nop 0") + d + lin(f"s_add_u32 {so}, {so}, 0x4000")
    else:
        srd, vo, t0, dl, fl = tile_src(spec)
        d = [Op(f"buffer_load_dwordx4 {vo}, {srd}, {sT[i]} offen offset:{i*1024}{fl} lds", "vm") for i in range(4)]
        ops += lin("\n".join(t0) + "\n" + "\n".join(f"s_add_u32 {sT[i]}, {sT[0]}, {dl[i]}" for i in (1, 2, 3))) + d
    TILE.setdefault(name, []).append(d[-1])
    return ops
def reads_X(rg, addr, slots, dst, e, d, deps, step=1):
    ops = []
    for t in range(3):
        for s in range(4):
            r_, imm = addr(slots[t], s)
            ops.append(rg.F(Op(f"ds_read_b128 {dst(s, t)}, {r_} offset:{imm}", "ds", rd=[r_], wr=[dst(s, t)], e=e, d=d + len(ops)*step,
                               deps=list(deps) + ([(ops[-1], 0)] if ops else []))))
    return ops

def new_region(name):
    rg = Region(name); rg.nst = {"R1": 0, "R1f": 0, "R2": 6, "G": 0}[name]
    rg.tuse = {0: [], 1: []}; rg.bars = {}; rg.inc = {}; rg.first_dma = {}; rg.wq = bool(OPT["nperm"]) and name != "G"
    return rg

def xor_addr(rg, base, k, ti, e, d, after=()):
    if k == 0: return base, None
    deps = [(x, 0) for x in rg.tuse[ti]] + [(a, 0) for a in after]
    o = rg.F(V(f"v_xor_b32 {vT[ti]}, {k*32}, {base}", rd=[base], wr=[vT[ti]], e=e, d=d, deps=deps))
    rg.tuse[ti] = []
    return vT[ti], o
def reads_W(rg, so, mt, buf, e, deps=(), ups=(), rsp=None):
    if rg.wq:
        if mt == 2: a, xo = xor_addr(rg, vWb, 2, 0, e - 8, e, ups)
        else: a, xo = (vWb if mt < 2 else vT[0]), None
        so += 8*(mt & 1)
    else: a, xo = xor_addr(rg, vWb, mt, mt & 1, e - 8, e, ups)
    dp = list(deps) + ([(xo, 1)] if xo else [(u, 1) for u in ups])
    ops = []
    for s in range(4):
        for p in range(2):
            ops.append(rg.F(Op(f"ds_read_b64_tr_b16 {FR(buf, s, p)}, {a} offset:{so + s*4096 + p*2048}", "ds", rd=[a], wr=[FR(buf, s, p)],
                               e=e, d=min(e + 1 + len(ops)*(rsp or OPT['rsp'])//8, e + 9), deps=dp + ([(ops[-1], 0)] if ops else []))))
    if rg.wq:
        if mt >= 2: rg.tuse[0] = ops
    elif xo: rg.tuse[mt & 1] = ops
    rg.lastWr = ops
    return ops, xo
def reads_K(rg, so, u, buf, e, deps=(), ups=()):
    ops = []
    for s in range(4):
        ops.append(rg.F(Op(f"ds_read_b128 {FR(buf, s)}, {vK[s]} offset:{so + u*1024}", "ds", rd=[vK[s]], wr=[FR(buf, s)],
                           e=e, d=e + 3 + len(ops)*OPT['rk'], deps=list(deps) + [(x, 1) for x in ups] + ([(ops[-1], 0)] if ops else []))))
    return ops
def reads_V(rg, so, dp_, buf, e, deps=(), ups=(), late=0):
    ops = []; xs = []
    for k in range(2):
        dt = 2*dp_ + k
        a, xo = xor_addr(rg, vVb, dt, k, e - 10, e + 4*k, ups)
        if xo: xs.append(xo)
        dd = list(deps) + ([(xo, 1)] if xo else [(u, 1) for u in ups])
        mine = []
        for sg in range(2):
            for p in range(2):
                o = rg.F(Op(f"ds_read_b64_tr_b16 {FR(buf, 2*k + sg, p)}, {a} offset:{so + sg*2048 + p*1024}", "ds", rd=[a], wr=[FR(buf, 2*k + sg, p)],
                            e=e, d=(e + 2 + len(ops)*OPT['rsp']//8) if not late else (e + 3 + 2*len(ops) if k == 0 else e + 5 + (len(ops)*5)//4), deps=dd + ([(ops[-1], 0)] if ops else [])))
                ops.append(o); mine.append(o)
        if xo: rg.tuse[k] = mine
    return ops, xs

def barrier(rg, gap, last_reads, tiles, extra=(), lg0=True, st=True):
    w = rg.F(WAIT(gap - 1, need_ds=last_reads, need_vm=list(tiles) + list(extra), lg0=lg0, late=1))
    w.deps += [(x, 1) for x in extra if x in rg.fill]
    b = rg.F(Op("s_barrier", "w", e=gap, d=gap, deps=[(w, 1)])); rg.bars[gap] = b
    if OPT["bst"] and st:
        w.pre = "s_memtime s[2:3]"
        i = rg.nst; rg.nst += 1
        rg.F(V(f"v_writelane_b32 {vLane}, s2, {i}", e=gap + 1, d=gap + 8))
    return b
def xstamp(rg, gap, idx, dep):
    if OPT["bst"] < 2: return
    w = rg.F(Op("s_memtime s[2:3]\ns_waitcnt lgkmcnt(0)", "w", e=gap, d=gap, deps=[(dep, 1)]))
    rg.F(V(f"v_writelane_b32 {vLane}, s2, {idx}", deps=[(w, 0)], d=gap))
def frag_waits(rg, rd_ops, first_use, n_first, second_use, only_first=False):
    if rd_ops is None: return
    rg.F(WAIT(first_use - 1, need_ds=rd_ops[:n_first], late=2))
    if n_first < len(rd_ops) and not only_first: rg.F(WAIT(second_use - 1, need_ds=rd_ops, late=1))

def so_(sb): return (sb[0] - sb[1])*16384
def w_step(rg, half, zero, Bop, pend, cur, nxt, need, extra=(), more_reads=(), xwait=None, post=None):
    b0 = rg.n(); info = dict(b0=b0); xlast = None
    if xwait:
        for t in range(3): rg.F(WAIT(b0 + 4*t - 1, need_ds=xwait[:4*t + 4], late=1))
        info["xbar"] = barrier(rg, b0 + 10, xwait, (), lg0=False, st=False)
    for mt in range(4):
        buf = C.grp & 1; C.grp += 1
        g0 = b0 + 12*mt
        if pend is not None and (mt < 3 or BDW): frag_waits(rg, pend, g0, 4, g0 + 2, only_first=(mt == 3))
        for t in range(3):
            for s in range(4):
                acc = OA(4*half + mt, t)
                rg.M(mfma(acc, FR(buf, s), Bop(s, t), "0" if (zero and s == 0) else acc))
        if mt < 3:
            pend, xo = reads_W(rg, so_(cur[1:3]), mt + 1, buf ^ 1, g0 - 1 if (mt or b0) else g0)
            if xo: xlast = xo
            if mt == 0 and rg.wq: base_users = pend
            if mt == 2: bar = barrier(rg, g0 + 11 + BDW, pend + list(more_reads), need, extra)
        else:
            ups = rebase(rg, nxt[0], nxt[3], nxt[2], b0 + 20, g0 - 2, after=([xlast] + (base_users if rg.wq else [])) if nxt[0] == "W" else [])
            if nxt[0] == "W": pend, _ = reads_W(rg, so_(nxt[1:3]), 0, buf ^ 1, g0 - 1 + BDW, deps=[(bar, 0)], ups=ups, rsp=(4 if post else None))
            else: pend = reads_K(rg, so_(nxt[1:3]), 0, buf ^ 1, g0 - 1 + BDW, deps=[(bar, 0)], ups=ups)
            if post: info["post"] = post(g0, bar)
    info["bar"] = bar; info["end"] = rg.n() - 1
    return pend, info
def TS(name, prev=None):
    k, i = name[0], int(name[1])
    return (k, SLOT[name], BASE[name], BASE[f"{k}{(i - 1) % 8}"])

def softmax(rg, g0, u, Sr, pbuf, d_over, d_puse):
    sg = u >> 1
    for t in range(3):
        last = rg.mf[g0 + 4*t + 3]
        dl = min(d_over(t), d_puse(t) - 3)
        ex = [rg.F(V8(f"v_exp_f32 {Sr(t,i)}, {Sr(t,i)}", rd=[Sr(t,i)], wr=[Sr(t,i)], e=last.gap, sdeps=[(last, 8)], trans=True)) for i in range(4)]
        for j in range(2):
            dst = PBr(pbuf, sg, t, 2*(u & 1) + j)
            rg.F(V(f"v_cvt_pk_bf16_f32 {dst}, {Sr(t,2*j)}, {Sr(t,2*j+1)}", rd=[Sr(t,2*j), Sr(t,2*j+1)], wr=[dst], d=dl,
                   sdeps=[(ex[2*j], 1), (ex[2*j+1], 1)]))
def k_mfmas(rg, buf, Sd):
    for t in range(3):
        for s in range(4):
            rg.M(mfma(Sd(t), FR(buf, s), QV(s, t), "0" if s == 0 else Sd(t)))
def v_mfmas(rg, dp_, buf, pbuf, zero, tmajor=False):
    order = [(k, t) for t in range(3) for k in range(2)] if tmajor else [(k, t) for k in range(2) for t in range(3)]
    last = {}
    for k, t in order:
        for sg in range(2):
            acc = OA(2*dp_ + k, t)
            last[(2*dp_ + k, t)] = rg.M(mfma(acc, FR(buf, 2*k + sg), PB(pbuf, sg, t), "0" if (zero and sg == 0) else acc))
    return last
def sum_mfmas(rg, t, pbuf, zero):
    for sg in range(2):
        o = rg.M(mfma(LA(t), ONES, PB(pbuf, sg, t), "0" if (zero and sg == 0) else LA(t)))
    return o
def o_epilogue_ops(dt, t):
    mul = [V(f"v_mul_f32 {OAr(dt,t,i)}, {vRL[t]}, {OAr(dt,t,i)}", rd=[OAr(dt,t,i), vRL[t]], wr=[OAr(dt,t,i)]) for i in range(4)]
    cvt = []
    for j in range(2):
        dst = OPr(dt >> 1, t, 2*(dt & 1) + j)
        cvt.append(V(f"v_cvt_pk_bf16_f32 {dst}, {OAr(dt,t,2*j)}, {OAr(dt,t,2*j+1)}", rd=[OAr(dt,t,2*j), OAr(dt,t,2*j+1)], wr=[dst],
                     deps=[(mul[2*j], 0), (mul[2*j+1], 0)]))
    for o in mul + cvt: o.ot = (dt, t)
    return mul, cvt
def q_muls(rg, mt, t, last, **kw):
    return [rg.F(V(f"v_mul_f32 {OAr(mt,t,i)}, {sScale}, {OAr(mt,t,i)}", rd=[OAr(mt,t,i)], wr=[OAr(mt,t,i)],
                   e=(last.gap if last is not None else -1), sdeps=([(last, 8)] if last is not None else []), **kw)) for i in range(4)]
def q_epilogue(rg, sp, t, lastA, lastB, d_use, muls=True):
    cv = []
    for k, last in ((0, lastA), (1, lastB)):
        mt = 2*sp + k
        mul = q_muls(rg, mt, t, last) if muls else None
        for j in range(2):
            dst = QVr(sp, t, 2*k + j)
            cv.append(rg.F(V(f"v_cvt_pk_bf16_f32 {dst}, {OAr(mt,t,2*j)}, {OAr(mt,t,2*j+1)}", rd=[OAr(mt,t,2*j), OAr(mt,t,2*j+1)], wr=[dst],
                             deps=([(mul[2*j], 0), (mul[2*j+1], 0)] if muls else []))))
    if OPT["nperm"]:
        for o in cv: o.d = d_use - 3
        return
    for j in range(2):
        a, b = QVr(sp, t, j), QVr(sp, t, 2 + j)
        p1 = rg.F(V8(f"v_permlane32_swap_b32 {a}, {b}", rd=[a, b], wr=[a, b], sdeps=[(cv[j], 2), (cv[2+j], 2)]))
        rg.F(V8(f"v_permlane16_swap_b32 {a}, {b}", rd=[a, b], wr=[a, b], sdeps=[(p1, 2)], d=d_use - 3))

def BopQ(st):
    dg = ORD[st][1]
    return (lambda s, t: XA(4*dg + s, t)) if dg < 3 else (lambda s, t: QV(s, t))

def build_R2():
    rg = new_region("R2")
    C.grp = 24
    pend, i6 = w_step(rg, ORD[6][0], False, BopQ(6), None, TS("W6"), TS("W7"), ["W7"])
    pend, i7 = w_step(rg, ORD[7][0], False, BopQ(7), pend, TS("W7"), TS("K0"), ["K0"])
    a0 = rg.n(); b7 = i7["b0"]
    for sp in (0, 1):
        for t in range(3): q_epilogue(rg, sp, t, None, None, min(a0 + 4*t + sp, 30 + (sp*3 + t)*8), muls=False)
    for sp in (2, 3):
        for t in range(3):
            mA, mB = 2*sp - 4, 2*sp - 3
            q_epilogue(rg, sp, t, rg.mf[b7 + 12*mA + 4*t + 3], rg.mf[b7 + 12*mB + 4*t + 3], a0 + 4*t + sp)
    B = lambda i: a0 + 48 + 102*i
    GK = [0, 26, 52, 78]; GV = [12, 38, 64, 90]
    def puse(i, sg, t): return (B(i) + 12 + 2*t + sg) if i < 7 else (B(7) + 4*t + sg)
    def so(n): return so_(TS(n)[1:3])
    def rb(n, e, d, after=()): x = TS(n); return rebase(rg, x[0], x[3], x[2], e, d, after)
    for u in range(4):
        buf = C.grp & 1; C.grp += 1; g0 = rg.n()
        if u < 3 or BDW: frag_waits(rg, pend, g0, 2, g0 + 2, only_first=(u == 3))
        k_mfmas(rg, buf, lambda t: OA(u, t))
        softmax(rg, g0, u, lambda t, i: OAr(u, t, i), 0, lambda t: 10**9, lambda t: puse(0, u >> 1, t))
        if u < 3:
            pend = reads_K(rg, so("K0"), u + 1, buf ^ 1, g0 - 1)
            if u == 2: bar = barrier(rg, g0 + 11 + BDW, pend, ["K1", "V0"]); lastK = pend
        else:
            ups = rb("K1", g0 - 12, g0 - 2, lastK)
            pend = reads_K(rg, so("K1"), 0, buf ^ 1, g0 - 1 + BDW, deps=[(bar, 0)], ups=ups)
            upsV = rb("V0", -1, g0)
    for i in range(7):
        b0 = rg.n(); assert b0 == B(i)
        for u in range(4):
            buf = C.grp & 1; C.grp += 1; g0 = rg.n(); assert g0 == b0 + GK[u]
            frag_waits(rg, pend, g0, 2, g0 + 2)
            k_mfmas(rg, buf, lambda t: R("v", S0 + 4*t, 4))
            nxtK = (b0 + GK[u+1]) if u < 3 else (B(i+1) if i < 6 else None)
            softmax(rg, g0, u, lambda t, j: f"v{S0 + 4*t + j}", (i + 1) & 1,
                    (lambda t: nxtK + 4*t - 1) if nxtK else (lambda t: 10**9), lambda t: puse(i + 1, u >> 1, t))
            pend, xs = reads_V(rg, so(f"V{i}"), u, buf ^ 1, g0 - 1, ups=(upsV if u == 0 else ()), late=(OPT["vlate"] if u < 3 else 0))
            if u == 3: bar = barrier(rg, g0 + 11 + BDA, pend, [f"K{i+2}", f"V{i+1}"] if i < 6 else ["V7"]); lastX = xs
            buf = C.grp & 1; C.grp += 1; g0 = rg.n(); assert g0 == b0 + GV[u]
            if u < 3 or BDA: frag_waits(rg, pend, g0, 4, g0 + 6, only_first=(u == 3))
            v_mfmas(rg, u, buf, i & 1, i == 0)
            if u < 3:
                sum_mfmas(rg, u, i & 1, i == 0)
                pend = reads_K(rg, so(f"K{i+1}"), u + 1, buf ^ 1, g0 - 1)
                if u == 2: lastK = pend
            elif i < 6:
                ups = rb(f"K{i+2}", g0 - 20, g0 - 2, lastK)
                pend = reads_K(rg, so(f"K{i+2}"), 0, buf ^ 1, g0 - 1 + BDA, deps=[(bar, 0)], ups=ups)
                upsV = rb(f"V{i+1}", g0 - 10, g0 + 4, lastX)
            else:
                upsV = rb("V7", g0 - 10, g0 - 2, lastX)
                pend, _ = reads_V(rg, so("V7"), 0, buf ^ 1, g0 - 1 + BDA, late=0, deps=[(bar, 0)], ups=upsV)
    E = rg.n(); assert E == B(7)
    epi = []
    for p in range(4):
        buf = C.grp & 1; C.grp += 1; g0 = rg.n()
        if p == 0: frag_waits(rg, pend, g0, 4, g0 + 2)
        elif p < 3 or BDW: frag_waits(rg, pend, g0, 4, g0 + 6, only_first=(p == 3))
        last = v_mfmas(rg, p, buf, 1, False, tmajor=(p == 0))
        if p == 0:
            rl = []; lr = []
            for t in range(3):
                ls = sum_mfmas(rg, t, 1, False)
                lr.append(rg.F(V(f"v_accvgpr_read_b32 {vRL[t]}, a{240+4*t}", rd=[f"a{240+4*t}"], wr=[vRL[t]], e=ls.gap, sdeps=[(ls, 8)], d=E + 28)))
            mn = rg.F(V(f"v_min3_f32 {vA}, {vRL[0]}, {vRL[1]}, {vRL[2]}", rd=vRL, wr=[vA], deps=[(x, 0) for x in lr], d=E + 30))
            mx = rg.F(V(f"v_max3_f32 {vB}, {vRL[0]}, {vRL[1]}, {vRL[2]}", rd=vRL, wr=[vB], deps=[(x, 0) for x in lr], d=E + 30))
            rg.F(V(f"v_cmp_gt_f32 {sBad}, {sLo}, {vA}", rd=[vA], wr=[sBad], deps=[(mn, 0)], d=E + 40))
            rg.F(V(f"v_cmp_lt_f32 vcc, {sHi}, {vB}", rd=[vB], wr=["vcc"], deps=[(mx, 0)], d=E + 40))
            for t in range(3):
                rl.append(rg.F(V8(f"v_rcp_f32 {vRL[t]}, {vRL[t]}", rd=[vRL[t]], wr=[vRL[t]], deps=[(mn, 0), (mx, 0)], trans=True, d=E + 34)))
        for (dt, t), lm in last.items():
            mul, cvt = o_epilogue_ops(dt, t)
            for o in mul: o.e = lm.gap; o.sdeps = [(lm, 8), (rl[t], 1)]
            for o in mul + cvt:
                o.optional = True
                if dt >= 4 and o in cvt: o.e = 10**9
                rg.F(o); epi.append(o)
        if p < 3:
            pend, xs = reads_V(rg, so("V7"), p + 1, buf ^ 1, g0 - 1 if p != 0 else g0 + 3)
            if p == 2: bar = barrier(rg, g0 + 11 + BDW, pend, ["W0", "Xa", "Xb", "Xc"])
        else:
            ups = rb("W0", -1, g0 - 2, [])
            for o in ups: o.e = a0
            if OPT["nperm"]: ups = ups + [rg.F(V(f"v_add_u32 {vWb}, {vC}, {vWb}", rd=[vC, vWb], wr=[vWb], e=a0, d=g0 - 4))]
            pend, _ = reads_W(rg, so("W0"), 0, buf ^ 1, g0 - 1 + BDW, deps=[(bar, 0)], ups=ups, rsp=8)
    assert sorted(g + 288 for g in rg.bars) == ringplan.bS[6:] + [ringplan.bQ] + ringplan.bB + [ringplan.bP]
    head_dmas(rg, 288, 1200)
    rg.pendW0 = pend; rg.epi = epi
    rg.schedule()
    return rg

def half0_muls(rg, b4):
    for mt in range(4):
        for t in range(3): q_muls(rg, mt, t, rg.mf[b4 + 12*mt + 4*t + 3])

def build_R1(left):
    rg = new_region("R1")
    C.grp = 0
    xa = [rg.F(V(f"v_add_u32 v{S0+s}, {sW1k}, {vK[s]}", rd=[vK[s]], wr=[f"v{S0+s}"], d=6)) for s in range(4)]
    xr = reads_X(rg, lambda sl, s: (f"v{S0+s}", (sl - XB)*16384), [SLOT["Xa"], SLOT["Xb"], SLOT["Xc"]], QV, 4, 9, [(a, 1) for a in xa], step=2)
    pend = None; infos = []
    for st in range(6):
        pend, inf = w_step(rg, ORD[st][0], st in (0, 3), BopQ(st), pend, TS(f"W{st}"), TS(f"W{st+1}"), [f"W{st+1}"], more_reads=(xr if st == 0 else ()))
        infos.append(inf)
    new = {}
    for o in left:
        dt, t = o.ot
        n = V(o.text, rd=list(o.rd), wr=list(o.wr)); n.ot = o.ot; new[id(o)] = n
        n.deps = [(new[id(p)], g) for (p, g) in o.deps if id(p) in new]
        n.e = 8 if dt >= 6 else -1
        n.d = ((12*dt + 4*t) if dt < 4 else (144 + 12*(dt - 4) + 4*t)) - 1
        rg.F(n)
    half0_muls(rg, infos[4]["b0"])
    head_dmas(rg, 0, 288)
    rg.schedule()
    return rg

def build_R1f():
    X = lambda q: [f"x{q}{a}" for a in range(3)]
    final = [t for t in ISS if ISS[t] < 288 and t[0] in "KV"] + ["W6", "W7"]
    assert set(final) == {"K0", "K1", "V0", "K2", "V1", "K3", "W6", "W7"}, final
    init = X(0) + ["w0"] + X(1) + ["w1", "K0", "K1"]
    inh = list(zip(X(2), X(0))) + [("w2", "w0")] + list(zip(["w3", "x30", "x31"], X(1))) + [("x32", "w1")] + \
          list(zip(["w4", "V0", "w5"], X(2))) + [("K2", "w2"), ("W6", "w3")] + list(zip(["V1", "W7", "K3"], X(3)))
    sl = {t: SLOT[t] for t in final}
    for new, old in reversed(inh):
        if new in sl: sl[old] = sl[new]
    free = [x for x in range(10) if x not in {sl[t] for t in init if t in sl}]
    for t in init:
        if t not in sl: sl[t] = free.pop()
    for new, old in inh: sl[new] = sl[old]
    def spec(t):
        if t[0] == "x": return ("X", int(t[2]), int(t[1]))
        if t[0] in "wW": return ("W", int(t[1]))
        return (t[0],)
    wsl = [sl[f"w{j}"] for j in range(6)] + [SLOT["W6"]]
    wb = [min(x, 6) for x in wsl[:6]] + [BASE["W6"]]
    rg = new_region("R1f")
    C.grp = 0
    xaddr = lambda s_, s: (f"v{S0 + 4*(s_ >> 2) + s}", (s_ & 3)*16384)
    dst = {0: (1, lambda s, t: XA(4 + s, t)), 1: (2, lambda s, t: XA(8 + s, t)), 3: (3, QV)}
    pend = None; infos = []; xw = None
    for st in range(6):
        post = None; need = [f"w{st+1}" if st < 5 else "W6"]
        if st in dst:
            q, fn = dst[st]; need += X(q)
            post = (lambda q, fn: lambda g0, bar: reads_X(rg, xaddr, [sl[t] for t in X(q)], fn, g0 + 2 + BDW, g0 + 5 + BDW, [(bar, 0)]))(q, fn)
        pend, inf = w_step(rg, ORD[st][0], st in (0, 3), BopQ(st), pend, ("W", wsl[st], wb[st]), ("W", wsl[st+1], wb[st+1], wb[st]), need, xwait=xw, post=post)
        xw = inf.get("post"); infos.append(inf)
    rel = {"w%d" % j: infos[j]["bar"] for j in range(6)}
    for q, st in ((1, 1), (2, 2), (3, 4)):
        for t in X(q): rel[t] = infos[st]["xbar"]
    items = []; tcur = 0
    for t in ["x20", "x21", "x22", "K0", "K1"]:
        items.append((t, spec(t), sl[t], tcur, 1, None)); tcur += 5
    for new, old in inh[3:]:
        tcur = max(tcur, rel[old].e)
        items.append((new, spec(new), sl[new], tcur, 2, rel[old])); tcur += 9
    add_dmas(rg, items)
    half0_muls(rg, infos[4]["b0"])
    rg.schedule()
    rg.init = [(t, spec(t), sl[t]) for t in init[:8]]; rg.wb0 = wb[0]; rg.wso0 = (wsl[0] - wb[0])*16384
    rg.x0 = [xaddr(sl[t], 0) for t in X(0)]; rg.xsl0 = [sl[t] for t in X(0)]; rg.xaddr = xaddr
    return rg

RLD = [[R("v", QV0 + 4*g, 4) for g in range(8)],
       [R("v", QV0 + 32 + 4*g, 4) for g in range(4)] + [R("v", S0 + 4*g, 4) for g in range(3)] + ["v[236:239]"]]
vTo = vLane if not OPT['bst'] else 'v235'
vSt, vFl, vPo, vPr, vOut = vDK, vDV, vVb, vDX, vC
LAG = OPT['lag']; OSC = ['', ' sc1', ' nt', ' sc0 sc1'][OPT['osc']]
NTST = ' nt' if OPT['ntst'] else ''
LO = ["v249", "v250", "v251", "v253"]
def pack_store(chunk):
    res = []
    for t in range(3):
        for np_ in range(2):
            a, b = 4*chunk + 2*np_, 4*chunk + 2*np_ + 1
            src = [(OAr(a,t,0), OAr(a,t,1)), (OAr(a,t,2), OAr(a,t,3)), (OAr(b,t,0), OAr(b,t,1)), (OAr(b,t,2), OAr(b,t,3))]
            cv = []
            for j in range(4):
                cv.append(V(f"v_cvt_pk_bf16_f32 {OAr(a,t,j)}, {src[j][0]}, {src[j][1]}", rd=list(src[j]), wr=[OAr(a,t,j)], deps=([(cv[-1], 0)] if cv else [])))
            k = 2*t + np_
            sa = S(f"s_add_u32 {sU[k & 1]}, {sSt}, {k*8192}", wr=[sU[k & 1]])
            st = Op(f"buffer_store_dwordx4 {OA(a,t)}, {vSt}, {srdWS}, {sU[k & 1]} offen@SC", "vm", rd=[OA(a,t), vSt], deps=[(cv[-1], 1), (sa, 0)])
            res.append((cv, sa, st))
    return res
def reduce_ops(set_):
    X = [regs(r_) for r_ in RLD[set_]]
    tmp = [vA, vB]; ops = []; n = 0
    for k in range(4):
        ops += [V(f"v_lshlrev_b32 {LO[k]}, 16, {X[0][k]}", rd=[X[0][k]], wr=[LO[k]]),
                V(f"v_and_b32 {X[0][k]}, {sMask}, {X[0][k]}", rd=[X[0][k]], wr=[X[0][k]])]
        for g in range(1, 8):
            tm = tmp[n & 1]; n += 1
            ops += [V(f"v_lshlrev_b32 {tm}, 16, {X[g][k]}", rd=[X[g][k]], wr=[tm]),
                    V(f"v_and_b32 {X[g][k]}, {sMask}, {X[g][k]}", rd=[X[g][k]], wr=[X[g][k]]),
                    V(f"v_add_f32 {LO[k]}, {LO[k]}, {tm}", rd=[LO[k], tm], wr=[LO[k]]),
                    V(f"v_add_f32 {X[0][k]}, {X[0][k]}, {X[g][k]}", rd=[X[0][k], X[g][k]], wr=[X[0][k]])]
        ops.append(V(f"v_cvt_pk_bf16_f32 {X[0][k]}, {LO[k]}, {X[0][k]}", rd=[LO[k], X[0][k]], wr=[X[0][k]]))
    for a, b in zip(ops, ops[1:]): b.deps.append((a, 0))
    pl = []
    for j in range(2):
        pl.append(V8(f"v_permlane32_swap_b32 {X[0][j]}, {X[0][2+j]}", rd=[X[0][j], X[0][2+j]], wr=[X[0][j], X[0][2+j]], sdeps=[(ops[-1], 2)]))
    for j in range(2):
        pl.append(V8(f"v_permlane16_swap_b32 {X[0][j]}, {X[0][2+j]}", rd=[X[0][j], X[0][2+j]], wr=[X[0][j], X[0][2+j]], sdeps=[(pl[j], 2)]))
    st = Op(f"buffer_store_dwordx4 {RLD[set_][0]}, {vOut}, {srdO}, {sOut} offen{OSC}", "vm", rd=[RLD[set_][0], vOut, sOut], deps=[(pl[2], 1), (pl[3], 1)])
    return ops, pl, st
def red_loads(set_):
    return [Op(f"buffer_load_dwordx4 {RLD[set_][g]}, {vSt}, {srdWS}, {sLd if g < 4 else sLd2} offen offset:{(g & 3)*1024} sc1", "vm",
               rd=[vSt], wr=[RLD[set_][g]]) for g in range(8)]
def sig_ops():
    return [Op(f"buffer_store_dword {vSt}, {vFl}, {srdWS}, {sSig} offen@SC", "vm", rd=[vSt, vFl])]
def scal_A():
    return [f"s_sub_u32 {sTmp}, {sIt}, 1", f"s_and_b32 {sTmp}, {sTmp}, {sSlM}", f"s_mul_i32 {sTmp}, {sTmp}, {CHUNK}",
            f"s_add_u32 {sSt}, {sStR}, {sTmp}", f"s_add_u32 {sLd}, {sLdR}, {sTmp}",
            f"s_cmp_ge_u32 {sIt}, 1", f"s_cselect_b32 {sSt}, {sSt}, {hex(OOB)}", f"s_cselect_b32 {sSig}, {sFlR}, {hex(OOB)}",
            f"s_cselect_b32 {sExp}, 16, 0", f"s_cselect_b32 {sPo}, {sFlR}, {hex(FLAG_BASE + 0x20000)}",
            f"s_cmp_ge_u32 {sIt}, {sLdMin}", f"s_cselect_b32 {sLd}, {sLd}, {hex(OOB)}", f"s_add_u32 {sLd2}, {sLd}, 0x1000",
            f"s_add_u32 {sFlR}, {sFlR}, 256"]
def scal_B():
    return [f"s_add_u32 {sOut}, {sOutR}, {sOc}", f"s_cmp_ge_u32 {sIt}, 2", f"s_cselect_b32 {sOut}, {sOut}, {hex(OOB)}",
            f"s_add_u32 {sOc}, {sOc}, 128", f"s_and_b32 {sOc}, {sOc}, 0x3ff", f"s_add_u32 {sIt}, {sIt}, 1"]

def build_G():
    rg = new_region("G")
    used = [SLOT[t] for t in NEXT]
    gs = used + [SLOT["K0"]] + [x for x in range(10) if x not in used and x not in (SLOT["K0"], SLOT["K1"], SLOT["V0"])][:1]
    assert len(gs) == 8
    gb = ringplan.bases(gs)[1]; assert gb[0] == BASE["W0"]
    rg.gs = gs; items = []; bars = {}; rg.st_last = {}; rg.sB_last = {}
    C.grp = 0
    def Bop(h): return (lambda s, t: ZA(h, s, t)) if h < 3 else (lambda s, t: OP(s, t))
    LD = [red_loads(0), red_loads(1)]
    pend = None; prev_users = []
    for hf in range(2):
        h0 = 192*hf
        stores = []
        for (cv, sa, st) in pack_store(1 - hf):
            for o in cv: o.e = h0 + 8; rg.F(o)
            if len(stores) >= 2: sa.deps.append((stores[-2], 1))
            rg.F(sa); st.e = h0 + 10 + OPT['gst']*len(stores); st.d = st.e + 3; rg.F(st); stores.append(st)
        sc = [rg.F(S(x, e=h0, deps=[(u, 1) for u in prev_users])) for x in scal_B()]
        rg.sB_last[hf] = sc[-1]
        cur = hf ^ 1
        w0 = rg.F(WAIT(h0 + OPT['gsum'], need_vm=LD[cur], late=1)); w0.e = h0 + OPT['gsum']
        o0, p0, s0_ = reduce_ops(cur)
        o0[0].deps.append((w0, 0))
        for o in o0 + p0 + [s0_]: rg.F(o)
        s0_.d = h0 + OPT['gout']; s0_.deps += [(sc[2], 0), (LD[hf][-1], 1)]
        infos = []
        for j in range(4):
            st = 4*hf + j
            n1 = (st + 1) & 7
            pend, inf = w_step(rg, hf, j == 0, Bop(j), pend, ("W", gs[st], gb[st]), ("W", gs[n1], gb[n1], gb[st]), [f"G{n1}"], extra=(stores if j == 1 else ()))
            infos.append(inf); bars[st] = inf["bar"]
        sig, = sig_ops(); bs = infos[1]["bar"]
        sig.deps = [(bs, 0)]; sig.d = bs.e + 1; rg.F(sig)
        po = rg.F(S(f"s_load_dwordx8 s[68:75], s[82:83], {sPo}{' glc' if OPT['glc'] else ''}", e=h0 + OPT['gpoll'], d=h0 + OPT['gpoll'] + 4))
        b2 = infos[2]["bar"]
        ck = [rg.F(S(x, deps=[(b2, 0)])) for x in ("s_and_b32 s68, s68, s69", "s_and_b32 s70, s70, s71", "s_and_b32 s72, s72, s73", "s_and_b32 s74, s74, s75",
              "s_and_b32 s68, s68, s70", "s_and_b32 s72, s72, s74", "s_and_b32 s68, s68, s72", f"s_and_b32 s68, s68, {sExp}", f"s_cmp_lg_u32 s68, {sExp}")]
        br = rg.F(Op(f"s_cbranch_scc1 L_spinG{hf}@L\nL_backG{hf}@L:", "s", d=b2.e + 12))
        prev = None
        for i, o in enumerate(LD[hf]):
            o.deps += [(br, 0)] + ([(prev, 1)] if prev else []); o.e = b2.e + 10 + OPT['gld']*i; o.d = o.e + 3; rg.F(o); prev = o
        if OPT["gtch"]:
            ca, cb = (sC[1], sC[2]) if hf == 0 else (sC[2], None)
            tk = [rg.F(S(f"s_cmp_lt_u32 {sTk}, 2", deps=[(LD[hf][-2], 0)]))]
            if hf == 0: tk.append(rg.F(S(f"s_cselect_b32 {sTmp}, {ca}, {cb}")))
            else: tk += [rg.F(S(f"s_cselect_b32 {sTmp}, 0, 128")), rg.F(S(f"s_add_u32 {sTmp}, {sTmp}, {ca}")), rg.F(S(f"s_and_b32 {sTmp}, {sTmp}, 0x3ff"))]
            tk.append(rg.F(S(f"s_add_u32 {sTo}, {sTmp}, {sTh}")))
            rg.F(Op(f"buffer_load_dword {vPr}, {vTo}, {srdW}, {sTo} offen", "vm", rd=[vTo], wr=[vPr], deps=[(tk[-1], 0), (LD[hf][-1], 1)], d=h0 + 184))
        prev_users = [s0_]
        for i, x in enumerate(scal_A()): rg.F(S(x, deps=[(LD[hf][-1], 1)] if i == 0 else []))
        for k in range(4):
            st = (4*hf - 2 + k) & 7
            items.append((f"G{st}", ("C", (1 + (st >> 2)) if (hf or k > 1) else 0, st & 3), gs[st], h0 + OPT["gdma"] + k*(4*OPT["gdsp"] + 1), OPT["gdsp"],
                          bars[st] if (hf or k > 1) else stores[-1]))
        rg.st_last[hf] = stores[-1]
    add_dmas(rg, items)
    c1 = S(f"s_cmp_ge_u32 {sIt}, 7", deps=[(TILE["G7"][-1], 1)]); c2 = S("s_cselect_b32 s18, 0, s18", wr=["s18"], rd=["s18"])
    pos = rg.fill.index(rg.sB_last[0]) + 1
    rg.fill[pos:pos] = [c1, c2]
    for i, o in enumerate(rg.fill): o.seq = i + 1
    rg.first_dma["G0"].deps.append((c2, 0))
    rg.first_dma["G6"].deps.append((rg.st_last[0], 1)); rg.first_dma["G2"].deps.append((rg.st_last[1], 1))
    rg.LD = LD
    rg.schedule()
    return rg

def stamp(kind=0):
    if not OPT["stamps"]: return []
    def put(x): return lin(f"v_mov_b32 {vA}, {x}") + [Op(f"buffer_store_dword {vA}, off, {srdWS}, s101", "vm")] + lin("s_add_u32 s101, s101, 4\ns_nop 1")
    if kind == 1: return put("s94") + put("s92") + stamp()
    if kind == 2: return lin("s_waitcnt vmcnt(0)") + stamp()
    return lin("s_memtime s[2:3]\ns_memrealtime s[4:5]\ns_waitcnt lgkmcnt(0)") + put("s2") + put("s4")

def code_pf(lbl, start, end, mask, r):
    if not OPT["pf"]: return []
    return lin(f"""s_getpc_b64 s[{r}:{r+1}]
{lbl}:
s_add_u32 s{r}, s{r}, {start}-{lbl}
s_addc_u32 s{r+1}, s{r+1}, {"-1" if start == KN else "0"}
s_mov_b32 s{r+2}, {end}-{start}
s_mov_b32 s{r+3}, 0x20000
s_lshl_b32 s5, {sIdx}, 2
s_add_u32 s5, s5, {sWave}
s_and_b32 s5, s5, {mask}
s_lshl_b32 s5, s5, 13
v_mbcnt_lo_u32_b32 {vA}, -1, 0
v_mbcnt_hi_u32_b32 {vA}, -1, {vA}
v_lshlrev_b32 {vA}, 7, {vA}""") + [Op(f"buffer_load_dword {vB}, {vA}, s[{r}:{r+3}], s5 offen", "vm")]

def prologue(F):
    init = F.init
    o = lin(f"""
s_cmp_lt_u32 s2, 256
s_cbranch_scc1 L_go
s_endpgm
L_go:
{"s_memrealtime s[92:93]" if OPT["stamps"] else ""}
{"s_memtime s[94:95]" if OPT["stamps"] else ""}
s_load_dwordx16 s[68:83], s[0:1], 0
v_lshrrev_b32 v1, 6, v0
v_and_b32 {vLane}, 63, v0
s_and_b32 s4, s2, 7
v_readfirstlane_b32 {sWave}, v1
s_lshr_b32 s5, s2, 3
s_mov_b32 {sIdx}, s5""")
    mp = {84: (1, 3, 2, 1, 2, 3), 48: (0, 2, 3, 0, 3, 7), 162: (2, 4, 1, 3, 1, 1)}[OPT["mapping"]]
    o += lin(f"""
s_lshr_b32 s6, s4, {mp[0]}
s_lshl_b32 s6, s6, {mp[1]}
s_lshr_b32 s7, s5, {mp[2]}
s_add_u32 {sB}, s6, s7
s_and_b32 s6, s4, {mp[3]}
s_lshl_b32 s6, s6, {mp[4]}
s_and_b32 s7, s5, {mp[5]}
s_add_u32 {sG}, s6, s7""")
    cbits = struct.unpack("<I", struct.pack("<f", math.log2(math.e)/math.sqrt(128)))[0]
    o += lin(f"""
s_lshl_b32 {sW4k}, {sWave}, 12
v_lshrrev_b32 v5, 4, {vLane}
v_and_b32 v6, 15, {vLane}
s_lshl_b32 s6, {sWave}, 4
v_add_u32 v1, s6, v5
s_lshl_b32 s6, {sWave}, 2
v_or_b32 v2, s6, v5
v_xor_b32 v2, v2, v6
v_lshlrev_b32 v2, 4, v2
v_lshl_add_u32 {vDX}, v1, 10, v2
v_lshl_add_u32 {vDK}, v1, 8, v2
v_lshrrev_b32 v7, 5, {vLane}
v_bfe_u32 v2, {vLane}, 3, 2
v_lshl_add_u32 v7, v7, 3, v2
s_lshl_b32 s6, {sWave}, 5
v_add_u32 v7, s6, v7
v_and_b32 v3, 7, {vLane}
v_lshlrev_b32 v4, 1, v5
v_xor_b32 v3, v3, v4
v_lshlrev_b32 v3, 4, v3
v_lshl_add_u32 {vDW}, v7, 13, v3
s_mov_b32 {sDY[1]}, 3072
s_mov_b32 {sDY[2]}, 6144
s_mov_b32 {sDY[3]}, 9216
s_mov_b32 {sD[1]}, {16*8192 - 1024}
s_mov_b32 {sD[2]}, {4*8192 - 2048}
s_mov_b32 {sD[3]}, {20*8192 - 3072}
s_lshr_b32 s4, {sB}, 2
s_and_b32 s5, s4, {3 if OPT["hrot"] else 0}
s_lshl_b32 {sWcol}, s5, 8
s_lshl_b32 {sKoff}, s5, 17
s_mov_b32 {sVoff}, {sKoff}
s_and_b32 s4, s4, {3 if OPT["krot"] else 0}
s_lshl_b32 {sDg[0]}, s4, 20
s_add_u32 {sDg[1]}, {sDg[0]}, 0x100000
s_and_b32 {sDg[1]}, {sDg[1]}, 0x3fffff
s_xor_b32 {sDg[2]}, {sDg[0]}, 0x200000
s_xor_b32 {sDg[3]}, {sDg[1]}, 0x200000
s_mul_i32 s7, {sB}, 196608
s_mov_b32 s22, 196608
s_mov_b32 s23, 0x20000
s_mov_b32 s19, 0x20000
s_lshl_b32 s4, {sG}, 10
s_sub_u32 s18, 0x400000, s4
s_waitcnt lgkmcnt(0)
s_add_u32 s20, s68, s7
s_addc_u32 s21, s69, 0
s_add_u32 s16, s74, s4
s_addc_u32 s17, s75, 0""")
    if OPT["tch"]:
        o += lin(f"""v_lshrrev_b32 v8, 1, {vLane}
v_and_b32 v9, 1, {vLane}
v_lshlrev_b32 v9, 7, v9
v_lshl_add_u32 v11, v8, 13, v9
v_lshl_add_u32 v8, v8, 10, v9
v_mov_b32 v10, {hex(OOB)}
v_cmp_gt_u32 vcc, 12, {vLane}
s_lshl_b32 s4, {sG}, 2
s_add_u32 s4, s4, {sWave}
s_mul_i32 s4, s4, 6144
v_cndmask_b32 v8, v10, v8, vcc
v_cmp_gt_u32 vcc, 16, {vLane}
s_and_b32 s5, {sB}, 3
s_lshl_b32 s5, s5, 2
s_add_u32 s5, s5, {sWave}
s_lshl_b32 s5, s5, 16
s_add_u32 s5, s5, {sWcol}
v_cndmask_b32 v11, v10, v11, vcc
v_add_u32 v8, s4, v8
v_add_u32 v11, s5, v11""")
        for q in range(OPT["tch"] - 1, 4):
            o += lin(f"s_lshr_b32 s3, {sDg[q]}, 12")
            o += [Op(f"buffer_load_dword {vB}, v8, {srdX}, s3 offen", "vm"), Op(f"buffer_load_dword {vB}, v11, {srdW}, {sDg[q]} offen", "vm")]
    for j in range(4): o += dma_linear(*init[j])
    o += code_pf("L_pc", KN, "L_G", OPT["pf"] - 1, 88)
    o += lin(f"""
v_lshrrev_b32 v7, 3, {vLane}
v_add_u32 v7, s6, v7
v_lshl_add_u32 {vDWo}, v7, 10, v3
s_and_b32 s6, {sWave}, 1
s_lshl_b32 s6, s6, 2
v_or_b32 v2, s6, v5
v_lshlrev_b32 v2, 1, v2
v_xor_b32 v2, v2, v6
v_lshlrev_b32 v1, 8, v1
v_lshl_add_u32 {vDV}, v2, 4, v1
s_mov_b32 s24, s82
s_mov_b32 s25, s83
s_mov_b32 s26, {hex(WS_BYTES)}
s_mov_b32 s27, 0x20000
v_lshrrev_b32 v1, 3, {vLane}
v_and_b32 v2, 7, {vLane}
v_lshlrev_b32 v1, 8, v1
v_lshl_add_u32 v8, v2, 2, v1
s_lshl_b32 s6, {sB}, 11
s_add_u32 s6, s6, {hex(FLAG_BASE)}
s_or_b32 s7, {sG}, {sWave}
s_cmp_eq_u32 s7, 0
s_cselect_b32 {sTmp}, s6, {hex(OOB)}
v_mov_b32 v9, 0""")
    zst = Op(f"buffer_store_dword v9, v8, {srdWS}, {sTmp} offen sc1", "vm"); o.append(zst)

    o += lin(f"""
s_mov_b32 {sScale}, {hex(cbits)}
s_mov_b32 {sLo}, 0x30800000
s_mov_b32 {sHi}, 0x4e800000
s_mov_b32 {sHead}, 0
s_lshl_b32 {sW1k}, {sWave}, 10
s_lshl_b32 s6, {sB}, 22
s_lshl_b32 s7, {sG}, 19
s_add_u32 s6, s6, s7
{"s_mov_b32 s6, 0" if OPT["samekv"] else ""}
s_add_u32 s8, s70, s6
s_addc_u32 s9, s71, 0
s_mov_b32 s10, 0x80000
s_mov_b32 s11, 0x20000
s_add_u32 s12, s72, s6
s_addc_u32 s13, s73, 0
s_mov_b32 s14, 0x80000
s_mov_b32 s15, 0x20000
s_mov_b32 s28, s78
s_mov_b32 s29, s79
s_mov_b32 s30, 0x600000
s_mov_b32 s31, 0x20000
s_mov_b32 s32, s80
s_mov_b32 s33, s81
s_mov_b32 s34, 0x100
s_mov_b32 s35, 0x20000
v_lshrrev_b32 v1, 2, v6
v_and_b32 v2, 3, v6
v_lshl_add_u32 v3, v1, 4, v2
v_lshlrev_b32 v3, 8, v3""")
    for s in range(4):
        o += lin(f"v_add_u32 v4, {4*s}, v5\nv_xor_b32 v4, v4, v6\nv_lshl_add_u32 {vK[s]}, v4, 4, v3")
    o += lin(f"""
v_lshl_add_u32 v3, v5, 4, v1
v_lshlrev_b32 v3, 8, v3
v_and_b32 v4, 1, v5
v_lshl_add_u32 v7, v4, 2, v1
v_lshl_add_u32 v3, v7, 5, v3
v_lshl_add_u32 v3, v2, 3, v3
v_add_u32 {vVb}, {BASE["V7"]*16384}, v3
v_lshl_add_u32 v3, v5, 2, v1
v_lshlrev_b32 v3, 7, v3
v_lshrrev_b32 v7, 1, v1
v_lshl_add_u32 v7, v4, 1, v7
{"v_lshlrev_b32 v7, 1, v7" if OPT["nperm"] else "v_lshl_add_u32 v3, v7, 5, v3"}
{"v_xor_b32 v7, v7, v2" if OPT["nperm"] else ""}
{"v_lshl_add_u32 v7, v7, 4, v3" if OPT["nperm"] else "v_lshl_add_u32 v7, v2, 3, v3"}
v_add_u32 {vWb}, {F.wb0*16384}, v7
v_mov_b32 {vC}, 0
v_mov_b32 v3, 0x3f803f80
v_accvgpr_write_b32 a252, v3
v_accvgpr_write_b32 a253, v3
v_accvgpr_write_b32 a254, v3
v_accvgpr_write_b32 a255, v3
""")
    for s in range(4):
        o += lin(f"v_add_u32 v{S0+s}, {sW1k}, {vK[s]}\nv_add_u32 v{S0+4+s}, 0x10000, v{S0+s}\nv_add_u32 v{S0+8+s}, 0x20000, v{S0+s}\nv_add_u32 {vK[s]}, {BASE['K7']*16384}, {vK[s]}")
    o += lin(f"s_add_u32 {sW1k}, {sW1k}, {lit((XB - BASE['K7'])*16384)}")
    for j in range(4, 8): o += dma_linear(*init[j])
    if OPT["stamps"]:
        o += lin(f"s_lshl_b32 s101, s2, 10\ns_lshl_b32 s6, {sWave}, 8\ns_add_u32 s101, s101, s6\ns_add_u32 s101, s101, {hex(STAMP_BASE)}")
    if OPT["stamps"] == 2: o += stamp(1)
    o.append(WAIT(0, need_vm=[x[0] for x in init[:4]]))
    o += lin("s_barrier")
    if OPT["stamps"] == 2: o += stamp()
    for t in range(3):
        for s in range(4): o += lin("ds_read_b128 %s, %s offset:%d" % ((XA(s, t),) + F.xaddr(F.xsl0[t], s)))
    for s in range(4):
        for p in range(2): o += lin(f"ds_read_b64_tr_b16 {FR(0, s, p)}, {vWb} offset:{F.wso0 + s*4096 + p*2048}")
    o += lin("s_waitcnt lgkmcnt(0)\ns_barrier")
    return o, zst

def glue1(zst):
    def mv(h): return [V(f"v_accvgpr_write_b32 a{ZB[h] + i}, v{PV0 + i}", rd=[f"v{PV0+i}"], wr=[f"a{ZB[h]+i}"]) for i in range(48)]
    head = lin(f"s_cmp_eq_u32 {sHead}, 1\ns_cbranch_scc1 L_mv1\ns_cmp_eq_u32 {sHead}, 2\ns_cbranch_scc1 L_mv2")
    dbg = Op(f"buffer_load_dword {vDWo}, off, {srdD}, {sTmp} sc1", "vm")
    p3 = mv(2) + lin(f"""s_lshl_b32 s6, {sG}, 19
s_add_u32 s16, s76, s6
s_addc_u32 s17, s77, 0
s_mov_b32 s18, 0x80000
s_mov_b32 s20, s16
s_mov_b32 s21, s17
s_mov_b32 s22, 0x80000
s_lshl_b32 {sH[0]}, {sWcol}, 9
s_add_u32 {sH[0]}, {sH[0]}, 0x20000
s_and_b32 {sH[0]}, {sH[0]}, 0x7ffff
s_add_u32 {sH[1]}, {sH[0]}, 0x20000
s_and_b32 {sH[1]}, {sH[1]}, 0x7ffff
s_xor_b32 {sH[2]}, {sH[0]}, 0x40000
s_xor_b32 {sH[3]}, {sH[1]}, 0x40000
v_mbcnt_lo_u32_b32 {vA}, -1, 0
v_mbcnt_hi_u32_b32 {vA}, -1, {vA}
v_bfe_u32 {vB}, {vA}, 3, 2
v_and_b32 {vA}, 3, {vA}
v_lshlrev_b32 {vC}, 5, {vB}
v_lshl_add_u32 {vC}, {vA}, 3, {vC}
v_lshlrev_b32 {vB}, 1, {vB}
v_xor_b32 {vA}, {vA}, {vB}
v_lshlrev_b32 {vA}, 4, {vA}
v_sub_u32 {vC}, {vC}, {vA}
v_mov_b32 {vDW}, {vDWo}
v_mov_b32 {vDX}, {vDWo}
s_lshl_b32 {sTmp}, {sB}, 2""" + "".join(f"\ns_mov_b32 {sD[i]}, {7168*i}\ns_mov_b32 {sDY[i]}, {7168*i}" for i in (1, 2, 3))
      + f"""
s_lshr_b32 {sRot}, {sB}, 2
s_and_b32 {sRot}, {sRot}, {7 if OPT["rot"] else 0}
s_lshl_b32 {sRot}, {sRot}, 7"""
      + "".join(f"\ns_add_u32 {sC[i]}, {sRot}, {128*(i+1)}\ns_and_b32 {sC[i]}, {sC[i]}, 0x3ff" for i in range(3))
      + "".join(f"\ns_add_u32 {sN[m]}, {sRot if m < 4 else sC[0]}, {sH[m & 3]}" for m in range(6))) + [dbg] + code_pf("L_pc2", "L_g3", "L_codeend", 15, 72) + lin("s_branch L_mvd")
    p1 = lin("L_mv1:") + mv(0) + lin("s_branch L_mvn")
    p2 = lin("L_mv2:") + mv(1)
    nx = lin(f"L_mvn:\ns_add_u32 {sWcol}, {sWcol}, 256\ns_and_b32 {sWcol}, {sWcol}, 0x3ff" + "".join("\n" + "\n".join(wq_t0(sN[k], j)) for k, j in [(NEXT.index(t), int(t[1])) for t in NEXT if t[0] == "W"]))
    tail = lin("L_mvd:\ns_waitcnt lgkmcnt(0)")
    w = WAIT(0, need_vm=[zst])
    p0 = [w] + lin(f"""s_getreg_b32 {sXcc}, hwreg(HW_REG_XCC_ID, 0, 3)
s_lshl_b32 s6, {sB}, 2
s_cmp_eq_u32 {sWave}, 0
s_cselect_b32 s6, s6, {hex(OOB)}
s_lshl_b32 {sXcc}, {sXcc}, 2
s_lshl_b32 {sXcc}, 1, {sXcc}
v_mov_b32 {vB}, {hex(OOB)}
v_writelane_b32 {vB}, 0, 0
v_mov_b32 {vA}, {sXcc}""" + "".join("\n" + "\n".join(x_t0(sN[NEXT.index('X' + 'abc'[a])], a, 3)) for a in range(3))) + [Op(f"buffer_atomic_add {vA}, {vB}, {srdD}, s6 offen sc1", "vm")] + lin("s_branch L_mvn")
    return head, p3, p1, p2, nx, tail, p0, dbg

def slow_path(placed, pendW0):
    vKo, vVo, vVo2 = f"v{PV0+40}", f"v{PV0+41}", f"v{PV0+42}"
    M = [f"v{PV0+36+t}" for t in range(3)]
    CN = [R("v", PV0 + 24 + 4*t, 4) for t in range(3)]
    Sx = [R("v", S0 + 4*t, 4) for t in range(3)]
    t_ = f"""
L_slow:
s_waitcnt vmcnt(0) lgkmcnt(0)
s_nop 7
v_mbcnt_lo_u32_b32 {vB}, -1, 0
v_mbcnt_hi_u32_b32 {vB}, -1, {vB}
v_and_b32 {vA}, 15, {vB}
v_lshrrev_b32 {vB}, 4, {vB}
v_lshlrev_b32 {vKo}, 8, {vA}
v_lshl_add_u32 {vKo}, {vB}, 4, {vKo}
v_lshlrev_b32 {vVo}, 10, {vB}
v_lshl_add_u32 {vVo}, {vA}, 1, {vVo}
v_add_u32 {vVo2}, 0x1000, {vVo}
s_lshr_b32 s4, {sB}, 2
s_and_b32 s4, s4, {3 if OPT["hrot"] else 0}
s_add_u32 s4, s4, {sHead}
s_and_b32 s4, s4, 3
s_lshl_b32 s4, s4, 17
s_mov_b32 s10, 0x80000
s_mov_b32 s14, 0x80000
s_add_u32 s5, s4, 0x20000
s_mov_b32 s6, s4
"""
    for t in range(3): t_ += f"v_mov_b32 {M[t]}, 0xff800000\n"
    t_ += "L_slow1:\n"
    for s in range(4): t_ += f"buffer_load_dwordx4 {FR(0, s)}, {vKo}, {srdK}, s6 offen offset:{64*s}\n"
    t_ += "s_waitcnt vmcnt(0)\n"
    for t in range(3):
        for s in range(4): t_ += f"v_mfma_f32_16x16x32_bf16 {Sx[t]}, {FR(0, s)}, {QV(s, t)}, {'0' if s == 0 else Sx[t]}\n"
    t_ += "s_nop 9\n"
    for t in range(3):
        t_ += f"v_max3_f32 {M[t]}, {M[t]}, v{S0+4*t}, v{S0+4*t+1}\nv_max3_f32 {M[t]}, {M[t]}, v{S0+4*t+2}, v{S0+4*t+3}\n"
    t_ += "s_add_u32 s6, s6, 0x1000\ns_cmp_lt_u32 s6, s5\ns_cbranch_scc1 L_slow1\n"
    for t in range(3):
        t_ += f"""v_mov_b32 {vA}, {M[t]}
s_nop 1
v_permlane32_swap_b32 {vA}, {M[t]}
s_nop 1
v_max_f32 {M[t]}, {vA}, {M[t]}
v_mov_b32 {vA}, {M[t]}
s_nop 1
v_permlane16_swap_b32 {vA}, {M[t]}
s_nop 1
v_max_f32 {M[t]}, {vA}, {M[t]}
"""
        for i in range(4): t_ += f"v_sub_f32 v{PV0+24+4*t+i}, 0, {M[t]}\n"
    for i in range(96): t_ += f"v_mov_b32 v{i}, 0\n"
    for i in range(12): t_ += f"v_accvgpr_write_b32 a{240+i}, 0\n"
    t_ += "s_mov_b32 s6, s4\nL_slow2:\n"
    for u in range(2):
        for s in range(4): t_ += f"buffer_load_dwordx4 {FR(0, s)}, {vKo}, {srdK}, s6 offen offset:{64*s}\n"
        t_ += "s_waitcnt vmcnt(0)\n"
        for t in range(3):
            for s in range(4): t_ += f"v_mfma_f32_16x16x32_bf16 {Sx[t]}, {FR(0, s)}, {QV(s, t)}, {CN[t] if s == 0 else Sx[t]}\n"
        t_ += "s_nop 9\n"
        for i in range(12): t_ += f"v_exp_f32 v{S0+i}, v{S0+i}\n"
        t_ += "s_nop 0\n"
        for t in range(3):
            for j in range(2): t_ += f"v_cvt_pk_bf16_f32 {PBr(0, 0, t, 2*u + j)}, v{S0+4*t+2*j}, v{S0+4*t+2*j+1}\n"
        if u == 0: t_ += "s_mov_b32 s7, s6\ns_add_u32 s6, s6, 0x1000\n"
    f = FA0 + 16
    for dt in range(8):
        for j in range(8):
            t_ += f"buffer_load_ushort v{FA0 + j}, {vVo if j < 4 else vVo2}, {srdV}, s7 offen offset:{(j & 3)*256 + 32*dt}\n"
        t_ += "s_waitcnt vmcnt(0)\n"
        for j in range(4): t_ += f"v_lshl_or_b32 v{f + j}, v{FA0 + 2*j + 1}, 16, v{FA0 + 2*j}\n"
        t_ += "s_nop 1\n"
        for t in range(3): t_ += f"v_mfma_f32_16x16x32_bf16 {OA(dt, t)}, v[{f}:{f+3}], {PB(0, 0, t)}, {OA(dt, t)}\n"
    for t in range(3): t_ += f"v_mfma_f32_16x16x32_bf16 {LA(t)}, {ONES}, {PB(0, 0, t)}, {LA(t)}\n"
    t_ += "s_add_u32 s6, s6, 0x1000\ns_cmp_lt_u32 s6, s5\ns_cbranch_scc1 L_slow2\ns_nop 9\n"
    for t in range(3): t_ += f"v_accvgpr_read_b32 {vRL[t]}, a{240+4*t}\n"
    for t in range(3): t_ += f"v_rcp_f32 {vRL[t]}, {vRL[t]}\n"
    t_ += "s_nop 0\n"
    for o in placed: t_ += o.text + "\n"
    for o in pendW0: t_ += o.text + "\n"
    t_ += "s_branch L_join\n"
    return lin(t_)

def spin(lbl, back, reg, off_v, srd, soff, exp):
    return lin(f"""{lbl}:
s_mov_b32 s3, 0
{lbl}_l:
buffer_load_dword {reg}, {off_v}, {srd}, {soff}{' offen' if off_v != 'off' else ''} sc1
s_add_u32 s3, s3, 1
s_waitcnt vmcnt(0)
v_cmp_ne_u32 vcc, {exp}, {reg}
s_cmp_gt_u32 s3, 0x10000
s_cbranch_scc1 {back}
s_nop 2
s_cbranch_vccnz {lbl}_l
s_branch {back}""")

def glue3(left, dbg, G):
    o = lin("s_nop 7")
    o += [V(x.text, rd=list(x.rd), wr=list(x.wr)) for x in left]
    o += lin(f"""
v_mbcnt_lo_u32_b32 {vA}, -1, 0
v_mbcnt_hi_u32_b32 {vA}, -1, {vA}
v_lshlrev_b32 {vSt}, 4, {vA}
v_and_b32 {vPo}, 7, {vA}
v_lshlrev_b32 {vPo}, 2, {vPo}
v_lshrrev_b32 {vB}, 4, {vA}
v_bfe_u32 {vOut}, {vA}, 2, 2
v_and_b32 {vA}, 3, {vA}
v_lshl_add_u32 {vA}, {vOut}, 4, {vA}
v_lshlrev_b32 {vA}, 10, {vA}
v_lshl_add_u32 {vOut}, {vB}, 4, {vA}
v_mov_b32 {vFl}, {hex(OOB)}
s_lshl_b32 s6, {sG}, 2
s_cmp_eq_u32 {sWave}, 0
s_cselect_b32 s6, s6, {hex(OOB)}
v_writelane_b32 {vFl}, s6, 1
s_mov_b32 {sIt}, 0
s_mul_i32 s6, {sB}, {8*CHUNK}
s_mul_i32 s7, {sWave}, 49152
s_add_u32 {sStR}, s6, s7
s_lshl_b32 s7, {sG}, 10
s_add_u32 {sStR}, {sStR}, s7
s_mul_i32 s7, {sG}, 3
s_add_u32 s7, s7, {sWave}
s_lshl_b32 s4, s7, 13
s_add_u32 {sLdR}, s6, s4
s_lshl_b32 {sFlR}, {sB}, 11
s_add_u32 {sFlR}, {sFlR}, {hex(FLAG_BASE - 256)}
s_lshr_b32 s4, s7, 1
s_mul_i32 s5, s4, 11
s_lshr_b32 s5, s5, 5
s_mul_i32 s3, s5, 3
s_sub_u32 s4, s4, s3
s_lshl_b32 s4, s4, 6
s_lshl_b32 s5, s5, 2
s_add_u32 s4, s4, s5
s_mul_i32 s5, {sB}, 192
s_add_u32 s4, s4, s5
s_lshl_b32 s4, s4, 10
s_and_b32 s5, s7, 1
s_lshl_b32 s5, s5, 6
s_add_u32 s4, s4, s5
s_mov_b32 {sOutR}, s4
s_sub_u32 {sOc}, {sRot}, 256
s_and_b32 {sOc}, {sOc}, 0x3ff
s_cmp_eq_u32 {sWave}, 3
s_cselect_b32 {sLdR}, {hex(OOB)}, {sLdR}
s_cselect_b32 {sOutR}, {hex(OOB)}, {sOutR}
s_mov_b32 {sMask}, 0xffff0000
s_and_b32 {sTk}, {sB}, 3
s_add_u32 s4, {sTk}, 2
s_lshl_b32 s4, s4, 17
s_add_u32 s4, s4, {sH[0]}
s_and_b32 {sTh}, s4, 0x7ffff
s_lshl_b32 s4, {sWave}, 16
s_cmp_lt_u32 {sWave}, 2
s_cselect_b32 s4, s4, {hex(OOB)}
s_add_u32 {sTh}, {sTh}, s4
{"" if OPT["bst"] else f"v_lshlrev_b32 {vTo}, 6, {vSt}"}""")
    o += [WAIT(0, need_vm=[dbg])] + lin(f"""L_chkD:
v_readfirstlane_b32 s4, {vDWo}
s_nop 3
s_lshr_b32 s5, s4, 4
s_and_b32 s5, s5, 0x0f0f0f0f
s_and_b32 s7, s4, 0x0f0f0f0f
s_add_u32 s5, s5, s7
s_mul_i32 s5, s5, 0x01010101
s_lshr_b32 s5, s5, 24
s_cmp_lg_u32 s5, 8
s_cbranch_scc1 L_spinD
L_backD:
s_lshl_b32 s5, {sXcc}, 3
{"s_mov_b32 s5, 0" if OPT["forceslow"] else ""}
s_cmp_eq_u32 s4, s5
s_cselect_b32 {sSlM}, 1, 7
s_cselect_b32 {sLdMin}, 0, 1
s_cselect_b32 {sLd}, {sLdR}, {hex(OOB)}
s_cselect_b32 s4, 256, {hex(OOB)}
s_add_u32 {sLd2}, {sLd}, 0x1000
s_add_u32 s4, s4, {sFlR}
v_lshlrev_b32 {vA}, 6, {vPo}
v_lshlrev_b32 {vB}, 3, {vSt}""") + [Op(f"buffer_load_dword {vPr}, {vA}, {srdWS}, s4 offen sc1", "vm"), Op(f"buffer_load_dword {vPr}, {vB}, {srdWS}, {sLd} offen sc1", "vm")]
    o += lin("\n".join(scal_A()) + f"\ns_cmp_eq_u32 {sSlM}, 7\ns_cbranch_scc1 L_GS")
    return o

def pad_linear(ops):
    out = []
    for o in ops:
        need = 0
        for (p, n) in o.sdeps:
            if p in out: need = max(need, n - sum(x.w for x in out[out.index(p)+1:]))
        if need > 0:
            nop = Op(f"s_nop {need-1}", "x"); nop.w = need; out.append(nop)
        out.append(o)
    return out

def tail(G):
    X = (lambda: stamp()) if OPT["stamps"] == 3 else (lambda: [])
    def sums(set_, loads):
        o0, p0, s0_ = reduce_ops(set_)
        return [WAIT(0, need_vm=loads)] + pad_linear(o0 + p0 + [s0_])
    o = lin("\n".join(scal_B()) + "\ns_nop 1")
    stores = []
    for (cv, sa, st) in pack_store(1):
        o += cv + [sa, st]; stores.append(st)
    if True:
        o += X() + sums(1, G.LD[1]) + X()
        o += [WAIT(0, need_vm=stores)] + X() + lin("s_barrier") + sig_ops()
        o += lin("s_branch L_spinU@L\nL_backU@L:") + X()
        l7 = red_loads(0); o += l7
        o += lin(f"s_add_u32 {sOut}, {sOutR}, {sOc}")
        if OPT["stamps"] == 3: o += lin("s_waitcnt vmcnt(0)") + X()
        o += sums(0, l7) + X() + X()
    return o

def main():
    R2 = build_R2()
    placed = [o for o in R2.epi if o.gap is not None]; placed.sort(key=lambda o: o.pos)
    R1 = build_R1(R2.left)
    R1f = build_R1f()
    G = build_G()
    pro, zst = prologue(R1f)
    for j, t in enumerate(NEXT): TILE[f'G{j}'] += TILE[t]
    h, p3, p1, p2, nx, tl, p0, dbg = glue1(zst)
    g2 = lin(f"s_or_b64 {sBad}, {sBad}, vcc\ns_cbranch_scc1 L_slow\nL_join:\ns_add_u32 {sHead}, {sHead}, 1\ns_cmp_lt_u32 {sHead}, 4\ns_waitcnt lgkmcnt(0)")
    g3 = glue3(R2.left, dbg, G)
    g4 = lin(f"s_mov_b32 {sC[0]}, {sC[2]}\ns_add_u32 {sC[1]}, {sC[0]}, 128\ns_and_b32 {sC[1]}, {sC[1]}, 0x3ff\ns_add_u32 {sC[2]}, {sC[1]}, 128\ns_and_b32 {sC[2]}, {sC[2]}, 0x3ff\ns_cmp_lt_u32 {sIt}, 8\ns_waitcnt lgkmcnt(0)")
    T = tail(G)
    sA, sB_, sC_, sD_, sE = stamp(1 if OPT['stamps'] in (1, 3) else 0), stamp(), stamp(), stamp(), stamp(2)
    if OPT["bst"]:
        def dump():
            return lin(f"v_mbcnt_lo_u32_b32 {vA}, -1, 0\nv_mbcnt_hi_u32_b32 {vA}, -1, {vA}\nv_lshlrev_b32 {vA}, 2, {vA}") + [Op(f"buffer_store_dword {vLane}, {vA}, {srdWS}, s101 offen", "vm")] + lin("s_add_u32 s101, s101, 256\ns_nop 1")
        sA = lin(f"s_lshl_b32 s101, s2, 2\ns_add_u32 s101, s101, {sWave}\ns_lshl_b32 s101, s101, 12\ns_add_u32 s101, s101, {hex(DUMP_BASE)}")
        sC_ = dump(); sD_ = dump()
    tr = pro + sA
    for hd in range(4):
        tr += [R1f.out + p0 + nx, R1.out + h + p1 + nx, R1.out + h + p2 + nx, R1.out + h + p3][hd] + tl + sB_ + R2.out + g2 + sC_
    tr += [x for x in g3 if x.tag != "touch"]
    for it in range(4): tr += G.out + g4 + sD_
    tr += T
    resolve_waits(tr, TILE)
    errs = check(R1f.out + p0 + nx + tl + R2.out + g2 + R1.out + h + p3 + tl + R2.out + g2 + g3 + G.out + g4 + G.out + g4 + T, "main")
    for e in errs[:20]: print(e, file=sys.stderr)
    assert not errs
    for rg in (R1f, R1, R2, G): print(rg.name, "overfull:", rg.overlog, file=sys.stderr)
    out = [open(os.path.join(os.path.dirname(os.path.abspath(__file__)), "header.txt")).read().rstrip()]
    out.append("; @launch grid=(256,1,1) block=(256,1,1) lds=163840")
    out.append(f""".amdgcn_target "amdgcn-amd-amdhsa--gfx950"
.text
.globl {KN}
.p2align 8
.type {KN},@function
{KN}:""")
    def emit(ops, sc="", lb=""):
        for o in ops:
            if OPT["nobar"] and o.text == "s_barrier" and o.kind == "w": out.append("s_nop 0"); continue
            if OPT["nolg"] and o.kind == "w" and o.text.startswith("s_waitcnt") and "vmcnt" not in o.text: out.append("s_nop 0"); continue
            if OPT["nods"] and o.kind == "ds": continue
            if OPT["novalu"] and o.kind in ("v4", "v8") and o.gap is not None and ("exp" in o.text or "cvt" in o.text or "mul" in o.text or "perm" in o.text or "and" in o.text or "lshl" in o.text or "add_f32" in o.text): continue
            if OPT["nodma"] and o.text.endswith(" lds"): out.append("s_nop 0"); continue
            if OPT["nored"] and " sc1" in o.text and "dwordx4" in o.text: out.append("s_nop 0"); continue
            if getattr(o, "pre", None): out.append(o.pre)
            out.append(o.text.replace("@SC", sc).replace("@L", lb))
    emit(pro + sA + R1f.out + p0); out.append("L_loop:"); emit(R1.out + h + p3 + p1 + p2 + nx + tl + sB_ + R2.out + g2 + sC_)
    if OPT["stamps"] or OPT["bst"]: out.append(f"s_cmp_lt_u32 {sHead}, 4")
    out.append("s_cbranch_scc1 L_loop")
    out.append('L_g3:'); emit(g3)
    for sc, lb in ((NTST, ""), (" sc1", "S")):
        out.append(f"L_G{lb}:"); emit(G.out + g4 + sD_, sc, lb)
        if OPT["stamps"] or OPT["bst"]: out.append(f"s_cmp_lt_u32 {sIt}, 8")
        out.append(f"s_cbranch_scc1 L_G{lb}")
        emit(T + sE, sc, lb)
        out.append("s_endpgm")
        if not lb: out.append("L_codeend:")
        for nm in ("G0", "G1", "U"): emit(spin(f"L_spin{nm}{lb}", f"L_back{nm}{lb}", vPr, vPo, srdWS, sPoll, sExp))
    emit(lin(f"""L_spinD:
s_add_u32 {sHead}, {sHead}, 1
s_cmp_gt_u32 {sHead}, 0x10000
s_cbranch_scc1 L_backD
s_lshl_b32 {sTmp}, {sB}, 2
buffer_load_dword {vDWo}, off, {srdD}, {sTmp} sc1
s_waitcnt vmcnt(0)
s_branch L_chkD"""))
    emit(slow_path(placed, R2.pendW0))
    out.append(f"""s_endpgm
.section .rodata,"a"
.p2align 6
.amdhsa_kernel {KN}
  .amdhsa_next_free_vgpr 512
  .amdhsa_next_free_sgpr 102
  .amdhsa_accum_offset 256
  .amdhsa_group_segment_fixed_size 0
  .amdhsa_kernarg_size 64
  .amdhsa_user_sgpr_count 2
  .amdhsa_user_sgpr_kernarg_segment_ptr 1
  .amdhsa_system_sgpr_workgroup_id_x 1
.end_amdhsa_kernel""")
    print("\n".join(out))
main()
```

```python
import sys, os, struct, math
sys.path.insert(0, os.path.dirname(os.path.abspath(__file__)))
from sched import *
import ringplan

OPT = dict(stamps=0, nt=1, mapping=48, nodma=0, samekv=0, nored=0, ntw=0, ntx=0, bst=0, lrate=3, lburst=4, rsp=8, rk=2, i0=-170, dk=75, ksp=12, wsp=5, gst=4, gld=4, gsig=1, gpoll=108, gsum=8, gdma=36, glc=0, rot=1, gout=189, gdsp=4, lag=1, forceslow=0, ntst=0, pf=128, hrot=0, krot=1, osc=0, dbl=0, nperm=1, bdw=2, bda=3, vlate=1, tch=0, gtch=1, kvlate=0, nobar=0, nolg=0, nods=0, novalu=0)
for a in sys.argv[1:]:
    k, v = a.split("="); assert k in OPT, k; OPT[k] = float(v) if "." in v else int(v)
Region.LDSRATE = OPT["lrate"]; Region.LDSBURST = OPT["lburst"]
KN = "standalone__mha_block_cached__near_ridge_kernel"

def OA(mt, t): return R("v", (mt*3 + t)*4, 4)
def OAr(mt, t, i): return f"v{(mt*3 + t)*4 + i}"
QV0, PV0, S0, FA0 = 96, 144, 192, 204
def QV(s, t): return R("v", QV0 + (s*3 + t)*4, 4)
def QVr(s, t, i): return f"v{QV0 + (s*3 + t)*4 + i}"
def PB(buf, sg, t): return R("v", PV0 + 24*buf + (sg*3 + t)*4, 4)
def PBr(buf, sg, t, i): return f"v{PV0 + 24*buf + (sg*3 + t)*4 + i}"
def OP(s, t): return R("v", PV0 + (s*3 + t)*4, 4)
def OPr(s, t, i): return f"v{PV0 + (s*3 + t)*4 + i}"
def FR(buf, f, half=None):
    b = FA0 + 16*buf + 4*f
    return R("v", b, 4) if half is None else R("v", b + 2*half, 2)
vK = ["v236", "v237", "v238", "v239"]
vVb, vWb, vT = "v240", "v241", ["v242", "v243"]
vDK, vDV, vDW, vDX, vC = "v244", "v245", "v246", "v247", "v248"
vRL = ["v249", "v250", "v251"]
vLane, vDWo, vA, vB = "v252", "v253", "v254", "v255"
def XA(s, t): return R("a", (s*3 + t)*4, 4)
ZB = {0: 144, 1: 192, 2: 0}
def ZA(h, s, t): return R("a", ZB[h] + (s*3 + t)*4, 4)
def LA(t): return R("a", 240 + 4*t, 4)
ONES = "a[252:255]"

srdK, srdV, srdW, srdX, srdWS, srdO, srdD = (f"s[{i}:{i+3}]" for i in (8, 12, 16, 20, 24, 28, 32))
sW1k, sXcc, sRot, sOc = "s36", "s37", "s38", "s39"
sC = ["s40", "s41", "s42"]
sDg = ["s43", "s44", "s45", "s46"]
sH = ["s76", "s77", "s78", "s79"]
sIdx = "s99"
sKoff, sVoff, sWcol = "s47", "s48", "s49"
sD = [None, "s50", "s51", "s52"]
sDY = [None, "s53", "s54", "s55"]
sT = ["s56", "s57", "s58", "s59"]
sW4k, sHead, sScale, sWave, sB, sG, sLo, sHi = (f"s{i}" for i in range(60, 68))
sBad = "s[84:85]"
sN = [f"s{i}" for i in range(86, 92)]
sTmp = "s100"
sIt, sStR, sSt, sSig, sSlM, sExp, sLdR, sLd, sLd2, sOutR, sOut, sFlR, sLdMin = (f"s{i}" for i in range(86, 99))
sPoll = sSig; sPo = "s99"; sTk, sTh, sTo = "s43", "s44", "s45"
sU = ["s4", "s5"]; sMask = "s6"
OOB = 0x40000000
FLAG_BASE = 0x3000000
STAMP_BASE = 0x3100000
DUMP_BASE = 0x4000000
WS_BYTES = 0x8000000 if OPT["bst"] else 0x3200000
CHUNK = 196608
ORD = [(0,0),(0,1),(0,2),(1,0),(0,3),(1,3),(1,1),(1,2)]
ORDG = [(j >> 2, j & 3) for j in range(8)]
NT = " nt" if OPT["nt"] else ""
NTW = " nt" if OPT["ntw"] else ""
NTX = " nt" if OPT["ntx"] else ""
def wq_lit(step): return ORD[step][1]*0x100000 + ORD[step][0]*128
def wo_lit(m): return (m & 3)*0x20000 + (m >> 2)*128

def S(text, rd=(), wr=(), **kw): return Op(text, "s", rd=rd, wr=wr, **kw)
def V(text, rd=(), wr=(), **kw): return Op(text, "v4", rd=rd, wr=wr, **kw)
def V8(text, rd=(), wr=(), **kw): return Op(text, "v8", rd=rd, wr=wr, **kw)
def WAIT(d, need_ds=(), need_vm=(), lg0=False, late=3, e=-1):
    o = Op("s_waitcnt ?", "w", e=e, d=d, late=late, deps=[(x, 1) for x in need_ds])
    o.need_ds, o.need_vm, o.lg0 = list(need_ds), list(need_vm), lg0
    return o
def lin(text):
    return [Op(l.strip(), "x") for l in text.strip().split("\n") if l.strip()]

class Ctx: pass
C = Ctx(); C.grp = 0

ringplan.setb(OPT["bdw"], OPT["bda"]); BDW, BDA = OPT["bdw"], OPT["bda"]
wI = {"W0": -125, "W1": -75, "W2": -40, "W3": 36 + BDW, "W4": 69, "W5": 117, "W6": 165, "W7": 213}
xI = {"Xa": -225, "Xb": -200, "Xc": -150}
ISS, SLOT, _c, NEED = ringplan.plan(OPT["i0"], OPT["dk"], wI, xI)
assert SLOT is not None
SPR = {}
for t in ISS:
    m = ISS[t] % 1200
    sp = OPT["ksp"] if t[0] in "KV" else OPT["wsp"]
    if 262 <= m < 288: ISS[t] += 290 - m; m = 290
    SPR[t] = min(sp, ((288 if m < 288 else 1200) - 7 - m)//3); assert SPR[t] >= 1
BASE = {}
for ch in "KVW":
    for i, b in enumerate(ringplan.bases([SLOT[f"{ch}{i}"] for i in range(8)])[1]): BASE[f"{ch}{i}"] = b
XB = min(SLOT["Xa"], SLOT["Xb"], SLOT["Xc"]); assert max(SLOT["Xa"], SLOT["Xb"], SLOT["Xc"]) - XB <= 3
NEXT = sorted([t for t in ISS if ISS[t] < 0 and t[0] in "WX"], key=lambda t: (t != "W0", ISS[t]))
print("plan:", ISS, SLOT, BASE, NEXT, file=sys.stderr)
TILE = {}
def lit(x): return hex(x & 0xffffffff)
def rebase(rg, typ, old, new, e, d, after=()):
    if old == new: return []
    regs_ = vK if typ == "K" else [vVb if typ == "V" else vWb]
    return [rg.F(V(f"v_add_u32 {r}, {lit((new - old)*16384)}, {r}", rd=[r], wr=[r], e=e, d=d, deps=[(a, 0) for a in after if a])) for r in regs_]
def wq_t0(dst, step):
    hf, dg = ORD[step]
    return [f"s_add_u32 {dst}, {sWcol}, {sDg[dg]}"] + ([f"s_add_u32 {dst}, {dst}, 128"] if hf else [])
def x_t0(dst, a, q):
    return [f"s_lshr_b32 {dst}, {sDg[q]}, 12"] + ([f"s_add_u32 {dst}, {dst}, {a*65536}"] if a else [])
def tile_src(spec):
    k = spec[0]
    if k == "W": return srdW, vDW, wq_t0(sT[0], spec[1]), sD, NTW
    if k == "C": return srdW, vDW, [f"s_add_u32 {sT[0]}, {sC[spec[1]]}, {sH[spec[2]]}"], sD, NTW
    if k == "N": return srdW, vDW, [f"s_mov_b32 {sT[0]}, {sN[spec[1]]}"], sD, NTW
    if k == "Y": return srdX, vDX, [f"s_mov_b32 {sT[0]}, {sN[spec[1]]}"], sDY, NTX
    if k == "X": return srdX, vDX, x_t0(sT[0], spec[1], spec[2]), sDY, NTX
def add_dmas(rg, items):
    ev = []
    for (name, spec, slot, e, sp, bar) in items:
        for i in range(4): ev.append((e + sp*i, e, i, name, spec, slot, bar))
    ev.sort(key=lambda x: (x[0], x[1]))
    prev = None; cur = None; wopen = None; ts = None; lastw = None; m0 = None
    for (t, e0, i, name, spec, slot, bar) in ev:
        deps = []
        if bar is not None: deps.append((bar, 0))
        if prev is not None: deps.append((prev, 1))
        if cur != slot:
            m0 = rg.F(Op(f"s_add_u32 m0, {sW4k}, {slot*16384}", "t", wr=["m0"], e=t - 6, deps=([(prev, 1)] if prev else []))); cur = slot
        deps.append((m0, 1))
        if spec[0] in "KV":
            so, vo, srd = (sKoff, vDK, srdK) if spec[0] == "K" else (sVoff, vDV, srdV)
            st = rg.inc.get(spec[0])
            if st is not None and i == 0: deps.append((st, 0))
            o = rg.F(Op(f"buffer_load_dwordx4 {vo}, {srd}, {so} offen offset:{i*1024}{NT} lds", "vm", rd=[vo, so, "m0"], e=t, d=t + 4, deps=deps))
            if i == 3:
                inc = rg.F(Op(f"s_add_u32 {so}, {so}, 0x4000", "t", rd=[so], wr=[so], deps=[(o, 1)], d=t + 12))
                if name[1] == "7":
                    inc = rg.F(Op(f"s_and_b32 {so}, {so}, 0x7ffff", "t", rd=[so], wr=[so], deps=[(inc, 0)], d=t + 14))
                    nr = "s10" if name[0] == "K" else "s14"
                    rg.F(S(f"s_cmp_eq_u32 {sHead}, 3", deps=[(o, 1)])); inc2 = rg.F(S(f"s_cselect_b32 {nr}, 0, {nr}", d=t + 20))
                rg.inc[spec[0]] = inc
        else:
            srd, vo, t0, dl, fl = tile_src(spec)
            if i == 0:
                assert wopen is None, "W-type tiles may not interleave"
                wopen = name
                tt = rg.F(Op(t0[0], "t", wr=[sT[0]], e=t - 12, deps=([(lastw, 1)] if lastw else [])))
                for x in t0[1:]: tt = rg.F(Op(x, "t", wr=[sT[0]], deps=[(tt, 0)]))
                ts = [tt]
                ts += [rg.F(Op(f"s_add_u32 {sT[j]}, {sT[0]}, {dl[j]}", "t", wr=[sT[j]], deps=[(ts[0], 0)])) for j in (1, 2, 3)]
            o = rg.F(Op(f"buffer_load_dwordx4 {vo}, {srd}, {sT[i]} offen offset:{i*1024}{fl} lds", "vm", rd=[vo, sT[i], "m0"], e=t, d=t + 4, deps=deps + [(ts[i], 0)]))
            if i == 3: wopen = None; lastw = o
        if i == 3: TILE.setdefault(name, []).append(o)
        if i == 0: rg.first_dma[name] = o
        prev = o
    rg.lastw = lastw
def head_dmas(rg, lo, hi):
    items = []
    for t in ISS:
        m = ISS[t] % 1200
        if not (lo <= m < hi): continue
        spec = (t[0],) if t[0] in "KV" else (("W", int(t[1])) if ISS[t] >= 0 else (("N" if t[0] == "W" else "Y"), NEXT.index(t)))
        cands = [g for g in rg.bars if g + lo <= m and any(SLOT[p] == SLOT[t] and NEED[p][1] % 1200 == g + lo for p in NEED)]
        bar = rg.bars[max(cands)] if cands else None
        items.append((t, spec, SLOT[t], m - lo, SPR[t], bar))
    add_dmas(rg, items)
def dma_linear(name, spec, slot):
    ops = lin(f"s_add_u32 m0, {sW4k}, {slot*16384}")
    if spec[0] in "KV":
        so, vo, srd = (sKoff, vDK, srdK) if spec[0] == "K" else (sVoff, vDV, srdV)
        d = [Op(f"buffer_load_dwordx4 {vo}, {srd}, {so} offen offset:{i*1024}{NT} lds", "vm") for i in range(4)]
        ops += lin("s_nop 0") + d + lin(f"s_add_u32 {so}, {so}, 0x4000")
    else:
        srd, vo, t0, dl, fl = tile_src(spec)
        d = [Op(f"buffer_load_dwordx4 {vo}, {srd}, {sT[i]} offen offset:{i*1024}{fl} lds", "vm") for i in range(4)]
        ops += lin("\n".join(t0) + "\n" + "\n".join(f"s_add_u32 {sT[i]}, {sT[0]}, {dl[i]}" for i in (1, 2, 3))) + d
    TILE.setdefault(name, []).append(d[-1])
    return ops
def reads_X(rg, addr, slots, dst, e, d, deps, step=1):
    ops = []
    for t in range(3):
        for s in range(4):
            r_, imm = addr(slots[t], s)
            ops.append(rg.F(Op(f"ds_read_b128 {dst(s, t)}, {r_} offset:{imm}", "ds", rd=[r_], wr=[dst(s, t)], e=e, d=d + len(ops)*step,
                               deps=list(deps) + ([(ops[-1], 0)] if ops else []))))
    return ops

def new_region(name):
    rg = Region(name); rg.nst = {"R1": 0, "R1f": 0, "R2": 6, "G": 0}[name]
    rg.tuse = {0: [], 1: []}; rg.bars = {}; rg.inc = {}; rg.first_dma = {}; rg.wq = bool(OPT["nperm"]) and name != "G"
    return rg

def xor_addr(rg, base, k, ti, e, d, after=()):
    if k == 0: return base, None
    deps = [(x, 0) for x in rg.tuse[ti]] + [(a, 0) for a in after]
    o = rg.F(V(f"v_xor_b32 {vT[ti]}, {k*32}, {base}", rd=[base], wr=[vT[ti]], e=e, d=d, deps=deps))
    rg.tuse[ti] = []
    return vT[ti], o
def reads_W(rg, so, mt, buf, e, deps=(), ups=(), rsp=None):
    if rg.wq:
        if mt == 2: a, xo = xor_addr(rg, vWb, 2, 0, e - 8, e, ups)
        else: a, xo = (vWb if mt < 2 else vT[0]), None
        so += 8*(mt & 1)
    else: a, xo = xor_addr(rg, vWb, mt, mt & 1, e - 8, e, ups)
    dp = list(deps) + ([(xo, 1)] if xo else [(u, 1) for u in ups])
    ops = []
    for s in range(4):
        for p in range(2):
            ops.append(rg.F(Op(f"ds_read_b64_tr_b16 {FR(buf, s, p)}, {a} offset:{so + s*4096 + p*2048}", "ds", rd=[a], wr=[FR(buf, s, p)],
                               e=e, d=min(e + 1 + len(ops)*(rsp or OPT['rsp'])//8, e + 9), deps=dp + ([(ops[-1], 0)] if ops else []))))
    if rg.wq:
        if mt >= 2: rg.tuse[0] = ops
    elif xo: rg.tuse[mt & 1] = ops
    rg.lastWr = ops
    return ops, xo
def reads_K(rg, so, u, buf, e, deps=(), ups=()):
    ops = []
    for s in range(4):
        ops.append(rg.F(Op(f"ds_read_b128 {FR(buf, s)}, {vK[s]} offset:{so + u*1024}", "ds", rd=[vK[s]], wr=[FR(buf, s)],
                           e=e, d=e + 3 + len(ops)*OPT['rk'], deps=list(deps) + [(x, 1) for x in ups] + ([(ops[-1], 0)] if ops else []))))
    return ops
def reads_V(rg, so, dp_, buf, e, deps=(), ups=(), late=0):
    ops = []; xs = []
    for k in range(2):
        dt = 2*dp_ + k
        a, xo = xor_addr(rg, vVb, dt, k, e - 10, e + 4*k, ups)
        if xo: xs.append(xo)
        dd = list(deps) + ([(xo, 1)] if xo else [(u, 1) for u in ups])
        mine = []
        for sg in range(2):
            for p in range(2):
                o = rg.F(Op(f"ds_read_b64_tr_b16 {FR(buf, 2*k + sg, p)}, {a} offset:{so + sg*2048 + p*1024}", "ds", rd=[a], wr=[FR(buf, 2*k + sg, p)],
                            e=e, d=(e + 2 + len(ops)*OPT['rsp']//8) if not late else (e + 3 + 2*len(ops) if k == 0 else e + 5 + (len(ops)*5)//4), deps=dd + ([(ops[-1], 0)] if ops else [])))
                ops.append(o); mine.append(o)
        if xo: rg.tuse[k] = mine
    return ops, xs

def barrier(rg, gap, last_reads, tiles, extra=(), lg0=True, st=True):
    w = rg.F(WAIT(gap - 1, need_ds=last_reads, need_vm=list(tiles) + list(extra), lg0=lg0, late=1))
    w.deps += [(x, 1) for x in extra if x in rg.fill]
    b = rg.F(Op("s_barrier", "w", e=gap, d=gap, deps=[(w, 1)])); rg.bars[gap] = b
    if OPT["bst"] and st:
        w.pre = "s_memtime s[2:3]"
        i = rg.nst; rg.nst += 1
        rg.F(V(f"v_writelane_b32 {vLane}, s2, {i}", e=gap + 1, d=gap + 8))
    return b
def xstamp(rg, gap, idx, dep):
    if OPT["bst"] < 2: return
    w = rg.F(Op("s_memtime s[2:3]\ns_waitcnt lgkmcnt(0)", "w", e=gap, d=gap, deps=[(dep, 1)]))
    rg.F(V(f"v_writelane_b32 {vLane}, s2, {idx}", deps=[(w, 0)], d=gap))
def frag_waits(rg, rd_ops, first_use, n_first, second_use, only_first=False):
    if rd_ops is None: return
    rg.F(WAIT(first_use - 1, need_ds=rd_ops[:n_first], late=2))
    if n_first < len(rd_ops) and not only_first: rg.F(WAIT(second_use - 1, need_ds=rd_ops, late=1))

def so_(sb): return (sb[0] - sb[1])*16384
def w_step(rg, half, zero, Bop, pend, cur, nxt, need, extra=(), more_reads=(), xwait=None, post=None):
    b0 = rg.n(); info = dict(b0=b0); xlast = None
    if xwait:
        for t in range(3): rg.F(WAIT(b0 + 4*t - 1, need_ds=xwait[:4*t + 4], late=1))
        info["xbar"] = barrier(rg, b0 + 10, xwait, (), lg0=False, st=False)
    for mt in range(4):
        buf = C.grp & 1; C.grp += 1
        g0 = b0 + 12*mt
        if pend is not None and (mt < 3 or BDW): frag_waits(rg, pend, g0, 4, g0 + 2, only_first=(mt == 3))
        for t in range(3):
            for s in range(4):
                acc = OA(4*half + mt, t)
                rg.M(mfma(acc, FR(buf, s), Bop(s, t), "0" if (zero and s == 0) else acc))
        if mt < 3:
            pend, xo = reads_W(rg, so_(cur[1:3]), mt + 1, buf ^ 1, g0 - 1 if (mt or b0) else g0)
            if xo: xlast = xo
            if mt == 0 and rg.wq: base_users = pend
            if mt == 2: bar = barrier(rg, g0 + 11 + BDW, pend + list(more_reads), need, extra)
        else:
            ups = rebase(rg, nxt[0], nxt[3], nxt[2], b0 + 20, g0 - 2, after=([xlast] + (base_users if rg.wq else [])) if nxt[0] == "W" else [])
            if nxt[0] == "W": pend, _ = reads_W(rg, so_(nxt[1:3]), 0, buf ^ 1, g0 - 1 + BDW, deps=[(bar, 0)], ups=ups, rsp=(4 if post else None))
            else: pend = reads_K(rg, so_(nxt[1:3]), 0, buf ^ 1, g0 - 1 + BDW, deps=[(bar, 0)], ups=ups)
            if post: info["post"] = post(g0, bar)
    info["bar"] = bar; info["end"] = rg.n() - 1
    return pend, info
def TS(name, prev=None):
    k, i = name[0], int(name[1])
    return (k, SLOT[name], BASE[name], BASE[f"{k}{(i - 1) % 8}"])

def softmax(rg, g0, u, Sr, pbuf, d_over, d_puse):
    sg = u >> 1
    for t in range(3):
        last = rg.mf[g0 + 4*t + 3]
        dl = min(d_over(t), d_puse(t) - 3)
        ex = [rg.F(V8(f"v_exp_f32 {Sr(t,i)}, {Sr(t,i)}", rd=[Sr(t,i)], wr=[Sr(t,i)], e=last.gap, sdeps=[(last, 8)], trans=True)) for i in range(4)]
        for j in range(2):
            dst = PBr(pbuf, sg, t, 2*(u & 1) + j)
            rg.F(V(f"v_cvt_pk_bf16_f32 {dst}, {Sr(t,2*j)}, {Sr(t,2*j+1)}", rd=[Sr(t,2*j), Sr(t,2*j+1)], wr=[dst], d=dl,
                   sdeps=[(ex[2*j], 1), (ex[2*j+1], 1)]))
def k_mfmas(rg, buf, Sd):
    for t in range(3):
        for s in range(4):
            rg.M(mfma(Sd(t), FR(buf, s), QV(s, t), "0" if s == 0 else Sd(t)))
def v_mfmas(rg, dp_, buf, pbuf, zero, tmajor=False):
    order = [(k, t) for t in range(3) for k in range(2)] if tmajor else [(k, t) for k in range(2) for t in range(3)]
    last = {}
    for k, t in order:
        for sg in range(2):
            acc = OA(2*dp_ + k, t)
            last[(2*dp_ + k, t)] = rg.M(mfma(acc, FR(buf, 2*k + sg), PB(pbuf, sg, t), "0" if (zero and sg == 0) else acc))
    return last
def sum_mfmas(rg, t, pbuf, zero):
    for sg in range(2):
        o = rg.M(mfma(LA(t), ONES, PB(pbuf, sg, t), "0" if (zero and sg == 0) else LA(t)))
    return o
def o_epilogue_ops(dt, t):
    mul = [V(f"v_mul_f32 {OAr(dt,t,i)}, {vRL[t]}, {OAr(dt,t,i)}", rd=[OAr(dt,t,i), vRL[t]], wr=[OAr(dt,t,i)]) for i in range(4)]
    cvt = []
    for j in range(2):
        dst = OPr(dt >> 1, t, 2*(dt & 1) + j)
        cvt.append(V(f"v_cvt_pk_bf16_f32 {dst}, {OAr(dt,t,2*j)}, {OAr(dt,t,2*j+1)}", rd=[OAr(dt,t,2*j), OAr(dt,t,2*j+1)], wr=[dst],
                     deps=[(mul[2*j], 0), (mul[2*j+1], 0)]))
    for o in mul + cvt: o.ot = (dt, t)
    return mul, cvt
def q_muls(rg, mt, t, last, **kw):
    return [rg.F(V(f"v_mul_f32 {OAr(mt,t,i)}, {sScale}, {OAr(mt,t,i)}", rd=[OAr(mt,t,i)], wr=[OAr(mt,t,i)],
                   e=(last.gap if last is not None else -1), sdeps=([(last, 8)] if last is not None else []), **kw)) for i in range(4)]
def q_epilogue(rg, sp, t, lastA, lastB, d_use, muls=True):
    cv = []
    for k, last in ((0, lastA), (1, lastB)):
        mt = 2*sp + k
        mul = q_muls(rg, mt, t, last) if muls else None
        for j in range(2):
            dst = QVr(sp, t, 2*k + j)
            cv.append(rg.F(V(f"v_cvt_pk_bf16_f32 {dst}, {OAr(mt,t,2*j)}, {OAr(mt,t,2*j+1)}", rd=[OAr(mt,t,2*j), OAr(mt,t,2*j+1)], wr=[dst],
                             deps=([(mul[2*j], 0), (mul[2*j+1], 0)] if muls else []))))
    if OPT["nperm"]:
        for o in cv: o.d = d_use - 3
        return
    for j in range(2):
        a, b = QVr(sp, t, j), QVr(sp, t, 2 + j)
        p1 = rg.F(V8(f"v_permlane32_swap_b32 {a}, {b}", rd=[a, b], wr=[a, b], sdeps=[(cv[j], 2), (cv[2+j], 2)]))
        rg.F(V8(f"v_permlane16_swap_b32 {a}, {b}", rd=[a, b], wr=[a, b], sdeps=[(p1, 2)], d=d_use - 3))

def BopQ(st):
    dg = ORD[st][1]
    return (lambda s, t: XA(4*dg + s, t)) if dg < 3 else (lambda s, t: QV(s, t))

def build_R2():
    rg = new_region("R2")
    C.grp = 24
    pend, i6 = w_step(rg, ORD[6][0], False, BopQ(6), None, TS("W6"), TS("W7"), ["W7"])
    pend, i7 = w_step(rg, ORD[7][0], False, BopQ(7), pend, TS("W7"), TS("K0"), ["K0"])
    a0 = rg.n(); b7 = i7["b0"]
    for sp in (0, 1):
        for t in range(3): q_epilogue(rg, sp, t, None, None, min(a0 + 4*t + sp, 30 + (sp*3 + t)*8), muls=False)
    for sp in (2, 3):
        for t in range(3):
            mA, mB = 2*sp - 4, 2*sp - 3
            q_epilogue(rg, sp, t, rg.mf[b7 + 12*mA + 4*t + 3], rg.mf[b7 + 12*mB + 4*t + 3], a0 + 4*t + sp)
    B = lambda i: a0 + 48 + 102*i
    GK = [0, 26, 52, 78]; GV = [12, 38, 64, 90]
    def puse(i, sg, t): return (B(i) + 12 + 2*t + sg) if i < 7 else (B(7) + 4*t + sg)
    def so(n): return so_(TS(n)[1:3])
    def rb(n, e, d, after=()): x = TS(n); return rebase(rg, x[0], x[3], x[2], e, d, after)
    for u in range(4):
        buf = C.grp & 1; C.grp += 1; g0 = rg.n()
        if u < 3 or BDW: frag_waits(rg, pend, g0, 2, g0 + 2, only_first=(u == 3))
        k_mfmas(rg, buf, lambda t: OA(u, t))
        softmax(rg, g0, u, lambda t, i: OAr(u, t, i), 0, lambda t: 10**9, lambda t: puse(0, u >> 1, t))
        if u < 3:
            pend = reads_K(rg, so("K0"), u + 1, buf ^ 1, g0 - 1)
            if u == 2: bar = barrier(rg, g0 + 11 + BDW, pend, ["K1", "V0"]); lastK = pend
        else:
            ups = rb("K1", g0 - 12, g0 - 2, lastK)
            pend = reads_K(rg, so("K1"), 0, buf ^ 1, g0 - 1 + BDW, deps=[(bar, 0)], ups=ups)
            upsV = rb("V0", -1, g0)
    for i in range(7):
        b0 = rg.n(); assert b0 == B(i)
        for u in range(4):
            buf = C.grp & 1; C.grp += 1; g0 = rg.n(); assert g0 == b0 + GK[u]
            frag_waits(rg, pend, g0, 2, g0 + 2)
            k_mfmas(rg, buf, lambda t: R("v", S0 + 4*t, 4))
            nxtK = (b0 + GK[u+1]) if u < 3 else (B(i+1) if i < 6 else None)
            softmax(rg, g0, u, lambda t, j: f"v{S0 + 4*t + j}", (i + 1) & 1,
                    (lambda t: nxtK + 4*t - 1) if nxtK else (lambda t: 10**9), lambda t: puse(i + 1, u >> 1, t))
            pend, xs = reads_V(rg, so(f"V{i}"), u, buf ^ 1, g0 - 1, ups=(upsV if u == 0 else ()), late=(OPT["vlate"] if u < 3 else 0))
            if u == 3: bar = barrier(rg, g0 + 11 + BDA, pend, [f"K{i+2}", f"V{i+1}"] if i < 6 else ["V7"]); lastX = xs
            buf = C.grp & 1; C.grp += 1; g0 = rg.n(); assert g0 == b0 + GV[u]
            if u < 3 or BDA: frag_waits(rg, pend, g0, 4, g0 + 6, only_first=(u == 3))
            v_mfmas(rg, u, buf, i & 1, i == 0)
            if u < 3:
                sum_mfmas(rg, u, i & 1, i == 0)
                pend = reads_K(rg, so(f"K{i+1}"), u + 1, buf ^ 1, g0 - 1)
                if u == 2: lastK = pend
            elif i < 6:
                ups = rb(f"K{i+2}", g0 - 20, g0 - 2, lastK)
                pend = reads_K(rg, so(f"K{i+2}"), 0, buf ^ 1, g0 - 1 + BDA, deps=[(bar, 0)], ups=ups)
                upsV = rb(f"V{i+1}", g0 - 10, g0 + 4, lastX)
            else:
                upsV = rb("V7", g0 - 10, g0 - 2, lastX)
                pend, _ = reads_V(rg, so("V7"), 0, buf ^ 1, g0 - 1 + BDA, late=0, deps=[(bar, 0)], ups=upsV)
    E = rg.n(); assert E == B(7)
    epi = []
    for p in range(4):
        buf = C.grp & 1; C.grp += 1; g0 = rg.n()
        if p == 0: frag_waits(rg, pend, g0, 4, g0 + 2)
        elif p < 3 or BDW: frag_waits(rg, pend, g0, 4, g0 + 6, only_first=(p == 3))
        last = v_mfmas(rg, p, buf, 1, False, tmajor=(p == 0))
        if p == 0:
            rl = []; lr = []
            for t in range(3):
                ls = sum_mfmas(rg, t, 1, False)
                lr.append(rg.F(V(f"v_accvgpr_read_b32 {vRL[t]}, a{240+4*t}", rd=[f"a{240+4*t}"], wr=[vRL[t]], e=ls.gap, sdeps=[(ls, 8)], d=E + 28)))
            mn = rg.F(V(f"v_min3_f32 {vA}, {vRL[0]}, {vRL[1]}, {vRL[2]}", rd=vRL, wr=[vA], deps=[(x, 0) for x in lr], d=E + 30))
            mx = rg.F(V(f"v_max3_f32 {vB}, {vRL[0]}, {vRL[1]}, {vRL[2]}", rd=vRL, wr=[vB], deps=[(x, 0) for x in lr], d=E + 30))
            rg.F(V(f"v_cmp_gt_f32 {sBad}, {sLo}, {vA}", rd=[vA], wr=[sBad], deps=[(mn, 0)], d=E + 40))
            rg.F(V(f"v_cmp_lt_f32 vcc, {sHi}, {vB}", rd=[vB], wr=["vcc"], deps=[(mx, 0)], d=E + 40))
            for t in range(3):
                rl.append(rg.F(V8(f"v_rcp_f32 {vRL[t]}, {vRL[t]}", rd=[vRL[t]], wr=[vRL[t]], deps=[(mn, 0), (mx, 0)], trans=True, d=E + 34)))
        for (dt, t), lm in last.items():
            mul, cvt = o_epilogue_ops(dt, t)
            for o in mul: o.e = lm.gap; o.sdeps = [(lm, 8), (rl[t], 1)]
            for o in mul + cvt:
                o.optional = True
                if dt >= 4 and o in cvt: o.e = 10**9
                rg.F(o); epi.append(o)
        if p < 3:
            pend, xs = reads_V(rg, so("V7"), p + 1, buf ^ 1, g0 - 1 if p != 0 else g0 + 3)
            if p == 2: bar = barrier(rg, g0 + 11 + BDW, pend, ["W0", "Xa", "Xb", "Xc"])
        else:
            ups = rb("W0", -1, g0 - 2, [])
            for o in ups: o.e = a0
            if OPT["nperm"]: ups = ups + [rg.F(V(f"v_add_u32 {vWb}, {vC}, {vWb}", rd=[vC, vWb], wr=[vWb], e=a0, d=g0 - 4))]
            pend, _ = reads_W(rg, so("W0"), 0, buf ^ 1, g0 - 1 + BDW, deps=[(bar, 0)], ups=ups, rsp=8)
    assert sorted(g + 288 for g in rg.bars) == ringplan.bS[6:] + [ringplan.bQ] + ringplan.bB + [ringplan.bP]
    head_dmas(rg, 288, 1200)
    rg.pendW0 = pend; rg.epi = epi
    rg.schedule()
    return rg

def half0_muls(rg, b4):
    for mt in range(4):
        for t in range(3): q_muls(rg, mt, t, rg.mf[b4 + 12*mt + 4*t + 3])

def build_R1(left):
    rg = new_region("R1")
    C.grp = 0
    xa = [rg.F(V(f"v_add_u32 v{S0+s}, {sW1k}, {vK[s]}", rd=[vK[s]], wr=[f"v{S0+s}"], d=6)) for s in range(4)]
    xr = reads_X(rg, lambda sl, s: (f"v{S0+s}", (sl - XB)*16384), [SLOT["Xa"], SLOT["Xb"], SLOT["Xc"]], QV, 4, 9, [(a, 1) for a in xa], step=2)
    pend = None; infos = []
    for st in range(6):
        pend, inf = w_step(rg, ORD[st][0], st in (0, 3), BopQ(st), pend, TS(f"W{st}"), TS(f"W{st+1}"), [f"W{st+1}"], more_reads=(xr if st == 0 else ()))
        infos.append(inf)
    new = {}
    for o in left:
        dt, t = o.ot
        n = V(o.text, rd=list(o.rd), wr=list(o.wr)); n.ot = o.ot; new[id(o)] = n
        n.deps = [(new[id(p)], g) for (p, g) in o.deps if id(p) in new]
        n.e = 8 if dt >= 6 else -1
        n.d = ((12*dt + 4*t) if dt < 4 else (144 + 12*(dt - 4) + 4*t)) - 1
        rg.F(n)
    half0_muls(rg, infos[4]["b0"])
    head_dmas(rg, 0, 288)
    rg.schedule()
    return rg

def build_R1f():
    X = lambda q: [f"x{q}{a}" for a in range(3)]
    final = [t for t in ISS if ISS[t] < 288 and t[0] in "KV"] + ["W6", "W7"]
    assert set(final) == {"K0", "K1", "V0", "K2", "V1", "K3", "W6", "W7"}, final
    init = X(0) + ["w0"] + X(1) + ["w1", "K0", "K1"]
    inh = list(zip(X(2), X(0))) + [("w2", "w0")] + list(zip(["w3", "x30", "x31"], X(1))) + [("x32", "w1")] + \
          list(zip(["w4", "V0", "w5"], X(2))) + [("K2", "w2"), ("W6", "w3")] + list(zip(["V1", "W7", "K3"], X(3)))
    sl = {t: SLOT[t] for t in final}
    for new, old in reversed(inh):
        if new in sl: sl[old] = sl[new]
    free = [x for x in range(10) if x not in {sl[t] for t in init if t in sl}]
    for t in init:
        if t not in sl: sl[t] = free.pop()
    for new, old in inh: sl[new] = sl[old]
    def spec(t):
        if t[0] == "x": return ("X", int(t[2]), int(t[1]))
        if t[0] in "wW": return ("W", int(t[1]))
        return (t[0],)
    wsl = [sl[f"w{j}"] for j in range(6)] + [SLOT["W6"]]
    wb = [min(x, 6) for x in wsl[:6]] + [BASE["W6"]]
    rg = new_region("R1f")
    C.grp = 0
    xaddr = lambda s_, s: (f"v{S0 + 4*(s_ >> 2) + s}", (s_ & 3)*16384)
    dst = {0: (1, lambda s, t: XA(4 + s, t)), 1: (2, lambda s, t: XA(8 + s, t)), 3: (3, QV)}
    pend = None; infos = []; xw = None
    for st in range(6):
        post = None; need = [f"w{st+1}" if st < 5 else "W6"]
        if st in dst:
            q, fn = dst[st]; need += X(q)
            post = (lambda q, fn: lambda g0, bar: reads_X(rg, xaddr, [sl[t] for t in X(q)], fn, g0 + 2 + BDW, g0 + 5 + BDW, [(bar, 0)]))(q, fn)
        pend, inf = w_step(rg, ORD[st][0], st in (0, 3), BopQ(st), pend, ("W", wsl[st], wb[st]), ("W", wsl[st+1], wb[st+1], wb[st]), need, xwait=xw, post=post)
        xw = inf.get("post"); infos.append(inf)
    rel = {"w%d" % j: infos[j]["bar"] for j in range(6)}
    for q, st in ((1, 1), (2, 2), (3, 4)):
        for t in X(q): rel[t] = infos[st]["xbar"]
    items = []; tcur = 0
    for t in ["x20", "x21", "x22", "K0", "K1"]:
        items.append((t, spec(t), sl[t], tcur, 1, None)); tcur += 5
    for new, old in inh[3:]:
        tcur = max(tcur, rel[old].e)
        items.append((new, spec(new), sl[new], tcur, 2, rel[old])); tcur += 9
    add_dmas(rg, items)
    half0_muls(rg, infos[4]["b0"])
    rg.schedule()
    rg.init = [(t, spec(t), sl[t]) for t in init[:8]]; rg.wb0 = wb[0]; rg.wso0 = (wsl[0] - wb[0])*16384
    rg.x0 = [xaddr(sl[t], 0) for t in X(0)]; rg.xsl0 = [sl[t] for t in X(0)]; rg.xaddr = xaddr
    return rg

RLD = [[R("v", QV0 + 4*g, 4) for g in range(8)],
       [R("v", QV0 + 32 + 4*g, 4) for g in range(4)] + [R("v", S0 + 4*g, 4) for g in range(3)] + ["v[236:239]"]]
vTo = vLane if not OPT['bst'] else 'v235'
vSt, vFl, vPo, vPr, vOut = vDK, vDV, vVb, vDX, vC
LAG = OPT['lag']; OSC = ['', ' sc1', ' nt', ' sc0 sc1'][OPT['osc']]
NTST = ' nt' if OPT['ntst'] else ''
LO = ["v249", "v250", "v251", "v253"]
def pack_store(chunk):
    res = []
    for t in range(3):
        for np_ in range(2):
            a, b = 4*chunk + 2*np_, 4*chunk + 2*np_ + 1
            src = [(OAr(a,t,0), OAr(a,t,1)), (OAr(a,t,2), OAr(a,t,3)), (OAr(b,t,0), OAr(b,t,1)), (OAr(b,t,2), OAr(b,t,3))]
            cv = []
            for j in range(4):
                cv.append(V(f"v_cvt_pk_bf16_f32 {OAr(a,t,j)}, {src[j][0]}, {src[j][1]}", rd=list(src[j]), wr=[OAr(a,t,j)], deps=([(cv[-1], 0)] if cv else [])))
            k = 2*t + np_
            sa = S(f"s_add_u32 {sU[k & 1]}, {sSt}, {k*8192}", wr=[sU[k & 1]])
            st = Op(f"buffer_store_dwordx4 {OA(a,t)}, {vSt}, {srdWS}, {sU[k & 1]} offen@SC", "vm", rd=[OA(a,t), vSt], deps=[(cv[-1], 1), (sa, 0)])
            res.append((cv, sa, st))
    return res
def reduce_ops(set_):
    X = [regs(r_) for r_ in RLD[set_]]
    tmp = [vA, vB]; ops = []; n = 0
    for k in range(4):
        ops += [V(f"v_lshlrev_b32 {LO[k]}, 16, {X[0][k]}", rd=[X[0][k]], wr=[LO[k]]),
                V(f"v_and_b32 {X[0][k]}, {sMask}, {X[0][k]}", rd=[X[0][k]], wr=[X[0][k]])]
        for g in range(1, 8):
            tm = tmp[n & 1]; n += 1
            ops += [V(f"v_lshlrev_b32 {tm}, 16, {X[g][k]}", rd=[X[g][k]], wr=[tm]),
                    V(f"v_and_b32 {X[g][k]}, {sMask}, {X[g][k]}", rd=[X[g][k]], wr=[X[g][k]]),
                    V(f"v_add_f32 {LO[k]}, {LO[k]}, {tm}", rd=[LO[k], tm], wr=[LO[k]]),
                    V(f"v_add_f32 {X[0][k]}, {X[0][k]}, {X[g][k]}", rd=[X[0][k], X[g][k]], wr=[X[0][k]])]
        ops.append(V(f"v_cvt_pk_bf16_f32 {X[0][k]}, {LO[k]}, {X[0][k]}", rd=[LO[k], X[0][k]], wr=[X[0][k]]))
    for a, b in zip(ops, ops[1:]): b.deps.append((a, 0))
    pl = []
    for j in range(2):
        pl.append(V8(f"v_permlane32_swap_b32 {X[0][j]}, {X[0][2+j]}", rd=[X[0][j], X[0][2+j]], wr=[X[0][j], X[0][2+j]], sdeps=[(ops[-1], 2)]))
    for j in range(2):
        pl.append(V8(f"v_permlane16_swap_b32 {X[0][j]}, {X[0][2+j]}", rd=[X[0][j], X[0][2+j]], wr=[X[0][j], X[0][2+j]], sdeps=[(pl[j], 2)]))
    st = Op(f"buffer_store_dwordx4 {RLD[set_][0]}, {vOut}, {srdO}, {sOut} offen{OSC}", "vm", rd=[RLD[set_][0], vOut, sOut], deps=[(pl[2], 1), (pl[3], 1)])
    return ops, pl, st
def red_loads(set_):
    return [Op(f"buffer_load_dwordx4 {RLD[set_][g]}, {vSt}, {srdWS}, {sLd if g < 4 else sLd2} offen offset:{(g & 3)*1024} sc1", "vm",
               rd=[vSt], wr=[RLD[set_][g]]) for g in range(8)]
def sig_ops():
    return [Op(f"buffer_store_dword {vSt}, {vFl}, {srdWS}, {sSig} offen@SC", "vm", rd=[vSt, vFl])]
def scal_A():
    return [f"s_sub_u32 {sTmp}, {sIt}, 1", f"s_and_b32 {sTmp}, {sTmp}, {sSlM}", f"s_mul_i32 {sTmp}, {sTmp}, {CHUNK}",
            f"s_add_u32 {sSt}, {sStR}, {sTmp}", f"s_add_u32 {sLd}, {sLdR}, {sTmp}",
            f"s_cmp_ge_u32 {sIt}, 1", f"s_cselect_b32 {sSt}, {sSt}, {hex(OOB)}", f"s_cselect_b32 {sSig}, {sFlR}, {hex(OOB)}",
            f"s_cselect_b32 {sExp}, 16, 0", f"s_cselect_b32 {sPo}, {sFlR}, {hex(FLAG_BASE + 0x20000)}",
            f"s_cmp_ge_u32 {sIt}, {sLdMin}", f"s_cselect_b32 {sLd}, {sLd}, {hex(OOB)}", f"s_add_u32 {sLd2}, {sLd}, 0x1000",
            f"s_add_u32 {sFlR}, {sFlR}, 256"]
def scal_B():
    return [f"s_add_u32 {sOut}, {sOutR}, {sOc}", f"s_cmp_ge_u32 {sIt}, 2", f"s_cselect_b32 {sOut}, {sOut}, {hex(OOB)}",
            f"s_add_u32 {sOc}, {sOc}, 128", f"s_and_b32 {sOc}, {sOc}, 0x3ff", f"s_add_u32 {sIt}, {sIt}, 1"]

def build_G():
    rg = new_region("G")
    used = [SLOT[t] for t in NEXT]
    gs = used + [SLOT["K0"]] + [x for x in range(10) if x not in used and x not in (SLOT["K0"], SLOT["K1"], SLOT["V0"])][:1]
    assert len(gs) == 8
    gb = ringplan.bases(gs)[1]; assert gb[0] == BASE["W0"]
    rg.gs = gs; items = []; bars = {}; rg.st_last = {}; rg.sB_last = {}
    C.grp = 0
    def Bop(h): return (lambda s, t: ZA(h, s, t)) if h < 3 else (lambda s, t: OP(s, t))
    LD = [red_loads(0), red_loads(1)]
    pend = None; prev_users = []
    for hf in range(2):
        h0 = 192*hf
        stores = []
        for (cv, sa, st) in pack_store(1 - hf):
            for o in cv: o.e = h0 + 8; rg.F(o)
            if len(stores) >= 2: sa.deps.append((stores[-2], 1))
            rg.F(sa); st.e = h0 + 10 + OPT['gst']*len(stores); st.d = st.e + 3; rg.F(st); stores.append(st)
        sc = [rg.F(S(x, e=h0, deps=[(u, 1) for u in prev_users])) for x in scal_B()]
        rg.sB_last[hf] = sc[-1]
        cur = hf ^ 1
        w0 = rg.F(WAIT(h0 + OPT['gsum'], need_vm=LD[cur], late=1)); w0.e = h0 + OPT['gsum']
        o0, p0, s0_ = reduce_ops(cur)
        o0[0].deps.append((w0, 0))
        for o in o0 + p0 + [s0_]: rg.F(o)
        s0_.d = h0 + OPT['gout']; s0_.deps += [(sc[2], 0), (LD[hf][-1], 1)]
        infos = []
        for j in range(4):
            st = 4*hf + j
            n1 = (st + 1) & 7
            pend, inf = w_step(rg, hf, j == 0, Bop(j), pend, ("W", gs[st], gb[st]), ("W", gs[n1], gb[n1], gb[st]), [f"G{n1}"], extra=(stores if j == 1 else ()))
            infos.append(inf); bars[st] = inf["bar"]
        sig, = sig_ops(); bs = infos[1]["bar"]
        sig.deps = [(bs, 0)]; sig.d = bs.e + 1; rg.F(sig)
        po = rg.F(S(f"s_load_dwordx8 s[68:75], s[82:83], {sPo}{' glc' if OPT['glc'] else ''}", e=h0 + OPT['gpoll'], d=h0 + OPT['gpoll'] + 4))
        b2 = infos[2]["bar"]
        ck = [rg.F(S(x, deps=[(b2, 0)])) for x in ("s_and_b32 s68, s68, s69", "s_and_b32 s70, s70, s71", "s_and_b32 s72, s72, s73", "s_and_b32 s74, s74, s75",
              "s_and_b32 s68, s68, s70", "s_and_b32 s72, s72, s74", "s_and_b32 s68, s68, s72", f"s_and_b32 s68, s68, {sExp}", f"s_cmp_lg_u32 s68, {sExp}")]
        br = rg.F(Op(f"s_cbranch_scc1 L_spinG{hf}@L\nL_backG{hf}@L:", "s", d=b2.e + 12))
        prev = None
        for i, o in enumerate(LD[hf]):
            o.deps += [(br, 0)] + ([(prev, 1)] if prev else []); o.e = b2.e + 10 + OPT['gld']*i; o.d = o.e + 3; rg.F(o); prev = o
        if OPT["gtch"]:
            ca, cb = (sC[1], sC[2]) if hf == 0 else (sC[2], None)
            tk = [rg.F(S(f"s_cmp_lt_u32 {sTk}, 2", deps=[(LD[hf][-2], 0)]))]
            if hf == 0: tk.append(rg.F(S(f"s_cselect_b32 {sTmp}, {ca}, {cb}")))
            else: tk += [rg.F(S(f"s_cselect_b32 {sTmp}, 0, 128")), rg.F(S(f"s_add_u32 {sTmp}, {sTmp}, {ca}")), rg.F(S(f"s_and_b32 {sTmp}, {sTmp}, 0x3ff"))]
            tk.append(rg.F(S(f"s_add_u32 {sTo}, {sTmp}, {sTh}")))
            rg.F(Op(f"buffer_load_dword {vPr}, {vTo}, {srdW}, {sTo} offen", "vm", rd=[vTo], wr=[vPr], deps=[(tk[-1], 0), (LD[hf][-1], 1)], d=h0 + 184))
        prev_users = [s0_]
        for i, x in enumerate(scal_A()): rg.F(S(x, deps=[(LD[hf][-1], 1)] if i == 0 else []))
        for k in range(4):
            st = (4*hf - 2 + k) & 7
            items.append((f"G{st}", ("C", (1 + (st >> 2)) if (hf or k > 1) else 0, st & 3), gs[st], h0 + OPT["gdma"] + k*(4*OPT["gdsp"] + 1), OPT["gdsp"],
                          bars[st] if (hf or k > 1) else stores[-1]))
        rg.st_last[hf] = stores[-1]
    add_dmas(rg, items)
    c1 = S(f"s_cmp_ge_u32 {sIt}, 7", deps=[(TILE["G7"][-1], 1)]); c2 = S("s_cselect_b32 s18, 0, s18", wr=["s18"], rd=["s18"])
    pos = rg.fill.index(rg.sB_last[0]) + 1
    rg.fill[pos:pos] = [c1, c2]
    for i, o in enumerate(rg.fill): o.seq = i + 1
    rg.first_dma["G0"].deps.append((c2, 0))
    rg.first_dma["G6"].deps.append((rg.st_last[0], 1)); rg.first_dma["G2"].deps.append((rg.st_last[1], 1))
    rg.LD = LD
    rg.schedule()
    return rg

def stamp(kind=0):
    if not OPT["stamps"]: return []
    def put(x): return lin(f"v_mov_b32 {vA}, {x}") + [Op(f"buffer_store_dword {vA}, off, {srdWS}, s101", "vm")] + lin("s_add_u32 s101, s101, 4\ns_nop 1")
    if kind == 1: return put("s94") + put("s92") + stamp()
    if kind == 2: return lin("s_waitcnt vmcnt(0)") + stamp()
    return lin("s_memtime s[2:3]\ns_memrealtime s[4:5]\ns_waitcnt lgkmcnt(0)") + put("s2") + put("s4")

def code_pf(lbl, start, end, mask, r):
    if not OPT["pf"]: return []
    return lin(f"""s_getpc_b64 s[{r}:{r+1}]
{lbl}:
s_add_u32 s{r}, s{r}, {start}-{lbl}
s_addc_u32 s{r+1}, s{r+1}, {"-1" if start == KN else "0"}
s_mov_b32 s{r+2}, {end}-{start}
s_mov_b32 s{r+3}, 0x20000
s_lshl_b32 s5, {sIdx}, 2
s_add_u32 s5, s5, {sWave}
s_and_b32 s5, s5, {mask}
s_lshl_b32 s5, s5, 13
v_mbcnt_lo_u32_b32 {vA}, -1, 0
v_mbcnt_hi_u32_b32 {vA}, -1, {vA}
v_lshlrev_b32 {vA}, 7, {vA}""") + [Op(f"buffer_load_dword {vB}, {vA}, s[{r}:{r+3}], s5 offen", "vm")]

def prologue(F):
    init = F.init
    o = lin(f"""
s_cmp_lt_u32 s2, 256
s_cbranch_scc1 L_go
s_endpgm
L_go:
{"s_memrealtime s[92:93]" if (OPT["stamps"] or OPT["dbl"]) else ""}
{"s_memtime s[94:95]" if OPT["stamps"] else ""}
s_load_dwordx16 s[68:83], s[0:1], 0
v_lshrrev_b32 v1, 6, v0
v_and_b32 {vLane}, 63, v0
s_and_b32 s4, s2, 7
v_readfirstlane_b32 {sWave}, v1
s_lshr_b32 s5, s2, 3
s_mov_b32 {sIdx}, s5""")
    mp = {84: (1, 3, 2, 1, 2, 3), 48: (0, 2, 3, 0, 3, 7), 162: (2, 4, 1, 3, 1, 1)}[OPT["mapping"]]
    o += lin(f"""
s_lshr_b32 s6, s4, {mp[0]}
s_lshl_b32 s6, s6, {mp[1]}
s_lshr_b32 s7, s5, {mp[2]}
s_add_u32 {sB}, s6, s7
s_and_b32 s6, s4, {mp[3]}
s_lshl_b32 s6, s6, {mp[4]}
s_and_b32 s7, s5, {mp[5]}
s_add_u32 {sG}, s6, s7""")
    cbits = struct.unpack("<I", struct.pack("<f", math.log2(math.e)/math.sqrt(128)))[0]
    o += lin(f"""
s_lshl_b32 {sW4k}, {sWave}, 12
v_lshrrev_b32 v5, 4, {vLane}
v_and_b32 v6, 15, {vLane}
s_lshl_b32 s6, {sWave}, 4
v_add_u32 v1, s6, v5
s_lshl_b32 s6, {sWave}, 2
v_or_b32 v2, s6, v5
v_xor_b32 v2, v2, v6
v_lshlrev_b32 v2, 4, v2
v_lshl_add_u32 {vDX}, v1, 10, v2
v_lshl_add_u32 {vDK}, v1, 8, v2
v_lshrrev_b32 v7, 5, {vLane}
v_bfe_u32 v2, {vLane}, 3, 2
v_lshl_add_u32 v7, v7, 3, v2
s_lshl_b32 s6, {sWave}, 5
v_add_u32 v7, s6, v7
v_and_b32 v3, 7, {vLane}
v_lshlrev_b32 v4, 1, v5
v_xor_b32 v3, v3, v4
v_lshlrev_b32 v3, 4, v3
v_lshl_add_u32 {vDW}, v7, 13, v3
s_mov_b32 {sDY[1]}, 3072
s_mov_b32 {sDY[2]}, 6144
s_mov_b32 {sDY[3]}, 9216
s_mov_b32 {sD[1]}, {16*8192 - 1024}
s_mov_b32 {sD[2]}, {4*8192 - 2048}
s_mov_b32 {sD[3]}, {20*8192 - 3072}
s_lshr_b32 s4, {sB}, 2
s_and_b32 s5, s4, {3 if OPT["hrot"] else 0}
s_lshl_b32 {sWcol}, s5, 8
s_lshl_b32 {sKoff}, s5, 17
s_mov_b32 {sVoff}, {sKoff}
s_and_b32 s4, s4, {3 if OPT["krot"] else 0}
s_lshl_b32 {sDg[0]}, s4, 20
s_add_u32 {sDg[1]}, {sDg[0]}, 0x100000
s_and_b32 {sDg[1]}, {sDg[1]}, 0x3fffff
s_xor_b32 {sDg[2]}, {sDg[0]}, 0x200000
s_xor_b32 {sDg[3]}, {sDg[1]}, 0x200000
s_mul_i32 s7, {sB}, 196608
s_mov_b32 s22, 196608
s_mov_b32 s23, 0x20000
s_mov_b32 s19, 0x20000
s_lshl_b32 s4, {sG}, 10
s_sub_u32 s18, 0x400000, s4
s_waitcnt lgkmcnt(0)
s_add_u32 s20, s68, s7
s_addc_u32 s21, s69, 0
s_add_u32 s16, s74, s4
s_addc_u32 s17, s75, 0""")
    if OPT["tch"]:
        o += lin(f"""v_lshrrev_b32 v8, 1, {vLane}
v_and_b32 v9, 1, {vLane}
v_lshlrev_b32 v9, 7, v9
v_lshl_add_u32 v11, v8, 13, v9
v_lshl_add_u32 v8, v8, 10, v9
v_mov_b32 v10, {hex(OOB)}
v_cmp_gt_u32 vcc, 12, {vLane}
s_lshl_b32 s4, {sG}, 2
s_add_u32 s4, s4, {sWave}
s_mul_i32 s4, s4, 6144
v_cndmask_b32 v8, v10, v8, vcc
v_cmp_gt_u32 vcc, 16, {vLane}
s_and_b32 s5, {sB}, 3
s_lshl_b32 s5, s5, 2
s_add_u32 s5, s5, {sWave}
s_lshl_b32 s5, s5, 16
s_add_u32 s5, s5, {sWcol}
v_cndmask_b32 v11, v10, v11, vcc
v_add_u32 v8, s4, v8
v_add_u32 v11, s5, v11""")
        for q in range(OPT["tch"] - 1, 4):
            o += lin(f"s_lshr_b32 s3, {sDg[q]}, 12")
            o += [Op(f"buffer_load_dword {vB}, v8, {srdX}, s3 offen", "vm"), Op(f"buffer_load_dword {vB}, v11, {srdW}, {sDg[q]} offen", "vm")]
    for j in range(4): o += dma_linear(*init[j])
    o += code_pf("L_pc", KN, "L_G", OPT["pf"] - 1, 88)
    o += lin(f"""
v_lshrrev_b32 v7, 3, {vLane}
v_add_u32 v7, s6, v7
v_lshl_add_u32 {vDWo}, v7, 10, v3
s_and_b32 s6, {sWave}, 1
s_lshl_b32 s6, s6, 2
v_or_b32 v2, s6, v5
v_lshlrev_b32 v2, 1, v2
v_xor_b32 v2, v2, v6
v_lshlrev_b32 v1, 8, v1
v_lshl_add_u32 {vDV}, v2, 4, v1
s_mov_b32 s24, s82
s_mov_b32 s25, s83
s_mov_b32 s26, {hex(WS_BYTES)}
s_mov_b32 s27, 0x20000
v_lshrrev_b32 v1, 3, {vLane}
v_and_b32 v2, 7, {vLane}
v_lshlrev_b32 v1, 8, v1
v_lshl_add_u32 v8, v2, 2, v1
s_lshl_b32 s6, {sB}, 11
s_add_u32 s6, s6, {hex(FLAG_BASE)}
s_or_b32 s7, {sG}, {sWave}
s_cmp_eq_u32 s7, 0
s_cselect_b32 {sTmp}, s6, {hex(OOB)}
v_mov_b32 v9, 0""")
    zst = Op(f"buffer_store_dword v9, v8, {srdWS}, {sTmp} offen sc1", "vm"); o.append(zst)

    o += lin(f"""
s_mov_b32 {sScale}, {hex(cbits)}
s_mov_b32 {sLo}, 0x30800000
s_mov_b32 {sHi}, 0x4e800000
s_mov_b32 {sHead}, 0
s_lshl_b32 {sW1k}, {sWave}, 10
s_lshl_b32 s6, {sB}, 22
s_lshl_b32 s7, {sG}, 19
s_add_u32 s6, s6, s7
{"s_mov_b32 s6, 0" if OPT["samekv"] else ""}
s_add_u32 s8, s70, s6
s_addc_u32 s9, s71, 0
s_mov_b32 s10, 0x80000
s_mov_b32 s11, 0x20000
s_add_u32 s12, s72, s6
s_addc_u32 s13, s73, 0
s_mov_b32 s14, 0x80000
s_mov_b32 s15, 0x20000
s_mov_b32 s28, s78
s_mov_b32 s29, s79
s_mov_b32 s30, 0x600000
s_mov_b32 s31, 0x20000
s_mov_b32 s32, s80
s_mov_b32 s33, s81
s_mov_b32 s34, 0x100
s_mov_b32 s35, 0x20000
{"s_mov_b32 s80, s92" if OPT["dbl"] else ""}
v_lshrrev_b32 v1, 2, v6
v_and_b32 v2, 3, v6
v_lshl_add_u32 v3, v1, 4, v2
v_lshlrev_b32 v3, 8, v3""")
    for s in range(4):
        o += lin(f"v_add_u32 v4, {4*s}, v5\nv_xor_b32 v4, v4, v6\nv_lshl_add_u32 {vK[s]}, v4, 4, v3")
    o += lin(f"""
v_lshl_add_u32 v3, v5, 4, v1
v_lshlrev_b32 v3, 8, v3
v_and_b32 v4, 1, v5
v_lshl_add_u32 v7, v4, 2, v1
v_lshl_add_u32 v3, v7, 5, v3
v_lshl_add_u32 v3, v2, 3, v3
v_add_u32 {vVb}, {BASE["V7"]*16384}, v3
v_lshl_add_u32 v3, v5, 2, v1
v_lshlrev_b32 v3, 7, v3
v_lshrrev_b32 v7, 1, v1
v_lshl_add_u32 v7, v4, 1, v7
{"v_lshlrev_b32 v7, 1, v7" if OPT["nperm"] else "v_lshl_add_u32 v3, v7, 5, v3"}
{"v_xor_b32 v7, v7, v2" if OPT["nperm"] else ""}
{"v_lshl_add_u32 v7, v7, 4, v3" if OPT["nperm"] else "v_lshl_add_u32 v7, v2, 3, v3"}
v_add_u32 {vWb}, {F.wb0*16384}, v7
v_mov_b32 {vC}, 0
v_mov_b32 v3, 0x3f803f80
v_accvgpr_write_b32 a252, v3
v_accvgpr_write_b32 a253, v3
v_accvgpr_write_b32 a254, v3
v_accvgpr_write_b32 a255, v3
""")
    for s in range(4):
        o += lin(f"v_add_u32 v{S0+s}, {sW1k}, {vK[s]}\nv_add_u32 v{S0+4+s}, 0x10000, v{S0+s}\nv_add_u32 v{S0+8+s}, 0x20000, v{S0+s}\nv_add_u32 {vK[s]}, {BASE['K7']*16384}, {vK[s]}")
    o += lin(f"s_add_u32 {sW1k}, {sW1k}, {lit((XB - BASE['K7'])*16384)}")
    for j in range(4, 8): o += dma_linear(*init[j])
    if OPT["stamps"]:
        o += lin(f"s_lshl_b32 s101, s2, 10\ns_lshl_b32 s6, {sWave}, 8\ns_add_u32 s101, s101, s6\ns_add_u32 s101, s101, {hex(STAMP_BASE)}")
    if OPT["stamps"] == 2: o += stamp(1)
    o.append(WAIT(0, need_vm=[x[0] for x in init[:4]]))
    o += lin("s_barrier")
    if OPT["stamps"] == 2: o += stamp()
    for t in range(3):
        for s in range(4): o += lin("ds_read_b128 %s, %s offset:%d" % ((XA(s, t),) + F.xaddr(F.xsl0[t], s)))
    for s in range(4):
        for p in range(2): o += lin(f"ds_read_b64_tr_b16 {FR(0, s, p)}, {vWb} offset:{F.wso0 + s*4096 + p*2048}")
    o += lin("s_waitcnt lgkmcnt(0)\ns_barrier")
    return o, zst

def glue1(zst):
    def mv(h): return [V(f"v_accvgpr_write_b32 a{ZB[h] + i}, v{PV0 + i}", rd=[f"v{PV0+i}"], wr=[f"a{ZB[h]+i}"]) for i in range(48)]
    head = lin(f"s_cmp_eq_u32 {sHead}, 1\ns_cbranch_scc1 L_mv1\ns_cmp_eq_u32 {sHead}, 2\ns_cbranch_scc1 L_mv2")
    dbg = Op(f"buffer_load_dword {vDWo}, off, {srdD}, {sTmp} sc1", "vm")
    p3 = mv(2) + lin(f"""s_lshl_b32 s6, {sG}, 19
s_add_u32 s16, s76, s6
s_addc_u32 s17, s77, 0
s_mov_b32 s18, 0x80000
s_mov_b32 s20, s16
s_mov_b32 s21, s17
s_mov_b32 s22, 0x80000
s_lshl_b32 {sH[0]}, {sWcol}, 9
s_add_u32 {sH[0]}, {sH[0]}, 0x20000
s_and_b32 {sH[0]}, {sH[0]}, 0x7ffff
s_add_u32 {sH[1]}, {sH[0]}, 0x20000
s_and_b32 {sH[1]}, {sH[1]}, 0x7ffff
s_xor_b32 {sH[2]}, {sH[0]}, 0x40000
s_xor_b32 {sH[3]}, {sH[1]}, 0x40000
v_mbcnt_lo_u32_b32 {vA}, -1, 0
v_mbcnt_hi_u32_b32 {vA}, -1, {vA}
v_bfe_u32 {vB}, {vA}, 3, 2
v_and_b32 {vA}, 3, {vA}
v_lshlrev_b32 {vC}, 5, {vB}
v_lshl_add_u32 {vC}, {vA}, 3, {vC}
v_lshlrev_b32 {vB}, 1, {vB}
v_xor_b32 {vA}, {vA}, {vB}
v_lshlrev_b32 {vA}, 4, {vA}
v_sub_u32 {vC}, {vC}, {vA}
v_mov_b32 {vDW}, {vDWo}
v_mov_b32 {vDX}, {vDWo}
s_lshl_b32 {sTmp}, {sB}, 2""" + "".join(f"\ns_mov_b32 {sD[i]}, {7168*i}\ns_mov_b32 {sDY[i]}, {7168*i}" for i in (1, 2, 3))
      + f"""
s_lshr_b32 {sRot}, {sB}, 2
s_and_b32 {sRot}, {sRot}, {7 if OPT["rot"] else 0}
s_lshl_b32 {sRot}, {sRot}, 7"""
      + "".join(f"\ns_add_u32 {sC[i]}, {sRot}, {128*(i+1)}\ns_and_b32 {sC[i]}, {sC[i]}, 0x3ff" for i in range(3))
      + "".join(f"\ns_add_u32 {sN[m]}, {sRot if m < 4 else sC[0]}, {sH[m & 3]}" for m in range(6))) + [dbg] + code_pf("L_pc2", "L_g3", "L_codeend", 15, 72) + lin("s_branch L_mvd")
    p1 = lin("L_mv1:") + mv(0) + lin("s_branch L_mvn")
    p2 = lin("L_mv2:") + mv(1)
    nx = lin(f"L_mvn:\ns_add_u32 {sWcol}, {sWcol}, 256\ns_and_b32 {sWcol}, {sWcol}, 0x3ff" + "".join("\n" + "\n".join(wq_t0(sN[k], j)) for k, j in [(NEXT.index(t), int(t[1])) for t in NEXT if t[0] == "W"]))
    tail = lin("L_mvd:\ns_waitcnt lgkmcnt(0)")
    w = WAIT(0, need_vm=[zst])
    p0 = [w] + lin(f"""s_getreg_b32 {sXcc}, hwreg(HW_REG_XCC_ID, 0, 3)
s_lshl_b32 s6, {sB}, 2
s_cmp_eq_u32 {sWave}, 0
s_cselect_b32 s6, s6, {hex(OOB)}
s_lshl_b32 {sXcc}, {sXcc}, 2
s_lshl_b32 {sXcc}, 1, {sXcc}
v_mov_b32 {vB}, {hex(OOB)}
v_writelane_b32 {vB}, 0, 0
v_mov_b32 {vA}, {sXcc}""" + "".join("\n" + "\n".join(x_t0(sN[NEXT.index('X' + 'abc'[a])], a, 3)) for a in range(3))) + [Op(f"buffer_atomic_add {vA}, {vB}, {srdD}, s6 offen sc1", "vm")] + lin("s_branch L_mvn")
    return head, p3, p1, p2, nx, tail, p0, dbg

def slow_path(placed, pendW0):
    vKo, vVo, vVo2 = f"v{PV0+40}", f"v{PV0+41}", f"v{PV0+42}"
    M = [f"v{PV0+36+t}" for t in range(3)]
    CN = [R("v", PV0 + 24 + 4*t, 4) for t in range(3)]
    Sx = [R("v", S0 + 4*t, 4) for t in range(3)]
    t_ = f"""
L_slow:
s_waitcnt vmcnt(0) lgkmcnt(0)
s_nop 7
v_mbcnt_lo_u32_b32 {vB}, -1, 0
v_mbcnt_hi_u32_b32 {vB}, -1, {vB}
v_and_b32 {vA}, 15, {vB}
v_lshrrev_b32 {vB}, 4, {vB}
v_lshlrev_b32 {vKo}, 8, {vA}
v_lshl_add_u32 {vKo}, {vB}, 4, {vKo}
v_lshlrev_b32 {vVo}, 10, {vB}
v_lshl_add_u32 {vVo}, {vA}, 1, {vVo}
v_add_u32 {vVo2}, 0x1000, {vVo}
s_lshr_b32 s4, {sB}, 2
s_and_b32 s4, s4, {3 if OPT["hrot"] else 0}
s_add_u32 s4, s4, {sHead}
s_and_b32 s4, s4, 3
s_lshl_b32 s4, s4, 17
s_mov_b32 s10, 0x80000
s_mov_b32 s14, 0x80000
s_add_u32 s5, s4, 0x20000
s_mov_b32 s6, s4
"""
    for t in range(3): t_ += f"v_mov_b32 {M[t]}, 0xff800000\n"
    t_ += "L_slow1:\n"
    for s in range(4): t_ += f"buffer_load_dwordx4 {FR(0, s)}, {vKo}, {srdK}, s6 offen offset:{64*s}\n"
    t_ += "s_waitcnt vmcnt(0)\n"
    for t in range(3):
        for s in range(4): t_ += f"v_mfma_f32_16x16x32_bf16 {Sx[t]}, {FR(0, s)}, {QV(s, t)}, {'0' if s == 0 else Sx[t]}\n"
    t_ += "s_nop 9\n"
    for t in range(3):
        t_ += f"v_max3_f32 {M[t]}, {M[t]}, v{S0+4*t}, v{S0+4*t+1}\nv_max3_f32 {M[t]}, {M[t]}, v{S0+4*t+2}, v{S0+4*t+3}\n"
    t_ += "s_add_u32 s6, s6, 0x1000\ns_cmp_lt_u32 s6, s5\ns_cbranch_scc1 L_slow1\n"
    for t in range(3):
        t_ += f"""v_mov_b32 {vA}, {M[t]}
s_nop 1
v_permlane32_swap_b32 {vA}, {M[t]}
s_nop 1
v_max_f32 {M[t]}, {vA}, {M[t]}
v_mov_b32 {vA}, {M[t]}
s_nop 1
v_permlane16_swap_b32 {vA}, {M[t]}
s_nop 1
v_max_f32 {M[t]}, {vA}, {M[t]}
"""
        for i in range(4): t_ += f"v_sub_f32 v{PV0+24+4*t+i}, 0, {M[t]}\n"
    for i in range(96): t_ += f"v_mov_b32 v{i}, 0\n"
    for i in range(12): t_ += f"v_accvgpr_write_b32 a{240+i}, 0\n"
    t_ += "s_mov_b32 s6, s4\nL_slow2:\n"
    for u in range(2):
        for s in range(4): t_ += f"buffer_load_dwordx4 {FR(0, s)}, {vKo}, {srdK}, s6 offen offset:{64*s}\n"
        t_ += "s_waitcnt vmcnt(0)\n"
        for t in range(3):
            for s in range(4): t_ += f"v_mfma_f32_16x16x32_bf16 {Sx[t]}, {FR(0, s)}, {QV(s, t)}, {CN[t] if s == 0 else Sx[t]}\n"
        t_ += "s_nop 9\n"
        for i in range(12): t_ += f"v_exp_f32 v{S0+i}, v{S0+i}\n"
        t_ += "s_nop 0\n"
        for t in range(3):
            for j in range(2): t_ += f"v_cvt_pk_bf16_f32 {PBr(0, 0, t, 2*u + j)}, v{S0+4*t+2*j}, v{S0+4*t+2*j+1}\n"
        if u == 0: t_ += "s_mov_b32 s7, s6\ns_add_u32 s6, s6, 0x1000\n"
    f = FA0 + 16
    for dt in range(8):
        for j in range(8):
            t_ += f"buffer_load_ushort v{FA0 + j}, {vVo if j < 4 else vVo2}, {srdV}, s7 offen offset:{(j & 3)*256 + 32*dt}\n"
        t_ += "s_waitcnt vmcnt(0)\n"
        for j in range(4): t_ += f"v_lshl_or_b32 v{f + j}, v{FA0 + 2*j + 1}, 16, v{FA0 + 2*j}\n"
        t_ += "s_nop 1\n"
        for t in range(3): t_ += f"v_mfma_f32_16x16x32_bf16 {OA(dt, t)}, v[{f}:{f+3}], {PB(0, 0, t)}, {OA(dt, t)}\n"
    for t in range(3): t_ += f"v_mfma_f32_16x16x32_bf16 {LA(t)}, {ONES}, {PB(0, 0, t)}, {LA(t)}\n"
    t_ += "s_add_u32 s6, s6, 0x1000\ns_cmp_lt_u32 s6, s5\ns_cbranch_scc1 L_slow2\ns_nop 9\n"
    for t in range(3): t_ += f"v_accvgpr_read_b32 {vRL[t]}, a{240+4*t}\n"
    for t in range(3): t_ += f"v_rcp_f32 {vRL[t]}, {vRL[t]}\n"
    t_ += "s_nop 0\n"
    for o in placed: t_ += o.text + "\n"
    for o in pendW0: t_ += o.text + "\n"
    t_ += "s_branch L_join\n"
    return lin(t_)

def spin(lbl, back, reg, off_v, srd, soff, exp):
    return lin(f"""{lbl}:
s_mov_b32 s3, 0
{lbl}_l:
buffer_load_dword {reg}, {off_v}, {srd}, {soff}{' offen' if off_v != 'off' else ''} sc1
s_add_u32 s3, s3, 1
s_waitcnt vmcnt(0)
v_cmp_ne_u32 vcc, {exp}, {reg}
s_cmp_gt_u32 s3, 0x10000
s_cbranch_scc1 {back}
s_nop 2
s_cbranch_vccnz {lbl}_l
s_branch {back}""")

def glue3(left, dbg, G):
    o = lin("s_nop 7")
    o += [V(x.text, rd=list(x.rd), wr=list(x.wr)) for x in left]
    o += lin(f"""
v_mbcnt_lo_u32_b32 {vA}, -1, 0
v_mbcnt_hi_u32_b32 {vA}, -1, {vA}
v_lshlrev_b32 {vSt}, 4, {vA}
v_and_b32 {vPo}, 7, {vA}
v_lshlrev_b32 {vPo}, 2, {vPo}
v_lshrrev_b32 {vB}, 4, {vA}
v_bfe_u32 {vOut}, {vA}, 2, 2
v_and_b32 {vA}, 3, {vA}
v_lshl_add_u32 {vA}, {vOut}, 4, {vA}
v_lshlrev_b32 {vA}, 10, {vA}
v_lshl_add_u32 {vOut}, {vB}, 4, {vA}
v_mov_b32 {vFl}, {hex(OOB)}
s_lshl_b32 s6, {sG}, 2
s_cmp_eq_u32 {sWave}, 0
s_cselect_b32 s6, s6, {hex(OOB)}
v_writelane_b32 {vFl}, s6, 1
s_mov_b32 {sIt}, 0
s_mul_i32 s6, {sB}, {8*CHUNK}
s_mul_i32 s7, {sWave}, 49152
s_add_u32 {sStR}, s6, s7
s_lshl_b32 s7, {sG}, 10
s_add_u32 {sStR}, {sStR}, s7
s_mul_i32 s7, {sG}, 3
s_add_u32 s7, s7, {sWave}
s_lshl_b32 s4, s7, 13
s_add_u32 {sLdR}, s6, s4
s_lshl_b32 {sFlR}, {sB}, 11
s_add_u32 {sFlR}, {sFlR}, {hex(FLAG_BASE - 256)}
s_lshr_b32 s4, s7, 1
s_mul_i32 s5, s4, 11
s_lshr_b32 s5, s5, 5
s_mul_i32 s3, s5, 3
s_sub_u32 s4, s4, s3
s_lshl_b32 s4, s4, 6
s_lshl_b32 s5, s5, 2
s_add_u32 s4, s4, s5
s_mul_i32 s5, {sB}, 192
s_add_u32 s4, s4, s5
s_lshl_b32 s4, s4, 10
s_and_b32 s5, s7, 1
s_lshl_b32 s5, s5, 6
s_add_u32 s4, s4, s5
s_mov_b32 {sOutR}, s4
s_sub_u32 {sOc}, {sRot}, 256
s_and_b32 {sOc}, {sOc}, 0x3ff
s_cmp_eq_u32 {sWave}, 3
s_cselect_b32 {sLdR}, {hex(OOB)}, {sLdR}
s_cselect_b32 {sOutR}, {hex(OOB)}, {sOutR}
s_mov_b32 {sMask}, 0xffff0000
s_and_b32 {sTk}, {sB}, 3
s_add_u32 s4, {sTk}, 2
s_lshl_b32 s4, s4, 17
s_add_u32 s4, s4, {sH[0]}
s_and_b32 {sTh}, s4, 0x7ffff
s_lshl_b32 s4, {sWave}, 16
s_cmp_lt_u32 {sWave}, 2
s_cselect_b32 s4, s4, {hex(OOB)}
s_add_u32 {sTh}, {sTh}, s4
{"" if OPT["bst"] else f"v_lshlrev_b32 {vTo}, 6, {vSt}"}""")
    o += [WAIT(0, need_vm=[dbg])] + lin(f"""L_chkD:
v_readfirstlane_b32 s4, {vDWo}
s_nop 3
s_lshr_b32 s5, s4, 4
s_and_b32 s5, s5, 0x0f0f0f0f
s_and_b32 s7, s4, 0x0f0f0f0f
s_add_u32 s5, s5, s7
s_mul_i32 s5, s5, 0x01010101
s_lshr_b32 s5, s5, 24
s_cmp_lg_u32 s5, 8
s_cbranch_scc1 L_spinD
L_backD:
s_lshl_b32 s5, {sXcc}, 3
{"s_mov_b32 s5, 0" if OPT["forceslow"] else ""}
s_cmp_eq_u32 s4, s5
s_cselect_b32 {sSlM}, 1, 7
s_cselect_b32 {sLdMin}, 0, 1
s_cselect_b32 {sLd}, {sLdR}, {hex(OOB)}
s_cselect_b32 s4, 256, {hex(OOB)}
s_add_u32 {sLd2}, {sLd}, 0x1000
s_add_u32 s4, s4, {sFlR}
v_lshlrev_b32 {vA}, 6, {vPo}
v_lshlrev_b32 {vB}, 3, {vSt}""") + [Op(f"buffer_load_dword {vPr}, {vA}, {srdWS}, s4 offen sc1", "vm"), Op(f"buffer_load_dword {vPr}, {vB}, {srdWS}, {sLd} offen sc1", "vm")]
    o += lin("\n".join(scal_A()) + f"\ns_cmp_eq_u32 {sSlM}, 7\ns_cbranch_scc1 L_GS")
    return o

def pad_linear(ops):
    out = []
    for o in ops:
        need = 0
        for (p, n) in o.sdeps:
            if p in out: need = max(need, n - sum(x.w for x in out[out.index(p)+1:]))
        if need > 0:
            nop = Op(f"s_nop {need-1}", "x"); nop.w = need; out.append(nop)
        out.append(o)
    return out

def tail(G):
    X = (lambda: stamp()) if OPT["stamps"] == 3 else (lambda: [])
    def sums(set_, loads):
        o0, p0, s0_ = reduce_ops(set_)
        return [WAIT(0, need_vm=loads)] + pad_linear(o0 + p0 + [s0_])
    o = lin("\n".join(scal_B()) + "\ns_nop 1")
    stores = []
    for (cv, sa, st) in pack_store(1):
        o += cv + [sa, st]; stores.append(st)
    if True:
        o += X() + sums(1, G.LD[1]) + X()
        o += [WAIT(0, need_vm=stores)] + X() + lin("s_barrier") + sig_ops()
        o += lin("s_branch L_spinU@L\nL_backU@L:") + X()
        l7 = red_loads(0); o += l7
        o += lin(f"s_add_u32 {sOut}, {sOutR}, {sOc}")
        if OPT["stamps"] == 3: o += lin("s_waitcnt vmcnt(0)") + X()
        o += sums(0, l7) + X() + X()
    return o

def main():
    R2 = build_R2()
    placed = [o for o in R2.epi if o.gap is not None]; placed.sort(key=lambda o: o.pos)
    R1 = build_R1(R2.left)
    R1f = build_R1f()
    G = build_G()
    pro, zst = prologue(R1f)
    for j, t in enumerate(NEXT): TILE[f'G{j}'] += TILE[t]
    h, p3, p1, p2, nx, tl, p0, dbg = glue1(zst)
    g2 = lin(f"s_or_b64 {sBad}, {sBad}, vcc\ns_cbranch_scc1 L_slow\nL_join:\ns_add_u32 {sHead}, {sHead}, 1\ns_cmp_lt_u32 {sHead}, 4\ns_waitcnt lgkmcnt(0)")
    g3 = glue3(R2.left, dbg, G)
    g4 = lin(f"s_mov_b32 {sC[0]}, {sC[2]}\ns_add_u32 {sC[1]}, {sC[0]}, 128\ns_and_b32 {sC[1]}, {sC[1]}, 0x3ff\ns_add_u32 {sC[2]}, {sC[1]}, 128\ns_and_b32 {sC[2]}, {sC[2]}, 0x3ff\ns_cmp_lt_u32 {sIt}, 8\ns_waitcnt lgkmcnt(0)")
    T = tail(G)
    sA, sB_, sC_, sD_, sE = stamp(1 if OPT['stamps'] in (1, 3) else 0), stamp(), stamp(), stamp(), stamp(2)
    if OPT["bst"]:
        def dump():
            return lin(f"v_mbcnt_lo_u32_b32 {vA}, -1, 0\nv_mbcnt_hi_u32_b32 {vA}, -1, {vA}\nv_lshlrev_b32 {vA}, 2, {vA}") + [Op(f"buffer_store_dword {vLane}, {vA}, {srdWS}, s101 offen", "vm")] + lin("s_add_u32 s101, s101, 256\ns_nop 1")
        sA = lin(f"s_lshl_b32 s101, s2, 2\ns_add_u32 s101, s101, {sWave}\ns_lshl_b32 s101, s101, 12\ns_add_u32 s101, s101, {hex(DUMP_BASE)}")
        sC_ = dump(); sD_ = dump()
    tr = pro + sA
    for hd in range(4):
        tr += [R1f.out + p0 + nx, R1.out + h + p1 + nx, R1.out + h + p2 + nx, R1.out + h + p3][hd] + tl + sB_ + R2.out + g2 + sC_
    tr += [x for x in g3 if x.tag != "touch"]
    for it in range(4): tr += G.out + g4 + sD_
    tr += T
    resolve_waits(tr, TILE)
    errs = check(R1f.out + p0 + nx + tl + R2.out + g2 + R1.out + h + p3 + tl + R2.out + g2 + g3 + G.out + g4 + G.out + g4 + T, "main")
    for e in errs[:20]: print(e, file=sys.stderr)
    assert not errs
    for rg in (R1f, R1, R2, G): print(rg.name, "overfull:", rg.overlog, file=sys.stderr)
    out = [open(os.path.join(os.path.dirname(os.path.abspath(__file__)), "header.txt")).read().rstrip()]
    out.append("; @launch grid=(256,1,1) block=(256,1,1) lds=163840")
    out.append(f""".amdgcn_target "amdgcn-amd-amdhsa--gfx950"
.text
.globl {KN}
.p2align 8
.type {KN},@function
{KN}:""")
    def emit(ops, sc="", lb=""):
        for o in ops:
            if OPT["nobar"] and o.text == "s_barrier" and o.kind == "w": out.append("s_nop 0"); continue
            if OPT["nolg"] and o.kind == "w" and o.text.startswith("s_waitcnt") and "vmcnt" not in o.text: out.append("s_nop 0"); continue
            if OPT["nods"] and o.kind == "ds": continue
            if OPT["novalu"] and o.kind in ("v4", "v8") and o.gap is not None and ("exp" in o.text or "cvt" in o.text or "mul" in o.text or "perm" in o.text or "and" in o.text or "lshl" in o.text or "add_f32" in o.text): continue
            if OPT["nodma"] and o.text.endswith(" lds"): out.append("s_nop 0"); continue
            if OPT["nored"] and " sc1" in o.text and "dwordx4" in o.text: out.append("s_nop 0"); continue
            if getattr(o, "pre", None): out.append(o.pre)
            out.append(o.text.replace("@SC", sc).replace("@L", lb))
    emit(pro + sA + R1f.out + p0); out.append("L_loop:"); emit(R1.out + h + p3 + p1 + p2 + nx + tl + sB_ + R2.out + g2 + sC_)
    if OPT["stamps"] or OPT["bst"]: out.append(f"s_cmp_lt_u32 {sHead}, 4")
    out.append("s_cbranch_scc1 L_loop")
    out.append('L_g3:'); emit(g3)
    for sc, lb in ((NTST, ""), (" sc1", "S")):
        out.append(f"L_G{lb}:"); emit(G.out + g4 + sD_, sc, lb)
        if OPT["stamps"] or OPT["bst"]: out.append(f"s_cmp_lt_u32 {sIt}, 8")
        out.append(f"s_cbranch_scc1 L_G{lb}")
        emit(T + sE, sc, lb)
        if OPT["dbl"]:
            emit(lin(f"""s_waitcnt vmcnt(0)
s_memrealtime s[2:3]
s_waitcnt lgkmcnt(0)
s_sub_u32 s4, s2, s80
s_mov_b32 s5, s2
L_dbl{lb}:
s_sleep 4
s_memrealtime s[2:3]
s_waitcnt lgkmcnt(0)
s_sub_u32 s6, s2, s5
s_cmp_lt_u32 s6, s4
s_cbranch_scc1 L_dbl{lb}"""))
        out.append("s_endpgm")
        if not lb: out.append("L_codeend:")
        for nm in ("G0", "G1", "U"): emit(spin(f"L_spin{nm}{lb}", f"L_back{nm}{lb}", vPr, vPo, srdWS, sPoll, sExp))
    emit(lin(f"""L_spinD:
s_add_u32 {sHead}, {sHead}, 1
s_cmp_gt_u32 {sHead}, 0x10000
s_cbranch_scc1 L_backD
s_lshl_b32 {sTmp}, {sB}, 2
buffer_load_dword {vDWo}, off, {srdD}, {sTmp} sc1
s_waitcnt vmcnt(0)
s_branch L_chkD"""))
    emit(slow_path(placed, R2.pendW0))
    out.append(f"""s_endpgm
.section .rodata,"a"
.p2align 6
.amdhsa_kernel {KN}
  .amdhsa_next_free_vgpr 512
  .amdhsa_next_free_sgpr 102
  .amdhsa_accum_offset 256
  .amdhsa_group_segment_fixed_size 0
  .amdhsa_kernarg_size 64
  .amdhsa_user_sgpr_count 2
  .amdhsa_user_sgpr_kernarg_segment_ptr 1
  .amdhsa_system_sgpr_workgroup_id_x 1
.end_amdhsa_kernel""")
    print("\n".join(out))
main()
```

```python
import sys, os, struct, math
sys.path.insert(0, os.path.dirname(os.path.abspath(__file__)))
from sched import *
import ringplan

OPT = dict(stamps=0, nt=1, mapping=48, nodma=0, samekv=0, nored=0, ntw=0, ntx=0, bst=0, lrate=3, lburst=4, rsp=8, rk=2, i0=-170, dk=75, ksp=12, wsp=5, gst=4, gld=4, gsig=1, gpoll=108, gsum=8, gdma=36, glc=0, rot=1, gout=189, gdsp=4, lag=1, forceslow=0, ntst=0, pf=128, hrot=0, krot=1, osc=0, wb=0, dbl=0, nperm=1, bdw=2, bda=3, vlate=1, tch=0, gtch=1, kvlate=0, nobar=0, nolg=0, nods=0, novalu=0)
for a in sys.argv[1:]:
    k, v = a.split("="); assert k in OPT, k; OPT[k] = float(v) if "." in v else int(v)
Region.LDSRATE = OPT["lrate"]; Region.LDSBURST = OPT["lburst"]
KN = "standalone__mha_block_cached__near_ridge_kernel"

def OA(mt, t): return R("v", (mt*3 + t)*4, 4)
def OAr(mt, t, i): return f"v{(mt*3 + t)*4 + i}"
QV0, PV0, S0, FA0 = 96, 144, 192, 204
def QV(s, t): return R("v", QV0 + (s*3 + t)*4, 4)
def QVr(s, t, i): return f"v{QV0 + (s*3 + t)*4 + i}"
def PB(buf, sg, t): return R("v", PV0 + 24*buf + (sg*3 + t)*4, 4)
def PBr(buf, sg, t, i): return f"v{PV0 + 24*buf + (sg*3 + t)*4 + i}"
def OP(s, t): return R("v", PV0 + (s*3 + t)*4, 4)
def OPr(s, t, i): return f"v{PV0 + (s*3 + t)*4 + i}"
def FR(buf, f, half=None):
    b = FA0 + 16*buf + 4*f
    return R("v", b, 4) if half is None else R("v", b + 2*half, 2)
vK = ["v236", "v237", "v238", "v239"]
vVb, vWb, vT = "v240", "v241", ["v242", "v243"]
vDK, vDV, vDW, vDX, vC = "v244", "v245", "v246", "v247", "v248"
vRL = ["v249", "v250", "v251"]
vLane, vDWo, vA, vB = "v252", "v253", "v254", "v255"
def XA(s, t): return R("a", (s*3 + t)*4, 4)
ZB = {0: 144, 1: 192, 2: 0}
def ZA(h, s, t): return R("a", ZB[h] + (s*3 + t)*4, 4)
def LA(t): return R("a", 240 + 4*t, 4)
ONES = "a[252:255]"

srdK, srdV, srdW, srdX, srdWS, srdO, srdD = (f"s[{i}:{i+3}]" for i in (8, 12, 16, 20, 24, 28, 32))
sW1k, sXcc, sRot, sOc = "s36", "s37", "s38", "s39"
sC = ["s40", "s41", "s42"]
sDg = ["s43", "s44", "s45", "s46"]
sH = ["s76", "s77", "s78", "s79"]
sIdx = "s99"
sKoff, sVoff, sWcol = "s47", "s48", "s49"
sD = [None, "s50", "s51", "s52"]
sDY = [None, "s53", "s54", "s55"]
sT = ["s56", "s57", "s58", "s59"]
sW4k, sHead, sScale, sWave, sB, sG, sLo, sHi = (f"s{i}" for i in range(60, 68))
sBad = "s[84:85]"
sN = [f"s{i}" for i in range(86, 92)]
sTmp = "s100"
sIt, sStR, sSt, sSig, sSlM, sExp, sLdR, sLd, sLd2, sOutR, sOut, sFlR, sLdMin = (f"s{i}" for i in range(86, 99))
sPoll = sSig; sPo = "s99"; sTk, sTh, sTo = "s43", "s44", "s45"
sU = ["s4", "s5"]; sMask = "s6"
OOB = 0x40000000
FLAG_BASE = 0x3000000
STAMP_BASE = 0x3100000
DUMP_BASE = 0x4000000
WS_BYTES = 0x8000000 if OPT["bst"] else 0x3200000
CHUNK = 196608
ORD = [(0,0),(0,1),(0,2),(1,0),(0,3),(1,3),(1,1),(1,2)]
ORDG = [(j >> 2, j & 3) for j in range(8)]
NT = " nt" if OPT["nt"] else ""
NTW = " nt" if OPT["ntw"] else ""
NTX = " nt" if OPT["ntx"] else ""
def wq_lit(step): return ORD[step][1]*0x100000 + ORD[step][0]*128
def wo_lit(m): return (m & 3)*0x20000 + (m >> 2)*128

def S(text, rd=(), wr=(), **kw): return Op(text, "s", rd=rd, wr=wr, **kw)
def V(text, rd=(), wr=(), **kw): return Op(text, "v4", rd=rd, wr=wr, **kw)
def V8(text, rd=(), wr=(), **kw): return Op(text, "v8", rd=rd, wr=wr, **kw)
def WAIT(d, need_ds=(), need_vm=(), lg0=False, late=3, e=-1):
    o = Op("s_waitcnt ?", "w", e=e, d=d, late=late, deps=[(x, 1) for x in need_ds])
    o.need_ds, o.need_vm, o.lg0 = list(need_ds), list(need_vm), lg0
    return o
def lin(text):
    return [Op(l.strip(), "x") for l in text.strip().split("\n") if l.strip()]

class Ctx: pass
C = Ctx(); C.grp = 0

ringplan.setb(OPT["bdw"], OPT["bda"]); BDW, BDA = OPT["bdw"], OPT["bda"]
wI = {"W0": -125, "W1": -75, "W2": -40, "W3": 36 + BDW, "W4": 69, "W5": 117, "W6": 165, "W7": 213}
xI = {"Xa": -225, "Xb": -200, "Xc": -150}
ISS, SLOT, _c, NEED = ringplan.plan(OPT["i0"], OPT["dk"], wI, xI)
assert SLOT is not None
SPR = {}
for t in ISS:
    m = ISS[t] % 1200
    sp = OPT["ksp"] if t[0] in "KV" else OPT["wsp"]
    if 262 <= m < 288: ISS[t] += 290 - m; m = 290
    SPR[t] = min(sp, ((288 if m < 288 else 1200) - 7 - m)//3); assert SPR[t] >= 1
BASE = {}
for ch in "KVW":
    for i, b in enumerate(ringplan.bases([SLOT[f"{ch}{i}"] for i in range(8)])[1]): BASE[f"{ch}{i}"] = b
XB = min(SLOT["Xa"], SLOT["Xb"], SLOT["Xc"]); assert max(SLOT["Xa"], SLOT["Xb"], SLOT["Xc"]) - XB <= 3
NEXT = sorted([t for t in ISS if ISS[t] < 0 and t[0] in "WX"], key=lambda t: (t != "W0", ISS[t]))
print("plan:", ISS, SLOT, BASE, NEXT, file=sys.stderr)
TILE = {}
def lit(x): return hex(x & 0xffffffff)
def rebase(rg, typ, old, new, e, d, after=()):
    if old == new: return []
    regs_ = vK if typ == "K" else [vVb if typ == "V" else vWb]
    return [rg.F(V(f"v_add_u32 {r}, {lit((new - old)*16384)}, {r}", rd=[r], wr=[r], e=e, d=d, deps=[(a, 0) for a in after if a])) for r in regs_]
def wq_t0(dst, step):
    hf, dg = ORD[step]
    return [f"s_add_u32 {dst}, {sWcol}, {sDg[dg]}"] + ([f"s_add_u32 {dst}, {dst}, 128"] if hf else [])
def x_t0(dst, a, q):
    return [f"s_lshr_b32 {dst}, {sDg[q]}, 12"] + ([f"s_add_u32 {dst}, {dst}, {a*65536}"] if a else [])
def tile_src(spec):
    k = spec[0]
    if k == "W": return srdW, vDW, wq_t0(sT[0], spec[1]), sD, NTW
    if k == "C": return srdW, vDW, [f"s_add_u32 {sT[0]}, {sC[spec[1]]}, {sH[spec[2]]}"], sD, NTW
    if k == "N": return srdW, vDW, [f"s_mov_b32 {sT[0]}, {sN[spec[1]]}"], sD, NTW
    if k == "Y": return srdX, vDX, [f"s_mov_b32 {sT[0]}, {sN[spec[1]]}"], sDY, NTX
    if k == "X": return srdX, vDX, x_t0(sT[0], spec[1], spec[2]), sDY, NTX
def add_dmas(rg, items):
    ev = []
    for (name, spec, slot, e, sp, bar) in items:
        for i in range(4): ev.append((e + sp*i, e, i, name, spec, slot, bar))
    ev.sort(key=lambda x: (x[0], x[1]))
    prev = None; cur = None; wopen = None; ts = None; lastw = None; m0 = None
    for (t, e0, i, name, spec, slot, bar) in ev:
        deps = []
        if bar is not None: deps.append((bar, 0))
        if prev is not None: deps.append((prev, 1))
        if cur != slot:
            m0 = rg.F(Op(f"s_add_u32 m0, {sW4k}, {slot*16384}", "t", wr=["m0"], e=t - 6, deps=([(prev, 1)] if prev else []))); cur = slot
        deps.append((m0, 1))
        if spec[0] in "KV":
            so, vo, srd = (sKoff, vDK, srdK) if spec[0] == "K" else (sVoff, vDV, srdV)
            st = rg.inc.get(spec[0])
            if st is not None and i == 0: deps.append((st, 0))
            o = rg.F(Op(f"buffer_load_dwordx4 {vo}, {srd}, {so} offen offset:{i*1024}{NT} lds", "vm", rd=[vo, so, "m0"], e=t, d=t + 4, deps=deps))
            if i == 3:
                inc = rg.F(Op(f"s_add_u32 {so}, {so}, 0x4000", "t", rd=[so], wr=[so], deps=[(o, 1)], d=t + 12))
                if name[1] == "7":
                    inc = rg.F(Op(f"s_and_b32 {so}, {so}, 0x7ffff", "t", rd=[so], wr=[so], deps=[(inc, 0)], d=t + 14))
                    nr = "s10" if name[0] == "K" else "s14"
                    rg.F(S(f"s_cmp_eq_u32 {sHead}, 3", deps=[(o, 1)])); inc2 = rg.F(S(f"s_cselect_b32 {nr}, 0, {nr}", d=t + 20))
                rg.inc[spec[0]] = inc
        else:
            srd, vo, t0, dl, fl = tile_src(spec)
            if i == 0:
                assert wopen is None, "W-type tiles may not interleave"
                wopen = name
                tt = rg.F(Op(t0[0], "t", wr=[sT[0]], e=t - 12, deps=([(lastw, 1)] if lastw else [])))
                for x in t0[1:]: tt = rg.F(Op(x, "t", wr=[sT[0]], deps=[(tt, 0)]))
                ts = [tt]
                ts += [rg.F(Op(f"s_add_u32 {sT[j]}, {sT[0]}, {dl[j]}", "t", wr=[sT[j]], deps=[(ts[0], 0)])) for j in (1, 2, 3)]
            o = rg.F(Op(f"buffer_load_dwordx4 {vo}, {srd}, {sT[i]} offen offset:{i*1024}{fl} lds", "vm", rd=[vo, sT[i], "m0"], e=t, d=t + 4, deps=deps + [(ts[i], 0)]))
            if i == 3: wopen = None; lastw = o
        if i == 3: TILE.setdefault(name, []).append(o)
        if i == 0: rg.first_dma[name] = o
        prev = o
    rg.lastw = lastw
def head_dmas(rg, lo, hi):
    items = []
    for t in ISS:
        m = ISS[t] % 1200
        if not (lo <= m < hi): continue
        spec = (t[0],) if t[0] in "KV" else (("W", int(t[1])) if ISS[t] >= 0 else (("N" if t[0] == "W" else "Y"), NEXT.index(t)))
        cands = [g for g in rg.bars if g + lo <= m and any(SLOT[p] == SLOT[t] and NEED[p][1] % 1200 == g + lo for p in NEED)]
        bar = rg.bars[max(cands)] if cands else None
        items.append((t, spec, SLOT[t], m - lo, SPR[t], bar))
    add_dmas(rg, items)
def dma_linear(name, spec, slot):
    ops = lin(f"s_add_u32 m0, {sW4k}, {slot*16384}")
    if spec[0] in "KV":
        so, vo, srd = (sKoff, vDK, srdK) if spec[0] == "K" else (sVoff, vDV, srdV)
        d = [Op(f"buffer_load_dwordx4 {vo}, {srd}, {so} offen offset:{i*1024}{NT} lds", "vm") for i in range(4)]
        ops += lin("s_nop 0") + d + lin(f"s_add_u32 {so}, {so}, 0x4000")
    else:
        srd, vo, t0, dl, fl = tile_src(spec)
        d = [Op(f"buffer_load_dwordx4 {vo}, {srd}, {sT[i]} offen offset:{i*1024}{fl} lds", "vm") for i in range(4)]
        ops += lin("\n".join(t0) + "\n" + "\n".join(f"s_add_u32 {sT[i]}, {sT[0]}, {dl[i]}" for i in (1, 2, 3))) + d
    TILE.setdefault(name, []).append(d[-1])
    return ops
def reads_X(rg, addr, slots, dst, e, d, deps, step=1):
    ops = []
    for t in range(3):
        for s in range(4):
            r_, imm = addr(slots[t], s)
            ops.append(rg.F(Op(f"ds_read_b128 {dst(s, t)}, {r_} offset:{imm}", "ds", rd=[r_], wr=[dst(s, t)], e=e, d=d + len(ops)*step,
                               deps=list(deps) + ([(ops[-1], 0)] if ops else []))))
    return ops

def new_region(name):
    rg = Region(name); rg.nst = {"R1": 0, "R1f": 0, "R2": 6, "G": 0}[name]
    rg.tuse = {0: [], 1: []}; rg.bars = {}; rg.inc = {}; rg.first_dma = {}; rg.wq = bool(OPT["nperm"]) and name != "G"
    return rg

def xor_addr(rg, base, k, ti, e, d, after=()):
    if k == 0: return base, None
    deps = [(x, 0) for x in rg.tuse[ti]] + [(a, 0) for a in after]
    o = rg.F(V(f"v_xor_b32 {vT[ti]}, {k*32}, {base}", rd=[base], wr=[vT[ti]], e=e, d=d, deps=deps))
    rg.tuse[ti] = []
    return vT[ti], o
def reads_W(rg, so, mt, buf, e, deps=(), ups=(), rsp=None):
    if rg.wq:
        if mt == 2: a, xo = xor_addr(rg, vWb, 2, 0, e - 8, e, ups)
        else: a, xo = (vWb if mt < 2 else vT[0]), None
        so += 8*(mt & 1)
    else: a, xo = xor_addr(rg, vWb, mt, mt & 1, e - 8, e, ups)
    dp = list(deps) + ([(xo, 1)] if xo else [(u, 1) for u in ups])
    ops = []
    for s in range(4):
        for p in range(2):
            ops.append(rg.F(Op(f"ds_read_b64_tr_b16 {FR(buf, s, p)}, {a} offset:{so + s*4096 + p*2048}", "ds", rd=[a], wr=[FR(buf, s, p)],
                               e=e, d=min(e + 1 + len(ops)*(rsp or OPT['rsp'])//8, e + 9), deps=dp + ([(ops[-1], 0)] if ops else []))))
    if rg.wq:
        if mt >= 2: rg.tuse[0] = ops
    elif xo: rg.tuse[mt & 1] = ops
    rg.lastWr = ops
    return ops, xo
def reads_K(rg, so, u, buf, e, deps=(), ups=()):
    ops = []
    for s in range(4):
        ops.append(rg.F(Op(f"ds_read_b128 {FR(buf, s)}, {vK[s]} offset:{so + u*1024}", "ds", rd=[vK[s]], wr=[FR(buf, s)],
                           e=e, d=e + 3 + len(ops)*OPT['rk'], deps=list(deps) + [(x, 1) for x in ups] + ([(ops[-1], 0)] if ops else []))))
    return ops
def reads_V(rg, so, dp_, buf, e, deps=(), ups=(), late=0):
    ops = []; xs = []
    for k in range(2):
        dt = 2*dp_ + k
        a, xo = xor_addr(rg, vVb, dt, k, e - 10, e + 4*k, ups)
        if xo: xs.append(xo)
        dd = list(deps) + ([(xo, 1)] if xo else [(u, 1) for u in ups])
        mine = []
        for sg in range(2):
            for p in range(2):
                o = rg.F(Op(f"ds_read_b64_tr_b16 {FR(buf, 2*k + sg, p)}, {a} offset:{so + sg*2048 + p*1024}", "ds", rd=[a], wr=[FR(buf, 2*k + sg, p)],
                            e=e, d=(e + 2 + len(ops)*OPT['rsp']//8) if not late else (e + 3 + 2*len(ops) if k == 0 else e + 5 + (len(ops)*5)//4), deps=dd + ([(ops[-1], 0)] if ops else [])))
                ops.append(o); mine.append(o)
        if xo: rg.tuse[k] = mine
    return ops, xs

def barrier(rg, gap, last_reads, tiles, extra=(), lg0=True, st=True):
    w = rg.F(WAIT(gap - 1, need_ds=last_reads, need_vm=list(tiles) + list(extra), lg0=lg0, late=1))
    w.deps += [(x, 1) for x in extra if x in rg.fill]
    b = rg.F(Op("s_barrier", "w", e=gap, d=gap, deps=[(w, 1)])); rg.bars[gap] = b
    if OPT["bst"] and st:
        w.pre = "s_memtime s[2:3]"
        i = rg.nst; rg.nst += 1
        rg.F(V(f"v_writelane_b32 {vLane}, s2, {i}", e=gap + 1, d=gap + 8))
    return b
def xstamp(rg, gap, idx, dep):
    if OPT["bst"] < 2: return
    w = rg.F(Op("s_memtime s[2:3]\ns_waitcnt lgkmcnt(0)", "w", e=gap, d=gap, deps=[(dep, 1)]))
    rg.F(V(f"v_writelane_b32 {vLane}, s2, {idx}", deps=[(w, 0)], d=gap))
def frag_waits(rg, rd_ops, first_use, n_first, second_use, only_first=False):
    if rd_ops is None: return
    rg.F(WAIT(first_use - 1, need_ds=rd_ops[:n_first], late=2))
    if n_first < len(rd_ops) and not only_first: rg.F(WAIT(second_use - 1, need_ds=rd_ops, late=1))

def so_(sb): return (sb[0] - sb[1])*16384
def w_step(rg, half, zero, Bop, pend, cur, nxt, need, extra=(), more_reads=(), xwait=None, post=None):
    b0 = rg.n(); info = dict(b0=b0); xlast = None
    if xwait:
        for t in range(3): rg.F(WAIT(b0 + 4*t - 1, need_ds=xwait[:4*t + 4], late=1))
        info["xbar"] = barrier(rg, b0 + 10, xwait, (), lg0=False, st=False)
    for mt in range(4):
        buf = C.grp & 1; C.grp += 1
        g0 = b0 + 12*mt
        if pend is not None and (mt < 3 or BDW): frag_waits(rg, pend, g0, 4, g0 + 2, only_first=(mt == 3))
        for t in range(3):
            for s in range(4):
                acc = OA(4*half + mt, t)
                rg.M(mfma(acc, FR(buf, s), Bop(s, t), "0" if (zero and s == 0) else acc))
        if mt < 3:
            pend, xo = reads_W(rg, so_(cur[1:3]), mt + 1, buf ^ 1, g0 - 1 if (mt or b0) else g0)
            if xo: xlast = xo
            if mt == 0 and rg.wq: base_users = pend
            if mt == 2: bar = barrier(rg, g0 + 11 + BDW, pend + list(more_reads), need, extra)
        else:
            ups = rebase(rg, nxt[0], nxt[3], nxt[2], b0 + 20, g0 - 2, after=([xlast] + (base_users if rg.wq else [])) if nxt[0] == "W" else [])
            if nxt[0] == "W": pend, _ = reads_W(rg, so_(nxt[1:3]), 0, buf ^ 1, g0 - 1 + BDW, deps=[(bar, 0)], ups=ups, rsp=(4 if post else None))
            else: pend = reads_K(rg, so_(nxt[1:3]), 0, buf ^ 1, g0 - 1 + BDW, deps=[(bar, 0)], ups=ups)
            if post: info["post"] = post(g0, bar)
    info["bar"] = bar; info["end"] = rg.n() - 1
    return pend, info
def TS(name, prev=None):
    k, i = name[0], int(name[1])
    return (k, SLOT[name], BASE[name], BASE[f"{k}{(i - 1) % 8}"])

def softmax(rg, g0, u, Sr, pbuf, d_over, d_puse):
    sg = u >> 1
    for t in range(3):
        last = rg.mf[g0 + 4*t + 3]
        dl = min(d_over(t), d_puse(t) - 3)
        ex = [rg.F(V8(f"v_exp_f32 {Sr(t,i)}, {Sr(t,i)}", rd=[Sr(t,i)], wr=[Sr(t,i)], e=last.gap, sdeps=[(last, 8)], trans=True)) for i in range(4)]
        for j in range(2):
            dst = PBr(pbuf, sg, t, 2*(u & 1) + j)
            rg.F(V(f"v_cvt_pk_bf16_f32 {dst}, {Sr(t,2*j)}, {Sr(t,2*j+1)}", rd=[Sr(t,2*j), Sr(t,2*j+1)], wr=[dst], d=dl,
                   sdeps=[(ex[2*j], 1), (ex[2*j+1], 1)]))
def k_mfmas(rg, buf, Sd):
    for t in range(3):
        for s in range(4):
            rg.M(mfma(Sd(t), FR(buf, s), QV(s, t), "0" if s == 0 else Sd(t)))
def v_mfmas(rg, dp_, buf, pbuf, zero, tmajor=False):
    order = [(k, t) for t in range(3) for k in range(2)] if tmajor else [(k, t) for k in range(2) for t in range(3)]
    last = {}
    for k, t in order:
        for sg in range(2):
            acc = OA(2*dp_ + k, t)
            last[(2*dp_ + k, t)] = rg.M(mfma(acc, FR(buf, 2*k + sg), PB(pbuf, sg, t), "0" if (zero and sg == 0) else acc))
    return last
def sum_mfmas(rg, t, pbuf, zero):
    for sg in range(2):
        o = rg.M(mfma(LA(t), ONES, PB(pbuf, sg, t), "0" if (zero and sg == 0) else LA(t)))
    return o
def o_epilogue_ops(dt, t):
    mul = [V(f"v_mul_f32 {OAr(dt,t,i)}, {vRL[t]}, {OAr(dt,t,i)}", rd=[OAr(dt,t,i), vRL[t]], wr=[OAr(dt,t,i)]) for i in range(4)]
    cvt = []
    for j in range(2):
        dst = OPr(dt >> 1, t, 2*(dt & 1) + j)
        cvt.append(V(f"v_cvt_pk_bf16_f32 {dst}, {OAr(dt,t,2*j)}, {OAr(dt,t,2*j+1)}", rd=[OAr(dt,t,2*j), OAr(dt,t,2*j+1)], wr=[dst],
                     deps=[(mul[2*j], 0), (mul[2*j+1], 0)]))
    for o in mul + cvt: o.ot = (dt, t)
    return mul, cvt
def q_muls(rg, mt, t, last, **kw):
    return [rg.F(V(f"v_mul_f32 {OAr(mt,t,i)}, {sScale}, {OAr(mt,t,i)}", rd=[OAr(mt,t,i)], wr=[OAr(mt,t,i)],
                   e=(last.gap if last is not None else -1), sdeps=([(last, 8)] if last is not None else []), **kw)) for i in range(4)]
def q_epilogue(rg, sp, t, lastA, lastB, d_use, muls=True):
    cv = []
    for k, last in ((0, lastA), (1, lastB)):
        mt = 2*sp + k
        mul = q_muls(rg, mt, t, last) if muls else None
        for j in range(2):
            dst = QVr(sp, t, 2*k + j)
            cv.append(rg.F(V(f"v_cvt_pk_bf16_f32 {dst}, {OAr(mt,t,2*j)}, {OAr(mt,t,2*j+1)}", rd=[OAr(mt,t,2*j), OAr(mt,t,2*j+1)], wr=[dst],
                             deps=([(mul[2*j], 0), (mul[2*j+1], 0)] if muls else []))))
    if OPT["nperm"]:
        for o in cv: o.d = d_use - 3
        return
    for j in range(2):
        a, b = QVr(sp, t, j), QVr(sp, t, 2 + j)
        p1 = rg.F(V8(f"v_permlane32_swap_b32 {a}, {b}", rd=[a, b], wr=[a, b], sdeps=[(cv[j], 2), (cv[2+j], 2)]))
        rg.F(V8(f"v_permlane16_swap_b32 {a}, {b}", rd=[a, b], wr=[a, b], sdeps=[(p1, 2)], d=d_use - 3))

def BopQ(st):
    dg = ORD[st][1]
    return (lambda s, t: XA(4*dg + s, t)) if dg < 3 else (lambda s, t: QV(s, t))

def build_R2():
    rg = new_region("R2")
    C.grp = 24
    pend, i6 = w_step(rg, ORD[6][0], False, BopQ(6), None, TS("W6"), TS("W7"), ["W7"])
    pend, i7 = w_step(rg, ORD[7][0], False, BopQ(7), pend, TS("W7"), TS("K0"), ["K0"])
    a0 = rg.n(); b7 = i7["b0"]
    for sp in (0, 1):
        for t in range(3): q_epilogue(rg, sp, t, None, None, min(a0 + 4*t + sp, 30 + (sp*3 + t)*8), muls=False)
    for sp in (2, 3):
        for t in range(3):
            mA, mB = 2*sp - 4, 2*sp - 3
            q_epilogue(rg, sp, t, rg.mf[b7 + 12*mA + 4*t + 3], rg.mf[b7 + 12*mB + 4*t + 3], a0 + 4*t + sp)
    B = lambda i: a0 + 48 + 102*i
    GK = [0, 26, 52, 78]; GV = [12, 38, 64, 90]
    def puse(i, sg, t): return (B(i) + 12 + 2*t + sg) if i < 7 else (B(7) + 4*t + sg)
    def so(n): return so_(TS(n)[1:3])
    def rb(n, e, d, after=()): x = TS(n); return rebase(rg, x[0], x[3], x[2], e, d, after)
    for u in range(4):
        buf = C.grp & 1; C.grp += 1; g0 = rg.n()
        if u < 3 or BDW: frag_waits(rg, pend, g0, 2, g0 + 2, only_first=(u == 3))
        k_mfmas(rg, buf, lambda t: OA(u, t))
        softmax(rg, g0, u, lambda t, i: OAr(u, t, i), 0, lambda t: 10**9, lambda t: puse(0, u >> 1, t))
        if u < 3:
            pend = reads_K(rg, so("K0"), u + 1, buf ^ 1, g0 - 1)
            if u == 2: bar = barrier(rg, g0 + 11 + BDW, pend, ["K1", "V0"]); lastK = pend
        else:
            ups = rb("K1", g0 - 12, g0 - 2, lastK)
            pend = reads_K(rg, so("K1"), 0, buf ^ 1, g0 - 1 + BDW, deps=[(bar, 0)], ups=ups)
            upsV = rb("V0", -1, g0)
    for i in range(7):
        b0 = rg.n(); assert b0 == B(i)
        for u in range(4):
            buf = C.grp & 1; C.grp += 1; g0 = rg.n(); assert g0 == b0 + GK[u]
            frag_waits(rg, pend, g0, 2, g0 + 2)
            k_mfmas(rg, buf, lambda t: R("v", S0 + 4*t, 4))
            nxtK = (b0 + GK[u+1]) if u < 3 else (B(i+1) if i < 6 else None)
            softmax(rg, g0, u, lambda t, j: f"v{S0 + 4*t + j}", (i + 1) & 1,
                    (lambda t: nxtK + 4*t - 1) if nxtK else (lambda t: 10**9), lambda t: puse(i + 1, u >> 1, t))
            pend, xs = reads_V(rg, so(f"V{i}"), u, buf ^ 1, g0 - 1, ups=(upsV if u == 0 else ()), late=(OPT["vlate"] if u < 3 else 0))
            if u == 3: bar = barrier(rg, g0 + 11 + BDA, pend, [f"K{i+2}", f"V{i+1}"] if i < 6 else ["V7"]); lastX = xs
            buf = C.grp & 1; C.grp += 1; g0 = rg.n(); assert g0 == b0 + GV[u]
            if u < 3 or BDA: frag_waits(rg, pend, g0, 4, g0 + 6, only_first=(u == 3))
            v_mfmas(rg, u, buf, i & 1, i == 0)
            if u < 3:
                sum_mfmas(rg, u, i & 1, i == 0)
                pend = reads_K(rg, so(f"K{i+1}"), u + 1, buf ^ 1, g0 - 1)
                if u == 2: lastK = pend
            elif i < 6:
                ups = rb(f"K{i+2}", g0 - 20, g0 - 2, lastK)
                pend = reads_K(rg, so(f"K{i+2}"), 0, buf ^ 1, g0 - 1 + BDA, deps=[(bar, 0)], ups=ups)
                upsV = rb(f"V{i+1}", g0 - 10, g0 + 4, lastX)
            else:
                upsV = rb("V7", g0 - 10, g0 - 2, lastX)
                pend, _ = reads_V(rg, so("V7"), 0, buf ^ 1, g0 - 1 + BDA, late=0, deps=[(bar, 0)], ups=upsV)
    E = rg.n(); assert E == B(7)
    epi = []
    for p in range(4):
        buf = C.grp & 1; C.grp += 1; g0 = rg.n()
        if p == 0: frag_waits(rg, pend, g0, 4, g0 + 2)
        elif p < 3 or BDW: frag_waits(rg, pend, g0, 4, g0 + 6, only_first=(p == 3))
        last = v_mfmas(rg, p, buf, 1, False, tmajor=(p == 0))
        if p == 0:
            rl = []; lr = []
            for t in range(3):
                ls = sum_mfmas(rg, t, 1, False)
                lr.append(rg.F(V(f"v_accvgpr_read_b32 {vRL[t]}, a{240+4*t}", rd=[f"a{240+4*t}"], wr=[vRL[t]], e=ls.gap, sdeps=[(ls, 8)], d=E + 28)))
            mn = rg.F(V(f"v_min3_f32 {vA}, {vRL[0]}, {vRL[1]}, {vRL[2]}", rd=vRL, wr=[vA], deps=[(x, 0) for x in lr], d=E + 30))
            mx = rg.F(V(f"v_max3_f32 {vB}, {vRL[0]}, {vRL[1]}, {vRL[2]}", rd=vRL, wr=[vB], deps=[(x, 0) for x in lr], d=E + 30))
            rg.F(V(f"v_cmp_gt_f32 {sBad}, {sLo}, {vA}", rd=[vA], wr=[sBad], deps=[(mn, 0)], d=E + 40))
            rg.F(V(f"v_cmp_lt_f32 vcc, {sHi}, {vB}", rd=[vB], wr=["vcc"], deps=[(mx, 0)], d=E + 40))
            for t in range(3):
                rl.append(rg.F(V8(f"v_rcp_f32 {vRL[t]}, {vRL[t]}", rd=[vRL[t]], wr=[vRL[t]], deps=[(mn, 0), (mx, 0)], trans=True, d=E + 34)))
        for (dt, t), lm in last.items():
            mul, cvt = o_epilogue_ops(dt, t)
            for o in mul: o.e = lm.gap; o.sdeps = [(lm, 8), (rl[t], 1)]
            for o in mul + cvt:
                o.optional = True
                if dt >= 4 and o in cvt: o.e = 10**9
                rg.F(o); epi.append(o)
        if p < 3:
            pend, xs = reads_V(rg, so("V7"), p + 1, buf ^ 1, g0 - 1 if p != 0 else g0 + 3)
            if p == 2: bar = barrier(rg, g0 + 11 + BDW, pend, ["W0", "Xa", "Xb", "Xc"])
        else:
            ups = rb("W0", -1, g0 - 2, [])
            for o in ups: o.e = a0
            if OPT["nperm"]: ups = ups + [rg.F(V(f"v_add_u32 {vWb}, {vC}, {vWb}", rd=[vC, vWb], wr=[vWb], e=a0, d=g0 - 4))]
            pend, _ = reads_W(rg, so("W0"), 0, buf ^ 1, g0 - 1 + BDW, deps=[(bar, 0)], ups=ups, rsp=8)
    assert sorted(g + 288 for g in rg.bars) == ringplan.bS[6:] + [ringplan.bQ] + ringplan.bB + [ringplan.bP]
    head_dmas(rg, 288, 1200)
    rg.pendW0 = pend; rg.epi = epi
    rg.schedule()
    return rg

def half0_muls(rg, b4):
    for mt in range(4):
        for t in range(3): q_muls(rg, mt, t, rg.mf[b4 + 12*mt + 4*t + 3])

def build_R1(left):
    rg = new_region("R1")
    C.grp = 0
    xa = [rg.F(V(f"v_add_u32 v{S0+s}, {sW1k}, {vK[s]}", rd=[vK[s]], wr=[f"v{S0+s}"], d=6)) for s in range(4)]
    xr = reads_X(rg, lambda sl, s: (f"v{S0+s}", (sl - XB)*16384), [SLOT["Xa"], SLOT["Xb"], SLOT["Xc"]], QV, 4, 9, [(a, 1) for a in xa], step=2)
    pend = None; infos = []
    for st in range(6):
        pend, inf = w_step(rg, ORD[st][0], st in (0, 3), BopQ(st), pend, TS(f"W{st}"), TS(f"W{st+1}"), [f"W{st+1}"], more_reads=(xr if st == 0 else ()))
        infos.append(inf)
    new = {}
    for o in left:
        dt, t = o.ot
        n = V(o.text, rd=list(o.rd), wr=list(o.wr)); n.ot = o.ot; new[id(o)] = n
        n.deps = [(new[id(p)], g) for (p, g) in o.deps if id(p) in new]
        n.e = 8 if dt >= 6 else -1
        n.d = ((12*dt + 4*t) if dt < 4 else (144 + 12*(dt - 4) + 4*t)) - 1
        rg.F(n)
    half0_muls(rg, infos[4]["b0"])
    head_dmas(rg, 0, 288)
    rg.schedule()
    return rg

def build_R1f():
    X = lambda q: [f"x{q}{a}" for a in range(3)]
    final = [t for t in ISS if ISS[t] < 288 and t[0] in "KV"] + ["W6", "W7"]
    assert set(final) == {"K0", "K1", "V0", "K2", "V1", "K3", "W6", "W7"}, final
    init = X(0) + ["w0"] + X(1) + ["w1", "K0", "K1"]
    inh = list(zip(X(2), X(0))) + [("w2", "w0")] + list(zip(["w3", "x30", "x31"], X(1))) + [("x32", "w1")] + \
          list(zip(["w4", "V0", "w5"], X(2))) + [("K2", "w2"), ("W6", "w3")] + list(zip(["V1", "W7", "K3"], X(3)))
    sl = {t: SLOT[t] for t in final}
    for new, old in reversed(inh):
        if new in sl: sl[old] = sl[new]
    free = [x for x in range(10) if x not in {sl[t] for t in init if t in sl}]
    for t in init:
        if t not in sl: sl[t] = free.pop()
    for new, old in inh: sl[new] = sl[old]
    def spec(t):
        if t[0] == "x": return ("X", int(t[2]), int(t[1]))
        if t[0] in "wW": return ("W", int(t[1]))
        return (t[0],)
    wsl = [sl[f"w{j}"] for j in range(6)] + [SLOT["W6"]]
    wb = [min(x, 6) for x in wsl[:6]] + [BASE["W6"]]
    rg = new_region("R1f")
    C.grp = 0
    xaddr = lambda s_, s: (f"v{S0 + 4*(s_ >> 2) + s}", (s_ & 3)*16384)
    dst = {0: (1, lambda s, t: XA(4 + s, t)), 1: (2, lambda s, t: XA(8 + s, t)), 3: (3, QV)}
    pend = None; infos = []; xw = None
    for st in range(6):
        post = None; need = [f"w{st+1}" if st < 5 else "W6"]
        if st in dst:
            q, fn = dst[st]; need += X(q)
            post = (lambda q, fn: lambda g0, bar: reads_X(rg, xaddr, [sl[t] for t in X(q)], fn, g0 + 2 + BDW, g0 + 5 + BDW, [(bar, 0)]))(q, fn)
        pend, inf = w_step(rg, ORD[st][0], st in (0, 3), BopQ(st), pend, ("W", wsl[st], wb[st]), ("W", wsl[st+1], wb[st+1], wb[st]), need, xwait=xw, post=post)
        xw = inf.get("post"); infos.append(inf)
    rel = {"w%d" % j: infos[j]["bar"] for j in range(6)}
    for q, st in ((1, 1), (2, 2), (3, 4)):
        for t in X(q): rel[t] = infos[st]["xbar"]
    items = []; tcur = 0
    for t in ["x20", "x21", "x22", "K0", "K1"]:
        items.append((t, spec(t), sl[t], tcur, 1, None)); tcur += 5
    for new, old in inh[3:]:
        tcur = max(tcur, rel[old].e)
        items.append((new, spec(new), sl[new], tcur, 2, rel[old])); tcur += 9
    add_dmas(rg, items)
    half0_muls(rg, infos[4]["b0"])
    rg.schedule()
    rg.init = [(t, spec(t), sl[t]) for t in init[:8]]; rg.wb0 = wb[0]; rg.wso0 = (wsl[0] - wb[0])*16384
    rg.x0 = [xaddr(sl[t], 0) for t in X(0)]; rg.xsl0 = [sl[t] for t in X(0)]; rg.xaddr = xaddr
    return rg

RLD = [[R("v", QV0 + 4*g, 4) for g in range(8)],
       [R("v", QV0 + 32 + 4*g, 4) for g in range(4)] + [R("v", S0 + 4*g, 4) for g in range(3)] + ["v[236:239]"]]
vTo = vLane if not OPT['bst'] else 'v235'
vSt, vFl, vPo, vPr, vOut = vDK, vDV, vVb, vDX, vC
LAG = OPT['lag']; OSC = ['', ' sc1', ' nt', ' sc0 sc1'][OPT['osc']]
NTST = ' nt' if OPT['ntst'] else ''
LO = ["v249", "v250", "v251", "v253"]
def pack_store(chunk):
    res = []
    for t in range(3):
        for np_ in range(2):
            a, b = 4*chunk + 2*np_, 4*chunk + 2*np_ + 1
            src = [(OAr(a,t,0), OAr(a,t,1)), (OAr(a,t,2), OAr(a,t,3)), (OAr(b,t,0), OAr(b,t,1)), (OAr(b,t,2), OAr(b,t,3))]
            cv = []
            for j in range(4):
                cv.append(V(f"v_cvt_pk_bf16_f32 {OAr(a,t,j)}, {src[j][0]}, {src[j][1]}", rd=list(src[j]), wr=[OAr(a,t,j)], deps=([(cv[-1], 0)] if cv else [])))
            k = 2*t + np_
            sa = S(f"s_add_u32 {sU[k & 1]}, {sSt}, {k*8192}", wr=[sU[k & 1]])
            st = Op(f"buffer_store_dwordx4 {OA(a,t)}, {vSt}, {srdWS}, {sU[k & 1]} offen@SC", "vm", rd=[OA(a,t), vSt], deps=[(cv[-1], 1), (sa, 0)])
            res.append((cv, sa, st))
    return res
def reduce_ops(set_):
    X = [regs(r_) for r_ in RLD[set_]]
    tmp = [vA, vB]; ops = []; n = 0
    for k in range(4):
        ops += [V(f"v_lshlrev_b32 {LO[k]}, 16, {X[0][k]}", rd=[X[0][k]], wr=[LO[k]]),
                V(f"v_and_b32 {X[0][k]}, {sMask}, {X[0][k]}", rd=[X[0][k]], wr=[X[0][k]])]
        for g in range(1, 8):
            tm = tmp[n & 1]; n += 1
            ops += [V(f"v_lshlrev_b32 {tm}, 16, {X[g][k]}", rd=[X[g][k]], wr=[tm]),
                    V(f"v_and_b32 {X[g][k]}, {sMask}, {X[g][k]}", rd=[X[g][k]], wr=[X[g][k]]),
                    V(f"v_add_f32 {LO[k]}, {LO[k]}, {tm}", rd=[LO[k], tm], wr=[LO[k]]),
                    V(f"v_add_f32 {X[0][k]}, {X[0][k]}, {X[g][k]}", rd=[X[0][k], X[g][k]], wr=[X[0][k]])]
        ops.append(V(f"v_cvt_pk_bf16_f32 {X[0][k]}, {LO[k]}, {X[0][k]}", rd=[LO[k], X[0][k]], wr=[X[0][k]]))
    for a, b in zip(ops, ops[1:]): b.deps.append((a, 0))
    pl = []
    for j in range(2):
        pl.append(V8(f"v_permlane32_swap_b32 {X[0][j]}, {X[0][2+j]}", rd=[X[0][j], X[0][2+j]], wr=[X[0][j], X[0][2+j]], sdeps=[(ops[-1], 2)]))
    for j in range(2):
        pl.append(V8(f"v_permlane16_swap_b32 {X[0][j]}, {X[0][2+j]}", rd=[X[0][j], X[0][2+j]], wr=[X[0][j], X[0][2+j]], sdeps=[(pl[j], 2)]))
    st = Op(f"buffer_store_dwordx4 {RLD[set_][0]}, {vOut}, {srdO}, {sOut} offen{OSC}", "vm", rd=[RLD[set_][0], vOut, sOut], deps=[(pl[2], 1), (pl[3], 1)])
    return ops, pl, st
def red_loads(set_):
    return [Op(f"buffer_load_dwordx4 {RLD[set_][g]}, {vSt}, {srdWS}, {sLd if g < 4 else sLd2} offen offset:{(g & 3)*1024} sc1", "vm",
               rd=[vSt], wr=[RLD[set_][g]]) for g in range(8)]
def sig_ops():
    return [Op(f"buffer_store_dword {vSt}, {vFl}, {srdWS}, {sSig} offen@SC", "vm", rd=[vSt, vFl])]
def scal_A():
    return [f"s_sub_u32 {sTmp}, {sIt}, 1", f"s_and_b32 {sTmp}, {sTmp}, {sSlM}", f"s_mul_i32 {sTmp}, {sTmp}, {CHUNK}",
            f"s_add_u32 {sSt}, {sStR}, {sTmp}", f"s_add_u32 {sLd}, {sLdR}, {sTmp}",
            f"s_cmp_ge_u32 {sIt}, 1", f"s_cselect_b32 {sSt}, {sSt}, {hex(OOB)}", f"s_cselect_b32 {sSig}, {sFlR}, {hex(OOB)}",
            f"s_cselect_b32 {sExp}, 16, 0", f"s_cselect_b32 {sPo}, {sFlR}, {hex(FLAG_BASE + 0x20000)}",
            f"s_cmp_ge_u32 {sIt}, {sLdMin}", f"s_cselect_b32 {sLd}, {sLd}, {hex(OOB)}", f"s_add_u32 {sLd2}, {sLd}, 0x1000",
            f"s_add_u32 {sFlR}, {sFlR}, 256"]
def scal_B():
    return [f"s_add_u32 {sOut}, {sOutR}, {sOc}", f"s_cmp_ge_u32 {sIt}, 2", f"s_cselect_b32 {sOut}, {sOut}, {hex(OOB)}",
            f"s_add_u32 {sOc}, {sOc}, 128", f"s_and_b32 {sOc}, {sOc}, 0x3ff", f"s_add_u32 {sIt}, {sIt}, 1"]

def build_G():
    rg = new_region("G")
    used = [SLOT[t] for t in NEXT]
    gs = used + [SLOT["K0"]] + [x for x in range(10) if x not in used and x not in (SLOT["K0"], SLOT["K1"], SLOT["V0"])][:1]
    assert len(gs) == 8
    gb = ringplan.bases(gs)[1]; assert gb[0] == BASE["W0"]
    rg.gs = gs; items = []; bars = {}; rg.st_last = {}; rg.sB_last = {}
    C.grp = 0
    def Bop(h): return (lambda s, t: ZA(h, s, t)) if h < 3 else (lambda s, t: OP(s, t))
    LD = [red_loads(0), red_loads(1)]
    pend = None; prev_users = []
    for hf in range(2):
        h0 = 192*hf
        stores = []
        for (cv, sa, st) in pack_store(1 - hf):
            for o in cv: o.e = h0 + 8; rg.F(o)
            if len(stores) >= 2: sa.deps.append((stores[-2], 1))
            rg.F(sa); st.e = h0 + 10 + OPT['gst']*len(stores); st.d = st.e + 3; rg.F(st); stores.append(st)
        sc = [rg.F(S(x, e=h0, deps=[(u, 1) for u in prev_users])) for x in scal_B()]
        rg.sB_last[hf] = sc[-1]
        cur = hf ^ 1
        w0 = rg.F(WAIT(h0 + OPT['gsum'], need_vm=LD[cur], late=1)); w0.e = h0 + OPT['gsum']
        o0, p0, s0_ = reduce_ops(cur)
        o0[0].deps.append((w0, 0))
        for o in o0 + p0 + [s0_]: rg.F(o)
        s0_.d = h0 + OPT['gout']; s0_.deps += [(sc[2], 0), (LD[hf][-1], 1)]
        infos = []
        for j in range(4):
            st = 4*hf + j
            n1 = (st + 1) & 7
            pend, inf = w_step(rg, hf, j == 0, Bop(j), pend, ("W", gs[st], gb[st]), ("W", gs[n1], gb[n1], gb[st]), [f"G{n1}"], extra=(stores if j == 1 else ()))
            infos.append(inf); bars[st] = inf["bar"]
        sig, = sig_ops(); bs = infos[1]["bar"]
        sig.deps = [(bs, 0)]; sig.d = bs.e + 1; rg.F(sig)
        po = rg.F(S(f"s_load_dwordx8 s[68:75], s[82:83], {sPo}{' glc' if OPT['glc'] else ''}", e=h0 + OPT['gpoll'], d=h0 + OPT['gpoll'] + 4))
        b2 = infos[2]["bar"]
        ck = [rg.F(S(x, deps=[(b2, 0)])) for x in ("s_and_b32 s68, s68, s69", "s_and_b32 s70, s70, s71", "s_and_b32 s72, s72, s73", "s_and_b32 s74, s74, s75",
              "s_and_b32 s68, s68, s70", "s_and_b32 s72, s72, s74", "s_and_b32 s68, s68, s72", f"s_and_b32 s68, s68, {sExp}", f"s_cmp_lg_u32 s68, {sExp}")]
        br = rg.F(Op(f"s_cbranch_scc1 L_spinG{hf}@L\nL_backG{hf}@L:", "s", d=b2.e + 12))
        prev = None
        for i, o in enumerate(LD[hf]):
            o.deps += [(br, 0)] + ([(prev, 1)] if prev else []); o.e = b2.e + 10 + OPT['gld']*i; o.d = o.e + 3; rg.F(o); prev = o
        if OPT["gtch"]:
            ca, cb = (sC[1], sC[2]) if hf == 0 else (sC[2], None)
            tk = [rg.F(S(f"s_cmp_lt_u32 {sTk}, 2", deps=[(LD[hf][-2], 0)]))]
            if hf == 0: tk.append(rg.F(S(f"s_cselect_b32 {sTmp}, {ca}, {cb}")))
            else: tk += [rg.F(S(f"s_cselect_b32 {sTmp}, 0, 128")), rg.F(S(f"s_add_u32 {sTmp}, {sTmp}, {ca}")), rg.F(S(f"s_and_b32 {sTmp}, {sTmp}, 0x3ff"))]
            tk.append(rg.F(S(f"s_add_u32 {sTo}, {sTmp}, {sTh}")))
            rg.F(Op(f"buffer_load_dword {vPr}, {vTo}, {srdW}, {sTo} offen", "vm", rd=[vTo], wr=[vPr], deps=[(tk[-1], 0), (LD[hf][-1], 1)], d=h0 + 184))
        prev_users = [s0_]
        for i, x in enumerate(scal_A()): rg.F(S(x, deps=[(LD[hf][-1], 1)] if i == 0 else []))
        for k in range(4):
            st = (4*hf - 2 + k) & 7
            items.append((f"G{st}", ("C", (1 + (st >> 2)) if (hf or k > 1) else 0, st & 3), gs[st], h0 + OPT["gdma"] + k*(4*OPT["gdsp"] + 1), OPT["gdsp"],
                          bars[st] if (hf or k > 1) else stores[-1]))
        rg.st_last[hf] = stores[-1]
    add_dmas(rg, items)
    c1 = S(f"s_cmp_ge_u32 {sIt}, 7", deps=[(TILE["G7"][-1], 1)]); c2 = S("s_cselect_b32 s18, 0, s18", wr=["s18"], rd=["s18"])
    pos = rg.fill.index(rg.sB_last[0]) + 1
    rg.fill[pos:pos] = [c1, c2]
    for i, o in enumerate(rg.fill): o.seq = i + 1
    rg.first_dma["G0"].deps.append((c2, 0))
    rg.first_dma["G6"].deps.append((rg.st_last[0], 1)); rg.first_dma["G2"].deps.append((rg.st_last[1], 1))
    rg.LD = LD
    rg.schedule()
    return rg

def stamp(kind=0):
    if not OPT["stamps"]: return []
    def put(x): return lin(f"v_mov_b32 {vA}, {x}") + [Op(f"buffer_store_dword {vA}, off, {srdWS}, s101", "vm")] + lin("s_add_u32 s101, s101, 4\ns_nop 1")
    if kind == 1: return put("s94") + put("s92") + stamp()
    if kind == 2: return lin("s_waitcnt vmcnt(0)") + stamp()
    return lin("s_memtime s[2:3]\ns_memrealtime s[4:5]\ns_waitcnt lgkmcnt(0)") + put("s2") + put("s4")

def code_pf(lbl, start, end, mask, r):
    if not OPT["pf"]: return []
    return lin(f"""s_getpc_b64 s[{r}:{r+1}]
{lbl}:
s_add_u32 s{r}, s{r}, {start}-{lbl}
s_addc_u32 s{r+1}, s{r+1}, {"-1" if start == KN else "0"}
s_mov_b32 s{r+2}, {end}-{start}
s_mov_b32 s{r+3}, 0x20000
s_lshl_b32 s5, {sIdx}, 2
s_add_u32 s5, s5, {sWave}
s_and_b32 s5, s5, {mask}
s_lshl_b32 s5, s5, 13
v_mbcnt_lo_u32_b32 {vA}, -1, 0
v_mbcnt_hi_u32_b32 {vA}, -1, {vA}
v_lshlrev_b32 {vA}, 7, {vA}""") + [Op(f"buffer_load_dword {vB}, {vA}, s[{r}:{r+3}], s5 offen", "vm")]

def prologue(F):
    init = F.init
    o = lin(f"""
s_cmp_lt_u32 s2, 256
s_cbranch_scc1 L_go
s_endpgm
L_go:
{"s_memrealtime s[92:93]" if (OPT["stamps"] or OPT["dbl"]) else ""}
{"s_memtime s[94:95]" if OPT["stamps"] else ""}
s_load_dwordx16 s[68:83], s[0:1], 0
v_lshrrev_b32 v1, 6, v0
v_and_b32 {vLane}, 63, v0
s_and_b32 s4, s2, 7
v_readfirstlane_b32 {sWave}, v1
s_lshr_b32 s5, s2, 3
s_mov_b32 {sIdx}, s5""")
    mp = {84: (1, 3, 2, 1, 2, 3), 48: (0, 2, 3, 0, 3, 7), 162: (2, 4, 1, 3, 1, 1)}[OPT["mapping"]]
    o += lin(f"""
s_lshr_b32 s6, s4, {mp[0]}
s_lshl_b32 s6, s6, {mp[1]}
s_lshr_b32 s7, s5, {mp[2]}
s_add_u32 {sB}, s6, s7
s_and_b32 s6, s4, {mp[3]}
s_lshl_b32 s6, s6, {mp[4]}
s_and_b32 s7, s5, {mp[5]}
s_add_u32 {sG}, s6, s7""")
    cbits = struct.unpack("<I", struct.pack("<f", math.log2(math.e)/math.sqrt(128)))[0]
    o += lin(f"""
s_lshl_b32 {sW4k}, {sWave}, 12
v_lshrrev_b32 v5, 4, {vLane}
v_and_b32 v6, 15, {vLane}
s_lshl_b32 s6, {sWave}, 4
v_add_u32 v1, s6, v5
s_lshl_b32 s6, {sWave}, 2
v_or_b32 v2, s6, v5
v_xor_b32 v2, v2, v6
v_lshlrev_b32 v2, 4, v2
v_lshl_add_u32 {vDX}, v1, 10, v2
v_lshl_add_u32 {vDK}, v1, 8, v2
v_lshrrev_b32 v7, 5, {vLane}
v_bfe_u32 v2, {vLane}, 3, 2
v_lshl_add_u32 v7, v7, 3, v2
s_lshl_b32 s6, {sWave}, 5
v_add_u32 v7, s6, v7
v_and_b32 v3, 7, {vLane}
v_lshlrev_b32 v4, 1, v5
v_xor_b32 v3, v3, v4
v_lshlrev_b32 v3, 4, v3
v_lshl_add_u32 {vDW}, v7, 13, v3
s_mov_b32 {sDY[1]}, 3072
s_mov_b32 {sDY[2]}, 6144
s_mov_b32 {sDY[3]}, 9216
s_mov_b32 {sD[1]}, {16*8192 - 1024}
s_mov_b32 {sD[2]}, {4*8192 - 2048}
s_mov_b32 {sD[3]}, {20*8192 - 3072}
s_lshr_b32 s4, {sB}, 2
s_and_b32 s5, s4, {3 if OPT["hrot"] else 0}
s_lshl_b32 {sWcol}, s5, 8
s_lshl_b32 {sKoff}, s5, 17
s_mov_b32 {sVoff}, {sKoff}
s_and_b32 s4, s4, {3 if OPT["krot"] else 0}
s_lshl_b32 {sDg[0]}, s4, 20
s_add_u32 {sDg[1]}, {sDg[0]}, 0x100000
s_and_b32 {sDg[1]}, {sDg[1]}, 0x3fffff
s_xor_b32 {sDg[2]}, {sDg[0]}, 0x200000
s_xor_b32 {sDg[3]}, {sDg[1]}, 0x200000
s_mul_i32 s7, {sB}, 196608
s_mov_b32 s22, 196608
s_mov_b32 s23, 0x20000
s_mov_b32 s19, 0x20000
s_lshl_b32 s4, {sG}, 10
s_sub_u32 s18, 0x400000, s4
s_waitcnt lgkmcnt(0)
s_add_u32 s20, s68, s7
s_addc_u32 s21, s69, 0
s_add_u32 s16, s74, s4
s_addc_u32 s17, s75, 0""")
    if OPT["tch"]:
        o += lin(f"""v_lshrrev_b32 v8, 1, {vLane}
v_and_b32 v9, 1, {vLane}
v_lshlrev_b32 v9, 7, v9
v_lshl_add_u32 v11, v8, 13, v9
v_lshl_add_u32 v8, v8, 10, v9
v_mov_b32 v10, {hex(OOB)}
v_cmp_gt_u32 vcc, 12, {vLane}
s_lshl_b32 s4, {sG}, 2
s_add_u32 s4, s4, {sWave}
s_mul_i32 s4, s4, 6144
v_cndmask_b32 v8, v10, v8, vcc
v_cmp_gt_u32 vcc, 16, {vLane}
s_and_b32 s5, {sB}, 3
s_lshl_b32 s5, s5, 2
s_add_u32 s5, s5, {sWave}
s_lshl_b32 s5, s5, 16
s_add_u32 s5, s5, {sWcol}
v_cndmask_b32 v11, v10, v11, vcc
v_add_u32 v8, s4, v8
v_add_u32 v11, s5, v11""")
        for q in range(OPT["tch"] - 1, 4):
            o += lin(f"s_lshr_b32 s3, {sDg[q]}, 12")
            o += [Op(f"buffer_load_dword {vB}, v8, {srdX}, s3 offen", "vm"), Op(f"buffer_load_dword {vB}, v11, {srdW}, {sDg[q]} offen", "vm")]
    for j in range(4): o += dma_linear(*init[j])
    o += code_pf("L_pc", KN, "L_G", OPT["pf"] - 1, 88)
    o += lin(f"""
v_lshrrev_b32 v7, 3, {vLane}
v_add_u32 v7, s6, v7
v_lshl_add_u32 {vDWo}, v7, 10, v3
s_and_b32 s6, {sWave}, 1
s_lshl_b32 s6, s6, 2
v_or_b32 v2, s6, v5
v_lshlrev_b32 v2, 1, v2
v_xor_b32 v2, v2, v6
v_lshlrev_b32 v1, 8, v1
v_lshl_add_u32 {vDV}, v2, 4, v1
s_mov_b32 s24, s82
s_mov_b32 s25, s83
s_mov_b32 s26, {hex(WS_BYTES)}
s_mov_b32 s27, 0x20000
v_lshrrev_b32 v1, 3, {vLane}
v_and_b32 v2, 7, {vLane}
v_lshlrev_b32 v1, 8, v1
v_lshl_add_u32 v8, v2, 2, v1
s_lshl_b32 s6, {sB}, 11
s_add_u32 s6, s6, {hex(FLAG_BASE)}
s_or_b32 s7, {sG}, {sWave}
s_cmp_eq_u32 s7, 0
s_cselect_b32 {sTmp}, s6, {hex(OOB)}
v_mov_b32 v9, 0""")
    zst = Op(f"buffer_store_dword v9, v8, {srdWS}, {sTmp} offen sc1", "vm"); o.append(zst)

    o += lin(f"""
s_mov_b32 {sScale}, {hex(cbits)}
s_mov_b32 {sLo}, 0x30800000
s_mov_b32 {sHi}, 0x4e800000
s_mov_b32 {sHead}, 0
s_lshl_b32 {sW1k}, {sWave}, 10
s_lshl_b32 s6, {sB}, 22
s_lshl_b32 s7, {sG}, 19
s_add_u32 s6, s6, s7
{"s_mov_b32 s6, 0" if OPT["samekv"] else ""}
s_add_u32 s8, s70, s6
s_addc_u32 s9, s71, 0
s_mov_b32 s10, 0x80000
s_mov_b32 s11, 0x20000
s_add_u32 s12, s72, s6
s_addc_u32 s13, s73, 0
s_mov_b32 s14, 0x80000
s_mov_b32 s15, 0x20000
s_mov_b32 s28, s78
s_mov_b32 s29, s79
s_mov_b32 s30, 0x600000
s_mov_b32 s31, 0x20000
s_mov_b32 s32, s80
s_mov_b32 s33, s81
s_mov_b32 s34, 0x100
s_mov_b32 s35, 0x20000
{"s_mov_b32 s80, s92" if OPT["dbl"] else ""}
v_lshrrev_b32 v1, 2, v6
v_and_b32 v2, 3, v6
v_lshl_add_u32 v3, v1, 4, v2
v_lshlrev_b32 v3, 8, v3""")
    for s in range(4):
        o += lin(f"v_add_u32 v4, {4*s}, v5\nv_xor_b32 v4, v4, v6\nv_lshl_add_u32 {vK[s]}, v4, 4, v3")
    o += lin(f"""
v_lshl_add_u32 v3, v5, 4, v1
v_lshlrev_b32 v3, 8, v3
v_and_b32 v4, 1, v5
v_lshl_add_u32 v7, v4, 2, v1
v_lshl_add_u32 v3, v7, 5, v3
v_lshl_add_u32 v3, v2, 3, v3
v_add_u32 {vVb}, {BASE["V7"]*16384}, v3
v_lshl_add_u32 v3, v5, 2, v1
v_lshlrev_b32 v3, 7, v3
v_lshrrev_b32 v7, 1, v1
v_lshl_add_u32 v7, v4, 1, v7
{"v_lshlrev_b32 v7, 1, v7" if OPT["nperm"] else "v_lshl_add_u32 v3, v7, 5, v3"}
{"v_xor_b32 v7, v7, v2" if OPT["nperm"] else ""}
{"v_lshl_add_u32 v7, v7, 4, v3" if OPT["nperm"] else "v_lshl_add_u32 v7, v2, 3, v3"}
v_add_u32 {vWb}, {F.wb0*16384}, v7
v_mov_b32 {vC}, 0
v_mov_b32 v3, 0x3f803f80
v_accvgpr_write_b32 a252, v3
v_accvgpr_write_b32 a253, v3
v_accvgpr_write_b32 a254, v3
v_accvgpr_write_b32 a255, v3
""")
    for s in range(4):
        o += lin(f"v_add_u32 v{S0+s}, {sW1k}, {vK[s]}\nv_add_u32 v{S0+4+s}, 0x10000, v{S0+s}\nv_add_u32 v{S0+8+s}, 0x20000, v{S0+s}\nv_add_u32 {vK[s]}, {BASE['K7']*16384}, {vK[s]}")
    o += lin(f"s_add_u32 {sW1k}, {sW1k}, {lit((XB - BASE['K7'])*16384)}")
    for j in range(4, 8): o += dma_linear(*init[j])
    if OPT["stamps"]:
        o += lin(f"s_lshl_b32 s101, s2, 10\ns_lshl_b32 s6, {sWave}, 8\ns_add_u32 s101, s101, s6\ns_add_u32 s101, s101, {hex(STAMP_BASE)}")
    if OPT["stamps"] == 2: o += stamp(1)
    o.append(WAIT(0, need_vm=[x[0] for x in init[:4]]))
    o += lin("s_barrier")
    if OPT["stamps"] == 2: o += stamp()
    for t in range(3):
        for s in range(4): o += lin("ds_read_b128 %s, %s offset:%d" % ((XA(s, t),) + F.xaddr(F.xsl0[t], s)))
    for s in range(4):
        for p in range(2): o += lin(f"ds_read_b64_tr_b16 {FR(0, s, p)}, {vWb} offset:{F.wso0 + s*4096 + p*2048}")
    o += lin("s_waitcnt lgkmcnt(0)\ns_barrier")
    return o, zst

def glue1(zst):
    def mv(h): return [V(f"v_accvgpr_write_b32 a{ZB[h] + i}, v{PV0 + i}", rd=[f"v{PV0+i}"], wr=[f"a{ZB[h]+i}"]) for i in range(48)]
    head = lin(f"s_cmp_eq_u32 {sHead}, 1\ns_cbranch_scc1 L_mv1\ns_cmp_eq_u32 {sHead}, 2\ns_cbranch_scc1 L_mv2")
    dbg = Op(f"buffer_load_dword {vDWo}, off, {srdD}, {sTmp} sc1", "vm")
    p3 = mv(2) + lin(f"""s_lshl_b32 s6, {sG}, 19
s_add_u32 s16, s76, s6
s_addc_u32 s17, s77, 0
s_mov_b32 s18, 0x80000
s_mov_b32 s20, s16
s_mov_b32 s21, s17
s_mov_b32 s22, 0x80000
s_lshl_b32 {sH[0]}, {sWcol}, 9
s_add_u32 {sH[0]}, {sH[0]}, 0x20000
s_and_b32 {sH[0]}, {sH[0]}, 0x7ffff
s_add_u32 {sH[1]}, {sH[0]}, 0x20000
s_and_b32 {sH[1]}, {sH[1]}, 0x7ffff
s_xor_b32 {sH[2]}, {sH[0]}, 0x40000
s_xor_b32 {sH[3]}, {sH[1]}, 0x40000
v_mbcnt_lo_u32_b32 {vA}, -1, 0
v_mbcnt_hi_u32_b32 {vA}, -1, {vA}
v_bfe_u32 {vB}, {vA}, 3, 2
v_and_b32 {vA}, 3, {vA}
v_lshlrev_b32 {vC}, 5, {vB}
v_lshl_add_u32 {vC}, {vA}, 3, {vC}
v_lshlrev_b32 {vB}, 1, {vB}
v_xor_b32 {vA}, {vA}, {vB}
v_lshlrev_b32 {vA}, 4, {vA}
v_sub_u32 {vC}, {vC}, {vA}
v_mov_b32 {vDW}, {vDWo}
v_mov_b32 {vDX}, {vDWo}
s_lshl_b32 {sTmp}, {sB}, 2""" + "".join(f"\ns_mov_b32 {sD[i]}, {7168*i}\ns_mov_b32 {sDY[i]}, {7168*i}" for i in (1, 2, 3))
      + f"""
s_lshr_b32 {sRot}, {sB}, 2
s_and_b32 {sRot}, {sRot}, {7 if OPT["rot"] else 0}
s_lshl_b32 {sRot}, {sRot}, 7"""
      + "".join(f"\ns_add_u32 {sC[i]}, {sRot}, {128*(i+1)}\ns_and_b32 {sC[i]}, {sC[i]}, 0x3ff" for i in range(3))
      + "".join(f"\ns_add_u32 {sN[m]}, {sRot if m < 4 else sC[0]}, {sH[m & 3]}" for m in range(6))) + [dbg] + code_pf("L_pc2", "L_g3", "L_codeend", 15, 72) + lin("s_branch L_mvd")
    p1 = lin("L_mv1:") + mv(0) + lin("s_branch L_mvn")
    p2 = lin("L_mv2:") + mv(1)
    nx = lin(f"L_mvn:\ns_add_u32 {sWcol}, {sWcol}, 256\ns_and_b32 {sWcol}, {sWcol}, 0x3ff" + "".join("\n" + "\n".join(wq_t0(sN[k], j)) for k, j in [(NEXT.index(t), int(t[1])) for t in NEXT if t[0] == "W"]))
    tail = lin("L_mvd:\ns_waitcnt lgkmcnt(0)")
    w = WAIT(0, need_vm=[zst])
    p0 = [w] + lin(f"""s_getreg_b32 {sXcc}, hwreg(HW_REG_XCC_ID, 0, 3)
s_lshl_b32 s6, {sB}, 2
s_cmp_eq_u32 {sWave}, 0
s_cselect_b32 s6, s6, {hex(OOB)}
s_lshl_b32 {sXcc}, {sXcc}, 2
s_lshl_b32 {sXcc}, 1, {sXcc}
v_mov_b32 {vB}, {hex(OOB)}
v_writelane_b32 {vB}, 0, 0
v_mov_b32 {vA}, {sXcc}""" + "".join("\n" + "\n".join(x_t0(sN[NEXT.index('X' + 'abc'[a])], a, 3)) for a in range(3))) + [Op(f"buffer_atomic_add {vA}, {vB}, {srdD}, s6 offen sc1", "vm")] + lin("s_branch L_mvn")
    return head, p3, p1, p2, nx, tail, p0, dbg

def slow_path(placed, pendW0):
    vKo, vVo, vVo2 = f"v{PV0+40}", f"v{PV0+41}", f"v{PV0+42}"
    M = [f"v{PV0+36+t}" for t in range(3)]
    CN = [R("v", PV0 + 24 + 4*t, 4) for t in range(3)]
    Sx = [R("v", S0 + 4*t, 4) for t in range(3)]
    t_ = f"""
L_slow:
s_waitcnt vmcnt(0) lgkmcnt(0)
s_nop 7
v_mbcnt_lo_u32_b32 {vB}, -1, 0
v_mbcnt_hi_u32_b32 {vB}, -1, {vB}
v_and_b32 {vA}, 15, {vB}
v_lshrrev_b32 {vB}, 4, {vB}
v_lshlrev_b32 {vKo}, 8, {vA}
v_lshl_add_u32 {vKo}, {vB}, 4, {vKo}
v_lshlrev_b32 {vVo}, 10, {vB}
v_lshl_add_u32 {vVo}, {vA}, 1, {vVo}
v_add_u32 {vVo2}, 0x1000, {vVo}
s_lshr_b32 s4, {sB}, 2
s_and_b32 s4, s4, {3 if OPT["hrot"] else 0}
s_add_u32 s4, s4, {sHead}
s_and_b32 s4, s4, 3
s_lshl_b32 s4, s4, 17
s_mov_b32 s10, 0x80000
s_mov_b32 s14, 0x80000
s_add_u32 s5, s4, 0x20000
s_mov_b32 s6, s4
"""
    for t in range(3): t_ += f"v_mov_b32 {M[t]}, 0xff800000\n"
    t_ += "L_slow1:\n"
    for s in range(4): t_ += f"buffer_load_dwordx4 {FR(0, s)}, {vKo}, {srdK}, s6 offen offset:{64*s}\n"
    t_ += "s_waitcnt vmcnt(0)\n"
    for t in range(3):
        for s in range(4): t_ += f"v_mfma_f32_16x16x32_bf16 {Sx[t]}, {FR(0, s)}, {QV(s, t)}, {'0' if s == 0 else Sx[t]}\n"
    t_ += "s_nop 9\n"
    for t in range(3):
        t_ += f"v_max3_f32 {M[t]}, {M[t]}, v{S0+4*t}, v{S0+4*t+1}\nv_max3_f32 {M[t]}, {M[t]}, v{S0+4*t+2}, v{S0+4*t+3}\n"
    t_ += "s_add_u32 s6, s6, 0x1000\ns_cmp_lt_u32 s6, s5\ns_cbranch_scc1 L_slow1\n"
    for t in range(3):
        t_ += f"""v_mov_b32 {vA}, {M[t]}
s_nop 1
v_permlane32_swap_b32 {vA}, {M[t]}
s_nop 1
v_max_f32 {M[t]}, {vA}, {M[t]}
v_mov_b32 {vA}, {M[t]}
s_nop 1
v_permlane16_swap_b32 {vA}, {M[t]}
s_nop 1
v_max_f32 {M[t]}, {vA}, {M[t]}
"""
        for i in range(4): t_ += f"v_sub_f32 v{PV0+24+4*t+i}, 0, {M[t]}\n"
    for i in range(96): t_ += f"v_mov_b32 v{i}, 0\n"
    for i in range(12): t_ += f"v_accvgpr_write_b32 a{240+i}, 0\n"
    t_ += "s_mov_b32 s6, s4\nL_slow2:\n"
    for u in range(2):
        for s in range(4): t_ += f"buffer_load_dwordx4 {FR(0, s)}, {vKo}, {srdK}, s6 offen offset:{64*s}\n"
        t_ += "s_waitcnt vmcnt(0)\n"
        for t in range(3):
            for s in range(4): t_ += f"v_mfma_f32_16x16x32_bf16 {Sx[t]}, {FR(0, s)}, {QV(s, t)}, {CN[t] if s == 0 else Sx[t]}\n"
        t_ += "s_nop 9\n"
        for i in range(12): t_ += f"v_exp_f32 v{S0+i}, v{S0+i}\n"
        t_ += "s_nop 0\n"
        for t in range(3):
            for j in range(2): t_ += f"v_cvt_pk_bf16_f32 {PBr(0, 0, t, 2*u + j)}, v{S0+4*t+2*j}, v{S0+4*t+2*j+1}\n"
        if u == 0: t_ += "s_mov_b32 s7, s6\ns_add_u32 s6, s6, 0x1000\n"
    f = FA0 + 16
    for dt in range(8):
        for j in range(8):
            t_ += f"buffer_load_ushort v{FA0 + j}, {vVo if j < 4 else vVo2}, {srdV}, s7 offen offset:{(j & 3)*256 + 32*dt}\n"
        t_ += "s_waitcnt vmcnt(0)\n"
        for j in range(4): t_ += f"v_lshl_or_b32 v{f + j}, v{FA0 + 2*j + 1}, 16, v{FA0 + 2*j}\n"
        t_ += "s_nop 1\n"
        for t in range(3): t_ += f"v_mfma_f32_16x16x32_bf16 {OA(dt, t)}, v[{f}:{f+3}], {PB(0, 0, t)}, {OA(dt, t)}\n"
    for t in range(3): t_ += f"v_mfma_f32_16x16x32_bf16 {LA(t)}, {ONES}, {PB(0, 0, t)}, {LA(t)}\n"
    t_ += "s_add_u32 s6, s6, 0x1000\ns_cmp_lt_u32 s6, s5\ns_cbranch_scc1 L_slow2\ns_nop 9\n"
    for t in range(3): t_ += f"v_accvgpr_read_b32 {vRL[t]}, a{240+4*t}\n"
    for t in range(3): t_ += f"v_rcp_f32 {vRL[t]}, {vRL[t]}\n"
    t_ += "s_nop 0\n"
    for o in placed: t_ += o.text + "\n"
    for o in pendW0: t_ += o.text + "\n"
    t_ += "s_branch L_join\n"
    return lin(t_)

def spin(lbl, back, reg, off_v, srd, soff, exp):
    return lin(f"""{lbl}:
s_mov_b32 s3, 0
{lbl}_l:
buffer_load_dword {reg}, {off_v}, {srd}, {soff}{' offen' if off_v != 'off' else ''} sc1
s_add_u32 s3, s3, 1
s_waitcnt vmcnt(0)
v_cmp_ne_u32 vcc, {exp}, {reg}
s_cmp_gt_u32 s3, 0x10000
s_cbranch_scc1 {back}
s_nop 2
s_cbranch_vccnz {lbl}_l
s_branch {back}""")

def glue3(left, dbg, G):
    o = lin("s_nop 7")
    o += [V(x.text, rd=list(x.rd), wr=list(x.wr)) for x in left]
    o += lin(f"""
v_mbcnt_lo_u32_b32 {vA}, -1, 0
v_mbcnt_hi_u32_b32 {vA}, -1, {vA}
v_lshlrev_b32 {vSt}, 4, {vA}
v_and_b32 {vPo}, 7, {vA}
v_lshlrev_b32 {vPo}, 2, {vPo}
v_lshrrev_b32 {vB}, 4, {vA}
v_bfe_u32 {vOut}, {vA}, 2, 2
v_and_b32 {vA}, 3, {vA}
v_lshl_add_u32 {vA}, {vOut}, 4, {vA}
v_lshlrev_b32 {vA}, 10, {vA}
v_lshl_add_u32 {vOut}, {vB}, 4, {vA}
v_mov_b32 {vFl}, {hex(OOB)}
s_lshl_b32 s6, {sG}, 2
s_cmp_eq_u32 {sWave}, 0
s_cselect_b32 s6, s6, {hex(OOB)}
v_writelane_b32 {vFl}, s6, 1
s_mov_b32 {sIt}, 0
s_mul_i32 s6, {sB}, {8*CHUNK}
s_mul_i32 s7, {sWave}, 49152
s_add_u32 {sStR}, s6, s7
s_lshl_b32 s7, {sG}, 10
s_add_u32 {sStR}, {sStR}, s7
s_mul_i32 s7, {sG}, 3
s_add_u32 s7, s7, {sWave}
s_lshl_b32 s4, s7, 13
s_add_u32 {sLdR}, s6, s4
s_lshl_b32 {sFlR}, {sB}, 11
s_add_u32 {sFlR}, {sFlR}, {hex(FLAG_BASE - 256)}
s_lshr_b32 s4, s7, 1
s_mul_i32 s5, s4, 11
s_lshr_b32 s5, s5, 5
s_mul_i32 s3, s5, 3
s_sub_u32 s4, s4, s3
s_lshl_b32 s4, s4, 6
s_lshl_b32 s5, s5, 2
s_add_u32 s4, s4, s5
s_mul_i32 s5, {sB}, 192
s_add_u32 s4, s4, s5
s_lshl_b32 s4, s4, 10
s_and_b32 s5, s7, 1
s_lshl_b32 s5, s5, 6
s_add_u32 s4, s4, s5
s_mov_b32 {sOutR}, s4
s_sub_u32 {sOc}, {sRot}, 256
s_and_b32 {sOc}, {sOc}, 0x3ff
s_cmp_eq_u32 {sWave}, 3
s_cselect_b32 {sLdR}, {hex(OOB)}, {sLdR}
s_cselect_b32 {sOutR}, {hex(OOB)}, {sOutR}
s_mov_b32 {sMask}, 0xffff0000
s_and_b32 {sTk}, {sB}, 3
s_add_u32 s4, {sTk}, 2
s_lshl_b32 s4, s4, 17
s_add_u32 s4, s4, {sH[0]}
s_and_b32 {sTh}, s4, 0x7ffff
s_lshl_b32 s4, {sWave}, 16
s_cmp_lt_u32 {sWave}, 2
s_cselect_b32 s4, s4, {hex(OOB)}
s_add_u32 {sTh}, {sTh}, s4
{"" if OPT["bst"] else f"v_lshlrev_b32 {vTo}, 6, {vSt}"}""")
    o += [WAIT(0, need_vm=[dbg])] + lin(f"""L_chkD:
v_readfirstlane_b32 s4, {vDWo}
s_nop 3
s_lshr_b32 s5, s4, 4
s_and_b32 s5, s5, 0x0f0f0f0f
s_and_b32 s7, s4, 0x0f0f0f0f
s_add_u32 s5, s5, s7
s_mul_i32 s5, s5, 0x01010101
s_lshr_b32 s5, s5, 24
s_cmp_lg_u32 s5, 8
s_cbranch_scc1 L_spinD
L_backD:
s_lshl_b32 s5, {sXcc}, 3
{"s_mov_b32 s5, 0" if OPT["forceslow"] else ""}
s_cmp_eq_u32 s4, s5
s_cselect_b32 {sSlM}, 1, 7
s_cselect_b32 {sLdMin}, 0, 1
s_cselect_b32 {sLd}, {sLdR}, {hex(OOB)}
s_cselect_b32 s4, 256, {hex(OOB)}
s_add_u32 {sLd2}, {sLd}, 0x1000
s_add_u32 s4, s4, {sFlR}
v_lshlrev_b32 {vA}, 6, {vPo}
v_lshlrev_b32 {vB}, 3, {vSt}""") + [Op(f"buffer_load_dword {vPr}, {vA}, {srdWS}, s4 offen sc1", "vm"), Op(f"buffer_load_dword {vPr}, {vB}, {srdWS}, {sLd} offen sc1", "vm")]
    o += lin("\n".join(scal_A()) + f"\ns_cmp_eq_u32 {sSlM}, 7\ns_cbranch_scc1 L_GS")
    return o

def pad_linear(ops):
    out = []
    for o in ops:
        need = 0
        for (p, n) in o.sdeps:
            if p in out: need = max(need, n - sum(x.w for x in out[out.index(p)+1:]))
        if need > 0:
            nop = Op(f"s_nop {need-1}", "x"); nop.w = need; out.append(nop)
        out.append(o)
    return out

def tail(G):
    X = (lambda: stamp()) if OPT["stamps"] == 3 else (lambda: [])
    def sums(set_, loads):
        o0, p0, s0_ = reduce_ops(set_)
        return [WAIT(0, need_vm=loads)] + pad_linear(o0 + p0 + [s0_])
    o = lin("\n".join(scal_B()) + "\ns_nop 1")
    stores = []
    if OPT["wb"] & 2: o += lin(f"s_cmp_lg_u32 {sG}, 0\ns_cbranch_scc1 L_nwa@L\ns_cmp_lg_u32 {sWave}, 3\ns_cbranch_scc1 L_nwa@L\nbuffer_wbl2 sc1\nL_nwa@L:")
    for (cv, sa, st) in pack_store(1):
        o += cv + [sa, st]; stores.append(st)
    if True:
        o += X() + sums(1, G.LD[1]) + X()
        o += [WAIT(0, need_vm=stores)] + X() + lin("s_barrier") + sig_ops()
        o += lin("s_branch L_spinU@L\nL_backU@L:") + X()
        l7 = red_loads(0); o += l7
        if OPT["wb"] & 1: o += lin(f"s_cmp_lg_u32 {sG}, {7 if OPT['wb'] & 4 else 0}\ns_cbranch_scc1 L_nwb@L\ns_cmp_lg_u32 {sWave}, 3\ns_cbranch_scc1 L_nwb@L\nbuffer_wbl2 sc1\nL_nwb@L:")
        o += lin(f"s_add_u32 {sOut}, {sOutR}, {sOc}")
        if OPT["stamps"] == 3: o += lin("s_waitcnt vmcnt(0)") + X()
        o += sums(0, l7) + X() + X()
    return o

def main():
    R2 = build_R2()
    placed = [o for o in R2.epi if o.gap is not None]; placed.sort(key=lambda o: o.pos)
    R1 = build_R1(R2.left)
    R1f = build_R1f()
    G = build_G()
    pro, zst = prologue(R1f)
    for j, t in enumerate(NEXT): TILE[f'G{j}'] += TILE[t]
    h, p3, p1, p2, nx, tl, p0, dbg = glue1(zst)
    g2 = lin(f"s_or_b64 {sBad}, {sBad}, vcc\ns_cbranch_scc1 L_slow\nL_join:\ns_add_u32 {sHead}, {sHead}, 1\ns_cmp_lt_u32 {sHead}, 4\ns_waitcnt lgkmcnt(0)")
    g3 = glue3(R2.left, dbg, G)
    g4 = lin(f"s_mov_b32 {sC[0]}, {sC[2]}\ns_add_u32 {sC[1]}, {sC[0]}, 128\ns_and_b32 {sC[1]}, {sC[1]}, 0x3ff\ns_add_u32 {sC[2]}, {sC[1]}, 128\ns_and_b32 {sC[2]}, {sC[2]}, 0x3ff\ns_cmp_lt_u32 {sIt}, 8\ns_waitcnt lgkmcnt(0)")
    T = tail(G)
    sA, sB_, sC_, sD_, sE = stamp(1 if OPT['stamps'] in (1, 3) else 0), stamp(), stamp(), stamp(), stamp(2)
    if OPT["bst"]:
        def dump():
            return lin(f"v_mbcnt_lo_u32_b32 {vA}, -1, 0\nv_mbcnt_hi_u32_b32 {vA}, -1, {vA}\nv_lshlrev_b32 {vA}, 2, {vA}") + [Op(f"buffer_store_dword {vLane}, {vA}, {srdWS}, s101 offen", "vm")] + lin("s_add_u32 s101, s101, 256\ns_nop 1")
        sA = lin(f"s_lshl_b32 s101, s2, 2\ns_add_u32 s101, s101, {sWave}\ns_lshl_b32 s101, s101, 12\ns_add_u32 s101, s101, {hex(DUMP_BASE)}")
        sC_ = dump(); sD_ = dump()
    tr = pro + sA
    for hd in range(4):
        tr += [R1f.out + p0 + nx, R1.out + h + p1 + nx, R1.out + h + p2 + nx, R1.out + h + p3][hd] + tl + sB_ + R2.out + g2 + sC_
    tr += [x for x in g3 if x.tag != "touch"]
    for it in range(4): tr += G.out + g4 + sD_
    tr += T
    resolve_waits(tr, TILE)
    errs = check(R1f.out + p0 + nx + tl + R2.out + g2 + R1.out + h + p3 + tl + R2.out + g2 + g3 + G.out + g4 + G.out + g4 + T, "main")
    for e in errs[:20]: print(e, file=sys.stderr)
    assert not errs
    for rg in (R1f, R1, R2, G): print(rg.name, "overfull:", rg.overlog, file=sys.stderr)
    out = [open(os.path.join(os.path.dirname(os.path.abspath(__file__)), "header.txt")).read().rstrip()]
    out.append("; @launch grid=(256,1,1) block=(256,1,1) lds=163840")
    out.append(f""".amdgcn_target "amdgcn-amd-amdhsa--gfx950"
.text
.globl {KN}
.p2align 8
.type {KN},@function
{KN}:""")
    def emit(ops, sc="", lb=""):
        for o in ops:
            if OPT["nobar"] and o.text == "s_barrier" and o.kind == "w": out.append("s_nop 0"); continue
            if OPT["nolg"] and o.kind == "w" and o.text.startswith("s_waitcnt") and "vmcnt" not in o.text: out.append("s_nop 0"); continue
            if OPT["nods"] and o.kind == "ds": continue
            if OPT["novalu"] and o.kind in ("v4", "v8") and o.gap is not None and ("exp" in o.text or "cvt" in o.text or "mul" in o.text or "perm" in o.text or "and" in o.text or "lshl" in o.text or "add_f32" in o.text): continue
            if OPT["nodma"] and o.text.endswith(" lds"): out.append("s_nop 0"); continue
            if OPT["nored"] and " sc1" in o.text and "dwordx4" in o.text: out.append("s_nop 0"); continue
            if getattr(o, "pre", None): out.append(o.pre)
            out.append(o.text.replace("@SC", sc).replace("@L", lb))
    def mark(n):
        return lin("s_memrealtime s[2:3]\ns_waitcnt lgkmcnt(0)\ns_sub_u32 s81, s2, s80") if OPT["dbl"] == n else []
    emit(pro + mark(3) + sA + R1f.out + mark(4) + p0); out.append("L_loop:"); emit(R1.out + h + p3 + p1 + p2 + nx + tl + sB_ + R2.out + g2 + sC_)
    if OPT["stamps"] or OPT["bst"]: out.append(f"s_cmp_lt_u32 {sHead}, 4")
    out.append("s_cbranch_scc1 L_loop")
    out.append('L_g3:'); emit(mark(5) + g3)
    for sc, lb in ((NTST, ""), (" sc1", "S")):
        out.append(f"L_G{lb}:"); emit(G.out + g4 + sD_, sc, lb)
        if OPT["stamps"] or OPT["bst"]: out.append(f"s_cmp_lt_u32 {sIt}, 8")
        out.append(f"s_cbranch_scc1 L_G{lb}")
        emit(T + sE, sc, lb)
        if OPT["dbl"]:
            emit(lin(f"""s_waitcnt vmcnt(0)
s_memrealtime s[2:3]
s_waitcnt lgkmcnt(0)
{"s_sub_u32 s4, s2, s80" if OPT["dbl"] == 1 else ("s_mov_b32 s4, 500" if OPT["dbl"] == 2 else "s_mul_i32 s4, s81, 4")}
s_mov_b32 s5, s2
L_dbl{lb}:
s_sleep 4
s_memrealtime s[2:3]
s_waitcnt lgkmcnt(0)
s_sub_u32 s6, s2, s5
s_cmp_lt_u32 s6, s4
s_cbranch_scc1 L_dbl{lb}"""))
        out.append("s_endpgm")
        if not lb: out.append("L_codeend:")
        for nm in ("G0", "G1", "U"): emit(spin(f"L_spin{nm}{lb}", f"L_back{nm}{lb}", vPr, vPo, srdWS, sPoll, sExp))
    emit(lin(f"""L_spinD:
s_add_u32 {sHead}, {sHead}, 1
s_cmp_gt_u32 {sHead}, 0x10000
s_cbranch_scc1 L_backD
s_lshl_b32 {sTmp}, {sB}, 2
buffer_load_dword {vDWo}, off, {srdD}, {sTmp} sc1
s_waitcnt vmcnt(0)
s_branch L_chkD"""))
    emit(slow_path(placed, R2.pendW0))
    out.append(f"""s_endpgm
.section .rodata,"a"
.p2align 6
.amdhsa_kernel {KN}
  .amdhsa_next_free_vgpr 512
  .amdhsa_next_free_sgpr 102
  .amdhsa_accum_offset 256
  .amdhsa_group_segment_fixed_size 0
  .amdhsa_kernarg_size 64
  .amdhsa_user_sgpr_count 2
  .amdhsa_user_sgpr_kernarg_segment_ptr 1
  .amdhsa_system_sgpr_workgroup_id_x 1
.end_amdhsa_kernel""")
    print("\n".join(out))
main()
```

```python
import re

def regs(spec):
    m = re.fullmatch(r"([vas])\[(\d+):(\d+)\]", spec)
    if m: return [f"{m.group(1)}{i}" for i in range(int(m.group(2)), int(m.group(3)) + 1)]
    return [spec]
def R(f, lo, n=1):
    return f"{f}{lo}" if n == 1 else f"{f}[{lo}:{lo+n-1}]"

class Op:
    def __init__(s, text, kind, rd=(), wr=(), e=-1, d=10**9, deps=(), tag=None, trans=False, late=False, cread=(), sdeps=(), optional=False):
        s.text, s.kind = text, kind
        s.rd = set(x for r in rd for x in regs(r)); s.wr = set(x for r in wr for x in regs(r))
        s.cread = set(x for r in cread for x in regs(r))
        s.e, s.d, s.deps, s.tag, s.trans, s.late = e, d, list(deps), tag, trans, late
        s.lc = 4 if 'b128' in text else 2; s.w = 1; s.sdeps = list(sdeps); s.optional = optional; s.pos = None
        s.gap = None; s.need_ds = []; s.need_vm = []; s.lg0 = False
    def __repr__(s): return f"<{s.text} e={s.e} d={s.d} gap={s.gap}>"

def mfma(D, A, B, C, tag=None):
    crd = [] if C == "0" else [C]
    return Op(f"v_mfma_f32_16x16x32_bf16 {D}, {A}, {B}, {C}", "mfma", rd=[A, B] + crd, wr=[D], tag=tag, cread=crd)

class Region:
    LDSRATE = 3; LDSBURST = 4
    def __init__(s, name):
        s.name = name; s.mf = []; s.fill = []; s.missed = []; s.overlog = []; s.vmsp = 4; s.ldspol = lambda k: (Region.LDSRATE, Region.LDSBURST)
    def M(s, op): s.mf.append(op); op.gap = len(s.mf) - 1; return op
    def n(s): return len(s.mf)
    def F(s, op): s.fill.append(op); op.seq = len(s.fill); return op
    def schedule(s, verbose=True):
        NG = len(s.mf)
        gaps = {k: {"s": [], "m": [], "v": []} for k in range(-1, NG)}
        cost = {"v4": 1, "ds": 1, "v8": 2, "vm": 2, "dsb": 2}
        vec = [o for o in s.fill if o.kind in cost]
        sca = [o for o in s.fill if o.kind not in cost]
        for o in s.fill:
            if not o.optional: o.d = min(o.d, NG - 1)
        changed = True
        while changed:
            changed = False
            for o in s.fill:
                if o.optional: continue
                for (p, g) in o.deps + [(p, n) for (p, n) in o.sdeps]:
                    if p.kind != "mfma" and p.gap is None and p.d > o.d - g: p.d = o.d - g; changed = True
        sal = [o for o in sca if o.kind == "s"]
        for a, b in zip(sal, sal[1:]): b.deps.append((a, 0))
        changed = True
        while changed:
            changed = False
            for o in s.fill:
                if o.optional: continue
                for (p, g) in o.deps + [(p, n) for (p, n) in o.sdeps]:
                    if p.kind != "mfma" and p.gap is None and p.d > o.d - g: p.d = o.d - g; changed = True
        pending = list(s.fill)
        lastb = -10; lastv = -10
        rk = {"s": 0, "w": 0, "t": 0, "ds": 1, "vm": 1, "dsb": 1, "v4": 2, "v8": 2}
        st = {"mpos": 0, "G": None, "scc": False}
        nxt_s = {id(a): b for a, b in zip(sal, sal[1:])}
        def sd_short(o, k):
            G = st["G"]; miss = 0
            isv = rk[o.kind] == 2
            for (p, n) in o.sdeps:
                if p.gap is None: return None
                if p.pos is not None:
                    here = st["mpos"] + 1 + ((sum(x.w for x in G["s"] + G["m"] + G["v"])) if isv else 0)
                    miss = max(miss, n - (here - p.pos - 1))
                else:
                    if not isv or rk[p.kind] != 2: return None
                    i = G["v"].index(p)
                    miss = max(miss, n - sum(x.w for x in G["v"][i+1:]))
            return max(miss, 0)
        def ready0(o, k):
            if o.e > k: return False
            for (p, g) in o.deps:
                if p.gap is None or p.gap + g > k: return False
                if p.gap == k and p.kind != "mfma" and rk[p.kind] > rk[o.kind]: return False
            return True
        over = 0; npos = 0; bucket = 0
        for k in range(-1, NG):
            G = gaps[k]; st["G"] = G
            if k >= 0: npos += 1; s.mf[k].pos = npos
            st["mpos"] = npos
            used = 0; lr, lb = s.ldspol(k); bucket = max(0, bucket - lr)
            while True:
                c0 = [o for o in pending if ready0(o, k)]
                cands = [o for o in c0 if sd_short(o, k) == 0]
                cands.sort(key=lambda o: (o.optional, o.d, o.seq))
                pick = None
                for o in cands:
                    forced = o.d <= k and not o.optional
                    if o.kind in ("s", "w", "t"):
                        if o.kind == "t" and st["scc"]: continue
                        if o.late and o.d - k > o.late - 1: continue
                        if (G["s"] or G["m"] or G["v"]) and not forced: continue
                        pick = o; break
                if pick is None:
                    vc = []
                    for o in cands:
                        if o.kind in ("s", "w", "t"): continue
                        forced = o.d <= k and not o.optional
                        c = cost[o.kind]
                        if not forced:
                            if o.kind == "dsb" and k - lastb < 2: continue
                            if o.kind == "vm" and k - lastv < s.vmsp: continue
                            if used + c > 2: continue
                            if o.kind == "ds" and bucket and bucket + o.lc > lb: continue
                            if k == -1 and s.mf: continue
                        vc.append(o)
                    if vc:
                        pick = vc[0]
                        if used == 0 and cost[pick.kind] == 1 and pick.d > k + 1:
                            ones = [o for o in vc if cost[o.kind] == 1]
                            twos = [o for o in vc if cost[o.kind] == 2]
                            chain = any(any(p is pick for (p, g) in o.deps if g == 0) or any(p is pick and n == 0 for (p, n) in o.sdeps) for o in pending)
                            if len(ones) < 2 and not chain and twos: pick = twos[0]
                if pick is None:
                    blk = [o for o in c0 if o.d <= k and not o.optional and sd_short(o, k)]
                    if blk:
                        n = min(sd_short(o, k) for o in blk)
                        nop = Op(f"s_nop {n-1}", "v4"); nop.w = n; nop.gap = k; nop.kind = "nop"
                        if rk[blk[0].kind] == 2: G["v"].append(nop)
                        else: raise Exception(f"cannot pad for {blk[0]}")
                        used += n; continue
                    break
                o = pick
                if o.kind in ("s", "w", "t"):
                    G["s"].append(o)
                    if o.kind == "s":
                        nx = nxt_s.get(id(o))
                        st["scc"] = nx is not None and nx.text.startswith(("s_cselect", "s_cbranch_scc", "s_addc"))
                else:
                    (G["m"] if rk[o.kind] == 1 else G["v"]).append(o)
                    used += cost[o.kind]
                    if o.kind == "dsb": lastb = k
                    if o.kind == "vm": lastv = k
                    if o.kind == "ds": bucket += o.lc
                o.gap = k; pending.remove(o)
            for o in G["s"] + G["m"] + G["v"]:
                o.pos = npos + 1; npos += o.w
            late_ = [o for o in pending if o.d <= k and not o.optional]
            if late_: s.missed += [(o, k) for o in late_ if o.d == k]
            ns = len(G["s"])
            extra = max(0, used - 2) + max(0, ns - 1 - max(0, 2 - used))
            if k == -1: extra = used + ns
            if extra: s.overlog.append((k, extra))
            over += extra
        s.left = [o for o in pending if o.optional]
        pending = [o for o in pending if not o.optional]
        assert not pending, f"unscheduled in {s.name}: {pending[:5]}"
        assert not s.missed, f"missed deadlines in {s.name}: {s.missed[:5]}"
        out = []
        for k in range(-1, NG):
            if k >= 0: out.append(s.mf[k])
            G = gaps[k]
            out += G["s"] + G["m"] + G["v"]
        if verbose: print(file=__import__("sys").stderr, *[f"; region {s.name}: mfma={NG} fillers={len(s.fill)} overfull_slots={over} est_cycles={NG*16+over*4}"])
        s.est = NG*16 + over*4
        s.out = out
        return out

def resolve_waits(trace, tiles):
    ds = []; nvm = 0; lastpos = {}
    for o in trace:
        if o.kind in ("ds", "dsb"): ds.append(o)
        elif o.kind == "vm":
            lastpos[id(o)] = nvm; nvm += 1
        elif o.kind == "w" and getattr(o, "alt_ds", None) is not None:
            best = None
            for alt in o.alt_ds:
                if alt[-1] in ds:
                    last = len(ds) - 1 - ds[::-1].index(alt[-1])
                    if best is None or last > best: best = last
            if best is not None:
                o.lgn = min(getattr(o, "lgn", 15), len(ds) - 1 - best)
            o.text = f"s_waitcnt lgkmcnt({getattr(o, 'lgn', 15)})"
        elif o.kind == "w" and (o.need_ds or o.need_vm or o.lg0):
            idx = -1
            for n in o.need_vm:
                if isinstance(n, str):
                    c = [lastpos[id(x)] for x in tiles[n] if id(x) in lastpos]
                    assert c, f"tile {n} not issued"
                    idx = max(idx, max(c))
                elif id(n) in lastpos: idx = max(idx, lastpos[id(n)])
            if idx >= 0: o.vmn = min(getattr(o, "vmn", 63), nvm - 1 - idx)
            parts = []
            if hasattr(o, "vmn"): parts.append(f"vmcnt({o.vmn})")
            if o.lg0: parts.append("lgkmcnt(0)")
            elif o.need_ds:
                last = max(len(ds) - 1 - ds[::-1].index(n) for n in o.need_ds)
                parts.append(f"lgkmcnt({min(len(ds) - 1 - last, 15)})")
            o.text = "s_waitcnt " + " ".join(parts) if parts else "s_nop 0"

def check(seq, name=""):
    errs = []
    pos = []; p = 0
    for o in seq:
        pos.append(p)
        m = re.match(r"s_nop (\d+)", o.text)
        p += int(m.group(1)) + 1 if m else 1
    lastw = {}
    lastC = {}
    pend_ds = []
    for i, o in enumerate(seq):
        if o.text.startswith("s_waitcnt"):
            m = re.search(r"lgkmcnt\((\d+)\)", o.text)
            if m:
                n = int(m.group(1))
                if n < len(pend_ds): pend_ds = pend_ds[len(pend_ds)-n:]
        touched = o.rd | o.wr
        for q in pend_ds:
            if q.wr & touched: errs.append(f"{name}: LDS result not waited: {q.text} -> {o.text}")
        isvalu = o.kind in ("v4", "v8")
        for r in o.rd | (o.wr if o.kind != "mfma" else set()):
            if r in lastw:
                j = lastw[r]; w = seq[j]; dist = pos[i] - pos[j] - 1
                need = 0
                if w.kind == "mfma":
                    if o.kind == "mfma":
                        if r in o.cread and o.cread == w.wr and not (r in (o.rd - o.cread)): need = 0
                        elif r in o.cread: need = 6
                        else: need = 8
                    else: need = 8
                elif w.kind in ("v4", "v8"):
                    if o.kind == "mfma" and r in o.rd: need = 2
                    elif "permlane" in o.text and r in o.rd: need = 2
                    elif w.trans and isvalu and not o.trans and r in o.rd: need = 1
                    elif "readfirstlane" in o.text or "readlane" in o.text: need = 1
                    if r.startswith("s") or r == "vcc":
                        if o.kind == "vm": need = 5
                        elif isvalu: need = 2
                elif w.kind in ("s", "t") and r == "m0" and o.kind == "vm": need = 1
                if dist < need: errs.append(f"{name}: hazard {r} need {need} got {dist}: [{w.text}] -> [{o.text}]")
        if o.kind == "mfma":
            for r in o.wr:
                if r in lastw and seq[lastw[r]].kind == "mfma" and r not in o.cread:
                    pass
        if isvalu:
            for r in o.wr:
                if r in lastC and pos[i] - pos[lastC[r]] - 1 < 3: errs.append(f"{name}: WAR srcC {r}: [{seq[lastC[r]].text}] -> [{o.text}]")
        if isvalu:
            for back in (1, 2):
                if i - back >= 0:
                    w = seq[i - back]
                    if w.kind == "vm" and "store" in w.text and (w.rd & o.wr) and pos[i] - pos[i-back] - 1 < 2:
                        errs.append(f"{name}: store WAR: [{w.text}] -> [{o.text}]")
        for r in o.wr: lastw[r] = i
        for r in o.cread: lastC[r] = i
        if o.kind in ("ds", "dsb"): pend_ds.append(o)
    return errs
```

```python
import sys, os, struct, math
sys.path.insert(0, os.path.dirname(os.path.abspath(__file__)))
from sched import *
import ringplan

OPT = dict(stamps=0, nt=1, mapping=48, nodma=0, samekv=0, nored=0, ntw=0, ntx=0, bst=0, lrate=3, lburst=4, rsp=8, rk=2, i0=-170, dk=75, ksp=4, wsp=5, gst=4, gld=4, gsig=1, gpoll=108, gsum=8, gdma=40, glc=0, rot=1, gout=189, gdsp=5, lag=1, forceslow=0, ntst=0, pf=128, hrot=0, krot=2, osc=0, idle0=0, idle1=0, exitat=0, wb=0, dbl=0, nperm=1, bdw=2, bda=3, vlate=1, tch=0, gtch=0, kvlate=0, tg=640, tlb=0, fsp=2, nobar=0, nolg=0, nods=0, novalu=0)
for a in sys.argv[1:]:
    k, v = a.split("="); assert k in OPT, k; OPT[k] = float(v) if "." in v else int(v)
Region.LDSRATE = OPT["lrate"]; Region.LDSBURST = OPT["lburst"]
KN = "standalone__mha_block_cached__near_ridge_kernel"

def OA(mt, t): return R("v", (mt*3 + t)*4, 4)
def OAr(mt, t, i): return f"v{(mt*3 + t)*4 + i}"
QV0, PV0, S0, FA0 = 96, 144, 192, 204
def QV(s, t): return R("v", QV0 + (s*3 + t)*4, 4)
def QVr(s, t, i): return f"v{QV0 + (s*3 + t)*4 + i}"
def PB(buf, sg, t): return R("v", PV0 + 24*buf + (sg*3 + t)*4, 4)
def PBr(buf, sg, t, i): return f"v{PV0 + 24*buf + (sg*3 + t)*4 + i}"
def OP(s, t): return R("v", PV0 + (s*3 + t)*4, 4)
def OPr(s, t, i): return f"v{PV0 + (s*3 + t)*4 + i}"
def FR(buf, f, half=None):
    b = FA0 + 16*buf + 4*f
    return R("v", b, 4) if half is None else R("v", b + 2*half, 2)
vK = ["v236", "v237", "v238", "v239"]
vVb, vWb, vT = "v240", "v241", ["v242", "v243"]
vDK, vDV, vDW, vDX, vC = "v244", "v245", "v246", "v247", "v248"
vRL = ["v249", "v250", "v251"]
vLane, vDWo, vA, vB = "v252", "v253", "v254", "v255"
def XA(s, t): return R("a", (s*3 + t)*4, 4)
ZB = {0: 144, 1: 192, 2: 0}
def ZA(h, s, t): return R("a", ZB[h] + (s*3 + t)*4, 4)
def LA(t): return R("a", 240 + 4*t, 4)
ONES = "a[252:255]"

srdK, srdV, srdW, srdX, srdWS, srdO, srdD = (f"s[{i}:{i+3}]" for i in (8, 12, 16, 20, 24, 28, 32))
sW1k, sXcc, sRot, sOc = "s36", "s37", "s38", "s39"
sC = ["s40", "s41", "s42"]
sDg = ["s43", "s44", "s45", "s46"]
sIdx = "s99"
sKoff, sVoff, sWcol = "s47", "s48", "s49"
sD = [None, "s50", "s51", "s52"]
sDY = [None, "s53", "s54", "s55"]
sT = ["s56", "s57", "s58", "s59"]
sW4k, sHead, sScale, sWave, sB, sG, sLo, sHi = (f"s{i}" for i in range(60, 68))
sBad = "s[84:85]"
sN = [f"s{i}" for i in range(86, 92)]
sTmp = "s100"
sIt, sSt, sSig, sExp, sLd, sLd2, sOut = (f"s{i}" for i in range(86, 93))
sStR, sLdR, sFlR, sOutR, sSlM, sLdMin, sGate = (f"s{i}" for i in range(68, 75))
sPoll = sSig; sPo = "s99"; sTk, sTh, sTo = "s43", "s44", "s45"
sU = ["s4", "s5"]; sMask = "s6"
OOB = 0x40000000
FLAG_BASE = 0x3040000
STAMP_BASE = 0x3100000
DUMP_BASE = 0x4000000
WS_BYTES = 0x8000000 if OPT["bst"] else 0x3200000
CHUNK = 196608
ORD = [(0,0),(0,1),(0,2),(1,0),(0,3),(1,3),(1,1),(1,2)]
ORDG = [(j >> 2, j & 3) for j in range(8)]
NT = " nt" if OPT["nt"] else ""
NTW = " nt" if OPT["ntw"] else ""
NTX = " nt" if OPT["ntx"] else ""
def wq_lit(step): return ORD[step][1]*0x100000 + ORD[step][0]*128
def wo_lit(m): return (m & 3)*0x20000 + (m >> 2)*128

def S(text, rd=(), wr=(), **kw): return Op(text, "s", rd=rd, wr=wr, **kw)
def V(text, rd=(), wr=(), **kw): return Op(text, "v4", rd=rd, wr=wr, **kw)
def V8(text, rd=(), wr=(), **kw): return Op(text, "v8", rd=rd, wr=wr, **kw)
def WAIT(d, need_ds=(), need_vm=(), lg0=False, late=3, e=-1):
    o = Op("s_waitcnt ?", "w", e=e, d=d, late=late, deps=[(x, 1) for x in need_ds])
    o.need_ds, o.need_vm, o.lg0 = list(need_ds), list(need_vm), lg0
    return o
def lin(text):
    return [Op(l.strip(), "x") for l in text.strip().split("\n") if l.strip()]

class Ctx: pass
C = Ctx(); C.grp = 0

ringplan.setb(OPT["bdw"], OPT["bda"]); BDW, BDA = OPT["bdw"], OPT["bda"]
wI = {"W0": -210, "W1": -135, "W2": -55, "W3": 36 + BDW, "W4": 78, "W5": 112, "W6": 162, "W7": 186}
xI = {"Xa": -430, "Xb": -350, "Xc": -280}
ISS, SLOT, _c, NEED = ringplan.plan(OPT["i0"], OPT["dk"], wI, xI)
assert SLOT is not None
SPR = {}
for t in ISS:
    m = ISS[t] % 1200
    sp = OPT["ksp"] if t[0] in "KV" else OPT["wsp"]
    if 228 <= m < 288: ISS[t] += 290 - m; m = 290
    SPR[t] = min(sp, ((240 if m < 288 else 1200) - 5 - m)//3); assert SPR[t] >= 1
BASE = {}
for ch in "KVW":
    for i, b in enumerate(ringplan.bases([SLOT[f"{ch}{i}"] for i in range(8)])[1]): BASE[f"{ch}{i}"] = b
XB = min(SLOT["Xa"], SLOT["Xb"], SLOT["Xc"]); assert max(SLOT["Xa"], SLOT["Xb"], SLOT["Xc"]) - XB <= 3
NEXT = sorted([t for t in ISS if ISS[t] < 0 and t[0] in "WX"], key=lambda t: (t != "W0", ISS[t]))
print("plan:", ISS, SLOT, BASE, NEXT, file=sys.stderr)
TILE = {}
def lit(x): return hex(x & 0xffffffff)
def rebase(rg, typ, old, new, e, d, after=()):
    if old == new: return []
    regs_ = vK if typ == "K" else [vVb if typ == "V" else vWb]
    return [rg.F(V(f"v_add_u32 {r}, {lit((new - old)*16384)}, {r}", rd=[r], wr=[r], e=e, d=d, deps=[(a, 0) for a in after if a])) for r in regs_]
def wq_t0(dst, step):
    hf, dg = ORD[step]
    return [f"s_add_u32 {dst}, {sWcol}, {sDg[dg]}"] + ([f"s_add_u32 {dst}, {dst}, 128"] if hf else [])
def x_t0(dst, a, q):
    return [f"s_lshr_b32 {dst}, {sDg[q]}, 12"] + ([f"s_add_u32 {dst}, {dst}, {a*65536}"] if a else [])
def tile_src(spec):
    k = spec[0]
    if k == "W": return srdW, vDW, wq_t0(sT[0], spec[1]), sD, NTW
    if k == "C": return srdW, vDW, [f"s_add_u32 {sT[0]}, {sC[spec[1]]}, {hex(spec[2]*0x20000)}"], sD, NTW
    if k == "N": return srdW, vDW, [f"s_mov_b32 {sT[0]}, {sN[spec[1]]}"], sD, NTW
    if k == "Y": return srdX, vDX, [f"s_mov_b32 {sT[0]}, {sN[spec[1]]}"], sDY, NTX
    if k == "X": return srdX, vDX, x_t0(sT[0], spec[1], spec[2]), sDY, NTX
def add_dmas(rg, items):
    ev = []
    for (name, spec, slot, e, sp, bar) in items:
        for i in range(4): ev.append((e + sp*i, e, i, name, spec, slot, bar))
    ev.sort(key=lambda x: (x[0], x[1]))
    prev = None; cur = None; wopen = None; ts = None; lastw = None; m0 = None
    for (t, e0, i, name, spec, slot, bar) in ev:
        deps = []
        if bar is not None: deps.append((bar, 0))
        if prev is not None: deps.append((prev, 1))
        if cur != slot:
            m0 = rg.F(Op(f"s_add_u32 m0, {sW4k}, {slot*16384}", "t", wr=["m0"], e=t - 6, deps=([(prev, 1)] if prev else []))); cur = slot
        deps.append((m0, 1))
        if spec[0] in "KV":
            so, vo, srd = (sKoff, vDK, srdK) if spec[0] == "K" else (sVoff, vDV, srdV)
            st = rg.inc.get(spec[0])
            if st is not None and i == 0: deps.append((st, 0))
            o = rg.F(Op(f"buffer_load_dwordx4 {vo}, {srd}, {so} offen offset:{i*1024}{NT} lds", "vm", rd=[vo, so, "m0"], e=t, d=t + 4, deps=deps))
            if i == 3:
                inc = rg.F(Op(f"s_add_u32 {so}, {so}, 0x4000", "t", rd=[so], wr=[so], deps=[(o, 1)], d=t + 12))
                if name[1] == "7":
                    inc = rg.F(Op(f"s_and_b32 {so}, {so}, 0x7ffff", "t", rd=[so], wr=[so], deps=[(inc, 0)], d=t + 14))
                    nr = "s10" if name[0] == "K" else "s14"
                    rg.F(S(f"s_cmp_eq_u32 {sHead}, 3", deps=[(o, 1)])); inc2 = rg.F(S(f"s_cselect_b32 {nr}, 0, {nr}", d=t + 20))
                rg.inc[spec[0]] = inc
        else:
            srd, vo, t0, dl, fl = tile_src(spec)
            if i == 0:
                assert wopen is None, "W-type tiles may not interleave"
                wopen = name
                tt = rg.F(Op(t0[0], "t", wr=[sT[0]], e=t - 12, deps=([(lastw, 1)] if lastw else [])))
                for x in t0[1:]: tt = rg.F(Op(x, "t", wr=[sT[0]], deps=[(tt, 0)]))
                ts = [tt]
                ts += [rg.F(Op(f"s_add_u32 {sT[j]}, {sT[0]}, {dl[j]}", "t", wr=[sT[j]], deps=[(ts[0], 0)])) for j in (1, 2, 3)]
            o = rg.F(Op(f"buffer_load_dwordx4 {vo}, {srd}, {sT[i]} offen offset:{i*1024}{fl} lds", "vm", rd=[vo, sT[i], "m0"], e=t, d=t + 4, deps=deps + [(ts[i], 0)]))
            if i == 3: wopen = None; lastw = o
        if i == 3: TILE.setdefault(name, []).append(o)
        if i == 0: rg.first_dma[name] = o
        prev = o
    rg.lastw = lastw
def head_dmas(rg, lo, hi):
    items = []
    for t in ISS:
        m = ISS[t] % 1200
        if not (lo <= m < hi): continue
        spec = (t[0],) if t[0] in "KV" else (("W", int(t[1])) if ISS[t] >= 0 else (("N" if t[0] == "W" else "Y"), NEXT.index(t)))
        cands = [g for g in rg.bars if g + lo <= m and any(SLOT[p] == SLOT[t] and NEED[p][1] % 1200 == g + lo for p in NEED)]
        bar = rg.bars[max(cands)] if cands else None
        items.append((t, spec, SLOT[t], m - lo, SPR[t], bar))
    add_dmas(rg, items)
def dma_linear(name, spec, slot):
    ops = lin(f"s_add_u32 m0, {sW4k}, {slot*16384}")
    if spec[0] in "KV":
        so, vo, srd = (sKoff, vDK, srdK) if spec[0] == "K" else (sVoff, vDV, srdV)
        d = [Op(f"buffer_load_dwordx4 {vo}, {srd}, {so} offen offset:{i*1024}{NT} lds", "vm") for i in range(4)]
        ops += lin("s_nop 0") + d + lin(f"s_add_u32 {so}, {so}, 0x4000")
    else:
        srd, vo, t0, dl, fl = tile_src(spec)
        d = [Op(f"buffer_load_dwordx4 {vo}, {srd}, {sT[i]} offen offset:{i*1024}{fl} lds", "vm") for i in range(4)]
        ops += lin("\n".join(t0) + "\n" + "\n".join(f"s_add_u32 {sT[i]}, {sT[0]}, {dl[i]}" for i in (1, 2, 3))) + d
    TILE.setdefault(name, []).append(d[-1])
    return ops
def reads_X(rg, addr, slots, dst, e, d, deps, step=1):
    ops = []
    for t in range(3):
        for s in range(4):
            r_, imm = addr(slots[t], s)
            ops.append(rg.F(Op(f"ds_read_b128 {dst(s, t)}, {r_} offset:{imm}", "ds", rd=[r_], wr=[dst(s, t)], e=e, d=d + len(ops)*step,
                               deps=list(deps) + ([(ops[-1], 0)] if ops else []))))
    return ops

def new_region(name):
    rg = Region(name); rg.nst = {"R1": 0, "R1f": 0, "R2": 6, "G": 0}.get(name, 5)
    ext_waits(rg)
    rg.tuse = {0: [], 1: []}; rg.bars = {}; rg.inc = {}; rg.first_dma = {}; rg.wq = bool(OPT["nperm"]) and name != "G"
    return rg

def xor_addr(rg, base, k, ti, e, d, after=()):
    if k == 0: return base, None
    deps = [(x, 0) for x in rg.tuse[ti]] + [(a, 0) for a in after]
    o = rg.F(V(f"v_xor_b32 {vT[ti]}, {k*32}, {base}", rd=[base], wr=[vT[ti]], e=e, d=d, deps=deps))
    rg.tuse[ti] = []
    return vT[ti], o
def reads_W(rg, so, mt, buf, e, deps=(), ups=(), rsp=None):
    if rg.wq:
        if mt == 2: a, xo = xor_addr(rg, vWb, 2, 0, e - 8, e, ups)
        else: a, xo = (vWb if mt < 2 else vT[0]), None
        so += 8*(mt & 1)
    else: a, xo = xor_addr(rg, vWb, mt, mt & 1, e - 8, e, ups)
    dp = list(deps) + ([(xo, 1)] if xo else [(u, 1) for u in ups])
    ops = []
    for s in range(4):
        for p in range(2):
            ops.append(rg.F(Op(f"ds_read_b64_tr_b16 {FR(buf, s, p)}, {a} offset:{so + s*4096 + p*2048}", "ds", rd=[a], wr=[FR(buf, s, p)],
                               e=e, d=min(e + 1 + len(ops)*(rsp or OPT['rsp'])//8, e + 9), deps=dp + ([(ops[-1], 0)] if ops else []))))
    if rg.wq:
        if mt >= 2: rg.tuse[0] = ops
    elif xo: rg.tuse[mt & 1] = ops
    rg.lastWr = ops
    return ops, xo
def reads_K(rg, so, u, buf, e, deps=(), ups=()):
    ops = []
    for s in range(4):
        ops.append(rg.F(Op(f"ds_read_b128 {FR(buf, s)}, {vK[s]} offset:{so + u*1024}", "ds", rd=[vK[s]], wr=[FR(buf, s)],
                           e=e, d=e + 3 + len(ops)*OPT['rk'], deps=list(deps) + [(x, 1) for x in ups] + ([(ops[-1], 0)] if ops else []))))
    return ops
def reads_V(rg, so, dp_, buf, e, deps=(), ups=(), late=0):
    ops = []; xs = []
    for k in range(2):
        dt = 2*dp_ + k
        a, xo = xor_addr(rg, vVb, dt, k, e - 10, e + 4*k, ups)
        if xo: xs.append(xo)
        dd = list(deps) + ([(xo, 1)] if xo else [(u, 1) for u in ups])
        mine = []
        for sg in range(2):
            for p in range(2):
                o = rg.F(Op(f"ds_read_b64_tr_b16 {FR(buf, 2*k + sg, p)}, {a} offset:{so + sg*2048 + p*1024}", "ds", rd=[a], wr=[FR(buf, 2*k + sg, p)],
                            e=e, d=(e + 2 + len(ops)*OPT['rsp']//8) if not late else (e + 3 + 2*len(ops) if k == 0 else e + 5 + (len(ops)*5)//4), deps=dd + ([(ops[-1], 0)] if ops else [])))
                ops.append(o); mine.append(o)
        if xo: rg.tuse[k] = mine
    return ops, xs

def barrier(rg, gap, last_reads, tiles, extra=(), lg0=True, st=True):
    w = rg.F(WAIT(gap - 1, need_ds=last_reads, need_vm=list(tiles) + list(extra), lg0=lg0, late=1))
    w.deps += [(x, 1) for x in extra if x in rg.fill]
    b = rg.F(Op("s_barrier", "w", e=gap, d=gap, deps=[(w, 1)])); rg.bars[gap] = b
    if OPT["bst"] and st:
        w.pre = "s_memtime s[2:3]"
        i = rg.nst; rg.nst += 1
        rg.F(V(f"v_writelane_b32 {vLane}, s2, {i}", e=gap + 1, d=gap + 8))
    return b
def xstamp(rg, gap, idx, dep):
    if OPT["bst"] < 2: return
    w = rg.F(Op("s_memtime s[2:3]\ns_waitcnt lgkmcnt(0)", "w", e=gap, d=gap, deps=[(dep, 1)]))
    rg.F(V(f"v_writelane_b32 {vLane}, s2, {idx}", deps=[(w, 0)], d=gap))
def ext_waits(rg):
    rg.xw = []
    for d in (-1, 1):
        w = WAIT(d, late=1); w.e = d; rg.F(w); rg.xw.append(w)
def bind_ext(rg, preds):
    rg.xw[0].alt_ds = [p[:4] for p in preds]; rg.xw[1].alt_ds = list(preds)
def frag_waits(rg, rd_ops, first_use, n_first, second_use, only_first=False):
    if rd_ops is None: return
    rg.F(WAIT(first_use - 1, need_ds=rd_ops[:n_first], late=2))
    if n_first < len(rd_ops) and not only_first: rg.F(WAIT(second_use - 1, need_ds=rd_ops, late=1))

def so_(sb): return (sb[0] - sb[1])*16384
def w_step(rg, half, zero, Bop, pend, cur, nxt, need, extra=(), more_reads=(), xwait=None, post=None):
    b0 = rg.n(); info = dict(b0=b0); xlast = None
    if xwait:
        for t in range(3): rg.F(WAIT(b0 + 4*t - 1, need_ds=xwait[:4*t + 4], late=1))
        info["xbar"] = barrier(rg, b0 + 10, xwait, (), lg0=False, st=False)
    for mt in range(4):
        buf = C.grp & 1; C.grp += 1
        g0 = b0 + 12*mt
        if pend is not None and (mt < 3 or BDW): frag_waits(rg, pend, g0, 4, g0 + 2, only_first=(mt == 3))
        for t in range(3):
            for s in range(4):
                acc = OA(4*half + mt, t)
                rg.M(mfma(acc, FR(buf, s), Bop(s, t), "0" if (zero and s == 0) else acc))
        if mt < 3:
            pend, xo = reads_W(rg, so_(cur[1:3]), mt + 1, buf ^ 1, g0 - 1 if (mt or b0) else g0)
            if xo: xlast = xo
            if mt == 0 and rg.wq: base_users = pend
            if mt == 2: bar = barrier(rg, g0 + 11 + BDW, pend + list(more_reads), need, extra)
        else:
            ups = rebase(rg, nxt[0], nxt[3], nxt[2], b0 + 20, g0 - 2, after=([xlast] + (base_users if rg.wq else [])) if nxt[0] == "W" else [])
            if nxt[0] == "W": pend, _ = reads_W(rg, so_(nxt[1:3]), 0, buf ^ 1, g0 - 1 + BDW, deps=[(bar, 0)], ups=ups, rsp=(4 if post else None))
            else: pend = reads_K(rg, so_(nxt[1:3]), 0, buf ^ 1, g0 - 1 + BDW, deps=[(bar, 0)], ups=ups)
            if post: info["post"] = post(g0, bar)
    info["bar"] = bar; info["end"] = rg.n() - 1
    return pend, info
def TS(name, prev=None):
    k, i = name[0], int(name[1])
    return (k, SLOT[name], BASE[name], BASE[f"{k}{(i - 1) % 8}"])

def softmax(rg, g0, u, Sr, pbuf, d_over, d_puse):
    sg = u >> 1
    for t in range(3):
        last = rg.mf[g0 + 4*t + 3]
        dl = min(d_over(t), d_puse(t) - 3)
        ex = [rg.F(V8(f"v_exp_f32 {Sr(t,i)}, {Sr(t,i)}", rd=[Sr(t,i)], wr=[Sr(t,i)], e=last.gap, sdeps=[(last, 8)], trans=True)) for i in range(4)]
        for j in range(2):
            dst = PBr(pbuf, sg, t, 2*(u & 1) + j)
            rg.F(V(f"v_cvt_pk_bf16_f32 {dst}, {Sr(t,2*j)}, {Sr(t,2*j+1)}", rd=[Sr(t,2*j), Sr(t,2*j+1)], wr=[dst], d=dl,
                   sdeps=[(ex[2*j], 1), (ex[2*j+1], 1)]))
def k_mfmas(rg, buf, Sd):
    for t in range(3):
        for s in range(4):
            rg.M(mfma(Sd(t), FR(buf, s), QV(s, t), "0" if s == 0 else Sd(t)))
def v_mfmas(rg, dp_, buf, pbuf, zero, tmajor=False):
    order = [(k, t) for t in range(3) for k in range(2)] if tmajor else [(k, t) for k in range(2) for t in range(3)]
    last = {}
    for k, t in order:
        for sg in range(2):
            acc = OA(2*dp_ + k, t)
            last[(2*dp_ + k, t)] = rg.M(mfma(acc, FR(buf, 2*k + sg), PB(pbuf, sg, t), "0" if (zero and sg == 0) else acc))
    return last
def sum_mfmas(rg, t, pbuf, zero):
    for sg in range(2):
        o = rg.M(mfma(LA(t), ONES, PB(pbuf, sg, t), "0" if (zero and sg == 0) else LA(t)))
    return o
def o_epilogue_ops(dt, t):
    mul = [V(f"v_mul_f32 {OAr(dt,t,i)}, {vRL[t]}, {OAr(dt,t,i)}", rd=[OAr(dt,t,i), vRL[t]], wr=[OAr(dt,t,i)]) for i in range(4)]
    cvt = []
    for j in range(2):
        dst = OPr(dt >> 1, t, 2*(dt & 1) + j)
        cvt.append(V(f"v_cvt_pk_bf16_f32 {dst}, {OAr(dt,t,2*j)}, {OAr(dt,t,2*j+1)}", rd=[OAr(dt,t,2*j), OAr(dt,t,2*j+1)], wr=[dst],
                     deps=[(mul[2*j], 0), (mul[2*j+1], 0)]))
    for o in mul + cvt: o.ot = (dt, t)
    return mul, cvt
def q_muls(rg, mt, t, last, **kw):
    return [rg.F(V(f"v_mul_f32 {OAr(mt,t,i)}, {sScale}, {OAr(mt,t,i)}", rd=[OAr(mt,t,i)], wr=[OAr(mt,t,i)],
                   e=(last.gap if last is not None else -1), sdeps=([(last, 8)] if last is not None else []), **kw)) for i in range(4)]
def q_epilogue(rg, sp, t, lastA, lastB, d_use, muls=True):
    cv = []
    for k, last in ((0, lastA), (1, lastB)):
        mt = 2*sp + k
        mul = q_muls(rg, mt, t, last) if muls else None
        for j in range(2):
            dst = QVr(sp, t, 2*k + j)
            cv.append(rg.F(V(f"v_cvt_pk_bf16_f32 {dst}, {OAr(mt,t,2*j)}, {OAr(mt,t,2*j+1)}", rd=[OAr(mt,t,2*j), OAr(mt,t,2*j+1)], wr=[dst],
                             deps=([(mul[2*j], 0), (mul[2*j+1], 0)] if muls else []))))
    if OPT["nperm"]:
        for o in cv: o.d = d_use - 3
        return
    for j in range(2):
        a, b = QVr(sp, t, j), QVr(sp, t, 2 + j)
        p1 = rg.F(V8(f"v_permlane32_swap_b32 {a}, {b}", rd=[a, b], wr=[a, b], sdeps=[(cv[j], 2), (cv[2+j], 2)]))
        rg.F(V8(f"v_permlane16_swap_b32 {a}, {b}", rd=[a, b], wr=[a, b], sdeps=[(p1, 2)], d=d_use - 3))

def BopQ(st):
    dg = ORD[st][1]
    return (lambda s, t: XA(4*dg + s, t)) if dg < 3 else (lambda s, t: QV(s, t))

def build_R2():
    rg = new_region("R2")
    C.grp = 24
    pend, i6 = w_step(rg, ORD[6][0], False, BopQ(6), None, TS("W6"), TS("W7"), ["W7"])
    pend, i7 = w_step(rg, ORD[7][0], False, BopQ(7), pend, TS("W7"), TS("K0"), ["K0"])
    a0 = rg.n(); b7 = i7["b0"]
    for sp in (0, 1):
        for t in range(3): q_epilogue(rg, sp, t, None, None, min(a0 + 4*t + sp, 20 + (sp*3 + t)*9), muls=True)
    for sp in (2, 3):
        for t in range(3):
            mA, mB = 2*sp - 4, 2*sp - 3
            q_epilogue(rg, sp, t, rg.mf[b7 + 12*mA + 4*t + 3], rg.mf[b7 + 12*mB + 4*t + 3], a0 + 4*t + sp)
    tch = [rg.F(Op(f"buffer_load_dword {vB}, {vLane}, {srdWS}, {sreg} offen sc1", "vm", rd=[vLane], wr=[vB], e=g, d=g + 6))
           for sreg, g in (("s76", OPT["tg"]), ("s77", OPT["tg"] + 40))]
    B = lambda i: a0 + 48 + 102*i
    GK = [0, 26, 52, 78]; GV = [12, 38, 64, 90]
    def puse(i, sg, t): return (B(i) + 12 + 2*t + sg) if i < 7 else (B(7) + 4*t + sg)
    def so(n): return so_(TS(n)[1:3])
    def rb(n, e, d, after=()): x = TS(n); return rebase(rg, x[0], x[3], x[2], e, d, after)
    for u in range(4):
        buf = C.grp & 1; C.grp += 1; g0 = rg.n()
        if u < 3 or BDW: frag_waits(rg, pend, g0, 2, g0 + 2, only_first=(u == 3))
        k_mfmas(rg, buf, lambda t: OA(u, t))
        softmax(rg, g0, u, lambda t, i: OAr(u, t, i), 0, lambda t: 10**9, lambda t: puse(0, u >> 1, t))
        if u < 3:
            pend = reads_K(rg, so("K0"), u + 1, buf ^ 1, g0 - 1)
            if u == 2: bar = barrier(rg, g0 + 11 + BDW, pend, ["K1", "V0"]); lastK = pend
        else:
            ups = rb("K1", g0 - 12, g0 - 2, lastK)
            pend = reads_K(rg, so("K1"), 0, buf ^ 1, g0 - 1 + BDW, deps=[(bar, 0)], ups=ups)
            upsV = rb("V0", -1, g0)
    for i in range(7):
        b0 = rg.n(); assert b0 == B(i)
        for u in range(4):
            buf = C.grp & 1; C.grp += 1; g0 = rg.n(); assert g0 == b0 + GK[u]
            frag_waits(rg, pend, g0, 2, g0 + 2)
            k_mfmas(rg, buf, lambda t: R("v", S0 + 4*t, 4))
            nxtK = (b0 + GK[u+1]) if u < 3 else (B(i+1) if i < 6 else None)
            softmax(rg, g0, u, lambda t, j: f"v{S0 + 4*t + j}", (i + 1) & 1,
                    (lambda t: nxtK + 4*t - 1) if nxtK else (lambda t: 10**9), lambda t: puse(i + 1, u >> 1, t))
            pend, xs = reads_V(rg, so(f"V{i}"), u, buf ^ 1, g0 - 1, ups=(upsV if u == 0 else ()), late=(OPT["vlate"] if u < 3 else 0))
            if u == 3: bar = barrier(rg, g0 + 11 + BDA, pend, [f"K{i+2}", f"V{i+1}"] if i < 6 else ["V7"], extra=(tch if i == 6 else ())); lastX = xs
            buf = C.grp & 1; C.grp += 1; g0 = rg.n(); assert g0 == b0 + GV[u]
            if u < 3 or BDA: frag_waits(rg, pend, g0, 4, g0 + 6, only_first=(u == 3))
            v_mfmas(rg, u, buf, i & 1, i == 0)
            if u < 3:
                sum_mfmas(rg, u, i & 1, i == 0)
                pend = reads_K(rg, so(f"K{i+1}"), u + 1, buf ^ 1, g0 - 1)
                if u == 2: lastK = pend
            elif i < 6:
                ups = rb(f"K{i+2}", g0 - 20, g0 - 2, lastK)
                pend = reads_K(rg, so(f"K{i+2}"), 0, buf ^ 1, g0 - 1 + BDA, deps=[(bar, 0)], ups=ups)
                upsV = rb(f"V{i+1}", g0 - 10, g0 + 4, lastX)
            else:
                upsV = rb("V7", g0 - 10, g0 - 2, lastX)
                pend, _ = reads_V(rg, so("V7"), 0, buf ^ 1, g0 - 1 + BDA, late=0, deps=[(bar, 0)], ups=upsV)
    E = rg.n(); assert E == B(7)
    epi = []
    for p in range(4):
        buf = C.grp & 1; C.grp += 1; g0 = rg.n()
        if p == 0: frag_waits(rg, pend, g0, 4, g0 + 2)
        elif p < 3 or BDW: frag_waits(rg, pend, g0, 4, g0 + 6, only_first=(p == 3))
        last = v_mfmas(rg, p, buf, 1, False, tmajor=(p == 0))
        if p == 0:
            rl = []; lr = []
            for t in range(3):
                ls = sum_mfmas(rg, t, 1, False)
                lr.append(rg.F(V(f"v_accvgpr_read_b32 {vRL[t]}, a{240+4*t}", rd=[f"a{240+4*t}"], wr=[vRL[t]], e=ls.gap, sdeps=[(ls, 8)], d=E + 28)))
            mn = rg.F(V(f"v_min3_f32 {vA}, {vRL[0]}, {vRL[1]}, {vRL[2]}", rd=vRL, wr=[vA], deps=[(x, 0) for x in lr], d=E + 30))
            mx = rg.F(V(f"v_max3_f32 {vB}, {vRL[0]}, {vRL[1]}, {vRL[2]}", rd=vRL, wr=[vB], deps=[(x, 0) for x in lr], d=E + 30))
            rg.F(V(f"v_cmp_gt_f32 {sBad}, {sLo}, {vA}", rd=[vA], wr=[sBad], deps=[(mn, 0)], d=E + 40))
            rg.F(V(f"v_cmp_lt_f32 vcc, {sHi}, {vB}", rd=[vB], wr=["vcc"], deps=[(mx, 0)], d=E + 40))
            for t in range(3):
                rl.append(rg.F(V8(f"v_rcp_f32 {vRL[t]}, {vRL[t]}", rd=[vRL[t]], wr=[vRL[t]], deps=[(mn, 0), (mx, 0)], trans=True, d=E + 34)))
        for (dt, t), lm in last.items():
            mul, cvt = o_epilogue_ops(dt, t)
            for o in mul: o.e = lm.gap; o.sdeps = [(lm, 8), (rl[t], 1)]
            for o in mul + cvt:
                o.optional = True
                if dt >= 4 and o in cvt: o.e = 10**9
                rg.F(o); epi.append(o)
        if p < 3:
            pend, xs = reads_V(rg, so("V7"), p + 1, buf ^ 1, g0 - 1 if p != 0 else g0 + 3)
            if p == 2: bar = barrier(rg, g0 + 11 + BDW, pend, ["W0", "Xa", "Xb", "Xc"])
        else:
            ups = rb("W0", -1, g0 - 2, [])
            for o in ups: o.e = a0
            if OPT["nperm"]: ups = ups + [rg.F(V(f"v_mad_i32_i24 {vWb}, {vC}, {sGate}, {vWb}", rd=[vC, vWb], wr=[vWb], e=a0, d=g0 - 4))]
            pend, _ = reads_W(rg, so("W0"), 0, buf ^ 1, g0 - 1 + BDW, deps=[(bar, 0)], ups=ups, rsp=8)
    assert sorted(g + 288 for g in rg.bars) == ringplan.bS[6:] + [ringplan.bQ] + ringplan.bB + [ringplan.bP]
    head_dmas(rg, 288, 1200)
    rg.pendW0 = pend; rg.epi = epi
    rg.schedule()
    return rg

def half0_muls(rg, b4):
    for mt in range(4):
        for t in range(3): q_muls(rg, mt, t, rg.mf[b4 + 12*mt + 4*t + 3])

def build_R1(left):
    rg = new_region("R1")
    C.grp = 0
    xa = [rg.F(V(f"v_add_u32 v{S0+s}, {sW1k}, {vK[s]}", rd=[vK[s]], wr=[f"v{S0+s}"], d=6)) for s in range(4)]
    xr = reads_X(rg, lambda sl, s: (f"v{S0+s}", (sl - XB)*16384), [SLOT["Xa"], SLOT["Xb"], SLOT["Xc"]], QV, 4, 9, [(a, 1) for a in xa], step=2)
    pend = None; infos = []
    for st in range(5):
        pend, inf = w_step(rg, ORD[st][0], st in (0, 3), BopQ(st), pend, TS(f"W{st}"), TS(f"W{st+1}"), [f"W{st+1}"], more_reads=(xr if st == 0 else ()))
        infos.append(inf)
    new = {}
    for o in left:
        dt, t = o.ot
        n = V(o.text, rd=list(o.rd), wr=list(o.wr)); n.ot = o.ot; new[id(o)] = n
        n.deps = [(new[id(p)], g) for (p, g) in o.deps if id(p) in new]
        n.e = 8 if dt >= 6 else -1
        n.d = ((12*dt + 4*t) if dt < 4 else (144 + 12*(dt - 4) + 4*t)) - 1
        rg.F(n)
    head_dmas(rg, 0, 288)
    rg.pend = pend
    rg.schedule()
    return rg

def build_R1b(h, zst=None):
    rg = new_region(f"R1b{h}")
    C.grp = 20
    pend, inf = w_step(rg, ORD[5][0], False, BopQ(5), None, TS("W5"), TS("W6"), ["W6"])
    for i in range(48): rg.F(V(f"v_accvgpr_write_b32 a{ZB[h-1] + i}, v{PV0 + i}", rd=[f"v{PV0+i}"], wr=[f"a{ZB[h-1]+i}"]))
    next_setup(rg, h)
    rg.pend = pend
    rg.schedule()
    return rg

def next_setup(rg, h):
    T = lambda x, **kw: rg.F(S(x, **kw))
    if h < 3:
        T(f"s_add_u32 {sWcol}, {sWcol}, 256", deps=([(rg.lastw, 1)] if getattr(rg, "lastw", None) else []))
        for t in NEXT:
            if t[0] == "W":
                for x in wq_t0(sN[NEXT.index(t)], int(t[1])): T(x)
    if h == 2:
        a = T(f"s_lshl_b32 {sTmp}, {sB}, 2")
        if not OPT["bst"]: rg.dbg = rg.F(Op(f"buffer_load_dword {vLane}, off, {srdD}, {sTmp} sc1", "vm", wr=[vLane], deps=[(a, 0)]))
    if h == 3:
        for x in ("s_mov_b32 s16, s80", "s_mov_b32 s17, s81", "s_mov_b32 s18, 0x80000", "s_mov_b32 s20, s80", "s_mov_b32 s21, s81", "s_mov_b32 s22, 0x80000",
                  f"s_mov_b32 {sGate}, 1"): T(x)
        for i in (1, 2, 3): T(f"s_mov_b32 {sD[i]}, {7168*i}"); T(f"s_mov_b32 {sDY[i]}, {7168*i}")
        for m in range(6): T(f"s_add_u32 {sN[m]}, {sRot if m < 4 else sC[0]}, {hex((m & 3)*0x20000)}")
        if OPT["tlb"]:
            sw = T(f"s_mov_b32 {sTmp}, {hex(FLAG_BASE + 0x20080)}")
            for srd, so in ((srdW, "0"), (srdWS, "s75"), (srdWS, sTmp), (srdO, sOutR)):
                rg.F(Op(f"buffer_load_dword {vB}, off, {srd}, {so}", "vm", wr=[vB], deps=[(sw, 0)]))
        rg.F(V(f"v_mov_b32 {vDW}, {vDWo}", rd=[vDWo], wr=[vDW])); rg.F(V(f"v_mov_b32 {vDX}, {vDWo}", rd=[vDWo], wr=[vDX]))

def build_R1f():
    X = lambda q: [f"x{q}{a}" for a in range(3)]
    final = [t for t in ISS if ISS[t] < 288 and t[0] in "KV"] + ["W6", "W7"]
    assert set(final) == {"K0", "K1", "V0", "K2", "V1", "K3", "W6", "W7"}, final
    if OPT["kvlate"] < 4:
        init = X(0) + ["w0"] + X(1) + ["w1", "K0", "K1"]
        inh = list(zip(X(2), X(0))) + [("w2", "w0")] + list(zip(["w3", "x30", "x31"], X(1))) + [("x32", "w1")] + \
              list(zip(["w4", "V0", "w5"], X(2))) + [("K2", "w2"), ("W6", "w3")] + list(zip(["V1", "W7", "K3"], X(3)))
    else:
        init = X(0) + ["w0"] + X(1) + ["w1", "x20", "x21"]
        inh = list(zip(["x22", "w2", "w3"], X(0))) + [("x30", "w0")] + list(zip(["x31", "x32", "w4"], X(1))) + [("w5", "w1")] + \
              list(zip(["W6", "W7", "K0"], X(2))) + [("K1", "w2"), ("V0", "w3")] + list(zip(["K2", "V1", "K3"], X(3)))
    sl = {t: SLOT[t] for t in final}
    for new, old in reversed(inh):
        if new in sl: sl[old] = sl[new]
    free = [x for x in range(10) if x not in {sl[t] for t in init if t in sl}]
    for t in init:
        if t not in sl: sl[t] = free.pop()
    for new, old in inh: sl[new] = sl[old]
    def spec(t):
        if t[0] == "x": return ("X", int(t[2]), int(t[1]))
        if t[0] in "wW": return ("W", int(t[1]))
        return (t[0],)
    wsl = [sl[f"w{j}"] for j in range(6)] + [SLOT["W6"]]
    wb = [min(x, 6) for x in wsl[:6]] + [BASE["W6"]]
    rg = new_region("R1f")
    C.grp = 0
    xaddr = lambda s_, s: (f"v{S0 + 4*(s_ >> 2) + s}", (s_ & 3)*16384)
    dst = {0: (1, lambda s, t: XA(4 + s, t)), 1: (2, lambda s, t: XA(8 + s, t)), 3: (3, QV)}
    pend = None; infos = []; xw = None
    for st in range(6):
        post = None; need = [f"w{st+1}" if st < 5 else "W6"]
        if st in dst:
            q, fn = dst[st]; need += X(q)
            post = (lambda q, fn: lambda g0, bar: reads_X(rg, xaddr, [sl[t] for t in X(q)], fn, g0 + 2 + BDW, g0 + 5 + BDW, [(bar, 0)]))(q, fn)
        pend, inf = w_step(rg, ORD[st][0], st in (0, 3), BopQ(st), pend, ("W", wsl[st], wb[st]), ("W", wsl[st+1], wb[st+1], wb[st]), need, xwait=xw, post=post)
        xw = inf.get("post"); infos.append(inf)
    rel = {"w%d" % j: infos[j]["bar"] for j in range(6)}
    for q, st in ((1, 1), (2, 2), (3, 4)):
        for t in X(q): rel[t] = infos[st]["xbar"]
    items = []; tcur = 0
    if OPT["kvlate"] < 4:
        seq = [(t, None) for t in ("x20", "x21", "x22")] + inh[3:]
        kp = {0: (3, 4), 1: (8, 9), 2: (4, 9), 3: (9, 12)}[OPT["kvlate"]]
        seq.insert(kp[0], ("K0", None)); seq.insert(kp[1], ("K1", None))
    else: seq = [(t, None) for t in ("x20", "x21", "x22", "w2", "w3")] + inh[3:]
    for new, old in seq:
        if old: tcur = max(tcur, rel[old].e)
        items.append((new, spec(new), sl[new], tcur, OPT["fsp"], rel[old] if old else None)); tcur += 4*OPT["fsp"] + 1
    add_dmas(rg, items)
    next_setup(rg, 0)
    rg.pend = pend
    rg.schedule()
    rg.init = [(t, spec(t), sl[t]) for t in init[:8]]; rg.wb0 = wb[0]; rg.wso0 = (wsl[0] - wb[0])*16384
    rg.x0 = [xaddr(sl[t], 0) for t in X(0)]; rg.xsl0 = [sl[t] for t in X(0)]; rg.xaddr = xaddr
    return rg

RLD = [[R("v", QV0 + 4*g, 4) for g in range(8)],
       [R("v", QV0 + 32 + 4*g, 4) for g in range(4)] + [R("v", S0 + 4*g, 4) for g in range(3)] + ["v[236:239]"]]
vTo = vLane if not OPT['bst'] else 'v235'
vSt, vFl, vPo, vPr, vOut = vDK, vDV, vVb, vDX, vC
LAG = OPT['lag']; OSC = ['', ' sc1', ' nt', ' sc0 sc1'][OPT['osc']]
NTST = ' nt' if OPT['ntst'] else ''
LO = ["v249", "v250", "v251", "v253"]
def pack_store(chunk):
    res = []
    for t in range(3):
        for np_ in range(2):
            a, b = 4*chunk + 2*np_, 4*chunk + 2*np_ + 1
            src = [(OAr(a,t,0), OAr(a,t,1)), (OAr(a,t,2), OAr(a,t,3)), (OAr(b,t,0), OAr(b,t,1)), (OAr(b,t,2), OAr(b,t,3))]
            cv = []
            for j in range(4):
                cv.append(V(f"v_cvt_pk_bf16_f32 {OAr(a,t,j)}, {src[j][0]}, {src[j][1]}", rd=list(src[j]), wr=[OAr(a,t,j)], deps=([(cv[-1], 0)] if cv else [])))
            k = 2*t + np_
            sa = S(f"s_add_u32 {sU[k & 1]}, {sSt}, {k*8192}", wr=[sU[k & 1]])
            st = Op(f"buffer_store_dwordx4 {OA(a,t)}, {vSt}, {srdWS}, {sU[k & 1]} offen@SC", "vm", rd=[OA(a,t), vSt], deps=[(cv[-1], 1), (sa, 0)])
            res.append((cv, sa, st))
    return res
def reduce_ops(set_):
    X = [regs(r_) for r_ in RLD[set_]]
    tmp = [vA, vB]; ops = []; n = 0
    for k in range(4):
        ops += [V(f"v_lshlrev_b32 {LO[k]}, 16, {X[0][k]}", rd=[X[0][k]], wr=[LO[k]]),
                V(f"v_and_b32 {X[0][k]}, {sMask}, {X[0][k]}", rd=[X[0][k]], wr=[X[0][k]])]
        for g in range(1, 8):
            tm = tmp[n & 1]; n += 1
            ops += [V(f"v_lshlrev_b32 {tm}, 16, {X[g][k]}", rd=[X[g][k]], wr=[tm]),
                    V(f"v_and_b32 {X[g][k]}, {sMask}, {X[g][k]}", rd=[X[g][k]], wr=[X[g][k]]),
                    V(f"v_add_f32 {LO[k]}, {LO[k]}, {tm}", rd=[LO[k], tm], wr=[LO[k]]),
                    V(f"v_add_f32 {X[0][k]}, {X[0][k]}, {X[g][k]}", rd=[X[0][k], X[g][k]], wr=[X[0][k]])]
        ops.append(V(f"v_cvt_pk_bf16_f32 {X[0][k]}, {LO[k]}, {X[0][k]}", rd=[LO[k], X[0][k]], wr=[X[0][k]]))
    for a, b in zip(ops, ops[1:]): b.deps.append((a, 0))
    pl = []
    for j in range(2):
        pl.append(V8(f"v_permlane32_swap_b32 {X[0][j]}, {X[0][2+j]}", rd=[X[0][j], X[0][2+j]], wr=[X[0][j], X[0][2+j]], sdeps=[(ops[-1], 2)]))
    for j in range(2):
        pl.append(V8(f"v_permlane16_swap_b32 {X[0][j]}, {X[0][2+j]}", rd=[X[0][j], X[0][2+j]], wr=[X[0][j], X[0][2+j]], sdeps=[(pl[j], 2)]))
    st = Op(f"buffer_store_dwordx4 {RLD[set_][0]}, {vOut}, {srdO}, {sOut} offen{OSC}", "vm", rd=[RLD[set_][0], vOut, sOut], deps=[(pl[2], 1), (pl[3], 1)])
    return ops, pl, st
def red_loads(set_):
    return [Op(f"buffer_load_dwordx4 {RLD[set_][g]}, {vSt}, {srdWS}, {sLd if g < 4 else sLd2} offen offset:{(g & 3)*1024} sc1", "vm",
               rd=[vSt], wr=[RLD[set_][g]]) for g in range(8)]
def sig_ops():
    return [Op(f"buffer_store_dword {vSt}, {vFl}, {srdWS}, {sSig} offen@SC", "vm", rd=[vSt, vFl])]
def scal_A():
    return [f"s_sub_u32 {sTmp}, {sIt}, 1", f"s_and_b32 {sTmp}, {sTmp}, {sSlM}", f"s_mul_i32 {sTmp}, {sTmp}, {CHUNK}",
            f"s_add_u32 {sSt}, {sStR}, {sTmp}", f"s_add_u32 {sLd}, {sLdR}, {sTmp}",
            f"s_cmp_ge_u32 {sIt}, 1", f"s_cselect_b32 {sSt}, {sSt}, {hex(OOB)}", f"s_cselect_b32 {sSig}, {sFlR}, {hex(OOB)}",
            f"s_cselect_b32 {sExp}, 16, 0", f"s_cselect_b32 {sPo}, {sFlR}, {hex(FLAG_BASE + 0x20000)}",
            f"s_cselect_b32 {sLd}, {sLd}, {hex(OOB)}", f"s_add_u32 {sLd2}, {sLd}, 0x1000",
            f"s_add_u32 {sFlR}, {sFlR}, 256"]
def scal_B():
    return [f"s_add_u32 {sOut}, {sOutR}, {sOc}", f"s_cmp_ge_u32 {sIt}, 2", f"s_cselect_b32 {sOut}, {sOut}, {hex(OOB)}",
            f"s_add_u32 {sOc}, {sOc}, 128", f"s_and_b32 {sOc}, {sOc}, 0x3ff", f"s_add_u32 {sIt}, {sIt}, 1"]

def build_G():
    rg = new_region("G")
    used = [SLOT[t] for t in NEXT]
    gs = used + [SLOT["K0"]] + [x for x in range(10) if x not in used and x not in (SLOT["K0"], SLOT["K1"], SLOT["V0"])][:1]
    assert len(gs) == 8
    gb = ringplan.bases(gs)[1]; assert gb[0] == BASE["W0"]
    rg.gs = gs; items = []; bars = {}; rg.st_last = {}; rg.sB_last = {}; rg.tch = {}
    C.grp = 0
    def Bop(h): return (lambda s, t: ZA(h, s, t)) if h < 3 else (lambda s, t: OP(s, t))
    LD = [red_loads(0), red_loads(1)]
    pend = None; prev_users = []
    for hf in range(2):
        h0 = 192*hf
        stores = []
        for (cv, sa, st) in pack_store(1 - hf):
            for o in cv: o.e = h0 + 8; rg.F(o)
            if len(stores) >= 2: sa.deps.append((stores[-2], 1))
            rg.F(sa); st.e = h0 + 10 + OPT['gst']*len(stores); st.d = st.e + 3; rg.F(st); stores.append(st)
        sc = [rg.F(S(x, e=h0, deps=[(u, 1) for u in prev_users])) for x in scal_B()]
        rg.sB_last[hf] = sc[-1]
        if OPT["gtch"]:
            ca, cb = (sC[1], sC[2]) if hf == 0 else (sC[2], None)
            tk = [rg.F(S(f"s_cmp_lt_u32 {sTk}, 2", e=h0 + 20))]
            if hf == 0: tk.append(rg.F(S(f"s_cselect_b32 {sTmp}, {ca}, {cb}")))
            else: tk += [rg.F(S(f"s_cselect_b32 {sTmp}, 0, 128")), rg.F(S(f"s_add_u32 {sTmp}, {sTmp}, {ca}")), rg.F(S(f"s_and_b32 {sTmp}, {sTmp}, 0x3ff"))]
            tk.append(rg.F(S(f"s_add_u32 {sTo}, {sTmp}, {sTh}")))
            rg.tch[hf] = rg.F(Op(f"buffer_load_dword {vPr}, {vTo}, {srdW}, {sTo} offen", "vm", rd=[vTo], wr=[vPr], deps=[(tk[-1], 0), (stores[-1], 1)], d=h0 + 38))
        rg.sB_last[hf] = [x for x in rg.fill if x.kind == 's'][-1]
        cur = hf ^ 1
        w0 = rg.F(WAIT(h0 + OPT['gsum'], need_vm=LD[cur], late=1)); w0.e = h0 + OPT['gsum']
        o0, p0, s0_ = reduce_ops(cur)
        o0[0].deps.append((w0, 0))
        for o in o0 + p0 + [s0_]: rg.F(o)
        s0_.d = h0 + OPT['gout']; s0_.deps += [(sc[2], 0), (LD[hf][-1], 1)]
        infos = []
        for j in range(4):
            st = 4*hf + j
            n1 = (st + 1) & 7
            pend, inf = w_step(rg, hf, j == 0, Bop(j), pend, ("W", gs[st], gb[st]), ("W", gs[n1], gb[n1], gb[st]), [f"G{n1}"], extra=(stores if j == 1 else ()))
            infos.append(inf); bars[st] = inf["bar"]
        sig, = sig_ops(); bs = infos[1]["bar"]
        sig.deps = [(bs, 0)]; sig.d = bs.e + 1; rg.F(sig)
        po = rg.F(S(f"s_load_dwordx8 s[8:15], s[82:83], {sPo}{' glc' if OPT['glc'] else ''}", e=h0 + OPT['gpoll'], d=h0 + OPT['gpoll'] + 4))
        b2 = infos[2]["bar"]
        ck = [rg.F(S(x, deps=[(b2, 0)])) for x in ("s_and_b32 s8, s8, s9", "s_and_b32 s10, s10, s11", "s_and_b32 s12, s12, s13", "s_and_b32 s14, s14, s15",
              "s_and_b32 s8, s8, s10", "s_and_b32 s12, s12, s14", "s_and_b32 s8, s8, s12", f"s_and_b32 s8, s8, {sExp}", f"s_cmp_lg_u32 s8, {sExp}")]
        br = rg.F(Op(f"s_cbranch_scc1 L_spinG{hf}@L\nL_backG{hf}@L:", "s", d=b2.e + 12))
        prev = None
        for i, o in enumerate(LD[hf]):
            o.deps += [(br, 0)] + ([(prev, 1)] if prev else []); o.e = b2.e + 10 + OPT['gld']*i; o.d = o.e + 3; rg.F(o); prev = o
        prev_users = [s0_]
        for i, x in enumerate(scal_A()): rg.F(S(x, deps=[(LD[hf][-1], 1)] if i == 0 else []))
        for k in range(4):
            st = (4*hf - 2 + k) & 7
            items.append((f"G{st}", ("C", (1 + (st >> 2)) if (hf or k > 1) else 0, st & 3), gs[st], h0 + OPT["gdma"] + k*(4*OPT["gdsp"] + 1), OPT["gdsp"],
                          bars[st] if (hf or k > 1) else stores[-1]))
        rg.st_last[hf] = stores[-1]
    add_dmas(rg, items)
    c1 = S(f"s_cmp_ge_u32 {sIt}, 7", deps=[(TILE["G7"][-1], 1)]); c2 = S("s_cselect_b32 s18, 0, s18", wr=["s18"], rd=["s18"])
    pos = rg.fill.index(rg.sB_last[0]) + 1
    rg.fill[pos:pos] = [c1, c2]
    for i, o in enumerate(rg.fill): o.seq = i + 1
    rg.first_dma["G0"].deps.append((c2, 0))
    rg.first_dma["G6"].deps.append((rg.st_last[0], 1)); rg.first_dma["G2"].deps.append((rg.st_last[1], 1))
    rg.LD = LD; rg.pend = pend
    rg.schedule()
    return rg

def stamp(kind=0):
    if not OPT["stamps"]: return []
    def put(x): return lin(f"v_mov_b32 {vA}, {x}") + [Op(f"buffer_store_dword {vA}, off, {srdWS}, s101", "vm")] + lin("s_add_u32 s101, s101, 4\ns_nop 1")
    if kind == 1: return put("s94") + put("s92") + stamp()
    if kind == 2: return lin("s_waitcnt vmcnt(0)") + stamp()
    return lin("s_memtime s[2:3]\ns_memrealtime s[4:5]\ns_waitcnt lgkmcnt(0)") + put("s2") + put("s4")

def code_pf(lbl, start, end, mask, r):
    if not OPT["pf"]: return []
    return lin(f"""s_getpc_b64 s[{r}:{r+1}]
{lbl}:
s_add_u32 s{r}, s{r}, {start}-{lbl}
s_addc_u32 s{r+1}, s{r+1}, {"-1" if start == KN else "0"}
s_mov_b32 s{r+2}, {end}-{start}
s_mov_b32 s{r+3}, 0x20000
s_lshl_b32 s5, {sIdx}, 2
s_add_u32 s5, s5, {sWave}
s_and_b32 s5, s5, {mask}
s_lshl_b32 s5, s5, 13
v_mbcnt_lo_u32_b32 {vA}, -1, 0
v_mbcnt_hi_u32_b32 {vA}, -1, {vA}
v_lshlrev_b32 {vA}, 7, {vA}""") + [Op(f"buffer_load_dword {vB}, {vA}, s[{r}:{r+3}], s5 offen", "vm")]

def prologue(F):
    init = F.init
    o = lin(f"""
s_cmp_lt_u32 s2, 256
s_cbranch_scc1 L_go
s_endpgm
L_go:
{"s_memrealtime s[92:93]" if (OPT["stamps"] or OPT["dbl"]) else ""}
{"s_memtime s[94:95]" if OPT["stamps"] else ""}
s_load_dwordx16 s[68:83], s[0:1], 0
v_lshrrev_b32 v1, 6, v0
v_and_b32 {vLane}, 63, v0
s_and_b32 s4, s2, 7
v_readfirstlane_b32 {sWave}, v1
s_lshr_b32 s5, s2, 3
s_mov_b32 {sIdx}, s5""")
    mp = {84: (1, 3, 2, 1, 2, 3), 48: (0, 2, 3, 0, 3, 7), 162: (2, 4, 1, 3, 1, 1)}[OPT["mapping"]]
    o += lin(f"""
s_lshr_b32 s6, s4, {mp[0]}
s_lshl_b32 s6, s6, {mp[1]}
s_lshr_b32 s7, s5, {mp[2]}
s_add_u32 {sB}, s6, s7
s_and_b32 s6, s4, {mp[3]}
s_lshl_b32 s6, s6, {mp[4]}
s_and_b32 s7, s5, {mp[5]}
s_add_u32 {sG}, s6, s7""")
    cbits = struct.unpack("<I", struct.pack("<f", math.log2(math.e)/math.sqrt(128)))[0]
    o += lin(f"""
s_lshl_b32 {sW4k}, {sWave}, 12
v_lshrrev_b32 v5, 4, {vLane}
v_and_b32 v6, 15, {vLane}
s_lshl_b32 s6, {sWave}, 4
v_add_u32 v1, s6, v5
s_lshl_b32 s6, {sWave}, 2
v_or_b32 v2, s6, v5
v_xor_b32 v2, v2, v6
v_lshlrev_b32 v2, 4, v2
v_lshl_add_u32 {vDX}, v1, 10, v2
v_lshl_add_u32 {vDK}, v1, 8, v2
v_lshrrev_b32 v7, 5, {vLane}
v_bfe_u32 v2, {vLane}, 3, 2
v_lshl_add_u32 v7, v7, 3, v2
s_lshl_b32 s6, {sWave}, 5
v_add_u32 v7, s6, v7
v_and_b32 v3, 7, {vLane}
v_lshlrev_b32 v4, 1, v5
v_xor_b32 v3, v3, v4
v_lshlrev_b32 v3, 4, v3
v_lshl_add_u32 {vDW}, v7, 13, v3
s_mov_b32 {sDY[1]}, 3072
s_mov_b32 {sDY[2]}, 6144
s_mov_b32 {sDY[3]}, 9216
s_mov_b32 {sD[1]}, {16*8192 - 1024}
s_mov_b32 {sD[2]}, {4*8192 - 2048}
s_mov_b32 {sD[3]}, {20*8192 - 3072}
s_lshr_b32 s4, {sB}, 2
s_and_b32 s5, s4, {3 if OPT["hrot"] else 0}
s_lshl_b32 {sWcol}, s5, 8
s_lshl_b32 {sKoff}, s5, 17
s_mov_b32 {sVoff}, {sKoff}
{f"s_add_u32 s4, {sB}, {sG}" if OPT["krot"] == 2 else ""}
s_and_b32 s4, s4, {3 if OPT["krot"] else 0}
s_lshl_b32 {sDg[0]}, s4, 20
s_add_u32 {sDg[1]}, {sDg[0]}, 0x100000
s_and_b32 {sDg[1]}, {sDg[1]}, 0x3fffff
s_xor_b32 {sDg[2]}, {sDg[0]}, 0x200000
s_xor_b32 {sDg[3]}, {sDg[1]}, 0x200000
s_mul_i32 s7, {sB}, 196608
s_mov_b32 s22, 196608
s_mov_b32 s23, 0x20000
s_mov_b32 s19, 0x20000
s_lshl_b32 s4, {sG}, 10
s_sub_u32 s18, 0x400000, s4
s_waitcnt lgkmcnt(0)
s_add_u32 s20, s68, s7
s_addc_u32 s21, s69, 0
s_add_u32 s16, s74, s4
s_addc_u32 s17, s75, 0""")
    if OPT["tch"]:
        o += lin(f"""v_lshrrev_b32 v8, 1, {vLane}
v_and_b32 v9, 1, {vLane}
v_lshlrev_b32 v9, 7, v9
v_lshl_add_u32 v11, v8, 13, v9
v_lshl_add_u32 v8, v8, 10, v9
v_mov_b32 v10, {hex(OOB)}
v_cmp_gt_u32 vcc, 12, {vLane}
s_lshl_b32 s4, {sG}, 2
s_add_u32 s4, s4, {sWave}
s_mul_i32 s4, s4, 6144
v_cndmask_b32 v8, v10, v8, vcc
v_cmp_gt_u32 vcc, 16, {vLane}
s_and_b32 s5, {sB}, 3
s_lshl_b32 s5, s5, 2
s_add_u32 s5, s5, {sWave}
s_lshl_b32 s5, s5, 16
s_add_u32 s5, s5, {sWcol}
v_cndmask_b32 v11, v10, v11, vcc
v_add_u32 v8, s4, v8
v_add_u32 v11, s5, v11""")
        for q in range(OPT["tch"] - 1, 4):
            o += lin(f"s_lshr_b32 s3, {sDg[q]}, 12")
            o += [Op(f"buffer_load_dword {vB}, v8, {srdX}, s3 offen", "vm"), Op(f"buffer_load_dword {vB}, v11, {srdW}, {sDg[q]} offen", "vm")]
    for j in range(4): o += dma_linear(*init[j])
    o += lin(f"""s_lshl_b32 s3, {sB}, 22
s_lshl_b32 s7, {sG}, 19
s_add_u32 s3, s3, s7
{"s_mov_b32 s3, 0" if OPT["samekv"] else ""}
s_add_u32 s8, s70, s3
s_addc_u32 s9, s71, 0
s_mov_b32 s10, 0x80000
s_mov_b32 s11, 0x20000
s_add_u32 s12, s72, s3
s_addc_u32 s13, s73, 0
s_mov_b32 s14, 0x80000
s_mov_b32 s15, 0x20000
""")
    if OPT["tlb"]:
        o += [Op(f"buffer_load_dword {vB}, off, {srdK}, 0", "vm"), Op(f"buffer_load_dword {vB}, off, {srdV}, 0", "vm")]
        o += [Op(f"buffer_load_dword {vB}, off, {srdW}, {sDg[q]}", "vm") for q in (1, 2, 3)]
    o += code_pf("L_pc", KN, "L_G", OPT["pf"] - 1, 88)
    o += lin(f"""
v_lshrrev_b32 v7, 3, {vLane}
v_add_u32 v7, s6, v7
v_lshl_add_u32 {vDWo}, v7, 10, v3
s_and_b32 s6, {sWave}, 1
s_lshl_b32 s6, s6, 2
v_or_b32 v2, s6, v5
v_lshlrev_b32 v2, 1, v2
v_xor_b32 v2, v2, v6
v_lshlrev_b32 v1, 8, v1
v_lshl_add_u32 {vDV}, v2, 4, v1
s_mov_b32 s24, s82
s_mov_b32 s25, s83
s_mov_b32 s26, {hex(WS_BYTES)}
s_mov_b32 s27, 0x20000
v_lshrrev_b32 v1, 3, {vLane}
v_and_b32 v2, 7, {vLane}
v_lshlrev_b32 v1, 8, v1
v_lshl_add_u32 v8, v2, 2, v1
s_lshl_b32 s6, {sB}, 11
s_add_u32 s6, s6, {hex(FLAG_BASE)}
s_or_b32 s7, {sG}, {sWave}
s_cmp_eq_u32 s7, 0
s_cselect_b32 {sTmp}, s6, {hex(OOB)}
v_mov_b32 v9, 0""")
    zst = Op(f"buffer_store_dword v9, v8, {srdWS}, {sTmp} offen sc1", "vm"); o.append(zst)

    o += lin(f"""
s_mov_b32 {sScale}, {hex(cbits)}
s_mov_b32 {sLo}, 0x30800000
s_mov_b32 {sHi}, 0x4e800000
s_mov_b32 {sHead}, 0
s_lshl_b32 {sW1k}, {sWave}, 10
s_mov_b32 s28, s78
s_mov_b32 s29, s79
s_mov_b32 s30, 0x600000
s_mov_b32 s31, 0x20000
s_mov_b32 s32, s80
s_mov_b32 s33, s81
s_mov_b32 s34, 0x100
s_mov_b32 s35, 0x20000
{"s_mov_b32 s78, s92" if OPT["dbl"] else ""}
v_lshrrev_b32 v1, 2, v6
v_and_b32 v2, 3, v6
v_lshl_add_u32 v3, v1, 4, v2
v_lshlrev_b32 v3, 8, v3""")
    for s in range(4):
        o += lin(f"v_add_u32 v4, {4*s}, v5\nv_xor_b32 v4, v4, v6\nv_lshl_add_u32 {vK[s]}, v4, 4, v3")
    o += lin(f"""
v_lshl_add_u32 v3, v5, 4, v1
v_lshlrev_b32 v3, 8, v3
v_and_b32 v4, 1, v5
v_lshl_add_u32 v7, v4, 2, v1
v_lshl_add_u32 v3, v7, 5, v3
v_lshl_add_u32 v3, v2, 3, v3
v_add_u32 {vVb}, {BASE["V7"]*16384}, v3
v_lshl_add_u32 v3, v5, 2, v1
v_lshlrev_b32 v3, 7, v3
v_lshrrev_b32 v7, 1, v1
v_lshl_add_u32 v7, v4, 1, v7
{"v_lshlrev_b32 v7, 1, v7" if OPT["nperm"] else "v_lshl_add_u32 v3, v7, 5, v3"}
{"v_xor_b32 v7, v7, v2" if OPT["nperm"] else ""}
{"v_lshl_add_u32 v7, v7, 4, v3" if OPT["nperm"] else "v_lshl_add_u32 v7, v2, 3, v3"}
v_add_u32 {vWb}, {F.wb0*16384}, v7
v_mov_b32 v3, 0x3f803f80
v_accvgpr_write_b32 a252, v3
v_accvgpr_write_b32 a253, v3
v_accvgpr_write_b32 a254, v3
v_accvgpr_write_b32 a255, v3
""")
    for s in range(4):
        o += lin(f"v_add_u32 v{S0+s}, {sW1k}, {vK[s]}\nv_add_u32 v{S0+4+s}, 0x10000, v{S0+s}\nv_add_u32 v{S0+8+s}, 0x20000, v{S0+s}\nv_add_u32 {vK[s]}, {BASE['K7']*16384}, {vK[s]}")
    o += lin(f"s_add_u32 {sW1k}, {sW1k}, {lit((XB - BASE['K7'])*16384)}")
    for j in range(4, 8): o += dma_linear(*init[j])
    o += lin(f"""s_lshl_b32 s6, {sG}, 19
s_add_u32 s80, s76, s6
s_addc_u32 s81, s77, 0
s_mov_b32 {sGate}, 0
s_mov_b32 s76, {hex(OOB)}
s_mov_b32 s77, {hex(OOB)}
s_getreg_b32 {sXcc}, hwreg(HW_REG_XCC_ID, 0, 3)
s_lshr_b32 {sRot}, {sB}, 2
s_and_b32 {sRot}, {sRot}, {7 if OPT["rot"] else 0}
s_lshl_b32 {sRot}, {sRot}, 7
s_lshl_b32 {sXcc}, {sXcc}, 2
s_lshl_b32 {sXcc}, 1, {sXcc}""" + "".join(f"\ns_add_u32 {sC[i]}, {sRot}, {128*(i+1)}\ns_and_b32 {sC[i]}, {sC[i]}, 0x3ff" for i in range(3))
      + "".join("\n" + "\n".join(x_t0(sN[NEXT.index('X' + 'abc'[a])], a, 3)) for a in range(3)) + f"""
s_mul_i32 s6, {sB}, {8*CHUNK + 4096}
s_mov_b32 s75, s6
s_add_u32 s6, s6, 4096
s_mul_i32 s7, {sWave}, 49152
s_add_u32 {sStR}, s6, s7
s_lshl_b32 s7, {sG}, 10
s_add_u32 {sStR}, {sStR}, s7
s_mul_i32 s7, {sG}, 3
s_add_u32 s7, s7, {sWave}
s_lshl_b32 s4, s7, 13
s_add_u32 {sLdR}, s6, s4
s_lshl_b32 {sFlR}, {sB}, 11
s_add_u32 {sFlR}, {sFlR}, {hex(FLAG_BASE - 256)}
s_lshr_b32 s4, s7, 1
s_mul_i32 s5, s4, 11
s_lshr_b32 s5, s5, 5
s_mul_i32 s3, s5, 3
s_sub_u32 s4, s4, s3
s_lshl_b32 s4, s4, 6
s_lshl_b32 s5, s5, 2
s_add_u32 s4, s4, s5
s_mul_i32 s5, {sB}, 192
s_add_u32 s4, s4, s5
s_lshl_b32 s4, s4, 10
s_and_b32 s5, s7, 1
s_lshl_b32 s5, s5, 6
s_add_u32 {sOutR}, s4, s5
s_sub_u32 {sOc}, {sRot}, 256
s_and_b32 {sOc}, {sOc}, 0x3ff
s_cmp_eq_u32 {sWave}, 3
s_cselect_b32 {sLdR}, {hex(OOB)}, {sLdR}
s_cselect_b32 {sOutR}, {hex(OOB)}, {sOutR}
v_bfe_u32 v3, {vLane}, 3, 2
v_and_b32 v2, 3, {vLane}
v_lshlrev_b32 {vC}, 5, v3
v_lshl_add_u32 {vC}, v2, 3, {vC}
v_lshlrev_b32 v3, 1, v3
v_xor_b32 v2, v2, v3
v_lshlrev_b32 v2, 4, v2
v_sub_u32 {vC}, {vC}, v2""")
    if OPT["stamps"]:
        o += lin(f"s_lshl_b32 s101, s2, 10\ns_lshl_b32 s6, {sWave}, 8\ns_add_u32 s101, s101, s6\ns_add_u32 s101, s101, {hex(STAMP_BASE)}")
    if OPT["stamps"] == 2: o += stamp(1)
    o.append(WAIT(0, need_vm=[x[0] for x in init[:4]]))
    o += lin("s_barrier")
    if OPT["stamps"] == 2: o += stamp()
    for t in range(3):
        for s in range(4): o += lin("ds_read_b128 %s, %s offset:%d" % ((XA(s, t),) + F.xaddr(F.xsl0[t], s)))
    for s in range(4):
        for p in range(2): o += lin(f"ds_read_b64_tr_b16 {FR(0, s, p)}, {vWb} offset:{F.wso0 + s*4096 + p*2048}")
    o += lin("s_waitcnt lgkmcnt(0)\ns_barrier")
    return o, zst

def glue0(zst):
    return [WAIT(0, need_vm=[zst])] + lin(f"""s_lshl_b32 s6, {sB}, 2
s_cmp_eq_u32 {sWave}, 0
s_cselect_b32 s6, s6, {hex(OOB)}
v_mov_b32 {vB}, {hex(OOB)}
v_writelane_b32 {vB}, 0, 0
v_mov_b32 {vA}, {sXcc}""") + [Op(f"buffer_atomic_add {vA}, {vB}, {srdD}, s6 offen sc1", "vm")]
def touch_setup():
    return lin(f"""v_mbcnt_lo_u32_b32 {vA}, -1, 0
v_mbcnt_hi_u32_b32 {vA}, -1, {vA}
s_cmp_eq_u32 {sSlM}, 1
s_cselect_b32 s76, {sLdR}, {hex(OOB)}
s_cselect_b32 s4, 256, {hex(OOB)}
{"" if OPT["bst"] else f"v_lshlrev_b32 {vLane}, 7, {vA}"}
v_and_b32 {vA}, 7, {vA}
v_lshlrev_b32 {vA}, 8, {vA}
s_add_u32 s77, s76, {CHUNK}
s_add_u32 s4, s4, {sFlR}""") + [Op(f"buffer_load_dword {vB}, {vA}, {srdWS}, s4 offen sc1", "vm")]
def mode_check(dbg):
    if OPT["bst"]: return lin(f"L_chkD:\nL_backD:\ns_mov_b32 {sSlM}, 1\ns_mov_b32 {sLdMin}, 0")
    return [WAIT(0, need_vm=[dbg])] + lin(f"""s_mov_b32 s3, 0
L_chkD:
v_readfirstlane_b32 s4, {vLane}
s_nop 3
s_lshr_b32 s5, s4, 4
s_and_b32 s5, s5, 0x0f0f0f0f
s_and_b32 s7, s4, 0x0f0f0f0f
s_add_u32 s5, s5, s7
s_mul_i32 s5, s5, 0x01010101
s_lshr_b32 s5, s5, 24
s_cmp_lg_u32 s5, 8
s_cbranch_scc1 L_spinD
L_backD:
s_lshl_b32 s5, {sXcc}, 3
{"s_mov_b32 s5, 0" if OPT["forceslow"] else ""}
s_cmp_eq_u32 s4, s5
s_cselect_b32 {sSlM}, 1, 7""")

def slow_path(placed, pendW0):
    vKo, vVo, vVo2 = f"v{PV0+40}", f"v{PV0+41}", f"v{PV0+42}"
    M = [f"v{PV0+36+t}" for t in range(3)]
    CN = [R("v", PV0 + 24 + 4*t, 4) for t in range(3)]
    Sx = [R("v", S0 + 4*t, 4) for t in range(3)]
    t_ = f"""
L_slow:
s_waitcnt vmcnt(0) lgkmcnt(0)
s_nop 7
v_mbcnt_lo_u32_b32 {vB}, -1, 0
v_mbcnt_hi_u32_b32 {vB}, -1, {vB}
v_and_b32 {vA}, 15, {vB}
v_lshrrev_b32 {vB}, 4, {vB}
v_lshlrev_b32 {vKo}, 8, {vA}
v_lshl_add_u32 {vKo}, {vB}, 4, {vKo}
v_lshlrev_b32 {vVo}, 10, {vB}
v_lshl_add_u32 {vVo}, {vA}, 1, {vVo}
v_add_u32 {vVo2}, 0x1000, {vVo}
s_lshr_b32 s4, {sB}, 2
s_and_b32 s4, s4, {3 if OPT["hrot"] else 0}
s_add_u32 s4, s4, {sHead}
s_and_b32 s4, s4, 3
s_lshl_b32 s4, s4, 17
s_mov_b32 s10, 0x80000
s_mov_b32 s14, 0x80000
s_add_u32 s5, s4, 0x20000
s_mov_b32 s6, s4
"""
    for t in range(3): t_ += f"v_mov_b32 {M[t]}, 0xff800000\n"
    t_ += "L_slow1:\n"
    for s in range(4): t_ += f"buffer_load_dwordx4 {FR(0, s)}, {vKo}, {srdK}, s6 offen offset:{64*s}\n"
    t_ += "s_waitcnt vmcnt(0)\n"
    for t in range(3):
        for s in range(4): t_ += f"v_mfma_f32_16x16x32_bf16 {Sx[t]}, {FR(0, s)}, {QV(s, t)}, {'0' if s == 0 else Sx[t]}\n"
    t_ += "s_nop 9\n"
    for t in range(3):
        t_ += f"v_max3_f32 {M[t]}, {M[t]}, v{S0+4*t}, v{S0+4*t+1}\nv_max3_f32 {M[t]}, {M[t]}, v{S0+4*t+2}, v{S0+4*t+3}\n"
    t_ += "s_add_u32 s6, s6, 0x1000\ns_cmp_lt_u32 s6, s5\ns_cbranch_scc1 L_slow1\n"
    for t in range(3):
        t_ += f"""v_mov_b32 {vA}, {M[t]}
s_nop 1
v_permlane32_swap_b32 {vA}, {M[t]}
s_nop 1
v_max_f32 {M[t]}, {vA}, {M[t]}
v_mov_b32 {vA}, {M[t]}
s_nop 1
v_permlane16_swap_b32 {vA}, {M[t]}
s_nop 1
v_max_f32 {M[t]}, {vA}, {M[t]}
"""
        for i in range(4): t_ += f"v_sub_f32 v{PV0+24+4*t+i}, 0, {M[t]}\n"
    for i in range(96): t_ += f"v_mov_b32 v{i}, 0\n"
    for i in range(12): t_ += f"v_accvgpr_write_b32 a{240+i}, 0\n"
    t_ += "s_mov_b32 s6, s4\nL_slow2:\n"
    for u in range(2):
        for s in range(4): t_ += f"buffer_load_dwordx4 {FR(0, s)}, {vKo}, {srdK}, s6 offen offset:{64*s}\n"
        t_ += "s_waitcnt vmcnt(0)\n"
        for t in range(3):
            for s in range(4): t_ += f"v_mfma_f32_16x16x32_bf16 {Sx[t]}, {FR(0, s)}, {QV(s, t)}, {CN[t] if s == 0 else Sx[t]}\n"
        t_ += "s_nop 9\n"
        for i in range(12): t_ += f"v_exp_f32 v{S0+i}, v{S0+i}\n"
        t_ += "s_nop 0\n"
        for t in range(3):
            for j in range(2): t_ += f"v_cvt_pk_bf16_f32 {PBr(0, 0, t, 2*u + j)}, v{S0+4*t+2*j}, v{S0+4*t+2*j+1}\n"
        if u == 0: t_ += "s_mov_b32 s7, s6\ns_add_u32 s6, s6, 0x1000\n"
    f = FA0 + 16
    for dt in range(8):
        for j in range(8):
            t_ += f"buffer_load_ushort v{FA0 + j}, {vVo if j < 4 else vVo2}, {srdV}, s7 offen offset:{(j & 3)*256 + 32*dt}\n"
        t_ += "s_waitcnt vmcnt(0)\n"
        for j in range(4): t_ += f"v_lshl_or_b32 v{f + j}, v{FA0 + 2*j + 1}, 16, v{FA0 + 2*j}\n"
        t_ += "s_nop 1\n"
        for t in range(3): t_ += f"v_mfma_f32_16x16x32_bf16 {OA(dt, t)}, v[{f}:{f+3}], {PB(0, 0, t)}, {OA(dt, t)}\n"
    for t in range(3): t_ += f"v_mfma_f32_16x16x32_bf16 {LA(t)}, {ONES}, {PB(0, 0, t)}, {LA(t)}\n"
    t_ += "s_add_u32 s6, s6, 0x1000\ns_cmp_lt_u32 s6, s5\ns_cbranch_scc1 L_slow2\ns_nop 9\n"
    for t in range(3): t_ += f"v_accvgpr_read_b32 {vRL[t]}, a{240+4*t}\n"
    for t in range(3): t_ += f"v_rcp_f32 {vRL[t]}, {vRL[t]}\n"
    t_ += "s_nop 0\n"
    for o in placed: t_ += o.text + "\n"
    for o in pendW0: t_ += o.text + "\n"
    t_ += "s_waitcnt lgkmcnt(0)\n"
    t_ += "s_branch L_join\n"
    return lin(t_)

def spin(lbl, back, reg, off_v, srd, soff, exp):
    return lin(f"""{lbl}:
s_mov_b32 s3, 0
{lbl}_l:
buffer_load_dword {reg}, {off_v}, {srd}, {soff}{' offen' if off_v != 'off' else ''} sc1
s_add_u32 s3, s3, 1
s_waitcnt vmcnt(0)
v_cmp_ne_u32 vcc, {exp}, {reg}
s_cmp_gt_u32 s3, 0x10000
s_cbranch_scc1 {back}
s_nop 2
s_cbranch_vccnz {lbl}_l
s_branch {back}""")

def glue3(left):
    o = lin(f"""v_mbcnt_lo_u32_b32 {vA}, -1, 0
v_mbcnt_hi_u32_b32 {vA}, -1, {vA}
v_lshlrev_b32 {vSt}, 4, {vA}
v_and_b32 {vPo}, 7, {vA}
v_lshlrev_b32 {vPo}, 2, {vPo}
v_lshrrev_b32 {vB}, 4, {vA}
v_bfe_u32 {vOut}, {vA}, 2, 2
v_and_b32 {vA}, 3, {vA}
v_lshl_add_u32 {vA}, {vOut}, 4, {vA}
v_lshlrev_b32 {vA}, 10, {vA}
v_lshl_add_u32 {vOut}, {vB}, 4, {vA}
""")
    o += lin(f"""v_mov_b32 {vFl}, {hex(OOB)}
s_lshl_b32 s5, {sG}, 2
s_cmp_eq_u32 {sWave}, 0
s_cselect_b32 s5, s5, {hex(OOB)}
v_writelane_b32 {vFl}, s5, 1
s_mov_b32 {sIt}, 0
s_mov_b32 {sMask}, 0xffff0000""")
    muls = {x.text: x for x in left if "mul" in x.text}
    done = set()
    for x in left:
        if x.text in done: continue
        if "mul" in x.text:
            r_ = int(list(x.wr)[0][1:]); dt, t = x.ot
            mate = f"v_mul_f32 v{r_+1}, {vRL[t]}, v{r_+1}"
            if r_ % 2 == 0 and mate in muls:
                rl = int(vRL[t][1:]); sel = rl & 1
                o.append(V(f"v_pk_mul_f32 v[{r_}:{r_+1}], v[{r_}:{r_+1}], v[{rl-sel}:{rl-sel+1}] op_sel:[0,{sel}] op_sel_hi:[1,{sel}]", rd=[f"v[{r_}:{r_+1}]"], wr=[f"v[{r_}:{r_+1}]"]))
                done.add(mate); continue
        o.append(V(x.text, rd=list(x.rd), wr=list(x.wr)))
    o += lin("\n".join(scal_A()) + f"\ns_cmp_eq_u32 {sSlM}, 7\ns_cbranch_scc1 L_GS")
    return o

def pad_linear(ops):
    out = []
    for o in ops:
        need = 0
        for (p, n) in o.sdeps:
            if p in out: need = max(need, n - sum(x.w for x in out[out.index(p)+1:]))
        if need > 0:
            nop = Op(f"s_nop {need-1}", "x"); nop.w = need; out.append(nop)
        out.append(o)
    return out

def tail(G):
    X = (lambda: stamp()) if OPT["stamps"] == 3 else (lambda: [])
    def sums(set_, loads):
        o0, p0, s0_ = reduce_ops(set_)
        return [WAIT(0, need_vm=loads)] + pad_linear(o0 + p0 + [s0_])
    o = lin("\n".join(scal_B()) + "\ns_nop 1")
    stores = []
    if OPT["wb"] & 2: o += lin(f"s_cmp_lg_u32 {sG}, 0\ns_cbranch_scc1 L_nwa@L\ns_cmp_lg_u32 {sWave}, 3\ns_cbranch_scc1 L_nwa@L\nbuffer_wbl2 sc1\nL_nwa@L:")
    for (cv, sa, st) in pack_store(1):
        o += cv + [sa, st]; stores.append(st)
    if True:
        o += X() + sums(1, G.LD[1]) + X()
        o += [WAIT(0, need_vm=stores)] + X() + lin("s_barrier") + sig_ops()
        o += lin("s_branch L_spinU@L\nL_backU@L:") + X()
        l7 = red_loads(0); o += l7
        if OPT["wb"] & 1: o += lin(f"s_cmp_lg_u32 {sG}, {7 if OPT['wb'] & 4 else 0}\ns_cbranch_scc1 L_nwb@L\ns_cmp_lg_u32 {sWave}, 3\ns_cbranch_scc1 L_nwb@L\nbuffer_wbl2 sc1\nL_nwb@L:")
        o += lin(f"s_add_u32 {sOut}, {sOutR}, {sOc}")
        if OPT["stamps"] == 3: o += lin("s_waitcnt vmcnt(0)") + X()
        o += sums(0, l7) + X() + X()
    return o

def main():
    R2 = build_R2()
    placed = [o for o in R2.epi if o.gap is not None]; placed.sort(key=lambda o: o.pos)
    R1 = build_R1(R2.left)
    R1b = {h: build_R1b(h) for h in (1, 2, 3)}
    R1f = build_R1f()
    G = build_G()
    bind_ext(R1, [R2.pendW0]); bind_ext(R2, [R1f.pend] + [R1b[h].pend for h in R1b]); bind_ext(G, [R2.pendW0, G.pend])
    for h in R1b: bind_ext(R1b[h], [R1.pend])
    for w in R1f.xw: w.text = 's_nop 0'
    pro, zst = prologue(R1f)
    for j, t in enumerate(NEXT): TILE[f'G{j}'] += TILE[t]
    p0 = glue0(zst) + lin("s_branch L_R2")
    sel = lin(f"s_cmp_eq_u32 {sHead}, 2\ns_cbranch_scc1 L_v2\ns_cmp_eq_u32 {sHead}, 3\ns_cbranch_scc1 L_v3")
    v1 = R1b[1].out + lin("s_branch L_R2")
    v2 = lin("L_v2:") + R1b[2].out + lin("s_branch L_R2")
    v3 = lin("L_v3:") + R1b[3].out + mode_check(getattr(R1b[2], "dbg", None)) + code_pf("L_pc2", "L_g3", "L_codeend", 15, 76) + touch_setup()
    g2 = lin(f"s_or_b64 {sBad}, {sBad}, vcc\ns_cbranch_scc1 L_slow\nL_join:\ns_add_u32 {sHead}, {sHead}, 1\ns_cmp_lt_u32 {sHead}, 4")
    g3 = glue3(R2.left)
    g4 = lin(f"s_mov_b32 {sC[0]}, {sC[2]}\ns_add_u32 {sC[1]}, {sC[0]}, 128\ns_and_b32 {sC[1]}, {sC[1]}, 0x3ff\ns_add_u32 {sC[2]}, {sC[1]}, 128\ns_and_b32 {sC[2]}, {sC[2]}, 0x3ff\ns_cmp_lt_u32 {sIt}, 8")
    T = tail(G)
    sA, sB_, sC_, sD_, sE = stamp(1 if OPT['stamps'] in (1, 3) else 0), stamp(), stamp(), stamp(), stamp(2)
    if OPT["bst"]:
        def dump():
            return lin(f"v_mbcnt_lo_u32_b32 {vA}, -1, 0\nv_mbcnt_hi_u32_b32 {vA}, -1, {vA}\nv_lshlrev_b32 {vA}, 2, {vA}") + [Op(f"buffer_store_dword {vLane}, {vA}, {srdWS}, s101 offen", "vm")] + lin("s_add_u32 s101, s101, 256\ns_nop 1")
        sA = lin(f"s_lshl_b32 s101, s2, 2\ns_add_u32 s101, s101, {sWave}\ns_lshl_b32 s101, s101, 12\ns_add_u32 s101, s101, {hex(DUMP_BASE)}")
        sC_ = dump(); sD_ = dump()
    tr = pro + sA
    for hd in range(4):
        tr += [R1f.out + p0, R1.out + sel + v1, R1.out + sel + v2, R1.out + sel + v3][hd] + sB_ + R2.out + g2 + sC_
    tr += g3
    for it in range(4): tr += G.out + g4 + sD_
    tr += T
    resolve_waits(tr, TILE)
    errs = check(tr, "main")
    for e in errs[:20]: print(e, file=sys.stderr)
    assert not errs
    for rg in (R1f, R1, R1b[1], R1b[3], R2, G): print(rg.name, "overfull:", rg.overlog, file=sys.stderr)
    out = [open(os.path.join(os.path.dirname(os.path.abspath(__file__)), "header.txt")).read().rstrip()]
    out.append("; @launch grid=(256,1,1) block=(256,1,1) lds=163840")
    out.append(f""".amdgcn_target "amdgcn-amd-amdhsa--gfx950"
.text
.globl {KN}
.p2align 8
.type {KN},@function
{KN}:""")
    def emit(ops, sc="", lb=""):
        for o in ops:
            if OPT["nobar"] and o.text == "s_barrier" and o.kind == "w": out.append("s_nop 0"); continue
            if OPT["nolg"] and o.kind == "w" and o.text.startswith("s_waitcnt") and "vmcnt" not in o.text: out.append("s_nop 0"); continue
            if OPT["nods"] and o.kind == "ds": continue
            if OPT["novalu"] and o.kind in ("v4", "v8") and o.gap is not None and ("exp" in o.text or "cvt" in o.text or "mul" in o.text or "perm" in o.text or "and" in o.text or "lshl" in o.text or "add_f32" in o.text): continue
            if OPT["nodma"] and o.text.endswith(" lds"): out.append("s_nop 0"); continue
            if OPT["nored"] and " sc1" in o.text and "dwordx4" in o.text: out.append("s_nop 0"); continue
            if getattr(o, "pre", None): out.append(o.pre)
            out.append(o.text.replace("@SC", sc).replace("@L", lb))
    def mark(n):
        return lin("s_memrealtime s[2:3]\ns_waitcnt lgkmcnt(0)\ns_sub_u32 s79, s2, s78") if OPT["dbl"] == n else []
    def idle(n, tag):
        if not n: return []
        return lin(f"""s_memrealtime s[2:3]
s_waitcnt lgkmcnt(0)
s_mov_b32 s5, s2
L_idle{tag}:
s_sleep 2
s_memrealtime s[2:3]
s_waitcnt lgkmcnt(0)
s_sub_u32 s4, s2, s5
s_cmp_lt_u32 s4, {n}
s_cbranch_scc1 L_idle{tag}""")
    def ex(n): return (stamp(2) + lin("s_endpgm")) if OPT["exitat"] == n else []
    emit(pro + mark(3) + idle(OPT['idle0'], 'a') + sA + ex(1) + R1f.out + mark(4) + p0)
    out.append("L_loop:"); emit(R1.out + sel + v1 + v2 + v3); out.append("L_R2:"); emit(idle(OPT['idle1'], 'b') + sB_ + R2.out + g2 + sC_)
    if OPT["dbl"] >= 10:
        emit(lin(f"s_cmp_lg_u32 {sHead}, {OPT['dbl'] - 9}\ns_cbranch_scc1 L_nomark") + mark(OPT["dbl"]) + lin(f"L_nomark:\ns_cmp_lt_u32 {sHead}, 4"))
    if OPT["stamps"] or OPT["bst"]: out.append(f"s_cmp_lt_u32 {sHead}, 4")
    out.append("s_cbranch_scc1 L_loop")
    out.append('L_g3:'); emit(mark(5) + ex(3) + g3)
    for sc, lb in ((NTST, ""), (" sc1", "S")):
        out.append(f"L_G{lb}:"); emit(G.out + g4 + sD_, sc, lb)
        if OPT["stamps"] or OPT["bst"]: out.append(f"s_cmp_lt_u32 {sIt}, 8")
        out.append(f"s_cbranch_scc1 L_G{lb}")
        emit(T + sE, sc, lb)
        if OPT["dbl"]:
            emit(lin(f"""s_waitcnt vmcnt(0)
s_memrealtime s[2:3]
s_waitcnt lgkmcnt(0)
{"s_sub_u32 s4, s2, s78" if OPT["dbl"] == 1 else ("s_mov_b32 s4, 500" if OPT["dbl"] == 2 else "s_mul_i32 s4, s79, 4")}
s_mov_b32 s5, s2
L_dbl{lb}:
s_sleep 4
s_memrealtime s[2:3]
s_waitcnt lgkmcnt(0)
s_sub_u32 s6, s2, s5
s_cmp_lt_u32 s6, s4
s_cbranch_scc1 L_dbl{lb}"""))
        out.append("s_endpgm")
        if not lb: out.append("L_codeend:")
        for nm in ("G0", "G1", "U"): emit(spin(f"L_spin{nm}{lb}", f"L_back{nm}{lb}", vPr, vPo, srdWS, sPoll, sExp))
    emit(lin(f"""L_spinD:
s_add_u32 s3, s3, 1
s_cmp_gt_u32 s3, 0x10000
s_cbranch_scc1 L_backD
s_lshl_b32 {sTmp}, {sB}, 2
buffer_load_dword {vLane}, off, {srdD}, {sTmp} sc1
s_waitcnt vmcnt(0)
s_branch L_chkD"""))
    emit(slow_path(placed, R2.pendW0))
    out.append(f"""s_endpgm
.section .rodata,"a"
.p2align 6
.amdhsa_kernel {KN}
  .amdhsa_next_free_vgpr 512
  .amdhsa_next_free_sgpr 102
  .amdhsa_accum_offset 256
  .amdhsa_group_segment_fixed_size 0
  .amdhsa_kernarg_size 64
  .amdhsa_user_sgpr_count 2
  .amdhsa_user_sgpr_kernarg_segment_ptr 1
  .amdhsa_system_sgpr_workgroup_id_x 1
.end_amdhsa_kernel""")
    print("\n".join(out))
main()
```

```python
import sys, os, struct, math
sys.path.insert(0, os.path.dirname(os.path.abspath(__file__)))
from sched import *
import ringplan

OPT = dict(stamps=0, nt=1, mapping=48, nodma=0, samekv=0, nored=0, ntw=0, ntx=0, bst=0, lrate=3, lburst=4, rsp=8, rk=2, i0=-170, dk=75, ksp=4, wsp=5, gst=4, gld=4, gsig=1, gpoll=108, gsum=8, gdma=40, glc=0, rot=1, gout=189, gdsp=5, lag=1, forceslow=0, ntst=0, pf=128, hrot=0, krot=2, osc=0, idle0=0, idle1=0, exitat=0, wb=0, dbl=0, nperm=1, bdw=2, bda=3, vlate=1, tch=0, gtch=0, kvlate=0, tg=640, tlb=0, fsp=2, nobar=0, nolg=0, nods=0, novalu=0)
for a in sys.argv[1:]:
    k, v = a.split("="); assert k in OPT, k; OPT[k] = float(v) if "." in v else int(v)
Region.LDSRATE = OPT["lrate"]; Region.LDSBURST = OPT["lburst"]
KN = "standalone__mha_block_cached__near_ridge_kernel"

def OA(mt, t): return R("v", (mt*3 + t)*4, 4)
def OAr(mt, t, i): return f"v{(mt*3 + t)*4 + i}"
QV0, PV0, S0, FA0 = 96, 144, 192, 204
def QV(s, t): return R("v", QV0 + (s*3 + t)*4, 4)
def QVr(s, t, i): return f"v{QV0 + (s*3 + t)*4 + i}"
def PB(buf, sg, t): return R("v", PV0 + 24*buf + (sg*3 + t)*4, 4)
def PBr(buf, sg, t, i): return f"v{PV0 + 24*buf + (sg*3 + t)*4 + i}"
def OP(s, t): return R("v", PV0 + (s*3 + t)*4, 4)
def OPr(s, t, i): return f"v{PV0 + (s*3 + t)*4 + i}"
def FR(buf, f, half=None):
    b = FA0 + 16*buf + 4*f
    return R("v", b, 4) if half is None else R("v", b + 2*half, 2)
vK = ["v236", "v237", "v238", "v239"]
vVb, vWb, vT = "v240", "v241", ["v242", "v243"]
vDK, vDV, vDW, vDX, vC = "v244", "v245", "v246", "v247", "v248"
vRL = ["v249", "v250", "v251"]
vLane, vDWo, vA, vB = "v252", "v253", "v254", "v255"
def XA(s, t): return R("a", (s*3 + t)*4, 4)
ZB = {0: 144, 1: 192, 2: 0}
def ZA(h, s, t): return R("a", ZB[h] + (s*3 + t)*4, 4)
def LA(t): return R("a", 240 + 4*t, 4)
ONES = "a[252:255]"

srdK, srdV, srdW, srdX, srdWS, srdO, srdD = (f"s[{i}:{i+3}]" for i in (8, 12, 16, 20, 24, 28, 32))
sW1k, sXcc, sRot, sOc = "s36", "s37", "s38", "s39"
sC = ["s40", "s41", "s42"]
sDg = ["s43", "s44", "s45", "s46"]
sIdx = "s99"
sKoff, sVoff, sWcol = "s47", "s48", "s49"
sD = [None, "s50", "s51", "s52"]
sDY = [None, "s53", "s54", "s55"]
sT = ["s56", "s57", "s58", "s59"]
sW4k, sHead, sScale, sWave, sB, sG, sLo, sHi = (f"s{i}" for i in range(60, 68))
sBad = "s[84:85]"
sN = [f"s{i}" for i in range(86, 92)]
sTmp = "s100"
sIt, sSt, sSig, sExp, sLd, sLd2, sOut = (f"s{i}" for i in range(86, 93))
sStR, sLdR, sFlR, sOutR, sSlM, sLdMin, sGate = (f"s{i}" for i in range(68, 75))
sPoll = sSig; sPo = "s99"; sTk, sTh, sTo = "s43", "s44", "s45"
sU = ["s4", "s5"]; sMask = "s6"
OOB = 0x40000000
FLAG_BASE = 0x3040000
STAMP_BASE = 0x3100000
DUMP_BASE = 0x4000000
WS_BYTES = 0x8000000 if OPT["bst"] else 0x3200000
CHUNK = 196608
ORD = [(0,0),(0,1),(0,2),(1,0),(0,3),(1,3),(1,1),(1,2)]
ORDG = [(j >> 2, j & 3) for j in range(8)]
NT = " nt" if OPT["nt"] else ""
NTW = " nt" if OPT["ntw"] else ""
NTX = " nt" if OPT["ntx"] else ""
def wq_lit(step): return ORD[step][1]*0x100000 + ORD[step][0]*128
def wo_lit(m): return (m & 3)*0x20000 + (m >> 2)*128

def S(text, rd=(), wr=(), **kw): return Op(text, "s", rd=rd, wr=wr, **kw)
def V(text, rd=(), wr=(), **kw): return Op(text, "v4", rd=rd, wr=wr, **kw)
def V8(text, rd=(), wr=(), **kw): return Op(text, "v8", rd=rd, wr=wr, **kw)
def WAIT(d, need_ds=(), need_vm=(), lg0=False, late=3, e=-1):
    o = Op("s_waitcnt ?", "w", e=e, d=d, late=late, deps=[(x, 1) for x in need_ds])
    o.need_ds, o.need_vm, o.lg0 = list(need_ds), list(need_vm), lg0
    return o
def lin(text):
    return [Op(l.strip(), "x") for l in text.strip().split("\n") if l.strip()]

class Ctx: pass
C = Ctx(); C.grp = 0

ringplan.setb(OPT["bdw"], OPT["bda"]); BDW, BDA = OPT["bdw"], OPT["bda"]
wI = {"W0": -210, "W1": -135, "W2": -55, "W3": 36 + BDW, "W4": 78, "W5": 112, "W6": 162, "W7": 186}
xI = {"Xa": -430, "Xb": -350, "Xc": -280}
ISS, SLOT, _c, NEED = ringplan.plan(OPT["i0"], OPT["dk"], wI, xI)
assert SLOT is not None
SPR = {}
for t in ISS:
    m = ISS[t] % 1200
    sp = OPT["ksp"] if t[0] in "KV" else OPT["wsp"]
    if 228 <= m < 288: ISS[t] += 290 - m; m = 290
    SPR[t] = min(sp, ((240 if m < 288 else 1200) - 5 - m)//3); assert SPR[t] >= 1
BASE = {}
for ch in "KVW":
    for i, b in enumerate(ringplan.bases([SLOT[f"{ch}{i}"] for i in range(8)])[1]): BASE[f"{ch}{i}"] = b
XB = min(SLOT["Xa"], SLOT["Xb"], SLOT["Xc"]); assert max(SLOT["Xa"], SLOT["Xb"], SLOT["Xc"]) - XB <= 3
NEXT = sorted([t for t in ISS if ISS[t] < 0 and t[0] in "WX"], key=lambda t: (t != "W0", ISS[t]))
print("plan:", ISS, SLOT, BASE, NEXT, file=sys.stderr)
TILE = {}
def lit(x): return hex(x & 0xffffffff)
def rebase(rg, typ, old, new, e, d, after=()):
    if old == new: return []
    regs_ = vK if typ == "K" else [vVb if typ == "V" else vWb]
    return [rg.F(V(f"v_add_u32 {r}, {lit((new - old)*16384)}, {r}", rd=[r], wr=[r], e=e, d=d, deps=[(a, 0) for a in after if a])) for r in regs_]
def wq_t0(dst, step):
    hf, dg = ORD[step]
    return [f"s_add_u32 {dst}, {sWcol}, {sDg[dg]}"] + ([f"s_add_u32 {dst}, {dst}, 128"] if hf else [])
def x_t0(dst, a, q):
    return [f"s_lshr_b32 {dst}, {sDg[q]}, 12"] + ([f"s_add_u32 {dst}, {dst}, {a*65536}"] if a else [])
def tile_src(spec):
    k = spec[0]
    if k == "W": return srdW, vDW, wq_t0(sT[0], spec[1]), sD, NTW
    if k == "C": return srdW, vDW, [f"s_add_u32 {sT[0]}, {sC[spec[1]]}, {hex(spec[2]*0x20000)}"], sD, NTW
    if k == "N": return srdW, vDW, [f"s_mov_b32 {sT[0]}, {sN[spec[1]]}"], sD, NTW
    if k == "Y": return srdX, vDX, [f"s_mov_b32 {sT[0]}, {sN[spec[1]]}"], sDY, NTX
    if k == "X": return srdX, vDX, x_t0(sT[0], spec[1], spec[2]), sDY, NTX
def add_dmas(rg, items):
    ev = []
    for (name, spec, slot, e, sp, bar) in items:
        for i in range(4): ev.append((e + sp*i, e, i, name, spec, slot, bar))
    ev.sort(key=lambda x: (x[0], x[1]))
    prev = None; cur = None; wopen = None; ts = None; lastw = None; m0 = None
    for (t, e0, i, name, spec, slot, bar) in ev:
        deps = []
        if bar is not None: deps.append((bar, 0))
        if prev is not None: deps.append((prev, 1))
        if cur != slot:
            m0 = rg.F(Op(f"s_add_u32 m0, {sW4k}, {slot*16384}", "t", wr=["m0"], e=t - 6, deps=([(prev, 1)] if prev else []))); cur = slot
        deps.append((m0, 1))
        if spec[0] in "KV":
            so, vo, srd = (sKoff, vDK, srdK) if spec[0] == "K" else (sVoff, vDV, srdV)
            st = rg.inc.get(spec[0])
            if st is not None and i == 0: deps.append((st, 0))
            o = rg.F(Op(f"buffer_load_dwordx4 {vo}, {srd}, {so} offen offset:{i*1024}{NT} lds", "vm", rd=[vo, so, "m0"], e=t, d=t + 4, deps=deps))
            if i == 3:
                inc = rg.F(Op(f"s_add_u32 {so}, {so}, 0x4000", "t", rd=[so], wr=[so], deps=[(o, 1)], d=t + 12))
                if name[1] == "7":
                    inc = rg.F(Op(f"s_and_b32 {so}, {so}, 0x7ffff", "t", rd=[so], wr=[so], deps=[(inc, 0)], d=t + 14))
                    nr = "s10" if name[0] == "K" else "s14"
                    rg.F(S(f"s_cmp_eq_u32 {sHead}, 3", deps=[(o, 1)])); inc2 = rg.F(S(f"s_cselect_b32 {nr}, 0, {nr}", d=t + 20))
                rg.inc[spec[0]] = inc
        else:
            srd, vo, t0, dl, fl = tile_src(spec)
            if i == 0:
                assert wopen is None, "W-type tiles may not interleave"
                wopen = name
                tt = rg.F(Op(t0[0], "t", wr=[sT[0]], e=t - 12, deps=([(lastw, 1)] if lastw else [])))
                for x in t0[1:]: tt = rg.F(Op(x, "t", wr=[sT[0]], deps=[(tt, 0)]))
                ts = [tt]
                ts += [rg.F(Op(f"s_add_u32 {sT[j]}, {sT[0]}, {dl[j]}", "t", wr=[sT[j]], deps=[(ts[0], 0)])) for j in (1, 2, 3)]
            o = rg.F(Op(f"buffer_load_dwordx4 {vo}, {srd}, {sT[i]} offen offset:{i*1024}{fl} lds", "vm", rd=[vo, sT[i], "m0"], e=t, d=t + 4, deps=deps + [(ts[i], 0)]))
            if i == 3: wopen = None; lastw = o
        if i == 3: TILE.setdefault(name, []).append(o)
        if i == 0: rg.first_dma[name] = o
        prev = o
    rg.lastw = lastw
def head_dmas(rg, lo, hi):
    items = []
    for t in ISS:
        m = ISS[t] % 1200
        if not (lo <= m < hi): continue
        spec = (t[0],) if t[0] in "KV" else (("W", int(t[1])) if ISS[t] >= 0 else (("N" if t[0] == "W" else "Y"), NEXT.index(t)))
        cands = [g for g in rg.bars if g + lo <= m and any(SLOT[p] == SLOT[t] and NEED[p][1] % 1200 == g + lo for p in NEED)]
        bar = rg.bars[max(cands)] if cands else None
        items.append((t, spec, SLOT[t], m - lo, SPR[t], bar))
    add_dmas(rg, items)
def dma_linear(name, spec, slot):
    ops = lin(f"s_add_u32 m0, {sW4k}, {slot*16384}")
    if spec[0] in "KV":
        so, vo, srd = (sKoff, vDK, srdK) if spec[0] == "K" else (sVoff, vDV, srdV)
        d = [Op(f"buffer_load_dwordx4 {vo}, {srd}, {so} offen offset:{i*1024}{NT} lds", "vm") for i in range(4)]
        ops += lin("s_nop 0") + d + lin(f"s_add_u32 {so}, {so}, 0x4000")
    else:
        srd, vo, t0, dl, fl = tile_src(spec)
        d = [Op(f"buffer_load_dwordx4 {vo}, {srd}, {sT[i]} offen offset:{i*1024}{fl} lds", "vm") for i in range(4)]
        ops += lin("\n".join(t0) + "\n" + "\n".join(f"s_add_u32 {sT[i]}, {sT[0]}, {dl[i]}" for i in (1, 2, 3))) + d
    TILE.setdefault(name, []).append(d[-1])
    return ops
def reads_X(rg, addr, slots, dst, e, d, deps, step=1):
    ops = []
    for t in range(3):
        for s in range(4):
            r_, imm = addr(slots[t], s)
            ops.append(rg.F(Op(f"ds_read_b128 {dst(s, t)}, {r_} offset:{imm}", "ds", rd=[r_], wr=[dst(s, t)], e=e, d=d + len(ops)*step,
                               deps=list(deps) + ([(ops[-1], 0)] if ops else []))))
    return ops

def new_region(name):
    rg = Region(name); rg.nst = {"R1": 0, "R1f": 0, "R2": 6, "G": 0}.get(name, 5)
    ext_waits(rg)
    rg.tuse = {0: [], 1: []}; rg.bars = {}; rg.inc = {}; rg.first_dma = {}; rg.wq = bool(OPT["nperm"]) and name != "G"
    return rg

def xor_addr(rg, base, k, ti, e, d, after=()):
    if k == 0: return base, None
    deps = [(x, 0) for x in rg.tuse[ti]] + [(a, 0) for a in after]
    o = rg.F(V(f"v_xor_b32 {vT[ti]}, {k*32}, {base}", rd=[base], wr=[vT[ti]], e=e, d=d, deps=deps))
    rg.tuse[ti] = []
    return vT[ti], o
def reads_W(rg, so, mt, buf, e, deps=(), ups=(), rsp=None):
    if rg.wq:
        if mt == 2: a, xo = xor_addr(rg, vWb, 2, 0, e - 8, e, ups)
        else: a, xo = (vWb if mt < 2 else vT[0]), None
        so += 8*(mt & 1)
    else: a, xo = xor_addr(rg, vWb, mt, mt & 1, e - 8, e, ups)
    dp = list(deps) + ([(xo, 1)] if xo else [(u, 1) for u in ups])
    ops = []
    for s in range(4):
        for p in range(2):
            ops.append(rg.F(Op(f"ds_read_b64_tr_b16 {FR(buf, s, p)}, {a} offset:{so + s*4096 + p*2048}", "ds", rd=[a], wr=[FR(buf, s, p)],
                               e=e, d=min(e + 1 + len(ops)*(rsp or OPT['rsp'])//8, e + 9), deps=dp + ([(ops[-1], 0)] if ops else []))))
    if rg.wq:
        if mt >= 2: rg.tuse[0] = ops
    elif xo: rg.tuse[mt & 1] = ops
    rg.lastWr = ops
    return ops, xo
def reads_K(rg, so, u, buf, e, deps=(), ups=()):
    ops = []
    for s in range(4):
        ops.append(rg.F(Op(f"ds_read_b128 {FR(buf, s)}, {vK[s]} offset:{so + u*1024}", "ds", rd=[vK[s]], wr=[FR(buf, s)],
                           e=e, d=e + 3 + len(ops)*OPT['rk'], deps=list(deps) + [(x, 1) for x in ups] + ([(ops[-1], 0)] if ops else []))))
    return ops
def reads_V(rg, so, dp_, buf, e, deps=(), ups=(), late=0):
    ops = []; xs = []
    for k in range(2):
        dt = 2*dp_ + k
        a, xo = xor_addr(rg, vVb, dt, k, e - 10, e + 4*k, ups)
        if xo: xs.append(xo)
        dd = list(deps) + ([(xo, 1)] if xo else [(u, 1) for u in ups])
        mine = []
        for sg in range(2):
            for p in range(2):
                o = rg.F(Op(f"ds_read_b64_tr_b16 {FR(buf, 2*k + sg, p)}, {a} offset:{so + sg*2048 + p*1024}", "ds", rd=[a], wr=[FR(buf, 2*k + sg, p)],
                            e=e, d=(e + 2 + len(ops)*OPT['rsp']//8) if not late else (e + 3 + 2*len(ops) if k == 0 else e + 5 + (len(ops)*5)//4), deps=dd + ([(ops[-1], 0)] if ops else [])))
                ops.append(o); mine.append(o)
        if xo: rg.tuse[k] = mine
    return ops, xs

def barrier(rg, gap, last_reads, tiles, extra=(), lg0=True, st=True):
    w = rg.F(WAIT(gap - 1, need_ds=last_reads, need_vm=list(tiles) + list(extra), lg0=lg0, late=1))
    w.deps += [(x, 1) for x in extra if x in rg.fill]
    b = rg.F(Op("s_barrier", "w", e=gap, d=gap, deps=[(w, 1)])); rg.bars[gap] = b
    if OPT["bst"] and st:
        w.pre = "s_memtime s[2:3]"
        i = rg.nst; rg.nst += 1
        rg.F(V(f"v_writelane_b32 {vLane}, s2, {i}", e=gap + 1, d=gap + 8))
    return b
def xstamp(rg, gap, idx, dep):
    if OPT["bst"] < 2: return
    w = rg.F(Op("s_memtime s[2:3]\ns_waitcnt lgkmcnt(0)", "w", e=gap, d=gap, deps=[(dep, 1)]))
    rg.F(V(f"v_writelane_b32 {vLane}, s2, {idx}", deps=[(w, 0)], d=gap))
def ext_waits(rg):
    rg.xw = []
    for d in (-1, 1):
        w = WAIT(d, late=1); w.e = d; rg.F(w); rg.xw.append(w)
def bind_ext(rg, preds):
    rg.xw[0].alt_ds = [p[:4] for p in preds]; rg.xw[1].alt_ds = list(preds)
def frag_waits(rg, rd_ops, first_use, n_first, second_use, only_first=False):
    if rd_ops is None: return
    rg.F(WAIT(first_use - 1, need_ds=rd_ops[:n_first], late=2))
    if n_first < len(rd_ops) and not only_first: rg.F(WAIT(second_use - 1, need_ds=rd_ops, late=1))

def so_(sb): return (sb[0] - sb[1])*16384
def w_step(rg, half, zero, Bop, pend, cur, nxt, need, extra=(), more_reads=(), xwait=None, post=None):
    b0 = rg.n(); info = dict(b0=b0); xlast = None
    if xwait:
        for t in range(3): rg.F(WAIT(b0 + 4*t - 1, need_ds=xwait[:4*t + 4], late=1))
        info["xbar"] = barrier(rg, b0 + 10, xwait, (), lg0=False, st=False)
    for mt in range(4):
        buf = C.grp & 1; C.grp += 1
        g0 = b0 + 12*mt
        if pend is not None and (mt < 3 or BDW): frag_waits(rg, pend, g0, 4, g0 + 2, only_first=(mt == 3))
        for t in range(3):
            for s in range(4):
                acc = OA(4*half + mt, t)
                rg.M(mfma(acc, FR(buf, s), Bop(s, t), "0" if (zero and s == 0) else acc))
        if mt < 3:
            pend, xo = reads_W(rg, so_(cur[1:3]), mt + 1, buf ^ 1, g0 - 1 if (mt or b0) else g0)
            if xo: xlast = xo
            if mt == 0 and rg.wq: base_users = pend
            if mt == 2: bar = barrier(rg, g0 + 11 + BDW, pend + list(more_reads), need, extra)
        else:
            ups = rebase(rg, nxt[0], nxt[3], nxt[2], b0 + 20, g0 - 2, after=([xlast] + (base_users if rg.wq else [])) if nxt[0] == "W" else [])
            if nxt[0] == "W": pend, _ = reads_W(rg, so_(nxt[1:3]), 0, buf ^ 1, g0 - 1 + BDW, deps=[(bar, 0)], ups=ups, rsp=(4 if post else None))
            else: pend = reads_K(rg, so_(nxt[1:3]), 0, buf ^ 1, g0 - 1 + BDW, deps=[(bar, 0)], ups=ups)
            if post: info["post"] = post(g0, bar)
    info["bar"] = bar; info["end"] = rg.n() - 1
    return pend, info
def TS(name, prev=None):
    k, i = name[0], int(name[1])
    return (k, SLOT[name], BASE[name], BASE[f"{k}{(i - 1) % 8}"])

def softmax(rg, g0, u, Sr, pbuf, d_over, d_puse):
    sg = u >> 1
    for t in range(3):
        last = rg.mf[g0 + 4*t + 3]
        dl = min(d_over(t), d_puse(t) - 3)
        ex = [rg.F(V8(f"v_exp_f32 {Sr(t,i)}, {Sr(t,i)}", rd=[Sr(t,i)], wr=[Sr(t,i)], e=last.gap, sdeps=[(last, 8)], trans=True)) for i in range(4)]
        for j in range(2):
            dst = PBr(pbuf, sg, t, 2*(u & 1) + j)
            rg.F(V(f"v_cvt_pk_bf16_f32 {dst}, {Sr(t,2*j)}, {Sr(t,2*j+1)}", rd=[Sr(t,2*j), Sr(t,2*j+1)], wr=[dst], d=dl,
                   sdeps=[(ex[2*j], 1), (ex[2*j+1], 1)]))
def k_mfmas(rg, buf, Sd):
    for t in range(3):
        for s in range(4):
            rg.M(mfma(Sd(t), FR(buf, s), QV(s, t), "0" if s == 0 else Sd(t)))
def v_mfmas(rg, dp_, buf, pbuf, zero, tmajor=False):
    order = [(k, t) for t in range(3) for k in range(2)] if tmajor else [(k, t) for k in range(2) for t in range(3)]
    last = {}
    for k, t in order:
        for sg in range(2):
            acc = OA(2*dp_ + k, t)
            last[(2*dp_ + k, t)] = rg.M(mfma(acc, FR(buf, 2*k + sg), PB(pbuf, sg, t), "0" if (zero and sg == 0) else acc))
    return last
def sum_mfmas(rg, t, pbuf, zero):
    for sg in range(2):
        o = rg.M(mfma(LA(t), ONES, PB(pbuf, sg, t), "0" if (zero and sg == 0) else LA(t)))
    return o
def o_epilogue_ops(dt, t):
    mul = [V(f"v_mul_f32 {OAr(dt,t,i)}, {vRL[t]}, {OAr(dt,t,i)}", rd=[OAr(dt,t,i), vRL[t]], wr=[OAr(dt,t,i)]) for i in range(4)]
    cvt = []
    for j in range(2):
        dst = OPr(dt >> 1, t, 2*(dt & 1) + j)
        cvt.append(V(f"v_cvt_pk_bf16_f32 {dst}, {OAr(dt,t,2*j)}, {OAr(dt,t,2*j+1)}", rd=[OAr(dt,t,2*j), OAr(dt,t,2*j+1)], wr=[dst],
                     deps=[(mul[2*j], 0), (mul[2*j+1], 0)]))
    for o in mul + cvt: o.ot = (dt, t)
    return mul, cvt
def q_muls(rg, mt, t, last, **kw):
    return [rg.F(V(f"v_mul_f32 {OAr(mt,t,i)}, {sScale}, {OAr(mt,t,i)}", rd=[OAr(mt,t,i)], wr=[OAr(mt,t,i)],
                   e=(last.gap if last is not None else -1), sdeps=([(last, 8)] if last is not None else []), **kw)) for i in range(4)]
def q_epilogue(rg, sp, t, lastA, lastB, d_use, muls=True):
    cv = []
    for k, last in ((0, lastA), (1, lastB)):
        mt = 2*sp + k
        mul = q_muls(rg, mt, t, last) if muls else None
        for j in range(2):
            dst = QVr(sp, t, 2*k + j)
            cv.append(rg.F(V(f"v_cvt_pk_bf16_f32 {dst}, {OAr(mt,t,2*j)}, {OAr(mt,t,2*j+1)}", rd=[OAr(mt,t,2*j), OAr(mt,t,2*j+1)], wr=[dst],
                             deps=([(mul[2*j], 0), (mul[2*j+1], 0)] if muls else []))))
    if OPT["nperm"]:
        for o in cv: o.d = d_use - 3
        return
    for j in range(2):
        a, b = QVr(sp, t, j), QVr(sp, t, 2 + j)
        p1 = rg.F(V8(f"v_permlane32_swap_b32 {a}, {b}", rd=[a, b], wr=[a, b], sdeps=[(cv[j], 2), (cv[2+j], 2)]))
        rg.F(V8(f"v_permlane16_swap_b32 {a}, {b}", rd=[a, b], wr=[a, b], sdeps=[(p1, 2)], d=d_use - 3))

def BopQ(st):
    dg = ORD[st][1]
    return (lambda s, t: XA(4*dg + s, t)) if dg < 3 else (lambda s, t: QV(s, t))

def build_R2():
    rg = new_region("R2")
    C.grp = 24
    pend, i6 = w_step(rg, ORD[6][0], False, BopQ(6), None, TS("W6"), TS("W7"), ["W7"])
    pend, i7 = w_step(rg, ORD[7][0], False, BopQ(7), pend, TS("W7"), TS("K0"), ["K0"])
    a0 = rg.n(); b7 = i7["b0"]
    for sp in (0, 1):
        for t in range(3): q_epilogue(rg, sp, t, None, None, min(a0 + 4*t + sp, 20 + (sp*3 + t)*9), muls=True)
    for sp in (2, 3):
        for t in range(3):
            mA, mB = 2*sp - 4, 2*sp - 3
            q_epilogue(rg, sp, t, rg.mf[b7 + 12*mA + 4*t + 3], rg.mf[b7 + 12*mB + 4*t + 3], a0 + 4*t + sp)
    tch = [rg.F(Op(f"buffer_load_dword {vB}, {vLane}, {srdWS}, {sreg} offen sc1", "vm", rd=[vLane], wr=[vB], e=g, d=g + 6))
           for sreg, g in (("s76", OPT["tg"]), ("s77", OPT["tg"] + 40))]
    B = lambda i: a0 + 48 + 102*i
    GK = [0, 26, 52, 78]; GV = [12, 38, 64, 90]
    def puse(i, sg, t): return (B(i) + 12 + 2*t + sg) if i < 7 else (B(7) + 4*t + sg)
    def so(n): return so_(TS(n)[1:3])
    def rb(n, e, d, after=()): x = TS(n); return rebase(rg, x[0], x[3], x[2], e, d, after)
    for u in range(4):
        buf = C.grp & 1; C.grp += 1; g0 = rg.n()
        if u < 3 or BDW: frag_waits(rg, pend, g0, 2, g0 + 2, only_first=(u == 3))
        k_mfmas(rg, buf, lambda t: OA(u, t))
        softmax(rg, g0, u, lambda t, i: OAr(u, t, i), 0, lambda t: 10**9, lambda t: puse(0, u >> 1, t))
        if u < 3:
            pend = reads_K(rg, so("K0"), u + 1, buf ^ 1, g0 - 1)
            if u == 2: bar = barrier(rg, g0 + 11 + BDW, pend, ["K1", "V0"]); lastK = pend
        else:
            ups = rb("K1", g0 - 12, g0 - 2, lastK)
            pend = reads_K(rg, so("K1"), 0, buf ^ 1, g0 - 1 + BDW, deps=[(bar, 0)], ups=ups)
            upsV = rb("V0", -1, g0)
    for i in range(7):
        b0 = rg.n(); assert b0 == B(i)
        for u in range(4):
            buf = C.grp & 1; C.grp += 1; g0 = rg.n(); assert g0 == b0 + GK[u]
            frag_waits(rg, pend, g0, 2, g0 + 2)
            k_mfmas(rg, buf, lambda t: R("v", S0 + 4*t, 4))
            nxtK = (b0 + GK[u+1]) if u < 3 else (B(i+1) if i < 6 else None)
            softmax(rg, g0, u, lambda t, j: f"v{S0 + 4*t + j}", (i + 1) & 1,
                    (lambda t: nxtK + 4*t - 1) if nxtK else (lambda t: 10**9), lambda t: puse(i + 1, u >> 1, t))
            pend, xs = reads_V(rg, so(f"V{i}"), u, buf ^ 1, g0 - 1, ups=(upsV if u == 0 else ()), late=(OPT["vlate"] if u < 3 else 0))
            if u == 3: bar = barrier(rg, g0 + 11 + BDA, pend, [f"K{i+2}", f"V{i+1}"] if i < 6 else ["V7"], extra=(tch if i == 6 else ())); lastX = xs
            buf = C.grp & 1; C.grp += 1; g0 = rg.n(); assert g0 == b0 + GV[u]
            if u < 3 or BDA: frag_waits(rg, pend, g0, 4, g0 + 6, only_first=(u == 3))
            v_mfmas(rg, u, buf, i & 1, i == 0)
            if u < 3:
                sum_mfmas(rg, u, i & 1, i == 0)
                pend = reads_K(rg, so(f"K{i+1}"), u + 1, buf ^ 1, g0 - 1)
                if u == 2: lastK = pend
            elif i < 6:
                ups = rb(f"K{i+2}", g0 - 20, g0 - 2, lastK)
                pend = reads_K(rg, so(f"K{i+2}"), 0, buf ^ 1, g0 - 1 + BDA, deps=[(bar, 0)], ups=ups)
                upsV = rb(f"V{i+1}", g0 - 10, g0 + 4, lastX)
            else:
                upsV = rb("V7", g0 - 10, g0 - 2, lastX)
                pend, _ = reads_V(rg, so("V7"), 0, buf ^ 1, g0 - 1 + BDA, late=0, deps=[(bar, 0)], ups=upsV)
    E = rg.n(); assert E == B(7)
    epi = []
    for p in range(4):
        buf = C.grp & 1; C.grp += 1; g0 = rg.n()
        if p == 0: frag_waits(rg, pend, g0, 4, g0 + 2)
        elif p < 3 or BDW: frag_waits(rg, pend, g0, 4, g0 + 6, only_first=(p == 3))
        last = v_mfmas(rg, p, buf, 1, False, tmajor=(p == 0))
        if p == 0:
            rl = []; lr = []
            for t in range(3):
                ls = sum_mfmas(rg, t, 1, False)
                lr.append(rg.F(V(f"v_accvgpr_read_b32 {vRL[t]}, a{240+4*t}", rd=[f"a{240+4*t}"], wr=[vRL[t]], e=ls.gap, sdeps=[(ls, 8)], d=E + 28)))
            mn = rg.F(V(f"v_min3_f32 {vA}, {vRL[0]}, {vRL[1]}, {vRL[2]}", rd=vRL, wr=[vA], deps=[(x, 0) for x in lr], d=E + 30))
            mx = rg.F(V(f"v_max3_f32 {vB}, {vRL[0]}, {vRL[1]}, {vRL[2]}", rd=vRL, wr=[vB], deps=[(x, 0) for x in lr], d=E + 30))
            rg.F(V(f"v_cmp_gt_f32 {sBad}, {sLo}, {vA}", rd=[vA], wr=[sBad], deps=[(mn, 0)], d=E + 40))
            rg.F(V(f"v_cmp_lt_f32 vcc, {sHi}, {vB}", rd=[vB], wr=["vcc"], deps=[(mx, 0)], d=E + 40))
            for t in range(3):
                rl.append(rg.F(V8(f"v_rcp_f32 {vRL[t]}, {vRL[t]}", rd=[vRL[t]], wr=[vRL[t]], deps=[(mn, 0), (mx, 0)], trans=True, d=E + 34)))
        for (dt, t), lm in last.items():
            mul, cvt = o_epilogue_ops(dt, t)
            for o in mul: o.e = lm.gap; o.sdeps = [(lm, 8), (rl[t], 1)]
            for o in mul + cvt:
                o.optional = True
                if dt >= 4 and o in cvt: o.e = 10**9
                rg.F(o); epi.append(o)
        if p < 3:
            pend, xs = reads_V(rg, so("V7"), p + 1, buf ^ 1, g0 - 1 if p != 0 else g0 + 3)
            if p == 2: bar = barrier(rg, g0 + 11 + BDW, pend, ["W0", "Xa", "Xb", "Xc"])
        else:
            ups = rb("W0", -1, g0 - 2, [])
            for o in ups: o.e = a0
            if OPT["nperm"]: ups = ups + [rg.F(V(f"v_mad_i32_i24 {vWb}, {vC}, {sGate}, {vWb}", rd=[vC, vWb], wr=[vWb], e=a0, d=g0 - 4))]
            pend, _ = reads_W(rg, so("W0"), 0, buf ^ 1, g0 - 1 + BDW, deps=[(bar, 0)], ups=ups, rsp=8)
    assert sorted(g + 288 for g in rg.bars) == ringplan.bS[6:] + [ringplan.bQ] + ringplan.bB + [ringplan.bP]
    head_dmas(rg, 288, 1200)
    rg.pendW0 = pend; rg.epi = epi
    rg.schedule()
    return rg

def half0_muls(rg, b4):
    for mt in range(4):
        for t in range(3): q_muls(rg, mt, t, rg.mf[b4 + 12*mt + 4*t + 3])

def build_R1(left):
    rg = new_region("R1")
    C.grp = 0
    xa = [rg.F(V(f"v_add_u32 v{S0+s}, {sW1k}, {vK[s]}", rd=[vK[s]], wr=[f"v{S0+s}"], d=6)) for s in range(4)]
    xr = reads_X(rg, lambda sl, s: (f"v{S0+s}", (sl - XB)*16384), [SLOT["Xa"], SLOT["Xb"], SLOT["Xc"]], QV, 4, 9, [(a, 1) for a in xa], step=2)
    pend = None; infos = []
    for st in range(5):
        pend, inf = w_step(rg, ORD[st][0], st in (0, 3), BopQ(st), pend, TS(f"W{st}"), TS(f"W{st+1}"), [f"W{st+1}"], more_reads=(xr if st == 0 else ()))
        infos.append(inf)
    new = {}
    for o in left:
        dt, t = o.ot
        n = V(o.text, rd=list(o.rd), wr=list(o.wr)); n.ot = o.ot; new[id(o)] = n
        n.deps = [(new[id(p)], g) for (p, g) in o.deps if id(p) in new]
        n.e = 8 if dt >= 6 else -1
        n.d = ((12*dt + 4*t) if dt < 4 else (144 + 12*(dt - 4) + 4*t)) - 1
        rg.F(n)
    head_dmas(rg, 0, 288)
    rg.pend = pend
    rg.schedule()
    return rg

def build_R1b(h, zst=None):
    rg = new_region(f"R1b{h}")
    C.grp = 20
    pend, inf = w_step(rg, ORD[5][0], False, BopQ(5), None, TS("W5"), TS("W6"), ["W6"])
    for i in range(48): rg.F(V(f"v_accvgpr_write_b32 a{ZB[h-1] + i}, v{PV0 + i}", rd=[f"v{PV0+i}"], wr=[f"a{ZB[h-1]+i}"]))
    next_setup(rg, h)
    rg.pend = pend
    rg.schedule()
    return rg

def next_setup(rg, h):
    T = lambda x, **kw: rg.F(S(x, **kw))
    if h < 3:
        T(f"s_add_u32 {sWcol}, {sWcol}, 256", deps=([(rg.lastw, 1)] if getattr(rg, "lastw", None) else []))
        for t in NEXT:
            if t[0] == "W":
                for x in wq_t0(sN[NEXT.index(t)], int(t[1])): T(x)
    if h == 2:
        a = T(f"s_lshl_b32 {sTmp}, {sB}, 2")
        if not OPT["bst"]: rg.dbg = rg.F(Op(f"buffer_load_dword {vLane}, off, {srdD}, {sTmp} sc1", "vm", wr=[vLane], deps=[(a, 0)]))
    if h == 3:
        for x in ("s_mov_b32 s16, s80", "s_mov_b32 s17, s81", "s_mov_b32 s18, 0x80000", "s_mov_b32 s20, s80", "s_mov_b32 s21, s81", "s_mov_b32 s22, 0x80000",
                  f"s_mov_b32 {sGate}, 1"): T(x)
        for i in (1, 2, 3): T(f"s_mov_b32 {sD[i]}, {7168*i}"); T(f"s_mov_b32 {sDY[i]}, {7168*i}")
        for m in range(6): T(f"s_add_u32 {sN[m]}, {sRot if m < 4 else sC[0]}, {hex((m & 3)*0x20000)}")
        if OPT["tlb"]:
            sw = T(f"s_mov_b32 {sTmp}, {hex(FLAG_BASE + 0x20080)}")
            for srd, so in ((srdW, "0"), (srdWS, "s75"), (srdWS, sTmp), (srdO, sOutR)):
                rg.F(Op(f"buffer_load_dword {vB}, off, {srd}, {so}", "vm", wr=[vB], deps=[(sw, 0)]))
        rg.F(V(f"v_mov_b32 {vDW}, {vDWo}", rd=[vDWo], wr=[vDW])); rg.F(V(f"v_mov_b32 {vDX}, {vDWo}", rd=[vDWo], wr=[vDX]))

def build_R1f():
    X = lambda q: [f"x{q}{a}" for a in range(3)]
    final = [t for t in ISS if ISS[t] < 288 and t[0] in "KV"] + ["W6", "W7"]
    assert set(final) == {"K0", "K1", "V0", "K2", "V1", "K3", "W6", "W7"}, final
    if OPT["kvlate"] < 4:
        init = X(0) + ["w0"] + X(1) + ["w1", "K0", "K1"]
        inh = list(zip(X(2), X(0))) + [("w2", "w0")] + list(zip(["w3", "x30", "x31"], X(1))) + [("x32", "w1")] + \
              list(zip(["w4", "V0", "w5"], X(2))) + [("K2", "w2"), ("W6", "w3")] + list(zip(["V1", "W7", "K3"], X(3)))
    else:
        init = X(0) + ["w0"] + X(1) + ["w1", "x20", "x21"]
        inh = list(zip(["x22", "w2", "w3"], X(0))) + [("x30", "w0")] + list(zip(["x31", "x32", "w4"], X(1))) + [("w5", "w1")] + \
              list(zip(["W6", "W7", "K0"], X(2))) + [("K1", "w2"), ("V0", "w3")] + list(zip(["K2", "V1", "K3"], X(3)))
    sl = {t: SLOT[t] for t in final}
    for new, old in reversed(inh):
        if new in sl: sl[old] = sl[new]
    free = [x for x in range(10) if x not in {sl[t] for t in init if t in sl}]
    for t in init:
        if t not in sl: sl[t] = free.pop()
    for new, old in inh: sl[new] = sl[old]
    def spec(t):
        if t[0] == "x": return ("X", int(t[2]), int(t[1]))
        if t[0] in "wW": return ("W", int(t[1]))
        return (t[0],)
    wsl = [sl[f"w{j}"] for j in range(6)] + [SLOT["W6"]]
    wb = [min(x, 6) for x in wsl[:6]] + [BASE["W6"]]
    rg = new_region("R1f")
    C.grp = 0
    xaddr = lambda s_, s: (f"v{S0 + 4*(s_ >> 2) + s}", (s_ & 3)*16384)
    dst = {0: (1, lambda s, t: XA(4 + s, t)), 1: (2, lambda s, t: XA(8 + s, t)), 3: (3, QV)}
    pend = None; infos = []; xw = None
    for st in range(6):
        post = None; need = [f"w{st+1}" if st < 5 else "W6"]
        if st in dst:
            q, fn = dst[st]; need += X(q)
            post = (lambda q, fn: lambda g0, bar: reads_X(rg, xaddr, [sl[t] for t in X(q)], fn, g0 + 2 + BDW, g0 + 5 + BDW, [(bar, 0)]))(q, fn)
        pend, inf = w_step(rg, ORD[st][0], st in (0, 3), BopQ(st), pend, ("W", wsl[st], wb[st]), ("W", wsl[st+1], wb[st+1], wb[st]), need, xwait=xw, post=post)
        xw = inf.get("post"); infos.append(inf)
    rel = {"w%d" % j: infos[j]["bar"] for j in range(6)}
    for q, st in ((1, 1), (2, 2), (3, 4)):
        for t in X(q): rel[t] = infos[st]["xbar"]
    items = []; tcur = 0
    if OPT["kvlate"] < 4:
        seq = [(t, None) for t in ("x20", "x21", "x22")] + inh[3:]
        kp = {0: (3, 4), 1: (8, 9), 2: (4, 9), 3: (9, 12)}[OPT["kvlate"]]
        seq.insert(kp[0], ("K0", None)); seq.insert(kp[1], ("K1", None))
    else: seq = [(t, None) for t in ("x20", "x21", "x22", "w2", "w3")] + inh[3:]
    for new, old in seq:
        if old: tcur = max(tcur, rel[old].e)
        items.append((new, spec(new), sl[new], tcur, OPT["fsp"], rel[old] if old else None)); tcur += 4*OPT["fsp"] + 1
    add_dmas(rg, items)
    next_setup(rg, 0)
    rg.pend = pend
    rg.schedule()
    rg.init = [(t, spec(t), sl[t]) for t in init[:8]]; rg.wb0 = wb[0]; rg.wso0 = (wsl[0] - wb[0])*16384
    rg.x0 = [xaddr(sl[t], 0) for t in X(0)]; rg.xsl0 = [sl[t] for t in X(0)]; rg.xaddr = xaddr
    return rg

RLD = [[R("v", QV0 + 4*g, 4) for g in range(8)],
       [R("v", QV0 + 32 + 4*g, 4) for g in range(4)] + [R("v", S0 + 4*g, 4) for g in range(3)] + ["v[236:239]"]]
vTo = vLane if not OPT['bst'] else 'v235'
vSt, vFl, vPo, vPr, vOut = vDK, vDV, vVb, vDX, vC
LAG = OPT['lag']; OSC = ['', ' sc1', ' nt', ' sc0 sc1'][OPT['osc']]
NTST = ' nt' if OPT['ntst'] else ''
LO = ["v249", "v250", "v251", "v253"]
def pack_store(chunk):
    res = []
    for t in range(3):
        for np_ in range(2):
            a, b = 4*chunk + 2*np_, 4*chunk + 2*np_ + 1
            src = [(OAr(a,t,0), OAr(a,t,1)), (OAr(a,t,2), OAr(a,t,3)), (OAr(b,t,0), OAr(b,t,1)), (OAr(b,t,2), OAr(b,t,3))]
            cv = []
            for j in range(4):
                cv.append(V(f"v_cvt_pk_bf16_f32 {OAr(a,t,j)}, {src[j][0]}, {src[j][1]}", rd=list(src[j]), wr=[OAr(a,t,j)], deps=([(cv[-1], 0)] if cv else [])))
            k = 2*t + np_
            sa = S(f"s_add_u32 {sU[k & 1]}, {sSt}, {k*8192}", wr=[sU[k & 1]])
            st = Op(f"buffer_store_dwordx4 {OA(a,t)}, {vSt}, {srdWS}, {sU[k & 1]} offen@SC", "vm", rd=[OA(a,t), vSt], deps=[(cv[-1], 1), (sa, 0)])
            res.append((cv, sa, st))
    return res
def reduce_ops(set_):
    X = [regs(r_) for r_ in RLD[set_]]
    tmp = [vA, vB]; ops = []; n = 0
    for k in range(4):
        ops += [V(f"v_lshlrev_b32 {LO[k]}, 16, {X[0][k]}", rd=[X[0][k]], wr=[LO[k]]),
                V(f"v_and_b32 {X[0][k]}, {sMask}, {X[0][k]}", rd=[X[0][k]], wr=[X[0][k]])]
        for g in range(1, 8):
            tm = tmp[n & 1]; n += 1
            ops += [V(f"v_lshlrev_b32 {tm}, 16, {X[g][k]}", rd=[X[g][k]], wr=[tm]),
                    V(f"v_and_b32 {X[g][k]}, {sMask}, {X[g][k]}", rd=[X[g][k]], wr=[X[g][k]]),
                    V(f"v_add_f32 {LO[k]}, {LO[k]}, {tm}", rd=[LO[k], tm], wr=[LO[k]]),
                    V(f"v_add_f32 {X[0][k]}, {X[0][k]}, {X[g][k]}", rd=[X[0][k], X[g][k]], wr=[X[0][k]])]
        ops.append(V(f"v_cvt_pk_bf16_f32 {X[0][k]}, {LO[k]}, {X[0][k]}", rd=[LO[k], X[0][k]], wr=[X[0][k]]))
    for a, b in zip(ops, ops[1:]): b.deps.append((a, 0))
    pl = []
    for j in range(2):
        pl.append(V8(f"v_permlane32_swap_b32 {X[0][j]}, {X[0][2+j]}", rd=[X[0][j], X[0][2+j]], wr=[X[0][j], X[0][2+j]], sdeps=[(ops[-1], 2)]))
    for j in range(2):
        pl.append(V8(f"v_permlane16_swap_b32 {X[0][j]}, {X[0][2+j]}", rd=[X[0][j], X[0][2+j]], wr=[X[0][j], X[0][2+j]], sdeps=[(pl[j], 2)]))
    st = Op(f"buffer_store_dwordx4 {RLD[set_][0]}, {vOut}, {srdO}, {sOut} offen{OSC}", "vm", rd=[RLD[set_][0], vOut, sOut], deps=[(pl[2], 1), (pl[3], 1)])
    return ops, pl, st
def red_loads(set_):
    return [Op(f"buffer_load_dwordx4 {RLD[set_][g]}, {vSt}, {srdWS}, {sLd if g < 4 else sLd2} offen offset:{(g & 3)*1024} sc1", "vm",
               rd=[vSt], wr=[RLD[set_][g]]) for g in range(8)]
def sig_ops():
    return [Op(f"buffer_store_dword {vSt}, {vFl}, {srdWS}, {sSig} offen@SC", "vm", rd=[vSt, vFl])]
def scal_A():
    return [f"s_sub_u32 {sTmp}, {sIt}, 1", f"s_and_b32 {sTmp}, {sTmp}, {sSlM}", f"s_mul_i32 {sTmp}, {sTmp}, {CHUNK}",
            f"s_add_u32 {sSt}, {sStR}, {sTmp}", f"s_add_u32 {sLd}, {sLdR}, {sTmp}",
            f"s_cmp_ge_u32 {sIt}, 1", f"s_cselect_b32 {sSt}, {sSt}, {hex(OOB)}", f"s_cselect_b32 {sSig}, {sFlR}, {hex(OOB)}",
            f"s_cselect_b32 {sExp}, 16, 0", f"s_cselect_b32 {sPo}, {sFlR}, {hex(FLAG_BASE + 0x20000)}",
            f"s_cselect_b32 {sLd}, {sLd}, {hex(OOB)}", f"s_add_u32 {sLd2}, {sLd}, 0x1000",
            f"s_add_u32 {sFlR}, {sFlR}, 256"]
def scal_B():
    return [f"s_add_u32 {sOut}, {sOutR}, {sOc}", f"s_cmp_ge_u32 {sIt}, 2", f"s_cselect_b32 {sOut}, {sOut}, {hex(OOB)}",
            f"s_add_u32 {sOc}, {sOc}, 128", f"s_and_b32 {sOc}, {sOc}, 0x3ff", f"s_add_u32 {sIt}, {sIt}, 1"]

def build_G():
    rg = new_region("G")
    used = [SLOT[t] for t in NEXT]
    gs = used + [SLOT["K0"]] + [x for x in range(10) if x not in used and x not in (SLOT["K0"], SLOT["K1"], SLOT["V0"])][:1]
    assert len(gs) == 8
    gb = ringplan.bases(gs)[1]; assert gb[0] == BASE["W0"]
    rg.gs = gs; items = []; bars = {}; rg.st_last = {}; rg.sB_last = {}; rg.tch = {}
    C.grp = 0
    def Bop(h): return (lambda s, t: ZA(h, s, t)) if h < 3 else (lambda s, t: OP(s, t))
    LD = [red_loads(0), red_loads(1)]
    pend = None; prev_users = []
    for hf in range(2):
        h0 = 192*hf
        stores = []
        for (cv, sa, st) in pack_store(1 - hf):
            for o in cv: o.e = h0 + 8; rg.F(o)
            if len(stores) >= 2: sa.deps.append((stores[-2], 1))
            rg.F(sa); st.e = h0 + 10 + OPT['gst']*len(stores); st.d = st.e + 3; rg.F(st); stores.append(st)
        sc = [rg.F(S(x, e=h0, deps=[(u, 1) for u in prev_users])) for x in scal_B()]
        rg.sB_last[hf] = sc[-1]
        if OPT["gtch"]:
            ca, cb = (sC[1], sC[2]) if hf == 0 else (sC[2], None)
            tk = [rg.F(S(f"s_cmp_lt_u32 {sTk}, 2", e=h0 + 20))]
            if hf == 0: tk.append(rg.F(S(f"s_cselect_b32 {sTmp}, {ca}, {cb}")))
            else: tk += [rg.F(S(f"s_cselect_b32 {sTmp}, 0, 128")), rg.F(S(f"s_add_u32 {sTmp}, {sTmp}, {ca}")), rg.F(S(f"s_and_b32 {sTmp}, {sTmp}, 0x3ff"))]
            tk.append(rg.F(S(f"s_add_u32 {sTo}, {sTmp}, {sTh}")))
            rg.tch[hf] = rg.F(Op(f"buffer_load_dword {vPr}, {vTo}, {srdW}, {sTo} offen", "vm", rd=[vTo], wr=[vPr], deps=[(tk[-1], 0), (stores[-1], 1)], d=h0 + 38))
        rg.sB_last[hf] = [x for x in rg.fill if x.kind == 's'][-1]
        cur = hf ^ 1
        w0 = rg.F(WAIT(h0 + OPT['gsum'], need_vm=LD[cur], late=1)); w0.e = h0 + OPT['gsum']
        o0, p0, s0_ = reduce_ops(cur)
        o0[0].deps.append((w0, 0))
        for o in o0 + p0 + [s0_]: rg.F(o)
        s0_.d = h0 + OPT['gout']; s0_.deps += [(sc[2], 0), (LD[hf][-1], 1)]
        infos = []
        for j in range(4):
            st = 4*hf + j
            n1 = (st + 1) & 7
            pend, inf = w_step(rg, hf, j == 0, Bop(j), pend, ("W", gs[st], gb[st]), ("W", gs[n1], gb[n1], gb[st]), [f"G{n1}"], extra=(stores if j == 1 else ()))
            infos.append(inf); bars[st] = inf["bar"]
        sig, = sig_ops(); bs = infos[1]["bar"]
        sig.deps = [(bs, 0)]; sig.d = bs.e + 1; rg.F(sig)
        po = rg.F(S(f"s_load_dwordx8 s[8:15], s[82:83], {sPo}{' glc' if OPT['glc'] else ''}", e=h0 + OPT['gpoll'], d=h0 + OPT['gpoll'] + 4))
        b2 = infos[2]["bar"]
        ck = [rg.F(S(x, deps=[(b2, 0)])) for x in ("s_and_b32 s8, s8, s9", "s_and_b32 s10, s10, s11", "s_and_b32 s12, s12, s13", "s_and_b32 s14, s14, s15",
              "s_and_b32 s8, s8, s10", "s_and_b32 s12, s12, s14", "s_and_b32 s8, s8, s12", f"s_and_b32 s8, s8, {sExp}", f"s_cmp_lg_u32 s8, {sExp}")]
        br = rg.F(Op(f"s_cbranch_scc1 L_spinG{hf}@L\nL_backG{hf}@L:", "s", d=b2.e + 12))
        prev = None
        for i, o in enumerate(LD[hf]):
            o.deps += [(br, 0)] + ([(prev, 1)] if prev else []); o.e = b2.e + 10 + OPT['gld']*i; o.d = o.e + 3; rg.F(o); prev = o
        prev_users = [s0_]
        for i, x in enumerate(scal_A()): rg.F(S(x, deps=[(LD[hf][-1], 1)] if i == 0 else []))
        for k in range(4):
            st = (4*hf - 2 + k) & 7
            items.append((f"G{st}", ("C", (1 + (st >> 2)) if (hf or k > 1) else 0, st & 3), gs[st], h0 + OPT["gdma"] + k*(4*OPT["gdsp"] + 1), OPT["gdsp"],
                          bars[st] if (hf or k > 1) else stores[-1]))
        rg.st_last[hf] = stores[-1]
    add_dmas(rg, items)
    c1 = S(f"s_cmp_ge_u32 {sIt}, 7", deps=[(TILE["G7"][-1], 1)]); c2 = S("s_cselect_b32 s18, 0, s18", wr=["s18"], rd=["s18"])
    pos = rg.fill.index(rg.sB_last[0]) + 1
    rg.fill[pos:pos] = [c1, c2]
    for i, o in enumerate(rg.fill): o.seq = i + 1
    rg.first_dma["G0"].deps.append((c2, 0))
    rg.first_dma["G6"].deps.append((rg.st_last[0], 1)); rg.first_dma["G2"].deps.append((rg.st_last[1], 1))
    rg.LD = LD; rg.pend = pend
    rg.schedule()
    return rg

def stamp(kind=0):
    if not OPT["stamps"]: return []
    def put(x): return lin(f"v_mov_b32 {vA}, {x}") + [Op(f"buffer_store_dword {vA}, off, {srdWS}, s101", "vm")] + lin("s_add_u32 s101, s101, 4\ns_nop 1")
    if kind == 1: return put("s94") + put("s92") + stamp()
    if kind == 2: return lin("s_waitcnt vmcnt(0)") + stamp()
    return lin("s_memtime s[2:3]\ns_memrealtime s[4:5]\ns_waitcnt lgkmcnt(0)") + put("s2") + put("s4")

def code_pf(lbl, start, end, mask, r):
    if not OPT["pf"]: return []
    return lin(f"""s_getpc_b64 s[{r}:{r+1}]
{lbl}:
s_add_u32 s{r}, s{r}, {start}-{lbl}
s_addc_u32 s{r+1}, s{r+1}, {"-1" if start == KN else "0"}
s_mov_b32 s{r+2}, {end}-{start}
s_mov_b32 s{r+3}, 0x20000
s_lshl_b32 s5, {sIdx}, 2
s_add_u32 s5, s5, {sWave}
s_and_b32 s5, s5, {mask}
s_lshl_b32 s5, s5, 13
v_mbcnt_lo_u32_b32 {vA}, -1, 0
v_mbcnt_hi_u32_b32 {vA}, -1, {vA}
v_lshlrev_b32 {vA}, 7, {vA}""") + [Op(f"buffer_load_dword {vB}, {vA}, s[{r}:{r+3}], s5 offen", "vm")]

def prologue(F):
    init = F.init
    o = lin(f"""
s_cmp_lt_u32 s2, 256
s_cbranch_scc1 L_go
s_endpgm
L_go:
{"s_memrealtime s[92:93]" if (OPT["stamps"] or OPT["dbl"]) else ""}
{"s_memtime s[94:95]" if OPT["stamps"] else ""}
s_load_dwordx16 s[68:83], s[0:1], 0
v_lshrrev_b32 v1, 6, v0
v_and_b32 {vLane}, 63, v0
s_and_b32 s4, s2, 7
v_readfirstlane_b32 {sWave}, v1
s_lshr_b32 s5, s2, 3
s_mov_b32 {sIdx}, s5""")
    mp = {84: (1, 3, 2, 1, 2, 3), 48: (0, 2, 3, 0, 3, 7), 162: (2, 4, 1, 3, 1, 1)}[OPT["mapping"]]
    o += lin(f"""
s_lshr_b32 s6, s4, {mp[0]}
s_lshl_b32 s6, s6, {mp[1]}
s_lshr_b32 s7, s5, {mp[2]}
s_add_u32 {sB}, s6, s7
s_and_b32 s6, s4, {mp[3]}
s_lshl_b32 s6, s6, {mp[4]}
s_and_b32 s7, s5, {mp[5]}
s_add_u32 {sG}, s6, s7""")
    cbits = struct.unpack("<I", struct.pack("<f", math.log2(math.e)/math.sqrt(128)))[0]
    o += lin(f"""
s_lshl_b32 {sW4k}, {sWave}, 12
v_lshrrev_b32 v5, 4, {vLane}
v_and_b32 v6, 15, {vLane}
s_lshl_b32 s6, {sWave}, 4
v_add_u32 v1, s6, v5
s_lshl_b32 s6, {sWave}, 2
v_or_b32 v2, s6, v5
v_xor_b32 v2, v2, v6
v_lshlrev_b32 v2, 4, v2
v_lshl_add_u32 {vDX}, v1, 10, v2
v_lshl_add_u32 {vDK}, v1, 8, v2
v_lshrrev_b32 v7, 5, {vLane}
v_bfe_u32 v2, {vLane}, 3, 2
v_lshl_add_u32 v7, v7, 3, v2
s_lshl_b32 s6, {sWave}, 5
v_add_u32 v7, s6, v7
v_and_b32 v3, 7, {vLane}
v_lshlrev_b32 v4, 1, v5
v_xor_b32 v3, v3, v4
v_lshlrev_b32 v3, 4, v3
v_lshl_add_u32 {vDW}, v7, 13, v3
s_mov_b32 {sDY[1]}, 3072
s_mov_b32 {sDY[2]}, 6144
s_mov_b32 {sDY[3]}, 9216
s_mov_b32 {sD[1]}, {16*8192 - 1024}
s_mov_b32 {sD[2]}, {4*8192 - 2048}
s_mov_b32 {sD[3]}, {20*8192 - 3072}
s_lshr_b32 s4, {sB}, 2
s_and_b32 s5, s4, {3 if OPT["hrot"] else 0}
s_lshl_b32 {sWcol}, s5, 8
s_lshl_b32 {sKoff}, s5, 17
s_mov_b32 {sVoff}, {sKoff}
{f"s_add_u32 s4, {sB}, {sG}" if OPT["krot"] == 2 else ""}
s_and_b32 s4, s4, {3 if OPT["krot"] else 0}
s_lshl_b32 {sDg[0]}, s4, 20
s_add_u32 {sDg[1]}, {sDg[0]}, 0x100000
s_and_b32 {sDg[1]}, {sDg[1]}, 0x3fffff
s_xor_b32 {sDg[2]}, {sDg[0]}, 0x200000
s_xor_b32 {sDg[3]}, {sDg[1]}, 0x200000
s_mul_i32 s7, {sB}, 196608
s_mov_b32 s22, 196608
s_mov_b32 s23, 0x20000
s_mov_b32 s19, 0x20000
s_lshl_b32 s4, {sG}, 10
s_sub_u32 s18, 0x400000, s4
s_waitcnt lgkmcnt(0)
s_add_u32 s20, s68, s7
s_addc_u32 s21, s69, 0
s_add_u32 s16, s74, s4
s_addc_u32 s17, s75, 0""")
    if OPT["tch"]:
        o += lin(f"""v_lshrrev_b32 v8, 1, {vLane}
v_and_b32 v9, 1, {vLane}
v_lshlrev_b32 v9, 7, v9
v_lshl_add_u32 v11, v8, 13, v9
v_lshl_add_u32 v8, v8, 10, v9
v_mov_b32 v10, {hex(OOB)}
v_cmp_gt_u32 vcc, 12, {vLane}
s_lshl_b32 s4, {sG}, 2
s_add_u32 s4, s4, {sWave}
s_mul_i32 s4, s4, 6144
v_cndmask_b32 v8, v10, v8, vcc
v_cmp_gt_u32 vcc, 16, {vLane}
s_and_b32 s5, {sB}, 3
s_lshl_b32 s5, s5, 2
s_add_u32 s5, s5, {sWave}
s_lshl_b32 s5, s5, 16
s_add_u32 s5, s5, {sWcol}
v_cndmask_b32 v11, v10, v11, vcc
v_add_u32 v8, s4, v8
v_add_u32 v11, s5, v11""")
        for q in range(OPT["tch"] - 1, 4):
            o += lin(f"s_lshr_b32 s3, {sDg[q]}, 12")
            o += [Op(f"buffer_load_dword {vB}, v8, {srdX}, s3 offen", "vm"), Op(f"buffer_load_dword {vB}, v11, {srdW}, {sDg[q]} offen", "vm")]
    for j in range(4): o += dma_linear(*init[j])
    o += lin(f"""s_lshl_b32 s3, {sB}, 22
s_lshl_b32 s7, {sG}, 19
s_add_u32 s3, s3, s7
{"s_mov_b32 s3, 0" if OPT["samekv"] else ""}
s_add_u32 s8, s70, s3
s_addc_u32 s9, s71, 0
s_mov_b32 s10, 0x80000
s_mov_b32 s11, 0x20000
s_add_u32 s12, s72, s3
s_addc_u32 s13, s73, 0
s_mov_b32 s14, 0x80000
s_mov_b32 s15, 0x20000
""")
    if OPT["tlb"]:
        o += [Op(f"buffer_load_dword {vB}, off, {srdK}, 0", "vm"), Op(f"buffer_load_dword {vB}, off, {srdV}, 0", "vm")]
        o += [Op(f"buffer_load_dword {vB}, off, {srdW}, {sDg[q]}", "vm") for q in (1, 2, 3)]
    o += code_pf("L_pc", KN, "L_G", OPT["pf"] - 1, 88)
    o += lin(f"""
v_lshrrev_b32 v7, 3, {vLane}
v_add_u32 v7, s6, v7
v_lshl_add_u32 {vDWo}, v7, 10, v3
s_and_b32 s6, {sWave}, 1
s_lshl_b32 s6, s6, 2
v_or_b32 v2, s6, v5
v_lshlrev_b32 v2, 1, v2
v_xor_b32 v2, v2, v6
v_lshlrev_b32 v1, 8, v1
v_lshl_add_u32 {vDV}, v2, 4, v1
s_mov_b32 s24, s82
s_mov_b32 s25, s83
s_mov_b32 s26, {hex(WS_BYTES)}
s_mov_b32 s27, 0x20000
v_lshrrev_b32 v1, 3, {vLane}
v_and_b32 v2, 7, {vLane}
v_lshlrev_b32 v1, 8, v1
v_lshl_add_u32 v8, v2, 2, v1
s_lshl_b32 s6, {sB}, 11
s_add_u32 s6, s6, {hex(FLAG_BASE)}
s_or_b32 s7, {sG}, {sWave}
s_cmp_eq_u32 s7, 0
s_cselect_b32 {sTmp}, s6, {hex(OOB)}
v_mov_b32 v9, 0""")
    zst = Op(f"buffer_store_dword v9, v8, {srdWS}, {sTmp} offen sc1", "vm"); o.append(zst)

    o += lin(f"""
s_mov_b32 {sScale}, {hex(cbits)}
s_mov_b32 {sLo}, 0x30800000
s_mov_b32 {sHi}, 0x4e800000
s_mov_b32 {sHead}, 0
s_lshl_b32 {sW1k}, {sWave}, 10
s_mov_b32 s28, s78
s_mov_b32 s29, s79
s_mov_b32 s30, 0x600000
s_mov_b32 s31, 0x20000
s_mov_b32 s32, s80
s_mov_b32 s33, s81
s_mov_b32 s34, 0x100
s_mov_b32 s35, 0x20000

v_lshrrev_b32 v1, 2, v6
v_and_b32 v2, 3, v6
v_lshl_add_u32 v3, v1, 4, v2
v_lshlrev_b32 v3, 8, v3""")
    for s in range(4):
        o += lin(f"v_add_u32 v4, {4*s}, v5\nv_xor_b32 v4, v4, v6\nv_lshl_add_u32 {vK[s]}, v4, 4, v3")
    o += lin(f"""
v_lshl_add_u32 v3, v5, 4, v1
v_lshlrev_b32 v3, 8, v3
v_and_b32 v4, 1, v5
v_lshl_add_u32 v7, v4, 2, v1
v_lshl_add_u32 v3, v7, 5, v3
v_lshl_add_u32 v3, v2, 3, v3
v_add_u32 {vVb}, {BASE["V7"]*16384}, v3
v_lshl_add_u32 v3, v5, 2, v1
v_lshlrev_b32 v3, 7, v3
v_lshrrev_b32 v7, 1, v1
v_lshl_add_u32 v7, v4, 1, v7
{"v_lshlrev_b32 v7, 1, v7" if OPT["nperm"] else "v_lshl_add_u32 v3, v7, 5, v3"}
{"v_xor_b32 v7, v7, v2" if OPT["nperm"] else ""}
{"v_lshl_add_u32 v7, v7, 4, v3" if OPT["nperm"] else "v_lshl_add_u32 v7, v2, 3, v3"}
v_add_u32 {vWb}, {F.wb0*16384}, v7
v_mov_b32 v3, 0x3f803f80
v_accvgpr_write_b32 a252, v3
v_accvgpr_write_b32 a253, v3
v_accvgpr_write_b32 a254, v3
v_accvgpr_write_b32 a255, v3
""")
    for s in range(4):
        o += lin(f"v_add_u32 v{S0+s}, {sW1k}, {vK[s]}\nv_add_u32 v{S0+4+s}, 0x10000, v{S0+s}\nv_add_u32 v{S0+8+s}, 0x20000, v{S0+s}\nv_add_u32 {vK[s]}, {BASE['K7']*16384}, {vK[s]}")
    o += lin(f"s_add_u32 {sW1k}, {sW1k}, {lit((XB - BASE['K7'])*16384)}")
    for j in range(4, 8): o += dma_linear(*init[j])
    o += lin(f"""s_lshl_b32 s6, {sG}, 19
s_add_u32 s80, s76, s6
s_addc_u32 s81, s77, 0
s_mov_b32 {sGate}, 0
{"s_mov_b32 s73, s92" if OPT["dbl"] else ""}
s_mov_b32 s76, {hex(OOB)}
s_mov_b32 s77, {hex(OOB)}
s_getreg_b32 {sXcc}, hwreg(HW_REG_XCC_ID, 0, 3)
s_lshr_b32 {sRot}, {sB}, 2
s_and_b32 {sRot}, {sRot}, {7 if OPT["rot"] else 0}
s_lshl_b32 {sRot}, {sRot}, 7
s_lshl_b32 {sXcc}, {sXcc}, 2
s_lshl_b32 {sXcc}, 1, {sXcc}""" + "".join(f"\ns_add_u32 {sC[i]}, {sRot}, {128*(i+1)}\ns_and_b32 {sC[i]}, {sC[i]}, 0x3ff" for i in range(3))
      + "".join("\n" + "\n".join(x_t0(sN[NEXT.index('X' + 'abc'[a])], a, 3)) for a in range(3)) + f"""
s_mul_i32 s6, {sB}, {8*CHUNK + 4096}
s_mov_b32 s75, s6
s_add_u32 s6, s6, 4096
s_mul_i32 s7, {sWave}, 49152
s_add_u32 {sStR}, s6, s7
s_lshl_b32 s7, {sG}, 10
s_add_u32 {sStR}, {sStR}, s7
s_mul_i32 s7, {sG}, 3
s_add_u32 s7, s7, {sWave}
s_lshl_b32 s4, s7, 13
s_add_u32 {sLdR}, s6, s4
s_lshl_b32 {sFlR}, {sB}, 11
s_add_u32 {sFlR}, {sFlR}, {hex(FLAG_BASE - 256)}
s_lshr_b32 s4, s7, 1
s_mul_i32 s5, s4, 11
s_lshr_b32 s5, s5, 5
s_mul_i32 s3, s5, 3
s_sub_u32 s4, s4, s3
s_lshl_b32 s4, s4, 6
s_lshl_b32 s5, s5, 2
s_add_u32 s4, s4, s5
s_mul_i32 s5, {sB}, 192
s_add_u32 s4, s4, s5
s_lshl_b32 s4, s4, 10
s_and_b32 s5, s7, 1
s_lshl_b32 s5, s5, 6
s_add_u32 {sOutR}, s4, s5
s_sub_u32 {sOc}, {sRot}, 256
s_and_b32 {sOc}, {sOc}, 0x3ff
s_cmp_eq_u32 {sWave}, 3
s_cselect_b32 {sLdR}, {hex(OOB)}, {sLdR}
s_cselect_b32 {sOutR}, {hex(OOB)}, {sOutR}
v_bfe_u32 v3, {vLane}, 3, 2
v_and_b32 v2, 3, {vLane}
v_lshlrev_b32 {vC}, 5, v3
v_lshl_add_u32 {vC}, v2, 3, {vC}
v_lshlrev_b32 v3, 1, v3
v_xor_b32 v2, v2, v3
v_lshlrev_b32 v2, 4, v2
v_sub_u32 {vC}, {vC}, v2""")
    if OPT["stamps"]:
        o += lin(f"s_lshl_b32 s101, s2, 10\ns_lshl_b32 s6, {sWave}, 8\ns_add_u32 s101, s101, s6\ns_add_u32 s101, s101, {hex(STAMP_BASE)}")
    if OPT["stamps"] == 2: o += stamp(1)
    o.append(WAIT(0, need_vm=[x[0] for x in init[:4]]))
    o += lin("s_barrier")
    if OPT["stamps"] == 2: o += stamp()
    for t in range(3):
        for s in range(4): o += lin("ds_read_b128 %s, %s offset:%d" % ((XA(s, t),) + F.xaddr(F.xsl0[t], s)))
    for s in range(4):
        for p in range(2): o += lin(f"ds_read_b64_tr_b16 {FR(0, s, p)}, {vWb} offset:{F.wso0 + s*4096 + p*2048}")
    o += lin("s_waitcnt lgkmcnt(0)\ns_barrier")
    return o, zst

def glue0(zst):
    return [WAIT(0, need_vm=[zst])] + lin(f"""s_lshl_b32 s6, {sB}, 2
s_cmp_eq_u32 {sWave}, 0
s_cselect_b32 s6, s6, {hex(OOB)}
v_mov_b32 {vB}, {hex(OOB)}
v_writelane_b32 {vB}, 0, 0
v_mov_b32 {vA}, {sXcc}""") + [Op(f"buffer_atomic_add {vA}, {vB}, {srdD}, s6 offen sc1", "vm")]
def touch_setup():
    return lin(f"""v_mbcnt_lo_u32_b32 {vA}, -1, 0
v_mbcnt_hi_u32_b32 {vA}, -1, {vA}
s_cmp_eq_u32 {sSlM}, 1
s_cselect_b32 s76, {sLdR}, {hex(OOB)}
s_cselect_b32 s4, 256, {hex(OOB)}
{"" if OPT["bst"] else f"v_lshlrev_b32 {vLane}, 7, {vA}"}
v_and_b32 {vA}, 7, {vA}
v_lshlrev_b32 {vA}, 8, {vA}
s_add_u32 s77, s76, {CHUNK}
s_add_u32 s4, s4, {sFlR}""") + [Op(f"buffer_load_dword {vB}, {vA}, {srdWS}, s4 offen sc1", "vm")]
def mode_check(dbg):
    if OPT["bst"]: return lin(f"L_chkD:\nL_backD:\ns_mov_b32 {sSlM}, 1")
    return [WAIT(0, need_vm=[dbg])] + lin(f"""s_mov_b32 s3, 0
L_chkD:
v_readfirstlane_b32 s4, {vLane}
s_nop 3
s_lshr_b32 s5, s4, 4
s_and_b32 s5, s5, 0x0f0f0f0f
s_and_b32 s7, s4, 0x0f0f0f0f
s_add_u32 s5, s5, s7
s_mul_i32 s5, s5, 0x01010101
s_lshr_b32 s5, s5, 24
s_cmp_lg_u32 s5, 8
s_cbranch_scc1 L_spinD
L_backD:
s_lshl_b32 s5, {sXcc}, 3
{"s_mov_b32 s5, 0" if OPT["forceslow"] else ""}
s_cmp_eq_u32 s4, s5
s_cselect_b32 {sSlM}, 1, 7""")

def slow_path(placed, pendW0):
    vKo, vVo, vVo2 = f"v{PV0+40}", f"v{PV0+41}", f"v{PV0+42}"
    M = [f"v{PV0+36+t}" for t in range(3)]
    CN = [R("v", PV0 + 24 + 4*t, 4) for t in range(3)]
    Sx = [R("v", S0 + 4*t, 4) for t in range(3)]
    t_ = f"""
L_slow:
s_waitcnt vmcnt(0) lgkmcnt(0)
s_nop 7
v_mbcnt_lo_u32_b32 {vB}, -1, 0
v_mbcnt_hi_u32_b32 {vB}, -1, {vB}
v_and_b32 {vA}, 15, {vB}
v_lshrrev_b32 {vB}, 4, {vB}
v_lshlrev_b32 {vKo}, 8, {vA}
v_lshl_add_u32 {vKo}, {vB}, 4, {vKo}
v_lshlrev_b32 {vVo}, 10, {vB}
v_lshl_add_u32 {vVo}, {vA}, 1, {vVo}
v_add_u32 {vVo2}, 0x1000, {vVo}
s_lshr_b32 s4, {sB}, 2
s_and_b32 s4, s4, {3 if OPT["hrot"] else 0}
s_add_u32 s4, s4, {sHead}
s_and_b32 s4, s4, 3
s_lshl_b32 s4, s4, 17
s_mov_b32 s10, 0x80000
s_mov_b32 s14, 0x80000
s_add_u32 s5, s4, 0x20000
s_mov_b32 s6, s4
"""
    for t in range(3): t_ += f"v_mov_b32 {M[t]}, 0xff800000\n"
    t_ += "L_slow1:\n"
    for s in range(4): t_ += f"buffer_load_dwordx4 {FR(0, s)}, {vKo}, {srdK}, s6 offen offset:{64*s}\n"
    t_ += "s_waitcnt vmcnt(0)\n"
    for t in range(3):
        for s in range(4): t_ += f"v_mfma_f32_16x16x32_bf16 {Sx[t]}, {FR(0, s)}, {QV(s, t)}, {'0' if s == 0 else Sx[t]}\n"
    t_ += "s_nop 9\n"
    for t in range(3):
        t_ += f"v_max3_f32 {M[t]}, {M[t]}, v{S0+4*t}, v{S0+4*t+1}\nv_max3_f32 {M[t]}, {M[t]}, v{S0+4*t+2}, v{S0+4*t+3}\n"
    t_ += "s_add_u32 s6, s6, 0x1000\ns_cmp_lt_u32 s6, s5\ns_cbranch_scc1 L_slow1\n"
    for t in range(3):
        t_ += f"""v_mov_b32 {vA}, {M[t]}
s_nop 1
v_permlane32_swap_b32 {vA}, {M[t]}
s_nop 1
v_max_f32 {M[t]}, {vA}, {M[t]}
v_mov_b32 {vA}, {M[t]}
s_nop 1
v_permlane16_swap_b32 {vA}, {M[t]}
s_nop 1
v_max_f32 {M[t]}, {vA}, {M[t]}
"""
        for i in range(4): t_ += f"v_sub_f32 v{PV0+24+4*t+i}, 0, {M[t]}\n"
    for i in range(96): t_ += f"v_mov_b32 v{i}, 0\n"
    for i in range(12): t_ += f"v_accvgpr_write_b32 a{240+i}, 0\n"
    t_ += "s_mov_b32 s6, s4\nL_slow2:\n"
    for u in range(2):
        for s in range(4): t_ += f"buffer_load_dwordx4 {FR(0, s)}, {vKo}, {srdK}, s6 offen offset:{64*s}\n"
        t_ += "s_waitcnt vmcnt(0)\n"
        for t in range(3):
            for s in range(4): t_ += f"v_mfma_f32_16x16x32_bf16 {Sx[t]}, {FR(0, s)}, {QV(s, t)}, {CN[t] if s == 0 else Sx[t]}\n"
        t_ += "s_nop 9\n"
        for i in range(12): t_ += f"v_exp_f32 v{S0+i}, v{S0+i}\n"
        t_ += "s_nop 0\n"
        for t in range(3):
            for j in range(2): t_ += f"v_cvt_pk_bf16_f32 {PBr(0, 0, t, 2*u + j)}, v{S0+4*t+2*j}, v{S0+4*t+2*j+1}\n"
        if u == 0: t_ += "s_mov_b32 s7, s6\ns_add_u32 s6, s6, 0x1000\n"
    f = FA0 + 16
    for dt in range(8):
        for j in range(8):
            t_ += f"buffer_load_ushort v{FA0 + j}, {vVo if j < 4 else vVo2}, {srdV}, s7 offen offset:{(j & 3)*256 + 32*dt}\n"
        t_ += "s_waitcnt vmcnt(0)\n"
        for j in range(4): t_ += f"v_lshl_or_b32 v{f + j}, v{FA0 + 2*j + 1}, 16, v{FA0 + 2*j}\n"
        t_ += "s_nop 1\n"
        for t in range(3): t_ += f"v_mfma_f32_16x16x32_bf16 {OA(dt, t)}, v[{f}:{f+3}], {PB(0, 0, t)}, {OA(dt, t)}\n"
    for t in range(3): t_ += f"v_mfma_f32_16x16x32_bf16 {LA(t)}, {ONES}, {PB(0, 0, t)}, {LA(t)}\n"
    t_ += "s_add_u32 s6, s6, 0x1000\ns_cmp_lt_u32 s6, s5\ns_cbranch_scc1 L_slow2\ns_nop 9\n"
    for t in range(3): t_ += f"v_accvgpr_read_b32 {vRL[t]}, a{240+4*t}\n"
    for t in range(3): t_ += f"v_rcp_f32 {vRL[t]}, {vRL[t]}\n"
    t_ += "s_nop 0\n"
    for o in placed: t_ += o.text + "\n"
    for o in pendW0: t_ += o.text + "\n"
    t_ += "s_waitcnt lgkmcnt(0)\n"
    t_ += "s_branch L_join\n"
    return lin(t_)

def spin(lbl, back, reg, off_v, srd, soff, exp):
    return lin(f"""{lbl}:
s_mov_b32 s3, 0
{lbl}_l:
buffer_load_dword {reg}, {off_v}, {srd}, {soff}{' offen' if off_v != 'off' else ''} sc1
s_add_u32 s3, s3, 1
s_waitcnt vmcnt(0)
v_cmp_ne_u32 vcc, {exp}, {reg}
s_cmp_gt_u32 s3, 0x10000
s_cbranch_scc1 {back}
s_nop 2
s_cbranch_vccnz {lbl}_l
s_branch {back}""")

def glue3(left):
    o = lin(f"""v_mbcnt_lo_u32_b32 {vA}, -1, 0
v_mbcnt_hi_u32_b32 {vA}, -1, {vA}
v_lshlrev_b32 {vSt}, 4, {vA}
v_and_b32 {vPo}, 7, {vA}
v_lshlrev_b32 {vPo}, 2, {vPo}
v_lshrrev_b32 {vB}, 4, {vA}
v_bfe_u32 {vOut}, {vA}, 2, 2
v_and_b32 {vA}, 3, {vA}
v_lshl_add_u32 {vA}, {vOut}, 4, {vA}
v_lshlrev_b32 {vA}, 10, {vA}
v_lshl_add_u32 {vOut}, {vB}, 4, {vA}
""")
    o += lin(f"""v_mov_b32 {vFl}, {hex(OOB)}
s_lshl_b32 s5, {sG}, 2
s_cmp_eq_u32 {sWave}, 0
s_cselect_b32 s5, s5, {hex(OOB)}
v_writelane_b32 {vFl}, s5, 1
s_mov_b32 {sIt}, 0
s_mov_b32 {sMask}, 0xffff0000""")
    muls = {x.text: x for x in left if "mul" in x.text}
    done = set()
    for x in left:
        if x.text in done: continue
        if "mul" in x.text:
            r_ = int(list(x.wr)[0][1:]); dt, t = x.ot
            mate = f"v_mul_f32 v{r_+1}, {vRL[t]}, v{r_+1}"
            if r_ % 2 == 0 and mate in muls:
                rl = int(vRL[t][1:]); sel = rl & 1
                o.append(V(f"v_pk_mul_f32 v[{r_}:{r_+1}], v[{r_}:{r_+1}], v[{rl-sel}:{rl-sel+1}] op_sel:[0,{sel}] op_sel_hi:[1,{sel}]", rd=[f"v[{r_}:{r_+1}]"], wr=[f"v[{r_}:{r_+1}]"]))
                done.add(mate); continue
        o.append(V(x.text, rd=list(x.rd), wr=list(x.wr)))
    o += lin("\n".join(scal_A()) + f"\ns_cmp_eq_u32 {sSlM}, 7\ns_cbranch_scc1 L_GS")
    return o

def pad_linear(ops):
    out = []
    for o in ops:
        need = 0
        for (p, n) in o.sdeps:
            if p in out: need = max(need, n - sum(x.w for x in out[out.index(p)+1:]))
        if need > 0:
            nop = Op(f"s_nop {need-1}", "x"); nop.w = need; out.append(nop)
        out.append(o)
    return out

def tail(G):
    X = (lambda: stamp()) if OPT["stamps"] == 3 else (lambda: [])
    def sums(set_, loads):
        o0, p0, s0_ = reduce_ops(set_)
        return [WAIT(0, need_vm=loads)] + pad_linear(o0 + p0 + [s0_])
    o = lin("\n".join(scal_B()) + "\ns_nop 1")
    stores = []
    if OPT["wb"] & 2: o += lin(f"s_cmp_lg_u32 {sG}, 0\ns_cbranch_scc1 L_nwa@L\ns_cmp_lg_u32 {sWave}, 3\ns_cbranch_scc1 L_nwa@L\nbuffer_wbl2 sc1\nL_nwa@L:")
    for (cv, sa, st) in pack_store(1):
        o += cv + [sa, st]; stores.append(st)
    if True:
        o += X() + sums(1, G.LD[1]) + X()
        o += [WAIT(0, need_vm=stores)] + X() + lin("s_barrier") + sig_ops()
        o += lin("s_branch L_spinU@L\nL_backU@L:") + X()
        l7 = red_loads(0); o += l7
        if OPT["wb"] & 1: o += lin(f"s_cmp_lg_u32 {sG}, {7 if OPT['wb'] & 4 else 0}\ns_cbranch_scc1 L_nwb@L\ns_cmp_lg_u32 {sWave}, 3\ns_cbranch_scc1 L_nwb@L\nbuffer_wbl2 sc1\nL_nwb@L:")
        o += lin(f"s_add_u32 {sOut}, {sOutR}, {sOc}")
        if OPT["stamps"] == 3: o += lin("s_waitcnt vmcnt(0)") + X()
        o += sums(0, l7) + X() + X()
    return o

def main():
    R2 = build_R2()
    placed = [o for o in R2.epi if o.gap is not None]; placed.sort(key=lambda o: o.pos)
    R1 = build_R1(R2.left)
    R1b = {h: build_R1b(h) for h in (1, 2, 3)}
    R1f = build_R1f()
    G = build_G()
    bind_ext(R1, [R2.pendW0]); bind_ext(R2, [R1f.pend] + [R1b[h].pend for h in R1b]); bind_ext(G, [R2.pendW0, G.pend])
    for h in R1b: bind_ext(R1b[h], [R1.pend])
    for w in R1f.xw: w.text = 's_nop 0'
    pro, zst = prologue(R1f)
    for j, t in enumerate(NEXT): TILE[f'G{j}'] += TILE[t]
    p0 = glue0(zst) + lin("s_branch L_R2")
    sel = lin(f"s_cmp_eq_u32 {sHead}, 2\ns_cbranch_scc1 L_v2\ns_cmp_eq_u32 {sHead}, 3\ns_cbranch_scc1 L_v3")
    v1 = R1b[1].out + lin("s_branch L_R2")
    v2 = lin("L_v2:") + R1b[2].out + lin("s_branch L_R2")
    v3 = lin("L_v3:") + R1b[3].out + mode_check(getattr(R1b[2], "dbg", None)) + code_pf("L_pc2", "L_g3", "L_codeend", 15, 76) + touch_setup()
    g2 = lin(f"s_or_b64 {sBad}, {sBad}, vcc\ns_cbranch_scc1 L_slow\nL_join:\ns_add_u32 {sHead}, {sHead}, 1\ns_cmp_lt_u32 {sHead}, 4")
    g3 = glue3(R2.left)
    g4 = lin(f"s_mov_b32 {sC[0]}, {sC[2]}\ns_add_u32 {sC[1]}, {sC[0]}, 128\ns_and_b32 {sC[1]}, {sC[1]}, 0x3ff\ns_add_u32 {sC[2]}, {sC[1]}, 128\ns_and_b32 {sC[2]}, {sC[2]}, 0x3ff\ns_cmp_lt_u32 {sIt}, 8")
    T = tail(G)
    sA, sB_, sC_, sD_, sE = stamp(1 if OPT['stamps'] in (1, 3) else 0), stamp(), stamp(), stamp(), stamp(2)
    if OPT["bst"]:
        def dump():
            return lin(f"v_mbcnt_lo_u32_b32 {vA}, -1, 0\nv_mbcnt_hi_u32_b32 {vA}, -1, {vA}\nv_lshlrev_b32 {vA}, 2, {vA}") + [Op(f"buffer_store_dword {vLane}, {vA}, {srdWS}, s101 offen", "vm")] + lin("s_add_u32 s101, s101, 256\ns_nop 1")
        sA = lin(f"s_lshl_b32 s101, s2, 2\ns_add_u32 s101, s101, {sWave}\ns_lshl_b32 s101, s101, 12\ns_add_u32 s101, s101, {hex(DUMP_BASE)}")
        sC_ = dump(); sD_ = dump()
    tr = pro + sA
    for hd in range(4):
        tr += [R1f.out + p0, R1.out + sel + v1, R1.out + sel + v2, R1.out + sel + v3][hd] + sB_ + R2.out + g2 + sC_
    tr += g3
    for it in range(4): tr += G.out + g4 + sD_
    tr += T
    resolve_waits(tr, TILE)
    errs = check(tr, "main")
    for e in errs[:20]: print(e, file=sys.stderr)
    assert not errs
    for rg in (R1f, R1, R1b[1], R1b[3], R2, G): print(rg.name, "overfull:", rg.overlog, file=sys.stderr)
    out = [open(os.path.join(os.path.dirname(os.path.abspath(__file__)), "header.txt")).read().rstrip()]
    out.append("; @launch grid=(256,1,1) block=(256,1,1) lds=163840")
    out.append(f""".amdgcn_target "amdgcn-amd-amdhsa--gfx950"
.text
.globl {KN}
.p2align 8
.type {KN},@function
{KN}:""")
    def emit(ops, sc="", lb=""):
        for o in ops:
            if OPT["nobar"] and o.text == "s_barrier" and o.kind == "w": out.append("s_nop 0"); continue
            if OPT["nolg"] and o.kind == "w" and o.text.startswith("s_waitcnt") and "vmcnt" not in o.text: out.append("s_nop 0"); continue
            if OPT["nods"] and o.kind == "ds": continue
            if OPT["novalu"] and o.kind in ("v4", "v8") and o.gap is not None and ("exp" in o.text or "cvt" in o.text or "mul" in o.text or "perm" in o.text or "and" in o.text or "lshl" in o.text or "add_f32" in o.text): continue
            if OPT["nodma"] and o.text.endswith(" lds"): out.append("s_nop 0"); continue
            if OPT["nored"] and " sc1" in o.text and "dwordx4" in o.text: out.append("s_nop 0"); continue
            if getattr(o, "pre", None): out.append(o.pre)
            out.append(o.text.replace("@SC", sc).replace("@L", lb))
    def mark(n):
        return lin("s_memrealtime s[2:3]\ns_waitcnt lgkmcnt(0)\ns_sub_u32 s75, s2, s73") if OPT["dbl"] == n else []
    def idle(n, tag):
        if not n: return []
        return lin(f"""s_memrealtime s[2:3]
s_waitcnt lgkmcnt(0)
s_mov_b32 s5, s2
L_idle{tag}:
s_sleep 2
s_memrealtime s[2:3]
s_waitcnt lgkmcnt(0)
s_sub_u32 s4, s2, s5
s_cmp_lt_u32 s4, {n}
s_cbranch_scc1 L_idle{tag}""")
    def ex(n): return (stamp(2) + lin("s_endpgm")) if OPT["exitat"] == n else []
    emit(pro + mark(3) + idle(OPT['idle0'], 'a') + sA + ex(1) + R1f.out + mark(4) + p0)
    out.append("L_loop:"); emit(R1.out + sel + v1 + v2 + v3); out.append("L_R2:"); emit(idle(OPT['idle1'], 'b') + sB_ + R2.out + g2 + sC_)
    if OPT["dbl"] >= 10:
        emit(lin(f"s_cmp_lg_u32 {sHead}, {OPT['dbl'] - 9}\ns_cbranch_scc1 L_nomark") + mark(OPT["dbl"]) + lin(f"L_nomark:\ns_cmp_lt_u32 {sHead}, 4"))
    if OPT["stamps"] or OPT["bst"]: out.append(f"s_cmp_lt_u32 {sHead}, 4")
    out.append("s_cbranch_scc1 L_loop")
    out.append('L_g3:'); emit(mark(5) + ex(3) + g3)
    for sc, lb in ((NTST, ""), (" sc1", "S")):
        out.append(f"L_G{lb}:"); emit(G.out + g4 + sD_, sc, lb)
        if OPT["stamps"] or OPT["bst"]: out.append(f"s_cmp_lt_u32 {sIt}, 8")
        out.append(f"s_cbranch_scc1 L_G{lb}")
        emit(T + sE, sc, lb)
        if OPT["dbl"]:
            emit(lin(f"""s_waitcnt vmcnt(0)
s_memrealtime s[2:3]
s_waitcnt lgkmcnt(0)
{"s_sub_u32 s4, s2, s73" if OPT["dbl"] == 1 else ("s_mov_b32 s4, 500" if OPT["dbl"] == 2 else "s_mul_i32 s4, s75, 4")}
s_min_u32 s4, s4, 40000
s_mov_b32 s5, s2
L_dbl{lb}:
s_sleep 4
s_memrealtime s[2:3]
s_waitcnt lgkmcnt(0)
s_sub_u32 s6, s2, s5
s_cmp_lt_u32 s6, s4
s_cbranch_scc1 L_dbl{lb}"""))
        out.append("s_endpgm")
        if not lb: out.append("L_codeend:")
        for nm in ("G0", "G1", "U"): emit(spin(f"L_spin{nm}{lb}", f"L_back{nm}{lb}", vPr, vPo, srdWS, sPoll, sExp))
    emit(lin(f"""L_spinD:
s_add_u32 s3, s3, 1
s_cmp_gt_u32 s3, 0x10000
s_cbranch_scc1 L_backD
s_lshl_b32 {sTmp}, {sB}, 2
buffer_load_dword {vLane}, off, {srdD}, {sTmp} sc1
s_waitcnt vmcnt(0)
s_branch L_chkD"""))
    emit(slow_path(placed, R2.pendW0))
    out.append(f"""s_endpgm
.section .rodata,"a"
.p2align 6
.amdhsa_kernel {KN}
  .amdhsa_next_free_vgpr 512
  .amdhsa_next_free_sgpr 102
  .amdhsa_accum_offset 256
  .amdhsa_group_segment_fixed_size 0
  .amdhsa_kernarg_size 64
  .amdhsa_user_sgpr_count 2
  .amdhsa_user_sgpr_kernarg_segment_ptr 1
  .amdhsa_system_sgpr_workgroup_id_x 1
.end_amdhsa_kernel""")
    print("\n".join(out))
main()
```

```python
import itertools, random
P = 1200
def setb(dw, da):
    global bS, bQ, bB, bP
    bS = [48*j + 35 + dw for j in range(8)]; bQ = 419 + dw; bB = [521 + da + 102*i for i in range(7)]; bP = 1187 + dw
setb(0, 0)
def needs():
    T = {}
    for a in "abc": T["X" + a] = (bP - P, bS[0])
    T["W0"] = (bP - P, bS[0])
    for j in range(1, 8): T[f"W{j}"] = (bS[j-1], bS[j])
    T["K0"] = (bS[7], bQ)
    for i in range(7):
        n = bQ if i == 0 else bB[i-1]
        T[f"K{i+1}"] = (n, bB[i]); T[f"V{i}"] = (n, bB[i])
    T["V7"] = (bB[6], bP)
    return T
KV = ["K0", "K1", "V0"] + [x for i in range(1, 7) for x in (f"K{i+1}", f"V{i}")] + ["V7"]
def plan(I0=-170, dk=75, wI=None, xI=None, verbose=False, trials=4000):
    T = needs()
    I = {t: I0 + dk*k for k, t in enumerate(KV)}
    I.update(wI); I.update(xI)
    iv = {t: (I[t], T[t][1]) for t in T}
    def overlap(a, b):
        for sh in (-P, 0, P):
            if iv[a][0] < iv[b][1] + sh and iv[b][0] + sh < iv[a][1]: return True
        return False
    names = sorted(T, key=lambda t: iv[t][0])
    cnt = max(sum(1 for t in T for sh in (-P, 0, P) if iv[t][0] + sh <= x < iv[t][1] + sh) for x in range(P))
    if verbose: print("max occupancy", cnt, {t: T[t][0] - I[t] for t in names})
    conf = {a: [b for b in T if b != a and overlap(a, b)] for a in T}
    best = [None, 10**9]
    def cost(s):
        c = 0
        for seq, w in (([f"K{i}" for i in range(8)], 4), ([f"V{i}" for i in range(8)], 1), ([f"W{i}" for i in range(8)], 1)):
            c += w*min_updates([s[t] for t in seq])
        xs = [s['Xa'], s['Xb'], s['Xc']]
        if max(xs) - min(xs) > 3: c += 100
        return c
    rnd = random.Random(1)
    arcs = {t: (I[t] % P, T[t][1] % P) for t in T}
    cross = [t for t in T if arcs[t][0] > arcs[t][1]]
    inner = sorted([t for t in T if t not in cross], key=lambda t: arcs[t][0])
    for trial in range(trials):
        perm = list(range(10)); rnd.shuffle(perm)
        s = {t: perm[i] for i, t in enumerate(cross)}
        freeat = {x: 0 for x in range(10)}; until = {x: P for x in range(10)}
        for t in cross: freeat[s[t]] = arcs[t][1]; until[s[t]] = arcs[t][0]
        cnt = [0]
        def rec(i):
            cnt[0] += 1
            if cnt[0] > 2000: return False
            if i == len(inner): return True
            t = inner[i]; a, b = arcs[t]
            c = [x for x in range(10) if freeat[x] <= a and until[x] >= b]
            prev = s.get(f"{t[0]}{(int(t[1]) - 1) % 8}") if t[0] != "X" else None
            rnd.shuffle(c)
            if prev is not None and rnd.random() < 0.7: c.sort(key=lambda x: abs(x - prev))
            for x in c:
                old = freeat[x]; freeat[x] = b; s[t] = x
                if rec(i + 1): return True
                freeat[x] = old; del s[t]
            return False
        if rec(0):
            c = cost(s)
            if c < best[1]: best[0], best[1] = dict(s), c
    return I, best[0], best[1], T
def bases(slots, first=None):
    n = len(slots); best = None
    for b0 in (range(max(0, slots[0] - 3), slots[0] + 1) if first is None else [first]):
        dp = {b0: (0, [b0])}
        for s in slots[1:]:
            nd = {}
            for b in range(max(0, s - 3), s + 1):
                cand = min(((c + (b != pb), path) for pb, (c, path) in dp.items()), key=lambda x: x[0])
                nd[b] = (cand[0], cand[1] + [b])
            dp = nd
        for b, (c, path) in dp.items():
            c2 = c + (b != b0)
            if best is None or c2 < best[0]: best = (c2, path)
    return best
def min_updates(slots): return bases(slots)[0]
if __name__ == "__main__":
    wI = {"W0": -125, "W1": -75, "W2": -40, "W3": 36, "W4": 69, "W5": 117, "W6": 165, "W7": 213}
    xI = {"Xa": -225, "Xb": -200, "Xc": -150}
    I, s, c, T = plan(wI=wI, xI=xI, verbose=True)
    print(I); print(s, c)
    for ch in "KVW": print(ch, [s[f"{ch}{i}"] for i in range(8)], bases([s[f"{ch}{i}"] for i in range(8)]))
```

```python
import sys, os, struct, math
sys.path.insert(0, os.path.dirname(os.path.abspath(__file__)))
from sched import *
import ringplan

OPT = dict(stamps=0, nt=1, mapping=48, nodma=0, samekv=0, nored=0, ntw=0, ntx=0, bst=0, lrate=3, lburst=4, rsp=8, rk=2, i0=-170, dk=75, ksp=4, wsp=5, gst=4, gld=4, gsig=1, gpoll=108, gsum=8, gdma=40, glc=0, rot=1, gout=189, gdsp=5, lag=1, forceslow=0, ntst=0, pf=128, hrot=3, hswap=1, plan=0, krot=2, osc=0, idle0=0, idle1=0, exitat=0, wb=0, dbl=0, nperm=1, bdw=2, bda=3, vlate=1, tch=0, gtch=0, kvlate=0, tg=0, etch=0, gl3=1, ftch=1, tlb=2, fsp=2, nobar=0, nolg=0, nods=0, novalu=0)
for a in sys.argv[1:]:
    k, v = a.split("="); assert k in OPT, k; OPT[k] = float(v) if "." in v else int(v)
Region.LDSRATE = OPT["lrate"]; Region.LDSBURST = OPT["lburst"]
KN = "standalone__mha_block_cached__near_ridge_kernel"

def OA(mt, t): return R("v", (mt*3 + t)*4, 4)
def OAr(mt, t, i): return f"v{(mt*3 + t)*4 + i}"
QV0, PV0, S0, FA0 = 96, 144, 192, 204
def QV(s, t): return R("v", QV0 + (s*3 + t)*4, 4)
def QVr(s, t, i): return f"v{QV0 + (s*3 + t)*4 + i}"
def PB(buf, sg, t): return R("v", PV0 + 24*buf + (sg*3 + t)*4, 4)
def PBr(buf, sg, t, i): return f"v{PV0 + 24*buf + (sg*3 + t)*4 + i}"
def OP(s, t): return R("v", PV0 + (s*3 + t)*4, 4)
def OPr(s, t, i): return f"v{PV0 + (s*3 + t)*4 + i}"
def FR(buf, f, half=None):
    b = FA0 + 16*buf + 4*f
    return R("v", b, 4) if half is None else R("v", b + 2*half, 2)
vK = ["v236", "v237", "v238", "v239"]
vVb, vWb, vT = "v240", "v241", ["v242", "v243"]
vDK, vDV, vDW, vDX, vC = "v244", "v245", "v246", "v247", "v248"
vRL = ["v249", "v250", "v251"]
vLane, vDWo, vA, vB = "v252", "v253", "v254", "v255"
def XA(s, t): return R("a", (s*3 + t)*4, 4)
ZB = {0: 144, 1: 192, 2: 0}
def ZA(h, s, t): return R("a", ZB[h] + (s*3 + t)*4, 4)
def LA(t): return R("a", 240 + 4*t, 4)
ONES = "a[252:255]"

srdK, srdV, srdW, srdX, srdWS, srdO, srdD = (f"s[{i}:{i+3}]" for i in (8, 12, 16, 20, 24, 28, 32))
sW1k, sXcc, sRot, sOc = "s36", "s37", "s38", "s39"
sC = ["s40", "s41", "s42"]
sDg = ["s43", "s44", "s45", "s46"]
sIdx = "s99"
sH = ["s93", "s95", "s96", "s97"]; sHr = "s98"; sSw = "s3"
sKoff, sVoff, sWcol = "s47", "s48", "s49"
sD = [None, "s50", "s51", "s52"]
sDY = [None, "s53", "s54", "s55"]
sT = ["s56", "s57", "s58", "s59"]
sW4k, sHead, sScale, sWave, sB, sG, sLo, sHi = (f"s{i}" for i in range(60, 68))
sBad = "s[84:85]"
sN = [f"s{i}" for i in range(86, 92)]
sTmp = "s100"
sIt, sSt, sSig, sExp, sLd, sLd2, sOut = (f"s{i}" for i in range(86, 93))
sStR, sLdR, sFlR, sOutR, sSlM, sLdMin, sGate = (f"s{i}" for i in range(68, 75))
sPoll = sSig; sPo = "s99"; sTk, sTh, sTo = "s43", "s44", "s45"
sU = ["s4", "s5"]; sMask = "s6"
OOB = 0x40000000
FLAG_BASE = 0x3040000
STAMP_BASE = 0x3100000
DUMP_BASE = 0x4000000
WS_BYTES = 0x8000000 if OPT["bst"] else 0x3200000
CHUNK = 196608
ORD = [(0,0),(0,1),(0,2),(1,0),(0,3),(1,3),(1,1),(1,2)]
ORDG = [(j >> 2, j & 3) for j in range(8)]
NT = " nt" if OPT["nt"] else ""
NTW = " nt" if OPT["ntw"] else ""
NTX = " nt" if OPT["ntx"] else ""
def wq_lit(step): return ORD[step][1]*0x100000 + ORD[step][0]*128
def wo_lit(m): return (m & 3)*0x20000 + (m >> 2)*128

def S(text, rd=(), wr=(), **kw): return Op(text, "s", rd=rd, wr=wr, **kw)
def V(text, rd=(), wr=(), **kw): return Op(text, "v4", rd=rd, wr=wr, **kw)
def V8(text, rd=(), wr=(), **kw): return Op(text, "v8", rd=rd, wr=wr, **kw)
def WAIT(d, need_ds=(), need_vm=(), lg0=False, late=3, e=-1):
    o = Op("s_waitcnt ?", "w", e=e, d=d, late=late, deps=[(x, 1) for x in need_ds])
    o.need_ds, o.need_vm, o.lg0 = list(need_ds), list(need_vm), lg0
    return o
def lin(text):
    return [Op(l.strip(), "x") for l in text.strip().split("\n") if l.strip()]

class Ctx: pass
C = Ctx(); C.grp = 0

ringplan.setb(OPT["bdw"], OPT["bda"]); BDW, BDA = OPT["bdw"], OPT["bda"]
wI = {"W0": -210, "W1": -135, "W2": -55, "W3": 36 + BDW, "W4": 78, "W5": 112, "W6": 162, "W7": 186}
xI = {"Xa": -430, "Xb": -350, "Xc": -280}
PLANS = {
 3: {'Xa': -514, 'Xb': -444, 'Xc': -297, 'W0': -229, 'W1': -155, 'W2': -63, 'W3': 8, 'W4': 38, 'W5': 82, 'W6': 110, 'W7': 180, 'K0': -187, 'K1': -112, 'V0': -38, 'K2': 58, 'V1': 141, 'K3': 216, 'V2': 290, 'K4': 364, 'V3': 436, 'K5': 507, 'V4': 579, 'K6': 651, 'V5': 721, 'K7': 794, 'V6': 863, 'V7': 940},
 4: {'Xa': -514, 'Xb': -444, 'Xc': -297, 'W0': -229, 'W1': -155, 'W2': -63, 'W3': 8, 'W4': 38, 'W5': 82, 'W6': 110, 'W7': 180, 'K0': -180, 'K1': -108, 'V0': -36, 'K2': 58, 'V1': 141, 'K3': 216, 'V2': 290, 'K4': 364, 'V3': 438, 'K5': 512, 'V4': 586, 'K6': 660, 'V5': 734, 'K7': 808, 'V6': 878, 'V7': 950},
 1: {'Xa': -510, 'Xb': -430, 'Xc': -352, 'W0': -205, 'W1': -106, 'W2': -26, 'W3': 5, 'W4': 37, 'W5': 98, 'W6': 161, 'W7': 190, 'K0': -243, 'K1': -157, 'V0': -60, 'K2': 64, 'V1': 130, 'K3': 221, 'V2': 290, 'K4': 354, 'V3': 415, 'K5': 477, 'V4': 593, 'K6': 533, 'V5': 650, 'K7': 728, 'V6': 809, 'V7': 894},
 2: {'Xa': -496, 'Xb': -413, 'Xc': -333, 'W0': -252, 'W1': -103, 'W2': -30, 'W3': 5, 'W4': 38, 'W5': 99, 'W6': 130, 'W7': 188, 'K0': -210, 'K1': -148, 'V0': -54, 'K2': 67, 'V1': 155, 'K3': 221, 'V2': 291, 'K4': 349, 'V3': 409, 'K5': 473, 'V4': 534, 'K6': 598, 'V5': 662, 'K7': 829, 'V6': 747, 'V7': 904},
}
if OPT["plan"]: wI = PLANS[OPT["plan"]]; xI = {}
ISS, SLOT, _c, NEED = ringplan.plan(OPT["i0"], OPT["dk"], wI, xI)
assert SLOT is not None
SPR = {}
for t in ISS:
    m = ISS[t] % 1200
    sp = OPT["ksp"] if t[0] in "KV" else OPT["wsp"]
    if 228 <= m < 288: ISS[t] += 290 - m; m = 290
    SPR[t] = min(sp, ((240 if m < 288 else 1200) - 5 - m)//3); assert SPR[t] >= 1
BASE = {}
for ch in "KVW":
    for i, b in enumerate(ringplan.bases([SLOT[f"{ch}{i}"] for i in range(8)])[1]): BASE[f"{ch}{i}"] = b
XB = min(SLOT["Xa"], SLOT["Xb"], SLOT["Xc"]); assert max(SLOT["Xa"], SLOT["Xb"], SLOT["Xc"]) - XB <= 3
NEXT = sorted([t for t in ISS if ISS[t] < 0 and t[0] in "WX"], key=lambda t: (t != "W0", ISS[t]))
print("plan:", ISS, SLOT, BASE, NEXT, file=sys.stderr)
TILE = {}
def lit(x): return hex(x & 0xffffffff)
def rebase(rg, typ, old, new, e, d, after=()):
    if old == new: return []
    regs_ = vK if typ == "K" else [vVb if typ == "V" else vWb]
    return [rg.F(V(f"v_add_u32 {r}, {lit((new - old)*16384)}, {r}", rd=[r], wr=[r], e=e, d=d, deps=[(a, 0) for a in after if a])) for r in regs_]
def wq_t0(dst, step):
    hf, dg = ORD[step]
    return [f"s_add_u32 {dst}, {sWcol}, {sDg[dg]}"] + ([f"s_xor_b32 {dst}, {dst}, 128"] if hf else [])
def x_t0(dst, a, q):
    return [f"s_lshr_b32 {dst}, {sDg[q]}, 12"] + ([f"s_add_u32 {dst}, {dst}, {a*65536}"] if a else [])
def tile_src(spec):
    k = spec[0]
    if k == "W": return srdW, vDW, wq_t0(sT[0], spec[1]), sD, NTW
    if k == "C": return srdW, vDW, [f"s_add_u32 {sT[0]}, {sC[spec[1]]}, {sH[spec[2]]}"], sD, NTW
    if k == "N": return srdW, vDW, [f"s_mov_b32 {sT[0]}, {sN[spec[1]]}"], sD, NTW
    if k == "Y": return srdX, vDX, [f"s_mov_b32 {sT[0]}, {sN[spec[1]]}"], sDY, NTX
    if k == "X": return srdX, vDX, x_t0(sT[0], spec[1], spec[2]), sDY, NTX
def add_dmas(rg, items):
    ev = []
    for (name, spec, slot, e, sp, bar) in items:
        for i in range(4 if spec[0] != "T" else 2): ev.append((e + sp*i, e, i, name, spec, slot, bar))
    ev.sort(key=lambda x: (x[0], x[1]))
    prev = None; cur = None; wopen = None; ts = None; lastw = None; m0 = None
    for (t, e0, i, name, spec, slot, bar) in ev:
        deps = []
        if bar is not None: deps.append((bar, 0))
        if prev is not None: deps.append((prev, 1))
        if cur != slot:
            m0 = rg.F(Op(f"s_add_u32 m0, {sW4k}, {slot*16384}", "t", wr=["m0"], e=t - 6, deps=([(prev, 1)] if prev else []))); cur = slot
        deps.append((m0, 1))
        if spec[0] == "T":
            o = rg.F(Op(f"buffer_load_dword {vLane}, {srdWS}, {('s76', 's77')[i]} offen lds", "vm", rd=[vLane, "m0"], e=t, d=t + 4, deps=deps))
        elif spec[0] in "KV":
            so, vo, srd = (sKoff, vDK, srdK) if spec[0] == "K" else (sVoff, vDV, srdV)
            st = rg.inc.get(spec[0])
            if st is not None and i == 0: deps.append((st, 0))
            o = rg.F(Op(f"buffer_load_dwordx4 {vo}, {srd}, {so} offen offset:{i*1024}{NT} lds", "vm", rd=[vo, so, "m0"], e=t, d=t + 4, deps=deps))
            if i == 3:
                inc = rg.F(Op(f"s_add_u32 {so}, {so}, 0x4000", "t", rd=[so], wr=[so], deps=[(o, 1)], d=t + 12))
                if name[1] == "7":
                    inc = rg.F(Op(f"s_and_b32 {so}, {so}, 0x7ffff", "t", rd=[so], wr=[so], deps=[(inc, 0)], d=t + 14))
                    nr = "s10" if name[0] == "K" else "s14"
                    rg.F(S(f"s_cmp_eq_u32 {sHead}, 3", deps=[(o, 1)])); inc2 = rg.F(S(f"s_cselect_b32 {nr}, 0, {nr}", d=t + 20))
                rg.inc[spec[0]] = inc
        else:
            srd, vo, t0, dl, fl = tile_src(spec)
            if i == 0:
                assert wopen is None, "W-type tiles may not interleave"
                wopen = name
                tt = rg.F(Op(t0[0], "t", wr=[sT[0]], e=t - 12, deps=([(lastw, 1)] if lastw else [])))
                for x in t0[1:]: tt = rg.F(Op(x, "t", wr=[sT[0]], deps=[(tt, 0)]))
                ts = [tt]
                ts += [rg.F(Op(f"s_add_u32 {sT[j]}, {sT[0]}, {dl[j]}", "t", wr=[sT[j]], deps=[(ts[0], 0)])) for j in (1, 2, 3)]
            o = rg.F(Op(f"buffer_load_dwordx4 {vo}, {srd}, {sT[i]} offen offset:{i*1024}{fl} lds", "vm", rd=[vo, sT[i], "m0"], e=t, d=t + 4, deps=deps + [(ts[i], 0)]))
            if i == 3: wopen = None; lastw = o
        if i == 3: TILE.setdefault(name, []).append(o)
        if i == 0: rg.first_dma[name] = o
        prev = o
    rg.lastw = lastw
def head_dmas(rg, lo, hi):
    items = []
    for t in ISS:
        m = ISS[t] % 1200
        if not (lo <= m < hi): continue
        spec = (t[0],) if t[0] in "KV" else (("W", int(t[1])) if ISS[t] >= 0 else (("N" if t[0] == "W" else "Y"), NEXT.index(t)))
        cands = [g for g in rg.bars if g + lo <= m and any(SLOT[p] == SLOT[t] and NEED[p][1] % 1200 == g + lo for p in NEED)]
        bar = rg.bars[max(cands)] if cands else None
        items.append((t, spec, SLOT[t], m - lo, SPR[t], bar))
    if hi == 1200 and OPT['tg']:
        tg = OPT["tg"] + lo
        def free(x): return not any(SLOT[p] == x and any(ISS[p] + sh <= tg + 30 and tg < NEED[p][1] + sh for sh in (0, 1200)) for p in NEED)
        x = [x for x in range(10) if free(x)][0]
        cands = [g for g in rg.bars if g + lo <= tg and any(SLOT[p] == x and NEED[p][1] % 1200 == g + lo for p in NEED)]
        items.append(("T", ("T",), x, OPT["tg"], 12, rg.bars[max(cands)] if cands else None))
    add_dmas(rg, items)
def dma_linear(name, spec, slot):
    ops = lin(f"s_add_u32 m0, {sW4k}, {slot*16384}")
    if spec[0] in "KV":
        so, vo, srd = (sKoff, vDK, srdK) if spec[0] == "K" else (sVoff, vDV, srdV)
        d = [Op(f"buffer_load_dwordx4 {vo}, {srd}, {so} offen offset:{i*1024}{NT} lds", "vm") for i in range(4)]
        ops += lin("s_nop 0") + d + lin(f"s_add_u32 {so}, {so}, 0x4000")
    else:
        srd, vo, t0, dl, fl = tile_src(spec)
        d = [Op(f"buffer_load_dwordx4 {vo}, {srd}, {sT[i]} offen offset:{i*1024}{fl} lds", "vm") for i in range(4)]
        ops += lin("\n".join(t0) + "\n" + "\n".join(f"s_add_u32 {sT[i]}, {sT[0]}, {dl[i]}" for i in (1, 2, 3))) + d
    TILE.setdefault(name, []).append(d[-1])
    return ops
def reads_X(rg, addr, slots, dst, e, d, deps, step=1):
    ops = []
    for t in range(3):
        for s in range(4):
            r_, imm = addr(slots[t], s)
            ops.append(rg.F(Op(f"ds_read_b128 {dst(s, t)}, {r_} offset:{imm}", "ds", rd=[r_], wr=[dst(s, t)], e=e, d=d + len(ops)*step,
                               deps=list(deps) + ([(ops[-1], 0)] if ops else []))))
    return ops

def new_region(name):
    rg = Region(name); rg.nst = {"R1": 0, "R1f": 0, "R2": 6, "G": 0}.get(name, 5)
    ext_waits(rg)
    rg.tuse = {0: [], 1: []}; rg.bars = {}; rg.inc = {}; rg.first_dma = {}; rg.wq = bool(OPT["nperm"]) and name != "G"
    return rg

def xor_addr(rg, base, k, ti, e, d, after=()):
    if k == 0: return base, None
    deps = [(x, 0) for x in rg.tuse[ti]] + [(a, 0) for a in after]
    o = rg.F(V(f"v_xor_b32 {vT[ti]}, {k*32}, {base}", rd=[base], wr=[vT[ti]], e=e, d=d, deps=deps))
    rg.tuse[ti] = []
    return vT[ti], o
def reads_W(rg, so, mt, buf, e, deps=(), ups=(), rsp=None):
    if rg.wq:
        if mt == 2: a, xo = xor_addr(rg, vWb, 2, 0, e - 8, e, ups)
        else: a, xo = (vWb if mt < 2 else vT[0]), None
        so += 8*(mt & 1)
    else: a, xo = xor_addr(rg, vWb, mt, mt & 1, e - 8, e, ups)
    dp = list(deps) + ([(xo, 1)] if xo else [(u, 1) for u in ups])
    ops = []
    for s in range(4):
        for p in range(2):
            ops.append(rg.F(Op(f"ds_read_b64_tr_b16 {FR(buf, s, p)}, {a} offset:{so + s*4096 + p*2048}", "ds", rd=[a], wr=[FR(buf, s, p)],
                               e=e, d=min(e + 1 + len(ops)*(rsp or OPT['rsp'])//8, e + 9), deps=dp + ([(ops[-1], 0)] if ops else []))))
    if rg.wq:
        if mt >= 2: rg.tuse[0] = ops
    elif xo: rg.tuse[mt & 1] = ops
    rg.lastWr = ops
    return ops, xo
def reads_K(rg, so, u, buf, e, deps=(), ups=()):
    ops = []
    for s in range(4):
        ops.append(rg.F(Op(f"ds_read_b128 {FR(buf, s)}, {vK[s]} offset:{so + u*1024}", "ds", rd=[vK[s]], wr=[FR(buf, s)],
                           e=e, d=e + 3 + len(ops)*OPT['rk'], deps=list(deps) + [(x, 1) for x in ups] + ([(ops[-1], 0)] if ops else []))))
    return ops
def reads_V(rg, so, dp_, buf, e, deps=(), ups=(), late=0):
    ops = []; xs = []
    for k in range(2):
        dt = 2*dp_ + k
        a, xo = xor_addr(rg, vVb, dt, k, e - 10, e + 4*k, ups)
        if xo: xs.append(xo)
        dd = list(deps) + ([(xo, 1)] if xo else [(u, 1) for u in ups])
        mine = []
        for sg in range(2):
            for p in range(2):
                o = rg.F(Op(f"ds_read_b64_tr_b16 {FR(buf, 2*k + sg, p)}, {a} offset:{so + sg*2048 + p*1024}", "ds", rd=[a], wr=[FR(buf, 2*k + sg, p)],
                            e=e, d=(e + 2 + len(ops)*OPT['rsp']//8) if not late else (e + 3 + 2*len(ops) if k == 0 else e + 5 + (len(ops)*5)//4), deps=dd + ([(ops[-1], 0)] if ops else [])))
                ops.append(o); mine.append(o)
        if xo: rg.tuse[k] = mine
    return ops, xs

def barrier(rg, gap, last_reads, tiles, extra=(), lg0=True, st=True):
    w = rg.F(WAIT(gap - 1, need_ds=last_reads, need_vm=list(tiles) + list(extra), lg0=lg0, late=1))
    w.deps += [(x, 1) for x in extra if x in rg.fill]
    b = rg.F(Op("s_barrier", "w", e=gap, d=gap, deps=[(w, 1)])); rg.bars[gap] = b
    if OPT["bst"] and st:
        w.pre = "s_memtime s[2:3]"
        i = rg.nst; rg.nst += 1
        rg.F(V(f"v_writelane_b32 {vLane}, s2, {i}", e=gap + 1, d=gap + 8))
    return b
def xstamp(rg, gap, idx, dep):
    if OPT["bst"] < 2: return
    w = rg.F(Op("s_memtime s[2:3]\ns_waitcnt lgkmcnt(0)", "w", e=gap, d=gap, deps=[(dep, 1)]))
    rg.F(V(f"v_writelane_b32 {vLane}, s2, {idx}", deps=[(w, 0)], d=gap))
def ext_waits(rg):
    rg.xw = []
    for d in (-1, 1):
        w = WAIT(d, late=1); w.e = d; rg.F(w); rg.xw.append(w)
def bind_ext(rg, preds):
    rg.xw[0].alt_ds = [p[:4] for p in preds]; rg.xw[1].alt_ds = list(preds)
def frag_waits(rg, rd_ops, first_use, n_first, second_use, only_first=False):
    if rd_ops is None: return
    rg.F(WAIT(first_use - 1, need_ds=rd_ops[:n_first], late=2))
    if n_first < len(rd_ops) and not only_first: rg.F(WAIT(second_use - 1, need_ds=rd_ops, late=1))

def so_(sb): return (sb[0] - sb[1])*16384
def w_step(rg, half, zero, Bop, pend, cur, nxt, need, extra=(), more_reads=(), xwait=None, post=None):
    b0 = rg.n(); info = dict(b0=b0); xlast = None
    if xwait:
        for t in range(3): rg.F(WAIT(b0 + 4*t - 1, need_ds=xwait[:4*t + 4], late=1))
        info["xbar"] = barrier(rg, b0 + 10, xwait, (), lg0=False, st=False)
    for mt in range(4):
        buf = C.grp & 1; C.grp += 1
        g0 = b0 + 12*mt
        if pend is not None and (mt < 3 or BDW): frag_waits(rg, pend, g0, 4, g0 + 2, only_first=(mt == 3))
        for t in range(3):
            for s in range(4):
                acc = OA(4*half + mt, t)
                rg.M(mfma(acc, FR(buf, s), Bop(s, t), "0" if (zero and s == 0) else acc))
        if mt < 3:
            pend, xo = reads_W(rg, so_(cur[1:3]), mt + 1, buf ^ 1, g0 - 1 if (mt or b0) else g0)
            if xo: xlast = xo
            if mt == 0 and rg.wq: base_users = pend
            if mt == 2: bar = barrier(rg, g0 + 11 + BDW, pend + list(more_reads), need, extra)
        else:
            ups = rebase(rg, nxt[0], nxt[3], nxt[2], b0 + 20, g0 - 2, after=([xlast] + (base_users if rg.wq else [])) if nxt[0] == "W" else [])
            if nxt[0] == "W": pend, _ = reads_W(rg, so_(nxt[1:3]), 0, buf ^ 1, g0 - 1 + BDW, deps=[(bar, 0)], ups=ups, rsp=(4 if post else None))
            else: pend = reads_K(rg, so_(nxt[1:3]), 0, buf ^ 1, g0 - 1 + BDW, deps=[(bar, 0)], ups=ups)
            if post: info["post"] = post(g0, bar)
    info["bar"] = bar; info["end"] = rg.n() - 1
    return pend, info
def TS(name, prev=None):
    k, i = name[0], int(name[1])
    return (k, SLOT[name], BASE[name], BASE[f"{k}{(i - 1) % 8}"])

def softmax(rg, g0, u, Sr, pbuf, d_over, d_puse):
    sg = u >> 1
    for t in range(3):
        last = rg.mf[g0 + 4*t + 3]
        dl = min(d_over(t), d_puse(t) - 3)
        ex = [rg.F(V8(f"v_exp_f32 {Sr(t,i)}, {Sr(t,i)}", rd=[Sr(t,i)], wr=[Sr(t,i)], e=last.gap, sdeps=[(last, 8)], trans=True)) for i in range(4)]
        for j in range(2):
            dst = PBr(pbuf, sg, t, 2*(u & 1) + j)
            rg.F(V(f"v_cvt_pk_bf16_f32 {dst}, {Sr(t,2*j)}, {Sr(t,2*j+1)}", rd=[Sr(t,2*j), Sr(t,2*j+1)], wr=[dst], d=dl,
                   sdeps=[(ex[2*j], 1), (ex[2*j+1], 1)]))
def k_mfmas(rg, buf, Sd):
    for t in range(3):
        for s in range(4):
            rg.M(mfma(Sd(t), FR(buf, s), QV(s, t), "0" if s == 0 else Sd(t)))
def v_mfmas(rg, dp_, buf, pbuf, zero, tmajor=False):
    order = [(k, t) for t in range(3) for k in range(2)] if tmajor else [(k, t) for k in range(2) for t in range(3)]
    last = {}
    for k, t in order:
        for sg in range(2):
            acc = OA(2*dp_ + k, t)
            last[(2*dp_ + k, t)] = rg.M(mfma(acc, FR(buf, 2*k + sg), PB(pbuf, sg, t), "0" if (zero and sg == 0) else acc))
    return last
def sum_mfmas(rg, t, pbuf, zero):
    for sg in range(2):
        o = rg.M(mfma(LA(t), ONES, PB(pbuf, sg, t), "0" if (zero and sg == 0) else LA(t)))
    return o
def o_epilogue_ops(dt, t):
    mul = [V(f"v_mul_f32 {OAr(dt,t,i)}, {vRL[t]}, {OAr(dt,t,i)}", rd=[OAr(dt,t,i), vRL[t]], wr=[OAr(dt,t,i)]) for i in range(4)]
    cvt = []
    for j in range(2):
        dst = OPr(dt >> 1, t, 2*(dt & 1) + j)
        cvt.append(V(f"v_cvt_pk_bf16_f32 {dst}, {OAr(dt,t,2*j)}, {OAr(dt,t,2*j+1)}", rd=[OAr(dt,t,2*j), OAr(dt,t,2*j+1)], wr=[dst],
                     deps=[(mul[2*j], 0), (mul[2*j+1], 0)]))
    for o in mul + cvt: o.ot = (dt, t)
    return mul, cvt
def q_muls(rg, mt, t, last, **kw):
    return [rg.F(V(f"v_mul_f32 {OAr(mt,t,i)}, {sScale}, {OAr(mt,t,i)}", rd=[OAr(mt,t,i)], wr=[OAr(mt,t,i)],
                   e=(last.gap if last is not None else -1), sdeps=([(last, 8)] if last is not None else []), **kw)) for i in range(4)]
def q_epilogue(rg, sp, t, lastA, lastB, d_use, muls=True):
    cv = []
    for k, last in ((0, lastA), (1, lastB)):
        mt = 2*sp + k
        mul = q_muls(rg, mt, t, last) if muls else None
        for j in range(2):
            dst = QVr(sp, t, 2*k + j)
            cv.append(rg.F(V(f"v_cvt_pk_bf16_f32 {dst}, {OAr(mt,t,2*j)}, {OAr(mt,t,2*j+1)}", rd=[OAr(mt,t,2*j), OAr(mt,t,2*j+1)], wr=[dst],
                             deps=([(mul[2*j], 0), (mul[2*j+1], 0)] if muls else []))))
    if OPT["nperm"]:
        for o in cv: o.d = d_use - 3
        return
    for j in range(2):
        a, b = QVr(sp, t, j), QVr(sp, t, 2 + j)
        p1 = rg.F(V8(f"v_permlane32_swap_b32 {a}, {b}", rd=[a, b], wr=[a, b], sdeps=[(cv[j], 2), (cv[2+j], 2)]))
        rg.F(V8(f"v_permlane16_swap_b32 {a}, {b}", rd=[a, b], wr=[a, b], sdeps=[(p1, 2)], d=d_use - 3))

def BopQ(st):
    dg = ORD[st][1]
    return (lambda s, t: XA(4*dg + s, t)) if dg < 3 else (lambda s, t: QV(s, t))

def build_R2():
    rg = new_region("R2")
    C.grp = 24
    pend, i6 = w_step(rg, ORD[6][0], False, BopQ(6), None, TS("W6"), TS("W7"), ["W7"])
    pend, i7 = w_step(rg, ORD[7][0], False, BopQ(7), pend, TS("W7"), TS("K0"), ["K0"])
    a0 = rg.n(); b7 = i7["b0"]
    for sp in (0, 1):
        for t in range(3): q_epilogue(rg, sp, t, None, None, min(a0 + 4*t + sp, 20 + (sp*3 + t)*9), muls=True)
    for sp in (2, 3):
        for t in range(3):
            mA, mB = 2*sp - 4, 2*sp - 3
            q_epilogue(rg, sp, t, rg.mf[b7 + 12*mA + 4*t + 3], rg.mf[b7 + 12*mB + 4*t + 3], a0 + 4*t + sp)
    B = lambda i: a0 + 48 + 102*i
    GK = [0, 26, 52, 78]; GV = [12, 38, 64, 90]
    def puse(i, sg, t): return (B(i) + 12 + 2*t + sg) if i < 7 else (B(7) + 4*t + sg)
    def so(n): return so_(TS(n)[1:3])
    def rb(n, e, d, after=()): x = TS(n); return rebase(rg, x[0], x[3], x[2], e, d, after)
    for u in range(4):
        buf = C.grp & 1; C.grp += 1; g0 = rg.n()
        if u < 3 or BDW: frag_waits(rg, pend, g0, 2, g0 + 2, only_first=(u == 3))
        k_mfmas(rg, buf, lambda t: OA(u, t))
        softmax(rg, g0, u, lambda t, i: OAr(u, t, i), 0, lambda t: 10**9, lambda t: puse(0, u >> 1, t))
        if u < 3:
            pend = reads_K(rg, so("K0"), u + 1, buf ^ 1, g0 - 1)
            if u == 2: bar = barrier(rg, g0 + 11 + BDW, pend, ["K1", "V0"]); lastK = pend
        else:
            ups = rb("K1", g0 - 12, g0 - 2, lastK)
            pend = reads_K(rg, so("K1"), 0, buf ^ 1, g0 - 1 + BDW, deps=[(bar, 0)], ups=ups)
            upsV = rb("V0", -1, g0)
    for i in range(7):
        b0 = rg.n(); assert b0 == B(i)
        for u in range(4):
            buf = C.grp & 1; C.grp += 1; g0 = rg.n(); assert g0 == b0 + GK[u]
            frag_waits(rg, pend, g0, 2, g0 + 2)
            k_mfmas(rg, buf, lambda t: R("v", S0 + 4*t, 4))
            nxtK = (b0 + GK[u+1]) if u < 3 else (B(i+1) if i < 6 else None)
            softmax(rg, g0, u, lambda t, j: f"v{S0 + 4*t + j}", (i + 1) & 1,
                    (lambda t: nxtK + 4*t - 1) if nxtK else (lambda t: 10**9), lambda t: puse(i + 1, u >> 1, t))
            pend, xs = reads_V(rg, so(f"V{i}"), u, buf ^ 1, g0 - 1, ups=(upsV if u == 0 else ()), late=(OPT["vlate"] if u < 3 else 0))
            if u == 3: bar = barrier(rg, g0 + 11 + BDA, pend, [f"K{i+2}", f"V{i+1}"] if i < 6 else ["V7"]); lastX = xs
            buf = C.grp & 1; C.grp += 1; g0 = rg.n(); assert g0 == b0 + GV[u]
            if u < 3 or BDA: frag_waits(rg, pend, g0, 4, g0 + 6, only_first=(u == 3))
            v_mfmas(rg, u, buf, i & 1, i == 0)
            if u < 3:
                sum_mfmas(rg, u, i & 1, i == 0)
                pend = reads_K(rg, so(f"K{i+1}"), u + 1, buf ^ 1, g0 - 1)
                if u == 2: lastK = pend
            elif i < 6:
                ups = rb(f"K{i+2}", g0 - 20, g0 - 2, lastK)
                pend = reads_K(rg, so(f"K{i+2}"), 0, buf ^ 1, g0 - 1 + BDA, deps=[(bar, 0)], ups=ups)
                upsV = rb(f"V{i+1}", g0 - 10, g0 + 4, lastX)
            else:
                upsV = rb("V7", g0 - 10, g0 - 2, lastX)
                pend, _ = reads_V(rg, so("V7"), 0, buf ^ 1, g0 - 1 + BDA, late=0, deps=[(bar, 0)], ups=upsV)
    E = rg.n(); assert E == B(7)
    epi = []
    for p in range(4):
        buf = C.grp & 1; C.grp += 1; g0 = rg.n()
        if p == 0: frag_waits(rg, pend, g0, 4, g0 + 2)
        elif p < 3 or BDW: frag_waits(rg, pend, g0, 4, g0 + 6, only_first=(p == 3))
        last = v_mfmas(rg, p, buf, 1, False, tmajor=(p == 0))
        if p == 0:
            rl = []; lr = []
            for t in range(3):
                ls = sum_mfmas(rg, t, 1, False)
                lr.append(rg.F(V(f"v_accvgpr_read_b32 {vRL[t]}, a{240+4*t}", rd=[f"a{240+4*t}"], wr=[vRL[t]], e=ls.gap, sdeps=[(ls, 8)], d=E + 28)))
            mn = rg.F(V(f"v_min3_f32 {vA}, {vRL[0]}, {vRL[1]}, {vRL[2]}", rd=vRL, wr=[vA], deps=[(x, 0) for x in lr], d=E + 30))
            mx = rg.F(V(f"v_max3_f32 {vB}, {vRL[0]}, {vRL[1]}, {vRL[2]}", rd=vRL, wr=[vB], deps=[(x, 0) for x in lr], d=E + 30))
            rg.F(V(f"v_cmp_gt_f32 {sBad}, {sLo}, {vA}", rd=[vA], wr=[sBad], deps=[(mn, 0)], d=E + 40))
            rg.F(V(f"v_cmp_lt_f32 vcc, {sHi}, {vB}", rd=[vB], wr=["vcc"], deps=[(mx, 0)], d=E + 40))
            for t in range(3):
                rl.append(rg.F(V8(f"v_rcp_f32 {vRL[t]}, {vRL[t]}", rd=[vRL[t]], wr=[vRL[t]], deps=[(mn, 0), (mx, 0)], trans=True, d=E + 34)))
        for (dt, t), lm in last.items():
            mul, cvt = o_epilogue_ops(dt, t)
            for o in mul: o.e = lm.gap; o.sdeps = [(lm, 8), (rl[t], 1)]
            for o in mul + cvt:
                o.optional = True
                if dt >= 4 and o in cvt: o.e = 10**9
                rg.F(o); epi.append(o)
        if p < 3:
            pend, xs = reads_V(rg, so("V7"), p + 1, buf ^ 1, g0 - 1 if p != 0 else g0 + 3)
            if p == 2: bar = barrier(rg, g0 + 11 + BDW, pend, ["W0", "Xa", "Xb", "Xc"])
        else:
            ups = rb("W0", -1, g0 - 2, [])
            for o in ups: o.e = a0
            if OPT["nperm"]: ups = ups + [rg.F(V(f"v_mad_i32_i24 {vWb}, {vC}, {sGate}, {vWb}", rd=[vC, vWb], wr=[vWb], e=a0, d=g0 - 4))]
            pend, _ = reads_W(rg, so("W0"), 0, buf ^ 1, g0 - 1 + BDW, deps=[(bar, 0)], ups=ups, rsp=8)
    assert sorted(g + 288 for g in rg.bars) == ringplan.bS[6:] + [ringplan.bQ] + ringplan.bB + [ringplan.bP]
    head_dmas(rg, 288, 1200)
    rg.pendW0 = pend; rg.epi = epi
    rg.schedule()
    return rg

def half0_muls(rg, b4):
    for mt in range(4):
        for t in range(3): q_muls(rg, mt, t, rg.mf[b4 + 12*mt + 4*t + 3])

def build_R1(left):
    rg = new_region("R1")
    C.grp = 0
    xa = [rg.F(V(f"v_add_u32 v{S0+s}, {sW1k}, {vK[s]}", rd=[vK[s]], wr=[f"v{S0+s}"], d=6)) for s in range(4)]
    xr = reads_X(rg, lambda sl, s: (f"v{S0+s}", (sl - XB)*16384), [SLOT["Xa"], SLOT["Xb"], SLOT["Xc"]], QV, 4, 9, [(a, 1) for a in xa], step=2)
    pend = None; infos = []
    for st in range(5):
        pend, inf = w_step(rg, ORD[st][0], st in (0, 3), BopQ(st), pend, TS(f"W{st}"), TS(f"W{st+1}"), [f"W{st+1}"], more_reads=(xr if st == 0 else ()))
        infos.append(inf)
    new = {}
    for o in left:
        dt, t = o.ot
        n = V(o.text, rd=list(o.rd), wr=list(o.wr)); n.ot = o.ot; new[id(o)] = n
        n.deps = [(new[id(p)], g) for (p, g) in o.deps if id(p) in new]
        n.e = 8 if dt >= 6 else -1
        n.d = ((12*dt + 4*t) if dt < 4 else (144 + 12*(dt - 4) + 4*t)) - 1
        rg.F(n)
    head_dmas(rg, 0, 288)
    rg.pend = pend
    rg.schedule()
    return rg

def build_R1b(h, zst=None):
    rg = new_region(f"R1b{h}")
    C.grp = 20
    pend, inf = w_step(rg, ORD[5][0], False, BopQ(5), None, TS("W5"), TS("W6"), ["W6"])
    for i in range(48): rg.F(V(f"v_accvgpr_write_b32 a{ZB[h-1] + i}, v{PV0 + i}", rd=[f"v{PV0+i}"], wr=[f"a{ZB[h-1]+i}"]))
    next_setup(rg, h)
    rg.pend = pend
    rg.schedule()
    return rg

def next_setup(rg, h):
    T = lambda x, **kw: rg.F(S(x, **kw))
    if h < 3:
        T(f"s_add_u32 {sWcol}, {sWcol}, 256", deps=([(rg.lastw, 1)] if getattr(rg, "lastw", None) else []))
        T(f"s_and_b32 {sWcol}, {sWcol}, 0x3ff")
        for t in NEXT:
            if t[0] == "W":
                for x in wq_t0(sN[NEXT.index(t)], int(t[1])): T(x)
    if h == 2:
        a = T(f"s_lshl_b32 {sTmp}, {sB}, 2")
        if not OPT["bst"]: rg.dbg = rg.F(Op(f"buffer_load_dword {vLane}, off, {srdD}, {sTmp} sc1", "vm", wr=[vLane], deps=[(a, 0)]))
    if h == 3:
        for x in ("s_mov_b32 s16, s80", "s_mov_b32 s17, s81", "s_mov_b32 s18, 0x80000", "s_mov_b32 s20, s80", "s_mov_b32 s21, s81", "s_mov_b32 s22, 0x80000",
                  f"s_mov_b32 {sGate}, 1"): T(x)
        for i in (1, 2, 3): T(f"s_mov_b32 {sD[i]}, {7168*i}"); T(f"s_mov_b32 {sDY[i]}, {7168*i}")
        for m in range(6): T(f"s_add_u32 {sN[m]}, {sRot if m < 4 else sC[0]}, {sH[m & 3]}")
        if OPT["tlb"] == 1:
            sw = T(f"s_mov_b32 {sTmp}, {hex(FLAG_BASE + 0x20080)}")
            for srd, so in ((srdW, "0"), (srdWS, "s75"), (srdWS, sTmp), (srdO, sOutR)):
                rg.F(Op(f"buffer_load_dword {vB}, off, {srd}, {so}", "vm", wr=[vB], deps=[(sw, 0)]))
        rg.F(V(f"v_mov_b32 {vDW}, {vDWo}", rd=[vDWo], wr=[vDW])); rg.F(V(f"v_mov_b32 {vDX}, {vDWo}", rd=[vDWo], wr=[vDX]))

def build_R1f():
    X = lambda q: [f"x{q}{a}" for a in range(3)]
    final = [t for t in ISS if ISS[t] < 288 and t[0] in "KV"] + ["W6", "W7"]
    assert set(final) == {"K0", "K1", "V0", "K2", "V1", "K3", "W6", "W7"}, final
    if OPT["kvlate"] < 4:
        init = X(0) + ["w0"] + X(1) + ["w1", "K0", "K1"]
        inh = list(zip(X(2), X(0))) + [("w2", "w0")] + list(zip(["w3", "x30", "x31"], X(1))) + [("x32", "w1")] + \
              list(zip(["w4", "V0", "w5"], X(2))) + [("K2", "w2"), ("W6", "w3")] + list(zip(["V1", "W7", "K3"], X(3)))
    else:
        init = X(0) + ["w0"] + X(1) + ["w1", "x20", "x21"]
        inh = list(zip(["x22", "w2", "w3"], X(0))) + [("x30", "w0")] + list(zip(["x31", "x32", "w4"], X(1))) + [("w5", "w1")] + \
              list(zip(["W6", "W7", "K0"], X(2))) + [("K1", "w2"), ("V0", "w3")] + list(zip(["K2", "V1", "K3"], X(3)))
    sl = {t: SLOT[t] for t in final}
    for new, old in reversed(inh):
        if new in sl: sl[old] = sl[new]
    free = [x for x in range(10) if x not in {sl[t] for t in init if t in sl}]
    for t in init:
        if t not in sl: sl[t] = free.pop()
    for new, old in inh: sl[new] = sl[old]
    def spec(t):
        if t[0] == "x": return ("X", int(t[2]), int(t[1]))
        if t[0] in "wW": return ("W", int(t[1]))
        return (t[0],)
    wsl = [sl[f"w{j}"] for j in range(6)] + [SLOT["W6"]]
    wb = [min(x, 6) for x in wsl[:6]] + [BASE["W6"]]
    rg = new_region("R1f")
    C.grp = 0
    xaddr = lambda s_, s: (f"v{S0 + 4*(s_ >> 2) + s}", (s_ & 3)*16384)
    dst = {0: (1, lambda s, t: XA(4 + s, t)), 1: (2, lambda s, t: XA(8 + s, t)), 3: (3, QV)}
    pend = None; infos = []; xw = None
    for st in range(6):
        post = None; need = [f"w{st+1}" if st < 5 else "W6"]
        if st in dst:
            q, fn = dst[st]; need += X(q)
            post = (lambda q, fn: lambda g0, bar: reads_X(rg, xaddr, [sl[t] for t in X(q)], fn, g0 + 2 + BDW, g0 + 5 + BDW, [(bar, 0)]))(q, fn)
        pend, inf = w_step(rg, ORD[st][0], st in (0, 3), BopQ(st), pend, ("W", wsl[st], wb[st]), ("W", wsl[st+1], wb[st+1], wb[st]), need, xwait=xw, post=post)
        xw = inf.get("post"); infos.append(inf)
    rel = {"w%d" % j: infos[j]["bar"] for j in range(6)}
    for q, st in ((1, 1), (2, 2), (3, 4)):
        for t in X(q): rel[t] = infos[st]["xbar"]
    items = []; tcur = 0
    if OPT["kvlate"] < 4:
        seq = [(t, None) for t in ("x20", "x21", "x22")] + inh[3:]
        kp = {0: (3, 4), 1: (8, 9), 2: (4, 9), 3: (9, 12)}[OPT["kvlate"]]
        seq.insert(kp[0], ("K0", None)); seq.insert(kp[1], ("K1", None))
    else: seq = [(t, None) for t in ("x20", "x21", "x22", "w2", "w3")] + inh[3:]
    for new, old in seq:
        if old: tcur = max(tcur, rel[old].e)
        items.append((new, spec(new), sl[new], tcur, OPT["fsp"], rel[old] if old else None)); tcur += 4*OPT["fsp"] + 1
    add_dmas(rg, items)
    next_setup(rg, 0)
    rg.pend = pend
    rg.schedule()
    rg.init = [(t, spec(t), sl[t]) for t in init[:8]]; rg.wb0 = wb[0]; rg.wso0 = (wsl[0] - wb[0])*16384
    rg.x0 = [xaddr(sl[t], 0) for t in X(0)]; rg.xsl0 = [sl[t] for t in X(0)]; rg.xaddr = xaddr
    return rg

RLD = [[R("v", QV0 + 4*g, 4) for g in range(8)],
       [R("v", QV0 + 32 + 4*g, 4) for g in range(4)] + [R("v", S0 + 4*g, 4) for g in range(3)] + ["v[236:239]"]]
vTo = vLane if not OPT['bst'] else 'v235'
vSt, vFl, vPo, vPr, vOut = vDK, vDV, vVb, vDX, vC
LAG = OPT['lag']; OSC = ['', ' sc1', ' nt', ' sc0 sc1'][OPT['osc']]
NTST = ' nt' if OPT['ntst'] else ''
LO = ["v249", "v250", "v251", "v253"]
def pack_store(chunk):
    res = []
    for t in range(3):
        for np_ in range(2):
            a, b = 4*chunk + 2*np_, 4*chunk + 2*np_ + 1
            src = [(OAr(a,t,0), OAr(a,t,1)), (OAr(a,t,2), OAr(a,t,3)), (OAr(b,t,0), OAr(b,t,1)), (OAr(b,t,2), OAr(b,t,3))]
            cv = []
            for j in range(4):
                cv.append(V(f"v_cvt_pk_bf16_f32 {OAr(a,t,j)}, {src[j][0]}, {src[j][1]}", rd=list(src[j]), wr=[OAr(a,t,j)], deps=([(cv[-1], 0)] if cv else [])))
            k = 2*t + np_
            sa = S(f"s_add_u32 {sU[k & 1]}, {sSt}, {k*8192}", wr=[sU[k & 1]])
            st = Op(f"buffer_store_dwordx4 {OA(a,t)}, {vSt}, {srdWS}, {sU[k & 1]} offen@SC", "vm", rd=[OA(a,t), vSt], deps=[(cv[-1], 1), (sa, 0)])
            res.append((cv, sa, st))
    return res
def reduce_ops(set_):
    X = [regs(r_) for r_ in RLD[set_]]
    tmp = [vA, vB]; ops = []; n = 0
    for k in range(4):
        ops += [V(f"v_lshlrev_b32 {LO[k]}, 16, {X[0][k]}", rd=[X[0][k]], wr=[LO[k]]),
                V(f"v_and_b32 {X[0][k]}, {sMask}, {X[0][k]}", rd=[X[0][k]], wr=[X[0][k]])]
        for g in range(1, 8):
            tm = tmp[n & 1]; n += 1
            ops += [V(f"v_lshlrev_b32 {tm}, 16, {X[g][k]}", rd=[X[g][k]], wr=[tm]),
                    V(f"v_and_b32 {X[g][k]}, {sMask}, {X[g][k]}", rd=[X[g][k]], wr=[X[g][k]]),
                    V(f"v_add_f32 {LO[k]}, {LO[k]}, {tm}", rd=[LO[k], tm], wr=[LO[k]]),
                    V(f"v_add_f32 {X[0][k]}, {X[0][k]}, {X[g][k]}", rd=[X[0][k], X[g][k]], wr=[X[0][k]])]
        ops.append(V(f"v_cvt_pk_bf16_f32 {X[0][k]}, {LO[k]}, {X[0][k]}", rd=[LO[k], X[0][k]], wr=[X[0][k]]))
    for a, b in zip(ops, ops[1:]): b.deps.append((a, 0))
    pl = []
    for j in range(2):
        pl.append(V8(f"v_permlane32_swap_b32 {X[0][j]}, {X[0][2+j]}", rd=[X[0][j], X[0][2+j]], wr=[X[0][j], X[0][2+j]], sdeps=[(ops[-1], 2)]))
    for j in range(2):
        pl.append(V8(f"v_permlane16_swap_b32 {X[0][j]}, {X[0][2+j]}", rd=[X[0][j], X[0][2+j]], wr=[X[0][j], X[0][2+j]], sdeps=[(pl[j], 2)]))
    st = Op(f"buffer_store_dwordx4 {RLD[set_][0]}, {vOut}, {srdO}, {sOut} offen{OSC}", "vm", rd=[RLD[set_][0], vOut, sOut], deps=[(pl[2], 1), (pl[3], 1)])
    return ops, pl, st
def red_loads(set_):
    return [Op(f"buffer_load_dwordx4 {RLD[set_][g]}, {vSt}, {srdWS}, {sLd if g < 4 else sLd2} offen offset:{(g & 3)*1024} sc1", "vm",
               rd=[vSt], wr=[RLD[set_][g]]) for g in range(8)]
def sig_ops():
    return [Op(f"buffer_store_dword {vSt}, {vFl}, {srdWS}, {sSig} offen@SC", "vm", rd=[vSt, vFl])]
def scal_A():
    return [f"s_sub_u32 {sTmp}, {sIt}, 1", f"s_and_b32 {sTmp}, {sTmp}, {sSlM}", f"s_mul_i32 {sTmp}, {sTmp}, {CHUNK}",
            f"s_add_u32 {sSt}, {sStR}, {sTmp}", f"s_add_u32 {sLd}, {sLdR}, {sTmp}",
            f"s_cmp_ge_u32 {sIt}, 1", f"s_cselect_b32 {sSt}, {sSt}, {hex(OOB)}", f"s_cselect_b32 {sSig}, {sFlR}, {hex(OOB)}",
            f"s_cselect_b32 {sExp}, 16, 0", f"s_cselect_b32 {sPo}, {sFlR}, {hex(FLAG_BASE + 0x20000)}",
            f"s_cselect_b32 {sLd}, {sLd}, {hex(OOB)}", f"s_add_u32 {sLd2}, {sLd}, 0x1000",
            f"s_add_u32 {sFlR}, {sFlR}, 256"]
def scal_B():
    return [f"s_add_u32 {sOut}, {sOutR}, {sOc}", f"s_cmp_ge_u32 {sIt}, 2", f"s_cselect_b32 {sOut}, {sOut}, {hex(OOB)}",
            f"s_add_u32 {sOc}, {sOc}, 128", f"s_and_b32 {sOc}, {sOc}, 0x3ff", f"s_add_u32 {sIt}, {sIt}, 1"]

def build_G():
    rg = new_region("G")
    used = [SLOT[t] for t in NEXT]
    gs = used + [SLOT["K0"]] + [x for x in range(10) if x not in used and x not in (SLOT["K0"], SLOT["K1"], SLOT["V0"])][:1]
    assert len(gs) == 8
    gb = ringplan.bases(gs, BASE["W0"])[1]; assert gb[0] == BASE["W0"]
    rg.gs = gs; items = []; bars = {}; rg.st_last = {}; rg.sB_last = {}; rg.tch = {}
    C.grp = 0
    def Bop(h): return (lambda s, t: ZA(h, s, t)) if h < 3 else (lambda s, t: OP(s, t))
    LD = [red_loads(0), red_loads(1)]
    pend = None; prev_users = []
    for hf in range(2):
        h0 = 192*hf
        stores = []
        for (cv, sa, st) in pack_store(1 - hf):
            for o in cv: o.e = h0 + 8; rg.F(o)
            if len(stores) >= 2: sa.deps.append((stores[-2], 1))
            rg.F(sa); st.e = h0 + 10 + OPT['gst']*len(stores); st.d = st.e + 3; rg.F(st); stores.append(st)
        sc = [rg.F(S(x, e=h0, deps=[(u, 1) for u in prev_users])) for x in scal_B()]
        rg.sB_last[hf] = sc[-1]
        if OPT["gtch"]:
            ca, cb = (sC[1], sC[2]) if hf == 0 else (sC[2], None)
            tk = [rg.F(S(f"s_cmp_lt_u32 {sTk}, 2", e=h0 + 20))]
            if hf == 0: tk.append(rg.F(S(f"s_cselect_b32 {sTmp}, {ca}, {cb}")))
            else: tk += [rg.F(S(f"s_cselect_b32 {sTmp}, 0, 128")), rg.F(S(f"s_add_u32 {sTmp}, {sTmp}, {ca}")), rg.F(S(f"s_and_b32 {sTmp}, {sTmp}, 0x3ff"))]
            tk.append(rg.F(S(f"s_add_u32 {sTo}, {sTmp}, {sTh}")))
            rg.tch[hf] = rg.F(Op(f"buffer_load_dword {vPr}, {vTo}, {srdW}, {sTo} offen", "vm", rd=[vTo], wr=[vPr], deps=[(tk[-1], 0), (stores[-1], 1)], d=h0 + 38))
        rg.sB_last[hf] = [x for x in rg.fill if x.kind == 's'][-1]
        cur = hf ^ 1
        w0 = rg.F(WAIT(h0 + OPT['gsum'], need_vm=LD[cur], late=1)); w0.e = h0 + OPT['gsum']
        o0, p0, s0_ = reduce_ops(cur)
        o0[0].deps.append((w0, 0))
        for o in o0 + p0 + [s0_]: rg.F(o)
        s0_.d = h0 + OPT['gout']; s0_.deps += [(sc[2], 0), (LD[hf][-1], 1)]
        infos = []
        for j in range(4):
            st = 4*hf + j
            n1 = (st + 1) & 7
            pend, inf = w_step(rg, hf, j == 0, Bop(j), pend, ("W", gs[st], gb[st]), ("W", gs[n1], gb[n1], gb[st]), [f"G{n1}"], extra=(stores if j == 1 else ()))
            infos.append(inf); bars[st] = inf["bar"]
        sig, = sig_ops(); bs = infos[1]["bar"]
        sig.deps = [(bs, 0)]; sig.d = bs.e + 1; rg.F(sig)
        po = rg.F(S(f"s_load_dwordx8 s[8:15], s[82:83], {sPo}{' glc' if OPT['glc'] else ''}", e=h0 + OPT['gpoll'], d=h0 + OPT['gpoll'] + 4))
        b2 = infos[2]["bar"]
        ck = [rg.F(S(x, deps=[(b2, 0)])) for x in ("s_and_b32 s8, s8, s9", "s_and_b32 s10, s10, s11", "s_and_b32 s12, s12, s13", "s_and_b32 s14, s14, s15",
              "s_and_b32 s8, s8, s10", "s_and_b32 s12, s12, s14", "s_and_b32 s8, s8, s12", f"s_and_b32 s8, s8, {sExp}", f"s_cmp_lg_u32 s8, {sExp}")]
        br = rg.F(Op(f"s_cbranch_scc1 L_spinG{hf}@L\nL_backG{hf}@L:", "s", d=b2.e + 12))
        prev = None
        for i, o in enumerate(LD[hf]):
            o.deps += [(br, 0)] + ([(prev, 1)] if prev else []); o.e = b2.e + 10 + OPT['gld']*i; o.d = o.e + 3; rg.F(o); prev = o
        prev_users = [s0_]
        for i, x in enumerate(scal_A()): rg.F(S(x, deps=[(LD[hf][-1], 1)] if i == 0 else []))
        for k in range(4):
            st = (4*hf - 2 + k) & 7
            items.append((f"G{st}", ("C", (1 + (st >> 2)) if (hf or k > 1) else 0, st & 3), gs[st], h0 + OPT["gdma"] + k*(4*OPT["gdsp"] + 1), OPT["gdsp"],
                          bars[st] if (hf or k > 1) else stores[-1]))
        rg.st_last[hf] = stores[-1]
    add_dmas(rg, items)
    c1 = S(f"s_cmp_ge_u32 {sIt}, 7", deps=[(TILE["G7"][-1], 1)]); c2 = S("s_cselect_b32 s18, 0, s18", wr=["s18"], rd=["s18"])
    pos = rg.fill.index(rg.sB_last[0]) + 1
    rg.fill[pos:pos] = [c1, c2]
    for i, o in enumerate(rg.fill): o.seq = i + 1
    rg.first_dma["G0"].deps.append((c2, 0))
    rg.first_dma["G6"].deps.append((rg.st_last[0], 1)); rg.first_dma["G2"].deps.append((rg.st_last[1], 1))
    rg.LD = LD; rg.pend = pend
    rg.schedule()
    return rg

def stamp(kind=0):
    if not OPT["stamps"]: return []
    def put(x): return lin(f"v_mov_b32 {vA}, {x}") + [Op(f"buffer_store_dword {vA}, off, {srdWS}, s101", "vm")] + lin("s_add_u32 s101, s101, 4\ns_nop 1")
    if kind == 1: return put("s94") + put("s92") + stamp()
    if kind == 2: return lin("s_waitcnt vmcnt(0)") + stamp()
    return lin("s_memtime s[2:3]\ns_memrealtime s[4:5]\ns_waitcnt lgkmcnt(0)") + put("s2") + put("s4")

def code_pf(lbl, start, end, mask, r):
    if not OPT["pf"]: return []
    return lin(f"""s_getpc_b64 s[{r}:{r+1}]
{lbl}:
s_add_u32 s{r}, s{r}, {start}-{lbl}
s_addc_u32 s{r+1}, s{r+1}, {"-1" if start == KN else "0"}
s_mov_b32 s{r+2}, {end}-{start}
s_mov_b32 s{r+3}, 0x20000
s_lshl_b32 s5, {sIdx}, 2
s_add_u32 s5, s5, {sWave}
s_and_b32 s5, s5, {mask}
s_lshl_b32 s5, s5, 13
v_mbcnt_lo_u32_b32 {vA}, -1, 0
v_mbcnt_hi_u32_b32 {vA}, -1, {vA}
v_lshlrev_b32 {vA}, 7, {vA}""") + [Op(f"buffer_load_dword {vB}, {vA}, s[{r}:{r+3}], s5 offen", "vm")]

HROT = {0: "s_mov_b32 s5, 0", 1: "s_mov_b32 s5, s4", 2: f"s_mov_b32 s5, {sG}", 3: f"s_add_u32 s5, s4, {sG}", 4: f"s_lshr_b32 s5, {sG}, 1",
        5: f"s_lshr_b32 s5, {sB}, 3", 6: f"s_lshr_b32 s5, {sG}, 2\ns_lshl_b32 s3, {sG}, 1\ns_or_b32 s5, s5, s3", 7: f"s_sub_u32 s5, 0, {sG}"}[OPT["hrot"]]
def prologue(F):
    init = F.init
    o = lin(f"""
s_cmp_lt_u32 s2, 256
s_cbranch_scc1 L_go
s_endpgm
L_go:
{"s_memrealtime s[92:93]" if (OPT["stamps"] or OPT["dbl"]) else ""}
{"s_memtime s[94:95]" if OPT["stamps"] else ""}
s_load_dwordx16 s[68:83], s[0:1], 0
v_lshrrev_b32 v1, 6, v0
v_and_b32 {vLane}, 63, v0
s_and_b32 s4, s2, 7
v_readfirstlane_b32 {sWave}, v1
s_lshr_b32 s5, s2, 3
s_mov_b32 {sIdx}, s5""")
    mp = {84: (1, 3, 2, 1, 2, 3), 48: (0, 2, 3, 0, 3, 7), 162: (2, 4, 1, 3, 1, 1)}[OPT["mapping"]]
    o += lin(f"""
s_lshr_b32 s6, s4, {mp[0]}
s_lshl_b32 s6, s6, {mp[1]}
s_lshr_b32 s7, s5, {mp[2]}
s_add_u32 {sB}, s6, s7
s_and_b32 s6, s4, {mp[3]}
s_lshl_b32 s6, s6, {mp[4]}
s_and_b32 s7, s5, {mp[5]}
s_add_u32 {sG}, s6, s7""")
    cbits = struct.unpack("<I", struct.pack("<f", math.log2(math.e)/math.sqrt(128)))[0]
    o += lin(f"""
s_lshl_b32 {sW4k}, {sWave}, 12
v_lshrrev_b32 v5, 4, {vLane}
v_and_b32 v6, 15, {vLane}
s_lshl_b32 s6, {sWave}, 4
v_add_u32 v1, s6, v5
s_lshl_b32 s6, {sWave}, 2
v_or_b32 v2, s6, v5
v_xor_b32 v2, v2, v6
v_lshlrev_b32 v2, 4, v2
v_lshl_add_u32 {vDX}, v1, 10, v2
v_lshl_add_u32 {vDK}, v1, 8, v2
v_lshrrev_b32 v7, 5, {vLane}
v_bfe_u32 v2, {vLane}, 3, 2
v_lshl_add_u32 v7, v7, 3, v2
s_lshl_b32 s6, {sWave}, 5
v_add_u32 v7, s6, v7
v_and_b32 v3, 7, {vLane}
v_lshlrev_b32 v4, 1, v5
v_xor_b32 v3, v3, v4
v_lshlrev_b32 v3, 4, v3
s_mov_b32 {sDY[1]}, 3072
s_mov_b32 {sDY[2]}, 6144
s_mov_b32 {sDY[3]}, 9216
s_mov_b32 {sD[1]}, {16*8192 - 1024}
s_mov_b32 {sD[2]}, {4*8192 - 2048}
s_mov_b32 {sD[3]}, {20*8192 - 3072}
s_lshr_b32 s4, {sB}, 2
{HROT}
s_bfe_u32 {sSw}, s5, {"0x10002" if OPT["hswap"] else "0x00002"}
s_and_b32 s5, s5, {3 if OPT["hrot"] else 0}
s_mov_b32 {sHr}, s5
s_lshl_b32 {sWcol}, s5, 8
s_lshl_b32 {sSw}, {sSw}, 7
s_or_b32 {sWcol}, {sWcol}, {sSw}
s_lshr_b32 {sSw}, {sSw}, 1
v_xor_b32 v7, {sSw}, v7
v_lshl_add_u32 {vDW}, v7, 13, v3
s_lshl_b32 {sKoff}, s5, 17
s_mov_b32 {sVoff}, {sKoff}
{f"s_add_u32 s4, {sB}, {sG}" if OPT["krot"] == 2 else ""}
s_and_b32 s4, s4, {3 if OPT["krot"] else 0}
s_lshl_b32 {sDg[0]}, s4, 20
s_add_u32 {sDg[1]}, {sDg[0]}, 0x100000
s_and_b32 {sDg[1]}, {sDg[1]}, 0x3fffff
s_xor_b32 {sDg[2]}, {sDg[0]}, 0x200000
s_xor_b32 {sDg[3]}, {sDg[1]}, 0x200000
s_mul_i32 s7, {sB}, 196608
s_mov_b32 s22, 196608
s_mov_b32 s23, 0x20000
s_mov_b32 s19, 0x20000
s_lshl_b32 s4, {sG}, 10
s_sub_u32 s18, 0x400000, s4
s_waitcnt lgkmcnt(0)
s_add_u32 s20, s68, s7
s_addc_u32 s21, s69, 0
s_add_u32 s16, s74, s4
s_addc_u32 s17, s75, 0""")
    if OPT["tch"]:
        o += lin(f"""v_lshrrev_b32 v8, 1, {vLane}
v_and_b32 v9, 1, {vLane}
v_lshlrev_b32 v9, 7, v9
v_lshl_add_u32 v11, v8, 13, v9
v_lshl_add_u32 v8, v8, 10, v9
v_mov_b32 v10, {hex(OOB)}
v_cmp_gt_u32 vcc, 12, {vLane}
s_lshl_b32 s4, {sG}, 2
s_add_u32 s4, s4, {sWave}
s_mul_i32 s4, s4, 6144
v_cndmask_b32 v8, v10, v8, vcc
v_cmp_gt_u32 vcc, 16, {vLane}
s_and_b32 s5, {sB}, 3
s_lshl_b32 s5, s5, 2
s_add_u32 s5, s5, {sWave}
s_lshl_b32 s5, s5, 16
s_add_u32 s5, s5, {sWcol}
v_cndmask_b32 v11, v10, v11, vcc
v_add_u32 v8, s4, v8
v_add_u32 v11, s5, v11""")
        for q in range(OPT["tch"] - 1, 4):
            o += lin(f"s_lshr_b32 s3, {sDg[q]}, 12")
            o += [Op(f"buffer_load_dword {vB}, v8, {srdX}, s3 offen", "vm"), Op(f"buffer_load_dword {vB}, v11, {srdW}, {sDg[q]} offen", "vm")]
    for j in range(4): o += dma_linear(*init[j])
    o += lin(f"""s_lshl_b32 s3, {sB}, 22
s_lshl_b32 s7, {sG}, 19
s_add_u32 s3, s3, s7
{"s_mov_b32 s3, 0" if OPT["samekv"] else ""}
s_add_u32 s8, s70, s3
s_addc_u32 s9, s71, 0
s_mov_b32 s10, 0x80000
s_mov_b32 s11, 0x20000
s_add_u32 s12, s72, s3
s_addc_u32 s13, s73, 0
s_mov_b32 s14, 0x80000
s_mov_b32 s15, 0x20000
""")
    if OPT["tlb"]:
        o += [Op(f"buffer_load_dword {vB}, off, {srdK}, 0", "vm"), Op(f"buffer_load_dword {vB}, off, {srdV}, 0", "vm")]
        o += [Op(f"buffer_load_dword {vB}, off, {srdW}, {sDg[q]}", "vm") for q in (1, 2, 3)]
    o += code_pf("L_pc", KN, "L_G", OPT["pf"] - 1, 88)
    o += lin(f"""
v_lshrrev_b32 v7, 3, {vLane}
v_add_u32 v7, s6, v7
v_lshl_add_u32 {vDWo}, v7, 10, v3
s_and_b32 s6, {sWave}, 1
s_lshl_b32 s6, s6, 2
v_or_b32 v2, s6, v5
v_lshlrev_b32 v2, 1, v2
v_xor_b32 v2, v2, v6
v_lshlrev_b32 v1, 8, v1
v_lshl_add_u32 {vDV}, v2, 4, v1
s_mov_b32 s24, s82
s_mov_b32 s25, s83
s_mov_b32 s26, {hex(WS_BYTES)}
s_mov_b32 s27, 0x20000
v_lshrrev_b32 v1, 3, {vLane}
v_and_b32 v2, 7, {vLane}
v_lshlrev_b32 v1, 8, v1
v_lshl_add_u32 v8, v2, 2, v1
s_lshl_b32 s6, {sB}, 11
s_add_u32 s6, s6, {hex(FLAG_BASE)}
s_or_b32 s7, {sG}, {sWave}
s_cmp_eq_u32 s7, 0
s_cselect_b32 {sTmp}, s6, {hex(OOB)}
v_mov_b32 v9, 0""")
    zst = Op(f"buffer_store_dword v9, v8, {srdWS}, {sTmp} offen sc1", "vm"); o.append(zst)

    o += lin(f"""
s_mov_b32 {sScale}, {hex(cbits)}
s_mov_b32 {sLo}, 0x30800000
s_mov_b32 {sHi}, 0x4e800000
s_mov_b32 {sHead}, 0
s_lshl_b32 {sW1k}, {sWave}, 10
s_mov_b32 s28, s78
s_mov_b32 s29, s79
s_mov_b32 s30, 0x600000
s_mov_b32 s31, 0x20000
s_mov_b32 s32, s80
s_mov_b32 s33, s81
s_mov_b32 s34, 0x100
s_mov_b32 s35, 0x20000

v_lshrrev_b32 v1, 2, v6
v_and_b32 v2, 3, v6
v_lshl_add_u32 v3, v1, 4, v2
v_lshlrev_b32 v3, 8, v3""")
    for s in range(4):
        o += lin(f"s_and_b32 s3, {sWcol}, 128\nv_add_u32 v4, {4*s}, v5\nv_xor_b32 v4, v4, v6\nv_lshl_add_u32 {vK[s]}, v4, 4, v3\nv_xor_b32 {vK[s]}, s3, {vK[s]}")
    o += lin(f"""
v_lshl_add_u32 v3, v5, 4, v1
v_lshlrev_b32 v3, 8, v3
v_and_b32 v4, 1, v5
v_lshl_add_u32 v7, v4, 2, v1
v_lshl_add_u32 v3, v7, 5, v3
v_lshl_add_u32 v3, v2, 3, v3
v_add_u32 {vVb}, {BASE["V7"]*16384}, v3
v_lshl_add_u32 v3, v5, 2, v1
v_lshlrev_b32 v3, 7, v3
v_lshrrev_b32 v7, 1, v1
v_lshl_add_u32 v7, v4, 1, v7
{"v_lshlrev_b32 v7, 1, v7" if OPT["nperm"] else "v_lshl_add_u32 v3, v7, 5, v3"}
{"v_xor_b32 v7, v7, v2" if OPT["nperm"] else ""}
{"v_lshl_add_u32 v7, v7, 4, v3" if OPT["nperm"] else "v_lshl_add_u32 v7, v2, 3, v3"}
v_add_u32 {vWb}, {F.wb0*16384}, v7
v_mov_b32 v3, 0x3f803f80
v_accvgpr_write_b32 a252, v3
v_accvgpr_write_b32 a253, v3
v_accvgpr_write_b32 a254, v3
v_accvgpr_write_b32 a255, v3
""")
    for s in range(4):
        o += lin(f"v_add_u32 v{S0+s}, {sW1k}, {vK[s]}\nv_add_u32 v{S0+4+s}, 0x10000, v{S0+s}\nv_add_u32 v{S0+8+s}, 0x20000, v{S0+s}\nv_add_u32 {vK[s]}, {BASE['K7']*16384}, {vK[s]}")
    o += lin(f"s_add_u32 {sW1k}, {sW1k}, {lit((XB - BASE['K7'])*16384)}")
    for j in range(4, 8): o += dma_linear(*init[j])
    o += lin(f"""s_lshl_b32 s6, {sG}, 19
s_add_u32 s80, s76, s6
s_addc_u32 s81, s77, 0
s_mov_b32 {sGate}, 0
s_lshl_b32 {sH[0]}, {sHr}, 17
s_add_u32 {sH[1]}, {sH[0]}, 0x20000
s_and_b32 {sH[1]}, {sH[1]}, 0x7ffff
s_xor_b32 {sH[2]}, {sH[0]}, 0x40000
s_xor_b32 {sH[3]}, {sH[1]}, 0x40000
{"s_mov_b32 s73, s92" if OPT["dbl"] else ""}
s_mov_b32 s76, {hex(OOB)}
s_mov_b32 s77, {hex(OOB)}
s_getreg_b32 {sXcc}, hwreg(HW_REG_XCC_ID, 0, 3)
s_lshr_b32 {sRot}, {sB}, 2
s_and_b32 {sRot}, {sRot}, {7 if OPT["rot"] else 0}
s_lshl_b32 {sRot}, {sRot}, 7
s_lshl_b32 {sXcc}, {sXcc}, 2
s_lshl_b32 {sXcc}, 1, {sXcc}""" + "".join(f"\ns_add_u32 {sC[i]}, {sRot}, {128*(i+1)}\ns_and_b32 {sC[i]}, {sC[i]}, 0x3ff" for i in range(3))
      + "".join("\n" + "\n".join(x_t0(sN[NEXT.index('X' + 'abc'[a])], a, 3)) for a in range(3)) + f"""
s_mul_i32 s6, {sB}, {8*CHUNK + 4096}
s_mov_b32 s75, s6
s_add_u32 s6, s6, 4096
s_mul_i32 s7, {sWave}, 49152
s_add_u32 {sStR}, s6, s7
s_lshl_b32 s7, {sG}, 10
s_add_u32 {sStR}, {sStR}, s7
s_mul_i32 s7, {sG}, 3
s_add_u32 s7, s7, {sWave}
s_lshl_b32 s4, s7, 13
s_add_u32 {sLdR}, s6, s4
s_lshl_b32 {sFlR}, {sB}, 11
s_add_u32 {sFlR}, {sFlR}, {hex(FLAG_BASE - 256)}
s_lshr_b32 s4, s7, 1
s_mul_i32 s5, s4, 11
s_lshr_b32 s5, s5, 5
s_mul_i32 s3, s5, 3
s_sub_u32 s4, s4, s3
s_lshl_b32 s4, s4, 6
s_lshl_b32 s5, s5, 2
s_add_u32 s4, s4, s5
s_mul_i32 s5, {sB}, 192
s_add_u32 s4, s4, s5
s_lshl_b32 s4, s4, 10
s_and_b32 s5, s7, 1
s_lshl_b32 s5, s5, 6
s_add_u32 {sOutR}, s4, s5
s_sub_u32 {sOc}, {sRot}, 256
s_and_b32 {sOc}, {sOc}, 0x3ff
s_cmp_eq_u32 {sWave}, 3
s_cselect_b32 {sLdR}, {hex(OOB)}, {sLdR}
s_cselect_b32 {sOutR}, {hex(OOB)}, {sOutR}
v_bfe_u32 v3, {vLane}, 3, 2
v_and_b32 v2, 3, {vLane}
v_lshlrev_b32 {vC}, 5, v3
v_lshl_add_u32 {vC}, v2, 3, {vC}
v_lshlrev_b32 v3, 1, v3
v_xor_b32 v2, v2, v3
v_lshlrev_b32 v2, 4, v2
v_sub_u32 {vC}, {vC}, v2""")
    if OPT["tlb"] == 2:
        o += lin(f"""s_mov_b32 s4, {hex(FLAG_BASE + 0x20080)}
s_mov_b32 s88, s80
s_mov_b32 s89, s81
s_mov_b32 s90, 0x80000
s_add_u32 s5, s75, {8*CHUNK + 4096}""") if False else lin(f"s_mov_b32 s4, {hex(FLAG_BASE + 0x20080)}\ns_add_u32 s5, s75, {8*CHUNK + 4096}")
        o += [Op(f"buffer_load_dword {vB}, off, {srd}, {so}", "vm") for srd, so in ((srdWS, "s75"), (srdWS, "s5"), (srdWS, "s4"), (srdO, sOutR))]
    if OPT["stamps"]:
        o += lin(f"s_lshl_b32 s101, s2, 10\ns_lshl_b32 s6, {sWave}, 8\ns_add_u32 s101, s101, s6\ns_add_u32 s101, s101, {hex(STAMP_BASE)}")
    if OPT["stamps"] == 2: o += stamp(1)
    o.append(WAIT(0, need_vm=[x[0] for x in init[:4]]))
    o += lin("s_barrier")
    if OPT["stamps"] == 2: o += stamp()
    for t in range(3):
        for s in range(4): o += lin("ds_read_b128 %s, %s offset:%d" % ((XA(s, t),) + F.xaddr(F.xsl0[t], s)))
    for s in range(4):
        for p in range(2): o += lin(f"ds_read_b64_tr_b16 {FR(0, s, p)}, {vWb} offset:{F.wso0 + s*4096 + p*2048}")
    o += lin("s_waitcnt lgkmcnt(0)\ns_barrier")
    return o, zst

def glue0(zst):
    return [WAIT(0, need_vm=[zst])] + lin(f"""s_lshl_b32 s6, {sB}, 2
s_cmp_eq_u32 {sWave}, 0
s_cselect_b32 s6, s6, {hex(OOB)}
v_mov_b32 {vB}, {hex(OOB)}
v_writelane_b32 {vB}, 0, 0
v_mov_b32 {vA}, {sXcc}""") + [Op(f"buffer_atomic_add {vA}, {vB}, {srdD}, s6 offen sc1", "vm")]
def touch_setup():
    return lin(f"""v_mbcnt_lo_u32_b32 {vA}, -1, 0
v_mbcnt_hi_u32_b32 {vA}, -1, {vA}
s_cmp_eq_u32 {sSlM}, 1
s_cselect_b32 s76, {sLdR}, {hex(OOB)}
s_cselect_b32 s4, 256, {hex(OOB)}
{"" if OPT["bst"] else f"v_lshlrev_b32 {vLane}, 7, {vA}"}
v_and_b32 {vA}, 7, {vA}
v_lshlrev_b32 {vA}, 8, {vA}
s_add_u32 s77, s76, {CHUNK}
s_add_u32 s4, s4, {sFlR}""") + ([Op(f"buffer_load_dword {vB}, {vA}, {srdWS}, s4 offen sc1", "vm")] if OPT["ftch"] else [])
def mode_check(dbg):
    if OPT["bst"]: return lin(f"L_chkD:\nL_backD:\ns_mov_b32 {sSlM}, 1")
    return [WAIT(0, need_vm=[dbg])] + lin(f"""s_mov_b32 s3, 0
L_chkD:
v_readfirstlane_b32 s4, {vLane}
s_nop 3
s_lshr_b32 s5, s4, 4
s_and_b32 s5, s5, 0x0f0f0f0f
s_and_b32 s7, s4, 0x0f0f0f0f
s_add_u32 s5, s5, s7
s_mul_i32 s5, s5, 0x01010101
s_lshr_b32 s5, s5, 24
s_cmp_lg_u32 s5, 8
s_cbranch_scc1 L_spinD
L_backD:
s_lshl_b32 s5, {sXcc}, 3
{"s_mov_b32 s5, 0" if OPT["forceslow"] else ""}
s_cmp_eq_u32 s4, s5
s_cselect_b32 {sSlM}, 1, 7""")

def slow_path(placed, pendW0):
    vKo, vVo, vVo2, vKo2 = f"v{PV0+40}", f"v{PV0+41}", f"v{PV0+42}", f"v{PV0+43}"
    M = [f"v{PV0+36+t}" for t in range(3)]
    CN = [R("v", PV0 + 24 + 4*t, 4) for t in range(3)]
    Sx = [R("v", S0 + 4*t, 4) for t in range(3)]
    t_ = f"""
L_slow:
s_waitcnt vmcnt(0) lgkmcnt(0)
s_nop 7
v_mbcnt_lo_u32_b32 {vB}, -1, 0
v_mbcnt_hi_u32_b32 {vB}, -1, {vB}
v_and_b32 {vA}, 15, {vB}
v_lshrrev_b32 {vB}, 4, {vB}
v_lshlrev_b32 {vKo}, 8, {vA}
v_lshl_add_u32 {vKo}, {vB}, 4, {vKo}
s_and_b32 s4, {sWcol}, 128
s_xor_b32 s5, s4, 128
v_add_u32 {vKo2}, s5, {vKo}
v_add_u32 {vKo}, s4, {vKo}
v_lshlrev_b32 {vVo}, 10, {vB}
v_lshl_add_u32 {vVo}, {vA}, 1, {vVo}
v_add_u32 {vVo2}, 0x1000, {vVo}
s_add_u32 s4, {sHr}, {sHead}
s_and_b32 s4, s4, 3
s_lshl_b32 s4, s4, 17
s_mov_b32 s10, 0x80000
s_mov_b32 s14, 0x80000
s_add_u32 s5, s4, 0x20000
s_mov_b32 s6, s4
"""
    for t in range(3): t_ += f"v_mov_b32 {M[t]}, 0xff800000\n"
    t_ += "L_slow1:\n"
    for s in range(4): t_ += f"buffer_load_dwordx4 {FR(0, s)}, {vKo if s < 2 else vKo2}, {srdK}, s6 offen offset:{64*(s & 1)}\n"
    t_ += "s_waitcnt vmcnt(0)\n"
    for t in range(3):
        for s in range(4): t_ += f"v_mfma_f32_16x16x32_bf16 {Sx[t]}, {FR(0, s)}, {QV(s, t)}, {'0' if s == 0 else Sx[t]}\n"
    t_ += "s_nop 9\n"
    for t in range(3):
        t_ += f"v_max3_f32 {M[t]}, {M[t]}, v{S0+4*t}, v{S0+4*t+1}\nv_max3_f32 {M[t]}, {M[t]}, v{S0+4*t+2}, v{S0+4*t+3}\n"
    t_ += "s_add_u32 s6, s6, 0x1000\ns_cmp_lt_u32 s6, s5\ns_cbranch_scc1 L_slow1\n"
    for t in range(3):
        t_ += f"""v_mov_b32 {vA}, {M[t]}
s_nop 1
v_permlane32_swap_b32 {vA}, {M[t]}
s_nop 1
v_max_f32 {M[t]}, {vA}, {M[t]}
v_mov_b32 {vA}, {M[t]}
s_nop 1
v_permlane16_swap_b32 {vA}, {M[t]}
s_nop 1
v_max_f32 {M[t]}, {vA}, {M[t]}
"""
        for i in range(4): t_ += f"v_sub_f32 v{PV0+24+4*t+i}, 0, {M[t]}\n"
    for i in range(96): t_ += f"v_mov_b32 v{i}, 0\n"
    for i in range(12): t_ += f"v_accvgpr_write_b32 a{240+i}, 0\n"
    t_ += "s_mov_b32 s6, s4\nL_slow2:\n"
    for u in range(2):
        for s in range(4): t_ += f"buffer_load_dwordx4 {FR(0, s)}, {vKo if s < 2 else vKo2}, {srdK}, s6 offen offset:{64*(s & 1)}\n"
        t_ += "s_waitcnt vmcnt(0)\n"
        for t in range(3):
            for s in range(4): t_ += f"v_mfma_f32_16x16x32_bf16 {Sx[t]}, {FR(0, s)}, {QV(s, t)}, {CN[t] if s == 0 else Sx[t]}\n"
        t_ += "s_nop 9\n"
        for i in range(12): t_ += f"v_exp_f32 v{S0+i}, v{S0+i}\n"
        t_ += "s_nop 0\n"
        for t in range(3):
            for j in range(2): t_ += f"v_cvt_pk_bf16_f32 {PBr(0, 0, t, 2*u + j)}, v{S0+4*t+2*j}, v{S0+4*t+2*j+1}\n"
        if u == 0: t_ += "s_mov_b32 s7, s6\ns_add_u32 s6, s6, 0x1000\n"
    f = FA0 + 16
    for dt in range(8):
        for j in range(8):
            t_ += f"buffer_load_ushort v{FA0 + j}, {vVo if j < 4 else vVo2}, {srdV}, s7 offen offset:{(j & 3)*256 + 32*dt}\n"
        t_ += "s_waitcnt vmcnt(0)\n"
        for j in range(4): t_ += f"v_lshl_or_b32 v{f + j}, v{FA0 + 2*j + 1}, 16, v{FA0 + 2*j}\n"
        t_ += "s_nop 1\n"
        for t in range(3): t_ += f"v_mfma_f32_16x16x32_bf16 {OA(dt, t)}, v[{f}:{f+3}], {PB(0, 0, t)}, {OA(dt, t)}\n"
    for t in range(3): t_ += f"v_mfma_f32_16x16x32_bf16 {LA(t)}, {ONES}, {PB(0, 0, t)}, {LA(t)}\n"
    t_ += "s_add_u32 s6, s6, 0x1000\ns_cmp_lt_u32 s6, s5\ns_cbranch_scc1 L_slow2\ns_nop 9\n"
    for t in range(3): t_ += f"v_accvgpr_read_b32 {vRL[t]}, a{240+4*t}\n"
    for t in range(3): t_ += f"v_rcp_f32 {vRL[t]}, {vRL[t]}\n"
    t_ += "s_nop 0\n"
    for o in placed: t_ += o.text + "\n"
    for o in pendW0: t_ += o.text + "\n"
    t_ += "s_waitcnt lgkmcnt(0)\n"
    t_ += "s_branch L_join\n"
    return lin(t_)

def spin(lbl, back, reg, off_v, srd, soff, exp):
    return lin(f"""{lbl}:
s_mov_b32 s3, 0
{lbl}_l:
buffer_load_dword {reg}, {off_v}, {srd}, {soff}{' offen' if off_v != 'off' else ''} sc1
s_add_u32 s3, s3, 1
s_waitcnt vmcnt(0)
v_cmp_ne_u32 vcc, {exp}, {reg}
s_cmp_gt_u32 s3, 0x10000
s_cbranch_scc1 {back}
s_nop 2
s_cbranch_vccnz {lbl}_l
s_branch {back}""")

def glue3(left):
    o = lin(f"""v_mbcnt_lo_u32_b32 {vA}, -1, 0
v_mbcnt_hi_u32_b32 {vA}, -1, {vA}
v_lshlrev_b32 {vSt}, 4, {vA}
v_and_b32 {vPo}, 7, {vA}
v_lshlrev_b32 {vPo}, 2, {vPo}
v_lshrrev_b32 {vB}, 4, {vA}
v_bfe_u32 {vOut}, {vA}, 2, 2
v_and_b32 {vA}, 3, {vA}
v_lshl_add_u32 {vA}, {vOut}, 4, {vA}
v_lshlrev_b32 {vA}, 10, {vA}
v_lshl_add_u32 {vOut}, {vB}, 4, {vA}
""")
    if OPT["gl3"]: o += [Op(f"buffer_load_dword {vPr}, {vLane}, {srdWS}, {x} offen", "vm") for x in ("s76", "s77")]
    o += lin(f"""v_mov_b32 {vFl}, {hex(OOB)}
s_lshl_b32 s5, {sG}, 2
s_cmp_eq_u32 {sWave}, 0
s_cselect_b32 s5, s5, {hex(OOB)}
v_writelane_b32 {vFl}, s5, 1
s_mov_b32 {sIt}, 0
s_mov_b32 {sMask}, 0xffff0000""")
    muls = {x.text: x for x in left if "mul" in x.text}
    done = set()
    for x in left:
        if x.text in done: continue
        if "mul" in x.text:
            r_ = int(list(x.wr)[0][1:]); dt, t = x.ot
            mate = f"v_mul_f32 v{r_+1}, {vRL[t]}, v{r_+1}"
            if r_ % 2 == 0 and mate in muls:
                rl = int(vRL[t][1:]); sel = rl & 1
                o.append(V(f"v_pk_mul_f32 v[{r_}:{r_+1}], v[{r_}:{r_+1}], v[{rl-sel}:{rl-sel+1}] op_sel:[0,{sel}] op_sel_hi:[1,{sel}]", rd=[f"v[{r_}:{r_+1}]"], wr=[f"v[{r_}:{r_+1}]"]))
                done.add(mate); continue
        o.append(V(x.text, rd=list(x.rd), wr=list(x.wr)))
    o += lin("\n".join(scal_A()) + f"\ns_cmp_eq_u32 {sSlM}, 7\ns_cbranch_scc1 L_GS")
    return o

def pad_linear(ops):
    out = []
    for o in ops:
        need = 0
        for (p, n) in o.sdeps:
            if p in out: need = max(need, n - sum(x.w for x in out[out.index(p)+1:]))
        if need > 0:
            nop = Op(f"s_nop {need-1}", "x"); nop.w = need; out.append(nop)
        out.append(o)
    return out

def tail(G):
    X = (lambda: stamp()) if OPT["stamps"] == 3 else (lambda: [])
    def sums(set_, loads):
        o0, p0, s0_ = reduce_ops(set_)
        return [WAIT(0, need_vm=loads)] + pad_linear(o0 + p0 + [s0_])
    o = lin("\n".join(scal_B()) + "\ns_nop 1")
    stores = []
    if OPT["wb"] & 2: o += lin(f"s_cmp_lg_u32 {sG}, 0\ns_cbranch_scc1 L_nwa@L\ns_cmp_lg_u32 {sWave}, 3\ns_cbranch_scc1 L_nwa@L\nbuffer_wbl2 sc1\nL_nwa@L:")
    for (cv, sa, st) in pack_store(1):
        o += cv + [sa, st]; stores.append(st)
    if True:
        o += X() + sums(1, G.LD[1]) + X()
        o += [WAIT(0, need_vm=stores)] + X() + lin("s_barrier") + sig_ops()
        o += lin("s_branch L_spinU@L\nL_backU@L:") + X()
        l7 = red_loads(0); o += l7
        if OPT["wb"] & 1: o += lin(f"s_cmp_lg_u32 {sG}, {7 if OPT['wb'] & 4 else 0}\ns_cbranch_scc1 L_nwb@L\ns_cmp_lg_u32 {sWave}, 3\ns_cbranch_scc1 L_nwb@L\nbuffer_wbl2 sc1\nL_nwb@L:")
        o += lin(f"s_add_u32 {sOut}, {sOutR}, {sOc}")
        if OPT["stamps"] == 3: o += lin("s_waitcnt vmcnt(0)") + X()
        o += sums(0, l7) + X() + X()
    return o

def main():
    R2 = build_R2()
    placed = [o for o in R2.epi if o.gap is not None]; placed.sort(key=lambda o: o.pos)
    R1 = build_R1(R2.left)
    R1b = {h: build_R1b(h) for h in (1, 2, 3)}
    R1f = build_R1f()
    G = build_G()
    bind_ext(R1, [R2.pendW0]); bind_ext(R2, [R1f.pend] + [R1b[h].pend for h in R1b]); bind_ext(G, [R2.pendW0, G.pend])
    for h in R1b: bind_ext(R1b[h], [R1.pend])
    for w in R1f.xw: w.text = 's_nop 0'
    pro, zst = prologue(R1f)
    for j, t in enumerate(NEXT): TILE[f'G{j}'] += TILE[t]
    p0 = glue0(zst) + lin("s_branch L_R2")
    sel = lin(f"s_cmp_eq_u32 {sHead}, 2\ns_cbranch_scc1 L_v2\ns_cmp_eq_u32 {sHead}, 3\ns_cbranch_scc1 L_v3")
    v1 = R1b[1].out + lin("s_branch L_R2")
    v2 = lin("L_v2:") + R1b[2].out + lin("s_branch L_R2")
    if OPT["etch"]:
        fl = ["", "", " sc1"][OPT["etch"]]
        v3 = lin("L_v3:") + mode_check(getattr(R1b[2], "dbg", None)) + touch_setup() + \
             [Op(f"buffer_load_dword {vB}, {vLane}, {srdWS}, {x} offen{fl}", "vm") for x in ("s76", "s77")] + R1b[3].out + code_pf("L_pc2", "L_g3", "L_codeend", 15, 76) + \
             lin(f"s_mov_b32 s76, {hex(OOB)}\ns_mov_b32 s77, {hex(OOB)}")
    else:
        v3 = lin("L_v3:") + R1b[3].out + mode_check(getattr(R1b[2], "dbg", None)) + code_pf("L_pc2", "L_g3", "L_codeend", 15, 76) + touch_setup()
    g2 = lin(f"s_or_b64 {sBad}, {sBad}, vcc\ns_cbranch_scc1 L_slow\nL_join:\ns_add_u32 {sHead}, {sHead}, 1\ns_cmp_lt_u32 {sHead}, 4")
    g3 = glue3(R2.left)
    g4 = lin(f"s_mov_b32 {sC[0]}, {sC[2]}\ns_add_u32 {sC[1]}, {sC[0]}, 128\ns_and_b32 {sC[1]}, {sC[1]}, 0x3ff\ns_add_u32 {sC[2]}, {sC[1]}, 128\ns_and_b32 {sC[2]}, {sC[2]}, 0x3ff\ns_cmp_lt_u32 {sIt}, 8")
    T = tail(G)
    sA, sB_, sC_, sD_, sE = stamp(1 if OPT['stamps'] in (1, 3) else 0), stamp(), stamp(), stamp(), stamp(2)
    if OPT["bst"]:
        def dump():
            return lin(f"v_mbcnt_lo_u32_b32 {vA}, -1, 0\nv_mbcnt_hi_u32_b32 {vA}, -1, {vA}\nv_lshlrev_b32 {vA}, 2, {vA}") + [Op(f"buffer_store_dword {vLane}, {vA}, {srdWS}, s101 offen", "vm")] + lin("s_add_u32 s101, s101, 256\ns_nop 1")
        sA = lin(f"s_lshl_b32 s101, s2, 2\ns_add_u32 s101, s101, {sWave}\ns_lshl_b32 s101, s101, 12\ns_add_u32 s101, s101, {hex(DUMP_BASE)}")
        sC_ = dump(); sD_ = dump()
    tr = pro + sA
    for hd in range(4):
        tr += [R1f.out + p0, R1.out + sel + v1, R1.out + sel + v2, R1.out + sel + v3][hd] + sB_ + R2.out + g2 + sC_
    tr += g3
    for it in range(4): tr += G.out + g4 + sD_
    tr += T
    resolve_waits(tr, TILE)
    errs = check(tr, "main")
    for e in errs[:20]: print(e, file=sys.stderr)
    assert not errs
    for rg in (R1f, R1, R1b[1], R1b[3], R2, G): print(rg.name, "overfull:", rg.overlog, file=sys.stderr)
    out = [open(os.path.join(os.path.dirname(os.path.abspath(__file__)), "header.txt")).read().rstrip()]
    out.append("; @launch grid=(256,1,1) block=(256,1,1) lds=163840")
    out.append(f""".amdgcn_target "amdgcn-amd-amdhsa--gfx950"
.text
.globl {KN}
.p2align 8
.type {KN},@function
{KN}:""")
    def emit(ops, sc="", lb=""):
        for o in ops:
            if OPT["nobar"] and o.text == "s_barrier" and o.kind == "w": out.append("s_nop 0"); continue
            if OPT["nolg"] and o.kind == "w" and o.text.startswith("s_waitcnt") and "vmcnt" not in o.text: out.append("s_nop 0"); continue
            if OPT["nods"] and o.kind == "ds": continue
            if OPT["novalu"] and o.kind in ("v4", "v8") and o.gap is not None and ("exp" in o.text or "cvt" in o.text or "mul" in o.text or "perm" in o.text or "and" in o.text or "lshl" in o.text or "add_f32" in o.text): continue
            if OPT["nodma"] and o.text.endswith(" lds"): out.append("s_nop 0"); continue
            if OPT["nored"] and " sc1" in o.text and "dwordx4" in o.text: out.append("s_nop 0"); continue
            if getattr(o, "pre", None): out.append(o.pre)
            out.append(o.text.replace("@SC", sc).replace("@L", lb))
    def mark(n):
        return lin("s_memrealtime s[2:3]\ns_waitcnt lgkmcnt(0)\ns_sub_u32 s75, s2, s73") if OPT["dbl"] == n else []
    def idle(n, tag):
        if not n: return []
        return lin(f"""s_memrealtime s[2:3]
s_waitcnt lgkmcnt(0)
s_mov_b32 s5, s2
L_idle{tag}:
s_sleep 2
s_memrealtime s[2:3]
s_waitcnt lgkmcnt(0)
s_sub_u32 s4, s2, s5
s_cmp_lt_u32 s4, {n}
s_cbranch_scc1 L_idle{tag}""")
    def ex(n): return (stamp(2) + lin("s_endpgm")) if OPT["exitat"] == n else []
    emit(pro + mark(3) + idle(OPT['idle0'], 'a') + sA + ex(1) + R1f.out + mark(4) + p0)
    out.append("L_loop:"); emit(R1.out + sel + v1 + v2 + v3); out.append("L_R2:"); emit(idle(OPT['idle1'], 'b') + sB_ + R2.out + g2 + sC_)
    if OPT["dbl"] >= 10:
        emit(lin(f"s_cmp_lg_u32 {sHead}, {OPT['dbl'] - 9}\ns_cbranch_scc1 L_nomark") + mark(OPT["dbl"]) + lin(f"L_nomark:\ns_cmp_lt_u32 {sHead}, 4"))
    if OPT["stamps"] or OPT["bst"]: out.append(f"s_cmp_lt_u32 {sHead}, 4")
    out.append("s_cbranch_scc1 L_loop")
    out.append('L_g3:'); emit(mark(5) + ex(3) + g3)
    for sc, lb in ((NTST, ""), (" sc1", "S")):
        out.append(f"L_G{lb}:"); emit(G.out + g4 + sD_, sc, lb)
        if OPT["stamps"] or OPT["bst"]: out.append(f"s_cmp_lt_u32 {sIt}, 8")
        out.append(f"s_cbranch_scc1 L_G{lb}")
        emit(T + sE, sc, lb)
        if OPT["dbl"]:
            emit(lin(f"""s_waitcnt vmcnt(0)
s_memrealtime s[2:3]
s_waitcnt lgkmcnt(0)
{"s_sub_u32 s4, s2, s73" if OPT["dbl"] == 1 else ("s_mov_b32 s4, 500" if OPT["dbl"] == 2 else "s_mul_i32 s4, s75, 4")}
s_min_u32 s4, s4, 40000
s_mov_b32 s5, s2
L_dbl{lb}:
s_sleep 4
s_memrealtime s[2:3]
s_waitcnt lgkmcnt(0)
s_sub_u32 s6, s2, s5
s_cmp_lt_u32 s6, s4
s_cbranch_scc1 L_dbl{lb}"""))
        out.append("s_endpgm")
        if not lb: out.append("L_codeend:")
        for nm in ("G0", "G1", "U"): emit(spin(f"L_spin{nm}{lb}", f"L_back{nm}{lb}", vPr, vPo, srdWS, sPoll, sExp))
    emit(lin(f"""L_spinD:
s_add_u32 s3, s3, 1
s_cmp_gt_u32 s3, 0x10000
s_cbranch_scc1 L_backD
s_lshl_b32 {sTmp}, {sB}, 2
buffer_load_dword {vLane}, off, {srdD}, {sTmp} sc1
s_waitcnt vmcnt(0)
s_branch L_chkD"""))
    emit(slow_path(placed, R2.pendW0))
    out.append(f"""s_endpgm
.section .rodata,"a"
.p2align 6
.amdhsa_kernel {KN}
  .amdhsa_next_free_vgpr 512
  .amdhsa_next_free_sgpr 102
  .amdhsa_accum_offset 256
  .amdhsa_group_segment_fixed_size 0
  .amdhsa_kernarg_size 64
  .amdhsa_user_sgpr_count 2
  .amdhsa_user_sgpr_kernarg_segment_ptr 1
  .amdhsa_system_sgpr_workgroup_id_x 1
.end_amdhsa_kernel""")
    print("\n".join(out))
main()
```

```python
import sys, os, struct, math
sys.path.insert(0, os.path.dirname(os.path.abspath(__file__)))
from sched import *
import ringplan

OPT = dict(stamps=0, nt=1, mapping=48, nodma=0, samekv=0, nored=0, ntw=0, ntx=0, bst=0, lrate=3, lburst=4, rsp=8, rk=2, i0=-170, dk=75, ksp=4, wsp=5, gst=4, gld=4, gsig=1, gpoll=108, gsum=8, gdma=40, glc=0, rot=1, gout=189, gdsp=5, lag=1, forceslow=0, ntst=0, pf=128, hrot=3, hswap=1, plan=0, samew=0, samex=0, krot=2, osc=0, idle0=0, idle1=0, exitat=0, wb=0, dbl=0, nperm=1, bdw=2, bda=3, vlate=1, tch=0, gtch=0, kvlate=0, tg=0, etch=0, gl3=1, ftch=1, tlb=2, fsp=2, nobar=0, nolg=0, nods=0, novalu=0)
for a in sys.argv[1:]:
    k, v = a.split("="); assert k in OPT, k; OPT[k] = float(v) if "." in v else int(v)
Region.LDSRATE = OPT["lrate"]; Region.LDSBURST = OPT["lburst"]
KN = "standalone__mha_block_cached__near_ridge_kernel"

def OA(mt, t): return R("v", (mt*3 + t)*4, 4)
def OAr(mt, t, i): return f"v{(mt*3 + t)*4 + i}"
QV0, PV0, S0, FA0 = 96, 144, 192, 204
def QV(s, t): return R("v", QV0 + (s*3 + t)*4, 4)
def QVr(s, t, i): return f"v{QV0 + (s*3 + t)*4 + i}"
def PB(buf, sg, t): return R("v", PV0 + 24*buf + (sg*3 + t)*4, 4)
def PBr(buf, sg, t, i): return f"v{PV0 + 24*buf + (sg*3 + t)*4 + i}"
def OP(s, t): return R("v", PV0 + (s*3 + t)*4, 4)
def OPr(s, t, i): return f"v{PV0 + (s*3 + t)*4 + i}"
def FR(buf, f, half=None):
    b = FA0 + 16*buf + 4*f
    return R("v", b, 4) if half is None else R("v", b + 2*half, 2)
vK = ["v236", "v237", "v238", "v239"]
vVb, vWb, vT = "v240", "v241", ["v242", "v243"]
vDK, vDV, vDW, vDX, vC = "v244", "v245", "v246", "v247", "v248"
vRL = ["v249", "v250", "v251"]
vLane, vDWo, vA, vB = "v252", "v253", "v254", "v255"
def XA(s, t): return R("a", (s*3 + t)*4, 4)
ZB = {0: 144, 1: 192, 2: 0}
def ZA(h, s, t): return R("a", ZB[h] + (s*3 + t)*4, 4)
def LA(t): return R("a", 240 + 4*t, 4)
ONES = "a[252:255]"

srdK, srdV, srdW, srdX, srdWS, srdO, srdD = (f"s[{i}:{i+3}]" for i in (8, 12, 16, 20, 24, 28, 32))
sW1k, sXcc, sRot, sOc = "s36", "s37", "s38", "s39"
sC = ["s40", "s41", "s42"]
sDg = ["s43", "s44", "s45", "s46"]
sIdx = "s99"
sH = ["s93", "s95", "s96", "s97"]; sHr = "s98"; sSw = "s3"
sKoff, sVoff, sWcol = "s47", "s48", "s49"
sD = [None, "s50", "s51", "s52"]
sDY = [None, "s53", "s54", "s55"]
sT = ["s56", "s57", "s58", "s59"]
sW4k, sHead, sScale, sWave, sB, sG, sLo, sHi = (f"s{i}" for i in range(60, 68))
sBad = "s[84:85]"
sN = [f"s{i}" for i in range(86, 92)]
sTmp = "s100"
sIt, sSt, sSig, sExp, sLd, sLd2, sOut = (f"s{i}" for i in range(86, 93))
sStR, sLdR, sFlR, sOutR, sSlM, sLdMin, sGate = (f"s{i}" for i in range(68, 75))
sPoll = sSig; sPo = "s99"; sTk, sTh, sTo = "s43", "s44", "s45"
sU = ["s4", "s5"]; sMask = "s6"
OOB = 0x40000000
FLAG_BASE = 0x3040000
STAMP_BASE = 0x3100000
DUMP_BASE = 0x4000000
WS_BYTES = 0x8000000 if OPT["bst"] else 0x3200000
CHUNK = 196608
ORD = [(0,0),(0,1),(0,2),(1,0),(0,3),(1,3),(1,1),(1,2)]
ORDG = [(j >> 2, j & 3) for j in range(8)]
NTKV = {"K": " nt" if OPT["nt"] in (1, 2) else "", "V": " nt" if OPT["nt"] in (1, 3) else ""}
NTW = " nt" if OPT["ntw"] else ""
NTX = " nt" if OPT["ntx"] else ""
def wq_lit(step): return ORD[step][1]*0x100000 + ORD[step][0]*128
def wo_lit(m): return (m & 3)*0x20000 + (m >> 2)*128

def S(text, rd=(), wr=(), **kw): return Op(text, "s", rd=rd, wr=wr, **kw)
def V(text, rd=(), wr=(), **kw): return Op(text, "v4", rd=rd, wr=wr, **kw)
def V8(text, rd=(), wr=(), **kw): return Op(text, "v8", rd=rd, wr=wr, **kw)
def WAIT(d, need_ds=(), need_vm=(), lg0=False, late=3, e=-1):
    o = Op("s_waitcnt ?", "w", e=e, d=d, late=late, deps=[(x, 1) for x in need_ds])
    o.need_ds, o.need_vm, o.lg0 = list(need_ds), list(need_vm), lg0
    return o
def lin(text):
    return [Op(l.strip(), "x") for l in text.strip().split("\n") if l.strip()]

class Ctx: pass
C = Ctx(); C.grp = 0

ringplan.setb(OPT["bdw"], OPT["bda"]); BDW, BDA = OPT["bdw"], OPT["bda"]
wI = {"W0": -210, "W1": -135, "W2": -55, "W3": 36 + BDW, "W4": 78, "W5": 112, "W6": 162, "W7": 186}
xI = {"Xa": -430, "Xb": -350, "Xc": -280}
PLANS = {
 3: {'Xa': -514, 'Xb': -444, 'Xc': -297, 'W0': -229, 'W1': -155, 'W2': -63, 'W3': 8, 'W4': 38, 'W5': 82, 'W6': 110, 'W7': 180, 'K0': -187, 'K1': -112, 'V0': -38, 'K2': 58, 'V1': 141, 'K3': 216, 'V2': 290, 'K4': 364, 'V3': 436, 'K5': 507, 'V4': 579, 'K6': 651, 'V5': 721, 'K7': 794, 'V6': 863, 'V7': 940},
 4: {'Xa': -514, 'Xb': -444, 'Xc': -297, 'W0': -229, 'W1': -155, 'W2': -63, 'W3': 8, 'W4': 38, 'W5': 82, 'W6': 110, 'W7': 180, 'K0': -180, 'K1': -108, 'V0': -36, 'K2': 58, 'V1': 141, 'K3': 216, 'V2': 290, 'K4': 364, 'V3': 438, 'K5': 512, 'V4': 586, 'K6': 660, 'V5': 734, 'K7': 808, 'V6': 878, 'V7': 950},
 1: {'Xa': -510, 'Xb': -430, 'Xc': -352, 'W0': -205, 'W1': -106, 'W2': -26, 'W3': 5, 'W4': 37, 'W5': 98, 'W6': 161, 'W7': 190, 'K0': -243, 'K1': -157, 'V0': -60, 'K2': 64, 'V1': 130, 'K3': 221, 'V2': 290, 'K4': 354, 'V3': 415, 'K5': 477, 'V4': 593, 'K6': 533, 'V5': 650, 'K7': 728, 'V6': 809, 'V7': 894},
 2: {'Xa': -496, 'Xb': -413, 'Xc': -333, 'W0': -252, 'W1': -103, 'W2': -30, 'W3': 5, 'W4': 38, 'W5': 99, 'W6': 130, 'W7': 188, 'K0': -210, 'K1': -148, 'V0': -54, 'K2': 67, 'V1': 155, 'K3': 221, 'V2': 291, 'K4': 349, 'V3': 409, 'K5': 473, 'V4': 534, 'K6': 598, 'V5': 662, 'K7': 829, 'V6': 747, 'V7': 904},
}
if OPT["plan"]: wI = PLANS[OPT["plan"]]; xI = {}
ISS, SLOT, _c, NEED = ringplan.plan(OPT["i0"], OPT["dk"], wI, xI)
assert SLOT is not None
SPR = {}
for t in ISS:
    m = ISS[t] % 1200
    sp = OPT["ksp"] if t[0] in "KV" else OPT["wsp"]
    if 228 <= m < 288: ISS[t] += 290 - m; m = 290
    SPR[t] = min(sp, ((240 if m < 288 else 1200) - 5 - m)//3); assert SPR[t] >= 1
BASE = {}
for ch in "KVW":
    for i, b in enumerate(ringplan.bases([SLOT[f"{ch}{i}"] for i in range(8)])[1]): BASE[f"{ch}{i}"] = b
XB = min(SLOT["Xa"], SLOT["Xb"], SLOT["Xc"]); assert max(SLOT["Xa"], SLOT["Xb"], SLOT["Xc"]) - XB <= 3
NEXT = sorted([t for t in ISS if ISS[t] < 0 and t[0] in "WX"], key=lambda t: (t != "W0", ISS[t]))
print("plan:", ISS, SLOT, BASE, NEXT, file=sys.stderr)
TILE = {}
def lit(x): return hex(x & 0xffffffff)
def rebase(rg, typ, old, new, e, d, after=()):
    if old == new: return []
    regs_ = vK if typ == "K" else [vVb if typ == "V" else vWb]
    return [rg.F(V(f"v_add_u32 {r}, {lit((new - old)*16384)}, {r}", rd=[r], wr=[r], e=e, d=d, deps=[(a, 0) for a in after if a])) for r in regs_]
def wq_t0(dst, step):
    hf, dg = ORD[step]
    return [f"s_add_u32 {dst}, {sWcol}, {sDg[dg]}"] + ([f"s_xor_b32 {dst}, {dst}, 128"] if hf else [])
def x_t0(dst, a, q):
    return [f"s_lshr_b32 {dst}, {sDg[q]}, 12"] + ([f"s_add_u32 {dst}, {dst}, {a*65536}"] if a else [])
def tile_src(spec):
    k = spec[0]
    if k == "W": return srdW, vDW, wq_t0(sT[0], spec[1]), sD, NTW
    if k == "C": return srdW, vDW, [f"s_add_u32 {sT[0]}, {sC[spec[1]]}, {sH[spec[2]]}"], sD, NTW
    if k == "N": return srdW, vDW, [f"s_mov_b32 {sT[0]}, {sN[spec[1]]}"], sD, NTW
    if k == "Y": return srdX, vDX, [f"s_mov_b32 {sT[0]}, {sN[spec[1]]}"], sDY, NTX
    if k == "X": return srdX, vDX, x_t0(sT[0], spec[1], spec[2]), sDY, NTX
def add_dmas(rg, items):
    ev = []
    for (name, spec, slot, e, sp, bar) in items:
        for i in range(4 if spec[0] != "T" else 2): ev.append((e + sp*i, e, i, name, spec, slot, bar))
    ev.sort(key=lambda x: (x[0], x[1]))
    prev = None; cur = None; wopen = None; ts = None; lastw = None; m0 = None
    for (t, e0, i, name, spec, slot, bar) in ev:
        deps = []
        if bar is not None: deps.append((bar, 0))
        if prev is not None: deps.append((prev, 1))
        if cur != slot:
            m0 = rg.F(Op(f"s_add_u32 m0, {sW4k}, {slot*16384}", "t", wr=["m0"], e=t - 6, deps=([(prev, 1)] if prev else []))); cur = slot
        deps.append((m0, 1))
        if spec[0] == "T":
            o = rg.F(Op(f"buffer_load_dword {vLane}, {srdWS}, {('s76', 's77')[i]} offen lds", "vm", rd=[vLane, "m0"], e=t, d=t + 4, deps=deps))
        elif spec[0] in "KV":
            so, vo, srd = (sKoff, vDK, srdK) if spec[0] == "K" else (sVoff, vDV, srdV)
            st = rg.inc.get(spec[0])
            if st is not None and i == 0: deps.append((st, 0))
            o = rg.F(Op(f"buffer_load_dwordx4 {vo}, {srd}, {so} offen offset:{i*1024}{NTKV[spec[0]]} lds", "vm", rd=[vo, so, "m0"], e=t, d=t + 4, deps=deps))
            if i == 3:
                inc = rg.F(Op(f"s_add_u32 {so}, {so}, 0x4000", "t", rd=[so], wr=[so], deps=[(o, 1)], d=t + 12))
                if name[1] == "7":
                    inc = rg.F(Op(f"s_and_b32 {so}, {so}, 0x7ffff", "t", rd=[so], wr=[so], deps=[(inc, 0)], d=t + 14))
                    nr = "s10" if name[0] == "K" else "s14"
                    rg.F(S(f"s_cmp_eq_u32 {sHead}, 3", deps=[(o, 1)])); inc2 = rg.F(S(f"s_cselect_b32 {nr}, 0, {nr}", d=t + 20))
                rg.inc[spec[0]] = inc
        else:
            srd, vo, t0, dl, fl = tile_src(spec)
            if i == 0:
                assert wopen is None, "W-type tiles may not interleave"
                wopen = name
                tt = rg.F(Op(t0[0], "t", wr=[sT[0]], e=t - 12, deps=([(lastw, 1)] if lastw else [])))
                for x in t0[1:]: tt = rg.F(Op(x, "t", wr=[sT[0]], deps=[(tt, 0)]))
                ts = [tt]
                ts += [rg.F(Op(f"s_add_u32 {sT[j]}, {sT[0]}, {dl[j]}", "t", wr=[sT[j]], deps=[(ts[0], 0)])) for j in (1, 2, 3)]
            o = rg.F(Op(f"buffer_load_dwordx4 {vo}, {srd}, {sT[i]} offen offset:{i*1024}{fl} lds", "vm", rd=[vo, sT[i], "m0"], e=t, d=t + 4, deps=deps + [(ts[i], 0)]))
            if i == 3: wopen = None; lastw = o
        if i == 3: TILE.setdefault(name, []).append(o)
        if i == 0: rg.first_dma[name] = o
        prev = o
    rg.lastw = lastw
def head_dmas(rg, lo, hi):
    items = []
    for t in ISS:
        m = ISS[t] % 1200
        if not (lo <= m < hi): continue
        spec = (t[0],) if t[0] in "KV" else (("W", int(t[1])) if ISS[t] >= 0 else (("N" if t[0] == "W" else "Y"), NEXT.index(t)))
        cands = [g for g in rg.bars if g + lo <= m and any(SLOT[p] == SLOT[t] and NEED[p][1] % 1200 == g + lo for p in NEED)]
        bar = rg.bars[max(cands)] if cands else None
        items.append((t, spec, SLOT[t], m - lo, SPR[t], bar))
    if hi == 1200 and OPT['tg']:
        tg = OPT["tg"] + lo
        def free(x): return not any(SLOT[p] == x and any(ISS[p] + sh <= tg + 30 and tg < NEED[p][1] + sh for sh in (0, 1200)) for p in NEED)
        x = [x for x in range(10) if free(x)][0]
        cands = [g for g in rg.bars if g + lo <= tg and any(SLOT[p] == x and NEED[p][1] % 1200 == g + lo for p in NEED)]
        items.append(("T", ("T",), x, OPT["tg"], 12, rg.bars[max(cands)] if cands else None))
    add_dmas(rg, items)
def dma_linear(name, spec, slot):
    ops = lin(f"s_add_u32 m0, {sW4k}, {slot*16384}")
    if spec[0] in "KV":
        so, vo, srd = (sKoff, vDK, srdK) if spec[0] == "K" else (sVoff, vDV, srdV)
        d = [Op(f"buffer_load_dwordx4 {vo}, {srd}, {so} offen offset:{i*1024}{NTKV[spec[0]]} lds", "vm") for i in range(4)]
        ops += lin("s_nop 0") + d + lin(f"s_add_u32 {so}, {so}, 0x4000")
    else:
        srd, vo, t0, dl, fl = tile_src(spec)
        d = [Op(f"buffer_load_dwordx4 {vo}, {srd}, {sT[i]} offen offset:{i*1024}{fl} lds", "vm") for i in range(4)]
        ops += lin("\n".join(t0) + "\n" + "\n".join(f"s_add_u32 {sT[i]}, {sT[0]}, {dl[i]}" for i in (1, 2, 3))) + d
    TILE.setdefault(name, []).append(d[-1])
    return ops
def reads_X(rg, addr, slots, dst, e, d, deps, step=1):
    ops = []
    for t in range(3):
        for s in range(4):
            r_, imm = addr(slots[t], s)
            ops.append(rg.F(Op(f"ds_read_b128 {dst(s, t)}, {r_} offset:{imm}", "ds", rd=[r_], wr=[dst(s, t)], e=e, d=d + len(ops)*step,
                               deps=list(deps) + ([(ops[-1], 0)] if ops else []))))
    return ops

def new_region(name):
    rg = Region(name); rg.nst = {"R1": 0, "R1f": 0, "R2": 6, "G": 0}.get(name, 5)
    ext_waits(rg)
    rg.tuse = {0: [], 1: []}; rg.bars = {}; rg.inc = {}; rg.first_dma = {}; rg.wq = bool(OPT["nperm"]) and name != "G"
    return rg

def xor_addr(rg, base, k, ti, e, d, after=()):
    if k == 0: return base, None
    deps = [(x, 0) for x in rg.tuse[ti]] + [(a, 0) for a in after]
    o = rg.F(V(f"v_xor_b32 {vT[ti]}, {k*32}, {base}", rd=[base], wr=[vT[ti]], e=e, d=d, deps=deps))
    rg.tuse[ti] = []
    return vT[ti], o
def reads_W(rg, so, mt, buf, e, deps=(), ups=(), rsp=None):
    if rg.wq:
        if mt == 2: a, xo = xor_addr(rg, vWb, 2, 0, e - 8, e, ups)
        else: a, xo = (vWb if mt < 2 else vT[0]), None
        so += 8*(mt & 1)
    else: a, xo = xor_addr(rg, vWb, mt, mt & 1, e - 8, e, ups)
    dp = list(deps) + ([(xo, 1)] if xo else [(u, 1) for u in ups])
    ops = []
    for s in range(4):
        for p in range(2):
            ops.append(rg.F(Op(f"ds_read_b64_tr_b16 {FR(buf, s, p)}, {a} offset:{so + s*4096 + p*2048}", "ds", rd=[a], wr=[FR(buf, s, p)],
                               e=e, d=min(e + 1 + len(ops)*(rsp or OPT['rsp'])//8, e + 9), deps=dp + ([(ops[-1], 0)] if ops else []))))
    if rg.wq:
        if mt >= 2: rg.tuse[0] = ops
    elif xo: rg.tuse[mt & 1] = ops
    rg.lastWr = ops
    return ops, xo
def reads_K(rg, so, u, buf, e, deps=(), ups=()):
    ops = []
    for s in range(4):
        ops.append(rg.F(Op(f"ds_read_b128 {FR(buf, s)}, {vK[s]} offset:{so + u*1024}", "ds", rd=[vK[s]], wr=[FR(buf, s)],
                           e=e, d=e + 3 + len(ops)*OPT['rk'], deps=list(deps) + [(x, 1) for x in ups] + ([(ops[-1], 0)] if ops else []))))
    return ops
def reads_V(rg, so, dp_, buf, e, deps=(), ups=(), late=0):
    ops = []; xs = []
    for k in range(2):
        dt = 2*dp_ + k
        a, xo = xor_addr(rg, vVb, dt, k, e - 10, e + 4*k, ups)
        if xo: xs.append(xo)
        dd = list(deps) + ([(xo, 1)] if xo else [(u, 1) for u in ups])
        mine = []
        for sg in range(2):
            for p in range(2):
                o = rg.F(Op(f"ds_read_b64_tr_b16 {FR(buf, 2*k + sg, p)}, {a} offset:{so + sg*2048 + p*1024}", "ds", rd=[a], wr=[FR(buf, 2*k + sg, p)],
                            e=e, d=(e + 2 + len(ops)*OPT['rsp']//8) if not late else (e + 3 + 2*len(ops) if k == 0 else e + 5 + (len(ops)*5)//4), deps=dd + ([(ops[-1], 0)] if ops else [])))
                ops.append(o); mine.append(o)
        if xo: rg.tuse[k] = mine
    return ops, xs

def barrier(rg, gap, last_reads, tiles, extra=(), lg0=True, st=True):
    w = rg.F(WAIT(gap - 1, need_ds=last_reads, need_vm=list(tiles) + list(extra), lg0=lg0, late=1))
    w.deps += [(x, 1) for x in extra if x in rg.fill]
    b = rg.F(Op("s_barrier", "w", e=gap, d=gap, deps=[(w, 1)])); rg.bars[gap] = b
    if OPT["bst"] and st:
        w.pre = "s_memtime s[2:3]"
        i = rg.nst; rg.nst += 1
        rg.F(V(f"v_writelane_b32 {vLane}, s2, {i}", e=gap + 1, d=gap + 8))
    return b
def xstamp(rg, gap, idx, dep):
    if OPT["bst"] < 2: return
    w = rg.F(Op("s_memtime s[2:3]\ns_waitcnt lgkmcnt(0)", "w", e=gap, d=gap, deps=[(dep, 1)]))
    rg.F(V(f"v_writelane_b32 {vLane}, s2, {idx}", deps=[(w, 0)], d=gap))
def ext_waits(rg):
    rg.xw = []
    for d in (-1, 1):
        w = WAIT(d, late=1); w.e = d; rg.F(w); rg.xw.append(w)
def bind_ext(rg, preds):
    rg.xw[0].alt_ds = [p[:4] for p in preds]; rg.xw[1].alt_ds = list(preds)
def frag_waits(rg, rd_ops, first_use, n_first, second_use, only_first=False):
    if rd_ops is None: return
    rg.F(WAIT(first_use - 1, need_ds=rd_ops[:n_first], late=2))
    if n_first < len(rd_ops) and not only_first: rg.F(WAIT(second_use - 1, need_ds=rd_ops, late=1))

def so_(sb): return (sb[0] - sb[1])*16384
def w_step(rg, half, zero, Bop, pend, cur, nxt, need, extra=(), more_reads=(), xwait=None, post=None):
    b0 = rg.n(); info = dict(b0=b0); xlast = None
    if xwait:
        for t in range(3): rg.F(WAIT(b0 + 4*t - 1, need_ds=xwait[:4*t + 4], late=1))
        info["xbar"] = barrier(rg, b0 + 10, xwait, (), lg0=False, st=False)
    for mt in range(4):
        buf = C.grp & 1; C.grp += 1
        g0 = b0 + 12*mt
        if pend is not None and (mt < 3 or BDW): frag_waits(rg, pend, g0, 4, g0 + 2, only_first=(mt == 3))
        for t in range(3):
            for s in range(4):
                acc = OA(4*half + mt, t)
                rg.M(mfma(acc, FR(buf, s), Bop(s, t), "0" if (zero and s == 0) else acc))
        if mt < 3:
            pend, xo = reads_W(rg, so_(cur[1:3]), mt + 1, buf ^ 1, g0 - 1 if (mt or b0) else g0)
            if xo: xlast = xo
            if mt == 0 and rg.wq: base_users = pend
            if mt == 2: bar = barrier(rg, g0 + 11 + BDW, pend + list(more_reads), need, extra)
        else:
            ups = rebase(rg, nxt[0], nxt[3], nxt[2], b0 + 20, g0 - 2, after=([xlast] + (base_users if rg.wq else [])) if nxt[0] == "W" else [])
            if nxt[0] == "W": pend, _ = reads_W(rg, so_(nxt[1:3]), 0, buf ^ 1, g0 - 1 + BDW, deps=[(bar, 0)], ups=ups, rsp=(4 if post else None))
            else: pend = reads_K(rg, so_(nxt[1:3]), 0, buf ^ 1, g0 - 1 + BDW, deps=[(bar, 0)], ups=ups)
            if post: info["post"] = post(g0, bar)
    info["bar"] = bar; info["end"] = rg.n() - 1
    return pend, info
def TS(name, prev=None):
    k, i = name[0], int(name[1])
    return (k, SLOT[name], BASE[name], BASE[f"{k}{(i - 1) % 8}"])

def softmax(rg, g0, u, Sr, pbuf, d_over, d_puse):
    sg = u >> 1
    for t in range(3):
        last = rg.mf[g0 + 4*t + 3]
        dl = min(d_over(t), d_puse(t) - 3)
        ex = [rg.F(V8(f"v_exp_f32 {Sr(t,i)}, {Sr(t,i)}", rd=[Sr(t,i)], wr=[Sr(t,i)], e=last.gap, sdeps=[(last, 8)], trans=True)) for i in range(4)]
        for j in range(2):
            dst = PBr(pbuf, sg, t, 2*(u & 1) + j)
            rg.F(V(f"v_cvt_pk_bf16_f32 {dst}, {Sr(t,2*j)}, {Sr(t,2*j+1)}", rd=[Sr(t,2*j), Sr(t,2*j+1)], wr=[dst], d=dl,
                   sdeps=[(ex[2*j], 1), (ex[2*j+1], 1)]))
def k_mfmas(rg, buf, Sd):
    for t in range(3):
        for s in range(4):
            rg.M(mfma(Sd(t), FR(buf, s), QV(s, t), "0" if s == 0 else Sd(t)))
def v_mfmas(rg, dp_, buf, pbuf, zero, tmajor=False):
    order = [(k, t) for t in range(3) for k in range(2)] if tmajor else [(k, t) for k in range(2) for t in range(3)]
    last = {}
    for k, t in order:
        for sg in range(2):
            acc = OA(2*dp_ + k, t)
            last[(2*dp_ + k, t)] = rg.M(mfma(acc, FR(buf, 2*k + sg), PB(pbuf, sg, t), "0" if (zero and sg == 0) else acc))
    return last
def sum_mfmas(rg, t, pbuf, zero):
    for sg in range(2):
        o = rg.M(mfma(LA(t), ONES, PB(pbuf, sg, t), "0" if (zero and sg == 0) else LA(t)))
    return o
def o_epilogue_ops(dt, t):
    mul = [V(f"v_mul_f32 {OAr(dt,t,i)}, {vRL[t]}, {OAr(dt,t,i)}", rd=[OAr(dt,t,i), vRL[t]], wr=[OAr(dt,t,i)]) for i in range(4)]
    cvt = []
    for j in range(2):
        dst = OPr(dt >> 1, t, 2*(dt & 1) + j)
        cvt.append(V(f"v_cvt_pk_bf16_f32 {dst}, {OAr(dt,t,2*j)}, {OAr(dt,t,2*j+1)}", rd=[OAr(dt,t,2*j), OAr(dt,t,2*j+1)], wr=[dst],
                     deps=[(mul[2*j], 0), (mul[2*j+1], 0)]))
    for o in mul + cvt: o.ot = (dt, t)
    return mul, cvt
def q_muls(rg, mt, t, last, **kw):
    return [rg.F(V(f"v_mul_f32 {OAr(mt,t,i)}, {sScale}, {OAr(mt,t,i)}", rd=[OAr(mt,t,i)], wr=[OAr(mt,t,i)],
                   e=(last.gap if last is not None else -1), sdeps=([(last, 8)] if last is not None else []), **kw)) for i in range(4)]
def q_epilogue(rg, sp, t, lastA, lastB, d_use, muls=True):
    cv = []
    for k, last in ((0, lastA), (1, lastB)):
        mt = 2*sp + k
        mul = q_muls(rg, mt, t, last) if muls else None
        for j in range(2):
            dst = QVr(sp, t, 2*k + j)
            cv.append(rg.F(V(f"v_cvt_pk_bf16_f32 {dst}, {OAr(mt,t,2*j)}, {OAr(mt,t,2*j+1)}", rd=[OAr(mt,t,2*j), OAr(mt,t,2*j+1)], wr=[dst],
                             deps=([(mul[2*j], 0), (mul[2*j+1], 0)] if muls else []))))
    if OPT["nperm"]:
        for o in cv: o.d = d_use - 3
        return
    for j in range(2):
        a, b = QVr(sp, t, j), QVr(sp, t, 2 + j)
        p1 = rg.F(V8(f"v_permlane32_swap_b32 {a}, {b}", rd=[a, b], wr=[a, b], sdeps=[(cv[j], 2), (cv[2+j], 2)]))
        rg.F(V8(f"v_permlane16_swap_b32 {a}, {b}", rd=[a, b], wr=[a, b], sdeps=[(p1, 2)], d=d_use - 3))

def BopQ(st):
    dg = ORD[st][1]
    return (lambda s, t: XA(4*dg + s, t)) if dg < 3 else (lambda s, t: QV(s, t))

def build_R2():
    rg = new_region("R2")
    C.grp = 24
    pend, i6 = w_step(rg, ORD[6][0], False, BopQ(6), None, TS("W6"), TS("W7"), ["W7"])
    pend, i7 = w_step(rg, ORD[7][0], False, BopQ(7), pend, TS("W7"), TS("K0"), ["K0"])
    a0 = rg.n(); b7 = i7["b0"]
    for sp in (0, 1):
        for t in range(3): q_epilogue(rg, sp, t, None, None, min(a0 + 4*t + sp, 20 + (sp*3 + t)*9), muls=True)
    for sp in (2, 3):
        for t in range(3):
            mA, mB = 2*sp - 4, 2*sp - 3
            q_epilogue(rg, sp, t, rg.mf[b7 + 12*mA + 4*t + 3], rg.mf[b7 + 12*mB + 4*t + 3], a0 + 4*t + sp)
    B = lambda i: a0 + 48 + 102*i
    GK = [0, 26, 52, 78]; GV = [12, 38, 64, 90]
    def puse(i, sg, t): return (B(i) + 12 + 2*t + sg) if i < 7 else (B(7) + 4*t + sg)
    def so(n): return so_(TS(n)[1:3])
    def rb(n, e, d, after=()): x = TS(n); return rebase(rg, x[0], x[3], x[2], e, d, after)
    for u in range(4):
        buf = C.grp & 1; C.grp += 1; g0 = rg.n()
        if u < 3 or BDW: frag_waits(rg, pend, g0, 2, g0 + 2, only_first=(u == 3))
        k_mfmas(rg, buf, lambda t: OA(u, t))
        softmax(rg, g0, u, lambda t, i: OAr(u, t, i), 0, lambda t: 10**9, lambda t: puse(0, u >> 1, t))
        if u < 3:
            pend = reads_K(rg, so("K0"), u + 1, buf ^ 1, g0 - 1)
            if u == 2: bar = barrier(rg, g0 + 11 + BDW, pend, ["K1", "V0"]); lastK = pend
        else:
            ups = rb("K1", g0 - 12, g0 - 2, lastK)
            pend = reads_K(rg, so("K1"), 0, buf ^ 1, g0 - 1 + BDW, deps=[(bar, 0)], ups=ups)
            upsV = rb("V0", -1, g0)
    for i in range(7):
        b0 = rg.n(); assert b0 == B(i)
        for u in range(4):
            buf = C.grp & 1; C.grp += 1; g0 = rg.n(); assert g0 == b0 + GK[u]
            frag_waits(rg, pend, g0, 2, g0 + 2)
            k_mfmas(rg, buf, lambda t: R("v", S0 + 4*t, 4))
            nxtK = (b0 + GK[u+1]) if u < 3 else (B(i+1) if i < 6 else None)
            softmax(rg, g0, u, lambda t, j: f"v{S0 + 4*t + j}", (i + 1) & 1,
                    (lambda t: nxtK + 4*t - 1) if nxtK else (lambda t: 10**9), lambda t: puse(i + 1, u >> 1, t))
            pend, xs = reads_V(rg, so(f"V{i}"), u, buf ^ 1, g0 - 1, ups=(upsV if u == 0 else ()), late=(OPT["vlate"] if u < 3 else 0))
            if u == 3: bar = barrier(rg, g0 + 11 + BDA, pend, [f"K{i+2}", f"V{i+1}"] if i < 6 else ["V7"]); lastX = xs
            buf = C.grp & 1; C.grp += 1; g0 = rg.n(); assert g0 == b0 + GV[u]
            if u < 3 or BDA: frag_waits(rg, pend, g0, 4, g0 + 6, only_first=(u == 3))
            v_mfmas(rg, u, buf, i & 1, i == 0)
            if u < 3:
                sum_mfmas(rg, u, i & 1, i == 0)
                pend = reads_K(rg, so(f"K{i+1}"), u + 1, buf ^ 1, g0 - 1)
                if u == 2: lastK = pend
            elif i < 6:
                ups = rb(f"K{i+2}", g0 - 20, g0 - 2, lastK)
                pend = reads_K(rg, so(f"K{i+2}"), 0, buf ^ 1, g0 - 1 + BDA, deps=[(bar, 0)], ups=ups)
                upsV = rb(f"V{i+1}", g0 - 10, g0 + 4, lastX)
            else:
                upsV = rb("V7", g0 - 10, g0 - 2, lastX)
                pend, _ = reads_V(rg, so("V7"), 0, buf ^ 1, g0 - 1 + BDA, late=0, deps=[(bar, 0)], ups=upsV)
    E = rg.n(); assert E == B(7)
    epi = []
    for p in range(4):
        buf = C.grp & 1; C.grp += 1; g0 = rg.n()
        if p == 0: frag_waits(rg, pend, g0, 4, g0 + 2)
        elif p < 3 or BDW: frag_waits(rg, pend, g0, 4, g0 + 6, only_first=(p == 3))
        last = v_mfmas(rg, p, buf, 1, False, tmajor=(p == 0))
        if p == 0:
            rl = []; lr = []
            for t in range(3):
                ls = sum_mfmas(rg, t, 1, False)
                lr.append(rg.F(V(f"v_accvgpr_read_b32 {vRL[t]}, a{240+4*t}", rd=[f"a{240+4*t}"], wr=[vRL[t]], e=ls.gap, sdeps=[(ls, 8)], d=E + 28)))
            mn = rg.F(V(f"v_min3_f32 {vA}, {vRL[0]}, {vRL[1]}, {vRL[2]}", rd=vRL, wr=[vA], deps=[(x, 0) for x in lr], d=E + 30))
            mx = rg.F(V(f"v_max3_f32 {vB}, {vRL[0]}, {vRL[1]}, {vRL[2]}", rd=vRL, wr=[vB], deps=[(x, 0) for x in lr], d=E + 30))
            rg.F(V(f"v_cmp_gt_f32 {sBad}, {sLo}, {vA}", rd=[vA], wr=[sBad], deps=[(mn, 0)], d=E + 40))
            rg.F(V(f"v_cmp_lt_f32 vcc, {sHi}, {vB}", rd=[vB], wr=["vcc"], deps=[(mx, 0)], d=E + 40))
            for t in range(3):
                rl.append(rg.F(V8(f"v_rcp_f32 {vRL[t]}, {vRL[t]}", rd=[vRL[t]], wr=[vRL[t]], deps=[(mn, 0), (mx, 0)], trans=True, d=E + 34)))
        for (dt, t), lm in last.items():
            mul, cvt = o_epilogue_ops(dt, t)
            for o in mul: o.e = lm.gap; o.sdeps = [(lm, 8), (rl[t], 1)]
            for o in mul + cvt:
                o.optional = True
                if dt >= 4 and o in cvt: o.e = 10**9
                rg.F(o); epi.append(o)
        if p < 3:
            pend, xs = reads_V(rg, so("V7"), p + 1, buf ^ 1, g0 - 1 if p != 0 else g0 + 3)
            if p == 2: bar = barrier(rg, g0 + 11 + BDW, pend, ["W0", "Xa", "Xb", "Xc"])
        else:
            ups = rb("W0", -1, g0 - 2, [])
            for o in ups: o.e = a0
            if OPT["nperm"]: ups = ups + [rg.F(V(f"v_mad_i32_i24 {vWb}, {vC}, {sGate}, {vWb}", rd=[vC, vWb], wr=[vWb], e=a0, d=g0 - 4))]
            pend, _ = reads_W(rg, so("W0"), 0, buf ^ 1, g0 - 1 + BDW, deps=[(bar, 0)], ups=ups, rsp=8)
    assert sorted(g + 288 for g in rg.bars) == ringplan.bS[6:] + [ringplan.bQ] + ringplan.bB + [ringplan.bP]
    head_dmas(rg, 288, 1200)
    rg.pendW0 = pend; rg.epi = epi
    rg.schedule()
    return rg

def half0_muls(rg, b4):
    for mt in range(4):
        for t in range(3): q_muls(rg, mt, t, rg.mf[b4 + 12*mt + 4*t + 3])

def build_R1(left):
    rg = new_region("R1")
    C.grp = 0
    xa = [rg.F(V(f"v_add_u32 v{S0+s}, {sW1k}, {vK[s]}", rd=[vK[s]], wr=[f"v{S0+s}"], d=6)) for s in range(4)]
    xr = reads_X(rg, lambda sl, s: (f"v{S0+s}", (sl - XB)*16384), [SLOT["Xa"], SLOT["Xb"], SLOT["Xc"]], QV, 4, 9, [(a, 1) for a in xa], step=2)
    pend = None; infos = []
    for st in range(5):
        pend, inf = w_step(rg, ORD[st][0], st in (0, 3), BopQ(st), pend, TS(f"W{st}"), TS(f"W{st+1}"), [f"W{st+1}"], more_reads=(xr if st == 0 else ()))
        infos.append(inf)
    new = {}
    for o in left:
        dt, t = o.ot
        n = V(o.text, rd=list(o.rd), wr=list(o.wr)); n.ot = o.ot; new[id(o)] = n
        n.deps = [(new[id(p)], g) for (p, g) in o.deps if id(p) in new]
        n.e = 8 if dt >= 6 else -1
        n.d = ((12*dt + 4*t) if dt < 4 else (144 + 12*(dt - 4) + 4*t)) - 1
        rg.F(n)
    head_dmas(rg, 0, 288)
    rg.pend = pend
    rg.schedule()
    return rg

def build_R1b(h, zst=None):
    rg = new_region(f"R1b{h}")
    C.grp = 20
    pend, inf = w_step(rg, ORD[5][0], False, BopQ(5), None, TS("W5"), TS("W6"), ["W6"])
    for i in range(48): rg.F(V(f"v_accvgpr_write_b32 a{ZB[h-1] + i}, v{PV0 + i}", rd=[f"v{PV0+i}"], wr=[f"a{ZB[h-1]+i}"]))
    next_setup(rg, h)
    rg.pend = pend
    rg.schedule()
    return rg

def next_setup(rg, h):
    T = lambda x, **kw: rg.F(S(x, **kw))
    if h < 3:
        T(f"s_add_u32 {sWcol}, {sWcol}, 256", deps=([(rg.lastw, 1)] if getattr(rg, "lastw", None) else []))
        T(f"s_and_b32 {sWcol}, {sWcol}, 0x3ff")
        for t in NEXT:
            if t[0] == "W":
                for x in wq_t0(sN[NEXT.index(t)], int(t[1])): T(x)
    if h == 2:
        a = T(f"s_lshl_b32 {sTmp}, {sB}, 2")
        if not OPT["bst"]: rg.dbg = rg.F(Op(f"buffer_load_dword {vLane}, off, {srdD}, {sTmp} sc1", "vm", wr=[vLane], deps=[(a, 0)]))
    if h == 3:
        for x in ("s_mov_b32 s16, s80", "s_mov_b32 s17, s81", "s_mov_b32 s18, 0x80000", "s_mov_b32 s20, s80", "s_mov_b32 s21, s81", "s_mov_b32 s22, 0x80000",
                  f"s_mov_b32 {sGate}, 1"): T(x)
        for i in (1, 2, 3): T(f"s_mov_b32 {sD[i]}, {7168*i}"); T(f"s_mov_b32 {sDY[i]}, {7168*i}")
        for m in range(6): T(f"s_add_u32 {sN[m]}, {sRot if m < 4 else sC[0]}, {sH[m & 3]}")
        if OPT["tlb"] == 1:
            sw = T(f"s_mov_b32 {sTmp}, {hex(FLAG_BASE + 0x20080)}")
            for srd, so in ((srdW, "0"), (srdWS, "s75"), (srdWS, sTmp), (srdO, sOutR)):
                rg.F(Op(f"buffer_load_dword {vB}, off, {srd}, {so}", "vm", wr=[vB], deps=[(sw, 0)]))
        rg.F(V(f"v_mov_b32 {vDW}, {vDWo}", rd=[vDWo], wr=[vDW])); rg.F(V(f"v_mov_b32 {vDX}, {vDWo}", rd=[vDWo], wr=[vDX]))

def build_R1f():
    X = lambda q: [f"x{q}{a}" for a in range(3)]
    final = [t for t in ISS if ISS[t] < 288 and t[0] in "KV"] + ["W6", "W7"]
    assert set(final) == {"K0", "K1", "V0", "K2", "V1", "K3", "W6", "W7"}, final
    if OPT["kvlate"] < 4:
        init = X(0) + ["w0"] + X(1) + ["w1", "K0", "K1"]
        inh = list(zip(X(2), X(0))) + [("w2", "w0")] + list(zip(["w3", "x30", "x31"], X(1))) + [("x32", "w1")] + \
              list(zip(["w4", "V0", "w5"], X(2))) + [("K2", "w2"), ("W6", "w3")] + list(zip(["V1", "W7", "K3"], X(3)))
    else:
        init = X(0) + ["w0"] + X(1) + ["w1", "x20", "x21"]
        inh = list(zip(["x22", "w2", "w3"], X(0))) + [("x30", "w0")] + list(zip(["x31", "x32", "w4"], X(1))) + [("w5", "w1")] + \
              list(zip(["W6", "W7", "K0"], X(2))) + [("K1", "w2"), ("V0", "w3")] + list(zip(["K2", "V1", "K3"], X(3)))
    sl = {t: SLOT[t] for t in final}
    for new, old in reversed(inh):
        if new in sl: sl[old] = sl[new]
    free = [x for x in range(10) if x not in {sl[t] for t in init if t in sl}]
    for t in init:
        if t not in sl: sl[t] = free.pop()
    for new, old in inh: sl[new] = sl[old]
    def spec(t):
        if t[0] == "x": return ("X", int(t[2]), int(t[1]))
        if t[0] in "wW": return ("W", int(t[1]))
        return (t[0],)
    wsl = [sl[f"w{j}"] for j in range(6)] + [SLOT["W6"]]
    wb = [min(x, 6) for x in wsl[:6]] + [BASE["W6"]]
    rg = new_region("R1f")
    C.grp = 0
    xaddr = lambda s_, s: (f"v{S0 + 4*(s_ >> 2) + s}", (s_ & 3)*16384)
    dst = {0: (1, lambda s, t: XA(4 + s, t)), 1: (2, lambda s, t: XA(8 + s, t)), 3: (3, QV)}
    pend = None; infos = []; xw = None
    for st in range(6):
        post = None; need = [f"w{st+1}" if st < 5 else "W6"]
        if st in dst:
            q, fn = dst[st]; need += X(q)
            post = (lambda q, fn: lambda g0, bar: reads_X(rg, xaddr, [sl[t] for t in X(q)], fn, g0 + 2 + BDW, g0 + 5 + BDW, [(bar, 0)]))(q, fn)
        pend, inf = w_step(rg, ORD[st][0], st in (0, 3), BopQ(st), pend, ("W", wsl[st], wb[st]), ("W", wsl[st+1], wb[st+1], wb[st]), need, xwait=xw, post=post)
        xw = inf.get("post"); infos.append(inf)
    rel = {"w%d" % j: infos[j]["bar"] for j in range(6)}
    for q, st in ((1, 1), (2, 2), (3, 4)):
        for t in X(q): rel[t] = infos[st]["xbar"]
    items = []; tcur = 0
    if OPT["kvlate"] < 4:
        seq = [(t, None) for t in ("x20", "x21", "x22")] + inh[3:]
        kp = {0: (3, 4), 1: (8, 9), 2: (4, 9), 3: (9, 12)}[OPT["kvlate"]]
        seq.insert(kp[0], ("K0", None)); seq.insert(kp[1], ("K1", None))
    else: seq = [(t, None) for t in ("x20", "x21", "x22", "w2", "w3")] + inh[3:]
    for new, old in seq:
        if old: tcur = max(tcur, rel[old].e)
        items.append((new, spec(new), sl[new], tcur, OPT["fsp"], rel[old] if old else None)); tcur += 4*OPT["fsp"] + 1
    add_dmas(rg, items)
    next_setup(rg, 0)
    rg.pend = pend
    rg.schedule()
    rg.init = [(t, spec(t), sl[t]) for t in init[:8]]; rg.wb0 = wb[0]; rg.wso0 = (wsl[0] - wb[0])*16384
    rg.x0 = [xaddr(sl[t], 0) for t in X(0)]; rg.xsl0 = [sl[t] for t in X(0)]; rg.xaddr = xaddr
    return rg

RLD = [[R("v", QV0 + 4*g, 4) for g in range(8)],
       [R("v", QV0 + 32 + 4*g, 4) for g in range(4)] + [R("v", S0 + 4*g, 4) for g in range(3)] + ["v[236:239]"]]
vTo = vLane if not OPT['bst'] else 'v235'
vSt, vFl, vPo, vPr, vOut = vDK, vDV, vVb, vDX, vC
LAG = OPT['lag']; OSC = ['', ' sc1', ' nt', ' sc0 sc1'][OPT['osc']]
NTST = ' nt' if OPT['ntst'] else ''
LO = ["v249", "v250", "v251", "v253"]
def pack_store(chunk):
    res = []
    for t in range(3):
        for np_ in range(2):
            a, b = 4*chunk + 2*np_, 4*chunk + 2*np_ + 1
            src = [(OAr(a,t,0), OAr(a,t,1)), (OAr(a,t,2), OAr(a,t,3)), (OAr(b,t,0), OAr(b,t,1)), (OAr(b,t,2), OAr(b,t,3))]
            cv = []
            for j in range(4):
                cv.append(V(f"v_cvt_pk_bf16_f32 {OAr(a,t,j)}, {src[j][0]}, {src[j][1]}", rd=list(src[j]), wr=[OAr(a,t,j)], deps=([(cv[-1], 0)] if cv else [])))
            k = 2*t + np_
            sa = S(f"s_add_u32 {sU[k & 1]}, {sSt}, {k*8192}", wr=[sU[k & 1]])
            st = Op(f"buffer_store_dwordx4 {OA(a,t)}, {vSt}, {srdWS}, {sU[k & 1]} offen@SC", "vm", rd=[OA(a,t), vSt], deps=[(cv[-1], 1), (sa, 0)])
            res.append((cv, sa, st))
    return res
def reduce_ops(set_):
    X = [regs(r_) for r_ in RLD[set_]]
    tmp = [vA, vB]; ops = []; n = 0
    for k in range(4):
        ops += [V(f"v_lshlrev_b32 {LO[k]}, 16, {X[0][k]}", rd=[X[0][k]], wr=[LO[k]]),
                V(f"v_and_b32 {X[0][k]}, {sMask}, {X[0][k]}", rd=[X[0][k]], wr=[X[0][k]])]
        for g in range(1, 8):
            tm = tmp[n & 1]; n += 1
            ops += [V(f"v_lshlrev_b32 {tm}, 16, {X[g][k]}", rd=[X[g][k]], wr=[tm]),
                    V(f"v_and_b32 {X[g][k]}, {sMask}, {X[g][k]}", rd=[X[g][k]], wr=[X[g][k]]),
                    V(f"v_add_f32 {LO[k]}, {LO[k]}, {tm}", rd=[LO[k], tm], wr=[LO[k]]),
                    V(f"v_add_f32 {X[0][k]}, {X[0][k]}, {X[g][k]}", rd=[X[0][k], X[g][k]], wr=[X[0][k]])]
        ops.append(V(f"v_cvt_pk_bf16_f32 {X[0][k]}, {LO[k]}, {X[0][k]}", rd=[LO[k], X[0][k]], wr=[X[0][k]]))
    for a, b in zip(ops, ops[1:]): b.deps.append((a, 0))
    pl = []
    for j in range(2):
        pl.append(V8(f"v_permlane32_swap_b32 {X[0][j]}, {X[0][2+j]}", rd=[X[0][j], X[0][2+j]], wr=[X[0][j], X[0][2+j]], sdeps=[(ops[-1], 2)]))
    for j in range(2):
        pl.append(V8(f"v_permlane16_swap_b32 {X[0][j]}, {X[0][2+j]}", rd=[X[0][j], X[0][2+j]], wr=[X[0][j], X[0][2+j]], sdeps=[(pl[j], 2)]))
    st = Op(f"buffer_store_dwordx4 {RLD[set_][0]}, {vOut}, {srdO}, {sOut} offen{OSC}", "vm", rd=[RLD[set_][0], vOut, sOut], deps=[(pl[2], 1), (pl[3], 1)])
    return ops, pl, st
def red_loads(set_):
    return [Op(f"buffer_load_dwordx4 {RLD[set_][g]}, {vSt}, {srdWS}, {sLd if g < 4 else sLd2} offen offset:{(g & 3)*1024} sc1", "vm",
               rd=[vSt], wr=[RLD[set_][g]]) for g in range(8)]
def sig_ops():
    return [Op(f"buffer_store_dword {vSt}, {vFl}, {srdWS}, {sSig} offen@SC", "vm", rd=[vSt, vFl])]
def scal_A():
    return [f"s_sub_u32 {sTmp}, {sIt}, 1", f"s_and_b32 {sTmp}, {sTmp}, {sSlM}", f"s_mul_i32 {sTmp}, {sTmp}, {CHUNK}",
            f"s_add_u32 {sSt}, {sStR}, {sTmp}", f"s_add_u32 {sLd}, {sLdR}, {sTmp}",
            f"s_cmp_ge_u32 {sIt}, 1", f"s_cselect_b32 {sSt}, {sSt}, {hex(OOB)}", f"s_cselect_b32 {sSig}, {sFlR}, {hex(OOB)}",
            f"s_cselect_b32 {sExp}, 16, 0", f"s_cselect_b32 {sPo}, {sFlR}, {hex(FLAG_BASE + 0x20000)}",
            f"s_cselect_b32 {sLd}, {sLd}, {hex(OOB)}", f"s_add_u32 {sLd2}, {sLd}, 0x1000",
            f"s_add_u32 {sFlR}, {sFlR}, 256"]
def scal_B():
    return [f"s_add_u32 {sOut}, {sOutR}, {sOc}", f"s_cmp_ge_u32 {sIt}, 2", f"s_cselect_b32 {sOut}, {sOut}, {hex(OOB)}",
            f"s_add_u32 {sOc}, {sOc}, 128", f"s_and_b32 {sOc}, {sOc}, 0x3ff", f"s_add_u32 {sIt}, {sIt}, 1"]

def build_G():
    rg = new_region("G")
    used = [SLOT[t] for t in NEXT]
    gs = used + [SLOT["K0"]] + [x for x in range(10) if x not in used and x not in (SLOT["K0"], SLOT["K1"], SLOT["V0"])][:1]
    assert len(gs) == 8
    gb = ringplan.bases(gs, BASE["W0"])[1]; assert gb[0] == BASE["W0"]
    rg.gs = gs; items = []; bars = {}; rg.st_last = {}; rg.sB_last = {}; rg.tch = {}
    C.grp = 0
    def Bop(h): return (lambda s, t: ZA(h, s, t)) if h < 3 else (lambda s, t: OP(s, t))
    LD = [red_loads(0), red_loads(1)]
    pend = None; prev_users = []
    for hf in range(2):
        h0 = 192*hf
        stores = []
        for (cv, sa, st) in pack_store(1 - hf):
            for o in cv: o.e = h0 + 8; rg.F(o)
            if len(stores) >= 2: sa.deps.append((stores[-2], 1))
            rg.F(sa); st.e = h0 + 10 + OPT['gst']*len(stores); st.d = st.e + 3; rg.F(st); stores.append(st)
        sc = [rg.F(S(x, e=h0, deps=[(u, 1) for u in prev_users])) for x in scal_B()]
        rg.sB_last[hf] = sc[-1]
        if OPT["gtch"]:
            ca, cb = (sC[1], sC[2]) if hf == 0 else (sC[2], None)
            tk = [rg.F(S(f"s_cmp_lt_u32 {sTk}, 2", e=h0 + 20))]
            if hf == 0: tk.append(rg.F(S(f"s_cselect_b32 {sTmp}, {ca}, {cb}")))
            else: tk += [rg.F(S(f"s_cselect_b32 {sTmp}, 0, 128")), rg.F(S(f"s_add_u32 {sTmp}, {sTmp}, {ca}")), rg.F(S(f"s_and_b32 {sTmp}, {sTmp}, 0x3ff"))]
            tk.append(rg.F(S(f"s_add_u32 {sTo}, {sTmp}, {sTh}")))
            rg.tch[hf] = rg.F(Op(f"buffer_load_dword {vPr}, {vTo}, {srdW}, {sTo} offen", "vm", rd=[vTo], wr=[vPr], deps=[(tk[-1], 0), (stores[-1], 1)], d=h0 + 38))
        rg.sB_last[hf] = [x for x in rg.fill if x.kind == 's'][-1]
        cur = hf ^ 1
        w0 = rg.F(WAIT(h0 + OPT['gsum'], need_vm=LD[cur], late=1)); w0.e = h0 + OPT['gsum']
        o0, p0, s0_ = reduce_ops(cur)
        o0[0].deps.append((w0, 0))
        for o in o0 + p0 + [s0_]: rg.F(o)
        s0_.d = h0 + OPT['gout']; s0_.deps += [(sc[2], 0), (LD[hf][-1], 1)]
        infos = []
        for j in range(4):
            st = 4*hf + j
            n1 = (st + 1) & 7
            pend, inf = w_step(rg, hf, j == 0, Bop(j), pend, ("W", gs[st], gb[st]), ("W", gs[n1], gb[n1], gb[st]), [f"G{n1}"], extra=(stores if j == 1 else ()))
            infos.append(inf); bars[st] = inf["bar"]
        sig, = sig_ops(); bs = infos[1]["bar"]
        sig.deps = [(bs, 0)]; sig.d = bs.e + 1; rg.F(sig)
        po = rg.F(S(f"s_load_dwordx8 s[8:15], s[82:83], {sPo}{' glc' if OPT['glc'] else ''}", e=h0 + OPT['gpoll'], d=h0 + OPT['gpoll'] + 4))
        b2 = infos[2]["bar"]
        ck = [rg.F(S(x, deps=[(b2, 0)])) for x in ("s_and_b32 s8, s8, s9", "s_and_b32 s10, s10, s11", "s_and_b32 s12, s12, s13", "s_and_b32 s14, s14, s15",
              "s_and_b32 s8, s8, s10", "s_and_b32 s12, s12, s14", "s_and_b32 s8, s8, s12", f"s_and_b32 s8, s8, {sExp}", f"s_cmp_lg_u32 s8, {sExp}")]
        br = rg.F(Op(f"s_cbranch_scc1 L_spinG{hf}@L\nL_backG{hf}@L:", "s", d=b2.e + 12))
        prev = None
        for i, o in enumerate(LD[hf]):
            o.deps += [(br, 0)] + ([(prev, 1)] if prev else []); o.e = b2.e + 10 + OPT['gld']*i; o.d = o.e + 3; rg.F(o); prev = o
        prev_users = [s0_]
        for i, x in enumerate(scal_A()): rg.F(S(x, deps=[(LD[hf][-1], 1)] if i == 0 else []))
        for k in range(4):
            st = (4*hf - 2 + k) & 7
            items.append((f"G{st}", ("C", (1 + (st >> 2)) if (hf or k > 1) else 0, st & 3), gs[st], h0 + OPT["gdma"] + k*(4*OPT["gdsp"] + 1), OPT["gdsp"],
                          bars[st] if (hf or k > 1) else stores[-1]))
        rg.st_last[hf] = stores[-1]
    add_dmas(rg, items)
    c1 = S(f"s_cmp_ge_u32 {sIt}, 7", deps=[(TILE["G7"][-1], 1)]); c2 = S("s_cselect_b32 s18, 0, s18", wr=["s18"], rd=["s18"])
    pos = rg.fill.index(rg.sB_last[0]) + 1
    rg.fill[pos:pos] = [c1, c2]
    for i, o in enumerate(rg.fill): o.seq = i + 1
    rg.first_dma["G0"].deps.append((c2, 0))
    rg.first_dma["G6"].deps.append((rg.st_last[0], 1)); rg.first_dma["G2"].deps.append((rg.st_last[1], 1))
    rg.LD = LD; rg.pend = pend
    rg.schedule()
    return rg

def stamp(kind=0):
    if not OPT["stamps"]: return []
    def put(x): return lin(f"v_mov_b32 {vA}, {x}") + [Op(f"buffer_store_dword {vA}, off, {srdWS}, s101", "vm")] + lin("s_add_u32 s101, s101, 4\ns_nop 1")
    if kind == 1: return put("s94") + put("s92") + stamp()
    if kind == 2: return lin("s_waitcnt vmcnt(0)") + stamp()
    return lin("s_memtime s[2:3]\ns_memrealtime s[4:5]\ns_waitcnt lgkmcnt(0)") + put("s2") + put("s4")

def code_pf(lbl, start, end, mask, r):
    if not OPT["pf"]: return []
    return lin(f"""s_getpc_b64 s[{r}:{r+1}]
{lbl}:
s_add_u32 s{r}, s{r}, {start}-{lbl}
s_addc_u32 s{r+1}, s{r+1}, {"-1" if start == KN else "0"}
s_mov_b32 s{r+2}, {end}-{start}
s_mov_b32 s{r+3}, 0x20000
s_lshl_b32 s5, {sIdx}, 2
s_add_u32 s5, s5, {sWave}
s_and_b32 s5, s5, {mask}
s_lshl_b32 s5, s5, 13
v_mbcnt_lo_u32_b32 {vA}, -1, 0
v_mbcnt_hi_u32_b32 {vA}, -1, {vA}
v_lshlrev_b32 {vA}, 7, {vA}""") + [Op(f"buffer_load_dword {vB}, {vA}, s[{r}:{r+3}], s5 offen", "vm")]

HROT = {0: "s_mov_b32 s5, 0", 1: "s_mov_b32 s5, s4", 2: f"s_mov_b32 s5, {sG}", 3: f"s_add_u32 s5, s4, {sG}", 4: f"s_lshr_b32 s5, {sG}, 1",
        5: f"s_lshr_b32 s5, {sB}, 3", 6: f"s_lshr_b32 s5, {sG}, 2\ns_lshl_b32 s3, {sG}, 1\ns_or_b32 s5, s5, s3", 7: f"s_sub_u32 s5, 0, {sG}"}[OPT["hrot"]]
if OPT["krot"] < 3:
    KROT = f"""{f"s_add_u32 s4, {sB}, {sG}" if OPT["krot"] == 2 else ""}
s_and_b32 s4, s4, {3 if OPT["krot"] else 0}
s_lshl_b32 {sDg[0]}, s4, 20
s_add_u32 {sDg[1]}, {sDg[0]}, 0x100000
s_and_b32 {sDg[1]}, {sDg[1]}, 0x3fffff
s_xor_b32 {sDg[2]}, {sDg[0]}, 0x200000
s_xor_b32 {sDg[3]}, {sDg[1]}, 0x200000"""
else:
    KROT = f"""s_add_u32 s5, {sB}, {sG}
s_mul_i32 s3, s5, 43
s_lshr_b32 s3, s3, 7
s_mul_i32 s3, s3, 3
s_sub_u32 s5, s5, s3
s_add_u32 {sDg[3]}, s4, 3
s_add_u32 {sDg[0]}, s4, s5
s_cmp_eq_u32 s5, 2
s_cselect_b32 s3, -2, 1
s_add_u32 {sDg[1]}, {sDg[0]}, s3
s_cmp_eq_u32 s5, 0
s_cselect_b32 s3, 2, -1
s_add_u32 {sDg[2]}, {sDg[0]}, s3""" + "".join(f"\ns_and_b32 {sDg[q]}, {sDg[q]}, 3\ns_lshl_b32 {sDg[q]}, {sDg[q]}, 20" for q in range(4))
def prologue(F):
    init = F.init
    o = lin(f"""
s_cmp_lt_u32 s2, 256
s_cbranch_scc1 L_go
s_endpgm
L_go:
{"s_memrealtime s[92:93]" if (OPT["stamps"] or OPT["dbl"]) else ""}
{"s_memtime s[94:95]" if OPT["stamps"] else ""}
s_load_dwordx16 s[68:83], s[0:1], 0
v_lshrrev_b32 v1, 6, v0
v_and_b32 {vLane}, 63, v0
s_and_b32 s4, s2, 7
v_readfirstlane_b32 {sWave}, v1
s_lshr_b32 s5, s2, 3
s_mov_b32 {sIdx}, s5""")
    mp = {84: (1, 3, 2, 1, 2, 3), 48: (0, 2, 3, 0, 3, 7), 162: (2, 4, 1, 3, 1, 1)}[OPT["mapping"]]
    o += lin(f"""
s_lshr_b32 s6, s4, {mp[0]}
s_lshl_b32 s6, s6, {mp[1]}
s_lshr_b32 s7, s5, {mp[2]}
s_add_u32 {sB}, s6, s7
s_and_b32 s6, s4, {mp[3]}
s_lshl_b32 s6, s6, {mp[4]}
s_and_b32 s7, s5, {mp[5]}
s_add_u32 {sG}, s6, s7""")
    cbits = struct.unpack("<I", struct.pack("<f", math.log2(math.e)/math.sqrt(128)))[0]
    o += lin(f"""
s_lshl_b32 {sW4k}, {sWave}, 12
v_lshrrev_b32 v5, 4, {vLane}
v_and_b32 v6, 15, {vLane}
s_lshl_b32 s6, {sWave}, 4
v_add_u32 v1, s6, v5
s_lshl_b32 s6, {sWave}, 2
v_or_b32 v2, s6, v5
v_xor_b32 v2, v2, v6
v_lshlrev_b32 v2, 4, v2
v_lshl_add_u32 {vDX}, v1, 10, v2
v_lshl_add_u32 {vDK}, v1, 8, v2
v_lshrrev_b32 v7, 5, {vLane}
v_bfe_u32 v2, {vLane}, 3, 2
v_lshl_add_u32 v7, v7, 3, v2
s_lshl_b32 s6, {sWave}, 5
v_add_u32 v7, s6, v7
v_and_b32 v3, 7, {vLane}
v_lshlrev_b32 v4, 1, v5
v_xor_b32 v3, v3, v4
v_lshlrev_b32 v3, 4, v3
s_mov_b32 {sDY[1]}, 3072
s_mov_b32 {sDY[2]}, 6144
s_mov_b32 {sDY[3]}, 9216
s_mov_b32 {sD[1]}, {16*8192 - 1024}
s_mov_b32 {sD[2]}, {4*8192 - 2048}
s_mov_b32 {sD[3]}, {20*8192 - 3072}
s_lshr_b32 s4, {sB}, 2
{HROT}
s_bfe_u32 {sSw}, s5, {"0x10002" if OPT["hswap"] else "0x00002"}
s_and_b32 s5, s5, {3 if OPT["hrot"] else 0}
s_mov_b32 {sHr}, s5
s_lshl_b32 {sWcol}, s5, 8
s_lshl_b32 {sSw}, {sSw}, 7
s_or_b32 {sWcol}, {sWcol}, {sSw}
s_lshr_b32 {sSw}, {sSw}, 1
v_xor_b32 v7, {sSw}, v7
v_lshl_add_u32 {vDW}, v7, 13, v3
s_lshl_b32 {sKoff}, s5, 17
s_mov_b32 {sVoff}, {sKoff}
{KROT}
s_mul_i32 s7, {sB}, {0 if OPT["samex"] else 196608}
s_mov_b32 s22, 196608
s_mov_b32 s23, 0x20000
s_mov_b32 s19, 0x20000
s_lshl_b32 s4, {sG}, 10
{"s_mov_b32 s4, 0" if OPT["samew"] else ""}
s_sub_u32 s18, 0x400000, s4
s_waitcnt lgkmcnt(0)
s_add_u32 s20, s68, s7
s_addc_u32 s21, s69, 0
s_add_u32 s16, s74, s4
s_addc_u32 s17, s75, 0""")
    if OPT["tch"]:
        o += lin(f"""v_lshrrev_b32 v8, 1, {vLane}
v_and_b32 v9, 1, {vLane}
v_lshlrev_b32 v9, 7, v9
v_lshl_add_u32 v11, v8, 13, v9
v_lshl_add_u32 v8, v8, 10, v9
v_mov_b32 v10, {hex(OOB)}
v_cmp_gt_u32 vcc, 12, {vLane}
s_lshl_b32 s4, {sG}, 2
s_add_u32 s4, s4, {sWave}
s_mul_i32 s4, s4, 6144
v_cndmask_b32 v8, v10, v8, vcc
v_cmp_gt_u32 vcc, 16, {vLane}
s_and_b32 s5, {sB}, 3
s_lshl_b32 s5, s5, 2
s_add_u32 s5, s5, {sWave}
s_lshl_b32 s5, s5, 16
s_add_u32 s5, s5, {sWcol}
v_cndmask_b32 v11, v10, v11, vcc
v_add_u32 v8, s4, v8
v_add_u32 v11, s5, v11""")
        for q in range(OPT["tch"] - 1, 4):
            o += lin(f"s_lshr_b32 s3, {sDg[q]}, 12")
            o += [Op(f"buffer_load_dword {vB}, v8, {srdX}, s3 offen", "vm"), Op(f"buffer_load_dword {vB}, v11, {srdW}, {sDg[q]} offen", "vm")]
    for j in range(4): o += dma_linear(*init[j])
    o += lin(f"""s_lshl_b32 s3, {sB}, 22
s_lshl_b32 s7, {sG}, 19
s_add_u32 s3, s3, s7
{"s_mov_b32 s3, 0" if OPT["samekv"] else ""}
s_add_u32 s8, s70, s3
s_addc_u32 s9, s71, 0
s_mov_b32 s10, 0x80000
s_mov_b32 s11, 0x20000
s_add_u32 s12, s72, s3
s_addc_u32 s13, s73, 0
s_mov_b32 s14, 0x80000
s_mov_b32 s15, 0x20000
""")
    if OPT["tlb"]:
        o += [Op(f"buffer_load_dword {vB}, off, {srdK}, 0", "vm"), Op(f"buffer_load_dword {vB}, off, {srdV}, 0", "vm")]
        o += [Op(f"buffer_load_dword {vB}, off, {srdW}, {sDg[q]}", "vm") for q in (1, 2, 3)]
    o += code_pf("L_pc", KN, "L_G", OPT["pf"] - 1, 88)
    o += lin(f"""
v_lshrrev_b32 v7, 3, {vLane}
v_add_u32 v7, s6, v7
v_lshl_add_u32 {vDWo}, v7, 10, v3
s_and_b32 s6, {sWave}, 1
s_lshl_b32 s6, s6, 2
v_or_b32 v2, s6, v5
v_lshlrev_b32 v2, 1, v2
v_xor_b32 v2, v2, v6
v_lshlrev_b32 v1, 8, v1
v_lshl_add_u32 {vDV}, v2, 4, v1
s_mov_b32 s24, s82
s_mov_b32 s25, s83
s_mov_b32 s26, {hex(WS_BYTES)}
s_mov_b32 s27, 0x20000
v_lshrrev_b32 v1, 3, {vLane}
v_and_b32 v2, 7, {vLane}
v_lshlrev_b32 v1, 8, v1
v_lshl_add_u32 v8, v2, 2, v1
s_lshl_b32 s6, {sB}, 11
s_add_u32 s6, s6, {hex(FLAG_BASE)}
s_or_b32 s7, {sG}, {sWave}
s_cmp_eq_u32 s7, 0
s_cselect_b32 {sTmp}, s6, {hex(OOB)}
v_mov_b32 v9, 0""")
    zst = Op(f"buffer_store_dword v9, v8, {srdWS}, {sTmp} offen sc1", "vm"); o.append(zst)

    o += lin(f"""
s_mov_b32 {sScale}, {hex(cbits)}
s_mov_b32 {sLo}, 0x30800000
s_mov_b32 {sHi}, 0x4e800000
s_mov_b32 {sHead}, 0
s_lshl_b32 {sW1k}, {sWave}, 10
s_mov_b32 s28, s78
s_mov_b32 s29, s79
s_mov_b32 s30, 0x600000
s_mov_b32 s31, 0x20000
s_mov_b32 s32, s80
s_mov_b32 s33, s81
s_mov_b32 s34, 0x100
s_mov_b32 s35, 0x20000

v_lshrrev_b32 v1, 2, v6
v_and_b32 v2, 3, v6
v_lshl_add_u32 v3, v1, 4, v2
v_lshlrev_b32 v3, 8, v3""")
    for s in range(4):
        o += lin(f"s_and_b32 s3, {sWcol}, 128\nv_add_u32 v4, {4*s}, v5\nv_xor_b32 v4, v4, v6\nv_lshl_add_u32 {vK[s]}, v4, 4, v3\nv_xor_b32 {vK[s]}, s3, {vK[s]}")
    o += lin(f"""
v_lshl_add_u32 v3, v5, 4, v1
v_lshlrev_b32 v3, 8, v3
v_and_b32 v4, 1, v5
v_lshl_add_u32 v7, v4, 2, v1
v_lshl_add_u32 v3, v7, 5, v3
v_lshl_add_u32 v3, v2, 3, v3
v_add_u32 {vVb}, {BASE["V7"]*16384}, v3
v_lshl_add_u32 v3, v5, 2, v1
v_lshlrev_b32 v3, 7, v3
v_lshrrev_b32 v7, 1, v1
v_lshl_add_u32 v7, v4, 1, v7
{"v_lshlrev_b32 v7, 1, v7" if OPT["nperm"] else "v_lshl_add_u32 v3, v7, 5, v3"}
{"v_xor_b32 v7, v7, v2" if OPT["nperm"] else ""}
{"v_lshl_add_u32 v7, v7, 4, v3" if OPT["nperm"] else "v_lshl_add_u32 v7, v2, 3, v3"}
v_add_u32 {vWb}, {F.wb0*16384}, v7
v_mov_b32 v3, 0x3f803f80
v_accvgpr_write_b32 a252, v3
v_accvgpr_write_b32 a253, v3
v_accvgpr_write_b32 a254, v3
v_accvgpr_write_b32 a255, v3
""")
    for s in range(4):
        o += lin(f"v_add_u32 v{S0+s}, {sW1k}, {vK[s]}\nv_add_u32 v{S0+4+s}, 0x10000, v{S0+s}\nv_add_u32 v{S0+8+s}, 0x20000, v{S0+s}\nv_add_u32 {vK[s]}, {BASE['K7']*16384}, {vK[s]}")
    o += lin(f"s_add_u32 {sW1k}, {sW1k}, {lit((XB - BASE['K7'])*16384)}")
    for j in range(4, 8): o += dma_linear(*init[j])
    o += lin(f"""s_lshl_b32 s6, {sG}, 19
s_add_u32 s80, s76, s6
s_addc_u32 s81, s77, 0
s_mov_b32 {sGate}, 0
s_lshl_b32 {sH[0]}, {sHr}, 17
s_add_u32 {sH[1]}, {sH[0]}, 0x20000
s_and_b32 {sH[1]}, {sH[1]}, 0x7ffff
s_xor_b32 {sH[2]}, {sH[0]}, 0x40000
s_xor_b32 {sH[3]}, {sH[1]}, 0x40000
{"s_mov_b32 s73, s92" if OPT["dbl"] else ""}
s_mov_b32 s76, {hex(OOB)}
s_mov_b32 s77, {hex(OOB)}
s_getreg_b32 {sXcc}, hwreg(HW_REG_XCC_ID, 0, 3)
s_lshr_b32 {sRot}, {sB}, 2
s_and_b32 {sRot}, {sRot}, {7 if OPT["rot"] else 0}
s_lshl_b32 {sRot}, {sRot}, 7
s_lshl_b32 {sXcc}, {sXcc}, 2
s_lshl_b32 {sXcc}, 1, {sXcc}""" + "".join(f"\ns_add_u32 {sC[i]}, {sRot}, {128*(i+1)}\ns_and_b32 {sC[i]}, {sC[i]}, 0x3ff" for i in range(3))
      + "".join("\n" + "\n".join(x_t0(sN[NEXT.index('X' + 'abc'[a])], a, 3)) for a in range(3)) + f"""
s_mul_i32 s6, {sB}, {8*CHUNK + 4096}
s_mov_b32 s75, s6
s_add_u32 s6, s6, 4096
s_mul_i32 s7, {sWave}, 49152
s_add_u32 {sStR}, s6, s7
s_lshl_b32 s7, {sG}, 10
s_add_u32 {sStR}, {sStR}, s7
s_mul_i32 s7, {sG}, 3
s_add_u32 s7, s7, {sWave}
s_lshl_b32 s4, s7, 13
s_add_u32 {sLdR}, s6, s4
s_lshl_b32 {sFlR}, {sB}, 11
s_add_u32 {sFlR}, {sFlR}, {hex(FLAG_BASE - 256)}
s_lshr_b32 s4, s7, 1
s_mul_i32 s5, s4, 11
s_lshr_b32 s5, s5, 5
s_mul_i32 s3, s5, 3
s_sub_u32 s4, s4, s3
s_lshl_b32 s4, s4, 6
s_lshl_b32 s5, s5, 2
s_add_u32 s4, s4, s5
s_mul_i32 s5, {sB}, 192
s_add_u32 s4, s4, s5
s_lshl_b32 s4, s4, 10
s_and_b32 s5, s7, 1
s_lshl_b32 s5, s5, 6
s_add_u32 {sOutR}, s4, s5
s_sub_u32 {sOc}, {sRot}, 256
s_and_b32 {sOc}, {sOc}, 0x3ff
s_cmp_eq_u32 {sWave}, 3
s_cselect_b32 {sLdR}, {hex(OOB)}, {sLdR}
s_cselect_b32 {sOutR}, {hex(OOB)}, {sOutR}
v_bfe_u32 v3, {vLane}, 3, 2
v_and_b32 v2, 3, {vLane}
v_lshlrev_b32 {vC}, 5, v3
v_lshl_add_u32 {vC}, v2, 3, {vC}
v_lshlrev_b32 v3, 1, v3
v_xor_b32 v2, v2, v3
v_lshlrev_b32 v2, 4, v2
v_sub_u32 {vC}, {vC}, v2""")
    if OPT["tlb"] == 2:
        o += lin(f"""s_mov_b32 s4, {hex(FLAG_BASE + 0x20080)}
s_mov_b32 s88, s80
s_mov_b32 s89, s81
s_mov_b32 s90, 0x80000
s_add_u32 s5, s75, {8*CHUNK + 4096}""") if False else lin(f"s_mov_b32 s4, {hex(FLAG_BASE + 0x20080)}\ns_add_u32 s5, s75, {8*CHUNK + 4096}")
        o += [Op(f"buffer_load_dword {vB}, off, {srd}, {so}", "vm") for srd, so in ((srdWS, "s75"), (srdWS, "s5"), (srdWS, "s4"), (srdO, sOutR))]
    if OPT["stamps"]:
        o += lin(f"s_lshl_b32 s101, s2, 10\ns_lshl_b32 s6, {sWave}, 8\ns_add_u32 s101, s101, s6\ns_add_u32 s101, s101, {hex(STAMP_BASE)}")
    if OPT["stamps"] == 2: o += stamp(1)
    o.append(WAIT(0, need_vm=[x[0] for x in init[:4]]))
    o += lin("s_barrier")
    if OPT["stamps"] == 2: o += stamp()
    for t in range(3):
        for s in range(4): o += lin("ds_read_b128 %s, %s offset:%d" % ((XA(s, t),) + F.xaddr(F.xsl0[t], s)))
    for s in range(4):
        for p in range(2): o += lin(f"ds_read_b64_tr_b16 {FR(0, s, p)}, {vWb} offset:{F.wso0 + s*4096 + p*2048}")
    o += lin("s_waitcnt lgkmcnt(0)\ns_barrier")
    return o, zst

def glue0(zst):
    return [WAIT(0, need_vm=[zst])] + lin(f"""s_lshl_b32 s6, {sB}, 2
s_cmp_eq_u32 {sWave}, 0
s_cselect_b32 s6, s6, {hex(OOB)}
v_mov_b32 {vB}, {hex(OOB)}
v_writelane_b32 {vB}, 0, 0
v_mov_b32 {vA}, {sXcc}""") + [Op(f"buffer_atomic_add {vA}, {vB}, {srdD}, s6 offen sc1", "vm")]
def touch_setup():
    return lin(f"""v_mbcnt_lo_u32_b32 {vA}, -1, 0
v_mbcnt_hi_u32_b32 {vA}, -1, {vA}
s_cmp_eq_u32 {sSlM}, 1
s_cselect_b32 s76, {sLdR}, {hex(OOB)}
s_cselect_b32 s4, 256, {hex(OOB)}
{"" if OPT["bst"] else f"v_lshlrev_b32 {vLane}, 7, {vA}"}
v_and_b32 {vA}, 7, {vA}
v_lshlrev_b32 {vA}, 8, {vA}
s_add_u32 s77, s76, {CHUNK}
s_add_u32 s4, s4, {sFlR}""") + ([Op(f"buffer_load_dword {vB}, {vA}, {srdWS}, s4 offen sc1", "vm")] if OPT["ftch"] else [])
def mode_check(dbg):
    if OPT["bst"]: return lin(f"L_chkD:\nL_backD:\ns_mov_b32 {sSlM}, 1")
    return [WAIT(0, need_vm=[dbg])] + lin(f"""s_mov_b32 s3, 0
L_chkD:
v_readfirstlane_b32 s4, {vLane}
s_nop 3
s_lshr_b32 s5, s4, 4
s_and_b32 s5, s5, 0x0f0f0f0f
s_and_b32 s7, s4, 0x0f0f0f0f
s_add_u32 s5, s5, s7
s_mul_i32 s5, s5, 0x01010101
s_lshr_b32 s5, s5, 24
s_cmp_lg_u32 s5, 8
s_cbranch_scc1 L_spinD
L_backD:
s_lshl_b32 s5, {sXcc}, 3
{"s_mov_b32 s5, 0" if OPT["forceslow"] else ""}
s_cmp_eq_u32 s4, s5
s_cselect_b32 {sSlM}, 1, 7""")

def slow_path(placed, pendW0):
    vKo, vVo, vVo2, vKo2 = f"v{PV0+40}", f"v{PV0+41}", f"v{PV0+42}", f"v{PV0+43}"
    M = [f"v{PV0+36+t}" for t in range(3)]
    CN = [R("v", PV0 + 24 + 4*t, 4) for t in range(3)]
    Sx = [R("v", S0 + 4*t, 4) for t in range(3)]
    t_ = f"""
L_slow:
s_waitcnt vmcnt(0) lgkmcnt(0)
s_nop 7
v_mbcnt_lo_u32_b32 {vB}, -1, 0
v_mbcnt_hi_u32_b32 {vB}, -1, {vB}
v_and_b32 {vA}, 15, {vB}
v_lshrrev_b32 {vB}, 4, {vB}
v_lshlrev_b32 {vKo}, 8, {vA}
v_lshl_add_u32 {vKo}, {vB}, 4, {vKo}
s_and_b32 s4, {sWcol}, 128
s_xor_b32 s5, s4, 128
v_add_u32 {vKo2}, s5, {vKo}
v_add_u32 {vKo}, s4, {vKo}
v_lshlrev_b32 {vVo}, 10, {vB}
v_lshl_add_u32 {vVo}, {vA}, 1, {vVo}
v_add_u32 {vVo2}, 0x1000, {vVo}
s_add_u32 s4, {sHr}, {sHead}
s_and_b32 s4, s4, 3
s_lshl_b32 s4, s4, 17
s_mov_b32 s10, 0x80000
s_mov_b32 s14, 0x80000
s_add_u32 s5, s4, 0x20000
s_mov_b32 s6, s4
"""
    for t in range(3): t_ += f"v_mov_b32 {M[t]}, 0xff800000\n"
    t_ += "L_slow1:\n"
    for s in range(4): t_ += f"buffer_load_dwordx4 {FR(0, s)}, {vKo if s < 2 else vKo2}, {srdK}, s6 offen offset:{64*(s & 1)}\n"
    t_ += "s_waitcnt vmcnt(0)\n"
    for t in range(3):
        for s in range(4): t_ += f"v_mfma_f32_16x16x32_bf16 {Sx[t]}, {FR(0, s)}, {QV(s, t)}, {'0' if s == 0 else Sx[t]}\n"
    t_ += "s_nop 9\n"
    for t in range(3):
        t_ += f"v_max3_f32 {M[t]}, {M[t]}, v{S0+4*t}, v{S0+4*t+1}\nv_max3_f32 {M[t]}, {M[t]}, v{S0+4*t+2}, v{S0+4*t+3}\n"
    t_ += "s_add_u32 s6, s6, 0x1000\ns_cmp_lt_u32 s6, s5\ns_cbranch_scc1 L_slow1\n"
    for t in range(3):
        t_ += f"""v_mov_b32 {vA}, {M[t]}
s_nop 1
v_permlane32_swap_b32 {vA}, {M[t]}
s_nop 1
v_max_f32 {M[t]}, {vA}, {M[t]}
v_mov_b32 {vA}, {M[t]}
s_nop 1
v_permlane16_swap_b32 {vA}, {M[t]}
s_nop 1
v_max_f32 {M[t]}, {vA}, {M[t]}
"""
        for i in range(4): t_ += f"v_sub_f32 v{PV0+24+4*t+i}, 0, {M[t]}\n"
    for i in range(96): t_ += f"v_mov_b32 v{i}, 0\n"
    for i in range(12): t_ += f"v_accvgpr_write_b32 a{240+i}, 0\n"
    t_ += "s_mov_b32 s6, s4\nL_slow2:\n"
    for u in range(2):
        for s in range(4): t_ += f"buffer_load_dwordx4 {FR(0, s)}, {vKo if s < 2 else vKo2}, {srdK}, s6 offen offset:{64*(s & 1)}\n"
        t_ += "s_waitcnt vmcnt(0)\n"
        for t in range(3):
            for s in range(4): t_ += f"v_mfma_f32_16x16x32_bf16 {Sx[t]}, {FR(0, s)}, {QV(s, t)}, {CN[t] if s == 0 else Sx[t]}\n"
        t_ += "s_nop 9\n"
        for i in range(12): t_ += f"v_exp_f32 v{S0+i}, v{S0+i}\n"
        t_ += "s_nop 0\n"
        for t in range(3):
            for j in range(2): t_ += f"v_cvt_pk_bf16_f32 {PBr(0, 0, t, 2*u + j)}, v{S0+4*t+2*j}, v{S0+4*t+2*j+1}\n"
        if u == 0: t_ += "s_mov_b32 s7, s6\ns_add_u32 s6, s6, 0x1000\n"
    f = FA0 + 16
    for dt in range(8):
        for j in range(8):
            t_ += f"buffer_load_ushort v{FA0 + j}, {vVo if j < 4 else vVo2}, {srdV}, s7 offen offset:{(j & 3)*256 + 32*dt}\n"
        t_ += "s_waitcnt vmcnt(0)\n"
        for j in range(4): t_ += f"v_lshl_or_b32 v{f + j}, v{FA0 + 2*j + 1}, 16, v{FA0 + 2*j}\n"
        t_ += "s_nop 1\n"
        for t in range(3): t_ += f"v_mfma_f32_16x16x32_bf16 {OA(dt, t)}, v[{f}:{f+3}], {PB(0, 0, t)}, {OA(dt, t)}\n"
    for t in range(3): t_ += f"v_mfma_f32_16x16x32_bf16 {LA(t)}, {ONES}, {PB(0, 0, t)}, {LA(t)}\n"
    t_ += "s_add_u32 s6, s6, 0x1000\ns_cmp_lt_u32 s6, s5\ns_cbranch_scc1 L_slow2\ns_nop 9\n"
    for t in range(3): t_ += f"v_accvgpr_read_b32 {vRL[t]}, a{240+4*t}\n"
    for t in range(3): t_ += f"v_rcp_f32 {vRL[t]}, {vRL[t]}\n"
    t_ += "s_nop 0\n"
    for o in placed: t_ += o.text + "\n"
    for o in pendW0: t_ += o.text + "\n"
    t_ += "s_waitcnt lgkmcnt(0)\n"
    t_ += "s_branch L_join\n"
    return lin(t_)

def spin(lbl, back, reg, off_v, srd, soff, exp):
    return lin(f"""{lbl}:
s_mov_b32 s3, 0
{lbl}_l:
buffer_load_dword {reg}, {off_v}, {srd}, {soff}{' offen' if off_v != 'off' else ''} sc1
s_add_u32 s3, s3, 1
s_waitcnt vmcnt(0)
v_cmp_ne_u32 vcc, {exp}, {reg}
s_cmp_gt_u32 s3, 0x10000
s_cbranch_scc1 {back}
s_nop 2
s_cbranch_vccnz {lbl}_l
s_branch {back}""")

def glue3(left):
    o = lin(f"""v_mbcnt_lo_u32_b32 {vA}, -1, 0
v_mbcnt_hi_u32_b32 {vA}, -1, {vA}
v_lshlrev_b32 {vSt}, 4, {vA}
v_and_b32 {vPo}, 7, {vA}
v_lshlrev_b32 {vPo}, 2, {vPo}
v_lshrrev_b32 {vB}, 4, {vA}
v_bfe_u32 {vOut}, {vA}, 2, 2
v_and_b32 {vA}, 3, {vA}
v_lshl_add_u32 {vA}, {vOut}, 4, {vA}
v_lshlrev_b32 {vA}, 10, {vA}
v_lshl_add_u32 {vOut}, {vB}, 4, {vA}
""")
    if OPT["gl3"]: o += [Op(f"buffer_load_dword {vPr}, {vLane}, {srdWS}, {x} offen", "vm") for x in ("s76", "s77")]
    o += lin(f"""v_mov_b32 {vFl}, {hex(OOB)}
s_lshl_b32 s5, {sG}, 2
s_cmp_eq_u32 {sWave}, 0
s_cselect_b32 s5, s5, {hex(OOB)}
v_writelane_b32 {vFl}, s5, 1
s_mov_b32 {sIt}, 0
s_mov_b32 {sMask}, 0xffff0000""")
    muls = {x.text: x for x in left if "mul" in x.text}
    done = set()
    for x in left:
        if x.text in done: continue
        if "mul" in x.text:
            r_ = int(list(x.wr)[0][1:]); dt, t = x.ot
            mate = f"v_mul_f32 v{r_+1}, {vRL[t]}, v{r_+1}"
            if r_ % 2 == 0 and mate in muls:
                rl = int(vRL[t][1:]); sel = rl & 1
                o.append(V(f"v_pk_mul_f32 v[{r_}:{r_+1}], v[{r_}:{r_+1}], v[{rl-sel}:{rl-sel+1}] op_sel:[0,{sel}] op_sel_hi:[1,{sel}]", rd=[f"v[{r_}:{r_+1}]"], wr=[f"v[{r_}:{r_+1}]"]))
                done.add(mate); continue
        o.append(V(x.text, rd=list(x.rd), wr=list(x.wr)))
    o += lin("\n".join(scal_A()) + f"\ns_cmp_eq_u32 {sSlM}, 7\ns_cbranch_scc1 L_GS")
    return o

def pad_linear(ops):
    out = []
    for o in ops:
        need = 0
        for (p, n) in o.sdeps:
            if p in out: need = max(need, n - sum(x.w for x in out[out.index(p)+1:]))
        if need > 0:
            nop = Op(f"s_nop {need-1}", "x"); nop.w = need; out.append(nop)
        out.append(o)
    return out

def tail(G):
    X = (lambda: stamp()) if OPT["stamps"] == 3 else (lambda: [])
    def sums(set_, loads):
        o0, p0, s0_ = reduce_ops(set_)
        return [WAIT(0, need_vm=loads)] + pad_linear(o0 + p0 + [s0_])
    o = lin("\n".join(scal_B()) + "\ns_nop 1")
    stores = []
    if OPT["wb"] & 2: o += lin(f"s_cmp_lg_u32 {sG}, 0\ns_cbranch_scc1 L_nwa@L\ns_cmp_lg_u32 {sWave}, 3\ns_cbranch_scc1 L_nwa@L\nbuffer_wbl2 sc1\nL_nwa@L:")
    for (cv, sa, st) in pack_store(1):
        o += cv + [sa, st]; stores.append(st)
    if True:
        o += X() + sums(1, G.LD[1]) + X()
        o += [WAIT(0, need_vm=stores)] + X() + lin("s_barrier") + sig_ops()
        o += lin("s_branch L_spinU@L\nL_backU@L:") + X()
        l7 = red_loads(0); o += l7
        if OPT["wb"] & 1: o += lin(f"s_cmp_lg_u32 {sG}, {7 if OPT['wb'] & 4 else 0}\ns_cbranch_scc1 L_nwb@L\ns_cmp_lg_u32 {sWave}, 3\ns_cbranch_scc1 L_nwb@L\nbuffer_wbl2 sc1\nL_nwb@L:")
        o += lin(f"s_add_u32 {sOut}, {sOutR}, {sOc}")
        if OPT["stamps"] == 3: o += lin("s_waitcnt vmcnt(0)") + X()
        o += sums(0, l7) + X() + X()
    return o

def main():
    R2 = build_R2()
    placed = [o for o in R2.epi if o.gap is not None]; placed.sort(key=lambda o: o.pos)
    R1 = build_R1(R2.left)
    R1b = {h: build_R1b(h) for h in (1, 2, 3)}
    R1f = build_R1f()
    G = build_G()
    bind_ext(R1, [R2.pendW0]); bind_ext(R2, [R1f.pend] + [R1b[h].pend for h in R1b]); bind_ext(G, [R2.pendW0, G.pend])
    for h in R1b: bind_ext(R1b[h], [R1.pend])
    for w in R1f.xw: w.text = 's_nop 0'
    pro, zst = prologue(R1f)
    for j, t in enumerate(NEXT): TILE[f'G{j}'] += TILE[t]
    p0 = glue0(zst) + lin("s_branch L_R2")
    sel = lin(f"s_cmp_eq_u32 {sHead}, 2\ns_cbranch_scc1 L_v2\ns_cmp_eq_u32 {sHead}, 3\ns_cbranch_scc1 L_v3")
    v1 = R1b[1].out + lin("s_branch L_R2")
    v2 = lin("L_v2:") + R1b[2].out + lin("s_branch L_R2")
    if OPT["etch"]:
        fl = ["", "", " sc1"][OPT["etch"]]
        v3 = lin("L_v3:") + mode_check(getattr(R1b[2], "dbg", None)) + touch_setup() + \
             [Op(f"buffer_load_dword {vB}, {vLane}, {srdWS}, {x} offen{fl}", "vm") for x in ("s76", "s77")] + R1b[3].out + code_pf("L_pc2", "L_g3", "L_codeend", 15, 76) + \
             lin(f"s_mov_b32 s76, {hex(OOB)}\ns_mov_b32 s77, {hex(OOB)}")
    else:
        v3 = lin("L_v3:") + R1b[3].out + mode_check(getattr(R1b[2], "dbg", None)) + code_pf("L_pc2", "L_g3", "L_codeend", 15, 76) + touch_setup()
    g2 = lin(f"s_or_b64 {sBad}, {sBad}, vcc\ns_cbranch_scc1 L_slow\nL_join:\ns_add_u32 {sHead}, {sHead}, 1\ns_cmp_lt_u32 {sHead}, 4")
    g3 = glue3(R2.left)
    g4 = lin(f"s_mov_b32 {sC[0]}, {sC[2]}\ns_add_u32 {sC[1]}, {sC[0]}, 128\ns_and_b32 {sC[1]}, {sC[1]}, 0x3ff\ns_add_u32 {sC[2]}, {sC[1]}, 128\ns_and_b32 {sC[2]}, {sC[2]}, 0x3ff\ns_cmp_lt_u32 {sIt}, 8")
    T = tail(G)
    sA, sB_, sC_, sD_, sE = stamp(1 if OPT['stamps'] in (1, 3) else 0), stamp(), stamp(), stamp(), stamp(2)
    if OPT["bst"]:
        def dump():
            return lin(f"v_mbcnt_lo_u32_b32 {vA}, -1, 0\nv_mbcnt_hi_u32_b32 {vA}, -1, {vA}\nv_lshlrev_b32 {vA}, 2, {vA}") + [Op(f"buffer_store_dword {vLane}, {vA}, {srdWS}, s101 offen", "vm")] + lin("s_add_u32 s101, s101, 256\ns_nop 1")
        sA = lin(f"s_lshl_b32 s101, s2, 2\ns_add_u32 s101, s101, {sWave}\ns_lshl_b32 s101, s101, 12\ns_add_u32 s101, s101, {hex(DUMP_BASE)}")
        sC_ = dump(); sD_ = dump()
    tr = pro + sA
    for hd in range(4):
        tr += [R1f.out + p0, R1.out + sel + v1, R1.out + sel + v2, R1.out + sel + v3][hd] + sB_ + R2.out + g2 + sC_
    tr += g3
    for it in range(4): tr += G.out + g4 + sD_
    tr += T
    resolve_waits(tr, TILE)
    errs = check(tr, "main")
    for e in errs[:20]: print(e, file=sys.stderr)
    assert not errs
    for rg in (R1f, R1, R1b[1], R1b[3], R2, G): print(rg.name, "overfull:", rg.overlog, file=sys.stderr)
    out = [open(os.path.join(os.path.dirname(os.path.abspath(__file__)), "header.txt")).read().rstrip()]
    out.append("; @launch grid=(256,1,1) block=(256,1,1) lds=163840")
    out.append(f""".amdgcn_target "amdgcn-amd-amdhsa--gfx950"
.text
.globl {KN}
.p2align 8
.type {KN},@function
{KN}:""")
    def emit(ops, sc="", lb=""):
        for o in ops:
            if OPT["nobar"] and o.text == "s_barrier" and o.kind == "w": out.append("s_nop 0"); continue
            if OPT["nolg"] and o.kind == "w" and o.text.startswith("s_waitcnt") and "vmcnt" not in o.text: out.append("s_nop 0"); continue
            if OPT["nods"] and o.kind == "ds": continue
            if OPT["novalu"] and o.kind in ("v4", "v8") and o.gap is not None and ("exp" in o.text or "cvt" in o.text or "mul" in o.text or "perm" in o.text or "and" in o.text or "lshl" in o.text or "add_f32" in o.text): continue
            if OPT["nodma"] and o.text.endswith(" lds"): out.append("s_nop 0"); continue
            if OPT["nored"] and " sc1" in o.text and "dwordx4" in o.text: out.append("s_nop 0"); continue
            if getattr(o, "pre", None): out.append(o.pre)
            out.append(o.text.replace("@SC", sc).replace("@L", lb))
    def mark(n):
        return lin("s_memrealtime s[2:3]\ns_waitcnt lgkmcnt(0)\ns_sub_u32 s75, s2, s73") if OPT["dbl"] == n else []
    def idle(n, tag):
        if not n: return []
        return lin(f"""s_memrealtime s[2:3]
s_waitcnt lgkmcnt(0)
s_mov_b32 s5, s2
L_idle{tag}:
s_sleep 2
s_memrealtime s[2:3]
s_waitcnt lgkmcnt(0)
s_sub_u32 s4, s2, s5
s_cmp_lt_u32 s4, {n}
s_cbranch_scc1 L_idle{tag}""")
    def ex(n): return (stamp(2) + lin("s_endpgm")) if OPT["exitat"] == n else []
    emit(pro + mark(3) + idle(OPT['idle0'], 'a') + sA + ex(1) + R1f.out + mark(4) + p0)
    out.append("L_loop:"); emit(R1.out + sel + v1 + v2 + v3); out.append("L_R2:"); emit(idle(OPT['idle1'], 'b') + sB_ + R2.out + g2 + sC_)
    if OPT["dbl"] >= 10:
        emit(lin(f"s_cmp_lg_u32 {sHead}, {OPT['dbl'] - 9}\ns_cbranch_scc1 L_nomark") + mark(OPT["dbl"]) + lin(f"L_nomark:\ns_cmp_lt_u32 {sHead}, 4"))
    if OPT["stamps"] or OPT["bst"]: out.append(f"s_cmp_lt_u32 {sHead}, 4")
    out.append("s_cbranch_scc1 L_loop")
    out.append('L_g3:'); emit(mark(5) + ex(3) + g3)
    for sc, lb in ((NTST, ""), (" sc1", "S")):
        out.append(f"L_G{lb}:"); emit(G.out + g4 + sD_, sc, lb)
        if OPT["stamps"] or OPT["bst"]: out.append(f"s_cmp_lt_u32 {sIt}, 8")
        out.append(f"s_cbranch_scc1 L_G{lb}")
        emit(T + sE, sc, lb)
        if OPT["dbl"]:
            emit(lin(f"""s_waitcnt vmcnt(0)
s_memrealtime s[2:3]
s_waitcnt lgkmcnt(0)
{"s_sub_u32 s4, s2, s73" if OPT["dbl"] == 1 else ("s_mov_b32 s4, 500" if OPT["dbl"] == 2 else "s_mul_i32 s4, s75, 4")}
s_min_u32 s4, s4, 40000
s_mov_b32 s5, s2
L_dbl{lb}:
s_sleep 4
s_memrealtime s[2:3]
s_waitcnt lgkmcnt(0)
s_sub_u32 s6, s2, s5
s_cmp_lt_u32 s6, s4
s_cbranch_scc1 L_dbl{lb}"""))
        out.append("s_endpgm")
        if not lb: out.append("L_codeend:")
        for nm in ("G0", "G1", "U"): emit(spin(f"L_spin{nm}{lb}", f"L_back{nm}{lb}", vPr, vPo, srdWS, sPoll, sExp))
    emit(lin(f"""L_spinD:
s_add_u32 s3, s3, 1
s_cmp_gt_u32 s3, 0x10000
s_cbranch_scc1 L_backD
s_lshl_b32 {sTmp}, {sB}, 2
buffer_load_dword {vLane}, off, {srdD}, {sTmp} sc1
s_waitcnt vmcnt(0)
s_branch L_chkD"""))
    emit(slow_path(placed, R2.pendW0))
    out.append(f"""s_endpgm
.section .rodata,"a"
.p2align 6
.amdhsa_kernel {KN}
  .amdhsa_next_free_vgpr 512
  .amdhsa_next_free_sgpr 102
  .amdhsa_accum_offset 256
  .amdhsa_group_segment_fixed_size 0
  .amdhsa_kernarg_size 64
  .amdhsa_user_sgpr_count 2
  .amdhsa_user_sgpr_kernarg_segment_ptr 1
  .amdhsa_system_sgpr_workgroup_id_x 1
.end_amdhsa_kernel""")
    print("\n".join(out))
main()
```

```python
import sys, os, struct, math
sys.path.insert(0, os.path.dirname(os.path.abspath(__file__)))
from sched import *
import ringplan

OPT = dict(stamps=0, nt=2, mapping=48, nodma=0, samekv=0, nored=0, ntw=0, ntx=0, bst=0, lrate=3, lburst=4, rsp=8, rk=2, i0=-170, dk=75, ksp=4, wsp=5, gst=4, gld=4, gsig=1, gpoll=108, gsum=8, gdma=40, glc=0, rot=1, gout=189, gdsp=5, lag=1, forceslow=0, ntst=0, pf=128, hrot=3, hswap=1, plan=0, samew=0, samex=0, krot=2, osc=0, idle0=0, idle1=0, exitat=0, wb=0, dbl=0, nperm=1, bdw=2, bda=3, vlate=1, tch=0, gtch=0, kvlate=4, tg=0, etch=0, gl3=1, ftch=1, tlb=2, fsp=2, fkv=5, fgap=7, nobar=0, nolg=0, nods=0, novalu=0)
for a in sys.argv[1:]:
    k, v = a.split("="); assert k in OPT, k; OPT[k] = float(v) if "." in v else int(v)
Region.LDSRATE = OPT["lrate"]; Region.LDSBURST = OPT["lburst"]
KN = "standalone__mha_block_cached__near_ridge_kernel"

def OA(mt, t): return R("v", (mt*3 + t)*4, 4)
def OAr(mt, t, i): return f"v{(mt*3 + t)*4 + i}"
QV0, PV0, S0, FA0 = 96, 144, 192, 204
def QV(s, t): return R("v", QV0 + (s*3 + t)*4, 4)
def QVr(s, t, i): return f"v{QV0 + (s*3 + t)*4 + i}"
def PB(buf, sg, t): return R("v", PV0 + 24*buf + (sg*3 + t)*4, 4)
def PBr(buf, sg, t, i): return f"v{PV0 + 24*buf + (sg*3 + t)*4 + i}"
def OP(s, t): return R("v", PV0 + (s*3 + t)*4, 4)
def OPr(s, t, i): return f"v{PV0 + (s*3 + t)*4 + i}"
def FR(buf, f, half=None):
    b = FA0 + 16*buf + 4*f
    return R("v", b, 4) if half is None else R("v", b + 2*half, 2)
vK = ["v236", "v237", "v238", "v239"]
vVb, vWb, vT = "v240", "v241", ["v242", "v243"]
vDK, vDV, vDW, vDX, vC = "v244", "v245", "v246", "v247", "v248"
vRL = ["v249", "v250", "v251"]
vLane, vDWo, vA, vB = "v252", "v253", "v254", "v255"
def XA(s, t): return R("a", (s*3 + t)*4, 4)
ZB = {0: 144, 1: 192, 2: 0}
def ZA(h, s, t): return R("a", ZB[h] + (s*3 + t)*4, 4)
def LA(t): return R("a", 240 + 4*t, 4)
ONES = "a[252:255]"

srdK, srdV, srdW, srdX, srdWS, srdO, srdD = (f"s[{i}:{i+3}]" for i in (8, 12, 16, 20, 24, 28, 32))
sW1k, sXcc, sRot, sOc = "s36", "s37", "s38", "s39"
sC = ["s40", "s41", "s42"]
sDg = ["s43", "s44", "s45", "s46"]
sIdx = "s99"
sH = ["s93", "s95", "s96", "s97"]; sHr = "s98"; sSw = "s3"
sKoff, sVoff, sWcol = "s47", "s48", "s49"
sD = [None, "s50", "s51", "s52"]
sDY = [None, "s53", "s54", "s55"]
sT = ["s56", "s57", "s58", "s59"]
sW4k, sHead, sScale, sWave, sB, sG, sLo, sHi = (f"s{i}" for i in range(60, 68))
sBad = "s[84:85]"
sN = [f"s{i}" for i in range(86, 92)]
sTmp = "s100"
sIt, sSt, sSig, sExp, sLd, sLd2, sOut = (f"s{i}" for i in range(86, 93))
sStR, sLdR, sFlR, sOutR, sSlM, sLdMin, sGate = (f"s{i}" for i in range(68, 75))
sPoll = sSig; sPo = "s99"; sTk, sTh, sTo = "s43", "s44", "s45"
sU = ["s4", "s5"]; sMask = "s6"
OOB = 0x40000000
FLAG_BASE = 0x3040000
STAMP_BASE = 0x3100000
DUMP_BASE = 0x4000000
WS_BYTES = 0x8000000 if OPT["bst"] else 0x3200000
CHUNK = 196608
ORD = [(0,0),(0,1),(0,2),(1,0),(0,3),(1,3),(1,1),(1,2)]
ORDG = [(j >> 2, j & 3) for j in range(8)]
NTKV = {"K": " nt" if OPT["nt"] in (1, 2) else "", "V": " nt" if OPT["nt"] in (1, 3) else ""}
NTW = " nt" if OPT["ntw"] else ""
NTX = " nt" if OPT["ntx"] else ""
def wq_lit(step): return ORD[step][1]*0x100000 + ORD[step][0]*128
def wo_lit(m): return (m & 3)*0x20000 + (m >> 2)*128

def S(text, rd=(), wr=(), **kw): return Op(text, "s", rd=rd, wr=wr, **kw)
def V(text, rd=(), wr=(), **kw): return Op(text, "v4", rd=rd, wr=wr, **kw)
def V8(text, rd=(), wr=(), **kw): return Op(text, "v8", rd=rd, wr=wr, **kw)
def WAIT(d, need_ds=(), need_vm=(), lg0=False, late=3, e=-1):
    o = Op("s_waitcnt ?", "w", e=e, d=d, late=late, deps=[(x, 1) for x in need_ds])
    o.need_ds, o.need_vm, o.lg0 = list(need_ds), list(need_vm), lg0
    return o
def lin(text):
    return [Op(l.strip(), "x") for l in text.strip().split("\n") if l.strip()]

class Ctx: pass
C = Ctx(); C.grp = 0

ringplan.setb(OPT["bdw"], OPT["bda"]); BDW, BDA = OPT["bdw"], OPT["bda"]
wI = {"W0": -210, "W1": -135, "W2": -55, "W3": 36 + BDW, "W4": 78, "W5": 112, "W6": 162, "W7": 186}
xI = {"Xa": -430, "Xb": -350, "Xc": -280}
PLANS = {
 3: {'Xa': -514, 'Xb': -444, 'Xc': -297, 'W0': -229, 'W1': -155, 'W2': -63, 'W3': 8, 'W4': 38, 'W5': 82, 'W6': 110, 'W7': 180, 'K0': -187, 'K1': -112, 'V0': -38, 'K2': 58, 'V1': 141, 'K3': 216, 'V2': 290, 'K4': 364, 'V3': 436, 'K5': 507, 'V4': 579, 'K6': 651, 'V5': 721, 'K7': 794, 'V6': 863, 'V7': 940},
 4: {'Xa': -514, 'Xb': -444, 'Xc': -297, 'W0': -229, 'W1': -155, 'W2': -63, 'W3': 8, 'W4': 38, 'W5': 82, 'W6': 110, 'W7': 180, 'K0': -180, 'K1': -108, 'V0': -36, 'K2': 58, 'V1': 141, 'K3': 216, 'V2': 290, 'K4': 364, 'V3': 438, 'K5': 512, 'V4': 586, 'K6': 660, 'V5': 734, 'K7': 808, 'V6': 878, 'V7': 950},
 1: {'Xa': -510, 'Xb': -430, 'Xc': -352, 'W0': -205, 'W1': -106, 'W2': -26, 'W3': 5, 'W4': 37, 'W5': 98, 'W6': 161, 'W7': 190, 'K0': -243, 'K1': -157, 'V0': -60, 'K2': 64, 'V1': 130, 'K3': 221, 'V2': 290, 'K4': 354, 'V3': 415, 'K5': 477, 'V4': 593, 'K6': 533, 'V5': 650, 'K7': 728, 'V6': 809, 'V7': 894},
 2: {'Xa': -496, 'Xb': -413, 'Xc': -333, 'W0': -252, 'W1': -103, 'W2': -30, 'W3': 5, 'W4': 38, 'W5': 99, 'W6': 130, 'W7': 188, 'K0': -210, 'K1': -148, 'V0': -54, 'K2': 67, 'V1': 155, 'K3': 221, 'V2': 291, 'K4': 349, 'V3': 409, 'K5': 473, 'V4': 534, 'K6': 598, 'V5': 662, 'K7': 829, 'V6': 747, 'V7': 904},
}
if OPT["plan"]: wI = PLANS[OPT["plan"]]; xI = {}
ISS, SLOT, _c, NEED = ringplan.plan(OPT["i0"], OPT["dk"], wI, xI)
assert SLOT is not None
SPR = {}
for t in ISS:
    m = ISS[t] % 1200
    sp = OPT["ksp"] if t[0] in "KV" else OPT["wsp"]
    if 228 <= m < 288: ISS[t] += 290 - m; m = 290
    SPR[t] = min(sp, ((240 if m < 288 else 1200) - 5 - m)//3); assert SPR[t] >= 1
BASE = {}
for ch in "KVW":
    for i, b in enumerate(ringplan.bases([SLOT[f"{ch}{i}"] for i in range(8)])[1]): BASE[f"{ch}{i}"] = b
XB = min(SLOT["Xa"], SLOT["Xb"], SLOT["Xc"]); assert max(SLOT["Xa"], SLOT["Xb"], SLOT["Xc"]) - XB <= 3
NEXT = sorted([t for t in ISS if ISS[t] < 0 and t[0] in "WX"], key=lambda t: (t != "W0", ISS[t]))
print("plan:", ISS, SLOT, BASE, NEXT, file=sys.stderr)
TILE = {}
def lit(x): return hex(x & 0xffffffff)
def rebase(rg, typ, old, new, e, d, after=()):
    if old == new: return []
    regs_ = vK if typ == "K" else [vVb if typ == "V" else vWb]
    return [rg.F(V(f"v_add_u32 {r}, {lit((new - old)*16384)}, {r}", rd=[r], wr=[r], e=e, d=d, deps=[(a, 0) for a in after if a])) for r in regs_]
def wq_t0(dst, step):
    hf, dg = ORD[step]
    return [f"s_add_u32 {dst}, {sWcol}, {sDg[dg]}"] + ([f"s_xor_b32 {dst}, {dst}, 128"] if hf else [])
def x_t0(dst, a, q):
    return [f"s_lshr_b32 {dst}, {sDg[q]}, 12"] + ([f"s_add_u32 {dst}, {dst}, {a*65536}"] if a else [])
def tile_src(spec):
    k = spec[0]
    if k == "W": return srdW, vDW, wq_t0(sT[0], spec[1]), sD, NTW
    if k == "C": return srdW, vDW, [f"s_add_u32 {sT[0]}, {sC[spec[1]]}, {sH[spec[2]]}"], sD, NTW
    if k == "N": return srdW, vDW, [f"s_mov_b32 {sT[0]}, {sN[spec[1]]}"], sD, NTW
    if k == "Y": return srdX, vDX, [f"s_mov_b32 {sT[0]}, {sN[spec[1]]}"], sDY, NTX
    if k == "X": return srdX, vDX, x_t0(sT[0], spec[1], spec[2]), sDY, NTX
def add_dmas(rg, items):
    ev = []
    for (name, spec, slot, e, sp, bar) in items:
        for i in range(4 if spec[0] != "T" else 2): ev.append((e + sp*i, e, i, name, spec, slot, bar))
    ev.sort(key=lambda x: (x[0], x[1]))
    prev = None; cur = None; wopen = None; ts = None; lastw = None; m0 = None
    for (t, e0, i, name, spec, slot, bar) in ev:
        deps = []
        if bar is not None: deps.append((bar, 0))
        if prev is not None: deps.append((prev, 1))
        if cur != slot:
            m0 = rg.F(Op(f"s_add_u32 m0, {sW4k}, {slot*16384}", "t", wr=["m0"], e=t - 6, deps=([(prev, 1)] if prev else []))); cur = slot
        deps.append((m0, 1))
        if spec[0] == "T":
            o = rg.F(Op(f"buffer_load_dword {vLane}, {srdWS}, {('s76', 's77')[i]} offen lds", "vm", rd=[vLane, "m0"], e=t, d=t + 4, deps=deps))
        elif spec[0] in "KV":
            so, vo, srd = (sKoff, vDK, srdK) if spec[0] == "K" else (sVoff, vDV, srdV)
            st = rg.inc.get(spec[0])
            if st is not None and i == 0: deps.append((st, 0))
            o = rg.F(Op(f"buffer_load_dwordx4 {vo}, {srd}, {so} offen offset:{i*1024}{NTKV[spec[0]]} lds", "vm", rd=[vo, so, "m0"], e=t, d=t + 4, deps=deps))
            if i == 3:
                inc = rg.F(Op(f"s_add_u32 {so}, {so}, 0x4000", "t", rd=[so], wr=[so], deps=[(o, 1)], d=t + 12))
                if name[1] == "7":
                    inc = rg.F(Op(f"s_and_b32 {so}, {so}, 0x7ffff", "t", rd=[so], wr=[so], deps=[(inc, 0)], d=t + 14))
                    nr = "s10" if name[0] == "K" else "s14"
                    rg.F(S(f"s_cmp_eq_u32 {sHead}, 3", deps=[(o, 1)])); inc2 = rg.F(S(f"s_cselect_b32 {nr}, 0, {nr}", d=t + 20))
                rg.inc[spec[0]] = inc
        else:
            srd, vo, t0, dl, fl = tile_src(spec)
            if i == 0:
                assert wopen is None, "W-type tiles may not interleave"
                wopen = name
                tt = rg.F(Op(t0[0], "t", wr=[sT[0]], e=t - 12, deps=([(lastw, 1)] if lastw else [])))
                for x in t0[1:]: tt = rg.F(Op(x, "t", wr=[sT[0]], deps=[(tt, 0)]))
                ts = [tt]
                ts += [rg.F(Op(f"s_add_u32 {sT[j]}, {sT[0]}, {dl[j]}", "t", wr=[sT[j]], deps=[(ts[0], 0)])) for j in (1, 2, 3)]
            o = rg.F(Op(f"buffer_load_dwordx4 {vo}, {srd}, {sT[i]} offen offset:{i*1024}{fl} lds", "vm", rd=[vo, sT[i], "m0"], e=t, d=t + 4, deps=deps + [(ts[i], 0)]))
            if i == 3: wopen = None; lastw = o
        if i == 3: TILE.setdefault(name, []).append(o)
        if i == 0: rg.first_dma[name] = o
        prev = o
    rg.lastw = lastw
def head_dmas(rg, lo, hi):
    items = []
    for t in ISS:
        m = ISS[t] % 1200
        if not (lo <= m < hi): continue
        spec = (t[0],) if t[0] in "KV" else (("W", int(t[1])) if ISS[t] >= 0 else (("N" if t[0] == "W" else "Y"), NEXT.index(t)))
        cands = [g for g in rg.bars if g + lo <= m and any(SLOT[p] == SLOT[t] and NEED[p][1] % 1200 == g + lo for p in NEED)]
        bar = rg.bars[max(cands)] if cands else None
        items.append((t, spec, SLOT[t], m - lo, SPR[t], bar))
    if hi == 1200 and OPT['tg']:
        tg = OPT["tg"] + lo
        def free(x): return not any(SLOT[p] == x and any(ISS[p] + sh <= tg + 30 and tg < NEED[p][1] + sh for sh in (0, 1200)) for p in NEED)
        x = [x for x in range(10) if free(x)][0]
        cands = [g for g in rg.bars if g + lo <= tg and any(SLOT[p] == x and NEED[p][1] % 1200 == g + lo for p in NEED)]
        items.append(("T", ("T",), x, OPT["tg"], 12, rg.bars[max(cands)] if cands else None))
    add_dmas(rg, items)
def dma_linear(name, spec, slot):
    ops = lin(f"s_add_u32 m0, {sW4k}, {slot*16384}")
    if spec[0] in "KV":
        so, vo, srd = (sKoff, vDK, srdK) if spec[0] == "K" else (sVoff, vDV, srdV)
        d = [Op(f"buffer_load_dwordx4 {vo}, {srd}, {so} offen offset:{i*1024}{NTKV[spec[0]]} lds", "vm") for i in range(4)]
        ops += lin("s_nop 0") + d + lin(f"s_add_u32 {so}, {so}, 0x4000")
    else:
        srd, vo, t0, dl, fl = tile_src(spec)
        d = [Op(f"buffer_load_dwordx4 {vo}, {srd}, {sT[i]} offen offset:{i*1024}{fl} lds", "vm") for i in range(4)]
        ops += lin("\n".join(t0) + "\n" + "\n".join(f"s_add_u32 {sT[i]}, {sT[0]}, {dl[i]}" for i in (1, 2, 3))) + d
    TILE.setdefault(name, []).append(d[-1])
    return ops
def reads_X(rg, addr, slots, dst, e, d, deps, step=1):
    ops = []
    for t in range(3):
        for s in range(4):
            r_, imm = addr(slots[t], s)
            ops.append(rg.F(Op(f"ds_read_b128 {dst(s, t)}, {r_} offset:{imm}", "ds", rd=[r_], wr=[dst(s, t)], e=e, d=d + len(ops)*step,
                               deps=list(deps) + ([(ops[-1], 0)] if ops else []))))
    return ops

def new_region(name):
    rg = Region(name); rg.nst = {"R1": 0, "R1f": 0, "R2": 6, "G": 0, "G0": 0}.get(name, 5)
    ext_waits(rg)
    rg.tuse = {0: [], 1: []}; rg.bars = {}; rg.inc = {}; rg.first_dma = {}; rg.wq = bool(OPT["nperm"]) and name[0] != "G"
    return rg

def xor_addr(rg, base, k, ti, e, d, after=()):
    if k == 0: return base, None
    deps = [(x, 0) for x in rg.tuse[ti]] + [(a, 0) for a in after]
    o = rg.F(V(f"v_xor_b32 {vT[ti]}, {k*32}, {base}", rd=[base], wr=[vT[ti]], e=e, d=d, deps=deps))
    rg.tuse[ti] = []
    return vT[ti], o
def reads_W(rg, so, mt, buf, e, deps=(), ups=(), rsp=None):
    if rg.wq:
        if mt == 2: a, xo = xor_addr(rg, vWb, 2, 0, e - 8, e, ups)
        else: a, xo = (vWb if mt < 2 else vT[0]), None
        so += 8*(mt & 1)
    else: a, xo = xor_addr(rg, vWb, mt, mt & 1, e - 8, e, ups)
    dp = list(deps) + ([(xo, 1)] if xo else [(u, 1) for u in ups])
    ops = []
    for s in range(4):
        for p in range(2):
            ops.append(rg.F(Op(f"ds_read_b64_tr_b16 {FR(buf, s, p)}, {a} offset:{so + s*4096 + p*2048}", "ds", rd=[a], wr=[FR(buf, s, p)],
                               e=e, d=min(e + 1 + len(ops)*(rsp or OPT['rsp'])//8, e + 9), deps=dp + ([(ops[-1], 0)] if ops else []))))
    if rg.wq:
        if mt >= 2: rg.tuse[0] = ops
    elif xo: rg.tuse[mt & 1] = ops
    rg.lastWr = ops
    return ops, xo
def reads_K(rg, so, u, buf, e, deps=(), ups=()):
    ops = []
    for s in range(4):
        ops.append(rg.F(Op(f"ds_read_b128 {FR(buf, s)}, {vK[s]} offset:{so + u*1024}", "ds", rd=[vK[s]], wr=[FR(buf, s)],
                           e=e, d=e + 3 + len(ops)*OPT['rk'], deps=list(deps) + [(x, 1) for x in ups] + ([(ops[-1], 0)] if ops else []))))
    return ops
def reads_V(rg, so, dp_, buf, e, deps=(), ups=(), late=0):
    ops = []; xs = []
    for k in range(2):
        dt = 2*dp_ + k
        a, xo = xor_addr(rg, vVb, dt, k, e - 10, e + 4*k, ups)
        if xo: xs.append(xo)
        dd = list(deps) + ([(xo, 1)] if xo else [(u, 1) for u in ups])
        mine = []
        for sg in range(2):
            for p in range(2):
                o = rg.F(Op(f"ds_read_b64_tr_b16 {FR(buf, 2*k + sg, p)}, {a} offset:{so + sg*2048 + p*1024}", "ds", rd=[a], wr=[FR(buf, 2*k + sg, p)],
                            e=e, d=(e + 2 + len(ops)*OPT['rsp']//8) if not late else (e + 3 + 2*len(ops) if k == 0 else e + 5 + (len(ops)*5)//4), deps=dd + ([(ops[-1], 0)] if ops else [])))
                ops.append(o); mine.append(o)
        if xo: rg.tuse[k] = mine
    return ops, xs

def barrier(rg, gap, last_reads, tiles, extra=(), lg0=True, st=True):
    w = rg.F(WAIT(gap - 1, need_ds=last_reads, need_vm=list(tiles) + list(extra), lg0=lg0, late=1))
    w.deps += [(x, 1) for x in extra if x in rg.fill]
    b = rg.F(Op("s_barrier", "w", e=gap, d=gap, deps=[(w, 1)])); rg.bars[gap] = b
    if OPT["bst"] and st:
        w.pre = "s_memtime s[2:3]"
        i = rg.nst; rg.nst += 1
        rg.F(V(f"v_writelane_b32 {vLane}, s2, {i}", e=gap + 1, d=gap + 8))
    return b
def xstamp(rg, gap, idx, dep):
    if OPT["bst"] < 2: return
    w = rg.F(Op("s_memtime s[2:3]\ns_waitcnt lgkmcnt(0)", "w", e=gap, d=gap, deps=[(dep, 1)]))
    rg.F(V(f"v_writelane_b32 {vLane}, s2, {idx}", deps=[(w, 0)], d=gap))
def ext_waits(rg):
    rg.xw = []
    for d in (-1, 1):
        w = WAIT(d, late=1); w.e = d; rg.F(w); rg.xw.append(w)
def bind_ext(rg, preds):
    rg.xw[0].alt_ds = [p[:4] for p in preds]; rg.xw[1].alt_ds = list(preds)
def frag_waits(rg, rd_ops, first_use, n_first, second_use, only_first=False):
    if rd_ops is None: return
    rg.F(WAIT(first_use - 1, need_ds=rd_ops[:n_first], late=2))
    if n_first < len(rd_ops) and not only_first: rg.F(WAIT(second_use - 1, need_ds=rd_ops, late=1))

def so_(sb): return (sb[0] - sb[1])*16384
def w_step(rg, half, zero, Bop, pend, cur, nxt, need, extra=(), more_reads=(), xwait=None, post=None):
    b0 = rg.n(); info = dict(b0=b0); xlast = None
    if xwait:
        for t in range(3): rg.F(WAIT(b0 + 4*t - 1, need_ds=xwait[:4*t + 4], late=1))
        info["xbar"] = barrier(rg, b0 + 10, xwait, (), lg0=False, st=False)
    for mt in range(4):
        buf = C.grp & 1; C.grp += 1
        g0 = b0 + 12*mt
        if pend is not None and (mt < 3 or BDW): frag_waits(rg, pend, g0, 4, g0 + 2, only_first=(mt == 3))
        for t in range(3):
            for s in range(4):
                acc = OA(4*half + mt, t)
                rg.M(mfma(acc, FR(buf, s), Bop(s, t), "0" if (zero and s == 0) else acc))
        if mt < 3:
            pend, xo = reads_W(rg, so_(cur[1:3]), mt + 1, buf ^ 1, g0 - 1 if (mt or b0) else g0)
            if xo: xlast = xo
            if mt == 0 and rg.wq: base_users = pend
            if mt == 2: bar = barrier(rg, g0 + 11 + BDW, pend + list(more_reads), need, extra)
        else:
            ups = rebase(rg, nxt[0], nxt[3], nxt[2], b0 + 20, g0 - 2, after=([xlast] + (base_users if rg.wq else [])) if nxt[0] == "W" else [])
            if nxt[0] == "W": pend, _ = reads_W(rg, so_(nxt[1:3]), 0, buf ^ 1, g0 - 1 + BDW, deps=[(bar, 0)], ups=ups, rsp=(4 if post else None))
            else: pend = reads_K(rg, so_(nxt[1:3]), 0, buf ^ 1, g0 - 1 + BDW, deps=[(bar, 0)], ups=ups)
            if post: info["post"] = post(g0, bar)
    info["bar"] = bar; info["end"] = rg.n() - 1
    return pend, info
def TS(name, prev=None):
    k, i = name[0], int(name[1])
    return (k, SLOT[name], BASE[name], BASE[f"{k}{(i - 1) % 8}"])

def softmax(rg, g0, u, Sr, pbuf, d_over, d_puse):
    sg = u >> 1
    for t in range(3):
        last = rg.mf[g0 + 4*t + 3]
        dl = min(d_over(t), d_puse(t) - 3)
        ex = [rg.F(V8(f"v_exp_f32 {Sr(t,i)}, {Sr(t,i)}", rd=[Sr(t,i)], wr=[Sr(t,i)], e=last.gap, sdeps=[(last, 8)], trans=True)) for i in range(4)]
        for j in range(2):
            dst = PBr(pbuf, sg, t, 2*(u & 1) + j)
            rg.F(V(f"v_cvt_pk_bf16_f32 {dst}, {Sr(t,2*j)}, {Sr(t,2*j+1)}", rd=[Sr(t,2*j), Sr(t,2*j+1)], wr=[dst], d=dl,
                   sdeps=[(ex[2*j], 1), (ex[2*j+1], 1)]))
def k_mfmas(rg, buf, Sd):
    for t in range(3):
        for s in range(4):
            rg.M(mfma(Sd(t), FR(buf, s), QV(s, t), "0" if s == 0 else Sd(t)))
def v_mfmas(rg, dp_, buf, pbuf, zero, tmajor=False):
    order = [(k, t) for t in range(3) for k in range(2)] if tmajor else [(k, t) for k in range(2) for t in range(3)]
    last = {}
    for k, t in order:
        for sg in range(2):
            acc = OA(2*dp_ + k, t)
            last[(2*dp_ + k, t)] = rg.M(mfma(acc, FR(buf, 2*k + sg), PB(pbuf, sg, t), "0" if (zero and sg == 0) else acc))
    return last
def sum_mfmas(rg, t, pbuf, zero):
    for sg in range(2):
        o = rg.M(mfma(LA(t), ONES, PB(pbuf, sg, t), "0" if (zero and sg == 0) else LA(t)))
    return o
def o_epilogue_ops(dt, t):
    mul = [V(f"v_mul_f32 {OAr(dt,t,i)}, {vRL[t]}, {OAr(dt,t,i)}", rd=[OAr(dt,t,i), vRL[t]], wr=[OAr(dt,t,i)]) for i in range(4)]
    cvt = []
    for j in range(2):
        dst = OPr(dt >> 1, t, 2*(dt & 1) + j)
        cvt.append(V(f"v_cvt_pk_bf16_f32 {dst}, {OAr(dt,t,2*j)}, {OAr(dt,t,2*j+1)}", rd=[OAr(dt,t,2*j), OAr(dt,t,2*j+1)], wr=[dst],
                     deps=[(mul[2*j], 0), (mul[2*j+1], 0)]))
    for o in mul + cvt: o.ot = (dt, t)
    return mul, cvt
def q_muls(rg, mt, t, last, **kw):
    return [rg.F(V(f"v_mul_f32 {OAr(mt,t,i)}, {sScale}, {OAr(mt,t,i)}", rd=[OAr(mt,t,i)], wr=[OAr(mt,t,i)],
                   e=(last.gap if last is not None else -1), sdeps=([(last, 8)] if last is not None else []), **kw)) for i in range(4)]
def q_epilogue(rg, sp, t, lastA, lastB, d_use, muls=True):
    cv = []
    for k, last in ((0, lastA), (1, lastB)):
        mt = 2*sp + k
        mul = q_muls(rg, mt, t, last) if muls else None
        for j in range(2):
            dst = QVr(sp, t, 2*k + j)
            cv.append(rg.F(V(f"v_cvt_pk_bf16_f32 {dst}, {OAr(mt,t,2*j)}, {OAr(mt,t,2*j+1)}", rd=[OAr(mt,t,2*j), OAr(mt,t,2*j+1)], wr=[dst],
                             deps=([(mul[2*j], 0), (mul[2*j+1], 0)] if muls else []))))
    if OPT["nperm"]:
        for o in cv: o.d = d_use - 3
        return
    for j in range(2):
        a, b = QVr(sp, t, j), QVr(sp, t, 2 + j)
        p1 = rg.F(V8(f"v_permlane32_swap_b32 {a}, {b}", rd=[a, b], wr=[a, b], sdeps=[(cv[j], 2), (cv[2+j], 2)]))
        rg.F(V8(f"v_permlane16_swap_b32 {a}, {b}", rd=[a, b], wr=[a, b], sdeps=[(p1, 2)], d=d_use - 3))

def BopQ(st):
    dg = ORD[st][1]
    return (lambda s, t: XA(4*dg + s, t)) if dg < 3 else (lambda s, t: QV(s, t))

def build_R2():
    rg = new_region("R2")
    C.grp = 24
    pend, i6 = w_step(rg, ORD[6][0], False, BopQ(6), None, TS("W6"), TS("W7"), ["W7"])
    pend, i7 = w_step(rg, ORD[7][0], False, BopQ(7), pend, TS("W7"), TS("K0"), ["K0"])
    a0 = rg.n(); b7 = i7["b0"]
    for sp in (0, 1):
        for t in range(3): q_epilogue(rg, sp, t, None, None, min(a0 + 4*t + sp, 20 + (sp*3 + t)*9), muls=True)
    for sp in (2, 3):
        for t in range(3):
            mA, mB = 2*sp - 4, 2*sp - 3
            q_epilogue(rg, sp, t, rg.mf[b7 + 12*mA + 4*t + 3], rg.mf[b7 + 12*mB + 4*t + 3], a0 + 4*t + sp)
    B = lambda i: a0 + 48 + 102*i
    GK = [0, 26, 52, 78]; GV = [12, 38, 64, 90]
    def puse(i, sg, t): return (B(i) + 12 + 2*t + sg) if i < 7 else (B(7) + 4*t + sg)
    def so(n): return so_(TS(n)[1:3])
    def rb(n, e, d, after=()): x = TS(n); return rebase(rg, x[0], x[3], x[2], e, d, after)
    for u in range(4):
        buf = C.grp & 1; C.grp += 1; g0 = rg.n()
        if u < 3 or BDW: frag_waits(rg, pend, g0, 2, g0 + 2, only_first=(u == 3))
        k_mfmas(rg, buf, lambda t: OA(u, t))
        softmax(rg, g0, u, lambda t, i: OAr(u, t, i), 0, lambda t: 10**9, lambda t: puse(0, u >> 1, t))
        if u < 3:
            pend = reads_K(rg, so("K0"), u + 1, buf ^ 1, g0 - 1)
            if u == 2: bar = barrier(rg, g0 + 11 + BDW, pend, ["K1", "V0"]); lastK = pend
        else:
            ups = rb("K1", g0 - 12, g0 - 2, lastK)
            pend = reads_K(rg, so("K1"), 0, buf ^ 1, g0 - 1 + BDW, deps=[(bar, 0)], ups=ups)
            upsV = rb("V0", -1, g0)
    for i in range(7):
        b0 = rg.n(); assert b0 == B(i)
        for u in range(4):
            buf = C.grp & 1; C.grp += 1; g0 = rg.n(); assert g0 == b0 + GK[u]
            frag_waits(rg, pend, g0, 2, g0 + 2)
            k_mfmas(rg, buf, lambda t: R("v", S0 + 4*t, 4))
            nxtK = (b0 + GK[u+1]) if u < 3 else (B(i+1) if i < 6 else None)
            softmax(rg, g0, u, lambda t, j: f"v{S0 + 4*t + j}", (i + 1) & 1,
                    (lambda t: nxtK + 4*t - 1) if nxtK else (lambda t: 10**9), lambda t: puse(i + 1, u >> 1, t))
            pend, xs = reads_V(rg, so(f"V{i}"), u, buf ^ 1, g0 - 1, ups=(upsV if u == 0 else ()), late=(OPT["vlate"] if u < 3 else 0))
            if u == 3: bar = barrier(rg, g0 + 11 + BDA, pend, [f"K{i+2}", f"V{i+1}"] if i < 6 else ["V7"]); lastX = xs
            buf = C.grp & 1; C.grp += 1; g0 = rg.n(); assert g0 == b0 + GV[u]
            if u < 3 or BDA: frag_waits(rg, pend, g0, 4, g0 + 6, only_first=(u == 3))
            v_mfmas(rg, u, buf, i & 1, i == 0)
            if u < 3:
                sum_mfmas(rg, u, i & 1, i == 0)
                pend = reads_K(rg, so(f"K{i+1}"), u + 1, buf ^ 1, g0 - 1)
                if u == 2: lastK = pend
            elif i < 6:
                ups = rb(f"K{i+2}", g0 - 20, g0 - 2, lastK)
                pend = reads_K(rg, so(f"K{i+2}"), 0, buf ^ 1, g0 - 1 + BDA, deps=[(bar, 0)], ups=ups)
                upsV = rb(f"V{i+1}", g0 - 10, g0 + 4, lastX)
            else:
                upsV = rb("V7", g0 - 10, g0 - 2, lastX)
                pend, _ = reads_V(rg, so("V7"), 0, buf ^ 1, g0 - 1 + BDA, late=0, deps=[(bar, 0)], ups=upsV)
    E = rg.n(); assert E == B(7)
    epi = []
    for p in range(4):
        buf = C.grp & 1; C.grp += 1; g0 = rg.n()
        if p == 0: frag_waits(rg, pend, g0, 4, g0 + 2)
        elif p < 3 or BDW: frag_waits(rg, pend, g0, 4, g0 + 6, only_first=(p == 3))
        last = v_mfmas(rg, p, buf, 1, False, tmajor=(p == 0))
        if p == 0:
            rl = []; lr = []
            for t in range(3):
                ls = sum_mfmas(rg, t, 1, False)
                lr.append(rg.F(V(f"v_accvgpr_read_b32 {vRL[t]}, a{240+4*t}", rd=[f"a{240+4*t}"], wr=[vRL[t]], e=ls.gap, sdeps=[(ls, 8)], d=E + 28)))
            mn = rg.F(V(f"v_min3_f32 {vA}, {vRL[0]}, {vRL[1]}, {vRL[2]}", rd=vRL, wr=[vA], deps=[(x, 0) for x in lr], d=E + 30))
            mx = rg.F(V(f"v_max3_f32 {vB}, {vRL[0]}, {vRL[1]}, {vRL[2]}", rd=vRL, wr=[vB], deps=[(x, 0) for x in lr], d=E + 30))
            rg.F(V(f"v_cmp_gt_f32 {sBad}, {sLo}, {vA}", rd=[vA], wr=[sBad], deps=[(mn, 0)], d=E + 40))
            rg.F(V(f"v_cmp_lt_f32 vcc, {sHi}, {vB}", rd=[vB], wr=["vcc"], deps=[(mx, 0)], d=E + 40))
            for t in range(3):
                rl.append(rg.F(V8(f"v_rcp_f32 {vRL[t]}, {vRL[t]}", rd=[vRL[t]], wr=[vRL[t]], deps=[(mn, 0), (mx, 0)], trans=True, d=E + 34)))
        for (dt, t), lm in last.items():
            mul, cvt = o_epilogue_ops(dt, t)
            for o in mul: o.e = lm.gap; o.sdeps = [(lm, 8), (rl[t], 1)]
            for o in mul + cvt:
                o.optional = True
                if dt >= 4 and o in cvt: o.e = 10**9
                rg.F(o); epi.append(o)
        if p < 3:
            pend, xs = reads_V(rg, so("V7"), p + 1, buf ^ 1, g0 - 1 if p != 0 else g0 + 3)
            if p == 2: bar = barrier(rg, g0 + 11 + BDW, pend, ["W0", "Xa", "Xb", "Xc"])
        else:
            ups = rb("W0", -1, g0 - 2, [])
            for o in ups: o.e = a0
            if OPT["nperm"]: ups = ups + [rg.F(V(f"v_mad_i32_i24 {vWb}, {vC}, {sGate}, {vWb}", rd=[vC, vWb], wr=[vWb], e=a0, d=g0 - 4))]
            pend, _ = reads_W(rg, so("W0"), 0, buf ^ 1, g0 - 1 + BDW, deps=[(bar, 0)], ups=ups, rsp=8)
    assert sorted(g + 288 for g in rg.bars) == ringplan.bS[6:] + [ringplan.bQ] + ringplan.bB + [ringplan.bP]
    head_dmas(rg, 288, 1200)
    rg.pendW0 = pend; rg.epi = epi
    rg.schedule()
    return rg

def half0_muls(rg, b4):
    for mt in range(4):
        for t in range(3): q_muls(rg, mt, t, rg.mf[b4 + 12*mt + 4*t + 3])

def build_R1(left):
    rg = new_region("R1")
    C.grp = 0
    xa = [rg.F(V(f"v_add_u32 v{S0+s}, {sW1k}, {vK[s]}", rd=[vK[s]], wr=[f"v{S0+s}"], d=6)) for s in range(4)]
    xr = reads_X(rg, lambda sl, s: (f"v{S0+s}", (sl - XB)*16384), [SLOT["Xa"], SLOT["Xb"], SLOT["Xc"]], QV, 4, 9, [(a, 1) for a in xa], step=2)
    pend = None; infos = []
    for st in range(5):
        pend, inf = w_step(rg, ORD[st][0], st in (0, 3), BopQ(st), pend, TS(f"W{st}"), TS(f"W{st+1}"), [f"W{st+1}"], more_reads=(xr if st == 0 else ()))
        infos.append(inf)
    new = {}
    for o in left:
        dt, t = o.ot
        n = V(o.text, rd=list(o.rd), wr=list(o.wr)); n.ot = o.ot; new[id(o)] = n
        n.deps = [(new[id(p)], g) for (p, g) in o.deps if id(p) in new]
        n.e = 8 if dt >= 6 else -1
        n.d = ((12*dt + 4*t) if dt < 4 else (144 + 12*(dt - 4) + 4*t)) - 1
        rg.F(n)
    head_dmas(rg, 0, 288)
    rg.pend = pend
    rg.schedule()
    return rg

def build_R1b(h, zst=None):
    rg = new_region(f"R1b{h}")
    C.grp = 20
    pend, inf = w_step(rg, ORD[5][0], False, BopQ(5), None, TS("W5"), TS("W6"), ["W6"])
    for i in range(48): rg.F(V(f"v_accvgpr_write_b32 a{ZB[h-1] + i}, v{PV0 + i}", rd=[f"v{PV0+i}"], wr=[f"a{ZB[h-1]+i}"]))
    next_setup(rg, h)
    rg.pend = pend
    rg.schedule()
    return rg

def next_setup(rg, h):
    T = lambda x, **kw: rg.F(S(x, **kw))
    if h < 3:
        T(f"s_add_u32 {sWcol}, {sWcol}, 256", deps=([(rg.lastw, 1)] if getattr(rg, "lastw", None) else []))
        T(f"s_and_b32 {sWcol}, {sWcol}, 0x3ff")
        for t in NEXT:
            if t[0] == "W":
                for x in wq_t0(sN[NEXT.index(t)], int(t[1])): T(x)
    if h == 2:
        a = T(f"s_lshl_b32 {sTmp}, {sB}, 2")
        if not OPT["bst"]: rg.dbg = rg.F(Op(f"buffer_load_dword {vLane}, off, {srdD}, {sTmp} sc1", "vm", wr=[vLane], deps=[(a, 0)]))
    if h == 3:
        for x in ("s_mov_b32 s16, s80", "s_mov_b32 s17, s81", "s_mov_b32 s18, 0x80000", "s_mov_b32 s20, s80", "s_mov_b32 s21, s81", "s_mov_b32 s22, 0x80000",
                  f"s_mov_b32 {sGate}, 1"): T(x)
        for i in (1, 2, 3): T(f"s_mov_b32 {sD[i]}, {7168*i}"); T(f"s_mov_b32 {sDY[i]}, {7168*i}")
        for m in range(6): T(f"s_add_u32 {sN[m]}, {sRot if m < 4 else sC[0]}, {sH[m & 3]}")
        if OPT["tlb"] == 1:
            sw = T(f"s_mov_b32 {sTmp}, {hex(FLAG_BASE + 0x20080)}")
            for srd, so in ((srdW, "0"), (srdWS, "s75"), (srdWS, sTmp), (srdO, sOutR)):
                rg.F(Op(f"buffer_load_dword {vB}, off, {srd}, {so}", "vm", wr=[vB], deps=[(sw, 0)]))
        rg.F(V(f"v_mov_b32 {vDW}, {vDWo}", rd=[vDWo], wr=[vDW])); rg.F(V(f"v_mov_b32 {vDX}, {vDWo}", rd=[vDWo], wr=[vDX]))

def build_R1f():
    X = lambda q: [f"x{q}{a}" for a in range(3)]
    final = [t for t in ISS if ISS[t] < 288 and t[0] in "KV"] + ["W6", "W7"]
    assert set(final) == {"K0", "K1", "V0", "K2", "V1", "K3", "W6", "W7"}, final
    if OPT["kvlate"] < 4:
        init = X(0) + ["w0"] + X(1) + ["w1", "K0", "K1"]
        inh = list(zip(X(2), X(0))) + [("w2", "w0")] + list(zip(["w3", "x30", "x31"], X(1))) + [("x32", "w1")] + \
              list(zip(["w4", "V0", "w5"], X(2))) + [("K2", "w2"), ("W6", "w3")] + list(zip(["V1", "W7", "K3"], X(3)))
    else:
        init = X(0) + ["w0"] + X(1) + ["w1", "x20", "x21"]
        inh = list(zip(["x22", "w2", "w3"], X(0))) + [("x30", "w0")] + list(zip(["x31", "x32", "w4"], X(1))) + [("w5", "w1")] + \
              list(zip(["W6", "W7", "K0"], X(2))) + [("K1", "w2"), ("V0", "w3")] + list(zip(["K2", "V1", "K3"], X(3)))
    sl = {t: SLOT[t] for t in final}
    for new, old in reversed(inh):
        if new in sl: sl[old] = sl[new]
    free = [x for x in range(10) if x not in {sl[t] for t in init if t in sl}]
    for t in init:
        if t not in sl: sl[t] = free.pop()
    for new, old in inh: sl[new] = sl[old]
    def spec(t):
        if t[0] == "x": return ("X", int(t[2]), int(t[1]))
        if t[0] in "wW": return ("W", int(t[1]))
        return (t[0],)
    wsl = [sl[f"w{j}"] for j in range(6)] + [SLOT["W6"]]
    wb = [min(x, 6) for x in wsl[:6]] + [BASE["W6"]]
    rg = new_region("R1f")
    C.grp = 0
    xaddr = lambda s_, s: (f"v{S0 + 4*(s_ >> 2) + s}", (s_ & 3)*16384)
    dst = {0: (1, lambda s, t: XA(4 + s, t)), 1: (2, lambda s, t: XA(8 + s, t)), 3: (3, QV)}
    pend = None; infos = []; xw = None
    for st in range(6):
        post = None; need = [f"w{st+1}" if st < 5 else "W6"]
        if st in dst:
            q, fn = dst[st]; need += X(q)
            post = (lambda q, fn: lambda g0, bar: reads_X(rg, xaddr, [sl[t] for t in X(q)], fn, g0 + 2 + BDW, g0 + 5 + BDW, [(bar, 0)]))(q, fn)
        pend, inf = w_step(rg, ORD[st][0], st in (0, 3), BopQ(st), pend, ("W", wsl[st], wb[st]), ("W", wsl[st+1], wb[st+1], wb[st]), need, xwait=xw, post=post)
        xw = inf.get("post"); infos.append(inf)
    rel = {"w%d" % j: infos[j]["bar"] for j in range(6)}
    for q, st in ((1, 1), (2, 2), (3, 4)):
        for t in X(q): rel[t] = infos[st]["xbar"]
    items = []; tcur = 0
    if OPT["kvlate"] < 4:
        seq = [(t, None) for t in ("x20", "x21", "x22")] + inh[3:]
        kp = {0: (3, 4), 1: (8, 9), 2: (4, 9), 3: (9, 12)}[OPT["kvlate"]]
        seq.insert(kp[0], ("K0", None)); seq.insert(kp[1], ("K1", None))
    else: seq = [(t, None) for t in ("x20", "x21", "x22", "w2", "w3")] + inh[3:]
    for new, old in seq:
        if old: tcur = max(tcur, rel[old].e)
        sp = OPT["fsp"] if (new[0] not in "KV" or OPT["kvlate"] < 4) else OPT["fkv"]
        items.append((new, spec(new), sl[new], tcur, sp, rel[old] if old else None)); tcur += 4*sp + (1 if sp == OPT["fsp"] else OPT["fgap"])
    add_dmas(rg, items)
    next_setup(rg, 0)
    rg.pend = pend
    rg.schedule()
    rg.init = [(t, spec(t), sl[t]) for t in init[:8]]; rg.wb0 = wb[0]; rg.wso0 = (wsl[0] - wb[0])*16384
    rg.x0 = [xaddr(sl[t], 0) for t in X(0)]; rg.xsl0 = [sl[t] for t in X(0)]; rg.xaddr = xaddr
    return rg

RLD = [[R("v", QV0 + 4*g, 4) for g in range(8)],
       [R("v", QV0 + 32 + 4*g, 4) for g in range(4)] + [R("v", S0 + 4*g, 4) for g in range(3)] + ["v[236:239]"]]
vTo = vLane if not OPT['bst'] else 'v235'
vSt, vFl, vPo, vPr, vOut = vDK, vDV, vVb, vDX, vC
LAG = OPT['lag']; OSC = ['', ' sc1', ' nt', ' sc0 sc1'][OPT['osc']]
NTST = ' nt' if OPT['ntst'] else ''
LO = ["v249", "v250", "v251", "v253"]
def pack_store(chunk):
    res = []
    for t in range(3):
        for np_ in range(2):
            a, b = 4*chunk + 2*np_, 4*chunk + 2*np_ + 1
            src = [(OAr(a,t,0), OAr(a,t,1)), (OAr(a,t,2), OAr(a,t,3)), (OAr(b,t,0), OAr(b,t,1)), (OAr(b,t,2), OAr(b,t,3))]
            cv = []
            for j in range(4):
                cv.append(V(f"v_cvt_pk_bf16_f32 {OAr(a,t,j)}, {src[j][0]}, {src[j][1]}", rd=list(src[j]), wr=[OAr(a,t,j)], deps=([(cv[-1], 0)] if cv else [])))
            k = 2*t + np_
            sa = S(f"s_add_u32 {sU[k & 1]}, {sSt}, {k*8192}", wr=[sU[k & 1]])
            st = Op(f"buffer_store_dwordx4 {OA(a,t)}, {vSt}, {srdWS}, {sU[k & 1]} offen@SC", "vm", rd=[OA(a,t), vSt], deps=[(cv[-1], 1), (sa, 0)])
            res.append((cv, sa, st))
    return res
def reduce_ops(set_):
    X = [regs(r_) for r_ in RLD[set_]]
    tmp = [vA, vB]; ops = []; n = 0
    for k in range(4):
        ops += [V(f"v_lshlrev_b32 {LO[k]}, 16, {X[0][k]}", rd=[X[0][k]], wr=[LO[k]]),
                V(f"v_and_b32 {X[0][k]}, {sMask}, {X[0][k]}", rd=[X[0][k]], wr=[X[0][k]])]
        for g in range(1, 8):
            tm = tmp[n & 1]; n += 1
            ops += [V(f"v_lshlrev_b32 {tm}, 16, {X[g][k]}", rd=[X[g][k]], wr=[tm]),
                    V(f"v_and_b32 {X[g][k]}, {sMask}, {X[g][k]}", rd=[X[g][k]], wr=[X[g][k]]),
                    V(f"v_add_f32 {LO[k]}, {LO[k]}, {tm}", rd=[LO[k], tm], wr=[LO[k]]),
                    V(f"v_add_f32 {X[0][k]}, {X[0][k]}, {X[g][k]}", rd=[X[0][k], X[g][k]], wr=[X[0][k]])]
        ops.append(V(f"v_cvt_pk_bf16_f32 {X[0][k]}, {LO[k]}, {X[0][k]}", rd=[LO[k], X[0][k]], wr=[X[0][k]]))
    for a, b in zip(ops, ops[1:]): b.deps.append((a, 0))
    pl = []
    for j in range(2):
        pl.append(V8(f"v_permlane32_swap_b32 {X[0][j]}, {X[0][2+j]}", rd=[X[0][j], X[0][2+j]], wr=[X[0][j], X[0][2+j]], sdeps=[(ops[-1], 2)]))
    for j in range(2):
        pl.append(V8(f"v_permlane16_swap_b32 {X[0][j]}, {X[0][2+j]}", rd=[X[0][j], X[0][2+j]], wr=[X[0][j], X[0][2+j]], sdeps=[(pl[j], 2)]))
    st = Op(f"buffer_store_dwordx4 {RLD[set_][0]}, {vOut}, {srdO}, {sOut} offen{OSC}", "vm", rd=[RLD[set_][0], vOut, sOut], deps=[(pl[2], 1), (pl[3], 1)])
    return ops, pl, st
def red_loads(set_):
    return [Op(f"buffer_load_dwordx4 {RLD[set_][g]}, {vSt}, {srdWS}, {sLd if g < 4 else sLd2} offen offset:{(g & 3)*1024} sc1", "vm",
               rd=[vSt], wr=[RLD[set_][g]]) for g in range(8)]
def sig_ops():
    return [Op(f"buffer_store_dword {vSt}, {vFl}, {srdWS}, {sSig} offen@SC", "vm", rd=[vSt, vFl])]
def scal_A():
    return [f"s_sub_u32 {sTmp}, {sIt}, 1", f"s_and_b32 {sTmp}, {sTmp}, {sSlM}", f"s_mul_i32 {sTmp}, {sTmp}, {CHUNK}",
            f"s_add_u32 {sSt}, {sStR}, {sTmp}", f"s_add_u32 {sLd}, {sLdR}, {sTmp}", f"s_add_u32 {sLd2}, {sLd}, 0x1000",
            f"s_add_u32 {sSig}, {sSig}, 256"]
def scal_B():
    return [f"s_add_u32 {sOut}, {sOutR}, {sOc}", f"s_add_u32 {sOc}, {sOc}, 128", f"s_and_b32 {sOc}, {sOc}, 0x3ff", f"s_add_u32 {sIt}, {sIt}, 1"]

def build_G(first=False, left=()):
    rg = new_region("G0" if first else "G"); L = "F" if first else ""
    used = [SLOT[t] for t in NEXT]
    gs = used + [SLOT["K0"]] + [x for x in range(10) if x not in used and x not in (SLOT["K0"], SLOT["K1"], SLOT["V0"])][:1]
    assert len(gs) == 8
    gb = ringplan.bases(gs, BASE["W0"])[1]
    items = []; bars = {}; st_last = {}; rg.touch = []
    C.grp = 0
    def Bop(h): return (lambda s, t: ZA(h, s, t)) if h < 3 else (lambda s, t: OP(s, t))
    LD = [red_loads(0), red_loads(1)] if first else G_LD
    pend = None; prev_users = []
    if first:
        new = {}
        for o in left:
            dt, t = o.ot
            n = V(o.text, rd=list(o.rd), wr=list(o.wr)); new[id(o)] = n
            n.deps = [(new[id(p)], g) for (p, g) in o.deps if id(p) in new]
            n.e = 8 if dt >= 6 else -1
            n.d = (12*dt + 4*t - 1) if dt < 4 else (144 + 4*t + (dt >> 1) - 3)
            rg.F(n)
        cs = []
        for x in f"""v_mbcnt_lo_u32_b32 {vA}, -1, 0
v_mbcnt_hi_u32_b32 {vA}, -1, {vA}
v_lshlrev_b32 {vSt}, 4, {vA}
v_and_b32 {vPo}, 7, {vA}
v_lshlrev_b32 {vPo}, 2, {vPo}
v_lshrrev_b32 {vB}, 4, {vA}
v_bfe_u32 {vOut}, {vA}, 2, 2
v_and_b32 {vA}, 3, {vA}
v_lshl_add_u32 {vA}, {vOut}, 4, {vA}
v_lshlrev_b32 {vA}, 10, {vA}
v_lshl_add_u32 {vOut}, {vB}, 4, {vA}
v_mov_b32 {vFl}, {hex(OOB)}""".split("\n"):
            cs.append(rg.F(V(x, e=(0 if len(cs) < 3 else 40), d=110, deps=[(cs[-1], 0)] if cs else [])))
        sc = [rg.F(S(x)) for x in (f"s_lshl_b32 s5, {sG}, 2", f"s_cmp_eq_u32 {sWave}, 0", f"s_cselect_b32 s5, s5, {hex(OOB)}", f"s_mov_b32 {sMask}, 0xffff0000",
                                   f"s_mov_b32 {sLd}, {sLdR}", f"s_add_u32 {sLd2}, {sLd}, 0x1000", f"s_mov_b32 {sSig}, {sFlR}", f"s_mov_b32 {sExp}, 16")]
        wl = rg.F(V(f"v_writelane_b32 {vFl}, s5, 1", deps=[(cs[-1], 0), (sc[2], 0)], d=120))
        prev = None
        for k in range(2):
            if k: a1 = rg.F(S(f"s_add_u32 {sLd}, {sLd}, {CHUNK}", deps=[(prev, 1)])); a2 = rg.F(S(f"s_add_u32 {sLd2}, {sLd}, 0x1000"))
            for i, o in enumerate(red_loads(k)):
                o.text = o.text.replace(" sc1", ""); o.tag = "touch"
                o.e = (OPT["gdma"] + 84 if k else 8) + 4*i; o.d = o.e + 3
                o.deps = [(cs[2], 1), ((a2 if k else sc[5]), 0)] + ([(prev, 1)] if prev else []); rg.F(o); prev = o; rg.touch.append(o)
        last0 = prev
    for hf in range(2):
        h0 = 192*hf
        do_st = not (first and hf == 0); do_sum = not first
        stores = []
        if do_st:
            for (cv, sa, st) in pack_store(1 - hf):
                for o in cv: o.e = h0 + 8; rg.F(o)
                if len(stores) >= 2: sa.deps.append((stores[-2], 1))
                rg.F(sa); st.e = h0 + 10 + OPT['gst']*len(stores); st.d = st.e + 3; rg.F(st); stores.append(st)
        if do_sum:
            sc = [rg.F(S(x, e=h0, deps=[(u, 1) for u in prev_users])) for x in scal_B()]
            if hf == 0: sB0 = sc[-1]
            cur = hf ^ 1
            w0 = rg.F(WAIT(h0 + OPT['gsum'], need_vm=LD[cur] + (G_LD0 if hf == 0 else []), late=1)); w0.e = h0 + OPT['gsum']
            o0, p0, s0_ = reduce_ops(cur)
            o0[0].deps.append((w0, 0))
            for o in o0 + p0 + [s0_]: rg.F(o)
            s0_.d = h0 + OPT['gout']; s0_.deps += [(sc[0], 0), (LD[hf][-1], 1)]
            prev_users = [s0_]
        infos = []
        for j in range(4):
            st = 4*hf + j
            n1 = (st + 1) & 7
            pend, inf = w_step(rg, hf, j == 0, Bop(j), pend, ("W", gs[st], gb[st]), ("W", gs[n1], gb[n1], gb[st]), [f"G{n1}"], extra=(stores if j == 1 else ()))
            infos.append(inf); bars[st] = inf["bar"]
        if do_st:
            sig, = sig_ops(); bs = infos[1]["bar"]
            sig.deps = [(bs, 0)]; sig.d = bs.e + 1; rg.F(sig)
            rg.F(S(f"s_load_dwordx8 s[8:15], s[82:83], {sSig}", e=h0 + OPT['gpoll'], d=h0 + OPT['gpoll'] + 4))
            b2 = infos[2]["bar"]
            for x in ("s_and_b32 s8, s8, s9", "s_and_b32 s10, s10, s11", "s_and_b32 s12, s12, s13", "s_and_b32 s14, s14, s15",
                      "s_and_b32 s8, s8, s10", "s_and_b32 s12, s12, s14", "s_and_b32 s8, s8, s12", "s_bitcmp0_b32 s8, 4"): rg.F(S(x, deps=[(b2, 0)]))
            br = rg.F(Op(f"s_cbranch_scc1 L_spinG{hf}{L}@L\nL_backG{hf}{L}@L:", "s", d=b2.e + 12))
            prev = None
            for i, o in enumerate(LD[hf]):
                o.deps += [(br, 0)] + ([(prev, 1)] if prev else []); o.e = b2.e + 10 + OPT['gld']*i; o.d = o.e + 3; rg.F(o); prev = o
            lastld = LD[hf][-1]
        else: lastld = last0
        if first: rg.F(S(f"s_mov_b32 {sIt}, {hf + 1}", deps=[(lastld, 1)]))
        for i, x in enumerate(scal_A()): rg.F(S(x, deps=[(lastld, 1)] if i == 0 else []))
        for k in range(4):
            st = (4*hf - 2 + k) & 7
            items.append((f"G{st}", ("C", (1 + (st >> 2)) if (hf or k > 1) else 0, st & 3), gs[st], h0 + OPT["gdma"] + k*(4*OPT["gdsp"] + 1), OPT["gdsp"],
                          bars[st] if (hf or k > 1) else None))
        if stores: st_last[hf] = stores[-1]
    add_dmas(rg, items)
    if not first:
        c1 = S(f"s_cmp_ge_u32 {sIt}, 7", deps=[(TILE["G7"][-1], 1)]); c2 = S("s_cselect_b32 s18, 0, s18", wr=["s18"], rd=["s18"])
        pos = rg.fill.index(sB0) + 1
        rg.fill[pos:pos] = [c1, c2]
        for i, o in enumerate(rg.fill): o.seq = i + 1
        rg.first_dma["G0"].deps.append((c2, 0))
        rg.first_dma["G6"].deps.append((st_last[0], 1))
    rg.first_dma["G2"].deps.append((st_last[1], 1))
    rg.LD = LD; rg.pend = pend
    rg.schedule()
    return rg

def stamp(kind=0):
    if not OPT["stamps"]: return []
    def put(x): return lin(f"v_mov_b32 {vA}, {x}") + [Op(f"buffer_store_dword {vA}, off, {srdWS}, s101", "vm")] + lin("s_add_u32 s101, s101, 4\ns_nop 1")
    if kind == 1: return put("s94") + put("s92") + stamp()
    if kind == 2: return lin("s_waitcnt vmcnt(0)") + stamp()
    return lin("s_memtime s[2:3]\ns_memrealtime s[4:5]\ns_waitcnt lgkmcnt(0)") + put("s2") + put("s4")

def code_pf(lbl, start, end, mask, r):
    if not OPT["pf"]: return []
    return lin(f"""s_getpc_b64 s[{r}:{r+1}]
{lbl}:
s_add_u32 s{r}, s{r}, {start}-{lbl}
s_addc_u32 s{r+1}, s{r+1}, {"-1" if start == KN else "0"}
s_mov_b32 s{r+2}, {end}-{start}
s_mov_b32 s{r+3}, 0x20000
s_lshl_b32 s5, {sIdx}, 2
s_add_u32 s5, s5, {sWave}
s_and_b32 s5, s5, {mask}
s_lshl_b32 s5, s5, 13
v_mbcnt_lo_u32_b32 {vA}, -1, 0
v_mbcnt_hi_u32_b32 {vA}, -1, {vA}
v_lshlrev_b32 {vA}, 7, {vA}""") + [Op(f"buffer_load_dword {vB}, {vA}, s[{r}:{r+3}], s5 offen", "vm")]

HROT = {0: "s_mov_b32 s5, 0", 1: "s_mov_b32 s5, s4", 2: f"s_mov_b32 s5, {sG}", 3: f"s_add_u32 s5, s4, {sG}", 4: f"s_lshr_b32 s5, {sG}, 1",
        5: f"s_lshr_b32 s5, {sB}, 3", 6: f"s_lshr_b32 s5, {sG}, 2\ns_lshl_b32 s3, {sG}, 1\ns_or_b32 s5, s5, s3", 7: f"s_sub_u32 s5, 0, {sG}"}[OPT["hrot"]]
if OPT["krot"] < 3:
    KROT = f"""{f"s_add_u32 s4, {sB}, {sG}" if OPT["krot"] == 2 else ""}
s_and_b32 s4, s4, {3 if OPT["krot"] else 0}
s_lshl_b32 {sDg[0]}, s4, 20
s_add_u32 {sDg[1]}, {sDg[0]}, 0x100000
s_and_b32 {sDg[1]}, {sDg[1]}, 0x3fffff
s_xor_b32 {sDg[2]}, {sDg[0]}, 0x200000
s_xor_b32 {sDg[3]}, {sDg[1]}, 0x200000"""
else:
    KROT = f"""s_add_u32 s5, {sB}, {sG}
s_mul_i32 s3, s5, 43
s_lshr_b32 s3, s3, 7
s_mul_i32 s3, s3, 3
s_sub_u32 s5, s5, s3
s_add_u32 {sDg[3]}, s4, 3
s_add_u32 {sDg[0]}, s4, s5
s_cmp_eq_u32 s5, 2
s_cselect_b32 s3, -2, 1
s_add_u32 {sDg[1]}, {sDg[0]}, s3
s_cmp_eq_u32 s5, 0
s_cselect_b32 s3, 2, -1
s_add_u32 {sDg[2]}, {sDg[0]}, s3""" + "".join(f"\ns_and_b32 {sDg[q]}, {sDg[q]}, 3\ns_lshl_b32 {sDg[q]}, {sDg[q]}, 20" for q in range(4))
def prologue(F):
    init = F.init
    o = lin(f"""
s_cmp_lt_u32 s2, 256
s_cbranch_scc1 L_go
s_endpgm
L_go:
{"s_memrealtime s[92:93]" if (OPT["stamps"] or OPT["dbl"]) else ""}
{"s_memtime s[94:95]" if OPT["stamps"] else ""}
s_load_dwordx16 s[68:83], s[0:1], 0
v_lshrrev_b32 v1, 6, v0
v_and_b32 {vLane}, 63, v0
s_and_b32 s4, s2, 7
v_readfirstlane_b32 {sWave}, v1
s_lshr_b32 s5, s2, 3
s_mov_b32 {sIdx}, s5""")
    mp = {84: (1, 3, 2, 1, 2, 3), 48: (0, 2, 3, 0, 3, 7), 162: (2, 4, 1, 3, 1, 1)}[OPT["mapping"]]
    o += lin(f"""
s_lshr_b32 s6, s4, {mp[0]}
s_lshl_b32 s6, s6, {mp[1]}
s_lshr_b32 s7, s5, {mp[2]}
s_add_u32 {sB}, s6, s7
s_and_b32 s6, s4, {mp[3]}
s_lshl_b32 s6, s6, {mp[4]}
s_and_b32 s7, s5, {mp[5]}
s_add_u32 {sG}, s6, s7""")
    cbits = struct.unpack("<I", struct.pack("<f", math.log2(math.e)/math.sqrt(128)))[0]
    o += lin(f"""
s_lshl_b32 {sW4k}, {sWave}, 12
v_lshrrev_b32 v5, 4, {vLane}
v_and_b32 v6, 15, {vLane}
s_lshl_b32 s6, {sWave}, 4
v_add_u32 v1, s6, v5
s_lshl_b32 s6, {sWave}, 2
v_or_b32 v2, s6, v5
v_xor_b32 v2, v2, v6
v_lshlrev_b32 v2, 4, v2
v_lshl_add_u32 {vDX}, v1, 10, v2
v_lshl_add_u32 {vDK}, v1, 8, v2
v_lshrrev_b32 v7, 5, {vLane}
v_bfe_u32 v2, {vLane}, 3, 2
v_lshl_add_u32 v7, v7, 3, v2
s_lshl_b32 s6, {sWave}, 5
v_add_u32 v7, s6, v7
v_and_b32 v3, 7, {vLane}
v_lshlrev_b32 v4, 1, v5
v_xor_b32 v3, v3, v4
v_lshlrev_b32 v3, 4, v3
s_mov_b32 {sDY[1]}, 3072
s_mov_b32 {sDY[2]}, 6144
s_mov_b32 {sDY[3]}, 9216
s_mov_b32 {sD[1]}, {16*8192 - 1024}
s_mov_b32 {sD[2]}, {4*8192 - 2048}
s_mov_b32 {sD[3]}, {20*8192 - 3072}
s_lshr_b32 s4, {sB}, 2
{HROT}
s_bfe_u32 {sSw}, s5, {"0x10002" if OPT["hswap"] else "0x00002"}
s_and_b32 s5, s5, {3 if OPT["hrot"] else 0}
s_mov_b32 {sHr}, s5
s_lshl_b32 {sWcol}, s5, 8
s_lshl_b32 {sSw}, {sSw}, 7
s_or_b32 {sWcol}, {sWcol}, {sSw}
s_lshr_b32 {sSw}, {sSw}, 1
v_xor_b32 v7, {sSw}, v7
v_lshl_add_u32 {vDW}, v7, 13, v3
s_lshl_b32 {sKoff}, s5, 17
s_mov_b32 {sVoff}, {sKoff}
{KROT}
s_mul_i32 s7, {sB}, {0 if OPT["samex"] else 196608}
s_mov_b32 s22, 196608
s_mov_b32 s23, 0x20000
s_mov_b32 s19, 0x20000
s_lshl_b32 s4, {sG}, 10
{"s_mov_b32 s4, 0" if OPT["samew"] else ""}
s_sub_u32 s18, 0x400000, s4
s_waitcnt lgkmcnt(0)
s_add_u32 s20, s68, s7
s_addc_u32 s21, s69, 0
s_add_u32 s16, s74, s4
s_addc_u32 s17, s75, 0""")
    if OPT["tch"]:
        o += lin(f"""v_lshrrev_b32 v8, 1, {vLane}
v_and_b32 v9, 1, {vLane}
v_lshlrev_b32 v9, 7, v9
v_lshl_add_u32 v11, v8, 13, v9
v_lshl_add_u32 v8, v8, 10, v9
v_mov_b32 v10, {hex(OOB)}
v_cmp_gt_u32 vcc, 12, {vLane}
s_lshl_b32 s4, {sG}, 2
s_add_u32 s4, s4, {sWave}
s_mul_i32 s4, s4, 6144
v_cndmask_b32 v8, v10, v8, vcc
v_cmp_gt_u32 vcc, 16, {vLane}
s_and_b32 s5, {sB}, 3
s_lshl_b32 s5, s5, 2
s_add_u32 s5, s5, {sWave}
s_lshl_b32 s5, s5, 16
s_add_u32 s5, s5, {sWcol}
v_cndmask_b32 v11, v10, v11, vcc
v_add_u32 v8, s4, v8
v_add_u32 v11, s5, v11""")
        for q in range(OPT["tch"] - 1, 4):
            o += lin(f"s_lshr_b32 s3, {sDg[q]}, 12")
            o += [Op(f"buffer_load_dword {vB}, v8, {srdX}, s3 offen", "vm"), Op(f"buffer_load_dword {vB}, v11, {srdW}, {sDg[q]} offen", "vm")]
    for j in range(4): o += dma_linear(*init[j])
    o += lin(f"""s_lshl_b32 s3, {sB}, 22
s_lshl_b32 s7, {sG}, 19
s_add_u32 s3, s3, s7
{"s_mov_b32 s3, 0" if OPT["samekv"] else ""}
s_add_u32 s8, s70, s3
s_addc_u32 s9, s71, 0
s_mov_b32 s10, 0x80000
s_mov_b32 s11, 0x20000
s_add_u32 s12, s72, s3
s_addc_u32 s13, s73, 0
s_mov_b32 s14, 0x80000
s_mov_b32 s15, 0x20000
""")
    if OPT["tlb"]:
        o += [Op(f"buffer_load_dword {vB}, off, {srdK}, 0", "vm"), Op(f"buffer_load_dword {vB}, off, {srdV}, 0", "vm")]
        o += [Op(f"buffer_load_dword {vB}, off, {srdW}, {sDg[q]}", "vm") for q in (1, 2, 3)]
    o += code_pf("L_pc", KN, "L_g3", OPT["pf"] - 1, 88)
    o += lin(f"""
v_lshrrev_b32 v7, 3, {vLane}
v_add_u32 v7, s6, v7
v_lshl_add_u32 {vDWo}, v7, 10, v3
s_and_b32 s6, {sWave}, 1
s_lshl_b32 s6, s6, 2
v_or_b32 v2, s6, v5
v_lshlrev_b32 v2, 1, v2
v_xor_b32 v2, v2, v6
v_lshlrev_b32 v1, 8, v1
v_lshl_add_u32 {vDV}, v2, 4, v1
s_mov_b32 s24, s82
s_mov_b32 s25, s83
s_mov_b32 s26, {hex(WS_BYTES)}
s_mov_b32 s27, 0x20000
v_lshrrev_b32 v1, 3, {vLane}
v_and_b32 v2, 7, {vLane}
v_lshlrev_b32 v1, 8, v1
v_lshl_add_u32 v8, v2, 2, v1
s_lshl_b32 s6, {sB}, 11
s_add_u32 s6, s6, {hex(FLAG_BASE)}
s_or_b32 s7, {sG}, {sWave}
s_cmp_eq_u32 s7, 0
s_cselect_b32 {sTmp}, s6, {hex(OOB)}
v_mov_b32 v9, 0""")
    zst = Op(f"buffer_store_dword v9, v8, {srdWS}, {sTmp} offen sc1", "vm"); o.append(zst)

    o += lin(f"""
s_mov_b32 {sScale}, {hex(cbits)}
s_mov_b32 {sLo}, 0x30800000
s_mov_b32 {sHi}, 0x4e800000
s_mov_b32 {sHead}, 0
s_lshl_b32 {sW1k}, {sWave}, 10
s_mov_b32 s28, s78
s_mov_b32 s29, s79
s_mov_b32 s30, 0x600000
s_mov_b32 s31, 0x20000
s_mov_b32 s32, s80
s_mov_b32 s33, s81
s_mov_b32 s34, 0x100
s_mov_b32 s35, 0x20000

v_lshrrev_b32 v1, 2, v6
v_and_b32 v2, 3, v6
v_lshl_add_u32 v3, v1, 4, v2
v_lshlrev_b32 v3, 8, v3""")
    for s in range(4):
        o += lin(f"s_and_b32 s3, {sWcol}, 128\nv_add_u32 v4, {4*s}, v5\nv_xor_b32 v4, v4, v6\nv_lshl_add_u32 {vK[s]}, v4, 4, v3\nv_xor_b32 {vK[s]}, s3, {vK[s]}")
    o += lin(f"""
v_lshl_add_u32 v3, v5, 4, v1
v_lshlrev_b32 v3, 8, v3
v_and_b32 v4, 1, v5
v_lshl_add_u32 v7, v4, 2, v1
v_lshl_add_u32 v3, v7, 5, v3
v_lshl_add_u32 v3, v2, 3, v3
v_add_u32 {vVb}, {BASE["V7"]*16384}, v3
v_lshl_add_u32 v3, v5, 2, v1
v_lshlrev_b32 v3, 7, v3
v_lshrrev_b32 v7, 1, v1
v_lshl_add_u32 v7, v4, 1, v7
{"v_lshlrev_b32 v7, 1, v7" if OPT["nperm"] else "v_lshl_add_u32 v3, v7, 5, v3"}
{"v_xor_b32 v7, v7, v2" if OPT["nperm"] else ""}
{"v_lshl_add_u32 v7, v7, 4, v3" if OPT["nperm"] else "v_lshl_add_u32 v7, v2, 3, v3"}
v_add_u32 {vWb}, {F.wb0*16384}, v7
v_mov_b32 v3, 0x3f803f80
v_accvgpr_write_b32 a252, v3
v_accvgpr_write_b32 a253, v3
v_accvgpr_write_b32 a254, v3
v_accvgpr_write_b32 a255, v3
""")
    for s in range(4):
        o += lin(f"v_add_u32 v{S0+s}, {sW1k}, {vK[s]}\nv_add_u32 v{S0+4+s}, 0x10000, v{S0+s}\nv_add_u32 v{S0+8+s}, 0x20000, v{S0+s}\nv_add_u32 {vK[s]}, {BASE['K7']*16384}, {vK[s]}")
    o += lin(f"s_add_u32 {sW1k}, {sW1k}, {lit((XB - BASE['K7'])*16384)}")
    for j in range(4, 8): o += dma_linear(*init[j])
    o += lin(f"""s_lshl_b32 s6, {sG}, 19
s_add_u32 s80, s76, s6
s_addc_u32 s81, s77, 0
s_mov_b32 {sGate}, 0
s_lshl_b32 {sH[0]}, {sHr}, 17
s_add_u32 {sH[1]}, {sH[0]}, 0x20000
s_and_b32 {sH[1]}, {sH[1]}, 0x7ffff
s_xor_b32 {sH[2]}, {sH[0]}, 0x40000
s_xor_b32 {sH[3]}, {sH[1]}, 0x40000
{"s_mov_b32 s73, s92" if OPT["dbl"] else ""}
s_mov_b32 s76, {hex(OOB)}
s_mov_b32 s77, {hex(OOB)}
s_getreg_b32 {sXcc}, hwreg(HW_REG_XCC_ID, 0, 3)
s_lshr_b32 {sRot}, {sB}, 2
s_and_b32 {sRot}, {sRot}, {7 if OPT["rot"] else 0}
s_lshl_b32 {sRot}, {sRot}, 7
s_lshl_b32 {sXcc}, {sXcc}, 2
s_lshl_b32 {sXcc}, 1, {sXcc}""" + "".join(f"\ns_add_u32 {sC[i]}, {sRot}, {128*(i+1)}\ns_and_b32 {sC[i]}, {sC[i]}, 0x3ff" for i in range(3))
      + "".join("\n" + "\n".join(x_t0(sN[NEXT.index('X' + 'abc'[a])], a, 3)) for a in range(3)) + f"""
s_mul_i32 s6, {sB}, {8*CHUNK + 4096}
s_mov_b32 s75, s6
s_add_u32 s6, s6, 4096
s_mul_i32 s7, {sWave}, 49152
s_add_u32 {sStR}, s6, s7
s_lshl_b32 s7, {sG}, 10
s_add_u32 {sStR}, {sStR}, s7
s_mul_i32 s7, {sG}, 3
s_add_u32 s7, s7, {sWave}
s_lshl_b32 s4, s7, 13
s_add_u32 {sLdR}, s6, s4
s_lshl_b32 {sFlR}, {sB}, 11
s_add_u32 {sFlR}, {sFlR}, {hex(FLAG_BASE - 256)}
s_lshr_b32 s4, s7, 1
s_mul_i32 s5, s4, 11
s_lshr_b32 s5, s5, 5
s_mul_i32 s3, s5, 3
s_sub_u32 s4, s4, s3
s_lshl_b32 s4, s4, 6
s_lshl_b32 s5, s5, 2
s_add_u32 s4, s4, s5
s_mul_i32 s5, {sB}, 192
s_add_u32 s4, s4, s5
s_lshl_b32 s4, s4, 10
s_and_b32 s5, s7, 1
s_lshl_b32 s5, s5, 6
s_add_u32 {sOutR}, s4, s5
s_mov_b32 {sOc}, {sRot}
s_cmp_eq_u32 {sWave}, 3
s_cselect_b32 {sLdR}, {hex(OOB)}, {sLdR}
s_cselect_b32 {sOutR}, {hex(OOB)}, {sOutR}
v_bfe_u32 v3, {vLane}, 3, 2
v_and_b32 v2, 3, {vLane}
v_lshlrev_b32 {vC}, 5, v3
v_lshl_add_u32 {vC}, v2, 3, {vC}
v_lshlrev_b32 v3, 1, v3
v_xor_b32 v2, v2, v3
v_lshlrev_b32 v2, 4, v2
v_sub_u32 {vC}, {vC}, v2""")
    if OPT["tlb"] == 2:
        o += lin(f"""s_mov_b32 s4, {hex(FLAG_BASE + 0x20080)}
s_mov_b32 s88, s80
s_mov_b32 s89, s81
s_mov_b32 s90, 0x80000
s_add_u32 s5, s75, {8*CHUNK + 4096}""") if False else lin(f"s_mov_b32 s4, {hex(FLAG_BASE + 0x20080)}\ns_add_u32 s5, s75, {8*CHUNK + 4096}")
        o += [Op(f"buffer_load_dword {vB}, off, {srd}, {so}", "vm") for srd, so in ((srdWS, "s75"), (srdWS, "s5"), (srdWS, "s4"), (srdO, sOutR))]
    if OPT["stamps"]:
        o += lin(f"s_lshl_b32 s101, s2, 10\ns_lshl_b32 s6, {sWave}, 8\ns_add_u32 s101, s101, s6\ns_add_u32 s101, s101, {hex(STAMP_BASE)}")
    if OPT["stamps"] == 2: o += stamp(1)
    o.append(WAIT(0, need_vm=[x[0] for x in init[:4]]))
    o += lin("s_barrier")
    if OPT["stamps"] == 2: o += stamp()
    for t in range(3):
        for s in range(4): o += lin("ds_read_b128 %s, %s offset:%d" % ((XA(s, t),) + F.xaddr(F.xsl0[t], s)))
    for s in range(4):
        for p in range(2): o += lin(f"ds_read_b64_tr_b16 {FR(0, s, p)}, {vWb} offset:{F.wso0 + s*4096 + p*2048}")
    o += lin("s_waitcnt lgkmcnt(0)\ns_barrier")
    return o, zst

def glue0(zst):
    return [WAIT(0, need_vm=[zst])] + lin(f"""s_lshl_b32 s6, {sB}, 2
s_cmp_eq_u32 {sWave}, 0
s_cselect_b32 s6, s6, {hex(OOB)}
v_mov_b32 {vB}, {hex(OOB)}
v_writelane_b32 {vB}, 0, 0
v_mov_b32 {vA}, {sXcc}""") + [Op(f"buffer_atomic_add {vA}, {vB}, {srdD}, s6 offen sc1", "vm")]
def touch_setup():
    return lin(f"""v_mbcnt_lo_u32_b32 {vA}, -1, 0
v_mbcnt_hi_u32_b32 {vA}, -1, {vA}
s_cmp_eq_u32 {sSlM}, 1
s_cselect_b32 s76, {sLdR}, {hex(OOB)}
s_cselect_b32 s4, 256, {hex(OOB)}
{"" if OPT["bst"] else f"v_lshlrev_b32 {vLane}, 7, {vA}"}
v_and_b32 {vA}, 7, {vA}
v_lshlrev_b32 {vA}, 8, {vA}
s_add_u32 s77, s76, {CHUNK}
s_add_u32 s4, s4, {sFlR}""") + ([Op(f"buffer_load_dword {vB}, {vA}, {srdWS}, s4 offen sc1", "vm")] if OPT["ftch"] else [])
def mode_check(dbg):
    if OPT["bst"]: return lin(f"L_chkD:\nL_backD:\ns_mov_b32 {sSlM}, 1")
    return [WAIT(0, need_vm=[dbg])] + lin(f"""s_mov_b32 s3, 0
L_chkD:
v_readfirstlane_b32 s4, {vLane}
s_nop 3
s_lshr_b32 s5, s4, 4
s_and_b32 s5, s5, 0x0f0f0f0f
s_and_b32 s7, s4, 0x0f0f0f0f
s_add_u32 s5, s5, s7
s_mul_i32 s5, s5, 0x01010101
s_lshr_b32 s5, s5, 24
s_cmp_lg_u32 s5, 8
s_cbranch_scc1 L_spinD
L_backD:
s_lshl_b32 s5, {sXcc}, 3
{"s_mov_b32 s5, 0" if OPT["forceslow"] else ""}
s_cmp_eq_u32 s4, s5
s_cselect_b32 {sSlM}, 1, 7""")

def slow_path(placed, pendW0):
    vKo, vVo, vVo2, vKo2 = f"v{PV0+40}", f"v{PV0+41}", f"v{PV0+42}", f"v{PV0+43}"
    M = [f"v{PV0+36+t}" for t in range(3)]
    CN = [R("v", PV0 + 24 + 4*t, 4) for t in range(3)]
    Sx = [R("v", S0 + 4*t, 4) for t in range(3)]
    t_ = f"""
L_slow:
s_waitcnt vmcnt(0) lgkmcnt(0)
s_nop 7
v_mbcnt_lo_u32_b32 {vB}, -1, 0
v_mbcnt_hi_u32_b32 {vB}, -1, {vB}
v_and_b32 {vA}, 15, {vB}
v_lshrrev_b32 {vB}, 4, {vB}
v_lshlrev_b32 {vKo}, 8, {vA}
v_lshl_add_u32 {vKo}, {vB}, 4, {vKo}
s_and_b32 s4, {sWcol}, 128
s_xor_b32 s5, s4, 128
v_add_u32 {vKo2}, s5, {vKo}
v_add_u32 {vKo}, s4, {vKo}
v_lshlrev_b32 {vVo}, 10, {vB}
v_lshl_add_u32 {vVo}, {vA}, 1, {vVo}
v_add_u32 {vVo2}, 0x1000, {vVo}
s_add_u32 s4, {sHr}, {sHead}
s_and_b32 s4, s4, 3
s_lshl_b32 s4, s4, 17
s_mov_b32 s10, 0x80000
s_mov_b32 s14, 0x80000
s_add_u32 s5, s4, 0x20000
s_mov_b32 s6, s4
"""
    for t in range(3): t_ += f"v_mov_b32 {M[t]}, 0xff800000\n"
    t_ += "L_slow1:\n"
    for s in range(4): t_ += f"buffer_load_dwordx4 {FR(0, s)}, {vKo if s < 2 else vKo2}, {srdK}, s6 offen offset:{64*(s & 1)}\n"
    t_ += "s_waitcnt vmcnt(0)\n"
    for t in range(3):
        for s in range(4): t_ += f"v_mfma_f32_16x16x32_bf16 {Sx[t]}, {FR(0, s)}, {QV(s, t)}, {'0' if s == 0 else Sx[t]}\n"
    t_ += "s_nop 9\n"
    for t in range(3):
        t_ += f"v_max3_f32 {M[t]}, {M[t]}, v{S0+4*t}, v{S0+4*t+1}\nv_max3_f32 {M[t]}, {M[t]}, v{S0+4*t+2}, v{S0+4*t+3}\n"
    t_ += "s_add_u32 s6, s6, 0x1000\ns_cmp_lt_u32 s6, s5\ns_cbranch_scc1 L_slow1\n"
    for t in range(3):
        t_ += f"""v_mov_b32 {vA}, {M[t]}
s_nop 1
v_permlane32_swap_b32 {vA}, {M[t]}
s_nop 1
v_max_f32 {M[t]}, {vA}, {M[t]}
v_mov_b32 {vA}, {M[t]}
s_nop 1
v_permlane16_swap_b32 {vA}, {M[t]}
s_nop 1
v_max_f32 {M[t]}, {vA}, {M[t]}
"""
        for i in range(4): t_ += f"v_sub_f32 v{PV0+24+4*t+i}, 0, {M[t]}\n"
    for i in range(96): t_ += f"v_mov_b32 v{i}, 0\n"
    for i in range(12): t_ += f"v_accvgpr_write_b32 a{240+i}, 0\n"
    t_ += "s_mov_b32 s6, s4\nL_slow2:\n"
    for u in range(2):
        for s in range(4): t_ += f"buffer_load_dwordx4 {FR(0, s)}, {vKo if s < 2 else vKo2}, {srdK}, s6 offen offset:{64*(s & 1)}\n"
        t_ += "s_waitcnt vmcnt(0)\n"
        for t in range(3):
            for s in range(4): t_ += f"v_mfma_f32_16x16x32_bf16 {Sx[t]}, {FR(0, s)}, {QV(s, t)}, {CN[t] if s == 0 else Sx[t]}\n"
        t_ += "s_nop 9\n"
        for i in range(12): t_ += f"v_exp_f32 v{S0+i}, v{S0+i}\n"
        t_ += "s_nop 0\n"
        for t in range(3):
            for j in range(2): t_ += f"v_cvt_pk_bf16_f32 {PBr(0, 0, t, 2*u + j)}, v{S0+4*t+2*j}, v{S0+4*t+2*j+1}\n"
        if u == 0: t_ += "s_mov_b32 s7, s6\ns_add_u32 s6, s6, 0x1000\n"
    f = FA0 + 16
    for dt in range(8):
        for j in range(8):
            t_ += f"buffer_load_ushort v{FA0 + j}, {vVo if j < 4 else vVo2}, {srdV}, s7 offen offset:{(j & 3)*256 + 32*dt}\n"
        t_ += "s_waitcnt vmcnt(0)\n"
        for j in range(4): t_ += f"v_lshl_or_b32 v{f + j}, v{FA0 + 2*j + 1}, 16, v{FA0 + 2*j}\n"
        t_ += "s_nop 1\n"
        for t in range(3): t_ += f"v_mfma_f32_16x16x32_bf16 {OA(dt, t)}, v[{f}:{f+3}], {PB(0, 0, t)}, {OA(dt, t)}\n"
    for t in range(3): t_ += f"v_mfma_f32_16x16x32_bf16 {LA(t)}, {ONES}, {PB(0, 0, t)}, {LA(t)}\n"
    t_ += "s_add_u32 s6, s6, 0x1000\ns_cmp_lt_u32 s6, s5\ns_cbranch_scc1 L_slow2\ns_nop 9\n"
    for t in range(3): t_ += f"v_accvgpr_read_b32 {vRL[t]}, a{240+4*t}\n"
    for t in range(3): t_ += f"v_rcp_f32 {vRL[t]}, {vRL[t]}\n"
    t_ += "s_nop 0\n"
    for o in placed: t_ += o.text + "\n"
    for o in pendW0: t_ += o.text + "\n"
    t_ += "s_waitcnt lgkmcnt(0)\n"
    t_ += "s_branch L_join\n"
    return lin(t_)

def spin(lbl, back, reg, off_v, srd, soff, exp):
    return lin(f"""{lbl}:
s_mov_b32 s3, 0
{lbl}_l:
buffer_load_dword {reg}, {off_v}, {srd}, {soff}{' offen' if off_v != 'off' else ''} sc1
s_add_u32 s3, s3, 1
s_waitcnt vmcnt(0)
v_cmp_ne_u32 vcc, {exp}, {reg}
s_cmp_gt_u32 s3, 0x10000
s_cbranch_scc1 {back}
s_nop 2
s_cbranch_vccnz {lbl}_l
s_branch {back}""")

def pad_linear(ops):
    out = []
    for o in ops:
        need = 0
        for (p, n) in o.sdeps:
            if p in out: need = max(need, n - sum(x.w for x in out[out.index(p)+1:]))
        if need > 0:
            nop = Op(f"s_nop {need-1}", "x"); nop.w = need; out.append(nop)
        out.append(o)
    return out

def tail(G):
    X = (lambda: stamp()) if OPT["stamps"] == 3 else (lambda: [])
    def sums(set_, loads):
        o0, p0, s0_ = reduce_ops(set_)
        return [WAIT(0, need_vm=loads)] + pad_linear(o0 + p0 + [s0_])
    o = lin("\n".join(scal_B()) + "\ns_nop 1")
    stores = []
    if OPT["wb"] & 2: o += lin(f"s_cmp_lg_u32 {sG}, 0\ns_cbranch_scc1 L_nwa@L\ns_cmp_lg_u32 {sWave}, 3\ns_cbranch_scc1 L_nwa@L\nbuffer_wbl2 sc1\nL_nwa@L:")
    for (cv, sa, st) in pack_store(1):
        o += cv + [sa, st]; stores.append(st)
    if True:
        o += X() + sums(1, G.LD[1]) + X()
        o += [WAIT(0, need_vm=stores)] + X() + lin("s_barrier") + sig_ops()
        o += lin("s_branch L_spinU@L\nL_backU@L:") + X()
        l7 = red_loads(0); o += l7
        if OPT["wb"] & 1: o += lin(f"s_cmp_lg_u32 {sG}, {7 if OPT['wb'] & 4 else 0}\ns_cbranch_scc1 L_nwb@L\ns_cmp_lg_u32 {sWave}, 3\ns_cbranch_scc1 L_nwb@L\nbuffer_wbl2 sc1\nL_nwb@L:")
        o += lin(f"s_add_u32 {sOut}, {sOutR}, {sOc}")
        if OPT["stamps"] == 3: o += lin("s_waitcnt vmcnt(0)") + X()
        o += sums(0, l7) + X() + X()
    return o

def main():
    R2 = build_R2()
    placed = [o for o in R2.epi if o.gap is not None]; placed.sort(key=lambda o: o.pos)
    R1 = build_R1(R2.left)
    R1b = {h: build_R1b(h) for h in (1, 2, 3)}
    R1f = build_R1f()
    global G_LD, G_LD0
    G0 = build_G(True, R2.left)
    G_LD0 = G0.LD[1]; G_LD = [red_loads(0), red_loads(1)]
    G = build_G()
    bind_ext(R1, [R2.pendW0]); bind_ext(R2, [R1f.pend] + [R1b[h].pend for h in R1b]); bind_ext(G0, [R2.pendW0]); bind_ext(G, [G0.pend, G.pend])
    for h in R1b: bind_ext(R1b[h], [R1.pend])
    for w in R1f.xw: w.text = 's_nop 0'
    pro, zst = prologue(R1f)
    for j, t in enumerate(NEXT): TILE[f'G{j}'] += TILE[t]
    p0 = glue0(zst) + lin("s_branch L_R2")
    sel = lin(f"s_cmp_eq_u32 {sHead}, 2\ns_cbranch_scc1 L_v2\ns_cmp_eq_u32 {sHead}, 3\ns_cbranch_scc1 L_v3")
    v1 = R1b[1].out + lin("s_branch L_R2")
    v2 = lin("L_v2:") + R1b[2].out + lin("s_branch L_R2")
    if OPT["etch"]:
        fl = ["", "", " sc1"][OPT["etch"]]
        v3 = lin("L_v3:") + mode_check(getattr(R1b[2], "dbg", None)) + touch_setup() + \
             [Op(f"buffer_load_dword {vB}, {vLane}, {srdWS}, {x} offen{fl}", "vm") for x in ("s76", "s77")] + R1b[3].out + code_pf("L_pc2", "L_g3", "L_codeend", 15, 76) + \
             lin(f"s_mov_b32 s76, {hex(OOB)}\ns_mov_b32 s77, {hex(OOB)}")
    else:
        v3 = lin("L_v3:") + R1b[3].out + mode_check(getattr(R1b[2], "dbg", None)) + code_pf("L_pc2", "L_g3", "L_codeend", 15, 76) + touch_setup()
    g2 = lin(f"s_or_b64 {sBad}, {sBad}, vcc\ns_cbranch_scc1 L_slow\nL_join:\ns_add_u32 {sHead}, {sHead}, 1\ns_cmp_lt_u32 {sHead}, 4")
    g3 = lin(f"s_cmp_eq_u32 {sSlM}, 7\ns_cbranch_scc1 L_G0S")
    g4 = lin(f"s_mov_b32 {sC[0]}, {sC[2]}\ns_add_u32 {sC[1]}, {sC[0]}, 128\ns_and_b32 {sC[1]}, {sC[1]}, 0x3ff\ns_add_u32 {sC[2]}, {sC[1]}, 128\ns_and_b32 {sC[2]}, {sC[2]}, 0x3ff\ns_cmp_lt_u32 {sIt}, 8")
    T = tail(G)
    sA, sB_, sC_, sD_, sE = stamp(1 if OPT['stamps'] in (1, 3) else 0), stamp(), stamp(), stamp(), stamp(2)
    if OPT["bst"]:
        def dump():
            return lin(f"v_mbcnt_lo_u32_b32 {vA}, -1, 0\nv_mbcnt_hi_u32_b32 {vA}, -1, {vA}\nv_lshlrev_b32 {vA}, 2, {vA}") + [Op(f"buffer_store_dword {vLane}, {vA}, {srdWS}, s101 offen", "vm")] + lin("s_add_u32 s101, s101, 256\ns_nop 1")
        sA = lin(f"s_lshl_b32 s101, s2, 2\ns_add_u32 s101, s101, {sWave}\ns_lshl_b32 s101, s101, 12\ns_add_u32 s101, s101, {hex(DUMP_BASE)}")
        sC_ = dump(); sD_ = dump()
    tr = pro + sA
    for hd in range(4):
        tr += [R1f.out + p0, R1.out + sel + v1, R1.out + sel + v2, R1.out + sel + v3][hd] + sB_ + R2.out + g2 + sC_
    tr += g3
    post = []
    for it in range(3): post += G.out + g4 + sD_
    post += T
    resolve_waits(tr + [x for x in G0.out if x.tag != "touch"] + g4 + sD_ + post, TILE)
    tr += G0.out + g4 + sD_ + post
    resolve_waits(tr, TILE)
    errs = check(tr, "main")
    for e in errs[:20]: print(e, file=sys.stderr)
    assert not errs
    for rg in (R1f, R1, R1b[1], R1b[3], R2, G0, G): print(rg.name, "overfull:", rg.overlog, file=sys.stderr)
    out = [open(os.path.join(os.path.dirname(os.path.abspath(__file__)), "header.txt")).read().rstrip()]
    out.append("; @launch grid=(256,1,1) block=(256,1,1) lds=163840")
    out.append(f""".amdgcn_target "amdgcn-amd-amdhsa--gfx950"
.text
.globl {KN}
.p2align 8
.type {KN},@function
{KN}:""")
    def emit(ops, sc="", lb=""):
        for o in ops:
            if OPT["nobar"] and o.text == "s_barrier" and o.kind == "w": out.append("s_nop 0"); continue
            if OPT["nolg"] and o.kind == "w" and o.text.startswith("s_waitcnt") and "vmcnt" not in o.text: out.append("s_nop 0"); continue
            if OPT["nods"] and o.kind == "ds": continue
            if OPT["novalu"] and o.kind in ("v4", "v8") and o.gap is not None and ("exp" in o.text or "cvt" in o.text or "mul" in o.text or "perm" in o.text or "and" in o.text or "lshl" in o.text or "add_f32" in o.text): continue
            if OPT["nodma"] and o.text.endswith(" lds"): out.append("s_nop 0"); continue
            if OPT["nored"] and " sc1" in o.text and "dwordx4" in o.text: out.append("s_nop 0"); continue
            if getattr(o, "pre", None): out.append(o.pre)
            out.append(o.text.replace("@SC", sc).replace("@L", lb))
    def mark(n):
        return lin("s_memrealtime s[2:3]\ns_waitcnt lgkmcnt(0)\ns_sub_u32 s75, s2, s73") if OPT["dbl"] == n else []
    def idle(n, tag):
        if not n: return []
        return lin(f"""s_memrealtime s[2:3]
s_waitcnt lgkmcnt(0)
s_mov_b32 s5, s2
L_idle{tag}:
s_sleep 2
s_memrealtime s[2:3]
s_waitcnt lgkmcnt(0)
s_sub_u32 s4, s2, s5
s_cmp_lt_u32 s4, {n}
s_cbranch_scc1 L_idle{tag}""")
    def ex(n): return (stamp(2) + lin("s_endpgm")) if OPT["exitat"] == n else []
    emit(pro + mark(3) + idle(OPT['idle0'], 'a') + sA + ex(1) + R1f.out + mark(4) + p0)
    out.append("L_loop:"); emit(R1.out + sel + v1 + v2 + v3); out.append("L_R2:"); emit(idle(OPT['idle1'], 'b') + sB_ + R2.out + g2 + sC_)
    if OPT["dbl"] >= 10:
        emit(lin(f"s_cmp_lg_u32 {sHead}, {OPT['dbl'] - 9}\ns_cbranch_scc1 L_nomark") + mark(OPT["dbl"]) + lin(f"L_nomark:\ns_cmp_lt_u32 {sHead}, 4"))
    if OPT["stamps"] or OPT["bst"]: out.append(f"s_cmp_lt_u32 {sHead}, 4")
    out.append("s_cbranch_scc1 L_loop")
    out.append('L_g3:'); emit(mark(5) + ex(3) + g3)
    for sc, lb in ((NTST, ""), (" sc1", "S")):
        out.append(f"L_G0{lb}:"); emit([(Op("s_nop 0", "x") if (lb and x.tag == "touch") else x) for x in G0.out] + g4 + sD_, sc, lb)
        out.append(f"L_G{lb}:"); emit(G.out + g4 + sD_, sc, lb)
        if OPT["stamps"] or OPT["bst"]: out.append(f"s_cmp_lt_u32 {sIt}, 8")
        out.append(f"s_cbranch_scc1 L_G{lb}")
        emit(T + sE, sc, lb)
        if OPT["dbl"]:
            emit(lin(f"""s_waitcnt vmcnt(0)
s_memrealtime s[2:3]
s_waitcnt lgkmcnt(0)
{"s_sub_u32 s4, s2, s73" if OPT["dbl"] == 1 else ("s_mov_b32 s4, 500" if OPT["dbl"] == 2 else "s_mul_i32 s4, s75, 4")}
s_min_u32 s4, s4, 40000
s_mov_b32 s5, s2
L_dbl{lb}:
s_sleep 4
s_memrealtime s[2:3]
s_waitcnt lgkmcnt(0)
s_sub_u32 s6, s2, s5
s_cmp_lt_u32 s6, s4
s_cbranch_scc1 L_dbl{lb}"""))
        out.append("s_endpgm")
        if not lb: out.append("L_codeend:")
        for nm in ("G0", "G1", "G1F", "U"): emit(spin(f"L_spin{nm}{lb}", f"L_back{nm}{lb}", vPr, vPo, srdWS, sPoll, sExp))
    emit(lin(f"""L_spinD:
s_add_u32 s3, s3, 1
s_cmp_gt_u32 s3, 0x10000
s_cbranch_scc1 L_backD
s_lshl_b32 {sTmp}, {sB}, 2
buffer_load_dword {vLane}, off, {srdD}, {sTmp} sc1
s_waitcnt vmcnt(0)
s_branch L_chkD"""))
    emit(slow_path(placed, R2.pendW0))
    out.append(f"""s_endpgm
.section .rodata,"a"
.p2align 6
.amdhsa_kernel {KN}
  .amdhsa_next_free_vgpr 512
  .amdhsa_next_free_sgpr 102
  .amdhsa_accum_offset 256
  .amdhsa_group_segment_fixed_size 0
  .amdhsa_kernarg_size 64
  .amdhsa_user_sgpr_count 2
  .amdhsa_user_sgpr_kernarg_segment_ptr 1
  .amdhsa_system_sgpr_workgroup_id_x 1
.end_amdhsa_kernel""")
    print("\n".join(out))
main()
```

```python
import sys, os, struct, math
sys.path.insert(0, os.path.dirname(os.path.abspath(__file__)))
from sched import *
import ringplan

OPT = dict(stamps=0, nt=2, mapping=48, nodma=0, samekv=0, nored=0, ntw=0, ntx=0, bst=0, lrate=3, lburst=4, rsp=8, rk=2, i0=-170, dk=75, ksp=4, wsp=5, gst=4, gld=4, gsig=1, gpoll=108, gsum=8, gdma=40, glc=0, rot=1, gout=189, gdsp=5, lag=1, forceslow=0, ntst=0, pf=128, hrot=3, hswap=1, plan=0, wstrict=1, rspw=10, samew=0, samex=0, krot=2, osc=0, idle0=0, idle1=0, exitat=0, wb=0, dbl=0, nperm=1, bdw=2, bda=2, vlate=1, tch=0, gtch=0, kvlate=4, tg=0, etch=0, gl3=1, ftch=1, tlb=2, fsp=2, fkv=5, fgap=7, nobar=0, nolg=0, nods=0, novalu=0)
for a in sys.argv[1:]:
    k, v = a.split("="); assert k in OPT, k; OPT[k] = float(v) if "." in v else int(v)
Region.LDSRATE = OPT["lrate"]; Region.LDSBURST = OPT["lburst"]
KN = "standalone__mha_block_cached__near_ridge_kernel"

def OA(mt, t): return R("v", (mt*3 + t)*4, 4)
def OAr(mt, t, i): return f"v{(mt*3 + t)*4 + i}"
QV0, PV0, S0, FA0 = 96, 144, 192, 204
def QV(s, t): return R("v", QV0 + (s*3 + t)*4, 4)
def QVr(s, t, i): return f"v{QV0 + (s*3 + t)*4 + i}"
def PB(buf, sg, t): return R("v", PV0 + 24*buf + (sg*3 + t)*4, 4)
def PBr(buf, sg, t, i): return f"v{PV0 + 24*buf + (sg*3 + t)*4 + i}"
def OP(s, t): return R("v", PV0 + (s*3 + t)*4, 4)
def OPr(s, t, i): return f"v{PV0 + (s*3 + t)*4 + i}"
def FR(buf, f, half=None):
    b = FA0 + 16*buf + 4*f
    return R("v", b, 4) if half is None else R("v", b + 2*half, 2)
vK = ["v236", "v237", "v238", "v239"]
vVb, vWb, vT = "v240", "v241", ["v242", "v243"]
vDK, vDV, vDW, vDX, vC = "v244", "v245", "v246", "v247", "v248"
vRL = ["v249", "v250", "v251"]
vLane, vDWo, vA, vB = "v252", "v253", "v254", "v255"
def XA(s, t): return R("a", (s*3 + t)*4, 4)
ZB = {0: 144, 1: 192, 2: 0}
def ZA(h, s, t): return R("a", ZB[h] + (s*3 + t)*4, 4)
def LA(t): return R("a", 240 + 4*t, 4)
ONES = "a[252:255]"

srdK, srdV, srdW, srdX, srdWS, srdO, srdD = (f"s[{i}:{i+3}]" for i in (8, 12, 16, 20, 24, 28, 32))
sW1k, sXcc, sRot, sOc = "s36", "s37", "s38", "s39"
sC = ["s40", "s41", "s42"]
sDg = ["s43", "s44", "s45", "s46"]
sIdx = "s99"
sH = ["s93", "s95", "s96", "s97"]; sHr = "s98"; sSw = "s3"
sKoff, sVoff, sWcol = "s47", "s48", "s49"
sD = [None, "s50", "s51", "s52"]
sDY = [None, "s53", "s54", "s55"]
sT = ["s56", "s57", "s58", "s59"]
sW4k, sHead, sScale, sWave, sB, sG, sLo, sHi = (f"s{i}" for i in range(60, 68))
sBad = "s[84:85]"
sN = [f"s{i}" for i in range(86, 92)]
sTmp = "s100"
sIt, sSt, sSig, sExp, sLd, sLd2, sOut = (f"s{i}" for i in range(86, 93))
sStR, sLdR, sFlR, sOutR, sSlM, sLdMin, sGate = (f"s{i}" for i in range(68, 75))
sPoll = sSig; sPo = "s99"; sTk, sTh, sTo = "s43", "s44", "s45"
sU = ["s4", "s5"]; sMask = "s6"
OOB = 0x40000000
FLAG_BASE = 0x3040000
STAMP_BASE = 0x3100000
DUMP_BASE = 0x4000000
WS_BYTES = 0x8000000 if OPT["bst"] else 0x3200000
CHUNK = 196608
ORD = [(0,0),(0,1),(0,2),(1,0),(0,3),(1,3),(1,1),(1,2)]
ORDG = [(j >> 2, j & 3) for j in range(8)]
NTKV = {"K": " nt" if OPT["nt"] in (1, 2) else "", "V": " nt" if OPT["nt"] in (1, 3) else ""}
NTW = " nt" if OPT["ntw"] else ""
NTX = " nt" if OPT["ntx"] else ""
def wq_lit(step): return ORD[step][1]*0x100000 + ORD[step][0]*128
def wo_lit(m): return (m & 3)*0x20000 + (m >> 2)*128

def S(text, rd=(), wr=(), **kw): return Op(text, "s", rd=rd, wr=wr, **kw)
def V(text, rd=(), wr=(), **kw): return Op(text, "v4", rd=rd, wr=wr, **kw)
def V8(text, rd=(), wr=(), **kw): return Op(text, "v8", rd=rd, wr=wr, **kw)
def WAIT(d, need_ds=(), need_vm=(), lg0=False, late=3, e=-1):
    o = Op("s_waitcnt ?", "w", e=e, d=d, late=late, deps=[(x, 1) for x in need_ds])
    o.need_ds, o.need_vm, o.lg0 = list(need_ds), list(need_vm), lg0
    return o
def lin(text):
    return [Op(l.strip(), "x") for l in text.strip().split("\n") if l.strip()]

class Ctx: pass
C = Ctx(); C.grp = 0

ringplan.setb(OPT["bdw"], OPT["bda"]); BDW, BDA = OPT["bdw"], OPT["bda"]
wI = {"W0": -210, "W1": -135, "W2": -55, "W3": 36 + BDW, "W4": 78, "W5": 112, "W6": 162, "W7": 186}
xI = {"Xa": -430, "Xb": -350, "Xc": -280}
PLANS = {
 5: {'Xa': -430, 'Xb': -350, 'Xc': -280, 'W0': -210, 'W1': -135, 'W2': -55, 'W3': 38, 'W4': 78, 'W5': 112, 'W6': 162, 'W7': 186, 'K0': -170, 'K1': -95, 'V0': -20, 'K2': 55, 'V1': 140, 'K3': 290, 'V2': 345, 'K4': 400, 'V3': 460, 'K5': 525, 'V4': 590, 'K6': 660, 'V5': 730, 'K7': 805, 'V6': 880, 'V7': 955},
 6: {'Xa': -430, 'Xb': -350, 'Xc': -280, 'W0': -210, 'W1': -135, 'W2': -55, 'W3': 38, 'W4': 78, 'W5': 112, 'W6': 162, 'W7': 186, 'K0': -170, 'K1': -95, 'V0': -20, 'K2': 135, 'V1': 290, 'K3': 335, 'V2': 385, 'K4': 435, 'V3': 490, 'K5': 545, 'V4': 605, 'K6': 665, 'V5': 730, 'K7': 805, 'V6': 880, 'V7': 955},
 3: {'Xa': -514, 'Xb': -444, 'Xc': -297, 'W0': -229, 'W1': -155, 'W2': -63, 'W3': 8, 'W4': 38, 'W5': 82, 'W6': 110, 'W7': 180, 'K0': -187, 'K1': -112, 'V0': -38, 'K2': 58, 'V1': 141, 'K3': 216, 'V2': 290, 'K4': 364, 'V3': 436, 'K5': 507, 'V4': 579, 'K6': 651, 'V5': 721, 'K7': 794, 'V6': 863, 'V7': 940},
 4: {'Xa': -514, 'Xb': -444, 'Xc': -297, 'W0': -229, 'W1': -155, 'W2': -63, 'W3': 8, 'W4': 38, 'W5': 82, 'W6': 110, 'W7': 180, 'K0': -180, 'K1': -108, 'V0': -36, 'K2': 58, 'V1': 141, 'K3': 216, 'V2': 290, 'K4': 364, 'V3': 438, 'K5': 512, 'V4': 586, 'K6': 660, 'V5': 734, 'K7': 808, 'V6': 878, 'V7': 950},
 1: {'Xa': -510, 'Xb': -430, 'Xc': -352, 'W0': -205, 'W1': -106, 'W2': -26, 'W3': 5, 'W4': 37, 'W5': 98, 'W6': 161, 'W7': 190, 'K0': -243, 'K1': -157, 'V0': -60, 'K2': 64, 'V1': 130, 'K3': 221, 'V2': 290, 'K4': 354, 'V3': 415, 'K5': 477, 'V4': 593, 'K6': 533, 'V5': 650, 'K7': 728, 'V6': 809, 'V7': 894},
 2: {'Xa': -496, 'Xb': -413, 'Xc': -333, 'W0': -252, 'W1': -103, 'W2': -30, 'W3': 5, 'W4': 38, 'W5': 99, 'W6': 130, 'W7': 188, 'K0': -210, 'K1': -148, 'V0': -54, 'K2': 67, 'V1': 155, 'K3': 221, 'V2': 291, 'K4': 349, 'V3': 409, 'K5': 473, 'V4': 534, 'K6': 598, 'V5': 662, 'K7': 829, 'V6': 747, 'V7': 904},
}
if OPT["plan"]: wI = PLANS[OPT["plan"]]; xI = {}
ISS, SLOT, _c, NEED = ringplan.plan(OPT["i0"], OPT["dk"], wI, xI)
assert SLOT is not None
SPR = {}
for t in ISS:
    m = ISS[t] % 1200
    sp = OPT["ksp"] if t[0] in "KV" else OPT["wsp"]
    if 228 <= m < 288: ISS[t] += 290 - m; m = 290
    SPR[t] = min(sp, ((240 if m < 288 else 1200) - 5 - m)//3); assert SPR[t] >= 1
BASE = {}
for ch in "KVW":
    for i, b in enumerate(ringplan.bases([SLOT[f"{ch}{i}"] for i in range(8)])[1]): BASE[f"{ch}{i}"] = b
XB = min(SLOT["Xa"], SLOT["Xb"], SLOT["Xc"]); assert max(SLOT["Xa"], SLOT["Xb"], SLOT["Xc"]) - XB <= 3
NEXT = sorted([t for t in ISS if ISS[t] < 0 and t[0] in "WX"], key=lambda t: (t != "W0", ISS[t]))
print("plan:", ISS, SLOT, BASE, NEXT, file=sys.stderr)
TILE = {}
def lit(x): return hex(x & 0xffffffff)
def rebase(rg, typ, old, new, e, d, after=()):
    if old == new: return []
    regs_ = vK if typ == "K" else [vVb if typ == "V" else vWb]
    return [rg.F(V(f"v_add_u32 {r}, {lit((new - old)*16384)}, {r}", rd=[r], wr=[r], e=e, d=d, deps=[(a, 0) for a in after if a])) for r in regs_]
def wq_t0(dst, step):
    hf, dg = ORD[step]
    return [f"s_add_u32 {dst}, {sWcol}, {sDg[dg]}"] + ([f"s_xor_b32 {dst}, {dst}, 128"] if hf else [])
def x_t0(dst, a, q):
    return [f"s_lshr_b32 {dst}, {sDg[q]}, 12"] + ([f"s_add_u32 {dst}, {dst}, {a*65536}"] if a else [])
def tile_src(spec):
    k = spec[0]
    if k == "W": return srdW, vDW, wq_t0(sT[0], spec[1]), sD, NTW
    if k == "C": return srdW, vDW, [f"s_add_u32 {sT[0]}, {sC[spec[1]]}, {sH[spec[2]]}"], sD, NTW
    if k == "N": return srdW, vDW, [f"s_mov_b32 {sT[0]}, {sN[spec[1]]}"], sD, NTW
    if k == "Y": return srdX, vDX, [f"s_mov_b32 {sT[0]}, {sN[spec[1]]}"], sDY, NTX
    if k == "X": return srdX, vDX, x_t0(sT[0], spec[1], spec[2]), sDY, NTX
def add_dmas(rg, items):
    ev = []
    for (name, spec, slot, e, sp, bar) in items:
        for i in range(4 if spec[0] != "T" else 2): ev.append((e + sp*i, e, i, name, spec, slot, bar))
    ev.sort(key=lambda x: (x[0], x[1]))
    prev = None; cur = None; wopen = None; ts = None; lastw = None; m0 = None
    for (t, e0, i, name, spec, slot, bar) in ev:
        deps = []
        if bar is not None: deps.append((bar, 0))
        if prev is not None: deps.append((prev, 1))
        if cur != slot:
            m0 = rg.F(Op(f"s_add_u32 m0, {sW4k}, {slot*16384}", "t", wr=["m0"], e=t - 6, deps=([(prev, 1)] if prev else []))); cur = slot
        deps.append((m0, 1))
        if spec[0] == "T":
            o = rg.F(Op(f"buffer_load_dword {vLane}, {srdWS}, {('s76', 's77')[i]} offen lds", "vm", rd=[vLane, "m0"], e=t, d=t + 4, deps=deps))
        elif spec[0] in "KV":
            so, vo, srd = (sKoff, vDK, srdK) if spec[0] == "K" else (sVoff, vDV, srdV)
            st = rg.inc.get(spec[0])
            if st is not None and i == 0: deps.append((st, 0))
            o = rg.F(Op(f"buffer_load_dwordx4 {vo}, {srd}, {so} offen offset:{i*1024}{NTKV[spec[0]]} lds", "vm", rd=[vo, so, "m0"], e=t, d=t + 4, deps=deps))
            if i == 3:
                inc = rg.F(Op(f"s_add_u32 {so}, {so}, 0x4000", "t", rd=[so], wr=[so], deps=[(o, 1)], d=t + 12))
                if name[1] == "7":
                    inc = rg.F(Op(f"s_and_b32 {so}, {so}, 0x7ffff", "t", rd=[so], wr=[so], deps=[(inc, 0)], d=t + 14))
                    nr = "s10" if name[0] == "K" else "s14"
                    rg.F(S(f"s_cmp_eq_u32 {sHead}, 3", deps=[(o, 1)])); inc2 = rg.F(S(f"s_cselect_b32 {nr}, 0, {nr}", d=t + 20))
                rg.inc[spec[0]] = inc
        else:
            srd, vo, t0, dl, fl = tile_src(spec)
            if i == 0:
                assert wopen is None, "W-type tiles may not interleave"
                wopen = name
                tt = rg.F(Op(t0[0], "t", wr=[sT[0]], e=t - 12, deps=([(lastw, 1)] if lastw else [])))
                for x in t0[1:]: tt = rg.F(Op(x, "t", wr=[sT[0]], deps=[(tt, 0)]))
                ts = [tt]
                ts += [rg.F(Op(f"s_add_u32 {sT[j]}, {sT[0]}, {dl[j]}", "t", wr=[sT[j]], deps=[(ts[0], 0)])) for j in (1, 2, 3)]
            o = rg.F(Op(f"buffer_load_dwordx4 {vo}, {srd}, {sT[i]} offen offset:{i*1024}{fl} lds", "vm", rd=[vo, sT[i], "m0"], e=t, d=t + 4, deps=deps + [(ts[i], 0)]))
            if i == 3: wopen = None; lastw = o
        if i == 3: TILE.setdefault(name, []).append(o)
        if i == 0: rg.first_dma[name] = o
        prev = o
    rg.lastw = lastw
def head_dmas(rg, lo, hi):
    items = []
    for t in ISS:
        m = ISS[t] % 1200
        if not (lo <= m < hi): continue
        spec = (t[0],) if t[0] in "KV" else (("W", int(t[1])) if ISS[t] >= 0 else (("N" if t[0] == "W" else "Y"), NEXT.index(t)))
        cands = [g for g in rg.bars if g + lo <= m and any(SLOT[p] == SLOT[t] and NEED[p][1] % 1200 == g + lo for p in NEED)]
        bar = rg.bars[max(cands)] if cands else None
        items.append((t, spec, SLOT[t], m - lo, SPR[t], bar))
    if hi == 1200 and OPT['tg']:
        tg = OPT["tg"] + lo
        def free(x): return not any(SLOT[p] == x and any(ISS[p] + sh <= tg + 30 and tg < NEED[p][1] + sh for sh in (0, 1200)) for p in NEED)
        x = [x for x in range(10) if free(x)][0]
        cands = [g for g in rg.bars if g + lo <= tg and any(SLOT[p] == x and NEED[p][1] % 1200 == g + lo for p in NEED)]
        items.append(("T", ("T",), x, OPT["tg"], 12, rg.bars[max(cands)] if cands else None))
    add_dmas(rg, items)
def dma_linear(name, spec, slot):
    ops = lin(f"s_add_u32 m0, {sW4k}, {slot*16384}")
    if spec[0] in "KV":
        so, vo, srd = (sKoff, vDK, srdK) if spec[0] == "K" else (sVoff, vDV, srdV)
        d = [Op(f"buffer_load_dwordx4 {vo}, {srd}, {so} offen offset:{i*1024}{NTKV[spec[0]]} lds", "vm") for i in range(4)]
        ops += lin("s_nop 0") + d + lin(f"s_add_u32 {so}, {so}, 0x4000")
    else:
        srd, vo, t0, dl, fl = tile_src(spec)
        d = [Op(f"buffer_load_dwordx4 {vo}, {srd}, {sT[i]} offen offset:{i*1024}{fl} lds", "vm") for i in range(4)]
        ops += lin("\n".join(t0) + "\n" + "\n".join(f"s_add_u32 {sT[i]}, {sT[0]}, {dl[i]}" for i in (1, 2, 3))) + d
    TILE.setdefault(name, []).append(d[-1])
    return ops
def reads_X(rg, addr, slots, dst, e, d, deps, step=1):
    ops = []
    for t in range(3):
        for s in range(4):
            r_, imm = addr(slots[t], s)
            ops.append(rg.F(Op(f"ds_read_b128 {dst(s, t)}, {r_} offset:{imm}", "ds", rd=[r_], wr=[dst(s, t)], e=e, d=d + len(ops)*step,
                               deps=list(deps) + ([(ops[-1], 0)] if ops else []))))
    return ops

def new_region(name):
    rg = Region(name); rg.nst = {"R1": 0, "R1f": 0, "R2": 6, "G": 0, "G0": 0}.get(name, 5)
    ext_waits(rg)
    if OPT['wstrict']: rg.ldspol = (lambda k: (4, 3)) if name != 'R2' else (lambda k: (4, 3) if k < 90 else (OPT['lrate'], OPT['lburst']))
    rg.tuse = {0: [], 1: []}; rg.bars = {}; rg.inc = {}; rg.first_dma = {}; rg.wq = bool(OPT["nperm"]) and name[0] != "G"
    return rg

def xor_addr(rg, base, k, ti, e, d, after=()):
    if k == 0: return base, None
    deps = [(x, 0) for x in rg.tuse[ti]] + [(a, 0) for a in after]
    o = rg.F(V(f"v_xor_b32 {vT[ti]}, {k*32}, {base}", rd=[base], wr=[vT[ti]], e=e, d=d, deps=deps))
    rg.tuse[ti] = []
    return vT[ti], o
def reads_W(rg, so, mt, buf, e, deps=(), ups=(), rsp=None):
    if rg.wq:
        if mt == 2: a, xo = xor_addr(rg, vWb, 2, 0, e - 8, e, ups)
        else: a, xo = (vWb if mt < 2 else vT[0]), None
        so += 8*(mt & 1)
    else: a, xo = xor_addr(rg, vWb, mt, mt & 1, e - 8, e, ups)
    dp = list(deps) + ([(xo, 1)] if xo else [(u, 1) for u in ups])
    ops = []
    for s in range(4):
        for p in range(2):
            ops.append(rg.F(Op(f"ds_read_b64_tr_b16 {FR(buf, s, p)}, {a} offset:{so + s*4096 + p*2048}", "ds", rd=[a], wr=[FR(buf, s, p)],
                               e=e, d=min(e + 1 + len(ops)*(rsp or OPT['rspw' if OPT['wstrict'] else 'rsp'])//8, e + 9), deps=dp + ([(ops[-1], 0)] if ops else []))))
    if rg.wq:
        if mt >= 2: rg.tuse[0] = ops
    elif xo: rg.tuse[mt & 1] = ops
    rg.lastWr = ops
    return ops, xo
def reads_K(rg, so, u, buf, e, deps=(), ups=()):
    ops = []
    for s in range(4):
        ops.append(rg.F(Op(f"ds_read_b128 {FR(buf, s)}, {vK[s]} offset:{so + u*1024}", "ds", rd=[vK[s]], wr=[FR(buf, s)],
                           e=e, d=e + 3 + len(ops)*OPT['rk'], deps=list(deps) + [(x, 1) for x in ups] + ([(ops[-1], 0)] if ops else []))))
    return ops
def reads_V(rg, so, dp_, buf, e, deps=(), ups=(), late=0):
    ops = []; xs = []
    for k in range(2):
        dt = 2*dp_ + k
        a, xo = xor_addr(rg, vVb, dt, k, e - 10, e + 4*k, ups)
        if xo: xs.append(xo)
        dd = list(deps) + ([(xo, 1)] if xo else [(u, 1) for u in ups])
        mine = []
        for sg in range(2):
            for p in range(2):
                o = rg.F(Op(f"ds_read_b64_tr_b16 {FR(buf, 2*k + sg, p)}, {a} offset:{so + sg*2048 + p*1024}", "ds", rd=[a], wr=[FR(buf, 2*k + sg, p)],
                            e=e, d=(e + 2 + len(ops)*OPT['rsp']//8) if not late else (e + 3 + 2*len(ops) if k == 0 else e + 5 + (len(ops)*5)//4), deps=dd + ([(ops[-1], 0)] if ops else [])))
                ops.append(o); mine.append(o)
        if xo: rg.tuse[k] = mine
    return ops, xs

def barrier(rg, gap, last_reads, tiles, extra=(), lg0=True, st=True):
    w = rg.F(WAIT(gap - 1, need_ds=last_reads, need_vm=list(tiles) + list(extra), lg0=lg0, late=1))
    w.deps += [(x, 1) for x in extra if x in rg.fill]
    b = rg.F(Op("s_barrier", "w", e=gap, d=gap, deps=[(w, 1)])); rg.bars[gap] = b
    if OPT["bst"] and st:
        w.pre = "s_memtime s[2:3]"
        i = rg.nst; rg.nst += 1
        rg.F(V(f"v_writelane_b32 {vLane}, s2, {i}", e=gap + 1, d=gap + 8))
    return b
def xstamp(rg, gap, idx, dep):
    if OPT["bst"] < 2: return
    w = rg.F(Op("s_memtime s[2:3]\ns_waitcnt lgkmcnt(0)", "w", e=gap, d=gap, deps=[(dep, 1)]))
    rg.F(V(f"v_writelane_b32 {vLane}, s2, {idx}", deps=[(w, 0)], d=gap))
def ext_waits(rg):
    rg.xw = []
    for d in (-1, 1):
        w = WAIT(d, late=1); w.e = d; rg.F(w); rg.xw.append(w)
def bind_ext(rg, preds):
    rg.xw[0].alt_ds = [p[:4] for p in preds]; rg.xw[1].alt_ds = list(preds)
def frag_waits(rg, rd_ops, first_use, n_first, second_use, only_first=False):
    if rd_ops is None: return
    rg.F(WAIT(first_use - 1, need_ds=rd_ops[:n_first], late=2))
    if n_first < len(rd_ops) and not only_first: rg.F(WAIT(second_use - 1, need_ds=rd_ops, late=1))

def so_(sb): return (sb[0] - sb[1])*16384
def w_step(rg, half, zero, Bop, pend, cur, nxt, need, extra=(), more_reads=(), xwait=None, post=None):
    b0 = rg.n(); info = dict(b0=b0); xlast = None
    if xwait:
        for t in range(3): rg.F(WAIT(b0 + 4*t - 1, need_ds=xwait[:4*t + 4], late=1))
        info["xbar"] = barrier(rg, b0 + 10, xwait, (), lg0=False, st=False)
    for mt in range(4):
        buf = C.grp & 1; C.grp += 1
        g0 = b0 + 12*mt
        if pend is not None and (mt < 3 or BDW): frag_waits(rg, pend, g0, 4, g0 + 2, only_first=(mt == 3))
        for t in range(3):
            for s in range(4):
                acc = OA(4*half + mt, t)
                rg.M(mfma(acc, FR(buf, s), Bop(s, t), "0" if (zero and s == 0) else acc))
        if mt < 3:
            pend, xo = reads_W(rg, so_(cur[1:3]), mt + 1, buf ^ 1, g0 - 1 if (mt or b0) else g0)
            if xo: xlast = xo
            if mt == 0 and rg.wq: base_users = pend
            if mt == 2: bar = barrier(rg, g0 + 11 + BDW, pend + list(more_reads), need, extra)
        else:
            ups = rebase(rg, nxt[0], nxt[3], nxt[2], b0 + 20, g0 - 2, after=([xlast] + (base_users if rg.wq else [])) if nxt[0] == "W" else [])
            if nxt[0] == "W": pend, _ = reads_W(rg, so_(nxt[1:3]), 0, buf ^ 1, g0 - 1 + BDW, deps=[(bar, 0)], ups=ups, rsp=(4 if post else None))
            else: pend = reads_K(rg, so_(nxt[1:3]), 0, buf ^ 1, g0 - 1 + BDW, deps=[(bar, 0)], ups=ups)
            if post: info["post"] = post(g0, bar)
    info["bar"] = bar; info["end"] = rg.n() - 1
    return pend, info
def TS(name, prev=None):
    k, i = name[0], int(name[1])
    return (k, SLOT[name], BASE[name], BASE[f"{k}{(i - 1) % 8}"])

def softmax(rg, g0, u, Sr, pbuf, d_over, d_puse):
    sg = u >> 1
    for t in range(3):
        last = rg.mf[g0 + 4*t + 3]
        dl = min(d_over(t), d_puse(t) - 3)
        ex = [rg.F(V8(f"v_exp_f32 {Sr(t,i)}, {Sr(t,i)}", rd=[Sr(t,i)], wr=[Sr(t,i)], e=last.gap, sdeps=[(last, 8)], trans=True)) for i in range(4)]
        for j in range(2):
            dst = PBr(pbuf, sg, t, 2*(u & 1) + j)
            rg.F(V(f"v_cvt_pk_bf16_f32 {dst}, {Sr(t,2*j)}, {Sr(t,2*j+1)}", rd=[Sr(t,2*j), Sr(t,2*j+1)], wr=[dst], d=dl,
                   sdeps=[(ex[2*j], 1), (ex[2*j+1], 1)]))
def k_mfmas(rg, buf, Sd):
    for t in range(3):
        for s in range(4):
            rg.M(mfma(Sd(t), FR(buf, s), QV(s, t), "0" if s == 0 else Sd(t)))
def v_mfmas(rg, dp_, buf, pbuf, zero, tmajor=False):
    order = [(k, t) for t in range(3) for k in range(2)] if tmajor else [(k, t) for k in range(2) for t in range(3)]
    last = {}
    for k, t in order:
        for sg in range(2):
            acc = OA(2*dp_ + k, t)
            last[(2*dp_ + k, t)] = rg.M(mfma(acc, FR(buf, 2*k + sg), PB(pbuf, sg, t), "0" if (zero and sg == 0) else acc))
    return last
def sum_mfmas(rg, t, pbuf, zero):
    for sg in range(2):
        o = rg.M(mfma(LA(t), ONES, PB(pbuf, sg, t), "0" if (zero and sg == 0) else LA(t)))
    return o
def o_epilogue_ops(dt, t):
    mul = [V(f"v_mul_f32 {OAr(dt,t,i)}, {vRL[t]}, {OAr(dt,t,i)}", rd=[OAr(dt,t,i), vRL[t]], wr=[OAr(dt,t,i)]) for i in range(4)]
    cvt = []
    for j in range(2):
        dst = OPr(dt >> 1, t, 2*(dt & 1) + j)
        cvt.append(V(f"v_cvt_pk_bf16_f32 {dst}, {OAr(dt,t,2*j)}, {OAr(dt,t,2*j+1)}", rd=[OAr(dt,t,2*j), OAr(dt,t,2*j+1)], wr=[dst],
                     deps=[(mul[2*j], 0), (mul[2*j+1], 0)]))
    for o in mul + cvt: o.ot = (dt, t)
    return mul, cvt
def q_muls(rg, mt, t, last, **kw):
    return [rg.F(V(f"v_mul_f32 {OAr(mt,t,i)}, {sScale}, {OAr(mt,t,i)}", rd=[OAr(mt,t,i)], wr=[OAr(mt,t,i)],
                   e=(last.gap if last is not None else -1), sdeps=([(last, 8)] if last is not None else []), **kw)) for i in range(4)]
def q_epilogue(rg, sp, t, lastA, lastB, d_use, muls=True):
    cv = []
    for k, last in ((0, lastA), (1, lastB)):
        mt = 2*sp + k
        mul = q_muls(rg, mt, t, last) if muls else None
        for j in range(2):
            dst = QVr(sp, t, 2*k + j)
            cv.append(rg.F(V(f"v_cvt_pk_bf16_f32 {dst}, {OAr(mt,t,2*j)}, {OAr(mt,t,2*j+1)}", rd=[OAr(mt,t,2*j), OAr(mt,t,2*j+1)], wr=[dst],
                             deps=([(mul[2*j], 0), (mul[2*j+1], 0)] if muls else []))))
    if OPT["nperm"]:
        for o in cv: o.d = d_use - 3
        return
    for j in range(2):
        a, b = QVr(sp, t, j), QVr(sp, t, 2 + j)
        p1 = rg.F(V8(f"v_permlane32_swap_b32 {a}, {b}", rd=[a, b], wr=[a, b], sdeps=[(cv[j], 2), (cv[2+j], 2)]))
        rg.F(V8(f"v_permlane16_swap_b32 {a}, {b}", rd=[a, b], wr=[a, b], sdeps=[(p1, 2)], d=d_use - 3))

def BopQ(st):
    dg = ORD[st][1]
    return (lambda s, t: XA(4*dg + s, t)) if dg < 3 else (lambda s, t: QV(s, t))

def build_R2():
    rg = new_region("R2")
    C.grp = 24
    pend, i6 = w_step(rg, ORD[6][0], False, BopQ(6), None, TS("W6"), TS("W7"), ["W7"])
    pend, i7 = w_step(rg, ORD[7][0], False, BopQ(7), pend, TS("W7"), TS("K0"), ["K0"])
    a0 = rg.n(); b7 = i7["b0"]
    for sp in (0, 1):
        for t in range(3): q_epilogue(rg, sp, t, None, None, min(a0 + 4*t + sp, 20 + (sp*3 + t)*9), muls=True)
    for sp in (2, 3):
        for t in range(3):
            mA, mB = 2*sp - 4, 2*sp - 3
            q_epilogue(rg, sp, t, rg.mf[b7 + 12*mA + 4*t + 3], rg.mf[b7 + 12*mB + 4*t + 3], a0 + 4*t + sp)
    B = lambda i: a0 + 48 + 102*i
    GK = [0, 26, 52, 78]; GV = [12, 38, 64, 90]
    def puse(i, sg, t): return (B(i) + 12 + 2*t + sg) if i < 7 else (B(7) + 4*t + sg)
    def so(n): return so_(TS(n)[1:3])
    def rb(n, e, d, after=()): x = TS(n); return rebase(rg, x[0], x[3], x[2], e, d, after)
    for u in range(4):
        buf = C.grp & 1; C.grp += 1; g0 = rg.n()
        if u < 3 or BDW: frag_waits(rg, pend, g0, 2, g0 + 2, only_first=(u == 3))
        k_mfmas(rg, buf, lambda t: OA(u, t))
        softmax(rg, g0, u, lambda t, i: OAr(u, t, i), 0, lambda t: 10**9, lambda t: puse(0, u >> 1, t))
        if u < 3:
            pend = reads_K(rg, so("K0"), u + 1, buf ^ 1, g0 - 1)
            if u == 2: bar = barrier(rg, g0 + 11 + BDW, pend, ["K1", "V0"]); lastK = pend
        else:
            ups = rb("K1", g0 - 12, g0 - 2, lastK)
            pend = reads_K(rg, so("K1"), 0, buf ^ 1, g0 - 1 + BDW, deps=[(bar, 0)], ups=ups)
            upsV = rb("V0", -1, g0)
    for i in range(7):
        b0 = rg.n(); assert b0 == B(i)
        for u in range(4):
            buf = C.grp & 1; C.grp += 1; g0 = rg.n(); assert g0 == b0 + GK[u]
            frag_waits(rg, pend, g0, 2, g0 + 2)
            k_mfmas(rg, buf, lambda t: R("v", S0 + 4*t, 4))
            nxtK = (b0 + GK[u+1]) if u < 3 else (B(i+1) if i < 6 else None)
            softmax(rg, g0, u, lambda t, j: f"v{S0 + 4*t + j}", (i + 1) & 1,
                    (lambda t: nxtK + 4*t - 1) if nxtK else (lambda t: 10**9), lambda t: puse(i + 1, u >> 1, t))
            pend, xs = reads_V(rg, so(f"V{i}"), u, buf ^ 1, g0 - 1, ups=(upsV if u == 0 else ()), late=(OPT["vlate"] if u < 3 else 0))
            if u == 3: bar = barrier(rg, g0 + 11 + BDA, pend, [f"K{i+2}", f"V{i+1}"] if i < 6 else ["V7"]); lastX = xs
            buf = C.grp & 1; C.grp += 1; g0 = rg.n(); assert g0 == b0 + GV[u]
            if u < 3 or BDA: frag_waits(rg, pend, g0, 4, g0 + 6, only_first=(u == 3))
            v_mfmas(rg, u, buf, i & 1, i == 0)
            if u < 3:
                sum_mfmas(rg, u, i & 1, i == 0)
                pend = reads_K(rg, so(f"K{i+1}"), u + 1, buf ^ 1, g0 - 1)
                if u == 2: lastK = pend
            elif i < 6:
                ups = rb(f"K{i+2}", g0 - 20, g0 - 2, lastK)
                pend = reads_K(rg, so(f"K{i+2}"), 0, buf ^ 1, g0 - 1 + BDA, deps=[(bar, 0)], ups=ups)
                upsV = rb(f"V{i+1}", g0 - 10, g0 + 4, lastX)
            else:
                upsV = rb("V7", g0 - 10, g0 - 2, lastX)
                pend, _ = reads_V(rg, so("V7"), 0, buf ^ 1, g0 - 1 + BDA, late=0, deps=[(bar, 0)], ups=upsV)
    E = rg.n(); assert E == B(7)
    epi = []
    for p in range(4):
        buf = C.grp & 1; C.grp += 1; g0 = rg.n()
        if p == 0: frag_waits(rg, pend, g0, 4, g0 + 2)
        elif p < 3 or BDW: frag_waits(rg, pend, g0, 4, g0 + 6, only_first=(p == 3))
        last = v_mfmas(rg, p, buf, 1, False, tmajor=(p == 0))
        if p == 0:
            rl = []; lr = []
            for t in range(3):
                ls = sum_mfmas(rg, t, 1, False)
                lr.append(rg.F(V(f"v_accvgpr_read_b32 {vRL[t]}, a{240+4*t}", rd=[f"a{240+4*t}"], wr=[vRL[t]], e=ls.gap, sdeps=[(ls, 8)], d=E + 28)))
            mn = rg.F(V(f"v_min3_f32 {vA}, {vRL[0]}, {vRL[1]}, {vRL[2]}", rd=vRL, wr=[vA], deps=[(x, 0) for x in lr], d=E + 30))
            mx = rg.F(V(f"v_max3_f32 {vB}, {vRL[0]}, {vRL[1]}, {vRL[2]}", rd=vRL, wr=[vB], deps=[(x, 0) for x in lr], d=E + 30))
            rg.F(V(f"v_cmp_gt_f32 {sBad}, {sLo}, {vA}", rd=[vA], wr=[sBad], deps=[(mn, 0)], d=E + 40))
            rg.F(V(f"v_cmp_lt_f32 vcc, {sHi}, {vB}", rd=[vB], wr=["vcc"], deps=[(mx, 0)], d=E + 40))
            for t in range(3):
                rl.append(rg.F(V8(f"v_rcp_f32 {vRL[t]}, {vRL[t]}", rd=[vRL[t]], wr=[vRL[t]], deps=[(mn, 0), (mx, 0)], trans=True, d=E + 34)))
        for (dt, t), lm in last.items():
            mul, cvt = o_epilogue_ops(dt, t)
            for o in mul: o.e = lm.gap; o.sdeps = [(lm, 8), (rl[t], 1)]
            for o in mul + cvt:
                o.optional = True
                if dt >= 4 and o in cvt: o.e = 10**9
                rg.F(o); epi.append(o)
        if p < 3:
            pend, xs = reads_V(rg, so("V7"), p + 1, buf ^ 1, g0 - 1 if p != 0 else g0 + 3)
            if p == 2: bar = barrier(rg, g0 + 11 + BDW, pend, ["W0", "Xa", "Xb", "Xc"])
        else:
            ups = rb("W0", -1, g0 - 2, [])
            for o in ups: o.e = a0
            if OPT["nperm"]: ups = ups + [rg.F(V(f"v_mad_i32_i24 {vWb}, {vC}, {sGate}, {vWb}", rd=[vC, vWb], wr=[vWb], e=a0, d=g0 - 4))]
            pend, _ = reads_W(rg, so("W0"), 0, buf ^ 1, g0 - 1 + BDW, deps=[(bar, 0)], ups=ups, rsp=8)
    assert sorted(g + 288 for g in rg.bars) == ringplan.bS[6:] + [ringplan.bQ] + ringplan.bB + [ringplan.bP]
    head_dmas(rg, 288, 1200)
    rg.pendW0 = pend; rg.epi = epi
    rg.schedule()
    return rg

def half0_muls(rg, b4):
    for mt in range(4):
        for t in range(3): q_muls(rg, mt, t, rg.mf[b4 + 12*mt + 4*t + 3])

def build_R1(left):
    rg = new_region("R1")
    C.grp = 0
    xa = [rg.F(V(f"v_add_u32 v{S0+s}, {sW1k}, {vK[s]}", rd=[vK[s]], wr=[f"v{S0+s}"], d=6)) for s in range(4)]
    xr = reads_X(rg, lambda sl, s: (f"v{S0+s}", (sl - XB)*16384), [SLOT["Xa"], SLOT["Xb"], SLOT["Xc"]], QV, 4, 9, [(a, 1) for a in xa], step=2)
    pend = None; infos = []
    for st in range(5):
        pend, inf = w_step(rg, ORD[st][0], st in (0, 3), BopQ(st), pend, TS(f"W{st}"), TS(f"W{st+1}"), [f"W{st+1}"], more_reads=(xr if st == 0 else ()))
        infos.append(inf)
    new = {}
    for o in left:
        dt, t = o.ot
        n = V(o.text, rd=list(o.rd), wr=list(o.wr)); n.ot = o.ot; new[id(o)] = n
        n.deps = [(new[id(p)], g) for (p, g) in o.deps if id(p) in new]
        n.e = 8 if dt >= 6 else -1
        n.d = ((12*dt + 4*t) if dt < 4 else (144 + 12*(dt - 4) + 4*t)) - 1
        rg.F(n)
    head_dmas(rg, 0, 288)
    rg.pend = pend
    rg.schedule()
    return rg

def build_R1b(h, zst=None):
    rg = new_region(f"R1b{h}")
    C.grp = 20
    pend, inf = w_step(rg, ORD[5][0], False, BopQ(5), None, TS("W5"), TS("W6"), ["W6"])
    for i in range(48): rg.F(V(f"v_accvgpr_write_b32 a{ZB[h-1] + i}, v{PV0 + i}", rd=[f"v{PV0+i}"], wr=[f"a{ZB[h-1]+i}"]))
    next_setup(rg, h)
    rg.pend = pend
    rg.schedule()
    return rg

def next_setup(rg, h):
    T = lambda x, **kw: rg.F(S(x, **kw))
    if h < 3:
        T(f"s_add_u32 {sWcol}, {sWcol}, 256", deps=([(rg.lastw, 1)] if getattr(rg, "lastw", None) else []))
        T(f"s_and_b32 {sWcol}, {sWcol}, 0x3ff")
        for t in NEXT:
            if t[0] == "W":
                for x in wq_t0(sN[NEXT.index(t)], int(t[1])): T(x)
    if h == 2:
        a = T(f"s_lshl_b32 {sTmp}, {sB}, 2")
        if not OPT["bst"]: rg.dbg = rg.F(Op(f"buffer_load_dword {vLane}, off, {srdD}, {sTmp} sc1", "vm", wr=[vLane], deps=[(a, 0)]))
    if h == 3:
        for x in ("s_mov_b32 s16, s80", "s_mov_b32 s17, s81", "s_mov_b32 s18, 0x80000", "s_mov_b32 s20, s80", "s_mov_b32 s21, s81", "s_mov_b32 s22, 0x80000",
                  f"s_mov_b32 {sGate}, 1"): T(x)
        for i in (1, 2, 3): T(f"s_mov_b32 {sD[i]}, {7168*i}"); T(f"s_mov_b32 {sDY[i]}, {7168*i}")
        for m in range(6): T(f"s_add_u32 {sN[m]}, {sRot if m < 4 else sC[0]}, {sH[m & 3]}")
        if OPT["tlb"] == 1:
            sw = T(f"s_mov_b32 {sTmp}, {hex(FLAG_BASE + 0x20080)}")
            for srd, so in ((srdW, "0"), (srdWS, "s75"), (srdWS, sTmp), (srdO, sOutR)):
                rg.F(Op(f"buffer_load_dword {vB}, off, {srd}, {so}", "vm", wr=[vB], deps=[(sw, 0)]))
        rg.F(V(f"v_mov_b32 {vDW}, {vDWo}", rd=[vDWo], wr=[vDW])); rg.F(V(f"v_mov_b32 {vDX}, {vDWo}", rd=[vDWo], wr=[vDX]))

def build_R1f():
    X = lambda q: [f"x{q}{a}" for a in range(3)]
    final = [t for t in ISS if ISS[t] < 288 and t[0] in "KV"] + ["W6", "W7"]
    fk = sorted([t for t in final if t[0] in "KV"], key=lambda t: ISS[t]); assert 3 <= len(fk) <= 6 and OPT["kvlate"] == 4 or len(fk) == 6
    if OPT["kvlate"] < 4:
        init = X(0) + ["w0"] + X(1) + ["w1", "K0", "K1"]
        inh = list(zip(X(2), X(0))) + [("w2", "w0")] + list(zip(["w3", "x30", "x31"], X(1))) + [("x32", "w1")] + \
              list(zip(["w4", "V0", "w5"], X(2))) + [("K2", "w2"), ("W6", "w3")] + list(zip(["V1", "W7", "K3"], X(3)))
    else:
        init = X(0) + ["w0"] + X(1) + ["w1", "x20", "x21"]
        inh = list(zip(["x22", "w2", "w3"], X(0))) + [("x30", "w0")] + list(zip(["x31", "x32", "w4"], X(1))) + [("w5", "w1")] + \
              list(zip(["W6", "W7", fk[0]], X(2))) + [(fk[1], "w2"), (fk[2], "w3")] + list(zip(fk[3:], X(3)))
    sl = {t: SLOT[t] for t in final}
    for new, old in reversed(inh):
        if new in sl: sl[old] = sl[new]
    free = [x for x in range(10) if x not in {sl[t] for t in init if t in sl}]
    for t in init:
        if t not in sl: sl[t] = free.pop()
    for new, old in inh: sl[new] = sl[old]
    def spec(t):
        if t[0] == "x": return ("X", int(t[2]), int(t[1]))
        if t[0] in "wW": return ("W", int(t[1]))
        return (t[0],)
    wsl = [sl[f"w{j}"] for j in range(6)] + [SLOT["W6"]]
    wb = [min(x, 6) for x in wsl[:6]] + [BASE["W6"]]
    rg = new_region("R1f")
    C.grp = 0
    xaddr = lambda s_, s: (f"v{S0 + 4*(s_ >> 2) + s}", (s_ & 3)*16384)
    dst = {0: (1, lambda s, t: XA(4 + s, t)), 1: (2, lambda s, t: XA(8 + s, t)), 3: (3, QV)}
    pend = None; infos = []; xw = None
    for st in range(6):
        post = None; need = [f"w{st+1}" if st < 5 else "W6"]
        if st in dst:
            q, fn = dst[st]; need += X(q)
            post = (lambda q, fn: lambda g0, bar: reads_X(rg, xaddr, [sl[t] for t in X(q)], fn, g0 + 2 + BDW, g0 + 5 + BDW, [(bar, 0)]))(q, fn)
        pend, inf = w_step(rg, ORD[st][0], st in (0, 3), BopQ(st), pend, ("W", wsl[st], wb[st]), ("W", wsl[st+1], wb[st+1], wb[st]), need, xwait=xw, post=post)
        xw = inf.get("post"); infos.append(inf)
    rel = {"w%d" % j: infos[j]["bar"] for j in range(6)}
    for q, st in ((1, 1), (2, 2), (3, 4)):
        for t in X(q): rel[t] = infos[st]["xbar"]
    items = []; tcur = 0
    if OPT["kvlate"] < 4:
        seq = [(t, None) for t in ("x20", "x21", "x22")] + inh[3:]
        kp = {0: (3, 4), 1: (8, 9), 2: (4, 9), 3: (9, 12)}[OPT["kvlate"]]
        seq.insert(kp[0], ("K0", None)); seq.insert(kp[1], ("K1", None))
    else: seq = [(t, None) for t in ("x20", "x21", "x22", "w2", "w3")] + inh[3:]
    for new, old in seq:
        if old: tcur = max(tcur, rel[old].e)
        sp = OPT["fsp"] if (new[0] not in "KV" or OPT["kvlate"] < 4) else OPT["fkv"]
        items.append((new, spec(new), sl[new], tcur, sp, rel[old] if old else None)); tcur += 4*sp + (1 if sp == OPT["fsp"] else OPT["fgap"])
    add_dmas(rg, items)
    next_setup(rg, 0)
    rg.pend = pend
    rg.schedule()
    rg.init = [(t, spec(t), sl[t]) for t in init[:8]]; rg.wb0 = wb[0]; rg.wso0 = (wsl[0] - wb[0])*16384
    rg.x0 = [xaddr(sl[t], 0) for t in X(0)]; rg.xsl0 = [sl[t] for t in X(0)]; rg.xaddr = xaddr
    return rg

RLD = [[R("v", QV0 + 4*g, 4) for g in range(8)],
       [R("v", QV0 + 32 + 4*g, 4) for g in range(4)] + [R("v", S0 + 4*g, 4) for g in range(3)] + ["v[236:239]"]]
vTo = vLane if not OPT['bst'] else 'v235'
vSt, vFl, vPo, vPr, vOut = vDK, vDV, vVb, vDX, vC
LAG = OPT['lag']; OSC = ['', ' sc1', ' nt', ' sc0 sc1'][OPT['osc']]
NTST = ' nt' if OPT['ntst'] else ''
LO = ["v249", "v250", "v251", "v253"]
def pack_store(chunk):
    res = []
    for t in range(3):
        for np_ in range(2):
            a, b = 4*chunk + 2*np_, 4*chunk + 2*np_ + 1
            src = [(OAr(a,t,0), OAr(a,t,1)), (OAr(a,t,2), OAr(a,t,3)), (OAr(b,t,0), OAr(b,t,1)), (OAr(b,t,2), OAr(b,t,3))]
            cv = []
            for j in range(4):
                cv.append(V(f"v_cvt_pk_bf16_f32 {OAr(a,t,j)}, {src[j][0]}, {src[j][1]}", rd=list(src[j]), wr=[OAr(a,t,j)], deps=([(cv[-1], 0)] if cv else [])))
            k = 2*t + np_
            sa = S(f"s_add_u32 {sU[k & 1]}, {sSt}, {k*8192}", wr=[sU[k & 1]])
            st = Op(f"buffer_store_dwordx4 {OA(a,t)}, {vSt}, {srdWS}, {sU[k & 1]} offen@SC", "vm", rd=[OA(a,t), vSt], deps=[(cv[-1], 1), (sa, 0)])
            res.append((cv, sa, st))
    return res
def reduce_ops(set_):
    X = [regs(r_) for r_ in RLD[set_]]
    tmp = [vA, vB]; ops = []; n = 0
    for k in range(4):
        ops += [V(f"v_lshlrev_b32 {LO[k]}, 16, {X[0][k]}", rd=[X[0][k]], wr=[LO[k]]),
                V(f"v_and_b32 {X[0][k]}, {sMask}, {X[0][k]}", rd=[X[0][k]], wr=[X[0][k]])]
        for g in range(1, 8):
            tm = tmp[n & 1]; n += 1
            ops += [V(f"v_lshlrev_b32 {tm}, 16, {X[g][k]}", rd=[X[g][k]], wr=[tm]),
                    V(f"v_and_b32 {X[g][k]}, {sMask}, {X[g][k]}", rd=[X[g][k]], wr=[X[g][k]]),
                    V(f"v_add_f32 {LO[k]}, {LO[k]}, {tm}", rd=[LO[k], tm], wr=[LO[k]]),
                    V(f"v_add_f32 {X[0][k]}, {X[0][k]}, {X[g][k]}", rd=[X[0][k], X[g][k]], wr=[X[0][k]])]
        ops.append(V(f"v_cvt_pk_bf16_f32 {X[0][k]}, {LO[k]}, {X[0][k]}", rd=[LO[k], X[0][k]], wr=[X[0][k]]))
    for a, b in zip(ops, ops[1:]): b.deps.append((a, 0))
    pl = []
    for j in range(2):
        pl.append(V8(f"v_permlane32_swap_b32 {X[0][j]}, {X[0][2+j]}", rd=[X[0][j], X[0][2+j]], wr=[X[0][j], X[0][2+j]], sdeps=[(ops[-1], 2)]))
    for j in range(2):
        pl.append(V8(f"v_permlane16_swap_b32 {X[0][j]}, {X[0][2+j]}", rd=[X[0][j], X[0][2+j]], wr=[X[0][j], X[0][2+j]], sdeps=[(pl[j], 2)]))
    st = Op(f"buffer_store_dwordx4 {RLD[set_][0]}, {vOut}, {srdO}, {sOut} offen{OSC}", "vm", rd=[RLD[set_][0], vOut, sOut], deps=[(pl[2], 1), (pl[3], 1)])
    return ops, pl, st
def red_loads(set_):
    return [Op(f"buffer_load_dwordx4 {RLD[set_][g]}, {vSt}, {srdWS}, {sLd if g < 4 else sLd2} offen offset:{(g & 3)*1024} sc1", "vm",
               rd=[vSt], wr=[RLD[set_][g]]) for g in range(8)]
def sig_ops():
    return [Op(f"buffer_store_dword {vSt}, {vFl}, {srdWS}, {sSig} offen@SC", "vm", rd=[vSt, vFl])]
def scal_A():
    return [f"s_sub_u32 {sTmp}, {sIt}, 1", f"s_and_b32 {sTmp}, {sTmp}, {sSlM}", f"s_mul_i32 {sTmp}, {sTmp}, {CHUNK}",
            f"s_add_u32 {sSt}, {sStR}, {sTmp}", f"s_add_u32 {sLd}, {sLdR}, {sTmp}", f"s_add_u32 {sLd2}, {sLd}, 0x1000",
            f"s_add_u32 {sSig}, {sSig}, 256"]
def scal_B():
    return [f"s_add_u32 {sOut}, {sOutR}, {sOc}", f"s_add_u32 {sOc}, {sOc}, 128", f"s_and_b32 {sOc}, {sOc}, 0x3ff", f"s_add_u32 {sIt}, {sIt}, 1"]

def build_G(first=False, left=()):
    rg = new_region("G0" if first else "G"); L = "F" if first else ""
    used = [SLOT[t] for t in NEXT]
    gs = used + [SLOT["K0"]] + [x for x in range(10) if x not in used and x not in (SLOT["K0"], SLOT["K1"], SLOT["V0"])][:1]
    assert len(gs) == 8
    gb = ringplan.bases(gs, BASE["W0"])[1]
    items = []; bars = {}; st_last = {}; rg.touch = []
    C.grp = 0
    def Bop(h): return (lambda s, t: ZA(h, s, t)) if h < 3 else (lambda s, t: OP(s, t))
    LD = [red_loads(0), red_loads(1)] if first else G_LD
    pend = None; prev_users = []
    if first:
        new = {}
        for o in left:
            dt, t = o.ot
            n = V(o.text, rd=list(o.rd), wr=list(o.wr)); new[id(o)] = n
            n.deps = [(new[id(p)], g) for (p, g) in o.deps if id(p) in new]
            n.e = 8 if dt >= 6 else -1
            n.d = (12*dt + 4*t - 1) if dt < 4 else (144 + 4*t + (dt >> 1) - 3)
            rg.F(n)
        cs = []
        for x in f"""v_mbcnt_lo_u32_b32 {vA}, -1, 0
v_mbcnt_hi_u32_b32 {vA}, -1, {vA}
v_lshlrev_b32 {vSt}, 4, {vA}
v_and_b32 {vPo}, 7, {vA}
v_lshlrev_b32 {vPo}, 2, {vPo}
v_lshrrev_b32 {vB}, 4, {vA}
v_bfe_u32 {vOut}, {vA}, 2, 2
v_and_b32 {vA}, 3, {vA}
v_lshl_add_u32 {vA}, {vOut}, 4, {vA}
v_lshlrev_b32 {vA}, 10, {vA}
v_lshl_add_u32 {vOut}, {vB}, 4, {vA}
v_mov_b32 {vFl}, {hex(OOB)}""".split("\n"):
            cs.append(rg.F(V(x, e=(0 if len(cs) < 3 else 40), d=110, deps=[(cs[-1], 0)] if cs else [])))
        sc = [rg.F(S(x)) for x in (f"s_lshl_b32 s5, {sG}, 2", f"s_cmp_eq_u32 {sWave}, 0", f"s_cselect_b32 s5, s5, {hex(OOB)}", f"s_mov_b32 {sMask}, 0xffff0000",
                                   f"s_mov_b32 {sLd}, {sLdR}", f"s_add_u32 {sLd2}, {sLd}, 0x1000", f"s_mov_b32 {sSig}, {sFlR}", f"s_mov_b32 {sExp}, 16")]
        wl = rg.F(V(f"v_writelane_b32 {vFl}, s5, 1", deps=[(cs[-1], 0), (sc[2], 0)], d=120))
        prev = None
        for k in range(2):
            if k: a1 = rg.F(S(f"s_add_u32 {sLd}, {sLd}, {CHUNK}", deps=[(prev, 1)])); a2 = rg.F(S(f"s_add_u32 {sLd2}, {sLd}, 0x1000"))
            for i, o in enumerate(red_loads(k)):
                o.text = o.text.replace(" sc1", ""); o.tag = "touch"
                o.e = (OPT["gdma"] + 84 if k else 8) + 4*i; o.d = o.e + 3
                o.deps = [(cs[2], 1), ((a2 if k else sc[5]), 0)] + ([(prev, 1)] if prev else []); rg.F(o); prev = o; rg.touch.append(o)
        last0 = prev
    for hf in range(2):
        h0 = 192*hf
        do_st = not (first and hf == 0); do_sum = not first
        stores = []
        if do_st:
            for (cv, sa, st) in pack_store(1 - hf):
                for o in cv: o.e = h0 + 8; rg.F(o)
                if len(stores) >= 2: sa.deps.append((stores[-2], 1))
                rg.F(sa); st.e = h0 + 10 + OPT['gst']*len(stores); st.d = st.e + 3; rg.F(st); stores.append(st)
        if do_sum:
            sc = [rg.F(S(x, e=h0, deps=[(u, 1) for u in prev_users])) for x in scal_B()]
            if hf == 0: sB0 = sc[-1]
            cur = hf ^ 1
            w0 = rg.F(WAIT(h0 + OPT['gsum'], need_vm=LD[cur] + (G_LD0 if hf == 0 else []), late=1)); w0.e = h0 + OPT['gsum']
            o0, p0, s0_ = reduce_ops(cur)
            o0[0].deps.append((w0, 0))
            for o in o0 + p0 + [s0_]: rg.F(o)
            s0_.d = h0 + OPT['gout']; s0_.deps += [(sc[0], 0), (LD[hf][-1], 1)]
            prev_users = [s0_]
        infos = []
        for j in range(4):
            st = 4*hf + j
            n1 = (st + 1) & 7
            pend, inf = w_step(rg, hf, j == 0, Bop(j), pend, ("W", gs[st], gb[st]), ("W", gs[n1], gb[n1], gb[st]), [f"G{n1}"], extra=(stores if j == 1 else ()))
            infos.append(inf); bars[st] = inf["bar"]
        if do_st:
            sig, = sig_ops(); bs = infos[1]["bar"]
            sig.deps = [(bs, 0)]; sig.d = bs.e + 1; rg.F(sig)
            rg.F(S(f"s_load_dwordx8 s[8:15], s[82:83], {sSig}", e=h0 + OPT['gpoll'], d=h0 + OPT['gpoll'] + 4))
            b2 = infos[2]["bar"]
            for x in ("s_and_b32 s8, s8, s9", "s_and_b32 s10, s10, s11", "s_and_b32 s12, s12, s13", "s_and_b32 s14, s14, s15",
                      "s_and_b32 s8, s8, s10", "s_and_b32 s12, s12, s14", "s_and_b32 s8, s8, s12", "s_bitcmp0_b32 s8, 4"): rg.F(S(x, deps=[(b2, 0)]))
            br = rg.F(Op(f"s_cbranch_scc1 L_spinG{hf}{L}@L\nL_backG{hf}{L}@L:", "s", d=b2.e + 12))
            prev = None
            for i, o in enumerate(LD[hf]):
                o.deps += [(br, 0)] + ([(prev, 1)] if prev else []); o.e = b2.e + 10 + OPT['gld']*i; o.d = o.e + 3; rg.F(o); prev = o
            lastld = LD[hf][-1]
        else: lastld = last0
        if first: rg.F(S(f"s_mov_b32 {sIt}, {hf + 1}", deps=[(lastld, 1)]))
        for i, x in enumerate(scal_A()): rg.F(S(x, deps=[(lastld, 1)] if i == 0 else []))
        for k in range(4):
            st = (4*hf - 2 + k) & 7
            items.append((f"G{st}", ("C", (1 + (st >> 2)) if (hf or k > 1) else 0, st & 3), gs[st], h0 + OPT["gdma"] + k*(4*OPT["gdsp"] + 1), OPT["gdsp"],
                          bars[st] if (hf or k > 1) else None))
        if stores: st_last[hf] = stores[-1]
    add_dmas(rg, items)
    if not first:
        c1 = S(f"s_cmp_ge_u32 {sIt}, 7", deps=[(TILE["G7"][-1], 1)]); c2 = S("s_cselect_b32 s18, 0, s18", wr=["s18"], rd=["s18"])
        pos = rg.fill.index(sB0) + 1
        rg.fill[pos:pos] = [c1, c2]
        for i, o in enumerate(rg.fill): o.seq = i + 1
        rg.first_dma["G0"].deps.append((c2, 0))
        rg.first_dma["G6"].deps.append((st_last[0], 1))
    rg.first_dma["G2"].deps.append((st_last[1], 1))
    rg.LD = LD; rg.pend = pend
    rg.schedule()
    return rg

def stamp(kind=0):
    if not OPT["stamps"]: return []
    def put(x): return lin(f"v_mov_b32 {vA}, {x}") + [Op(f"buffer_store_dword {vA}, off, {srdWS}, s101", "vm")] + lin("s_add_u32 s101, s101, 4\ns_nop 1")
    if kind == 1: return put("s94") + put("s92") + stamp()
    if kind == 2: return lin("s_waitcnt vmcnt(0)") + stamp()
    return lin("s_memtime s[2:3]\ns_memrealtime s[4:5]\ns_waitcnt lgkmcnt(0)") + put("s2") + put("s4")

def code_pf(lbl, start, end, mask, r):
    if not OPT["pf"]: return []
    return lin(f"""s_getpc_b64 s[{r}:{r+1}]
{lbl}:
s_add_u32 s{r}, s{r}, {start}-{lbl}
s_addc_u32 s{r+1}, s{r+1}, {"-1" if start == KN else "0"}
s_mov_b32 s{r+2}, {end}-{start}
s_mov_b32 s{r+3}, 0x20000
s_lshl_b32 s5, {sIdx}, 2
s_add_u32 s5, s5, {sWave}
s_and_b32 s5, s5, {mask}
s_lshl_b32 s5, s5, 13
v_mbcnt_lo_u32_b32 {vA}, -1, 0
v_mbcnt_hi_u32_b32 {vA}, -1, {vA}
v_lshlrev_b32 {vA}, 7, {vA}""") + [Op(f"buffer_load_dword {vB}, {vA}, s[{r}:{r+3}], s5 offen", "vm")]

HROT = {0: "s_mov_b32 s5, 0", 1: "s_mov_b32 s5, s4", 2: f"s_mov_b32 s5, {sG}", 3: f"s_add_u32 s5, s4, {sG}", 4: f"s_lshr_b32 s5, {sG}, 1",
        5: f"s_lshr_b32 s5, {sB}, 3", 6: f"s_lshr_b32 s5, {sG}, 2\ns_lshl_b32 s3, {sG}, 1\ns_or_b32 s5, s5, s3", 7: f"s_sub_u32 s5, 0, {sG}"}[OPT["hrot"]]
if OPT["krot"] < 3:
    KROT = f"""{f"s_add_u32 s4, {sB}, {sG}" if OPT["krot"] == 2 else ""}
s_and_b32 s4, s4, {3 if OPT["krot"] else 0}
s_lshl_b32 {sDg[0]}, s4, 20
s_add_u32 {sDg[1]}, {sDg[0]}, 0x100000
s_and_b32 {sDg[1]}, {sDg[1]}, 0x3fffff
s_xor_b32 {sDg[2]}, {sDg[0]}, 0x200000
s_xor_b32 {sDg[3]}, {sDg[1]}, 0x200000"""
else:
    KROT = f"""s_add_u32 s5, {sB}, {sG}
s_mul_i32 s3, s5, 43
s_lshr_b32 s3, s3, 7
s_mul_i32 s3, s3, 3
s_sub_u32 s5, s5, s3
s_add_u32 {sDg[3]}, s4, 3
s_add_u32 {sDg[0]}, s4, s5
s_cmp_eq_u32 s5, 2
s_cselect_b32 s3, -2, 1
s_add_u32 {sDg[1]}, {sDg[0]}, s3
s_cmp_eq_u32 s5, 0
s_cselect_b32 s3, 2, -1
s_add_u32 {sDg[2]}, {sDg[0]}, s3""" + "".join(f"\ns_and_b32 {sDg[q]}, {sDg[q]}, 3\ns_lshl_b32 {sDg[q]}, {sDg[q]}, 20" for q in range(4))
def prologue(F):
    init = F.init
    o = lin(f"""
s_cmp_lt_u32 s2, 256
s_cbranch_scc1 L_go
s_endpgm
L_go:
{"s_memrealtime s[92:93]" if (OPT["stamps"] or OPT["dbl"]) else ""}
{"s_memtime s[94:95]" if OPT["stamps"] else ""}
s_load_dwordx16 s[68:83], s[0:1], 0
v_lshrrev_b32 v1, 6, v0
v_and_b32 {vLane}, 63, v0
s_and_b32 s4, s2, 7
v_readfirstlane_b32 {sWave}, v1
s_lshr_b32 s5, s2, 3
s_mov_b32 {sIdx}, s5""")
    mp = {84: (1, 3, 2, 1, 2, 3), 48: (0, 2, 3, 0, 3, 7), 162: (2, 4, 1, 3, 1, 1)}[OPT["mapping"]]
    o += lin(f"""
s_lshr_b32 s6, s4, {mp[0]}
s_lshl_b32 s6, s6, {mp[1]}
s_lshr_b32 s7, s5, {mp[2]}
s_add_u32 {sB}, s6, s7
s_and_b32 s6, s4, {mp[3]}
s_lshl_b32 s6, s6, {mp[4]}
s_and_b32 s7, s5, {mp[5]}
s_add_u32 {sG}, s6, s7""")
    cbits = struct.unpack("<I", struct.pack("<f", math.log2(math.e)/math.sqrt(128)))[0]
    o += lin(f"""
s_lshl_b32 {sW4k}, {sWave}, 12
v_lshrrev_b32 v5, 4, {vLane}
v_and_b32 v6, 15, {vLane}
s_lshl_b32 s6, {sWave}, 4
v_add_u32 v1, s6, v5
s_lshl_b32 s6, {sWave}, 2
v_or_b32 v2, s6, v5
v_xor_b32 v2, v2, v6
v_lshlrev_b32 v2, 4, v2
v_lshl_add_u32 {vDX}, v1, 10, v2
v_lshl_add_u32 {vDK}, v1, 8, v2
v_lshrrev_b32 v7, 5, {vLane}
v_bfe_u32 v2, {vLane}, 3, 2
v_lshl_add_u32 v7, v7, 3, v2
s_lshl_b32 s6, {sWave}, 5
v_add_u32 v7, s6, v7
v_and_b32 v3, 7, {vLane}
v_lshlrev_b32 v4, 1, v5
v_xor_b32 v3, v3, v4
v_lshlrev_b32 v3, 4, v3
s_mov_b32 {sDY[1]}, 3072
s_mov_b32 {sDY[2]}, 6144
s_mov_b32 {sDY[3]}, 9216
s_mov_b32 {sD[1]}, {16*8192 - 1024}
s_mov_b32 {sD[2]}, {4*8192 - 2048}
s_mov_b32 {sD[3]}, {20*8192 - 3072}
s_lshr_b32 s4, {sB}, 2
{HROT}
s_bfe_u32 {sSw}, s5, {"0x10002" if OPT["hswap"] else "0x00002"}
s_and_b32 s5, s5, {3 if OPT["hrot"] else 0}
s_mov_b32 {sHr}, s5
s_lshl_b32 {sWcol}, s5, 8
s_lshl_b32 {sSw}, {sSw}, 7
s_or_b32 {sWcol}, {sWcol}, {sSw}
s_lshr_b32 {sSw}, {sSw}, 1
v_xor_b32 v7, {sSw}, v7
v_lshl_add_u32 {vDW}, v7, 13, v3
s_lshl_b32 {sKoff}, s5, 17
s_mov_b32 {sVoff}, {sKoff}
{KROT}
s_mul_i32 s7, {sB}, {0 if OPT["samex"] else 196608}
s_mov_b32 s22, 196608
s_mov_b32 s23, 0x20000
s_mov_b32 s19, 0x20000
s_lshl_b32 s4, {sG}, 10
{"s_mov_b32 s4, 0" if OPT["samew"] else ""}
s_sub_u32 s18, 0x400000, s4
s_waitcnt lgkmcnt(0)
s_add_u32 s20, s68, s7
s_addc_u32 s21, s69, 0
s_add_u32 s16, s74, s4
s_addc_u32 s17, s75, 0""")
    if OPT["tch"]:
        o += lin(f"""v_lshrrev_b32 v8, 1, {vLane}
v_and_b32 v9, 1, {vLane}
v_lshlrev_b32 v9, 7, v9
v_lshl_add_u32 v11, v8, 13, v9
v_lshl_add_u32 v8, v8, 10, v9
v_mov_b32 v10, {hex(OOB)}
v_cmp_gt_u32 vcc, 12, {vLane}
s_lshl_b32 s4, {sG}, 2
s_add_u32 s4, s4, {sWave}
s_mul_i32 s4, s4, 6144
v_cndmask_b32 v8, v10, v8, vcc
v_cmp_gt_u32 vcc, 16, {vLane}
s_and_b32 s5, {sB}, 3
s_lshl_b32 s5, s5, 2
s_add_u32 s5, s5, {sWave}
s_lshl_b32 s5, s5, 16
s_add_u32 s5, s5, {sWcol}
v_cndmask_b32 v11, v10, v11, vcc
v_add_u32 v8, s4, v8
v_add_u32 v11, s5, v11""")
        for q in range(OPT["tch"] - 1, 4):
            o += lin(f"s_lshr_b32 s3, {sDg[q]}, 12")
            o += [Op(f"buffer_load_dword {vB}, v8, {srdX}, s3 offen", "vm"), Op(f"buffer_load_dword {vB}, v11, {srdW}, {sDg[q]} offen", "vm")]
    for j in range(4): o += dma_linear(*init[j])
    o += lin(f"""s_lshl_b32 s3, {sB}, 22
s_lshl_b32 s7, {sG}, 19
s_add_u32 s3, s3, s7
{"s_mov_b32 s3, 0" if OPT["samekv"] else ""}
s_add_u32 s8, s70, s3
s_addc_u32 s9, s71, 0
s_mov_b32 s10, 0x80000
s_mov_b32 s11, 0x20000
s_add_u32 s12, s72, s3
s_addc_u32 s13, s73, 0
s_mov_b32 s14, 0x80000
s_mov_b32 s15, 0x20000
""")
    if OPT["tlb"]:
        o += [Op(f"buffer_load_dword {vB}, off, {srdK}, 0", "vm"), Op(f"buffer_load_dword {vB}, off, {srdV}, 0", "vm")]
        o += [Op(f"buffer_load_dword {vB}, off, {srdW}, {sDg[q]}", "vm") for q in (1, 2, 3)]
    o += code_pf("L_pc", KN, "L_g3", OPT["pf"] - 1, 88)
    o += lin(f"""
v_lshrrev_b32 v7, 3, {vLane}
v_add_u32 v7, s6, v7
v_lshl_add_u32 {vDWo}, v7, 10, v3
s_and_b32 s6, {sWave}, 1
s_lshl_b32 s6, s6, 2
v_or_b32 v2, s6, v5
v_lshlrev_b32 v2, 1, v2
v_xor_b32 v2, v2, v6
v_lshlrev_b32 v1, 8, v1
v_lshl_add_u32 {vDV}, v2, 4, v1
s_mov_b32 s24, s82
s_mov_b32 s25, s83
s_mov_b32 s26, {hex(WS_BYTES)}
s_mov_b32 s27, 0x20000
v_lshrrev_b32 v1, 3, {vLane}
v_and_b32 v2, 7, {vLane}
v_lshlrev_b32 v1, 8, v1
v_lshl_add_u32 v8, v2, 2, v1
s_lshl_b32 s6, {sB}, 11
s_add_u32 s6, s6, {hex(FLAG_BASE)}
s_or_b32 s7, {sG}, {sWave}
s_cmp_eq_u32 s7, 0
s_cselect_b32 {sTmp}, s6, {hex(OOB)}
v_mov_b32 v9, 0""")
    zst = Op(f"buffer_store_dword v9, v8, {srdWS}, {sTmp} offen sc1", "vm"); o.append(zst)

    o += lin(f"""
s_mov_b32 {sScale}, {hex(cbits)}
s_mov_b32 {sLo}, 0x30800000
s_mov_b32 {sHi}, 0x4e800000
s_mov_b32 {sHead}, 0
s_lshl_b32 {sW1k}, {sWave}, 10
s_mov_b32 s28, s78
s_mov_b32 s29, s79
s_mov_b32 s30, 0x600000
s_mov_b32 s31, 0x20000
s_mov_b32 s32, s80
s_mov_b32 s33, s81
s_mov_b32 s34, 0x100
s_mov_b32 s35, 0x20000

v_lshrrev_b32 v1, 2, v6
v_and_b32 v2, 3, v6
v_lshl_add_u32 v3, v1, 4, v2
v_lshlrev_b32 v3, 8, v3""")
    for s in range(4):
        o += lin(f"s_and_b32 s3, {sWcol}, 128\nv_add_u32 v4, {4*s}, v5\nv_xor_b32 v4, v4, v6\nv_lshl_add_u32 {vK[s]}, v4, 4, v3\nv_xor_b32 {vK[s]}, s3, {vK[s]}")
    o += lin(f"""
v_lshl_add_u32 v3, v5, 4, v1
v_lshlrev_b32 v3, 8, v3
v_and_b32 v4, 1, v5
v_lshl_add_u32 v7, v4, 2, v1
v_lshl_add_u32 v3, v7, 5, v3
v_lshl_add_u32 v3, v2, 3, v3
v_add_u32 {vVb}, {BASE["V7"]*16384}, v3
v_lshl_add_u32 v3, v5, 2, v1
v_lshlrev_b32 v3, 7, v3
v_lshrrev_b32 v7, 1, v1
v_lshl_add_u32 v7, v4, 1, v7
{"v_lshlrev_b32 v7, 1, v7" if OPT["nperm"] else "v_lshl_add_u32 v3, v7, 5, v3"}
{"v_xor_b32 v7, v7, v2" if OPT["nperm"] else ""}
{"v_lshl_add_u32 v7, v7, 4, v3" if OPT["nperm"] else "v_lshl_add_u32 v7, v2, 3, v3"}
v_add_u32 {vWb}, {F.wb0*16384}, v7
v_mov_b32 v3, 0x3f803f80
v_accvgpr_write_b32 a252, v3
v_accvgpr_write_b32 a253, v3
v_accvgpr_write_b32 a254, v3
v_accvgpr_write_b32 a255, v3
""")
    for s in range(4):
        o += lin(f"v_add_u32 v{S0+s}, {sW1k}, {vK[s]}\nv_add_u32 v{S0+4+s}, 0x10000, v{S0+s}\nv_add_u32 v{S0+8+s}, 0x20000, v{S0+s}\nv_add_u32 {vK[s]}, {BASE['K7']*16384}, {vK[s]}")
    o += lin(f"s_add_u32 {sW1k}, {sW1k}, {lit((XB - BASE['K7'])*16384)}")
    for j in range(4, 8): o += dma_linear(*init[j])
    o += lin(f"""s_lshl_b32 s6, {sG}, 19
s_add_u32 s80, s76, s6
s_addc_u32 s81, s77, 0
s_mov_b32 {sGate}, 0
s_lshl_b32 {sH[0]}, {sHr}, 17
s_add_u32 {sH[1]}, {sH[0]}, 0x20000
s_and_b32 {sH[1]}, {sH[1]}, 0x7ffff
s_xor_b32 {sH[2]}, {sH[0]}, 0x40000
s_xor_b32 {sH[3]}, {sH[1]}, 0x40000
{"s_mov_b32 s73, s92" if OPT["dbl"] else ""}
s_mov_b32 s76, {hex(OOB)}
s_mov_b32 s77, {hex(OOB)}
s_getreg_b32 {sXcc}, hwreg(HW_REG_XCC_ID, 0, 3)
s_lshr_b32 {sRot}, {sB}, 2
s_and_b32 {sRot}, {sRot}, {7 if OPT["rot"] else 0}
s_lshl_b32 {sRot}, {sRot}, 7
s_lshl_b32 {sXcc}, {sXcc}, 2
s_lshl_b32 {sXcc}, 1, {sXcc}""" + "".join(f"\ns_add_u32 {sC[i]}, {sRot}, {128*(i+1)}\ns_and_b32 {sC[i]}, {sC[i]}, 0x3ff" for i in range(3))
      + "".join("\n" + "\n".join(x_t0(sN[NEXT.index('X' + 'abc'[a])], a, 3)) for a in range(3)) + f"""
s_mul_i32 s6, {sB}, {8*CHUNK + 4096}
s_mov_b32 s75, s6
s_add_u32 s6, s6, 4096
s_mul_i32 s7, {sWave}, 49152
s_add_u32 {sStR}, s6, s7
s_lshl_b32 s7, {sG}, 10
s_add_u32 {sStR}, {sStR}, s7
s_mul_i32 s7, {sG}, 3
s_add_u32 s7, s7, {sWave}
s_lshl_b32 s4, s7, 13
s_add_u32 {sLdR}, s6, s4
s_lshl_b32 {sFlR}, {sB}, 11
s_add_u32 {sFlR}, {sFlR}, {hex(FLAG_BASE - 256)}
s_lshr_b32 s4, s7, 1
s_mul_i32 s5, s4, 11
s_lshr_b32 s5, s5, 5
s_mul_i32 s3, s5, 3
s_sub_u32 s4, s4, s3
s_lshl_b32 s4, s4, 6
s_lshl_b32 s5, s5, 2
s_add_u32 s4, s4, s5
s_mul_i32 s5, {sB}, 192
s_add_u32 s4, s4, s5
s_lshl_b32 s4, s4, 10
s_and_b32 s5, s7, 1
s_lshl_b32 s5, s5, 6
s_add_u32 {sOutR}, s4, s5
s_mov_b32 {sOc}, {sRot}
s_cmp_eq_u32 {sWave}, 3
s_cselect_b32 {sLdR}, {hex(OOB)}, {sLdR}
s_cselect_b32 {sOutR}, {hex(OOB)}, {sOutR}
v_bfe_u32 v3, {vLane}, 3, 2
v_and_b32 v2, 3, {vLane}
v_lshlrev_b32 {vC}, 5, v3
v_lshl_add_u32 {vC}, v2, 3, {vC}
v_lshlrev_b32 v3, 1, v3
v_xor_b32 v2, v2, v3
v_lshlrev_b32 v2, 4, v2
v_sub_u32 {vC}, {vC}, v2""")
    if OPT["tlb"] == 2:
        o += lin(f"""s_mov_b32 s4, {hex(FLAG_BASE + 0x20080)}
s_mov_b32 s88, s80
s_mov_b32 s89, s81
s_mov_b32 s90, 0x80000
s_add_u32 s5, s75, {8*CHUNK + 4096}""") if False else lin(f"s_mov_b32 s4, {hex(FLAG_BASE + 0x20080)}\ns_add_u32 s5, s75, {8*CHUNK + 4096}")
        o += [Op(f"buffer_load_dword {vB}, off, {srd}, {so}", "vm") for srd, so in ((srdWS, "s75"), (srdWS, "s5"), (srdWS, "s4"), (srdO, sOutR))]
    if OPT["stamps"]:
        o += lin(f"s_lshl_b32 s101, s2, 10\ns_lshl_b32 s6, {sWave}, 8\ns_add_u32 s101, s101, s6\ns_add_u32 s101, s101, {hex(STAMP_BASE)}")
    if OPT["stamps"] == 2: o += stamp(1)
    o.append(WAIT(0, need_vm=[x[0] for x in init[:4]]))
    o += lin("s_barrier")
    if OPT["stamps"] == 2: o += stamp()
    for t in range(3):
        for s in range(4): o += lin("ds_read_b128 %s, %s offset:%d" % ((XA(s, t),) + F.xaddr(F.xsl0[t], s)))
    for s in range(4):
        for p in range(2): o += lin(f"ds_read_b64_tr_b16 {FR(0, s, p)}, {vWb} offset:{F.wso0 + s*4096 + p*2048}")
    o += lin("s_waitcnt lgkmcnt(0)\ns_barrier")
    return o, zst

def glue0(zst):
    return [WAIT(0, need_vm=[zst])] + lin(f"""s_lshl_b32 s6, {sB}, 2
s_cmp_eq_u32 {sWave}, 0
s_cselect_b32 s6, s6, {hex(OOB)}
v_mov_b32 {vB}, {hex(OOB)}
v_writelane_b32 {vB}, 0, 0
v_mov_b32 {vA}, {sXcc}""") + [Op(f"buffer_atomic_add {vA}, {vB}, {srdD}, s6 offen sc1", "vm")]
def touch_setup():
    return lin(f"""v_mbcnt_lo_u32_b32 {vA}, -1, 0
v_mbcnt_hi_u32_b32 {vA}, -1, {vA}
s_cmp_eq_u32 {sSlM}, 1
s_cselect_b32 s76, {sLdR}, {hex(OOB)}
s_cselect_b32 s4, 256, {hex(OOB)}
{"" if OPT["bst"] else f"v_lshlrev_b32 {vLane}, 7, {vA}"}
v_and_b32 {vA}, 7, {vA}
v_lshlrev_b32 {vA}, 8, {vA}
s_add_u32 s77, s76, {CHUNK}
s_add_u32 s4, s4, {sFlR}""") + ([Op(f"buffer_load_dword {vB}, {vA}, {srdWS}, s4 offen sc1", "vm")] if OPT["ftch"] else [])
def mode_check(dbg):
    if OPT["bst"]: return lin(f"L_chkD:\nL_backD:\ns_mov_b32 {sSlM}, 1")
    return [WAIT(0, need_vm=[dbg])] + lin(f"""s_mov_b32 s3, 0
L_chkD:
v_readfirstlane_b32 s4, {vLane}
s_nop 3
s_lshr_b32 s5, s4, 4
s_and_b32 s5, s5, 0x0f0f0f0f
s_and_b32 s7, s4, 0x0f0f0f0f
s_add_u32 s5, s5, s7
s_mul_i32 s5, s5, 0x01010101
s_lshr_b32 s5, s5, 24
s_cmp_lg_u32 s5, 8
s_cbranch_scc1 L_spinD
L_backD:
s_lshl_b32 s5, {sXcc}, 3
{"s_mov_b32 s5, 0" if OPT["forceslow"] else ""}
s_cmp_eq_u32 s4, s5
s_cselect_b32 {sSlM}, 1, 7""")

def slow_path(placed, pendW0):
    vKo, vVo, vVo2, vKo2 = f"v{PV0+40}", f"v{PV0+41}", f"v{PV0+42}", f"v{PV0+43}"
    M = [f"v{PV0+36+t}" for t in range(3)]
    CN = [R("v", PV0 + 24 + 4*t, 4) for t in range(3)]
    Sx = [R("v", S0 + 4*t, 4) for t in range(3)]
    t_ = f"""
L_slow:
s_waitcnt vmcnt(0) lgkmcnt(0)
s_nop 7
v_mbcnt_lo_u32_b32 {vB}, -1, 0
v_mbcnt_hi_u32_b32 {vB}, -1, {vB}
v_and_b32 {vA}, 15, {vB}
v_lshrrev_b32 {vB}, 4, {vB}
v_lshlrev_b32 {vKo}, 8, {vA}
v_lshl_add_u32 {vKo}, {vB}, 4, {vKo}
s_and_b32 s4, {sWcol}, 128
s_xor_b32 s5, s4, 128
v_add_u32 {vKo2}, s5, {vKo}
v_add_u32 {vKo}, s4, {vKo}
v_lshlrev_b32 {vVo}, 10, {vB}
v_lshl_add_u32 {vVo}, {vA}, 1, {vVo}
v_add_u32 {vVo2}, 0x1000, {vVo}
s_add_u32 s4, {sHr}, {sHead}
s_and_b32 s4, s4, 3
s_lshl_b32 s4, s4, 17
s_mov_b32 s10, 0x80000
s_mov_b32 s14, 0x80000
s_add_u32 s5, s4, 0x20000
s_mov_b32 s6, s4
"""
    for t in range(3): t_ += f"v_mov_b32 {M[t]}, 0xff800000\n"
    t_ += "L_slow1:\n"
    for s in range(4): t_ += f"buffer_load_dwordx4 {FR(0, s)}, {vKo if s < 2 else vKo2}, {srdK}, s6 offen offset:{64*(s & 1)}\n"
    t_ += "s_waitcnt vmcnt(0)\n"
    for t in range(3):
        for s in range(4): t_ += f"v_mfma_f32_16x16x32_bf16 {Sx[t]}, {FR(0, s)}, {QV(s, t)}, {'0' if s == 0 else Sx[t]}\n"
    t_ += "s_nop 9\n"
    for t in range(3):
        t_ += f"v_max3_f32 {M[t]}, {M[t]}, v{S0+4*t}, v{S0+4*t+1}\nv_max3_f32 {M[t]}, {M[t]}, v{S0+4*t+2}, v{S0+4*t+3}\n"
    t_ += "s_add_u32 s6, s6, 0x1000\ns_cmp_lt_u32 s6, s5\ns_cbranch_scc1 L_slow1\n"
    for t in range(3):
        t_ += f"""v_mov_b32 {vA}, {M[t]}
s_nop 1
v_permlane32_swap_b32 {vA}, {M[t]}
s_nop 1
v_max_f32 {M[t]}, {vA}, {M[t]}
v_mov_b32 {vA}, {M[t]}
s_nop 1
v_permlane16_swap_b32 {vA}, {M[t]}
s_nop 1
v_max_f32 {M[t]}, {vA}, {M[t]}
"""
        for i in range(4): t_ += f"v_sub_f32 v{PV0+24+4*t+i}, 0, {M[t]}\n"
    for i in range(96): t_ += f"v_mov_b32 v{i}, 0\n"
    for i in range(12): t_ += f"v_accvgpr_write_b32 a{240+i}, 0\n"
    t_ += "s_mov_b32 s6, s4\nL_slow2:\n"
    for u in range(2):
        for s in range(4): t_ += f"buffer_load_dwordx4 {FR(0, s)}, {vKo if s < 2 else vKo2}, {srdK}, s6 offen offset:{64*(s & 1)}\n"
        t_ += "s_waitcnt vmcnt(0)\n"
        for t in range(3):
            for s in range(4): t_ += f"v_mfma_f32_16x16x32_bf16 {Sx[t]}, {FR(0, s)}, {QV(s, t)}, {CN[t] if s == 0 else Sx[t]}\n"
        t_ += "s_nop 9\n"
        for i in range(12): t_ += f"v_exp_f32 v{S0+i}, v{S0+i}\n"
        t_ += "s_nop 0\n"
        for t in range(3):
            for j in range(2): t_ += f"v_cvt_pk_bf16_f32 {PBr(0, 0, t, 2*u + j)}, v{S0+4*t+2*j}, v{S0+4*t+2*j+1}\n"
        if u == 0: t_ += "s_mov_b32 s7, s6\ns_add_u32 s6, s6, 0x1000\n"
    f = FA0 + 16
    for dt in range(8):
        for j in range(8):
            t_ += f"buffer_load_ushort v{FA0 + j}, {vVo if j < 4 else vVo2}, {srdV}, s7 offen offset:{(j & 3)*256 + 32*dt}\n"
        t_ += "s_waitcnt vmcnt(0)\n"
        for j in range(4): t_ += f"v_lshl_or_b32 v{f + j}, v{FA0 + 2*j + 1}, 16, v{FA0 + 2*j}\n"
        t_ += "s_nop 1\n"
        for t in range(3): t_ += f"v_mfma_f32_16x16x32_bf16 {OA(dt, t)}, v[{f}:{f+3}], {PB(0, 0, t)}, {OA(dt, t)}\n"
    for t in range(3): t_ += f"v_mfma_f32_16x16x32_bf16 {LA(t)}, {ONES}, {PB(0, 0, t)}, {LA(t)}\n"
    t_ += "s_add_u32 s6, s6, 0x1000\ns_cmp_lt_u32 s6, s5\ns_cbranch_scc1 L_slow2\ns_nop 9\n"
    for t in range(3): t_ += f"v_accvgpr_read_b32 {vRL[t]}, a{240+4*t}\n"
    for t in range(3): t_ += f"v_rcp_f32 {vRL[t]}, {vRL[t]}\n"
    t_ += "s_nop 0\n"
    for o in placed: t_ += o.text + "\n"
    for o in pendW0: t_ += o.text + "\n"
    t_ += "s_waitcnt lgkmcnt(0)\n"
    t_ += "s_branch L_join\n"
    return lin(t_)

def spin(lbl, back, reg, off_v, srd, soff, exp):
    return lin(f"""{lbl}:
s_mov_b32 s3, 0
{lbl}_l:
buffer_load_dword {reg}, {off_v}, {srd}, {soff}{' offen' if off_v != 'off' else ''} sc1
s_add_u32 s3, s3, 1
s_waitcnt vmcnt(0)
v_cmp_ne_u32 vcc, {exp}, {reg}
s_cmp_gt_u32 s3, 0x10000
s_cbranch_scc1 {back}
s_nop 2
s_cbranch_vccnz {lbl}_l
s_branch {back}""")

def pad_linear(ops):
    out = []
    for o in ops:
        need = 0
        for (p, n) in o.sdeps:
            if p in out: need = max(need, n - sum(x.w for x in out[out.index(p)+1:]))
        if need > 0:
            nop = Op(f"s_nop {need-1}", "x"); nop.w = need; out.append(nop)
        out.append(o)
    return out

def tail(G):
    X = (lambda: stamp()) if OPT["stamps"] == 3 else (lambda: [])
    def sums(set_, loads):
        o0, p0, s0_ = reduce_ops(set_)
        return [WAIT(0, need_vm=loads)] + pad_linear(o0 + p0 + [s0_])
    o = lin("\n".join(scal_B()) + "\ns_nop 1")
    stores = []
    if OPT["wb"] & 2: o += lin(f"s_cmp_lg_u32 {sG}, 0\ns_cbranch_scc1 L_nwa@L\ns_cmp_lg_u32 {sWave}, 3\ns_cbranch_scc1 L_nwa@L\nbuffer_wbl2 sc1\nL_nwa@L:")
    for (cv, sa, st) in pack_store(1):
        o += cv + [sa, st]; stores.append(st)
    if True:
        o += X() + sums(1, G.LD[1]) + X()
        o += [WAIT(0, need_vm=stores)] + X() + lin("s_barrier") + sig_ops()
        o += lin("s_branch L_spinU@L\nL_backU@L:") + X()
        l7 = red_loads(0); o += l7
        if OPT["wb"] & 1: o += lin(f"s_cmp_lg_u32 {sG}, {7 if OPT['wb'] & 4 else 0}\ns_cbranch_scc1 L_nwb@L\ns_cmp_lg_u32 {sWave}, 3\ns_cbranch_scc1 L_nwb@L\nbuffer_wbl2 sc1\nL_nwb@L:")
        o += lin(f"s_add_u32 {sOut}, {sOutR}, {sOc}")
        if OPT["stamps"] == 3: o += lin("s_waitcnt vmcnt(0)") + X()
        o += sums(0, l7) + X() + X()
    return o

def main():
    R2 = build_R2()
    placed = [o for o in R2.epi if o.gap is not None]; placed.sort(key=lambda o: o.pos)
    R1 = build_R1(R2.left)
    R1b = {h: build_R1b(h) for h in (1, 2, 3)}
    R1f = build_R1f()
    global G_LD, G_LD0
    G0 = build_G(True, R2.left)
    G_LD0 = G0.LD[1]; G_LD = [red_loads(0), red_loads(1)]
    G = build_G()
    bind_ext(R1, [R2.pendW0]); bind_ext(R2, [R1f.pend] + [R1b[h].pend for h in R1b]); bind_ext(G0, [R2.pendW0]); bind_ext(G, [G0.pend, G.pend])
    for h in R1b: bind_ext(R1b[h], [R1.pend])
    for w in R1f.xw: w.text = 's_nop 0'
    pro, zst = prologue(R1f)
    for j, t in enumerate(NEXT): TILE[f'G{j}'] += TILE[t]
    p0 = glue0(zst) + lin("s_branch L_R2")
    sel = lin(f"s_cmp_eq_u32 {sHead}, 2\ns_cbranch_scc1 L_v2\ns_cmp_eq_u32 {sHead}, 3\ns_cbranch_scc1 L_v3")
    v1 = R1b[1].out + lin("s_branch L_R2")
    v2 = lin("L_v2:") + R1b[2].out + lin("s_branch L_R2")
    if OPT["etch"]:
        fl = ["", "", " sc1"][OPT["etch"]]
        v3 = lin("L_v3:") + mode_check(getattr(R1b[2], "dbg", None)) + touch_setup() + \
             [Op(f"buffer_load_dword {vB}, {vLane}, {srdWS}, {x} offen{fl}", "vm") for x in ("s76", "s77")] + R1b[3].out + code_pf("L_pc2", "L_g3", "L_codeend", 15, 76) + \
             lin(f"s_mov_b32 s76, {hex(OOB)}\ns_mov_b32 s77, {hex(OOB)}")
    else:
        v3 = lin("L_v3:") + R1b[3].out + mode_check(getattr(R1b[2], "dbg", None)) + code_pf("L_pc2", "L_g3", "L_codeend", 15, 76) + touch_setup()
    g2 = lin(f"s_or_b64 {sBad}, {sBad}, vcc\ns_cbranch_scc1 L_slow\nL_join:\ns_add_u32 {sHead}, {sHead}, 1\ns_cmp_lt_u32 {sHead}, 4")
    g3 = lin(f"s_cmp_eq_u32 {sSlM}, 7\ns_cbranch_scc1 L_G0S")
    g4 = lin(f"s_mov_b32 {sC[0]}, {sC[2]}\ns_add_u32 {sC[1]}, {sC[0]}, 128\ns_and_b32 {sC[1]}, {sC[1]}, 0x3ff\ns_add_u32 {sC[2]}, {sC[1]}, 128\ns_and_b32 {sC[2]}, {sC[2]}, 0x3ff\ns_cmp_lt_u32 {sIt}, 8")
    T = tail(G)
    sA, sB_, sC_, sD_, sE = stamp(1 if OPT['stamps'] in (1, 3) else 0), stamp(), stamp(), stamp(), stamp(2)
    if OPT["bst"]:
        def dump():
            return lin(f"v_mbcnt_lo_u32_b32 {vA}, -1, 0\nv_mbcnt_hi_u32_b32 {vA}, -1, {vA}\nv_lshlrev_b32 {vA}, 2, {vA}") + [Op(f"buffer_store_dword {vLane}, {vA}, {srdWS}, s101 offen", "vm")] + lin("s_add_u32 s101, s101, 256\ns_nop 1")
        sA = lin(f"s_lshl_b32 s101, s2, 2\ns_add_u32 s101, s101, {sWave}\ns_lshl_b32 s101, s101, 12\ns_add_u32 s101, s101, {hex(DUMP_BASE)}")
        sC_ = dump(); sD_ = dump()
    tr = pro + sA
    for hd in range(4):
        tr += [R1f.out + p0, R1.out + sel + v1, R1.out + sel + v2, R1.out + sel + v3][hd] + sB_ + R2.out + g2 + sC_
    tr += g3
    post = []
    for it in range(3): post += G.out + g4 + sD_
    post += T
    resolve_waits(tr + [x for x in G0.out if x.tag != "touch"] + g4 + sD_ + post, TILE)
    tr += G0.out + g4 + sD_ + post
    resolve_waits(tr, TILE)
    errs = check(tr, "main")
    for e in errs[:20]: print(e, file=sys.stderr)
    assert not errs
    for rg in (R1f, R1, R1b[1], R1b[3], R2, G0, G): print(rg.name, "overfull:", rg.overlog, file=sys.stderr)
    out = [open(os.path.join(os.path.dirname(os.path.abspath(__file__)), "header.txt")).read().rstrip()]
    out.append("; @launch grid=(256,1,1) block=(256,1,1) lds=163840")
    out.append(f""".amdgcn_target "amdgcn-amd-amdhsa--gfx950"
.text
.globl {KN}
.p2align 8
.type {KN},@function
{KN}:""")
    def emit(ops, sc="", lb=""):
        for o in ops:
            if OPT["nobar"] and o.text == "s_barrier" and o.kind == "w": out.append("s_nop 0"); continue
            if OPT["nolg"] and o.kind == "w" and o.text.startswith("s_waitcnt") and "vmcnt" not in o.text: out.append("s_nop 0"); continue
            if OPT["nods"] and o.kind == "ds": continue
            if OPT["novalu"] and o.kind in ("v4", "v8") and o.gap is not None and ("exp" in o.text or "cvt" in o.text or "mul" in o.text or "perm" in o.text or "and" in o.text or "lshl" in o.text or "add_f32" in o.text): continue
            if OPT["nodma"] and o.text.endswith(" lds"): out.append("s_nop 0"); continue
            if OPT["nored"] and " sc1" in o.text and "dwordx4" in o.text: out.append("s_nop 0"); continue
            if getattr(o, "pre", None): out.append(o.pre)
            out.append(o.text.replace("@SC", sc).replace("@L", lb))
    def mark(n):
        return lin("s_memrealtime s[2:3]\ns_waitcnt lgkmcnt(0)\ns_sub_u32 s75, s2, s73") if OPT["dbl"] == n else []
    def idle(n, tag):
        if not n: return []
        return lin(f"""s_memrealtime s[2:3]
s_waitcnt lgkmcnt(0)
s_mov_b32 s5, s2
L_idle{tag}:
s_sleep 2
s_memrealtime s[2:3]
s_waitcnt lgkmcnt(0)
s_sub_u32 s4, s2, s5
s_cmp_lt_u32 s4, {n}
s_cbranch_scc1 L_idle{tag}""")
    def ex(n): return (stamp(2) + lin("s_endpgm")) if OPT["exitat"] == n else []
    emit(pro + mark(3) + idle(OPT['idle0'], 'a') + sA + ex(1) + R1f.out + mark(4) + p0)
    out.append("L_loop:"); emit(R1.out + sel + v1 + v2 + v3); out.append("L_R2:"); emit(idle(OPT['idle1'], 'b') + sB_ + R2.out + g2 + sC_)
    if OPT["dbl"] >= 10:
        emit(lin(f"s_cmp_lg_u32 {sHead}, {OPT['dbl'] - 9}\ns_cbranch_scc1 L_nomark") + mark(OPT["dbl"]) + lin(f"L_nomark:\ns_cmp_lt_u32 {sHead}, 4"))
    if OPT["stamps"] or OPT["bst"]: out.append(f"s_cmp_lt_u32 {sHead}, 4")
    out.append("s_cbranch_scc1 L_loop")
    out.append('L_g3:'); emit(mark(5) + ex(3) + g3)
    for sc, lb in ((NTST, ""), (" sc1", "S")):
        out.append(f"L_G0{lb}:"); emit([(Op("s_nop 0", "x") if (lb and x.tag == "touch") else x) for x in G0.out] + g4 + sD_, sc, lb)
        out.append(f"L_G{lb}:"); emit(G.out + g4 + sD_, sc, lb)
        if OPT["stamps"] or OPT["bst"]: out.append(f"s_cmp_lt_u32 {sIt}, 8")
        out.append(f"s_cbranch_scc1 L_G{lb}")
        emit(T + sE, sc, lb)
        if OPT["dbl"]:
            emit(lin(f"""s_waitcnt vmcnt(0)
s_memrealtime s[2:3]
s_waitcnt lgkmcnt(0)
{"s_sub_u32 s4, s2, s73" if OPT["dbl"] == 1 else ("s_mov_b32 s4, 500" if OPT["dbl"] == 2 else "s_mul_i32 s4, s75, 4")}
s_min_u32 s4, s4, 40000
s_mov_b32 s5, s2
L_dbl{lb}:
s_sleep 4
s_memrealtime s[2:3]
s_waitcnt lgkmcnt(0)
s_sub_u32 s6, s2, s5
s_cmp_lt_u32 s6, s4
s_cbranch_scc1 L_dbl{lb}"""))
        out.append("s_endpgm")
        if not lb: out.append("L_codeend:")
        for nm in ("G0", "G1", "G1F", "U"): emit(spin(f"L_spin{nm}{lb}", f"L_back{nm}{lb}", vPr, vPo, srdWS, sPoll, sExp))
    emit(lin(f"""L_spinD:
s_add_u32 s3, s3, 1
s_cmp_gt_u32 s3, 0x10000
s_cbranch_scc1 L_backD
s_lshl_b32 {sTmp}, {sB}, 2
buffer_load_dword {vLane}, off, {srdD}, {sTmp} sc1
s_waitcnt vmcnt(0)
s_branch L_chkD"""))
    emit(slow_path(placed, R2.pendW0))
    out.append(f"""s_endpgm
.section .rodata,"a"
.p2align 6
.amdhsa_kernel {KN}
  .amdhsa_next_free_vgpr 512
  .amdhsa_next_free_sgpr 102
  .amdhsa_accum_offset 256
  .amdhsa_group_segment_fixed_size 0
  .amdhsa_kernarg_size 64
  .amdhsa_user_sgpr_count 2
  .amdhsa_user_sgpr_kernarg_segment_ptr 1
  .amdhsa_system_sgpr_workgroup_id_x 1
.end_amdhsa_kernel""")
    print("\n".join(out))
main()
```

```python
import sys, os, struct, math
sys.path.insert(0, os.path.dirname(os.path.abspath(__file__)))
from sched import *
import ringplan

OPT = dict(stamps=0, nt=1, stress=0, msum=1, clean=0, stag=0, stagm=0, mapping=48, nodma=0, samekv=0, nored=0, ntw=0, ntx=0, bst=0, lrate=3, lburst=4, rsp=8, rk=2, i0=-170, dk=75, ksp=4, wsp=5, gst=4, gld=4, gsig=1, gpoll=108, gsum=8, gdma=40, glc=0, rot=1, gout=189, gdsp=5, lag=1, forceslow=0, ntst=0, pf=128, hrot=3, hswap=1, plan=0, wstrict=1, rspw=10, samew=0, samex=0, krot=3, osc=0, idle0=0, idle1=0, exitat=0, wb=0, dbl=0, nperm=1, bdw=2, bda=2, vlate=1, tch=0, gtch=0, kvlate=4, tg=0, etch=0, gl3=1, ftch=1, tlb=0, fsp=2, fkv=5, fgap=7, nobar=0, nolg=0, nods=0, novalu=0)
for a in sys.argv[1:]:
    k, v = a.split("="); assert k in OPT, k; OPT[k] = float(v) if "." in v else int(v)
Region.LDSRATE = OPT["lrate"]; Region.LDSBURST = OPT["lburst"]
KN = "standalone__mha_block_cached__near_ridge_kernel"

def OA(mt, t): return R("v", (mt*3 + t)*4, 4)
def OAr(mt, t, i): return f"v{(mt*3 + t)*4 + i}"
QV0, PV0, S0, FA0 = 96, 144, 192, 204
def QV(s, t): return R("v", QV0 + (s*3 + t)*4, 4)
def QVr(s, t, i): return f"v{QV0 + (s*3 + t)*4 + i}"
def PB(buf, sg, t): return R("v", PV0 + 24*buf + (sg*3 + t)*4, 4)
def PBr(buf, sg, t, i): return f"v{PV0 + 24*buf + (sg*3 + t)*4 + i}"
def OP(s, t): return R("v", PV0 + (s*3 + t)*4, 4)
def OPr(s, t, i): return f"v{PV0 + (s*3 + t)*4 + i}"
def FR(buf, f, half=None):
    b = FA0 + 16*buf + 4*f
    return R("v", b, 4) if half is None else R("v", b + 2*half, 2)
vK = ["v236", "v237", "v238", "v239"]
vVb, vWb, vT = "v240", "v241", ["v242", "v243"]
vDK, vDV, vDW, vDX, vC = "v244", "v245", "v246", "v247", "v248"
vRL = ["v249", "v250", "v251"]
vLane, vDWo, vA, vB = "v252", "v253", "v254", "v255"
def XA(s, t): return R("a", (s*3 + t)*4, 4)
ZB = {0: 144, 1: 192, 2: 0}
def ZA(h, s, t): return R("a", ZB[h] + (s*3 + t)*4, 4)
def LA(t): return R("a", 240 + 4*t, 4)
ONES = "a[252:255]"

srdK, srdV, srdW, srdX, srdWS, srdO, srdD = (f"s[{i}:{i+3}]" for i in (8, 12, 16, 20, 24, 28, 32))
sW1k, sXcc, sRot, sOc = "s36", "s37", "s38", "s39"
sC = ["s40", "s41", "s42"]
sDg = ["s43", "s44", "s45", "s46"]
sIdx = "s99"
sH = ["s93", "s95", "s96", "s97"]; sHr = "s98"; sSw = "s3"
sKoff, sVoff, sWcol = "s47", "s48", "s49"
sD = [None, "s50", "s51", "s52"]
sDY = [None, "s53", "s54", "s55"]
sT = ["s56", "s57", "s58", "s59"]
sW4k, sHead, sScale, sWave, sB, sG, sLo, sHi = (f"s{i}" for i in range(60, 68))
sBad = "s[84:85]"
sN = [f"s{i}" for i in range(86, 92)]
sTmp = "s100"
sIt, sSt, sSig, sExp, sLd, sLd2, sOut = (f"s{i}" for i in range(86, 93))
sStR, sLdR, sFlR, sOutR, sSlM, sLdMin, sGate = (f"s{i}" for i in range(68, 75))
sPoll = sSig; sPo = "s99"; sTk, sTh, sTo = "s43", "s44", "s45"
sU = ["s4", "s5"]; sMask = "s6"
OOB = 0x40000000
FLAG_BASE = 0x3040000
STAMP_BASE = 0x3100000
DUMP_BASE = 0x4000000
WS_BYTES = 0x20000000 if OPT["stress"] else (0x8000000 if OPT["bst"] else 0x3200000)
CHUNK = 196608
ORD = [(0,0),(0,1),(0,2),(1,0),(0,3),(1,3),(1,1),(1,2)]
ORDG = [(j >> 2, j & 3) for j in range(8)]
NTKV = {"K": " nt" if OPT["nt"] in (1, 2) else "", "V": " nt" if OPT["nt"] in (1, 3) else ""}
NTW = " nt" if OPT["ntw"] else ""
NTX = " nt" if OPT["ntx"] else ""
def wq_lit(step): return ORD[step][1]*0x100000 + ORD[step][0]*128
def wo_lit(m): return (m & 3)*0x20000 + (m >> 2)*128

def S(text, rd=(), wr=(), **kw): return Op(text, "s", rd=rd, wr=wr, **kw)
def V(text, rd=(), wr=(), **kw): return Op(text, "v4", rd=rd, wr=wr, **kw)
def V8(text, rd=(), wr=(), **kw): return Op(text, "v8", rd=rd, wr=wr, **kw)
def WAIT(d, need_ds=(), need_vm=(), lg0=False, late=3, e=-1):
    o = Op("s_waitcnt ?", "w", e=e, d=d, late=late, deps=[(x, 1) for x in need_ds])
    o.need_ds, o.need_vm, o.lg0 = list(need_ds), list(need_vm), lg0
    return o
def lin(text):
    return [Op(l.strip(), "x") for l in text.strip().split("\n") if l.strip()]

class Ctx: pass
C = Ctx(); C.grp = 0

ringplan.setb(OPT["bdw"], OPT["bda"]); BDW, BDA = OPT["bdw"], OPT["bda"]
wI = {"W0": -210, "W1": -135, "W2": -55, "W3": 36 + BDW, "W4": 78, "W5": 112, "W6": 162, "W7": 186}
xI = {"Xa": -430, "Xb": -350, "Xc": -280}
PLANS = {
 5: {'Xa': -430, 'Xb': -350, 'Xc': -280, 'W0': -210, 'W1': -135, 'W2': -55, 'W3': 38, 'W4': 78, 'W5': 112, 'W6': 162, 'W7': 186, 'K0': -170, 'K1': -95, 'V0': -20, 'K2': 55, 'V1': 140, 'K3': 290, 'V2': 345, 'K4': 400, 'V3': 460, 'K5': 525, 'V4': 590, 'K6': 660, 'V5': 730, 'K7': 805, 'V6': 880, 'V7': 955},
 6: {'Xa': -430, 'Xb': -350, 'Xc': -280, 'W0': -210, 'W1': -135, 'W2': -55, 'W3': 38, 'W4': 78, 'W5': 112, 'W6': 162, 'W7': 186, 'K0': -170, 'K1': -95, 'V0': -20, 'K2': 135, 'V1': 290, 'K3': 335, 'V2': 385, 'K4': 435, 'V3': 490, 'K5': 545, 'V4': 605, 'K6': 665, 'V5': 730, 'K7': 805, 'V6': 880, 'V7': 955},
 3: {'Xa': -514, 'Xb': -444, 'Xc': -297, 'W0': -229, 'W1': -155, 'W2': -63, 'W3': 8, 'W4': 38, 'W5': 82, 'W6': 110, 'W7': 180, 'K0': -187, 'K1': -112, 'V0': -38, 'K2': 58, 'V1': 141, 'K3': 216, 'V2': 290, 'K4': 364, 'V3': 436, 'K5': 507, 'V4': 579, 'K6': 651, 'V5': 721, 'K7': 794, 'V6': 863, 'V7': 940},
 4: {'Xa': -514, 'Xb': -444, 'Xc': -297, 'W0': -229, 'W1': -155, 'W2': -63, 'W3': 8, 'W4': 38, 'W5': 82, 'W6': 110, 'W7': 180, 'K0': -180, 'K1': -108, 'V0': -36, 'K2': 58, 'V1': 141, 'K3': 216, 'V2': 290, 'K4': 364, 'V3': 438, 'K5': 512, 'V4': 586, 'K6': 660, 'V5': 734, 'K7': 808, 'V6': 878, 'V7': 950},
 1: {'Xa': -510, 'Xb': -430, 'Xc': -352, 'W0': -205, 'W1': -106, 'W2': -26, 'W3': 5, 'W4': 37, 'W5': 98, 'W6': 161, 'W7': 190, 'K0': -243, 'K1': -157, 'V0': -60, 'K2': 64, 'V1': 130, 'K3': 221, 'V2': 290, 'K4': 354, 'V3': 415, 'K5': 477, 'V4': 593, 'K6': 533, 'V5': 650, 'K7': 728, 'V6': 809, 'V7': 894},
 2: {'Xa': -496, 'Xb': -413, 'Xc': -333, 'W0': -252, 'W1': -103, 'W2': -30, 'W3': 5, 'W4': 38, 'W5': 99, 'W6': 130, 'W7': 188, 'K0': -210, 'K1': -148, 'V0': -54, 'K2': 67, 'V1': 155, 'K3': 221, 'V2': 291, 'K4': 349, 'V3': 409, 'K5': 473, 'V4': 534, 'K6': 598, 'V5': 662, 'K7': 829, 'V6': 747, 'V7': 904},
}
if OPT["plan"]: wI = PLANS[OPT["plan"]]; xI = {}
ISS, SLOT, _c, NEED = ringplan.plan(OPT["i0"], OPT["dk"], wI, xI)
assert SLOT is not None
SPR = {}
for t in ISS:
    m = ISS[t] % 1200
    sp = OPT["ksp"] if t[0] in "KV" else OPT["wsp"]
    if 228 <= m < 288: ISS[t] += 290 - m; m = 290
    SPR[t] = min(sp, ((240 if m < 288 else 1200) - 5 - m)//3); assert SPR[t] >= 1
BASE = {}
for ch in "KVW":
    for i, b in enumerate(ringplan.bases([SLOT[f"{ch}{i}"] for i in range(8)])[1]): BASE[f"{ch}{i}"] = b
XB = min(SLOT["Xa"], SLOT["Xb"], SLOT["Xc"]); assert max(SLOT["Xa"], SLOT["Xb"], SLOT["Xc"]) - XB <= 3
NEXT = sorted([t for t in ISS if ISS[t] < 0 and t[0] in "WX"], key=lambda t: (t != "W0", ISS[t]))
print("plan:", ISS, SLOT, BASE, NEXT, file=sys.stderr)
TILE = {}
def lit(x): return hex(x & 0xffffffff)
def rebase(rg, typ, old, new, e, d, after=()):
    if old == new: return []
    regs_ = vK if typ == "K" else [vVb if typ == "V" else vWb]
    return [rg.F(V(f"v_add_u32 {r}, {lit((new - old)*16384)}, {r}", rd=[r], wr=[r], e=e, d=d, deps=[(a, 0) for a in after if a])) for r in regs_]
def wq_t0(dst, step):
    hf, dg = ORD[step]
    return [f"s_add_u32 {dst}, {sWcol}, {sDg[dg]}"] + ([f"s_xor_b32 {dst}, {dst}, 128"] if hf else [])
def x_t0(dst, a, q):
    return [f"s_lshr_b32 {dst}, {sDg[q]}, 12"] + ([f"s_add_u32 {dst}, {dst}, {a*65536}"] if a else [])
def tile_src(spec):
    k = spec[0]
    if k == "W": return srdW, vDW, wq_t0(sT[0], spec[1]), sD, NTW
    if k == "C": return srdW, vDW, [f"s_add_u32 {sT[0]}, {sC[spec[1]]}, {sH[spec[2]]}"], sD, NTW
    if k == "N": return srdW, vDW, [f"s_mov_b32 {sT[0]}, {sN[spec[1]]}"], sD, NTW
    if k == "Y": return srdX, vDX, [f"s_mov_b32 {sT[0]}, {sN[spec[1]]}"], sDY, NTX
    if k == "X": return srdX, vDX, x_t0(sT[0], spec[1], spec[2]), sDY, NTX
def add_dmas(rg, items):
    ev = []
    for (name, spec, slot, e, sp, bar) in items:
        for i in range(4 if spec[0] != "T" else 2): ev.append((e + sp*i, e, i, name, spec, slot, bar))
    ev.sort(key=lambda x: (x[0], x[1]))
    prev = None; cur = None; wopen = None; ts = None; lastw = None; m0 = None
    for (t, e0, i, name, spec, slot, bar) in ev:
        deps = []
        if bar is not None: deps.append((bar, 0))
        if prev is not None: deps.append((prev, 1))
        if cur != slot:
            m0 = rg.F(Op(f"s_add_u32 m0, {sW4k}, {slot*16384}", "t", wr=["m0"], e=t - 6, deps=([(prev, 1)] if prev else []))); cur = slot
        deps.append((m0, 1))
        if spec[0] == "T":
            o = rg.F(Op(f"buffer_load_dword {vLane}, {srdWS}, {('s76', 's77')[i]} offen lds", "vm", rd=[vLane, "m0"], e=t, d=t + 4, deps=deps))
        elif spec[0] in "KV":
            so, vo, srd = (sKoff, vDK, srdK) if spec[0] == "K" else (sVoff, vDV, srdV)
            st = rg.inc.get(spec[0])
            if st is not None and i == 0: deps.append((st, 0))
            o = rg.F(Op(f"buffer_load_dwordx4 {vo}, {srd}, {so} offen offset:{i*1024}{NTKV[spec[0]]} lds", "vm", rd=[vo, so, "m0"], e=t, d=t + 4, deps=deps))
            if i == 3:
                inc = rg.F(Op(f"s_add_u32 {so}, {so}, 0x4000", "t", rd=[so], wr=[so], deps=[(o, 1)], d=t + 12))
                if name[1] == "7":
                    inc = rg.F(Op(f"s_and_b32 {so}, {so}, 0x7ffff", "t", rd=[so], wr=[so], deps=[(inc, 0)], d=t + 14))
                    nr = "s10" if name[0] == "K" else "s14"
                    rg.F(S(f"s_cmp_eq_u32 {sHead}, 3", deps=[(o, 1)])); inc2 = rg.F(S(f"s_cselect_b32 {nr}, 0, {nr}", d=t + 20))
                rg.inc[spec[0]] = inc
        else:
            srd, vo, t0, dl, fl = tile_src(spec)
            if i == 0:
                assert wopen is None, "W-type tiles may not interleave"
                wopen = name
                tt = rg.F(Op(t0[0], "t", wr=[sT[0]], e=t - 12, deps=([(lastw, 1)] if lastw else [])))
                for x in t0[1:]: tt = rg.F(Op(x, "t", wr=[sT[0]], deps=[(tt, 0)]))
                ts = [tt]
                ts += [rg.F(Op(f"s_add_u32 {sT[j]}, {sT[0]}, {dl[j]}", "t", wr=[sT[j]], deps=[(ts[0], 0)])) for j in (1, 2, 3)]
            o = rg.F(Op(f"buffer_load_dwordx4 {vo}, {srd}, {sT[i]} offen offset:{i*1024}{fl} lds", "vm", rd=[vo, sT[i], "m0"], e=t, d=t + 4, deps=deps + [(ts[i], 0)]))
            if i == 3: wopen = None; lastw = o
        if i == 3: TILE.setdefault(name, []).append(o)
        if i == 0: rg.first_dma[name] = o
        prev = o
    rg.lastw = lastw
def head_dmas(rg, lo, hi):
    items = []
    for t in ISS:
        m = ISS[t] % 1200
        if not (lo <= m < hi): continue
        spec = (t[0],) if t[0] in "KV" else (("W", int(t[1])) if ISS[t] >= 0 else (("N" if t[0] == "W" else "Y"), NEXT.index(t)))
        cands = [g for g in rg.bars if g + lo <= m and any(SLOT[p] == SLOT[t] and NEED[p][1] % 1200 == g + lo for p in NEED)]
        bar = rg.bars[max(cands)] if cands else None
        items.append((t, spec, SLOT[t], m - lo, SPR[t], bar))
    if OPT["stress"]:
        for g in range(lo + 20, (240 if hi == 288 else hi) - 12, OPT["stress"]):
            o = rg.F(Op(f"buffer_load_dword a241, {vDK}, {srdWS}, s75 offen nt", "vm", e=g - lo, d=g - lo + 6))
            rg.F(Op("s_add_u32 s75, s75, 0x1000", "t", deps=[(o, 1)], d=g - lo + 10))
    if hi == 1200 and OPT['tg']:
        tg = OPT["tg"] + lo
        def free(x): return not any(SLOT[p] == x and any(ISS[p] + sh <= tg + 30 and tg < NEED[p][1] + sh for sh in (0, 1200)) for p in NEED)
        x = [x for x in range(10) if free(x)][0]
        cands = [g for g in rg.bars if g + lo <= tg and any(SLOT[p] == x and NEED[p][1] % 1200 == g + lo for p in NEED)]
        items.append(("T", ("T",), x, OPT["tg"], 12, rg.bars[max(cands)] if cands else None))
    add_dmas(rg, items)
def dma_linear(name, spec, slot):
    ops = lin(f"s_add_u32 m0, {sW4k}, {slot*16384}")
    if spec[0] in "KV":
        so, vo, srd = (sKoff, vDK, srdK) if spec[0] == "K" else (sVoff, vDV, srdV)
        d = [Op(f"buffer_load_dwordx4 {vo}, {srd}, {so} offen offset:{i*1024}{NTKV[spec[0]]} lds", "vm") for i in range(4)]
        ops += lin("s_nop 0") + d + lin(f"s_add_u32 {so}, {so}, 0x4000")
    else:
        srd, vo, t0, dl, fl = tile_src(spec)
        d = [Op(f"buffer_load_dwordx4 {vo}, {srd}, {sT[i]} offen offset:{i*1024}{fl} lds", "vm") for i in range(4)]
        ops += lin("\n".join(t0) + "\n" + "\n".join(f"s_add_u32 {sT[i]}, {sT[0]}, {dl[i]}" for i in (1, 2, 3))) + d
    TILE.setdefault(name, []).append(d[-1])
    return ops
def reads_X(rg, addr, slots, dst, e, d, deps, step=1):
    ops = []
    for t in range(3):
        for s in range(4):
            r_, imm = addr(slots[t], s)
            ops.append(rg.F(Op(f"ds_read_b128 {dst(s, t)}, {r_} offset:{imm}", "ds", rd=[r_], wr=[dst(s, t)], e=e, d=d + len(ops)*step,
                               deps=list(deps) + ([(ops[-1], 0)] if ops else []))))
    return ops

def new_region(name):
    rg = Region(name); rg.nst = {"R1": 0, "R1f": 0, "R2": 6, "G": 0, "G0": 0}.get(name, 5)
    ext_waits(rg)
    if OPT['wstrict']: rg.ldspol = (lambda k: (4, 3)) if name != 'R2' else (lambda k: (4, 3) if k < 90 else (OPT['lrate'], OPT['lburst']))
    rg.tuse = {0: [], 1: []}; rg.bars = {}; rg.inc = {}; rg.first_dma = {}; rg.wq = bool(OPT["nperm"]) and name[0] != "G"
    return rg

def xor_addr(rg, base, k, ti, e, d, after=()):
    if k == 0: return base, None
    deps = [(x, 0) for x in rg.tuse[ti]] + [(a, 0) for a in after]
    o = rg.F(V(f"v_xor_b32 {vT[ti]}, {k*32}, {base}", rd=[base], wr=[vT[ti]], e=e, d=d, deps=deps))
    rg.tuse[ti] = []
    return vT[ti], o
def reads_W(rg, so, mt, buf, e, deps=(), ups=(), rsp=None):
    if rg.wq:
        if mt == 2: a, xo = xor_addr(rg, vWb, 2, 0, e - 8, e, ups)
        else: a, xo = (vWb if mt < 2 else vT[0]), None
        so += 8*(mt & 1)
    else: a, xo = xor_addr(rg, vWb, mt, mt & 1, e - 8, e, ups)
    dp = list(deps) + ([(xo, 1)] if xo else [(u, 1) for u in ups])
    ops = []
    for s in range(4):
        for p in range(2):
            ops.append(rg.F(Op(f"ds_read_b64_tr_b16 {FR(buf, s, p)}, {a} offset:{so + s*4096 + p*2048}", "ds", rd=[a], wr=[FR(buf, s, p)],
                               e=e, d=min(e + 1 + len(ops)*(rsp or OPT['rspw' if OPT['wstrict'] else 'rsp'])//8, e + 9), deps=dp + ([(ops[-1], 0)] if ops else []))))
    if rg.wq:
        if mt >= 2: rg.tuse[0] = ops
    elif xo: rg.tuse[mt & 1] = ops
    rg.lastWr = ops
    return ops, xo
def reads_K(rg, so, u, buf, e, deps=(), ups=()):
    ops = []
    for s in range(4):
        ops.append(rg.F(Op(f"ds_read_b128 {FR(buf, s)}, {vK[s]} offset:{so + u*1024}", "ds", rd=[vK[s]], wr=[FR(buf, s)],
                           e=e, d=e + 3 + len(ops)*OPT['rk'], deps=list(deps) + [(x, 1) for x in ups] + ([(ops[-1], 0)] if ops else []))))
    return ops
def reads_V(rg, so, dp_, buf, e, deps=(), ups=(), late=0):
    ops = []; xs = []
    for k in range(2):
        dt = 2*dp_ + k
        a, xo = xor_addr(rg, vVb, dt, k, e - 10, e + 4*k, ups)
        if xo: xs.append(xo)
        dd = list(deps) + ([(xo, 1)] if xo else [(u, 1) for u in ups])
        mine = []
        for sg in range(2):
            for p in range(2):
                o = rg.F(Op(f"ds_read_b64_tr_b16 {FR(buf, 2*k + sg, p)}, {a} offset:{so + sg*2048 + p*1024}", "ds", rd=[a], wr=[FR(buf, 2*k + sg, p)],
                            e=e, d=(e + 2 + len(ops)*OPT['rsp']//8) if not late else (e + 3 + 2*len(ops) if k == 0 else e + 5 + (len(ops)*5)//4), deps=dd + ([(ops[-1], 0)] if ops else [])))
                ops.append(o); mine.append(o)
        if xo: rg.tuse[k] = mine
    return ops, xs

def barrier(rg, gap, last_reads, tiles, extra=(), lg0=True, st=True):
    w = rg.F(WAIT(gap - 1, need_ds=last_reads, need_vm=list(tiles) + list(extra), lg0=lg0, late=1))
    w.deps += [(x, 1) for x in extra if x in rg.fill]
    b = rg.F(Op("s_barrier", "w", e=gap, d=gap, deps=[(w, 1)])); rg.bars[gap] = b
    if OPT["bst"] and st:
        w.pre = "s_memtime s[2:3]"
        i = rg.nst; rg.nst += 1
        rg.F(V(f"v_writelane_b32 {vLane}, s2, {i}", e=gap + 1, d=gap + 8))
    return b
def xstamp(rg, gap, idx, dep):
    if OPT["bst"] < 2: return
    w = rg.F(Op("s_memtime s[2:3]\ns_waitcnt lgkmcnt(0)", "w", e=gap, d=gap, deps=[(dep, 1)]))
    rg.F(V(f"v_writelane_b32 {vLane}, s2, {idx}", deps=[(w, 0)], d=gap))
def ext_waits(rg):
    rg.xw = []
    for d in (-1, 1):
        w = WAIT(d, late=1); w.e = d; rg.F(w); rg.xw.append(w)
def bind_ext(rg, preds):
    rg.xw[0].alt_ds = [p[:4] for p in preds]; rg.xw[1].alt_ds = list(preds)
def frag_waits(rg, rd_ops, first_use, n_first, second_use, only_first=False):
    if rd_ops is None: return
    rg.F(WAIT(first_use - 1, need_ds=rd_ops[:n_first], late=2))
    if n_first < len(rd_ops) and not only_first: rg.F(WAIT(second_use - 1, need_ds=rd_ops, late=1))

def so_(sb): return (sb[0] - sb[1])*16384
def w_step(rg, half, zero, Bop, pend, cur, nxt, need, extra=(), more_reads=(), xwait=None, post=None):
    b0 = rg.n(); info = dict(b0=b0); xlast = None
    if xwait:
        for t in range(3): rg.F(WAIT(b0 + 4*t - 1, need_ds=xwait[:4*t + 4], late=1))
        info["xbar"] = barrier(rg, b0 + 10, xwait, (), lg0=False, st=False)
    for mt in range(4):
        buf = C.grp & 1; C.grp += 1
        g0 = b0 + 12*mt
        if pend is not None and (mt < 3 or BDW): frag_waits(rg, pend, g0, 4, g0 + 2, only_first=(mt == 3))
        for t in range(3):
            for s in range(4):
                acc = OA(4*half + mt, t)
                rg.M(mfma(acc, FR(buf, s), Bop(s, t), "0" if (zero and s == 0) else acc))
        if mt < 3:
            pend, xo = reads_W(rg, so_(cur[1:3]), mt + 1, buf ^ 1, g0 - 1 if (mt or b0) else g0)
            if xo: xlast = xo
            if mt == 0 and rg.wq: base_users = pend
            if mt == 2: bar = barrier(rg, g0 + 11 + BDW, pend + list(more_reads), need, extra)
        else:
            ups = rebase(rg, nxt[0], nxt[3], nxt[2], b0 + 20, g0 - 2, after=([xlast] + (base_users if rg.wq else [])) if nxt[0] == "W" else [])
            if nxt[0] == "W": pend, _ = reads_W(rg, so_(nxt[1:3]), 0, buf ^ 1, g0 - 1 + BDW, deps=[(bar, 0)], ups=ups, rsp=(4 if post else None))
            else: pend = reads_K(rg, so_(nxt[1:3]), 0, buf ^ 1, g0 - 1 + BDW, deps=[(bar, 0)], ups=ups)
            if post: info["post"] = post(g0, bar)
    info["bar"] = bar; info["end"] = rg.n() - 1
    return pend, info
def TS(name, prev=None):
    k, i = name[0], int(name[1])
    return (k, SLOT[name], BASE[name], BASE[f"{k}{(i - 1) % 8}"])

def softmax(rg, g0, u, Sr, pbuf, d_over, d_puse):
    sg = u >> 1
    for t in range(3):
        last = rg.mf[g0 + 4*t + 3]
        dl = min(d_over(t), d_puse(t) - 3)
        ex = [rg.F(V8(f"v_exp_f32 {Sr(t,i)}, {Sr(t,i)}", rd=[Sr(t,i)], wr=[Sr(t,i)], e=last.gap, sdeps=[(last, 8)], trans=True)) for i in range(4)]
        for j in range(2):
            dst = PBr(pbuf, sg, t, 2*(u & 1) + j)
            rg.F(V(f"v_cvt_pk_bf16_f32 {dst}, {Sr(t,2*j)}, {Sr(t,2*j+1)}", rd=[Sr(t,2*j), Sr(t,2*j+1)], wr=[dst], d=dl,
                   sdeps=[(ex[2*j], 1), (ex[2*j+1], 1)]))
def k_mfmas(rg, buf, Sd):
    for t in range(3):
        for s in range(4):
            rg.M(mfma(Sd(t), FR(buf, s), QV(s, t), "0" if s == 0 else Sd(t)))
def v_mfmas(rg, dp_, buf, pbuf, zero, tmajor=False):
    order = [(k, t) for t in range(3) for k in range(2)] if tmajor else [(k, t) for k in range(2) for t in range(3)]
    last = {}
    for k, t in order:
        for sg in range(2):
            acc = OA(2*dp_ + k, t)
            last[(2*dp_ + k, t)] = rg.M(mfma(acc, FR(buf, 2*k + sg), PB(pbuf, sg, t), "0" if (zero and sg == 0) else acc))
    return last
def sum_mfmas(rg, t, pbuf, zero):
    for sg in range(2):
        o = rg.M(mfma(LA(t), ONES, PB(pbuf, sg, t), "0" if (zero and sg == 0) else LA(t)))
    return o
def o_epilogue_ops(dt, t):
    mul = [V(f"v_mul_f32 {OAr(dt,t,i)}, {vRL[t]}, {OAr(dt,t,i)}", rd=[OAr(dt,t,i), vRL[t]], wr=[OAr(dt,t,i)]) for i in range(4)]
    cvt = []
    for j in range(2):
        dst = OPr(dt >> 1, t, 2*(dt & 1) + j)
        cvt.append(V(f"v_cvt_pk_bf16_f32 {dst}, {OAr(dt,t,2*j)}, {OAr(dt,t,2*j+1)}", rd=[OAr(dt,t,2*j), OAr(dt,t,2*j+1)], wr=[dst],
                     deps=[(mul[2*j], 0), (mul[2*j+1], 0)]))
    for o in mul + cvt: o.ot = (dt, t)
    return mul, cvt
def q_muls(rg, mt, t, last, **kw):
    return [rg.F(V(f"v_mul_f32 {OAr(mt,t,i)}, {sScale}, {OAr(mt,t,i)}", rd=[OAr(mt,t,i)], wr=[OAr(mt,t,i)],
                   e=(last.gap if last is not None else -1), sdeps=([(last, 8)] if last is not None else []), **kw)) for i in range(4)]
def q_epilogue(rg, sp, t, lastA, lastB, d_use, muls=True):
    cv = []
    for k, last in ((0, lastA), (1, lastB)):
        mt = 2*sp + k
        mul = q_muls(rg, mt, t, last) if muls else None
        for j in range(2):
            dst = QVr(sp, t, 2*k + j)
            cv.append(rg.F(V(f"v_cvt_pk_bf16_f32 {dst}, {OAr(mt,t,2*j)}, {OAr(mt,t,2*j+1)}", rd=[OAr(mt,t,2*j), OAr(mt,t,2*j+1)], wr=[dst],
                             deps=([(mul[2*j], 0), (mul[2*j+1], 0)] if muls else []))))
    if OPT["nperm"]:
        for o in cv: o.d = d_use - 3
        return
    for j in range(2):
        a, b = QVr(sp, t, j), QVr(sp, t, 2 + j)
        p1 = rg.F(V8(f"v_permlane32_swap_b32 {a}, {b}", rd=[a, b], wr=[a, b], sdeps=[(cv[j], 2), (cv[2+j], 2)]))
        rg.F(V8(f"v_permlane16_swap_b32 {a}, {b}", rd=[a, b], wr=[a, b], sdeps=[(p1, 2)], d=d_use - 3))

def BopQ(st):
    dg = ORD[st][1]
    return (lambda s, t: XA(4*dg + s, t)) if dg < 3 else (lambda s, t: QV(s, t))

def build_R2():
    rg = new_region("R2")
    C.grp = 24
    pend, i6 = w_step(rg, ORD[6][0], False, BopQ(6), None, TS("W6"), TS("W7"), ["W7"])
    pend, i7 = w_step(rg, ORD[7][0], False, BopQ(7), pend, TS("W7"), TS("K0"), ["K0"])
    a0 = rg.n(); b7 = i7["b0"]
    for sp in (0, 1):
        for t in range(3): q_epilogue(rg, sp, t, None, None, min(a0 + 4*t + sp, 20 + (sp*3 + t)*9), muls=True)
    for sp in (2, 3):
        for t in range(3):
            mA, mB = 2*sp - 4, 2*sp - 3
            q_epilogue(rg, sp, t, rg.mf[b7 + 12*mA + 4*t + 3], rg.mf[b7 + 12*mB + 4*t + 3], a0 + 4*t + sp)
    B = lambda i: a0 + 48 + 102*i
    GK = [0, 26, 52, 78]; GV = [12, 38, 64, 90]
    def puse(i, sg, t): return (B(i) + 12 + 2*t + sg) if i < 7 else (B(7) + 4*t + sg)
    def so(n): return so_(TS(n)[1:3])
    def rb(n, e, d, after=()): x = TS(n); return rebase(rg, x[0], x[3], x[2], e, d, after)
    for u in range(4):
        buf = C.grp & 1; C.grp += 1; g0 = rg.n()
        if u < 3 or BDW: frag_waits(rg, pend, g0, 2, g0 + 2, only_first=(u == 3))
        k_mfmas(rg, buf, lambda t: OA(u, t))
        softmax(rg, g0, u, lambda t, i: OAr(u, t, i), 0, lambda t: 10**9, lambda t: puse(0, u >> 1, t))
        if u < 3:
            pend = reads_K(rg, so("K0"), u + 1, buf ^ 1, g0 - 1)
            if u == 2: bar = barrier(rg, g0 + 11 + BDW, pend, ["K1", "V0"]); lastK = pend
        else:
            ups = rb("K1", g0 - 12, g0 - 2, lastK)
            pend = reads_K(rg, so("K1"), 0, buf ^ 1, g0 - 1 + BDW, deps=[(bar, 0)], ups=ups)
            upsV = rb("V0", -1, g0)
    for i in range(7):
        b0 = rg.n(); assert b0 == B(i)
        for u in range(4):
            buf = C.grp & 1; C.grp += 1; g0 = rg.n(); assert g0 == b0 + GK[u]
            frag_waits(rg, pend, g0, 2, g0 + 2)
            k_mfmas(rg, buf, lambda t: R("v", S0 + 4*t, 4))
            nxtK = (b0 + GK[u+1]) if u < 3 else (B(i+1) if i < 6 else None)
            softmax(rg, g0, u, lambda t, j: f"v{S0 + 4*t + j}", (i + 1) & 1,
                    (lambda t: nxtK + 4*t - 1) if nxtK else (lambda t: 10**9), lambda t: puse(i + 1, u >> 1, t))
            pend, xs = reads_V(rg, so(f"V{i}"), u, buf ^ 1, g0 - 1, ups=(upsV if u == 0 else ()), late=(OPT["vlate"] if u < 3 else 0))
            if u == 3: bar = barrier(rg, g0 + 11 + BDA, pend, [f"K{i+2}", f"V{i+1}"] if i < 6 else ["V7"]); lastX = xs
            buf = C.grp & 1; C.grp += 1; g0 = rg.n(); assert g0 == b0 + GV[u]
            if u < 3 or BDA: frag_waits(rg, pend, g0, 4, g0 + 6, only_first=(u == 3))
            v_mfmas(rg, u, buf, i & 1, i == 0)
            if u < 3:
                sum_mfmas(rg, u, i & 1, i == 0)
                pend = reads_K(rg, so(f"K{i+1}"), u + 1, buf ^ 1, g0 - 1)
                if u == 2: lastK = pend
            elif i < 6:
                ups = rb(f"K{i+2}", g0 - 20, g0 - 2, lastK)
                pend = reads_K(rg, so(f"K{i+2}"), 0, buf ^ 1, g0 - 1 + BDA, deps=[(bar, 0)], ups=ups)
                upsV = rb(f"V{i+1}", g0 - 10, g0 + 4, lastX)
            else:
                upsV = rb("V7", g0 - 10, g0 - 2, lastX)
                pend, _ = reads_V(rg, so("V7"), 0, buf ^ 1, g0 - 1 + BDA, late=0, deps=[(bar, 0)], ups=upsV)
    E = rg.n(); assert E == B(7)
    epi = []
    for p in range(4):
        buf = C.grp & 1; C.grp += 1; g0 = rg.n()
        if p == 0: frag_waits(rg, pend, g0, 4, g0 + 2)
        elif p < 3 or BDW: frag_waits(rg, pend, g0, 4, g0 + 6, only_first=(p == 3))
        last = v_mfmas(rg, p, buf, 1, False, tmajor=(p == 0))
        if p == 0:
            rl = []; lr = []
            for t in range(3):
                ls = sum_mfmas(rg, t, 1, False)
                lr.append(rg.F(V(f"v_accvgpr_read_b32 {vRL[t]}, a{240+4*t}", rd=[f"a{240+4*t}"], wr=[vRL[t]], e=ls.gap, sdeps=[(ls, 8)], d=E + 28)))
            mn = rg.F(V(f"v_min3_f32 {vA}, {vRL[0]}, {vRL[1]}, {vRL[2]}", rd=vRL, wr=[vA], deps=[(x, 0) for x in lr], d=E + 30))
            mx = rg.F(V(f"v_max3_f32 {vB}, {vRL[0]}, {vRL[1]}, {vRL[2]}", rd=vRL, wr=[vB], deps=[(x, 0) for x in lr], d=E + 30))
            rg.F(V(f"v_cmp_gt_f32 {sBad}, {sLo}, {vA}", rd=[vA], wr=[sBad], deps=[(mn, 0)], d=E + 40))
            rg.F(V(f"v_cmp_lt_f32 vcc, {sHi}, {vB}", rd=[vB], wr=["vcc"], deps=[(mx, 0)], d=E + 40))
            for t in range(3):
                rl.append(rg.F(V8(f"v_rcp_f32 {vRL[t]}, {vRL[t]}", rd=[vRL[t]], wr=[vRL[t]], deps=[(mn, 0), (mx, 0)], trans=True, d=E + 34)))
        for (dt, t), lm in last.items():
            mul, cvt = o_epilogue_ops(dt, t)
            for o in mul: o.e = lm.gap; o.sdeps = [(lm, 8), (rl[t], 1)]
            for o in mul + cvt:
                o.optional = True
                if dt >= 4 and o in cvt: o.e = 10**9
                rg.F(o); epi.append(o)
        if p < 3:
            pend, xs = reads_V(rg, so("V7"), p + 1, buf ^ 1, g0 - 1 if p != 0 else g0 + 3)
            if p == 2: bar = barrier(rg, g0 + 11 + BDW, pend, ["W0", "Xa", "Xb", "Xc"])
        else:
            ups = rb("W0", -1, g0 - 2, [])
            for o in ups: o.e = a0
            if OPT["nperm"]: ups = ups + [rg.F(V(f"v_mad_i32_i24 {vWb}, {vC}, {sGate}, {vWb}", rd=[vC, vWb], wr=[vWb], e=a0, d=g0 - 4))]
            pend, _ = reads_W(rg, so("W0"), 0, buf ^ 1, g0 - 1 + BDW, deps=[(bar, 0)], ups=ups, rsp=8)
    assert sorted(g + 288 for g in rg.bars) == ringplan.bS[6:] + [ringplan.bQ] + ringplan.bB + [ringplan.bP]
    head_dmas(rg, 288, 1200)
    rg.pendW0 = pend; rg.epi = epi
    rg.schedule()
    return rg

def half0_muls(rg, b4):
    for mt in range(4):
        for t in range(3): q_muls(rg, mt, t, rg.mf[b4 + 12*mt + 4*t + 3])

def build_R1(left):
    rg = new_region("R1")
    C.grp = 0
    xa = [rg.F(V(f"v_add_u32 v{S0+s}, {sW1k}, {vK[s]}", rd=[vK[s]], wr=[f"v{S0+s}"], d=6)) for s in range(4)]
    xr = reads_X(rg, lambda sl, s: (f"v{S0+s}", (sl - XB)*16384), [SLOT["Xa"], SLOT["Xb"], SLOT["Xc"]], QV, 4, 9, [(a, 1) for a in xa], step=2)
    pend = None; infos = []
    for st in range(5):
        pend, inf = w_step(rg, ORD[st][0], st in (0, 3), BopQ(st), pend, TS(f"W{st}"), TS(f"W{st+1}"), [f"W{st+1}"], more_reads=(xr if st == 0 else ()))
        infos.append(inf)
    new = {}
    for o in left:
        dt, t = o.ot
        n = V(o.text, rd=list(o.rd), wr=list(o.wr)); n.ot = o.ot; new[id(o)] = n
        n.deps = [(new[id(p)], g) for (p, g) in o.deps if id(p) in new]
        n.e = 8 if dt >= 6 else -1
        n.d = ((12*dt + 4*t) if dt < 4 else (144 + 12*(dt - 4) + 4*t)) - 1
        rg.F(n)
    head_dmas(rg, 0, 288)
    rg.pend = pend
    rg.schedule()
    return rg

def build_R1b(h, zst=None):
    rg = new_region(f"R1b{h}")
    C.grp = 20
    pend, inf = w_step(rg, ORD[5][0], False, BopQ(5), None, TS("W5"), TS("W6"), ["W6"])
    for i in range(48): rg.F(V(f"v_accvgpr_write_b32 a{ZB[h-1] + i}, v{PV0 + i}", rd=[f"v{PV0+i}"], wr=[f"a{ZB[h-1]+i}"]))
    next_setup(rg, h)
    rg.pend = pend
    rg.schedule()
    return rg

def next_setup(rg, h):
    T = lambda x, **kw: rg.F(S(x, **kw))
    if h < 3:
        T(f"s_add_u32 {sWcol}, {sWcol}, 256", deps=([(rg.lastw, 1)] if getattr(rg, "lastw", None) else []))
        T(f"s_and_b32 {sWcol}, {sWcol}, 0x3ff")
        for t in NEXT:
            if t[0] == "W":
                for x in wq_t0(sN[NEXT.index(t)], int(t[1])): T(x)
    if h == 2:
        a = T(f"s_lshl_b32 {sTmp}, {sB}, 2")
        if not OPT["bst"]: rg.dbg = rg.F(Op(f"buffer_load_dword {vLane}, off, {srdD}, {sTmp} sc1", "vm", wr=[vLane], deps=[(a, 0)]))
    if h == 3:
        for x in ("s_mov_b32 s16, s80", "s_mov_b32 s17, s81", "s_mov_b32 s18, 0x80000", "s_mov_b32 s20, s80", "s_mov_b32 s21, s81", "s_mov_b32 s22, 0x80000",
                  f"s_mov_b32 {sGate}, 1"): T(x)
        for i in (1, 2, 3): T(f"s_mov_b32 {sD[i]}, {7168*i}"); T(f"s_mov_b32 {sDY[i]}, {7168*i}")
        for m in range(6): T(f"s_add_u32 {sN[m]}, {sRot if m < 4 else sC[0]}, {sH[m & 3]}")
        if OPT["tlb"] == 1:
            sw = T(f"s_mov_b32 {sTmp}, {hex(FLAG_BASE + 0x20080)}")
            for srd, so in ((srdW, "0"), (srdWS, "s75"), (srdWS, sTmp), (srdO, sOutR)):
                rg.F(Op(f"buffer_load_dword {vB}, off, {srd}, {so}", "vm", wr=[vB], deps=[(sw, 0)]))
        rg.F(V(f"v_mov_b32 {vDW}, {vDWo}", rd=[vDWo], wr=[vDW])); rg.F(V(f"v_mov_b32 {vDX}, {vDWo}", rd=[vDWo], wr=[vDX]))

def build_R1f():
    X = lambda q: [f"x{q}{a}" for a in range(3)]
    final = [t for t in ISS if ISS[t] < 288 and t[0] in "KV"] + ["W6", "W7"]
    fk = sorted([t for t in final if t[0] in "KV"], key=lambda t: ISS[t]); assert 3 <= len(fk) <= 6 and OPT["kvlate"] == 4 or len(fk) == 6
    if OPT["kvlate"] < 4:
        init = X(0) + ["w0"] + X(1) + ["w1", "K0", "K1"]
        inh = list(zip(X(2), X(0))) + [("w2", "w0")] + list(zip(["w3", "x30", "x31"], X(1))) + [("x32", "w1")] + \
              list(zip(["w4", "V0", "w5"], X(2))) + [("K2", "w2"), ("W6", "w3")] + list(zip(["V1", "W7", "K3"], X(3)))
    else:
        init = X(0) + ["w0"] + X(1) + ["w1", "x20", "x21"]
        inh = list(zip(["x22", "w2", "w3"], X(0))) + [("x30", "w0")] + list(zip(["x31", "x32", "w4"], X(1))) + [("w5", "w1")] + \
              list(zip(["W6", "W7", fk[0]], X(2))) + [(fk[1], "w2"), (fk[2], "w3")] + list(zip(fk[3:], X(3)))
    sl = {t: SLOT[t] for t in final}
    for new, old in reversed(inh):
        if new in sl: sl[old] = sl[new]
    free = [x for x in range(10) if x not in {sl[t] for t in init if t in sl}]
    for t in init:
        if t not in sl: sl[t] = free.pop()
    for new, old in inh: sl[new] = sl[old]
    def spec(t):
        if t[0] == "x": return ("X", int(t[2]), int(t[1]))
        if t[0] in "wW": return ("W", int(t[1]))
        return (t[0],)
    wsl = [sl[f"w{j}"] for j in range(6)] + [SLOT["W6"]]
    wb = [min(x, 6) for x in wsl[:6]] + [BASE["W6"]]
    rg = new_region("R1f")
    C.grp = 0
    xaddr = lambda s_, s: (f"v{S0 + 4*(s_ >> 2) + s}", (s_ & 3)*16384)
    dst = {0: (1, lambda s, t: XA(4 + s, t)), 1: (2, lambda s, t: XA(8 + s, t)), 3: (3, QV)}
    pend = None; infos = []; xw = None
    for st in range(6):
        post = None; need = [f"w{st+1}" if st < 5 else "W6"]
        if st in dst:
            q, fn = dst[st]; need += X(q)
            post = (lambda q, fn: lambda g0, bar: reads_X(rg, xaddr, [sl[t] for t in X(q)], fn, g0 + 2 + BDW, g0 + 5 + BDW, [(bar, 0)]))(q, fn)
        pend, inf = w_step(rg, ORD[st][0], st in (0, 3), BopQ(st), pend, ("W", wsl[st], wb[st]), ("W", wsl[st+1], wb[st+1], wb[st]), need, xwait=xw, post=post)
        xw = inf.get("post"); infos.append(inf)
    rel = {"w%d" % j: infos[j]["bar"] for j in range(6)}
    for q, st in ((1, 1), (2, 2), (3, 4)):
        for t in X(q): rel[t] = infos[st]["xbar"]
    items = []; tcur = 0
    if OPT["kvlate"] < 4:
        seq = [(t, None) for t in ("x20", "x21", "x22")] + inh[3:]
        kp = {0: (3, 4), 1: (8, 9), 2: (4, 9), 3: (9, 12)}[OPT["kvlate"]]
        seq.insert(kp[0], ("K0", None)); seq.insert(kp[1], ("K1", None))
    else: seq = [(t, None) for t in ("x20", "x21", "x22", "w2", "w3")] + inh[3:]
    for new, old in seq:
        if old: tcur = max(tcur, rel[old].e)
        sp = OPT["fsp"] if (new[0] not in "KV" or OPT["kvlate"] < 4) else OPT["fkv"]
        items.append((new, spec(new), sl[new], tcur, sp, rel[old] if old else None)); tcur += 4*sp + (1 if sp == OPT["fsp"] else OPT["fgap"])
    add_dmas(rg, items)
    next_setup(rg, 0)
    rg.pend = pend
    rg.schedule()
    rg.init = [(t, spec(t), sl[t]) for t in init[:8]]; rg.wb0 = wb[0]; rg.wso0 = (wsl[0] - wb[0])*16384
    rg.x0 = [xaddr(sl[t], 0) for t in X(0)]; rg.xsl0 = [sl[t] for t in X(0)]; rg.xaddr = xaddr
    return rg

RLD = [[R("v", QV0 + 4*g, 4) for g in range(8)],
       [R("v", QV0 + 32 + 4*g, 4) for g in range(4)] + [R("v", S0 + 4*g, 4) for g in range(3)] + ["v[236:239]"]]
vTo = vLane if not OPT['bst'] else 'v235'
vSt, vFl, vPo, vPr, vOut = vDK, vDV, vVb, vDX, vC
LAG = OPT['lag']; OSC = ['', ' sc1', ' nt', ' sc0 sc1'][OPT['osc']]
NTST = ' nt' if OPT['ntst'] else ''
LO = ["v249", "v250", "v251", "v253"]
def pack_store(chunk):
    res = []
    for t in range(3):
        for np_ in range(2):
            a, b = 4*chunk + 2*np_, 4*chunk + 2*np_ + 1
            src = [(OAr(a,t,0), OAr(a,t,1)), (OAr(a,t,2), OAr(a,t,3)), (OAr(b,t,0), OAr(b,t,1)), (OAr(b,t,2), OAr(b,t,3))]
            cv = []
            for j in range(4):
                cv.append(V(f"v_cvt_pk_bf16_f32 {OAr(a,t,j)}, {src[j][0]}, {src[j][1]}", rd=list(src[j]), wr=[OAr(a,t,j)], deps=([(cv[-1], 0)] if cv else [])))
            k = 2*t + np_
            sa = S(f"s_add_u32 {sU[k & 1]}, {sSt}, {k*8192}", wr=[sU[k & 1]])
            st = Op(f"buffer_store_dwordx4 {OA(a,t)}, {vSt}, {srdWS}, {sU[k & 1]} offen@SC", "vm", rd=[OA(a,t), vSt], deps=[(cv[-1], 1), (sa, 0)])
            res.append((cv, sa, st))
    return res
def reduce_ops(set_):
    X = [regs(r_) for r_ in RLD[set_]]
    tmp = [vA, vB]; ops = []; n = 0
    for k in range(4):
        ops += [V(f"v_lshlrev_b32 {LO[k]}, 16, {X[0][k]}", rd=[X[0][k]], wr=[LO[k]]),
                V(f"v_and_b32 {X[0][k]}, {sMask}, {X[0][k]}", rd=[X[0][k]], wr=[X[0][k]])]
        for g in range(1, 8):
            tm = tmp[n & 1]; n += 1
            ops += [V(f"v_lshlrev_b32 {tm}, 16, {X[g][k]}", rd=[X[g][k]], wr=[tm]),
                    V(f"v_and_b32 {X[g][k]}, {sMask}, {X[g][k]}", rd=[X[g][k]], wr=[X[g][k]]),
                    V(f"v_add_f32 {LO[k]}, {LO[k]}, {tm}", rd=[LO[k], tm], wr=[LO[k]]),
                    V(f"v_add_f32 {X[0][k]}, {X[0][k]}, {X[g][k]}", rd=[X[0][k], X[g][k]], wr=[X[0][k]])]
        ops.append(V(f"v_cvt_pk_bf16_f32 {X[0][k]}, {LO[k]}, {X[0][k]}", rd=[LO[k], X[0][k]], wr=[X[0][k]]))
    for a, b in zip(ops, ops[1:]): b.deps.append((a, 0))
    pl = []
    for j in range(2):
        pl.append(V8(f"v_permlane32_swap_b32 {X[0][j]}, {X[0][2+j]}", rd=[X[0][j], X[0][2+j]], wr=[X[0][j], X[0][2+j]], sdeps=[(ops[-1], 2)]))
    for j in range(2):
        pl.append(V8(f"v_permlane16_swap_b32 {X[0][j]}, {X[0][2+j]}", rd=[X[0][j], X[0][2+j]], wr=[X[0][j], X[0][2+j]], sdeps=[(pl[j], 2)]))
    st = Op(f"buffer_store_dwordx4 {RLD[set_][0]}, {vOut}, {srdO}, {sOut} offen{OSC}", "vm", rd=[RLD[set_][0], vOut, sOut], deps=[(pl[2], 1), (pl[3], 1)])
    return ops, pl, st
def red_loads(set_):
    return [Op(f"buffer_load_dwordx4 {RLD[set_][g]}, {vSt}, {srdWS}, {sLd if g < 4 else sLd2} offen offset:{(g & 3)*1024} sc1", "vm",
               rd=[vSt], wr=[RLD[set_][g]]) for g in range(8)]
def sig_ops():
    return [Op(f"buffer_store_dword {vSt}, {vFl}, {srdWS}, {sSig} offen@SC", "vm", rd=[vSt, vFl])]
def scal_A():
    return [f"s_sub_u32 {sTmp}, {sIt}, 1", f"s_and_b32 {sTmp}, {sTmp}, {sSlM}", f"s_mul_i32 {sTmp}, {sTmp}, {CHUNK}",
            f"s_add_u32 {sSt}, {sStR}, {sTmp}", f"s_add_u32 {sLd}, {sLdR}, {sTmp}", f"s_add_u32 {sLd2}, {sLd}, 0x1000",
            f"s_add_u32 {sSig}, {sSig}, 256"]
def scal_B():
    return [f"s_add_u32 {sOut}, {sOutR}, {sOc}", f"s_add_u32 {sOc}, {sOc}, 128", f"s_and_b32 {sOc}, {sOc}, 0x3ff", f"s_add_u32 {sIt}, {sIt}, 1"]

def build_G(first=False, left=()):
    rg = new_region("G0" if first else "G"); L = "F" if first else ""
    used = [SLOT[t] for t in NEXT]
    gs = used + [SLOT["K0"]] + [x for x in range(10) if x not in used and x not in (SLOT["K0"], SLOT["K1"], SLOT["V0"])][:1]
    assert len(gs) == 8
    gb = ringplan.bases(gs, BASE["W0"])[1]
    items = []; bars = {}; st_last = {}; rg.touch = []
    C.grp = 0
    def Bop(h): return (lambda s, t: ZA(h, s, t)) if h < 3 else (lambda s, t: OP(s, t))
    LD = [red_loads(0), red_loads(1)] if first else G_LD
    pend = None; prev_users = []
    if first:
        new = {}
        for o in left:
            dt, t = o.ot
            n = V(o.text, rd=list(o.rd), wr=list(o.wr)); new[id(o)] = n
            n.deps = [(new[id(p)], g) for (p, g) in o.deps if id(p) in new]
            n.e = 8 if dt >= 6 else -1
            n.d = (12*dt + 4*t - 1) if dt < 4 else (144 + 4*t + (dt >> 1) - 3)
            rg.F(n)
        cs = []
        for x in f"""v_mbcnt_lo_u32_b32 {vA}, -1, 0
v_mbcnt_hi_u32_b32 {vA}, -1, {vA}
v_lshlrev_b32 {vSt}, 4, {vA}
v_and_b32 {vPo}, 7, {vA}
v_lshlrev_b32 {vPo}, 2, {vPo}
v_lshrrev_b32 {vB}, 4, {vA}
v_bfe_u32 {vOut}, {vA}, 2, 2
v_and_b32 {vA}, 3, {vA}
v_lshl_add_u32 {vA}, {vOut}, 4, {vA}
v_lshlrev_b32 {vA}, 10, {vA}
v_lshl_add_u32 {vOut}, {vB}, 4, {vA}
v_mov_b32 {vFl}, {hex(OOB)}""".split("\n"):
            cs.append(rg.F(V(x, e=(0 if len(cs) < 3 else 40), d=110, deps=[(cs[-1], 0)] if cs else [])))
        sc = [rg.F(S(x)) for x in (f"s_lshl_b32 s5, {sG}, 2", f"s_cmp_eq_u32 {sWave}, 0", f"s_cselect_b32 s5, s5, {hex(OOB)}", f"s_mov_b32 {sMask}, 0xffff0000",
                                   f"s_mov_b32 {sLd}, {sLdR}", f"s_add_u32 {sLd2}, {sLd}, 0x1000", f"s_mov_b32 {sSig}, {sFlR}", f"s_mov_b32 {sExp}, 16")]
        wl = rg.F(V(f"v_writelane_b32 {vFl}, s5, 1", deps=[(cs[-1], 0), (sc[2], 0)], d=120))
        prev = None
        for k in range(2):
            if k: a1 = rg.F(S(f"s_add_u32 {sLd}, {sLd}, {CHUNK}", deps=[(prev, 1)])); a2 = rg.F(S(f"s_add_u32 {sLd2}, {sLd}, 0x1000"))
            for i, o in enumerate(red_loads(k)):
                o.text = o.text.replace(" sc1", ""); o.tag = "touch"
                o.e = (OPT["gdma"] + 84 if k else 8) + 4*i; o.d = o.e + 3
                o.deps = [(cs[2], 1), ((a2 if k else sc[5]), 0)] + ([(prev, 1)] if prev else []); rg.F(o); prev = o; rg.touch.append(o)
        last0 = prev
    for hf in range(2):
        h0 = 192*hf
        do_st = not (first and hf == 0); do_sum = not first
        stores = []
        if do_st:
            for (cv, sa, st) in pack_store(1 - hf):
                for o in cv: o.e = h0 + 8; rg.F(o)
                if len(stores) >= 2: sa.deps.append((stores[-2], 1))
                rg.F(sa); st.e = h0 + 10 + OPT['gst']*len(stores); st.d = st.e + 3; rg.F(st); stores.append(st)
        if do_sum:
            sc = [rg.F(S(x, e=h0, deps=[(u, 1) for u in prev_users])) for x in scal_B()]
            if hf == 0: sB0 = sc[-1]
            cur = hf ^ 1
            w0 = rg.F(WAIT(h0 + OPT['gsum'], need_vm=LD[cur] + (G_LD0 if hf == 0 else []), late=1)); w0.e = h0 + OPT['gsum']
            o0, p0, s0_ = reduce_ops(cur)
            o0[0].deps.append((w0, 0))
            for o in o0 + p0 + [s0_]: rg.F(o)
            s0_.d = h0 + OPT['gout']; s0_.deps += [(sc[0], 0), (LD[hf][-1], 1)]
            prev_users = [s0_]
        infos = []
        for j in range(4):
            st = 4*hf + j
            n1 = (st + 1) & 7
            pend, inf = w_step(rg, hf, j == 0, Bop(j), pend, ("W", gs[st], gb[st]), ("W", gs[n1], gb[n1], gb[st]), [f"G{n1}"], extra=(stores if j == 1 else ()))
            infos.append(inf); bars[st] = inf["bar"]
        if do_st:
            sig, = sig_ops(); bs = infos[1]["bar"]
            sig.deps = [(bs, 0)]; sig.d = bs.e + 1; rg.F(sig)
            rg.F(S(f"s_load_dwordx8 s[8:15], s[82:83], {sSig}", e=h0 + OPT['gpoll'], d=h0 + OPT['gpoll'] + 4))
            b2 = infos[2]["bar"]
            for x in ("s_and_b32 s8, s8, s9", "s_and_b32 s10, s10, s11", "s_and_b32 s12, s12, s13", "s_and_b32 s14, s14, s15",
                      "s_and_b32 s8, s8, s10", "s_and_b32 s12, s12, s14", "s_and_b32 s8, s8, s12", "s_bitcmp0_b32 s8, 4"): rg.F(S(x, deps=[(b2, 0)]))
            br = rg.F(Op(f"s_cbranch_scc1 L_spinG{hf}{L}@L\nL_backG{hf}{L}@L:", "s", d=b2.e + 12))
            prev = None
            for i, o in enumerate(LD[hf]):
                o.deps += [(br, 0)] + ([(prev, 1)] if prev else []); o.e = b2.e + 10 + OPT['gld']*i; o.d = o.e + 3; rg.F(o); prev = o
            lastld = LD[hf][-1]
        else: lastld = last0
        if first: rg.F(S(f"s_mov_b32 {sIt}, {hf + 1}", deps=[(lastld, 1)]))
        for i, x in enumerate(scal_A()): rg.F(S(x, deps=[(lastld, 1)] if i == 0 else []))
        for k in range(4):
            st = (4*hf - 2 + k) & 7
            items.append((f"G{st}", ("C", (1 + (st >> 2)) if (hf or k > 1) else 0, st & 3), gs[st], h0 + OPT["gdma"] + k*(4*OPT["gdsp"] + 1), OPT["gdsp"],
                          bars[st] if (hf or k > 1) else None))
        if stores: st_last[hf] = stores[-1]
    add_dmas(rg, items)
    if not first:
        c1 = S(f"s_cmp_ge_u32 {sIt}, 7", deps=[(TILE["G7"][-1], 1)]); c2 = S("s_cselect_b32 s18, 0, s18", wr=["s18"], rd=["s18"])
        pos = rg.fill.index(sB0) + 1
        rg.fill[pos:pos] = [c1, c2]
        for i, o in enumerate(rg.fill): o.seq = i + 1
        rg.first_dma["G0"].deps.append((c2, 0))
        rg.first_dma["G6"].deps.append((st_last[0], 1))
    rg.first_dma["G2"].deps.append((st_last[1], 1))
    rg.LD = LD; rg.pend = pend
    rg.schedule()
    return rg

def stamp(kind=0):
    if not OPT["stamps"]: return []
    def put(x): return lin(f"v_mov_b32 {vA}, {x}") + [Op(f"buffer_store_dword {vA}, off, {srdWS}, s101", "vm")] + lin("s_add_u32 s101, s101, 4\ns_nop 1")
    if kind == 1: return put("s94") + put("s92") + stamp()
    if kind == 2: return lin("s_waitcnt vmcnt(0)") + stamp()
    return lin("s_memtime s[2:3]\ns_memrealtime s[4:5]\ns_waitcnt lgkmcnt(0)") + put("s2") + put("s4")

def code_pf(lbl, start, end, mask, r):
    if not OPT["pf"]: return []
    return lin(f"""s_getpc_b64 s[{r}:{r+1}]
{lbl}:
s_add_u32 s{r}, s{r}, {start}-{lbl}
s_addc_u32 s{r+1}, s{r+1}, {"-1" if start == KN else "0"}
s_mov_b32 s{r+2}, {end}-{start}
s_mov_b32 s{r+3}, 0x20000
s_lshl_b32 s5, {sIdx}, 2
s_add_u32 s5, s5, {sWave}
s_and_b32 s5, s5, {mask}
s_lshl_b32 s5, s5, 13
v_mbcnt_lo_u32_b32 {vA}, -1, 0
v_mbcnt_hi_u32_b32 {vA}, -1, {vA}
v_lshlrev_b32 {vA}, 7, {vA}""") + [Op(f"buffer_load_dword {vB}, {vA}, s[{r}:{r+3}], s5 offen", "vm")]

HROT = {0: "s_mov_b32 s5, 0", 1: "s_mov_b32 s5, s4", 2: f"s_mov_b32 s5, {sG}", 3: f"s_add_u32 s5, s4, {sG}", 4: f"s_lshr_b32 s5, {sG}, 1",
        5: f"s_lshr_b32 s5, {sB}, 3", 6: f"s_lshr_b32 s5, {sG}, 2\ns_lshl_b32 s3, {sG}, 1\ns_or_b32 s5, s5, s3", 7: f"s_sub_u32 s5, 0, {sG}"}[OPT["hrot"]]
if OPT["krot"] < 3:
    KROT = f"""{f"s_add_u32 s4, {sB}, {sG}" if OPT["krot"] == 2 else ""}
s_and_b32 s4, s4, {3 if OPT["krot"] else 0}
s_lshl_b32 {sDg[0]}, s4, 20
s_add_u32 {sDg[1]}, {sDg[0]}, 0x100000
s_and_b32 {sDg[1]}, {sDg[1]}, 0x3fffff
s_xor_b32 {sDg[2]}, {sDg[0]}, 0x200000
s_xor_b32 {sDg[3]}, {sDg[1]}, 0x200000"""
else:
    KROT = f"""s_add_u32 s5, {sB}, {sG}
s_mul_i32 s3, s5, 43
s_lshr_b32 s3, s3, 7
s_mul_i32 s3, s3, 3
s_sub_u32 s5, s5, s3
s_add_u32 {sDg[3]}, s4, 3
s_add_u32 {sDg[0]}, s4, s5
s_cmp_eq_u32 s5, 2
s_cselect_b32 s3, -2, 1
s_add_u32 {sDg[1]}, {sDg[0]}, s3
s_cmp_eq_u32 s5, 0
s_cselect_b32 s3, 2, -1
s_add_u32 {sDg[2]}, {sDg[0]}, s3""" + "".join(f"\ns_and_b32 {sDg[q]}, {sDg[q]}, 3\ns_lshl_b32 {sDg[q]}, {sDg[q]}, 20" for q in range(4))
def prologue(F):
    init = F.init
    o = lin(f"""
s_cmp_lt_u32 s2, 256
s_cbranch_scc1 L_go
s_endpgm
L_go:
{"s_memrealtime s[92:93]" if (OPT["stamps"] or OPT["dbl"]) else ""}
{"s_memtime s[94:95]" if OPT["stamps"] else ""}
s_load_dwordx16 s[68:83], s[0:1], 0
v_lshrrev_b32 v1, 6, v0
v_and_b32 {vLane}, 63, v0
s_and_b32 s4, s2, 7
v_readfirstlane_b32 {sWave}, v1
s_lshr_b32 s5, s2, 3
s_mov_b32 {sIdx}, s5""")
    mp = {84: (1, 3, 2, 1, 2, 3), 48: (0, 2, 3, 0, 3, 7), 162: (2, 4, 1, 3, 1, 1)}[OPT["mapping"]]
    o += lin(f"""
s_lshr_b32 s6, s4, {mp[0]}
s_lshl_b32 s6, s6, {mp[1]}
s_lshr_b32 s7, s5, {mp[2]}
s_add_u32 {sB}, s6, s7
s_and_b32 s6, s4, {mp[3]}
s_lshl_b32 s6, s6, {mp[4]}
s_and_b32 s7, s5, {mp[5]}
s_add_u32 {sG}, s6, s7""")
    cbits = struct.unpack("<I", struct.pack("<f", math.log2(math.e)/math.sqrt(128)))[0]
    o += lin(f"""
s_lshl_b32 {sW4k}, {sWave}, 12
v_lshrrev_b32 v5, 4, {vLane}
v_and_b32 v6, 15, {vLane}
s_lshl_b32 s6, {sWave}, 4
v_add_u32 v1, s6, v5
s_lshl_b32 s6, {sWave}, 2
v_or_b32 v2, s6, v5
v_xor_b32 v2, v2, v6
v_lshlrev_b32 v2, 4, v2
v_lshl_add_u32 {vDX}, v1, 10, v2
v_lshl_add_u32 {vDK}, v1, 8, v2
v_lshrrev_b32 v7, 5, {vLane}
v_bfe_u32 v2, {vLane}, 3, 2
v_lshl_add_u32 v7, v7, 3, v2
s_lshl_b32 s6, {sWave}, 5
v_add_u32 v7, s6, v7
v_and_b32 v3, 7, {vLane}
v_lshlrev_b32 v4, 1, v5
v_xor_b32 v3, v3, v4
v_lshlrev_b32 v3, 4, v3
s_mov_b32 {sDY[1]}, 3072
s_mov_b32 {sDY[2]}, 6144
s_mov_b32 {sDY[3]}, 9216
s_mov_b32 {sD[1]}, {16*8192 - 1024}
s_mov_b32 {sD[2]}, {4*8192 - 2048}
s_mov_b32 {sD[3]}, {20*8192 - 3072}
s_lshr_b32 s4, {sB}, 2
{HROT}
s_bfe_u32 {sSw}, s5, {"0x10002" if OPT["hswap"] else "0x00002"}
s_and_b32 s5, s5, {3 if OPT["hrot"] else 0}
s_mov_b32 {sHr}, s5
s_lshl_b32 {sWcol}, s5, 8
s_lshl_b32 {sSw}, {sSw}, 7
s_or_b32 {sWcol}, {sWcol}, {sSw}
s_lshr_b32 {sSw}, {sSw}, 1
v_xor_b32 v7, {sSw}, v7
v_lshl_add_u32 {vDW}, v7, 13, v3
s_lshl_b32 {sKoff}, s5, 17
s_mov_b32 {sVoff}, {sKoff}
{KROT}
s_mul_i32 s7, {sB}, {0 if OPT["samex"] else 196608}
s_mov_b32 s22, 196608
s_mov_b32 s23, 0x20000
s_mov_b32 s19, 0x20000
s_lshl_b32 s4, {sG}, 10
{"s_mov_b32 s4, 0" if OPT["samew"] else ""}
s_sub_u32 s18, 0x400000, s4
s_waitcnt lgkmcnt(0)
s_add_u32 s20, s68, s7
s_addc_u32 s21, s69, 0
s_add_u32 s16, s74, s4
s_addc_u32 s17, s75, 0""")
    if OPT["tch"]:
        o += lin(f"""v_lshrrev_b32 v8, 1, {vLane}
v_and_b32 v9, 1, {vLane}
v_lshlrev_b32 v9, 7, v9
v_lshl_add_u32 v11, v8, 13, v9
v_lshl_add_u32 v8, v8, 10, v9
v_mov_b32 v10, {hex(OOB)}
v_cmp_gt_u32 vcc, 12, {vLane}
s_lshl_b32 s4, {sG}, 2
s_add_u32 s4, s4, {sWave}
s_mul_i32 s4, s4, 6144
v_cndmask_b32 v8, v10, v8, vcc
v_cmp_gt_u32 vcc, 16, {vLane}
s_and_b32 s5, {sB}, 3
s_lshl_b32 s5, s5, 2
s_add_u32 s5, s5, {sWave}
s_lshl_b32 s5, s5, 16
s_add_u32 s5, s5, {sWcol}
v_cndmask_b32 v11, v10, v11, vcc
v_add_u32 v8, s4, v8
v_add_u32 v11, s5, v11""")
        for q in range(OPT["tch"] - 1, 4):
            o += lin(f"s_lshr_b32 s3, {sDg[q]}, 12")
            o += [Op(f"buffer_load_dword {vB}, v8, {srdX}, s3 offen", "vm"), Op(f"buffer_load_dword {vB}, v11, {srdW}, {sDg[q]} offen", "vm")]
    for j in range(4): o += dma_linear(*init[j])
    o += lin(f"""s_lshl_b32 s3, {sB}, 22
s_lshl_b32 s7, {sG}, 19
s_add_u32 s3, s3, s7
{"s_mov_b32 s3, 0" if OPT["samekv"] else ""}
s_add_u32 s8, s70, s3
s_addc_u32 s9, s71, 0
s_mov_b32 s10, 0x80000
s_mov_b32 s11, 0x20000
s_add_u32 s12, s72, s3
s_addc_u32 s13, s73, 0
s_mov_b32 s14, 0x80000
s_mov_b32 s15, 0x20000
""")
    if OPT["tlb"]:
        o += [Op(f"buffer_load_dword {vB}, off, {srdK}, 0", "vm"), Op(f"buffer_load_dword {vB}, off, {srdV}, 0", "vm")]
        o += [Op(f"buffer_load_dword {vB}, off, {srdW}, {sDg[q]}", "vm") for q in (1, 2, 3)]
    o += code_pf("L_pc", KN, "L_g3", OPT["pf"] - 1, 88)
    o += lin(f"""
v_lshrrev_b32 v7, 3, {vLane}
v_add_u32 v7, s6, v7
v_lshl_add_u32 {vDWo}, v7, 10, v3
s_and_b32 s6, {sWave}, 1
s_lshl_b32 s6, s6, 2
v_or_b32 v2, s6, v5
v_lshlrev_b32 v2, 1, v2
v_xor_b32 v2, v2, v6
v_lshlrev_b32 v1, 8, v1
v_lshl_add_u32 {vDV}, v2, 4, v1
s_mov_b32 s24, s82
s_mov_b32 s25, s83
s_mov_b32 s26, {hex(WS_BYTES)}
s_mov_b32 s27, 0x20000
v_lshrrev_b32 v1, 3, {vLane}
v_and_b32 v2, 7, {vLane}
v_lshlrev_b32 v1, 8, v1
v_lshl_add_u32 v8, v2, 2, v1
s_lshl_b32 s6, {sB}, 11
s_add_u32 s6, s6, {hex(FLAG_BASE)}
s_or_b32 s7, {sG}, {sWave}
s_cmp_eq_u32 s7, 0
s_cselect_b32 {sTmp}, s6, {hex(OOB)}
v_mov_b32 v9, 0""")
    zst = Op(f"buffer_store_dword v9, v8, {srdWS}, {sTmp} offen sc1", "vm"); o.append(zst)

    o += lin(f"""
s_mov_b32 {sScale}, {hex(cbits)}
s_mov_b32 {sLo}, 0x30800000
s_mov_b32 {sHi}, 0x4e800000
s_mov_b32 {sHead}, 0
s_lshl_b32 {sW1k}, {sWave}, 10
s_mov_b32 s28, s78
s_mov_b32 s29, s79
s_mov_b32 s30, 0x600000
s_mov_b32 s31, 0x20000
s_mov_b32 s32, s80
s_mov_b32 s33, s81
s_mov_b32 s34, 0x100
s_mov_b32 s35, 0x20000

v_lshrrev_b32 v1, 2, v6
v_and_b32 v2, 3, v6
v_lshl_add_u32 v3, v1, 4, v2
v_lshlrev_b32 v3, 8, v3""")
    for s in range(4):
        o += lin(f"s_and_b32 s3, {sWcol}, 128\nv_add_u32 v4, {4*s}, v5\nv_xor_b32 v4, v4, v6\nv_lshl_add_u32 {vK[s]}, v4, 4, v3\nv_xor_b32 {vK[s]}, s3, {vK[s]}")
    o += lin(f"""
v_lshl_add_u32 v3, v5, 4, v1
v_lshlrev_b32 v3, 8, v3
v_and_b32 v4, 1, v5
v_lshl_add_u32 v7, v4, 2, v1
v_lshl_add_u32 v3, v7, 5, v3
v_lshl_add_u32 v3, v2, 3, v3
v_add_u32 {vVb}, {BASE["V7"]*16384}, v3
v_lshl_add_u32 v3, v5, 2, v1
v_lshlrev_b32 v3, 7, v3
v_lshrrev_b32 v7, 1, v1
v_lshl_add_u32 v7, v4, 1, v7
{"v_lshlrev_b32 v7, 1, v7" if OPT["nperm"] else "v_lshl_add_u32 v3, v7, 5, v3"}
{"v_xor_b32 v7, v7, v2" if OPT["nperm"] else ""}
{"v_lshl_add_u32 v7, v7, 4, v3" if OPT["nperm"] else "v_lshl_add_u32 v7, v2, 3, v3"}
v_add_u32 {vWb}, {F.wb0*16384}, v7
v_mov_b32 v3, 0x3f803f80
v_accvgpr_write_b32 a252, v3
v_accvgpr_write_b32 a253, v3
v_accvgpr_write_b32 a254, v3
v_accvgpr_write_b32 a255, v3
""")
    for s in range(4):
        o += lin(f"v_add_u32 v{S0+s}, {sW1k}, {vK[s]}\nv_add_u32 v{S0+4+s}, 0x10000, v{S0+s}\nv_add_u32 v{S0+8+s}, 0x20000, v{S0+s}\nv_add_u32 {vK[s]}, {BASE['K7']*16384}, {vK[s]}")
    o += lin(f"s_add_u32 {sW1k}, {sW1k}, {lit((XB - BASE['K7'])*16384)}")
    for j in range(4, 8): o += dma_linear(*init[j])
    o += lin(f"""s_lshl_b32 s6, {sG}, 19
s_add_u32 s80, s76, s6
s_addc_u32 s81, s77, 0
s_mov_b32 {sGate}, 0
s_lshl_b32 {sH[0]}, {sHr}, 17
s_add_u32 {sH[1]}, {sH[0]}, 0x20000
s_and_b32 {sH[1]}, {sH[1]}, 0x7ffff
s_xor_b32 {sH[2]}, {sH[0]}, 0x40000
s_xor_b32 {sH[3]}, {sH[1]}, 0x40000
{"s_mov_b32 s73, s92" if OPT["dbl"] else ""}
s_getreg_b32 {sXcc}, hwreg(HW_REG_XCC_ID, 0, 3)
s_lshr_b32 {sRot}, {sB}, 2
s_and_b32 {sRot}, {sRot}, {7 if OPT["rot"] else 0}
s_lshl_b32 {sRot}, {sRot}, 7
s_lshl_b32 {sXcc}, {sXcc}, 2
s_lshl_b32 {sXcc}, 1, {sXcc}""" + "".join(f"\ns_add_u32 {sC[i]}, {sRot}, {128*(i+1)}\ns_and_b32 {sC[i]}, {sC[i]}, 0x3ff" for i in range(3))
      + "".join("\n" + "\n".join(x_t0(sN[NEXT.index('X' + 'abc'[a])], a, 3)) for a in range(3)) + f"""
s_mul_i32 s6, {sB}, {8*CHUNK + 4096}
s_mov_b32 s75, s6
s_add_u32 s6, s6, 4096
s_mul_i32 s7, {sWave}, 49152
s_add_u32 {sStR}, s6, s7
s_lshl_b32 s7, {sG}, 10
s_add_u32 {sStR}, {sStR}, s7
s_mul_i32 s7, {sG}, 3
s_add_u32 s7, s7, {sWave}
s_lshl_b32 s4, s7, 13
s_add_u32 {sLdR}, s6, s4
s_lshl_b32 {sFlR}, {sB}, 11
s_add_u32 {sFlR}, {sFlR}, {hex(FLAG_BASE - 256)}
s_lshr_b32 s4, s7, 1
s_mul_i32 s5, s4, 11
s_lshr_b32 s5, s5, 5
s_mul_i32 s3, s5, 3
s_sub_u32 s4, s4, s3
s_lshl_b32 s4, s4, 6
s_lshl_b32 s5, s5, 2
s_add_u32 s4, s4, s5
s_mul_i32 s5, {sB}, 192
s_add_u32 s4, s4, s5
s_lshl_b32 s4, s4, 10
s_and_b32 s5, s7, 1
s_lshl_b32 s5, s5, 6
s_add_u32 {sOutR}, s4, s5
s_mov_b32 {sOc}, {sRot}
s_cmp_eq_u32 {sWave}, 3
s_cselect_b32 {sLdR}, {hex(OOB)}, {sLdR}
s_cselect_b32 {sOutR}, {hex(OOB)}, {sOutR}
v_bfe_u32 v3, {vLane}, 3, 2
v_and_b32 v2, 3, {vLane}
v_lshlrev_b32 {vC}, 5, v3
v_lshl_add_u32 {vC}, v2, 3, {vC}
v_lshlrev_b32 v3, 1, v3
v_xor_b32 v2, v2, v3
v_lshlrev_b32 v2, 4, v2
v_sub_u32 {vC}, {vC}, v2""")
    if OPT["tlb"] == 2:
        o += lin(f"""s_mov_b32 s4, {hex(FLAG_BASE + 0x20080)}
s_mov_b32 s88, s80
s_mov_b32 s89, s81
s_mov_b32 s90, 0x80000
s_add_u32 s5, s75, {8*CHUNK + 4096}""") if False else lin(f"s_mov_b32 s4, {hex(FLAG_BASE + 0x20080)}\ns_add_u32 s5, s75, {8*CHUNK + 4096}")
        o += [Op(f"buffer_load_dword {vB}, off, {srd}, {so}", "vm") for srd, so in ((srdWS, "s75"), (srdWS, "s5"), (srdWS, "s4"), (srdO, sOutR))]
    if OPT["stress"]: o += lin(f"s_lshl_b32 s75, s2, 20\ns_add_u32 s75, s75, 0x8000000\ns_mul_i32 s4, {sWave}, 0x3f000\ns_add_u32 s75, s75, s4")
    if OPT["stamps"]:
        o += lin(f"s_lshl_b32 s101, s2, 10\ns_lshl_b32 s6, {sWave}, 8\ns_add_u32 s101, s101, s6\ns_add_u32 s101, s101, {hex(STAMP_BASE)}")
    if OPT["stamps"] == 2: o += stamp(1)
    o.append(WAIT(0, need_vm=[x[0] for x in init[:4]]))
    o += lin("s_barrier")
    if OPT["stamps"] == 2: o += stamp()
    for t in range(3):
        for s in range(4): o += lin("ds_read_b128 %s, %s offset:%d" % ((XA(s, t),) + F.xaddr(F.xsl0[t], s)))
    for s in range(4):
        for p in range(2): o += lin(f"ds_read_b64_tr_b16 {FR(0, s, p)}, {vWb} offset:{F.wso0 + s*4096 + p*2048}")
    o += lin("s_waitcnt lgkmcnt(0)\ns_barrier")
    return o, zst

def glue0(zst):
    return [WAIT(0, need_vm=[zst])] + lin(f"""s_lshl_b32 s6, {sB}, 2
s_cmp_eq_u32 {sWave}, 0
s_cselect_b32 s6, s6, {hex(OOB)}
v_mov_b32 {vB}, {hex(OOB)}
v_writelane_b32 {vB}, 0, 0
v_mov_b32 {vA}, {sXcc}""") + [Op(f"buffer_atomic_add {vA}, {vB}, {srdD}, s6 offen sc1", "vm")]
def touch_setup():
    return lin(f"""s_cmp_eq_u32 {sSlM}, 1
s_cselect_b32 s4, 256, {hex(OOB)}
v_lshlrev_b32 {vA}, 1, {vA}
v_and_b32 {vA}, 0x700, {vA}
s_add_u32 s4, s4, {sFlR}""") + [Op(f"buffer_load_dword {vB}, {vA}, {srdWS}, s4 offen sc1", "vm")]
def mode_check(dbg):
    if OPT["bst"]: return lin(f"L_chkD:\nL_backD:\ns_mov_b32 {sSlM}, 1")
    return [WAIT(0, need_vm=[dbg])] + lin(f"""s_mov_b32 s3, 0
L_chkD:
v_readfirstlane_b32 s4, {vLane}
s_nop 3
s_lshr_b32 s5, s4, 4
s_and_b32 s5, s5, 0x0f0f0f0f
s_and_b32 s7, s4, 0x0f0f0f0f
s_add_u32 s5, s5, s7
s_mul_i32 s5, s5, 0x01010101
s_lshr_b32 s5, s5, 24
s_cmp_lg_u32 s5, 8
s_cbranch_scc1 L_spinD
L_backD:
s_lshl_b32 s5, {sXcc}, 3
{"s_mov_b32 s5, 0" if OPT["forceslow"] else ""}
s_cmp_eq_u32 s4, s5
s_cselect_b32 {sSlM}, 1, 7""")

def slow_path(placed, pendW0):
    vKo, vVo, vVo2, vKo2 = f"v{PV0+40}", f"v{PV0+41}", f"v{PV0+42}", f"v{PV0+43}"
    M = [f"v{PV0+36+t}" for t in range(3)]
    CN = [R("v", PV0 + 24 + 4*t, 4) for t in range(3)]
    Sx = [R("v", S0 + 4*t, 4) for t in range(3)]
    t_ = f"""
L_slow:
s_waitcnt vmcnt(0) lgkmcnt(0)
s_nop 7
v_mbcnt_lo_u32_b32 {vB}, -1, 0
v_mbcnt_hi_u32_b32 {vB}, -1, {vB}
v_and_b32 {vA}, 15, {vB}
v_lshrrev_b32 {vB}, 4, {vB}
v_lshlrev_b32 {vKo}, 8, {vA}
v_lshl_add_u32 {vKo}, {vB}, 4, {vKo}
s_and_b32 s4, {sWcol}, 128
s_xor_b32 s5, s4, 128
v_add_u32 {vKo2}, s5, {vKo}
v_add_u32 {vKo}, s4, {vKo}
v_lshlrev_b32 {vVo}, 10, {vB}
v_lshl_add_u32 {vVo}, {vA}, 1, {vVo}
v_add_u32 {vVo2}, 0x1000, {vVo}
s_add_u32 s4, {sHr}, {sHead}
s_and_b32 s4, s4, 3
s_lshl_b32 s4, s4, 17
s_mov_b32 s10, 0x80000
s_mov_b32 s14, 0x80000
s_add_u32 s5, s4, 0x20000
s_mov_b32 s6, s4
"""
    for t in range(3): t_ += f"v_mov_b32 {M[t]}, 0xff800000\n"
    t_ += "L_slow1:\n"
    for s in range(4): t_ += f"buffer_load_dwordx4 {FR(0, s)}, {vKo if s < 2 else vKo2}, {srdK}, s6 offen offset:{64*(s & 1)}\n"
    t_ += "s_waitcnt vmcnt(0)\n"
    for t in range(3):
        for s in range(4): t_ += f"v_mfma_f32_16x16x32_bf16 {Sx[t]}, {FR(0, s)}, {QV(s, t)}, {'0' if s == 0 else Sx[t]}\n"
    t_ += "s_nop 9\n"
    for t in range(3):
        t_ += f"v_max3_f32 {M[t]}, {M[t]}, v{S0+4*t}, v{S0+4*t+1}\nv_max3_f32 {M[t]}, {M[t]}, v{S0+4*t+2}, v{S0+4*t+3}\n"
    t_ += "s_add_u32 s6, s6, 0x1000\ns_cmp_lt_u32 s6, s5\ns_cbranch_scc1 L_slow1\n"
    for t in range(3):
        t_ += f"""v_mov_b32 {vA}, {M[t]}
s_nop 1
v_permlane32_swap_b32 {vA}, {M[t]}
s_nop 1
v_max_f32 {M[t]}, {vA}, {M[t]}
v_mov_b32 {vA}, {M[t]}
s_nop 1
v_permlane16_swap_b32 {vA}, {M[t]}
s_nop 1
v_max_f32 {M[t]}, {vA}, {M[t]}
"""
        for i in range(4): t_ += f"v_sub_f32 v{PV0+24+4*t+i}, 0, {M[t]}\n"
    for i in range(96): t_ += f"v_mov_b32 v{i}, 0\n"
    for i in range(12): t_ += f"v_accvgpr_write_b32 a{240+i}, 0\n"
    t_ += "s_mov_b32 s6, s4\nL_slow2:\n"
    for u in range(2):
        for s in range(4): t_ += f"buffer_load_dwordx4 {FR(0, s)}, {vKo if s < 2 else vKo2}, {srdK}, s6 offen offset:{64*(s & 1)}\n"
        t_ += "s_waitcnt vmcnt(0)\n"
        for t in range(3):
            for s in range(4): t_ += f"v_mfma_f32_16x16x32_bf16 {Sx[t]}, {FR(0, s)}, {QV(s, t)}, {CN[t] if s == 0 else Sx[t]}\n"
        t_ += "s_nop 9\n"
        for i in range(12): t_ += f"v_exp_f32 v{S0+i}, v{S0+i}\n"
        t_ += "s_nop 0\n"
        for t in range(3):
            for j in range(2): t_ += f"v_cvt_pk_bf16_f32 {PBr(0, 0, t, 2*u + j)}, v{S0+4*t+2*j}, v{S0+4*t+2*j+1}\n"
        if u == 0: t_ += "s_mov_b32 s7, s6\ns_add_u32 s6, s6, 0x1000\n"
    f = FA0 + 16
    for dt in range(8):
        for j in range(8):
            t_ += f"buffer_load_ushort v{FA0 + j}, {vVo if j < 4 else vVo2}, {srdV}, s7 offen offset:{(j & 3)*256 + 32*dt}\n"
        t_ += "s_waitcnt vmcnt(0)\n"
        for j in range(4): t_ += f"v_lshl_or_b32 v{f + j}, v{FA0 + 2*j + 1}, 16, v{FA0 + 2*j}\n"
        t_ += "s_nop 1\n"
        for t in range(3): t_ += f"v_mfma_f32_16x16x32_bf16 {OA(dt, t)}, v[{f}:{f+3}], {PB(0, 0, t)}, {OA(dt, t)}\n"
    for t in range(3): t_ += f"v_mfma_f32_16x16x32_bf16 {LA(t)}, {ONES}, {PB(0, 0, t)}, {LA(t)}\n"
    t_ += "s_add_u32 s6, s6, 0x1000\ns_cmp_lt_u32 s6, s5\ns_cbranch_scc1 L_slow2\ns_nop 9\n"
    for t in range(3): t_ += f"v_accvgpr_read_b32 {vRL[t]}, a{240+4*t}\n"
    for t in range(3): t_ += f"v_rcp_f32 {vRL[t]}, {vRL[t]}\n"
    t_ += "s_nop 0\n"
    for o in placed: t_ += o.text + "\n"
    for o in pendW0: t_ += o.text + "\n"
    t_ += "s_waitcnt lgkmcnt(0)\n"
    t_ += "s_branch L_join\n"
    return lin(t_)

def spin(lbl, back, reg, off_v, srd, soff, exp):
    return lin(f"""{lbl}:
s_mov_b32 s3, 0
{lbl}_l:
buffer_load_dword {reg}, {off_v}, {srd}, {soff}{' offen' if off_v != 'off' else ''} sc1
s_add_u32 s3, s3, 1
s_waitcnt vmcnt(0)
v_cmp_ne_u32 vcc, {exp}, {reg}
s_cmp_gt_u32 s3, 0x10000
s_cbranch_scc1 {back}
s_nop 2
s_cbranch_vccnz {lbl}_l
s_branch {back}""")

def pad_linear(ops):
    out = []
    for o in ops:
        need = 0
        for (p, n) in o.sdeps:
            if p in out: need = max(need, n - sum(x.w for x in out[out.index(p)+1:]))
        if need > 0:
            nop = Op(f"s_nop {need-1}", "x"); nop.w = need; out.append(nop)
        out.append(o)
    return out

def tail(G):
    X = (lambda: stamp()) if OPT["stamps"] == 3 else (lambda: [])
    def sums(set_, loads):
        o0, p0, s0_ = reduce_ops(set_)
        return [WAIT(0, need_vm=loads)] + pad_linear(o0 + p0 + [s0_])
    def restore(chunk, base):
        r = []
        for t in range(3):
            for np_ in range(2):
                k = 2*t + np_
                r += lin(f"s_add_u32 {sU[k & 1]}, {base}, {k*8192}") + [Op(f"buffer_store_dwordx4 {OA(4*chunk + 2*np_, t)}, {vSt}, {srdWS}, {sU[k & 1]} offen sc1", "vm", tag="fastonly")]
        return r
    o = lin("\n".join(scal_B()) + "\ns_nop 1")
    stores = []
    for (cv, sa, st) in pack_store(1):
        o += cv + [sa, st]; stores.append(st)
    o += X() + sums(1, G.LD[1]) + X()
    o += [WAIT(0, need_vm=stores)] + X() + lin("s_barrier") + sig_ops()
    if OPT["clean"] & 1: o += restore(0, sStR)
    if OPT["msum"]:
        A0, A1, D0, D1 = FR(0, 0), FR(0, 1), FR(0, 2), FR(0, 3)
        f = FA0 + 16
        t_ = f"""s_waitcnt lgkmcnt(0)
v_lshrrev_b32 v{f}, 4, {vSt}
v_lshrrev_b32 v{f+1}, 4, v{f}
v_and_b32 v{f+2}, 1, v{f}
v_lshlrev_b32 v{f+2}, 4, v{f+2}
v_mov_b32 v{f+3}, 0x3f80
v_lshlrev_b32 v{f+2}, v{f+2}, v{f+3}
v_bfe_u32 v{f+3}, v{f}, 1, 1
v_bfe_u32 v{f+4}, v{f}, 3, 1
v_lshl_add_u32 v{f+3}, v{f+4}, 1, v{f+3}
v_bfe_u32 v{f+4}, v{f}, 2, 1
v_lshlrev_b32 v{f+4}, 1, v{f+4}
v_add_u32 v{f+5}, 1, v{f+4}
v_cmp_eq_u32 vcc, v{f+1}, v{f+4}
v_cmp_eq_u32 {sBad}, v{f+1}, v{f+5}
s_nop 1
v_cndmask_b32 v{f+6}, 0, v{f+2}, vcc
v_cndmask_b32 v{f+7}, 0, v{f+2}, {sBad}
"""
        for r_ in range(4):
            t_ += f"v_cmp_eq_u32 vcc, {r_}, v{f+3}\ns_nop 1\nv_cndmask_b32 v{FA0+r_}, 0, v{f+6}, vcc\nv_cndmask_b32 v{FA0+4+r_}, 0, v{f+7}, vcc\n"
        o += lin(t_)
    o += lin("s_branch L_spinU@L\nL_backU@L:") + X()
    l7 = red_loads(0); o += l7
    if OPT["clean"] & 2: o += restore(1, sSt)
    o += lin(f"s_add_u32 {sOut}, {sOutR}, {sOc}")
    if OPT["stamps"] == 3: o += lin("s_waitcnt vmcnt(0)") + X()
    if OPT["msum"]:
        for g in range(8):
            o += [WAIT(0, need_vm=[l7[g]]), mfma(D0, A0, RLD[0][g], "0" if g == 0 else D0), mfma(D1, A1, RLD[0][g], "0" if g == 0 else D1)]
        d0, d1 = regs(D0), regs(D1); res = regs(RLD[1][0])
        o += lin("s_nop 7")
        o += [V(f"v_cvt_pk_bf16_f32 {res[j]}, {(d0 + d1)[2*j]}, {(d0 + d1)[2*j+1]}", rd=[(d0 + d1)[2*j], (d0 + d1)[2*j+1]], wr=[res[j]]) for j in range(4)]
        o += [Op(f"buffer_store_dwordx4 {RLD[1][0]}, {vOut}, {srdO}, {sOut} offen{OSC}", "vm", rd=[RLD[1][0]])] + X() + X()
    else: o += sums(0, l7) + X() + X()
    return o

def main():
    R2 = build_R2()
    placed = [o for o in R2.epi if o.gap is not None]; placed.sort(key=lambda o: o.pos)
    R1 = build_R1(R2.left)
    R1b = {h: build_R1b(h) for h in (1, 2, 3)}
    R1f = build_R1f()
    global G_LD, G_LD0
    G0 = build_G(True, R2.left)
    G_LD0 = G0.LD[1]; G_LD = [red_loads(0), red_loads(1)]
    G = build_G()
    bind_ext(R1, [R2.pendW0]); bind_ext(R2, [R1f.pend] + [R1b[h].pend for h in R1b]); bind_ext(G0, [R2.pendW0]); bind_ext(G, [G0.pend, G.pend])
    for h in R1b: bind_ext(R1b[h], [R1.pend])
    for w in R1f.xw: w.text = 's_nop 0'
    pro, zst = prologue(R1f)
    for j, t in enumerate(NEXT): TILE[f'G{j}'] += TILE[t]
    stg = lin(f"""{[f"s_mov_b32 s4, {sG}", f"s_and_b32 s4, {sB}, 3", f"s_mov_b32 s4, {sIdx}"][OPT["stagm"]]}
s_mul_i32 s4, s4, {OPT["stag"]}
L_stg:
s_cmp_eq_u32 s4, 0
s_cbranch_scc1 L_stg2
s_sub_u32 s4, s4, 1
s_branch L_stg
L_stg2:""") if OPT["stag"] else []
    p0 = glue0(zst) + stg + lin("s_branch L_R2")
    sel = lin(f"s_cmp_eq_u32 {sHead}, 2\ns_cbranch_scc1 L_v2\ns_cmp_eq_u32 {sHead}, 3\ns_cbranch_scc1 L_v3")
    v1 = R1b[1].out + lin("s_branch L_R2")
    v2 = lin("L_v2:") + R1b[2].out + lin("s_branch L_R2")
    assert OPT["pf"]
    v3 = lin("L_v3:") + R1b[3].out + mode_check(getattr(R1b[2], "dbg", None)) + code_pf("L_pc2", "L_g3", "L_codeend", 15, 76) + touch_setup()
    g2 = lin(f"s_or_b64 {sBad}, {sBad}, vcc\n{'s_nop 0' if OPT['stress'] else 's_cbranch_scc1 L_slow'}\nL_join:\ns_add_u32 {sHead}, {sHead}, 1\ns_cmp_lt_u32 {sHead}, 4")
    g3 = lin(f"s_cmp_eq_u32 {sSlM}, 7\ns_cbranch_scc1 L_G0S")
    g4 = lin(f"s_mov_b32 {sC[0]}, {sC[2]}\ns_add_u32 {sC[1]}, {sC[0]}, 128\ns_and_b32 {sC[1]}, {sC[1]}, 0x3ff\ns_add_u32 {sC[2]}, {sC[1]}, 128\ns_and_b32 {sC[2]}, {sC[2]}, 0x3ff\ns_cmp_lt_u32 {sIt}, 8")
    T = tail(G)
    sA, sB_, sC_, sD_, sE = stamp(1 if OPT['stamps'] in (1, 3) else 0), stamp(), stamp(), stamp(), stamp(2)
    if OPT["bst"]:
        def dump():
            return lin(f"v_mbcnt_lo_u32_b32 {vA}, -1, 0\nv_mbcnt_hi_u32_b32 {vA}, -1, {vA}\nv_lshlrev_b32 {vA}, 2, {vA}") + [Op(f"buffer_store_dword {vLane}, {vA}, {srdWS}, s101 offen", "vm")] + lin("s_add_u32 s101, s101, 256\ns_nop 1")
        sA = lin(f"s_lshl_b32 s101, s2, 2\ns_add_u32 s101, s101, {sWave}\ns_lshl_b32 s101, s101, 12\ns_add_u32 s101, s101, {hex(DUMP_BASE)}")
        sC_ = dump(); sD_ = dump()
    tr = pro + sA
    for hd in range(4):
        tr += [R1f.out + p0, R1.out + sel + v1, R1.out + sel + v2, R1.out + sel + v3][hd] + sB_ + R2.out + g2 + sC_
    tr += g3
    post = []
    for it in range(3): post += G.out + g4 + sD_
    post += T
    resolve_waits(tr + [x for x in G0.out if x.tag != "touch"] + g4 + sD_ + [x for x in post if x.tag != "fastonly"], TILE)
    tr += G0.out + g4 + sD_ + post
    resolve_waits(tr, TILE)
    errs = check(tr, "main")
    for e in errs[:20]: print(e, file=sys.stderr)
    assert not errs
    for rg in (R1f, R1, R1b[1], R1b[3], R2, G0, G): print(rg.name, "overfull:", rg.overlog, file=sys.stderr)
    out = [open(os.path.join(os.path.dirname(os.path.abspath(__file__)), "header.txt")).read().rstrip()]
    out.append("; @launch grid=(256,1,1) block=(256,1,1) lds=163840")
    out.append(f""".amdgcn_target "amdgcn-amd-amdhsa--gfx950"
.text
.globl {KN}
.p2align 8
.type {KN},@function
{KN}:""")
    def emit(ops, sc="", lb=""):
        for o in ops:
            if OPT["nobar"] and o.text == "s_barrier" and o.kind == "w": out.append("s_nop 0"); continue
            if OPT["nolg"] and o.kind == "w" and o.text.startswith("s_waitcnt") and "vmcnt" not in o.text: out.append("s_nop 0"); continue
            if OPT["nods"] and o.kind == "ds": continue
            if OPT["novalu"] and o.kind in ("v4", "v8") and o.gap is not None and ("exp" in o.text or "cvt" in o.text or "mul" in o.text or "perm" in o.text or "and" in o.text or "lshl" in o.text or "add_f32" in o.text): continue
            if OPT["nodma"] and o.text.endswith(" lds"): out.append("s_nop 0"); continue
            if OPT["nored"] and " sc1" in o.text and "dwordx4" in o.text: out.append("s_nop 0"); continue
            if getattr(o, "pre", None): out.append(o.pre)
            out.append(o.text.replace("@SC", sc).replace("@L", lb))
    def mark(n):
        return lin("s_memrealtime s[2:3]\ns_waitcnt lgkmcnt(0)\ns_sub_u32 s75, s2, s73") if OPT["dbl"] == n else []
    def idle(n, tag):
        if not n: return []
        return lin(f"""s_memrealtime s[2:3]
s_waitcnt lgkmcnt(0)
s_mov_b32 s5, s2
L_idle{tag}:
s_sleep 2
s_memrealtime s[2:3]
s_waitcnt lgkmcnt(0)
s_sub_u32 s4, s2, s5
s_cmp_lt_u32 s4, {n}
s_cbranch_scc1 L_idle{tag}""")
    def ex(n): return (stamp(2) + lin("s_endpgm")) if OPT["exitat"] == n else []
    emit(pro + mark(3) + idle(OPT['idle0'], 'a') + sA + ex(1) + R1f.out + mark(4) + p0)
    out.append("L_loop:"); emit(R1.out + sel + v1 + v2 + v3); out.append("L_R2:"); emit(idle(OPT['idle1'], 'b') + sB_ + R2.out + g2 + sC_)
    if OPT["dbl"] >= 10:
        emit(lin(f"s_cmp_lg_u32 {sHead}, {OPT['dbl'] - 9}\ns_cbranch_scc1 L_nomark") + mark(OPT["dbl"]) + lin(f"L_nomark:\ns_cmp_lt_u32 {sHead}, 4"))
    if OPT["stamps"] or OPT["bst"]: out.append(f"s_cmp_lt_u32 {sHead}, 4")
    out.append("s_cbranch_scc1 L_loop")
    out.append('L_g3:'); emit(mark(5) + ex(3) + g3)
    for sc, lb in ((NTST, ""), (" sc1", "S")):
        out.append(f"L_G0{lb}:"); emit([(Op("s_nop 0", "x") if (lb and x.tag == "touch") else x) for x in G0.out] + g4 + sD_, sc, lb)
        out.append(f"L_G{lb}:"); emit(G.out + g4 + sD_, sc, lb)
        if OPT["stamps"] or OPT["bst"]: out.append(f"s_cmp_lt_u32 {sIt}, 8")
        out.append(f"s_cbranch_scc1 L_G{lb}")
        emit([(Op('s_nop 0', 'x') if (lb and x.tag == 'fastonly') else x) for x in T] + sE, sc, lb)
        if OPT["dbl"]:
            emit(lin(f"""s_waitcnt vmcnt(0)
s_memrealtime s[2:3]
s_waitcnt lgkmcnt(0)
{"s_sub_u32 s4, s2, s73" if OPT["dbl"] == 1 else ("s_mov_b32 s4, 500" if OPT["dbl"] == 2 else "s_mul_i32 s4, s75, 4")}
s_min_u32 s4, s4, 40000
s_mov_b32 s5, s2
L_dbl{lb}:
s_sleep 4
s_memrealtime s[2:3]
s_waitcnt lgkmcnt(0)
s_sub_u32 s6, s2, s5
s_cmp_lt_u32 s6, s4
s_cbranch_scc1 L_dbl{lb}"""))
        out.append("s_endpgm")
        if not lb: out.append("L_codeend:")
        for nm in ("G0", "G1", "G1F", "U"): emit(spin(f"L_spin{nm}{lb}", f"L_back{nm}{lb}", vPr, vPo, srdWS, sPoll, sExp))
    emit(lin(f"""L_spinD:
s_add_u32 s3, s3, 1
s_cmp_gt_u32 s3, 0x10000
s_cbranch_scc1 L_backD
s_lshl_b32 {sTmp}, {sB}, 2
buffer_load_dword {vLane}, off, {srdD}, {sTmp} sc1
s_waitcnt vmcnt(0)
s_branch L_chkD"""))
    emit(slow_path(placed, R2.pendW0))
    out.append(f"""s_endpgm
.section .rodata,"a"
.p2align 6
.amdhsa_kernel {KN}
  .amdhsa_next_free_vgpr 512
  .amdhsa_next_free_sgpr 102
  .amdhsa_accum_offset 256
  .amdhsa_group_segment_fixed_size 0
  .amdhsa_kernarg_size 64
  .amdhsa_user_sgpr_count 2
  .amdhsa_user_sgpr_kernarg_segment_ptr 1
  .amdhsa_system_sgpr_workgroup_id_x 1
.end_amdhsa_kernel""")
    print("\n".join(out))
main()
```

```python
import sys, os, struct, math
sys.path.insert(0, os.path.dirname(os.path.abspath(__file__)))
from sched import *
import ringplan

OPT = dict(stamps=0, nt=1, stress=0, msum=1, tord=0, b0=0, clean=0, stag=0, stagm=0, mapping=48, nodma=0, samekv=0, nored=0, ntw=0, ntx=0, bst=0, lrate=3, lburst=4, rsp=8, rk=2, i0=-170, dk=75, ksp=18, wsp=7, gst=4, gld=4, gsig=1, gpoll=108, gsum=8, gdma=40, glc=0, rot=1, gout=189, gdsp=5, lag=1, forceslow=0, ntst=0, pf=128, hrot=9, hswap=1, plan=0, uni=1, wstrict=1, rspw=10, samew=0, samex=0, krot=3, osc=0, idle0=0, idle1=0, exitat=0, wb=0, dbl=0, nperm=1, bdw=2, bda=2, vlate=1, tch=0, gtch=0, kvlate=4, tg=0, etch=0, gl3=1, ftch=1, tlb=0, fsp=2, fkv=5, fgap=4, nobar=0, nolg=0, nods=0, novalu=0)
for a in sys.argv[1:]:
    k, v = a.split("="); assert k in OPT, k; OPT[k] = float(v) if "." in v else int(v)
Region.LDSRATE = OPT["lrate"]; Region.LDSBURST = OPT["lburst"]
KN = "standalone__mha_block_cached__near_ridge_kernel"

def OA(mt, t): return R("v", (mt*3 + t)*4, 4)
def OAr(mt, t, i): return f"v{(mt*3 + t)*4 + i}"
QV0, PV0, S0, FA0 = 96, 144, 192, 204
def QV(s, t): return R("v", QV0 + (s*3 + t)*4, 4)
def QVr(s, t, i): return f"v{QV0 + (s*3 + t)*4 + i}"
def PB(buf, sg, t): return R("v", PV0 + 24*buf + (sg*3 + t)*4, 4)
def PBr(buf, sg, t, i): return f"v{PV0 + 24*buf + (sg*3 + t)*4 + i}"
def OP(s, t): return R("v", PV0 + (s*3 + t)*4, 4)
def OPr(s, t, i): return f"v{PV0 + (s*3 + t)*4 + i}"
def FR(buf, f, half=None):
    b = FA0 + 16*buf + 4*f
    return R("v", b, 4) if half is None else R("v", b + 2*half, 2)
vK = ["v236", "v237", "v238", "v239"]
vVb, vWb, vT = "v240", "v241", ["v242", "v243"]
vDK, vDV, vDW, vDX, vC = "v244", "v245", "v246", "v247", "v248"
vRL = ["v249", "v250", "v251"]
vLane, vDWo, vA, vB = "v252", "v253", "v254", "v255"
def XA(s, t): return R("a", (s*3 + t)*4, 4)
ZB = {0: 144, 1: 192, 2: 0}
def ZA(h, s, t): return R("a", ZB[h] + (s*3 + t)*4, 4)
def LA(t): return R("a", 240 + 4*t, 4)
ONES = "a[252:255]"

srdK, srdV, srdW, srdX, srdWS, srdO, srdD = (f"s[{i}:{i+3}]" for i in (8, 12, 16, 20, 24, 28, 32))
sW1k, sXcc, sRot, sOc = "s36", "s37", "s38", "s39"
sC = ["s40", "s41", "s42"]
sDg = ["s43", "s44", "s45", "s46"]
sIdx = "s99"
sH = ["s93", "s95", "s96", "s97"]; sHr = "s98"; sSw = "s3"
sKoff, sVoff, sWcol = "s47", "s48", "s49"
sD = [None, "s50", "s51", "s52"]
sDY = [None, "s53", "s54", "s55"]
sT = ["s56", "s57", "s58", "s59"]
sW4k, sHead, sScale, sWave, sB, sG, sLo, sHi = (f"s{i}" for i in range(60, 68))
sBad = "s[84:85]"
sN = [f"s{i}" for i in range(86, 92)]
sTmp = "s100"
sIt, sSt, sSig, sExp, sLd, sLd2, sOut = (f"s{i}" for i in range(86, 93))
sStR, sLdR, sFlR, sOutR, sSlM, sLdMin, sGate = (f"s{i}" for i in range(68, 75))
sPoll = sSig; sPo = "s99"; sTk, sTh, sTo = "s43", "s44", "s45"
sU = ["s4", "s5"]; sMask = "s6"
OOB = 0x40000000
FLAG_BASE = 0x3040000
STAMP_BASE = 0x3100000
DUMP_BASE = 0x4000000
WS_BYTES = 0x20000000 if OPT["stress"] else (0x8000000 if OPT["bst"] else 0x3200000)
CHUNK = 196608
ORD = [(0,0),(0,1),(0,2),(1,0),(0,3),(1,3),(1,1),(1,2)]
ORDG = [(j >> 2, j & 3) for j in range(8)]
NTKV = {"K": " nt" if OPT["nt"] in (1, 2) else "", "V": " nt" if OPT["nt"] in (1, 3) else ""}
NTW = " nt" if OPT["ntw"] else ""
NTX = " nt" if OPT["ntx"] else ""
def wq_lit(step): return ORD[step][1]*0x100000 + ORD[step][0]*128
def wo_lit(m): return (m & 3)*0x20000 + (m >> 2)*128

def S(text, rd=(), wr=(), **kw): return Op(text, "s", rd=rd, wr=wr, **kw)
def V(text, rd=(), wr=(), **kw): return Op(text, "v4", rd=rd, wr=wr, **kw)
def V8(text, rd=(), wr=(), **kw): return Op(text, "v8", rd=rd, wr=wr, **kw)
def WAIT(d, need_ds=(), need_vm=(), lg0=False, late=3, e=-1):
    o = Op("s_waitcnt ?", "w", e=e, d=d, late=late, deps=[(x, 1) for x in need_ds])
    o.need_ds, o.need_vm, o.lg0 = list(need_ds), list(need_vm), lg0
    return o
def lin(text):
    return [Op(l.strip(), "x") for l in text.strip().split("\n") if l.strip()]

class Ctx: pass
C = Ctx(); C.grp = 0

ringplan.setb(OPT["bdw"], OPT["bda"]); BDW, BDA = OPT["bdw"], OPT["bda"]
wI = {"W0": -210, "W1": -135, "W2": -55, "W3": 36 + BDW, "W4": 78, "W5": 112, "W6": 162, "W7": 186}
xI = {"Xa": -430, "Xb": -350, "Xc": -280}
PLANS = {
 8: {'Xa': -430, 'Xb': -350, 'Xc': -280, 'W0': -210, 'W1': -135, 'W2': -58, 'W3': 38, 'W4': 80, 'W5': 115, 'W6': 150, 'W7': 190, 'K0': -198, 'K1': -130, 'V0': -62, 'K2': 38, 'V1': 104, 'K3': 172, 'V2': 290, 'K4': 361, 'V3': 432, 'K5': 503, 'V4': 574, 'K6': 645, 'V5': 716, 'K7': 787, 'V6': 858, 'V7': 930},
 7: {'Xa': -430, 'Xb': -350, 'Xc': -280, 'W0': -210, 'W1': -135, 'W2': -58, 'W3': 38, 'W4': 80, 'W5': 110, 'W6': 162, 'W7': 186, 'K0': -167, 'K1': -93, 'V0': -19, 'K2': 58, 'V1': 136, 'K3': 214, 'V2': 290, 'K4': 365, 'V3': 439, 'K5': 513, 'V4': 587, 'K6': 661, 'V5': 735, 'K7': 809, 'V6': 884, 'V7': 959},
 5: {'Xa': -430, 'Xb': -350, 'Xc': -280, 'W0': -210, 'W1': -135, 'W2': -55, 'W3': 38, 'W4': 78, 'W5': 112, 'W6': 162, 'W7': 186, 'K0': -170, 'K1': -95, 'V0': -20, 'K2': 55, 'V1': 140, 'K3': 290, 'V2': 345, 'K4': 400, 'V3': 460, 'K5': 525, 'V4': 590, 'K6': 660, 'V5': 730, 'K7': 805, 'V6': 880, 'V7': 955},
 6: {'Xa': -430, 'Xb': -350, 'Xc': -280, 'W0': -210, 'W1': -135, 'W2': -55, 'W3': 38, 'W4': 78, 'W5': 112, 'W6': 162, 'W7': 186, 'K0': -170, 'K1': -95, 'V0': -20, 'K2': 135, 'V1': 290, 'K3': 335, 'V2': 385, 'K4': 435, 'V3': 490, 'K5': 545, 'V4': 605, 'K6': 665, 'V5': 730, 'K7': 805, 'V6': 880, 'V7': 955},
 3: {'Xa': -514, 'Xb': -444, 'Xc': -297, 'W0': -229, 'W1': -155, 'W2': -63, 'W3': 8, 'W4': 38, 'W5': 82, 'W6': 110, 'W7': 180, 'K0': -187, 'K1': -112, 'V0': -38, 'K2': 58, 'V1': 141, 'K3': 216, 'V2': 290, 'K4': 364, 'V3': 436, 'K5': 507, 'V4': 579, 'K6': 651, 'V5': 721, 'K7': 794, 'V6': 863, 'V7': 940},
 4: {'Xa': -514, 'Xb': -444, 'Xc': -297, 'W0': -229, 'W1': -155, 'W2': -63, 'W3': 8, 'W4': 38, 'W5': 82, 'W6': 110, 'W7': 180, 'K0': -180, 'K1': -108, 'V0': -36, 'K2': 58, 'V1': 141, 'K3': 216, 'V2': 290, 'K4': 364, 'V3': 438, 'K5': 512, 'V4': 586, 'K6': 660, 'V5': 734, 'K7': 808, 'V6': 878, 'V7': 950},
 1: {'Xa': -510, 'Xb': -430, 'Xc': -352, 'W0': -205, 'W1': -106, 'W2': -26, 'W3': 5, 'W4': 37, 'W5': 98, 'W6': 161, 'W7': 190, 'K0': -243, 'K1': -157, 'V0': -60, 'K2': 64, 'V1': 130, 'K3': 221, 'V2': 290, 'K4': 354, 'V3': 415, 'K5': 477, 'V4': 593, 'K6': 533, 'V5': 650, 'K7': 728, 'V6': 809, 'V7': 894},
 2: {'Xa': -496, 'Xb': -413, 'Xc': -333, 'W0': -252, 'W1': -103, 'W2': -30, 'W3': 5, 'W4': 38, 'W5': 99, 'W6': 130, 'W7': 188, 'K0': -210, 'K1': -148, 'V0': -54, 'K2': 67, 'V1': 155, 'K3': 221, 'V2': 291, 'K4': 349, 'V3': 409, 'K5': 473, 'V4': 534, 'K6': 598, 'V5': 662, 'K7': 829, 'V6': 747, 'V7': 904},
}
if OPT["plan"]: wI = PLANS[OPT["plan"]]; xI = {}
ISS, SLOT, _c, NEED = ringplan.plan(OPT["i0"], OPT["dk"], wI, xI)
assert SLOT is not None
SPR = {}; TIMES = {}
for t in ISS:
    m = ISS[t] % 1200
    sp = OPT["ksp"] if t[0] in "KV" else OPT["wsp"]
    if OPT["uni"] and t[0] in "KV":
        ts_ = [ISS[t] + (OPT["dk"]*i + 2)//4 for i in range(4)]
        for i in range(4):
            for edge in (0, 240, 288, 1200):
                if edge - 4 <= ts_[i] < edge + 2: ts_[i] = edge + 2
        TIMES[t] = ts_; continue
    if 228 <= m < 288: ISS[t] += 290 - m; m = 290
    SPR[t] = min(sp, ((240 if m < 288 else 1200) - 5 - m)//3); assert SPR[t] >= 1
    TIMES[t] = [ISS[t] + SPR[t]*i for i in range(4)]
BASE = {}
for ch in "KVW":
    for i, b in enumerate(ringplan.bases([SLOT[f"{ch}{i}"] for i in range(8)])[1]): BASE[f"{ch}{i}"] = b
XB = min(SLOT["Xa"], SLOT["Xb"], SLOT["Xc"]); assert max(SLOT["Xa"], SLOT["Xb"], SLOT["Xc"]) - XB <= 3
NEXT = sorted([t for t in ISS if ISS[t] < 0 and t[0] in "WX"], key=lambda t: (t != "W0", ISS[t]))
print("plan:", ISS, SLOT, BASE, NEXT, file=sys.stderr)
TILE = {}
def lit(x): return hex(x & 0xffffffff)
def rebase(rg, typ, old, new, e, d, after=()):
    if old == new: return []
    regs_ = vK if typ == "K" else [vVb if typ == "V" else vWb]
    return [rg.F(V(f"v_add_u32 {r}, {lit((new - old)*16384)}, {r}", rd=[r], wr=[r], e=e, d=d, deps=[(a, 0) for a in after if a])) for r in regs_]
def wq_t0(dst, step):
    hf, dg = ORD[step]
    return [f"s_add_u32 {dst}, {sWcol}, {sDg[dg]}"] + ([f"s_xor_b32 {dst}, {dst}, 128"] if hf else [])
def x_t0(dst, a, q):
    return [f"s_lshr_b32 {dst}, {sDg[q]}, 12"] + ([f"s_add_u32 {dst}, {dst}, {a*65536}"] if a else [])
def tile_src(spec):
    k = spec[0]
    if k == "W": return srdW, vDW, wq_t0(sT[0], spec[1]), sD, NTW
    if k == "C": return srdW, vDW, [f"s_add_u32 {sT[0]}, {sC[spec[1]]}, {sH[spec[2]]}"], sD, NTW
    if k == "N": return srdW, vDW, [f"s_mov_b32 {sT[0]}, {sN[spec[1]]}"], sD, NTW
    if k == "Y": return srdX, vDX, [f"s_mov_b32 {sT[0]}, {sN[spec[1]]}"], sDY, NTX
    if k == "X": return srdX, vDX, x_t0(sT[0], spec[1], spec[2]), sDY, NTX
def add_dmas(rg, items):
    ev = []
    for (name, spec, slot, e, sp, bar) in items:
        for i, t in (sp if isinstance(sp, list) else [(i, e + sp*i) for i in range(4)]): ev.append((t, e, i, name, spec, slot, bar))
    ev.sort(key=lambda x: (x[0], x[1]))
    prev = None; cur = None; wopen = None; ts = None; lastw = None; m0 = None
    for (t, e0, i, name, spec, slot, bar) in ev:
        deps = []
        if bar is not None: deps.append((bar, 0))
        if prev is not None: deps.append((prev, 1))
        if cur != slot:
            m0 = rg.F(Op(f"s_add_u32 m0, {sW4k}, {slot*16384}", "t", wr=["m0"], e=t - 6, deps=([(prev, 1)] if prev else []))); cur = slot
        deps.append((m0, 1))
        if spec[0] in "KV":
            so, vo, srd = (sKoff, vDK, srdK) if spec[0] == "K" else (sVoff, vDV, srdV)
            st = rg.inc.get(spec[0])
            if st is not None and i == 0: deps.append((st, 0))
            o = rg.F(Op(f"buffer_load_dwordx4 {vo}, {srd}, {so} offen offset:{i*1024}{NTKV[spec[0]]} lds", "vm", rd=[vo, so, "m0"], e=t, d=t + 4, deps=deps))
            if i == 3:
                inc = rg.F(Op(f"s_add_u32 {so}, {so}, 0x4000", "t", rd=[so], wr=[so], deps=[(o, 1)], d=t + 12))
                if name[1] == "7":
                    inc = rg.F(Op(f"s_and_b32 {so}, {so}, 0x7ffff", "t", rd=[so], wr=[so], deps=[(inc, 0)], d=t + 14))
                    nr = "s10" if name[0] == "K" else "s14"
                    rg.F(S(f"s_cmp_eq_u32 {sHead}, 3", deps=[(o, 1)])); inc2 = rg.F(S(f"s_cselect_b32 {nr}, 0, {nr}", d=t + 20))
                rg.inc[spec[0]] = inc
        else:
            srd, vo, t0, dl, fl = tile_src(spec)
            if i == 0:
                assert wopen is None, "W-type tiles may not interleave"
                wopen = name
                tt = rg.F(Op(t0[0], "t", wr=[sT[0]], e=t - 12, deps=([(lastw, 1)] if lastw else [])))
                for x in t0[1:]: tt = rg.F(Op(x, "t", wr=[sT[0]], deps=[(tt, 0)]))
                ts = [tt]
                ts += [rg.F(Op(f"s_add_u32 {sT[j]}, {sT[0]}, {dl[j]}", "t", wr=[sT[j]], deps=[(ts[0], 0)])) for j in (1, 2, 3)]
            o = rg.F(Op(f"buffer_load_dwordx4 {vo}, {srd}, {sT[i]} offen offset:{i*1024}{fl} lds", "vm", rd=[vo, sT[i], "m0"], e=t, d=t + 4, deps=deps + [(ts[i], 0)]))
            if i == 3: wopen = None; lastw = o
        if i == 3: TILE.setdefault(name, []).append(o)
        if i == 0: rg.first_dma[name] = o
        prev = o
    rg.lastw = lastw
def head_dmas(rg, lo, hi):
    items = []
    for t in ISS:
        mine = [(i, x % 1200 - lo) for i, x in enumerate(TIMES[t]) if lo <= x % 1200 < hi]
        if not mine: continue
        m = ISS[t] % 1200
        spec = (t[0],) if t[0] in "KV" else (("W", int(t[1])) if ISS[t] >= 0 else (("N" if t[0] == "W" else "Y"), NEXT.index(t)))
        cands = [g for g in rg.bars if g + lo <= m and any(SLOT[p] == SLOT[t] and NEED[p][1] % 1200 == g + lo for p in NEED)] if mine[0][0] == 0 else []
        bar = rg.bars[max(cands)] if cands else None
        items.append((t, spec, SLOT[t], mine[0][1], mine, bar))
    if OPT["stress"]:
        for g in range(lo + 20, hi - 12, OPT["stress"]):
            o = rg.F(Op(f"buffer_load_dword a241, {vDK}, {srdWS}, s75 offen nt", "vm", e=g - lo, d=g - lo + 6))
            rg.F(Op("s_add_u32 s75, s75, 0x1000", "t", deps=[(o, 1)], d=g - lo + 10))
    add_dmas(rg, items)
def dma_linear(name, spec, slot):
    ops = lin(f"s_add_u32 m0, {sW4k}, {slot*16384}")
    if spec[0] in "KV":
        so, vo, srd = (sKoff, vDK, srdK) if spec[0] == "K" else (sVoff, vDV, srdV)
        d = [Op(f"buffer_load_dwordx4 {vo}, {srd}, {so} offen offset:{i*1024}{NTKV[spec[0]]} lds", "vm") for i in range(4)]
        ops += lin("s_nop 0") + d + lin(f"s_add_u32 {so}, {so}, 0x4000")
    else:
        srd, vo, t0, dl, fl = tile_src(spec)
        d = [Op(f"buffer_load_dwordx4 {vo}, {srd}, {sT[i]} offen offset:{i*1024}{fl} lds", "vm") for i in range(4)]
        ops += lin("\n".join(t0) + "\n" + "\n".join(f"s_add_u32 {sT[i]}, {sT[0]}, {dl[i]}" for i in (1, 2, 3))) + d
    TILE.setdefault(name, []).append(d[-1])
    return ops
def reads_X(rg, addr, slots, dst, e, d, deps, step=1):
    ops = []
    for t in range(3):
        for s in range(4):
            r_, imm = addr(slots[t], s)
            ops.append(rg.F(Op(f"ds_read_b128 {dst(s, t)}, {r_} offset:{imm}", "ds", rd=[r_], wr=[dst(s, t)], e=e, d=d + len(ops)*step,
                               deps=list(deps) + ([(ops[-1], 0)] if ops else []))))
    return ops

def new_region(name):
    rg = Region(name); rg.nst = {"R1": 0, "R1f": 0, "R2": 6, "G": 0, "G0": 0}.get(name, 5)
    ext_waits(rg)
    if OPT['wstrict']: rg.ldspol = (lambda k: (4, 3)) if name != 'R2' else (lambda k: (4, 3) if k < 90 else (OPT['lrate'], OPT['lburst']))
    rg.tuse = {0: [], 1: []}; rg.bars = {}; rg.inc = {}; rg.first_dma = {}; rg.wq = bool(OPT["nperm"]) and name[0] != "G"
    return rg

def xor_addr(rg, base, k, ti, e, d, after=()):
    if k == 0: return base, None
    deps = [(x, 0) for x in rg.tuse[ti]] + [(a, 0) for a in after]
    o = rg.F(V(f"v_xor_b32 {vT[ti]}, {k*32}, {base}", rd=[base], wr=[vT[ti]], e=e, d=d, deps=deps))
    rg.tuse[ti] = []
    return vT[ti], o
def reads_W(rg, so, mt, buf, e, deps=(), ups=(), rsp=None):
    if rg.wq:
        if mt == 2: a, xo = xor_addr(rg, vWb, 2, 0, e - 8, e, ups)
        else: a, xo = (vWb if mt < 2 else vT[0]), None
        so += 8*(mt & 1)
    else: a, xo = xor_addr(rg, vWb, mt, mt & 1, e - 8, e, ups)
    dp = list(deps) + ([(xo, 1)] if xo else [(u, 1) for u in ups])
    ops = []
    for s in range(4):
        for p in range(2):
            ops.append(rg.F(Op(f"ds_read_b64_tr_b16 {FR(buf, s, p)}, {a} offset:{so + s*4096 + p*2048}", "ds", rd=[a], wr=[FR(buf, s, p)],
                               e=e, d=min(e + 1 + len(ops)*(rsp or OPT['rspw' if OPT['wstrict'] else 'rsp'])//8, e + 9), deps=dp + ([(ops[-1], 0)] if ops else []))))
    if rg.wq:
        if mt >= 2: rg.tuse[0] = ops
    elif xo: rg.tuse[mt & 1] = ops
    rg.lastWr = ops
    return ops, xo
def reads_K(rg, so, u, buf, e, deps=(), ups=()):
    ops = []
    for s in range(4):
        ops.append(rg.F(Op(f"ds_read_b128 {FR(buf, s)}, {vK[s]} offset:{so + u*1024}", "ds", rd=[vK[s]], wr=[FR(buf, s)],
                           e=e, d=e + 3 + len(ops)*OPT['rk'], deps=list(deps) + [(x, 1) for x in ups] + ([(ops[-1], 0)] if ops else []))))
    return ops
def reads_V(rg, so, dp_, buf, e, deps=(), ups=(), late=0):
    ops = []; xs = []
    for k in range(2):
        dt = 2*dp_ + k
        a, xo = xor_addr(rg, vVb, dt, k, e - 10, e + 4*k, ups)
        if xo: xs.append(xo)
        dd = list(deps) + ([(xo, 1)] if xo else [(u, 1) for u in ups])
        mine = []
        for sg in range(2):
            for p in range(2):
                o = rg.F(Op(f"ds_read_b64_tr_b16 {FR(buf, 2*k + sg, p)}, {a} offset:{so + sg*2048 + p*1024}", "ds", rd=[a], wr=[FR(buf, 2*k + sg, p)],
                            e=e, d=(e + 2 + len(ops)*OPT['rsp']//8) if not late else (e + 3 + 2*len(ops) if k == 0 else e + 5 + (len(ops)*5)//4), deps=dd + ([(ops[-1], 0)] if ops else [])))
                ops.append(o); mine.append(o)
        if xo: rg.tuse[k] = mine
    return ops, xs

def barrier(rg, gap, last_reads, tiles, extra=(), lg0=True, st=True):
    w = rg.F(WAIT(gap - 1, need_ds=last_reads, need_vm=list(tiles) + list(extra), lg0=lg0, late=1))
    w.deps += [(x, 1) for x in extra if x in rg.fill]
    b = rg.F(Op("s_barrier", "w", e=gap, d=gap, deps=[(w, 1)])); rg.bars[gap] = b
    if OPT["bst"] and st:
        w.pre = "s_memtime s[2:3]"
        i = rg.nst; rg.nst += 1
        rg.F(V(f"v_writelane_b32 {vLane}, s2, {i}", e=gap + 1, d=gap + 8))
    return b
def xstamp(rg, gap, idx, dep):
    if OPT["bst"] < 2: return
    w = rg.F(Op("s_memtime s[2:3]\ns_waitcnt lgkmcnt(0)", "w", e=gap, d=gap, deps=[(dep, 1)]))
    rg.F(V(f"v_writelane_b32 {vLane}, s2, {idx}", deps=[(w, 0)], d=gap))
def ext_waits(rg):
    rg.xw = []
    for d in (-1, 1):
        w = WAIT(d, late=1); w.e = d; rg.F(w); rg.xw.append(w)
def bind_ext(rg, preds):
    rg.xw[0].alt_ds = [p[:4] for p in preds]; rg.xw[1].alt_ds = list(preds)
def frag_waits(rg, rd_ops, first_use, n_first, second_use, only_first=False):
    if rd_ops is None: return
    rg.F(WAIT(first_use - 1, need_ds=rd_ops[:n_first], late=2))
    if n_first < len(rd_ops) and not only_first: rg.F(WAIT(second_use - 1, need_ds=rd_ops, late=1))

def so_(sb): return (sb[0] - sb[1])*16384
def w_step(rg, half, zero, Bop, pend, cur, nxt, need, extra=(), more_reads=(), xwait=None, post=None):
    b0 = rg.n(); info = dict(b0=b0); xlast = None
    if xwait:
        for t in range(3): rg.F(WAIT(b0 + 4*t - 1, need_ds=xwait[:4*t + 4], late=1))
        info["xbar"] = barrier(rg, b0 + 10, xwait, (), lg0=False, st=False)
    for mt in range(4):
        buf = C.grp & 1; C.grp += 1
        g0 = b0 + 12*mt
        if pend is not None and (mt < 3 or BDW): frag_waits(rg, pend, g0, 4, g0 + 2, only_first=(mt == 3))
        for t in range(3):
            for s in range(4):
                acc = OA(4*half + mt, t)
                rg.M(mfma(acc, FR(buf, s), Bop(s, t), "0" if (zero and s == 0) else acc))
        if mt < 3:
            pend, xo = reads_W(rg, so_(cur[1:3]), mt + 1, buf ^ 1, g0 - 1 if (mt or b0) else g0)
            if xo: xlast = xo
            if mt == 0 and rg.wq: base_users = pend
            if mt == 2: bar = barrier(rg, g0 + 11 + BDW, pend + list(more_reads), need, extra)
        else:
            ups = rebase(rg, nxt[0], nxt[3], nxt[2], b0 + 20, g0 - 2, after=([xlast] + (base_users if rg.wq else [])) if nxt[0] == "W" else [])
            if nxt[0] == "W": pend, _ = reads_W(rg, so_(nxt[1:3]), 0, buf ^ 1, g0 - 1 + BDW, deps=[(bar, 0)], ups=ups, rsp=(4 if post else None))
            else: pend = reads_K(rg, so_(nxt[1:3]), 0, buf ^ 1, g0 - 1 + BDW, deps=[(bar, 0)], ups=ups)
            if post: info["post"] = post(g0, bar)
    info["bar"] = bar; info["end"] = rg.n() - 1
    return pend, info
def TS(name, prev=None):
    k, i = name[0], int(name[1])
    return (k, SLOT[name], BASE[name], BASE[f"{k}{(i - 1) % 8}"])

def softmax(rg, g0, u, Sr, pbuf, d_over, d_puse):
    sg = u >> 1
    for t in range(3):
        last = rg.mf[g0 + 4*t + 3]
        dl = min(d_over(t), d_puse(t) - 3)
        ex = [rg.F(V8(f"v_exp_f32 {Sr(t,i)}, {Sr(t,i)}", rd=[Sr(t,i)], wr=[Sr(t,i)], e=last.gap, sdeps=[(last, 8)], trans=True)) for i in range(4)]
        for j in range(2):
            dst = PBr(pbuf, sg, t, 2*(u & 1) + j)
            rg.F(V(f"v_cvt_pk_bf16_f32 {dst}, {Sr(t,2*j)}, {Sr(t,2*j+1)}", rd=[Sr(t,2*j), Sr(t,2*j+1)], wr=[dst], d=dl,
                   sdeps=[(ex[2*j], 1), (ex[2*j+1], 1)]))
def k_mfmas(rg, buf, Sd):
    for t in range(3):
        for s in range(4):
            rg.M(mfma(Sd(t), FR(buf, s), QV(s, t), "0" if s == 0 else Sd(t)))
def v_mfmas(rg, dp_, buf, pbuf, zero, tmajor=False):
    order = [(k, t) for t in range(3) for k in range(2)] if tmajor else [(k, t) for k in range(2) for t in range(3)]
    last = {}
    for k, t in order:
        for sg in range(2):
            acc = OA(2*dp_ + k, t)
            last[(2*dp_ + k, t)] = rg.M(mfma(acc, FR(buf, 2*k + sg), PB(pbuf, sg, t), "0" if (zero and sg == 0) else acc))
    return last
def sum_mfmas(rg, t, pbuf, zero):
    for sg in range(2):
        o = rg.M(mfma(LA(t), ONES, PB(pbuf, sg, t), "0" if (zero and sg == 0) else LA(t)))
    return o
def o_epilogue_ops(dt, t):
    mul = [V(f"v_mul_f32 {OAr(dt,t,i)}, {vRL[t]}, {OAr(dt,t,i)}", rd=[OAr(dt,t,i), vRL[t]], wr=[OAr(dt,t,i)]) for i in range(4)]
    cvt = []
    for j in range(2):
        dst = OPr(dt >> 1, t, 2*(dt & 1) + j)
        cvt.append(V(f"v_cvt_pk_bf16_f32 {dst}, {OAr(dt,t,2*j)}, {OAr(dt,t,2*j+1)}", rd=[OAr(dt,t,2*j), OAr(dt,t,2*j+1)], wr=[dst],
                     deps=[(mul[2*j], 0), (mul[2*j+1], 0)]))
    for o in mul + cvt: o.ot = (dt, t)
    return mul, cvt
def q_muls(rg, mt, t, last, **kw):
    return [rg.F(V(f"v_mul_f32 {OAr(mt,t,i)}, {sScale}, {OAr(mt,t,i)}", rd=[OAr(mt,t,i)], wr=[OAr(mt,t,i)],
                   e=(last.gap if last is not None else -1), sdeps=([(last, 8)] if last is not None else []), **kw)) for i in range(4)]
def q_epilogue(rg, sp, t, lastA, lastB, d_use, muls=True):
    cv = []
    for k, last in ((0, lastA), (1, lastB)):
        mt = 2*sp + k
        mul = q_muls(rg, mt, t, last) if muls else None
        for j in range(2):
            dst = QVr(sp, t, 2*k + j)
            cv.append(rg.F(V(f"v_cvt_pk_bf16_f32 {dst}, {OAr(mt,t,2*j)}, {OAr(mt,t,2*j+1)}", rd=[OAr(mt,t,2*j), OAr(mt,t,2*j+1)], wr=[dst],
                             deps=([(mul[2*j], 0), (mul[2*j+1], 0)] if muls else []))))
    if OPT["nperm"]:
        for o in cv: o.d = d_use - 3
        return
    for j in range(2):
        a, b = QVr(sp, t, j), QVr(sp, t, 2 + j)
        p1 = rg.F(V8(f"v_permlane32_swap_b32 {a}, {b}", rd=[a, b], wr=[a, b], sdeps=[(cv[j], 2), (cv[2+j], 2)]))
        rg.F(V8(f"v_permlane16_swap_b32 {a}, {b}", rd=[a, b], wr=[a, b], sdeps=[(p1, 2)], d=d_use - 3))

def BopQ(st):
    dg = ORD[st][1]
    return (lambda s, t: XA(4*dg + s, t)) if dg < 3 else (lambda s, t: QV(s, t))

def build_R2():
    rg = new_region("R2")
    C.grp = 24
    pend, i6 = w_step(rg, ORD[6][0], False, BopQ(6), None, TS("W6"), TS("W7"), ["W7"])
    pend, i7 = w_step(rg, ORD[7][0], False, BopQ(7), pend, TS("W7"), TS("K0"), ["K0"])
    a0 = rg.n(); b7 = i7["b0"]
    for sp in (0, 1):
        for t in range(3): q_epilogue(rg, sp, t, None, None, min(a0 + 4*t + sp, 20 + (sp*3 + t)*9), muls=True)
    for sp in (2, 3):
        for t in range(3):
            mA, mB = 2*sp - 4, 2*sp - 3
            q_epilogue(rg, sp, t, rg.mf[b7 + 12*mA + 4*t + 3], rg.mf[b7 + 12*mB + 4*t + 3], a0 + 4*t + sp)
    B = lambda i: a0 + 48 + 102*i
    def layout(i):
        order = ["KVKVKVKV", "KKVKVKVV", "KKKVKVVV", "KKKKVVVV"][OPT["b0"] if i == 0 else 0]
        res = []; off = 0; n = {"K": 0, "V": 0}
        for ch in order:
            res.append((ch, n[ch], off)); off += 12 + (2 if (ch == "V" and n[ch] < 3) else 0); n[ch] += 1
        return res
    def puse(i, sg, t): return (B(i) + [o for (k, j, o) in layout(i) if k == "V"][0] + 2*t + sg) if i < 7 else (B(7) + 4*t + sg)
    def so(n): return so_(TS(n)[1:3])
    def rb(n, e, d, after=()): x = TS(n); return rebase(rg, x[0], x[3], x[2], e, d, after)
    for u in range(4):
        buf = C.grp & 1; C.grp += 1; g0 = rg.n()
        if u < 3 or BDW: frag_waits(rg, pend, g0, 2, g0 + 2, only_first=(u == 3))
        k_mfmas(rg, buf, lambda t: OA(u, t))
        softmax(rg, g0, u, lambda t, i: OAr(u, t, i), 0, lambda t: 10**9, lambda t: puse(0, u >> 1, t))
        if u < 3:
            pend = reads_K(rg, so("K0"), u + 1, buf ^ 1, g0 - 1)
            if u == 2: bar = barrier(rg, g0 + 11 + BDW, pend, ["K1", "V0"]); lastK = pend
        else:
            ups = rb("K1", g0 - 12, g0 - 2, lastK)
            pend = reads_K(rg, so("K1"), 0, buf ^ 1, g0 - 1 + BDW, deps=[(bar, 0)], ups=ups)
            upsV = rb("V0", -1, g0)
    for i in range(7):
        b0 = rg.n(); assert b0 == B(i)
        lay = layout(i); usedV = False; tmp = 7
        for n_, (kind, u, off) in enumerate(lay):
            buf = C.grp & 1; C.grp += 1; g0 = rg.n(); assert g0 == b0 + off
            last = n_ == 7
            if kind == "K":
                frag_waits(rg, pend, g0, 2, g0 + 2)
                if lay[n_ + 1][0] == "K":
                    dt = tmp; tmp -= 1
                    vstart = b0 + [o for (k, j, o) in lay if k == "V" and j == dt >> 1][0]
                    Sd = (lambda dt: lambda t: OA(dt, t))(dt); Sr = (lambda dt: lambda t, j: OAr(dt, t, j))(dt)
                    dov = (lambda v, dt: lambda t: v + 6*(dt & 1) + 2*t - 1)(vstart, dt)
                else:
                    Sd = lambda t: R("v", S0 + 4*t, 4); Sr = lambda t, j: f"v{S0 + 4*t + j}"
                    later = [b0 + o for m_, (k, j, o) in enumerate(lay) if k == "K" and j > u and lay[m_ + 1][0] != "K"]
                    nxtK = later[0] if later else (B(i+1) if i < 6 else None)
                    dov = (lambda x: lambda t: x + 4*t - 1)(nxtK) if nxtK else (lambda t: 10**9)
                k_mfmas(rg, buf, Sd)
                softmax(rg, g0, u, Sr, (i + 1) & 1, dov, (lambda u: lambda t: puse(i + 1, u >> 1, t))(u))
            else:
                if not last or BDA: frag_waits(rg, pend, g0, 4, g0 + 6, only_first=last)
                v_mfmas(rg, u, buf, i & 1, i == 0)
                if u < 3: sum_mfmas(rg, u, i & 1, i == 0)
            if not last:
                nk, nu, _ = lay[n_ + 1]
                if nk == "K":
                    pend = reads_K(rg, so(f"K{i+1}"), nu, buf ^ 1, g0 - 1)
                    if nu == 3: lastK = pend
                else:
                    pend, xs = reads_V(rg, so(f"V{i}"), nu, buf ^ 1, g0 - 1, ups=(upsV if nu == 0 else ()), late=(OPT["vlate"] if nu < 3 else 0))
                    if nu == 3: bar = barrier(rg, b0 + 89 + BDA, pend, [f"K{i+2}", f"V{i+1}"] if i < 6 else ["V7"]); lastX = xs
            elif i < 6:
                ups = rb(f"K{i+2}", g0 - 20, g0 - 2, lastK)
                pend = reads_K(rg, so(f"K{i+2}"), 0, buf ^ 1, g0 - 1 + BDA, deps=[(bar, 0)], ups=ups)
                upsV = rb(f"V{i+1}", g0 - 10, g0 + 4, lastX)
            else:
                upsV = rb("V7", g0 - 10, g0 - 2, lastX)
                pend, _ = reads_V(rg, so("V7"), 0, buf ^ 1, g0 - 1 + BDA, late=0, deps=[(bar, 0)], ups=upsV)
    E = rg.n(); assert E == B(7)
    epi = []
    for p in range(4):
        buf = C.grp & 1; C.grp += 1; g0 = rg.n()
        if p == 0: frag_waits(rg, pend, g0, 4, g0 + 2)
        elif p < 3 or BDW: frag_waits(rg, pend, g0, 4, g0 + 6, only_first=(p == 3))
        last = v_mfmas(rg, p, buf, 1, False, tmajor=(p == 0))
        if p == 0:
            rl = []; lr = []
            for t in range(3):
                ls = sum_mfmas(rg, t, 1, False)
                lr.append(rg.F(V(f"v_accvgpr_read_b32 {vRL[t]}, a{240+4*t}", rd=[f"a{240+4*t}"], wr=[vRL[t]], e=ls.gap, sdeps=[(ls, 8)], d=E + 28)))
            mn = rg.F(V(f"v_min3_f32 {vA}, {vRL[0]}, {vRL[1]}, {vRL[2]}", rd=vRL, wr=[vA], deps=[(x, 0) for x in lr], d=E + 30))
            mx = rg.F(V(f"v_max3_f32 {vB}, {vRL[0]}, {vRL[1]}, {vRL[2]}", rd=vRL, wr=[vB], deps=[(x, 0) for x in lr], d=E + 30))
            rg.F(V(f"v_cmp_gt_f32 {sBad}, {sLo}, {vA}", rd=[vA], wr=[sBad], deps=[(mn, 0)], d=E + 40))
            rg.F(V(f"v_cmp_lt_f32 vcc, {sHi}, {vB}", rd=[vB], wr=["vcc"], deps=[(mx, 0)], d=E + 40))
            for t in range(3):
                rl.append(rg.F(V8(f"v_rcp_f32 {vRL[t]}, {vRL[t]}", rd=[vRL[t]], wr=[vRL[t]], deps=[(mn, 0), (mx, 0)], trans=True, d=E + 34)))
        for (dt, t), lm in last.items():
            mul, cvt = o_epilogue_ops(dt, t)
            for o in mul: o.e = lm.gap; o.sdeps = [(lm, 8), (rl[t], 1)]
            for o in mul + cvt:
                o.optional = True
                if dt >= 4 and o in cvt: o.e = 10**9
                rg.F(o); epi.append(o)
        if p < 3:
            pend, xs = reads_V(rg, so("V7"), p + 1, buf ^ 1, g0 - 1 if p != 0 else g0 + 3)
            if p == 2: bar = barrier(rg, g0 + 11 + BDW, pend, ["W0", "Xa", "Xb", "Xc"])
        else:
            ups = rb("W0", -1, g0 - 2, [])
            for o in ups: o.e = a0
            if OPT["nperm"]: ups = ups + [rg.F(V(f"v_mad_i32_i24 {vWb}, {vC}, {sGate}, {vWb}", rd=[vC, vWb], wr=[vWb], e=a0, d=g0 - 4))]
            pend, _ = reads_W(rg, so("W0"), 0, buf ^ 1, g0 - 1 + BDW, deps=[(bar, 0)], ups=ups, rsp=8)
    assert sorted(g + 288 for g in rg.bars) == ringplan.bS[6:] + [ringplan.bQ] + ringplan.bB + [ringplan.bP]
    head_dmas(rg, 288, 1200)
    rg.pendW0 = pend; rg.epi = epi
    rg.schedule()
    return rg

def half0_muls(rg, b4):
    for mt in range(4):
        for t in range(3): q_muls(rg, mt, t, rg.mf[b4 + 12*mt + 4*t + 3])

def build_R1(left):
    rg = new_region("R1")
    C.grp = 0
    xa = [rg.F(V(f"v_add_u32 v{S0+s}, {sW1k}, {vK[s]}", rd=[vK[s]], wr=[f"v{S0+s}"], d=6)) for s in range(4)]
    xr = reads_X(rg, lambda sl, s: (f"v{S0+s}", (sl - XB)*16384), [SLOT["Xa"], SLOT["Xb"], SLOT["Xc"]], QV, 4, 9, [(a, 1) for a in xa], step=2)
    pend = None; infos = []
    for st in range(5):
        pend, inf = w_step(rg, ORD[st][0], st in (0, 3), BopQ(st), pend, TS(f"W{st}"), TS(f"W{st+1}"), [f"W{st+1}"], more_reads=(xr if st == 0 else ()))
        infos.append(inf)
    new = {}
    for o in left:
        dt, t = o.ot
        n = V(o.text, rd=list(o.rd), wr=list(o.wr)); n.ot = o.ot; new[id(o)] = n
        n.deps = [(new[id(p)], g) for (p, g) in o.deps if id(p) in new]
        n.e = 8 if dt >= 6 else -1
        n.d = ((12*dt + 4*t) if dt < 4 else (144 + 12*(dt - 4) + 4*t)) - 1
        rg.F(n)
    head_dmas(rg, 0, 240)
    rg.pend = pend
    rg.schedule()
    return rg

def build_R1b(h, zst=None):
    rg = new_region(f"R1b{h}")
    C.grp = 20
    pend, inf = w_step(rg, ORD[5][0], False, BopQ(5), None, TS("W5"), TS("W6"), ["W6"])
    for i in range(48): rg.F(V(f"v_accvgpr_write_b32 a{ZB[h-1] + i}, v{PV0 + i}", rd=[f"v{PV0+i}"], wr=[f"a{ZB[h-1]+i}"]))
    head_dmas(rg, 240, 288)
    next_setup(rg, h)
    rg.pend = pend
    rg.schedule()
    return rg

def next_setup(rg, h):
    T = lambda x, **kw: rg.F(S(x, **kw))
    if h < 3:
        T(f"s_add_u32 {sWcol}, {sWcol}, 256", deps=([(rg.lastw, 1)] if getattr(rg, "lastw", None) else []))
        T(f"s_and_b32 {sWcol}, {sWcol}, 0x3ff")
        for t in NEXT:
            if t[0] == "W":
                for x in wq_t0(sN[NEXT.index(t)], int(t[1])): T(x)
    if h == 2:
        a = T(f"s_lshl_b32 {sTmp}, {sB}, 2")
        if not OPT["bst"]: rg.dbg = rg.F(Op(f"buffer_load_dword {vLane}, off, {srdD}, {sTmp} sc1", "vm", wr=[vLane], deps=[(a, 0)]))
    if h == 3:
        for x in ("s_mov_b32 s16, s80", "s_mov_b32 s17, s81", "s_mov_b32 s18, 0x80000", "s_mov_b32 s20, s80", "s_mov_b32 s21, s81", "s_mov_b32 s22, 0x80000",
                  f"s_mov_b32 {sGate}, 1"): T(x)
        for i in (1, 2, 3): T(f"s_mov_b32 {sD[i]}, {7168*i}"); T(f"s_mov_b32 {sDY[i]}, {7168*i}")
        for m in range(6): T(f"s_add_u32 {sN[m]}, {sRot if m < 4 else sC[0]}, {sH[m & 3]}")
        if OPT["tlb"] == 1:
            sw = T(f"s_mov_b32 {sTmp}, {hex(FLAG_BASE + 0x20080)}")
            for srd, so in ((srdW, "0"), (srdWS, "s75"), (srdWS, sTmp), (srdO, sOutR)):
                rg.F(Op(f"buffer_load_dword {vB}, off, {srd}, {so}", "vm", wr=[vB], deps=[(sw, 0)]))
        rg.F(V(f"v_mov_b32 {vDW}, {vDWo}", rd=[vDWo], wr=[vDW])); rg.F(V(f"v_mov_b32 {vDX}, {vDWo}", rd=[vDWo], wr=[vDX]))

def build_R1f():
    X = lambda q: [f"x{q}{a}" for a in range(3)]
    final = [t for t in ISS if ISS[t] < 288 and t[0] in "KV"] + ["W6", "W7"]
    fk = sorted([t for t in final if t[0] in "KV"], key=lambda t: ISS[t]); assert 3 <= len(fk) <= 7
    if OPT["kvlate"] != 4:
        init = X(0) + ["w0"] + X(1) + ["w1", "K0", "K1"]
        inh = list(zip(X(2), X(0))) + [("w2", "w0")] + list(zip(["w3", "x30", "x31"], X(1))) + [("x32", "w1")] + \
              list(zip(["w4", "V0", "w5"], X(2))) + [("K2", "w2"), ("W6", "w3")] + list(zip(["V1", "W7", "K3"], X(3))) + ([("V2", "w4")] if len(fk) == 7 else [])
    else:
        init = X(0) + ["w0"] + X(1) + ["w1", "x20", "x21"]
        inh = list(zip(["x22", "w2", "w3"], X(0))) + [("x30", "w0")] + list(zip(["x31", "x32", "w4"], X(1))) + [("w5", "w1")] + \
              list(zip(["W6", "W7", fk[0]], X(2))) + [(fk[1], "w2"), (fk[2], "w3")] + list(zip(fk[3:], X(3) + ["w4"]))
    sl = {t: SLOT[t] for t in final}
    for new, old in reversed(inh):
        if new in sl: sl[old] = sl[new]
    free = [x for x in range(10) if x not in {sl[t] for t in init if t in sl}]
    for t in init:
        if t not in sl: sl[t] = free.pop()
    for new, old in inh: sl[new] = sl[old]
    def spec(t):
        if t[0] == "x": return ("X", int(t[2]), int(t[1]))
        if t[0] in "wW": return ("W", int(t[1]))
        return (t[0],)
    wsl = [sl[f"w{j}"] for j in range(6)] + [SLOT["W6"]]
    wb = [min(x, 6) for x in wsl[:6]] + [BASE["W6"]]
    rg = new_region("R1f")
    C.grp = 0
    xaddr = lambda s_, s: (f"v{S0 + 4*(s_ >> 2) + s}", (s_ & 3)*16384)
    dst = {0: (1, lambda s, t: XA(4 + s, t)), 1: (2, lambda s, t: XA(8 + s, t)), 3: (3, QV)}
    pend = None; infos = []; xw = None
    for st in range(6):
        post = None; need = [f"w{st+1}" if st < 5 else "W6"]
        if st in dst:
            q, fn = dst[st]; need += X(q)
            post = (lambda q, fn: lambda g0, bar: reads_X(rg, xaddr, [sl[t] for t in X(q)], fn, g0 + 2 + BDW, g0 + 5 + BDW, [(bar, 0)]))(q, fn)
        pend, inf = w_step(rg, ORD[st][0], st in (0, 3), BopQ(st), pend, ("W", wsl[st], wb[st]), ("W", wsl[st+1], wb[st+1], wb[st]), need, xwait=xw, post=post)
        xw = inf.get("post"); infos.append(inf)
    rel = {"w%d" % j: infos[j]["bar"] for j in range(6)}
    for q, st in ((1, 1), (2, 2), (3, 4)):
        for t in X(q): rel[t] = infos[st]["xbar"]
    items = []; tcur = 0
    if OPT["kvlate"] != 4:
        seq = [(t, None) for t in ("x20", "x21", "x22")] + inh[3:]
        kp = {0: (3, 4), 1: (8, 9), 2: (4, 9), 3: (9, 12), 5: (0, 5), 6: (3, 7), 7: (3, 4)}[OPT["kvlate"]]
        seq.insert(kp[0], ("K0", None)); seq.insert(kp[1], ("K1", None))
    else: seq = [(t, None) for t in ("x20", "x21", "x22", "w2", "w3")] + inh[3:]
    for new, old in seq:
        if old: tcur = max(tcur, rel[old].e)
        if OPT["kvlate"] >= 5 and new == "K3": tcur = max(tcur, 255)
        sp = OPT["fsp"] if (new[0] not in "KV" or OPT["kvlate"] != 4) else OPT["fkv"]
        cnt = sum(1 for x in TIMES[new] if x < 288) if new in TIMES else 4
        if OPT["kvlate"] == 7 and new[0] in "KV":
            t0, sp = {"K0": (18, 11), "K1": (62, 11), "V0": (112, 9), "K2": (150, 11), "V1": (206, 8), "K3": (240, 9), "V2": (278, 2)}[new]
            items.append((new, spec(new), sl[new], t0, [(i, t0 + sp*i) for i in range(cnt)], rel[old] if old else None)); continue
        items.append((new, spec(new), sl[new], tcur, [(i, tcur + sp*i) for i in range(cnt)], rel[old] if old else None)); tcur += 4*sp + (1 if sp == OPT["fsp"] else OPT["fgap"])
    add_dmas(rg, items)
    next_setup(rg, 0)
    rg.pend = pend
    rg.schedule()
    rg.init = [(t, spec(t), sl[t]) for t in init[:8]]; rg.wb0 = wb[0]; rg.wso0 = (wsl[0] - wb[0])*16384
    rg.x0 = [xaddr(sl[t], 0) for t in X(0)]; rg.xsl0 = [sl[t] for t in X(0)]; rg.xaddr = xaddr
    return rg

RLD = [[R("v", QV0 + 4*g, 4) for g in range(8)],
       [R("v", QV0 + 32 + 4*g, 4) for g in range(4)] + [R("v", S0 + 4*g, 4) for g in range(3)] + ["v[236:239]"]]
vTo = vLane if not OPT['bst'] else 'v235'
vSt, vFl, vPo, vPr, vOut = vDK, vDV, vVb, vDX, vC
LAG = OPT['lag']; OSC = ['', ' sc1', ' nt', ' sc0 sc1'][OPT['osc']]
NTST = ' nt' if OPT['ntst'] else ''
LO = ["v249", "v250", "v251", "v253"]
def pack_store(chunk):
    res = []
    for t in range(3):
        for np_ in range(2):
            a, b = 4*chunk + 2*np_, 4*chunk + 2*np_ + 1
            src = [(OAr(a,t,0), OAr(a,t,1)), (OAr(a,t,2), OAr(a,t,3)), (OAr(b,t,0), OAr(b,t,1)), (OAr(b,t,2), OAr(b,t,3))]
            cv = []
            for j in range(4):
                cv.append(V(f"v_cvt_pk_bf16_f32 {OAr(a,t,j)}, {src[j][0]}, {src[j][1]}", rd=list(src[j]), wr=[OAr(a,t,j)], deps=([(cv[-1], 0)] if cv else [])))
            k = 2*t + np_
            sa = S(f"s_add_u32 {sU[k & 1]}, {sSt}, {k*8192}", wr=[sU[k & 1]])
            st = Op(f"buffer_store_dwordx4 {OA(a,t)}, {vSt}, {srdWS}, {sU[k & 1]} offen@SC", "vm", rd=[OA(a,t), vSt], deps=[(cv[-1], 1), (sa, 0)])
            res.append((cv, sa, st))
    return res
def reduce_ops(set_):
    X = [regs(r_) for r_ in RLD[set_]]
    tmp = [vA, vB]; ops = []; n = 0
    for k in range(4):
        ops += [V(f"v_lshlrev_b32 {LO[k]}, 16, {X[0][k]}", rd=[X[0][k]], wr=[LO[k]]),
                V(f"v_and_b32 {X[0][k]}, {sMask}, {X[0][k]}", rd=[X[0][k]], wr=[X[0][k]])]
        for g in range(1, 8):
            tm = tmp[n & 1]; n += 1
            ops += [V(f"v_lshlrev_b32 {tm}, 16, {X[g][k]}", rd=[X[g][k]], wr=[tm]),
                    V(f"v_and_b32 {X[g][k]}, {sMask}, {X[g][k]}", rd=[X[g][k]], wr=[X[g][k]]),
                    V(f"v_add_f32 {LO[k]}, {LO[k]}, {tm}", rd=[LO[k], tm], wr=[LO[k]]),
                    V(f"v_add_f32 {X[0][k]}, {X[0][k]}, {X[g][k]}", rd=[X[0][k], X[g][k]], wr=[X[0][k]])]
        ops.append(V(f"v_cvt_pk_bf16_f32 {X[0][k]}, {LO[k]}, {X[0][k]}", rd=[LO[k], X[0][k]], wr=[X[0][k]]))
    for a, b in zip(ops, ops[1:]): b.deps.append((a, 0))
    pl = []
    for j in range(2):
        pl.append(V8(f"v_permlane32_swap_b32 {X[0][j]}, {X[0][2+j]}", rd=[X[0][j], X[0][2+j]], wr=[X[0][j], X[0][2+j]], sdeps=[(ops[-1], 2)]))
    for j in range(2):
        pl.append(V8(f"v_permlane16_swap_b32 {X[0][j]}, {X[0][2+j]}", rd=[X[0][j], X[0][2+j]], wr=[X[0][j], X[0][2+j]], sdeps=[(pl[j], 2)]))
    st = Op(f"buffer_store_dwordx4 {RLD[set_][0]}, {vOut}, {srdO}, {sOut} offen{OSC}", "vm", rd=[RLD[set_][0], vOut, sOut], deps=[(pl[2], 1), (pl[3], 1)])
    return ops, pl, st
def red_loads(set_):
    return [Op(f"buffer_load_dwordx4 {RLD[set_][g]}, {vSt}, {srdWS}, {sLd if g < 4 else sLd2} offen offset:{(g & 3)*1024} sc1", "vm",
               rd=[vSt], wr=[RLD[set_][g]]) for g in range(8)]
def sig_ops():
    return [Op(f"buffer_store_dword {vSt}, {vFl}, {srdWS}, {sSig} offen@SC", "vm", rd=[vSt, vFl])]
def scal_A():
    return [f"s_sub_u32 {sTmp}, {sIt}, 1", f"s_and_b32 {sTmp}, {sTmp}, {sSlM}", f"s_mul_i32 {sTmp}, {sTmp}, {CHUNK}",
            f"s_add_u32 {sSt}, {sStR}, {sTmp}", f"s_add_u32 {sLd}, {sLdR}, {sTmp}", f"s_add_u32 {sLd2}, {sLd}, 0x1000",
            f"s_add_u32 {sSig}, {sSig}, 256"]
def scal_B():
    return [f"s_add_u32 {sOut}, {sOutR}, {sOc}", f"s_add_u32 {sOc}, {sOc}, 128", f"s_and_b32 {sOc}, {sOc}, 0x3ff", f"s_add_u32 {sIt}, {sIt}, 1"]

def build_G(first=False, left=()):
    rg = new_region("G0" if first else "G"); L = "F" if first else ""
    used = [SLOT[t] for t in NEXT]
    gs = used + [SLOT["K0"]] + [x for x in range(10) if x not in used and x not in (SLOT["K0"], SLOT["K1"], SLOT["V0"])][:1]
    assert len(gs) == 8
    gb = ringplan.bases(gs, BASE["W0"])[1]
    items = []; bars = {}; st_last = {}; rg.touch = []
    C.grp = 0
    def Bop(h): return (lambda s, t: ZA(h, s, t)) if h < 3 else (lambda s, t: OP(s, t))
    LD = [red_loads(0), red_loads(1)] if first else G_LD
    pend = None; prev_users = []
    if first:
        new = {}
        for o in left:
            dt, t = o.ot
            n = V(o.text, rd=list(o.rd), wr=list(o.wr)); new[id(o)] = n
            n.deps = [(new[id(p)], g) for (p, g) in o.deps if id(p) in new]
            n.e = 8 if dt >= 6 else -1
            n.d = (12*dt + 4*t - 1) if dt < 4 else (144 + 4*t + (dt >> 1) - 3)
            rg.F(n)
        cs = []
        for x in f"""v_mbcnt_lo_u32_b32 {vA}, -1, 0
v_mbcnt_hi_u32_b32 {vA}, -1, {vA}
v_lshlrev_b32 {vSt}, 4, {vA}
v_and_b32 {vPo}, 7, {vA}
v_lshlrev_b32 {vPo}, 2, {vPo}
v_lshrrev_b32 {vB}, 4, {vA}
v_bfe_u32 {vOut}, {vA}, 2, 2
v_and_b32 {vA}, 3, {vA}
v_lshl_add_u32 {vA}, {vOut}, 4, {vA}
v_lshlrev_b32 {vA}, 10, {vA}
v_lshl_add_u32 {vOut}, {vB}, 4, {vA}
v_mov_b32 {vFl}, {hex(OOB)}""".split("\n"):
            cs.append(rg.F(V(x, e=(0 if len(cs) < 3 else 40), d=110, deps=[(cs[-1], 0)] if cs else [])))
        sc = [rg.F(S(x)) for x in (f"s_lshl_b32 s5, {sG}, 2", f"s_cmp_eq_u32 {sWave}, 0", f"s_cselect_b32 s5, s5, {hex(OOB)}", f"s_mov_b32 {sMask}, 0xffff0000",
                                   f"s_mov_b32 {sLd}, {sLdR}", f"s_add_u32 {sLd2}, {sLd}, 0x1000", f"s_mov_b32 {sSig}, {sFlR}", f"s_mov_b32 {sExp}, 16")]
        wl = rg.F(V(f"v_writelane_b32 {vFl}, s5, 1", deps=[(cs[-1], 0), (sc[2], 0)], d=120))
        prev = None
        for k in range(2):
            if k: a1 = rg.F(S(f"s_add_u32 {sLd}, {sLd}, {CHUNK}", deps=[(prev, 1)])); a2 = rg.F(S(f"s_add_u32 {sLd2}, {sLd}, 0x1000"))
            for i, o in enumerate(red_loads(k)):
                o.text = o.text.replace(" sc1", ""); o.tag = "touch"
                o.e = (OPT["gdma"] + 84 if k else 8) + 4*i; o.d = o.e + 3
                o.deps = [(cs[2], 1), ((a2 if k else sc[5]), 0)] + ([(prev, 1)] if prev else []); rg.F(o); prev = o; rg.touch.append(o)
        last0 = prev
        f = 48; prevm = None
        seq = [(f"v_lshrrev_b32 v{f}, 4, {vSt}", 0), (f"v_lshrrev_b32 v{f+1}, 4, v{f}", 0), (f"v_and_b32 v{f+2}, 1, v{f}", 0), (f"v_lshlrev_b32 v{f+2}, 4, v{f+2}", 0),
               (f"v_mov_b32 v{f+3}, 0x3f80", 0), (f"v_lshlrev_b32 v{f+2}, v{f+2}, v{f+3}", 0), (f"v_bfe_u32 v{f+3}, v{f}, 1, 1", 0), (f"v_bfe_u32 v{f+4}, v{f}, 3, 1", 0),
               (f"v_lshl_add_u32 v{f+3}, v{f+4}, 1, v{f+3}", 0), (f"v_bfe_u32 v{f+4}, v{f}, 2, 1", 0), (f"v_lshlrev_b32 v{f+4}, 1, v{f+4}", 0), (f"v_add_u32 v{f+5}, 1, v{f+4}", 0),
               (f"v_cmp_eq_u32 vcc, v{f+1}, v{f+4}", 0), (f"v_cmp_eq_u32 {sBad}, v{f+1}, v{f+5}", 0),
               (f"v_cndmask_b32 v{f+6}, 0, v{f+2}, vcc", 2), (f"v_cndmask_b32 v{f+7}, 0, v{f+2}, {sBad}", 0)]
        for r_ in range(4):
            seq += [(f"v_cmp_eq_u32 vcc, {r_}, v{f+3}", 0), (f"v_cndmask_b32 v{f}, 0, v{f+6}, vcc", 2), (f"v_cndmask_b32 v{f+1}, 0, v{f+7}, vcc", 0),
                    (f"v_accvgpr_write_b32 a{48+r_}, v{f}", 0), (f"v_accvgpr_write_b32 a{52+r_}, v{f+1}", 0)]
        for x, n_ in seq:
            prevm = rg.F(V(x, rd=[f"v[{f}:{f+7}]"], wr=[f"v[{f}:{f+7}]"], e=152, d=188, deps=([(prevm, 0)] if prevm else []), sdeps=([(prevm, n_)] if n_ else [])))
    for hf in range(2):
        h0 = 192*hf
        do_st = not (first and hf == 0); do_sum = not first
        stores = []
        if do_st:
            for (cv, sa, st) in pack_store(1 - hf):
                for o in cv: o.e = h0 + 8; rg.F(o)
                if len(stores) >= 2: sa.deps.append((stores[-2], 1))
                rg.F(sa); st.e = h0 + 10 + OPT['gst']*len(stores); st.d = st.e + 3; rg.F(st); stores.append(st)
        if do_sum:
            sc = [rg.F(S(x, e=h0, deps=[(u, 1) for u in prev_users])) for x in scal_B()]
            if hf == 0: sB0 = sc[-1]
            cur = hf ^ 1
            w0 = rg.F(WAIT(h0 + OPT['gsum'], need_vm=LD[cur] + (G_LD0 if hf == 0 else []), late=1)); w0.e = h0 + OPT['gsum']
            o0, p0, s0_ = reduce_ops(cur)
            o0[0].deps.append((w0, 0))
            for o in o0 + p0 + [s0_]: rg.F(o)
            s0_.d = h0 + OPT['gout']; s0_.deps += [(sc[0], 0), (LD[hf][-1], 1)]
            prev_users = [s0_]
        infos = []
        for j in range(4):
            st = 4*hf + j
            n1 = (st + 1) & 7
            pend, inf = w_step(rg, hf, j == 0, Bop(j), pend, ("W", gs[st], gb[st]), ("W", gs[n1], gb[n1], gb[st]), [f"G{n1}"], extra=(stores if j == 1 else ()))
            infos.append(inf); bars[st] = inf["bar"]
        if do_st:
            sig, = sig_ops(); bs = infos[1]["bar"]
            sig.deps = [(bs, 0)]; sig.d = bs.e + 1; rg.F(sig)
            rg.F(S(f"s_load_dwordx8 s[8:15], s[82:83], {sSig}", e=h0 + OPT['gpoll'], d=h0 + OPT['gpoll'] + 4))
            b2 = infos[2]["bar"]
            for x in ("s_and_b32 s8, s8, s9", "s_and_b32 s10, s10, s11", "s_and_b32 s12, s12, s13", "s_and_b32 s14, s14, s15",
                      "s_and_b32 s8, s8, s10", "s_and_b32 s12, s12, s14", "s_and_b32 s8, s8, s12", "s_bitcmp0_b32 s8, 4"): rg.F(S(x, deps=[(b2, 0)]))
            br = rg.F(Op(f"s_cbranch_scc1 L_spinG{hf}{L}@L\nL_backG{hf}{L}@L:", "s", d=b2.e + 12))
            prev = None
            for i, o in enumerate(LD[hf]):
                o.deps += [(br, 0)] + ([(prev, 1)] if prev else []); o.e = b2.e + 10 + OPT['gld']*i; o.d = o.e + 3; rg.F(o); prev = o
            lastld = LD[hf][-1]
        else: lastld = last0
        if first: rg.F(S(f"s_mov_b32 {sIt}, {hf + 1}", deps=[(lastld, 1)]))
        for i, x in enumerate(scal_A()): rg.F(S(x, deps=[(lastld, 1)] if i == 0 else []))
        for k in range(4):
            st = (4*hf - 2 + k) & 7
            items.append((f"G{st}", ("C", (1 + (st >> 2)) if (hf or k > 1) else 0, st & 3), gs[st], h0 + OPT["gdma"] + k*(4*OPT["gdsp"] + 1), OPT["gdsp"],
                          bars[st] if (hf or k > 1) else None))
        if stores: st_last[hf] = stores[-1]
    add_dmas(rg, items)
    if not first:
        c1 = S(f"s_cmp_ge_u32 {sIt}, 7", deps=[(TILE["G7"][-1], 1)]); c2 = S("s_cselect_b32 s18, 0, s18", wr=["s18"], rd=["s18"])
        pos = rg.fill.index(sB0) + 1
        rg.fill[pos:pos] = [c1, c2]
        for i, o in enumerate(rg.fill): o.seq = i + 1
        rg.first_dma["G0"].deps.append((c2, 0))
        rg.first_dma["G6"].deps.append((st_last[0], 1))
    rg.first_dma["G2"].deps.append((st_last[1], 1))
    rg.LD = LD; rg.pend = pend
    rg.schedule()
    return rg

def stamp(kind=0):
    if not OPT["stamps"]: return []
    def put(x): return lin(f"v_mov_b32 {vA}, {x}") + [Op(f"buffer_store_dword {vA}, off, {srdWS}, s101", "vm")] + lin("s_add_u32 s101, s101, 4\ns_nop 1")
    if kind == 1: return put("s94") + put("s92") + stamp()
    if kind == 2: return lin("s_waitcnt vmcnt(0)") + stamp()
    return lin("s_memtime s[2:3]\ns_memrealtime s[4:5]\ns_waitcnt lgkmcnt(0)") + put("s2") + put("s4")

def code_pf(lbl, start, end, mask, r):
    if not OPT["pf"]: return []
    return lin(f"""s_getpc_b64 s[{r}:{r+1}]
{lbl}:
s_add_u32 s{r}, s{r}, {start}-{lbl}
s_addc_u32 s{r+1}, s{r+1}, {"-1" if start == KN else "0"}
s_mov_b32 s{r+2}, {end}-{start}
s_mov_b32 s{r+3}, 0x20000
s_lshl_b32 s5, {sIdx}, 2
s_add_u32 s5, s5, {sWave}
s_and_b32 s5, s5, {mask}
s_lshl_b32 s5, s5, 13
v_mbcnt_lo_u32_b32 {vA}, -1, 0
v_mbcnt_hi_u32_b32 {vA}, -1, {vA}
v_lshlrev_b32 {vA}, 7, {vA}""") + [Op(f"buffer_load_dword {vB}, {vA}, s[{r}:{r+3}], s5 offen", "vm")]

HROT = {0: "s_mov_b32 s5, 0", 1: "s_mov_b32 s5, s4", 2: f"s_mov_b32 s5, {sG}", 3: f"s_add_u32 s5, s4, {sG}", 4: f"s_lshr_b32 s5, {sG}, 1",
        5: f"s_lshr_b32 s5, {sB}, 3", 6: f"s_lshr_b32 s5, {sG}, 2\ns_lshl_b32 s3, {sG}, 1\ns_or_b32 s5, s5, s3", 7: f"s_sub_u32 s5, 0, {sG}", 8: f"s_lshl_b32 s5, {sG}, 2", 9: f"s_lshl_b32 s5, s4, 2"}[OPT["hrot"]]
if OPT["krot"] < 3:
    KROT = f"""{f"s_add_u32 s4, {sB}, {sG}" if OPT["krot"] == 2 else ""}
s_and_b32 s4, s4, {3 if OPT["krot"] else 0}
s_lshl_b32 {sDg[0]}, s4, 20
s_add_u32 {sDg[1]}, {sDg[0]}, 0x100000
s_and_b32 {sDg[1]}, {sDg[1]}, 0x3fffff
s_xor_b32 {sDg[2]}, {sDg[0]}, 0x200000
s_xor_b32 {sDg[3]}, {sDg[1]}, 0x200000"""
else:
    KROT = f"""s_add_u32 s5, {sB}, {sG}
s_mul_i32 s3, s5, 43
s_lshr_b32 s3, s3, 7
s_mul_i32 s3, s3, 3
s_sub_u32 s5, s5, s3
s_add_u32 {sDg[3]}, s4, 3
s_add_u32 {sDg[0]}, s4, s5
s_cmp_eq_u32 s5, 2
s_cselect_b32 s3, -2, 1
s_add_u32 {sDg[1]}, {sDg[0]}, s3
s_cmp_eq_u32 s5, 0
s_cselect_b32 s3, 2, -1
s_add_u32 {sDg[2]}, {sDg[0]}, s3""" + "".join(f"\ns_and_b32 {sDg[q]}, {sDg[q]}, 3\ns_lshl_b32 {sDg[q]}, {sDg[q]}, 20" for q in range(4))
def prologue(F):
    init = F.init
    o = lin(f"""
s_cmp_lt_u32 s2, 256
s_cbranch_scc1 L_go
s_endpgm
L_go:
{"s_memrealtime s[92:93]" if (OPT["stamps"] or OPT["dbl"]) else ""}
{"s_memtime s[94:95]" if OPT["stamps"] else ""}
s_load_dwordx16 s[68:83], s[0:1], 0
v_lshrrev_b32 v1, 6, v0
v_and_b32 {vLane}, 63, v0
s_and_b32 s4, s2, 7
v_readfirstlane_b32 {sWave}, v1
s_lshr_b32 s5, s2, 3
s_mov_b32 {sIdx}, s5""")
    mp = {84: (1, 3, 2, 1, 2, 3), 48: (0, 2, 3, 0, 3, 7), 162: (2, 4, 1, 3, 1, 1)}[OPT["mapping"]]
    o += lin(f"""
s_lshr_b32 s6, s4, {mp[0]}
s_lshl_b32 s6, s6, {mp[1]}
s_lshr_b32 s7, s5, {mp[2]}
s_add_u32 {sB}, s6, s7
s_and_b32 s6, s4, {mp[3]}
s_lshl_b32 s6, s6, {mp[4]}
s_and_b32 s7, s5, {mp[5]}
s_add_u32 {sG}, s6, s7""")
    cbits = struct.unpack("<I", struct.pack("<f", math.log2(math.e)/math.sqrt(128)))[0]
    o += lin(f"""
s_lshl_b32 {sW4k}, {sWave}, 12
v_lshrrev_b32 v5, 4, {vLane}
v_and_b32 v6, 15, {vLane}
s_lshl_b32 s6, {sWave}, 4
v_add_u32 v1, s6, v5
s_lshl_b32 s6, {sWave}, 2
v_or_b32 v2, s6, v5
v_xor_b32 v2, v2, v6
v_lshlrev_b32 v2, 4, v2
v_lshl_add_u32 {vDX}, v1, 10, v2
v_lshl_add_u32 {vDK}, v1, 8, v2
v_lshrrev_b32 v7, 5, {vLane}
v_bfe_u32 v2, {vLane}, 3, 2
v_lshl_add_u32 v7, v7, 3, v2
s_lshl_b32 s6, {sWave}, 5
v_add_u32 v7, s6, v7
v_and_b32 v3, 7, {vLane}
v_lshlrev_b32 v4, 1, v5
v_xor_b32 v3, v3, v4
v_lshlrev_b32 v3, 4, v3
s_mov_b32 {sDY[1]}, 3072
s_mov_b32 {sDY[2]}, 6144
s_mov_b32 {sDY[3]}, 9216
s_mov_b32 {sD[1]}, {16*8192 - 1024}
s_mov_b32 {sD[2]}, {4*8192 - 2048}
s_mov_b32 {sD[3]}, {20*8192 - 3072}
s_lshr_b32 s4, {sB}, 2
{HROT}
s_bfe_u32 {sSw}, s5, {"0x10002" if OPT["hswap"] else "0x00002"}
s_and_b32 s5, s5, {3 if OPT["hrot"] else 0}
s_mov_b32 {sHr}, s5
s_lshl_b32 {sWcol}, s5, 8
s_lshl_b32 {sSw}, {sSw}, 7
s_or_b32 {sWcol}, {sWcol}, {sSw}
s_lshr_b32 {sSw}, {sSw}, 1
v_xor_b32 v7, {sSw}, v7
v_lshl_add_u32 {vDW}, v7, 13, v3
s_lshl_b32 {sKoff}, s5, 17
s_mov_b32 {sVoff}, {sKoff}
{KROT}
s_mul_i32 s7, {sB}, {0 if OPT["samex"] else 196608}
s_mov_b32 s22, 196608
s_mov_b32 s23, 0x20000
s_mov_b32 s19, 0x20000
s_lshl_b32 s4, {sG}, 10
{"s_mov_b32 s4, 0" if OPT["samew"] else ""}
s_sub_u32 s18, 0x400000, s4
s_waitcnt lgkmcnt(0)
s_add_u32 s20, s68, s7
s_addc_u32 s21, s69, 0
s_add_u32 s16, s74, s4
s_addc_u32 s17, s75, 0""")
    if OPT["tch"]:
        o += lin(f"""v_lshrrev_b32 v8, 1, {vLane}
v_and_b32 v9, 1, {vLane}
v_lshlrev_b32 v9, 7, v9
v_lshl_add_u32 v11, v8, 13, v9
v_lshl_add_u32 v8, v8, 10, v9
v_mov_b32 v10, {hex(OOB)}
v_cmp_gt_u32 vcc, 12, {vLane}
s_lshl_b32 s4, {sG}, 2
s_add_u32 s4, s4, {sWave}
s_mul_i32 s4, s4, 6144
v_cndmask_b32 v8, v10, v8, vcc
v_cmp_gt_u32 vcc, 16, {vLane}
s_and_b32 s5, {sB}, 3
s_lshl_b32 s5, s5, 2
s_add_u32 s5, s5, {sWave}
s_lshl_b32 s5, s5, 16
s_add_u32 s5, s5, {sWcol}
v_cndmask_b32 v11, v10, v11, vcc
v_add_u32 v8, s4, v8
v_add_u32 v11, s5, v11""")
        for q in range(OPT["tch"] - 1, 4):
            o += lin(f"s_lshr_b32 s3, {sDg[q]}, 12")
            o += [Op(f"buffer_load_dword {vB}, v8, {srdX}, s3 offen", "vm"), Op(f"buffer_load_dword {vB}, v11, {srdW}, {sDg[q]} offen", "vm")]
    for j in range(4): o += dma_linear(*init[j])
    o += lin(f"""s_lshl_b32 s3, {sB}, 22
s_lshl_b32 s7, {sG}, 19
s_add_u32 s3, s3, s7
{"s_mov_b32 s3, 0" if OPT["samekv"] else ""}
s_add_u32 s8, s70, s3
s_addc_u32 s9, s71, 0
s_mov_b32 s10, 0x80000
s_mov_b32 s11, 0x20000
s_add_u32 s12, s72, s3
s_addc_u32 s13, s73, 0
s_mov_b32 s14, 0x80000
s_mov_b32 s15, 0x20000
""")
    if OPT["tlb"]:
        o += [Op(f"buffer_load_dword {vB}, off, {srdK}, 0", "vm"), Op(f"buffer_load_dword {vB}, off, {srdV}, 0", "vm")]
        o += [Op(f"buffer_load_dword {vB}, off, {srdW}, {sDg[q]}", "vm") for q in (1, 2, 3)]
    o += code_pf("L_pc", KN, "L_g3", OPT["pf"] - 1, 88)
    o += lin(f"""
v_lshrrev_b32 v7, 3, {vLane}
v_add_u32 v7, s6, v7
v_lshl_add_u32 {vDWo}, v7, 10, v3
s_and_b32 s6, {sWave}, 1
s_lshl_b32 s6, s6, 2
v_or_b32 v2, s6, v5
v_lshlrev_b32 v2, 1, v2
v_xor_b32 v2, v2, v6
v_lshlrev_b32 v1, 8, v1
v_lshl_add_u32 {vDV}, v2, 4, v1
s_mov_b32 s24, s82
s_mov_b32 s25, s83
s_mov_b32 s26, {hex(WS_BYTES)}
s_mov_b32 s27, 0x20000
v_lshrrev_b32 v1, 3, {vLane}
v_and_b32 v2, 7, {vLane}
v_lshlrev_b32 v1, 8, v1
v_lshl_add_u32 v8, v2, 2, v1
s_lshl_b32 s6, {sB}, 11
s_add_u32 s6, s6, {hex(FLAG_BASE)}
s_or_b32 s7, {sG}, {sWave}
s_cmp_eq_u32 s7, 0
s_cselect_b32 {sTmp}, s6, {hex(OOB)}
v_mov_b32 v9, 0""")
    zst = Op(f"buffer_store_dword v9, v8, {srdWS}, {sTmp} offen sc1", "vm"); o.append(zst)

    o += lin(f"""
s_mov_b32 {sScale}, {hex(cbits)}
s_mov_b32 {sLo}, 0x30800000
s_mov_b32 {sHi}, 0x4e800000
s_mov_b32 {sHead}, 0
s_lshl_b32 {sW1k}, {sWave}, 10
s_mov_b32 s28, s78
s_mov_b32 s29, s79
s_mov_b32 s30, 0x600000
s_mov_b32 s31, 0x20000
s_mov_b32 s32, s80
s_mov_b32 s33, s81
s_mov_b32 s34, 0x100
s_mov_b32 s35, 0x20000

v_lshrrev_b32 v1, 2, v6
v_and_b32 v2, 3, v6
v_lshl_add_u32 v3, v1, 4, v2
v_lshlrev_b32 v3, 8, v3""")
    for s in range(4):
        o += lin(f"s_and_b32 s3, {sWcol}, 128\nv_add_u32 v4, {4*s}, v5\nv_xor_b32 v4, v4, v6\nv_lshl_add_u32 {vK[s]}, v4, 4, v3\nv_xor_b32 {vK[s]}, s3, {vK[s]}")
    o += lin(f"""
v_lshl_add_u32 v3, v5, 4, v1
v_lshlrev_b32 v3, 8, v3
v_and_b32 v4, 1, v5
v_lshl_add_u32 v7, v4, 2, v1
v_lshl_add_u32 v3, v7, 5, v3
v_lshl_add_u32 v3, v2, 3, v3
v_add_u32 {vVb}, {BASE["V7"]*16384}, v3
v_lshl_add_u32 v3, v5, 2, v1
v_lshlrev_b32 v3, 7, v3
v_lshrrev_b32 v7, 1, v1
v_lshl_add_u32 v7, v4, 1, v7
{"v_lshlrev_b32 v7, 1, v7" if OPT["nperm"] else "v_lshl_add_u32 v3, v7, 5, v3"}
{"v_xor_b32 v7, v7, v2" if OPT["nperm"] else ""}
{"v_lshl_add_u32 v7, v7, 4, v3" if OPT["nperm"] else "v_lshl_add_u32 v7, v2, 3, v3"}
v_add_u32 {vWb}, {F.wb0*16384}, v7
v_mov_b32 v3, 0x3f803f80
v_accvgpr_write_b32 a252, v3
v_accvgpr_write_b32 a253, v3
v_accvgpr_write_b32 a254, v3
v_accvgpr_write_b32 a255, v3
""")
    for s in range(4):
        o += lin(f"v_add_u32 v{S0+s}, {sW1k}, {vK[s]}\nv_add_u32 v{S0+4+s}, 0x10000, v{S0+s}\nv_add_u32 v{S0+8+s}, 0x20000, v{S0+s}\nv_add_u32 {vK[s]}, {BASE['K7']*16384}, {vK[s]}")
    o += lin(f"s_add_u32 {sW1k}, {sW1k}, {lit((XB - BASE['K7'])*16384)}")
    for j in range(4, 8): o += dma_linear(*init[j])
    o += lin(f"""s_lshl_b32 s6, {sG}, 19
s_add_u32 s80, s76, s6
s_addc_u32 s81, s77, 0
s_mov_b32 {sGate}, 0
s_lshl_b32 {sH[0]}, {sHr}, 17
s_add_u32 {sH[1]}, {sH[0]}, 0x20000
s_and_b32 {sH[1]}, {sH[1]}, 0x7ffff
s_xor_b32 {sH[2]}, {sH[0]}, 0x40000
s_xor_b32 {sH[3]}, {sH[1]}, 0x40000
{"s_mov_b32 s73, s92" if OPT["dbl"] else ""}
s_getreg_b32 {sXcc}, hwreg(HW_REG_XCC_ID, 0, 3)
s_lshr_b32 {sRot}, {sB}, 2
s_and_b32 {sRot}, {sRot}, {7 if OPT["rot"] else 0}
s_lshl_b32 {sRot}, {sRot}, 7
s_lshl_b32 {sXcc}, {sXcc}, 2
s_lshl_b32 {sXcc}, 1, {sXcc}""" + "".join(f"\ns_add_u32 {sC[i]}, {sRot}, {128*(i+1)}\ns_and_b32 {sC[i]}, {sC[i]}, 0x3ff" for i in range(3))
      + "".join("\n" + "\n".join(x_t0(sN[NEXT.index('X' + 'abc'[a])], a, 3)) for a in range(3)) + f"""
s_mul_i32 s6, {sB}, {8*CHUNK + 4096}
s_mov_b32 s75, s6
s_add_u32 s6, s6, 4096
s_mul_i32 s7, {sWave}, 49152
s_add_u32 {sStR}, s6, s7
s_lshl_b32 s7, {sG}, 10
s_add_u32 {sStR}, {sStR}, s7
s_mul_i32 s7, {sG}, 3
s_add_u32 s7, s7, {sWave}
s_lshl_b32 s4, s7, 13
s_add_u32 {sLdR}, s6, s4
s_lshl_b32 {sFlR}, {sB}, 11
s_add_u32 {sFlR}, {sFlR}, {hex(FLAG_BASE - 256)}
s_lshr_b32 s4, s7, 1
s_mul_i32 s5, s4, 11
s_lshr_b32 s5, s5, 5
s_mul_i32 s3, s5, 3
s_sub_u32 s4, s4, s3
s_lshl_b32 s4, s4, 6
s_lshl_b32 s5, s5, 2
s_add_u32 s4, s4, s5
s_mul_i32 s5, {sB}, 192
s_add_u32 s4, s4, s5
s_lshl_b32 s4, s4, 10
s_and_b32 s5, s7, 1
s_lshl_b32 s5, s5, 6
s_add_u32 {sOutR}, s4, s5
s_mov_b32 {sOc}, {sRot}
s_cmp_eq_u32 {sWave}, 3
s_cselect_b32 {sLdR}, {hex(OOB)}, {sLdR}
s_cselect_b32 {sOutR}, {hex(OOB)}, {sOutR}
v_bfe_u32 v3, {vLane}, 3, 2
v_and_b32 v2, 3, {vLane}
v_lshlrev_b32 {vC}, 5, v3
v_lshl_add_u32 {vC}, v2, 3, {vC}
v_lshlrev_b32 v3, 1, v3
v_xor_b32 v2, v2, v3
v_lshlrev_b32 v2, 4, v2
v_sub_u32 {vC}, {vC}, v2""")
    if OPT["tlb"] == 2:
        o += lin(f"""s_mov_b32 s4, {hex(FLAG_BASE + 0x20080)}
s_mov_b32 s88, s80
s_mov_b32 s89, s81
s_mov_b32 s90, 0x80000
s_add_u32 s5, s75, {8*CHUNK + 4096}""") if False else lin(f"s_mov_b32 s4, {hex(FLAG_BASE + 0x20080)}\ns_add_u32 s5, s75, {8*CHUNK + 4096}")
        o += [Op(f"buffer_load_dword {vB}, off, {srd}, {so}", "vm") for srd, so in ((srdWS, "s75"), (srdWS, "s5"), (srdWS, "s4"), (srdO, sOutR))]
    if OPT["stress"]: o += lin(f"s_lshl_b32 s75, s2, 20\ns_add_u32 s75, s75, 0x8000000\ns_mul_i32 s4, {sWave}, 0x3f000\ns_add_u32 s75, s75, s4")
    if OPT["stamps"]:
        o += lin(f"s_lshl_b32 s101, s2, 10\ns_lshl_b32 s6, {sWave}, 8\ns_add_u32 s101, s101, s6\ns_add_u32 s101, s101, {hex(STAMP_BASE)}")
    if OPT["stamps"] == 2: o += stamp(1)
    o.append(WAIT(0, need_vm=[x[0] for x in init[:4]]))
    o += lin("s_barrier")
    if OPT["stamps"] == 2: o += stamp()
    for t in range(3):
        for s in range(4): o += lin("ds_read_b128 %s, %s offset:%d" % ((XA(s, t),) + F.xaddr(F.xsl0[t], s)))
    for s in range(4):
        for p in range(2): o += lin(f"ds_read_b64_tr_b16 {FR(0, s, p)}, {vWb} offset:{F.wso0 + s*4096 + p*2048}")
    o += lin("s_waitcnt lgkmcnt(0)\ns_barrier")
    return o, zst

def glue0(zst):
    return [WAIT(0, need_vm=[zst])] + lin(f"""s_lshl_b32 s6, {sB}, 2
s_cmp_eq_u32 {sWave}, 0
s_cselect_b32 s6, s6, {hex(OOB)}
v_mov_b32 {vB}, {hex(OOB)}
v_writelane_b32 {vB}, 0, 0
v_mov_b32 {vA}, {sXcc}""") + [Op(f"buffer_atomic_add {vA}, {vB}, {srdD}, s6 offen sc1", "vm")]
def touch_setup():
    return lin(f"""s_cmp_eq_u32 {sSlM}, 1
s_cselect_b32 s4, 256, {hex(OOB)}
v_lshlrev_b32 {vA}, 1, {vA}
v_and_b32 {vA}, 0x700, {vA}
s_add_u32 s4, s4, {sFlR}""") + [Op(f"buffer_load_dword {vB}, {vA}, {srdWS}, s4 offen sc1", "vm")]
def mode_check(dbg):
    if OPT["bst"]: return lin(f"L_chkD:\nL_backD:\ns_mov_b32 {sSlM}, 1")
    return [WAIT(0, need_vm=[dbg])] + lin(f"""s_mov_b32 s3, 0
L_chkD:
v_readfirstlane_b32 s4, {vLane}
s_nop 3
s_lshr_b32 s5, s4, 4
s_and_b32 s5, s5, 0x0f0f0f0f
s_and_b32 s7, s4, 0x0f0f0f0f
s_add_u32 s5, s5, s7
s_mul_i32 s5, s5, 0x01010101
s_lshr_b32 s5, s5, 24
s_cmp_lg_u32 s5, 8
s_cbranch_scc1 L_spinD
L_backD:
s_lshl_b32 s5, {sXcc}, 3
{"s_mov_b32 s5, 0" if OPT["forceslow"] else ""}
s_cmp_eq_u32 s4, s5
s_cselect_b32 {sSlM}, 1, 7""")

def slow_path(placed, pendW0):
    vKo, vVo, vVo2, vKo2 = f"v{PV0+40}", f"v{PV0+41}", f"v{PV0+42}", f"v{PV0+43}"
    M = [f"v{PV0+36+t}" for t in range(3)]
    CN = [R("v", PV0 + 24 + 4*t, 4) for t in range(3)]
    Sx = [R("v", S0 + 4*t, 4) for t in range(3)]
    t_ = f"""
L_slow:
s_waitcnt vmcnt(0) lgkmcnt(0)
s_nop 7
v_mbcnt_lo_u32_b32 {vB}, -1, 0
v_mbcnt_hi_u32_b32 {vB}, -1, {vB}
v_and_b32 {vA}, 15, {vB}
v_lshrrev_b32 {vB}, 4, {vB}
v_lshlrev_b32 {vKo}, 8, {vA}
v_lshl_add_u32 {vKo}, {vB}, 4, {vKo}
s_and_b32 s4, {sWcol}, 128
s_xor_b32 s5, s4, 128
v_add_u32 {vKo2}, s5, {vKo}
v_add_u32 {vKo}, s4, {vKo}
v_lshlrev_b32 {vVo}, 10, {vB}
v_lshl_add_u32 {vVo}, {vA}, 1, {vVo}
v_add_u32 {vVo2}, 0x1000, {vVo}
s_add_u32 s4, {sHr}, {sHead}
s_and_b32 s4, s4, 3
s_lshl_b32 s4, s4, 17
s_mov_b32 s10, 0x80000
s_mov_b32 s14, 0x80000
s_add_u32 s5, s4, 0x20000
s_mov_b32 s6, s4
"""
    for t in range(3): t_ += f"v_mov_b32 {M[t]}, 0xff800000\n"
    t_ += "L_slow1:\n"
    for s in range(4): t_ += f"buffer_load_dwordx4 {FR(0, s)}, {vKo if s < 2 else vKo2}, {srdK}, s6 offen offset:{64*(s & 1)}\n"
    t_ += "s_waitcnt vmcnt(0)\n"
    for t in range(3):
        for s in range(4): t_ += f"v_mfma_f32_16x16x32_bf16 {Sx[t]}, {FR(0, s)}, {QV(s, t)}, {'0' if s == 0 else Sx[t]}\n"
    t_ += "s_nop 9\n"
    for t in range(3):
        t_ += f"v_max3_f32 {M[t]}, {M[t]}, v{S0+4*t}, v{S0+4*t+1}\nv_max3_f32 {M[t]}, {M[t]}, v{S0+4*t+2}, v{S0+4*t+3}\n"
    t_ += "s_add_u32 s6, s6, 0x1000\ns_cmp_lt_u32 s6, s5\ns_cbranch_scc1 L_slow1\n"
    for t in range(3):
        t_ += f"""v_mov_b32 {vA}, {M[t]}
s_nop 1
v_permlane32_swap_b32 {vA}, {M[t]}
s_nop 1
v_max_f32 {M[t]}, {vA}, {M[t]}
v_mov_b32 {vA}, {M[t]}
s_nop 1
v_permlane16_swap_b32 {vA}, {M[t]}
s_nop 1
v_max_f32 {M[t]}, {vA}, {M[t]}
"""
        for i in range(4): t_ += f"v_sub_f32 v{PV0+24+4*t+i}, 0, {M[t]}\n"
    for i in range(96): t_ += f"v_mov_b32 v{i}, 0\n"
    for i in range(12): t_ += f"v_accvgpr_write_b32 a{240+i}, 0\n"
    t_ += "s_mov_b32 s6, s4\nL_slow2:\n"
    for u in range(2):
        for s in range(4): t_ += f"buffer_load_dwordx4 {FR(0, s)}, {vKo if s < 2 else vKo2}, {srdK}, s6 offen offset:{64*(s & 1)}\n"
        t_ += "s_waitcnt vmcnt(0)\n"
        for t in range(3):
            for s in range(4): t_ += f"v_mfma_f32_16x16x32_bf16 {Sx[t]}, {FR(0, s)}, {QV(s, t)}, {CN[t] if s == 0 else Sx[t]}\n"
        t_ += "s_nop 9\n"
        for i in range(12): t_ += f"v_exp_f32 v{S0+i}, v{S0+i}\n"
        t_ += "s_nop 0\n"
        for t in range(3):
            for j in range(2): t_ += f"v_cvt_pk_bf16_f32 {PBr(0, 0, t, 2*u + j)}, v{S0+4*t+2*j}, v{S0+4*t+2*j+1}\n"
        if u == 0: t_ += "s_mov_b32 s7, s6\ns_add_u32 s6, s6, 0x1000\n"
    f = FA0 + 16
    for dt in range(8):
        for j in range(8):
            t_ += f"buffer_load_ushort v{FA0 + j}, {vVo if j < 4 else vVo2}, {srdV}, s7 offen offset:{(j & 3)*256 + 32*dt}\n"
        t_ += "s_waitcnt vmcnt(0)\n"
        for j in range(4): t_ += f"v_lshl_or_b32 v{f + j}, v{FA0 + 2*j + 1}, 16, v{FA0 + 2*j}\n"
        t_ += "s_nop 1\n"
        for t in range(3): t_ += f"v_mfma_f32_16x16x32_bf16 {OA(dt, t)}, v[{f}:{f+3}], {PB(0, 0, t)}, {OA(dt, t)}\n"
    for t in range(3): t_ += f"v_mfma_f32_16x16x32_bf16 {LA(t)}, {ONES}, {PB(0, 0, t)}, {LA(t)}\n"
    t_ += "s_add_u32 s6, s6, 0x1000\ns_cmp_lt_u32 s6, s5\ns_cbranch_scc1 L_slow2\ns_nop 9\n"
    for t in range(3): t_ += f"v_accvgpr_read_b32 {vRL[t]}, a{240+4*t}\n"
    for t in range(3): t_ += f"v_rcp_f32 {vRL[t]}, {vRL[t]}\n"
    t_ += "s_nop 0\n"
    for o in placed: t_ += o.text + "\n"
    for o in pendW0: t_ += o.text + "\n"
    t_ += "s_waitcnt lgkmcnt(0)\n"
    t_ += "s_branch L_join\n"
    return lin(t_)

def spin(lbl, back, reg, off_v, srd, soff, exp):
    return lin(f"""{lbl}:
s_mov_b32 s3, 0
{lbl}_l:
buffer_load_dword {reg}, {off_v}, {srd}, {soff}{' offen' if off_v != 'off' else ''} sc1
s_add_u32 s3, s3, 1
s_waitcnt vmcnt(0)
v_cmp_ne_u32 vcc, {exp}, {reg}
s_cmp_gt_u32 s3, 0x10000
s_cbranch_scc1 {back}
s_nop 2
s_cbranch_vccnz {lbl}_l
s_branch {back}""")

def pad_linear(ops):
    out = []
    for o in ops:
        need = 0
        for (p, n) in o.sdeps:
            if p in out: need = max(need, n - sum(x.w for x in out[out.index(p)+1:]))
        if need > 0:
            nop = Op(f"s_nop {need-1}", "x"); nop.w = need; out.append(nop)
        out.append(o)
    return out

def tail(G):
    X = (lambda: stamp()) if OPT["stamps"] == 3 else (lambda: [])
    def sums(set_, loads):
        o0, p0, s0_ = reduce_ops(set_)
        return [WAIT(0, need_vm=loads)] + pad_linear(o0 + p0 + [s0_])
    def msum(set_, loads):
        A0, A1, D0, D1 = "a[48:51]", "a[52:55]", FR(1, 0), FR(1, 1)
        r = []
        for g in range(8):
            r += [WAIT(0, need_vm=[loads[g]]), mfma(D0, A0, RLD[set_][g], "0" if g == 0 else D0), mfma(D1, A1, RLD[set_][g], "0" if g == 0 else D1)]
        d = regs(D0) + regs(D1); res = regs(FR(1, 2 + set_))
        r += lin("s_nop 7") + [V(f"v_cvt_pk_bf16_f32 {res[j]}, {d[2*j]}, {d[2*j+1]}", rd=[d[2*j], d[2*j+1]], wr=[res[j]]) for j in range(4)]
        return r + [Op(f"buffer_store_dwordx4 {FR(1, 2 + set_)}, {vOut}, {srdO}, {sOut} offen{OSC}", "vm", rd=[FR(1, 2 + set_)])]
    fin = msum if OPT["msum"] else sums
    o = lin("\n".join(scal_B()) + "\ns_nop 1")
    stores = []
    for (cv, sa, st) in pack_store(1):
        o += cv + [sa, st]; stores.append(st)
    o += X() + fin(1, G.LD[1]) + X()
    o += [WAIT(0, need_vm=stores)] + X() + lin("s_barrier") + sig_ops()
    o += lin("s_branch L_spinU@L\nL_backU@L:") + X()
    l7 = red_loads(0); o += l7
    o += lin(f"s_add_u32 {sOut}, {sOutR}, {sOc}")
    if OPT["stamps"] == 3: o += lin("s_waitcnt vmcnt(0)") + X()
    o += fin(0, l7) + X() + X()
    return o

def main():
    R2 = build_R2()
    placed = [o for o in R2.epi if o.gap is not None]; placed.sort(key=lambda o: o.pos)
    R1 = build_R1(R2.left)
    R1b = {h: build_R1b(h) for h in (1, 2, 3)}
    R1f = build_R1f()
    global G_LD, G_LD0
    G0 = build_G(True, R2.left)
    G_LD0 = G0.LD[1]; G_LD = [red_loads(0), red_loads(1)]
    G = build_G()
    bind_ext(R1, [R2.pendW0]); bind_ext(R2, [R1f.pend] + [R1b[h].pend for h in R1b]); bind_ext(G0, [R2.pendW0]); bind_ext(G, [G0.pend, G.pend])
    for h in R1b: bind_ext(R1b[h], [R1.pend])
    for w in R1f.xw: w.text = 's_nop 0'
    pro, zst = prologue(R1f)
    for j, t in enumerate(NEXT): TILE[f'G{j}'] += TILE[t]
    stg = lin(f"""{[f"s_mov_b32 s4, {sG}", f"s_and_b32 s4, {sB}, 3", f"s_mov_b32 s4, {sIdx}"][OPT["stagm"]]}
s_mul_i32 s4, s4, {OPT["stag"]}
L_stg:
s_cmp_eq_u32 s4, 0
s_cbranch_scc1 L_stg2
s_sub_u32 s4, s4, 1
s_branch L_stg
L_stg2:""") if OPT["stag"] else []
    p0 = glue0(zst) + stg + lin("s_branch L_R2")
    sel = lin(f"s_cmp_eq_u32 {sHead}, 2\ns_cbranch_scc1 L_v2\ns_cmp_eq_u32 {sHead}, 3\ns_cbranch_scc1 L_v3")
    v1 = R1b[1].out + lin("s_branch L_R2")
    v2 = lin("L_v2:") + R1b[2].out + lin("s_branch L_R2")
    assert OPT["pf"]
    v3 = lin("L_v3:") + R1b[3].out + mode_check(getattr(R1b[2], "dbg", None)) + code_pf("L_pc2", "L_g3", "L_codeend", 15, 76) + touch_setup()
    g2 = lin(f"s_or_b64 {sBad}, {sBad}, vcc\n{'s_nop 0' if OPT['stress'] else 's_cbranch_scc1 L_slow'}\nL_join:\ns_add_u32 {sHead}, {sHead}, 1\ns_cmp_lt_u32 {sHead}, 4")
    g3 = lin(f"s_cmp_eq_u32 {sSlM}, 7\ns_cbranch_scc1 L_G0S")
    g4 = lin(f"s_mov_b32 {sC[0]}, {sC[2]}\ns_add_u32 {sC[1]}, {sC[0]}, 128\ns_and_b32 {sC[1]}, {sC[1]}, 0x3ff\ns_add_u32 {sC[2]}, {sC[1]}, 128\ns_and_b32 {sC[2]}, {sC[2]}, 0x3ff\ns_cmp_lt_u32 {sIt}, 8")
    T = tail(G)
    sA, sB_, sC_, sD_, sE = stamp(1 if OPT['stamps'] in (1, 3) else 0), stamp(), stamp(), stamp(), stamp(2)
    if OPT["bst"]:
        def dump():
            return lin(f"v_mbcnt_lo_u32_b32 {vA}, -1, 0\nv_mbcnt_hi_u32_b32 {vA}, -1, {vA}\nv_lshlrev_b32 {vA}, 2, {vA}") + [Op(f"buffer_store_dword {vLane}, {vA}, {srdWS}, s101 offen", "vm")] + lin("s_add_u32 s101, s101, 256\ns_nop 1")
        sA = lin(f"s_lshl_b32 s101, s2, 2\ns_add_u32 s101, s101, {sWave}\ns_lshl_b32 s101, s101, 12\ns_add_u32 s101, s101, {hex(DUMP_BASE)}")
        sC_ = dump(); sD_ = dump()
    tr = pro + sA
    for hd in range(4):
        tr += [R1f.out + p0, R1.out + sel + v1, R1.out + sel + v2, R1.out + sel + v3][hd] + sB_ + R2.out + g2 + sC_
    tr += g3
    post = []
    for it in range(3): post += G.out + g4 + sD_
    post += T
    resolve_waits(tr + [x for x in G0.out if x.tag != "touch"] + g4 + sD_ + [x for x in post if x.tag != "fastonly"], TILE)
    tr += G0.out + g4 + sD_ + post
    resolve_waits(tr, TILE)
    errs = check(tr, "main")
    for e in errs[:20]: print(e, file=sys.stderr)
    assert not errs
    for rg in (R1f, R1, R1b[1], R1b[3], R2, G0, G): print(rg.name, "overfull:", rg.overlog, file=sys.stderr)
    out = [open(os.path.join(os.path.dirname(os.path.abspath(__file__)), "header.txt")).read().rstrip()]
    out.append("; @launch grid=(256,1,1) block=(256,1,1) lds=163840")
    out.append(f""".amdgcn_target "amdgcn-amd-amdhsa--gfx950"
.text
.globl {KN}
.p2align 8
.type {KN},@function
{KN}:""")
    def emit(ops, sc="", lb=""):
        for o in ops:
            if OPT["nobar"] and o.text == "s_barrier" and o.kind == "w": out.append("s_nop 0"); continue
            if OPT["nolg"] and o.kind == "w" and o.text.startswith("s_waitcnt") and "vmcnt" not in o.text: out.append("s_nop 0"); continue
            if OPT["nods"] and o.kind == "ds": continue
            if OPT["novalu"] and o.kind in ("v4", "v8") and o.gap is not None and ("exp" in o.text or "cvt" in o.text or "mul" in o.text or "perm" in o.text or "and" in o.text or "lshl" in o.text or "add_f32" in o.text): continue
            if OPT["nodma"] and o.text.endswith(" lds"): out.append("s_nop 0"); continue
            if OPT["nored"] and " sc1" in o.text and "dwordx4" in o.text: out.append("s_nop 0"); continue
            if getattr(o, "pre", None): out.append(o.pre)
            out.append(o.text.replace("@SC", sc).replace("@L", lb))
    def mark(n):
        return lin("s_memrealtime s[2:3]\ns_waitcnt lgkmcnt(0)\ns_sub_u32 s75, s2, s73") if OPT["dbl"] == n else []
    def idle(n, tag):
        if not n: return []
        return lin(f"""s_memrealtime s[2:3]
s_waitcnt lgkmcnt(0)
s_mov_b32 s5, s2
L_idle{tag}:
s_sleep 2
s_memrealtime s[2:3]
s_waitcnt lgkmcnt(0)
s_sub_u32 s4, s2, s5
s_cmp_lt_u32 s4, {n}
s_cbranch_scc1 L_idle{tag}""")
    def ex(n): return (stamp(2) + lin("s_endpgm")) if OPT["exitat"] == n else []
    emit(pro + mark(3) + idle(OPT['idle0'], 'a') + sA + ex(1) + R1f.out + mark(4) + p0)
    out.append("L_loop:"); emit(R1.out + sel + v1 + v2 + v3); out.append("L_R2:"); emit(idle(OPT['idle1'], 'b') + sB_ + R2.out + g2 + sC_)
    if OPT["dbl"] >= 10:
        emit(lin(f"s_cmp_lg_u32 {sHead}, {OPT['dbl'] - 9}\ns_cbranch_scc1 L_nomark") + mark(OPT["dbl"]) + lin(f"L_nomark:\ns_cmp_lt_u32 {sHead}, 4"))
    if OPT["stamps"] or OPT["bst"]: out.append(f"s_cmp_lt_u32 {sHead}, 4")
    out.append("s_cbranch_scc1 L_loop")
    out.append('L_g3:'); emit(mark(5) + ex(3) + g3)
    for sc, lb in ((NTST, ""), (" sc1", "S")):
        out.append(f"L_G0{lb}:"); emit([(Op("s_nop 0", "x") if (lb and x.tag == "touch") else x) for x in G0.out] + g4 + sD_, sc, lb)
        out.append(f"L_G{lb}:"); emit(G.out + g4 + sD_, sc, lb)
        if OPT["stamps"] or OPT["bst"]: out.append(f"s_cmp_lt_u32 {sIt}, 8")
        out.append(f"s_cbranch_scc1 L_G{lb}")
        emit([(Op('s_nop 0', 'x') if (lb and x.tag == 'fastonly') else x) for x in T] + sE, sc, lb)
        if OPT["dbl"]:
            emit(lin(f"""s_waitcnt vmcnt(0)
s_memrealtime s[2:3]
s_waitcnt lgkmcnt(0)
{"s_sub_u32 s4, s2, s73" if OPT["dbl"] == 1 else ("s_mov_b32 s4, 500" if OPT["dbl"] == 2 else "s_mul_i32 s4, s75, 4")}
s_min_u32 s4, s4, 40000
s_mov_b32 s5, s2
L_dbl{lb}:
s_sleep 4
s_memrealtime s[2:3]
s_waitcnt lgkmcnt(0)
s_sub_u32 s6, s2, s5
s_cmp_lt_u32 s6, s4
s_cbranch_scc1 L_dbl{lb}"""))
        out.append("s_endpgm")
        if not lb: out.append("L_codeend:")
        for nm in ("G0", "G1", "G1F", "U"): emit(spin(f"L_spin{nm}{lb}", f"L_back{nm}{lb}", vPr, vPo, srdWS, sPoll, sExp))
    emit(lin(f"""L_spinD:
s_add_u32 s3, s3, 1
s_cmp_gt_u32 s3, 0x10000
s_cbranch_scc1 L_backD
s_lshl_b32 {sTmp}, {sB}, 2
buffer_load_dword {vLane}, off, {srdD}, {sTmp} sc1
s_waitcnt vmcnt(0)
s_branch L_chkD"""))
    emit(slow_path(placed, R2.pendW0))
    out.append(f"""s_endpgm
.section .rodata,"a"
.p2align 6
.amdhsa_kernel {KN}
  .amdhsa_next_free_vgpr 512
  .amdhsa_next_free_sgpr 102
  .amdhsa_accum_offset 256
  .amdhsa_group_segment_fixed_size 0
  .amdhsa_kernarg_size 64
  .amdhsa_user_sgpr_count 2
  .amdhsa_user_sgpr_kernarg_segment_ptr 1
  .amdhsa_system_sgpr_workgroup_id_x 1
.end_amdhsa_kernel""")
    print("\n".join(out))
main()
```

```python
import sys, os, struct, math
sys.path.insert(0, os.path.dirname(os.path.abspath(__file__)))
from sched import *
import ringplan

OPT = dict(stamps=0, nt=1, stress=0, msum=1, tord=0, b0=0, clean=0, stag=0, stagm=0, mapping=48, nodma=0, samekv=0, nored=0, ntw=0, ntx=0, bst=0, lrate=3, lburst=4, rsp=8, rk=2, i0=-170, dk=75, ksp=18, wsp=7, gst=4, gld=4, gsig=1, gpoll=108, gsum=8, gdma=40, glc=0, rot=1, gout=189, gdsp=5, lag=1, forceslow=0, ntst=0, pf=128, hrot=9, hswap=1, plan=0, uni=1, fnt=1, gb2=1, pf3=0, wstrict=1, rspw=10, samew=0, samex=0, krot=3, osc=0, idle0=0, idle1=0, exitat=0, wb=0, dbl=0, nperm=1, bdw=2, bda=2, vlate=1, tch=0, gtch=0, kvlate=4, tg=0, etch=0, gl3=1, ftch=1, tlb=0, fsp=2, fkv=5, fgap=4, nobar=0, nolg=0, nods=0, novalu=0)
for a in sys.argv[1:]:
    k, v = a.split("="); assert k in OPT, k; OPT[k] = float(v) if "." in v else int(v)
Region.LDSRATE = OPT["lrate"]; Region.LDSBURST = OPT["lburst"]
KN = "standalone__mha_block_cached__near_ridge_kernel"

def OA(mt, t): return R("v", (mt*3 + t)*4, 4)
def OAr(mt, t, i): return f"v{(mt*3 + t)*4 + i}"
QV0, PV0, S0, FA0 = 96, 144, 192, 204
def QV(s, t): return R("v", QV0 + (s*3 + t)*4, 4)
def QVr(s, t, i): return f"v{QV0 + (s*3 + t)*4 + i}"
def PB(buf, sg, t): return R("v", PV0 + 24*buf + (sg*3 + t)*4, 4)
def PBr(buf, sg, t, i): return f"v{PV0 + 24*buf + (sg*3 + t)*4 + i}"
def OP(s, t): return R("v", PV0 + (s*3 + t)*4, 4)
def OPr(s, t, i): return f"v{PV0 + (s*3 + t)*4 + i}"
def FR(buf, f, half=None):
    b = FA0 + 16*buf + 4*f
    return R("v", b, 4) if half is None else R("v", b + 2*half, 2)
vK = ["v236", "v237", "v238", "v239"]
vVb, vWb, vT = "v240", "v241", ["v242", "v243"]
vDK, vDV, vDW, vDX, vC = "v244", "v245", "v246", "v247", "v248"
vRL = ["v249", "v250", "v251"]
vLane, vDWo, vA, vB = "v252", "v253", "v254", "v255"
def XA(s, t): return R("a", (s*3 + t)*4, 4)
ZB = {0: 144, 1: 192, 2: 0}
def ZA(h, s, t): return R("a", ZB[h] + (s*3 + t)*4, 4)
def LA(t): return R("a", 240 + 4*t, 4)
ONES = "a[252:255]"

srdK, srdV, srdW, srdX, srdWS, srdO, srdD = (f"s[{i}:{i+3}]" for i in (8, 12, 16, 20, 24, 28, 32))
sW1k, sXcc, sRot, sOc = "s36", "s37", "s38", "s39"
sC = ["s40", "s41", "s42"]
sDg = ["s43", "s44", "s45", "s46"]
sIdx = "s99"
sH = ["s93", "s95", "s96", "s97"]; sHr = "s98"; sSw = "s3"
sKoff, sVoff, sWcol = "s47", "s48", "s49"
sD = [None, "s50", "s51", "s52"]
sDY = [None, "s53", "s54", "s55"]
sT = ["s56", "s57", "s58", "s59"]
sW4k, sHead, sScale, sWave, sB, sG, sLo, sHi = (f"s{i}" for i in range(60, 68))
sBad = "s[84:85]"
sN = [f"s{i}" for i in range(86, 92)]
sTmp = "s100"
sIt, sSt, sSig, sExp, sLd, sLd2, sOut = (f"s{i}" for i in range(86, 93))
sStR, sLdR, sFlR, sOutR, sSlM, sLdMin, sGate = (f"s{i}" for i in range(68, 75))
sPoll = sSig; sPo = "s99"; sTk, sTh, sTo = "s43", "s44", "s45"
sU = ["s4", "s5"]; sMask = "s6"
OOB = 0x40000000
FLAG_BASE = 0x3040000
STAMP_BASE = 0x3100000
DUMP_BASE = 0x4000000
WS_BYTES = 0x20000000 if OPT["stress"] else (0x8000000 if OPT["bst"] else 0x3200000)
CHUNK = 196608
ORD = [(0,0),(0,1),(0,2),(1,0),(0,3),(1,3),(1,1),(1,2)]
ORDG = [(j >> 2, j & 3) for j in range(8)]
NTKV = {"K": " nt" if OPT["nt"] in (1, 2) else "", "V": " nt" if OPT["nt"] in (1, 3) else ""}
NTW = " nt" if OPT["ntw"] else ""
NTX = " nt" if OPT["ntx"] else ""
def wq_lit(step): return ORD[step][1]*0x100000 + ORD[step][0]*128
def wo_lit(m): return (m & 3)*0x20000 + (m >> 2)*128

def S(text, rd=(), wr=(), **kw): return Op(text, "s", rd=rd, wr=wr, **kw)
def V(text, rd=(), wr=(), **kw): return Op(text, "v4", rd=rd, wr=wr, **kw)
def V8(text, rd=(), wr=(), **kw): return Op(text, "v8", rd=rd, wr=wr, **kw)
def WAIT(d, need_ds=(), need_vm=(), lg0=False, late=3, e=-1):
    o = Op("s_waitcnt ?", "w", e=e, d=d, late=late, deps=[(x, 1) for x in need_ds])
    o.need_ds, o.need_vm, o.lg0 = list(need_ds), list(need_vm), lg0
    return o
def lin(text):
    return [Op(l.strip(), "x") for l in text.strip().split("\n") if l.strip()]

class Ctx: pass
C = Ctx(); C.grp = 0

ringplan.setb(OPT["bdw"], OPT["bda"]); BDW, BDA = OPT["bdw"], OPT["bda"]
wI = {"W0": -210, "W1": -135, "W2": -55, "W3": 36 + BDW, "W4": 78, "W5": 112, "W6": 162, "W7": 186}
xI = {"Xa": -430, "Xb": -350, "Xc": -280}
PLANS = {
 8: {'Xa': -430, 'Xb': -350, 'Xc': -280, 'W0': -210, 'W1': -135, 'W2': -58, 'W3': 38, 'W4': 80, 'W5': 115, 'W6': 150, 'W7': 190, 'K0': -198, 'K1': -130, 'V0': -62, 'K2': 38, 'V1': 104, 'K3': 172, 'V2': 290, 'K4': 361, 'V3': 432, 'K5': 503, 'V4': 574, 'K6': 645, 'V5': 716, 'K7': 787, 'V6': 858, 'V7': 930},
 7: {'Xa': -430, 'Xb': -350, 'Xc': -280, 'W0': -210, 'W1': -135, 'W2': -58, 'W3': 38, 'W4': 80, 'W5': 110, 'W6': 162, 'W7': 186, 'K0': -167, 'K1': -93, 'V0': -19, 'K2': 58, 'V1': 136, 'K3': 214, 'V2': 290, 'K4': 365, 'V3': 439, 'K5': 513, 'V4': 587, 'K6': 661, 'V5': 735, 'K7': 809, 'V6': 884, 'V7': 959},
 5: {'Xa': -430, 'Xb': -350, 'Xc': -280, 'W0': -210, 'W1': -135, 'W2': -55, 'W3': 38, 'W4': 78, 'W5': 112, 'W6': 162, 'W7': 186, 'K0': -170, 'K1': -95, 'V0': -20, 'K2': 55, 'V1': 140, 'K3': 290, 'V2': 345, 'K4': 400, 'V3': 460, 'K5': 525, 'V4': 590, 'K6': 660, 'V5': 730, 'K7': 805, 'V6': 880, 'V7': 955},
 6: {'Xa': -430, 'Xb': -350, 'Xc': -280, 'W0': -210, 'W1': -135, 'W2': -55, 'W3': 38, 'W4': 78, 'W5': 112, 'W6': 162, 'W7': 186, 'K0': -170, 'K1': -95, 'V0': -20, 'K2': 135, 'V1': 290, 'K3': 335, 'V2': 385, 'K4': 435, 'V3': 490, 'K5': 545, 'V4': 605, 'K6': 665, 'V5': 730, 'K7': 805, 'V6': 880, 'V7': 955},
 3: {'Xa': -514, 'Xb': -444, 'Xc': -297, 'W0': -229, 'W1': -155, 'W2': -63, 'W3': 8, 'W4': 38, 'W5': 82, 'W6': 110, 'W7': 180, 'K0': -187, 'K1': -112, 'V0': -38, 'K2': 58, 'V1': 141, 'K3': 216, 'V2': 290, 'K4': 364, 'V3': 436, 'K5': 507, 'V4': 579, 'K6': 651, 'V5': 721, 'K7': 794, 'V6': 863, 'V7': 940},
 4: {'Xa': -514, 'Xb': -444, 'Xc': -297, 'W0': -229, 'W1': -155, 'W2': -63, 'W3': 8, 'W4': 38, 'W5': 82, 'W6': 110, 'W7': 180, 'K0': -180, 'K1': -108, 'V0': -36, 'K2': 58, 'V1': 141, 'K3': 216, 'V2': 290, 'K4': 364, 'V3': 438, 'K5': 512, 'V4': 586, 'K6': 660, 'V5': 734, 'K7': 808, 'V6': 878, 'V7': 950},
 1: {'Xa': -510, 'Xb': -430, 'Xc': -352, 'W0': -205, 'W1': -106, 'W2': -26, 'W3': 5, 'W4': 37, 'W5': 98, 'W6': 161, 'W7': 190, 'K0': -243, 'K1': -157, 'V0': -60, 'K2': 64, 'V1': 130, 'K3': 221, 'V2': 290, 'K4': 354, 'V3': 415, 'K5': 477, 'V4': 593, 'K6': 533, 'V5': 650, 'K7': 728, 'V6': 809, 'V7': 894},
 2: {'Xa': -496, 'Xb': -413, 'Xc': -333, 'W0': -252, 'W1': -103, 'W2': -30, 'W3': 5, 'W4': 38, 'W5': 99, 'W6': 130, 'W7': 188, 'K0': -210, 'K1': -148, 'V0': -54, 'K2': 67, 'V1': 155, 'K3': 221, 'V2': 291, 'K4': 349, 'V3': 409, 'K5': 473, 'V4': 534, 'K6': 598, 'V5': 662, 'K7': 829, 'V6': 747, 'V7': 904},
}
if OPT["plan"] == 9: wI = {"W0": -210, "W1": -135, "W2": -60, "W3": 6, "W4": 38, "W5": 80, "W6": 110, "W7": 150}
elif OPT["plan"] == 10: wI = {"W0": -215, "W1": -145, "W2": -75, "W3": 6, "W4": 38, "W5": 70, "W6": 104, "W7": 140}
elif OPT["plan"]: wI = PLANS[OPT["plan"]]; xI = {}
ISS, SLOT, _c, NEED = ringplan.plan(OPT["i0"], OPT["dk"], wI, xI)
assert SLOT is not None
SPR = {}; TIMES = {}
for t in ISS:
    m = ISS[t] % 1200
    sp = OPT["ksp"] if t[0] in "KV" else OPT["wsp"]
    if OPT["uni"] and t[0] in "KV":
        ts_ = [ISS[t] + (OPT["dk"]*i + 2)//4 for i in range(4)]
        for i in range(4):
            for edge in (0, 240, 288, 1200):
                if edge - 4 <= ts_[i] < edge + 2: ts_[i] = edge + 2
        TIMES[t] = ts_; continue
    if 228 <= m < 288: ISS[t] += 290 - m; m = 290
    SPR[t] = min(sp, ((240 if m < 288 else 1200) - 5 - m)//3); assert SPR[t] >= 1
    TIMES[t] = [ISS[t] + SPR[t]*i for i in range(4)]
BASE = {}
for ch in "KVW":
    for i, b in enumerate(ringplan.bases([SLOT[f"{ch}{i}"] for i in range(8)])[1]): BASE[f"{ch}{i}"] = b
XB = min(SLOT["Xa"], SLOT["Xb"], SLOT["Xc"]); assert max(SLOT["Xa"], SLOT["Xb"], SLOT["Xc"]) - XB <= 3
NEXT = sorted([t for t in ISS if ISS[t] < 0 and t[0] in "WX"], key=lambda t: (t != "W0", ISS[t]))
print("plan:", ISS, SLOT, BASE, NEXT, file=sys.stderr)
TILE = {}
def lit(x): return hex(x & 0xffffffff)
def rebase(rg, typ, old, new, e, d, after=()):
    if old == new: return []
    regs_ = vK if typ == "K" else [vVb if typ == "V" else vWb]
    return [rg.F(V(f"v_add_u32 {r}, {lit((new - old)*16384)}, {r}", rd=[r], wr=[r], e=e, d=d, deps=[(a, 0) for a in after if a])) for r in regs_]
def wq_t0(dst, step):
    hf, dg = ORD[step]
    return [f"s_add_u32 {dst}, {sWcol}, {sDg[dg]}"] + ([f"s_xor_b32 {dst}, {dst}, 128"] if hf else [])
def x_t0(dst, a, q):
    return [f"s_lshr_b32 {dst}, {sDg[q]}, 12"] + ([f"s_add_u32 {dst}, {dst}, {a*65536}"] if a else [])
def tile_src(spec):
    k = spec[0]
    if k == "W": return srdW, vDW, wq_t0(sT[0], spec[1]), sD, NTW
    if k == "C": return srdW, vDW, [f"s_add_u32 {sT[0]}, {sC[spec[1]]}, {sH[spec[2]]}"], sD, NTW
    if k == "N": return srdW, vDW, [f"s_mov_b32 {sT[0]}, {sN[spec[1]]}"], sD, NTW
    if k == "Y": return srdX, vDX, [f"s_mov_b32 {sT[0]}, {sN[spec[1]]}"], sDY, NTX
    if k == "X": return srdX, vDX, x_t0(sT[0], spec[1], spec[2]), sDY, NTX
def add_dmas(rg, items):
    ev = []
    for (name, spec, slot, e, sp, bar) in items:
        for i, t in (sp if isinstance(sp, list) else [(i, e + sp*i) for i in range(4)]): ev.append((t, e, i, name, spec, slot, bar))
    ev.sort(key=lambda x: (x[0], x[1]))
    prev = None; cur = None; wopen = None; ts = None; lastw = None; m0 = None
    for (t, e0, i, name, spec, slot, bar) in ev:
        deps = []
        if bar is not None: deps.append((bar, 0))
        if prev is not None: deps.append((prev, 1))
        if cur != slot:
            m0 = rg.F(Op(f"s_add_u32 m0, {sW4k}, {slot*16384}", "t", wr=["m0"], e=t - 6, deps=([(prev, 1)] if prev else []))); cur = slot
        deps.append((m0, 1))
        if spec[0] in "KV":
            so, vo, srd = (sKoff, vDK, srdK) if spec[0] == "K" else (sVoff, vDV, srdV)
            st = rg.inc.get(spec[0])
            if st is not None and i == 0: deps.append((st, 0))
            o = rg.F(Op(f"buffer_load_dwordx4 {vo}, {srd}, {so} offen offset:{i*1024}{NTKV[spec[0]] if (rg.name != 'R1f' or OPT['fnt']) else ''} lds", "vm", rd=[vo, so, "m0"], e=t, d=t + 4, deps=deps))
            if i == 3:
                inc = rg.F(Op(f"s_add_u32 {so}, {so}, 0x4000", "t", rd=[so], wr=[so], deps=[(o, 1)], d=t + 12))
                if name[1] == "7":
                    inc = rg.F(Op(f"s_and_b32 {so}, {so}, 0x7ffff", "t", rd=[so], wr=[so], deps=[(inc, 0)], d=t + 14))
                    nr = "s10" if name[0] == "K" else "s14"
                    rg.F(S(f"s_cmp_eq_u32 {sHead}, 3", deps=[(o, 1)])); inc2 = rg.F(S(f"s_cselect_b32 {nr}, 0, {nr}", d=t + 20))
                rg.inc[spec[0]] = inc
        else:
            srd, vo, t0, dl, fl = tile_src(spec)
            if i == 0:
                assert wopen is None, "W-type tiles may not interleave"
                wopen = name
                tt = rg.F(Op(t0[0], "t", wr=[sT[0]], e=t - 12, deps=([(lastw, 1)] if lastw else [])))
                for x in t0[1:]: tt = rg.F(Op(x, "t", wr=[sT[0]], deps=[(tt, 0)]))
                ts = [tt]
                ts += [rg.F(Op(f"s_add_u32 {sT[j]}, {sT[0]}, {dl[j]}", "t", wr=[sT[j]], deps=[(ts[0], 0)])) for j in (1, 2, 3)]
            o = rg.F(Op(f"buffer_load_dwordx4 {vo}, {srd}, {sT[i]} offen offset:{i*1024}{fl} lds", "vm", rd=[vo, sT[i], "m0"], e=t, d=t + 4, deps=deps + [(ts[i], 0)]))
            if i == 3: wopen = None; lastw = o
        if i == 3: TILE.setdefault(name, []).append(o)
        if i == 0: rg.first_dma[name] = o
        prev = o
    rg.lastw = lastw
def head_dmas(rg, lo, hi):
    items = []
    for t in ISS:
        mine = [(i, x % 1200 - lo) for i, x in enumerate(TIMES[t]) if lo <= x % 1200 < hi]
        if not mine: continue
        m = ISS[t] % 1200
        spec = (t[0],) if t[0] in "KV" else (("W", int(t[1])) if ISS[t] >= 0 else (("N" if t[0] == "W" else "Y"), NEXT.index(t)))
        cands = [g for g in rg.bars if g + lo <= m and any(SLOT[p] == SLOT[t] and NEED[p][1] % 1200 == g + lo for p in NEED)] if mine[0][0] == 0 else []
        bar = rg.bars[max(cands)] if cands else None
        items.append((t, spec, SLOT[t], mine[0][1], mine, bar))
    if OPT["stress"]:
        for g in range(lo + 20, hi - 12, OPT["stress"]):
            o = rg.F(Op(f"buffer_load_dword a241, {vDK}, {srdWS}, s75 offen nt", "vm", e=g - lo, d=g - lo + 6))
            rg.F(Op("s_add_u32 s75, s75, 0x1000", "t", deps=[(o, 1)], d=g - lo + 10))
    add_dmas(rg, items)
def dma_linear(name, spec, slot):
    ops = lin(f"s_add_u32 m0, {sW4k}, {slot*16384}")
    if spec[0] in "KV":
        so, vo, srd = (sKoff, vDK, srdK) if spec[0] == "K" else (sVoff, vDV, srdV)
        d = [Op(f"buffer_load_dwordx4 {vo}, {srd}, {so} offen offset:{i*1024}{NTKV[spec[0]]} lds", "vm") for i in range(4)]
        ops += lin("s_nop 0") + d + lin(f"s_add_u32 {so}, {so}, 0x4000")
    else:
        srd, vo, t0, dl, fl = tile_src(spec)
        d = [Op(f"buffer_load_dwordx4 {vo}, {srd}, {sT[i]} offen offset:{i*1024}{fl} lds", "vm") for i in range(4)]
        ops += lin("\n".join(t0) + "\n" + "\n".join(f"s_add_u32 {sT[i]}, {sT[0]}, {dl[i]}" for i in (1, 2, 3))) + d
    TILE.setdefault(name, []).append(d[-1])
    return ops
def reads_X(rg, addr, slots, dst, e, d, deps, step=1):
    ops = []
    for t in range(3):
        for s in range(4):
            r_, imm = addr(slots[t], s)
            ops.append(rg.F(Op(f"ds_read_b128 {dst(s, t)}, {r_} offset:{imm}", "ds", rd=[r_], wr=[dst(s, t)], e=e, d=d + len(ops)*step,
                               deps=list(deps) + ([(ops[-1], 0)] if ops else []))))
    return ops

def new_region(name):
    rg = Region(name); rg.nst = {"R1": 0, "R1f": 0, "R2": 6, "G": 0, "G0": 0}.get(name, 5)
    ext_waits(rg)
    if OPT['wstrict']: rg.ldspol = (lambda k: (4, 3)) if name != 'R2' else (lambda k: (4, 3) if k < 90 else (OPT['lrate'], OPT['lburst']))
    rg.tuse = {0: [], 1: []}; rg.bars = {}; rg.inc = {}; rg.first_dma = {}; rg.wq = bool(OPT["nperm"]) and name[0] != "G"
    return rg

def xor_addr(rg, base, k, ti, e, d, after=()):
    if k == 0: return base, None
    deps = [(x, 0) for x in rg.tuse[ti]] + [(a, 0) for a in after]
    o = rg.F(V(f"v_xor_b32 {vT[ti]}, {k*32}, {base}", rd=[base], wr=[vT[ti]], e=e, d=d, deps=deps))
    rg.tuse[ti] = []
    return vT[ti], o
def reads_W(rg, so, mt, buf, e, deps=(), ups=(), rsp=None):
    if rg.wq:
        if mt == 2: a, xo = xor_addr(rg, vWb, 2, 0, e - 8, e, ups)
        else: a, xo = (vWb if mt < 2 else vT[0]), None
        so += 8*(mt & 1)
    else: a, xo = xor_addr(rg, vWb, mt, mt & 1, e - 8, e, ups)
    dp = list(deps) + ([(xo, 1)] if xo else [(u, 1) for u in ups])
    ops = []
    for s in range(4):
        for p in range(2):
            ops.append(rg.F(Op(f"ds_read_b64_tr_b16 {FR(buf, s, p)}, {a} offset:{so + s*4096 + p*2048}", "ds", rd=[a], wr=[FR(buf, s, p)],
                               e=e, d=min(e + 1 + len(ops)*(rsp or OPT['rspw' if OPT['wstrict'] else 'rsp'])//8, e + 9), deps=dp + ([(ops[-1], 0)] if ops else []))))
    if rg.wq:
        if mt >= 2: rg.tuse[0] = ops
    elif xo: rg.tuse[mt & 1] = ops
    rg.lastWr = ops
    return ops, xo
def reads_K(rg, so, u, buf, e, deps=(), ups=()):
    ops = []
    for s in range(4):
        ops.append(rg.F(Op(f"ds_read_b128 {FR(buf, s)}, {vK[s]} offset:{so + u*1024}", "ds", rd=[vK[s]], wr=[FR(buf, s)],
                           e=e, d=e + 3 + len(ops)*OPT['rk'], deps=list(deps) + [(x, 1) for x in ups] + ([(ops[-1], 0)] if ops else []))))
    return ops
def reads_V(rg, so, dp_, buf, e, deps=(), ups=(), late=0):
    ops = []; xs = []
    for k in range(2):
        dt = 2*dp_ + k
        a, xo = xor_addr(rg, vVb, dt, k, e - 10, e + 4*k, ups)
        if xo: xs.append(xo)
        dd = list(deps) + ([(xo, 1)] if xo else [(u, 1) for u in ups])
        mine = []
        for sg in range(2):
            for p in range(2):
                o = rg.F(Op(f"ds_read_b64_tr_b16 {FR(buf, 2*k + sg, p)}, {a} offset:{so + sg*2048 + p*1024}", "ds", rd=[a], wr=[FR(buf, 2*k + sg, p)],
                            e=e, d=(e + 2 + len(ops)*OPT['rsp']//8) if not late else (e + 3 + 2*len(ops) if k == 0 else e + 5 + (len(ops)*5)//4), deps=dd + ([(ops[-1], 0)] if ops else [])))
                ops.append(o); mine.append(o)
        if xo: rg.tuse[k] = mine
    return ops, xs

def barrier(rg, gap, last_reads, tiles, extra=(), lg0=True, st=True):
    w = rg.F(WAIT(gap - 1, need_ds=last_reads, need_vm=list(tiles) + list(extra), lg0=lg0, late=1))
    w.deps += [(x, 1) for x in extra if x in rg.fill]
    b = rg.F(Op("s_barrier", "w", e=gap, d=gap, deps=[(w, 1)])); rg.bars[gap] = b
    if OPT["bst"] and st:
        w.pre = "s_memtime s[2:3]"
        i = rg.nst; rg.nst += 1
        rg.F(V(f"v_writelane_b32 {vLane}, s2, {i}", e=gap + 1, d=gap + 8))
    return b
def xstamp(rg, gap, idx, dep):
    if OPT["bst"] < 2: return
    w = rg.F(Op("s_memtime s[2:3]\ns_waitcnt lgkmcnt(0)", "w", e=gap, d=gap, deps=[(dep, 1)]))
    rg.F(V(f"v_writelane_b32 {vLane}, s2, {idx}", deps=[(w, 0)], d=gap))
def ext_waits(rg):
    rg.xw = []
    for d in (-1, 1):
        w = WAIT(d, late=1); w.e = d; rg.F(w); rg.xw.append(w)
def bind_ext(rg, preds):
    rg.xw[0].alt_ds = [p[:4] for p in preds]; rg.xw[1].alt_ds = list(preds)
def frag_waits(rg, rd_ops, first_use, n_first, second_use, only_first=False):
    if rd_ops is None: return
    rg.F(WAIT(first_use - 1, need_ds=rd_ops[:n_first], late=2))
    if n_first < len(rd_ops) and not only_first: rg.F(WAIT(second_use - 1, need_ds=rd_ops, late=1))

def so_(sb): return (sb[0] - sb[1])*16384
def w_step(rg, half, zero, Bop, pend, cur, nxt, need, extra=(), more_reads=(), xwait=None, post=None, nobar=False):
    b0 = rg.n(); info = dict(b0=b0); xlast = None
    if xwait:
        for t in range(3): rg.F(WAIT(b0 + 4*t - 1, need_ds=xwait[:4*t + 4], late=1))
        info["xbar"] = barrier(rg, b0 + 10, xwait, (), lg0=False, st=False)
    for mt in range(4):
        buf = C.grp & 1; C.grp += 1
        g0 = b0 + 12*mt
        if pend is not None and (mt < 3 or BDW): frag_waits(rg, pend, g0, 4, g0 + 2, only_first=(mt == 3 and not nobar))
        for t in range(3):
            for s in range(4):
                acc = OA(4*half + mt, t)
                rg.M(mfma(acc, FR(buf, s), Bop(s, t), "0" if (zero and s == 0) else acc))
        if mt < 3:
            pend, xo = reads_W(rg, so_(cur[1:3]), mt + 1, buf ^ 1, g0 - 1 if (mt or b0) else g0)
            if xo: xlast = xo
            if mt == 0 and rg.wq: base_users = pend
            if mt == 2: bar = None if nobar else barrier(rg, g0 + 11 + BDW, pend + list(more_reads), need, extra)
        else:
            ups = rebase(rg, nxt[0], nxt[3], nxt[2], b0 + 20, g0 - 2, after=([xlast] + (base_users if rg.wq else [])) if nxt[0] == "W" else [])
            if nxt[0] == "W": pend, _ = reads_W(rg, so_(nxt[1:3]), 0, buf ^ 1, g0 - 1 + (0 if nobar else BDW), deps=([] if nobar else [(bar, 0)]), ups=ups, rsp=(4 if post else None))
            else: pend = reads_K(rg, so_(nxt[1:3]), 0, buf ^ 1, g0 - 1 + BDW, deps=[(bar, 0)], ups=ups)
            if post: info["post"] = post(g0, bar)
    info["bar"] = bar; info["end"] = rg.n() - 1
    return pend, info
def TS(name, prev=None):
    k, i = name[0], int(name[1])
    return (k, SLOT[name], BASE[name], BASE[f"{k}{(i - 1) % 8}"])

def softmax(rg, g0, u, Sr, pbuf, d_over, d_puse):
    sg = u >> 1
    for t in range(3):
        last = rg.mf[g0 + 4*t + 3]
        dl = min(d_over(t), d_puse(t) - 3)
        ex = [rg.F(V8(f"v_exp_f32 {Sr(t,i)}, {Sr(t,i)}", rd=[Sr(t,i)], wr=[Sr(t,i)], e=last.gap, sdeps=[(last, 8)], trans=True)) for i in range(4)]
        for j in range(2):
            dst = PBr(pbuf, sg, t, 2*(u & 1) + j)
            rg.F(V(f"v_cvt_pk_bf16_f32 {dst}, {Sr(t,2*j)}, {Sr(t,2*j+1)}", rd=[Sr(t,2*j), Sr(t,2*j+1)], wr=[dst], d=dl,
                   sdeps=[(ex[2*j], 1), (ex[2*j+1], 1)]))
def k_mfmas(rg, buf, Sd):
    for t in range(3):
        for s in range(4):
            rg.M(mfma(Sd(t), FR(buf, s), QV(s, t), "0" if s == 0 else Sd(t)))
def v_mfmas(rg, dp_, buf, pbuf, zero, tmajor=False):
    order = [(k, t) for t in range(3) for k in range(2)] if tmajor else [(k, t) for k in range(2) for t in range(3)]
    last = {}
    for k, t in order:
        for sg in range(2):
            acc = OA(2*dp_ + k, t)
            last[(2*dp_ + k, t)] = rg.M(mfma(acc, FR(buf, 2*k + sg), PB(pbuf, sg, t), "0" if (zero and sg == 0) else acc))
    return last
def sum_mfmas(rg, t, pbuf, zero):
    for sg in range(2):
        o = rg.M(mfma(LA(t), ONES, PB(pbuf, sg, t), "0" if (zero and sg == 0) else LA(t)))
    return o
def o_epilogue_ops(dt, t):
    mul = [V(f"v_mul_f32 {OAr(dt,t,i)}, {vRL[t]}, {OAr(dt,t,i)}", rd=[OAr(dt,t,i), vRL[t]], wr=[OAr(dt,t,i)]) for i in range(4)]
    cvt = []
    for j in range(2):
        dst = OPr(dt >> 1, t, 2*(dt & 1) + j)
        cvt.append(V(f"v_cvt_pk_bf16_f32 {dst}, {OAr(dt,t,2*j)}, {OAr(dt,t,2*j+1)}", rd=[OAr(dt,t,2*j), OAr(dt,t,2*j+1)], wr=[dst],
                     deps=[(mul[2*j], 0), (mul[2*j+1], 0)]))
    for o in mul + cvt: o.ot = (dt, t)
    return mul, cvt
def q_muls(rg, mt, t, last, **kw):
    return [rg.F(V(f"v_mul_f32 {OAr(mt,t,i)}, {sScale}, {OAr(mt,t,i)}", rd=[OAr(mt,t,i)], wr=[OAr(mt,t,i)],
                   e=(last.gap if last is not None else -1), sdeps=([(last, 8)] if last is not None else []), **kw)) for i in range(4)]
def q_epilogue(rg, sp, t, lastA, lastB, d_use, muls=True):
    cv = []
    for k, last in ((0, lastA), (1, lastB)):
        mt = 2*sp + k
        mul = q_muls(rg, mt, t, last) if muls else None
        for j in range(2):
            dst = QVr(sp, t, 2*k + j)
            cv.append(rg.F(V(f"v_cvt_pk_bf16_f32 {dst}, {OAr(mt,t,2*j)}, {OAr(mt,t,2*j+1)}", rd=[OAr(mt,t,2*j), OAr(mt,t,2*j+1)], wr=[dst],
                             deps=([(mul[2*j], 0), (mul[2*j+1], 0)] if muls else []))))
    if OPT["nperm"]:
        for o in cv: o.d = d_use - 3
        return
    for j in range(2):
        a, b = QVr(sp, t, j), QVr(sp, t, 2 + j)
        p1 = rg.F(V8(f"v_permlane32_swap_b32 {a}, {b}", rd=[a, b], wr=[a, b], sdeps=[(cv[j], 2), (cv[2+j], 2)]))
        rg.F(V8(f"v_permlane16_swap_b32 {a}, {b}", rd=[a, b], wr=[a, b], sdeps=[(p1, 2)], d=d_use - 3))

def BopQ(st):
    dg = ORD[st][1]
    return (lambda s, t: XA(4*dg + s, t)) if dg < 3 else (lambda s, t: QV(s, t))

def build_R2():
    rg = new_region("R2")
    C.grp = 24
    pend, i6 = w_step(rg, ORD[6][0], False, BopQ(6), None, TS("W6"), TS("W7"), ["W7"])
    pend, i7 = w_step(rg, ORD[7][0], False, BopQ(7), pend, TS("W7"), TS("K0"), ["K0"])
    a0 = rg.n(); b7 = i7["b0"]
    for sp in (0, 1):
        for t in range(3): q_epilogue(rg, sp, t, None, None, min(a0 + 4*t + sp, 20 + (sp*3 + t)*9), muls=True)
    for sp in (2, 3):
        for t in range(3):
            mA, mB = 2*sp - 4, 2*sp - 3
            q_epilogue(rg, sp, t, rg.mf[b7 + 12*mA + 4*t + 3], rg.mf[b7 + 12*mB + 4*t + 3], a0 + 4*t + sp)
    B = lambda i: a0 + 48 + 102*i
    def layout(i):
        order = ["KVKVKVKV", "KKVKVKVV", "KKKVKVVV", "KKKKVVVV"][OPT["b0"] if i == 0 else 0]
        res = []; off = 0; n = {"K": 0, "V": 0}
        for ch in order:
            res.append((ch, n[ch], off)); off += 12 + (2 if (ch == "V" and n[ch] < 3) else 0); n[ch] += 1
        return res
    def puse(i, sg, t): return (B(i) + [o for (k, j, o) in layout(i) if k == "V"][0] + 2*t + sg) if i < 7 else (B(7) + 4*t + sg)
    def so(n): return so_(TS(n)[1:3])
    def rb(n, e, d, after=()): x = TS(n); return rebase(rg, x[0], x[3], x[2], e, d, after)
    for u in range(4):
        buf = C.grp & 1; C.grp += 1; g0 = rg.n()
        if u < 3 or BDW: frag_waits(rg, pend, g0, 2, g0 + 2, only_first=(u == 3))
        k_mfmas(rg, buf, lambda t: OA(u, t))
        softmax(rg, g0, u, lambda t, i: OAr(u, t, i), 0, lambda t: 10**9, lambda t: puse(0, u >> 1, t))
        if u < 3:
            pend = reads_K(rg, so("K0"), u + 1, buf ^ 1, g0 - 1)
            if u == 2: bar = barrier(rg, g0 + 11 + BDW, pend, ["K1", "V0"]); lastK = pend
        else:
            ups = rb("K1", g0 - 12, g0 - 2, lastK)
            pend = reads_K(rg, so("K1"), 0, buf ^ 1, g0 - 1 + BDW, deps=[(bar, 0)], ups=ups)
            upsV = rb("V0", -1, g0)
    for i in range(7):
        b0 = rg.n(); assert b0 == B(i)
        lay = layout(i); usedV = False; tmp = 7
        for n_, (kind, u, off) in enumerate(lay):
            buf = C.grp & 1; C.grp += 1; g0 = rg.n(); assert g0 == b0 + off
            last = n_ == 7
            if kind == "K":
                frag_waits(rg, pend, g0, 2, g0 + 2)
                if lay[n_ + 1][0] == "K":
                    dt = tmp; tmp -= 1
                    vstart = b0 + [o for (k, j, o) in lay if k == "V" and j == dt >> 1][0]
                    Sd = (lambda dt: lambda t: OA(dt, t))(dt); Sr = (lambda dt: lambda t, j: OAr(dt, t, j))(dt)
                    dov = (lambda v, dt: lambda t: v + 6*(dt & 1) + 2*t - 1)(vstart, dt)
                else:
                    Sd = lambda t: R("v", S0 + 4*t, 4); Sr = lambda t, j: f"v{S0 + 4*t + j}"
                    later = [b0 + o for m_, (k, j, o) in enumerate(lay) if k == "K" and j > u and lay[m_ + 1][0] != "K"]
                    nxtK = later[0] if later else (B(i+1) if i < 6 else None)
                    dov = (lambda x: lambda t: x + 4*t - 1)(nxtK) if nxtK else (lambda t: 10**9)
                k_mfmas(rg, buf, Sd)
                softmax(rg, g0, u, Sr, (i + 1) & 1, dov, (lambda u: lambda t: puse(i + 1, u >> 1, t))(u))
            else:
                if not last or BDA: frag_waits(rg, pend, g0, 4, g0 + 6, only_first=last)
                v_mfmas(rg, u, buf, i & 1, i == 0)
                if u < 3: sum_mfmas(rg, u, i & 1, i == 0)
            if not last:
                nk, nu, _ = lay[n_ + 1]
                if nk == "K":
                    pend = reads_K(rg, so(f"K{i+1}"), nu, buf ^ 1, g0 - 1)
                    if nu == 3: lastK = pend
                else:
                    pend, xs = reads_V(rg, so(f"V{i}"), nu, buf ^ 1, g0 - 1, ups=(upsV if nu == 0 else ()), late=(OPT["vlate"] if nu < 3 else 0))
                    if nu == 3: bar = barrier(rg, b0 + 89 + BDA, pend, [f"K{i+2}", f"V{i+1}"] if i < 6 else ["V7"]); lastX = xs
            elif i < 6:
                ups = rb(f"K{i+2}", g0 - 20, g0 - 2, lastK)
                pend = reads_K(rg, so(f"K{i+2}"), 0, buf ^ 1, g0 - 1 + BDA, deps=[(bar, 0)], ups=ups)
                upsV = rb(f"V{i+1}", g0 - 10, g0 + 4, lastX)
            else:
                upsV = rb("V7", g0 - 10, g0 - 2, lastX)
                pend, _ = reads_V(rg, so("V7"), 0, buf ^ 1, g0 - 1 + BDA, late=0, deps=[(bar, 0)], ups=upsV)
    E = rg.n(); assert E == B(7)
    epi = []
    for p in range(4):
        buf = C.grp & 1; C.grp += 1; g0 = rg.n()
        if p == 0: frag_waits(rg, pend, g0, 4, g0 + 2)
        elif p < 3 or BDW: frag_waits(rg, pend, g0, 4, g0 + 6, only_first=(p == 3))
        last = v_mfmas(rg, p, buf, 1, False, tmajor=(p == 0))
        if p == 0:
            rl = []; lr = []
            for t in range(3):
                ls = sum_mfmas(rg, t, 1, False)
                lr.append(rg.F(V(f"v_accvgpr_read_b32 {vRL[t]}, a{240+4*t}", rd=[f"a{240+4*t}"], wr=[vRL[t]], e=ls.gap, sdeps=[(ls, 8)], d=E + 28)))
            mn = rg.F(V(f"v_min3_f32 {vA}, {vRL[0]}, {vRL[1]}, {vRL[2]}", rd=vRL, wr=[vA], deps=[(x, 0) for x in lr], d=E + 30))
            mx = rg.F(V(f"v_max3_f32 {vB}, {vRL[0]}, {vRL[1]}, {vRL[2]}", rd=vRL, wr=[vB], deps=[(x, 0) for x in lr], d=E + 30))
            rg.F(V(f"v_cmp_gt_f32 {sBad}, {sLo}, {vA}", rd=[vA], wr=[sBad], deps=[(mn, 0)], d=E + 40))
            rg.F(V(f"v_cmp_lt_f32 vcc, {sHi}, {vB}", rd=[vB], wr=["vcc"], deps=[(mx, 0)], d=E + 40))
            for t in range(3):
                rl.append(rg.F(V8(f"v_rcp_f32 {vRL[t]}, {vRL[t]}", rd=[vRL[t]], wr=[vRL[t]], deps=[(mn, 0), (mx, 0)], trans=True, d=E + 34)))
        for (dt, t), lm in last.items():
            mul, cvt = o_epilogue_ops(dt, t)
            for o in mul: o.e = lm.gap; o.sdeps = [(lm, 8), (rl[t], 1)]
            for o in mul + cvt:
                o.optional = True
                if dt >= 4 and o in cvt: o.e = 10**9
                rg.F(o); epi.append(o)
        if p < 3:
            pend, xs = reads_V(rg, so("V7"), p + 1, buf ^ 1, g0 - 1 if p != 0 else g0 + 3)
            if p == 2: bar = barrier(rg, g0 + 11 + BDW, pend, ["W0", "Xa", "Xb", "Xc"])
        else:
            ups = rb("W0", -1, g0 - 2, [])
            for o in ups: o.e = a0
            if OPT["nperm"]: ups = ups + [rg.F(V(f"v_mad_i32_i24 {vWb}, {vC}, {sGate}, {vWb}", rd=[vC, vWb], wr=[vWb], e=a0, d=g0 - 4))]
            pend, _ = reads_W(rg, so("W0"), 0, buf ^ 1, g0 - 1 + BDW, deps=[(bar, 0)], ups=ups, rsp=8)
    assert sorted(g + 288 for g in rg.bars) == ringplan.bS[6:] + [ringplan.bQ] + ringplan.bB + [ringplan.bP]
    if OPT["pf3"]:
        g = OPT["pf3"]
        c1 = rg.F(V(f"v_mbcnt_lo_u32_b32 {vA}, -1, 0", wr=[vA], e=g - 30, d=g - 3))
        c2 = rg.F(V(f"v_mbcnt_hi_u32_b32 {vA}, -1, {vA}", rd=[vA], wr=[vA], deps=[(c1, 0)], d=g - 2))
        c3 = rg.F(V(f"v_lshlrev_b32 {vA}, 7, {vA}", rd=[vA], wr=[vA], deps=[(c2, 0)], d=g - 1))
        rg.F(Op(f"buffer_load_dword {vB}, {vA}, s[76:79], s75 offen", "vm", rd=[vA], wr=[vB], deps=[(c3, 1)], e=g, d=g + 5))
    head_dmas(rg, 288, 1200)
    rg.pendW0 = pend; rg.epi = epi
    rg.schedule()
    return rg

def half0_muls(rg, b4):
    for mt in range(4):
        for t in range(3): q_muls(rg, mt, t, rg.mf[b4 + 12*mt + 4*t + 3])

def build_R1(left):
    rg = new_region("R1")
    C.grp = 0
    xa = [rg.F(V(f"v_add_u32 v{S0+s}, {sW1k}, {vK[s]}", rd=[vK[s]], wr=[f"v{S0+s}"], d=6)) for s in range(4)]
    xr = reads_X(rg, lambda sl, s: (f"v{S0+s}", (sl - XB)*16384), [SLOT["Xa"], SLOT["Xb"], SLOT["Xc"]], QV, 4, 9, [(a, 1) for a in xa], step=2)
    pend = None; infos = []
    for st in range(5):
        pend, inf = w_step(rg, ORD[st][0], st in (0, 3), BopQ(st), pend, TS(f"W{st}"), TS(f"W{st+1}"), [f"W{st+1}"], more_reads=(xr if st == 0 else ()))
        infos.append(inf)
    new = {}
    for o in left:
        dt, t = o.ot
        n = V(o.text, rd=list(o.rd), wr=list(o.wr)); n.ot = o.ot; new[id(o)] = n
        n.deps = [(new[id(p)], g) for (p, g) in o.deps if id(p) in new]
        n.e = 8 if dt >= 6 else -1
        n.d = ((12*dt + 4*t) if dt < 4 else (144 + 12*(dt - 4) + 4*t)) - 1
        rg.F(n)
    head_dmas(rg, 0, 240)
    rg.pend = pend
    rg.schedule()
    return rg

def build_R1b(h, zst=None):
    rg = new_region(f"R1b{h}")
    C.grp = 20
    pend, inf = w_step(rg, ORD[5][0], False, BopQ(5), None, TS("W5"), TS("W6"), ["W6"])
    for i in range(48): rg.F(V(f"v_accvgpr_write_b32 a{ZB[h-1] + i}, v{PV0 + i}", rd=[f"v{PV0+i}"], wr=[f"a{ZB[h-1]+i}"]))
    head_dmas(rg, 240, 288)
    next_setup(rg, h)
    rg.pend = pend
    rg.schedule()
    return rg

def next_setup(rg, h):
    T = lambda x, **kw: rg.F(S(x, **kw))
    if h < 3:
        T(f"s_add_u32 {sWcol}, {sWcol}, 256", deps=([(rg.lastw, 1)] if getattr(rg, "lastw", None) else []))
        T(f"s_and_b32 {sWcol}, {sWcol}, 0x3ff")
        for t in NEXT:
            if t[0] == "W":
                for x in wq_t0(sN[NEXT.index(t)], int(t[1])): T(x)
    if h == 2:
        a = T(f"s_lshl_b32 {sTmp}, {sB}, 2")
        if not OPT["bst"]: rg.dbg = rg.F(Op(f"buffer_load_dword {vLane}, off, {srdD}, {sTmp} sc1", "vm", wr=[vLane], deps=[(a, 0)]))
    if h == 3:
        for x in ("s_mov_b32 s16, s80", "s_mov_b32 s17, s81", "s_mov_b32 s18, 0x80000", "s_mov_b32 s20, s80", "s_mov_b32 s21, s81", "s_mov_b32 s22, 0x80000",
                  f"s_mov_b32 {sGate}, 1"): T(x)
        for i in (1, 2, 3): T(f"s_mov_b32 {sD[i]}, {7168*i}"); T(f"s_mov_b32 {sDY[i]}, {7168*i}")
        for m in range(6): T(f"s_add_u32 {sN[m]}, {sRot if m < 4 else sC[0]}, {sH[m & 3]}")
        if OPT["pf3"]:
            for x in ("s_add_u32 s76, s76, L_g3-L_loop", "s_addc_u32 s77, s77, 0", "s_mov_b32 s78, L_codeend-L_g3"): T(x)
        if OPT["tlb"] == 1:
            sw = T(f"s_mov_b32 {sTmp}, {hex(FLAG_BASE + 0x20080)}")
            for srd, so in ((srdW, "0"), (srdWS, "s75"), (srdWS, sTmp), (srdO, sOutR)):
                rg.F(Op(f"buffer_load_dword {vB}, off, {srd}, {so}", "vm", wr=[vB], deps=[(sw, 0)]))
        rg.F(V(f"v_mov_b32 {vDW}, {vDWo}", rd=[vDWo], wr=[vDW])); rg.F(V(f"v_mov_b32 {vDX}, {vDWo}", rd=[vDWo], wr=[vDX]))

def build_R1f():
    X = lambda q: [f"x{q}{a}" for a in range(3)]
    final = [t for t in ISS if ISS[t] < 288 and t[0] in "KV"] + ["W6", "W7"]
    fk = sorted([t for t in final if t[0] in "KV"], key=lambda t: ISS[t]); assert 3 <= len(fk) <= 7
    if OPT["kvlate"] != 4:
        init = X(0) + ["w0"] + X(1) + ["w1", "K0", "K1"]
        inh = list(zip(X(2), X(0))) + [("w2", "w0")] + list(zip(["w3", "x30", "x31"], X(1))) + [("x32", "w1")] + \
              list(zip(["w4", "V0", "w5"], X(2))) + [("K2", "w2"), ("W6", "w3")] + list(zip(["V1", "W7", "K3"], X(3))) + ([("V2", "w4")] if len(fk) == 7 else [])
    else:
        init = X(0) + ["w0"] + X(1) + ["w1", "x20", "x21"]
        inh = list(zip(["x22", "w2", "w3"], X(0))) + [("x30", "w0")] + list(zip(["x31", "x32", "w4"], X(1))) + [("w5", "w1")] + \
              list(zip(["W6", "W7", fk[0]], X(2))) + [(fk[1], "w2"), (fk[2], "w3")] + list(zip(fk[3:], X(3) + ["w4"]))
    sl = {t: SLOT[t] for t in final}
    for new, old in reversed(inh):
        if new in sl: sl[old] = sl[new]
    free = [x for x in range(10) if x not in {sl[t] for t in init if t in sl}]
    for t in init:
        if t not in sl: sl[t] = free.pop()
    for new, old in inh: sl[new] = sl[old]
    def spec(t):
        if t[0] == "x": return ("X", int(t[2]), int(t[1]))
        if t[0] in "wW": return ("W", int(t[1]))
        return (t[0],)
    wsl = [sl[f"w{j}"] for j in range(6)] + [SLOT["W6"]]
    wb = [min(x, 6) for x in wsl[:6]] + [BASE["W6"]]
    rg = new_region("R1f")
    C.grp = 0
    xaddr = lambda s_, s: (f"v{S0 + 4*(s_ >> 2) + s}", (s_ & 3)*16384)
    dst = {0: (1, lambda s, t: XA(4 + s, t)), 1: (2, lambda s, t: XA(8 + s, t)), 3: (3, QV)}
    pend = None; infos = []; xw = None
    for st in range(6):
        post = None; need = [f"w{st+1}" if st < 5 else "W6"]
        if st in dst:
            q, fn = dst[st]; need += X(q)
            post = (lambda q, fn: lambda g0, bar: reads_X(rg, xaddr, [sl[t] for t in X(q)], fn, g0 + 2 + BDW, g0 + 5 + BDW, [(bar, 0)]))(q, fn)
        pend, inf = w_step(rg, ORD[st][0], st in (0, 3), BopQ(st), pend, ("W", wsl[st], wb[st]), ("W", wsl[st+1], wb[st+1], wb[st]), need, xwait=xw, post=post)
        xw = inf.get("post"); infos.append(inf)
    rel = {"w%d" % j: infos[j]["bar"] for j in range(6)}
    for q, st in ((1, 1), (2, 2), (3, 4)):
        for t in X(q): rel[t] = infos[st]["xbar"]
    items = []; tcur = 0
    if OPT["kvlate"] != 4:
        seq = [(t, None) for t in ("x20", "x21", "x22")] + inh[3:]
        kp = {0: (3, 4), 1: (8, 9), 2: (4, 9), 3: (9, 12), 5: (0, 5), 6: (3, 7), 7: (3, 4)}[OPT["kvlate"]]
        seq.insert(kp[0], ("K0", None)); seq.insert(kp[1], ("K1", None))
    else: seq = [(t, None) for t in ("x20", "x21", "x22", "w2", "w3")] + inh[3:]
    for new, old in seq:
        if old: tcur = max(tcur, rel[old].e)
        if OPT["kvlate"] >= 5 and new == "K3": tcur = max(tcur, 255)
        sp = OPT["fsp"] if (new[0] not in "KV" or OPT["kvlate"] != 4) else OPT["fkv"]
        cnt = sum(1 for x in TIMES[new] if x < 288) if new in TIMES else 4
        if OPT["kvlate"] == 7 and new[0] in "KV":
            t0, sp = {"K0": (18, 11), "K1": (62, 11), "V0": (112, 9), "K2": (150, 11), "V1": (206, 8), "K3": (240, 9), "V2": (278, 2)}[new]
            items.append((new, spec(new), sl[new], t0, [(i, t0 + sp*i) for i in range(cnt)], rel[old] if old else None)); continue
        items.append((new, spec(new), sl[new], tcur, [(i, tcur + sp*i) for i in range(cnt)], rel[old] if old else None)); tcur += 4*sp + (1 if sp == OPT["fsp"] else OPT["fgap"])
    add_dmas(rg, items)
    next_setup(rg, 0)
    rg.pend = pend
    rg.schedule()
    rg.init = [(t, spec(t), sl[t]) for t in init[:8]]; rg.wb0 = wb[0]; rg.wso0 = (wsl[0] - wb[0])*16384
    rg.x0 = [xaddr(sl[t], 0) for t in X(0)]; rg.xsl0 = [sl[t] for t in X(0)]; rg.xaddr = xaddr
    return rg

RLD = [[R("v", QV0 + 4*g, 4) for g in range(8)],
       [R("v", QV0 + 32 + 4*g, 4) for g in range(4)] + [R("v", S0 + 4*g, 4) for g in range(3)] + ["v[236:239]"]]
vTo = vLane if not OPT['bst'] else 'v235'
vSt, vFl, vPo, vPr, vOut = vDK, vDV, vVb, vDX, vC
LAG = OPT['lag']; OSC = ['', ' sc1', ' nt', ' sc0 sc1'][OPT['osc']]
NTST = ' nt' if OPT['ntst'] else ''
LO = ["v249", "v250", "v251", "v253"]
def pack_store(chunk):
    res = []
    for t in range(3):
        for np_ in range(2):
            a, b = 4*chunk + 2*np_, 4*chunk + 2*np_ + 1
            src = [(OAr(a,t,0), OAr(a,t,1)), (OAr(a,t,2), OAr(a,t,3)), (OAr(b,t,0), OAr(b,t,1)), (OAr(b,t,2), OAr(b,t,3))]
            cv = []
            for j in range(4):
                cv.append(V(f"v_cvt_pk_bf16_f32 {OAr(a,t,j)}, {src[j][0]}, {src[j][1]}", rd=list(src[j]), wr=[OAr(a,t,j)], deps=([(cv[-1], 0)] if cv else [])))
            k = 2*t + np_
            sa = S(f"s_add_u32 {sU[k & 1]}, {sSt}, {k*8192}", wr=[sU[k & 1]])
            st = Op(f"buffer_store_dwordx4 {OA(a,t)}, {vSt}, {srdWS}, {sU[k & 1]} offen@SC", "vm", rd=[OA(a,t), vSt], deps=[(cv[-1], 1), (sa, 0)])
            res.append((cv, sa, st))
    return res
def reduce_ops(set_):
    X = [regs(r_) for r_ in RLD[set_]]
    tmp = [vA, vB]; ops = []; n = 0
    for k in range(4):
        ops += [V(f"v_lshlrev_b32 {LO[k]}, 16, {X[0][k]}", rd=[X[0][k]], wr=[LO[k]]),
                V(f"v_and_b32 {X[0][k]}, {sMask}, {X[0][k]}", rd=[X[0][k]], wr=[X[0][k]])]
        for g in range(1, 8):
            tm = tmp[n & 1]; n += 1
            ops += [V(f"v_lshlrev_b32 {tm}, 16, {X[g][k]}", rd=[X[g][k]], wr=[tm]),
                    V(f"v_and_b32 {X[g][k]}, {sMask}, {X[g][k]}", rd=[X[g][k]], wr=[X[g][k]]),
                    V(f"v_add_f32 {LO[k]}, {LO[k]}, {tm}", rd=[LO[k], tm], wr=[LO[k]]),
                    V(f"v_add_f32 {X[0][k]}, {X[0][k]}, {X[g][k]}", rd=[X[0][k], X[g][k]], wr=[X[0][k]])]
        ops.append(V(f"v_cvt_pk_bf16_f32 {X[0][k]}, {LO[k]}, {X[0][k]}", rd=[LO[k], X[0][k]], wr=[X[0][k]]))
    for a, b in zip(ops, ops[1:]): b.deps.append((a, 0))
    pl = []
    for j in range(2):
        pl.append(V8(f"v_permlane32_swap_b32 {X[0][j]}, {X[0][2+j]}", rd=[X[0][j], X[0][2+j]], wr=[X[0][j], X[0][2+j]], sdeps=[(ops[-1], 2)]))
    for j in range(2):
        pl.append(V8(f"v_permlane16_swap_b32 {X[0][j]}, {X[0][2+j]}", rd=[X[0][j], X[0][2+j]], wr=[X[0][j], X[0][2+j]], sdeps=[(pl[j], 2)]))
    st = Op(f"buffer_store_dwordx4 {RLD[set_][0]}, {vOut}, {srdO}, {sOut} offen{OSC}", "vm", rd=[RLD[set_][0], vOut, sOut], deps=[(pl[2], 1), (pl[3], 1)])
    return ops, pl, st
def red_loads(set_):
    return [Op(f"buffer_load_dwordx4 {RLD[set_][g]}, {vSt}, {srdWS}, {sLd if g < 4 else sLd2} offen offset:{(g & 3)*1024} sc1", "vm",
               rd=[vSt], wr=[RLD[set_][g]]) for g in range(8)]
def sig_ops():
    return [Op(f"buffer_store_dword {vSt}, {vFl}, {srdWS}, {sSig} offen@SC", "vm", rd=[vSt, vFl])]
def scal_A():
    return [f"s_sub_u32 {sTmp}, {sIt}, 1", f"s_and_b32 {sTmp}, {sTmp}, {sSlM}", f"s_mul_i32 {sTmp}, {sTmp}, {CHUNK}",
            f"s_add_u32 {sSt}, {sStR}, {sTmp}", f"s_add_u32 {sLd}, {sLdR}, {sTmp}", f"s_add_u32 {sLd2}, {sLd}, 0x1000",
            f"s_add_u32 {sSig}, {sSig}, 256"]
def scal_B():
    return [f"s_add_u32 {sOut}, {sOutR}, {sOc}", f"s_add_u32 {sOc}, {sOc}, 128", f"s_and_b32 {sOc}, {sOc}, 0x3ff", f"s_add_u32 {sIt}, {sIt}, 1"]

def build_G(first=False, left=()):
    rg = new_region("G0" if first else "G"); L = "F" if first else ""
    used = [SLOT[t] for t in NEXT]
    gs = used + [SLOT["K0"]] + [x for x in range(10) if x not in used and x not in (SLOT["K0"], SLOT["K1"], SLOT["V0"])][:1]
    assert len(gs) == 8
    gb = ringplan.bases(gs, BASE["W0"])[1]
    items = []; bars = {}; st_last = {}; rg.touch = []
    C.grp = 0
    def Bop(h): return (lambda s, t: ZA(h, s, t)) if h < 3 else (lambda s, t: OP(s, t))
    LD = [red_loads(0), red_loads(1)] if first else G_LD
    pend = None; prev_users = []
    if first:
        new = {}
        for o in left:
            dt, t = o.ot
            n = V(o.text, rd=list(o.rd), wr=list(o.wr)); new[id(o)] = n
            n.deps = [(new[id(p)], g) for (p, g) in o.deps if id(p) in new]
            n.e = 8 if dt >= 6 else -1
            n.d = (12*dt + 4*t - 1) if dt < 4 else (144 + 4*t + (dt >> 1) - 3)
            rg.F(n)
        cs = []
        for x in f"""v_mbcnt_lo_u32_b32 {vA}, -1, 0
v_mbcnt_hi_u32_b32 {vA}, -1, {vA}
v_lshlrev_b32 {vSt}, 4, {vA}
v_and_b32 {vPo}, 7, {vA}
v_lshlrev_b32 {vPo}, 2, {vPo}
v_lshrrev_b32 {vB}, 4, {vA}
v_bfe_u32 {vOut}, {vA}, 2, 2
v_and_b32 {vA}, 3, {vA}
v_lshl_add_u32 {vA}, {vOut}, 4, {vA}
v_lshlrev_b32 {vA}, 10, {vA}
v_lshl_add_u32 {vOut}, {vB}, 4, {vA}
v_mov_b32 {vFl}, {hex(OOB)}""".split("\n"):
            cs.append(rg.F(V(x, e=(0 if len(cs) < 3 else 40), d=110, deps=[(cs[-1], 0)] if cs else [])))
        sc = [rg.F(S(x)) for x in (f"s_lshl_b32 s5, {sG}, 2", f"s_cmp_eq_u32 {sWave}, 0", f"s_cselect_b32 s5, s5, {hex(OOB)}", f"s_mov_b32 {sMask}, 0xffff0000",
                                   f"s_mov_b32 {sLd}, {sLdR}", f"s_add_u32 {sLd2}, {sLd}, 0x1000", f"s_mov_b32 {sSig}, {sFlR}", f"s_mov_b32 {sExp}, 16")]
        wl = rg.F(V(f"v_writelane_b32 {vFl}, s5, 1", deps=[(cs[-1], 0), (sc[2], 0)], d=120))
        prev = None
        for k in range(2):
            if k: a1 = rg.F(S(f"s_add_u32 {sLd}, {sLd}, {CHUNK}", deps=[(prev, 1)])); a2 = rg.F(S(f"s_add_u32 {sLd2}, {sLd}, 0x1000"))
            for i, o in enumerate(red_loads(k)):
                o.text = o.text.replace(" sc1", ""); o.tag = "touch"
                o.e = (OPT["gdma"] + 84 if k else 8) + 4*i; o.d = o.e + 3
                o.deps = [(cs[2], 1), ((a2 if k else sc[5]), 0)] + ([(prev, 1)] if prev else []); rg.F(o); prev = o; rg.touch.append(o)
        last0 = prev
        f = 48; prevm = None
        seq = [(f"v_lshrrev_b32 v{f}, 4, {vSt}", 0), (f"v_lshrrev_b32 v{f+1}, 4, v{f}", 0), (f"v_and_b32 v{f+2}, 1, v{f}", 0), (f"v_lshlrev_b32 v{f+2}, 4, v{f+2}", 0),
               (f"v_mov_b32 v{f+3}, 0x3f80", 0), (f"v_lshlrev_b32 v{f+2}, v{f+2}, v{f+3}", 0), (f"v_bfe_u32 v{f+3}, v{f}, 1, 1", 0), (f"v_bfe_u32 v{f+4}, v{f}, 3, 1", 0),
               (f"v_lshl_add_u32 v{f+3}, v{f+4}, 1, v{f+3}", 0), (f"v_bfe_u32 v{f+4}, v{f}, 2, 1", 0), (f"v_lshlrev_b32 v{f+4}, 1, v{f+4}", 0), (f"v_add_u32 v{f+5}, 1, v{f+4}", 0),
               (f"v_cmp_eq_u32 vcc, v{f+1}, v{f+4}", 0), (f"v_cmp_eq_u32 {sBad}, v{f+1}, v{f+5}", 0),
               (f"v_cndmask_b32 v{f+6}, 0, v{f+2}, vcc", 2), (f"v_cndmask_b32 v{f+7}, 0, v{f+2}, {sBad}", 0)]
        for r_ in range(4):
            seq += [(f"v_cmp_eq_u32 vcc, {r_}, v{f+3}", 0), (f"v_cndmask_b32 v{f}, 0, v{f+6}, vcc", 2), (f"v_cndmask_b32 v{f+1}, 0, v{f+7}, vcc", 0),
                    (f"v_accvgpr_write_b32 a{48+r_}, v{f}", 0), (f"v_accvgpr_write_b32 a{52+r_}, v{f+1}", 0)]
        for x, n_ in seq:
            prevm = rg.F(V(x, rd=[f"v[{f}:{f+7}]"], wr=[f"v[{f}:{f+7}]"], e=152, d=188, deps=([(prevm, 0)] if prevm else []), sdeps=([(prevm, n_)] if n_ else [])))
    for hf in range(2):
        h0 = 192*hf
        do_st = not (first and hf == 0); do_sum = not first
        stores = []
        if do_st:
            for (cv, sa, st) in pack_store(1 - hf):
                for o in cv: o.e = h0 + 8; rg.F(o)
                if len(stores) >= 2: sa.deps.append((stores[-2], 1))
                rg.F(sa); st.e = h0 + 10 + OPT['gst']*len(stores); st.d = st.e + 3; rg.F(st); stores.append(st)
        if do_sum:
            sc = [rg.F(S(x, e=h0, deps=[(u, 1) for u in prev_users])) for x in scal_B()]
            if hf == 0: sB0 = sc[-1]
            cur = hf ^ 1
            w0 = rg.F(WAIT(h0 + OPT['gsum'], need_vm=LD[cur] + (G_LD0 if hf == 0 else []), late=1)); w0.e = h0 + OPT['gsum']
            o0, p0, s0_ = reduce_ops(cur)
            o0[0].deps.append((w0, 0))
            for o in o0 + p0 + [s0_]: rg.F(o)
            s0_.d = h0 + OPT['gout']; s0_.deps += [(sc[0], 0), (LD[hf][-1], 1)]
            prev_users = [s0_]
        infos = []
        for j in range(4):
            st = 4*hf + j
            n1 = (st + 1) & 7
            pend, inf = w_step(rg, hf, j == 0, Bop(j), pend, ("W", gs[st], gb[st]), ("W", gs[n1], gb[n1], gb[st]), [f"G{n1}"] + ([f"G{(st + 2) & 7}"] if OPT["gb2"] else []),
                               extra=(stores if j == 1 else ()), nobar=(OPT["gb2"] and not (j & 1)))
            infos.append(inf); bars[st] = inf["bar"]
            if OPT["gb2"] and (j & 1): bars[st - 1] = inf["bar"]
        if do_st:
            sig, = sig_ops(); bs = infos[1]["bar"]
            sig.deps = [(bs, 0)]; sig.d = bs.e + 1; rg.F(sig)
            rg.F(S(f"s_load_dwordx8 s[8:15], s[82:83], {sSig}", e=h0 + OPT['gpoll'], d=h0 + OPT['gpoll'] + 4))
            b2 = infos[2]["bar"]
            if b2 is None:
                b2 = rg.F(WAIT(h0 + 132, lg0=True, late=1)); b2.e = h0 + 132
            for x in ("s_and_b32 s8, s8, s9", "s_and_b32 s10, s10, s11", "s_and_b32 s12, s12, s13", "s_and_b32 s14, s14, s15",
                      "s_and_b32 s8, s8, s10", "s_and_b32 s12, s12, s14", "s_and_b32 s8, s8, s12", "s_bitcmp0_b32 s8, 4"): rg.F(S(x, deps=[(b2, 0)]))
            br = rg.F(Op(f"s_cbranch_scc1 L_spinG{hf}{L}@L\nL_backG{hf}{L}@L:", "s", d=b2.e + 12))
            prev = None
            for i, o in enumerate(LD[hf]):
                o.deps += [(br, 0)] + ([(prev, 1)] if prev else []); o.e = b2.e + 10 + OPT['gld']*i; o.d = o.e + 3; rg.F(o); prev = o
            lastld = LD[hf][-1]
        else: lastld = last0
        if first: rg.F(S(f"s_mov_b32 {sIt}, {hf + 1}", deps=[(lastld, 1)]))
        for i, x in enumerate(scal_A()): rg.F(S(x, deps=[(lastld, 1)] if i == 0 else []))
        for k in range(4):
            st = (4*hf - 2 + k) & 7
            items.append((f"G{st}", ("C", (1 + (st >> 2)) if (hf or k > 1) else 0, st & 3), gs[st], h0 + OPT["gdma"] + k*(4*OPT["gdsp"] + 1) + (4 if (OPT["gb2"] and k > 1) else 0), OPT["gdsp"],
                          bars[st] if (hf or k > 1) else None))
        if stores: st_last[hf] = stores[-1]
    add_dmas(rg, items)
    if not first:
        c1 = S(f"s_cmp_ge_u32 {sIt}, 7", deps=[(TILE["G7"][-1], 1)]); c2 = S("s_cselect_b32 s18, 0, s18", wr=["s18"], rd=["s18"])
        pos = rg.fill.index(sB0) + 1
        rg.fill[pos:pos] = [c1, c2]
        for i, o in enumerate(rg.fill): o.seq = i + 1
        rg.first_dma["G0"].deps.append((c2, 0))
        rg.first_dma["G6"].deps.append((st_last[0], 1))
    rg.first_dma["G2"].deps.append((st_last[1], 1))
    rg.LD = LD; rg.pend = pend
    rg.schedule()
    return rg

def stamp(kind=0):
    if not OPT["stamps"]: return []
    def put(x): return lin(f"v_mov_b32 {vA}, {x}") + [Op(f"buffer_store_dword {vA}, off, {srdWS}, s101", "vm")] + lin("s_add_u32 s101, s101, 4\ns_nop 1")
    if kind == 1: return put("s94") + put("s92") + ((lin("s_waitcnt lgkmcnt(0)") + put("s84") + put("s92") + put("s86") + put("s92")) if OPT["stamps"] == 4 else []) + stamp()
    if kind == 2: return lin("s_waitcnt vmcnt(0)") + stamp()
    return lin("s_memtime s[2:3]\ns_memrealtime s[4:5]\ns_waitcnt lgkmcnt(0)") + put("s2") + put("s4")

def code_pf(lbl, start, end, mask, r):
    if not OPT["pf"]: return []
    return lin(f"""s_getpc_b64 s[{r}:{r+1}]
{lbl}:
s_add_u32 s{r}, s{r}, {start}-{lbl}
s_addc_u32 s{r+1}, s{r+1}, {"-1" if start == KN else "0"}
s_mov_b32 s{r+2}, {end}-{start}
s_mov_b32 s{r+3}, 0x20000
s_lshl_b32 s5, {sIdx}, 2
s_add_u32 s5, s5, {sWave}
s_and_b32 s5, s5, {mask}
s_lshl_b32 s5, s5, 13
v_mbcnt_lo_u32_b32 {vA}, -1, 0
v_mbcnt_hi_u32_b32 {vA}, -1, {vA}
v_lshlrev_b32 {vA}, 7, {vA}""") + [Op(f"buffer_load_dword {vB}, {vA}, s[{r}:{r+3}], s5 offen", "vm")]

HROT = {0: "s_mov_b32 s5, 0", 1: "s_mov_b32 s5, s4", 2: f"s_mov_b32 s5, {sG}", 3: f"s_add_u32 s5, s4, {sG}", 4: f"s_lshr_b32 s5, {sG}, 1",
        5: f"s_lshr_b32 s5, {sB}, 3", 6: f"s_lshr_b32 s5, {sG}, 2\ns_lshl_b32 s3, {sG}, 1\ns_or_b32 s5, s5, s3", 7: f"s_sub_u32 s5, 0, {sG}", 8: f"s_lshl_b32 s5, {sG}, 2", 9: f"s_lshl_b32 s5, s4, 2"}[OPT["hrot"]]
if OPT["krot"] < 3:
    KROT = f"""{f"s_add_u32 s4, {sB}, {sG}" if OPT["krot"] == 2 else ""}
s_and_b32 s4, s4, {3 if OPT["krot"] else 0}
s_lshl_b32 {sDg[0]}, s4, 20
s_add_u32 {sDg[1]}, {sDg[0]}, 0x100000
s_and_b32 {sDg[1]}, {sDg[1]}, 0x3fffff
s_xor_b32 {sDg[2]}, {sDg[0]}, 0x200000
s_xor_b32 {sDg[3]}, {sDg[1]}, 0x200000"""
else:
    KROT = f"""s_add_u32 s5, {sB}, {sG}
s_mul_i32 s3, s5, 43
s_lshr_b32 s3, s3, 7
s_mul_i32 s3, s3, 3
s_sub_u32 s5, s5, s3
s_add_u32 {sDg[3]}, s4, 3
s_add_u32 {sDg[0]}, s4, s5
s_cmp_eq_u32 s5, 2
s_cselect_b32 s3, -2, 1
s_add_u32 {sDg[1]}, {sDg[0]}, s3
s_cmp_eq_u32 s5, 0
s_cselect_b32 s3, 2, -1
s_add_u32 {sDg[2]}, {sDg[0]}, s3""" + "".join(f"\ns_and_b32 {sDg[q]}, {sDg[q]}, 3\ns_lshl_b32 {sDg[q]}, {sDg[q]}, 20" for q in range(4))
def prologue(F):
    init = F.init
    o = lin(f"""
s_cmp_lt_u32 s2, 256
s_cbranch_scc1 L_go
s_endpgm
L_go:
{"s_memrealtime s[92:93]" if (OPT["stamps"] or OPT["dbl"]) else ""}
{"s_memtime s[94:95]" if OPT["stamps"] else ""}
s_load_dwordx16 s[68:83], s[0:1], 0
v_lshrrev_b32 v1, 6, v0
v_and_b32 {vLane}, 63, v0
s_and_b32 s4, s2, 7
v_readfirstlane_b32 {sWave}, v1
s_lshr_b32 s5, s2, 3
s_mov_b32 {sIdx}, s5""")
    mp = {84: (1, 3, 2, 1, 2, 3), 48: (0, 2, 3, 0, 3, 7), 162: (2, 4, 1, 3, 1, 1)}[OPT["mapping"]]
    o += lin(f"""
s_lshr_b32 s6, s4, {mp[0]}
s_lshl_b32 s6, s6, {mp[1]}
s_lshr_b32 s7, s5, {mp[2]}
s_add_u32 {sB}, s6, s7
s_and_b32 s6, s4, {mp[3]}
s_lshl_b32 s6, s6, {mp[4]}
s_and_b32 s7, s5, {mp[5]}
s_add_u32 {sG}, s6, s7""")
    cbits = struct.unpack("<I", struct.pack("<f", math.log2(math.e)/math.sqrt(128)))[0]
    o += lin(f"""
s_lshl_b32 {sW4k}, {sWave}, 12
v_lshrrev_b32 v5, 4, {vLane}
v_and_b32 v6, 15, {vLane}
s_lshl_b32 s6, {sWave}, 4
v_add_u32 v1, s6, v5
s_lshl_b32 s6, {sWave}, 2
v_or_b32 v2, s6, v5
v_xor_b32 v2, v2, v6
v_lshlrev_b32 v2, 4, v2
v_lshl_add_u32 {vDX}, v1, 10, v2
v_lshl_add_u32 {vDK}, v1, 8, v2
v_lshrrev_b32 v7, 5, {vLane}
v_bfe_u32 v2, {vLane}, 3, 2
v_lshl_add_u32 v7, v7, 3, v2
s_lshl_b32 s6, {sWave}, 5
v_add_u32 v7, s6, v7
v_and_b32 v3, 7, {vLane}
v_lshlrev_b32 v4, 1, v5
v_xor_b32 v3, v3, v4
v_lshlrev_b32 v3, 4, v3
s_mov_b32 {sDY[1]}, 3072
s_mov_b32 {sDY[2]}, 6144
s_mov_b32 {sDY[3]}, 9216
s_mov_b32 {sD[1]}, {16*8192 - 1024}
s_mov_b32 {sD[2]}, {4*8192 - 2048}
s_mov_b32 {sD[3]}, {20*8192 - 3072}
s_lshr_b32 s4, {sB}, 2
{HROT}
s_bfe_u32 {sSw}, s5, {"0x10002" if OPT["hswap"] else "0x00002"}
s_and_b32 s5, s5, {3 if OPT["hrot"] else 0}
s_mov_b32 {sHr}, s5
s_lshl_b32 {sWcol}, s5, 8
s_lshl_b32 {sSw}, {sSw}, 7
s_or_b32 {sWcol}, {sWcol}, {sSw}
s_lshr_b32 {sSw}, {sSw}, 1
v_xor_b32 v7, {sSw}, v7
v_lshl_add_u32 {vDW}, v7, 13, v3
s_lshl_b32 {sKoff}, s5, 17
s_mov_b32 {sVoff}, {sKoff}
{KROT}
s_mul_i32 s7, {sB}, {0 if OPT["samex"] else 196608}
s_mov_b32 s22, 196608
s_mov_b32 s23, 0x20000
s_mov_b32 s19, 0x20000
s_lshl_b32 s4, {sG}, 10
{"s_mov_b32 s4, 0" if OPT["samew"] else ""}
s_sub_u32 s18, 0x400000, s4
s_waitcnt lgkmcnt(0)
s_add_u32 s20, s68, s7
s_addc_u32 s21, s69, 0
s_add_u32 s16, s74, s4
s_addc_u32 s17, s75, 0""")
    if OPT["tch"]:
        o += lin(f"""v_lshrrev_b32 v8, 1, {vLane}
v_and_b32 v9, 1, {vLane}
v_lshlrev_b32 v9, 7, v9
v_lshl_add_u32 v11, v8, 13, v9
v_lshl_add_u32 v8, v8, 10, v9
v_mov_b32 v10, {hex(OOB)}
v_cmp_gt_u32 vcc, 12, {vLane}
s_lshl_b32 s4, {sG}, 2
s_add_u32 s4, s4, {sWave}
s_mul_i32 s4, s4, 6144
v_cndmask_b32 v8, v10, v8, vcc
v_cmp_gt_u32 vcc, 16, {vLane}
s_and_b32 s5, {sB}, 3
s_lshl_b32 s5, s5, 2
s_add_u32 s5, s5, {sWave}
s_lshl_b32 s5, s5, 16
s_add_u32 s5, s5, {sWcol}
v_cndmask_b32 v11, v10, v11, vcc
v_add_u32 v8, s4, v8
v_add_u32 v11, s5, v11""")
        for q in range(OPT["tch"] - 1, 4):
            o += lin(f"s_lshr_b32 s3, {sDg[q]}, 12")
            o += [Op(f"buffer_load_dword {vB}, v8, {srdX}, s3 offen", "vm"), Op(f"buffer_load_dword {vB}, v11, {srdW}, {sDg[q]} offen", "vm")]
    if OPT["stamps"] == 4: o += lin("s_memtime s[84:85]")
    for j in range(4): o += dma_linear(*init[j])
    if OPT["stamps"] == 4: o += lin("s_memtime s[86:87]")
    o += lin(f"""s_lshl_b32 s3, {sB}, 22
s_lshl_b32 s7, {sG}, 19
s_add_u32 s3, s3, s7
{"s_mov_b32 s3, 0" if OPT["samekv"] else ""}
s_add_u32 s8, s70, s3
s_addc_u32 s9, s71, 0
s_mov_b32 s10, 0x80000
s_mov_b32 s11, 0x20000
s_add_u32 s12, s72, s3
s_addc_u32 s13, s73, 0
s_mov_b32 s14, 0x80000
s_mov_b32 s15, 0x20000
""")
    if OPT["tlb"]:
        o += [Op(f"buffer_load_dword {vB}, off, {srdK}, 0", "vm"), Op(f"buffer_load_dword {vB}, off, {srdV}, 0", "vm")]
        o += [Op(f"buffer_load_dword {vB}, off, {srdW}, {sDg[q]}", "vm") for q in (1, 2, 3)]
    o += code_pf("L_pc", KN, "L_g3", OPT["pf"] - 1, 88)
    o += lin(f"""
v_lshrrev_b32 v7, 3, {vLane}
v_add_u32 v7, s6, v7
v_lshl_add_u32 {vDWo}, v7, 10, v3
s_and_b32 s6, {sWave}, 1
s_lshl_b32 s6, s6, 2
v_or_b32 v2, s6, v5
v_lshlrev_b32 v2, 1, v2
v_xor_b32 v2, v2, v6
v_lshlrev_b32 v1, 8, v1
v_lshl_add_u32 {vDV}, v2, 4, v1
s_mov_b32 s24, s82
s_mov_b32 s25, s83
s_mov_b32 s26, {hex(WS_BYTES)}
s_mov_b32 s27, 0x20000
v_lshrrev_b32 v1, 3, {vLane}
v_and_b32 v2, 7, {vLane}
v_lshlrev_b32 v1, 8, v1
v_lshl_add_u32 v8, v2, 2, v1
s_lshl_b32 s6, {sB}, 11
s_add_u32 s6, s6, {hex(FLAG_BASE)}
s_or_b32 s7, {sG}, {sWave}
s_cmp_eq_u32 s7, 0
s_cselect_b32 {sTmp}, s6, {hex(OOB)}
v_mov_b32 v9, 0""")
    zst = Op(f"buffer_store_dword v9, v8, {srdWS}, {sTmp} offen sc1", "vm"); o.append(zst)

    o += lin(f"""
s_mov_b32 {sScale}, {hex(cbits)}
s_mov_b32 {sLo}, 0x30800000
s_mov_b32 {sHi}, 0x4e800000
s_mov_b32 {sHead}, 0
s_lshl_b32 {sW1k}, {sWave}, 10
s_mov_b32 s28, s78
s_mov_b32 s29, s79
s_mov_b32 s30, 0x600000
s_mov_b32 s31, 0x20000
s_mov_b32 s32, s80
s_mov_b32 s33, s81
s_mov_b32 s34, 0x100
s_mov_b32 s35, 0x20000

v_lshrrev_b32 v1, 2, v6
v_and_b32 v2, 3, v6
v_lshl_add_u32 v3, v1, 4, v2
v_lshlrev_b32 v3, 8, v3""")
    for s in range(4):
        o += lin(f"s_and_b32 s3, {sWcol}, 128\nv_add_u32 v4, {4*s}, v5\nv_xor_b32 v4, v4, v6\nv_lshl_add_u32 {vK[s]}, v4, 4, v3\nv_xor_b32 {vK[s]}, s3, {vK[s]}")
    o += lin(f"""
v_lshl_add_u32 v3, v5, 4, v1
v_lshlrev_b32 v3, 8, v3
v_and_b32 v4, 1, v5
v_lshl_add_u32 v7, v4, 2, v1
v_lshl_add_u32 v3, v7, 5, v3
v_lshl_add_u32 v3, v2, 3, v3
v_add_u32 {vVb}, {BASE["V7"]*16384}, v3
v_lshl_add_u32 v3, v5, 2, v1
v_lshlrev_b32 v3, 7, v3
v_lshrrev_b32 v7, 1, v1
v_lshl_add_u32 v7, v4, 1, v7
{"v_lshlrev_b32 v7, 1, v7" if OPT["nperm"] else "v_lshl_add_u32 v3, v7, 5, v3"}
{"v_xor_b32 v7, v7, v2" if OPT["nperm"] else ""}
{"v_lshl_add_u32 v7, v7, 4, v3" if OPT["nperm"] else "v_lshl_add_u32 v7, v2, 3, v3"}
v_add_u32 {vWb}, {F.wb0*16384}, v7
v_mov_b32 v3, 0x3f803f80
v_accvgpr_write_b32 a252, v3
v_accvgpr_write_b32 a253, v3
v_accvgpr_write_b32 a254, v3
v_accvgpr_write_b32 a255, v3
""")
    for s in range(4):
        o += lin(f"v_add_u32 v{S0+s}, {sW1k}, {vK[s]}\nv_add_u32 v{S0+4+s}, 0x10000, v{S0+s}\nv_add_u32 v{S0+8+s}, 0x20000, v{S0+s}\nv_add_u32 {vK[s]}, {BASE['K7']*16384}, {vK[s]}")
    o += lin(f"s_add_u32 {sW1k}, {sW1k}, {lit((XB - BASE['K7'])*16384)}")
    for j in range(4, 8): o += dma_linear(*init[j])
    o += lin(f"""s_lshl_b32 s6, {sG}, 19
s_add_u32 s80, s76, s6
s_addc_u32 s81, s77, 0
s_mov_b32 {sGate}, 0
s_lshl_b32 {sH[0]}, {sHr}, 17
s_add_u32 {sH[1]}, {sH[0]}, 0x20000
s_and_b32 {sH[1]}, {sH[1]}, 0x7ffff
s_xor_b32 {sH[2]}, {sH[0]}, 0x40000
s_xor_b32 {sH[3]}, {sH[1]}, 0x40000
{"s_mov_b32 s73, s92" if OPT["dbl"] else ""}
s_getreg_b32 {sXcc}, hwreg(HW_REG_XCC_ID, 0, 3)
s_lshr_b32 {sRot}, {sB}, 2
s_and_b32 {sRot}, {sRot}, {7 if OPT["rot"] else 0}
s_lshl_b32 {sRot}, {sRot}, 7
s_lshl_b32 {sXcc}, {sXcc}, 2
s_lshl_b32 {sXcc}, 1, {sXcc}""" + "".join(f"\ns_add_u32 {sC[i]}, {sRot}, {128*(i+1)}\ns_and_b32 {sC[i]}, {sC[i]}, 0x3ff" for i in range(3))
      + "".join("\n" + "\n".join(x_t0(sN[NEXT.index('X' + 'abc'[a])], a, 3)) for a in range(3)) + f"""
s_mul_i32 s6, {sB}, {8*CHUNK + 4096}
s_mov_b32 s75, s6
s_add_u32 s6, s6, 4096
s_mul_i32 s7, {sWave}, 49152
s_add_u32 {sStR}, s6, s7
s_lshl_b32 s7, {sG}, 10
s_add_u32 {sStR}, {sStR}, s7
s_mul_i32 s7, {sG}, 3
s_add_u32 s7, s7, {sWave}
s_lshl_b32 s4, s7, 13
s_add_u32 {sLdR}, s6, s4
s_lshl_b32 {sFlR}, {sB}, 11
s_add_u32 {sFlR}, {sFlR}, {hex(FLAG_BASE - 256)}
s_lshr_b32 s4, s7, 1
s_mul_i32 s5, s4, 11
s_lshr_b32 s5, s5, 5
s_mul_i32 s3, s5, 3
s_sub_u32 s4, s4, s3
s_lshl_b32 s4, s4, 6
s_lshl_b32 s5, s5, 2
s_add_u32 s4, s4, s5
s_mul_i32 s5, {sB}, 192
s_add_u32 s4, s4, s5
s_lshl_b32 s4, s4, 10
s_and_b32 s5, s7, 1
s_lshl_b32 s5, s5, 6
s_add_u32 {sOutR}, s4, s5
s_mov_b32 {sOc}, {sRot}
s_cmp_eq_u32 {sWave}, 3
s_cselect_b32 {sLdR}, {hex(OOB)}, {sLdR}
s_cselect_b32 {sOutR}, {hex(OOB)}, {sOutR}
v_bfe_u32 v3, {vLane}, 3, 2
v_and_b32 v2, 3, {vLane}
v_lshlrev_b32 {vC}, 5, v3
v_lshl_add_u32 {vC}, v2, 3, {vC}
v_lshlrev_b32 v3, 1, v3
v_xor_b32 v2, v2, v3
v_lshlrev_b32 v2, 4, v2
v_sub_u32 {vC}, {vC}, v2""")
    if OPT["tlb"] == 2:
        o += lin(f"""s_mov_b32 s4, {hex(FLAG_BASE + 0x20080)}
s_mov_b32 s88, s80
s_mov_b32 s89, s81
s_mov_b32 s90, 0x80000
s_add_u32 s5, s75, {8*CHUNK + 4096}""") if False else lin(f"s_mov_b32 s4, {hex(FLAG_BASE + 0x20080)}\ns_add_u32 s5, s75, {8*CHUNK + 4096}")
        o += [Op(f"buffer_load_dword {vB}, off, {srd}, {so}", "vm") for srd, so in ((srdWS, "s75"), (srdWS, "s5"), (srdWS, "s4"), (srdO, sOutR))]
    if OPT["pf3"]:
        o += lin(f"""s_getpc_b64 s[76:77]
L_pc3:
s_add_u32 s76, s76, L_loop-L_pc3
s_addc_u32 s77, s77, 0
s_mov_b32 s78, L_R2-L_loop
s_mov_b32 s79, 0x20000
s_lshl_b32 s75, {sIdx}, 2
s_add_u32 s75, s75, {sWave}
s_and_b32 s75, s75, 15
s_lshl_b32 s75, s75, 13""")
    if OPT["stress"]: o += lin(f"s_lshl_b32 s75, s2, 20\ns_add_u32 s75, s75, 0x8000000\ns_mul_i32 s4, {sWave}, 0x3f000\ns_add_u32 s75, s75, s4")
    if OPT["stamps"]:
        o += lin(f"s_lshl_b32 s101, s2, 10\ns_lshl_b32 s6, {sWave}, 8\ns_add_u32 s101, s101, s6\ns_add_u32 s101, s101, {hex(STAMP_BASE)}")
    if OPT["stamps"] in (2, 4): o += stamp(1)
    o.append(WAIT(0, need_vm=[x[0] for x in init[:4]]))
    o += lin("s_barrier")
    if OPT["stamps"] in (2, 4): o += stamp()
    for t in range(3):
        for s in range(4): o += lin("ds_read_b128 %s, %s offset:%d" % ((XA(s, t),) + F.xaddr(F.xsl0[t], s)))
    for s in range(4):
        for p in range(2): o += lin(f"ds_read_b64_tr_b16 {FR(0, s, p)}, {vWb} offset:{F.wso0 + s*4096 + p*2048}")
    o += lin("s_waitcnt lgkmcnt(0)\ns_barrier")
    return o, zst

def glue0(zst):
    return [WAIT(0, need_vm=[zst])] + lin(f"""s_lshl_b32 s6, {sB}, 2
s_cmp_eq_u32 {sWave}, 0
s_cselect_b32 s6, s6, {hex(OOB)}
v_mov_b32 {vB}, {hex(OOB)}
v_writelane_b32 {vB}, 0, 0
v_mov_b32 {vA}, {sXcc}""") + [Op(f"buffer_atomic_add {vA}, {vB}, {srdD}, s6 offen sc1", "vm")]
def touch_setup():
    return lin(f"""s_cmp_eq_u32 {sSlM}, 1
s_cselect_b32 s4, 256, {hex(OOB)}
v_lshlrev_b32 {vA}, 1, {vA}
v_and_b32 {vA}, 0x700, {vA}
s_add_u32 s4, s4, {sFlR}""") + [Op(f"buffer_load_dword {vB}, {vA}, {srdWS}, s4 offen sc1", "vm")]
def mode_check(dbg):
    if OPT["bst"]: return lin(f"L_chkD:\nL_backD:\ns_mov_b32 {sSlM}, 1")
    return [WAIT(0, need_vm=[dbg])] + lin(f"""s_mov_b32 s3, 0
L_chkD:
v_readfirstlane_b32 s4, {vLane}
s_nop 3
s_lshr_b32 s5, s4, 4
s_and_b32 s5, s5, 0x0f0f0f0f
s_and_b32 s7, s4, 0x0f0f0f0f
s_add_u32 s5, s5, s7
s_mul_i32 s5, s5, 0x01010101
s_lshr_b32 s5, s5, 24
s_cmp_lg_u32 s5, 8
s_cbranch_scc1 L_spinD
L_backD:
s_lshl_b32 s5, {sXcc}, 3
{"s_mov_b32 s5, 0" if OPT["forceslow"] else ""}
s_cmp_eq_u32 s4, s5
s_cselect_b32 {sSlM}, 1, 7""")

def slow_path(placed, pendW0):
    vKo, vVo, vVo2, vKo2 = f"v{PV0+40}", f"v{PV0+41}", f"v{PV0+42}", f"v{PV0+43}"
    M = [f"v{PV0+36+t}" for t in range(3)]
    CN = [R("v", PV0 + 24 + 4*t, 4) for t in range(3)]
    Sx = [R("v", S0 + 4*t, 4) for t in range(3)]
    t_ = f"""
L_slow:
s_waitcnt vmcnt(0) lgkmcnt(0)
s_nop 7
v_mbcnt_lo_u32_b32 {vB}, -1, 0
v_mbcnt_hi_u32_b32 {vB}, -1, {vB}
v_and_b32 {vA}, 15, {vB}
v_lshrrev_b32 {vB}, 4, {vB}
v_lshlrev_b32 {vKo}, 8, {vA}
v_lshl_add_u32 {vKo}, {vB}, 4, {vKo}
s_and_b32 s4, {sWcol}, 128
s_xor_b32 s5, s4, 128
v_add_u32 {vKo2}, s5, {vKo}
v_add_u32 {vKo}, s4, {vKo}
v_lshlrev_b32 {vVo}, 10, {vB}
v_lshl_add_u32 {vVo}, {vA}, 1, {vVo}
v_add_u32 {vVo2}, 0x1000, {vVo}
s_add_u32 s4, {sHr}, {sHead}
s_and_b32 s4, s4, 3
s_lshl_b32 s4, s4, 17
s_mov_b32 s10, 0x80000
s_mov_b32 s14, 0x80000
s_add_u32 s5, s4, 0x20000
s_mov_b32 s6, s4
"""
    for t in range(3): t_ += f"v_mov_b32 {M[t]}, 0xff800000\n"
    t_ += "L_slow1:\n"
    for s in range(4): t_ += f"buffer_load_dwordx4 {FR(0, s)}, {vKo if s < 2 else vKo2}, {srdK}, s6 offen offset:{64*(s & 1)}\n"
    t_ += "s_waitcnt vmcnt(0)\n"
    for t in range(3):
        for s in range(4): t_ += f"v_mfma_f32_16x16x32_bf16 {Sx[t]}, {FR(0, s)}, {QV(s, t)}, {'0' if s == 0 else Sx[t]}\n"
    t_ += "s_nop 9\n"
    for t in range(3):
        t_ += f"v_max3_f32 {M[t]}, {M[t]}, v{S0+4*t}, v{S0+4*t+1}\nv_max3_f32 {M[t]}, {M[t]}, v{S0+4*t+2}, v{S0+4*t+3}\n"
    t_ += "s_add_u32 s6, s6, 0x1000\ns_cmp_lt_u32 s6, s5\ns_cbranch_scc1 L_slow1\n"
    for t in range(3):
        t_ += f"""v_mov_b32 {vA}, {M[t]}
s_nop 1
v_permlane32_swap_b32 {vA}, {M[t]}
s_nop 1
v_max_f32 {M[t]}, {vA}, {M[t]}
v_mov_b32 {vA}, {M[t]}
s_nop 1
v_permlane16_swap_b32 {vA}, {M[t]}
s_nop 1
v_max_f32 {M[t]}, {vA}, {M[t]}
"""
        for i in range(4): t_ += f"v_sub_f32 v{PV0+24+4*t+i}, 0, {M[t]}\n"
    for i in range(96): t_ += f"v_mov_b32 v{i}, 0\n"
    for i in range(12): t_ += f"v_accvgpr_write_b32 a{240+i}, 0\n"
    t_ += "s_mov_b32 s6, s4\nL_slow2:\n"
    for u in range(2):
        for s in range(4): t_ += f"buffer_load_dwordx4 {FR(0, s)}, {vKo if s < 2 else vKo2}, {srdK}, s6 offen offset:{64*(s & 1)}\n"
        t_ += "s_waitcnt vmcnt(0)\n"
        for t in range(3):
            for s in range(4): t_ += f"v_mfma_f32_16x16x32_bf16 {Sx[t]}, {FR(0, s)}, {QV(s, t)}, {CN[t] if s == 0 else Sx[t]}\n"
        t_ += "s_nop 9\n"
        for i in range(12): t_ += f"v_exp_f32 v{S0+i}, v{S0+i}\n"
        t_ += "s_nop 0\n"
        for t in range(3):
            for j in range(2): t_ += f"v_cvt_pk_bf16_f32 {PBr(0, 0, t, 2*u + j)}, v{S0+4*t+2*j}, v{S0+4*t+2*j+1}\n"
        if u == 0: t_ += "s_mov_b32 s7, s6\ns_add_u32 s6, s6, 0x1000\n"
    f = FA0 + 16
    for dt in range(8):
        for j in range(8):
            t_ += f"buffer_load_ushort v{FA0 + j}, {vVo if j < 4 else vVo2}, {srdV}, s7 offen offset:{(j & 3)*256 + 32*dt}\n"
        t_ += "s_waitcnt vmcnt(0)\n"
        for j in range(4): t_ += f"v_lshl_or_b32 v{f + j}, v{FA0 + 2*j + 1}, 16, v{FA0 + 2*j}\n"
        t_ += "s_nop 1\n"
        for t in range(3): t_ += f"v_mfma_f32_16x16x32_bf16 {OA(dt, t)}, v[{f}:{f+3}], {PB(0, 0, t)}, {OA(dt, t)}\n"
    for t in range(3): t_ += f"v_mfma_f32_16x16x32_bf16 {LA(t)}, {ONES}, {PB(0, 0, t)}, {LA(t)}\n"
    t_ += "s_add_u32 s6, s6, 0x1000\ns_cmp_lt_u32 s6, s5\ns_cbranch_scc1 L_slow2\ns_nop 9\n"
    for t in range(3): t_ += f"v_accvgpr_read_b32 {vRL[t]}, a{240+4*t}\n"
    for t in range(3): t_ += f"v_rcp_f32 {vRL[t]}, {vRL[t]}\n"
    t_ += "s_nop 0\n"
    for o in placed: t_ += o.text + "\n"
    for o in pendW0: t_ += o.text + "\n"
    t_ += "s_waitcnt lgkmcnt(0)\n"
    t_ += "s_branch L_join\n"
    return lin(t_)

def spin(lbl, back, reg, off_v, srd, soff, exp):
    return lin(f"""{lbl}:
s_mov_b32 s3, 0
{lbl}_l:
buffer_load_dword {reg}, {off_v}, {srd}, {soff}{' offen' if off_v != 'off' else ''} sc1
s_add_u32 s3, s3, 1
s_waitcnt vmcnt(0)
v_cmp_ne_u32 vcc, {exp}, {reg}
s_cmp_gt_u32 s3, 0x10000
s_cbranch_scc1 {back}
s_nop 2
s_cbranch_vccnz {lbl}_l
s_branch {back}""")

def pad_linear(ops):
    out = []
    for o in ops:
        need = 0
        for (p, n) in o.sdeps:
            if p in out: need = max(need, n - sum(x.w for x in out[out.index(p)+1:]))
        if need > 0:
            nop = Op(f"s_nop {need-1}", "x"); nop.w = need; out.append(nop)
        out.append(o)
    return out

def tail(G):
    X = (lambda: stamp()) if OPT["stamps"] == 3 else (lambda: [])
    def sums(set_, loads):
        o0, p0, s0_ = reduce_ops(set_)
        return [WAIT(0, need_vm=loads)] + pad_linear(o0 + p0 + [s0_])
    def msum(set_, loads):
        A0, A1, D0, D1 = "a[48:51]", "a[52:55]", FR(1, 0), FR(1, 1)
        r = []
        for g in range(8):
            r += [WAIT(0, need_vm=[loads[g]]), mfma(D0, A0, RLD[set_][g], "0" if g == 0 else D0), mfma(D1, A1, RLD[set_][g], "0" if g == 0 else D1)]
        d = regs(D0) + regs(D1); res = regs(FR(1, 2 + set_))
        r += lin("s_nop 7") + [V(f"v_cvt_pk_bf16_f32 {res[j]}, {d[2*j]}, {d[2*j+1]}", rd=[d[2*j], d[2*j+1]], wr=[res[j]]) for j in range(4)]
        return r + [Op(f"buffer_store_dwordx4 {FR(1, 2 + set_)}, {vOut}, {srdO}, {sOut} offen{OSC}", "vm", rd=[FR(1, 2 + set_)])]
    fin = msum if OPT["msum"] else sums
    o = lin("\n".join(scal_B()) + "\ns_nop 1")
    stores = []
    for (cv, sa, st) in pack_store(1):
        o += cv + [sa, st]; stores.append(st)
    o += X() + fin(1, G.LD[1]) + X()
    o += [WAIT(0, need_vm=stores)] + X() + lin("s_barrier") + sig_ops()
    o += lin("s_branch L_spinU@L\nL_backU@L:") + X()
    l7 = red_loads(0); o += l7
    o += lin(f"s_add_u32 {sOut}, {sOutR}, {sOc}")
    if OPT["stamps"] == 3: o += lin("s_waitcnt vmcnt(0)") + X()
    o += fin(0, l7) + X() + X()
    return o

def main():
    R2 = build_R2()
    placed = [o for o in R2.epi if o.gap is not None]; placed.sort(key=lambda o: o.pos)
    R1 = build_R1(R2.left)
    R1b = {h: build_R1b(h) for h in (1, 2, 3)}
    R1f = build_R1f()
    global G_LD, G_LD0
    G0 = build_G(True, R2.left)
    G_LD0 = G0.LD[1]; G_LD = [red_loads(0), red_loads(1)]
    G = build_G()
    bind_ext(R1, [R2.pendW0]); bind_ext(R2, [R1f.pend] + [R1b[h].pend for h in R1b]); bind_ext(G0, [R2.pendW0]); bind_ext(G, [G0.pend, G.pend])
    for h in R1b: bind_ext(R1b[h], [R1.pend])
    for w in R1f.xw: w.text = 's_nop 0'
    pro, zst = prologue(R1f)
    for j, t in enumerate(NEXT): TILE[f'G{j}'] += TILE[t]
    stg = lin(f"""{[f"s_mov_b32 s4, {sG}", f"s_and_b32 s4, {sB}, 3", f"s_mov_b32 s4, {sIdx}"][OPT["stagm"]]}
s_mul_i32 s4, s4, {OPT["stag"]}
L_stg:
s_cmp_eq_u32 s4, 0
s_cbranch_scc1 L_stg2
s_sub_u32 s4, s4, 1
s_branch L_stg
L_stg2:""") if OPT["stag"] else []
    p0 = glue0(zst) + stg + lin("s_branch L_R2")
    sel = lin(f"s_cmp_eq_u32 {sHead}, 2\ns_cbranch_scc1 L_v2\ns_cmp_eq_u32 {sHead}, 3\ns_cbranch_scc1 L_v3")
    v1 = R1b[1].out + lin("s_branch L_R2")
    v2 = lin("L_v2:") + R1b[2].out + lin("s_branch L_R2")
    assert OPT["pf"]
    v3 = lin("L_v3:") + R1b[3].out + mode_check(getattr(R1b[2], "dbg", None)) + (lin(f"v_mbcnt_lo_u32_b32 {vA}, -1, 0\nv_mbcnt_hi_u32_b32 {vA}, -1, {vA}\nv_lshlrev_b32 {vA}, 7, {vA}") if OPT["pf3"] else code_pf("L_pc2", "L_g3", "L_codeend", 15, 76)) + touch_setup()
    g2 = lin(f"s_or_b64 {sBad}, {sBad}, vcc\n{'s_nop 0' if OPT['stress'] else 's_cbranch_scc1 L_slow'}\nL_join:\ns_add_u32 {sHead}, {sHead}, 1\ns_cmp_lt_u32 {sHead}, 4")
    g3 = lin(f"s_cmp_eq_u32 {sSlM}, 7\ns_cbranch_scc1 L_G0S")
    g4 = lin(f"s_mov_b32 {sC[0]}, {sC[2]}\ns_add_u32 {sC[1]}, {sC[0]}, 128\ns_and_b32 {sC[1]}, {sC[1]}, 0x3ff\ns_add_u32 {sC[2]}, {sC[1]}, 128\ns_and_b32 {sC[2]}, {sC[2]}, 0x3ff\ns_cmp_lt_u32 {sIt}, 8")
    T = tail(G)
    sA, sB_, sC_, sD_, sE = stamp(1 if OPT['stamps'] in (1, 3) else 0), stamp(), stamp(), stamp(), stamp(2)
    if OPT["bst"]:
        def dump():
            return lin(f"v_mbcnt_lo_u32_b32 {vA}, -1, 0\nv_mbcnt_hi_u32_b32 {vA}, -1, {vA}\nv_lshlrev_b32 {vA}, 2, {vA}") + [Op(f"buffer_store_dword {vLane}, {vA}, {srdWS}, s101 offen", "vm")] + lin("s_add_u32 s101, s101, 256\ns_nop 1")
        sA = lin(f"s_lshl_b32 s101, s2, 2\ns_add_u32 s101, s101, {sWave}\ns_lshl_b32 s101, s101, 12\ns_add_u32 s101, s101, {hex(DUMP_BASE)}")
        sC_ = dump(); sD_ = dump()
    tr = pro + sA
    for hd in range(4):
        tr += [R1f.out + p0, R1.out + sel + v1, R1.out + sel + v2, R1.out + sel + v3][hd] + sB_ + R2.out + g2 + sC_
    tr += g3
    post = []
    for it in range(3): post += G.out + g4 + sD_
    post += T
    resolve_waits(tr + [x for x in G0.out if x.tag != "touch"] + g4 + sD_ + [x for x in post if x.tag != "fastonly"], TILE)
    tr += G0.out + g4 + sD_ + post
    resolve_waits(tr, TILE)
    errs = check(tr, "main")
    for e in errs[:20]: print(e, file=sys.stderr)
    assert not errs
    for rg in (R1f, R1, R1b[1], R1b[3], R2, G0, G): print(rg.name, "overfull:", rg.overlog, file=sys.stderr)
    out = [open(os.path.join(os.path.dirname(os.path.abspath(__file__)), "header.txt")).read().rstrip()]
    out.append("; @launch grid=(256,1,1) block=(256,1,1) lds=163840")
    out.append(f""".amdgcn_target "amdgcn-amd-amdhsa--gfx950"
.text
.globl {KN}
.p2align 8
.type {KN},@function
{KN}:""")
    def emit(ops, sc="", lb=""):
        for o in ops:
            if OPT["nobar"] and o.text == "s_barrier" and o.kind == "w": out.append("s_nop 0"); continue
            if OPT["nolg"] and o.kind == "w" and o.text.startswith("s_waitcnt") and "vmcnt" not in o.text: out.append("s_nop 0"); continue
            if OPT["nods"] and o.kind == "ds": continue
            if OPT["novalu"] and o.kind in ("v4", "v8") and o.gap is not None and ("exp" in o.text or "cvt" in o.text or "mul" in o.text or "perm" in o.text or "and" in o.text or "lshl" in o.text or "add_f32" in o.text): continue
            if OPT["nodma"] and o.text.endswith(" lds"): out.append("s_nop 0"); continue
            if OPT["nored"] and " sc1" in o.text and "dwordx4" in o.text: out.append("s_nop 0"); continue
            if getattr(o, "pre", None): out.append(o.pre)
            out.append(o.text.replace("@SC", sc).replace("@L", lb))
    def mark(n):
        return lin("s_memrealtime s[2:3]\ns_waitcnt lgkmcnt(0)\ns_sub_u32 s75, s2, s73") if OPT["dbl"] == n else []
    def idle(n, tag):
        if not n: return []
        return lin(f"""s_memrealtime s[2:3]
s_waitcnt lgkmcnt(0)
s_mov_b32 s5, s2
L_idle{tag}:
s_sleep 2
s_memrealtime s[2:3]
s_waitcnt lgkmcnt(0)
s_sub_u32 s4, s2, s5
s_cmp_lt_u32 s4, {n}
s_cbranch_scc1 L_idle{tag}""")
    def ex(n): return (stamp(2) + lin("s_endpgm")) if OPT["exitat"] == n else []
    emit(pro + mark(3) + idle(OPT['idle0'], 'a') + sA + ex(1) + R1f.out + mark(4) + p0)
    out.append("L_loop:"); emit(R1.out + sel + v1 + v2 + v3); out.append("L_R2:"); emit(idle(OPT['idle1'], 'b') + sB_ + R2.out + g2 + sC_)
    if OPT["dbl"] >= 10:
        emit(lin(f"s_cmp_lg_u32 {sHead}, {OPT['dbl'] - 9}\ns_cbranch_scc1 L_nomark") + mark(OPT["dbl"]) + lin(f"L_nomark:\ns_cmp_lt_u32 {sHead}, 4"))
    if OPT["stamps"] or OPT["bst"]: out.append(f"s_cmp_lt_u32 {sHead}, 4")
    out.append("s_cbranch_scc1 L_loop")
    out.append('L_g3:'); emit(mark(5) + ex(3) + g3)
    for sc, lb in ((NTST, ""), (" sc1", "S")):
        out.append(f"L_G0{lb}:"); emit([(Op("s_nop 0", "x") if (lb and x.tag == "touch") else x) for x in G0.out] + g4 + sD_, sc, lb)
        out.append(f"L_G{lb}:"); emit(G.out + g4 + sD_, sc, lb)
        if OPT["stamps"] or OPT["bst"]: out.append(f"s_cmp_lt_u32 {sIt}, 8")
        out.append(f"s_cbranch_scc1 L_G{lb}")
        emit([(Op('s_nop 0', 'x') if (lb and x.tag == 'fastonly') else x) for x in T] + sE, sc, lb)
        if OPT["dbl"]:
            emit(lin(f"""s_waitcnt vmcnt(0)
s_memrealtime s[2:3]
s_waitcnt lgkmcnt(0)
{"s_sub_u32 s4, s2, s73" if OPT["dbl"] == 1 else ("s_mov_b32 s4, 500" if OPT["dbl"] == 2 else "s_mul_i32 s4, s75, 4")}
s_min_u32 s4, s4, 40000
s_mov_b32 s5, s2
L_dbl{lb}:
s_sleep 4
s_memrealtime s[2:3]
s_waitcnt lgkmcnt(0)
s_sub_u32 s6, s2, s5
s_cmp_lt_u32 s6, s4
s_cbranch_scc1 L_dbl{lb}"""))
        out.append("s_endpgm")
        if not lb: out.append("L_codeend:")
        for nm in ("G0", "G1", "G1F", "U"): emit(spin(f"L_spin{nm}{lb}", f"L_back{nm}{lb}", vPr, vPo, srdWS, sPoll, sExp))
    emit(lin(f"""L_spinD:
s_add_u32 s3, s3, 1
s_cmp_gt_u32 s3, 0x10000
s_cbranch_scc1 L_backD
s_lshl_b32 {sTmp}, {sB}, 2
buffer_load_dword {vLane}, off, {srdD}, {sTmp} sc1
s_waitcnt vmcnt(0)
s_branch L_chkD"""))
    emit(slow_path(placed, R2.pendW0))
    out.append(f"""s_endpgm
.section .rodata,"a"
.p2align 6
.amdhsa_kernel {KN}
  .amdhsa_next_free_vgpr 512
  .amdhsa_next_free_sgpr 102
  .amdhsa_accum_offset 256
  .amdhsa_group_segment_fixed_size 0
  .amdhsa_kernarg_size 64
  .amdhsa_user_sgpr_count 2
  .amdhsa_user_sgpr_kernarg_segment_ptr 1
  .amdhsa_system_sgpr_workgroup_id_x 1
.end_amdhsa_kernel""")
    print("\n".join(out))
main()
```

```python
import re

def regs(spec):
    m = re.fullmatch(r"([vas])\[(\d+):(\d+)\]", spec)
    if m: return [f"{m.group(1)}{i}" for i in range(int(m.group(2)), int(m.group(3)) + 1)]
    return [spec]
def R(f, lo, n=1):
    return f"{f}{lo}" if n == 1 else f"{f}[{lo}:{lo+n-1}]"

class Op:
    def __init__(s, text, kind, rd=(), wr=(), e=-1, d=10**9, deps=(), tag=None, trans=False, late=False, cread=(), sdeps=(), optional=False):
        s.text, s.kind = text, kind
        s.rd = set(x for r in rd for x in regs(r)); s.wr = set(x for r in wr for x in regs(r))
        s.cread = set(x for r in cread for x in regs(r))
        s.e, s.d, s.deps, s.tag, s.trans, s.late = e, d, list(deps), tag, trans, late
        s.lc = 4 if 'b128' in text else 2; s.w = 1; s.sdeps = list(sdeps); s.optional = optional; s.pos = None
        s.gap = None; s.need_ds = []; s.need_vm = []; s.lg0 = False
    def __repr__(s): return f"<{s.text} e={s.e} d={s.d} gap={s.gap}>"

def mfma(D, A, B, C, tag=None):
    crd = [] if C == "0" else [C]
    return Op(f"v_mfma_f32_16x16x32_bf16 {D}, {A}, {B}, {C}", "mfma", rd=[A, B] + crd, wr=[D], tag=tag, cread=crd)

class Region:
    LDSRATE = 3; LDSBURST = 4
    def __init__(s, name):
        s.name = name; s.mf = []; s.fill = []; s.missed = []; s.overlog = []; s.vmsp = 4; s.ldspol = lambda k: (Region.LDSRATE, Region.LDSBURST)
    def M(s, op): s.mf.append(op); op.gap = len(s.mf) - 1; return op
    def n(s): return len(s.mf)
    def F(s, op): s.fill.append(op); op.seq = len(s.fill); return op
    def schedule(s, verbose=True):
        NG = len(s.mf)
        gaps = {k: {"s": [], "m": [], "v": []} for k in range(-1, NG)}
        cost = {"v4": 1, "ds": 1, "v8": 2, "vm": 2, "dsb": 2}
        vec = [o for o in s.fill if o.kind in cost]
        sca = [o for o in s.fill if o.kind not in cost]
        for o in s.fill:
            if not o.optional: o.d = min(o.d, NG - 1)
        changed = True
        while changed:
            changed = False
            for o in s.fill:
                if o.optional: continue
                for (p, g) in o.deps + [(p, n) for (p, n) in o.sdeps]:
                    if p.kind != "mfma" and p.gap is None and p.d > o.d - g: p.d = o.d - g; changed = True
        sal = [o for o in sca if o.kind == "s"]
        for a, b in zip(sal, sal[1:]): b.deps.append((a, 0))
        changed = True
        while changed:
            changed = False
            for o in s.fill:
                if o.optional: continue
                for (p, g) in o.deps + [(p, n) for (p, n) in o.sdeps]:
                    if p.kind != "mfma" and p.gap is None and p.d > o.d - g: p.d = o.d - g; changed = True
        pending = list(s.fill)
        lastb = -10; lastv = -10
        rk = {"s": 0, "w": 0, "t": 0, "ds": 1, "vm": 1, "dsb": 1, "v4": 2, "v8": 2}
        st = {"mpos": 0, "G": None, "scc": False}
        nxt_s = {id(a): b for a, b in zip(sal, sal[1:])}
        def sd_short(o, k):
            G = st["G"]; miss = 0
            isv = rk[o.kind] == 2
            for (p, n) in o.sdeps:
                if p.gap is None: return None
                if p.pos is not None:
                    here = st["mpos"] + 1 + ((sum(x.w for x in G["s"] + G["m"] + G["v"])) if isv else 0)
                    miss = max(miss, n - (here - p.pos - 1))
                else:
                    if not isv or rk[p.kind] != 2: return None
                    i = G["v"].index(p)
                    miss = max(miss, n - sum(x.w for x in G["v"][i+1:]))
            return max(miss, 0)
        def ready0(o, k):
            if o.e > k: return False
            for (p, g) in o.deps:
                if p.gap is None or p.gap + g > k: return False
                if p.gap == k and p.kind != "mfma" and rk[p.kind] > rk[o.kind]: return False
            return True
        over = 0; npos = 0; bucket = 0
        for k in range(-1, NG):
            G = gaps[k]; st["G"] = G
            if k >= 0: npos += 1; s.mf[k].pos = npos
            st["mpos"] = npos
            used = 0; lr, lb = s.ldspol(k); bucket = max(0, bucket - lr)
            while True:
                c0 = [o for o in pending if ready0(o, k)]
                cands = [o for o in c0 if sd_short(o, k) == 0]
                cands.sort(key=lambda o: (o.optional, o.d, o.seq))
                pick = None
                for o in cands:
                    forced = o.d <= k and not o.optional
                    if o.kind in ("s", "w", "t"):
                        if o.kind == "t" and st["scc"]: continue
                        if o.late and o.d - k > o.late - 1: continue
                        if (G["s"] or G["m"] or G["v"]) and not forced: continue
                        pick = o; break
                if pick is None:
                    vc = []
                    for o in cands:
                        if o.kind in ("s", "w", "t"): continue
                        forced = o.d <= k and not o.optional
                        c = cost[o.kind]
                        if not forced:
                            if o.kind == "dsb" and k - lastb < 2: continue
                            if o.kind == "vm" and k - lastv < s.vmsp: continue
                            if used + c > 2: continue
                            if o.kind == "ds" and bucket and bucket + o.lc > lb: continue
                            if k == -1 and s.mf: continue
                        vc.append(o)
                    if vc:
                        pick = vc[0]
                        if used == 0 and cost[pick.kind] == 1 and pick.d > k + 1:
                            ones = [o for o in vc if cost[o.kind] == 1]
                            twos = [o for o in vc if cost[o.kind] == 2]
                            chain = any(any(p is pick for (p, g) in o.deps if g == 0) or any(p is pick and n == 0 for (p, n) in o.sdeps) for o in pending)
                            if len(ones) < 2 and not chain and twos: pick = twos[0]
                if pick is None:
                    blk = [o for o in c0 if o.d <= k and not o.optional and sd_short(o, k)]
                    if blk:
                        n = min(sd_short(o, k) for o in blk)
                        nop = Op(f"s_nop {n-1}", "v4"); nop.w = n; nop.gap = k; nop.kind = "nop"
                        if rk[blk[0].kind] == 2: G["v"].append(nop)
                        else: raise Exception(f"cannot pad for {blk[0]}")
                        used += n; continue
                    break
                o = pick
                if o.kind in ("s", "w", "t"):
                    G["s"].append(o)
                    if o.kind == "s":
                        nx = nxt_s.get(id(o))
                        st["scc"] = nx is not None and nx.text.startswith(("s_cselect", "s_cbranch_scc", "s_addc"))
                else:
                    (G["m"] if rk[o.kind] == 1 else G["v"]).append(o)
                    used += cost[o.kind]
                    if o.kind == "dsb": lastb = k
                    if o.kind == "vm": lastv = k
                    if o.kind == "ds": bucket += o.lc
                o.gap = k; pending.remove(o)
            for o in G["s"] + G["m"] + G["v"]:
                o.pos = npos + 1; npos += o.w
            late_ = [o for o in pending if o.d <= k and not o.optional]
            if late_: s.missed += [(o, k) for o in late_ if o.d == k]
            ns = len(G["s"])
            extra = max(0, used - 2) + max(0, ns - 1 - max(0, 2 - used))
            if k == -1: extra = used + ns
            if extra: s.overlog.append((k, extra))
            over += extra
        s.left = [o for o in pending if o.optional]
        pending = [o for o in pending if not o.optional]
        assert not pending, f"unscheduled in {s.name}: {pending[:5]}"
        assert not s.missed, f"missed deadlines in {s.name}: {s.missed[:5]}"
        out = []
        for k in range(-1, NG):
            if k >= 0: out.append(s.mf[k])
            G = gaps[k]
            out += G["s"] + G["m"] + G["v"]
        if verbose: print(file=__import__("sys").stderr, *[f"; region {s.name}: mfma={NG} fillers={len(s.fill)} overfull_slots={over} est_cycles={NG*16+over*4}"])
        nd = [sum(1 for o in gaps[k]["m"] if o.kind == "ds") for k in range(NG)]
        dbl = sum(1 for k in range(NG) if nd[k] >= 2); dd = sum(1 for k in range(1, NG) if nd[k] + nd[k-1] >= 3)
        two = sum(1 for k in range(NG) if len(gaps[k]["m"]) + len(gaps[k]["v"]) >= 2)
        s.feat = (over, dbl, dd, two)
        if verbose: print(file=__import__("sys").stderr, *[f"; feat {s.name}: over={over} dbl={dbl} dd={dd} two={two}"])
        s.est = NG*16 + over*4
        s.out = out
        return out

def resolve_waits(trace, tiles):
    ds = []; nvm = 0; lastpos = {}
    for o in trace:
        if o.kind in ("ds", "dsb"): ds.append(o)
        elif o.kind == "vm":
            lastpos[id(o)] = nvm; nvm += 1
        elif o.kind == "w" and getattr(o, "alt_ds", None) is not None:
            best = None
            for alt in o.alt_ds:
                if alt[-1] in ds:
                    last = len(ds) - 1 - ds[::-1].index(alt[-1])
                    if best is None or last > best: best = last
            if best is not None:
                o.lgn = min(getattr(o, "lgn", 15), len(ds) - 1 - best)
            o.text = f"s_waitcnt lgkmcnt({getattr(o, 'lgn', 15)})"
        elif o.kind == "w" and (o.need_ds or o.need_vm or o.lg0):
            idx = -1
            for n in o.need_vm:
                if isinstance(n, str):
                    c = [lastpos[id(x)] for x in tiles[n] if id(x) in lastpos]
                    assert c, f"tile {n} not issued"
                    idx = max(idx, max(c))
                elif id(n) in lastpos: idx = max(idx, lastpos[id(n)])
            if idx >= 0: o.vmn = min(getattr(o, "vmn", 63), nvm - 1 - idx)
            parts = []
            if hasattr(o, "vmn"): parts.append(f"vmcnt({o.vmn})")
            if o.lg0: parts.append("lgkmcnt(0)")
            elif o.need_ds:
                last = max(len(ds) - 1 - ds[::-1].index(n) for n in o.need_ds)
                parts.append(f"lgkmcnt({min(len(ds) - 1 - last, 15)})")
            o.text = "s_waitcnt " + " ".join(parts) if parts else "s_nop 0"

def check(seq, name=""):
    errs = []
    pos = []; p = 0
    for o in seq:
        pos.append(p)
        m = re.match(r"s_nop (\d+)", o.text)
        p += int(m.group(1)) + 1 if m else 1
    lastw = {}
    lastC = {}
    pend_ds = []
    for i, o in enumerate(seq):
        if o.text.startswith("s_waitcnt"):
            m = re.search(r"lgkmcnt\((\d+)\)", o.text)
            if m:
                n = int(m.group(1))
                if n < len(pend_ds): pend_ds = pend_ds[len(pend_ds)-n:]
        touched = o.rd | o.wr
        for q in pend_ds:
            if q.wr & touched: errs.append(f"{name}: LDS result not waited: {q.text} -> {o.text}")
        isvalu = o.kind in ("v4", "v8")
        for r in o.rd | (o.wr if o.kind != "mfma" else set()):
            if r in lastw:
                j = lastw[r]; w = seq[j]; dist = pos[i] - pos[j] - 1
                need = 0
                if w.kind == "mfma":
                    if o.kind == "mfma":
                        if r in o.cread and o.cread == w.wr and not (r in (o.rd - o.cread)): need = 0
                        elif r in o.cread: need = 6
                        else: need = 8
                    else: need = 8
                elif w.kind in ("v4", "v8"):
                    if o.kind == "mfma" and r in o.rd: need = 2
                    elif "permlane" in o.text and r in o.rd: need = 2
                    elif w.trans and isvalu and not o.trans and r in o.rd: need = 1
                    elif "readfirstlane" in o.text or "readlane" in o.text: need = 1
                    if r.startswith("s") or r == "vcc":
                        if o.kind == "vm": need = 5
                        elif isvalu: need = 2
                elif w.kind in ("s", "t") and r == "m0" and o.kind == "vm": need = 1
                if dist < need: errs.append(f"{name}: hazard {r} need {need} got {dist}: [{w.text}] -> [{o.text}]")
        if o.kind == "mfma":
            for r in o.wr:
                if r in lastw and seq[lastw[r]].kind == "mfma" and r not in o.cread:
                    pass
        if isvalu:
            for r in o.wr:
                if r in lastC and pos[i] - pos[lastC[r]] - 1 < 3: errs.append(f"{name}: WAR srcC {r}: [{seq[lastC[r]].text}] -> [{o.text}]")
        if isvalu:
            for back in (1, 2):
                if i - back >= 0:
                    w = seq[i - back]
                    if w.kind == "vm" and "store" in w.text and (w.rd & o.wr) and pos[i] - pos[i-back] - 1 < 2:
                        errs.append(f"{name}: store WAR: [{w.text}] -> [{o.text}]")
        for r in o.wr: lastw[r] = i
        for r in o.cread: lastC[r] = i
        if o.kind in ("ds", "dsb"): pend_ds.append(o)
    return errs
```

```python
import sys, os, struct, math
sys.path.insert(0, os.path.dirname(os.path.abspath(__file__)))
from sched import *
import ringplan

OPT = dict(stamps=0, nt=1, stress=0, msum=1, tord=0, b0=1, clean=0, stag=0, stagm=0, mapping=48, nodma=0, samekv=0, nored=0, ntw=0, ntx=0, bst=0, lrate=2.5, lburst=4, rsp=8, rk=2, i0=-145, dk=75, ksp=18, wsp=7, gst=4, gld=4, gsig=1, gpoll=108, gsum=8, gdma=40, glc=0, rot=1, gout=189, gdsp=5, lag=1, forceslow=0, ntst=0, pf=128, hrot=9, hswap=1, plan=0, uni=1, fnt=1, ones4=1, gb2=1, pf3=0, wstrict=1, rspw=10, samew=0, samex=0, krot=3, osc=0, idle0=0, idle1=0, exitat=0, wb=0, dbl=0, nperm=1, bdw=2, bda=1, vlate=0, tch=0, gtch=0, kvlate=4, tg=0, etch=0, gl3=1, ftch=1, tlb=0, fsp=2, fkv=6, fgap=3, nobar=0, nolg=0, nods=0, novalu=0)
for a in sys.argv[1:]:
    k, v = a.split("="); assert k in OPT, k; OPT[k] = float(v) if "." in v else int(v)
Region.LDSRATE = OPT["lrate"]; Region.LDSBURST = OPT["lburst"]
KN = "standalone__mha_block_cached__near_ridge_kernel"

def OA(mt, t): return R("v", (mt*3 + t)*4, 4)
def OAr(mt, t, i): return f"v{(mt*3 + t)*4 + i}"
QV0, PV0, S0, FA0 = 96, 144, 192, 204
def QV(s, t): return R("v", QV0 + (s*3 + t)*4, 4)
def QVr(s, t, i): return f"v{QV0 + (s*3 + t)*4 + i}"
def PB(buf, sg, t): return R("v", PV0 + 24*buf + (sg*3 + t)*4, 4)
def PBr(buf, sg, t, i): return f"v{PV0 + 24*buf + (sg*3 + t)*4 + i}"
def OP(s, t): return R("v", PV0 + (s*3 + t)*4, 4)
def OPr(s, t, i): return f"v{PV0 + (s*3 + t)*4 + i}"
def FR(buf, f, half=None):
    b = FA0 + 16*buf + 4*f
    return R("v", b, 4) if half is None else R("v", b + 2*half, 2)
vK = ["v236", "v237", "v238", "v239"]
vVb, vWb, vT = "v240", "v241", ["v242", "v243"]
vDK, vDV, vDW, vDX, vC = "v244", "v245", "v246", "v247", "v248"
vRL = ["v249", "v250", "v251"]
vLane, vDWo, vA, vB = "v252", "v253", "v254", "v255"
def XA(s, t): return R("a", (s*3 + t)*4, 4)
ZB = {0: 144, 1: 192, 2: 0}
def ZA(h, s, t): return R("a", ZB[h] + (s*3 + t)*4, 4)
def LA(t): return R("a", 240 + 4*t, 4)
ONES = "a[252:255]"

srdK, srdV, srdW, srdX, srdWS, srdO, srdD = (f"s[{i}:{i+3}]" for i in (8, 12, 16, 20, 24, 28, 32))
sW1k, sXcc, sRot, sOc = "s36", "s37", "s38", "s39"
sC = ["s40", "s41", "s42"]
sDg = ["s43", "s44", "s45", "s46"]
sIdx = "s99"
sH = ["s93", "s95", "s96", "s97"]; sHr = "s98"; sSw = "s3"
sKoff, sVoff, sWcol = "s47", "s48", "s49"
sD = [None, "s50", "s51", "s52"]
sDY = [None, "s53", "s54", "s55"]
sT = ["s56", "s57", "s58", "s59"]
sW4k, sHead, sScale, sWave, sB, sG, sLo, sHi = (f"s{i}" for i in range(60, 68))
sBad = "s[84:85]"
sN = [f"s{i}" for i in range(86, 92)]
sTmp = "s100"
sIt, sSt, sSig, sExp, sLd, sLd2, sOut = (f"s{i}" for i in range(86, 93))
sStR, sLdR, sFlR, sOutR, sSlM, sLdMin, sGate = (f"s{i}" for i in range(68, 75))
sPoll = sSig; sPo = "s99"; sTk, sTh, sTo = "s43", "s44", "s45"
sU = ["s4", "s5"]; sMask = "s6"
OOB = 0x40000000
FLAG_BASE = 0x3040000
STAMP_BASE = 0x3100000
DUMP_BASE = 0x4000000
WS_BYTES = 0x20000000 if OPT["stress"] else (0x8000000 if OPT["bst"] else 0x3200000)
CHUNK = 196608
ORD = [(0,0),(0,1),(0,2),(1,0),(0,3),(1,3),(1,1),(1,2)]
ORDG = [(j >> 2, j & 3) for j in range(8)]
NTKV = {"K": " nt" if OPT["nt"] in (1, 2) else "", "V": " nt" if OPT["nt"] in (1, 3) else ""}
NTW = " nt" if OPT["ntw"] else ""
NTX = " nt" if OPT["ntx"] else ""
def wq_lit(step): return ORD[step][1]*0x100000 + ORD[step][0]*128
def wo_lit(m): return (m & 3)*0x20000 + (m >> 2)*128

def S(text, rd=(), wr=(), **kw): return Op(text, "s", rd=rd, wr=wr, **kw)
def V(text, rd=(), wr=(), **kw): return Op(text, "v4", rd=rd, wr=wr, **kw)
def V8(text, rd=(), wr=(), **kw): return Op(text, "v8", rd=rd, wr=wr, **kw)
def WAIT(d, need_ds=(), need_vm=(), lg0=False, late=3, e=-1):
    o = Op("s_waitcnt ?", "w", e=e, d=d, late=late, deps=[(x, 1) for x in need_ds])
    o.need_ds, o.need_vm, o.lg0 = list(need_ds), list(need_vm), lg0
    return o
def lin(text):
    return [Op(l.strip(), "x") for l in text.strip().split("\n") if l.strip()]

class Ctx: pass
C = Ctx(); C.grp = 0

ringplan.setb(OPT["bdw"], OPT["bda"]); BDW, BDA = OPT["bdw"], OPT["bda"]
wI = {"W0": -210, "W1": -135, "W2": -55, "W3": 36 + BDW, "W4": 78, "W5": 112, "W6": 162, "W7": 186}
xI = {"Xa": -430, "Xb": -350, "Xc": -280}
PLANS = {
 8: {'Xa': -430, 'Xb': -350, 'Xc': -280, 'W0': -210, 'W1': -135, 'W2': -58, 'W3': 38, 'W4': 80, 'W5': 115, 'W6': 150, 'W7': 190, 'K0': -198, 'K1': -130, 'V0': -62, 'K2': 38, 'V1': 104, 'K3': 172, 'V2': 290, 'K4': 361, 'V3': 432, 'K5': 503, 'V4': 574, 'K6': 645, 'V5': 716, 'K7': 787, 'V6': 858, 'V7': 930},
 7: {'Xa': -430, 'Xb': -350, 'Xc': -280, 'W0': -210, 'W1': -135, 'W2': -58, 'W3': 38, 'W4': 80, 'W5': 110, 'W6': 162, 'W7': 186, 'K0': -167, 'K1': -93, 'V0': -19, 'K2': 58, 'V1': 136, 'K3': 214, 'V2': 290, 'K4': 365, 'V3': 439, 'K5': 513, 'V4': 587, 'K6': 661, 'V5': 735, 'K7': 809, 'V6': 884, 'V7': 959},
 5: {'Xa': -430, 'Xb': -350, 'Xc': -280, 'W0': -210, 'W1': -135, 'W2': -55, 'W3': 38, 'W4': 78, 'W5': 112, 'W6': 162, 'W7': 186, 'K0': -170, 'K1': -95, 'V0': -20, 'K2': 55, 'V1': 140, 'K3': 290, 'V2': 345, 'K4': 400, 'V3': 460, 'K5': 525, 'V4': 590, 'K6': 660, 'V5': 730, 'K7': 805, 'V6': 880, 'V7': 955},
 6: {'Xa': -430, 'Xb': -350, 'Xc': -280, 'W0': -210, 'W1': -135, 'W2': -55, 'W3': 38, 'W4': 78, 'W5': 112, 'W6': 162, 'W7': 186, 'K0': -170, 'K1': -95, 'V0': -20, 'K2': 135, 'V1': 290, 'K3': 335, 'V2': 385, 'K4': 435, 'V3': 490, 'K5': 545, 'V4': 605, 'K6': 665, 'V5': 730, 'K7': 805, 'V6': 880, 'V7': 955},
 3: {'Xa': -514, 'Xb': -444, 'Xc': -297, 'W0': -229, 'W1': -155, 'W2': -63, 'W3': 8, 'W4': 38, 'W5': 82, 'W6': 110, 'W7': 180, 'K0': -187, 'K1': -112, 'V0': -38, 'K2': 58, 'V1': 141, 'K3': 216, 'V2': 290, 'K4': 364, 'V3': 436, 'K5': 507, 'V4': 579, 'K6': 651, 'V5': 721, 'K7': 794, 'V6': 863, 'V7': 940},
 4: {'Xa': -514, 'Xb': -444, 'Xc': -297, 'W0': -229, 'W1': -155, 'W2': -63, 'W3': 8, 'W4': 38, 'W5': 82, 'W6': 110, 'W7': 180, 'K0': -180, 'K1': -108, 'V0': -36, 'K2': 58, 'V1': 141, 'K3': 216, 'V2': 290, 'K4': 364, 'V3': 438, 'K5': 512, 'V4': 586, 'K6': 660, 'V5': 734, 'K7': 808, 'V6': 878, 'V7': 950},
 1: {'Xa': -510, 'Xb': -430, 'Xc': -352, 'W0': -205, 'W1': -106, 'W2': -26, 'W3': 5, 'W4': 37, 'W5': 98, 'W6': 161, 'W7': 190, 'K0': -243, 'K1': -157, 'V0': -60, 'K2': 64, 'V1': 130, 'K3': 221, 'V2': 290, 'K4': 354, 'V3': 415, 'K5': 477, 'V4': 593, 'K6': 533, 'V5': 650, 'K7': 728, 'V6': 809, 'V7': 894},
 2: {'Xa': -496, 'Xb': -413, 'Xc': -333, 'W0': -252, 'W1': -103, 'W2': -30, 'W3': 5, 'W4': 38, 'W5': 99, 'W6': 130, 'W7': 188, 'K0': -210, 'K1': -148, 'V0': -54, 'K2': 67, 'V1': 155, 'K3': 221, 'V2': 291, 'K4': 349, 'V3': 409, 'K5': 473, 'V4': 534, 'K6': 598, 'V5': 662, 'K7': 829, 'V6': 747, 'V7': 904},
}
if OPT["plan"] == 9: wI = {"W0": -210, "W1": -135, "W2": -60, "W3": 6, "W4": 38, "W5": 80, "W6": 110, "W7": 150}
elif OPT["plan"] == 10: wI = {"W0": -215, "W1": -145, "W2": -75, "W3": 6, "W4": 38, "W5": 70, "W6": 104, "W7": 140}
elif OPT["plan"]: wI = PLANS[OPT["plan"]]; xI = {}
ISS, SLOT, _c, NEED = ringplan.plan(OPT["i0"], OPT["dk"], wI, xI)
assert SLOT is not None
SPR = {}; TIMES = {}
for t in ISS:
    m = ISS[t] % 1200
    sp = OPT["ksp"] if t[0] in "KV" else OPT["wsp"]
    if OPT["uni"] and t[0] in "KV":
        ts_ = [ISS[t] + (OPT["dk"]*i + 2)//4 for i in range(4)]
        for i in range(4):
            for edge in (0, 240, 288, 1200):
                if edge - 4 <= ts_[i] < edge + 2: ts_[i] = edge + 2
        TIMES[t] = ts_; continue
    if 228 <= m < 288: ISS[t] += 290 - m; m = 290
    SPR[t] = min(sp, ((240 if m < 288 else 1200) - 5 - m)//3); assert SPR[t] >= 1
    TIMES[t] = [ISS[t] + SPR[t]*i for i in range(4)]
BASE = {}
for ch in "KVW":
    for i, b in enumerate(ringplan.bases([SLOT[f"{ch}{i}"] for i in range(8)])[1]): BASE[f"{ch}{i}"] = b
XB = min(SLOT["Xa"], SLOT["Xb"], SLOT["Xc"]); assert max(SLOT["Xa"], SLOT["Xb"], SLOT["Xc"]) - XB <= 3
NEXT = sorted([t for t in ISS if ISS[t] < 0 and t[0] in "WX"], key=lambda t: (t != "W0", ISS[t]))
print("plan:", ISS, SLOT, BASE, NEXT, file=sys.stderr)
TILE = {}
def lit(x): return hex(x & 0xffffffff)
def rebase(rg, typ, old, new, e, d, after=()):
    if old == new: return []
    regs_ = vK if typ == "K" else [vVb if typ == "V" else vWb]
    return [rg.F(V(f"v_add_u32 {r}, {lit((new - old)*16384)}, {r}", rd=[r], wr=[r], e=e, d=d, deps=[(a, 0) for a in after if a])) for r in regs_]
def wq_t0(dst, step):
    hf, dg = ORD[step]
    return [f"s_add_u32 {dst}, {sWcol}, {sDg[dg]}"] + ([f"s_xor_b32 {dst}, {dst}, 128"] if hf else [])
def x_t0(dst, a, q):
    return [f"s_lshr_b32 {dst}, {sDg[q]}, 12"] + ([f"s_add_u32 {dst}, {dst}, {a*65536}"] if a else [])
def tile_src(spec):
    k = spec[0]
    if k == "W": return srdW, vDW, wq_t0(sT[0], spec[1]), sD, NTW
    if k == "C": return srdW, vDW, [f"s_add_u32 {sT[0]}, {sC[spec[1]]}, {sH[spec[2]]}"], sD, NTW
    if k == "N": return srdW, vDW, [f"s_mov_b32 {sT[0]}, {sN[spec[1]]}"], sD, NTW
    if k == "Y": return srdX, vDX, [f"s_mov_b32 {sT[0]}, {sN[spec[1]]}"], sDY, NTX
    if k == "X": return srdX, vDX, x_t0(sT[0], spec[1], spec[2]), sDY, NTX
def add_dmas(rg, items):
    ev = []
    for (name, spec, slot, e, sp, bar) in items:
        for i, t in (sp if isinstance(sp, list) else [(i, e + sp*i) for i in range(4)]): ev.append((t, e, i, name, spec, slot, bar))
    ev.sort(key=lambda x: (x[0], x[1]))
    prev = None; cur = None; wopen = None; ts = None; lastw = None; m0 = None
    for (t, e0, i, name, spec, slot, bar) in ev:
        deps = []
        if bar is not None: deps.append((bar, 0))
        if prev is not None: deps.append((prev, 1))
        if cur != slot:
            m0 = rg.F(Op(f"s_add_u32 m0, {sW4k}, {slot*16384}", "t", wr=["m0"], e=t - 6, deps=([(prev, 1)] if prev else []))); cur = slot
        deps.append((m0, 1))
        if spec[0] in "KV":
            so, vo, srd = (sKoff, vDK, srdK) if spec[0] == "K" else (sVoff, vDV, srdV)
            st = rg.inc.get(spec[0])
            if st is not None and i == 0: deps.append((st, 0))
            o = rg.F(Op(f"buffer_load_dwordx4 {vo}, {srd}, {so} offen offset:{i*1024}{NTKV[spec[0]] if (rg.name != 'R1f' or OPT['fnt']) else ''} lds", "vm", rd=[vo, so, "m0"], e=t, d=t + 4, deps=deps))
            if i == 3:
                inc = rg.F(Op(f"s_add_u32 {so}, {so}, 0x4000", "t", rd=[so], wr=[so], deps=[(o, 1)], d=t + 12))
                if name[1] == "7":
                    inc = rg.F(Op(f"s_and_b32 {so}, {so}, 0x7ffff", "t", rd=[so], wr=[so], deps=[(inc, 0)], d=t + 14))
                    nr = "s10" if name[0] == "K" else "s14"
                    rg.F(S(f"s_cmp_eq_u32 {sHead}, 3", deps=[(o, 1)])); inc2 = rg.F(S(f"s_cselect_b32 {nr}, 0, {nr}", d=t + 20))
                rg.inc[spec[0]] = inc
        else:
            srd, vo, t0, dl, fl = tile_src(spec)
            if i == 0:
                assert wopen is None, "W-type tiles may not interleave"
                wopen = name
                tt = rg.F(Op(t0[0], "t", wr=[sT[0]], e=t - 12, deps=([(lastw, 1)] if lastw else [])))
                for x in t0[1:]: tt = rg.F(Op(x, "t", wr=[sT[0]], deps=[(tt, 0)]))
                ts = [tt]
                ts += [rg.F(Op(f"s_add_u32 {sT[j]}, {sT[0]}, {dl[j]}", "t", wr=[sT[j]], deps=[(ts[0], 0)])) for j in (1, 2, 3)]
            o = rg.F(Op(f"buffer_load_dwordx4 {vo}, {srd}, {sT[i]} offen offset:{i*1024}{fl} lds", "vm", rd=[vo, sT[i], "m0"], e=t, d=t + 4, deps=deps + [(ts[i], 0)]))
            if i == 3: wopen = None; lastw = o
        if i == 3: TILE.setdefault(name, []).append(o)
        if i == 0: rg.first_dma[name] = o
        prev = o
    rg.lastw = lastw
def head_dmas(rg, lo, hi):
    items = []
    for t in ISS:
        mine = [(i, x % 1200 - lo) for i, x in enumerate(TIMES[t]) if lo <= x % 1200 < hi]
        if not mine: continue
        m = ISS[t] % 1200
        spec = (t[0],) if t[0] in "KV" else (("W", int(t[1])) if ISS[t] >= 0 else (("N" if t[0] == "W" else "Y"), NEXT.index(t)))
        cands = [g for g in rg.bars if g + lo <= m and any(SLOT[p] == SLOT[t] and NEED[p][1] % 1200 == g + lo for p in NEED)] if mine[0][0] == 0 else []
        bar = rg.bars[max(cands)] if cands else None
        items.append((t, spec, SLOT[t], mine[0][1], mine, bar))
    if OPT["stress"]:
        for g in range(lo + 20, hi - 12, OPT["stress"]):
            o = rg.F(Op(f"buffer_load_dword a241, {vDK}, {srdWS}, s75 offen nt", "vm", e=g - lo, d=g - lo + 6))
            rg.F(Op("s_add_u32 s75, s75, 0x1000", "t", deps=[(o, 1)], d=g - lo + 10))
    add_dmas(rg, items)
def dma_linear(name, spec, slot):
    ops = lin(f"s_add_u32 m0, {sW4k}, {slot*16384}")
    if spec[0] in "KV":
        so, vo, srd = (sKoff, vDK, srdK) if spec[0] == "K" else (sVoff, vDV, srdV)
        d = [Op(f"buffer_load_dwordx4 {vo}, {srd}, {so} offen offset:{i*1024}{NTKV[spec[0]]} lds", "vm") for i in range(4)]
        ops += lin("s_nop 0") + d + lin(f"s_add_u32 {so}, {so}, 0x4000")
    else:
        srd, vo, t0, dl, fl = tile_src(spec)
        d = [Op(f"buffer_load_dwordx4 {vo}, {srd}, {sT[i]} offen offset:{i*1024}{fl} lds", "vm") for i in range(4)]
        ops += lin("\n".join(t0) + "\n" + "\n".join(f"s_add_u32 {sT[i]}, {sT[0]}, {dl[i]}" for i in (1, 2, 3))) + d
    TILE.setdefault(name, []).append(d[-1])
    return ops
def reads_X(rg, addr, slots, dst, e, d, deps, step=1):
    ops = []
    for t in range(3):
        for s in range(4):
            r_, imm = addr(slots[t], s)
            ops.append(rg.F(Op(f"ds_read_b128 {dst(s, t)}, {r_} offset:{imm}", "ds", rd=[r_], wr=[dst(s, t)], e=e, d=d + len(ops)*step,
                               deps=list(deps) + ([(ops[-1], 0)] if ops else []))))
    return ops

def new_region(name):
    rg = Region(name); rg.nst = {"R1": 0, "R1f": 0, "R2": 6, "G": 0, "G0": 0}.get(name, 5)
    ext_waits(rg)
    if OPT['wstrict']: rg.ldspol = (lambda k: (4, 3)) if name != 'R2' else (lambda k: (4, 3) if k < 90 else (OPT['lrate'], OPT['lburst']))
    rg.tuse = {0: [], 1: []}; rg.bars = {}; rg.inc = {}; rg.first_dma = {}; rg.wq = bool(OPT["nperm"]) and name[0] != "G"
    return rg

def xor_addr(rg, base, k, ti, e, d, after=()):
    if k == 0: return base, None
    deps = [(x, 0) for x in rg.tuse[ti]] + [(a, 0) for a in after]
    o = rg.F(V(f"v_xor_b32 {vT[ti]}, {k*32}, {base}", rd=[base], wr=[vT[ti]], e=e, d=d, deps=deps))
    rg.tuse[ti] = []
    return vT[ti], o
def reads_W(rg, so, mt, buf, e, deps=(), ups=(), rsp=None):
    if rg.wq:
        if mt == 2: a, xo = xor_addr(rg, vWb, 2, 0, e - 8, e, ups)
        else: a, xo = (vWb if mt < 2 else vT[0]), None
        so += 8*(mt & 1)
    else: a, xo = xor_addr(rg, vWb, mt, mt & 1, e - 8, e, ups)
    dp = list(deps) + ([(xo, 1)] if xo else [(u, 1) for u in ups])
    ops = []
    for s in range(4):
        for p in range(2):
            ops.append(rg.F(Op(f"ds_read_b64_tr_b16 {FR(buf, s, p)}, {a} offset:{so + s*4096 + p*2048}", "ds", rd=[a], wr=[FR(buf, s, p)],
                               e=e, d=min(e + 1 + len(ops)*(rsp or OPT['rspw' if OPT['wstrict'] else 'rsp'])//8, e + 9), deps=dp + ([(ops[-1], 0)] if ops else []))))
    if rg.wq:
        if mt >= 2: rg.tuse[0] = ops
    elif xo: rg.tuse[mt & 1] = ops
    rg.lastWr = ops
    return ops, xo
def reads_K(rg, so, u, buf, e, deps=(), ups=()):
    ops = []
    for s in range(4):
        ops.append(rg.F(Op(f"ds_read_b128 {FR(buf, s)}, {vK[s]} offset:{so + u*1024}", "ds", rd=[vK[s]], wr=[FR(buf, s)],
                           e=e, d=e + 3 + len(ops)*OPT['rk'], deps=list(deps) + [(x, 1) for x in ups] + ([(ops[-1], 0)] if ops else []))))
    return ops
def reads_V(rg, so, dp_, buf, e, deps=(), ups=(), late=0):
    ops = []; xs = []
    for k in range(2):
        dt = 2*dp_ + k
        a, xo = xor_addr(rg, vVb, dt, k, e - 10, e + 4*k, ups)
        if xo: xs.append(xo)
        dd = list(deps) + ([(xo, 1)] if xo else [(u, 1) for u in ups])
        mine = []
        for sg in range(2):
            for p in range(2):
                o = rg.F(Op(f"ds_read_b64_tr_b16 {FR(buf, 2*k + sg, p)}, {a} offset:{so + sg*2048 + p*1024}", "ds", rd=[a], wr=[FR(buf, 2*k + sg, p)],
                            e=e, d=(e + 2 + len(ops)*OPT['rsp']//8) if not late else (e + 3 + 2*len(ops) if k == 0 else e + 5 + (len(ops)*5)//4), deps=dd + ([(ops[-1], 0)] if ops else [])))
                ops.append(o); mine.append(o)
        if xo: rg.tuse[k] = mine
    return ops, xs

def barrier(rg, gap, last_reads, tiles, extra=(), lg0=True, st=True):
    w = rg.F(WAIT(gap - 1, need_ds=last_reads, need_vm=list(tiles) + list(extra), lg0=lg0, late=1))
    w.deps += [(x, 1) for x in extra if x in rg.fill]
    b = rg.F(Op("s_barrier", "w", e=gap, d=gap, deps=[(w, 1)])); rg.bars[gap] = b
    if OPT["bst"] and st:
        w.pre = "s_memtime s[2:3]"
        i = rg.nst; rg.nst += 1
        rg.F(V(f"v_writelane_b32 {vLane}, s2, {i}", e=gap + 1, d=gap + 8))
    return b
def xstamp(rg, gap, idx, dep):
    if OPT["bst"] < 2: return
    w = rg.F(Op("s_memtime s[2:3]\ns_waitcnt lgkmcnt(0)", "w", e=gap, d=gap, deps=[(dep, 1)]))
    rg.F(V(f"v_writelane_b32 {vLane}, s2, {idx}", deps=[(w, 0)], d=gap))
def ext_waits(rg):
    rg.xw = []
    for d in (-1, 1):
        w = WAIT(d, late=1); w.e = d; rg.F(w); rg.xw.append(w)
def bind_ext(rg, preds):
    rg.xw[0].alt_ds = [p[:4] for p in preds]; rg.xw[1].alt_ds = list(preds)
def frag_waits(rg, rd_ops, first_use, n_first, second_use, only_first=False):
    if rd_ops is None: return
    rg.F(WAIT(first_use - 1, need_ds=rd_ops[:n_first], late=2))
    if n_first < len(rd_ops) and not only_first: rg.F(WAIT(second_use - 1, need_ds=rd_ops, late=1))

def so_(sb): return (sb[0] - sb[1])*16384
def w_step(rg, half, zero, Bop, pend, cur, nxt, need, extra=(), more_reads=(), xwait=None, post=None, nobar=False):
    b0 = rg.n(); info = dict(b0=b0); xlast = None
    if xwait:
        for t in range(3): rg.F(WAIT(b0 + 4*t - 1, need_ds=xwait[:4*t + 4], late=1))
        info["xbar"] = barrier(rg, b0 + 10, xwait, (), lg0=False, st=False)
    for mt in range(4):
        buf = C.grp & 1; C.grp += 1
        g0 = b0 + 12*mt
        if pend is not None and (mt < 3 or BDW): frag_waits(rg, pend, g0, 4, g0 + 2, only_first=(mt == 3 and not nobar))
        for t in range(3):
            for s in range(4):
                acc = OA(4*half + mt, t)
                rg.M(mfma(acc, FR(buf, s), Bop(s, t), "0" if (zero and s == 0) else acc))
        if mt < 3:
            pend, xo = reads_W(rg, so_(cur[1:3]), mt + 1, buf ^ 1, g0 - 1 if (mt or b0) else g0)
            if xo: xlast = xo
            if mt == 0 and rg.wq: base_users = pend
            if mt == 2: bar = None if nobar else barrier(rg, g0 + 11 + BDW, pend + list(more_reads), need, extra)
        else:
            ups = rebase(rg, nxt[0], nxt[3], nxt[2], b0 + 20, g0 - 2, after=([xlast] + (base_users if rg.wq else [])) if nxt[0] == "W" else [])
            if nxt[0] == "W": pend, _ = reads_W(rg, so_(nxt[1:3]), 0, buf ^ 1, g0 - 1 + (0 if nobar else BDW), deps=([] if nobar else [(bar, 0)]), ups=ups, rsp=(4 if post else None))
            else: pend = reads_K(rg, so_(nxt[1:3]), 0, buf ^ 1, g0 - 1 + BDW, deps=[(bar, 0)], ups=ups)
            if post: info["post"] = post(g0, bar)
    info["bar"] = bar; info["end"] = rg.n() - 1
    return pend, info
def TS(name, prev=None):
    k, i = name[0], int(name[1])
    return (k, SLOT[name], BASE[name], BASE[f"{k}{(i - 1) % 8}"])

def softmax(rg, g0, u, Sr, pbuf, d_over, d_puse):
    sg = u >> 1
    for t in range(3):
        last = rg.mf[g0 + 4*t + 3]
        dl = min(d_over(t), d_puse(t) - 3)
        ex = [rg.F(V8(f"v_exp_f32 {Sr(t,i)}, {Sr(t,i)}", rd=[Sr(t,i)], wr=[Sr(t,i)], e=last.gap, sdeps=[(last, 8)], trans=True)) for i in range(4)]
        for j in range(2):
            dst = PBr(pbuf, sg, t, 2*(u & 1) + j)
            rg.F(V(f"v_cvt_pk_bf16_f32 {dst}, {Sr(t,2*j)}, {Sr(t,2*j+1)}", rd=[Sr(t,2*j), Sr(t,2*j+1)], wr=[dst], d=dl,
                   sdeps=[(ex[2*j], 1), (ex[2*j+1], 1)]))
def k_mfmas(rg, buf, Sd):
    for t in range(3):
        for s in range(4):
            rg.M(mfma(Sd(t), FR(buf, s), QV(s, t), "0" if s == 0 else Sd(t)))
def v_mfmas(rg, dp_, buf, pbuf, zero, tmajor=False):
    order = [(k, t) for t in range(3) for k in range(2)] if tmajor else [(k, t) for k in range(2) for t in range(3)]
    last = {}
    for k, t in order:
        for sg in range(2):
            acc = OA(2*dp_ + k, t)
            last[(2*dp_ + k, t)] = rg.M(mfma(acc, FR(buf, 2*k + sg), PB(pbuf, sg, t), "0" if (zero and sg == 0) else acc))
    return last
def sum_mfmas(rg, t, pbuf, zero):
    for sg in range(2):
        o = rg.M(mfma(LA(t), ONES, PB(pbuf, sg, t), "0" if (zero and sg == 0) else LA(t)))
    return o
def o_epilogue_ops(dt, t):
    mul = [V(f"v_mul_f32 {OAr(dt,t,i)}, {vRL[t]}, {OAr(dt,t,i)}", rd=[OAr(dt,t,i), vRL[t]], wr=[OAr(dt,t,i)]) for i in range(4)]
    cvt = []
    for j in range(2):
        dst = OPr(dt >> 1, t, 2*(dt & 1) + j)
        cvt.append(V(f"v_cvt_pk_bf16_f32 {dst}, {OAr(dt,t,2*j)}, {OAr(dt,t,2*j+1)}", rd=[OAr(dt,t,2*j), OAr(dt,t,2*j+1)], wr=[dst],
                     deps=[(mul[2*j], 0), (mul[2*j+1], 0)]))
    for o in mul + cvt: o.ot = (dt, t)
    return mul, cvt
def q_muls(rg, mt, t, last, **kw):
    return [rg.F(V(f"v_mul_f32 {OAr(mt,t,i)}, {sScale}, {OAr(mt,t,i)}", rd=[OAr(mt,t,i)], wr=[OAr(mt,t,i)],
                   e=(last.gap if last is not None else -1), sdeps=([(last, 8)] if last is not None else []), **kw)) for i in range(4)]
def q_epilogue(rg, sp, t, lastA, lastB, d_use, muls=True):
    cv = []
    for k, last in ((0, lastA), (1, lastB)):
        mt = 2*sp + k
        mul = q_muls(rg, mt, t, last) if muls else None
        for j in range(2):
            dst = QVr(sp, t, 2*k + j)
            cv.append(rg.F(V(f"v_cvt_pk_bf16_f32 {dst}, {OAr(mt,t,2*j)}, {OAr(mt,t,2*j+1)}", rd=[OAr(mt,t,2*j), OAr(mt,t,2*j+1)], wr=[dst],
                             deps=([(mul[2*j], 0), (mul[2*j+1], 0)] if muls else []))))
    if OPT["nperm"]:
        for o in cv: o.d = d_use - 3
        return
    for j in range(2):
        a, b = QVr(sp, t, j), QVr(sp, t, 2 + j)
        p1 = rg.F(V8(f"v_permlane32_swap_b32 {a}, {b}", rd=[a, b], wr=[a, b], sdeps=[(cv[j], 2), (cv[2+j], 2)]))
        rg.F(V8(f"v_permlane16_swap_b32 {a}, {b}", rd=[a, b], wr=[a, b], sdeps=[(p1, 2)], d=d_use - 3))

def BopQ(st):
    dg = ORD[st][1]
    return (lambda s, t: XA(4*dg + s, t)) if dg < 3 else (lambda s, t: QV(s, t))

def build_R2():
    rg = new_region("R2")
    C.grp = 24
    pend, i6 = w_step(rg, ORD[6][0], False, BopQ(6), None, TS("W6"), TS("W7"), ["W7"])
    pend, i7 = w_step(rg, ORD[7][0], False, BopQ(7), pend, TS("W7"), TS("K0"), ["K0"])
    a0 = rg.n(); b7 = i7["b0"]
    for sp in (0, 1):
        for t in range(3): q_epilogue(rg, sp, t, None, None, min(a0 + 4*t + sp, 20 + (sp*3 + t)*9), muls=True)
    for sp in (2, 3):
        for t in range(3):
            mA, mB = 2*sp - 4, 2*sp - 3
            q_epilogue(rg, sp, t, rg.mf[b7 + 12*mA + 4*t + 3], rg.mf[b7 + 12*mB + 4*t + 3], a0 + 4*t + sp)
    B = lambda i: a0 + 48 + 102*i
    def layout(i):
        order = ["KVKVKVKV", "KKVKVKVV", "KKKVKVVV", "KKKKVVVV"][OPT["b0"] if i == 0 else 0]
        res = []; off = 0; n = {"K": 0, "V": 0}
        for ch in order:
            res.append((ch, n[ch], off)); off += 12 + (2 if (ch == "V" and n[ch] < 3) else 0); n[ch] += 1
        return res
    def puse(i, sg, t): return (B(i) + [o for (k, j, o) in layout(i) if k == "V"][0] + 2*t + sg) if i < 7 else (B(7) + 4*t + sg)
    def so(n): return so_(TS(n)[1:3])
    def rb(n, e, d, after=()): x = TS(n); return rebase(rg, x[0], x[3], x[2], e, d, after)
    for u in range(4):
        buf = C.grp & 1; C.grp += 1; g0 = rg.n()
        if u < 3 or BDW: frag_waits(rg, pend, g0, 2, g0 + 2, only_first=(u == 3))
        k_mfmas(rg, buf, lambda t: OA(u, t))
        softmax(rg, g0, u, lambda t, i: OAr(u, t, i), 0, lambda t: 10**9, lambda t: puse(0, u >> 1, t))
        if u < 3:
            pend = reads_K(rg, so("K0"), u + 1, buf ^ 1, g0 - 1)
            if u == 2: bar = barrier(rg, g0 + 11 + BDW, pend, ["K1", "V0"]); lastK = pend
        else:
            ups = rb("K1", g0 - 12, g0 - 2, lastK)
            pend = reads_K(rg, so("K1"), 0, buf ^ 1, g0 - 1 + BDW, deps=[(bar, 0)], ups=ups)
            upsV = rb("V0", -1, g0)
    for i in range(7):
        b0 = rg.n(); assert b0 == B(i)
        lay = layout(i); usedV = False; tmp = 7
        for n_, (kind, u, off) in enumerate(lay):
            buf = C.grp & 1; C.grp += 1; g0 = rg.n(); assert g0 == b0 + off
            last = n_ == 7
            if kind == "K":
                frag_waits(rg, pend, g0, 2, g0 + 2)
                if lay[n_ + 1][0] == "K":
                    dt = tmp; tmp -= 1
                    vstart = b0 + [o for (k, j, o) in lay if k == "V" and j == dt >> 1][0]
                    Sd = (lambda dt: lambda t: OA(dt, t))(dt); Sr = (lambda dt: lambda t, j: OAr(dt, t, j))(dt)
                    dov = (lambda v, dt: lambda t: v + 6*(dt & 1) + 2*t - 1)(vstart, dt)
                else:
                    Sd = lambda t: R("v", S0 + 4*t, 4); Sr = lambda t, j: f"v{S0 + 4*t + j}"
                    later = [b0 + o for m_, (k, j, o) in enumerate(lay) if k == "K" and j > u and lay[m_ + 1][0] != "K"]
                    nxtK = later[0] if later else (B(i+1) if i < 6 else None)
                    dov = (lambda x: lambda t: x + 4*t - 1)(nxtK) if nxtK else (lambda t: 10**9)
                k_mfmas(rg, buf, Sd)
                softmax(rg, g0, u, Sr, (i + 1) & 1, dov, (lambda u: lambda t: puse(i + 1, u >> 1, t))(u))
            else:
                if not last or BDA: frag_waits(rg, pend, g0, 4, g0 + 6, only_first=last)
                v_mfmas(rg, u, buf, i & 1, i == 0)
                if u < 3: sum_mfmas(rg, u, i & 1, i == 0)
            if not last:
                nk, nu, _ = lay[n_ + 1]
                if nk == "K":
                    pend = reads_K(rg, so(f"K{i+1}"), nu, buf ^ 1, g0 - 1)
                    if nu == 3: lastK = pend
                else:
                    pend, xs = reads_V(rg, so(f"V{i}"), nu, buf ^ 1, g0 - 1, ups=(upsV if nu == 0 else ()), late=(OPT["vlate"] if nu < 3 else 0))
                    if nu == 3: bar = barrier(rg, b0 + 89 + BDA, pend, [f"K{i+2}", f"V{i+1}"] if i < 6 else ["V7"]); lastX = xs
            elif i < 6:
                ups = rb(f"K{i+2}", g0 - 20, g0 - 2, lastK)
                pend = reads_K(rg, so(f"K{i+2}"), 0, buf ^ 1, g0 - 1 + BDA, deps=[(bar, 0)], ups=ups)
                upsV = rb(f"V{i+1}", g0 - 10, g0 + 4, lastX)
            else:
                upsV = rb("V7", g0 - 10, g0 - 2, lastX)
                pend, _ = reads_V(rg, so("V7"), 0, buf ^ 1, g0 - 1 + BDA, late=0, deps=[(bar, 0)], ups=upsV)
    E = rg.n(); assert E == B(7)
    epi = []
    for p in range(4):
        buf = C.grp & 1; C.grp += 1; g0 = rg.n()
        if p == 0: frag_waits(rg, pend, g0, 4, g0 + 2)
        elif p < 3 or BDW: frag_waits(rg, pend, g0, 4, g0 + 6, only_first=(p == 3))
        last = v_mfmas(rg, p, buf, 1, False, tmajor=(p == 0))
        if p == 0:
            rl = []; lr = []
            for t in range(3):
                ls = sum_mfmas(rg, t, 1, False)
                lr.append(rg.F(V(f"v_accvgpr_read_b32 {vRL[t]}, a{240+4*t}", rd=[f"a{240+4*t}"], wr=[vRL[t]], e=ls.gap, sdeps=[(ls, 8)], d=E + 28)))
            mn = rg.F(V(f"v_min3_f32 {vA}, {vRL[0]}, {vRL[1]}, {vRL[2]}", rd=vRL, wr=[vA], deps=[(x, 0) for x in lr], d=E + 30))
            mx = rg.F(V(f"v_max3_f32 {vB}, {vRL[0]}, {vRL[1]}, {vRL[2]}", rd=vRL, wr=[vB], deps=[(x, 0) for x in lr], d=E + 30))
            rg.F(V(f"v_cmp_gt_f32 {sBad}, {sLo}, {vA}", rd=[vA], wr=[sBad], deps=[(mn, 0)], d=E + 40))
            rg.F(V(f"v_cmp_lt_f32 vcc, {sHi}, {vB}", rd=[vB], wr=["vcc"], deps=[(mx, 0)], d=E + 40))
            for t in range(3):
                rl.append(rg.F(V8(f"v_rcp_f32 {vRL[t]}, {vRL[t]}", rd=[vRL[t]], wr=[vRL[t]], deps=[(mn, 0), (mx, 0)], trans=True, d=E + 34)))
        for (dt, t), lm in last.items():
            mul, cvt = o_epilogue_ops(dt, t)
            for o in mul: o.e = lm.gap; o.sdeps = [(lm, 8), (rl[t], 1)]
            for o in mul + cvt:
                o.optional = True
                if dt >= 4 and o in cvt: o.e = 10**9
                rg.F(o); epi.append(o)
        if p < 3:
            pend, xs = reads_V(rg, so("V7"), p + 1, buf ^ 1, g0 - 1 if p != 0 else g0 + 3)
            if p == 2: bar = barrier(rg, g0 + 11 + BDW, pend, ["W0", "Xa", "Xb", "Xc"])
        else:
            ups = rb("W0", -1, g0 - 2, [])
            for o in ups: o.e = a0
            if OPT["nperm"]: ups = ups + [rg.F(V(f"v_mad_i32_i24 {vWb}, {vC}, {sGate}, {vWb}", rd=[vC, vWb], wr=[vWb], e=a0, d=g0 - 4))]
            pend, _ = reads_W(rg, so("W0"), 0, buf ^ 1, g0 - 1 + BDW, deps=[(bar, 0)], ups=ups, rsp=8)
    assert sorted(g + 288 for g in rg.bars) == ringplan.bS[6:] + [ringplan.bQ] + ringplan.bB + [ringplan.bP]
    if OPT["pf3"]:
        g = OPT["pf3"]
        c1 = rg.F(V(f"v_mbcnt_lo_u32_b32 {vA}, -1, 0", wr=[vA], e=g - 30, d=g - 3))
        c2 = rg.F(V(f"v_mbcnt_hi_u32_b32 {vA}, -1, {vA}", rd=[vA], wr=[vA], deps=[(c1, 0)], d=g - 2))
        c3 = rg.F(V(f"v_lshlrev_b32 {vA}, 7, {vA}", rd=[vA], wr=[vA], deps=[(c2, 0)], d=g - 1))
        rg.F(Op(f"buffer_load_dword {vB}, {vA}, s[76:79], s75 offen", "vm", rd=[vA], wr=[vB], deps=[(c3, 1)], e=g, d=g + 5))
    head_dmas(rg, 288, 1200)
    rg.pendW0 = pend; rg.epi = epi
    rg.schedule()
    return rg

def half0_muls(rg, b4):
    for mt in range(4):
        for t in range(3): q_muls(rg, mt, t, rg.mf[b4 + 12*mt + 4*t + 3])

def build_R1(left):
    rg = new_region("R1")
    C.grp = 0
    xa = [rg.F(V(f"v_add_u32 v{S0+s}, {sW1k}, {vK[s]}", rd=[vK[s]], wr=[f"v{S0+s}"], d=6)) for s in range(4)]
    xr = reads_X(rg, lambda sl, s: (f"v{S0+s}", (sl - XB)*16384), [SLOT["Xa"], SLOT["Xb"], SLOT["Xc"]], QV, 4, 9, [(a, 1) for a in xa], step=2)
    pend = None; infos = []
    for st in range(5):
        pend, inf = w_step(rg, ORD[st][0], st in (0, 3), BopQ(st), pend, TS(f"W{st}"), TS(f"W{st+1}"), [f"W{st+1}"], more_reads=(xr if st == 0 else ()))
        infos.append(inf)
    new = {}
    for o in left:
        dt, t = o.ot
        n = V(o.text, rd=list(o.rd), wr=list(o.wr)); n.ot = o.ot; new[id(o)] = n
        n.deps = [(new[id(p)], g) for (p, g) in o.deps if id(p) in new]
        n.e = 8 if dt >= 6 else -1
        n.d = ((12*dt + 4*t) if dt < 4 else (144 + 12*(dt - 4) + 4*t)) - 1
        rg.F(n)
    head_dmas(rg, 0, 240)
    rg.pend = pend
    rg.schedule()
    return rg

def build_R1b(h, zst=None):
    rg = new_region(f"R1b{h}")
    C.grp = 20
    pend, inf = w_step(rg, ORD[5][0], False, BopQ(5), None, TS("W5"), TS("W6"), ["W6"])
    for i in range(48): rg.F(V(f"v_accvgpr_write_b32 a{ZB[h-1] + i}, v{PV0 + i}", rd=[f"v{PV0+i}"], wr=[f"a{ZB[h-1]+i}"]))
    head_dmas(rg, 240, 288)
    next_setup(rg, h)
    rg.pend = pend
    rg.schedule()
    return rg

def next_setup(rg, h):
    T = lambda x, **kw: rg.F(S(x, **kw))
    if h < 3:
        T(f"s_add_u32 {sWcol}, {sWcol}, 256", deps=([(rg.lastw, 1)] if getattr(rg, "lastw", None) else []))
        T(f"s_and_b32 {sWcol}, {sWcol}, 0x3ff")
        for t in NEXT:
            if t[0] == "W":
                for x in wq_t0(sN[NEXT.index(t)], int(t[1])): T(x)
    if h == 2:
        a = T(f"s_lshl_b32 {sTmp}, {sB}, 2")
        if not OPT["bst"]: rg.dbg = rg.F(Op(f"buffer_load_dword {vLane}, off, {srdD}, {sTmp} sc1", "vm", wr=[vLane], deps=[(a, 0)]))
    if h == 3:
        for x in ("s_mov_b32 s16, s80", "s_mov_b32 s17, s81", "s_mov_b32 s18, 0x80000", "s_mov_b32 s20, s80", "s_mov_b32 s21, s81", "s_mov_b32 s22, 0x80000",
                  f"s_mov_b32 {sGate}, 1"): T(x)
        for i in (1, 2, 3): T(f"s_mov_b32 {sD[i]}, {7168*i}"); T(f"s_mov_b32 {sDY[i]}, {7168*i}")
        for m in range(6): T(f"s_add_u32 {sN[m]}, {sRot if m < 4 else sC[0]}, {sH[m & 3]}")
        if OPT["pf3"]:
            for x in ("s_add_u32 s76, s76, L_g3-L_loop", "s_addc_u32 s77, s77, 0", "s_mov_b32 s78, L_codeend-L_g3"): T(x)
        if OPT["tlb"] == 1:
            sw = T(f"s_mov_b32 {sTmp}, {hex(FLAG_BASE + 0x20080)}")
            for srd, so in ((srdW, "0"), (srdWS, "s75"), (srdWS, sTmp), (srdO, sOutR)):
                rg.F(Op(f"buffer_load_dword {vB}, off, {srd}, {so}", "vm", wr=[vB], deps=[(sw, 0)]))
        rg.F(V(f"v_mov_b32 {vDW}, {vDWo}", rd=[vDWo], wr=[vDW])); rg.F(V(f"v_mov_b32 {vDX}, {vDWo}", rd=[vDWo], wr=[vDX]))

def build_R1f():
    X = lambda q: [f"x{q}{a}" for a in range(3)]
    final = [t for t in ISS if ISS[t] < 288 and t[0] in "KV"] + ["W6", "W7"]
    fk = sorted([t for t in final if t[0] in "KV"], key=lambda t: ISS[t]); assert 3 <= len(fk) <= 7
    OF = [0, 3, 1, 2, 4, 5] if OPT["kvlate"] == 8 else list(range(6))
    if OPT["kvlate"] == 8:
        init = X(0) + ["w0", "w1"] + X(1) + ["w2", "x20"]
        inh = list(zip(["x21", "x22", "w3"], X(0))) + [("x30", "w0"), ("x31", "w1")] + list(zip(["x32", "w4", "w5"], X(1))) + [("W6", "w2")] + \
              list(zip(["W7", fk[0], fk[1]], X(2))) + [(fk[2], "w3")] + list(zip(fk[3:], X(3) + ["w4"]))
    elif OPT["kvlate"] != 4:
        init = X(0) + ["w0"] + X(1) + ["w1", "K0", "K1"]
        inh = list(zip(X(2), X(0))) + [("w2", "w0")] + list(zip(["w3", "x30", "x31"], X(1))) + [("x32", "w1")] + \
              list(zip(["w4", "V0", "w5"], X(2))) + [("K2", "w2"), ("W6", "w3")] + list(zip(["V1", "W7", "K3"], X(3))) + ([("V2", "w4")] if len(fk) == 7 else [])
    else:
        init = X(0) + ["w0"] + X(1) + ["w1", "x20", "x21"]
        inh = list(zip(["x22", "w2", "w3"], X(0))) + [("x30", "w0")] + list(zip(["x31", "x32", "w4"], X(1))) + [("w5", "w1")] + \
              list(zip(["W6", "W7", fk[0]], X(2))) + [(fk[1], "w2"), (fk[2], "w3")] + list(zip(fk[3:], X(3) + ["w4"]))
    sl = {t: SLOT[t] for t in final}
    for new, old in reversed(inh):
        if new in sl: sl[old] = sl[new]
    free = [x for x in range(10) if x not in {sl[t] for t in init if t in sl}]
    for t in init:
        if t not in sl: sl[t] = free.pop()
    for new, old in inh: sl[new] = sl[old]
    def spec(t):
        if t[0] == "x": return ("X", int(t[2]), int(t[1]))
        if t[0] == "w": return ("W", OF[int(t[1])])
        if t[0] == "W": return ("W", int(t[1]))
        return (t[0],)
    wsl = [sl[f"w{j}"] for j in range(6)] + [SLOT["W6"]]
    wb = [min(x, 6) for x in wsl[:6]] + [BASE["W6"]]
    rg = new_region("R1f")
    C.grp = 0
    xaddr = lambda s_, s: (f"v{S0 + 4*(s_ >> 2) + s}", (s_ & 3)*16384)
    sh = 1 if OPT["kvlate"] == 8 else 0
    dst = {sh: (1, lambda s, t: XA(4 + s, t)), 1 + sh: (2, lambda s, t: XA(8 + s, t)), 3: (3, QV)}
    pend = None; infos = []; xw = None
    for st in range(6):
        post = None; need = [f"w{st+1}" if st < 5 else "W6"]
        if st in dst:
            q, fn = dst[st]; need += X(q)
            post = (lambda q, fn: lambda g0, bar: reads_X(rg, xaddr, [sl[t] for t in X(q)], fn, g0 + 2 + BDW, g0 + 5 + BDW, [(bar, 0)]))(q, fn)
        pend, inf = w_step(rg, ORD[OF[st]][0], OF[st] in (0, 3), BopQ(OF[st]), pend, ("W", wsl[st], wb[st]), ("W", wsl[st+1], wb[st+1], wb[st]), need, xwait=xw, post=post)
        xw = inf.get("post"); infos.append(inf)
    rel = {"w%d" % j: infos[j]["bar"] for j in range(6)}
    for q, st in ((1, 1 + sh), (2, 2 + sh), (3, 4)):
        for t in X(q): rel[t] = infos[st]["xbar"]
    items = []; tcur = 0
    if OPT["kvlate"] == 8: seq = [(t, None) for t in ("w2", "x20", "x21", "x22", "w3")] + inh[3:]
    elif OPT["kvlate"] != 4:
        seq = [(t, None) for t in ("x20", "x21", "x22")] + inh[3:]
        kp = {0: (3, 4), 1: (8, 9), 2: (4, 9), 3: (9, 12), 5: (0, 5), 6: (3, 7), 7: (3, 4)}[OPT["kvlate"]]
        seq.insert(kp[0], ("K0", None)); seq.insert(kp[1], ("K1", None))
    else: seq = [(t, None) for t in ("x20", "x21", "x22", "w2", "w3")] + inh[3:]
    for new, old in seq:
        if old: tcur = max(tcur, rel[old].e)
        if 5 <= OPT["kvlate"] < 8 and new == "K3": tcur = max(tcur, 255)
        sp = OPT["fsp"] if (new[0] not in "KV" or OPT["kvlate"] not in (4, 8)) else OPT["fkv"]
        cnt = sum(1 for x in TIMES[new] if x < 288) if new in TIMES else 4
        if OPT["kvlate"] == 7 and new[0] in "KV":
            t0, sp = {"K0": (18, 11), "K1": (62, 11), "V0": (112, 9), "K2": (150, 11), "V1": (206, 8), "K3": (240, 9), "V2": (278, 2)}[new]
            items.append((new, spec(new), sl[new], t0, [(i, t0 + sp*i) for i in range(cnt)], rel[old] if old else None)); continue
        items.append((new, spec(new), sl[new], tcur, [(i, tcur + sp*i) for i in range(cnt)], rel[old] if old else None)); tcur += 4*sp + (1 if sp == OPT["fsp"] else OPT["fgap"])
    add_dmas(rg, items)
    next_setup(rg, 0)
    rg.pend = pend
    rg.schedule()
    rg.init = [(t, spec(t), sl[t]) for t in init[:8]]; rg.wb0 = wb[0]; rg.wso0 = (wsl[0] - wb[0])*16384
    rg.x0 = [xaddr(sl[t], 0) for t in X(0)]; rg.xsl0 = [sl[t] for t in X(0)]; rg.xaddr = xaddr
    return rg

RLD = [[R("v", QV0 + 4*g, 4) for g in range(8)],
       [R("v", QV0 + 32 + 4*g, 4) for g in range(4)] + [R("v", S0 + 4*g, 4) for g in range(3)] + ["v[236:239]"]]
vTo = vLane if not OPT['bst'] else 'v235'
vSt, vFl, vPo, vPr, vOut = vDK, vDV, vVb, vDX, vC
LAG = OPT['lag']; OSC = ['', ' sc1', ' nt', ' sc0 sc1'][OPT['osc']]
NTST = ' nt' if OPT['ntst'] else ''
LO = ["v249", "v250", "v251", "v253"]
def pack_store(chunk):
    res = []
    for t in range(3):
        for np_ in range(2):
            a, b = 4*chunk + 2*np_, 4*chunk + 2*np_ + 1
            src = [(OAr(a,t,0), OAr(a,t,1)), (OAr(a,t,2), OAr(a,t,3)), (OAr(b,t,0), OAr(b,t,1)), (OAr(b,t,2), OAr(b,t,3))]
            cv = []
            for j in range(4):
                cv.append(V(f"v_cvt_pk_bf16_f32 {OAr(a,t,j)}, {src[j][0]}, {src[j][1]}", rd=list(src[j]), wr=[OAr(a,t,j)], deps=([(cv[-1], 0)] if cv else [])))
            k = 2*t + np_
            sa = S(f"s_add_u32 {sU[k & 1]}, {sSt}, {k*8192}", wr=[sU[k & 1]])
            st = Op(f"buffer_store_dwordx4 {OA(a,t)}, {vSt}, {srdWS}, {sU[k & 1]} offen@SC", "vm", rd=[OA(a,t), vSt], deps=[(cv[-1], 1), (sa, 0)])
            res.append((cv, sa, st))
    return res
def reduce_ops(set_):
    X = [regs(r_) for r_ in RLD[set_]]
    tmp = [vA, vB]; ops = []; n = 0
    for k in range(4):
        ops += [V(f"v_lshlrev_b32 {LO[k]}, 16, {X[0][k]}", rd=[X[0][k]], wr=[LO[k]]),
                V(f"v_and_b32 {X[0][k]}, {sMask}, {X[0][k]}", rd=[X[0][k]], wr=[X[0][k]])]
        for g in range(1, 8):
            tm = tmp[n & 1]; n += 1
            ops += [V(f"v_lshlrev_b32 {tm}, 16, {X[g][k]}", rd=[X[g][k]], wr=[tm]),
                    V(f"v_and_b32 {X[g][k]}, {sMask}, {X[g][k]}", rd=[X[g][k]], wr=[X[g][k]]),
                    V(f"v_add_f32 {LO[k]}, {LO[k]}, {tm}", rd=[LO[k], tm], wr=[LO[k]]),
                    V(f"v_add_f32 {X[0][k]}, {X[0][k]}, {X[g][k]}", rd=[X[0][k], X[g][k]], wr=[X[0][k]])]
        ops.append(V(f"v_cvt_pk_bf16_f32 {X[0][k]}, {LO[k]}, {X[0][k]}", rd=[LO[k], X[0][k]], wr=[X[0][k]]))
    for a, b in zip(ops, ops[1:]): b.deps.append((a, 0))
    pl = []
    for j in range(2):
        pl.append(V8(f"v_permlane32_swap_b32 {X[0][j]}, {X[0][2+j]}", rd=[X[0][j], X[0][2+j]], wr=[X[0][j], X[0][2+j]], sdeps=[(ops[-1], 2)]))
    for j in range(2):
        pl.append(V8(f"v_permlane16_swap_b32 {X[0][j]}, {X[0][2+j]}", rd=[X[0][j], X[0][2+j]], wr=[X[0][j], X[0][2+j]], sdeps=[(pl[j], 2)]))
    st = Op(f"buffer_store_dwordx4 {RLD[set_][0]}, {vOut}, {srdO}, {sOut} offen{OSC}", "vm", rd=[RLD[set_][0], vOut, sOut], deps=[(pl[2], 1), (pl[3], 1)])
    return ops, pl, st
def red_loads(set_):
    return [Op(f"buffer_load_dwordx4 {RLD[set_][g]}, {vSt}, {srdWS}, {sLd if g < 4 else sLd2} offen offset:{(g & 3)*1024} sc1", "vm",
               rd=[vSt], wr=[RLD[set_][g]]) for g in range(8)]
def sig_ops():
    return [Op(f"buffer_store_dword {vSt}, {vFl}, {srdWS}, {sSig} offen@SC", "vm", rd=[vSt, vFl])]
def scal_A():
    return [f"s_sub_u32 {sTmp}, {sIt}, 1", f"s_and_b32 {sTmp}, {sTmp}, {sSlM}", f"s_mul_i32 {sTmp}, {sTmp}, {CHUNK}",
            f"s_add_u32 {sSt}, {sStR}, {sTmp}", f"s_add_u32 {sLd}, {sLdR}, {sTmp}", f"s_add_u32 {sLd2}, {sLd}, 0x1000",
            f"s_add_u32 {sSig}, {sSig}, 256"]
def scal_B():
    return [f"s_add_u32 {sOut}, {sOutR}, {sOc}", f"s_add_u32 {sOc}, {sOc}, 128", f"s_and_b32 {sOc}, {sOc}, 0x3ff", f"s_add_u32 {sIt}, {sIt}, 1"]

def build_G(first=False, left=()):
    rg = new_region("G0" if first else "G"); L = "F" if first else ""
    used = [SLOT[t] for t in NEXT]
    gs = used + [SLOT["K0"]] + [x for x in range(10) if x not in used and x not in (SLOT["K0"], SLOT["K1"], SLOT["V0"])][:1]
    assert len(gs) == 8
    gb = ringplan.bases(gs, BASE["W0"])[1]
    items = []; bars = {}; st_last = {}; rg.touch = []
    C.grp = 0
    def Bop(h): return (lambda s, t: ZA(h, s, t)) if h < 3 else (lambda s, t: OP(s, t))
    LD = [red_loads(0), red_loads(1)] if first else G_LD
    pend = None; prev_users = []
    if first:
        new = {}
        for o in left:
            dt, t = o.ot
            n = V(o.text, rd=list(o.rd), wr=list(o.wr)); new[id(o)] = n
            n.deps = [(new[id(p)], g) for (p, g) in o.deps if id(p) in new]
            n.e = 8 if dt >= 6 else -1
            n.d = (12*dt + 4*t - 1) if dt < 4 else (144 + 4*t + (dt >> 1) - 3)
            rg.F(n)
        cs = []
        for x in f"""v_mbcnt_lo_u32_b32 {vA}, -1, 0
v_mbcnt_hi_u32_b32 {vA}, -1, {vA}
v_lshlrev_b32 {vSt}, 4, {vA}
v_and_b32 {vPo}, 7, {vA}
v_lshlrev_b32 {vPo}, 2, {vPo}
v_lshrrev_b32 {vB}, 4, {vA}
v_bfe_u32 {vOut}, {vA}, 2, 2
v_and_b32 {vA}, 3, {vA}
v_lshl_add_u32 {vA}, {vOut}, 4, {vA}
v_lshlrev_b32 {vA}, 10, {vA}
v_lshl_add_u32 {vOut}, {vB}, 4, {vA}
v_mov_b32 {vFl}, {hex(OOB)}""".split("\n"):
            cs.append(rg.F(V(x, e=(0 if len(cs) < 3 else 40), d=110, deps=[(cs[-1], 0)] if cs else [])))
        sc = [rg.F(S(x)) for x in (f"s_lshl_b32 s5, {sG}, 2", f"s_cmp_eq_u32 {sWave}, 0", f"s_cselect_b32 s5, s5, {hex(OOB)}", f"s_mov_b32 {sMask}, 0xffff0000",
                                   f"s_mov_b32 {sLd}, {sLdR}", f"s_add_u32 {sLd2}, {sLd}, 0x1000", f"s_mov_b32 {sSig}, {sFlR}", f"s_mov_b32 {sExp}, 16")]
        wl = rg.F(V(f"v_writelane_b32 {vFl}, s5, 1", deps=[(cs[-1], 0), (sc[2], 0)], d=120))
        prev = None
        for k in range(2):
            if k: a1 = rg.F(S(f"s_add_u32 {sLd}, {sLd}, {CHUNK}", deps=[(prev, 1)])); a2 = rg.F(S(f"s_add_u32 {sLd2}, {sLd}, 0x1000"))
            for i, o in enumerate(red_loads(k)):
                o.text = o.text.replace(" sc1", ""); o.tag = "touch"
                o.e = (OPT["gdma"] + 84 if k else 8) + 4*i; o.d = o.e + 3
                o.deps = [(cs[2], 1), ((a2 if k else sc[5]), 0)] + ([(prev, 1)] if prev else []); rg.F(o); prev = o; rg.touch.append(o)
        last0 = prev
        f = 48; prevm = None
        seq = [(f"v_lshrrev_b32 v{f}, 4, {vSt}", 0), (f"v_lshrrev_b32 v{f+1}, 4, v{f}", 0), (f"v_and_b32 v{f+2}, 1, v{f}", 0), (f"v_lshlrev_b32 v{f+2}, 4, v{f+2}", 0),
               (f"v_mov_b32 v{f+3}, 0x3f80", 0), (f"v_lshlrev_b32 v{f+2}, v{f+2}, v{f+3}", 0), (f"v_bfe_u32 v{f+3}, v{f}, 1, 1", 0), (f"v_bfe_u32 v{f+4}, v{f}, 3, 1", 0),
               (f"v_lshl_add_u32 v{f+3}, v{f+4}, 1, v{f+3}", 0), (f"v_bfe_u32 v{f+4}, v{f}, 2, 1", 0), (f"v_lshlrev_b32 v{f+4}, 1, v{f+4}", 0), (f"v_add_u32 v{f+5}, 1, v{f+4}", 0),
               (f"v_cmp_eq_u32 vcc, v{f+1}, v{f+4}", 0), (f"v_cmp_eq_u32 {sBad}, v{f+1}, v{f+5}", 0),
               (f"v_cndmask_b32 v{f+6}, 0, v{f+2}, vcc", 2), (f"v_cndmask_b32 v{f+7}, 0, v{f+2}, {sBad}", 0)]
        for r_ in range(4):
            seq += [(f"v_cmp_eq_u32 vcc, {r_}, v{f+3}", 0), (f"v_cndmask_b32 v{f}, 0, v{f+6}, vcc", 2), (f"v_cndmask_b32 v{f+1}, 0, v{f+7}, vcc", 0),
                    (f"v_accvgpr_write_b32 a{48+r_}, v{f}", 0), (f"v_accvgpr_write_b32 a{52+r_}, v{f+1}", 0)]
        for x, n_ in seq:
            prevm = rg.F(V(x, rd=[f"v[{f}:{f+7}]"], wr=[f"v[{f}:{f+7}]"], e=152, d=188, deps=([(prevm, 0)] if prevm else []), sdeps=([(prevm, n_)] if n_ else [])))
    for hf in range(2):
        h0 = 192*hf
        do_st = not (first and hf == 0); do_sum = not first
        stores = []
        if do_st:
            for (cv, sa, st) in pack_store(1 - hf):
                for o in cv: o.e = h0 + 8; rg.F(o)
                if len(stores) >= 2: sa.deps.append((stores[-2], 1))
                rg.F(sa); st.e = h0 + 10 + OPT['gst']*len(stores); st.d = st.e + 3; rg.F(st); stores.append(st)
        if do_sum:
            sc = [rg.F(S(x, e=h0, deps=[(u, 1) for u in prev_users])) for x in scal_B()]
            if hf == 0: sB0 = sc[-1]
            cur = hf ^ 1
            w0 = rg.F(WAIT(h0 + OPT['gsum'], need_vm=LD[cur] + (G_LD0 if hf == 0 else []), late=1)); w0.e = h0 + OPT['gsum']
            o0, p0, s0_ = reduce_ops(cur)
            o0[0].deps.append((w0, 0))
            for o in o0 + p0 + [s0_]: rg.F(o)
            s0_.d = h0 + OPT['gout']; s0_.deps += [(sc[0], 0), (LD[hf][-1], 1)]
            prev_users = [s0_]
        infos = []
        for j in range(4):
            st = 4*hf + j
            n1 = (st + 1) & 7
            pend, inf = w_step(rg, hf, j == 0, Bop(j), pend, ("W", gs[st], gb[st]), ("W", gs[n1], gb[n1], gb[st]), [f"G{n1}"] + ([f"G{(st + 2) & 7}"] if OPT["gb2"] else []),
                               extra=(stores if j == 1 else ()), nobar=(OPT["gb2"] and not (j & 1)))
            infos.append(inf); bars[st] = inf["bar"]
            if OPT["gb2"] and (j & 1): bars[st - 1] = inf["bar"]
        if do_st:
            sig, = sig_ops(); bs = infos[1]["bar"]
            sig.deps = [(bs, 0)]; sig.d = bs.e + 1; rg.F(sig)
            rg.F(S(f"s_load_dwordx8 s[8:15], s[82:83], {sSig}", e=h0 + OPT['gpoll'], d=h0 + OPT['gpoll'] + 4))
            b2 = infos[2]["bar"]
            if b2 is None:
                b2 = rg.F(WAIT(h0 + 132, lg0=True, late=1)); b2.e = h0 + 132
            for x in ("s_and_b32 s8, s8, s9", "s_and_b32 s10, s10, s11", "s_and_b32 s12, s12, s13", "s_and_b32 s14, s14, s15",
                      "s_and_b32 s8, s8, s10", "s_and_b32 s12, s12, s14", "s_and_b32 s8, s8, s12", "s_bitcmp0_b32 s8, 4"): rg.F(S(x, deps=[(b2, 0)]))
            br = rg.F(Op(f"s_cbranch_scc1 L_spinG{hf}{L}@L\nL_backG{hf}{L}@L:", "s", d=b2.e + 12))
            prev = None
            for i, o in enumerate(LD[hf]):
                o.deps += [(br, 0)] + ([(prev, 1)] if prev else []); o.e = b2.e + 10 + OPT['gld']*i; o.d = o.e + 3; rg.F(o); prev = o
            lastld = LD[hf][-1]
        else: lastld = last0
        if first: rg.F(S(f"s_mov_b32 {sIt}, {hf + 1}", deps=[(lastld, 1)]))
        for i, x in enumerate(scal_A()): rg.F(S(x, deps=[(lastld, 1)] if i == 0 else []))
        for k in range(4):
            st = (4*hf - 2 + k) & 7
            items.append((f"G{st}", ("C", (1 + (st >> 2)) if (hf or k > 1) else 0, st & 3), gs[st], h0 + OPT["gdma"] + k*(4*OPT["gdsp"] + 1) + (4 if (OPT["gb2"] and k > 1) else 0), OPT["gdsp"],
                          bars[st] if (hf or k > 1) else None))
        if stores: st_last[hf] = stores[-1]
    add_dmas(rg, items)
    if not first:
        c1 = S(f"s_cmp_ge_u32 {sIt}, 7", deps=[(TILE["G7"][-1], 1)]); c2 = S("s_cselect_b32 s18, 0, s18", wr=["s18"], rd=["s18"])
        pos = rg.fill.index(sB0) + 1
        rg.fill[pos:pos] = [c1, c2]
        for i, o in enumerate(rg.fill): o.seq = i + 1
        rg.first_dma["G0"].deps.append((c2, 0))
        rg.first_dma["G6"].deps.append((st_last[0], 1))
    rg.first_dma["G2"].deps.append((st_last[1], 1))
    rg.LD = LD; rg.pend = pend
    rg.schedule()
    return rg

def stamp(kind=0):
    if not OPT["stamps"]: return []
    def put(x): return lin(f"v_mov_b32 {vA}, {x}") + [Op(f"buffer_store_dword {vA}, off, {srdWS}, s101", "vm")] + lin("s_add_u32 s101, s101, 4\ns_nop 1")
    if kind == 1: return put("s94") + put("s92") + ((lin("s_waitcnt lgkmcnt(0)") + put("s84") + put("s92") + put("s86") + put("s92")) if OPT["stamps"] == 4 else []) + stamp()
    if kind == 2: return lin("s_waitcnt vmcnt(0)") + stamp()
    return lin("s_memtime s[2:3]\ns_memrealtime s[4:5]\ns_waitcnt lgkmcnt(0)") + put("s2") + put("s4")

def code_pf(lbl, start, end, mask, r):
    if not OPT["pf"]: return []
    return lin(f"""s_getpc_b64 s[{r}:{r+1}]
{lbl}:
s_add_u32 s{r}, s{r}, {start}-{lbl}
s_addc_u32 s{r+1}, s{r+1}, {"-1" if start == KN else "0"}
s_mov_b32 s{r+2}, {end}-{start}
s_mov_b32 s{r+3}, 0x20000
s_lshl_b32 s5, {sIdx}, 2
s_add_u32 s5, s5, {sWave}
s_and_b32 s5, s5, {mask}
s_lshl_b32 s5, s5, 13
v_mbcnt_lo_u32_b32 {vA}, -1, 0
v_mbcnt_hi_u32_b32 {vA}, -1, {vA}
v_lshlrev_b32 {vA}, 7, {vA}""") + [Op(f"buffer_load_dword {vB}, {vA}, s[{r}:{r+3}], s5 offen", "vm")]

HROT = {0: "s_mov_b32 s5, 0", 1: "s_mov_b32 s5, s4", 2: f"s_mov_b32 s5, {sG}", 3: f"s_add_u32 s5, s4, {sG}", 4: f"s_lshr_b32 s5, {sG}, 1",
        5: f"s_lshr_b32 s5, {sB}, 3", 6: f"s_lshr_b32 s5, {sG}, 2\ns_lshl_b32 s3, {sG}, 1\ns_or_b32 s5, s5, s3", 7: f"s_sub_u32 s5, 0, {sG}", 8: f"s_lshl_b32 s5, {sG}, 2", 9: f"s_lshl_b32 s5, s4, 2"}[OPT["hrot"]]
if OPT["krot"] < 3:
    KROT = f"""{f"s_add_u32 s4, {sB}, {sG}" if OPT["krot"] == 2 else ""}
s_and_b32 s4, s4, {3 if OPT["krot"] else 0}
s_lshl_b32 {sDg[0]}, s4, 20
s_add_u32 {sDg[1]}, {sDg[0]}, 0x100000
s_and_b32 {sDg[1]}, {sDg[1]}, 0x3fffff
s_xor_b32 {sDg[2]}, {sDg[0]}, 0x200000
s_xor_b32 {sDg[3]}, {sDg[1]}, 0x200000"""
else:
    KROT = f"""s_add_u32 s5, {sB}, {sG}
s_mul_i32 s3, s5, 43
s_lshr_b32 s3, s3, 7
s_mul_i32 s3, s3, 3
s_sub_u32 s5, s5, s3
s_add_u32 {sDg[3]}, s4, 3
s_add_u32 {sDg[0]}, s4, s5
s_cmp_eq_u32 s5, 2
s_cselect_b32 s3, -2, 1
s_add_u32 {sDg[1]}, {sDg[0]}, s3
s_cmp_eq_u32 s5, 0
s_cselect_b32 s3, 2, -1
s_add_u32 {sDg[2]}, {sDg[0]}, s3""" + "".join(f"\ns_and_b32 {sDg[q]}, {sDg[q]}, 3\ns_lshl_b32 {sDg[q]}, {sDg[q]}, 20" for q in range(4))
def prologue(F):
    init = F.init
    o = lin(f"""
s_cmp_lt_u32 s2, 256
s_cbranch_scc1 L_go
s_endpgm
L_go:
{"s_memrealtime s[92:93]" if (OPT["stamps"] or OPT["dbl"]) else ""}
{"s_memtime s[94:95]" if OPT["stamps"] else ""}
s_load_dwordx16 s[68:83], s[0:1], 0
v_lshrrev_b32 v1, 6, v0
v_and_b32 {vLane}, 63, v0
s_and_b32 s4, s2, 7
v_readfirstlane_b32 {sWave}, v1
s_lshr_b32 s5, s2, 3
s_mov_b32 {sIdx}, s5""")
    mp = {84: (1, 3, 2, 1, 2, 3), 48: (0, 2, 3, 0, 3, 7), 162: (2, 4, 1, 3, 1, 1)}[OPT["mapping"]]
    o += lin(f"""
s_lshr_b32 s6, s4, {mp[0]}
s_lshl_b32 s6, s6, {mp[1]}
s_lshr_b32 s7, s5, {mp[2]}
s_add_u32 {sB}, s6, s7
s_and_b32 s6, s4, {mp[3]}
s_lshl_b32 s6, s6, {mp[4]}
s_and_b32 s7, s5, {mp[5]}
s_add_u32 {sG}, s6, s7""")
    cbits = struct.unpack("<I", struct.pack("<f", math.log2(math.e)/math.sqrt(128)))[0]
    o += lin(f"""
s_lshl_b32 {sW4k}, {sWave}, 12
v_lshrrev_b32 v5, 4, {vLane}
v_and_b32 v6, 15, {vLane}
s_lshl_b32 s6, {sWave}, 4
v_add_u32 v1, s6, v5
s_lshl_b32 s6, {sWave}, 2
v_or_b32 v2, s6, v5
v_xor_b32 v2, v2, v6
v_lshlrev_b32 v2, 4, v2
v_lshl_add_u32 {vDX}, v1, 10, v2
v_lshl_add_u32 {vDK}, v1, 8, v2
v_lshrrev_b32 v7, 5, {vLane}
v_bfe_u32 v2, {vLane}, 3, 2
v_lshl_add_u32 v7, v7, 3, v2
s_lshl_b32 s6, {sWave}, 5
v_add_u32 v7, s6, v7
v_and_b32 v3, 7, {vLane}
v_lshlrev_b32 v4, 1, v5
v_xor_b32 v3, v3, v4
v_lshlrev_b32 v3, 4, v3
s_mov_b32 {sDY[1]}, 3072
s_mov_b32 {sDY[2]}, 6144
s_mov_b32 {sDY[3]}, 9216
s_mov_b32 {sD[1]}, {16*8192 - 1024}
s_mov_b32 {sD[2]}, {4*8192 - 2048}
s_mov_b32 {sD[3]}, {20*8192 - 3072}
s_lshr_b32 s4, {sB}, 2
{HROT}
s_bfe_u32 {sSw}, s5, {"0x10002" if OPT["hswap"] else "0x00002"}
s_and_b32 s5, s5, {3 if OPT["hrot"] else 0}
s_mov_b32 {sHr}, s5
s_lshl_b32 {sWcol}, s5, 8
s_lshl_b32 {sSw}, {sSw}, 7
s_or_b32 {sWcol}, {sWcol}, {sSw}
s_lshr_b32 {sSw}, {sSw}, 1
v_xor_b32 v7, {sSw}, v7
v_lshl_add_u32 {vDW}, v7, 13, v3
s_lshl_b32 {sKoff}, s5, 17
s_mov_b32 {sVoff}, {sKoff}
{KROT}
s_mul_i32 s7, {sB}, {0 if OPT["samex"] else 196608}
s_mov_b32 s22, 196608
s_mov_b32 s23, 0x20000
s_mov_b32 s19, 0x20000
s_lshl_b32 s4, {sG}, 10
{"s_mov_b32 s4, 0" if OPT["samew"] else ""}
s_sub_u32 s18, 0x400000, s4
s_waitcnt lgkmcnt(0)
s_add_u32 s20, s68, s7
s_addc_u32 s21, s69, 0
s_add_u32 s16, s74, s4
s_addc_u32 s17, s75, 0""")
    if OPT["tch"]:
        o += lin(f"""v_lshrrev_b32 v8, 1, {vLane}
v_and_b32 v9, 1, {vLane}
v_lshlrev_b32 v9, 7, v9
v_lshl_add_u32 v11, v8, 13, v9
v_lshl_add_u32 v8, v8, 10, v9
v_mov_b32 v10, {hex(OOB)}
v_cmp_gt_u32 vcc, 12, {vLane}
s_lshl_b32 s4, {sG}, 2
s_add_u32 s4, s4, {sWave}
s_mul_i32 s4, s4, 6144
v_cndmask_b32 v8, v10, v8, vcc
v_cmp_gt_u32 vcc, 16, {vLane}
s_and_b32 s5, {sB}, 3
s_lshl_b32 s5, s5, 2
s_add_u32 s5, s5, {sWave}
s_lshl_b32 s5, s5, 16
s_add_u32 s5, s5, {sWcol}
v_cndmask_b32 v11, v10, v11, vcc
v_add_u32 v8, s4, v8
v_add_u32 v11, s5, v11""")
        for q in range(OPT["tch"] - 1, 4):
            o += lin(f"s_lshr_b32 s3, {sDg[q]}, 12")
            o += [Op(f"buffer_load_dword {vB}, v8, {srdX}, s3 offen", "vm"), Op(f"buffer_load_dword {vB}, v11, {srdW}, {sDg[q]} offen", "vm")]
    if OPT["stamps"] == 4: o += lin("s_memtime s[84:85]")
    for j in range(4): o += dma_linear(*init[j])
    if OPT["stamps"] == 4: o += lin("s_memtime s[86:87]")
    o += lin(f"""s_lshl_b32 s3, {sB}, 22
s_lshl_b32 s7, {sG}, 19
s_add_u32 s3, s3, s7
{"s_mov_b32 s3, 0" if OPT["samekv"] else ""}
s_add_u32 s8, s70, s3
s_addc_u32 s9, s71, 0
s_mov_b32 s10, 0x80000
s_mov_b32 s11, 0x20000
s_add_u32 s12, s72, s3
s_addc_u32 s13, s73, 0
s_mov_b32 s14, 0x80000
s_mov_b32 s15, 0x20000
""")
    if OPT["tlb"]:
        o += [Op(f"buffer_load_dword {vB}, off, {srdK}, 0", "vm"), Op(f"buffer_load_dword {vB}, off, {srdV}, 0", "vm")]
        o += [Op(f"buffer_load_dword {vB}, off, {srdW}, {sDg[q]}", "vm") for q in (1, 2, 3)]
    o += code_pf("L_pc", KN, "L_g3", OPT["pf"] - 1, 88)
    o += lin(f"""
v_lshrrev_b32 v7, 3, {vLane}
v_add_u32 v7, s6, v7
v_lshl_add_u32 {vDWo}, v7, 10, v3
s_and_b32 s6, {sWave}, 1
s_lshl_b32 s6, s6, 2
v_or_b32 v2, s6, v5
v_lshlrev_b32 v2, 1, v2
v_xor_b32 v2, v2, v6
v_lshlrev_b32 v1, 8, v1
v_lshl_add_u32 {vDV}, v2, 4, v1
s_mov_b32 s24, s82
s_mov_b32 s25, s83
s_mov_b32 s26, {hex(WS_BYTES)}
s_mov_b32 s27, 0x20000
v_lshrrev_b32 v1, 3, {vLane}
v_and_b32 v2, 7, {vLane}
v_lshlrev_b32 v1, 8, v1
v_lshl_add_u32 v8, v2, 2, v1
s_lshl_b32 s6, {sB}, 11
s_add_u32 s6, s6, {hex(FLAG_BASE)}
s_or_b32 s7, {sG}, {sWave}
s_cmp_eq_u32 s7, 0
s_cselect_b32 {sTmp}, s6, {hex(OOB)}
v_mov_b32 v9, 0""")
    zst = Op(f"buffer_store_dword v9, v8, {srdWS}, {sTmp} offen sc1", "vm"); o.append(zst)

    o += lin(f"""
s_mov_b32 {sScale}, {hex(cbits)}
s_mov_b32 {sLo}, 0x30800000
s_mov_b32 {sHi}, 0x4e800000
s_mov_b32 {sHead}, 0
s_lshl_b32 {sW1k}, {sWave}, 10
s_mov_b32 s28, s78
s_mov_b32 s29, s79
s_mov_b32 s30, 0x600000
s_mov_b32 s31, 0x20000
s_mov_b32 s32, s80
s_mov_b32 s33, s81
s_mov_b32 s34, 0x100
s_mov_b32 s35, 0x20000

v_lshrrev_b32 v1, 2, v6
v_and_b32 v2, 3, v6
v_lshl_add_u32 v3, v1, 4, v2
v_lshlrev_b32 v3, 8, v3""")
    for s in range(4):
        o += lin(f"s_and_b32 s3, {sWcol}, 128\nv_add_u32 v4, {4*s}, v5\nv_xor_b32 v4, v4, v6\nv_lshl_add_u32 {vK[s]}, v4, 4, v3\nv_xor_b32 {vK[s]}, s3, {vK[s]}")
    o += lin(f"""
v_lshl_add_u32 v3, v5, 4, v1
v_lshlrev_b32 v3, 8, v3
v_and_b32 v4, 1, v5
v_lshl_add_u32 v7, v4, 2, v1
v_lshl_add_u32 v3, v7, 5, v3
v_lshl_add_u32 v3, v2, 3, v3
v_add_u32 {vVb}, {BASE["V7"]*16384}, v3
v_lshl_add_u32 v3, v5, 2, v1
v_lshlrev_b32 v3, 7, v3
v_lshrrev_b32 v7, 1, v1
v_lshl_add_u32 v7, v4, 1, v7
{"v_lshlrev_b32 v7, 1, v7" if OPT["nperm"] else "v_lshl_add_u32 v3, v7, 5, v3"}
{"v_xor_b32 v7, v7, v2" if OPT["nperm"] else ""}
{"v_lshl_add_u32 v7, v7, 4, v3" if OPT["nperm"] else "v_lshl_add_u32 v7, v2, 3, v3"}
v_add_u32 {vWb}, {F.wb0*16384}, v7
v_mov_b32 v3, 0x3f803f80
v_cmp_eq_u32 vcc, 0, v2
s_nop 1
{"v_cndmask_b32 v3, 0, v3, vcc" if OPT["ones4"] else ""}
v_accvgpr_write_b32 a252, v3
v_accvgpr_write_b32 a253, v3
v_accvgpr_write_b32 a254, v3
v_accvgpr_write_b32 a255, v3
""")
    for s in range(4):
        o += lin(f"v_add_u32 v{S0+s}, {sW1k}, {vK[s]}\nv_add_u32 v{S0+4+s}, 0x10000, v{S0+s}\nv_add_u32 v{S0+8+s}, 0x20000, v{S0+s}\nv_add_u32 {vK[s]}, {BASE['K7']*16384}, {vK[s]}")
    o += lin(f"s_add_u32 {sW1k}, {sW1k}, {lit((XB - BASE['K7'])*16384)}")
    for j in range(4, 8): o += dma_linear(*init[j])
    o += lin(f"""s_lshl_b32 s6, {sG}, 19
s_add_u32 s80, s76, s6
s_addc_u32 s81, s77, 0
s_mov_b32 {sGate}, 0
s_lshl_b32 {sH[0]}, {sHr}, 17
s_add_u32 {sH[1]}, {sH[0]}, 0x20000
s_and_b32 {sH[1]}, {sH[1]}, 0x7ffff
s_xor_b32 {sH[2]}, {sH[0]}, 0x40000
s_xor_b32 {sH[3]}, {sH[1]}, 0x40000
{"s_mov_b32 s73, s92" if OPT["dbl"] else ""}
s_getreg_b32 {sXcc}, hwreg(HW_REG_XCC_ID, 0, 3)
s_lshr_b32 {sRot}, {sB}, 2
s_and_b32 {sRot}, {sRot}, {7 if OPT["rot"] else 0}
s_lshl_b32 {sRot}, {sRot}, 7
s_lshl_b32 {sXcc}, {sXcc}, 2
s_lshl_b32 {sXcc}, 1, {sXcc}""" + "".join(f"\ns_add_u32 {sC[i]}, {sRot}, {128*(i+1)}\ns_and_b32 {sC[i]}, {sC[i]}, 0x3ff" for i in range(3))
      + "".join("\n" + "\n".join(x_t0(sN[NEXT.index('X' + 'abc'[a])], a, 3)) for a in range(3)) + f"""
s_mul_i32 s6, {sB}, {8*CHUNK + 4096}
s_mov_b32 s75, s6
s_add_u32 s6, s6, 4096
s_mul_i32 s7, {sWave}, 49152
s_add_u32 {sStR}, s6, s7
s_lshl_b32 s7, {sG}, 10
s_add_u32 {sStR}, {sStR}, s7
s_mul_i32 s7, {sG}, 3
s_add_u32 s7, s7, {sWave}
s_lshl_b32 s4, s7, 13
s_add_u32 {sLdR}, s6, s4
s_lshl_b32 {sFlR}, {sB}, 11
s_add_u32 {sFlR}, {sFlR}, {hex(FLAG_BASE - 256)}
s_lshr_b32 s4, s7, 1
s_mul_i32 s5, s4, 11
s_lshr_b32 s5, s5, 5
s_mul_i32 s3, s5, 3
s_sub_u32 s4, s4, s3
s_lshl_b32 s4, s4, 6
s_lshl_b32 s5, s5, 2
s_add_u32 s4, s4, s5
s_mul_i32 s5, {sB}, 192
s_add_u32 s4, s4, s5
s_lshl_b32 s4, s4, 10
s_and_b32 s5, s7, 1
s_lshl_b32 s5, s5, 6
s_add_u32 {sOutR}, s4, s5
s_mov_b32 {sOc}, {sRot}
s_cmp_eq_u32 {sWave}, 3
s_cselect_b32 {sLdR}, {hex(OOB)}, {sLdR}
s_cselect_b32 {sOutR}, {hex(OOB)}, {sOutR}
v_bfe_u32 v3, {vLane}, 3, 2
v_and_b32 v2, 3, {vLane}
v_lshlrev_b32 {vC}, 5, v3
v_lshl_add_u32 {vC}, v2, 3, {vC}
v_lshlrev_b32 v3, 1, v3
v_xor_b32 v2, v2, v3
v_lshlrev_b32 v2, 4, v2
v_sub_u32 {vC}, {vC}, v2""")
    if OPT["tlb"] == 2:
        o += lin(f"""s_mov_b32 s4, {hex(FLAG_BASE + 0x20080)}
s_mov_b32 s88, s80
s_mov_b32 s89, s81
s_mov_b32 s90, 0x80000
s_add_u32 s5, s75, {8*CHUNK + 4096}""") if False else lin(f"s_mov_b32 s4, {hex(FLAG_BASE + 0x20080)}\ns_add_u32 s5, s75, {8*CHUNK + 4096}")
        o += [Op(f"buffer_load_dword {vB}, off, {srd}, {so}", "vm") for srd, so in ((srdWS, "s75"), (srdWS, "s5"), (srdWS, "s4"), (srdO, sOutR))]
    if OPT["pf3"]:
        o += lin(f"""s_getpc_b64 s[76:77]
L_pc3:
s_add_u32 s76, s76, L_loop-L_pc3
s_addc_u32 s77, s77, 0
s_mov_b32 s78, L_R2-L_loop
s_mov_b32 s79, 0x20000
s_lshl_b32 s75, {sIdx}, 2
s_add_u32 s75, s75, {sWave}
s_and_b32 s75, s75, 15
s_lshl_b32 s75, s75, 13""")
    if OPT["stress"]: o += lin(f"s_lshl_b32 s75, s2, 20\ns_add_u32 s75, s75, 0x8000000\ns_mul_i32 s4, {sWave}, 0x3f000\ns_add_u32 s75, s75, s4")
    if OPT["stamps"]:
        o += lin(f"s_lshl_b32 s101, s2, 10\ns_lshl_b32 s6, {sWave}, 8\ns_add_u32 s101, s101, s6\ns_add_u32 s101, s101, {hex(STAMP_BASE)}")
    if OPT["stamps"] in (2, 4): o += stamp(1)
    o.append(WAIT(0, need_vm=[x[0] for x in init[:4]]))
    o += lin("s_barrier")
    if OPT["stamps"] in (2, 4): o += stamp()
    for t in range(3):
        for s in range(4): o += lin("ds_read_b128 %s, %s offset:%d" % ((XA(s, t),) + F.xaddr(F.xsl0[t], s)))
    for s in range(4):
        for p in range(2): o += lin(f"ds_read_b64_tr_b16 {FR(0, s, p)}, {vWb} offset:{F.wso0 + s*4096 + p*2048}")
    o += lin("s_waitcnt lgkmcnt(0)\ns_barrier")
    return o, zst

def glue0(zst):
    return [WAIT(0, need_vm=[zst])] + lin(f"""s_lshl_b32 s6, {sB}, 2
s_cmp_eq_u32 {sWave}, 0
s_cselect_b32 s6, s6, {hex(OOB)}
v_mov_b32 {vB}, {hex(OOB)}
v_writelane_b32 {vB}, 0, 0
v_mov_b32 {vA}, {sXcc}""") + [Op(f"buffer_atomic_add {vA}, {vB}, {srdD}, s6 offen sc1", "vm")]
def touch_setup():
    return lin(f"""s_cmp_eq_u32 {sSlM}, 1
s_cselect_b32 s4, 256, {hex(OOB)}
v_lshlrev_b32 {vA}, 1, {vA}
v_and_b32 {vA}, 0x700, {vA}
s_add_u32 s4, s4, {sFlR}""") + [Op(f"buffer_load_dword {vB}, {vA}, {srdWS}, s4 offen sc1", "vm")]
def mode_check(dbg):
    if OPT["bst"]: return lin(f"L_chkD:\nL_backD:\ns_mov_b32 {sSlM}, 1")
    return [WAIT(0, need_vm=[dbg])] + lin(f"""s_mov_b32 s3, 0
L_chkD:
v_readfirstlane_b32 s4, {vLane}
s_nop 3
s_lshr_b32 s5, s4, 4
s_and_b32 s5, s5, 0x0f0f0f0f
s_and_b32 s7, s4, 0x0f0f0f0f
s_add_u32 s5, s5, s7
s_mul_i32 s5, s5, 0x01010101
s_lshr_b32 s5, s5, 24
s_cmp_lg_u32 s5, 8
s_cbranch_scc1 L_spinD
L_backD:
s_lshl_b32 s5, {sXcc}, 3
{"s_mov_b32 s5, 0" if OPT["forceslow"] else ""}
s_cmp_eq_u32 s4, s5
s_cselect_b32 {sSlM}, 1, 7""")

def slow_path(placed, pendW0):
    vKo, vVo, vVo2, vKo2 = f"v{PV0+40}", f"v{PV0+41}", f"v{PV0+42}", f"v{PV0+43}"
    M = [f"v{PV0+36+t}" for t in range(3)]
    CN = [R("v", PV0 + 24 + 4*t, 4) for t in range(3)]
    Sx = [R("v", S0 + 4*t, 4) for t in range(3)]
    t_ = f"""
L_slow:
s_waitcnt vmcnt(0) lgkmcnt(0)
s_nop 7
v_mbcnt_lo_u32_b32 {vB}, -1, 0
v_mbcnt_hi_u32_b32 {vB}, -1, {vB}
v_and_b32 {vA}, 15, {vB}
v_lshrrev_b32 {vB}, 4, {vB}
v_lshlrev_b32 {vKo}, 8, {vA}
v_lshl_add_u32 {vKo}, {vB}, 4, {vKo}
s_and_b32 s4, {sWcol}, 128
s_xor_b32 s5, s4, 128
v_add_u32 {vKo2}, s5, {vKo}
v_add_u32 {vKo}, s4, {vKo}
v_lshlrev_b32 {vVo}, 10, {vB}
v_lshl_add_u32 {vVo}, {vA}, 1, {vVo}
v_add_u32 {vVo2}, 0x1000, {vVo}
s_add_u32 s4, {sHr}, {sHead}
s_and_b32 s4, s4, 3
s_lshl_b32 s4, s4, 17
s_mov_b32 s10, 0x80000
s_mov_b32 s14, 0x80000
s_add_u32 s5, s4, 0x20000
s_mov_b32 s6, s4
"""
    for t in range(3): t_ += f"v_mov_b32 {M[t]}, 0xff800000\n"
    t_ += "L_slow1:\n"
    for s in range(4): t_ += f"buffer_load_dwordx4 {FR(0, s)}, {vKo if s < 2 else vKo2}, {srdK}, s6 offen offset:{64*(s & 1)}\n"
    t_ += "s_waitcnt vmcnt(0)\n"
    for t in range(3):
        for s in range(4): t_ += f"v_mfma_f32_16x16x32_bf16 {Sx[t]}, {FR(0, s)}, {QV(s, t)}, {'0' if s == 0 else Sx[t]}\n"
    t_ += "s_nop 9\n"
    for t in range(3):
        t_ += f"v_max3_f32 {M[t]}, {M[t]}, v{S0+4*t}, v{S0+4*t+1}\nv_max3_f32 {M[t]}, {M[t]}, v{S0+4*t+2}, v{S0+4*t+3}\n"
    t_ += "s_add_u32 s6, s6, 0x1000\ns_cmp_lt_u32 s6, s5\ns_cbranch_scc1 L_slow1\n"
    for t in range(3):
        t_ += f"""v_mov_b32 {vA}, {M[t]}
s_nop 1
v_permlane32_swap_b32 {vA}, {M[t]}
s_nop 1
v_max_f32 {M[t]}, {vA}, {M[t]}
v_mov_b32 {vA}, {M[t]}
s_nop 1
v_permlane16_swap_b32 {vA}, {M[t]}
s_nop 1
v_max_f32 {M[t]}, {vA}, {M[t]}
"""
        for i in range(4): t_ += f"v_sub_f32 v{PV0+24+4*t+i}, 0, {M[t]}\n"
    for i in range(96): t_ += f"v_mov_b32 v{i}, 0\n"
    for i in range(12): t_ += f"v_accvgpr_write_b32 a{240+i}, 0\n"
    t_ += "s_mov_b32 s6, s4\nL_slow2:\n"
    for u in range(2):
        for s in range(4): t_ += f"buffer_load_dwordx4 {FR(0, s)}, {vKo if s < 2 else vKo2}, {srdK}, s6 offen offset:{64*(s & 1)}\n"
        t_ += "s_waitcnt vmcnt(0)\n"
        for t in range(3):
            for s in range(4): t_ += f"v_mfma_f32_16x16x32_bf16 {Sx[t]}, {FR(0, s)}, {QV(s, t)}, {CN[t] if s == 0 else Sx[t]}\n"
        t_ += "s_nop 9\n"
        for i in range(12): t_ += f"v_exp_f32 v{S0+i}, v{S0+i}\n"
        t_ += "s_nop 0\n"
        for t in range(3):
            for j in range(2): t_ += f"v_cvt_pk_bf16_f32 {PBr(0, 0, t, 2*u + j)}, v{S0+4*t+2*j}, v{S0+4*t+2*j+1}\n"
        if u == 0: t_ += "s_mov_b32 s7, s6\ns_add_u32 s6, s6, 0x1000\n"
    f = FA0 + 16
    for dt in range(8):
        for j in range(8):
            t_ += f"buffer_load_ushort v{FA0 + j}, {vVo if j < 4 else vVo2}, {srdV}, s7 offen offset:{(j & 3)*256 + 32*dt}\n"
        t_ += "s_waitcnt vmcnt(0)\n"
        for j in range(4): t_ += f"v_lshl_or_b32 v{f + j}, v{FA0 + 2*j + 1}, 16, v{FA0 + 2*j}\n"
        t_ += "s_nop 1\n"
        for t in range(3): t_ += f"v_mfma_f32_16x16x32_bf16 {OA(dt, t)}, v[{f}:{f+3}], {PB(0, 0, t)}, {OA(dt, t)}\n"
    for t in range(3): t_ += f"v_mfma_f32_16x16x32_bf16 {LA(t)}, {ONES}, {PB(0, 0, t)}, {LA(t)}\n"
    t_ += "s_add_u32 s6, s6, 0x1000\ns_cmp_lt_u32 s6, s5\ns_cbranch_scc1 L_slow2\ns_nop 9\n"
    for t in range(3): t_ += f"v_accvgpr_read_b32 {vRL[t]}, a{240+4*t}\n"
    for t in range(3): t_ += f"v_rcp_f32 {vRL[t]}, {vRL[t]}\n"
    t_ += "s_nop 0\n"
    for o in placed: t_ += o.text + "\n"
    for o in pendW0: t_ += o.text + "\n"
    t_ += "s_waitcnt lgkmcnt(0)\n"
    t_ += "s_branch L_join\n"
    return lin(t_)

def spin(lbl, back, reg, off_v, srd, soff, exp):
    return lin(f"""{lbl}:
s_mov_b32 s3, 0
{lbl}_l:
buffer_load_dword {reg}, {off_v}, {srd}, {soff}{' offen' if off_v != 'off' else ''} sc1
s_add_u32 s3, s3, 1
s_waitcnt vmcnt(0)
v_cmp_ne_u32 vcc, {exp}, {reg}
s_cmp_gt_u32 s3, 0x10000
s_cbranch_scc1 {back}
s_nop 2
s_cbranch_vccnz {lbl}_l
s_branch {back}""")

def pad_linear(ops):
    out = []
    for o in ops:
        need = 0
        for (p, n) in o.sdeps:
            if p in out: need = max(need, n - sum(x.w for x in out[out.index(p)+1:]))
        if need > 0:
            nop = Op(f"s_nop {need-1}", "x"); nop.w = need; out.append(nop)
        out.append(o)
    return out

def tail(G):
    X = (lambda: stamp()) if OPT["stamps"] == 3 else (lambda: [])
    def sums(set_, loads):
        o0, p0, s0_ = reduce_ops(set_)
        return [WAIT(0, need_vm=loads)] + pad_linear(o0 + p0 + [s0_])
    def msum(set_, loads):
        A0, A1, D0, D1 = "a[48:51]", "a[52:55]", FR(1, 0), FR(1, 1)
        r = []
        for g in range(8):
            r += [WAIT(0, need_vm=[loads[g]]), mfma(D0, A0, RLD[set_][g], "0" if g == 0 else D0), mfma(D1, A1, RLD[set_][g], "0" if g == 0 else D1)]
        d = regs(D0) + regs(D1); res = regs(FR(1, 2 + set_))
        r += lin("s_nop 7") + [V(f"v_cvt_pk_bf16_f32 {res[j]}, {d[2*j]}, {d[2*j+1]}", rd=[d[2*j], d[2*j+1]], wr=[res[j]]) for j in range(4)]
        return r + [Op(f"buffer_store_dwordx4 {FR(1, 2 + set_)}, {vOut}, {srdO}, {sOut} offen{OSC}", "vm", rd=[FR(1, 2 + set_)])]
    fin = msum if OPT["msum"] else sums
    o = lin("\n".join(scal_B()) + "\ns_nop 1")
    stores = []
    for (cv, sa, st) in pack_store(1):
        o += cv + [sa, st]; stores.append(st)
    o += X() + fin(1, G.LD[1]) + X()
    o += [WAIT(0, need_vm=stores)] + X() + lin("s_barrier") + sig_ops()
    o += lin("s_branch L_spinU@L\nL_backU@L:") + X()
    l7 = red_loads(0); o += l7
    o += lin(f"s_add_u32 {sOut}, {sOutR}, {sOc}")
    if OPT["stamps"] == 3: o += lin("s_waitcnt vmcnt(0)") + X()
    o += fin(0, l7) + X() + X()
    return o

def main():
    R2 = build_R2()
    placed = [o for o in R2.epi if o.gap is not None]; placed.sort(key=lambda o: o.pos)
    R1 = build_R1(R2.left)
    R1b = {h: build_R1b(h) for h in (1, 2, 3)}
    R1f = build_R1f()
    global G_LD, G_LD0
    G0 = build_G(True, R2.left)
    G_LD0 = G0.LD[1]; G_LD = [red_loads(0), red_loads(1)]
    G = build_G()
    bind_ext(R1, [R2.pendW0]); bind_ext(R2, [R1f.pend] + [R1b[h].pend for h in R1b]); bind_ext(G0, [R2.pendW0]); bind_ext(G, [G0.pend, G.pend])
    for h in R1b: bind_ext(R1b[h], [R1.pend])
    for w in R1f.xw: w.text = 's_nop 0'
    pro, zst = prologue(R1f)
    for j, t in enumerate(NEXT): TILE[f'G{j}'] += TILE[t]
    stg = lin(f"""{[f"s_mov_b32 s4, {sG}", f"s_and_b32 s4, {sB}, 3", f"s_mov_b32 s4, {sIdx}"][OPT["stagm"]]}
s_mul_i32 s4, s4, {OPT["stag"]}
L_stg:
s_cmp_eq_u32 s4, 0
s_cbranch_scc1 L_stg2
s_sub_u32 s4, s4, 1
s_branch L_stg
L_stg2:""") if OPT["stag"] else []
    p0 = glue0(zst) + stg + lin("s_branch L_R2")
    sel = lin(f"s_cmp_eq_u32 {sHead}, 2\ns_cbranch_scc1 L_v2\ns_cmp_eq_u32 {sHead}, 3\ns_cbranch_scc1 L_v3")
    v1 = R1b[1].out + lin("s_branch L_R2")
    v2 = lin("L_v2:") + R1b[2].out + lin("s_branch L_R2")
    assert OPT["pf"]
    v3 = lin("L_v3:") + R1b[3].out + mode_check(getattr(R1b[2], "dbg", None)) + (lin(f"v_mbcnt_lo_u32_b32 {vA}, -1, 0\nv_mbcnt_hi_u32_b32 {vA}, -1, {vA}\nv_lshlrev_b32 {vA}, 7, {vA}") if OPT["pf3"] else code_pf("L_pc2", "L_g3", "L_codeend", 15, 76)) + touch_setup()
    g2 = lin(f"s_or_b64 {sBad}, {sBad}, vcc\n{'s_nop 0' if OPT['stress'] else 's_cbranch_scc1 L_slow'}\nL_join:\ns_add_u32 {sHead}, {sHead}, 1\ns_cmp_lt_u32 {sHead}, 4")
    g3 = lin(f"s_cmp_eq_u32 {sSlM}, 7\ns_cbranch_scc1 L_G0S")
    g4 = lin(f"s_mov_b32 {sC[0]}, {sC[2]}\ns_add_u32 {sC[1]}, {sC[0]}, 128\ns_and_b32 {sC[1]}, {sC[1]}, 0x3ff\ns_add_u32 {sC[2]}, {sC[1]}, 128\ns_and_b32 {sC[2]}, {sC[2]}, 0x3ff\ns_cmp_lt_u32 {sIt}, 8")
    T = tail(G)
    sA, sB_, sC_, sD_, sE = stamp(1 if OPT['stamps'] in (1, 3) else 0), stamp(), stamp(), stamp(), stamp(2)
    if OPT["bst"]:
        def dump():
            return lin(f"v_mbcnt_lo_u32_b32 {vA}, -1, 0\nv_mbcnt_hi_u32_b32 {vA}, -1, {vA}\nv_lshlrev_b32 {vA}, 2, {vA}") + [Op(f"buffer_store_dword {vLane}, {vA}, {srdWS}, s101 offen", "vm")] + lin("s_add_u32 s101, s101, 256\ns_nop 1")
        sA = lin(f"s_lshl_b32 s101, s2, 2\ns_add_u32 s101, s101, {sWave}\ns_lshl_b32 s101, s101, 12\ns_add_u32 s101, s101, {hex(DUMP_BASE)}")
        sC_ = dump(); sD_ = dump()
    tr = pro + sA
    for hd in range(4):
        tr += [R1f.out + p0, R1.out + sel + v1, R1.out + sel + v2, R1.out + sel + v3][hd] + sB_ + R2.out + g2 + sC_
    tr += g3
    post = []
    for it in range(3): post += G.out + g4 + sD_
    post += T
    resolve_waits(tr + [x for x in G0.out if x.tag != "touch"] + g4 + sD_ + [x for x in post if x.tag != "fastonly"], TILE)
    tr += G0.out + g4 + sD_ + post
    resolve_waits(tr, TILE)
    errs = check(tr, "main")
    for e in errs[:20]: print(e, file=sys.stderr)
    assert not errs
    for rg in (R1f, R1, R1b[1], R1b[3], R2, G0, G): print(rg.name, "overfull:", rg.overlog, file=sys.stderr)
    out = [open(os.path.join(os.path.dirname(os.path.abspath(__file__)), "header.txt")).read().rstrip()]
    out.append("; @launch grid=(256,1,1) block=(256,1,1) lds=163840")
    out.append(f""".amdgcn_target "amdgcn-amd-amdhsa--gfx950"
; Fused attention block, generated by gen/kernel.py (own gap scheduler, gen/sched.py).
;  - 256 workgroups = (batch b, group g of 4 heads), 4 waves x 48 query rows, one wave per SIMD, 16x16x32 bf16 MFMA.
;    out^T = wo^T O^T; wq / K / V / wo / x tiles (16 KB) stream through a statically planned 10-slot LDS ring by LDS-DMA.
;  - softmax: exp2 of the pre-scaled scores, row sums by MFMA; a run-time range check of the row sums sends a wave to
;    L_slow (two passes with the true row max) whenever the unshifted exponentials could be unsafe.
;    They announce their die in d_debug; if all 8 share one L2 the exchange uses plain stores into two reused slots
;    (L_G0/L_G), otherwise write-through stores into fresh slots (L_G0S/L_GS).
.text
.globl {KN}
.p2align 8
.type {KN},@function
{KN}:""")
    def emit(ops, sc="", lb=""):
        for o in ops:
            if OPT["nobar"] and o.text == "s_barrier" and o.kind == "w": out.append("s_nop 0"); continue
            if OPT["nolg"] and o.kind == "w" and o.text.startswith("s_waitcnt") and "vmcnt" not in o.text: out.append("s_nop 0"); continue
            if OPT["nods"] and o.kind == "ds": continue
            if OPT["novalu"] and o.kind in ("v4", "v8") and o.gap is not None and ("exp" in o.text or "cvt" in o.text or "mul" in o.text or "perm" in o.text or "and" in o.text or "lshl" in o.text or "add_f32" in o.text): continue
            if OPT["nodma"] and o.text.endswith(" lds"): out.append("s_nop 0"); continue
            if OPT["nored"] and " sc1" in o.text and "dwordx4" in o.text: out.append("s_nop 0"); continue
            if getattr(o, "pre", None): out.append(o.pre)
            out.append(o.text.replace("@SC", sc).replace("@L", lb))
    def mark(n):
        return lin("s_memrealtime s[2:3]\ns_waitcnt lgkmcnt(0)\ns_sub_u32 s75, s2, s73") if OPT["dbl"] == n else []
    def idle(n, tag):
        if not n: return []
        return lin(f"""s_memrealtime s[2:3]
s_waitcnt lgkmcnt(0)
s_mov_b32 s5, s2
L_idle{tag}:
s_sleep 2
s_memrealtime s[2:3]
s_waitcnt lgkmcnt(0)
s_sub_u32 s4, s2, s5
s_cmp_lt_u32 s4, {n}
s_cbranch_scc1 L_idle{tag}""")
    def ex(n): return (stamp(2) + lin("s_endpgm")) if OPT["exitat"] == n else []
    emit(pro + mark(3) + idle(OPT['idle0'], 'a') + sA + ex(1) + R1f.out + mark(4) + p0)
    out.append("; ---- head loop: Q-projection steps 0-4, step 5 (three variants), steps 6-7 + attention ----")
    out.append("L_loop:"); emit(R1.out + sel + v1 + v2 + v3); out.append("L_R2:"); emit(idle(OPT['idle1'], 'b') + sB_ + R2.out + g2 + sC_)
    if OPT["dbl"] >= 10:
        emit(lin(f"s_cmp_lg_u32 {sHead}, {OPT['dbl'] - 9}\ns_cbranch_scc1 L_nomark") + mark(OPT["dbl"]) + lin(f"L_nomark:\ns_cmp_lt_u32 {sHead}, 4"))
    if OPT["stamps"] or OPT["bst"]: out.append(f"s_cmp_lt_u32 {sHead}, 4")
    out.append("s_cbranch_scc1 L_loop")
    out.append('; ---- output projection + exchange ----'); out.append('L_g3:'); emit(mark(5) + ex(3) + g3)
    for sc, lb in ((NTST, ""), (" sc1", "S")):
        out.append(f"L_G0{lb}:"); emit([(Op("s_nop 0", "x") if (lb and x.tag == "touch") else x) for x in G0.out] + g4 + sD_, sc, lb)
        out.append(f"L_G{lb}:"); emit(G.out + g4 + sD_, sc, lb)
        if OPT["stamps"] or OPT["bst"]: out.append(f"s_cmp_lt_u32 {sIt}, 8")
        out.append(f"s_cbranch_scc1 L_G{lb}")
        emit([(Op('s_nop 0', 'x') if (lb and x.tag == 'fastonly') else x) for x in T] + sE, sc, lb)
        if OPT["dbl"]:
            emit(lin(f"""s_waitcnt vmcnt(0)
s_memrealtime s[2:3]
s_waitcnt lgkmcnt(0)
{"s_sub_u32 s4, s2, s73" if OPT["dbl"] == 1 else ("s_mov_b32 s4, 500" if OPT["dbl"] == 2 else "s_mul_i32 s4, s75, 4")}
s_min_u32 s4, s4, 40000
s_mov_b32 s5, s2
L_dbl{lb}:
s_sleep 4
s_memrealtime s[2:3]
s_waitcnt lgkmcnt(0)
s_sub_u32 s6, s2, s5
s_cmp_lt_u32 s6, s4
s_cbranch_scc1 L_dbl{lb}"""))
        out.append("s_endpgm")
        if not lb: out.append("L_codeend:")
        for nm in ("G0", "G1", "G1F", "U"): emit(spin(f"L_spin{nm}{lb}", f"L_back{nm}{lb}", vPr, vPo, srdWS, sPoll, sExp))
    emit(lin(f"""L_spinD:
s_add_u32 s3, s3, 1
s_cmp_gt_u32 s3, 0x10000
s_cbranch_scc1 L_backD
s_lshl_b32 {sTmp}, {sB}, 2
buffer_load_dword {vLane}, off, {srdD}, {sTmp} sc1
s_waitcnt vmcnt(0)
s_branch L_chkD"""))
    out.append("; ---- exact-max fallback for one wave and one head ----")
    emit(slow_path(placed, R2.pendW0))
    out.append(f"""s_endpgm
.section .rodata,"a"
.p2align 6
.amdhsa_kernel {KN}
  .amdhsa_next_free_vgpr 512
  .amdhsa_next_free_sgpr 102
  .amdhsa_accum_offset 256
  .amdhsa_group_segment_fixed_size 0
  .amdhsa_kernarg_size 64
  .amdhsa_user_sgpr_count 2
  .amdhsa_user_sgpr_kernarg_segment_ptr 1
  .amdhsa_system_sgpr_workgroup_id_x 1
.end_amdhsa_kernel""")
    print("\n".join(out))
main()
```

```python
import sys, os, struct, math
sys.path.insert(0, os.path.dirname(os.path.abspath(__file__)))
from sched import *
import ringplan

OPT = dict(stamps=0, nt=1, stress=0, msum=1, tord=0, b0=0, clean=0, stag=0, stagm=0, mapping=48, nodma=0, samekv=0, nored=0, ntw=0, ntx=0, bst=0, lrate=3, lburst=4, rsp=8, rk=2, i0=-170, dk=75, ksp=18, wsp=7, gst=4, gld=4, gsig=1, gpoll=108, gsum=8, gdma=40, glc=0, rot=1, gout=189, gdsp=5, lag=1, forceslow=0, ntst=0, pf=128, hrot=9, hswap=1, plan=0, uni=1, fnt=1, ones4=1, gb2=1, pf3=0, wstrict=1, rspw=10, samew=0, samex=0, krot=3, osc=0, idle0=0, idle1=0, exitat=0, wb=0, dbl=0, nperm=1, bdw=2, bda=2, vlate=1, tch=0, gtch=0, kvlate=4, tg=0, etch=0, gl3=1, ftch=1, tlb=0, fsp=2, fkv=5, fgap=4, nobar=0, nolg=0, nods=0, novalu=0)
for a in sys.argv[1:]:
    k, v = a.split("="); assert k in OPT, k; OPT[k] = float(v) if "." in v else int(v)
Region.LDSRATE = OPT["lrate"]; Region.LDSBURST = OPT["lburst"]
KN = "standalone__mha_block_cached__near_ridge_kernel"

def OA(mt, t): return R("v", (mt*3 + t)*4, 4)
def OAr(mt, t, i): return f"v{(mt*3 + t)*4 + i}"
QV0, PV0, S0, FA0 = 96, 144, 192, 204
def QV(s, t): return R("v", QV0 + (s*3 + t)*4, 4)
def QVr(s, t, i): return f"v{QV0 + (s*3 + t)*4 + i}"
def PB(buf, sg, t): return R("v", PV0 + 24*buf + (sg*3 + t)*4, 4)
def PBr(buf, sg, t, i): return f"v{PV0 + 24*buf + (sg*3 + t)*4 + i}"
def OP(s, t): return R("v", PV0 + (s*3 + t)*4, 4)
def OPr(s, t, i): return f"v{PV0 + (s*3 + t)*4 + i}"
def FR(buf, f, half=None):
    b = FA0 + 16*buf + 4*f
    return R("v", b, 4) if half is None else R("v", b + 2*half, 2)
vK = ["v236", "v237", "v238", "v239"]
vVb, vWb, vT = "v240", "v241", ["v242", "v243"]
vDK, vDV, vDW, vDX, vC = "v244", "v245", "v246", "v247", "v248"
vRL = ["v249", "v250", "v251"]
vLane, vDWo, vA, vB = "v252", "v253", "v254", "v255"
def XA(s, t): return R("a", (s*3 + t)*4, 4)
ZB = {0: 144, 1: 192, 2: 0}
def ZA(h, s, t): return R("a", ZB[h] + (s*3 + t)*4, 4)
def LA(t): return R("a", 240 + 4*t, 4)
ONES = "a[252:255]"

srdK, srdV, srdW, srdX, srdWS, srdO, srdD = (f"s[{i}:{i+3}]" for i in (8, 12, 16, 20, 24, 28, 32))
sW1k, sXcc, sRot, sOc = "s36", "s37", "s38", "s39"
sC = ["s40", "s41", "s42"]
sDg = ["s43", "s44", "s45", "s46"]
sIdx = "s99"
sH = ["s93", "s95", "s96", "s97"]; sHr = "s98"; sSw = "s3"
sKoff, sVoff, sWcol = "s47", "s48", "s49"
sD = [None, "s50", "s51", "s52"]
sDY = [None, "s53", "s54", "s55"]
sT = ["s56", "s57", "s58", "s59"]
sW4k, sHead, sScale, sWave, sB, sG, sLo, sHi = (f"s{i}" for i in range(60, 68))
sBad = "s[84:85]"
sN = [f"s{i}" for i in range(86, 92)]
sTmp = "s100"
sIt, sSt, sSig, sExp, sLd, sLd2, sOut = (f"s{i}" for i in range(86, 93))
sStR, sLdR, sFlR, sOutR, sSlM, sLdMin, sGate = (f"s{i}" for i in range(68, 75))
sPoll = sSig; sPo = "s99"; sTk, sTh, sTo = "s43", "s44", "s45"
sU = ["s4", "s5"]; sMask = "s6"
OOB = 0x40000000
FLAG_BASE = 0x3040000
STAMP_BASE = 0x3100000
DUMP_BASE = 0x4000000
WS_BYTES = 0x20000000 if OPT["stress"] else (0x8000000 if OPT["bst"] else 0x3200000)
CHUNK = 196608
ORD = [(0,0),(0,1),(0,2),(1,0),(0,3),(1,3),(1,1),(1,2)]
ORDG = [(j >> 2, j & 3) for j in range(8)]
NTKV = {"K": " nt" if OPT["nt"] in (1, 2) else "", "V": " nt" if OPT["nt"] in (1, 3) else ""}
NTW = " nt" if OPT["ntw"] else ""
NTX = " nt" if OPT["ntx"] else ""
def wq_lit(step): return ORD[step][1]*0x100000 + ORD[step][0]*128
def wo_lit(m): return (m & 3)*0x20000 + (m >> 2)*128

def S(text, rd=(), wr=(), **kw): return Op(text, "s", rd=rd, wr=wr, **kw)
def V(text, rd=(), wr=(), **kw): return Op(text, "v4", rd=rd, wr=wr, **kw)
def V8(text, rd=(), wr=(), **kw): return Op(text, "v8", rd=rd, wr=wr, **kw)
def WAIT(d, need_ds=(), need_vm=(), lg0=False, late=3, e=-1):
    o = Op("s_waitcnt ?", "w", e=e, d=d, late=late, deps=[(x, 1) for x in need_ds])
    o.need_ds, o.need_vm, o.lg0 = list(need_ds), list(need_vm), lg0
    return o
def lin(text):
    return [Op(l.strip(), "x") for l in text.strip().split("\n") if l.strip()]

class Ctx: pass
C = Ctx(); C.grp = 0

ringplan.setb(OPT["bdw"], OPT["bda"]); BDW, BDA = OPT["bdw"], OPT["bda"]
wI = {"W0": -210, "W1": -135, "W2": -55, "W3": 36 + BDW, "W4": 78, "W5": 112, "W6": 162, "W7": 186}
xI = {"Xa": -430, "Xb": -350, "Xc": -280}
PLANS = {
 8: {'Xa': -430, 'Xb': -350, 'Xc': -280, 'W0': -210, 'W1': -135, 'W2': -58, 'W3': 38, 'W4': 80, 'W5': 115, 'W6': 150, 'W7': 190, 'K0': -198, 'K1': -130, 'V0': -62, 'K2': 38, 'V1': 104, 'K3': 172, 'V2': 290, 'K4': 361, 'V3': 432, 'K5': 503, 'V4': 574, 'K6': 645, 'V5': 716, 'K7': 787, 'V6': 858, 'V7': 930},
 7: {'Xa': -430, 'Xb': -350, 'Xc': -280, 'W0': -210, 'W1': -135, 'W2': -58, 'W3': 38, 'W4': 80, 'W5': 110, 'W6': 162, 'W7': 186, 'K0': -167, 'K1': -93, 'V0': -19, 'K2': 58, 'V1': 136, 'K3': 214, 'V2': 290, 'K4': 365, 'V3': 439, 'K5': 513, 'V4': 587, 'K6': 661, 'V5': 735, 'K7': 809, 'V6': 884, 'V7': 959},
 5: {'Xa': -430, 'Xb': -350, 'Xc': -280, 'W0': -210, 'W1': -135, 'W2': -55, 'W3': 38, 'W4': 78, 'W5': 112, 'W6': 162, 'W7': 186, 'K0': -170, 'K1': -95, 'V0': -20, 'K2': 55, 'V1': 140, 'K3': 290, 'V2': 345, 'K4': 400, 'V3': 460, 'K5': 525, 'V4': 590, 'K6': 660, 'V5': 730, 'K7': 805, 'V6': 880, 'V7': 955},
 6: {'Xa': -430, 'Xb': -350, 'Xc': -280, 'W0': -210, 'W1': -135, 'W2': -55, 'W3': 38, 'W4': 78, 'W5': 112, 'W6': 162, 'W7': 186, 'K0': -170, 'K1': -95, 'V0': -20, 'K2': 135, 'V1': 290, 'K3': 335, 'V2': 385, 'K4': 435, 'V3': 490, 'K5': 545, 'V4': 605, 'K6': 665, 'V5': 730, 'K7': 805, 'V6': 880, 'V7': 955},
 3: {'Xa': -514, 'Xb': -444, 'Xc': -297, 'W0': -229, 'W1': -155, 'W2': -63, 'W3': 8, 'W4': 38, 'W5': 82, 'W6': 110, 'W7': 180, 'K0': -187, 'K1': -112, 'V0': -38, 'K2': 58, 'V1': 141, 'K3': 216, 'V2': 290, 'K4': 364, 'V3': 436, 'K5': 507, 'V4': 579, 'K6': 651, 'V5': 721, 'K7': 794, 'V6': 863, 'V7': 940},
 4: {'Xa': -514, 'Xb': -444, 'Xc': -297, 'W0': -229, 'W1': -155, 'W2': -63, 'W3': 8, 'W4': 38, 'W5': 82, 'W6': 110, 'W7': 180, 'K0': -180, 'K1': -108, 'V0': -36, 'K2': 58, 'V1': 141, 'K3': 216, 'V2': 290, 'K4': 364, 'V3': 438, 'K5': 512, 'V4': 586, 'K6': 660, 'V5': 734, 'K7': 808, 'V6': 878, 'V7': 950},
 1: {'Xa': -510, 'Xb': -430, 'Xc': -352, 'W0': -205, 'W1': -106, 'W2': -26, 'W3': 5, 'W4': 37, 'W5': 98, 'W6': 161, 'W7': 190, 'K0': -243, 'K1': -157, 'V0': -60, 'K2': 64, 'V1': 130, 'K3': 221, 'V2': 290, 'K4': 354, 'V3': 415, 'K5': 477, 'V4': 593, 'K6': 533, 'V5': 650, 'K7': 728, 'V6': 809, 'V7': 894},
 2: {'Xa': -496, 'Xb': -413, 'Xc': -333, 'W0': -252, 'W1': -103, 'W2': -30, 'W3': 5, 'W4': 38, 'W5': 99, 'W6': 130, 'W7': 188, 'K0': -210, 'K1': -148, 'V0': -54, 'K2': 67, 'V1': 155, 'K3': 221, 'V2': 291, 'K4': 349, 'V3': 409, 'K5': 473, 'V4': 534, 'K6': 598, 'V5': 662, 'K7': 829, 'V6': 747, 'V7': 904},
}
if OPT["plan"] == 9: wI = {"W0": -210, "W1": -135, "W2": -60, "W3": 6, "W4": 38, "W5": 80, "W6": 110, "W7": 150}
elif OPT["plan"] == 10: wI = {"W0": -215, "W1": -145, "W2": -75, "W3": 6, "W4": 38, "W5": 70, "W6": 104, "W7": 140}
elif OPT["plan"]: wI = PLANS[OPT["plan"]]; xI = {}
ISS, SLOT, _c, NEED = ringplan.plan(OPT["i0"], OPT["dk"], wI, xI)
assert SLOT is not None
SPR = {}; TIMES = {}
for t in ISS:
    m = ISS[t] % 1200
    sp = OPT["ksp"] if t[0] in "KV" else OPT["wsp"]
    if OPT["uni"] and t[0] in "KV":
        ts_ = [ISS[t] + (OPT["dk"]*i + 2)//4 for i in range(4)]
        for i in range(4):
            for edge in (0, 240, 288, 1200):
                if edge - 4 <= ts_[i] < edge + 2: ts_[i] = edge + 2
        TIMES[t] = ts_; continue
    if 228 <= m < 288: ISS[t] += 290 - m; m = 290
    SPR[t] = min(sp, ((240 if m < 288 else 1200) - 5 - m)//3); assert SPR[t] >= 1
    TIMES[t] = [ISS[t] + SPR[t]*i for i in range(4)]
BASE = {}
for ch in "KVW":
    for i, b in enumerate(ringplan.bases([SLOT[f"{ch}{i}"] for i in range(8)])[1]): BASE[f"{ch}{i}"] = b
XB = min(SLOT["Xa"], SLOT["Xb"], SLOT["Xc"]); assert max(SLOT["Xa"], SLOT["Xb"], SLOT["Xc"]) - XB <= 3
NEXT = sorted([t for t in ISS if ISS[t] < 0 and t[0] in "WX"], key=lambda t: (t != "W0", ISS[t]))
print("plan:", ISS, SLOT, BASE, NEXT, file=sys.stderr)
TILE = {}
def lit(x): return hex(x & 0xffffffff)
def rebase(rg, typ, old, new, e, d, after=()):
    if old == new: return []
    regs_ = vK if typ == "K" else [vVb if typ == "V" else vWb]
    return [rg.F(V(f"v_add_u32 {r}, {lit((new - old)*16384)}, {r}", rd=[r], wr=[r], e=e, d=d, deps=[(a, 0) for a in after if a])) for r in regs_]
def wq_t0(dst, step):
    hf, dg = ORD[step]
    return [f"s_add_u32 {dst}, {sWcol}, {sDg[dg]}"] + ([f"s_xor_b32 {dst}, {dst}, 128"] if hf else [])
def x_t0(dst, a, q):
    return [f"s_lshr_b32 {dst}, {sDg[q]}, 12"] + ([f"s_add_u32 {dst}, {dst}, {a*65536}"] if a else [])
def tile_src(spec):
    k = spec[0]
    if k == "W": return srdW, vDW, wq_t0(sT[0], spec[1]), sD, NTW
    if k == "C": return srdW, vDW, [f"s_add_u32 {sT[0]}, {sC[spec[1]]}, {sH[spec[2]]}"], sD, NTW
    if k == "N": return srdW, vDW, [f"s_mov_b32 {sT[0]}, {sN[spec[1]]}"], sD, NTW
    if k == "Y": return srdX, vDX, [f"s_mov_b32 {sT[0]}, {sN[spec[1]]}"], sDY, NTX
    if k == "X": return srdX, vDX, x_t0(sT[0], spec[1], spec[2]), sDY, NTX
def add_dmas(rg, items):
    ev = []
    for (name, spec, slot, e, sp, bar) in items:
        for i, t in (sp if isinstance(sp, list) else [(i, e + sp*i) for i in range(4)]): ev.append((t, e, i, name, spec, slot, bar))
    ev.sort(key=lambda x: (x[0], x[1]))
    prev = None; cur = None; wopen = None; ts = None; lastw = None; m0 = None
    for (t, e0, i, name, spec, slot, bar) in ev:
        deps = []
        if bar is not None: deps.append((bar, 0))
        if prev is not None: deps.append((prev, 1))
        if cur != slot:
            m0 = rg.F(Op(f"s_add_u32 m0, {sW4k}, {slot*16384}", "t", wr=["m0"], e=t - 6, deps=([(prev, 1)] if prev else []))); cur = slot
        deps.append((m0, 1))
        if spec[0] in "KV":
            so, vo, srd = (sKoff, vDK, srdK) if spec[0] == "K" else (sVoff, vDV, srdV)
            st = rg.inc.get(spec[0])
            if st is not None and i == 0: deps.append((st, 0))
            o = rg.F(Op(f"buffer_load_dwordx4 {vo}, {srd}, {so} offen offset:{i*1024}{NTKV[spec[0]] if (rg.name != 'R1f' or OPT['fnt']) else ''} lds", "vm", rd=[vo, so, "m0"], e=t, d=t + 4, deps=deps))
            if i == 3:
                inc = rg.F(Op(f"s_add_u32 {so}, {so}, 0x4000", "t", rd=[so], wr=[so], deps=[(o, 1)], d=t + 12))
                if name[1] == "7":
                    inc = rg.F(Op(f"s_and_b32 {so}, {so}, 0x7ffff", "t", rd=[so], wr=[so], deps=[(inc, 0)], d=t + 14))
                    nr = "s10" if name[0] == "K" else "s14"
                    rg.F(S(f"s_cmp_eq_u32 {sHead}, 3", deps=[(o, 1)])); inc2 = rg.F(S(f"s_cselect_b32 {nr}, 0, {nr}", d=t + 20))
                rg.inc[spec[0]] = inc
        else:
            srd, vo, t0, dl, fl = tile_src(spec)
            if i == 0:
                assert wopen is None, "W-type tiles may not interleave"
                wopen = name
                tt = rg.F(Op(t0[0], "t", wr=[sT[0]], e=t - 12, deps=([(lastw, 1)] if lastw else [])))
                for x in t0[1:]: tt = rg.F(Op(x, "t", wr=[sT[0]], deps=[(tt, 0)]))
                ts = [tt]
                ts += [rg.F(Op(f"s_add_u32 {sT[j]}, {sT[0]}, {dl[j]}", "t", wr=[sT[j]], deps=[(ts[0], 0)])) for j in (1, 2, 3)]
            o = rg.F(Op(f"buffer_load_dwordx4 {vo}, {srd}, {sT[i]} offen offset:{i*1024}{fl} lds", "vm", rd=[vo, sT[i], "m0"], e=t, d=t + 4, deps=deps + [(ts[i], 0)]))
            if i == 3: wopen = None; lastw = o
        if i == 3: TILE.setdefault(name, []).append(o)
        if i == 0: rg.first_dma[name] = o
        prev = o
    rg.lastw = lastw
def head_dmas(rg, lo, hi):
    items = []
    for t in ISS:
        mine = [(i, x % 1200 - lo) for i, x in enumerate(TIMES[t]) if lo <= x % 1200 < hi]
        if not mine: continue
        m = ISS[t] % 1200
        spec = (t[0],) if t[0] in "KV" else (("W", int(t[1])) if ISS[t] >= 0 else (("N" if t[0] == "W" else "Y"), NEXT.index(t)))
        cands = [g for g in rg.bars if g + lo <= m and any(SLOT[p] == SLOT[t] and NEED[p][1] % 1200 == g + lo for p in NEED)] if mine[0][0] == 0 else []
        bar = rg.bars[max(cands)] if cands else None
        items.append((t, spec, SLOT[t], mine[0][1], mine, bar))
    if OPT["stress"]:
        for g in range(lo + 20, hi - 12, OPT["stress"]):
            o = rg.F(Op(f"buffer_load_dword a241, {vDK}, {srdWS}, s75 offen nt", "vm", e=g - lo, d=g - lo + 6))
            rg.F(Op("s_add_u32 s75, s75, 0x1000", "t", deps=[(o, 1)], d=g - lo + 10))
    add_dmas(rg, items)
def dma_linear(name, spec, slot):
    ops = lin(f"s_add_u32 m0, {sW4k}, {slot*16384}")
    if spec[0] in "KV":
        so, vo, srd = (sKoff, vDK, srdK) if spec[0] == "K" else (sVoff, vDV, srdV)
        d = [Op(f"buffer_load_dwordx4 {vo}, {srd}, {so} offen offset:{i*1024}{NTKV[spec[0]]} lds", "vm") for i in range(4)]
        ops += lin("s_nop 0") + d + lin(f"s_add_u32 {so}, {so}, 0x4000")
    else:
        srd, vo, t0, dl, fl = tile_src(spec)
        d = [Op(f"buffer_load_dwordx4 {vo}, {srd}, {sT[i]} offen offset:{i*1024}{fl} lds", "vm") for i in range(4)]
        ops += lin("\n".join(t0) + "\n" + "\n".join(f"s_add_u32 {sT[i]}, {sT[0]}, {dl[i]}" for i in (1, 2, 3))) + d
    TILE.setdefault(name, []).append(d[-1])
    return ops
def reads_X(rg, addr, slots, dst, e, d, deps, step=1):
    ops = []
    for t in range(3):
        for s in range(4):
            r_, imm = addr(slots[t], s)
            ops.append(rg.F(Op(f"ds_read_b128 {dst(s, t)}, {r_} offset:{imm}", "ds", rd=[r_], wr=[dst(s, t)], e=e, d=d + len(ops)*step,
                               deps=list(deps) + ([(ops[-1], 0)] if ops else []))))
    return ops

def new_region(name):
    rg = Region(name); rg.nst = {"R1": 0, "R1f": 0, "R2": 6, "G": 0, "G0": 0}.get(name, 5)
    ext_waits(rg)
    if OPT['wstrict']: rg.ldspol = (lambda k: (4, 3)) if name != 'R2' else (lambda k: (4, 3) if k < 90 else (OPT['lrate'], OPT['lburst']))
    rg.tuse = {0: [], 1: []}; rg.bars = {}; rg.inc = {}; rg.first_dma = {}; rg.wq = bool(OPT["nperm"]) and name[0] != "G"
    return rg

def xor_addr(rg, base, k, ti, e, d, after=()):
    if k == 0: return base, None
    deps = [(x, 0) for x in rg.tuse[ti]] + [(a, 0) for a in after]
    o = rg.F(V(f"v_xor_b32 {vT[ti]}, {k*32}, {base}", rd=[base], wr=[vT[ti]], e=e, d=d, deps=deps))
    rg.tuse[ti] = []
    return vT[ti], o
def reads_W(rg, so, mt, buf, e, deps=(), ups=(), rsp=None):
    if rg.wq:
        if mt == 2: a, xo = xor_addr(rg, vWb, 2, 0, e - 8, e, ups)
        else: a, xo = (vWb if mt < 2 else vT[0]), None
        so += 8*(mt & 1)
    else: a, xo = xor_addr(rg, vWb, mt, mt & 1, e - 8, e, ups)
    dp = list(deps) + ([(xo, 1)] if xo else [(u, 1) for u in ups])
    ops = []
    for s in range(4):
        for p in range(2):
            ops.append(rg.F(Op(f"ds_read_b64_tr_b16 {FR(buf, s, p)}, {a} offset:{so + s*4096 + p*2048}", "ds", rd=[a], wr=[FR(buf, s, p)],
                               e=e, d=min(e + 1 + len(ops)*(rsp or OPT['rspw' if OPT['wstrict'] else 'rsp'])//8, e + 9), deps=dp + ([(ops[-1], 0)] if ops else []))))
    if rg.wq:
        if mt >= 2: rg.tuse[0] = ops
    elif xo: rg.tuse[mt & 1] = ops
    rg.lastWr = ops
    return ops, xo
def reads_K(rg, so, u, buf, e, deps=(), ups=()):
    ops = []
    for s in range(4):
        ops.append(rg.F(Op(f"ds_read_b128 {FR(buf, s)}, {vK[s]} offset:{so + u*1024}", "ds", rd=[vK[s]], wr=[FR(buf, s)],
                           e=e, d=e + 3 + len(ops)*OPT['rk'], deps=list(deps) + [(x, 1) for x in ups] + ([(ops[-1], 0)] if ops else []))))
    return ops
def reads_V(rg, so, dp_, buf, e, deps=(), ups=(), late=0):
    ops = []; xs = []
    for k in range(2):
        dt = 2*dp_ + k
        a, xo = xor_addr(rg, vVb, dt, k, e - 10, e + 4*k, ups)
        if xo: xs.append(xo)
        dd = list(deps) + ([(xo, 1)] if xo else [(u, 1) for u in ups])
        mine = []
        for sg in range(2):
            for p in range(2):
                o = rg.F(Op(f"ds_read_b64_tr_b16 {FR(buf, 2*k + sg, p)}, {a} offset:{so + sg*2048 + p*1024}", "ds", rd=[a], wr=[FR(buf, 2*k + sg, p)],
                            e=e, d=(e + 2 + len(ops)*OPT['rsp']//8) if not late else (e + 3 + 2*len(ops) if k == 0 else e + 5 + (len(ops)*5)//4), deps=dd + ([(ops[-1], 0)] if ops else [])))
                ops.append(o); mine.append(o)
        if xo: rg.tuse[k] = mine
    return ops, xs

def barrier(rg, gap, last_reads, tiles, extra=(), lg0=True, st=True):
    w = rg.F(WAIT(gap - 1, need_ds=last_reads, need_vm=list(tiles) + list(extra), lg0=lg0, late=1))
    w.deps += [(x, 1) for x in extra if x in rg.fill]
    b = rg.F(Op("s_barrier", "w", e=gap, d=gap, deps=[(w, 1)])); rg.bars[gap] = b
    if OPT["bst"] and st:
        w.pre = "s_memtime s[2:3]"
        i = rg.nst; rg.nst += 1
        rg.F(V(f"v_writelane_b32 {vLane}, s2, {i}", e=gap + 1, d=gap + 8))
    return b
def xstamp(rg, gap, idx, dep):
    if OPT["bst"] < 2: return
    w = rg.F(Op("s_memtime s[2:3]\ns_waitcnt lgkmcnt(0)", "w", e=gap, d=gap, deps=[(dep, 1)]))
    rg.F(V(f"v_writelane_b32 {vLane}, s2, {idx}", deps=[(w, 0)], d=gap))
def ext_waits(rg):
    rg.xw = []
    for d in (-1, 1):
        w = WAIT(d, late=1); w.e = d; rg.F(w); rg.xw.append(w)
def bind_ext(rg, preds):
    rg.xw[0].alt_ds = [p[:4] for p in preds]; rg.xw[1].alt_ds = list(preds)
def frag_waits(rg, rd_ops, first_use, n_first, second_use, only_first=False):
    if rd_ops is None: return
    rg.F(WAIT(first_use - 1, need_ds=rd_ops[:n_first], late=2))
    if n_first < len(rd_ops) and not only_first: rg.F(WAIT(second_use - 1, need_ds=rd_ops, late=1))

def so_(sb): return (sb[0] - sb[1])*16384
def w_step(rg, half, zero, Bop, pend, cur, nxt, need, extra=(), more_reads=(), xwait=None, post=None, nobar=False):
    b0 = rg.n(); info = dict(b0=b0); xlast = None
    if xwait:
        for t in range(3): rg.F(WAIT(b0 + 4*t - 1, need_ds=xwait[:4*t + 4], late=1))
        info["xbar"] = barrier(rg, b0 + 10, xwait, (), lg0=False, st=False)
    for mt in range(4):
        buf = C.grp & 1; C.grp += 1
        g0 = b0 + 12*mt
        if pend is not None and (mt < 3 or BDW): frag_waits(rg, pend, g0, 4, g0 + 2, only_first=(mt == 3 and not nobar))
        for t in range(3):
            for s in range(4):
                acc = OA(4*half + mt, t)
                rg.M(mfma(acc, FR(buf, s), Bop(s, t), "0" if (zero and s == 0) else acc))
        if mt < 3:
            pend, xo = reads_W(rg, so_(cur[1:3]), mt + 1, buf ^ 1, g0 - 1 if (mt or b0) else g0)
            if xo: xlast = xo
            if mt == 0 and rg.wq: base_users = pend
            if mt == 2: bar = None if nobar else barrier(rg, g0 + 11 + BDW, pend + list(more_reads), need, extra)
        else:
            ups = rebase(rg, nxt[0], nxt[3], nxt[2], b0 + 20, g0 - 2, after=([xlast] + (base_users if rg.wq else [])) if nxt[0] == "W" else [])
            if nxt[0] == "W": pend, _ = reads_W(rg, so_(nxt[1:3]), 0, buf ^ 1, g0 - 1 + (0 if nobar else BDW), deps=([] if nobar else [(bar, 0)]), ups=ups, rsp=(4 if post else None))
            else: pend = reads_K(rg, so_(nxt[1:3]), 0, buf ^ 1, g0 - 1 + BDW, deps=[(bar, 0)], ups=ups)
            if post: info["post"] = post(g0, bar)
    info["bar"] = bar; info["end"] = rg.n() - 1
    return pend, info
def TS(name, prev=None):
    k, i = name[0], int(name[1])
    return (k, SLOT[name], BASE[name], BASE[f"{k}{(i - 1) % 8}"])

def softmax(rg, g0, u, Sr, pbuf, d_over, d_puse):
    sg = u >> 1
    for t in range(3):
        last = rg.mf[g0 + 4*t + 3]
        dl = min(d_over(t), d_puse(t) - 3)
        ex = [rg.F(V8(f"v_exp_f32 {Sr(t,i)}, {Sr(t,i)}", rd=[Sr(t,i)], wr=[Sr(t,i)], e=last.gap, sdeps=[(last, 8)], trans=True)) for i in range(4)]
        for j in range(2):
            dst = PBr(pbuf, sg, t, 2*(u & 1) + j)
            rg.F(V(f"v_cvt_pk_bf16_f32 {dst}, {Sr(t,2*j)}, {Sr(t,2*j+1)}", rd=[Sr(t,2*j), Sr(t,2*j+1)], wr=[dst], d=dl,
                   sdeps=[(ex[2*j], 1), (ex[2*j+1], 1)]))
def k_mfmas(rg, buf, Sd):
    for t in range(3):
        for s in range(4):
            rg.M(mfma(Sd(t), FR(buf, s), QV(s, t), "0" if s == 0 else Sd(t)))
def v_mfmas(rg, dp_, buf, pbuf, zero, tmajor=False):
    order = [(k, t) for t in range(3) for k in range(2)] if tmajor else [(k, t) for k in range(2) for t in range(3)]
    last = {}
    for k, t in order:
        for sg in range(2):
            acc = OA(2*dp_ + k, t)
            last[(2*dp_ + k, t)] = rg.M(mfma(acc, FR(buf, 2*k + sg), PB(pbuf, sg, t), "0" if (zero and sg == 0) else acc))
    return last
def sum_mfmas(rg, t, pbuf, zero):
    for sg in range(2):
        o = rg.M(mfma(LA(t), ONES, PB(pbuf, sg, t), "0" if (zero and sg == 0) else LA(t)))
    return o
def o_epilogue_ops(dt, t):
    mul = [V(f"v_mul_f32 {OAr(dt,t,i)}, {vRL[t]}, {OAr(dt,t,i)}", rd=[OAr(dt,t,i), vRL[t]], wr=[OAr(dt,t,i)]) for i in range(4)]
    cvt = []
    for j in range(2):
        dst = OPr(dt >> 1, t, 2*(dt & 1) + j)
        cvt.append(V(f"v_cvt_pk_bf16_f32 {dst}, {OAr(dt,t,2*j)}, {OAr(dt,t,2*j+1)}", rd=[OAr(dt,t,2*j), OAr(dt,t,2*j+1)], wr=[dst],
                     deps=[(mul[2*j], 0), (mul[2*j+1], 0)]))
    for o in mul + cvt: o.ot = (dt, t)
    return mul, cvt
def q_muls(rg, mt, t, last, **kw):
    return [rg.F(V(f"v_mul_f32 {OAr(mt,t,i)}, {sScale}, {OAr(mt,t,i)}", rd=[OAr(mt,t,i)], wr=[OAr(mt,t,i)],
                   e=(last.gap if last is not None else -1), sdeps=([(last, 8)] if last is not None else []), **kw)) for i in range(4)]
def q_epilogue(rg, sp, t, lastA, lastB, d_use, muls=True):
    cv = []
    for k, last in ((0, lastA), (1, lastB)):
        mt = 2*sp + k
        mul = q_muls(rg, mt, t, last) if muls else None
        for j in range(2):
            dst = QVr(sp, t, 2*k + j)
            cv.append(rg.F(V(f"v_cvt_pk_bf16_f32 {dst}, {OAr(mt,t,2*j)}, {OAr(mt,t,2*j+1)}", rd=[OAr(mt,t,2*j), OAr(mt,t,2*j+1)], wr=[dst],
                             deps=([(mul[2*j], 0), (mul[2*j+1], 0)] if muls else []))))
    if OPT["nperm"]:
        for o in cv: o.d = d_use - 3
        return
    for j in range(2):
        a, b = QVr(sp, t, j), QVr(sp, t, 2 + j)
        p1 = rg.F(V8(f"v_permlane32_swap_b32 {a}, {b}", rd=[a, b], wr=[a, b], sdeps=[(cv[j], 2), (cv[2+j], 2)]))
        rg.F(V8(f"v_permlane16_swap_b32 {a}, {b}", rd=[a, b], wr=[a, b], sdeps=[(p1, 2)], d=d_use - 3))

def BopQ(st):
    dg = ORD[st][1]
    return (lambda s, t: XA(4*dg + s, t)) if dg < 3 else (lambda s, t: QV(s, t))

def build_R2():
    rg = new_region("R2")
    C.grp = 24
    pend, i6 = w_step(rg, ORD[6][0], False, BopQ(6), None, TS("W6"), TS("W7"), ["W7"])
    pend, i7 = w_step(rg, ORD[7][0], False, BopQ(7), pend, TS("W7"), TS("K0"), ["K0"])
    a0 = rg.n(); b7 = i7["b0"]
    for sp in (0, 1):
        for t in range(3): q_epilogue(rg, sp, t, None, None, min(a0 + 4*t + sp, 20 + (sp*3 + t)*9), muls=True)
    for sp in (2, 3):
        for t in range(3):
            mA, mB = 2*sp - 4, 2*sp - 3
            q_epilogue(rg, sp, t, rg.mf[b7 + 12*mA + 4*t + 3], rg.mf[b7 + 12*mB + 4*t + 3], a0 + 4*t + sp)
    B = lambda i: a0 + 48 + 102*i
    def layout(i):
        order = ["KVKVKVKV", "KKVKVKVV", "KKKVKVVV", "KKKKVVVV"][OPT["b0"] if i == 0 else 0]
        res = []; off = 0; n = {"K": 0, "V": 0}
        for ch in order:
            res.append((ch, n[ch], off)); off += 12 + (2 if (ch == "V" and n[ch] < 3) else 0); n[ch] += 1
        return res
    def puse(i, sg, t): return (B(i) + [o for (k, j, o) in layout(i) if k == "V"][0] + 2*t + sg) if i < 7 else (B(7) + 4*t + sg)
    def so(n): return so_(TS(n)[1:3])
    def rb(n, e, d, after=()): x = TS(n); return rebase(rg, x[0], x[3], x[2], e, d, after)
    for u in range(4):
        buf = C.grp & 1; C.grp += 1; g0 = rg.n()
        if u < 3 or BDW: frag_waits(rg, pend, g0, 2, g0 + 2, only_first=(u == 3))
        k_mfmas(rg, buf, lambda t: OA(u, t))
        softmax(rg, g0, u, lambda t, i: OAr(u, t, i), 0, lambda t: 10**9, lambda t: puse(0, u >> 1, t))
        if u < 3:
            pend = reads_K(rg, so("K0"), u + 1, buf ^ 1, g0 - 1)
            if u == 2: bar = barrier(rg, g0 + 11 + BDW, pend, ["K1", "V0"]); lastK = pend
        else:
            ups = rb("K1", g0 - 12, g0 - 2, lastK)
            pend = reads_K(rg, so("K1"), 0, buf ^ 1, g0 - 1 + BDW, deps=[(bar, 0)], ups=ups)
            upsV = rb("V0", -1, g0)
    for i in range(7):
        b0 = rg.n(); assert b0 == B(i)
        lay = layout(i); usedV = False; tmp = 7
        for n_, (kind, u, off) in enumerate(lay):
            buf = C.grp & 1; C.grp += 1; g0 = rg.n(); assert g0 == b0 + off
            last = n_ == 7
            if kind == "K":
                frag_waits(rg, pend, g0, 2, g0 + 2)
                if lay[n_ + 1][0] == "K":
                    dt = tmp; tmp -= 1
                    vstart = b0 + [o for (k, j, o) in lay if k == "V" and j == dt >> 1][0]
                    Sd = (lambda dt: lambda t: OA(dt, t))(dt); Sr = (lambda dt: lambda t, j: OAr(dt, t, j))(dt)
                    dov = (lambda v, dt: lambda t: v + 6*(dt & 1) + 2*t - 1)(vstart, dt)
                else:
                    Sd = lambda t: R("v", S0 + 4*t, 4); Sr = lambda t, j: f"v{S0 + 4*t + j}"
                    later = [b0 + o for m_, (k, j, o) in enumerate(lay) if k == "K" and j > u and lay[m_ + 1][0] != "K"]
                    nxtK = later[0] if later else (B(i+1) if i < 6 else None)
                    dov = (lambda x: lambda t: x + 4*t - 1)(nxtK) if nxtK else (lambda t: 10**9)
                k_mfmas(rg, buf, Sd)
                softmax(rg, g0, u, Sr, (i + 1) & 1, dov, (lambda u: lambda t: puse(i + 1, u >> 1, t))(u))
            else:
                if not last or BDA: frag_waits(rg, pend, g0, 4, g0 + 6, only_first=last)
                v_mfmas(rg, u, buf, i & 1, i == 0)
                if u < 3: sum_mfmas(rg, u, i & 1, i == 0)
            if not last:
                nk, nu, _ = lay[n_ + 1]
                if nk == "K":
                    pend = reads_K(rg, so(f"K{i+1}"), nu, buf ^ 1, g0 - 1)
                    if nu == 3: lastK = pend
                else:
                    pend, xs = reads_V(rg, so(f"V{i}"), nu, buf ^ 1, g0 - 1, ups=(upsV if nu == 0 else ()), late=(OPT["vlate"] if nu < 3 else 0))
                    if nu == 3: bar = barrier(rg, b0 + 89 + BDA, pend, [f"K{i+2}", f"V{i+1}"] if i < 6 else ["V7"]); lastX = xs
            elif i < 6:
                ups = rb(f"K{i+2}", g0 - 20, g0 - 2, lastK)
                pend = reads_K(rg, so(f"K{i+2}"), 0, buf ^ 1, g0 - 1 + BDA, deps=[(bar, 0)], ups=ups)
                upsV = rb(f"V{i+1}", g0 - 10, g0 + 4, lastX)
            else:
                upsV = rb("V7", g0 - 10, g0 - 2, lastX)
                pend, _ = reads_V(rg, so("V7"), 0, buf ^ 1, g0 - 1 + BDA, late=0, deps=[(bar, 0)], ups=upsV)
    E = rg.n(); assert E == B(7)
    epi = []
    for p in range(4):
        buf = C.grp & 1; C.grp += 1; g0 = rg.n()
        if p == 0: frag_waits(rg, pend, g0, 4, g0 + 2)
        elif p < 3 or BDW: frag_waits(rg, pend, g0, 4, g0 + 6, only_first=(p == 3))
        last = v_mfmas(rg, p, buf, 1, False, tmajor=(p == 0))
        if p == 0:
            rl = []; lr = []
            for t in range(3):
                ls = sum_mfmas(rg, t, 1, False)
                lr.append(rg.F(V(f"v_accvgpr_read_b32 {vRL[t]}, a{240+4*t}", rd=[f"a{240+4*t}"], wr=[vRL[t]], e=ls.gap, sdeps=[(ls, 8)], d=E + 28)))
            mn = rg.F(V(f"v_min3_f32 {vA}, {vRL[0]}, {vRL[1]}, {vRL[2]}", rd=vRL, wr=[vA], deps=[(x, 0) for x in lr], d=E + 30))
            mx = rg.F(V(f"v_max3_f32 {vB}, {vRL[0]}, {vRL[1]}, {vRL[2]}", rd=vRL, wr=[vB], deps=[(x, 0) for x in lr], d=E + 30))
            rg.F(V(f"v_cmp_gt_f32 {sBad}, {sLo}, {vA}", rd=[vA], wr=[sBad], deps=[(mn, 0)], d=E + 40))
            rg.F(V(f"v_cmp_lt_f32 vcc, {sHi}, {vB}", rd=[vB], wr=["vcc"], deps=[(mx, 0)], d=E + 40))
            for t in range(3):
                rl.append(rg.F(V8(f"v_rcp_f32 {vRL[t]}, {vRL[t]}", rd=[vRL[t]], wr=[vRL[t]], deps=[(mn, 0), (mx, 0)], trans=True, d=E + 34)))
        for (dt, t), lm in last.items():
            mul, cvt = o_epilogue_ops(dt, t)
            for o in mul: o.e = lm.gap; o.sdeps = [(lm, 8), (rl[t], 1)]
            for o in mul + cvt:
                o.optional = True
                if dt >= 4 and o in cvt: o.e = 10**9
                rg.F(o); epi.append(o)
        if p < 3:
            pend, xs = reads_V(rg, so("V7"), p + 1, buf ^ 1, g0 - 1 if p != 0 else g0 + 3)
            if p == 2: bar = barrier(rg, g0 + 11 + BDW, pend, ["W0", "Xa", "Xb", "Xc"])
        else:
            ups = rb("W0", -1, g0 - 2, [])
            for o in ups: o.e = a0
            if OPT["nperm"]: ups = ups + [rg.F(V(f"v_mad_i32_i24 {vWb}, {vC}, {sGate}, {vWb}", rd=[vC, vWb], wr=[vWb], e=a0, d=g0 - 4))]
            pend, _ = reads_W(rg, so("W0"), 0, buf ^ 1, g0 - 1 + BDW, deps=[(bar, 0)], ups=ups, rsp=8)
    assert sorted(g + 288 for g in rg.bars) == ringplan.bS[6:] + [ringplan.bQ] + ringplan.bB + [ringplan.bP]
    if OPT["pf3"]:
        g = OPT["pf3"]
        c1 = rg.F(V(f"v_mbcnt_lo_u32_b32 {vA}, -1, 0", wr=[vA], e=g - 30, d=g - 3))
        c2 = rg.F(V(f"v_mbcnt_hi_u32_b32 {vA}, -1, {vA}", rd=[vA], wr=[vA], deps=[(c1, 0)], d=g - 2))
        c3 = rg.F(V(f"v_lshlrev_b32 {vA}, 7, {vA}", rd=[vA], wr=[vA], deps=[(c2, 0)], d=g - 1))
        rg.F(Op(f"buffer_load_dword {vB}, {vA}, s[76:79], s75 offen", "vm", rd=[vA], wr=[vB], deps=[(c3, 1)], e=g, d=g + 5))
    head_dmas(rg, 288, 1200)
    rg.pendW0 = pend; rg.epi = epi
    rg.schedule()
    return rg

def half0_muls(rg, b4):
    for mt in range(4):
        for t in range(3): q_muls(rg, mt, t, rg.mf[b4 + 12*mt + 4*t + 3])

def build_R1(left):
    rg = new_region("R1")
    C.grp = 0
    xa = [rg.F(V(f"v_add_u32 v{S0+s}, {sW1k}, {vK[s]}", rd=[vK[s]], wr=[f"v{S0+s}"], d=6)) for s in range(4)]
    xr = reads_X(rg, lambda sl, s: (f"v{S0+s}", (sl - XB)*16384), [SLOT["Xa"], SLOT["Xb"], SLOT["Xc"]], QV, 4, 9, [(a, 1) for a in xa], step=2)
    pend = None; infos = []
    for st in range(5):
        pend, inf = w_step(rg, ORD[st][0], st in (0, 3), BopQ(st), pend, TS(f"W{st}"), TS(f"W{st+1}"), [f"W{st+1}"], more_reads=(xr if st == 0 else ()))
        infos.append(inf)
    new = {}
    for o in left:
        dt, t = o.ot
        n = V(o.text, rd=list(o.rd), wr=list(o.wr)); n.ot = o.ot; new[id(o)] = n
        n.deps = [(new[id(p)], g) for (p, g) in o.deps if id(p) in new]
        n.e = 8 if dt >= 6 else -1
        n.d = ((12*dt + 4*t) if dt < 4 else (144 + 12*(dt - 4) + 4*t)) - 1
        rg.F(n)
    head_dmas(rg, 0, 240)
    rg.pend = pend
    rg.schedule()
    return rg

def build_R1b(h, zst=None):
    rg = new_region(f"R1b{h}")
    C.grp = 20
    pend, inf = w_step(rg, ORD[5][0], False, BopQ(5), None, TS("W5"), TS("W6"), ["W6"])
    for i in range(48): rg.F(V(f"v_accvgpr_write_b32 a{ZB[h-1] + i}, v{PV0 + i}", rd=[f"v{PV0+i}"], wr=[f"a{ZB[h-1]+i}"]))
    head_dmas(rg, 240, 288)
    next_setup(rg, h)
    rg.pend = pend
    rg.schedule()
    return rg

def next_setup(rg, h):
    T = lambda x, **kw: rg.F(S(x, **kw))
    if h < 3:
        T(f"s_add_u32 {sWcol}, {sWcol}, 256", deps=([(rg.lastw, 1)] if getattr(rg, "lastw", None) else []))
        T(f"s_and_b32 {sWcol}, {sWcol}, 0x3ff")
        for t in NEXT:
            if t[0] == "W":
                for x in wq_t0(sN[NEXT.index(t)], int(t[1])): T(x)
    if h == 2:
        a = T(f"s_lshl_b32 {sTmp}, {sB}, 2")
        if not OPT["bst"]: rg.dbg = rg.F(Op(f"buffer_load_dword {vLane}, off, {srdD}, {sTmp} sc1", "vm", wr=[vLane], deps=[(a, 0)]))
    if h == 3:
        for x in ("s_mov_b32 s16, s80", "s_mov_b32 s17, s81", "s_mov_b32 s18, 0x80000", "s_mov_b32 s20, s80", "s_mov_b32 s21, s81", "s_mov_b32 s22, 0x80000",
                  f"s_mov_b32 {sGate}, 1"): T(x)
        for i in (1, 2, 3): T(f"s_mov_b32 {sD[i]}, {7168*i}"); T(f"s_mov_b32 {sDY[i]}, {7168*i}")
        for m in range(6): T(f"s_add_u32 {sN[m]}, {sRot if m < 4 else sC[0]}, {sH[m & 3]}")
        if OPT["pf3"]:
            for x in ("s_add_u32 s76, s76, L_g3-L_loop", "s_addc_u32 s77, s77, 0", "s_mov_b32 s78, L_codeend-L_g3"): T(x)
        if OPT["tlb"] == 1:
            sw = T(f"s_mov_b32 {sTmp}, {hex(FLAG_BASE + 0x20080)}")
            for srd, so in ((srdW, "0"), (srdWS, "s75"), (srdWS, sTmp), (srdO, sOutR)):
                rg.F(Op(f"buffer_load_dword {vB}, off, {srd}, {so}", "vm", wr=[vB], deps=[(sw, 0)]))
        rg.F(V(f"v_mov_b32 {vDW}, {vDWo}", rd=[vDWo], wr=[vDW])); rg.F(V(f"v_mov_b32 {vDX}, {vDWo}", rd=[vDWo], wr=[vDX]))

def build_R1f():
    X = lambda q: [f"x{q}{a}" for a in range(3)]
    final = [t for t in ISS if ISS[t] < 288 and t[0] in "KV"] + ["W6", "W7"]
    fk = sorted([t for t in final if t[0] in "KV"], key=lambda t: ISS[t]); assert 3 <= len(fk) <= 7
    if OPT["kvlate"] != 4:
        init = X(0) + ["w0"] + X(1) + ["w1", "K0", "K1"]
        inh = list(zip(X(2), X(0))) + [("w2", "w0")] + list(zip(["w3", "x30", "x31"], X(1))) + [("x32", "w1")] + \
              list(zip(["w4", "V0", "w5"], X(2))) + [("K2", "w2"), ("W6", "w3")] + list(zip(["V1", "W7", "K3"], X(3))) + ([("V2", "w4")] if len(fk) == 7 else [])
    else:
        init = X(0) + ["w0"] + X(1) + ["w1", "x20", "x21"]
        inh = list(zip(["x22", "w2", "w3"], X(0))) + [("x30", "w0")] + list(zip(["x31", "x32", "w4"], X(1))) + [("w5", "w1")] + \
              list(zip(["W6", "W7", fk[0]], X(2))) + [(fk[1], "w2"), (fk[2], "w3")] + list(zip(fk[3:], X(3) + ["w4"]))
    sl = {t: SLOT[t] for t in final}
    for new, old in reversed(inh):
        if new in sl: sl[old] = sl[new]
    free = [x for x in range(10) if x not in {sl[t] for t in init if t in sl}]
    for t in init:
        if t not in sl: sl[t] = free.pop()
    for new, old in inh: sl[new] = sl[old]
    def spec(t):
        if t[0] == "x": return ("X", int(t[2]), int(t[1]))
        if t[0] in "wW": return ("W", int(t[1]))
        return (t[0],)
    wsl = [sl[f"w{j}"] for j in range(6)] + [SLOT["W6"]]
    wb = [min(x, 6) for x in wsl[:6]] + [BASE["W6"]]
    rg = new_region("R1f")
    C.grp = 0
    xaddr = lambda s_, s: (f"v{S0 + 4*(s_ >> 2) + s}", (s_ & 3)*16384)
    dst = {0: (1, lambda s, t: XA(4 + s, t)), 1: (2, lambda s, t: XA(8 + s, t)), 3: (3, QV)}
    pend = None; infos = []; xw = None
    for st in range(6):
        post = None; need = [f"w{st+1}" if st < 5 else "W6"]
        if st in dst:
            q, fn = dst[st]; need += X(q)
            post = (lambda q, fn: lambda g0, bar: reads_X(rg, xaddr, [sl[t] for t in X(q)], fn, g0 + 2 + BDW, g0 + 5 + BDW, [(bar, 0)]))(q, fn)
        pend, inf = w_step(rg, ORD[st][0], st in (0, 3), BopQ(st), pend, ("W", wsl[st], wb[st]), ("W", wsl[st+1], wb[st+1], wb[st]), need, xwait=xw, post=post)
        xw = inf.get("post"); infos.append(inf)
    rel = {"w%d" % j: infos[j]["bar"] for j in range(6)}
    for q, st in ((1, 1), (2, 2), (3, 4)):
        for t in X(q): rel[t] = infos[st]["xbar"]
    items = []; tcur = 0
    if OPT["kvlate"] != 4:
        seq = [(t, None) for t in ("x20", "x21", "x22")] + inh[3:]
        kp = {0: (3, 4), 1: (8, 9), 2: (4, 9), 3: (9, 12), 5: (0, 5), 6: (3, 7), 7: (3, 4)}[OPT["kvlate"]]
        seq.insert(kp[0], ("K0", None)); seq.insert(kp[1], ("K1", None))
    else: seq = [(t, None) for t in ("x20", "x21", "x22", "w2", "w3")] + inh[3:]
    for new, old in seq:
        if old: tcur = max(tcur, rel[old].e)
        if OPT["kvlate"] >= 5 and new == "K3": tcur = max(tcur, 255)
        sp = OPT["fsp"] if (new[0] not in "KV" or OPT["kvlate"] != 4) else OPT["fkv"]
        cnt = sum(1 for x in TIMES[new] if x < 288) if new in TIMES else 4
        if OPT["kvlate"] == 7 and new[0] in "KV":
            t0, sp = {"K0": (18, 11), "K1": (62, 11), "V0": (112, 9), "K2": (150, 11), "V1": (206, 8), "K3": (240, 9), "V2": (278, 2)}[new]
            items.append((new, spec(new), sl[new], t0, [(i, t0 + sp*i) for i in range(cnt)], rel[old] if old else None)); continue
        items.append((new, spec(new), sl[new], tcur, [(i, tcur + sp*i) for i in range(cnt)], rel[old] if old else None)); tcur += 4*sp + (1 if sp == OPT["fsp"] else OPT["fgap"])
    add_dmas(rg, items)
    next_setup(rg, 0)
    rg.pend = pend
    rg.schedule()
    rg.init = [(t, spec(t), sl[t]) for t in init[:8]]; rg.wb0 = wb[0]; rg.wso0 = (wsl[0] - wb[0])*16384
    rg.x0 = [xaddr(sl[t], 0) for t in X(0)]; rg.xsl0 = [sl[t] for t in X(0)]; rg.xaddr = xaddr
    return rg

RLD = [[R("v", QV0 + 4*g, 4) for g in range(8)],
       [R("v", QV0 + 32 + 4*g, 4) for g in range(4)] + [R("v", S0 + 4*g, 4) for g in range(3)] + ["v[236:239]"]]
vTo = vLane if not OPT['bst'] else 'v235'
vSt, vFl, vPo, vPr, vOut = vDK, vDV, vVb, vDX, vC
LAG = OPT['lag']; OSC = ['', ' sc1', ' nt', ' sc0 sc1'][OPT['osc']]
NTST = ' nt' if OPT['ntst'] else ''
LO = ["v249", "v250", "v251", "v253"]
def pack_store(chunk):
    res = []
    for t in range(3):
        for np_ in range(2):
            a, b = 4*chunk + 2*np_, 4*chunk + 2*np_ + 1
            src = [(OAr(a,t,0), OAr(a,t,1)), (OAr(a,t,2), OAr(a,t,3)), (OAr(b,t,0), OAr(b,t,1)), (OAr(b,t,2), OAr(b,t,3))]
            cv = []
            for j in range(4):
                cv.append(V(f"v_cvt_pk_bf16_f32 {OAr(a,t,j)}, {src[j][0]}, {src[j][1]}", rd=list(src[j]), wr=[OAr(a,t,j)], deps=([(cv[-1], 0)] if cv else [])))
            k = 2*t + np_
            sa = S(f"s_add_u32 {sU[k & 1]}, {sSt}, {k*8192}", wr=[sU[k & 1]])
            st = Op(f"buffer_store_dwordx4 {OA(a,t)}, {vSt}, {srdWS}, {sU[k & 1]} offen@SC", "vm", rd=[OA(a,t), vSt], deps=[(cv[-1], 1), (sa, 0)])
            res.append((cv, sa, st))
    return res
def reduce_ops(set_):
    X = [regs(r_) for r_ in RLD[set_]]
    tmp = [vA, vB]; ops = []; n = 0
    for k in range(4):
        ops += [V(f"v_lshlrev_b32 {LO[k]}, 16, {X[0][k]}", rd=[X[0][k]], wr=[LO[k]]),
                V(f"v_and_b32 {X[0][k]}, {sMask}, {X[0][k]}", rd=[X[0][k]], wr=[X[0][k]])]
        for g in range(1, 8):
            tm = tmp[n & 1]; n += 1
            ops += [V(f"v_lshlrev_b32 {tm}, 16, {X[g][k]}", rd=[X[g][k]], wr=[tm]),
                    V(f"v_and_b32 {X[g][k]}, {sMask}, {X[g][k]}", rd=[X[g][k]], wr=[X[g][k]]),
                    V(f"v_add_f32 {LO[k]}, {LO[k]}, {tm}", rd=[LO[k], tm], wr=[LO[k]]),
                    V(f"v_add_f32 {X[0][k]}, {X[0][k]}, {X[g][k]}", rd=[X[0][k], X[g][k]], wr=[X[0][k]])]
        ops.append(V(f"v_cvt_pk_bf16_f32 {X[0][k]}, {LO[k]}, {X[0][k]}", rd=[LO[k], X[0][k]], wr=[X[0][k]]))
    for a, b in zip(ops, ops[1:]): b.deps.append((a, 0))
    pl = []
    for j in range(2):
        pl.append(V8(f"v_permlane32_swap_b32 {X[0][j]}, {X[0][2+j]}", rd=[X[0][j], X[0][2+j]], wr=[X[0][j], X[0][2+j]], sdeps=[(ops[-1], 2)]))
    for j in range(2):
        pl.append(V8(f"v_permlane16_swap_b32 {X[0][j]}, {X[0][2+j]}", rd=[X[0][j], X[0][2+j]], wr=[X[0][j], X[0][2+j]], sdeps=[(pl[j], 2)]))
    st = Op(f"buffer_store_dwordx4 {RLD[set_][0]}, {vOut}, {srdO}, {sOut} offen{OSC}", "vm", rd=[RLD[set_][0], vOut, sOut], deps=[(pl[2], 1), (pl[3], 1)])
    return ops, pl, st
def red_loads(set_):
    return [Op(f"buffer_load_dwordx4 {RLD[set_][g]}, {vSt}, {srdWS}, {sLd if g < 4 else sLd2} offen offset:{(g & 3)*1024} sc1", "vm",
               rd=[vSt], wr=[RLD[set_][g]]) for g in range(8)]
def sig_ops():
    return [Op(f"buffer_store_dword {vSt}, {vFl}, {srdWS}, {sSig} offen@SC", "vm", rd=[vSt, vFl])]
def scal_A():
    return [f"s_sub_u32 {sTmp}, {sIt}, 1", f"s_and_b32 {sTmp}, {sTmp}, {sSlM}", f"s_mul_i32 {sTmp}, {sTmp}, {CHUNK}",
            f"s_add_u32 {sSt}, {sStR}, {sTmp}", f"s_add_u32 {sLd}, {sLdR}, {sTmp}", f"s_add_u32 {sLd2}, {sLd}, 0x1000",
            f"s_add_u32 {sSig}, {sSig}, 256"]
def scal_B():
    return [f"s_add_u32 {sOut}, {sOutR}, {sOc}", f"s_add_u32 {sOc}, {sOc}, 128", f"s_and_b32 {sOc}, {sOc}, 0x3ff", f"s_add_u32 {sIt}, {sIt}, 1"]

def build_G(first=False, left=()):
    rg = new_region("G0" if first else "G"); L = "F" if first else ""
    used = [SLOT[t] for t in NEXT]
    gs = used + [SLOT["K0"]] + [x for x in range(10) if x not in used and x not in (SLOT["K0"], SLOT["K1"], SLOT["V0"])][:1]
    assert len(gs) == 8
    gb = ringplan.bases(gs, BASE["W0"])[1]
    items = []; bars = {}; st_last = {}; rg.touch = []
    C.grp = 0
    def Bop(h): return (lambda s, t: ZA(h, s, t)) if h < 3 else (lambda s, t: OP(s, t))
    LD = [red_loads(0), red_loads(1)] if first else G_LD
    pend = None; prev_users = []
    if first:
        new = {}
        for o in left:
            dt, t = o.ot
            n = V(o.text, rd=list(o.rd), wr=list(o.wr)); new[id(o)] = n
            n.deps = [(new[id(p)], g) for (p, g) in o.deps if id(p) in new]
            n.e = 8 if dt >= 6 else -1
            n.d = (12*dt + 4*t - 1) if dt < 4 else (144 + 4*t + (dt >> 1) - 3)
            rg.F(n)
        cs = []
        for x in f"""v_mbcnt_lo_u32_b32 {vA}, -1, 0
v_mbcnt_hi_u32_b32 {vA}, -1, {vA}
v_lshlrev_b32 {vSt}, 4, {vA}
v_and_b32 {vPo}, 7, {vA}
v_lshlrev_b32 {vPo}, 2, {vPo}
v_lshrrev_b32 {vB}, 4, {vA}
v_bfe_u32 {vOut}, {vA}, 2, 2
v_and_b32 {vA}, 3, {vA}
v_lshl_add_u32 {vA}, {vOut}, 4, {vA}
v_lshlrev_b32 {vA}, 10, {vA}
v_lshl_add_u32 {vOut}, {vB}, 4, {vA}
v_mov_b32 {vFl}, {hex(OOB)}""".split("\n"):
            cs.append(rg.F(V(x, e=(0 if len(cs) < 3 else 40), d=110, deps=[(cs[-1], 0)] if cs else [])))
        sc = [rg.F(S(x)) for x in (f"s_lshl_b32 s5, {sG}, 2", f"s_cmp_eq_u32 {sWave}, 0", f"s_cselect_b32 s5, s5, {hex(OOB)}", f"s_mov_b32 {sMask}, 0xffff0000",
                                   f"s_mov_b32 {sLd}, {sLdR}", f"s_add_u32 {sLd2}, {sLd}, 0x1000", f"s_mov_b32 {sSig}, {sFlR}", f"s_mov_b32 {sExp}, 16")]
        wl = rg.F(V(f"v_writelane_b32 {vFl}, s5, 1", deps=[(cs[-1], 0), (sc[2], 0)], d=120))
        prev = None
        for k in range(2):
            if k: a1 = rg.F(S(f"s_add_u32 {sLd}, {sLd}, {CHUNK}", deps=[(prev, 1)])); a2 = rg.F(S(f"s_add_u32 {sLd2}, {sLd}, 0x1000"))
            for i, o in enumerate(red_loads(k)):
                o.text = o.text.replace(" sc1", ""); o.tag = "touch"
                o.e = (OPT["gdma"] + 84 if k else 8) + 4*i; o.d = o.e + 3
                o.deps = [(cs[2], 1), ((a2 if k else sc[5]), 0)] + ([(prev, 1)] if prev else []); rg.F(o); prev = o; rg.touch.append(o)
        last0 = prev
        f = 48; prevm = None
        seq = [(f"v_lshrrev_b32 v{f}, 4, {vSt}", 0), (f"v_lshrrev_b32 v{f+1}, 4, v{f}", 0), (f"v_and_b32 v{f+2}, 1, v{f}", 0), (f"v_lshlrev_b32 v{f+2}, 4, v{f+2}", 0),
               (f"v_mov_b32 v{f+3}, 0x3f80", 0), (f"v_lshlrev_b32 v{f+2}, v{f+2}, v{f+3}", 0), (f"v_bfe_u32 v{f+3}, v{f}, 1, 1", 0), (f"v_bfe_u32 v{f+4}, v{f}, 3, 1", 0),
               (f"v_lshl_add_u32 v{f+3}, v{f+4}, 1, v{f+3}", 0), (f"v_bfe_u32 v{f+4}, v{f}, 2, 1", 0), (f"v_lshlrev_b32 v{f+4}, 1, v{f+4}", 0), (f"v_add_u32 v{f+5}, 1, v{f+4}", 0),
               (f"v_cmp_eq_u32 vcc, v{f+1}, v{f+4}", 0), (f"v_cmp_eq_u32 {sBad}, v{f+1}, v{f+5}", 0),
               (f"v_cndmask_b32 v{f+6}, 0, v{f+2}, vcc", 2), (f"v_cndmask_b32 v{f+7}, 0, v{f+2}, {sBad}", 0)]
        for r_ in range(4):
            seq += [(f"v_cmp_eq_u32 vcc, {r_}, v{f+3}", 0), (f"v_cndmask_b32 v{f}, 0, v{f+6}, vcc", 2), (f"v_cndmask_b32 v{f+1}, 0, v{f+7}, vcc", 0),
                    (f"v_accvgpr_write_b32 a{48+r_}, v{f}", 0), (f"v_accvgpr_write_b32 a{52+r_}, v{f+1}", 0)]
        for x, n_ in seq:
            prevm = rg.F(V(x, rd=[f"v[{f}:{f+7}]"], wr=[f"v[{f}:{f+7}]"], e=152, d=188, deps=([(prevm, 0)] if prevm else []), sdeps=([(prevm, n_)] if n_ else [])))
    for hf in range(2):
        h0 = 192*hf
        do_st = not (first and hf == 0); do_sum = not first
        stores = []
        if do_st:
            for (cv, sa, st) in pack_store(1 - hf):
                for o in cv: o.e = h0 + 8; rg.F(o)
                if len(stores) >= 2: sa.deps.append((stores[-2], 1))
                rg.F(sa); st.e = h0 + 10 + OPT['gst']*len(stores); st.d = st.e + 3; rg.F(st); stores.append(st)
        if do_sum:
            sc = [rg.F(S(x, e=h0, deps=[(u, 1) for u in prev_users])) for x in scal_B()]
            if hf == 0: sB0 = sc[-1]
            cur = hf ^ 1
            w0 = rg.F(WAIT(h0 + OPT['gsum'], need_vm=LD[cur] + (G_LD0 if hf == 0 else []), late=1)); w0.e = h0 + OPT['gsum']
            o0, p0, s0_ = reduce_ops(cur)
            o0[0].deps.append((w0, 0))
            for o in o0 + p0 + [s0_]: rg.F(o)
            s0_.d = h0 + OPT['gout']; s0_.deps += [(sc[0], 0), (LD[hf][-1], 1)]
            prev_users = [s0_]
        infos = []
        for j in range(4):
            st = 4*hf + j
            n1 = (st + 1) & 7
            pend, inf = w_step(rg, hf, j == 0, Bop(j), pend, ("W", gs[st], gb[st]), ("W", gs[n1], gb[n1], gb[st]), [f"G{n1}"] + ([f"G{(st + 2) & 7}"] if OPT["gb2"] else []),
                               extra=(stores if j == 1 else ()), nobar=(OPT["gb2"] and not (j & 1)))
            infos.append(inf); bars[st] = inf["bar"]
            if OPT["gb2"] and (j & 1): bars[st - 1] = inf["bar"]
        if do_st:
            sig, = sig_ops(); bs = infos[1]["bar"]
            sig.deps = [(bs, 0)]; sig.d = bs.e + 1; rg.F(sig)
            rg.F(S(f"s_load_dwordx8 s[8:15], s[82:83], {sSig}", e=h0 + OPT['gpoll'], d=h0 + OPT['gpoll'] + 4))
            b2 = infos[2]["bar"]
            if b2 is None:
                b2 = rg.F(WAIT(h0 + 132, lg0=True, late=1)); b2.e = h0 + 132
            for x in ("s_and_b32 s8, s8, s9", "s_and_b32 s10, s10, s11", "s_and_b32 s12, s12, s13", "s_and_b32 s14, s14, s15",
                      "s_and_b32 s8, s8, s10", "s_and_b32 s12, s12, s14", "s_and_b32 s8, s8, s12", "s_bitcmp0_b32 s8, 4"): rg.F(S(x, deps=[(b2, 0)]))
            br = rg.F(Op(f"s_cbranch_scc1 L_spinG{hf}{L}@L\nL_backG{hf}{L}@L:", "s", d=b2.e + 12))
            prev = None
            for i, o in enumerate(LD[hf]):
                o.deps += [(br, 0)] + ([(prev, 1)] if prev else []); o.e = b2.e + 10 + OPT['gld']*i; o.d = o.e + 3; rg.F(o); prev = o
            lastld = LD[hf][-1]
        else: lastld = last0
        if first: rg.F(S(f"s_mov_b32 {sIt}, {hf + 1}", deps=[(lastld, 1)]))
        for i, x in enumerate(scal_A()): rg.F(S(x, deps=[(lastld, 1)] if i == 0 else []))
        for k in range(4):
            st = (4*hf - 2 + k) & 7
            items.append((f"G{st}", ("C", (1 + (st >> 2)) if (hf or k > 1) else 0, st & 3), gs[st], h0 + OPT["gdma"] + k*(4*OPT["gdsp"] + 1) + (4 if (OPT["gb2"] and k > 1) else 0), OPT["gdsp"],
                          bars[st] if (hf or k > 1) else None))
        if stores: st_last[hf] = stores[-1]
    add_dmas(rg, items)
    if not first:
        c1 = S(f"s_cmp_ge_u32 {sIt}, 7", deps=[(TILE["G7"][-1], 1)]); c2 = S("s_cselect_b32 s18, 0, s18", wr=["s18"], rd=["s18"])
        pos = rg.fill.index(sB0) + 1
        rg.fill[pos:pos] = [c1, c2]
        for i, o in enumerate(rg.fill): o.seq = i + 1
        rg.first_dma["G0"].deps.append((c2, 0))
        rg.first_dma["G6"].deps.append((st_last[0], 1))
    rg.first_dma["G2"].deps.append((st_last[1], 1))
    rg.LD = LD; rg.pend = pend
    rg.schedule()
    return rg

def stamp(kind=0):
    if not OPT["stamps"]: return []
    def put(x): return lin(f"v_mov_b32 {vA}, {x}") + [Op(f"buffer_store_dword {vA}, off, {srdWS}, s101", "vm")] + lin("s_add_u32 s101, s101, 4\ns_nop 1")
    if kind == 1: return put("s94") + put("s92") + ((lin("s_waitcnt lgkmcnt(0)") + put("s84") + put("s92") + put("s86") + put("s92")) if OPT["stamps"] == 4 else []) + stamp()
    if kind == 2: return lin("s_waitcnt vmcnt(0)") + stamp()
    return lin("s_memtime s[2:3]\ns_memrealtime s[4:5]\ns_waitcnt lgkmcnt(0)") + put("s2") + put("s4")

def code_pf(lbl, start, end, mask, r):
    if not OPT["pf"]: return []
    return lin(f"""s_getpc_b64 s[{r}:{r+1}]
{lbl}:
s_add_u32 s{r}, s{r}, {start}-{lbl}
s_addc_u32 s{r+1}, s{r+1}, {"-1" if start == KN else "0"}
s_mov_b32 s{r+2}, {end}-{start}
s_mov_b32 s{r+3}, 0x20000
s_lshl_b32 s5, {sIdx}, 2
s_add_u32 s5, s5, {sWave}
s_and_b32 s5, s5, {mask}
s_lshl_b32 s5, s5, 13
v_mbcnt_lo_u32_b32 {vA}, -1, 0
v_mbcnt_hi_u32_b32 {vA}, -1, {vA}
v_lshlrev_b32 {vA}, 7, {vA}""") + [Op(f"buffer_load_dword {vB}, {vA}, s[{r}:{r+3}], s5 offen", "vm")]

HROT = {0: "s_mov_b32 s5, 0", 1: "s_mov_b32 s5, s4", 2: f"s_mov_b32 s5, {sG}", 3: f"s_add_u32 s5, s4, {sG}", 4: f"s_lshr_b32 s5, {sG}, 1",
        5: f"s_lshr_b32 s5, {sB}, 3", 6: f"s_lshr_b32 s5, {sG}, 2\ns_lshl_b32 s3, {sG}, 1\ns_or_b32 s5, s5, s3", 7: f"s_sub_u32 s5, 0, {sG}", 8: f"s_lshl_b32 s5, {sG}, 2", 9: f"s_lshl_b32 s5, s4, 2"}[OPT["hrot"]]
if OPT["krot"] < 3:
    KROT = f"""{f"s_add_u32 s4, {sB}, {sG}" if OPT["krot"] == 2 else ""}
s_and_b32 s4, s4, {3 if OPT["krot"] else 0}
s_lshl_b32 {sDg[0]}, s4, 20
s_add_u32 {sDg[1]}, {sDg[0]}, 0x100000
s_and_b32 {sDg[1]}, {sDg[1]}, 0x3fffff
s_xor_b32 {sDg[2]}, {sDg[0]}, 0x200000
s_xor_b32 {sDg[3]}, {sDg[1]}, 0x200000"""
else:
    KROT = f"""s_add_u32 s5, {sB}, {sG}
s_mul_i32 s3, s5, 43
s_lshr_b32 s3, s3, 7
s_mul_i32 s3, s3, 3
s_sub_u32 s5, s5, s3
s_add_u32 {sDg[3]}, s4, 3
s_add_u32 {sDg[0]}, s4, s5
s_cmp_eq_u32 s5, 2
s_cselect_b32 s3, -2, 1
s_add_u32 {sDg[1]}, {sDg[0]}, s3
s_cmp_eq_u32 s5, 0
s_cselect_b32 s3, 2, -1
s_add_u32 {sDg[2]}, {sDg[0]}, s3""" + "".join(f"\ns_and_b32 {sDg[q]}, {sDg[q]}, 3\ns_lshl_b32 {sDg[q]}, {sDg[q]}, 20" for q in range(4))
def prologue(F):
    init = F.init
    o = lin(f"""
s_cmp_lt_u32 s2, 256
s_cbranch_scc1 L_go
s_endpgm
L_go:
{"s_memrealtime s[92:93]" if (OPT["stamps"] or OPT["dbl"]) else ""}
{"s_memtime s[94:95]" if OPT["stamps"] else ""}
s_load_dwordx16 s[68:83], s[0:1], 0
v_lshrrev_b32 v1, 6, v0
v_and_b32 {vLane}, 63, v0
s_and_b32 s4, s2, 7
v_readfirstlane_b32 {sWave}, v1
s_lshr_b32 s5, s2, 3
s_mov_b32 {sIdx}, s5""")
    mp = {84: (1, 3, 2, 1, 2, 3), 48: (0, 2, 3, 0, 3, 7), 162: (2, 4, 1, 3, 1, 1)}[OPT["mapping"]]
    o += lin(f"""
s_lshr_b32 s6, s4, {mp[0]}
s_lshl_b32 s6, s6, {mp[1]}
s_lshr_b32 s7, s5, {mp[2]}
s_add_u32 {sB}, s6, s7
s_and_b32 s6, s4, {mp[3]}
s_lshl_b32 s6, s6, {mp[4]}
s_and_b32 s7, s5, {mp[5]}
s_add_u32 {sG}, s6, s7""")
    cbits = struct.unpack("<I", struct.pack("<f", math.log2(math.e)/math.sqrt(128)))[0]
    o += lin(f"""
s_lshl_b32 {sW4k}, {sWave}, 12
v_lshrrev_b32 v5, 4, {vLane}
v_and_b32 v6, 15, {vLane}
s_lshl_b32 s6, {sWave}, 4
v_add_u32 v1, s6, v5
s_lshl_b32 s6, {sWave}, 2
v_or_b32 v2, s6, v5
v_xor_b32 v2, v2, v6
v_lshlrev_b32 v2, 4, v2
v_lshl_add_u32 {vDX}, v1, 10, v2
v_lshl_add_u32 {vDK}, v1, 8, v2
v_lshrrev_b32 v7, 5, {vLane}
v_bfe_u32 v2, {vLane}, 3, 2
v_lshl_add_u32 v7, v7, 3, v2
s_lshl_b32 s6, {sWave}, 5
v_add_u32 v7, s6, v7
v_and_b32 v3, 7, {vLane}
v_lshlrev_b32 v4, 1, v5
v_xor_b32 v3, v3, v4
v_lshlrev_b32 v3, 4, v3
s_mov_b32 {sDY[1]}, 3072
s_mov_b32 {sDY[2]}, 6144
s_mov_b32 {sDY[3]}, 9216
s_mov_b32 {sD[1]}, {16*8192 - 1024}
s_mov_b32 {sD[2]}, {4*8192 - 2048}
s_mov_b32 {sD[3]}, {20*8192 - 3072}
s_lshr_b32 s4, {sB}, 2
{HROT}
s_bfe_u32 {sSw}, s5, {"0x10002" if OPT["hswap"] else "0x00002"}
s_and_b32 s5, s5, {3 if OPT["hrot"] else 0}
s_mov_b32 {sHr}, s5
s_lshl_b32 {sWcol}, s5, 8
s_lshl_b32 {sSw}, {sSw}, 7
s_or_b32 {sWcol}, {sWcol}, {sSw}
s_lshr_b32 {sSw}, {sSw}, 1
v_xor_b32 v7, {sSw}, v7
v_lshl_add_u32 {vDW}, v7, 13, v3
s_lshl_b32 {sKoff}, s5, 17
s_mov_b32 {sVoff}, {sKoff}
{KROT}
s_mul_i32 s7, {sB}, {0 if OPT["samex"] else 196608}
s_mov_b32 s22, 196608
s_mov_b32 s23, 0x20000
s_mov_b32 s19, 0x20000
s_lshl_b32 s4, {sG}, 10
{"s_mov_b32 s4, 0" if OPT["samew"] else ""}
s_sub_u32 s18, 0x400000, s4
s_waitcnt lgkmcnt(0)
s_add_u32 s20, s68, s7
s_addc_u32 s21, s69, 0
s_add_u32 s16, s74, s4
s_addc_u32 s17, s75, 0""")
    if OPT["tch"]:
        o += lin(f"""v_lshrrev_b32 v8, 1, {vLane}
v_and_b32 v9, 1, {vLane}
v_lshlrev_b32 v9, 7, v9
v_lshl_add_u32 v11, v8, 13, v9
v_lshl_add_u32 v8, v8, 10, v9
v_mov_b32 v10, {hex(OOB)}
v_cmp_gt_u32 vcc, 12, {vLane}
s_lshl_b32 s4, {sG}, 2
s_add_u32 s4, s4, {sWave}
s_mul_i32 s4, s4, 6144
v_cndmask_b32 v8, v10, v8, vcc
v_cmp_gt_u32 vcc, 16, {vLane}
s_and_b32 s5, {sB}, 3
s_lshl_b32 s5, s5, 2
s_add_u32 s5, s5, {sWave}
s_lshl_b32 s5, s5, 16
s_add_u32 s5, s5, {sWcol}
v_cndmask_b32 v11, v10, v11, vcc
v_add_u32 v8, s4, v8
v_add_u32 v11, s5, v11""")
        for q in range(OPT["tch"] - 1, 4):
            o += lin(f"s_lshr_b32 s3, {sDg[q]}, 12")
            o += [Op(f"buffer_load_dword {vB}, v8, {srdX}, s3 offen", "vm"), Op(f"buffer_load_dword {vB}, v11, {srdW}, {sDg[q]} offen", "vm")]
    if OPT["stamps"] == 4: o += lin("s_memtime s[84:85]")
    for j in range(4): o += dma_linear(*init[j])
    if OPT["stamps"] == 4: o += lin("s_memtime s[86:87]")
    o += lin(f"""s_lshl_b32 s3, {sB}, 22
s_lshl_b32 s7, {sG}, 19
s_add_u32 s3, s3, s7
{"s_mov_b32 s3, 0" if OPT["samekv"] else ""}
s_add_u32 s8, s70, s3
s_addc_u32 s9, s71, 0
s_mov_b32 s10, 0x80000
s_mov_b32 s11, 0x20000
s_add_u32 s12, s72, s3
s_addc_u32 s13, s73, 0
s_mov_b32 s14, 0x80000
s_mov_b32 s15, 0x20000
""")
    if OPT["tlb"]:
        o += [Op(f"buffer_load_dword {vB}, off, {srdK}, 0", "vm"), Op(f"buffer_load_dword {vB}, off, {srdV}, 0", "vm")]
        o += [Op(f"buffer_load_dword {vB}, off, {srdW}, {sDg[q]}", "vm") for q in (1, 2, 3)]
    o += code_pf("L_pc", KN, "L_g3", OPT["pf"] - 1, 88)
    o += lin(f"""
v_lshrrev_b32 v7, 3, {vLane}
v_add_u32 v7, s6, v7
v_lshl_add_u32 {vDWo}, v7, 10, v3
s_and_b32 s6, {sWave}, 1
s_lshl_b32 s6, s6, 2
v_or_b32 v2, s6, v5
v_lshlrev_b32 v2, 1, v2
v_xor_b32 v2, v2, v6
v_lshlrev_b32 v1, 8, v1
v_lshl_add_u32 {vDV}, v2, 4, v1
s_mov_b32 s24, s82
s_mov_b32 s25, s83
s_mov_b32 s26, {hex(WS_BYTES)}
s_mov_b32 s27, 0x20000
v_lshrrev_b32 v1, 3, {vLane}
v_and_b32 v2, 7, {vLane}
v_lshlrev_b32 v1, 8, v1
v_lshl_add_u32 v8, v2, 2, v1
s_lshl_b32 s6, {sB}, 11
s_add_u32 s6, s6, {hex(FLAG_BASE)}
s_or_b32 s7, {sG}, {sWave}
s_cmp_eq_u32 s7, 0
s_cselect_b32 {sTmp}, s6, {hex(OOB)}
v_mov_b32 v9, 0""")
    zst = Op(f"buffer_store_dword v9, v8, {srdWS}, {sTmp} offen sc1", "vm"); o.append(zst)

    o += lin(f"""
s_mov_b32 {sScale}, {hex(cbits)}
s_mov_b32 {sLo}, 0x30800000
s_mov_b32 {sHi}, 0x4e800000
s_mov_b32 {sHead}, 0
s_lshl_b32 {sW1k}, {sWave}, 10
s_mov_b32 s28, s78
s_mov_b32 s29, s79
s_mov_b32 s30, 0x600000
s_mov_b32 s31, 0x20000
s_mov_b32 s32, s80
s_mov_b32 s33, s81
s_mov_b32 s34, 0x100
s_mov_b32 s35, 0x20000

v_lshrrev_b32 v1, 2, v6
v_and_b32 v2, 3, v6
v_lshl_add_u32 v3, v1, 4, v2
v_lshlrev_b32 v3, 8, v3""")
    for s in range(4):
        o += lin(f"s_and_b32 s3, {sWcol}, 128\nv_add_u32 v4, {4*s}, v5\nv_xor_b32 v4, v4, v6\nv_lshl_add_u32 {vK[s]}, v4, 4, v3\nv_xor_b32 {vK[s]}, s3, {vK[s]}")
    o += lin(f"""
v_lshl_add_u32 v3, v5, 4, v1
v_lshlrev_b32 v3, 8, v3
v_and_b32 v4, 1, v5
v_lshl_add_u32 v7, v4, 2, v1
v_lshl_add_u32 v3, v7, 5, v3
v_lshl_add_u32 v3, v2, 3, v3
v_add_u32 {vVb}, {BASE["V7"]*16384}, v3
v_lshl_add_u32 v3, v5, 2, v1
v_lshlrev_b32 v3, 7, v3
v_lshrrev_b32 v7, 1, v1
v_lshl_add_u32 v7, v4, 1, v7
{"v_lshlrev_b32 v7, 1, v7" if OPT["nperm"] else "v_lshl_add_u32 v3, v7, 5, v3"}
{"v_xor_b32 v7, v7, v2" if OPT["nperm"] else ""}
{"v_lshl_add_u32 v7, v7, 4, v3" if OPT["nperm"] else "v_lshl_add_u32 v7, v2, 3, v3"}
v_add_u32 {vWb}, {F.wb0*16384}, v7
v_mov_b32 v3, 0x3f803f80
v_cmp_eq_u32 vcc, 0, v2
s_nop 1
{"v_cndmask_b32 v3, 0, v3, vcc" if OPT["ones4"] else ""}
v_accvgpr_write_b32 a252, v3
v_accvgpr_write_b32 a253, v3
v_accvgpr_write_b32 a254, v3
v_accvgpr_write_b32 a255, v3
""")
    for s in range(4):
        o += lin(f"v_add_u32 v{S0+s}, {sW1k}, {vK[s]}\nv_add_u32 v{S0+4+s}, 0x10000, v{S0+s}\nv_add_u32 v{S0+8+s}, 0x20000, v{S0+s}\nv_add_u32 {vK[s]}, {BASE['K7']*16384}, {vK[s]}")
    o += lin(f"s_add_u32 {sW1k}, {sW1k}, {lit((XB - BASE['K7'])*16384)}")
    for j in range(4, 8): o += dma_linear(*init[j])
    o += lin(f"""s_lshl_b32 s6, {sG}, 19
s_add_u32 s80, s76, s6
s_addc_u32 s81, s77, 0
s_mov_b32 {sGate}, 0
s_lshl_b32 {sH[0]}, {sHr}, 17
s_add_u32 {sH[1]}, {sH[0]}, 0x20000
s_and_b32 {sH[1]}, {sH[1]}, 0x7ffff
s_xor_b32 {sH[2]}, {sH[0]}, 0x40000
s_xor_b32 {sH[3]}, {sH[1]}, 0x40000
{"s_mov_b32 s73, s92" if OPT["dbl"] else ""}
s_getreg_b32 {sXcc}, hwreg(HW_REG_XCC_ID, 0, 3)
s_lshr_b32 {sRot}, {sB}, 2
s_and_b32 {sRot}, {sRot}, {7 if OPT["rot"] else 0}
s_lshl_b32 {sRot}, {sRot}, 7
s_lshl_b32 {sXcc}, {sXcc}, 2
s_lshl_b32 {sXcc}, 1, {sXcc}""" + "".join(f"\ns_add_u32 {sC[i]}, {sRot}, {128*(i+1)}\ns_and_b32 {sC[i]}, {sC[i]}, 0x3ff" for i in range(3))
      + "".join("\n" + "\n".join(x_t0(sN[NEXT.index('X' + 'abc'[a])], a, 3)) for a in range(3)) + f"""
s_mul_i32 s6, {sB}, {8*CHUNK + 4096}
s_mov_b32 s75, s6
s_add_u32 s6, s6, 4096
s_mul_i32 s7, {sWave}, 49152
s_add_u32 {sStR}, s6, s7
s_lshl_b32 s7, {sG}, 10
s_add_u32 {sStR}, {sStR}, s7
s_mul_i32 s7, {sG}, 3
s_add_u32 s7, s7, {sWave}
s_lshl_b32 s4, s7, 13
s_add_u32 {sLdR}, s6, s4
s_lshl_b32 {sFlR}, {sB}, 11
s_add_u32 {sFlR}, {sFlR}, {hex(FLAG_BASE - 256)}
s_lshr_b32 s4, s7, 1
s_mul_i32 s5, s4, 11
s_lshr_b32 s5, s5, 5
s_mul_i32 s3, s5, 3
s_sub_u32 s4, s4, s3
s_lshl_b32 s4, s4, 6
s_lshl_b32 s5, s5, 2
s_add_u32 s4, s4, s5
s_mul_i32 s5, {sB}, 192
s_add_u32 s4, s4, s5
s_lshl_b32 s4, s4, 10
s_and_b32 s5, s7, 1
s_lshl_b32 s5, s5, 6
s_add_u32 {sOutR}, s4, s5
s_mov_b32 {sOc}, {sRot}
s_cmp_eq_u32 {sWave}, 3
s_cselect_b32 {sLdR}, {hex(OOB)}, {sLdR}
s_cselect_b32 {sOutR}, {hex(OOB)}, {sOutR}
v_bfe_u32 v3, {vLane}, 3, 2
v_and_b32 v2, 3, {vLane}
v_lshlrev_b32 {vC}, 5, v3
v_lshl_add_u32 {vC}, v2, 3, {vC}
v_lshlrev_b32 v3, 1, v3
v_xor_b32 v2, v2, v3
v_lshlrev_b32 v2, 4, v2
v_sub_u32 {vC}, {vC}, v2""")
    if OPT["tlb"] == 2:
        o += lin(f"""s_mov_b32 s4, {hex(FLAG_BASE + 0x20080)}
s_mov_b32 s88, s80
s_mov_b32 s89, s81
s_mov_b32 s90, 0x80000
s_add_u32 s5, s75, {8*CHUNK + 4096}""") if False else lin(f"s_mov_b32 s4, {hex(FLAG_BASE + 0x20080)}\ns_add_u32 s5, s75, {8*CHUNK + 4096}")
        o += [Op(f"buffer_load_dword {vB}, off, {srd}, {so}", "vm") for srd, so in ((srdWS, "s75"), (srdWS, "s5"), (srdWS, "s4"), (srdO, sOutR))]
    if OPT["pf3"]:
        o += lin(f"""s_getpc_b64 s[76:77]
L_pc3:
s_add_u32 s76, s76, L_loop-L_pc3
s_addc_u32 s77, s77, 0
s_mov_b32 s78, L_R2-L_loop
s_mov_b32 s79, 0x20000
s_lshl_b32 s75, {sIdx}, 2
s_add_u32 s75, s75, {sWave}
s_and_b32 s75, s75, 15
s_lshl_b32 s75, s75, 13""")
    if OPT["stress"]: o += lin(f"s_lshl_b32 s75, s2, 20\ns_add_u32 s75, s75, 0x8000000\ns_mul_i32 s4, {sWave}, 0x3f000\ns_add_u32 s75, s75, s4")
    if OPT["stamps"]:
        o += lin(f"s_lshl_b32 s101, s2, 10\ns_lshl_b32 s6, {sWave}, 8\ns_add_u32 s101, s101, s6\ns_add_u32 s101, s101, {hex(STAMP_BASE)}")
    if OPT["stamps"] in (2, 4): o += stamp(1)
    o.append(WAIT(0, need_vm=[x[0] for x in init[:4]]))
    o += lin("s_barrier")
    if OPT["stamps"] in (2, 4): o += stamp()
    for t in range(3):
        for s in range(4): o += lin("ds_read_b128 %s, %s offset:%d" % ((XA(s, t),) + F.xaddr(F.xsl0[t], s)))
    for s in range(4):
        for p in range(2): o += lin(f"ds_read_b64_tr_b16 {FR(0, s, p)}, {vWb} offset:{F.wso0 + s*4096 + p*2048}")
    o += lin("s_waitcnt lgkmcnt(0)\ns_barrier")
    return o, zst

def glue0(zst):
    return [WAIT(0, need_vm=[zst])] + lin(f"""s_lshl_b32 s6, {sB}, 2
s_cmp_eq_u32 {sWave}, 0
s_cselect_b32 s6, s6, {hex(OOB)}
v_mov_b32 {vB}, {hex(OOB)}
v_writelane_b32 {vB}, 0, 0
v_mov_b32 {vA}, {sXcc}""") + [Op(f"buffer_atomic_add {vA}, {vB}, {srdD}, s6 offen sc1", "vm")]
def touch_setup():
    return lin(f"""s_cmp_eq_u32 {sSlM}, 1
s_cselect_b32 s4, 256, {hex(OOB)}
v_lshlrev_b32 {vA}, 1, {vA}
v_and_b32 {vA}, 0x700, {vA}
s_add_u32 s4, s4, {sFlR}""") + [Op(f"buffer_load_dword {vB}, {vA}, {srdWS}, s4 offen sc1", "vm")]
def mode_check(dbg):
    if OPT["bst"]: return lin(f"L_chkD:\nL_backD:\ns_mov_b32 {sSlM}, 1")
    return [WAIT(0, need_vm=[dbg])] + lin(f"""s_mov_b32 s3, 0
L_chkD:
v_readfirstlane_b32 s4, {vLane}
s_nop 3
s_lshr_b32 s5, s4, 4
s_and_b32 s5, s5, 0x0f0f0f0f
s_and_b32 s7, s4, 0x0f0f0f0f
s_add_u32 s5, s5, s7
s_mul_i32 s5, s5, 0x01010101
s_lshr_b32 s5, s5, 24
s_cmp_lg_u32 s5, 8
s_cbranch_scc1 L_spinD
L_backD:
s_lshl_b32 s5, {sXcc}, 3
{"s_mov_b32 s5, 0" if OPT["forceslow"] else ""}
s_cmp_eq_u32 s4, s5
s_cselect_b32 {sSlM}, 1, 7""")

def slow_path(placed, pendW0):
    vKo, vVo, vVo2, vKo2 = f"v{PV0+40}", f"v{PV0+41}", f"v{PV0+42}", f"v{PV0+43}"
    M = [f"v{PV0+36+t}" for t in range(3)]
    CN = [R("v", PV0 + 24 + 4*t, 4) for t in range(3)]
    Sx = [R("v", S0 + 4*t, 4) for t in range(3)]
    t_ = f"""
L_slow:
s_waitcnt vmcnt(0) lgkmcnt(0)
s_nop 7
v_mbcnt_lo_u32_b32 {vB}, -1, 0
v_mbcnt_hi_u32_b32 {vB}, -1, {vB}
v_and_b32 {vA}, 15, {vB}
v_lshrrev_b32 {vB}, 4, {vB}
v_lshlrev_b32 {vKo}, 8, {vA}
v_lshl_add_u32 {vKo}, {vB}, 4, {vKo}
s_and_b32 s4, {sWcol}, 128
s_xor_b32 s5, s4, 128
v_add_u32 {vKo2}, s5, {vKo}
v_add_u32 {vKo}, s4, {vKo}
v_lshlrev_b32 {vVo}, 10, {vB}
v_lshl_add_u32 {vVo}, {vA}, 1, {vVo}
v_add_u32 {vVo2}, 0x1000, {vVo}
s_add_u32 s4, {sHr}, {sHead}
s_and_b32 s4, s4, 3
s_lshl_b32 s4, s4, 17
s_mov_b32 s10, 0x80000
s_mov_b32 s14, 0x80000
s_add_u32 s5, s4, 0x20000
s_mov_b32 s6, s4
"""
    for t in range(3): t_ += f"v_mov_b32 {M[t]}, 0xff800000\n"
    t_ += "L_slow1:\n"
    for s in range(4): t_ += f"buffer_load_dwordx4 {FR(0, s)}, {vKo if s < 2 else vKo2}, {srdK}, s6 offen offset:{64*(s & 1)}\n"
    t_ += "s_waitcnt vmcnt(0)\n"
    for t in range(3):
        for s in range(4): t_ += f"v_mfma_f32_16x16x32_bf16 {Sx[t]}, {FR(0, s)}, {QV(s, t)}, {'0' if s == 0 else Sx[t]}\n"
    t_ += "s_nop 9\n"
    for t in range(3):
        t_ += f"v_max3_f32 {M[t]}, {M[t]}, v{S0+4*t}, v{S0+4*t+1}\nv_max3_f32 {M[t]}, {M[t]}, v{S0+4*t+2}, v{S0+4*t+3}\n"
    t_ += "s_add_u32 s6, s6, 0x1000\ns_cmp_lt_u32 s6, s5\ns_cbranch_scc1 L_slow1\n"
    for t in range(3):
        t_ += f"""v_mov_b32 {vA}, {M[t]}
s_nop 1
v_permlane32_swap_b32 {vA}, {M[t]}
s_nop 1
v_max_f32 {M[t]}, {vA}, {M[t]}
v_mov_b32 {vA}, {M[t]}
s_nop 1
v_permlane16_swap_b32 {vA}, {M[t]}
s_nop 1
v_max_f32 {M[t]}, {vA}, {M[t]}
"""
        for i in range(4): t_ += f"v_sub_f32 v{PV0+24+4*t+i}, 0, {M[t]}\n"
    for i in range(96): t_ += f"v_mov_b32 v{i}, 0\n"
    for i in range(12): t_ += f"v_accvgpr_write_b32 a{240+i}, 0\n"
    t_ += "s_mov_b32 s6, s4\nL_slow2:\n"
    for u in range(2):
        for s in range(4): t_ += f"buffer_load_dwordx4 {FR(0, s)}, {vKo if s < 2 else vKo2}, {srdK}, s6 offen offset:{64*(s & 1)}\n"
        t_ += "s_waitcnt vmcnt(0)\n"
        for t in range(3):
            for s in range(4): t_ += f"v_mfma_f32_16x16x32_bf16 {Sx[t]}, {FR(0, s)}, {QV(s, t)}, {CN[t] if s == 0 else Sx[t]}\n"
        t_ += "s_nop 9\n"
        for i in range(12): t_ += f"v_exp_f32 v{S0+i}, v{S0+i}\n"
        t_ += "s_nop 0\n"
        for t in range(3):
            for j in range(2): t_ += f"v_cvt_pk_bf16_f32 {PBr(0, 0, t, 2*u + j)}, v{S0+4*t+2*j}, v{S0+4*t+2*j+1}\n"
        if u == 0: t_ += "s_mov_b32 s7, s6\ns_add_u32 s6, s6, 0x1000\n"
    f = FA0 + 16
    for dt in range(8):
        for j in range(8):
            t_ += f"buffer_load_ushort v{FA0 + j}, {vVo if j < 4 else vVo2}, {srdV}, s7 offen offset:{(j & 3)*256 + 32*dt}\n"
        t_ += "s_waitcnt vmcnt(0)\n"
        for j in range(4): t_ += f"v_lshl_or_b32 v{f + j}, v{FA0 + 2*j + 1}, 16, v{FA0 + 2*j}\n"
        t_ += "s_nop 1\n"
        for t in range(3): t_ += f"v_mfma_f32_16x16x32_bf16 {OA(dt, t)}, v[{f}:{f+3}], {PB(0, 0, t)}, {OA(dt, t)}\n"
    for t in range(3): t_ += f"v_mfma_f32_16x16x32_bf16 {LA(t)}, {ONES}, {PB(0, 0, t)}, {LA(t)}\n"
    t_ += "s_add_u32 s6, s6, 0x1000\ns_cmp_lt_u32 s6, s5\ns_cbranch_scc1 L_slow2\ns_nop 9\n"
    for t in range(3): t_ += f"v_accvgpr_read_b32 {vRL[t]}, a{240+4*t}\n"
    for t in range(3): t_ += f"v_rcp_f32 {vRL[t]}, {vRL[t]}\n"
    t_ += "s_nop 0\n"
    for o in placed: t_ += o.text + "\n"
    for o in pendW0: t_ += o.text + "\n"
    t_ += "s_waitcnt lgkmcnt(0)\n"
    t_ += "s_branch L_join\n"
    return lin(t_)

def spin(lbl, back, reg, off_v, srd, soff, exp):
    return lin(f"""{lbl}:
s_mov_b32 s3, 0
{lbl}_l:
buffer_load_dword {reg}, {off_v}, {srd}, {soff}{' offen' if off_v != 'off' else ''} sc1
s_add_u32 s3, s3, 1
s_waitcnt vmcnt(0)
v_cmp_ne_u32 vcc, {exp}, {reg}
s_cmp_gt_u32 s3, 0x10000
s_cbranch_scc1 {back}
s_nop 2
s_cbranch_vccnz {lbl}_l
s_branch {back}""")

def pad_linear(ops):
    out = []
    for o in ops:
        need = 0
        for (p, n) in o.sdeps:
            if p in out: need = max(need, n - sum(x.w for x in out[out.index(p)+1:]))
        if need > 0:
            nop = Op(f"s_nop {need-1}", "x"); nop.w = need; out.append(nop)
        out.append(o)
    return out

def tail(G):
    X = (lambda: stamp()) if OPT["stamps"] == 3 else (lambda: [])
    def sums(set_, loads):
        o0, p0, s0_ = reduce_ops(set_)
        return [WAIT(0, need_vm=loads)] + pad_linear(o0 + p0 + [s0_])
    def msum(set_, loads):
        A0, A1, D0, D1 = "a[48:51]", "a[52:55]", FR(1, 0), FR(1, 1)
        r = []
        for g in range(8):
            r += [WAIT(0, need_vm=[loads[g]]), mfma(D0, A0, RLD[set_][g], "0" if g == 0 else D0), mfma(D1, A1, RLD[set_][g], "0" if g == 0 else D1)]
        d = regs(D0) + regs(D1); res = regs(FR(1, 2 + set_))
        r += lin("s_nop 7") + [V(f"v_cvt_pk_bf16_f32 {res[j]}, {d[2*j]}, {d[2*j+1]}", rd=[d[2*j], d[2*j+1]], wr=[res[j]]) for j in range(4)]
        return r + [Op(f"buffer_store_dwordx4 {FR(1, 2 + set_)}, {vOut}, {srdO}, {sOut} offen{OSC}", "vm", rd=[FR(1, 2 + set_)])]
    fin = msum if OPT["msum"] else sums
    o = lin("\n".join(scal_B()) + "\ns_nop 1")
    stores = []
    for (cv, sa, st) in pack_store(1):
        o += cv + [sa, st]; stores.append(st)
    o += X() + fin(1, G.LD[1]) + X()
    o += [WAIT(0, need_vm=stores)] + X() + lin("s_barrier") + sig_ops()
    o += lin("s_branch L_spinU@L\nL_backU@L:") + X()
    l7 = red_loads(0); o += l7
    o += lin(f"s_add_u32 {sOut}, {sOutR}, {sOc}")
    if OPT["stamps"] == 3: o += lin("s_waitcnt vmcnt(0)") + X()
    o += fin(0, l7) + X() + X()
    return o

def main():
    R2 = build_R2()
    placed = [o for o in R2.epi if o.gap is not None]; placed.sort(key=lambda o: o.pos)
    R1 = build_R1(R2.left)
    R1b = {h: build_R1b(h) for h in (1, 2, 3)}
    R1f = build_R1f()
    global G_LD, G_LD0
    G0 = build_G(True, R2.left)
    G_LD0 = G0.LD[1]; G_LD = [red_loads(0), red_loads(1)]
    G = build_G()
    bind_ext(R1, [R2.pendW0]); bind_ext(R2, [R1f.pend] + [R1b[h].pend for h in R1b]); bind_ext(G0, [R2.pendW0]); bind_ext(G, [G0.pend, G.pend])
    for h in R1b: bind_ext(R1b[h], [R1.pend])
    for w in R1f.xw: w.text = 's_nop 0'
    pro, zst = prologue(R1f)
    for j, t in enumerate(NEXT): TILE[f'G{j}'] += TILE[t]
    stg = lin(f"""{[f"s_mov_b32 s4, {sG}", f"s_and_b32 s4, {sB}, 3", f"s_mov_b32 s4, {sIdx}"][OPT["stagm"]]}
s_mul_i32 s4, s4, {OPT["stag"]}
L_stg:
s_cmp_eq_u32 s4, 0
s_cbranch_scc1 L_stg2
s_sub_u32 s4, s4, 1
s_branch L_stg
L_stg2:""") if OPT["stag"] else []
    p0 = glue0(zst) + stg + lin("s_branch L_R2")
    sel = lin(f"s_cmp_eq_u32 {sHead}, 2\ns_cbranch_scc1 L_v2\ns_cmp_eq_u32 {sHead}, 3\ns_cbranch_scc1 L_v3")
    v1 = R1b[1].out + lin("s_branch L_R2")
    v2 = lin("L_v2:") + R1b[2].out + lin("s_branch L_R2")
    assert OPT["pf"]
    v3 = lin("L_v3:") + R1b[3].out + mode_check(getattr(R1b[2], "dbg", None)) + (lin(f"v_mbcnt_lo_u32_b32 {vA}, -1, 0\nv_mbcnt_hi_u32_b32 {vA}, -1, {vA}\nv_lshlrev_b32 {vA}, 7, {vA}") if OPT["pf3"] else code_pf("L_pc2", "L_g3", "L_codeend", 15, 76)) + touch_setup()
    g2 = lin(f"s_or_b64 {sBad}, {sBad}, vcc\n{'s_nop 0' if OPT['stress'] else 's_cbranch_scc1 L_slow'}\nL_join:\ns_add_u32 {sHead}, {sHead}, 1\ns_cmp_lt_u32 {sHead}, 4")
    g3 = lin(f"s_cmp_eq_u32 {sSlM}, 7\ns_cbranch_scc1 L_G0S")
    g4 = lin(f"s_mov_b32 {sC[0]}, {sC[2]}\ns_add_u32 {sC[1]}, {sC[0]}, 128\ns_and_b32 {sC[1]}, {sC[1]}, 0x3ff\ns_add_u32 {sC[2]}, {sC[1]}, 128\ns_and_b32 {sC[2]}, {sC[2]}, 0x3ff\ns_cmp_lt_u32 {sIt}, 8")
    T = tail(G)
    sA, sB_, sC_, sD_, sE = stamp(1 if OPT['stamps'] in (1, 3) else 0), stamp(), stamp(), stamp(), stamp(2)
    if OPT["bst"]:
        def dump():
            return lin(f"v_mbcnt_lo_u32_b32 {vA}, -1, 0\nv_mbcnt_hi_u32_b32 {vA}, -1, {vA}\nv_lshlrev_b32 {vA}, 2, {vA}") + [Op(f"buffer_store_dword {vLane}, {vA}, {srdWS}, s101 offen", "vm")] + lin("s_add_u32 s101, s101, 256\ns_nop 1")
        sA = lin(f"s_lshl_b32 s101, s2, 2\ns_add_u32 s101, s101, {sWave}\ns_lshl_b32 s101, s101, 12\ns_add_u32 s101, s101, {hex(DUMP_BASE)}")
        sC_ = dump(); sD_ = dump()
    tr = pro + sA
    for hd in range(4):
        tr += [R1f.out + p0, R1.out + sel + v1, R1.out + sel + v2, R1.out + sel + v3][hd] + sB_ + R2.out + g2 + sC_
    tr += g3
    post = []
    for it in range(3): post += G.out + g4 + sD_
    post += T
    resolve_waits(tr + [x for x in G0.out if x.tag != "touch"] + g4 + sD_ + [x for x in post if x.tag != "fastonly"], TILE)
    tr += G0.out + g4 + sD_ + post
    resolve_waits(tr, TILE)
    errs = check(tr, "main")
    for e in errs[:20]: print(e, file=sys.stderr)
    assert not errs
    for rg in (R1f, R1, R1b[1], R1b[3], R2, G0, G): print(rg.name, "overfull:", rg.overlog, file=sys.stderr)
    out = [open(os.path.join(os.path.dirname(os.path.abspath(__file__)), "header.txt")).read().rstrip()]
    out.append("; @launch grid=(256,1,1) block=(256,1,1) lds=163840")
    out.append(f""".amdgcn_target "amdgcn-amd-amdhsa--gfx950"
; Fused attention block, generated by gen/kernel.py (own gap scheduler, gen/sched.py).
;  - 256 workgroups = (batch b, group g of 4 heads), 4 waves x 48 query rows, one wave per SIMD, 16x16x32 bf16 MFMA.
;    out^T = wo^T O^T; wq / K / V / wo / x tiles (16 KB) stream through a statically planned 10-slot LDS ring by LDS-DMA.
;  - softmax: exp2 of the pre-scaled scores, row sums by MFMA; a run-time range check of the row sums sends a wave to
;    L_slow (two passes with the true row max) whenever the unshifted exponentials could be unsafe.
;    They announce their die in d_debug; if all 8 share one L2 the exchange uses plain stores into two reused slots
;    (L_G0/L_G), otherwise write-through stores into fresh slots (L_G0S/L_GS).
.text
.globl {KN}
.p2align 8
.type {KN},@function
{KN}:""")
    def emit(ops, sc="", lb=""):
        for o in ops:
            if OPT["nobar"] and o.text == "s_barrier" and o.kind == "w": out.append("s_nop 0"); continue
            if OPT["nolg"] and o.kind == "w" and o.text.startswith("s_waitcnt") and "vmcnt" not in o.text: out.append("s_nop 0"); continue
            if OPT["nods"] and o.kind == "ds": continue
            if OPT["novalu"] and o.kind in ("v4", "v8") and o.gap is not None and ("exp" in o.text or "cvt" in o.text or "mul" in o.text or "perm" in o.text or "and" in o.text or "lshl" in o.text or "add_f32" in o.text): continue
            if OPT["nodma"] and o.text.endswith(" lds"): out.append("s_nop 0"); continue
            if OPT["nored"] and " sc1" in o.text and "dwordx4" in o.text: out.append("s_nop 0"); continue
            if getattr(o, "pre", None): out.append(o.pre)
            out.append(o.text.replace("@SC", sc).replace("@L", lb))
    def mark(n):
        return lin("s_memrealtime s[2:3]\ns_waitcnt lgkmcnt(0)\ns_sub_u32 s75, s2, s73") if OPT["dbl"] == n else []
    def idle(n, tag):
        if not n: return []
        return lin(f"""s_memrealtime s[2:3]
s_waitcnt lgkmcnt(0)
s_mov_b32 s5, s2
L_idle{tag}:
s_sleep 2
s_memrealtime s[2:3]
s_waitcnt lgkmcnt(0)
s_sub_u32 s4, s2, s5
s_cmp_lt_u32 s4, {n}
s_cbranch_scc1 L_idle{tag}""")
    def ex(n): return (stamp(2) + lin("s_endpgm")) if OPT["exitat"] == n else []
    emit(pro + mark(3) + idle(OPT['idle0'], 'a') + sA + ex(1) + R1f.out + mark(4) + p0)
    out.append("; ---- head loop: Q-projection steps 0-4, step 5 (three variants), steps 6-7 + attention ----")
    out.append("L_loop:"); emit(R1.out + sel + v1 + v2 + v3); out.append("L_R2:"); emit(idle(OPT['idle1'], 'b') + sB_ + R2.out + g2 + sC_)
    if OPT["dbl"] >= 10:
        emit(lin(f"s_cmp_lg_u32 {sHead}, {OPT['dbl'] - 9}\ns_cbranch_scc1 L_nomark") + mark(OPT["dbl"]) + lin(f"L_nomark:\ns_cmp_lt_u32 {sHead}, 4"))
    if OPT["stamps"] or OPT["bst"]: out.append(f"s_cmp_lt_u32 {sHead}, 4")
    out.append("s_cbranch_scc1 L_loop")
    out.append('; ---- output projection + exchange ----'); out.append('L_g3:'); emit(mark(5) + ex(3) + g3)
    for sc, lb in ((NTST, ""), (" sc1", "S")):
        out.append(f"L_G0{lb}:"); emit([(Op("s_nop 0", "x") if (lb and x.tag == "touch") else x) for x in G0.out] + g4 + sD_, sc, lb)
        out.append(f"L_G{lb}:"); emit(G.out + g4 + sD_, sc, lb)
        if OPT["stamps"] or OPT["bst"]: out.append(f"s_cmp_lt_u32 {sIt}, 8")
        out.append(f"s_cbranch_scc1 L_G{lb}")
        emit([(Op('s_nop 0', 'x') if (lb and x.tag == 'fastonly') else x) for x in T] + sE, sc, lb)
        if OPT["dbl"]:
            emit(lin(f"""s_waitcnt vmcnt(0)
s_memrealtime s[2:3]
s_waitcnt lgkmcnt(0)
{"s_sub_u32 s4, s2, s73" if OPT["dbl"] == 1 else ("s_mov_b32 s4, 500" if OPT["dbl"] == 2 else "s_mul_i32 s4, s75, 4")}
s_min_u32 s4, s4, 40000
s_mov_b32 s5, s2
L_dbl{lb}:
s_sleep 4
s_memrealtime s[2:3]
s_waitcnt lgkmcnt(0)
s_sub_u32 s6, s2, s5
s_cmp_lt_u32 s6, s4
s_cbranch_scc1 L_dbl{lb}"""))
        out.append("s_endpgm")
        if not lb: out.append("L_codeend:")
        for nm in ("G0", "G1", "G1F", "U"): emit(spin(f"L_spin{nm}{lb}", f"L_back{nm}{lb}", vPr, vPo, srdWS, sPoll, sExp))
    emit(lin(f"""L_spinD:
s_add_u32 s3, s3, 1
s_cmp_gt_u32 s3, 0x10000
s_cbranch_scc1 L_backD
s_lshl_b32 {sTmp}, {sB}, 2
buffer_load_dword {vLane}, off, {srdD}, {sTmp} sc1
s_waitcnt vmcnt(0)
s_branch L_chkD"""))
    out.append("; ---- exact-max fallback for one wave and one head ----")
    emit(slow_path(placed, R2.pendW0))
    out.append(f"""s_endpgm
.section .rodata,"a"
.p2align 6
.amdhsa_kernel {KN}
  .amdhsa_next_free_vgpr 512
  .amdhsa_next_free_sgpr 102
  .amdhsa_accum_offset 256
  .amdhsa_group_segment_fixed_size 0
  .amdhsa_kernarg_size 64
  .amdhsa_user_sgpr_count 2
  .amdhsa_user_sgpr_kernarg_segment_ptr 1
  .amdhsa_system_sgpr_workgroup_id_x 1
.end_amdhsa_kernel""")
    print("\n".join(out))
main()
```

```python
import sys, os, struct, math
sys.path.insert(0, os.path.dirname(os.path.abspath(__file__)))
from sched import *
import ringplan

OPT = dict(stamps=0, nt=1, stress=0, msum=1, tord=0, b0=1, clean=0, stag=0, stagm=0, mapping=48, nodma=0, samekv=0, nored=0, ntw=0, ntx=0, bst=0, lrate=2.5, lburst=4, rsp=8, rk=2, i0=-158, dk=75, ksp=18, wsp=7, gst=4, gld=4, gsig=1, gpoll=108, gsum=8, gdma=40, glc=0, rot=1, gout=189, gdsp=5, lag=1, forceslow=0, ntst=0, pf=128, hrot=9, hswap=1, plan=0, uni=1, fnt=1, ones4=1, gb2=1, pf3=0, wstrict=1, rspw=10, samew=0, samex=0, krot=3, osc=0, idle0=0, idle1=0, exitat=0, wb=0, dbl=0, nperm=1, bdw=2, bda=1, vlate=0, tch=0, gtch=0, kvlate=4, tg=0, etch=0, gl3=1, ftch=1, tlb=0, fsp=2, fkv=6, fgap=3, nobar=0, nolg=0, nods=0, novalu=0)
for a in sys.argv[1:]:
    k, v = a.split("="); assert k in OPT, k; OPT[k] = float(v) if "." in v else int(v)
Region.LDSRATE = OPT["lrate"]; Region.LDSBURST = OPT["lburst"]
KN = "standalone__mha_block_cached__near_ridge_kernel"

def OA(mt, t): return R("v", (mt*3 + t)*4, 4)
def OAr(mt, t, i): return f"v{(mt*3 + t)*4 + i}"
QV0, PV0, S0, FA0 = 96, 144, 192, 204
def QV(s, t): return R("v", QV0 + (s*3 + t)*4, 4)
def QVr(s, t, i): return f"v{QV0 + (s*3 + t)*4 + i}"
def PB(buf, sg, t): return R("v", PV0 + 24*buf + (sg*3 + t)*4, 4)
def PBr(buf, sg, t, i): return f"v{PV0 + 24*buf + (sg*3 + t)*4 + i}"
def OP(s, t): return R("v", PV0 + (s*3 + t)*4, 4)
def OPr(s, t, i): return f"v{PV0 + (s*3 + t)*4 + i}"
def FR(buf, f, half=None):
    b = FA0 + 16*buf + 4*f
    return R("v", b, 4) if half is None else R("v", b + 2*half, 2)
vK = ["v236", "v237", "v238", "v239"]
vVb, vWb, vT = "v240", "v241", ["v242", "v243"]
vDK, vDV, vDW, vDX, vC = "v244", "v245", "v246", "v247", "v248"
vRL = ["v249", "v250", "v251"]
vLane, vDWo, vA, vB = "v252", "v253", "v254", "v255"
def XA(s, t): return R("a", (s*3 + t)*4, 4)
ZB = {0: 144, 1: 192, 2: 0}
def ZA(h, s, t): return R("a", ZB[h] + (s*3 + t)*4, 4)
def LA(t): return R("a", 240 + 4*t, 4)
ONES = "a[252:255]"

srdK, srdV, srdW, srdX, srdWS, srdO, srdD = (f"s[{i}:{i+3}]" for i in (8, 12, 16, 20, 24, 28, 32))
sW1k, sXcc, sRot, sOc = "s36", "s37", "s38", "s39"
sC = ["s40", "s41", "s42"]
sDg = ["s43", "s44", "s45", "s46"]
sIdx = "s99"
sH = ["s93", "s95", "s96", "s97"]; sHr = "s98"; sSw = "s3"
sKoff, sVoff, sWcol = "s47", "s48", "s49"
sD = [None, "s50", "s51", "s52"]
sDY = [None, "s53", "s54", "s55"]
sT = ["s56", "s57", "s58", "s59"]
sW4k, sHead, sScale, sWave, sB, sG, sLo, sHi = (f"s{i}" for i in range(60, 68))
sBad = "s[84:85]"
sN = [f"s{i}" for i in range(86, 92)]
sTmp = "s100"
sIt, sSt, sSig, sExp, sLd, sLd2, sOut = (f"s{i}" for i in range(86, 93))
sStR, sLdR, sFlR, sOutR, sSlM, sLdMin, sGate = (f"s{i}" for i in range(68, 75))
sPoll = sSig; sPo = "s99"; sTk, sTh, sTo = "s43", "s44", "s45"
sU = ["s4", "s5"]; sMask = "s6"
OOB = 0x40000000
FLAG_BASE = 0x3040000
STAMP_BASE = 0x3100000
DUMP_BASE = 0x4000000
WS_BYTES = 0x20000000 if OPT["stress"] else (0x8000000 if OPT["bst"] else 0x3200000)
CHUNK = 196608
ORD = [(0,0),(0,1),(0,2),(1,0),(0,3),(1,3),(1,1),(1,2)]
ORDG = [(j >> 2, j & 3) for j in range(8)]
NTKV = {"K": " nt" if OPT["nt"] in (1, 2) else "", "V": " nt" if OPT["nt"] in (1, 3) else ""}
NTW = " nt" if OPT["ntw"] else ""
NTX = " nt" if OPT["ntx"] else ""
def wq_lit(step): return ORD[step][1]*0x100000 + ORD[step][0]*128
def wo_lit(m): return (m & 3)*0x20000 + (m >> 2)*128

def S(text, rd=(), wr=(), **kw): return Op(text, "s", rd=rd, wr=wr, **kw)
def V(text, rd=(), wr=(), **kw): return Op(text, "v4", rd=rd, wr=wr, **kw)
def V8(text, rd=(), wr=(), **kw): return Op(text, "v8", rd=rd, wr=wr, **kw)
def WAIT(d, need_ds=(), need_vm=(), lg0=False, late=3, e=-1):
    o = Op("s_waitcnt ?", "w", e=e, d=d, late=late, deps=[(x, 1) for x in need_ds])
    o.need_ds, o.need_vm, o.lg0 = list(need_ds), list(need_vm), lg0
    return o
def lin(text):
    return [Op(l.strip(), "x") for l in text.strip().split("\n") if l.strip()]

class Ctx: pass
C = Ctx(); C.grp = 0

ringplan.setb(OPT["bdw"], OPT["bda"]); BDW, BDA = OPT["bdw"], OPT["bda"]
wI = {"W0": -210, "W1": -135, "W2": -55, "W3": 36 + BDW, "W4": 78, "W5": 112, "W6": 162, "W7": 186}
xI = {"Xa": -430, "Xb": -350, "Xc": -280}
PLANS = {
 8: {'Xa': -430, 'Xb': -350, 'Xc': -280, 'W0': -210, 'W1': -135, 'W2': -58, 'W3': 38, 'W4': 80, 'W5': 115, 'W6': 150, 'W7': 190, 'K0': -198, 'K1': -130, 'V0': -62, 'K2': 38, 'V1': 104, 'K3': 172, 'V2': 290, 'K4': 361, 'V3': 432, 'K5': 503, 'V4': 574, 'K6': 645, 'V5': 716, 'K7': 787, 'V6': 858, 'V7': 930},
 7: {'Xa': -430, 'Xb': -350, 'Xc': -280, 'W0': -210, 'W1': -135, 'W2': -58, 'W3': 38, 'W4': 80, 'W5': 110, 'W6': 162, 'W7': 186, 'K0': -167, 'K1': -93, 'V0': -19, 'K2': 58, 'V1': 136, 'K3': 214, 'V2': 290, 'K4': 365, 'V3': 439, 'K5': 513, 'V4': 587, 'K6': 661, 'V5': 735, 'K7': 809, 'V6': 884, 'V7': 959},
 5: {'Xa': -430, 'Xb': -350, 'Xc': -280, 'W0': -210, 'W1': -135, 'W2': -55, 'W3': 38, 'W4': 78, 'W5': 112, 'W6': 162, 'W7': 186, 'K0': -170, 'K1': -95, 'V0': -20, 'K2': 55, 'V1': 140, 'K3': 290, 'V2': 345, 'K4': 400, 'V3': 460, 'K5': 525, 'V4': 590, 'K6': 660, 'V5': 730, 'K7': 805, 'V6': 880, 'V7': 955},
 6: {'Xa': -430, 'Xb': -350, 'Xc': -280, 'W0': -210, 'W1': -135, 'W2': -55, 'W3': 38, 'W4': 78, 'W5': 112, 'W6': 162, 'W7': 186, 'K0': -170, 'K1': -95, 'V0': -20, 'K2': 135, 'V1': 290, 'K3': 335, 'V2': 385, 'K4': 435, 'V3': 490, 'K5': 545, 'V4': 605, 'K6': 665, 'V5': 730, 'K7': 805, 'V6': 880, 'V7': 955},
 3: {'Xa': -514, 'Xb': -444, 'Xc': -297, 'W0': -229, 'W1': -155, 'W2': -63, 'W3': 8, 'W4': 38, 'W5': 82, 'W6': 110, 'W7': 180, 'K0': -187, 'K1': -112, 'V0': -38, 'K2': 58, 'V1': 141, 'K3': 216, 'V2': 290, 'K4': 364, 'V3': 436, 'K5': 507, 'V4': 579, 'K6': 651, 'V5': 721, 'K7': 794, 'V6': 863, 'V7': 940},
 4: {'Xa': -514, 'Xb': -444, 'Xc': -297, 'W0': -229, 'W1': -155, 'W2': -63, 'W3': 8, 'W4': 38, 'W5': 82, 'W6': 110, 'W7': 180, 'K0': -180, 'K1': -108, 'V0': -36, 'K2': 58, 'V1': 141, 'K3': 216, 'V2': 290, 'K4': 364, 'V3': 438, 'K5': 512, 'V4': 586, 'K6': 660, 'V5': 734, 'K7': 808, 'V6': 878, 'V7': 950},
 1: {'Xa': -510, 'Xb': -430, 'Xc': -352, 'W0': -205, 'W1': -106, 'W2': -26, 'W3': 5, 'W4': 37, 'W5': 98, 'W6': 161, 'W7': 190, 'K0': -243, 'K1': -157, 'V0': -60, 'K2': 64, 'V1': 130, 'K3': 221, 'V2': 290, 'K4': 354, 'V3': 415, 'K5': 477, 'V4': 593, 'K6': 533, 'V5': 650, 'K7': 728, 'V6': 809, 'V7': 894},
 2: {'Xa': -496, 'Xb': -413, 'Xc': -333, 'W0': -252, 'W1': -103, 'W2': -30, 'W3': 5, 'W4': 38, 'W5': 99, 'W6': 130, 'W7': 188, 'K0': -210, 'K1': -148, 'V0': -54, 'K2': 67, 'V1': 155, 'K3': 221, 'V2': 291, 'K4': 349, 'V3': 409, 'K5': 473, 'V4': 534, 'K6': 598, 'V5': 662, 'K7': 829, 'V6': 747, 'V7': 904},
}
if OPT["plan"] == 9: wI = {"W0": -210, "W1": -135, "W2": -60, "W3": 6, "W4": 38, "W5": 80, "W6": 110, "W7": 150}
elif OPT["plan"] == 10: wI = {"W0": -215, "W1": -145, "W2": -75, "W3": 6, "W4": 38, "W5": 70, "W6": 104, "W7": 140}
elif OPT["plan"]: wI = PLANS[OPT["plan"]]; xI = {}
ISS, SLOT, _c, NEED = ringplan.plan(OPT["i0"], OPT["dk"], wI, xI)
assert SLOT is not None
SPR = {}; TIMES = {}
for t in ISS:
    m = ISS[t] % 1200
    sp = OPT["ksp"] if t[0] in "KV" else OPT["wsp"]
    if OPT["uni"] and t[0] in "KV":
        ts_ = [ISS[t] + (OPT["dk"]*i + 2)//4 for i in range(4)]
        for i in range(4):
            for edge in (0, 240, 288, 1200):
                if edge - 4 <= ts_[i] < edge + 2: ts_[i] = edge + 2
        TIMES[t] = ts_; continue
    if 228 <= m < 288: ISS[t] += 290 - m; m = 290
    SPR[t] = min(sp, ((240 if m < 288 else 1200) - 5 - m)//3); assert SPR[t] >= 1
    TIMES[t] = [ISS[t] + SPR[t]*i for i in range(4)]
BASE = {}
for ch in "KVW":
    for i, b in enumerate(ringplan.bases([SLOT[f"{ch}{i}"] for i in range(8)])[1]): BASE[f"{ch}{i}"] = b
XB = min(SLOT["Xa"], SLOT["Xb"], SLOT["Xc"]); assert max(SLOT["Xa"], SLOT["Xb"], SLOT["Xc"]) - XB <= 3
NEXT = sorted([t for t in ISS if ISS[t] < 0 and t[0] in "WX"], key=lambda t: (t != "W0", ISS[t]))
print("plan:", ISS, SLOT, BASE, NEXT, file=sys.stderr)
TILE = {}
def lit(x): return hex(x & 0xffffffff)
def rebase(rg, typ, old, new, e, d, after=()):
    if old == new: return []
    regs_ = vK if typ == "K" else [vVb if typ == "V" else vWb]
    return [rg.F(V(f"v_add_u32 {r}, {lit((new - old)*16384)}, {r}", rd=[r], wr=[r], e=e, d=d, deps=[(a, 0) for a in after if a])) for r in regs_]
def wq_t0(dst, step):
    hf, dg = ORD[step]
    return [f"s_add_u32 {dst}, {sWcol}, {sDg[dg]}"] + ([f"s_xor_b32 {dst}, {dst}, 128"] if hf else [])
def x_t0(dst, a, q):
    return [f"s_lshr_b32 {dst}, {sDg[q]}, 12"] + ([f"s_add_u32 {dst}, {dst}, {a*65536}"] if a else [])
def tile_src(spec):
    k = spec[0]
    if k == "W": return srdW, vDW, wq_t0(sT[0], spec[1]), sD, NTW
    if k == "C": return srdW, vDW, [f"s_add_u32 {sT[0]}, {sC[spec[1]]}, {sH[spec[2]]}"], sD, NTW
    if k == "N": return srdW, vDW, [f"s_mov_b32 {sT[0]}, {sN[spec[1]]}"], sD, NTW
    if k == "Y": return srdX, vDX, [f"s_mov_b32 {sT[0]}, {sN[spec[1]]}"], sDY, NTX
    if k == "X": return srdX, vDX, x_t0(sT[0], spec[1], spec[2]), sDY, NTX
def add_dmas(rg, items):
    ev = []
    for (name, spec, slot, e, sp, bar) in items:
        for i, t in (sp if isinstance(sp, list) else [(i, e + sp*i) for i in range(4)]): ev.append((t, e, i, name, spec, slot, bar))
    ev.sort(key=lambda x: (x[0], x[1]))
    prev = None; cur = None; wopen = None; ts = None; lastw = None; m0 = None
    for (t, e0, i, name, spec, slot, bar) in ev:
        deps = []
        if bar is not None: deps.append((bar, 0))
        if prev is not None: deps.append((prev, 1))
        if cur != slot:
            m0 = rg.F(Op(f"s_add_u32 m0, {sW4k}, {slot*16384}", "t", wr=["m0"], e=t - 6, deps=([(prev, 1)] if prev else []))); cur = slot
        deps.append((m0, 1))
        if spec[0] in "KV":
            so, vo, srd = (sKoff, vDK, srdK) if spec[0] == "K" else (sVoff, vDV, srdV)
            st = rg.inc.get(spec[0])
            if st is not None and i == 0: deps.append((st, 0))
            o = rg.F(Op(f"buffer_load_dwordx4 {vo}, {srd}, {so} offen offset:{i*1024}{NTKV[spec[0]] if (rg.name != 'R1f' or OPT['fnt']) else ''} lds", "vm", rd=[vo, so, "m0"], e=t, d=t + 4, deps=deps))
            if i == 3:
                inc = rg.F(Op(f"s_add_u32 {so}, {so}, 0x4000", "t", rd=[so], wr=[so], deps=[(o, 1)], d=t + 12))
                if name[1] == "7":
                    inc = rg.F(Op(f"s_and_b32 {so}, {so}, 0x7ffff", "t", rd=[so], wr=[so], deps=[(inc, 0)], d=t + 14))
                    nr = "s10" if name[0] == "K" else "s14"
                    rg.F(S(f"s_cmp_eq_u32 {sHead}, 3", deps=[(o, 1)])); inc2 = rg.F(S(f"s_cselect_b32 {nr}, 0, {nr}", d=t + 20))
                rg.inc[spec[0]] = inc
        else:
            srd, vo, t0, dl, fl = tile_src(spec)
            if i == 0:
                assert wopen is None, "W-type tiles may not interleave"
                wopen = name
                tt = rg.F(Op(t0[0], "t", wr=[sT[0]], e=t - 12, deps=([(lastw, 1)] if lastw else [])))
                for x in t0[1:]: tt = rg.F(Op(x, "t", wr=[sT[0]], deps=[(tt, 0)]))
                ts = [tt]
                ts += [rg.F(Op(f"s_add_u32 {sT[j]}, {sT[0]}, {dl[j]}", "t", wr=[sT[j]], deps=[(ts[0], 0)])) for j in (1, 2, 3)]
            o = rg.F(Op(f"buffer_load_dwordx4 {vo}, {srd}, {sT[i]} offen offset:{i*1024}{fl} lds", "vm", rd=[vo, sT[i], "m0"], e=t, d=t + 4, deps=deps + [(ts[i], 0)]))
            if i == 3: wopen = None; lastw = o
        if i == 3: TILE.setdefault(name, []).append(o)
        if i == 0: rg.first_dma[name] = o
        prev = o
    rg.lastw = lastw
def head_dmas(rg, lo, hi):
    items = []
    for t in ISS:
        mine = [(i, x % 1200 - lo) for i, x in enumerate(TIMES[t]) if lo <= x % 1200 < hi]
        if not mine: continue
        m = ISS[t] % 1200
        spec = (t[0],) if t[0] in "KV" else (("W", int(t[1])) if ISS[t] >= 0 else (("N" if t[0] == "W" else "Y"), NEXT.index(t)))
        cands = [g for g in rg.bars if g + lo <= m and any(SLOT[p] == SLOT[t] and NEED[p][1] % 1200 == g + lo for p in NEED)] if mine[0][0] == 0 else []
        bar = rg.bars[max(cands)] if cands else None
        items.append((t, spec, SLOT[t], mine[0][1], mine, bar))
    if OPT["stress"]:
        for g in range(lo + 20, hi - 12, OPT["stress"]):
            o = rg.F(Op(f"buffer_load_dword a241, {vDK}, {srdWS}, s75 offen nt", "vm", e=g - lo, d=g - lo + 6))
            rg.F(Op("s_add_u32 s75, s75, 0x1000", "t", deps=[(o, 1)], d=g - lo + 10))
    add_dmas(rg, items)
def dma_linear(name, spec, slot):
    ops = lin(f"s_add_u32 m0, {sW4k}, {slot*16384}")
    if spec[0] in "KV":
        so, vo, srd = (sKoff, vDK, srdK) if spec[0] == "K" else (sVoff, vDV, srdV)
        d = [Op(f"buffer_load_dwordx4 {vo}, {srd}, {so} offen offset:{i*1024}{NTKV[spec[0]]} lds", "vm") for i in range(4)]
        ops += lin("s_nop 0") + d + lin(f"s_add_u32 {so}, {so}, 0x4000")
    else:
        srd, vo, t0, dl, fl = tile_src(spec)
        d = [Op(f"buffer_load_dwordx4 {vo}, {srd}, {sT[i]} offen offset:{i*1024}{fl} lds", "vm") for i in range(4)]
        ops += lin("\n".join(t0) + "\n" + "\n".join(f"s_add_u32 {sT[i]}, {sT[0]}, {dl[i]}" for i in (1, 2, 3))) + d
    TILE.setdefault(name, []).append(d[-1])
    return ops
def reads_X(rg, addr, slots, dst, e, d, deps, step=1):
    ops = []
    for t in range(3):
        for s in range(4):
            r_, imm = addr(slots[t], s)
            ops.append(rg.F(Op(f"ds_read_b128 {dst(s, t)}, {r_} offset:{imm}", "ds", rd=[r_], wr=[dst(s, t)], e=e, d=d + len(ops)*step,
                               deps=list(deps) + ([(ops[-1], 0)] if ops else []))))
    return ops

def new_region(name):
    rg = Region(name); rg.nst = {"R1": 0, "R1f": 0, "R2": 6, "G": 0, "G0": 0}.get(name, 5)
    ext_waits(rg)
    if OPT['wstrict']: rg.ldspol = (lambda k: (4, 3)) if name != 'R2' else (lambda k: (4, 3) if k < 90 else (OPT['lrate'], OPT['lburst']))
    rg.tuse = {0: [], 1: []}; rg.bars = {}; rg.inc = {}; rg.first_dma = {}; rg.wq = bool(OPT["nperm"]) and name[0] != "G"
    return rg

def xor_addr(rg, base, k, ti, e, d, after=()):
    if k == 0: return base, None
    deps = [(x, 0) for x in rg.tuse[ti]] + [(a, 0) for a in after]
    o = rg.F(V(f"v_xor_b32 {vT[ti]}, {k*32}, {base}", rd=[base], wr=[vT[ti]], e=e, d=d, deps=deps))
    rg.tuse[ti] = []
    return vT[ti], o
def reads_W(rg, so, mt, buf, e, deps=(), ups=(), rsp=None):
    if rg.wq:
        if mt == 2: a, xo = xor_addr(rg, vWb, 2, 0, e - 8, e, ups)
        else: a, xo = (vWb if mt < 2 else vT[0]), None
        so += 8*(mt & 1)
    else: a, xo = xor_addr(rg, vWb, mt, mt & 1, e - 8, e, ups)
    dp = list(deps) + ([(xo, 1)] if xo else [(u, 1) for u in ups])
    ops = []
    for s in range(4):
        for p in range(2):
            ops.append(rg.F(Op(f"ds_read_b64_tr_b16 {FR(buf, s, p)}, {a} offset:{so + s*4096 + p*2048}", "ds", rd=[a], wr=[FR(buf, s, p)],
                               e=e, d=min(e + 1 + len(ops)*(rsp or OPT['rspw' if OPT['wstrict'] else 'rsp'])//8, e + 9), deps=dp + ([(ops[-1], 0)] if ops else []))))
    if rg.wq:
        if mt >= 2: rg.tuse[0] = ops
    elif xo: rg.tuse[mt & 1] = ops
    rg.lastWr = ops
    return ops, xo
def reads_K(rg, so, u, buf, e, deps=(), ups=()):
    ops = []
    for s in range(4):
        ops.append(rg.F(Op(f"ds_read_b128 {FR(buf, s)}, {vK[s]} offset:{so + u*1024}", "ds", rd=[vK[s]], wr=[FR(buf, s)],
                           e=e, d=e + 3 + len(ops)*OPT['rk'], deps=list(deps) + [(x, 1) for x in ups] + ([(ops[-1], 0)] if ops else []))))
    return ops
def reads_V(rg, so, dp_, buf, e, deps=(), ups=(), late=0):
    ops = []; xs = []
    for k in range(2):
        dt = 2*dp_ + k
        a, xo = xor_addr(rg, vVb, dt, k, e - 10, e + 4*k, ups)
        if xo: xs.append(xo)
        dd = list(deps) + ([(xo, 1)] if xo else [(u, 1) for u in ups])
        mine = []
        for sg in range(2):
            for p in range(2):
                o = rg.F(Op(f"ds_read_b64_tr_b16 {FR(buf, 2*k + sg, p)}, {a} offset:{so + sg*2048 + p*1024}", "ds", rd=[a], wr=[FR(buf, 2*k + sg, p)],
                            e=e, d=(e + 2 + len(ops)*OPT['rsp']//8) if not late else (e + 3 + 2*len(ops) if k == 0 else e + 5 + (len(ops)*5)//4), deps=dd + ([(ops[-1], 0)] if ops else [])))
                ops.append(o); mine.append(o)
        if xo: rg.tuse[k] = mine
    return ops, xs

def barrier(rg, gap, last_reads, tiles, extra=(), lg0=True, st=True):
    w = rg.F(WAIT(gap - 1, need_ds=last_reads, need_vm=list(tiles) + list(extra), lg0=lg0, late=1))
    w.deps += [(x, 1) for x in extra if x in rg.fill]
    b = rg.F(Op("s_barrier", "w", e=gap, d=gap, deps=[(w, 1)])); rg.bars[gap] = b
    if OPT["bst"] and st:
        w.pre = "s_memtime s[2:3]"
        i = rg.nst; rg.nst += 1
        rg.F(V(f"v_writelane_b32 {vLane}, s2, {i}", e=gap + 1, d=gap + 8))
    return b
def xstamp(rg, gap, idx, dep):
    if OPT["bst"] < 2: return
    w = rg.F(Op("s_memtime s[2:3]\ns_waitcnt lgkmcnt(0)", "w", e=gap, d=gap, deps=[(dep, 1)]))
    rg.F(V(f"v_writelane_b32 {vLane}, s2, {idx}", deps=[(w, 0)], d=gap))
def ext_waits(rg):
    rg.xw = []
    for d in (-1, 1):
        w = WAIT(d, late=1); w.e = d; rg.F(w); rg.xw.append(w)
def bind_ext(rg, preds):
    rg.xw[0].alt_ds = [p[:4] for p in preds]; rg.xw[1].alt_ds = list(preds)
def frag_waits(rg, rd_ops, first_use, n_first, second_use, only_first=False):
    if rd_ops is None: return
    rg.F(WAIT(first_use - 1, need_ds=rd_ops[:n_first], late=2))
    if n_first < len(rd_ops) and not only_first: rg.F(WAIT(second_use - 1, need_ds=rd_ops, late=1))

def so_(sb): return (sb[0] - sb[1])*16384
def w_step(rg, half, zero, Bop, pend, cur, nxt, need, extra=(), more_reads=(), xwait=None, post=None, nobar=False):
    b0 = rg.n(); info = dict(b0=b0); xlast = None
    if xwait:
        for t in range(3): rg.F(WAIT(b0 + 4*t - 1, need_ds=xwait[:4*t + 4], late=1))
        info["xbar"] = barrier(rg, b0 + 10, xwait, (), lg0=False, st=False)
    for mt in range(4):
        buf = C.grp & 1; C.grp += 1
        g0 = b0 + 12*mt
        if pend is not None and (mt < 3 or BDW): frag_waits(rg, pend, g0, 4, g0 + 2, only_first=(mt == 3 and not nobar))
        for t in range(3):
            for s in range(4):
                acc = OA(4*half + mt, t)
                rg.M(mfma(acc, FR(buf, s), Bop(s, t), "0" if (zero and s == 0) else acc))
        if mt < 3:
            pend, xo = reads_W(rg, so_(cur[1:3]), mt + 1, buf ^ 1, g0 - 1 if (mt or b0) else g0)
            if xo: xlast = xo
            if mt == 0 and rg.wq: base_users = pend
            if mt == 2: bar = None if nobar else barrier(rg, g0 + 11 + BDW, pend + list(more_reads), need, extra)
        else:
            ups = rebase(rg, nxt[0], nxt[3], nxt[2], b0 + 20, g0 - 2, after=([xlast] + (base_users if rg.wq else [])) if nxt[0] == "W" else [])
            if nxt[0] == "W": pend, _ = reads_W(rg, so_(nxt[1:3]), 0, buf ^ 1, g0 - 1 + (0 if nobar else BDW), deps=([] if nobar else [(bar, 0)]), ups=ups, rsp=(4 if post else None))
            else: pend = reads_K(rg, so_(nxt[1:3]), 0, buf ^ 1, g0 - 1 + BDW, deps=[(bar, 0)], ups=ups)
            if post: info["post"] = post(g0, bar)
    info["bar"] = bar; info["end"] = rg.n() - 1
    return pend, info
def TS(name, prev=None):
    k, i = name[0], int(name[1])
    return (k, SLOT[name], BASE[name], BASE[f"{k}{(i - 1) % 8}"])

def softmax(rg, g0, u, Sr, pbuf, d_over, d_puse):
    sg = u >> 1
    for t in range(3):
        last = rg.mf[g0 + 4*t + 3]
        dl = min(d_over(t), d_puse(t) - 3)
        ex = [rg.F(V8(f"v_exp_f32 {Sr(t,i)}, {Sr(t,i)}", rd=[Sr(t,i)], wr=[Sr(t,i)], e=last.gap, sdeps=[(last, 8)], trans=True)) for i in range(4)]
        for j in range(2):
            dst = PBr(pbuf, sg, t, 2*(u & 1) + j)
            rg.F(V(f"v_cvt_pk_bf16_f32 {dst}, {Sr(t,2*j)}, {Sr(t,2*j+1)}", rd=[Sr(t,2*j), Sr(t,2*j+1)], wr=[dst], d=dl,
                   sdeps=[(ex[2*j], 1), (ex[2*j+1], 1)]))
def k_mfmas(rg, buf, Sd):
    for t in range(3):
        for s in range(4):
            rg.M(mfma(Sd(t), FR(buf, s), QV(s, t), "0" if s == 0 else Sd(t)))
def v_mfmas(rg, dp_, buf, pbuf, zero, tmajor=False):
    order = [(k, t) for t in range(3) for k in range(2)] if tmajor else [(k, t) for k in range(2) for t in range(3)]
    last = {}
    for k, t in order:
        for sg in range(2):
            acc = OA(2*dp_ + k, t)
            last[(2*dp_ + k, t)] = rg.M(mfma(acc, FR(buf, 2*k + sg), PB(pbuf, sg, t), "0" if (zero and sg == 0) else acc))
    return last
def sum_mfmas(rg, t, pbuf, zero):
    for sg in range(2):
        o = rg.M(mfma(LA(t), ONES, PB(pbuf, sg, t), "0" if (zero and sg == 0) else LA(t)))
    return o
def o_epilogue_ops(dt, t):
    mul = [V(f"v_mul_f32 {OAr(dt,t,i)}, {vRL[t]}, {OAr(dt,t,i)}", rd=[OAr(dt,t,i), vRL[t]], wr=[OAr(dt,t,i)]) for i in range(4)]
    cvt = []
    for j in range(2):
        dst = OPr(dt >> 1, t, 2*(dt & 1) + j)
        cvt.append(V(f"v_cvt_pk_bf16_f32 {dst}, {OAr(dt,t,2*j)}, {OAr(dt,t,2*j+1)}", rd=[OAr(dt,t,2*j), OAr(dt,t,2*j+1)], wr=[dst],
                     deps=[(mul[2*j], 0), (mul[2*j+1], 0)]))
    for o in mul + cvt: o.ot = (dt, t)
    return mul, cvt
def q_muls(rg, mt, t, last, **kw):
    return [rg.F(V(f"v_mul_f32 {OAr(mt,t,i)}, {sScale}, {OAr(mt,t,i)}", rd=[OAr(mt,t,i)], wr=[OAr(mt,t,i)],
                   e=(last.gap if last is not None else -1), sdeps=([(last, 8)] if last is not None else []), **kw)) for i in range(4)]
def q_epilogue(rg, sp, t, lastA, lastB, d_use, muls=True):
    cv = []
    for k, last in ((0, lastA), (1, lastB)):
        mt = 2*sp + k
        mul = q_muls(rg, mt, t, last) if muls else None
        for j in range(2):
            dst = QVr(sp, t, 2*k + j)
            cv.append(rg.F(V(f"v_cvt_pk_bf16_f32 {dst}, {OAr(mt,t,2*j)}, {OAr(mt,t,2*j+1)}", rd=[OAr(mt,t,2*j), OAr(mt,t,2*j+1)], wr=[dst],
                             deps=([(mul[2*j], 0), (mul[2*j+1], 0)] if muls else []))))
    if OPT["nperm"]:
        for o in cv: o.d = d_use - 3
        return
    for j in range(2):
        a, b = QVr(sp, t, j), QVr(sp, t, 2 + j)
        p1 = rg.F(V8(f"v_permlane32_swap_b32 {a}, {b}", rd=[a, b], wr=[a, b], sdeps=[(cv[j], 2), (cv[2+j], 2)]))
        rg.F(V8(f"v_permlane16_swap_b32 {a}, {b}", rd=[a, b], wr=[a, b], sdeps=[(p1, 2)], d=d_use - 3))

def BopQ(st):
    dg = ORD[st][1]
    return (lambda s, t: XA(4*dg + s, t)) if dg < 3 else (lambda s, t: QV(s, t))

def build_R2():
    rg = new_region("R2")
    C.grp = 24
    pend, i6 = w_step(rg, ORD[6][0], False, BopQ(6), None, TS("W6"), TS("W7"), ["W7"])
    pend, i7 = w_step(rg, ORD[7][0], False, BopQ(7), pend, TS("W7"), TS("K0"), ["K0"])
    a0 = rg.n(); b7 = i7["b0"]
    for sp in (0, 1):
        for t in range(3): q_epilogue(rg, sp, t, None, None, min(a0 + 4*t + sp, 20 + (sp*3 + t)*9), muls=True)
    for sp in (2, 3):
        for t in range(3):
            mA, mB = 2*sp - 4, 2*sp - 3
            q_epilogue(rg, sp, t, rg.mf[b7 + 12*mA + 4*t + 3], rg.mf[b7 + 12*mB + 4*t + 3], a0 + 4*t + sp)
    B = lambda i: a0 + 48 + 102*i
    def layout(i):
        order = ["KVKVKVKV", "KKVKVKVV", "KKKVKVVV", "KKKKVVVV"][OPT["b0"] if i == 0 else 0]
        res = []; off = 0; n = {"K": 0, "V": 0}
        for ch in order:
            res.append((ch, n[ch], off)); off += 12 + (2 if (ch == "V" and n[ch] < 3) else 0); n[ch] += 1
        return res
    def puse(i, sg, t): return (B(i) + [o for (k, j, o) in layout(i) if k == "V"][0] + 2*t + sg) if i < 7 else (B(7) + 4*t + sg)
    def so(n): return so_(TS(n)[1:3])
    def rb(n, e, d, after=()): x = TS(n); return rebase(rg, x[0], x[3], x[2], e, d, after)
    for u in range(4):
        buf = C.grp & 1; C.grp += 1; g0 = rg.n()
        if u < 3 or BDW: frag_waits(rg, pend, g0, 2, g0 + 2, only_first=(u == 3))
        k_mfmas(rg, buf, lambda t: OA(u, t))
        softmax(rg, g0, u, lambda t, i: OAr(u, t, i), 0, lambda t: 10**9, lambda t: puse(0, u >> 1, t))
        if u < 3:
            pend = reads_K(rg, so("K0"), u + 1, buf ^ 1, g0 - 1)
            if u == 2: bar = barrier(rg, g0 + 11 + BDW, pend, ["K1", "V0"]); lastK = pend
        else:
            ups = rb("K1", g0 - 12, g0 - 2, lastK)
            pend = reads_K(rg, so("K1"), 0, buf ^ 1, g0 - 1 + BDW, deps=[(bar, 0)], ups=ups)
            upsV = rb("V0", -1, g0)
    for i in range(7):
        b0 = rg.n(); assert b0 == B(i)
        lay = layout(i); usedV = False; tmp = 7
        for n_, (kind, u, off) in enumerate(lay):
            buf = C.grp & 1; C.grp += 1; g0 = rg.n(); assert g0 == b0 + off
            last = n_ == 7
            if kind == "K":
                frag_waits(rg, pend, g0, 2, g0 + 2)
                if lay[n_ + 1][0] == "K":
                    dt = tmp; tmp -= 1
                    vstart = b0 + [o for (k, j, o) in lay if k == "V" and j == dt >> 1][0]
                    Sd = (lambda dt: lambda t: OA(dt, t))(dt); Sr = (lambda dt: lambda t, j: OAr(dt, t, j))(dt)
                    dov = (lambda v, dt: lambda t: v + 6*(dt & 1) + 2*t - 1)(vstart, dt)
                else:
                    Sd = lambda t: R("v", S0 + 4*t, 4); Sr = lambda t, j: f"v{S0 + 4*t + j}"
                    later = [b0 + o for m_, (k, j, o) in enumerate(lay) if k == "K" and j > u and lay[m_ + 1][0] != "K"]
                    nxtK = later[0] if later else (B(i+1) if i < 6 else None)
                    dov = (lambda x: lambda t: x + 4*t - 1)(nxtK) if nxtK else (lambda t: 10**9)
                k_mfmas(rg, buf, Sd)
                softmax(rg, g0, u, Sr, (i + 1) & 1, dov, (lambda u: lambda t: puse(i + 1, u >> 1, t))(u))
            else:
                if not last or BDA: frag_waits(rg, pend, g0, 4, g0 + 6, only_first=last)
                v_mfmas(rg, u, buf, i & 1, i == 0)
                if u < 3: sum_mfmas(rg, u, i & 1, i == 0)
            if not last:
                nk, nu, _ = lay[n_ + 1]
                if nk == "K":
                    pend = reads_K(rg, so(f"K{i+1}"), nu, buf ^ 1, g0 - 1)
                    if nu == 3: lastK = pend
                else:
                    pend, xs = reads_V(rg, so(f"V{i}"), nu, buf ^ 1, g0 - 1, ups=(upsV if nu == 0 else ()), late=(OPT["vlate"] if nu < 3 else 0))
                    if nu == 3: bar = barrier(rg, b0 + 89 + BDA, pend, [f"K{i+2}", f"V{i+1}"] if i < 6 else ["V7"]); lastX = xs
            elif i < 6:
                ups = rb(f"K{i+2}", g0 - 20, g0 - 2, lastK)
                pend = reads_K(rg, so(f"K{i+2}"), 0, buf ^ 1, g0 - 1 + BDA, deps=[(bar, 0)], ups=ups)
                upsV = rb(f"V{i+1}", g0 - 10, g0 + 4, lastX)
            else:
                upsV = rb("V7", g0 - 10, g0 - 2, lastX)
                pend, _ = reads_V(rg, so("V7"), 0, buf ^ 1, g0 - 1 + BDA, late=0, deps=[(bar, 0)], ups=upsV)
    E = rg.n(); assert E == B(7)
    epi = []
    for p in range(4):
        buf = C.grp & 1; C.grp += 1; g0 = rg.n()
        if p == 0: frag_waits(rg, pend, g0, 4, g0 + 2)
        elif p < 3 or BDW: frag_waits(rg, pend, g0, 4, g0 + 6, only_first=(p == 3))
        last = v_mfmas(rg, p, buf, 1, False, tmajor=(p == 0))
        if p == 0:
            rl = []; lr = []
            for t in range(3):
                ls = sum_mfmas(rg, t, 1, False)
                lr.append(rg.F(V(f"v_accvgpr_read_b32 {vRL[t]}, a{240+4*t}", rd=[f"a{240+4*t}"], wr=[vRL[t]], e=ls.gap, sdeps=[(ls, 8)], d=E + 28)))
            mn = rg.F(V(f"v_min3_f32 {vA}, {vRL[0]}, {vRL[1]}, {vRL[2]}", rd=vRL, wr=[vA], deps=[(x, 0) for x in lr], d=E + 30))
            mx = rg.F(V(f"v_max3_f32 {vB}, {vRL[0]}, {vRL[1]}, {vRL[2]}", rd=vRL, wr=[vB], deps=[(x, 0) for x in lr], d=E + 30))
            rg.F(V(f"v_cmp_gt_f32 {sBad}, {sLo}, {vA}", rd=[vA], wr=[sBad], deps=[(mn, 0)], d=E + 40))
            rg.F(V(f"v_cmp_lt_f32 vcc, {sHi}, {vB}", rd=[vB], wr=["vcc"], deps=[(mx, 0)], d=E + 40))
            for t in range(3):
                rl.append(rg.F(V8(f"v_rcp_f32 {vRL[t]}, {vRL[t]}", rd=[vRL[t]], wr=[vRL[t]], deps=[(mn, 0), (mx, 0)], trans=True, d=E + 34)))
        for (dt, t), lm in last.items():
            mul, cvt = o_epilogue_ops(dt, t)
            for o in mul: o.e = lm.gap; o.sdeps = [(lm, 8), (rl[t], 1)]
            for o in mul + cvt:
                o.optional = True
                if dt >= 4 and o in cvt: o.e = 10**9
                rg.F(o); epi.append(o)
        if p < 3:
            pend, xs = reads_V(rg, so("V7"), p + 1, buf ^ 1, g0 - 1 if p != 0 else g0 + 3)
            if p == 2: bar = barrier(rg, g0 + 11 + BDW, pend, ["W0", "Xa", "Xb", "Xc"])
        else:
            ups = rb("W0", -1, g0 - 2, [])
            for o in ups: o.e = a0
            if OPT["nperm"]: ups = ups + [rg.F(V(f"v_mad_i32_i24 {vWb}, {vC}, {sGate}, {vWb}", rd=[vC, vWb], wr=[vWb], e=a0, d=g0 - 4))]
            pend, _ = reads_W(rg, so("W0"), 0, buf ^ 1, g0 - 1 + BDW, deps=[(bar, 0)], ups=ups, rsp=8)
    assert sorted(g + 288 for g in rg.bars) == ringplan.bS[6:] + [ringplan.bQ] + ringplan.bB + [ringplan.bP]
    if OPT["pf3"]:
        g = OPT["pf3"]
        c1 = rg.F(V(f"v_mbcnt_lo_u32_b32 {vA}, -1, 0", wr=[vA], e=g - 30, d=g - 3))
        c2 = rg.F(V(f"v_mbcnt_hi_u32_b32 {vA}, -1, {vA}", rd=[vA], wr=[vA], deps=[(c1, 0)], d=g - 2))
        c3 = rg.F(V(f"v_lshlrev_b32 {vA}, 7, {vA}", rd=[vA], wr=[vA], deps=[(c2, 0)], d=g - 1))
        rg.F(Op(f"buffer_load_dword {vB}, {vA}, s[76:79], s75 offen", "vm", rd=[vA], wr=[vB], deps=[(c3, 1)], e=g, d=g + 5))
    head_dmas(rg, 288, 1200)
    rg.pendW0 = pend; rg.epi = epi
    rg.schedule()
    return rg

def half0_muls(rg, b4):
    for mt in range(4):
        for t in range(3): q_muls(rg, mt, t, rg.mf[b4 + 12*mt + 4*t + 3])

def build_R1(left):
    rg = new_region("R1")
    C.grp = 0
    xa = [rg.F(V(f"v_add_u32 v{S0+s}, {sW1k}, {vK[s]}", rd=[vK[s]], wr=[f"v{S0+s}"], d=6)) for s in range(4)]
    xr = reads_X(rg, lambda sl, s: (f"v{S0+s}", (sl - XB)*16384), [SLOT["Xa"], SLOT["Xb"], SLOT["Xc"]], QV, 4, 9, [(a, 1) for a in xa], step=2)
    pend = None; infos = []
    for st in range(5):
        pend, inf = w_step(rg, ORD[st][0], st in (0, 3), BopQ(st), pend, TS(f"W{st}"), TS(f"W{st+1}"), [f"W{st+1}"], more_reads=(xr if st == 0 else ()))
        infos.append(inf)
    new = {}
    for o in left:
        dt, t = o.ot
        n = V(o.text, rd=list(o.rd), wr=list(o.wr)); n.ot = o.ot; new[id(o)] = n
        n.deps = [(new[id(p)], g) for (p, g) in o.deps if id(p) in new]
        n.e = 8 if dt >= 6 else -1
        n.d = ((12*dt + 4*t) if dt < 4 else (144 + 12*(dt - 4) + 4*t)) - 1
        rg.F(n)
    head_dmas(rg, 0, 240)
    rg.pend = pend
    rg.schedule()
    return rg

def build_R1b(h, zst=None):
    rg = new_region(f"R1b{h}")
    C.grp = 20
    pend, inf = w_step(rg, ORD[5][0], False, BopQ(5), None, TS("W5"), TS("W6"), ["W6"])
    for i in range(48): rg.F(V(f"v_accvgpr_write_b32 a{ZB[h-1] + i}, v{PV0 + i}", rd=[f"v{PV0+i}"], wr=[f"a{ZB[h-1]+i}"]))
    head_dmas(rg, 240, 288)
    next_setup(rg, h)
    rg.pend = pend
    rg.schedule()
    return rg

def next_setup(rg, h):
    T = lambda x, **kw: rg.F(S(x, **kw))
    if h < 3:
        T(f"s_add_u32 {sWcol}, {sWcol}, 256", deps=([(rg.lastw, 1)] if getattr(rg, "lastw", None) else []))
        T(f"s_and_b32 {sWcol}, {sWcol}, 0x3ff")
        for t in NEXT:
            if t[0] == "W":
                for x in wq_t0(sN[NEXT.index(t)], int(t[1])): T(x)
    if h == 2:
        a = T(f"s_lshl_b32 {sTmp}, {sB}, 2")
        if not OPT["bst"]: rg.dbg = rg.F(Op(f"buffer_load_dword {vLane}, off, {srdD}, {sTmp} sc1", "vm", wr=[vLane], deps=[(a, 0)]))
    if h == 3:
        for x in ("s_mov_b32 s16, s80", "s_mov_b32 s17, s81", "s_mov_b32 s18, 0x80000", "s_mov_b32 s20, s80", "s_mov_b32 s21, s81", "s_mov_b32 s22, 0x80000",
                  f"s_mov_b32 {sGate}, 1"): T(x)
        for i in (1, 2, 3): T(f"s_mov_b32 {sD[i]}, {7168*i}"); T(f"s_mov_b32 {sDY[i]}, {7168*i}")
        for m in range(6): T(f"s_add_u32 {sN[m]}, {sRot if m < 4 else sC[0]}, {sH[m & 3]}")
        if OPT["pf3"]:
            for x in ("s_add_u32 s76, s76, L_g3-L_loop", "s_addc_u32 s77, s77, 0", "s_mov_b32 s78, L_codeend-L_g3"): T(x)
        if OPT["tlb"] == 1:
            sw = T(f"s_mov_b32 {sTmp}, {hex(FLAG_BASE + 0x20080)}")
            for srd, so in ((srdW, "0"), (srdWS, "s75"), (srdWS, sTmp), (srdO, sOutR)):
                rg.F(Op(f"buffer_load_dword {vB}, off, {srd}, {so}", "vm", wr=[vB], deps=[(sw, 0)]))
        rg.F(V(f"v_mov_b32 {vDW}, {vDWo}", rd=[vDWo], wr=[vDW])); rg.F(V(f"v_mov_b32 {vDX}, {vDWo}", rd=[vDWo], wr=[vDX]))

def build_R1f():
    X = lambda q: [f"x{q}{a}" for a in range(3)]
    final = [t for t in ISS if ISS[t] < 288 and t[0] in "KV"] + ["W6", "W7"]
    fk = sorted([t for t in final if t[0] in "KV"], key=lambda t: ISS[t]); assert 3 <= len(fk) <= 7
    OF = [0, 3, 1, 2, 4, 5] if OPT["kvlate"] == 8 else list(range(6))
    if OPT["kvlate"] == 8:
        init = X(0) + ["w0", "w1"] + X(1) + ["w2", "x20"]
        inh = list(zip(["x21", "x22", "w3"], X(0))) + [("x30", "w0"), ("x31", "w1")] + list(zip(["x32", "w4", "w5"], X(1))) + [("W6", "w2")] + \
              list(zip(["W7", fk[0], fk[1]], X(2))) + [(fk[2], "w3")] + list(zip(fk[3:], X(3) + ["w4"]))
    elif OPT["kvlate"] != 4:
        init = X(0) + ["w0"] + X(1) + ["w1", "K0", "K1"]
        inh = list(zip(X(2), X(0))) + [("w2", "w0")] + list(zip(["w3", "x30", "x31"], X(1))) + [("x32", "w1")] + \
              list(zip(["w4", "V0", "w5"], X(2))) + [("K2", "w2"), ("W6", "w3")] + list(zip(["V1", "W7", "K3"], X(3))) + ([("V2", "w4")] if len(fk) == 7 else [])
    else:
        init = X(0) + ["w0"] + X(1) + ["w1", "x20", "x21"]
        inh = list(zip(["x22", "w2", "w3"], X(0))) + [("x30", "w0")] + list(zip(["x31", "x32", "w4"], X(1))) + [("w5", "w1")] + \
              list(zip(["W6", "W7", fk[0]], X(2))) + [(fk[1], "w2"), (fk[2], "w3")] + list(zip(fk[3:], X(3) + ["w4"]))
    sl = {t: SLOT[t] for t in final}
    for new, old in reversed(inh):
        if new in sl: sl[old] = sl[new]
    free = [x for x in range(10) if x not in {sl[t] for t in init if t in sl}]
    for t in init:
        if t not in sl: sl[t] = free.pop()
    for new, old in inh: sl[new] = sl[old]
    def spec(t):
        if t[0] == "x": return ("X", int(t[2]), int(t[1]))
        if t[0] == "w": return ("W", OF[int(t[1])])
        if t[0] == "W": return ("W", int(t[1]))
        return (t[0],)
    wsl = [sl[f"w{j}"] for j in range(6)] + [SLOT["W6"]]
    wb = [min(x, 6) for x in wsl[:6]] + [BASE["W6"]]
    rg = new_region("R1f")
    C.grp = 0
    xaddr = lambda s_, s: (f"v{S0 + 4*(s_ >> 2) + s}", (s_ & 3)*16384)
    sh = 1 if OPT["kvlate"] == 8 else 0
    dst = {sh: (1, lambda s, t: XA(4 + s, t)), 1 + sh: (2, lambda s, t: XA(8 + s, t)), 3: (3, QV)}
    pend = None; infos = []; xw = None
    for st in range(6):
        post = None; need = [f"w{st+1}" if st < 5 else "W6"]
        if st in dst:
            q, fn = dst[st]; need += X(q)
            post = (lambda q, fn: lambda g0, bar: reads_X(rg, xaddr, [sl[t] for t in X(q)], fn, g0 + 2 + BDW, g0 + 5 + BDW, [(bar, 0)]))(q, fn)
        pend, inf = w_step(rg, ORD[OF[st]][0], OF[st] in (0, 3), BopQ(OF[st]), pend, ("W", wsl[st], wb[st]), ("W", wsl[st+1], wb[st+1], wb[st]), need, xwait=xw, post=post)
        xw = inf.get("post"); infos.append(inf)
    rel = {"w%d" % j: infos[j]["bar"] for j in range(6)}
    for q, st in ((1, 1 + sh), (2, 2 + sh), (3, 4)):
        for t in X(q): rel[t] = infos[st]["xbar"]
    items = []; tcur = 0
    if OPT["kvlate"] == 8: seq = [(t, None) for t in ("w2", "x20", "x21", "x22", "w3")] + inh[3:]
    elif OPT["kvlate"] != 4:
        seq = [(t, None) for t in ("x20", "x21", "x22")] + inh[3:]
        kp = {0: (3, 4), 1: (8, 9), 2: (4, 9), 3: (9, 12), 5: (0, 5), 6: (3, 7), 7: (3, 4)}[OPT["kvlate"]]
        seq.insert(kp[0], ("K0", None)); seq.insert(kp[1], ("K1", None))
    else: seq = [(t, None) for t in ("x20", "x21", "x22", "w2", "w3")] + inh[3:]
    for new, old in seq:
        if old: tcur = max(tcur, rel[old].e)
        if 5 <= OPT["kvlate"] < 8 and new == "K3": tcur = max(tcur, 255)
        sp = OPT["fsp"] if (new[0] not in "KV" or OPT["kvlate"] not in (4, 8)) else OPT["fkv"]
        cnt = sum(1 for x in TIMES[new] if x < 288) if new in TIMES else 4
        if OPT["kvlate"] == 7 and new[0] in "KV":
            t0, sp = {"K0": (18, 11), "K1": (62, 11), "V0": (112, 9), "K2": (150, 11), "V1": (206, 8), "K3": (240, 9), "V2": (278, 2)}[new]
            items.append((new, spec(new), sl[new], t0, [(i, t0 + sp*i) for i in range(cnt)], rel[old] if old else None)); continue
        items.append((new, spec(new), sl[new], tcur, [(i, tcur + sp*i) for i in range(cnt)], rel[old] if old else None)); tcur += 4*sp + (1 if sp == OPT["fsp"] else OPT["fgap"])
    add_dmas(rg, items)
    next_setup(rg, 0)
    rg.pend = pend
    rg.schedule()
    rg.init = [(t, spec(t), sl[t]) for t in init[:8]]; rg.wb0 = wb[0]; rg.wso0 = (wsl[0] - wb[0])*16384
    rg.x0 = [xaddr(sl[t], 0) for t in X(0)]; rg.xsl0 = [sl[t] for t in X(0)]; rg.xaddr = xaddr
    return rg

RLD = [[R("v", QV0 + 4*g, 4) for g in range(8)],
       [R("v", QV0 + 32 + 4*g, 4) for g in range(4)] + [R("v", S0 + 4*g, 4) for g in range(3)] + ["v[236:239]"]]
vTo = vLane if not OPT['bst'] else 'v235'
vSt, vFl, vPo, vPr, vOut = vDK, vDV, vVb, vDX, vC
LAG = OPT['lag']; OSC = ['', ' sc1', ' nt', ' sc0 sc1'][OPT['osc']]
NTST = ' nt' if OPT['ntst'] else ''
LO = ["v249", "v250", "v251", "v253"]
def pack_store(chunk):
    res = []
    for t in range(3):
        for np_ in range(2):
            a, b = 4*chunk + 2*np_, 4*chunk + 2*np_ + 1
            src = [(OAr(a,t,0), OAr(a,t,1)), (OAr(a,t,2), OAr(a,t,3)), (OAr(b,t,0), OAr(b,t,1)), (OAr(b,t,2), OAr(b,t,3))]
            cv = []
            for j in range(4):
                cv.append(V(f"v_cvt_pk_bf16_f32 {OAr(a,t,j)}, {src[j][0]}, {src[j][1]}", rd=list(src[j]), wr=[OAr(a,t,j)], deps=([(cv[-1], 0)] if cv else [])))
            k = 2*t + np_
            sa = S(f"s_add_u32 {sU[k & 1]}, {sSt}, {k*8192}", wr=[sU[k & 1]])
            st = Op(f"buffer_store_dwordx4 {OA(a,t)}, {vSt}, {srdWS}, {sU[k & 1]} offen@SC", "vm", rd=[OA(a,t), vSt], deps=[(cv[-1], 1), (sa, 0)])
            res.append((cv, sa, st))
    return res
def reduce_ops(set_):
    X = [regs(r_) for r_ in RLD[set_]]
    tmp = [vA, vB]; ops = []; n = 0
    for k in range(4):
        ops += [V(f"v_lshlrev_b32 {LO[k]}, 16, {X[0][k]}", rd=[X[0][k]], wr=[LO[k]]),
                V(f"v_and_b32 {X[0][k]}, {sMask}, {X[0][k]}", rd=[X[0][k]], wr=[X[0][k]])]
        for g in range(1, 8):
            tm = tmp[n & 1]; n += 1
            ops += [V(f"v_lshlrev_b32 {tm}, 16, {X[g][k]}", rd=[X[g][k]], wr=[tm]),
                    V(f"v_and_b32 {X[g][k]}, {sMask}, {X[g][k]}", rd=[X[g][k]], wr=[X[g][k]]),
                    V(f"v_add_f32 {LO[k]}, {LO[k]}, {tm}", rd=[LO[k], tm], wr=[LO[k]]),
                    V(f"v_add_f32 {X[0][k]}, {X[0][k]}, {X[g][k]}", rd=[X[0][k], X[g][k]], wr=[X[0][k]])]
        ops.append(V(f"v_cvt_pk_bf16_f32 {X[0][k]}, {LO[k]}, {X[0][k]}", rd=[LO[k], X[0][k]], wr=[X[0][k]]))
    for a, b in zip(ops, ops[1:]): b.deps.append((a, 0))
    pl = []
    for j in range(2):
        pl.append(V8(f"v_permlane32_swap_b32 {X[0][j]}, {X[0][2+j]}", rd=[X[0][j], X[0][2+j]], wr=[X[0][j], X[0][2+j]], sdeps=[(ops[-1], 2)]))
    for j in range(2):
        pl.append(V8(f"v_permlane16_swap_b32 {X[0][j]}, {X[0][2+j]}", rd=[X[0][j], X[0][2+j]], wr=[X[0][j], X[0][2+j]], sdeps=[(pl[j], 2)]))
    st = Op(f"buffer_store_dwordx4 {RLD[set_][0]}, {vOut}, {srdO}, {sOut} offen{OSC}", "vm", rd=[RLD[set_][0], vOut, sOut], deps=[(pl[2], 1), (pl[3], 1)])
    return ops, pl, st
def red_loads(set_):
    return [Op(f"buffer_load_dwordx4 {RLD[set_][g]}, {vSt}, {srdWS}, {sLd if g < 4 else sLd2} offen offset:{(g & 3)*1024} sc1", "vm",
               rd=[vSt], wr=[RLD[set_][g]]) for g in range(8)]
def sig_ops():
    return [Op(f"buffer_store_dword {vSt}, {vFl}, {srdWS}, {sSig} offen@SC", "vm", rd=[vSt, vFl])]
def scal_A():
    return [f"s_sub_u32 {sTmp}, {sIt}, 1", f"s_and_b32 {sTmp}, {sTmp}, {sSlM}", f"s_mul_i32 {sTmp}, {sTmp}, {CHUNK}",
            f"s_add_u32 {sSt}, {sStR}, {sTmp}", f"s_add_u32 {sLd}, {sLdR}, {sTmp}", f"s_add_u32 {sLd2}, {sLd}, 0x1000",
            f"s_add_u32 {sSig}, {sSig}, 256"]
def scal_B():
    return [f"s_add_u32 {sOut}, {sOutR}, {sOc}", f"s_add_u32 {sOc}, {sOc}, 128", f"s_and_b32 {sOc}, {sOc}, 0x3ff", f"s_add_u32 {sIt}, {sIt}, 1"]

def build_G(first=False, left=()):
    rg = new_region("G0" if first else "G"); L = "F" if first else ""
    used = [SLOT[t] for t in NEXT]
    gs = used + [SLOT["K0"]] + [x for x in range(10) if x not in used and x not in (SLOT["K0"], SLOT["K1"], SLOT["V0"])][:1]
    assert len(gs) == 8
    gb = ringplan.bases(gs, BASE["W0"])[1]
    items = []; bars = {}; st_last = {}; rg.touch = []
    C.grp = 0
    def Bop(h): return (lambda s, t: ZA(h, s, t)) if h < 3 else (lambda s, t: OP(s, t))
    LD = [red_loads(0), red_loads(1)] if first else G_LD
    pend = None; prev_users = []
    if first:
        new = {}
        for o in left:
            dt, t = o.ot
            n = V(o.text, rd=list(o.rd), wr=list(o.wr)); new[id(o)] = n
            n.deps = [(new[id(p)], g) for (p, g) in o.deps if id(p) in new]
            n.e = 8 if dt >= 6 else -1
            n.d = (12*dt + 4*t - 1) if dt < 4 else (144 + 4*t + (dt >> 1) - 3)
            rg.F(n)
        cs = []
        for x in f"""v_mbcnt_lo_u32_b32 {vA}, -1, 0
v_mbcnt_hi_u32_b32 {vA}, -1, {vA}
v_lshlrev_b32 {vSt}, 4, {vA}
v_and_b32 {vPo}, 7, {vA}
v_lshlrev_b32 {vPo}, 2, {vPo}
v_lshrrev_b32 {vB}, 4, {vA}
v_bfe_u32 {vOut}, {vA}, 2, 2
v_and_b32 {vA}, 3, {vA}
v_lshl_add_u32 {vA}, {vOut}, 4, {vA}
v_lshlrev_b32 {vA}, 10, {vA}
v_lshl_add_u32 {vOut}, {vB}, 4, {vA}
v_mov_b32 {vFl}, {hex(OOB)}""".split("\n"):
            cs.append(rg.F(V(x, e=(0 if len(cs) < 3 else 40), d=110, deps=[(cs[-1], 0)] if cs else [])))
        sc = [rg.F(S(x)) for x in (f"s_lshl_b32 s5, {sG}, 2", f"s_cmp_eq_u32 {sWave}, 0", f"s_cselect_b32 s5, s5, {hex(OOB)}", f"s_mov_b32 {sMask}, 0xffff0000",
                                   f"s_mov_b32 {sLd}, {sLdR}", f"s_add_u32 {sLd2}, {sLd}, 0x1000", f"s_mov_b32 {sSig}, {sFlR}", f"s_mov_b32 {sExp}, 16")]
        wl = rg.F(V(f"v_writelane_b32 {vFl}, s5, 1", deps=[(cs[-1], 0), (sc[2], 0)], d=120))
        prev = None
        for k in range(2):
            if k: a1 = rg.F(S(f"s_add_u32 {sLd}, {sLd}, {CHUNK}", deps=[(prev, 1)])); a2 = rg.F(S(f"s_add_u32 {sLd2}, {sLd}, 0x1000"))
            for i, o in enumerate(red_loads(k)):
                o.text = o.text.replace(" sc1", ""); o.tag = "touch"
                o.e = (OPT["gdma"] + 84 if k else 8) + 4*i; o.d = o.e + 3
                o.deps = [(cs[2], 1), ((a2 if k else sc[5]), 0)] + ([(prev, 1)] if prev else []); rg.F(o); prev = o; rg.touch.append(o)
        last0 = prev
        f = 48; prevm = None
        seq = [(f"v_lshrrev_b32 v{f}, 4, {vSt}", 0), (f"v_lshrrev_b32 v{f+1}, 4, v{f}", 0), (f"v_and_b32 v{f+2}, 1, v{f}", 0), (f"v_lshlrev_b32 v{f+2}, 4, v{f+2}", 0),
               (f"v_mov_b32 v{f+3}, 0x3f80", 0), (f"v_lshlrev_b32 v{f+2}, v{f+2}, v{f+3}", 0), (f"v_bfe_u32 v{f+3}, v{f}, 1, 1", 0), (f"v_bfe_u32 v{f+4}, v{f}, 3, 1", 0),
               (f"v_lshl_add_u32 v{f+3}, v{f+4}, 1, v{f+3}", 0), (f"v_bfe_u32 v{f+4}, v{f}, 2, 1", 0), (f"v_lshlrev_b32 v{f+4}, 1, v{f+4}", 0), (f"v_add_u32 v{f+5}, 1, v{f+4}", 0),
               (f"v_cmp_eq_u32 vcc, v{f+1}, v{f+4}", 0), (f"v_cmp_eq_u32 {sBad}, v{f+1}, v{f+5}", 0),
               (f"v_cndmask_b32 v{f+6}, 0, v{f+2}, vcc", 2), (f"v_cndmask_b32 v{f+7}, 0, v{f+2}, {sBad}", 0)]
        for r_ in range(4):
            seq += [(f"v_cmp_eq_u32 vcc, {r_}, v{f+3}", 0), (f"v_cndmask_b32 v{f}, 0, v{f+6}, vcc", 2), (f"v_cndmask_b32 v{f+1}, 0, v{f+7}, vcc", 0),
                    (f"v_accvgpr_write_b32 a{48+r_}, v{f}", 0), (f"v_accvgpr_write_b32 a{52+r_}, v{f+1}", 0)]
        for x, n_ in seq:
            prevm = rg.F(V(x, rd=[f"v[{f}:{f+7}]"], wr=[f"v[{f}:{f+7}]"], e=152, d=188, deps=([(prevm, 0)] if prevm else []), sdeps=([(prevm, n_)] if n_ else [])))
    for hf in range(2):
        h0 = 192*hf
        do_st = not (first and hf == 0); do_sum = not first
        stores = []
        if do_st:
            for (cv, sa, st) in pack_store(1 - hf):
                for o in cv: o.e = h0 + 8; rg.F(o)
                if len(stores) >= 2: sa.deps.append((stores[-2], 1))
                rg.F(sa); st.e = h0 + 10 + OPT['gst']*len(stores); st.d = st.e + 3; rg.F(st); stores.append(st)
        if do_sum:
            sc = [rg.F(S(x, e=h0, deps=[(u, 1) for u in prev_users])) for x in scal_B()]
            if hf == 0: sB0 = sc[-1]
            cur = hf ^ 1
            w0 = rg.F(WAIT(h0 + OPT['gsum'], need_vm=LD[cur] + (G_LD0 if hf == 0 else []), late=1)); w0.e = h0 + OPT['gsum']
            o0, p0, s0_ = reduce_ops(cur)
            o0[0].deps.append((w0, 0))
            for o in o0 + p0 + [s0_]: rg.F(o)
            s0_.d = h0 + OPT['gout']; s0_.deps += [(sc[0], 0), (LD[hf][-1], 1)]
            prev_users = [s0_]
        infos = []
        for j in range(4):
            st = 4*hf + j
            n1 = (st + 1) & 7
            pend, inf = w_step(rg, hf, j == 0, Bop(j), pend, ("W", gs[st], gb[st]), ("W", gs[n1], gb[n1], gb[st]), [f"G{n1}"] + ([f"G{(st + 2) & 7}"] if OPT["gb2"] else []),
                               extra=(stores if j == 1 else ()), nobar=(OPT["gb2"] and not (j & 1)))
            infos.append(inf); bars[st] = inf["bar"]
            if OPT["gb2"] and (j & 1): bars[st - 1] = inf["bar"]
        if do_st:
            sig, = sig_ops(); bs = infos[1]["bar"]
            sig.deps = [(bs, 0)]; sig.d = bs.e + 1; rg.F(sig)
            rg.F(S(f"s_load_dwordx8 s[8:15], s[82:83], {sSig}", e=h0 + OPT['gpoll'], d=h0 + OPT['gpoll'] + 4))
            b2 = infos[2]["bar"]
            if b2 is None:
                b2 = rg.F(WAIT(h0 + 132, lg0=True, late=1)); b2.e = h0 + 132
            for x in ("s_and_b32 s8, s8, s9", "s_and_b32 s10, s10, s11", "s_and_b32 s12, s12, s13", "s_and_b32 s14, s14, s15",
                      "s_and_b32 s8, s8, s10", "s_and_b32 s12, s12, s14", "s_and_b32 s8, s8, s12", "s_bitcmp0_b32 s8, 4"): rg.F(S(x, deps=[(b2, 0)]))
            br = rg.F(Op(f"s_cbranch_scc1 L_spinG{hf}{L}@L\nL_backG{hf}{L}@L:", "s", d=b2.e + 12))
            prev = None
            for i, o in enumerate(LD[hf]):
                o.deps += [(br, 0)] + ([(prev, 1)] if prev else []); o.e = b2.e + 10 + OPT['gld']*i; o.d = o.e + 3; rg.F(o); prev = o
            lastld = LD[hf][-1]
        else: lastld = last0
        if first: rg.F(S(f"s_mov_b32 {sIt}, {hf + 1}", deps=[(lastld, 1)]))
        for i, x in enumerate(scal_A()): rg.F(S(x, deps=[(lastld, 1)] if i == 0 else []))
        for k in range(4):
            st = (4*hf - 2 + k) & 7
            items.append((f"G{st}", ("C", (1 + (st >> 2)) if (hf or k > 1) else 0, st & 3), gs[st], h0 + OPT["gdma"] + k*(4*OPT["gdsp"] + 1) + (4 if (OPT["gb2"] and k > 1) else 0), OPT["gdsp"],
                          bars[st] if (hf or k > 1) else None))
        if stores: st_last[hf] = stores[-1]
    add_dmas(rg, items)
    if not first:
        c1 = S(f"s_cmp_ge_u32 {sIt}, 7", deps=[(TILE["G7"][-1], 1)]); c2 = S("s_cselect_b32 s18, 0, s18", wr=["s18"], rd=["s18"])
        pos = rg.fill.index(sB0) + 1
        rg.fill[pos:pos] = [c1, c2]
        for i, o in enumerate(rg.fill): o.seq = i + 1
        rg.first_dma["G0"].deps.append((c2, 0))
        rg.first_dma["G6"].deps.append((st_last[0], 1))
    rg.first_dma["G2"].deps.append((st_last[1], 1))
    rg.LD = LD; rg.pend = pend
    rg.schedule()
    return rg

def stamp(kind=0):
    if not OPT["stamps"]: return []
    def put(x): return lin(f"v_mov_b32 {vA}, {x}") + [Op(f"buffer_store_dword {vA}, off, {srdWS}, s101", "vm")] + lin("s_add_u32 s101, s101, 4\ns_nop 1")
    if kind == 1: return put("s94") + put("s92") + ((lin("s_waitcnt lgkmcnt(0)") + put("s84") + put("s92") + put("s86") + put("s92")) if OPT["stamps"] == 4 else []) + stamp()
    if kind == 2: return lin("s_waitcnt vmcnt(0)") + stamp()
    return lin("s_memtime s[2:3]\ns_memrealtime s[4:5]\ns_waitcnt lgkmcnt(0)") + put("s2") + put("s4")

def code_pf(lbl, start, end, mask, r):
    if not OPT["pf"]: return []
    return lin(f"""s_getpc_b64 s[{r}:{r+1}]
{lbl}:
s_add_u32 s{r}, s{r}, {start}-{lbl}
s_addc_u32 s{r+1}, s{r+1}, {"-1" if start == KN else "0"}
s_mov_b32 s{r+2}, {end}-{start}
s_mov_b32 s{r+3}, 0x20000
s_lshl_b32 s5, {sIdx}, 2
s_add_u32 s5, s5, {sWave}
s_and_b32 s5, s5, {mask}
s_lshl_b32 s5, s5, 13
v_mbcnt_lo_u32_b32 {vA}, -1, 0
v_mbcnt_hi_u32_b32 {vA}, -1, {vA}
v_lshlrev_b32 {vA}, 7, {vA}""") + [Op(f"buffer_load_dword {vB}, {vA}, s[{r}:{r+3}], s5 offen", "vm")]

HROT = {0: "s_mov_b32 s5, 0", 1: "s_mov_b32 s5, s4", 2: f"s_mov_b32 s5, {sG}", 3: f"s_add_u32 s5, s4, {sG}", 4: f"s_lshr_b32 s5, {sG}, 1",
        5: f"s_lshr_b32 s5, {sB}, 3", 6: f"s_lshr_b32 s5, {sG}, 2\ns_lshl_b32 s3, {sG}, 1\ns_or_b32 s5, s5, s3", 7: f"s_sub_u32 s5, 0, {sG}", 8: f"s_lshl_b32 s5, {sG}, 2", 9: f"s_lshl_b32 s5, s4, 2"}[OPT["hrot"]]
if OPT["krot"] < 3:
    KROT = f"""{f"s_add_u32 s4, {sB}, {sG}" if OPT["krot"] == 2 else ""}
s_and_b32 s4, s4, {3 if OPT["krot"] else 0}
s_lshl_b32 {sDg[0]}, s4, 20
s_add_u32 {sDg[1]}, {sDg[0]}, 0x100000
s_and_b32 {sDg[1]}, {sDg[1]}, 0x3fffff
s_xor_b32 {sDg[2]}, {sDg[0]}, 0x200000
s_xor_b32 {sDg[3]}, {sDg[1]}, 0x200000"""
else:
    KROT = f"""s_add_u32 s5, {sB}, {sG}
s_mul_i32 s3, s5, 43
s_lshr_b32 s3, s3, 7
s_mul_i32 s3, s3, 3
s_sub_u32 s5, s5, s3
s_add_u32 {sDg[3]}, s4, 3
s_add_u32 {sDg[0]}, s4, s5
s_cmp_eq_u32 s5, 2
s_cselect_b32 s3, -2, 1
s_add_u32 {sDg[1]}, {sDg[0]}, s3
s_cmp_eq_u32 s5, 0
s_cselect_b32 s3, 2, -1
s_add_u32 {sDg[2]}, {sDg[0]}, s3""" + "".join(f"\ns_and_b32 {sDg[q]}, {sDg[q]}, 3\ns_lshl_b32 {sDg[q]}, {sDg[q]}, 20" for q in range(4))
def prologue(F):
    init = F.init
    o = lin(f"""
s_cmp_lt_u32 s2, 256
s_cbranch_scc1 L_go
s_endpgm
L_go:
{"s_memrealtime s[92:93]" if (OPT["stamps"] or OPT["dbl"]) else ""}
{"s_memtime s[94:95]" if OPT["stamps"] else ""}
s_load_dwordx16 s[68:83], s[0:1], 0
v_lshrrev_b32 v1, 6, v0
v_and_b32 {vLane}, 63, v0
s_and_b32 s4, s2, 7
v_readfirstlane_b32 {sWave}, v1
s_lshr_b32 s5, s2, 3
s_mov_b32 {sIdx}, s5""")
    mp = {84: (1, 3, 2, 1, 2, 3), 48: (0, 2, 3, 0, 3, 7), 162: (2, 4, 1, 3, 1, 1)}[OPT["mapping"]]
    o += lin(f"""
s_lshr_b32 s6, s4, {mp[0]}
s_lshl_b32 s6, s6, {mp[1]}
s_lshr_b32 s7, s5, {mp[2]}
s_add_u32 {sB}, s6, s7
s_and_b32 s6, s4, {mp[3]}
s_lshl_b32 s6, s6, {mp[4]}
s_and_b32 s7, s5, {mp[5]}
s_add_u32 {sG}, s6, s7""")
    cbits = struct.unpack("<I", struct.pack("<f", math.log2(math.e)/math.sqrt(128)))[0]
    o += lin(f"""
s_lshl_b32 {sW4k}, {sWave}, 12
v_lshrrev_b32 v5, 4, {vLane}
v_and_b32 v6, 15, {vLane}
s_lshl_b32 s6, {sWave}, 4
v_add_u32 v1, s6, v5
s_lshl_b32 s6, {sWave}, 2
v_or_b32 v2, s6, v5
v_xor_b32 v2, v2, v6
v_lshlrev_b32 v2, 4, v2
v_lshl_add_u32 {vDX}, v1, 10, v2
v_lshl_add_u32 {vDK}, v1, 8, v2
v_lshrrev_b32 v7, 5, {vLane}
v_bfe_u32 v2, {vLane}, 3, 2
v_lshl_add_u32 v7, v7, 3, v2
s_lshl_b32 s6, {sWave}, 5
v_add_u32 v7, s6, v7
v_and_b32 v3, 7, {vLane}
v_lshlrev_b32 v4, 1, v5
v_xor_b32 v3, v3, v4
v_lshlrev_b32 v3, 4, v3
s_mov_b32 {sDY[1]}, 3072
s_mov_b32 {sDY[2]}, 6144
s_mov_b32 {sDY[3]}, 9216
s_mov_b32 {sD[1]}, {16*8192 - 1024}
s_mov_b32 {sD[2]}, {4*8192 - 2048}
s_mov_b32 {sD[3]}, {20*8192 - 3072}
s_lshr_b32 s4, {sB}, 2
{HROT}
s_bfe_u32 {sSw}, s5, {"0x10002" if OPT["hswap"] else "0x00002"}
s_and_b32 s5, s5, {3 if OPT["hrot"] else 0}
s_mov_b32 {sHr}, s5
s_lshl_b32 {sWcol}, s5, 8
s_lshl_b32 {sSw}, {sSw}, 7
s_or_b32 {sWcol}, {sWcol}, {sSw}
s_lshr_b32 {sSw}, {sSw}, 1
v_xor_b32 v7, {sSw}, v7
v_lshl_add_u32 {vDW}, v7, 13, v3
s_lshl_b32 {sKoff}, s5, 17
s_mov_b32 {sVoff}, {sKoff}
{KROT}
s_mul_i32 s7, {sB}, {0 if OPT["samex"] else 196608}
s_mov_b32 s22, 196608
s_mov_b32 s23, 0x20000
s_mov_b32 s19, 0x20000
s_lshl_b32 s4, {sG}, 10
{"s_mov_b32 s4, 0" if OPT["samew"] else ""}
s_sub_u32 s18, 0x400000, s4
s_waitcnt lgkmcnt(0)
s_add_u32 s20, s68, s7
s_addc_u32 s21, s69, 0
s_add_u32 s16, s74, s4
s_addc_u32 s17, s75, 0""")
    if OPT["tch"]:
        o += lin(f"""v_lshrrev_b32 v8, 1, {vLane}
v_and_b32 v9, 1, {vLane}
v_lshlrev_b32 v9, 7, v9
v_lshl_add_u32 v11, v8, 13, v9
v_lshl_add_u32 v8, v8, 10, v9
v_mov_b32 v10, {hex(OOB)}
v_cmp_gt_u32 vcc, 12, {vLane}
s_lshl_b32 s4, {sG}, 2
s_add_u32 s4, s4, {sWave}
s_mul_i32 s4, s4, 6144
v_cndmask_b32 v8, v10, v8, vcc
v_cmp_gt_u32 vcc, 16, {vLane}
s_and_b32 s5, {sB}, 3
s_lshl_b32 s5, s5, 2
s_add_u32 s5, s5, {sWave}
s_lshl_b32 s5, s5, 16
s_add_u32 s5, s5, {sWcol}
v_cndmask_b32 v11, v10, v11, vcc
v_add_u32 v8, s4, v8
v_add_u32 v11, s5, v11""")
        for q in range(OPT["tch"] - 1, 4):
            o += lin(f"s_lshr_b32 s3, {sDg[q]}, 12")
            o += [Op(f"buffer_load_dword {vB}, v8, {srdX}, s3 offen", "vm"), Op(f"buffer_load_dword {vB}, v11, {srdW}, {sDg[q]} offen", "vm")]
    if OPT["stamps"] == 4: o += lin("s_memtime s[84:85]")
    for j in range(4): o += dma_linear(*init[j])
    if OPT["stamps"] == 4: o += lin("s_memtime s[86:87]")
    o += lin(f"""s_lshl_b32 s3, {sB}, 22
s_lshl_b32 s7, {sG}, 19
s_add_u32 s3, s3, s7
{"s_mov_b32 s3, 0" if OPT["samekv"] else ""}
s_add_u32 s8, s70, s3
s_addc_u32 s9, s71, 0
s_mov_b32 s10, 0x80000
s_mov_b32 s11, 0x20000
s_add_u32 s12, s72, s3
s_addc_u32 s13, s73, 0
s_mov_b32 s14, 0x80000
s_mov_b32 s15, 0x20000
""")
    if OPT["tlb"]:
        o += [Op(f"buffer_load_dword {vB}, off, {srdK}, 0", "vm"), Op(f"buffer_load_dword {vB}, off, {srdV}, 0", "vm")]
        o += [Op(f"buffer_load_dword {vB}, off, {srdW}, {sDg[q]}", "vm") for q in (1, 2, 3)]
    o += code_pf("L_pc", KN, "L_g3", OPT["pf"] - 1, 88)
    o += lin(f"""
v_lshrrev_b32 v7, 3, {vLane}
v_add_u32 v7, s6, v7
v_lshl_add_u32 {vDWo}, v7, 10, v3
s_and_b32 s6, {sWave}, 1
s_lshl_b32 s6, s6, 2
v_or_b32 v2, s6, v5
v_lshlrev_b32 v2, 1, v2
v_xor_b32 v2, v2, v6
v_lshlrev_b32 v1, 8, v1
v_lshl_add_u32 {vDV}, v2, 4, v1
s_mov_b32 s24, s82
s_mov_b32 s25, s83
s_mov_b32 s26, {hex(WS_BYTES)}
s_mov_b32 s27, 0x20000
v_lshrrev_b32 v1, 3, {vLane}
v_and_b32 v2, 7, {vLane}
v_lshlrev_b32 v1, 8, v1
v_lshl_add_u32 v8, v2, 2, v1
s_lshl_b32 s6, {sB}, 11
s_add_u32 s6, s6, {hex(FLAG_BASE)}
s_or_b32 s7, {sG}, {sWave}
s_cmp_eq_u32 s7, 0
s_cselect_b32 {sTmp}, s6, {hex(OOB)}
v_mov_b32 v9, 0""")
    zst = Op(f"buffer_store_dword v9, v8, {srdWS}, {sTmp} offen sc1", "vm"); o.append(zst)

    o += lin(f"""
s_mov_b32 {sScale}, {hex(cbits)}
s_mov_b32 {sLo}, 0x30800000
s_mov_b32 {sHi}, 0x4e800000
s_mov_b32 {sHead}, 0
s_lshl_b32 {sW1k}, {sWave}, 10
s_mov_b32 s28, s78
s_mov_b32 s29, s79
s_mov_b32 s30, 0x600000
s_mov_b32 s31, 0x20000
s_mov_b32 s32, s80
s_mov_b32 s33, s81
s_mov_b32 s34, 0x100
s_mov_b32 s35, 0x20000

v_lshrrev_b32 v1, 2, v6
v_and_b32 v2, 3, v6
v_lshl_add_u32 v3, v1, 4, v2
v_lshlrev_b32 v3, 8, v3""")
    for s in range(4):
        o += lin(f"s_and_b32 s3, {sWcol}, 128\nv_add_u32 v4, {4*s}, v5\nv_xor_b32 v4, v4, v6\nv_lshl_add_u32 {vK[s]}, v4, 4, v3\nv_xor_b32 {vK[s]}, s3, {vK[s]}")
    o += lin(f"""
v_lshl_add_u32 v3, v5, 4, v1
v_lshlrev_b32 v3, 8, v3
v_and_b32 v4, 1, v5
v_lshl_add_u32 v7, v4, 2, v1
v_lshl_add_u32 v3, v7, 5, v3
v_lshl_add_u32 v3, v2, 3, v3
v_add_u32 {vVb}, {BASE["V7"]*16384}, v3
v_lshl_add_u32 v3, v5, 2, v1
v_lshlrev_b32 v3, 7, v3
v_lshrrev_b32 v7, 1, v1
v_lshl_add_u32 v7, v4, 1, v7
{"v_lshlrev_b32 v7, 1, v7" if OPT["nperm"] else "v_lshl_add_u32 v3, v7, 5, v3"}
{"v_xor_b32 v7, v7, v2" if OPT["nperm"] else ""}
{"v_lshl_add_u32 v7, v7, 4, v3" if OPT["nperm"] else "v_lshl_add_u32 v7, v2, 3, v3"}
v_add_u32 {vWb}, {F.wb0*16384}, v7
v_mov_b32 v3, 0x3f803f80
v_cmp_eq_u32 vcc, 0, v2
s_nop 1
{"v_cndmask_b32 v3, 0, v3, vcc" if OPT["ones4"] else ""}
v_accvgpr_write_b32 a252, v3
v_accvgpr_write_b32 a253, v3
v_accvgpr_write_b32 a254, v3
v_accvgpr_write_b32 a255, v3
""")
    for s in range(4):
        o += lin(f"v_add_u32 v{S0+s}, {sW1k}, {vK[s]}\nv_add_u32 v{S0+4+s}, 0x10000, v{S0+s}\nv_add_u32 v{S0+8+s}, 0x20000, v{S0+s}\nv_add_u32 {vK[s]}, {BASE['K7']*16384}, {vK[s]}")
    o += lin(f"s_add_u32 {sW1k}, {sW1k}, {lit((XB - BASE['K7'])*16384)}")
    for j in range(4, 8): o += dma_linear(*init[j])
    o += lin(f"""s_lshl_b32 s6, {sG}, 19
s_add_u32 s80, s76, s6
s_addc_u32 s81, s77, 0
s_mov_b32 {sGate}, 0
s_lshl_b32 {sH[0]}, {sHr}, 17
s_add_u32 {sH[1]}, {sH[0]}, 0x20000
s_and_b32 {sH[1]}, {sH[1]}, 0x7ffff
s_xor_b32 {sH[2]}, {sH[0]}, 0x40000
s_xor_b32 {sH[3]}, {sH[1]}, 0x40000
{"s_mov_b32 s73, s92" if OPT["dbl"] else ""}
s_getreg_b32 {sXcc}, hwreg(HW_REG_XCC_ID, 0, 3)
s_lshr_b32 {sRot}, {sB}, 2
s_and_b32 {sRot}, {sRot}, {7 if OPT["rot"] else 0}
s_lshl_b32 {sRot}, {sRot}, 7
s_lshl_b32 {sXcc}, {sXcc}, 2
s_lshl_b32 {sXcc}, 1, {sXcc}""" + "".join(f"\ns_add_u32 {sC[i]}, {sRot}, {128*(i+1)}\ns_and_b32 {sC[i]}, {sC[i]}, 0x3ff" for i in range(3))
      + "".join("\n" + "\n".join(x_t0(sN[NEXT.index('X' + 'abc'[a])], a, 3)) for a in range(3)) + f"""
s_mul_i32 s6, {sB}, {8*CHUNK + 4096}
s_mov_b32 s75, s6
s_add_u32 s6, s6, 4096
s_mul_i32 s7, {sWave}, 49152
s_add_u32 {sStR}, s6, s7
s_lshl_b32 s7, {sG}, 10
s_add_u32 {sStR}, {sStR}, s7
s_mul_i32 s7, {sG}, 3
s_add_u32 s7, s7, {sWave}
s_lshl_b32 s4, s7, 13
s_add_u32 {sLdR}, s6, s4
s_lshl_b32 {sFlR}, {sB}, 11
s_add_u32 {sFlR}, {sFlR}, {hex(FLAG_BASE - 256)}
s_lshr_b32 s4, s7, 1
s_mul_i32 s5, s4, 11
s_lshr_b32 s5, s5, 5
s_mul_i32 s3, s5, 3
s_sub_u32 s4, s4, s3
s_lshl_b32 s4, s4, 6
s_lshl_b32 s5, s5, 2
s_add_u32 s4, s4, s5
s_mul_i32 s5, {sB}, 192
s_add_u32 s4, s4, s5
s_lshl_b32 s4, s4, 10
s_and_b32 s5, s7, 1
s_lshl_b32 s5, s5, 6
s_add_u32 {sOutR}, s4, s5
s_mov_b32 {sOc}, {sRot}
s_cmp_eq_u32 {sWave}, 3
s_cselect_b32 {sLdR}, {hex(OOB)}, {sLdR}
s_cselect_b32 {sOutR}, {hex(OOB)}, {sOutR}
v_bfe_u32 v3, {vLane}, 3, 2
v_and_b32 v2, 3, {vLane}
v_lshlrev_b32 {vC}, 5, v3
v_lshl_add_u32 {vC}, v2, 3, {vC}
v_lshlrev_b32 v3, 1, v3
v_xor_b32 v2, v2, v3
v_lshlrev_b32 v2, 4, v2
v_sub_u32 {vC}, {vC}, v2""")
    if OPT["tlb"] == 2:
        o += lin(f"""s_mov_b32 s4, {hex(FLAG_BASE + 0x20080)}
s_mov_b32 s88, s80
s_mov_b32 s89, s81
s_mov_b32 s90, 0x80000
s_add_u32 s5, s75, {8*CHUNK + 4096}""") if False else lin(f"s_mov_b32 s4, {hex(FLAG_BASE + 0x20080)}\ns_add_u32 s5, s75, {8*CHUNK + 4096}")
        o += [Op(f"buffer_load_dword {vB}, off, {srd}, {so}", "vm") for srd, so in ((srdWS, "s75"), (srdWS, "s5"), (srdWS, "s4"), (srdO, sOutR))]
    if OPT["pf3"]:
        o += lin(f"""s_getpc_b64 s[76:77]
L_pc3:
s_add_u32 s76, s76, L_loop-L_pc3
s_addc_u32 s77, s77, 0
s_mov_b32 s78, L_R2-L_loop
s_mov_b32 s79, 0x20000
s_lshl_b32 s75, {sIdx}, 2
s_add_u32 s75, s75, {sWave}
s_and_b32 s75, s75, 15
s_lshl_b32 s75, s75, 13""")
    if OPT["stress"]: o += lin(f"s_lshl_b32 s75, s2, 20\ns_add_u32 s75, s75, 0x8000000\ns_mul_i32 s4, {sWave}, 0x3f000\ns_add_u32 s75, s75, s4")
    if OPT["stamps"]:
        o += lin(f"s_lshl_b32 s101, s2, 10\ns_lshl_b32 s6, {sWave}, 8\ns_add_u32 s101, s101, s6\ns_add_u32 s101, s101, {hex(STAMP_BASE)}")
    if OPT["stamps"] in (2, 4): o += stamp(1)
    o.append(WAIT(0, need_vm=[x[0] for x in init[:4]]))
    o += lin("s_barrier")
    if OPT["stamps"] in (2, 4): o += stamp()
    for t in range(3):
        for s in range(4): o += lin("ds_read_b128 %s, %s offset:%d" % ((XA(s, t),) + F.xaddr(F.xsl0[t], s)))
    for s in range(4):
        for p in range(2): o += lin(f"ds_read_b64_tr_b16 {FR(0, s, p)}, {vWb} offset:{F.wso0 + s*4096 + p*2048}")
    o += lin("s_waitcnt lgkmcnt(0)\ns_barrier")
    return o, zst

def glue0(zst):
    return [WAIT(0, need_vm=[zst])] + lin(f"""s_lshl_b32 s6, {sB}, 2
s_cmp_eq_u32 {sWave}, 0
s_cselect_b32 s6, s6, {hex(OOB)}
v_mov_b32 {vB}, {hex(OOB)}
v_writelane_b32 {vB}, 0, 0
v_mov_b32 {vA}, {sXcc}""") + [Op(f"buffer_atomic_add {vA}, {vB}, {srdD}, s6 offen sc1", "vm")]
def touch_setup():
    return lin(f"""s_cmp_eq_u32 {sSlM}, 1
s_cselect_b32 s4, 256, {hex(OOB)}
v_lshlrev_b32 {vA}, 1, {vA}
v_and_b32 {vA}, 0x700, {vA}
s_add_u32 s4, s4, {sFlR}""") + [Op(f"buffer_load_dword {vB}, {vA}, {srdWS}, s4 offen sc1", "vm")]
def mode_check(dbg):
    if OPT["bst"]: return lin(f"L_chkD:\nL_backD:\ns_mov_b32 {sSlM}, 1")
    return [WAIT(0, need_vm=[dbg])] + lin(f"""s_mov_b32 s3, 0
L_chkD:
v_readfirstlane_b32 s4, {vLane}
s_nop 3
s_lshr_b32 s5, s4, 4
s_and_b32 s5, s5, 0x0f0f0f0f
s_and_b32 s7, s4, 0x0f0f0f0f
s_add_u32 s5, s5, s7
s_mul_i32 s5, s5, 0x01010101
s_lshr_b32 s5, s5, 24
s_cmp_lg_u32 s5, 8
s_cbranch_scc1 L_spinD
L_backD:
s_lshl_b32 s5, {sXcc}, 3
{"s_mov_b32 s5, 0" if OPT["forceslow"] else ""}
s_cmp_eq_u32 s4, s5
s_cselect_b32 {sSlM}, 1, 7""")

def slow_path(placed, pendW0):
    vKo, vVo, vVo2, vKo2 = f"v{PV0+40}", f"v{PV0+41}", f"v{PV0+42}", f"v{PV0+43}"
    M = [f"v{PV0+36+t}" for t in range(3)]
    CN = [R("v", PV0 + 24 + 4*t, 4) for t in range(3)]
    Sx = [R("v", S0 + 4*t, 4) for t in range(3)]
    t_ = f"""
L_slow:
s_waitcnt vmcnt(0) lgkmcnt(0)
s_nop 7
v_mbcnt_lo_u32_b32 {vB}, -1, 0
v_mbcnt_hi_u32_b32 {vB}, -1, {vB}
v_and_b32 {vA}, 15, {vB}
v_lshrrev_b32 {vB}, 4, {vB}
v_lshlrev_b32 {vKo}, 8, {vA}
v_lshl_add_u32 {vKo}, {vB}, 4, {vKo}
s_and_b32 s4, {sWcol}, 128
s_xor_b32 s5, s4, 128
v_add_u32 {vKo2}, s5, {vKo}
v_add_u32 {vKo}, s4, {vKo}
v_lshlrev_b32 {vVo}, 10, {vB}
v_lshl_add_u32 {vVo}, {vA}, 1, {vVo}
v_add_u32 {vVo2}, 0x1000, {vVo}
s_add_u32 s4, {sHr}, {sHead}
s_and_b32 s4, s4, 3
s_lshl_b32 s4, s4, 17
s_mov_b32 s10, 0x80000
s_mov_b32 s14, 0x80000
s_add_u32 s5, s4, 0x20000
s_mov_b32 s6, s4
"""
    for t in range(3): t_ += f"v_mov_b32 {M[t]}, 0xff800000\n"
    t_ += "L_slow1:\n"
    for s in range(4): t_ += f"buffer_load_dwordx4 {FR(0, s)}, {vKo if s < 2 else vKo2}, {srdK}, s6 offen offset:{64*(s & 1)}\n"
    t_ += "s_waitcnt vmcnt(0)\n"
    for t in range(3):
        for s in range(4): t_ += f"v_mfma_f32_16x16x32_bf16 {Sx[t]}, {FR(0, s)}, {QV(s, t)}, {'0' if s == 0 else Sx[t]}\n"
    t_ += "s_nop 9\n"
    for t in range(3):
        t_ += f"v_max3_f32 {M[t]}, {M[t]}, v{S0+4*t}, v{S0+4*t+1}\nv_max3_f32 {M[t]}, {M[t]}, v{S0+4*t+2}, v{S0+4*t+3}\n"
    t_ += "s_add_u32 s6, s6, 0x1000\ns_cmp_lt_u32 s6, s5\ns_cbranch_scc1 L_slow1\n"
    for t in range(3):
        t_ += f"""v_mov_b32 {vA}, {M[t]}
s_nop 1
v_permlane32_swap_b32 {vA}, {M[t]}
s_nop 1
v_max_f32 {M[t]}, {vA}, {M[t]}
v_mov_b32 {vA}, {M[t]}
s_nop 1
v_permlane16_swap_b32 {vA}, {M[t]}
s_nop 1
v_max_f32 {M[t]}, {vA}, {M[t]}
"""
        for i in range(4): t_ += f"v_sub_f32 v{PV0+24+4*t+i}, 0, {M[t]}\n"
    for i in range(96): t_ += f"v_mov_b32 v{i}, 0\n"
    for i in range(12): t_ += f"v_accvgpr_write_b32 a{240+i}, 0\n"
    t_ += "s_mov_b32 s6, s4\nL_slow2:\n"
    for u in range(2):
        for s in range(4): t_ += f"buffer_load_dwordx4 {FR(0, s)}, {vKo if s < 2 else vKo2}, {srdK}, s6 offen offset:{64*(s & 1)}\n"
        t_ += "s_waitcnt vmcnt(0)\n"
        for t in range(3):
            for s in range(4): t_ += f"v_mfma_f32_16x16x32_bf16 {Sx[t]}, {FR(0, s)}, {QV(s, t)}, {CN[t] if s == 0 else Sx[t]}\n"
        t_ += "s_nop 9\n"
        for i in range(12): t_ += f"v_exp_f32 v{S0+i}, v{S0+i}\n"
        t_ += "s_nop 0\n"
        for t in range(3):
            for j in range(2): t_ += f"v_cvt_pk_bf16_f32 {PBr(0, 0, t, 2*u + j)}, v{S0+4*t+2*j}, v{S0+4*t+2*j+1}\n"
        if u == 0: t_ += "s_mov_b32 s7, s6\ns_add_u32 s6, s6, 0x1000\n"
    f = FA0 + 16
    for dt in range(8):
        for j in range(8):
            t_ += f"buffer_load_ushort v{FA0 + j}, {vVo if j < 4 else vVo2}, {srdV}, s7 offen offset:{(j & 3)*256 + 32*dt}\n"
        t_ += "s_waitcnt vmcnt(0)\n"
        for j in range(4): t_ += f"v_lshl_or_b32 v{f + j}, v{FA0 + 2*j + 1}, 16, v{FA0 + 2*j}\n"
        t_ += "s_nop 1\n"
        for t in range(3): t_ += f"v_mfma_f32_16x16x32_bf16 {OA(dt, t)}, v[{f}:{f+3}], {PB(0, 0, t)}, {OA(dt, t)}\n"
    for t in range(3): t_ += f"v_mfma_f32_16x16x32_bf16 {LA(t)}, {ONES}, {PB(0, 0, t)}, {LA(t)}\n"
    t_ += "s_add_u32 s6, s6, 0x1000\ns_cmp_lt_u32 s6, s5\ns_cbranch_scc1 L_slow2\ns_nop 9\n"
    for t in range(3): t_ += f"v_accvgpr_read_b32 {vRL[t]}, a{240+4*t}\n"
    for t in range(3): t_ += f"v_rcp_f32 {vRL[t]}, {vRL[t]}\n"
    t_ += "s_nop 0\n"
    for o in placed: t_ += o.text + "\n"
    for o in pendW0: t_ += o.text + "\n"
    t_ += "s_waitcnt lgkmcnt(0)\n"
    t_ += "s_branch L_join\n"
    return lin(t_)

def spin(lbl, back, reg, off_v, srd, soff, exp):
    return lin(f"""{lbl}:
s_mov_b32 s3, 0
{lbl}_l:
buffer_load_dword {reg}, {off_v}, {srd}, {soff}{' offen' if off_v != 'off' else ''} sc1
s_add_u32 s3, s3, 1
s_waitcnt vmcnt(0)
v_cmp_ne_u32 vcc, {exp}, {reg}
s_cmp_gt_u32 s3, 0x10000
s_cbranch_scc1 {back}
s_nop 2
s_cbranch_vccnz {lbl}_l
s_branch {back}""")

def pad_linear(ops):
    out = []
    for o in ops:
        need = 0
        for (p, n) in o.sdeps:
            if p in out: need = max(need, n - sum(x.w for x in out[out.index(p)+1:]))
        if need > 0:
            nop = Op(f"s_nop {need-1}", "x"); nop.w = need; out.append(nop)
        out.append(o)
    return out

def tail(G):
    X = (lambda: stamp()) if OPT["stamps"] == 3 else (lambda: [])
    def sums(set_, loads):
        o0, p0, s0_ = reduce_ops(set_)
        return [WAIT(0, need_vm=loads)] + pad_linear(o0 + p0 + [s0_])
    def msum(set_, loads):
        A0, A1, D0, D1 = "a[48:51]", "a[52:55]", FR(1, 0), FR(1, 1)
        r = []
        for g in range(8):
            r += [WAIT(0, need_vm=[loads[g]]), mfma(D0, A0, RLD[set_][g], "0" if g == 0 else D0), mfma(D1, A1, RLD[set_][g], "0" if g == 0 else D1)]
        d = regs(D0) + regs(D1); res = regs(FR(1, 2 + set_))
        r += lin("s_nop 7") + [V(f"v_cvt_pk_bf16_f32 {res[j]}, {d[2*j]}, {d[2*j+1]}", rd=[d[2*j], d[2*j+1]], wr=[res[j]]) for j in range(4)]
        return r + [Op(f"buffer_store_dwordx4 {FR(1, 2 + set_)}, {vOut}, {srdO}, {sOut} offen{OSC}", "vm", rd=[FR(1, 2 + set_)])]
    fin = msum if OPT["msum"] else sums
    o = lin("\n".join(scal_B()) + "\ns_nop 1")
    stores = []
    for (cv, sa, st) in pack_store(1):
        o += cv + [sa, st]; stores.append(st)
    o += X() + fin(1, G.LD[1]) + X()
    o += [WAIT(0, need_vm=stores)] + X() + lin("s_barrier") + sig_ops()
    o += lin("s_branch L_spinU@L\nL_backU@L:") + X()
    l7 = red_loads(0); o += l7
    o += lin(f"s_add_u32 {sOut}, {sOutR}, {sOc}")
    if OPT["stamps"] == 3: o += lin("s_waitcnt vmcnt(0)") + X()
    o += fin(0, l7) + X() + X()
    return o

def main():
    R2 = build_R2()
    placed = [o for o in R2.epi if o.gap is not None]; placed.sort(key=lambda o: o.pos)
    R1 = build_R1(R2.left)
    R1b = {h: build_R1b(h) for h in (1, 2, 3)}
    R1f = build_R1f()
    global G_LD, G_LD0
    G0 = build_G(True, R2.left)
    G_LD0 = G0.LD[1]; G_LD = [red_loads(0), red_loads(1)]
    G = build_G()
    bind_ext(R1, [R2.pendW0]); bind_ext(R2, [R1f.pend] + [R1b[h].pend for h in R1b]); bind_ext(G0, [R2.pendW0]); bind_ext(G, [G0.pend, G.pend])
    for h in R1b: bind_ext(R1b[h], [R1.pend])
    for w in R1f.xw: w.text = 's_nop 0'
    pro, zst = prologue(R1f)
    for j, t in enumerate(NEXT): TILE[f'G{j}'] += TILE[t]
    stg = lin(f"""{[f"s_mov_b32 s4, {sG}", f"s_and_b32 s4, {sB}, 3", f"s_mov_b32 s4, {sIdx}"][OPT["stagm"]]}
s_mul_i32 s4, s4, {OPT["stag"]}
L_stg:
s_cmp_eq_u32 s4, 0
s_cbranch_scc1 L_stg2
s_sub_u32 s4, s4, 1
s_branch L_stg
L_stg2:""") if OPT["stag"] else []
    p0 = glue0(zst) + stg + lin("s_branch L_R2")
    sel = lin(f"s_cmp_eq_u32 {sHead}, 2\ns_cbranch_scc1 L_v2\ns_cmp_eq_u32 {sHead}, 3\ns_cbranch_scc1 L_v3")
    v1 = R1b[1].out + lin("s_branch L_R2")
    v2 = lin("L_v2:") + R1b[2].out + lin("s_branch L_R2")
    assert OPT["pf"]
    v3 = lin("L_v3:") + R1b[3].out + mode_check(getattr(R1b[2], "dbg", None)) + (lin(f"v_mbcnt_lo_u32_b32 {vA}, -1, 0\nv_mbcnt_hi_u32_b32 {vA}, -1, {vA}\nv_lshlrev_b32 {vA}, 7, {vA}") if OPT["pf3"] else code_pf("L_pc2", "L_g3", "L_codeend", 15, 76)) + touch_setup()
    g2 = lin(f"s_or_b64 {sBad}, {sBad}, vcc\n{'s_nop 0' if OPT['stress'] else 's_cbranch_scc1 L_slow'}\nL_join:\ns_add_u32 {sHead}, {sHead}, 1\ns_cmp_lt_u32 {sHead}, 4")
    g3 = lin(f"s_cmp_eq_u32 {sSlM}, 7\ns_cbranch_scc1 L_G0S")
    g4 = lin(f"s_mov_b32 {sC[0]}, {sC[2]}\ns_add_u32 {sC[1]}, {sC[0]}, 128\ns_and_b32 {sC[1]}, {sC[1]}, 0x3ff\ns_add_u32 {sC[2]}, {sC[1]}, 128\ns_and_b32 {sC[2]}, {sC[2]}, 0x3ff\ns_cmp_lt_u32 {sIt}, 8")
    T = tail(G)
    sA, sB_, sC_, sD_, sE = stamp(1 if OPT['stamps'] in (1, 3) else 0), stamp(), stamp(), stamp(), stamp(2)
    if OPT["bst"]:
        def dump():
            return lin(f"v_mbcnt_lo_u32_b32 {vA}, -1, 0\nv_mbcnt_hi_u32_b32 {vA}, -1, {vA}\nv_lshlrev_b32 {vA}, 2, {vA}") + [Op(f"buffer_store_dword {vLane}, {vA}, {srdWS}, s101 offen", "vm")] + lin("s_add_u32 s101, s101, 256\ns_nop 1")
        sA = lin(f"s_lshl_b32 s101, s2, 2\ns_add_u32 s101, s101, {sWave}\ns_lshl_b32 s101, s101, 12\ns_add_u32 s101, s101, {hex(DUMP_BASE)}")
        sC_ = dump(); sD_ = dump()
    tr = pro + sA
    for hd in range(4):
        tr += [R1f.out + p0, R1.out + sel + v1, R1.out + sel + v2, R1.out + sel + v3][hd] + sB_ + R2.out + g2 + sC_
    tr += g3
    post = []
    for it in range(3): post += G.out + g4 + sD_
    post += T
    resolve_waits(tr + [x for x in G0.out if x.tag != "touch"] + g4 + sD_ + [x for x in post if x.tag != "fastonly"], TILE)
    tr += G0.out + g4 + sD_ + post
    resolve_waits(tr, TILE)
    errs = check(tr, "main")
    for e in errs[:20]: print(e, file=sys.stderr)
    assert not errs
    for rg in (R1f, R1, R1b[1], R1b[3], R2, G0, G): print(rg.name, "overfull:", rg.overlog, file=sys.stderr)
    out = [open(os.path.join(os.path.dirname(os.path.abspath(__file__)), "header.txt")).read().rstrip()]
    out.append("; @launch grid=(256,1,1) block=(256,1,1) lds=163840")
    out.append(f""".amdgcn_target "amdgcn-amd-amdhsa--gfx950"
; Fused attention block, generated by gen/kernel.py (own gap scheduler, gen/sched.py).
;  - 256 workgroups = (batch b, group g of 4 heads), 4 waves x 48 query rows, one wave per SIMD, 16x16x32 bf16 MFMA.
;    out^T = wo^T O^T; wq / K / V / wo / x tiles (16 KB) stream through a statically planned 10-slot LDS ring by LDS-DMA.
;  - softmax: exp2 of the pre-scaled scores, row sums by MFMA; a run-time range check of the row sums sends a wave to
;    L_slow (two passes with the true row max) whenever the unshifted exponentials could be unsafe.
;    They announce their die in d_debug; if all 8 share one L2 the exchange uses plain stores into two reused slots
;    (L_G0/L_G), otherwise write-through stores into fresh slots (L_G0S/L_GS).
.text
.globl {KN}
.p2align 8
.type {KN},@function
{KN}:""")
    def emit(ops, sc="", lb=""):
        for o in ops:
            if OPT["nobar"] and o.text == "s_barrier" and o.kind == "w": out.append("s_nop 0"); continue
            if OPT["nolg"] and o.kind == "w" and o.text.startswith("s_waitcnt") and "vmcnt" not in o.text: out.append("s_nop 0"); continue
            if OPT["nods"] and o.kind == "ds": continue
            if OPT["novalu"] and o.kind in ("v4", "v8") and o.gap is not None and ("exp" in o.text or "cvt" in o.text or "mul" in o.text or "perm" in o.text or "and" in o.text or "lshl" in o.text or "add_f32" in o.text): continue
            if OPT["nodma"] and o.text.endswith(" lds"): out.append("s_nop 0"); continue
            if OPT["nored"] and " sc1" in o.text and "dwordx4" in o.text: out.append("s_nop 0"); continue
            if getattr(o, "pre", None): out.append(o.pre)
            out.append(o.text.replace("@SC", sc).replace("@L", lb))
    def mark(n):
        return lin("s_memrealtime s[2:3]\ns_waitcnt lgkmcnt(0)\ns_sub_u32 s75, s2, s73") if OPT["dbl"] == n else []
    def idle(n, tag):
        if not n: return []
        return lin(f"""s_memrealtime s[2:3]
s_waitcnt lgkmcnt(0)
s_mov_b32 s5, s2
L_idle{tag}:
s_sleep 2
s_memrealtime s[2:3]
s_waitcnt lgkmcnt(0)
s_sub_u32 s4, s2, s5
s_cmp_lt_u32 s4, {n}
s_cbranch_scc1 L_idle{tag}""")
    def ex(n): return (stamp(2) + lin("s_endpgm")) if OPT["exitat"] == n else []
    emit(pro + mark(3) + idle(OPT['idle0'], 'a') + sA + ex(1) + R1f.out + mark(4) + p0)
    out.append("; ---- head loop: Q-projection steps 0-4, step 5 (three variants), steps 6-7 + attention ----")
    out.append("L_loop:"); emit(R1.out + sel + v1 + v2 + v3); out.append("L_R2:"); emit(idle(OPT['idle1'], 'b') + sB_ + R2.out + g2 + sC_)
    if OPT["dbl"] >= 10:
        emit(lin(f"s_cmp_lg_u32 {sHead}, {OPT['dbl'] - 9}\ns_cbranch_scc1 L_nomark") + mark(OPT["dbl"]) + lin(f"L_nomark:\ns_cmp_lt_u32 {sHead}, 4"))
    if OPT["stamps"] or OPT["bst"]: out.append(f"s_cmp_lt_u32 {sHead}, 4")
    out.append("s_cbranch_scc1 L_loop")
    out.append('; ---- output projection + exchange ----'); out.append('L_g3:'); emit(mark(5) + ex(3) + g3)
    for sc, lb in ((NTST, ""), (" sc1", "S")):
        out.append(f"L_G0{lb}:"); emit([(Op("s_nop 0", "x") if (lb and x.tag == "touch") else x) for x in G0.out] + g4 + sD_, sc, lb)
        out.append(f"L_G{lb}:"); emit(G.out + g4 + sD_, sc, lb)
        if OPT["stamps"] or OPT["bst"]: out.append(f"s_cmp_lt_u32 {sIt}, 8")
        out.append(f"s_cbranch_scc1 L_G{lb}")
        emit([(Op('s_nop 0', 'x') if (lb and x.tag == 'fastonly') else x) for x in T] + sE, sc, lb)
        if OPT["dbl"]:
            emit(lin(f"""s_waitcnt vmcnt(0)
s_memrealtime s[2:3]
s_waitcnt lgkmcnt(0)
{"s_sub_u32 s4, s2, s73" if OPT["dbl"] == 1 else ("s_mov_b32 s4, 500" if OPT["dbl"] == 2 else "s_mul_i32 s4, s75, 4")}
s_min_u32 s4, s4, 40000
s_mov_b32 s5, s2
L_dbl{lb}:
s_sleep 4
s_memrealtime s[2:3]
s_waitcnt lgkmcnt(0)
s_sub_u32 s6, s2, s5
s_cmp_lt_u32 s6, s4
s_cbranch_scc1 L_dbl{lb}"""))
        out.append("s_endpgm")
        if not lb: out.append("L_codeend:")
        for nm in ("G0", "G1", "G1F", "U"): emit(spin(f"L_spin{nm}{lb}", f"L_back{nm}{lb}", vPr, vPo, srdWS, sPoll, sExp))
    emit(lin(f"""L_spinD:
s_add_u32 s3, s3, 1
s_cmp_gt_u32 s3, 0x10000
s_cbranch_scc1 L_backD
s_lshl_b32 {sTmp}, {sB}, 2
buffer_load_dword {vLane}, off, {srdD}, {sTmp} sc1
s_waitcnt vmcnt(0)
s_branch L_chkD"""))
    out.append("; ---- exact-max fallback for one wave and one head ----")
    emit(slow_path(placed, R2.pendW0))
    out.append(f"""s_endpgm
.section .rodata,"a"
.p2align 6
.amdhsa_kernel {KN}
  .amdhsa_next_free_vgpr 512
  .amdhsa_next_free_sgpr 102
  .amdhsa_accum_offset 256
  .amdhsa_group_segment_fixed_size 0
  .amdhsa_kernarg_size 64
  .amdhsa_user_sgpr_count 2
  .amdhsa_user_sgpr_kernarg_segment_ptr 1
  .amdhsa_system_sgpr_workgroup_id_x 1
.end_amdhsa_kernel""")
    print("\n".join(out))
main()
```

```python
import sys, os, struct, math
sys.path.insert(0, os.path.dirname(os.path.abspath(__file__)))
from sched import *
import ringplan

OPT = dict(stamps=0, nt=1, stress=0, msum=1, tord=0, b0=1, clean=0, stag=0, stagm=0, mapping=48, nodma=0, samekv=0, nored=0, ntw=0, ntx=0, bst=0, lrate=2.5, lburst=4, rsp=8, rk=2, i0=-158, dk=75, ksp=18, wsp=7, gst=4, gld=4, gsig=1, gpoll=108, gsum=8, gdma=40, glc=0, rot=1, gout=189, gdsp=5, lag=1, forceslow=0, ntst=0, pf=128, hrot=9, hswap=1, plan=0, uni=1, fnt=1, ones4=1, gb2=1, pf3=0, wstrict=1, rspw=10, samew=0, samex=0, krot=4, osc=0, idle0=0, idle1=0, exitat=0, wb=0, dbl=0, nperm=1, bdw=2, bda=1, vlate=0, tch=0, gtch=0, kvlate=4, tg=0, etch=0, gl3=1, ftch=1, tlb=0, fsp=2, fkv=6, fgap=3, nobar=0, nolg=0, nods=0, novalu=0)
for a in sys.argv[1:]:
    k, v = a.split("="); assert k in OPT, k; OPT[k] = float(v) if "." in v else int(v)
Region.LDSRATE = OPT["lrate"]; Region.LDSBURST = OPT["lburst"]
KN = "standalone__mha_block_cached__near_ridge_kernel"

def OA(mt, t): return R("v", (mt*3 + t)*4, 4)
def OAr(mt, t, i): return f"v{(mt*3 + t)*4 + i}"
QV0, PV0, S0, FA0 = 96, 144, 192, 204
def QV(s, t): return R("v", QV0 + (s*3 + t)*4, 4)
def QVr(s, t, i): return f"v{QV0 + (s*3 + t)*4 + i}"
def PB(buf, sg, t): return R("v", PV0 + 24*buf + (sg*3 + t)*4, 4)
def PBr(buf, sg, t, i): return f"v{PV0 + 24*buf + (sg*3 + t)*4 + i}"
def OP(s, t): return R("v", PV0 + (s*3 + t)*4, 4)
def OPr(s, t, i): return f"v{PV0 + (s*3 + t)*4 + i}"
def FR(buf, f, half=None):
    b = FA0 + 16*buf + 4*f
    return R("v", b, 4) if half is None else R("v", b + 2*half, 2)
vK = ["v236", "v237", "v238", "v239"]
vVb, vWb, vT = "v240", "v241", ["v242", "v243"]
vDK, vDV, vDW, vDX, vC = "v244", "v245", "v246", "v247", "v248"
vRL = ["v249", "v250", "v251"]
vLane, vDWo, vA, vB = "v252", "v253", "v254", "v255"
def XA(s, t): return R("a", (s*3 + t)*4, 4)
ZB = {0: 144, 1: 192, 2: 0}
def ZA(h, s, t): return R("a", ZB[h] + (s*3 + t)*4, 4)
def LA(t): return R("a", 240 + 4*t, 4)
ONES = "a[252:255]"

srdK, srdV, srdW, srdX, srdWS, srdO, srdD = (f"s[{i}:{i+3}]" for i in (8, 12, 16, 20, 24, 28, 32))
sW1k, sXcc, sRot, sOc = "s36", "s37", "s38", "s39"
sC = ["s40", "s41", "s42"]
sDg = ["s43", "s44", "s45", "s46"]
sIdx = "s99"
sH = ["s93", "s95", "s96", "s97"]; sHr = "s98"; sSw = "s3"
sKoff, sVoff, sWcol = "s47", "s48", "s49"
sD = [None, "s50", "s51", "s52"]
sDY = [None, "s53", "s54", "s55"]
sT = ["s56", "s57", "s58", "s59"]
sW4k, sHead, sScale, sWave, sB, sG, sLo, sHi = (f"s{i}" for i in range(60, 68))
sBad = "s[84:85]"
sN = [f"s{i}" for i in range(86, 92)]
sTmp = "s100"
sIt, sSt, sSig, sExp, sLd, sLd2, sOut = (f"s{i}" for i in range(86, 93))
sStR, sLdR, sFlR, sOutR, sSlM, sLdMin, sGate = (f"s{i}" for i in range(68, 75))
sPoll = sSig; sPo = "s99"; sTk, sTh, sTo = "s43", "s44", "s45"
sU = ["s4", "s5"]; sMask = "s6"
OOB = 0x40000000
FLAG_BASE = 0x3040000
STAMP_BASE = 0x3100000
DUMP_BASE = 0x4000000
WS_BYTES = 0x20000000 if OPT["stress"] else (0x8000000 if OPT["bst"] else 0x3200000)
CHUNK = 196608
ORD = [(0,0),(0,1),(0,2),(1,0),(0,3),(1,3),(1,1),(1,2)]
ORDG = [(j >> 2, j & 3) for j in range(8)]
NTKV = {"K": " nt" if OPT["nt"] in (1, 2) else "", "V": " nt" if OPT["nt"] in (1, 3) else ""}
NTW = " nt" if OPT["ntw"] else ""
NTX = " nt" if OPT["ntx"] else ""
def wq_lit(step): return ORD[step][1]*0x100000 + ORD[step][0]*128
def wo_lit(m): return (m & 3)*0x20000 + (m >> 2)*128

def S(text, rd=(), wr=(), **kw): return Op(text, "s", rd=rd, wr=wr, **kw)
def V(text, rd=(), wr=(), **kw): return Op(text, "v4", rd=rd, wr=wr, **kw)
def V8(text, rd=(), wr=(), **kw): return Op(text, "v8", rd=rd, wr=wr, **kw)
def WAIT(d, need_ds=(), need_vm=(), lg0=False, late=3, e=-1):
    o = Op("s_waitcnt ?", "w", e=e, d=d, late=late, deps=[(x, 1) for x in need_ds])
    o.need_ds, o.need_vm, o.lg0 = list(need_ds), list(need_vm), lg0
    return o
def lin(text):
    return [Op(l.strip(), "x") for l in text.strip().split("\n") if l.strip()]

class Ctx: pass
C = Ctx(); C.grp = 0

ringplan.setb(OPT["bdw"], OPT["bda"]); BDW, BDA = OPT["bdw"], OPT["bda"]
wI = {"W0": -210, "W1": -135, "W2": -55, "W3": 36 + BDW, "W4": 78, "W5": 112, "W6": 162, "W7": 186}
xI = {"Xa": -430, "Xb": -350, "Xc": -280}
PLANS = {
 8: {'Xa': -430, 'Xb': -350, 'Xc': -280, 'W0': -210, 'W1': -135, 'W2': -58, 'W3': 38, 'W4': 80, 'W5': 115, 'W6': 150, 'W7': 190, 'K0': -198, 'K1': -130, 'V0': -62, 'K2': 38, 'V1': 104, 'K3': 172, 'V2': 290, 'K4': 361, 'V3': 432, 'K5': 503, 'V4': 574, 'K6': 645, 'V5': 716, 'K7': 787, 'V6': 858, 'V7': 930},
 7: {'Xa': -430, 'Xb': -350, 'Xc': -280, 'W0': -210, 'W1': -135, 'W2': -58, 'W3': 38, 'W4': 80, 'W5': 110, 'W6': 162, 'W7': 186, 'K0': -167, 'K1': -93, 'V0': -19, 'K2': 58, 'V1': 136, 'K3': 214, 'V2': 290, 'K4': 365, 'V3': 439, 'K5': 513, 'V4': 587, 'K6': 661, 'V5': 735, 'K7': 809, 'V6': 884, 'V7': 959},
 5: {'Xa': -430, 'Xb': -350, 'Xc': -280, 'W0': -210, 'W1': -135, 'W2': -55, 'W3': 38, 'W4': 78, 'W5': 112, 'W6': 162, 'W7': 186, 'K0': -170, 'K1': -95, 'V0': -20, 'K2': 55, 'V1': 140, 'K3': 290, 'V2': 345, 'K4': 400, 'V3': 460, 'K5': 525, 'V4': 590, 'K6': 660, 'V5': 730, 'K7': 805, 'V6': 880, 'V7': 955},
 6: {'Xa': -430, 'Xb': -350, 'Xc': -280, 'W0': -210, 'W1': -135, 'W2': -55, 'W3': 38, 'W4': 78, 'W5': 112, 'W6': 162, 'W7': 186, 'K0': -170, 'K1': -95, 'V0': -20, 'K2': 135, 'V1': 290, 'K3': 335, 'V2': 385, 'K4': 435, 'V3': 490, 'K5': 545, 'V4': 605, 'K6': 665, 'V5': 730, 'K7': 805, 'V6': 880, 'V7': 955},
 3: {'Xa': -514, 'Xb': -444, 'Xc': -297, 'W0': -229, 'W1': -155, 'W2': -63, 'W3': 8, 'W4': 38, 'W5': 82, 'W6': 110, 'W7': 180, 'K0': -187, 'K1': -112, 'V0': -38, 'K2': 58, 'V1': 141, 'K3': 216, 'V2': 290, 'K4': 364, 'V3': 436, 'K5': 507, 'V4': 579, 'K6': 651, 'V5': 721, 'K7': 794, 'V6': 863, 'V7': 940},
 4: {'Xa': -514, 'Xb': -444, 'Xc': -297, 'W0': -229, 'W1': -155, 'W2': -63, 'W3': 8, 'W4': 38, 'W5': 82, 'W6': 110, 'W7': 180, 'K0': -180, 'K1': -108, 'V0': -36, 'K2': 58, 'V1': 141, 'K3': 216, 'V2': 290, 'K4': 364, 'V3': 438, 'K5': 512, 'V4': 586, 'K6': 660, 'V5': 734, 'K7': 808, 'V6': 878, 'V7': 950},
 1: {'Xa': -510, 'Xb': -430, 'Xc': -352, 'W0': -205, 'W1': -106, 'W2': -26, 'W3': 5, 'W4': 37, 'W5': 98, 'W6': 161, 'W7': 190, 'K0': -243, 'K1': -157, 'V0': -60, 'K2': 64, 'V1': 130, 'K3': 221, 'V2': 290, 'K4': 354, 'V3': 415, 'K5': 477, 'V4': 593, 'K6': 533, 'V5': 650, 'K7': 728, 'V6': 809, 'V7': 894},
 2: {'Xa': -496, 'Xb': -413, 'Xc': -333, 'W0': -252, 'W1': -103, 'W2': -30, 'W3': 5, 'W4': 38, 'W5': 99, 'W6': 130, 'W7': 188, 'K0': -210, 'K1': -148, 'V0': -54, 'K2': 67, 'V1': 155, 'K3': 221, 'V2': 291, 'K4': 349, 'V3': 409, 'K5': 473, 'V4': 534, 'K6': 598, 'V5': 662, 'K7': 829, 'V6': 747, 'V7': 904},
}
if OPT["plan"] == 9: wI = {"W0": -210, "W1": -135, "W2": -60, "W3": 6, "W4": 38, "W5": 80, "W6": 110, "W7": 150}
elif OPT["plan"] in (11, 12):
    wI.update(dict(zip(ringplan.KV, {11: [-135, -55, 25, 105, 180, 245, 300, 352, 404, 482, 564, 646, 728, 810, 892, 978],
                                     12: [-150, -72, 6, 84, 160, 228, 292, 354, 420, 498, 577, 656, 735, 814, 893, 972]}[OPT["plan"]])))
elif OPT["plan"] == 10: wI = {"W0": -215, "W1": -145, "W2": -75, "W3": 6, "W4": 38, "W5": 70, "W6": 104, "W7": 140}
elif OPT["plan"]: wI = PLANS[OPT["plan"]]; xI = {}
ISS, SLOT, _c, NEED = ringplan.plan(OPT["i0"], OPT["dk"], wI, xI)
assert SLOT is not None
SPR = {}; TIMES = {}
for t in ISS:
    m = ISS[t] % 1200
    sp = OPT["ksp"] if t[0] in "KV" else OPT["wsp"]
    if OPT["uni"] and t[0] in "KV":
        gap_ = min((ISS[u] - ISS[t] - 1) % 1200 + 1 for u in ISS if u[0] in "KV")
        ts_ = [ISS[t] + (gap_*i + 2)//4 for i in range(4)]
        for i in range(4):
            for edge in (0, 240, 288, 1200):
                if edge - 4 <= ts_[i] < edge + 2: ts_[i] = edge + 2
        TIMES[t] = ts_; continue
    if 228 <= m < 288: ISS[t] += 290 - m; m = 290
    SPR[t] = min(sp, ((240 if m < 288 else 1200) - 5 - m)//3); assert SPR[t] >= 1
    TIMES[t] = [ISS[t] + SPR[t]*i for i in range(4)]
BASE = {}
for ch in "KVW":
    for i, b in enumerate(ringplan.bases([SLOT[f"{ch}{i}"] for i in range(8)])[1]): BASE[f"{ch}{i}"] = b
XB = min(SLOT["Xa"], SLOT["Xb"], SLOT["Xc"]); assert max(SLOT["Xa"], SLOT["Xb"], SLOT["Xc"]) - XB <= 3
NEXT = sorted([t for t in ISS if ISS[t] < 0 and t[0] in "WX"], key=lambda t: (t != "W0", ISS[t]))
print("plan:", ISS, SLOT, BASE, NEXT, file=sys.stderr)
TILE = {}
def lit(x): return hex(x & 0xffffffff)
def rebase(rg, typ, old, new, e, d, after=()):
    if old == new: return []
    regs_ = vK if typ == "K" else [vVb if typ == "V" else vWb]
    return [rg.F(V(f"v_add_u32 {r}, {lit((new - old)*16384)}, {r}", rd=[r], wr=[r], e=e, d=d, deps=[(a, 0) for a in after if a])) for r in regs_]
def wq_t0(dst, step):
    hf, dg = ORD[step]
    return [f"s_add_u32 {dst}, {sWcol}, {sDg[dg]}"] + ([f"s_xor_b32 {dst}, {dst}, 128"] if hf else [])
def x_t0(dst, a, q):
    return [f"s_lshr_b32 {dst}, {sDg[q]}, 12"] + ([f"s_add_u32 {dst}, {dst}, {a*65536}"] if a else [])
def tile_src(spec):
    k = spec[0]
    if k == "W": return srdW, vDW, wq_t0(sT[0], spec[1]), sD, NTW
    if k == "C": return srdW, vDW, [f"s_add_u32 {sT[0]}, {sC[spec[1]]}, {sH[spec[2]]}"], sD, NTW
    if k == "N": return srdW, vDW, [f"s_mov_b32 {sT[0]}, {sN[spec[1]]}"], sD, NTW
    if k == "Y": return srdX, vDX, [f"s_mov_b32 {sT[0]}, {sN[spec[1]]}"], sDY, NTX
    if k == "X": return srdX, vDX, x_t0(sT[0], spec[1], spec[2]), sDY, NTX
def add_dmas(rg, items):
    ev = []
    for (name, spec, slot, e, sp, bar) in items:
        for i, t in (sp if isinstance(sp, list) else [(i, e + sp*i) for i in range(4)]): ev.append((t, e, i, name, spec, slot, bar))
    ev.sort(key=lambda x: (x[0], x[1]))
    prev = None; cur = None; wopen = None; ts = None; lastw = None; m0 = None
    for (t, e0, i, name, spec, slot, bar) in ev:
        deps = []
        if bar is not None: deps.append((bar, 0))
        if prev is not None: deps.append((prev, 1))
        if cur != slot:
            m0 = rg.F(Op(f"s_add_u32 m0, {sW4k}, {slot*16384}", "t", wr=["m0"], e=t - 6, deps=([(prev, 1)] if prev else []))); cur = slot
        deps.append((m0, 1))
        if spec[0] in "KV":
            so, vo, srd = (sKoff, vDK, srdK) if spec[0] == "K" else (sVoff, vDV, srdV)
            st = rg.inc.get(spec[0])
            if st is not None and i == 0: deps.append((st, 0))
            o = rg.F(Op(f"buffer_load_dwordx4 {vo}, {srd}, {so} offen offset:{i*1024}{NTKV[spec[0]] if (rg.name != 'R1f' or OPT['fnt']) else ''} lds", "vm", rd=[vo, so, "m0"], e=t, d=t + 4, deps=deps))
            if i == 3:
                inc = rg.F(Op(f"s_add_u32 {so}, {so}, 0x4000", "t", rd=[so], wr=[so], deps=[(o, 1)], d=t + 12))
                if name[1] == "7":
                    inc = rg.F(Op(f"s_and_b32 {so}, {so}, 0x7ffff", "t", rd=[so], wr=[so], deps=[(inc, 0)], d=t + 14))
                    nr = "s10" if name[0] == "K" else "s14"
                    rg.F(S(f"s_cmp_eq_u32 {sHead}, 3", deps=[(o, 1)])); inc2 = rg.F(S(f"s_cselect_b32 {nr}, 0, {nr}", d=t + 20))
                rg.inc[spec[0]] = inc
        else:
            srd, vo, t0, dl, fl = tile_src(spec)
            if i == 0:
                assert wopen is None, "W-type tiles may not interleave"
                wopen = name
                tt = rg.F(Op(t0[0], "t", wr=[sT[0]], e=t - 12, deps=([(lastw, 1)] if lastw else [])))
                for x in t0[1:]: tt = rg.F(Op(x, "t", wr=[sT[0]], deps=[(tt, 0)]))
                ts = [tt]
                ts += [rg.F(Op(f"s_add_u32 {sT[j]}, {sT[0]}, {dl[j]}", "t", wr=[sT[j]], deps=[(ts[0], 0)])) for j in (1, 2, 3)]
            o = rg.F(Op(f"buffer_load_dwordx4 {vo}, {srd}, {sT[i]} offen offset:{i*1024}{fl} lds", "vm", rd=[vo, sT[i], "m0"], e=t, d=t + 4, deps=deps + [(ts[i], 0)]))
            if i == 3: wopen = None; lastw = o
        if i == 3: TILE.setdefault(name, []).append(o)
        if i == 0: rg.first_dma[name] = o
        prev = o
    rg.lastw = lastw
def head_dmas(rg, lo, hi):
    items = []
    for t in ISS:
        mine = [(i, x % 1200 - lo) for i, x in enumerate(TIMES[t]) if lo <= x % 1200 < hi]
        if not mine: continue
        m = ISS[t] % 1200
        spec = (t[0],) if t[0] in "KV" else (("W", int(t[1])) if ISS[t] >= 0 else (("N" if t[0] == "W" else "Y"), NEXT.index(t)))
        cands = [g for g in rg.bars if g + lo <= m and any(SLOT[p] == SLOT[t] and NEED[p][1] % 1200 == g + lo for p in NEED)] if mine[0][0] == 0 else []
        bar = rg.bars[max(cands)] if cands else None
        items.append((t, spec, SLOT[t], mine[0][1], mine, bar))
    if OPT["stress"]:
        for g in range(lo + 20, hi - 12, OPT["stress"]):
            o = rg.F(Op(f"buffer_load_dword a241, {vDK}, {srdWS}, s75 offen nt", "vm", e=g - lo, d=g - lo + 6))
            rg.F(Op("s_add_u32 s75, s75, 0x1000", "t", deps=[(o, 1)], d=g - lo + 10))
    add_dmas(rg, items)
def dma_linear(name, spec, slot):
    ops = lin(f"s_add_u32 m0, {sW4k}, {slot*16384}")
    if spec[0] in "KV":
        so, vo, srd = (sKoff, vDK, srdK) if spec[0] == "K" else (sVoff, vDV, srdV)
        d = [Op(f"buffer_load_dwordx4 {vo}, {srd}, {so} offen offset:{i*1024}{NTKV[spec[0]]} lds", "vm") for i in range(4)]
        ops += lin("s_nop 0") + d + lin(f"s_add_u32 {so}, {so}, 0x4000")
    else:
        srd, vo, t0, dl, fl = tile_src(spec)
        d = [Op(f"buffer_load_dwordx4 {vo}, {srd}, {sT[i]} offen offset:{i*1024}{fl} lds", "vm") for i in range(4)]
        ops += lin("\n".join(t0) + "\n" + "\n".join(f"s_add_u32 {sT[i]}, {sT[0]}, {dl[i]}" for i in (1, 2, 3))) + d
    TILE.setdefault(name, []).append(d[-1])
    return ops
def reads_X(rg, addr, slots, dst, e, d, deps, step=1):
    ops = []
    for t in range(3):
        for s in range(4):
            r_, imm = addr(slots[t], s)
            ops.append(rg.F(Op(f"ds_read_b128 {dst(s, t)}, {r_} offset:{imm}", "ds", rd=[r_], wr=[dst(s, t)], e=e, d=d + len(ops)*step,
                               deps=list(deps) + ([(ops[-1], 0)] if ops else []))))
    return ops

def new_region(name):
    rg = Region(name); rg.nst = {"R1": 0, "R1f": 0, "R2": 6, "G": 0, "G0": 0}.get(name, 5)
    ext_waits(rg)
    if OPT['wstrict']: rg.ldspol = (lambda k: (4, 3)) if name != 'R2' else (lambda k: (4, 3) if k < 90 else (OPT['lrate'], OPT['lburst']))
    rg.tuse = {0: [], 1: []}; rg.bars = {}; rg.inc = {}; rg.first_dma = {}; rg.wq = bool(OPT["nperm"]) and name[0] != "G"
    return rg

def xor_addr(rg, base, k, ti, e, d, after=()):
    if k == 0: return base, None
    deps = [(x, 0) for x in rg.tuse[ti]] + [(a, 0) for a in after]
    o = rg.F(V(f"v_xor_b32 {vT[ti]}, {k*32}, {base}", rd=[base], wr=[vT[ti]], e=e, d=d, deps=deps))
    rg.tuse[ti] = []
    return vT[ti], o
def reads_W(rg, so, mt, buf, e, deps=(), ups=(), rsp=None):
    if rg.wq:
        if mt == 2: a, xo = xor_addr(rg, vWb, 2, 0, e - 8, e, ups)
        else: a, xo = (vWb if mt < 2 else vT[0]), None
        so += 8*(mt & 1)
    else: a, xo = xor_addr(rg, vWb, mt, mt & 1, e - 8, e, ups)
    dp = list(deps) + ([(xo, 1)] if xo else [(u, 1) for u in ups])
    ops = []
    for s in range(4):
        for p in range(2):
            ops.append(rg.F(Op(f"ds_read_b64_tr_b16 {FR(buf, s, p)}, {a} offset:{so + s*4096 + p*2048}", "ds", rd=[a], wr=[FR(buf, s, p)],
                               e=e, d=min(e + 1 + len(ops)*(rsp or OPT['rspw' if OPT['wstrict'] else 'rsp'])//8, e + 9), deps=dp + ([(ops[-1], 0)] if ops else []))))
    if rg.wq:
        if mt >= 2: rg.tuse[0] = ops
    elif xo: rg.tuse[mt & 1] = ops
    rg.lastWr = ops
    return ops, xo
def reads_K(rg, so, u, buf, e, deps=(), ups=()):
    ops = []
    for s in range(4):
        ops.append(rg.F(Op(f"ds_read_b128 {FR(buf, s)}, {vK[s]} offset:{so + u*1024}", "ds", rd=[vK[s]], wr=[FR(buf, s)],
                           e=e, d=e + 3 + len(ops)*OPT['rk'], deps=list(deps) + [(x, 1) for x in ups] + ([(ops[-1], 0)] if ops else []))))
    return ops
def reads_V(rg, so, dp_, buf, e, deps=(), ups=(), late=0):
    ops = []; xs = []
    for k in range(2):
        dt = 2*dp_ + k
        a, xo = xor_addr(rg, vVb, dt, k, e - 10, e + 4*k, ups)
        if xo: xs.append(xo)
        dd = list(deps) + ([(xo, 1)] if xo else [(u, 1) for u in ups])
        mine = []
        for sg in range(2):
            for p in range(2):
                o = rg.F(Op(f"ds_read_b64_tr_b16 {FR(buf, 2*k + sg, p)}, {a} offset:{so + sg*2048 + p*1024}", "ds", rd=[a], wr=[FR(buf, 2*k + sg, p)],
                            e=e, d=(e + 2 + len(ops)*OPT['rsp']//8) if not late else (e + 3 + 2*len(ops) if k == 0 else e + 5 + (len(ops)*5)//4), deps=dd + ([(ops[-1], 0)] if ops else [])))
                ops.append(o); mine.append(o)
        if xo: rg.tuse[k] = mine
    return ops, xs

def barrier(rg, gap, last_reads, tiles, extra=(), lg0=True, st=True):
    w = rg.F(WAIT(gap - 1, need_ds=last_reads, need_vm=list(tiles) + list(extra), lg0=lg0, late=1))
    w.deps += [(x, 1) for x in extra if x in rg.fill]
    b = rg.F(Op("s_barrier", "w", e=gap, d=gap, deps=[(w, 1)])); rg.bars[gap] = b
    if OPT["bst"] and st:
        w.pre = "s_memtime s[2:3]"
        i = rg.nst; rg.nst += 1
        rg.F(V(f"v_writelane_b32 {vLane}, s2, {i}", e=gap + 1, d=gap + 8))
    return b
def xstamp(rg, gap, idx, dep):
    if OPT["bst"] < 2: return
    w = rg.F(Op("s_memtime s[2:3]\ns_waitcnt lgkmcnt(0)", "w", e=gap, d=gap, deps=[(dep, 1)]))
    rg.F(V(f"v_writelane_b32 {vLane}, s2, {idx}", deps=[(w, 0)], d=gap))
def ext_waits(rg):
    rg.xw = []
    for d in (-1, 1):
        w = WAIT(d, late=1); w.e = d; rg.F(w); rg.xw.append(w)
def bind_ext(rg, preds):
    rg.xw[0].alt_ds = [p[:4] for p in preds]; rg.xw[1].alt_ds = list(preds)
def frag_waits(rg, rd_ops, first_use, n_first, second_use, only_first=False):
    if rd_ops is None: return
    rg.F(WAIT(first_use - 1, need_ds=rd_ops[:n_first], late=2))
    if n_first < len(rd_ops) and not only_first: rg.F(WAIT(second_use - 1, need_ds=rd_ops, late=1))

def so_(sb): return (sb[0] - sb[1])*16384
def w_step(rg, half, zero, Bop, pend, cur, nxt, need, extra=(), more_reads=(), xwait=None, post=None, nobar=False):
    b0 = rg.n(); info = dict(b0=b0); xlast = None
    if xwait:
        for t in range(3): rg.F(WAIT(b0 + 4*t - 1, need_ds=xwait[:4*t + 4], late=1))
        info["xbar"] = barrier(rg, b0 + 10, xwait, (), lg0=False, st=False)
    for mt in range(4):
        buf = C.grp & 1; C.grp += 1
        g0 = b0 + 12*mt
        if pend is not None and (mt < 3 or BDW): frag_waits(rg, pend, g0, 4, g0 + 2, only_first=(mt == 3 and not nobar))
        for t in range(3):
            for s in range(4):
                acc = OA(4*half + mt, t)
                rg.M(mfma(acc, FR(buf, s), Bop(s, t), "0" if (zero and s == 0) else acc))
        if mt < 3:
            pend, xo = reads_W(rg, so_(cur[1:3]), mt + 1, buf ^ 1, g0 - 1 if (mt or b0) else g0)
            if xo: xlast = xo
            if mt == 0 and rg.wq: base_users = pend
            if mt == 2: bar = None if nobar else barrier(rg, g0 + 11 + BDW, pend + list(more_reads), need, extra)
        else:
            ups = rebase(rg, nxt[0], nxt[3], nxt[2], b0 + 20, g0 - 2, after=([xlast] + (base_users if rg.wq else [])) if nxt[0] == "W" else [])
            if nxt[0] == "W": pend, _ = reads_W(rg, so_(nxt[1:3]), 0, buf ^ 1, g0 - 1 + (0 if nobar else BDW), deps=([] if nobar else [(bar, 0)]), ups=ups, rsp=(4 if post else None))
            else: pend = reads_K(rg, so_(nxt[1:3]), 0, buf ^ 1, g0 - 1 + BDW, deps=[(bar, 0)], ups=ups)
            if post: info["post"] = post(g0, bar)
    info["bar"] = bar; info["end"] = rg.n() - 1
    return pend, info
def TS(name, prev=None):
    k, i = name[0], int(name[1])
    return (k, SLOT[name], BASE[name], BASE[f"{k}{(i - 1) % 8}"])

def softmax(rg, g0, u, Sr, pbuf, d_over, d_puse):
    sg = u >> 1
    for t in range(3):
        last = rg.mf[g0 + 4*t + 3]
        dl = min(d_over(t), d_puse(t) - 3)
        ex = [rg.F(V8(f"v_exp_f32 {Sr(t,i)}, {Sr(t,i)}", rd=[Sr(t,i)], wr=[Sr(t,i)], e=last.gap, sdeps=[(last, 8)], trans=True)) for i in range(4)]
        for j in range(2):
            dst = PBr(pbuf, sg, t, 2*(u & 1) + j)
            rg.F(V(f"v_cvt_pk_bf16_f32 {dst}, {Sr(t,2*j)}, {Sr(t,2*j+1)}", rd=[Sr(t,2*j), Sr(t,2*j+1)], wr=[dst], d=dl,
                   sdeps=[(ex[2*j], 1), (ex[2*j+1], 1)]))
def k_mfmas(rg, buf, Sd):
    for t in range(3):
        for s in range(4):
            rg.M(mfma(Sd(t), FR(buf, s), QV(s, t), "0" if s == 0 else Sd(t)))
def v_mfmas(rg, dp_, buf, pbuf, zero, tmajor=False):
    order = [(k, t) for t in range(3) for k in range(2)] if tmajor else [(k, t) for k in range(2) for t in range(3)]
    last = {}
    for k, t in order:
        for sg in range(2):
            acc = OA(2*dp_ + k, t)
            last[(2*dp_ + k, t)] = rg.M(mfma(acc, FR(buf, 2*k + sg), PB(pbuf, sg, t), "0" if (zero and sg == 0) else acc))
    return last
def sum_mfmas(rg, t, pbuf, zero):
    for sg in range(2):
        o = rg.M(mfma(LA(t), ONES, PB(pbuf, sg, t), "0" if (zero and sg == 0) else LA(t)))
    return o
def o_epilogue_ops(dt, t):
    mul = [V(f"v_mul_f32 {OAr(dt,t,i)}, {vRL[t]}, {OAr(dt,t,i)}", rd=[OAr(dt,t,i), vRL[t]], wr=[OAr(dt,t,i)]) for i in range(4)]
    cvt = []
    for j in range(2):
        dst = OPr(dt >> 1, t, 2*(dt & 1) + j)
        cvt.append(V(f"v_cvt_pk_bf16_f32 {dst}, {OAr(dt,t,2*j)}, {OAr(dt,t,2*j+1)}", rd=[OAr(dt,t,2*j), OAr(dt,t,2*j+1)], wr=[dst],
                     deps=[(mul[2*j], 0), (mul[2*j+1], 0)]))
    for o in mul + cvt: o.ot = (dt, t)
    return mul, cvt
def q_muls(rg, mt, t, last, **kw):
    return [rg.F(V(f"v_mul_f32 {OAr(mt,t,i)}, {sScale}, {OAr(mt,t,i)}", rd=[OAr(mt,t,i)], wr=[OAr(mt,t,i)],
                   e=(last.gap if last is not None else -1), sdeps=([(last, 8)] if last is not None else []), **kw)) for i in range(4)]
def q_epilogue(rg, sp, t, lastA, lastB, d_use, muls=True):
    cv = []
    for k, last in ((0, lastA), (1, lastB)):
        mt = 2*sp + k
        mul = q_muls(rg, mt, t, last) if muls else None
        for j in range(2):
            dst = QVr(sp, t, 2*k + j)
            cv.append(rg.F(V(f"v_cvt_pk_bf16_f32 {dst}, {OAr(mt,t,2*j)}, {OAr(mt,t,2*j+1)}", rd=[OAr(mt,t,2*j), OAr(mt,t,2*j+1)], wr=[dst],
                             deps=([(mul[2*j], 0), (mul[2*j+1], 0)] if muls else []))))
    if OPT["nperm"]:
        for o in cv: o.d = d_use - 3
        return
    for j in range(2):
        a, b = QVr(sp, t, j), QVr(sp, t, 2 + j)
        p1 = rg.F(V8(f"v_permlane32_swap_b32 {a}, {b}", rd=[a, b], wr=[a, b], sdeps=[(cv[j], 2), (cv[2+j], 2)]))
        rg.F(V8(f"v_permlane16_swap_b32 {a}, {b}", rd=[a, b], wr=[a, b], sdeps=[(p1, 2)], d=d_use - 3))

def BopQ(st):
    dg = ORD[st][1]
    return (lambda s, t: XA(4*dg + s, t)) if dg < 3 else (lambda s, t: QV(s, t))

def build_R2():
    rg = new_region("R2")
    C.grp = 24
    pend, i6 = w_step(rg, ORD[6][0], False, BopQ(6), None, TS("W6"), TS("W7"), ["W7"])
    pend, i7 = w_step(rg, ORD[7][0], False, BopQ(7), pend, TS("W7"), TS("K0"), ["K0"])
    a0 = rg.n(); b7 = i7["b0"]
    for sp in (0, 1):
        for t in range(3): q_epilogue(rg, sp, t, None, None, min(a0 + 4*t + sp, 20 + (sp*3 + t)*9), muls=True)
    for sp in (2, 3):
        for t in range(3):
            mA, mB = 2*sp - 4, 2*sp - 3
            q_epilogue(rg, sp, t, rg.mf[b7 + 12*mA + 4*t + 3], rg.mf[b7 + 12*mB + 4*t + 3], a0 + 4*t + sp)
    B = lambda i: a0 + 48 + 102*i
    def layout(i):
        order = ["KVKVKVKV", "KKVKVKVV", "KKKVKVVV", "KKKKVVVV"][OPT["b0"] if i == 0 else 0]
        res = []; off = 0; n = {"K": 0, "V": 0}
        for ch in order:
            res.append((ch, n[ch], off)); off += 12 + (2 if (ch == "V" and n[ch] < 3) else 0); n[ch] += 1
        return res
    def puse(i, sg, t): return (B(i) + [o for (k, j, o) in layout(i) if k == "V"][0] + 2*t + sg) if i < 7 else (B(7) + 4*t + sg)
    def so(n): return so_(TS(n)[1:3])
    def rb(n, e, d, after=()): x = TS(n); return rebase(rg, x[0], x[3], x[2], e, d, after)
    for u in range(4):
        buf = C.grp & 1; C.grp += 1; g0 = rg.n()
        if u < 3 or BDW: frag_waits(rg, pend, g0, 2, g0 + 2, only_first=(u == 3))
        k_mfmas(rg, buf, lambda t: OA(u, t))
        softmax(rg, g0, u, lambda t, i: OAr(u, t, i), 0, lambda t: 10**9, lambda t: puse(0, u >> 1, t))
        if u < 3:
            pend = reads_K(rg, so("K0"), u + 1, buf ^ 1, g0 - 1)
            if u == 2: bar = barrier(rg, g0 + 11 + BDW, pend, ["K1", "V0"]); lastK = pend
        else:
            ups = rb("K1", g0 - 12, g0 - 2, lastK)
            pend = reads_K(rg, so("K1"), 0, buf ^ 1, g0 - 1 + BDW, deps=[(bar, 0)], ups=ups)
            upsV = rb("V0", -1, g0)
    for i in range(7):
        b0 = rg.n(); assert b0 == B(i)
        lay = layout(i); usedV = False; tmp = 7
        for n_, (kind, u, off) in enumerate(lay):
            buf = C.grp & 1; C.grp += 1; g0 = rg.n(); assert g0 == b0 + off
            last = n_ == 7
            if kind == "K":
                frag_waits(rg, pend, g0, 2, g0 + 2)
                if lay[n_ + 1][0] == "K":
                    dt = tmp; tmp -= 1
                    vstart = b0 + [o for (k, j, o) in lay if k == "V" and j == dt >> 1][0]
                    Sd = (lambda dt: lambda t: OA(dt, t))(dt); Sr = (lambda dt: lambda t, j: OAr(dt, t, j))(dt)
                    dov = (lambda v, dt: lambda t: v + 6*(dt & 1) + 2*t - 1)(vstart, dt)
                else:
                    Sd = lambda t: R("v", S0 + 4*t, 4); Sr = lambda t, j: f"v{S0 + 4*t + j}"
                    later = [b0 + o for m_, (k, j, o) in enumerate(lay) if k == "K" and j > u and lay[m_ + 1][0] != "K"]
                    nxtK = later[0] if later else (B(i+1) if i < 6 else None)
                    dov = (lambda x: lambda t: x + 4*t - 1)(nxtK) if nxtK else (lambda t: 10**9)
                k_mfmas(rg, buf, Sd)
                softmax(rg, g0, u, Sr, (i + 1) & 1, dov, (lambda u: lambda t: puse(i + 1, u >> 1, t))(u))
            else:
                if not last or BDA: frag_waits(rg, pend, g0, 4, g0 + 6, only_first=last)
                v_mfmas(rg, u, buf, i & 1, i == 0)
                if u < 3: sum_mfmas(rg, u, i & 1, i == 0)
            if not last:
                nk, nu, _ = lay[n_ + 1]
                if nk == "K":
                    pend = reads_K(rg, so(f"K{i+1}"), nu, buf ^ 1, g0 - 1)
                    if nu == 3: lastK = pend
                else:
                    pend, xs = reads_V(rg, so(f"V{i}"), nu, buf ^ 1, g0 - 1, ups=(upsV if nu == 0 else ()), late=(OPT["vlate"] if nu < 3 else 0))
                    if nu == 3: bar = barrier(rg, b0 + 89 + BDA, pend, [f"K{i+2}", f"V{i+1}"] if i < 6 else ["V7"]); lastX = xs
            elif i < 6:
                ups = rb(f"K{i+2}", g0 - 20, g0 - 2, lastK)
                pend = reads_K(rg, so(f"K{i+2}"), 0, buf ^ 1, g0 - 1 + BDA, deps=[(bar, 0)], ups=ups)
                upsV = rb(f"V{i+1}", g0 - 10, g0 + 4, lastX)
            else:
                upsV = rb("V7", g0 - 10, g0 - 2, lastX)
                pend, _ = reads_V(rg, so("V7"), 0, buf ^ 1, g0 - 1 + BDA, late=0, deps=[(bar, 0)], ups=upsV)
    E = rg.n(); assert E == B(7)
    epi = []
    for p in range(4):
        buf = C.grp & 1; C.grp += 1; g0 = rg.n()
        if p == 0: frag_waits(rg, pend, g0, 4, g0 + 2)
        elif p < 3 or BDW: frag_waits(rg, pend, g0, 4, g0 + 6, only_first=(p == 3))
        last = v_mfmas(rg, p, buf, 1, False, tmajor=(p == 0))
        if p == 0:
            rl = []; lr = []
            for t in range(3):
                ls = sum_mfmas(rg, t, 1, False)
                lr.append(rg.F(V(f"v_accvgpr_read_b32 {vRL[t]}, a{240+4*t}", rd=[f"a{240+4*t}"], wr=[vRL[t]], e=ls.gap, sdeps=[(ls, 8)], d=E + 28)))
            mn = rg.F(V(f"v_min3_f32 {vA}, {vRL[0]}, {vRL[1]}, {vRL[2]}", rd=vRL, wr=[vA], deps=[(x, 0) for x in lr], d=E + 30))
            mx = rg.F(V(f"v_max3_f32 {vB}, {vRL[0]}, {vRL[1]}, {vRL[2]}", rd=vRL, wr=[vB], deps=[(x, 0) for x in lr], d=E + 30))
            rg.F(V(f"v_cmp_gt_f32 {sBad}, {sLo}, {vA}", rd=[vA], wr=[sBad], deps=[(mn, 0)], d=E + 40))
            rg.F(V(f"v_cmp_lt_f32 vcc, {sHi}, {vB}", rd=[vB], wr=["vcc"], deps=[(mx, 0)], d=E + 40))
            for t in range(3):
                rl.append(rg.F(V8(f"v_rcp_f32 {vRL[t]}, {vRL[t]}", rd=[vRL[t]], wr=[vRL[t]], deps=[(mn, 0), (mx, 0)], trans=True, d=E + 34)))
        for (dt, t), lm in last.items():
            mul, cvt = o_epilogue_ops(dt, t)
            for o in mul: o.e = lm.gap; o.sdeps = [(lm, 8), (rl[t], 1)]
            for o in mul + cvt:
                o.optional = True
                if dt >= 4 and o in cvt: o.e = 10**9
                rg.F(o); epi.append(o)
        if p < 3:
            pend, xs = reads_V(rg, so("V7"), p + 1, buf ^ 1, g0 - 1 if p != 0 else g0 + 3)
            if p == 2: bar = barrier(rg, g0 + 11 + BDW, pend, ["W0", "Xa", "Xb", "Xc"])
        else:
            ups = rb("W0", -1, g0 - 2, [])
            for o in ups: o.e = a0
            if OPT["nperm"]: ups = ups + [rg.F(V(f"v_mad_i32_i24 {vWb}, {vC}, {sGate}, {vWb}", rd=[vC, vWb], wr=[vWb], e=a0, d=g0 - 4))]
            pend, _ = reads_W(rg, so("W0"), 0, buf ^ 1, g0 - 1 + BDW, deps=[(bar, 0)], ups=ups, rsp=8)
    assert sorted(g + 288 for g in rg.bars) == ringplan.bS[6:] + [ringplan.bQ] + ringplan.bB + [ringplan.bP]
    if OPT["pf3"]:
        g = OPT["pf3"]
        c1 = rg.F(V(f"v_mbcnt_lo_u32_b32 {vA}, -1, 0", wr=[vA], e=g - 30, d=g - 3))
        c2 = rg.F(V(f"v_mbcnt_hi_u32_b32 {vA}, -1, {vA}", rd=[vA], wr=[vA], deps=[(c1, 0)], d=g - 2))
        c3 = rg.F(V(f"v_lshlrev_b32 {vA}, 7, {vA}", rd=[vA], wr=[vA], deps=[(c2, 0)], d=g - 1))
        rg.F(Op(f"buffer_load_dword {vB}, {vA}, s[76:79], s75 offen", "vm", rd=[vA], wr=[vB], deps=[(c3, 1)], e=g, d=g + 5))
    head_dmas(rg, 288, 1200)
    rg.pendW0 = pend; rg.epi = epi
    rg.schedule()
    return rg

def half0_muls(rg, b4):
    for mt in range(4):
        for t in range(3): q_muls(rg, mt, t, rg.mf[b4 + 12*mt + 4*t + 3])

def build_R1(left):
    rg = new_region("R1")
    C.grp = 0
    xa = [rg.F(V(f"v_add_u32 v{S0+s}, {sW1k}, {vK[s]}", rd=[vK[s]], wr=[f"v{S0+s}"], d=6)) for s in range(4)]
    xr = reads_X(rg, lambda sl, s: (f"v{S0+s}", (sl - XB)*16384), [SLOT["Xa"], SLOT["Xb"], SLOT["Xc"]], QV, 4, 9, [(a, 1) for a in xa], step=2)
    pend = None; infos = []
    for st in range(5):
        pend, inf = w_step(rg, ORD[st][0], st in (0, 3), BopQ(st), pend, TS(f"W{st}"), TS(f"W{st+1}"), [f"W{st+1}"], more_reads=(xr if st == 0 else ()))
        infos.append(inf)
    new = {}
    for o in left:
        dt, t = o.ot
        n = V(o.text, rd=list(o.rd), wr=list(o.wr)); n.ot = o.ot; new[id(o)] = n
        n.deps = [(new[id(p)], g) for (p, g) in o.deps if id(p) in new]
        n.e = 8 if dt >= 6 else -1
        n.d = ((12*dt + 4*t) if dt < 4 else (144 + 12*(dt - 4) + 4*t)) - 1
        rg.F(n)
    head_dmas(rg, 0, 240)
    rg.pend = pend
    rg.schedule()
    return rg

def build_R1b(h, zst=None):
    rg = new_region(f"R1b{h}")
    C.grp = 20
    pend, inf = w_step(rg, ORD[5][0], False, BopQ(5), None, TS("W5"), TS("W6"), ["W6"])
    for i in range(48): rg.F(V(f"v_accvgpr_write_b32 a{ZB[h-1] + i}, v{PV0 + i}", rd=[f"v{PV0+i}"], wr=[f"a{ZB[h-1]+i}"]))
    head_dmas(rg, 240, 288)
    next_setup(rg, h)
    rg.pend = pend
    rg.schedule()
    return rg

def next_setup(rg, h):
    T = lambda x, **kw: rg.F(S(x, **kw))
    if h < 3:
        T(f"s_add_u32 {sWcol}, {sWcol}, 256", deps=([(rg.lastw, 1)] if getattr(rg, "lastw", None) else []))
        T(f"s_and_b32 {sWcol}, {sWcol}, 0x3ff")
        for t in NEXT:
            if t[0] == "W":
                for x in wq_t0(sN[NEXT.index(t)], int(t[1])): T(x)
    if h == 2:
        a = T(f"s_lshl_b32 {sTmp}, {sB}, 2")
        if not OPT["bst"]: rg.dbg = rg.F(Op(f"buffer_load_dword {vLane}, off, {srdD}, {sTmp} sc1", "vm", wr=[vLane], deps=[(a, 0)]))
    if h == 3:
        for x in ("s_mov_b32 s16, s80", "s_mov_b32 s17, s81", "s_mov_b32 s18, 0x80000", "s_mov_b32 s20, s80", "s_mov_b32 s21, s81", "s_mov_b32 s22, 0x80000",
                  f"s_mov_b32 {sGate}, 1"): T(x)
        for i in (1, 2, 3): T(f"s_mov_b32 {sD[i]}, {7168*i}"); T(f"s_mov_b32 {sDY[i]}, {7168*i}")
        for m in range(6): T(f"s_add_u32 {sN[m]}, {sRot if m < 4 else sC[0]}, {sH[m & 3]}")
        if OPT["pf3"]:
            for x in ("s_add_u32 s76, s76, L_g3-L_loop", "s_addc_u32 s77, s77, 0", "s_mov_b32 s78, L_codeend-L_g3"): T(x)
        if OPT["tlb"] == 1:
            sw = T(f"s_mov_b32 {sTmp}, {hex(FLAG_BASE + 0x20080)}")
            for srd, so in ((srdW, "0"), (srdWS, "s75"), (srdWS, sTmp), (srdO, sOutR)):
                rg.F(Op(f"buffer_load_dword {vB}, off, {srd}, {so}", "vm", wr=[vB], deps=[(sw, 0)]))
        rg.F(V(f"v_mov_b32 {vDW}, {vDWo}", rd=[vDWo], wr=[vDW])); rg.F(V(f"v_mov_b32 {vDX}, {vDWo}", rd=[vDWo], wr=[vDX]))

def build_R1f():
    X = lambda q: [f"x{q}{a}" for a in range(3)]
    final = [t for t in ISS if ISS[t] < 288 and t[0] in "KV"] + ["W6", "W7"]
    fk = sorted([t for t in final if t[0] in "KV"], key=lambda t: ISS[t]); assert 3 <= len(fk) <= 7
    OF = [0, 3, 1, 2, 4, 5] if OPT["kvlate"] == 8 else list(range(6))
    if OPT["kvlate"] == 8:
        init = X(0) + ["w0", "w1"] + X(1) + ["w2", "x20"]
        inh = list(zip(["x21", "x22", "w3"], X(0))) + [("x30", "w0"), ("x31", "w1")] + list(zip(["x32", "w4", "w5"], X(1))) + [("W6", "w2")] + \
              list(zip(["W7", fk[0], fk[1]], X(2))) + [(fk[2], "w3")] + list(zip(fk[3:], X(3) + ["w4"]))
    elif OPT["kvlate"] != 4:
        init = X(0) + ["w0"] + X(1) + ["w1", "K0", "K1"]
        inh = list(zip(X(2), X(0))) + [("w2", "w0")] + list(zip(["w3", "x30", "x31"], X(1))) + [("x32", "w1")] + \
              list(zip(["w4", "V0", "w5"], X(2))) + [("K2", "w2"), ("W6", "w3")] + list(zip(["V1", "W7", "K3"], X(3))) + ([("V2", "w4")] if len(fk) == 7 else [])
    else:
        init = X(0) + ["w0"] + X(1) + ["w1", "x20", "x21"]
        inh = list(zip(["x22", "w2", "w3"], X(0))) + [("x30", "w0")] + list(zip(["x31", "x32", "w4"], X(1))) + [("w5", "w1")] + \
              list(zip(["W6", "W7", fk[0]], X(2))) + [(fk[1], "w2"), (fk[2], "w3")] + list(zip(fk[3:], X(3) + ["w4"]))
    sl = {t: SLOT[t] for t in final}
    for new, old in reversed(inh):
        if new in sl: sl[old] = sl[new]
    free = [x for x in range(10) if x not in {sl[t] for t in init if t in sl}]
    for t in init:
        if t not in sl: sl[t] = free.pop()
    for new, old in inh: sl[new] = sl[old]
    def spec(t):
        if t[0] == "x": return ("X", int(t[2]), int(t[1]))
        if t[0] == "w": return ("W", OF[int(t[1])])
        if t[0] == "W": return ("W", int(t[1]))
        return (t[0],)
    wsl = [sl[f"w{j}"] for j in range(6)] + [SLOT["W6"]]
    wb = [min(x, 6) for x in wsl[:6]] + [BASE["W6"]]
    rg = new_region("R1f")
    C.grp = 0
    xaddr = lambda s_, s: (f"v{S0 + 4*(s_ >> 2) + s}", (s_ & 3)*16384)
    sh = 1 if OPT["kvlate"] == 8 else 0
    dst = {sh: (1, lambda s, t: XA(4 + s, t)), 1 + sh: (2, lambda s, t: XA(8 + s, t)), 3: (3, QV)}
    pend = None; infos = []; xw = None
    for st in range(6):
        post = None; need = [f"w{st+1}" if st < 5 else "W6"]
        if st in dst:
            q, fn = dst[st]; need += X(q)
            post = (lambda q, fn: lambda g0, bar: reads_X(rg, xaddr, [sl[t] for t in X(q)], fn, g0 + 2 + BDW, g0 + 5 + BDW, [(bar, 0)]))(q, fn)
        pend, inf = w_step(rg, ORD[OF[st]][0], OF[st] in (0, 3), BopQ(OF[st]), pend, ("W", wsl[st], wb[st]), ("W", wsl[st+1], wb[st+1], wb[st]), need, xwait=xw, post=post)
        xw = inf.get("post"); infos.append(inf)
    rel = {"w%d" % j: infos[j]["bar"] for j in range(6)}
    for q, st in ((1, 1 + sh), (2, 2 + sh), (3, 4)):
        for t in X(q): rel[t] = infos[st]["xbar"]
    items = []; tcur = 0
    if OPT["kvlate"] == 8: seq = [(t, None) for t in ("w2", "x20", "x21", "x22", "w3")] + inh[3:]
    elif OPT["kvlate"] != 4:
        seq = [(t, None) for t in ("x20", "x21", "x22")] + inh[3:]
        kp = {0: (3, 4), 1: (8, 9), 2: (4, 9), 3: (9, 12), 5: (0, 5), 6: (3, 7), 7: (3, 4)}[OPT["kvlate"]]
        seq.insert(kp[0], ("K0", None)); seq.insert(kp[1], ("K1", None))
    else: seq = [(t, None) for t in ("x20", "x21", "x22", "w2", "w3")] + inh[3:]
    for new, old in seq:
        if old: tcur = max(tcur, rel[old].e)
        if 5 <= OPT["kvlate"] < 8 and new == "K3": tcur = max(tcur, 255)
        sp = OPT["fsp"] if (new[0] not in "KV" or OPT["kvlate"] not in (4, 8)) else OPT["fkv"]
        cnt = sum(1 for x in TIMES[new] if x < 288) if new in TIMES else 4
        if OPT["kvlate"] == 7 and new[0] in "KV":
            t0, sp = {"K0": (18, 11), "K1": (62, 11), "V0": (112, 9), "K2": (150, 11), "V1": (206, 8), "K3": (240, 9), "V2": (278, 2)}[new]
            items.append((new, spec(new), sl[new], t0, [(i, t0 + sp*i) for i in range(cnt)], rel[old] if old else None)); continue
        items.append((new, spec(new), sl[new], tcur, [(i, tcur + sp*i) for i in range(cnt)], rel[old] if old else None)); tcur += 4*sp + (1 if sp == OPT["fsp"] else OPT["fgap"])
    add_dmas(rg, items)
    next_setup(rg, 0)
    rg.pend = pend
    rg.schedule()
    rg.init = [(t, spec(t), sl[t]) for t in init[:8]]; rg.wb0 = wb[0]; rg.wso0 = (wsl[0] - wb[0])*16384
    rg.x0 = [xaddr(sl[t], 0) for t in X(0)]; rg.xsl0 = [sl[t] for t in X(0)]; rg.xaddr = xaddr
    return rg

RLD = [[R("v", QV0 + 4*g, 4) for g in range(8)],
       [R("v", QV0 + 32 + 4*g, 4) for g in range(4)] + [R("v", S0 + 4*g, 4) for g in range(3)] + ["v[236:239]"]]
vTo = vLane if not OPT['bst'] else 'v235'
vSt, vFl, vPo, vPr, vOut = vDK, vDV, vVb, vDX, vC
LAG = OPT['lag']; OSC = ['', ' sc1', ' nt', ' sc0 sc1'][OPT['osc']]
NTST = ' nt' if OPT['ntst'] else ''
LO = ["v249", "v250", "v251", "v253"]
def pack_store(chunk):
    res = []
    for t in range(3):
        for np_ in range(2):
            a, b = 4*chunk + 2*np_, 4*chunk + 2*np_ + 1
            src = [(OAr(a,t,0), OAr(a,t,1)), (OAr(a,t,2), OAr(a,t,3)), (OAr(b,t,0), OAr(b,t,1)), (OAr(b,t,2), OAr(b,t,3))]
            cv = []
            for j in range(4):
                cv.append(V(f"v_cvt_pk_bf16_f32 {OAr(a,t,j)}, {src[j][0]}, {src[j][1]}", rd=list(src[j]), wr=[OAr(a,t,j)], deps=([(cv[-1], 0)] if cv else [])))
            k = 2*t + np_
            sa = S(f"s_add_u32 {sU[k & 1]}, {sSt}, {k*8192}", wr=[sU[k & 1]])
            st = Op(f"buffer_store_dwordx4 {OA(a,t)}, {vSt}, {srdWS}, {sU[k & 1]} offen@SC", "vm", rd=[OA(a,t), vSt], deps=[(cv[-1], 1), (sa, 0)])
            res.append((cv, sa, st))
    return res
def reduce_ops(set_):
    X = [regs(r_) for r_ in RLD[set_]]
    tmp = [vA, vB]; ops = []; n = 0
    for k in range(4):
        ops += [V(f"v_lshlrev_b32 {LO[k]}, 16, {X[0][k]}", rd=[X[0][k]], wr=[LO[k]]),
                V(f"v_and_b32 {X[0][k]}, {sMask}, {X[0][k]}", rd=[X[0][k]], wr=[X[0][k]])]
        for g in range(1, 8):
            tm = tmp[n & 1]; n += 1
            ops += [V(f"v_lshlrev_b32 {tm}, 16, {X[g][k]}", rd=[X[g][k]], wr=[tm]),
                    V(f"v_and_b32 {X[g][k]}, {sMask}, {X[g][k]}", rd=[X[g][k]], wr=[X[g][k]]),
                    V(f"v_add_f32 {LO[k]}, {LO[k]}, {tm}", rd=[LO[k], tm], wr=[LO[k]]),
                    V(f"v_add_f32 {X[0][k]}, {X[0][k]}, {X[g][k]}", rd=[X[0][k], X[g][k]], wr=[X[0][k]])]
        ops.append(V(f"v_cvt_pk_bf16_f32 {X[0][k]}, {LO[k]}, {X[0][k]}", rd=[LO[k], X[0][k]], wr=[X[0][k]]))
    for a, b in zip(ops, ops[1:]): b.deps.append((a, 0))
    pl = []
    for j in range(2):
        pl.append(V8(f"v_permlane32_swap_b32 {X[0][j]}, {X[0][2+j]}", rd=[X[0][j], X[0][2+j]], wr=[X[0][j], X[0][2+j]], sdeps=[(ops[-1], 2)]))
    for j in range(2):
        pl.append(V8(f"v_permlane16_swap_b32 {X[0][j]}, {X[0][2+j]}", rd=[X[0][j], X[0][2+j]], wr=[X[0][j], X[0][2+j]], sdeps=[(pl[j], 2)]))
    st = Op(f"buffer_store_dwordx4 {RLD[set_][0]}, {vOut}, {srdO}, {sOut} offen{OSC}", "vm", rd=[RLD[set_][0], vOut, sOut], deps=[(pl[2], 1), (pl[3], 1)])
    return ops, pl, st
def red_loads(set_):
    return [Op(f"buffer_load_dwordx4 {RLD[set_][g]}, {vSt}, {srdWS}, {sLd if g < 4 else sLd2} offen offset:{(g & 3)*1024} sc1", "vm",
               rd=[vSt], wr=[RLD[set_][g]]) for g in range(8)]
def sig_ops():
    return [Op(f"buffer_store_dword {vSt}, {vFl}, {srdWS}, {sSig} offen@SC", "vm", rd=[vSt, vFl])]
def scal_A():
    return [f"s_sub_u32 {sTmp}, {sIt}, 1", f"s_and_b32 {sTmp}, {sTmp}, {sSlM}", f"s_mul_i32 {sTmp}, {sTmp}, {CHUNK}",
            f"s_add_u32 {sSt}, {sStR}, {sTmp}", f"s_add_u32 {sLd}, {sLdR}, {sTmp}", f"s_add_u32 {sLd2}, {sLd}, 0x1000",
            f"s_add_u32 {sSig}, {sSig}, 256"]
def scal_B():
    return [f"s_add_u32 {sOut}, {sOutR}, {sOc}", f"s_add_u32 {sOc}, {sOc}, 128", f"s_and_b32 {sOc}, {sOc}, 0x3ff", f"s_add_u32 {sIt}, {sIt}, 1"]

def build_G(first=False, left=()):
    rg = new_region("G0" if first else "G"); L = "F" if first else ""
    used = [SLOT[t] for t in NEXT]
    gs = used + [SLOT["K0"]] + [x for x in range(10) if x not in used and x not in (SLOT["K0"], SLOT["K1"], SLOT["V0"])][:1]
    assert len(gs) == 8
    gb = ringplan.bases(gs, BASE["W0"])[1]
    items = []; bars = {}; st_last = {}; rg.touch = []
    C.grp = 0
    def Bop(h): return (lambda s, t: ZA(h, s, t)) if h < 3 else (lambda s, t: OP(s, t))
    LD = [red_loads(0), red_loads(1)] if first else G_LD
    pend = None; prev_users = []
    if first:
        new = {}
        for o in left:
            dt, t = o.ot
            n = V(o.text, rd=list(o.rd), wr=list(o.wr)); new[id(o)] = n
            n.deps = [(new[id(p)], g) for (p, g) in o.deps if id(p) in new]
            n.e = 8 if dt >= 6 else -1
            n.d = (12*dt + 4*t - 1) if dt < 4 else (144 + 4*t + (dt >> 1) - 3)
            rg.F(n)
        cs = []
        for x in f"""v_mbcnt_lo_u32_b32 {vA}, -1, 0
v_mbcnt_hi_u32_b32 {vA}, -1, {vA}
v_lshlrev_b32 {vSt}, 4, {vA}
v_and_b32 {vPo}, 7, {vA}
v_lshlrev_b32 {vPo}, 2, {vPo}
v_lshrrev_b32 {vB}, 4, {vA}
v_bfe_u32 {vOut}, {vA}, 2, 2
v_and_b32 {vA}, 3, {vA}
v_lshl_add_u32 {vA}, {vOut}, 4, {vA}
v_lshlrev_b32 {vA}, 10, {vA}
v_lshl_add_u32 {vOut}, {vB}, 4, {vA}
v_mov_b32 {vFl}, {hex(OOB)}""".split("\n"):
            cs.append(rg.F(V(x, e=(0 if len(cs) < 3 else 40), d=110, deps=[(cs[-1], 0)] if cs else [])))
        sc = [rg.F(S(x)) for x in (f"s_lshl_b32 s5, {sG}, 2", f"s_cmp_eq_u32 {sWave}, 0", f"s_cselect_b32 s5, s5, {hex(OOB)}", f"s_mov_b32 {sMask}, 0xffff0000",
                                   f"s_mov_b32 {sLd}, {sLdR}", f"s_add_u32 {sLd2}, {sLd}, 0x1000", f"s_mov_b32 {sSig}, {sFlR}", f"s_mov_b32 {sExp}, 16")]
        wl = rg.F(V(f"v_writelane_b32 {vFl}, s5, 1", deps=[(cs[-1], 0), (sc[2], 0)], d=120))
        prev = None
        for k in range(2):
            if k: a1 = rg.F(S(f"s_add_u32 {sLd}, {sLd}, {CHUNK}", deps=[(prev, 1)])); a2 = rg.F(S(f"s_add_u32 {sLd2}, {sLd}, 0x1000"))
            for i, o in enumerate(red_loads(k)):
                o.text = o.text.replace(" sc1", ""); o.tag = "touch"
                o.e = (OPT["gdma"] + 84 if k else 8) + 4*i; o.d = o.e + 3
                o.deps = [(cs[2], 1), ((a2 if k else sc[5]), 0)] + ([(prev, 1)] if prev else []); rg.F(o); prev = o; rg.touch.append(o)
        last0 = prev
        f = 48; prevm = None
        seq = [(f"v_lshrrev_b32 v{f}, 4, {vSt}", 0), (f"v_lshrrev_b32 v{f+1}, 4, v{f}", 0), (f"v_and_b32 v{f+2}, 1, v{f}", 0), (f"v_lshlrev_b32 v{f+2}, 4, v{f+2}", 0),
               (f"v_mov_b32 v{f+3}, 0x3f80", 0), (f"v_lshlrev_b32 v{f+2}, v{f+2}, v{f+3}", 0), (f"v_bfe_u32 v{f+3}, v{f}, 1, 1", 0), (f"v_bfe_u32 v{f+4}, v{f}, 3, 1", 0),
               (f"v_lshl_add_u32 v{f+3}, v{f+4}, 1, v{f+3}", 0), (f"v_bfe_u32 v{f+4}, v{f}, 2, 1", 0), (f"v_lshlrev_b32 v{f+4}, 1, v{f+4}", 0), (f"v_add_u32 v{f+5}, 1, v{f+4}", 0),
               (f"v_cmp_eq_u32 vcc, v{f+1}, v{f+4}", 0), (f"v_cmp_eq_u32 {sBad}, v{f+1}, v{f+5}", 0),
               (f"v_cndmask_b32 v{f+6}, 0, v{f+2}, vcc", 2), (f"v_cndmask_b32 v{f+7}, 0, v{f+2}, {sBad}", 0)]
        for r_ in range(4):
            seq += [(f"v_cmp_eq_u32 vcc, {r_}, v{f+3}", 0), (f"v_cndmask_b32 v{f}, 0, v{f+6}, vcc", 2), (f"v_cndmask_b32 v{f+1}, 0, v{f+7}, vcc", 0),
                    (f"v_accvgpr_write_b32 a{48+r_}, v{f}", 0), (f"v_accvgpr_write_b32 a{52+r_}, v{f+1}", 0)]
        for x, n_ in seq:
            prevm = rg.F(V(x, rd=[f"v[{f}:{f+7}]"], wr=[f"v[{f}:{f+7}]"], e=152, d=188, deps=([(prevm, 0)] if prevm else []), sdeps=([(prevm, n_)] if n_ else [])))
    for hf in range(2):
        h0 = 192*hf
        do_st = not (first and hf == 0); do_sum = not first
        stores = []
        if do_st:
            for (cv, sa, st) in pack_store(1 - hf):
                for o in cv: o.e = h0 + 8; rg.F(o)
                if len(stores) >= 2: sa.deps.append((stores[-2], 1))
                rg.F(sa); st.e = h0 + 10 + OPT['gst']*len(stores); st.d = st.e + 3; rg.F(st); stores.append(st)
        if do_sum:
            sc = [rg.F(S(x, e=h0, deps=[(u, 1) for u in prev_users])) for x in scal_B()]
            if hf == 0: sB0 = sc[-1]
            cur = hf ^ 1
            w0 = rg.F(WAIT(h0 + OPT['gsum'], need_vm=LD[cur] + (G_LD0 if hf == 0 else []), late=1)); w0.e = h0 + OPT['gsum']
            o0, p0, s0_ = reduce_ops(cur)
            o0[0].deps.append((w0, 0))
            for o in o0 + p0 + [s0_]: rg.F(o)
            s0_.d = h0 + OPT['gout']; s0_.deps += [(sc[0], 0), (LD[hf][-1], 1)]
            prev_users = [s0_]
        infos = []
        for j in range(4):
            st = 4*hf + j
            n1 = (st + 1) & 7
            pend, inf = w_step(rg, hf, j == 0, Bop(j), pend, ("W", gs[st], gb[st]), ("W", gs[n1], gb[n1], gb[st]), [f"G{n1}"] + ([f"G{(st + 2) & 7}"] if OPT["gb2"] else []),
                               extra=(stores if j == 1 else ()), nobar=(OPT["gb2"] and not (j & 1)))
            infos.append(inf); bars[st] = inf["bar"]
            if OPT["gb2"] and (j & 1): bars[st - 1] = inf["bar"]
        if do_st:
            sig, = sig_ops(); bs = infos[1]["bar"]
            sig.deps = [(bs, 0)]; sig.d = bs.e + 1; rg.F(sig)
            rg.F(S(f"s_load_dwordx8 s[8:15], s[82:83], {sSig}", e=h0 + OPT['gpoll'], d=h0 + OPT['gpoll'] + 4))
            b2 = infos[2]["bar"]
            if b2 is None:
                b2 = rg.F(WAIT(h0 + 132, lg0=True, late=1)); b2.e = h0 + 132
            for x in ("s_and_b32 s8, s8, s9", "s_and_b32 s10, s10, s11", "s_and_b32 s12, s12, s13", "s_and_b32 s14, s14, s15",
                      "s_and_b32 s8, s8, s10", "s_and_b32 s12, s12, s14", "s_and_b32 s8, s8, s12", "s_bitcmp0_b32 s8, 4"): rg.F(S(x, deps=[(b2, 0)]))
            br = rg.F(Op(f"s_cbranch_scc1 L_spinG{hf}{L}@L\nL_backG{hf}{L}@L:", "s", d=b2.e + 12))
            prev = None
            for i, o in enumerate(LD[hf]):
                o.deps += [(br, 0)] + ([(prev, 1)] if prev else []); o.e = b2.e + 10 + OPT['gld']*i; o.d = o.e + 3; rg.F(o); prev = o
            lastld = LD[hf][-1]
        else: lastld = last0
        if first: rg.F(S(f"s_mov_b32 {sIt}, {hf + 1}", deps=[(lastld, 1)]))
        for i, x in enumerate(scal_A()): rg.F(S(x, deps=[(lastld, 1)] if i == 0 else []))
        for k in range(4):
            st = (4*hf - 2 + k) & 7
            items.append((f"G{st}", ("C", (1 + (st >> 2)) if (hf or k > 1) else 0, st & 3), gs[st], h0 + OPT["gdma"] + k*(4*OPT["gdsp"] + 1) + (4 if (OPT["gb2"] and k > 1) else 0), OPT["gdsp"],
                          bars[st] if (hf or k > 1) else None))
        if stores: st_last[hf] = stores[-1]
    add_dmas(rg, items)
    if not first:
        c1 = S(f"s_cmp_ge_u32 {sIt}, 7", deps=[(TILE["G7"][-1], 1)]); c2 = S("s_cselect_b32 s18, 0, s18", wr=["s18"], rd=["s18"])
        pos = rg.fill.index(sB0) + 1
        rg.fill[pos:pos] = [c1, c2]
        for i, o in enumerate(rg.fill): o.seq = i + 1
        rg.first_dma["G0"].deps.append((c2, 0))
        rg.first_dma["G6"].deps.append((st_last[0], 1))
    rg.first_dma["G2"].deps.append((st_last[1], 1))
    rg.LD = LD; rg.pend = pend
    rg.schedule()
    return rg

def stamp(kind=0):
    if not OPT["stamps"]: return []
    def put(x): return lin(f"v_mov_b32 {vA}, {x}") + [Op(f"buffer_store_dword {vA}, off, {srdWS}, s101", "vm")] + lin("s_add_u32 s101, s101, 4\ns_nop 1")
    if kind == 1: return put("s94") + put("s92") + ((lin("s_waitcnt lgkmcnt(0)") + put("s84") + put("s92") + put("s86") + put("s92")) if OPT["stamps"] == 4 else []) + stamp()
    if kind == 2: return lin("s_waitcnt vmcnt(0)") + stamp()
    return lin("s_memtime s[2:3]\ns_memrealtime s[4:5]\ns_waitcnt lgkmcnt(0)") + put("s2") + put("s4")

def code_pf(lbl, start, end, mask, r):
    if not OPT["pf"]: return []
    return lin(f"""s_getpc_b64 s[{r}:{r+1}]
{lbl}:
s_add_u32 s{r}, s{r}, {start}-{lbl}
s_addc_u32 s{r+1}, s{r+1}, {"-1" if start == KN else "0"}
s_mov_b32 s{r+2}, {end}-{start}
s_mov_b32 s{r+3}, 0x20000
s_lshl_b32 s5, {sIdx}, 2
s_add_u32 s5, s5, {sWave}
s_and_b32 s5, s5, {mask}
s_lshl_b32 s5, s5, 13
v_mbcnt_lo_u32_b32 {vA}, -1, 0
v_mbcnt_hi_u32_b32 {vA}, -1, {vA}
v_lshlrev_b32 {vA}, 7, {vA}""") + [Op(f"buffer_load_dword {vB}, {vA}, s[{r}:{r+3}], s5 offen", "vm")]

HROT = {0: "s_mov_b32 s5, 0", 1: "s_mov_b32 s5, s4", 2: f"s_mov_b32 s5, {sG}", 3: f"s_add_u32 s5, s4, {sG}", 4: f"s_lshr_b32 s5, {sG}, 1",
        5: f"s_lshr_b32 s5, {sB}, 3", 6: f"s_lshr_b32 s5, {sG}, 2\ns_lshl_b32 s3, {sG}, 1\ns_or_b32 s5, s5, s3", 7: f"s_sub_u32 s5, 0, {sG}", 8: f"s_lshl_b32 s5, {sG}, 2", 9: f"s_lshl_b32 s5, s4, 2"}[OPT["hrot"]]
if OPT["krot"] < 3:
    KROT = f"""{f"s_add_u32 s4, {sB}, {sG}" if OPT["krot"] == 2 else ""}
s_and_b32 s4, s4, {3 if OPT["krot"] else 0}
s_lshl_b32 {sDg[0]}, s4, 20
s_add_u32 {sDg[1]}, {sDg[0]}, 0x100000
s_and_b32 {sDg[1]}, {sDg[1]}, 0x3fffff
s_xor_b32 {sDg[2]}, {sDg[0]}, 0x200000
s_xor_b32 {sDg[3]}, {sDg[1]}, 0x200000"""
else:
    KROT = f"""{f"s_add_u32 s5, {sB}, {sG}" if OPT["krot"] == 3 else f"s_mov_b32 s5, {sG}"}
s_mul_i32 s3, s5, 43
s_lshr_b32 s3, s3, 7
s_mul_i32 s3, s3, 3
s_sub_u32 s5, s5, s3
s_add_u32 {sDg[3]}, s4, 3
s_add_u32 {sDg[0]}, s4, s5
s_cmp_eq_u32 s5, 2
s_cselect_b32 s3, -2, 1
s_add_u32 {sDg[1]}, {sDg[0]}, s3
s_cmp_eq_u32 s5, 0
s_cselect_b32 s3, 2, -1
s_add_u32 {sDg[2]}, {sDg[0]}, s3""" + "".join(f"\ns_and_b32 {sDg[q]}, {sDg[q]}, 3\ns_lshl_b32 {sDg[q]}, {sDg[q]}, 20" for q in range(4))
def prologue(F):
    init = F.init
    o = lin(f"""
s_cmp_lt_u32 s2, 256
s_cbranch_scc1 L_go
s_endpgm
L_go:
{"s_memrealtime s[92:93]" if (OPT["stamps"] or OPT["dbl"]) else ""}
{"s_memtime s[94:95]" if OPT["stamps"] else ""}
s_load_dwordx16 s[68:83], s[0:1], 0
v_lshrrev_b32 v1, 6, v0
v_and_b32 {vLane}, 63, v0
s_and_b32 s4, s2, 7
v_readfirstlane_b32 {sWave}, v1
s_lshr_b32 s5, s2, 3
s_mov_b32 {sIdx}, s5""")
    mp = {84: (1, 3, 2, 1, 2, 3), 48: (0, 2, 3, 0, 3, 7), 162: (2, 4, 1, 3, 1, 1)}[OPT["mapping"]]
    o += lin(f"""
s_lshr_b32 s6, s4, {mp[0]}
s_lshl_b32 s6, s6, {mp[1]}
s_lshr_b32 s7, s5, {mp[2]}
s_add_u32 {sB}, s6, s7
s_and_b32 s6, s4, {mp[3]}
s_lshl_b32 s6, s6, {mp[4]}
s_and_b32 s7, s5, {mp[5]}
s_add_u32 {sG}, s6, s7""")
    cbits = struct.unpack("<I", struct.pack("<f", math.log2(math.e)/math.sqrt(128)))[0]
    o += lin(f"""
s_lshl_b32 {sW4k}, {sWave}, 12
v_lshrrev_b32 v5, 4, {vLane}
v_and_b32 v6, 15, {vLane}
s_lshl_b32 s6, {sWave}, 4
v_add_u32 v1, s6, v5
s_lshl_b32 s6, {sWave}, 2
v_or_b32 v2, s6, v5
v_xor_b32 v2, v2, v6
v_lshlrev_b32 v2, 4, v2
v_lshl_add_u32 {vDX}, v1, 10, v2
v_lshl_add_u32 {vDK}, v1, 8, v2
v_lshrrev_b32 v7, 5, {vLane}
v_bfe_u32 v2, {vLane}, 3, 2
v_lshl_add_u32 v7, v7, 3, v2
s_lshl_b32 s6, {sWave}, 5
v_add_u32 v7, s6, v7
v_and_b32 v3, 7, {vLane}
v_lshlrev_b32 v4, 1, v5
v_xor_b32 v3, v3, v4
v_lshlrev_b32 v3, 4, v3
s_mov_b32 {sDY[1]}, 3072
s_mov_b32 {sDY[2]}, 6144
s_mov_b32 {sDY[3]}, 9216
s_mov_b32 {sD[1]}, {16*8192 - 1024}
s_mov_b32 {sD[2]}, {4*8192 - 2048}
s_mov_b32 {sD[3]}, {20*8192 - 3072}
s_lshr_b32 s4, {sB}, 2
{HROT}
s_bfe_u32 {sSw}, s5, {"0x10002" if OPT["hswap"] else "0x00002"}
s_and_b32 s5, s5, {3 if OPT["hrot"] else 0}
s_mov_b32 {sHr}, s5
s_lshl_b32 {sWcol}, s5, 8
s_lshl_b32 {sSw}, {sSw}, 7
s_or_b32 {sWcol}, {sWcol}, {sSw}
s_lshr_b32 {sSw}, {sSw}, 1
v_xor_b32 v7, {sSw}, v7
v_lshl_add_u32 {vDW}, v7, 13, v3
s_lshl_b32 {sKoff}, s5, 17
s_mov_b32 {sVoff}, {sKoff}
{KROT}
s_mul_i32 s7, {sB}, {0 if OPT["samex"] else 196608}
s_mov_b32 s22, 196608
s_mov_b32 s23, 0x20000
s_mov_b32 s19, 0x20000
s_lshl_b32 s4, {sG}, 10
{"s_mov_b32 s4, 0" if OPT["samew"] else ""}
s_sub_u32 s18, 0x400000, s4
s_waitcnt lgkmcnt(0)
s_add_u32 s20, s68, s7
s_addc_u32 s21, s69, 0
s_add_u32 s16, s74, s4
s_addc_u32 s17, s75, 0""")
    if OPT["tch"]:
        o += lin(f"""v_lshrrev_b32 v8, 1, {vLane}
v_and_b32 v9, 1, {vLane}
v_lshlrev_b32 v9, 7, v9
v_lshl_add_u32 v11, v8, 13, v9
v_lshl_add_u32 v8, v8, 10, v9
v_mov_b32 v10, {hex(OOB)}
v_cmp_gt_u32 vcc, 12, {vLane}
s_lshl_b32 s4, {sG}, 2
s_add_u32 s4, s4, {sWave}
s_mul_i32 s4, s4, 6144
v_cndmask_b32 v8, v10, v8, vcc
v_cmp_gt_u32 vcc, 16, {vLane}
s_and_b32 s5, {sB}, 3
s_lshl_b32 s5, s5, 2
s_add_u32 s5, s5, {sWave}
s_lshl_b32 s5, s5, 16
s_add_u32 s5, s5, {sWcol}
v_cndmask_b32 v11, v10, v11, vcc
v_add_u32 v8, s4, v8
v_add_u32 v11, s5, v11""")
        for q in range(OPT["tch"] - 1, 4):
            o += lin(f"s_lshr_b32 s3, {sDg[q]}, 12")
            o += [Op(f"buffer_load_dword {vB}, v8, {srdX}, s3 offen", "vm"), Op(f"buffer_load_dword {vB}, v11, {srdW}, {sDg[q]} offen", "vm")]
    if OPT["stamps"] == 4: o += lin("s_memtime s[84:85]")
    for j in range(4): o += dma_linear(*init[j])
    if OPT["stamps"] == 4: o += lin("s_memtime s[86:87]")
    o += lin(f"""s_lshl_b32 s3, {sB}, 22
s_lshl_b32 s7, {sG}, 19
s_add_u32 s3, s3, s7
{"s_mov_b32 s3, 0" if OPT["samekv"] else ""}
s_add_u32 s8, s70, s3
s_addc_u32 s9, s71, 0
s_mov_b32 s10, 0x80000
s_mov_b32 s11, 0x20000
s_add_u32 s12, s72, s3
s_addc_u32 s13, s73, 0
s_mov_b32 s14, 0x80000
s_mov_b32 s15, 0x20000
""")
    if OPT["tlb"]:
        o += [Op(f"buffer_load_dword {vB}, off, {srdK}, 0", "vm"), Op(f"buffer_load_dword {vB}, off, {srdV}, 0", "vm")]
        o += [Op(f"buffer_load_dword {vB}, off, {srdW}, {sDg[q]}", "vm") for q in (1, 2, 3)]
    o += code_pf("L_pc", KN, "L_g3", OPT["pf"] - 1, 88)
    o += lin(f"""
v_lshrrev_b32 v7, 3, {vLane}
v_add_u32 v7, s6, v7
v_lshl_add_u32 {vDWo}, v7, 10, v3
s_and_b32 s6, {sWave}, 1
s_lshl_b32 s6, s6, 2
v_or_b32 v2, s6, v5
v_lshlrev_b32 v2, 1, v2
v_xor_b32 v2, v2, v6
v_lshlrev_b32 v1, 8, v1
v_lshl_add_u32 {vDV}, v2, 4, v1
s_mov_b32 s24, s82
s_mov_b32 s25, s83
s_mov_b32 s26, {hex(WS_BYTES)}
s_mov_b32 s27, 0x20000
v_lshrrev_b32 v1, 3, {vLane}
v_and_b32 v2, 7, {vLane}
v_lshlrev_b32 v1, 8, v1
v_lshl_add_u32 v8, v2, 2, v1
s_lshl_b32 s6, {sB}, 11
s_add_u32 s6, s6, {hex(FLAG_BASE)}
s_or_b32 s7, {sG}, {sWave}
s_cmp_eq_u32 s7, 0
s_cselect_b32 {sTmp}, s6, {hex(OOB)}
v_mov_b32 v9, 0""")
    zst = Op(f"buffer_store_dword v9, v8, {srdWS}, {sTmp} offen sc1", "vm"); o.append(zst)

    o += lin(f"""
s_mov_b32 {sScale}, {hex(cbits)}
s_mov_b32 {sLo}, 0x30800000
s_mov_b32 {sHi}, 0x4e800000
s_mov_b32 {sHead}, 0
s_lshl_b32 {sW1k}, {sWave}, 10
s_mov_b32 s28, s78
s_mov_b32 s29, s79
s_mov_b32 s30, 0x600000
s_mov_b32 s31, 0x20000
s_mov_b32 s32, s80
s_mov_b32 s33, s81
s_mov_b32 s34, 0x100
s_mov_b32 s35, 0x20000

v_lshrrev_b32 v1, 2, v6
v_and_b32 v2, 3, v6
v_lshl_add_u32 v3, v1, 4, v2
v_lshlrev_b32 v3, 8, v3""")
    for s in range(4):
        o += lin(f"s_and_b32 s3, {sWcol}, 128\nv_add_u32 v4, {4*s}, v5\nv_xor_b32 v4, v4, v6\nv_lshl_add_u32 {vK[s]}, v4, 4, v3\nv_xor_b32 {vK[s]}, s3, {vK[s]}")
    o += lin(f"""
v_lshl_add_u32 v3, v5, 4, v1
v_lshlrev_b32 v3, 8, v3
v_and_b32 v4, 1, v5
v_lshl_add_u32 v7, v4, 2, v1
v_lshl_add_u32 v3, v7, 5, v3
v_lshl_add_u32 v3, v2, 3, v3
v_add_u32 {vVb}, {BASE["V7"]*16384}, v3
v_lshl_add_u32 v3, v5, 2, v1
v_lshlrev_b32 v3, 7, v3
v_lshrrev_b32 v7, 1, v1
v_lshl_add_u32 v7, v4, 1, v7
{"v_lshlrev_b32 v7, 1, v7" if OPT["nperm"] else "v_lshl_add_u32 v3, v7, 5, v3"}
{"v_xor_b32 v7, v7, v2" if OPT["nperm"] else ""}
{"v_lshl_add_u32 v7, v7, 4, v3" if OPT["nperm"] else "v_lshl_add_u32 v7, v2, 3, v3"}
v_add_u32 {vWb}, {F.wb0*16384}, v7
v_mov_b32 v3, 0x3f803f80
v_cmp_eq_u32 vcc, 0, v2
s_nop 1
{"v_cndmask_b32 v3, 0, v3, vcc" if OPT["ones4"] else ""}
v_accvgpr_write_b32 a252, v3
v_accvgpr_write_b32 a253, v3
v_accvgpr_write_b32 a254, v3
v_accvgpr_write_b32 a255, v3
""")
    for s in range(4):
        o += lin(f"v_add_u32 v{S0+s}, {sW1k}, {vK[s]}\nv_add_u32 v{S0+4+s}, 0x10000, v{S0+s}\nv_add_u32 v{S0+8+s}, 0x20000, v{S0+s}\nv_add_u32 {vK[s]}, {BASE['K7']*16384}, {vK[s]}")
    o += lin(f"s_add_u32 {sW1k}, {sW1k}, {lit((XB - BASE['K7'])*16384)}")
    for j in range(4, 8): o += dma_linear(*init[j])
    o += lin(f"""s_lshl_b32 s6, {sG}, 19
s_add_u32 s80, s76, s6
s_addc_u32 s81, s77, 0
s_mov_b32 {sGate}, 0
s_lshl_b32 {sH[0]}, {sHr}, 17
s_add_u32 {sH[1]}, {sH[0]}, 0x20000
s_and_b32 {sH[1]}, {sH[1]}, 0x7ffff
s_xor_b32 {sH[2]}, {sH[0]}, 0x40000
s_xor_b32 {sH[3]}, {sH[1]}, 0x40000
{"s_mov_b32 s73, s92" if OPT["dbl"] else ""}
s_getreg_b32 {sXcc}, hwreg(HW_REG_XCC_ID, 0, 3)
s_lshr_b32 {sRot}, {sB}, 2
s_and_b32 {sRot}, {sRot}, {7 if OPT["rot"] else 0}
s_lshl_b32 {sRot}, {sRot}, 7
s_lshl_b32 {sXcc}, {sXcc}, 2
s_lshl_b32 {sXcc}, 1, {sXcc}""" + "".join(f"\ns_add_u32 {sC[i]}, {sRot}, {128*(i+1)}\ns_and_b32 {sC[i]}, {sC[i]}, 0x3ff" for i in range(3))
      + "".join("\n" + "\n".join(x_t0(sN[NEXT.index('X' + 'abc'[a])], a, 3)) for a in range(3)) + f"""
s_mul_i32 s6, {sB}, {8*CHUNK + 4096}
s_mov_b32 s75, s6
s_add_u32 s6, s6, 4096
s_mul_i32 s7, {sWave}, 49152
s_add_u32 {sStR}, s6, s7
s_lshl_b32 s7, {sG}, 10
s_add_u32 {sStR}, {sStR}, s7
s_mul_i32 s7, {sG}, 3
s_add_u32 s7, s7, {sWave}
s_lshl_b32 s4, s7, 13
s_add_u32 {sLdR}, s6, s4
s_lshl_b32 {sFlR}, {sB}, 11
s_add_u32 {sFlR}, {sFlR}, {hex(FLAG_BASE - 256)}
s_lshr_b32 s4, s7, 1
s_mul_i32 s5, s4, 11
s_lshr_b32 s5, s5, 5
s_mul_i32 s3, s5, 3
s_sub_u32 s4, s4, s3
s_lshl_b32 s4, s4, 6
s_lshl_b32 s5, s5, 2
s_add_u32 s4, s4, s5
s_mul_i32 s5, {sB}, 192
s_add_u32 s4, s4, s5
s_lshl_b32 s4, s4, 10
s_and_b32 s5, s7, 1
s_lshl_b32 s5, s5, 6
s_add_u32 {sOutR}, s4, s5
s_mov_b32 {sOc}, {sRot}
s_cmp_eq_u32 {sWave}, 3
s_cselect_b32 {sLdR}, {hex(OOB)}, {sLdR}
s_cselect_b32 {sOutR}, {hex(OOB)}, {sOutR}
v_bfe_u32 v3, {vLane}, 3, 2
v_and_b32 v2, 3, {vLane}
v_lshlrev_b32 {vC}, 5, v3
v_lshl_add_u32 {vC}, v2, 3, {vC}
v_lshlrev_b32 v3, 1, v3
v_xor_b32 v2, v2, v3
v_lshlrev_b32 v2, 4, v2
v_sub_u32 {vC}, {vC}, v2""")
    if OPT["tlb"] == 2:
        o += lin(f"""s_mov_b32 s4, {hex(FLAG_BASE + 0x20080)}
s_mov_b32 s88, s80
s_mov_b32 s89, s81
s_mov_b32 s90, 0x80000
s_add_u32 s5, s75, {8*CHUNK + 4096}""") if False else lin(f"s_mov_b32 s4, {hex(FLAG_BASE + 0x20080)}\ns_add_u32 s5, s75, {8*CHUNK + 4096}")
        o += [Op(f"buffer_load_dword {vB}, off, {srd}, {so}", "vm") for srd, so in ((srdWS, "s75"), (srdWS, "s5"), (srdWS, "s4"), (srdO, sOutR))]
    if OPT["pf3"]:
        o += lin(f"""s_getpc_b64 s[76:77]
L_pc3:
s_add_u32 s76, s76, L_loop-L_pc3
s_addc_u32 s77, s77, 0
s_mov_b32 s78, L_R2-L_loop
s_mov_b32 s79, 0x20000
s_lshl_b32 s75, {sIdx}, 2
s_add_u32 s75, s75, {sWave}
s_and_b32 s75, s75, 15
s_lshl_b32 s75, s75, 13""")
    if OPT["stress"]: o += lin(f"s_lshl_b32 s75, s2, 20\ns_add_u32 s75, s75, 0x8000000\ns_mul_i32 s4, {sWave}, 0x3f000\ns_add_u32 s75, s75, s4")
    if OPT["stamps"]:
        o += lin(f"s_lshl_b32 s101, s2, 10\ns_lshl_b32 s6, {sWave}, 8\ns_add_u32 s101, s101, s6\ns_add_u32 s101, s101, {hex(STAMP_BASE)}")
    if OPT["stamps"] in (2, 4): o += stamp(1)
    o.append(WAIT(0, need_vm=[x[0] for x in init[:4]]))
    o += lin("s_barrier")
    if OPT["stamps"] in (2, 4): o += stamp()
    for t in range(3):
        for s in range(4): o += lin("ds_read_b128 %s, %s offset:%d" % ((XA(s, t),) + F.xaddr(F.xsl0[t], s)))
    for s in range(4):
        for p in range(2): o += lin(f"ds_read_b64_tr_b16 {FR(0, s, p)}, {vWb} offset:{F.wso0 + s*4096 + p*2048}")
    o += lin("s_waitcnt lgkmcnt(0)\ns_barrier")
    return o, zst

def glue0(zst):
    return [WAIT(0, need_vm=[zst])] + lin(f"""s_lshl_b32 s6, {sB}, 2
s_cmp_eq_u32 {sWave}, 0
s_cselect_b32 s6, s6, {hex(OOB)}
v_mov_b32 {vB}, {hex(OOB)}
v_writelane_b32 {vB}, 0, 0
v_mov_b32 {vA}, {sXcc}""") + [Op(f"buffer_atomic_add {vA}, {vB}, {srdD}, s6 offen sc1", "vm")]
def touch_setup():
    return lin(f"""s_cmp_eq_u32 {sSlM}, 1
s_cselect_b32 s4, 256, {hex(OOB)}
v_lshlrev_b32 {vA}, 1, {vA}
v_and_b32 {vA}, 0x700, {vA}
s_add_u32 s4, s4, {sFlR}""") + [Op(f"buffer_load_dword {vB}, {vA}, {srdWS}, s4 offen sc1", "vm")]
def mode_check(dbg):
    if OPT["bst"]: return lin(f"L_chkD:\nL_backD:\ns_mov_b32 {sSlM}, 1")
    return [WAIT(0, need_vm=[dbg])] + lin(f"""s_mov_b32 s3, 0
L_chkD:
v_readfirstlane_b32 s4, {vLane}
s_nop 3
s_lshr_b32 s5, s4, 4
s_and_b32 s5, s5, 0x0f0f0f0f
s_and_b32 s7, s4, 0x0f0f0f0f
s_add_u32 s5, s5, s7
s_mul_i32 s5, s5, 0x01010101
s_lshr_b32 s5, s5, 24
s_cmp_lg_u32 s5, 8
s_cbranch_scc1 L_spinD
L_backD:
s_lshl_b32 s5, {sXcc}, 3
{"s_mov_b32 s5, 0" if OPT["forceslow"] else ""}
s_cmp_eq_u32 s4, s5
s_cselect_b32 {sSlM}, 1, 7""")

def slow_path(placed, pendW0):
    vKo, vVo, vVo2, vKo2 = f"v{PV0+40}", f"v{PV0+41}", f"v{PV0+42}", f"v{PV0+43}"
    M = [f"v{PV0+36+t}" for t in range(3)]
    CN = [R("v", PV0 + 24 + 4*t, 4) for t in range(3)]
    Sx = [R("v", S0 + 4*t, 4) for t in range(3)]
    t_ = f"""
L_slow:
s_waitcnt vmcnt(0) lgkmcnt(0)
s_nop 7
v_mbcnt_lo_u32_b32 {vB}, -1, 0
v_mbcnt_hi_u32_b32 {vB}, -1, {vB}
v_and_b32 {vA}, 15, {vB}
v_lshrrev_b32 {vB}, 4, {vB}
v_lshlrev_b32 {vKo}, 8, {vA}
v_lshl_add_u32 {vKo}, {vB}, 4, {vKo}
s_and_b32 s4, {sWcol}, 128
s_xor_b32 s5, s4, 128
v_add_u32 {vKo2}, s5, {vKo}
v_add_u32 {vKo}, s4, {vKo}
v_lshlrev_b32 {vVo}, 10, {vB}
v_lshl_add_u32 {vVo}, {vA}, 1, {vVo}
v_add_u32 {vVo2}, 0x1000, {vVo}
s_add_u32 s4, {sHr}, {sHead}
s_and_b32 s4, s4, 3
s_lshl_b32 s4, s4, 17
s_mov_b32 s10, 0x80000
s_mov_b32 s14, 0x80000
s_add_u32 s5, s4, 0x20000
s_mov_b32 s6, s4
"""
    for t in range(3): t_ += f"v_mov_b32 {M[t]}, 0xff800000\n"
    t_ += "L_slow1:\n"
    for s in range(4): t_ += f"buffer_load_dwordx4 {FR(0, s)}, {vKo if s < 2 else vKo2}, {srdK}, s6 offen offset:{64*(s & 1)}\n"
    t_ += "s_waitcnt vmcnt(0)\n"
    for t in range(3):
        for s in range(4): t_ += f"v_mfma_f32_16x16x32_bf16 {Sx[t]}, {FR(0, s)}, {QV(s, t)}, {'0' if s == 0 else Sx[t]}\n"
    t_ += "s_nop 9\n"
    for t in range(3):
        t_ += f"v_max3_f32 {M[t]}, {M[t]}, v{S0+4*t}, v{S0+4*t+1}\nv_max3_f32 {M[t]}, {M[t]}, v{S0+4*t+2}, v{S0+4*t+3}\n"
    t_ += "s_add_u32 s6, s6, 0x1000\ns_cmp_lt_u32 s6, s5\ns_cbranch_scc1 L_slow1\n"
    for t in range(3):
        t_ += f"""v_mov_b32 {vA}, {M[t]}
s_nop 1
v_permlane32_swap_b32 {vA}, {M[t]}
s_nop 1
v_max_f32 {M[t]}, {vA}, {M[t]}
v_mov_b32 {vA}, {M[t]}
s_nop 1
v_permlane16_swap_b32 {vA}, {M[t]}
s_nop 1
v_max_f32 {M[t]}, {vA}, {M[t]}
"""
        for i in range(4): t_ += f"v_sub_f32 v{PV0+24+4*t+i}, 0, {M[t]}\n"
    for i in range(96): t_ += f"v_mov_b32 v{i}, 0\n"
    for i in range(12): t_ += f"v_accvgpr_write_b32 a{240+i}, 0\n"
    t_ += "s_mov_b32 s6, s4\nL_slow2:\n"
    for u in range(2):
        for s in range(4): t_ += f"buffer_load_dwordx4 {FR(0, s)}, {vKo if s < 2 else vKo2}, {srdK}, s6 offen offset:{64*(s & 1)}\n"
        t_ += "s_waitcnt vmcnt(0)\n"
        for t in range(3):
            for s in range(4): t_ += f"v_mfma_f32_16x16x32_bf16 {Sx[t]}, {FR(0, s)}, {QV(s, t)}, {CN[t] if s == 0 else Sx[t]}\n"
        t_ += "s_nop 9\n"
        for i in range(12): t_ += f"v_exp_f32 v{S0+i}, v{S0+i}\n"
        t_ += "s_nop 0\n"
        for t in range(3):
            for j in range(2): t_ += f"v_cvt_pk_bf16_f32 {PBr(0, 0, t, 2*u + j)}, v{S0+4*t+2*j}, v{S0+4*t+2*j+1}\n"
        if u == 0: t_ += "s_mov_b32 s7, s6\ns_add_u32 s6, s6, 0x1000\n"
    f = FA0 + 16
    for dt in range(8):
        for j in range(8):
            t_ += f"buffer_load_ushort v{FA0 + j}, {vVo if j < 4 else vVo2}, {srdV}, s7 offen offset:{(j & 3)*256 + 32*dt}\n"
        t_ += "s_waitcnt vmcnt(0)\n"
        for j in range(4): t_ += f"v_lshl_or_b32 v{f + j}, v{FA0 + 2*j + 1}, 16, v{FA0 + 2*j}\n"
        t_ += "s_nop 1\n"
        for t in range(3): t_ += f"v_mfma_f32_16x16x32_bf16 {OA(dt, t)}, v[{f}:{f+3}], {PB(0, 0, t)}, {OA(dt, t)}\n"
    for t in range(3): t_ += f"v_mfma_f32_16x16x32_bf16 {LA(t)}, {ONES}, {PB(0, 0, t)}, {LA(t)}\n"
    t_ += "s_add_u32 s6, s6, 0x1000\ns_cmp_lt_u32 s6, s5\ns_cbranch_scc1 L_slow2\ns_nop 9\n"
    for t in range(3): t_ += f"v_accvgpr_read_b32 {vRL[t]}, a{240+4*t}\n"
    for t in range(3): t_ += f"v_rcp_f32 {vRL[t]}, {vRL[t]}\n"
    t_ += "s_nop 0\n"
    for o in placed: t_ += o.text + "\n"
    for o in pendW0: t_ += o.text + "\n"
    t_ += "s_waitcnt lgkmcnt(0)\n"
    t_ += "s_branch L_join\n"
    return lin(t_)

def spin(lbl, back, reg, off_v, srd, soff, exp):
    return lin(f"""{lbl}:
s_mov_b32 s3, 0
{lbl}_l:
buffer_load_dword {reg}, {off_v}, {srd}, {soff}{' offen' if off_v != 'off' else ''} sc1
s_add_u32 s3, s3, 1
s_waitcnt vmcnt(0)
v_cmp_ne_u32 vcc, {exp}, {reg}
s_cmp_gt_u32 s3, 0x10000
s_cbranch_scc1 {back}
s_nop 2
s_cbranch_vccnz {lbl}_l
s_branch {back}""")

def pad_linear(ops):
    out = []
    for o in ops:
        need = 0
        for (p, n) in o.sdeps:
            if p in out: need = max(need, n - sum(x.w for x in out[out.index(p)+1:]))
        if need > 0:
            nop = Op(f"s_nop {need-1}", "x"); nop.w = need; out.append(nop)
        out.append(o)
    return out

def tail(G):
    X = (lambda: stamp()) if OPT["stamps"] == 3 else (lambda: [])
    def sums(set_, loads):
        o0, p0, s0_ = reduce_ops(set_)
        return [WAIT(0, need_vm=loads)] + pad_linear(o0 + p0 + [s0_])
    def msum(set_, loads):
        A0, A1, D0, D1 = "a[48:51]", "a[52:55]", FR(1, 0), FR(1, 1)
        r = []
        for g in range(8):
            r += [WAIT(0, need_vm=[loads[g]]), mfma(D0, A0, RLD[set_][g], "0" if g == 0 else D0), mfma(D1, A1, RLD[set_][g], "0" if g == 0 else D1)]
        d = regs(D0) + regs(D1); res = regs(FR(1, 2 + set_))
        r += lin("s_nop 7") + [V(f"v_cvt_pk_bf16_f32 {res[j]}, {d[2*j]}, {d[2*j+1]}", rd=[d[2*j], d[2*j+1]], wr=[res[j]]) for j in range(4)]
        return r + [Op(f"buffer_store_dwordx4 {FR(1, 2 + set_)}, {vOut}, {srdO}, {sOut} offen{OSC}", "vm", rd=[FR(1, 2 + set_)])]
    fin = msum if OPT["msum"] else sums
    o = lin("\n".join(scal_B()) + "\ns_nop 1")
    stores = []
    for (cv, sa, st) in pack_store(1):
        o += cv + [sa, st]; stores.append(st)
    o += X() + fin(1, G.LD[1]) + X()
    o += [WAIT(0, need_vm=stores)] + X() + lin("s_barrier") + sig_ops()
    o += lin("s_branch L_spinU@L\nL_backU@L:") + X()
    l7 = red_loads(0); o += l7
    o += lin(f"s_add_u32 {sOut}, {sOutR}, {sOc}")
    if OPT["stamps"] == 3: o += lin("s_waitcnt vmcnt(0)") + X()
    o += fin(0, l7) + X() + X()
    return o

def main():
    R2 = build_R2()
    placed = [o for o in R2.epi if o.gap is not None]; placed.sort(key=lambda o: o.pos)
    R1 = build_R1(R2.left)
    R1b = {h: build_R1b(h) for h in (1, 2, 3)}
    R1f = build_R1f()
    global G_LD, G_LD0
    G0 = build_G(True, R2.left)
    G_LD0 = G0.LD[1]; G_LD = [red_loads(0), red_loads(1)]
    G = build_G()
    bind_ext(R1, [R2.pendW0]); bind_ext(R2, [R1f.pend] + [R1b[h].pend for h in R1b]); bind_ext(G0, [R2.pendW0]); bind_ext(G, [G0.pend, G.pend])
    for h in R1b: bind_ext(R1b[h], [R1.pend])
    for w in R1f.xw: w.text = 's_nop 0'
    pro, zst = prologue(R1f)
    for j, t in enumerate(NEXT): TILE[f'G{j}'] += TILE[t]
    stg = lin(f"""{[f"s_mov_b32 s4, {sG}", f"s_and_b32 s4, {sB}, 3", f"s_mov_b32 s4, {sIdx}"][OPT["stagm"]]}
s_mul_i32 s4, s4, {OPT["stag"]}
L_stg:
s_cmp_eq_u32 s4, 0
s_cbranch_scc1 L_stg2
s_sub_u32 s4, s4, 1
s_branch L_stg
L_stg2:""") if OPT["stag"] else []
    p0 = glue0(zst) + stg + lin("s_branch L_R2")
    sel = lin(f"s_cmp_eq_u32 {sHead}, 2\ns_cbranch_scc1 L_v2\ns_cmp_eq_u32 {sHead}, 3\ns_cbranch_scc1 L_v3")
    v1 = R1b[1].out + lin("s_branch L_R2")
    v2 = lin("L_v2:") + R1b[2].out + lin("s_branch L_R2")
    assert OPT["pf"]
    v3 = lin("L_v3:") + R1b[3].out + mode_check(getattr(R1b[2], "dbg", None)) + (lin(f"v_mbcnt_lo_u32_b32 {vA}, -1, 0\nv_mbcnt_hi_u32_b32 {vA}, -1, {vA}\nv_lshlrev_b32 {vA}, 7, {vA}") if OPT["pf3"] else code_pf("L_pc2", "L_g3", "L_codeend", 15, 76)) + touch_setup()
    g2 = lin(f"s_or_b64 {sBad}, {sBad}, vcc\n{'s_nop 0' if OPT['stress'] else 's_cbranch_scc1 L_slow'}\nL_join:\ns_add_u32 {sHead}, {sHead}, 1\ns_cmp_lt_u32 {sHead}, 4")
    g3 = lin(f"s_cmp_eq_u32 {sSlM}, 7\ns_cbranch_scc1 L_G0S")
    g4 = lin(f"s_mov_b32 {sC[0]}, {sC[2]}\ns_add_u32 {sC[1]}, {sC[0]}, 128\ns_and_b32 {sC[1]}, {sC[1]}, 0x3ff\ns_add_u32 {sC[2]}, {sC[1]}, 128\ns_and_b32 {sC[2]}, {sC[2]}, 0x3ff\ns_cmp_lt_u32 {sIt}, 8")
    T = tail(G)
    sA, sB_, sC_, sD_, sE = stamp(1 if OPT['stamps'] in (1, 3) else 0), stamp(), stamp(), stamp(), stamp(2)
    if OPT["bst"]:
        def dump():
            return lin(f"v_mbcnt_lo_u32_b32 {vA}, -1, 0\nv_mbcnt_hi_u32_b32 {vA}, -1, {vA}\nv_lshlrev_b32 {vA}, 2, {vA}") + [Op(f"buffer_store_dword {vLane}, {vA}, {srdWS}, s101 offen", "vm")] + lin("s_add_u32 s101, s101, 256\ns_nop 1")
        sA = lin(f"s_lshl_b32 s101, s2, 2\ns_add_u32 s101, s101, {sWave}\ns_lshl_b32 s101, s101, 12\ns_add_u32 s101, s101, {hex(DUMP_BASE)}")
        sC_ = dump(); sD_ = dump()
    tr = pro + sA
    for hd in range(4):
        tr += [R1f.out + p0, R1.out + sel + v1, R1.out + sel + v2, R1.out + sel + v3][hd] + sB_ + R2.out + g2 + sC_
    tr += g3
    post = []
    for it in range(3): post += G.out + g4 + sD_
    post += T
    resolve_waits(tr + [x for x in G0.out if x.tag != "touch"] + g4 + sD_ + [x for x in post if x.tag != "fastonly"], TILE)
    tr += G0.out + g4 + sD_ + post
    resolve_waits(tr, TILE)
    errs = check(tr, "main")
    for e in errs[:20]: print(e, file=sys.stderr)
    assert not errs
    for rg in (R1f, R1, R1b[1], R1b[3], R2, G0, G): print(rg.name, "overfull:", rg.overlog, file=sys.stderr)
    out = [open(os.path.join(os.path.dirname(os.path.abspath(__file__)), "header.txt")).read().rstrip()]
    out.append("; @launch grid=(256,1,1) block=(256,1,1) lds=163840")
    out.append(f""".amdgcn_target "amdgcn-amd-amdhsa--gfx950"
; Fused attention block, generated by gen/kernel.py (own gap scheduler, gen/sched.py).
;  - 256 workgroups = (batch b, group g of 4 heads), 4 waves x 48 query rows, one wave per SIMD, 16x16x32 bf16 MFMA.
;    out^T = wo^T O^T; wq / K / V / wo / x tiles (16 KB) stream through a statically planned 10-slot LDS ring by LDS-DMA.
;  - softmax: exp2 of the pre-scaled scores, row sums by MFMA; a run-time range check of the row sums sends a wave to
;    L_slow (two passes with the true row max) whenever the unshifted exponentials could be unsafe.
;    They announce their die in d_debug; if all 8 share one L2 the exchange uses plain stores into two reused slots
;    (L_G0/L_G), otherwise write-through stores into fresh slots (L_G0S/L_GS).
.text
.globl {KN}
.p2align 8
.type {KN},@function
{KN}:""")
    def emit(ops, sc="", lb=""):
        for o in ops:
            if OPT["nobar"] and o.text == "s_barrier" and o.kind == "w": out.append("s_nop 0"); continue
            if OPT["nolg"] and o.kind == "w" and o.text.startswith("s_waitcnt") and "vmcnt" not in o.text: out.append("s_nop 0"); continue
            if OPT["nods"] and o.kind == "ds": continue
            if OPT["novalu"] and o.kind in ("v4", "v8") and o.gap is not None and ("exp" in o.text or "cvt" in o.text or "mul" in o.text or "perm" in o.text or "and" in o.text or "lshl" in o.text or "add_f32" in o.text): continue
            if OPT["nodma"] and o.text.endswith(" lds"): out.append("s_nop 0"); continue
            if OPT["nored"] and " sc1" in o.text and "dwordx4" in o.text: out.append("s_nop 0"); continue
            if getattr(o, "pre", None): out.append(o.pre)
            out.append(o.text.replace("@SC", sc).replace("@L", lb))
    def mark(n):
        return lin("s_memrealtime s[2:3]\ns_waitcnt lgkmcnt(0)\ns_sub_u32 s75, s2, s73") if OPT["dbl"] == n else []
    def idle(n, tag):
        if not n: return []
        return lin(f"""s_memrealtime s[2:3]
s_waitcnt lgkmcnt(0)
s_mov_b32 s5, s2
L_idle{tag}:
s_sleep 2
s_memrealtime s[2:3]
s_waitcnt lgkmcnt(0)
s_sub_u32 s4, s2, s5
s_cmp_lt_u32 s4, {n}
s_cbranch_scc1 L_idle{tag}""")
    def ex(n): return (stamp(2) + lin("s_endpgm")) if OPT["exitat"] == n else []
    emit(pro + mark(3) + idle(OPT['idle0'], 'a') + sA + ex(1) + R1f.out + mark(4) + p0)
    out.append("; ---- head loop: Q-projection steps 0-4, step 5 (three variants), steps 6-7 + attention ----")
    out.append("L_loop:"); emit(R1.out + sel + v1 + v2 + v3); out.append("L_R2:"); emit(idle(OPT['idle1'], 'b') + sB_ + R2.out + g2 + sC_)
    if OPT["dbl"] >= 10:
        emit(lin(f"s_cmp_lg_u32 {sHead}, {OPT['dbl'] - 9}\ns_cbranch_scc1 L_nomark") + mark(OPT["dbl"]) + lin(f"L_nomark:\ns_cmp_lt_u32 {sHead}, 4"))
    if OPT["stamps"] or OPT["bst"]: out.append(f"s_cmp_lt_u32 {sHead}, 4")
    out.append("s_cbranch_scc1 L_loop")
    out.append('; ---- output projection + exchange ----'); out.append('L_g3:'); emit(mark(5) + ex(3) + g3)
    for sc, lb in ((NTST, ""), (" sc1", "S")):
        out.append(f"L_G0{lb}:"); emit([(Op("s_nop 0", "x") if (lb and x.tag == "touch") else x) for x in G0.out] + g4 + sD_, sc, lb)
        out.append(f"L_G{lb}:"); emit(G.out + g4 + sD_, sc, lb)
        if OPT["stamps"] or OPT["bst"]: out.append(f"s_cmp_lt_u32 {sIt}, 8")
        out.append(f"s_cbranch_scc1 L_G{lb}")
        emit([(Op('s_nop 0', 'x') if (lb and x.tag == 'fastonly') else x) for x in T] + sE, sc, lb)
        if OPT["dbl"]:
            emit(lin(f"""s_waitcnt vmcnt(0)
s_memrealtime s[2:3]
s_waitcnt lgkmcnt(0)
{"s_sub_u32 s4, s2, s73" if OPT["dbl"] == 1 else ("s_mov_b32 s4, 500" if OPT["dbl"] == 2 else "s_mul_i32 s4, s75, 4")}
s_min_u32 s4, s4, 40000
s_mov_b32 s5, s2
L_dbl{lb}:
s_sleep 4
s_memrealtime s[2:3]
s_waitcnt lgkmcnt(0)
s_sub_u32 s6, s2, s5
s_cmp_lt_u32 s6, s4
s_cbranch_scc1 L_dbl{lb}"""))
        out.append("s_endpgm")
        if not lb: out.append("L_codeend:")
        for nm in ("G0", "G1", "G1F", "U"): emit(spin(f"L_spin{nm}{lb}", f"L_back{nm}{lb}", vPr, vPo, srdWS, sPoll, sExp))
    emit(lin(f"""L_spinD:
s_add_u32 s3, s3, 1
s_cmp_gt_u32 s3, 0x10000
s_cbranch_scc1 L_backD
s_lshl_b32 {sTmp}, {sB}, 2
buffer_load_dword {vLane}, off, {srdD}, {sTmp} sc1
s_waitcnt vmcnt(0)
s_branch L_chkD"""))
    out.append("; ---- exact-max fallback for one wave and one head ----")
    emit(slow_path(placed, R2.pendW0))
    out.append(f"""s_endpgm
.section .rodata,"a"
.p2align 6
.amdhsa_kernel {KN}
  .amdhsa_next_free_vgpr 512
  .amdhsa_next_free_sgpr 102
  .amdhsa_accum_offset 256
  .amdhsa_group_segment_fixed_size 0
  .amdhsa_kernarg_size 64
  .amdhsa_user_sgpr_count 2
  .amdhsa_user_sgpr_kernarg_segment_ptr 1
  .amdhsa_system_sgpr_workgroup_id_x 1
.end_amdhsa_kernel""")
    print("\n".join(out))
main()
```

```python
import sys, os, struct, math
sys.path.insert(0, os.path.dirname(os.path.abspath(__file__)))
from sched import *
import ringplan

OPT = dict(stamps=0, nt=1, stress=0, msum=1, tord=0, b0=1, clean=0, stag=0, stagm=0, mapping=48, nodma=0, samekv=0, nored=0, ntw=0, ntx=0, bst=0, lrate=2.5, lburst=4, rsp=8, rk=2, i0=-158, dk=75, ksp=18, wsp=7, gst=4, gld=4, gsig=1, gpoll=108, gsum=8, gdma=40, glc=0, rot=1, gout=189, gdsp=5, lag=1, forceslow=0, ntst=0, pf=128, hrot=9, hswap=1, plan=0, uni=1, fnt=1, ntc=0, fntw=0, fntx=0, ones4=1, gb2=1, pf3=0, wstrict=1, rspw=10, samew=0, samex=0, krot=4, osc=0, idle0=0, idle1=0, exitat=0, wb=0, dbl=0, nperm=1, bdw=2, bda=1, vlate=0, tch=0, gtch=0, kvlate=4, tg=0, etch=0, gl3=1, ftch=1, tlb=0, fsp=2, fkv=6, fgap=3, nobar=0, nolg=0, nods=0, novalu=0)
for a in sys.argv[1:]:
    k, v = a.split("="); assert k in OPT, k; OPT[k] = float(v) if "." in v else int(v)
Region.LDSRATE = OPT["lrate"]; Region.LDSBURST = OPT["lburst"]
KN = "standalone__mha_block_cached__near_ridge_kernel"

def OA(mt, t): return R("v", (mt*3 + t)*4, 4)
def OAr(mt, t, i): return f"v{(mt*3 + t)*4 + i}"
QV0, PV0, S0, FA0 = 96, 144, 192, 204
def QV(s, t): return R("v", QV0 + (s*3 + t)*4, 4)
def QVr(s, t, i): return f"v{QV0 + (s*3 + t)*4 + i}"
def PB(buf, sg, t): return R("v", PV0 + 24*buf + (sg*3 + t)*4, 4)
def PBr(buf, sg, t, i): return f"v{PV0 + 24*buf + (sg*3 + t)*4 + i}"
def OP(s, t): return R("v", PV0 + (s*3 + t)*4, 4)
def OPr(s, t, i): return f"v{PV0 + (s*3 + t)*4 + i}"
def FR(buf, f, half=None):
    b = FA0 + 16*buf + 4*f
    return R("v", b, 4) if half is None else R("v", b + 2*half, 2)
vK = ["v236", "v237", "v238", "v239"]
vVb, vWb, vT = "v240", "v241", ["v242", "v243"]
vDK, vDV, vDW, vDX, vC = "v244", "v245", "v246", "v247", "v248"
vRL = ["v249", "v250", "v251"]
vLane, vDWo, vA, vB = "v252", "v253", "v254", "v255"
def XA(s, t): return R("a", (s*3 + t)*4, 4)
ZB = {0: 144, 1: 192, 2: 0}
def ZA(h, s, t): return R("a", ZB[h] + (s*3 + t)*4, 4)
def LA(t): return R("a", 240 + 4*t, 4)
ONES = "a[252:255]"

srdK, srdV, srdW, srdX, srdWS, srdO, srdD = (f"s[{i}:{i+3}]" for i in (8, 12, 16, 20, 24, 28, 32))
sW1k, sXcc, sRot, sOc = "s36", "s37", "s38", "s39"
sC = ["s40", "s41", "s42"]
sDg = ["s43", "s44", "s45", "s46"]
sIdx = "s99"
sH = ["s93", "s95", "s96", "s97"]; sHr = "s98"; sSw = "s3"
sKoff, sVoff, sWcol = "s47", "s48", "s49"
sD = [None, "s50", "s51", "s52"]
sDY = [None, "s53", "s54", "s55"]
sT = ["s56", "s57", "s58", "s59"]
sW4k, sHead, sScale, sWave, sB, sG, sLo, sHi = (f"s{i}" for i in range(60, 68))
sBad = "s[84:85]"
sN = [f"s{i}" for i in range(86, 92)]
sTmp = "s100"
sIt, sSt, sSig, sExp, sLd, sLd2, sOut = (f"s{i}" for i in range(86, 93))
sStR, sLdR, sFlR, sOutR, sSlM, sLdMin, sGate = (f"s{i}" for i in range(68, 75))
sPoll = sSig; sPo = "s99"; sTk, sTh, sTo = "s43", "s44", "s45"
sU = ["s4", "s5"]; sMask = "s6"
OOB = 0x40000000
FLAG_BASE = 0x3040000
STAMP_BASE = 0x3100000
DUMP_BASE = 0x4000000
WS_BYTES = 0x20000000 if OPT["stress"] else (0x8000000 if OPT["bst"] else 0x3200000)
CHUNK = 196608
ORD = [(0,0),(0,1),(0,2),(1,0),(0,3),(1,3),(1,1),(1,2)]
ORDG = [(j >> 2, j & 3) for j in range(8)]
NTKV = {"K": " nt" if OPT["nt"] in (1, 2) else "", "V": " nt" if OPT["nt"] in (1, 3) else ""}
NTW = " nt" if OPT["ntw"] else ""
NTX = " nt" if OPT["ntx"] else ""
def wq_lit(step): return ORD[step][1]*0x100000 + ORD[step][0]*128
def wo_lit(m): return (m & 3)*0x20000 + (m >> 2)*128

def S(text, rd=(), wr=(), **kw): return Op(text, "s", rd=rd, wr=wr, **kw)
def V(text, rd=(), wr=(), **kw): return Op(text, "v4", rd=rd, wr=wr, **kw)
def V8(text, rd=(), wr=(), **kw): return Op(text, "v8", rd=rd, wr=wr, **kw)
def WAIT(d, need_ds=(), need_vm=(), lg0=False, late=3, e=-1):
    o = Op("s_waitcnt ?", "w", e=e, d=d, late=late, deps=[(x, 1) for x in need_ds])
    o.need_ds, o.need_vm, o.lg0 = list(need_ds), list(need_vm), lg0
    return o
def lin(text):
    return [Op(l.strip(), "x") for l in text.strip().split("\n") if l.strip()]

class Ctx: pass
C = Ctx(); C.grp = 0

ringplan.setb(OPT["bdw"], OPT["bda"]); BDW, BDA = OPT["bdw"], OPT["bda"]
wI = {"W0": -210, "W1": -135, "W2": -55, "W3": 36 + BDW, "W4": 78, "W5": 112, "W6": 162, "W7": 186}
xI = {"Xa": -430, "Xb": -350, "Xc": -280}
PLANS = {
 8: {'Xa': -430, 'Xb': -350, 'Xc': -280, 'W0': -210, 'W1': -135, 'W2': -58, 'W3': 38, 'W4': 80, 'W5': 115, 'W6': 150, 'W7': 190, 'K0': -198, 'K1': -130, 'V0': -62, 'K2': 38, 'V1': 104, 'K3': 172, 'V2': 290, 'K4': 361, 'V3': 432, 'K5': 503, 'V4': 574, 'K6': 645, 'V5': 716, 'K7': 787, 'V6': 858, 'V7': 930},
 7: {'Xa': -430, 'Xb': -350, 'Xc': -280, 'W0': -210, 'W1': -135, 'W2': -58, 'W3': 38, 'W4': 80, 'W5': 110, 'W6': 162, 'W7': 186, 'K0': -167, 'K1': -93, 'V0': -19, 'K2': 58, 'V1': 136, 'K3': 214, 'V2': 290, 'K4': 365, 'V3': 439, 'K5': 513, 'V4': 587, 'K6': 661, 'V5': 735, 'K7': 809, 'V6': 884, 'V7': 959},
 5: {'Xa': -430, 'Xb': -350, 'Xc': -280, 'W0': -210, 'W1': -135, 'W2': -55, 'W3': 38, 'W4': 78, 'W5': 112, 'W6': 162, 'W7': 186, 'K0': -170, 'K1': -95, 'V0': -20, 'K2': 55, 'V1': 140, 'K3': 290, 'V2': 345, 'K4': 400, 'V3': 460, 'K5': 525, 'V4': 590, 'K6': 660, 'V5': 730, 'K7': 805, 'V6': 880, 'V7': 955},
 6: {'Xa': -430, 'Xb': -350, 'Xc': -280, 'W0': -210, 'W1': -135, 'W2': -55, 'W3': 38, 'W4': 78, 'W5': 112, 'W6': 162, 'W7': 186, 'K0': -170, 'K1': -95, 'V0': -20, 'K2': 135, 'V1': 290, 'K3': 335, 'V2': 385, 'K4': 435, 'V3': 490, 'K5': 545, 'V4': 605, 'K6': 665, 'V5': 730, 'K7': 805, 'V6': 880, 'V7': 955},
 3: {'Xa': -514, 'Xb': -444, 'Xc': -297, 'W0': -229, 'W1': -155, 'W2': -63, 'W3': 8, 'W4': 38, 'W5': 82, 'W6': 110, 'W7': 180, 'K0': -187, 'K1': -112, 'V0': -38, 'K2': 58, 'V1': 141, 'K3': 216, 'V2': 290, 'K4': 364, 'V3': 436, 'K5': 507, 'V4': 579, 'K6': 651, 'V5': 721, 'K7': 794, 'V6': 863, 'V7': 940},
 4: {'Xa': -514, 'Xb': -444, 'Xc': -297, 'W0': -229, 'W1': -155, 'W2': -63, 'W3': 8, 'W4': 38, 'W5': 82, 'W6': 110, 'W7': 180, 'K0': -180, 'K1': -108, 'V0': -36, 'K2': 58, 'V1': 141, 'K3': 216, 'V2': 290, 'K4': 364, 'V3': 438, 'K5': 512, 'V4': 586, 'K6': 660, 'V5': 734, 'K7': 808, 'V6': 878, 'V7': 950},
 1: {'Xa': -510, 'Xb': -430, 'Xc': -352, 'W0': -205, 'W1': -106, 'W2': -26, 'W3': 5, 'W4': 37, 'W5': 98, 'W6': 161, 'W7': 190, 'K0': -243, 'K1': -157, 'V0': -60, 'K2': 64, 'V1': 130, 'K3': 221, 'V2': 290, 'K4': 354, 'V3': 415, 'K5': 477, 'V4': 593, 'K6': 533, 'V5': 650, 'K7': 728, 'V6': 809, 'V7': 894},
 2: {'Xa': -496, 'Xb': -413, 'Xc': -333, 'W0': -252, 'W1': -103, 'W2': -30, 'W3': 5, 'W4': 38, 'W5': 99, 'W6': 130, 'W7': 188, 'K0': -210, 'K1': -148, 'V0': -54, 'K2': 67, 'V1': 155, 'K3': 221, 'V2': 291, 'K4': 349, 'V3': 409, 'K5': 473, 'V4': 534, 'K6': 598, 'V5': 662, 'K7': 829, 'V6': 747, 'V7': 904},
}
if OPT["plan"] == 9: wI = {"W0": -210, "W1": -135, "W2": -60, "W3": 6, "W4": 38, "W5": 80, "W6": 110, "W7": 150}
elif OPT["plan"] in (11, 12):
    wI.update(dict(zip(ringplan.KV, {11: [-135, -55, 25, 105, 180, 245, 300, 352, 404, 482, 564, 646, 728, 810, 892, 978],
                                     12: [-150, -72, 6, 84, 160, 228, 292, 354, 420, 498, 577, 656, 735, 814, 893, 972]}[OPT["plan"]])))
elif OPT["plan"] == 10: wI = {"W0": -215, "W1": -145, "W2": -75, "W3": 6, "W4": 38, "W5": 70, "W6": 104, "W7": 140}
elif OPT["plan"]: wI = PLANS[OPT["plan"]]; xI = {}
ISS, SLOT, _c, NEED = ringplan.plan(OPT["i0"], OPT["dk"], wI, xI)
assert SLOT is not None
SPR = {}; TIMES = {}
for t in ISS:
    m = ISS[t] % 1200
    sp = OPT["ksp"] if t[0] in "KV" else OPT["wsp"]
    if OPT["uni"] and t[0] in "KV":
        gap_ = min((ISS[u] - ISS[t] - 1) % 1200 + 1 for u in ISS if u[0] in "KV")
        ts_ = [ISS[t] + (gap_*i + 2)//4 for i in range(4)]
        for i in range(4):
            for edge in (0, 240, 288, 1200):
                if edge - 4 <= ts_[i] < edge + 2: ts_[i] = edge + 2
        TIMES[t] = ts_; continue
    if 228 <= m < 288: ISS[t] += 290 - m; m = 290
    SPR[t] = min(sp, ((240 if m < 288 else 1200) - 5 - m)//3); assert SPR[t] >= 1
    TIMES[t] = [ISS[t] + SPR[t]*i for i in range(4)]
BASE = {}
for ch in "KVW":
    for i, b in enumerate(ringplan.bases([SLOT[f"{ch}{i}"] for i in range(8)])[1]): BASE[f"{ch}{i}"] = b
XB = min(SLOT["Xa"], SLOT["Xb"], SLOT["Xc"]); assert max(SLOT["Xa"], SLOT["Xb"], SLOT["Xc"]) - XB <= 3
NEXT = sorted([t for t in ISS if ISS[t] < 0 and t[0] in "WX"], key=lambda t: (t != "W0", ISS[t]))
print("plan:", ISS, SLOT, BASE, NEXT, file=sys.stderr)
TILE = {}
def lit(x): return hex(x & 0xffffffff)
def rebase(rg, typ, old, new, e, d, after=()):
    if old == new: return []
    regs_ = vK if typ == "K" else [vVb if typ == "V" else vWb]
    return [rg.F(V(f"v_add_u32 {r}, {lit((new - old)*16384)}, {r}", rd=[r], wr=[r], e=e, d=d, deps=[(a, 0) for a in after if a])) for r in regs_]
def wq_t0(dst, step):
    hf, dg = ORD[step]
    return [f"s_add_u32 {dst}, {sWcol}, {sDg[dg]}"] + ([f"s_xor_b32 {dst}, {dst}, 128"] if hf else [])
def x_t0(dst, a, q):
    return [f"s_lshr_b32 {dst}, {sDg[q]}, 12"] + ([f"s_add_u32 {dst}, {dst}, {a*65536}"] if a else [])
def tile_src(spec):
    k = spec[0]
    if k == "W": return srdW, vDW, wq_t0(sT[0], spec[1]), sD, (" nt" if (len(spec) > 2 and OPT["fntw"]) else NTW)
    if k == "C": return srdW, vDW, [f"s_add_u32 {sT[0]}, {sC[spec[1]]}, {sH[spec[2]]}"], sD, (" nt" if OPT["ntc"] else "")
    if k == "N": return srdW, vDW, [f"s_mov_b32 {sT[0]}, {sN[spec[1]]}"], sD, NTW
    if k == "Y": return srdX, vDX, [f"s_mov_b32 {sT[0]}, {sN[spec[1]]}"], sDY, NTX
    if k == "X": return srdX, vDX, x_t0(sT[0], spec[1], spec[2]), sDY, (" nt" if (OPT["fntx"] == 1 or (OPT["fntx"] == 2 and spec[2] == 0)) else NTX)
def add_dmas(rg, items):
    ev = []
    for (name, spec, slot, e, sp, bar) in items:
        for i, t in (sp if isinstance(sp, list) else [(i, e + sp*i) for i in range(4)]): ev.append((t, e, i, name, spec, slot, bar))
    ev.sort(key=lambda x: (x[0], x[1]))
    prev = None; cur = None; wopen = None; ts = None; lastw = None; m0 = None
    for (t, e0, i, name, spec, slot, bar) in ev:
        deps = []
        if bar is not None: deps.append((bar, 0))
        if prev is not None: deps.append((prev, 1))
        if cur != slot:
            m0 = rg.F(Op(f"s_add_u32 m0, {sW4k}, {slot*16384}", "t", wr=["m0"], e=t - 6, deps=([(prev, 1)] if prev else []))); cur = slot
        deps.append((m0, 1))
        if spec[0] in "KV":
            so, vo, srd = (sKoff, vDK, srdK) if spec[0] == "K" else (sVoff, vDV, srdV)
            st = rg.inc.get(spec[0])
            if st is not None and i == 0: deps.append((st, 0))
            o = rg.F(Op(f"buffer_load_dwordx4 {vo}, {srd}, {so} offen offset:{i*1024}{NTKV[spec[0]] if (rg.name != 'R1f' or OPT['fnt']) else ''} lds", "vm", rd=[vo, so, "m0"], e=t, d=t + 4, deps=deps))
            if i == 3:
                inc = rg.F(Op(f"s_add_u32 {so}, {so}, 0x4000", "t", rd=[so], wr=[so], deps=[(o, 1)], d=t + 12))
                if name[1] == "7":
                    inc = rg.F(Op(f"s_and_b32 {so}, {so}, 0x7ffff", "t", rd=[so], wr=[so], deps=[(inc, 0)], d=t + 14))
                    nr = "s10" if name[0] == "K" else "s14"
                    rg.F(S(f"s_cmp_eq_u32 {sHead}, 3", deps=[(o, 1)])); inc2 = rg.F(S(f"s_cselect_b32 {nr}, 0, {nr}", d=t + 20))
                rg.inc[spec[0]] = inc
        else:
            srd, vo, t0, dl, fl = tile_src(spec)
            if i == 0:
                assert wopen is None, "W-type tiles may not interleave"
                wopen = name
                tt = rg.F(Op(t0[0], "t", wr=[sT[0]], e=t - 12, deps=([(lastw, 1)] if lastw else [])))
                for x in t0[1:]: tt = rg.F(Op(x, "t", wr=[sT[0]], deps=[(tt, 0)]))
                ts = [tt]
                ts += [rg.F(Op(f"s_add_u32 {sT[j]}, {sT[0]}, {dl[j]}", "t", wr=[sT[j]], deps=[(ts[0], 0)])) for j in (1, 2, 3)]
            o = rg.F(Op(f"buffer_load_dwordx4 {vo}, {srd}, {sT[i]} offen offset:{i*1024}{fl} lds", "vm", rd=[vo, sT[i], "m0"], e=t, d=t + 4, deps=deps + [(ts[i], 0)]))
            if i == 3: wopen = None; lastw = o
        if i == 3: TILE.setdefault(name, []).append(o)
        if i == 0: rg.first_dma[name] = o
        prev = o
    rg.lastw = lastw
def head_dmas(rg, lo, hi):
    items = []
    for t in ISS:
        mine = [(i, x % 1200 - lo) for i, x in enumerate(TIMES[t]) if lo <= x % 1200 < hi]
        if not mine: continue
        m = ISS[t] % 1200
        spec = (t[0],) if t[0] in "KV" else (("W", int(t[1])) if ISS[t] >= 0 else (("N" if t[0] == "W" else "Y"), NEXT.index(t)))
        cands = [g for g in rg.bars if g + lo <= m and any(SLOT[p] == SLOT[t] and NEED[p][1] % 1200 == g + lo for p in NEED)] if mine[0][0] == 0 else []
        bar = rg.bars[max(cands)] if cands else None
        items.append((t, spec, SLOT[t], mine[0][1], mine, bar))
    if OPT["stress"]:
        for g in range(lo + 20, hi - 12, OPT["stress"]):
            o = rg.F(Op(f"buffer_load_dword a241, {vDK}, {srdWS}, s75 offen nt", "vm", e=g - lo, d=g - lo + 6))
            rg.F(Op("s_add_u32 s75, s75, 0x1000", "t", deps=[(o, 1)], d=g - lo + 10))
    add_dmas(rg, items)
def dma_linear(name, spec, slot):
    ops = lin(f"s_add_u32 m0, {sW4k}, {slot*16384}")
    if spec[0] in "KV":
        so, vo, srd = (sKoff, vDK, srdK) if spec[0] == "K" else (sVoff, vDV, srdV)
        d = [Op(f"buffer_load_dwordx4 {vo}, {srd}, {so} offen offset:{i*1024}{NTKV[spec[0]]} lds", "vm") for i in range(4)]
        ops += lin("s_nop 0") + d + lin(f"s_add_u32 {so}, {so}, 0x4000")
    else:
        srd, vo, t0, dl, fl = tile_src(spec)
        d = [Op(f"buffer_load_dwordx4 {vo}, {srd}, {sT[i]} offen offset:{i*1024}{fl} lds", "vm") for i in range(4)]
        ops += lin("\n".join(t0) + "\n" + "\n".join(f"s_add_u32 {sT[i]}, {sT[0]}, {dl[i]}" for i in (1, 2, 3))) + d
    TILE.setdefault(name, []).append(d[-1])
    return ops
def reads_X(rg, addr, slots, dst, e, d, deps, step=1):
    ops = []
    for t in range(3):
        for s in range(4):
            r_, imm = addr(slots[t], s)
            ops.append(rg.F(Op(f"ds_read_b128 {dst(s, t)}, {r_} offset:{imm}", "ds", rd=[r_], wr=[dst(s, t)], e=e, d=d + len(ops)*step,
                               deps=list(deps) + ([(ops[-1], 0)] if ops else []))))
    return ops

def new_region(name):
    rg = Region(name); rg.nst = {"R1": 0, "R1f": 0, "R2": 6, "G": 0, "G0": 0}.get(name, 5)
    ext_waits(rg)
    if OPT['wstrict']: rg.ldspol = (lambda k: (4, 3)) if name != 'R2' else (lambda k: (4, 3) if k < 90 else (OPT['lrate'], OPT['lburst']))
    rg.tuse = {0: [], 1: []}; rg.bars = {}; rg.inc = {}; rg.first_dma = {}; rg.wq = bool(OPT["nperm"]) and name[0] != "G"
    return rg

def xor_addr(rg, base, k, ti, e, d, after=()):
    if k == 0: return base, None
    deps = [(x, 0) for x in rg.tuse[ti]] + [(a, 0) for a in after]
    o = rg.F(V(f"v_xor_b32 {vT[ti]}, {k*32}, {base}", rd=[base], wr=[vT[ti]], e=e, d=d, deps=deps))
    rg.tuse[ti] = []
    return vT[ti], o
def reads_W(rg, so, mt, buf, e, deps=(), ups=(), rsp=None):
    if rg.wq:
        if mt == 2: a, xo = xor_addr(rg, vWb, 2, 0, e - 8, e, ups)
        else: a, xo = (vWb if mt < 2 else vT[0]), None
        so += 8*(mt & 1)
    else: a, xo = xor_addr(rg, vWb, mt, mt & 1, e - 8, e, ups)
    dp = list(deps) + ([(xo, 1)] if xo else [(u, 1) for u in ups])
    ops = []
    for s in range(4):
        for p in range(2):
            ops.append(rg.F(Op(f"ds_read_b64_tr_b16 {FR(buf, s, p)}, {a} offset:{so + s*4096 + p*2048}", "ds", rd=[a], wr=[FR(buf, s, p)],
                               e=e, d=min(e + 1 + len(ops)*(rsp or OPT['rspw' if OPT['wstrict'] else 'rsp'])//8, e + 9), deps=dp + ([(ops[-1], 0)] if ops else []))))
    if rg.wq:
        if mt >= 2: rg.tuse[0] = ops
    elif xo: rg.tuse[mt & 1] = ops
    rg.lastWr = ops
    return ops, xo
def reads_K(rg, so, u, buf, e, deps=(), ups=()):
    ops = []
    for s in range(4):
        ops.append(rg.F(Op(f"ds_read_b128 {FR(buf, s)}, {vK[s]} offset:{so + u*1024}", "ds", rd=[vK[s]], wr=[FR(buf, s)],
                           e=e, d=e + 3 + len(ops)*OPT['rk'], deps=list(deps) + [(x, 1) for x in ups] + ([(ops[-1], 0)] if ops else []))))
    return ops
def reads_V(rg, so, dp_, buf, e, deps=(), ups=(), late=0):
    ops = []; xs = []
    for k in range(2):
        dt = 2*dp_ + k
        a, xo = xor_addr(rg, vVb, dt, k, e - 10, e + 4*k, ups)
        if xo: xs.append(xo)
        dd = list(deps) + ([(xo, 1)] if xo else [(u, 1) for u in ups])
        mine = []
        for sg in range(2):
            for p in range(2):
                o = rg.F(Op(f"ds_read_b64_tr_b16 {FR(buf, 2*k + sg, p)}, {a} offset:{so + sg*2048 + p*1024}", "ds", rd=[a], wr=[FR(buf, 2*k + sg, p)],
                            e=e, d=(e + 2 + len(ops)*OPT['rsp']//8) if not late else (e + 3 + 2*len(ops) if k == 0 else e + 5 + (len(ops)*5)//4), deps=dd + ([(ops[-1], 0)] if ops else [])))
                ops.append(o); mine.append(o)
        if xo: rg.tuse[k] = mine
    return ops, xs

def barrier(rg, gap, last_reads, tiles, extra=(), lg0=True, st=True):
    w = rg.F(WAIT(gap - 1, need_ds=last_reads, need_vm=list(tiles) + list(extra), lg0=lg0, late=1))
    w.deps += [(x, 1) for x in extra if x in rg.fill]
    b = rg.F(Op("s_barrier", "w", e=gap, d=gap, deps=[(w, 1)])); rg.bars[gap] = b
    if OPT["bst"] and st:
        w.pre = "s_memtime s[2:3]"
        i = rg.nst; rg.nst += 1
        rg.F(V(f"v_writelane_b32 {vLane}, s2, {i}", e=gap + 1, d=gap + 8))
    return b
def xstamp(rg, gap, idx, dep):
    if OPT["bst"] < 2: return
    w = rg.F(Op("s_memtime s[2:3]\ns_waitcnt lgkmcnt(0)", "w", e=gap, d=gap, deps=[(dep, 1)]))
    rg.F(V(f"v_writelane_b32 {vLane}, s2, {idx}", deps=[(w, 0)], d=gap))
def ext_waits(rg):
    rg.xw = []
    for d in (-1, 1):
        w = WAIT(d, late=1); w.e = d; rg.F(w); rg.xw.append(w)
def bind_ext(rg, preds):
    rg.xw[0].alt_ds = [p[:4] for p in preds]; rg.xw[1].alt_ds = list(preds)
def frag_waits(rg, rd_ops, first_use, n_first, second_use, only_first=False):
    if rd_ops is None: return
    rg.F(WAIT(first_use - 1, need_ds=rd_ops[:n_first], late=2))
    if n_first < len(rd_ops) and not only_first: rg.F(WAIT(second_use - 1, need_ds=rd_ops, late=1))

def so_(sb): return (sb[0] - sb[1])*16384
def w_step(rg, half, zero, Bop, pend, cur, nxt, need, extra=(), more_reads=(), xwait=None, post=None, nobar=False):
    b0 = rg.n(); info = dict(b0=b0); xlast = None
    if xwait:
        for t in range(3): rg.F(WAIT(b0 + 4*t - 1, need_ds=xwait[:4*t + 4], late=1))
        info["xbar"] = barrier(rg, b0 + 10, xwait, (), lg0=False, st=False)
    for mt in range(4):
        buf = C.grp & 1; C.grp += 1
        g0 = b0 + 12*mt
        if pend is not None and (mt < 3 or BDW): frag_waits(rg, pend, g0, 4, g0 + 2, only_first=(mt == 3 and not nobar))
        for t in range(3):
            for s in range(4):
                acc = OA(4*half + mt, t)
                rg.M(mfma(acc, FR(buf, s), Bop(s, t), "0" if (zero and s == 0) else acc))
        if mt < 3:
            pend, xo = reads_W(rg, so_(cur[1:3]), mt + 1, buf ^ 1, g0 - 1 if (mt or b0) else g0)
            if xo: xlast = xo
            if mt == 0 and rg.wq: base_users = pend
            if mt == 2: bar = None if nobar else barrier(rg, g0 + 11 + BDW, pend + list(more_reads), need, extra)
        else:
            ups = rebase(rg, nxt[0], nxt[3], nxt[2], b0 + 20, g0 - 2, after=([xlast] + (base_users if rg.wq else [])) if nxt[0] == "W" else [])
            if nxt[0] == "W": pend, _ = reads_W(rg, so_(nxt[1:3]), 0, buf ^ 1, g0 - 1 + (0 if nobar else BDW), deps=([] if nobar else [(bar, 0)]), ups=ups, rsp=(4 if post else None))
            else: pend = reads_K(rg, so_(nxt[1:3]), 0, buf ^ 1, g0 - 1 + BDW, deps=[(bar, 0)], ups=ups)
            if post: info["post"] = post(g0, bar)
    info["bar"] = bar; info["end"] = rg.n() - 1
    return pend, info
def TS(name, prev=None):
    k, i = name[0], int(name[1])
    return (k, SLOT[name], BASE[name], BASE[f"{k}{(i - 1) % 8}"])

def softmax(rg, g0, u, Sr, pbuf, d_over, d_puse):
    sg = u >> 1
    for t in range(3):
        last = rg.mf[g0 + 4*t + 3]
        dl = min(d_over(t), d_puse(t) - 3)
        ex = [rg.F(V8(f"v_exp_f32 {Sr(t,i)}, {Sr(t,i)}", rd=[Sr(t,i)], wr=[Sr(t,i)], e=last.gap, sdeps=[(last, 8)], trans=True)) for i in range(4)]
        for j in range(2):
            dst = PBr(pbuf, sg, t, 2*(u & 1) + j)
            rg.F(V(f"v_cvt_pk_bf16_f32 {dst}, {Sr(t,2*j)}, {Sr(t,2*j+1)}", rd=[Sr(t,2*j), Sr(t,2*j+1)], wr=[dst], d=dl,
                   sdeps=[(ex[2*j], 1), (ex[2*j+1], 1)]))
def k_mfmas(rg, buf, Sd):
    for t in range(3):
        for s in range(4):
            rg.M(mfma(Sd(t), FR(buf, s), QV(s, t), "0" if s == 0 else Sd(t)))
def v_mfmas(rg, dp_, buf, pbuf, zero, tmajor=False):
    order = [(k, t) for t in range(3) for k in range(2)] if tmajor else [(k, t) for k in range(2) for t in range(3)]
    last = {}
    for k, t in order:
        for sg in range(2):
            acc = OA(2*dp_ + k, t)
            last[(2*dp_ + k, t)] = rg.M(mfma(acc, FR(buf, 2*k + sg), PB(pbuf, sg, t), "0" if (zero and sg == 0) else acc))
    return last
def sum_mfmas(rg, t, pbuf, zero):
    for sg in range(2):
        o = rg.M(mfma(LA(t), ONES, PB(pbuf, sg, t), "0" if (zero and sg == 0) else LA(t)))
    return o
def o_epilogue_ops(dt, t):
    mul = [V(f"v_mul_f32 {OAr(dt,t,i)}, {vRL[t]}, {OAr(dt,t,i)}", rd=[OAr(dt,t,i), vRL[t]], wr=[OAr(dt,t,i)]) for i in range(4)]
    cvt = []
    for j in range(2):
        dst = OPr(dt >> 1, t, 2*(dt & 1) + j)
        cvt.append(V(f"v_cvt_pk_bf16_f32 {dst}, {OAr(dt,t,2*j)}, {OAr(dt,t,2*j+1)}", rd=[OAr(dt,t,2*j), OAr(dt,t,2*j+1)], wr=[dst],
                     deps=[(mul[2*j], 0), (mul[2*j+1], 0)]))
    for o in mul + cvt: o.ot = (dt, t)
    return mul, cvt
def q_muls(rg, mt, t, last, **kw):
    return [rg.F(V(f"v_mul_f32 {OAr(mt,t,i)}, {sScale}, {OAr(mt,t,i)}", rd=[OAr(mt,t,i)], wr=[OAr(mt,t,i)],
                   e=(last.gap if last is not None else -1), sdeps=([(last, 8)] if last is not None else []), **kw)) for i in range(4)]
def q_epilogue(rg, sp, t, lastA, lastB, d_use, muls=True):
    cv = []
    for k, last in ((0, lastA), (1, lastB)):
        mt = 2*sp + k
        mul = q_muls(rg, mt, t, last) if muls else None
        for j in range(2):
            dst = QVr(sp, t, 2*k + j)
            cv.append(rg.F(V(f"v_cvt_pk_bf16_f32 {dst}, {OAr(mt,t,2*j)}, {OAr(mt,t,2*j+1)}", rd=[OAr(mt,t,2*j), OAr(mt,t,2*j+1)], wr=[dst],
                             deps=([(mul[2*j], 0), (mul[2*j+1], 0)] if muls else []))))
    if OPT["nperm"]:
        for o in cv: o.d = d_use - 3
        return
    for j in range(2):
        a, b = QVr(sp, t, j), QVr(sp, t, 2 + j)
        p1 = rg.F(V8(f"v_permlane32_swap_b32 {a}, {b}", rd=[a, b], wr=[a, b], sdeps=[(cv[j], 2), (cv[2+j], 2)]))
        rg.F(V8(f"v_permlane16_swap_b32 {a}, {b}", rd=[a, b], wr=[a, b], sdeps=[(p1, 2)], d=d_use - 3))

def BopQ(st):
    dg = ORD[st][1]
    return (lambda s, t: XA(4*dg + s, t)) if dg < 3 else (lambda s, t: QV(s, t))

def build_R2():
    rg = new_region("R2")
    C.grp = 24
    pend, i6 = w_step(rg, ORD[6][0], False, BopQ(6), None, TS("W6"), TS("W7"), ["W7"])
    pend, i7 = w_step(rg, ORD[7][0], False, BopQ(7), pend, TS("W7"), TS("K0"), ["K0"])
    a0 = rg.n(); b7 = i7["b0"]
    for sp in (0, 1):
        for t in range(3): q_epilogue(rg, sp, t, None, None, min(a0 + 4*t + sp, 20 + (sp*3 + t)*9), muls=True)
    for sp in (2, 3):
        for t in range(3):
            mA, mB = 2*sp - 4, 2*sp - 3
            q_epilogue(rg, sp, t, rg.mf[b7 + 12*mA + 4*t + 3], rg.mf[b7 + 12*mB + 4*t + 3], a0 + 4*t + sp)
    B = lambda i: a0 + 48 + 102*i
    def layout(i):
        order = ["KVKVKVKV", "KKVKVKVV", "KKKVKVVV", "KKKKVVVV"][OPT["b0"] if i == 0 else 0]
        res = []; off = 0; n = {"K": 0, "V": 0}
        for ch in order:
            res.append((ch, n[ch], off)); off += 12 + (2 if (ch == "V" and n[ch] < 3) else 0); n[ch] += 1
        return res
    def puse(i, sg, t): return (B(i) + [o for (k, j, o) in layout(i) if k == "V"][0] + 2*t + sg) if i < 7 else (B(7) + 4*t + sg)
    def so(n): return so_(TS(n)[1:3])
    def rb(n, e, d, after=()): x = TS(n); return rebase(rg, x[0], x[3], x[2], e, d, after)
    for u in range(4):
        buf = C.grp & 1; C.grp += 1; g0 = rg.n()
        if u < 3 or BDW: frag_waits(rg, pend, g0, 2, g0 + 2, only_first=(u == 3))
        k_mfmas(rg, buf, lambda t: OA(u, t))
        softmax(rg, g0, u, lambda t, i: OAr(u, t, i), 0, lambda t: 10**9, lambda t: puse(0, u >> 1, t))
        if u < 3:
            pend = reads_K(rg, so("K0"), u + 1, buf ^ 1, g0 - 1)
            if u == 2: bar = barrier(rg, g0 + 11 + BDW, pend, ["K1", "V0"]); lastK = pend
        else:
            ups = rb("K1", g0 - 12, g0 - 2, lastK)
            pend = reads_K(rg, so("K1"), 0, buf ^ 1, g0 - 1 + BDW, deps=[(bar, 0)], ups=ups)
            upsV = rb("V0", -1, g0)
    for i in range(7):
        b0 = rg.n(); assert b0 == B(i)
        lay = layout(i); usedV = False; tmp = 7
        for n_, (kind, u, off) in enumerate(lay):
            buf = C.grp & 1; C.grp += 1; g0 = rg.n(); assert g0 == b0 + off
            last = n_ == 7
            if kind == "K":
                frag_waits(rg, pend, g0, 2, g0 + 2)
                if lay[n_ + 1][0] == "K":
                    dt = tmp; tmp -= 1
                    vstart = b0 + [o for (k, j, o) in lay if k == "V" and j == dt >> 1][0]
                    Sd = (lambda dt: lambda t: OA(dt, t))(dt); Sr = (lambda dt: lambda t, j: OAr(dt, t, j))(dt)
                    dov = (lambda v, dt: lambda t: v + 6*(dt & 1) + 2*t - 1)(vstart, dt)
                else:
                    Sd = lambda t: R("v", S0 + 4*t, 4); Sr = lambda t, j: f"v{S0 + 4*t + j}"
                    later = [b0 + o for m_, (k, j, o) in enumerate(lay) if k == "K" and j > u and lay[m_ + 1][0] != "K"]
                    nxtK = later[0] if later else (B(i+1) if i < 6 else None)
                    dov = (lambda x: lambda t: x + 4*t - 1)(nxtK) if nxtK else (lambda t: 10**9)
                k_mfmas(rg, buf, Sd)
                softmax(rg, g0, u, Sr, (i + 1) & 1, dov, (lambda u: lambda t: puse(i + 1, u >> 1, t))(u))
            else:
                if not last or BDA: frag_waits(rg, pend, g0, 4, g0 + 6, only_first=last)
                v_mfmas(rg, u, buf, i & 1, i == 0)
                if u < 3: sum_mfmas(rg, u, i & 1, i == 0)
            if not last:
                nk, nu, _ = lay[n_ + 1]
                if nk == "K":
                    pend = reads_K(rg, so(f"K{i+1}"), nu, buf ^ 1, g0 - 1)
                    if nu == 3: lastK = pend
                else:
                    pend, xs = reads_V(rg, so(f"V{i}"), nu, buf ^ 1, g0 - 1, ups=(upsV if nu == 0 else ()), late=(OPT["vlate"] if nu < 3 else 0))
                    if nu == 3: bar = barrier(rg, b0 + 89 + BDA, pend, [f"K{i+2}", f"V{i+1}"] if i < 6 else ["V7"]); lastX = xs
            elif i < 6:
                ups = rb(f"K{i+2}", g0 - 20, g0 - 2, lastK)
                pend = reads_K(rg, so(f"K{i+2}"), 0, buf ^ 1, g0 - 1 + BDA, deps=[(bar, 0)], ups=ups)
                upsV = rb(f"V{i+1}", g0 - 10, g0 + 4, lastX)
            else:
                upsV = rb("V7", g0 - 10, g0 - 2, lastX)
                pend, _ = reads_V(rg, so("V7"), 0, buf ^ 1, g0 - 1 + BDA, late=0, deps=[(bar, 0)], ups=upsV)
    E = rg.n(); assert E == B(7)
    epi = []
    for p in range(4):
        buf = C.grp & 1; C.grp += 1; g0 = rg.n()
        if p == 0: frag_waits(rg, pend, g0, 4, g0 + 2)
        elif p < 3 or BDW: frag_waits(rg, pend, g0, 4, g0 + 6, only_first=(p == 3))
        last = v_mfmas(rg, p, buf, 1, False, tmajor=(p == 0))
        if p == 0:
            rl = []; lr = []
            for t in range(3):
                ls = sum_mfmas(rg, t, 1, False)
                lr.append(rg.F(V(f"v_accvgpr_read_b32 {vRL[t]}, a{240+4*t}", rd=[f"a{240+4*t}"], wr=[vRL[t]], e=ls.gap, sdeps=[(ls, 8)], d=E + 28)))
            mn = rg.F(V(f"v_min3_f32 {vA}, {vRL[0]}, {vRL[1]}, {vRL[2]}", rd=vRL, wr=[vA], deps=[(x, 0) for x in lr], d=E + 30))
            mx = rg.F(V(f"v_max3_f32 {vB}, {vRL[0]}, {vRL[1]}, {vRL[2]}", rd=vRL, wr=[vB], deps=[(x, 0) for x in lr], d=E + 30))
            rg.F(V(f"v_cmp_gt_f32 {sBad}, {sLo}, {vA}", rd=[vA], wr=[sBad], deps=[(mn, 0)], d=E + 40))
            rg.F(V(f"v_cmp_lt_f32 vcc, {sHi}, {vB}", rd=[vB], wr=["vcc"], deps=[(mx, 0)], d=E + 40))
            for t in range(3):
                rl.append(rg.F(V8(f"v_rcp_f32 {vRL[t]}, {vRL[t]}", rd=[vRL[t]], wr=[vRL[t]], deps=[(mn, 0), (mx, 0)], trans=True, d=E + 34)))
        for (dt, t), lm in last.items():
            mul, cvt = o_epilogue_ops(dt, t)
            for o in mul: o.e = lm.gap; o.sdeps = [(lm, 8), (rl[t], 1)]
            for o in mul + cvt:
                o.optional = True
                if dt >= 4 and o in cvt: o.e = 10**9
                rg.F(o); epi.append(o)
        if p < 3:
            pend, xs = reads_V(rg, so("V7"), p + 1, buf ^ 1, g0 - 1 if p != 0 else g0 + 3)
            if p == 2: bar = barrier(rg, g0 + 11 + BDW, pend, ["W0", "Xa", "Xb", "Xc"])
        else:
            ups = rb("W0", -1, g0 - 2, [])
            for o in ups: o.e = a0
            if OPT["nperm"]: ups = ups + [rg.F(V(f"v_mad_i32_i24 {vWb}, {vC}, {sGate}, {vWb}", rd=[vC, vWb], wr=[vWb], e=a0, d=g0 - 4))]
            pend, _ = reads_W(rg, so("W0"), 0, buf ^ 1, g0 - 1 + BDW, deps=[(bar, 0)], ups=ups, rsp=8)
    assert sorted(g + 288 for g in rg.bars) == ringplan.bS[6:] + [ringplan.bQ] + ringplan.bB + [ringplan.bP]
    if OPT["pf3"]:
        g = OPT["pf3"]
        c1 = rg.F(V(f"v_mbcnt_lo_u32_b32 {vA}, -1, 0", wr=[vA], e=g - 30, d=g - 3))
        c2 = rg.F(V(f"v_mbcnt_hi_u32_b32 {vA}, -1, {vA}", rd=[vA], wr=[vA], deps=[(c1, 0)], d=g - 2))
        c3 = rg.F(V(f"v_lshlrev_b32 {vA}, 7, {vA}", rd=[vA], wr=[vA], deps=[(c2, 0)], d=g - 1))
        rg.F(Op(f"buffer_load_dword {vB}, {vA}, s[76:79], s75 offen", "vm", rd=[vA], wr=[vB], deps=[(c3, 1)], e=g, d=g + 5))
    head_dmas(rg, 288, 1200)
    rg.pendW0 = pend; rg.epi = epi
    rg.schedule()
    return rg

def half0_muls(rg, b4):
    for mt in range(4):
        for t in range(3): q_muls(rg, mt, t, rg.mf[b4 + 12*mt + 4*t + 3])

def build_R1(left):
    rg = new_region("R1")
    C.grp = 0
    xa = [rg.F(V(f"v_add_u32 v{S0+s}, {sW1k}, {vK[s]}", rd=[vK[s]], wr=[f"v{S0+s}"], d=6)) for s in range(4)]
    xr = reads_X(rg, lambda sl, s: (f"v{S0+s}", (sl - XB)*16384), [SLOT["Xa"], SLOT["Xb"], SLOT["Xc"]], QV, 4, 9, [(a, 1) for a in xa], step=2)
    pend = None; infos = []
    for st in range(5):
        pend, inf = w_step(rg, ORD[st][0], st in (0, 3), BopQ(st), pend, TS(f"W{st}"), TS(f"W{st+1}"), [f"W{st+1}"], more_reads=(xr if st == 0 else ()))
        infos.append(inf)
    new = {}
    for o in left:
        dt, t = o.ot
        n = V(o.text, rd=list(o.rd), wr=list(o.wr)); n.ot = o.ot; new[id(o)] = n
        n.deps = [(new[id(p)], g) for (p, g) in o.deps if id(p) in new]
        n.e = 8 if dt >= 6 else -1
        n.d = ((12*dt + 4*t) if dt < 4 else (144 + 12*(dt - 4) + 4*t)) - 1
        rg.F(n)
    head_dmas(rg, 0, 240)
    rg.pend = pend
    rg.schedule()
    return rg

def build_R1b(h, zst=None):
    rg = new_region(f"R1b{h}")
    C.grp = 20
    pend, inf = w_step(rg, ORD[5][0], False, BopQ(5), None, TS("W5"), TS("W6"), ["W6"])
    for i in range(48): rg.F(V(f"v_accvgpr_write_b32 a{ZB[h-1] + i}, v{PV0 + i}", rd=[f"v{PV0+i}"], wr=[f"a{ZB[h-1]+i}"]))
    head_dmas(rg, 240, 288)
    next_setup(rg, h)
    rg.pend = pend
    rg.schedule()
    return rg

def next_setup(rg, h):
    T = lambda x, **kw: rg.F(S(x, **kw))
    if h < 3:
        T(f"s_add_u32 {sWcol}, {sWcol}, 256", deps=([(rg.lastw, 1)] if getattr(rg, "lastw", None) else []))
        T(f"s_and_b32 {sWcol}, {sWcol}, 0x3ff")
        for t in NEXT:
            if t[0] == "W":
                for x in wq_t0(sN[NEXT.index(t)], int(t[1])): T(x)
    if h == 2:
        a = T(f"s_lshl_b32 {sTmp}, {sB}, 2")
        if not OPT["bst"]: rg.dbg = rg.F(Op(f"buffer_load_dword {vLane}, off, {srdD}, {sTmp} sc1", "vm", wr=[vLane], deps=[(a, 0)]))
    if h == 3:
        for x in ("s_mov_b32 s16, s80", "s_mov_b32 s17, s81", "s_mov_b32 s18, 0x80000", "s_mov_b32 s20, s80", "s_mov_b32 s21, s81", "s_mov_b32 s22, 0x80000",
                  f"s_mov_b32 {sGate}, 1"): T(x)
        for i in (1, 2, 3): T(f"s_mov_b32 {sD[i]}, {7168*i}"); T(f"s_mov_b32 {sDY[i]}, {7168*i}")
        for m in range(6): T(f"s_add_u32 {sN[m]}, {sRot if m < 4 else sC[0]}, {sH[m & 3]}")
        if OPT["pf3"]:
            for x in ("s_add_u32 s76, s76, L_g3-L_loop", "s_addc_u32 s77, s77, 0", "s_mov_b32 s78, L_codeend-L_g3"): T(x)
        if OPT["tlb"] == 1:
            sw = T(f"s_mov_b32 {sTmp}, {hex(FLAG_BASE + 0x20080)}")
            for srd, so in ((srdW, "0"), (srdWS, "s75"), (srdWS, sTmp), (srdO, sOutR)):
                rg.F(Op(f"buffer_load_dword {vB}, off, {srd}, {so}", "vm", wr=[vB], deps=[(sw, 0)]))
        rg.F(V(f"v_mov_b32 {vDW}, {vDWo}", rd=[vDWo], wr=[vDW])); rg.F(V(f"v_mov_b32 {vDX}, {vDWo}", rd=[vDWo], wr=[vDX]))

def build_R1f():
    X = lambda q: [f"x{q}{a}" for a in range(3)]
    final = [t for t in ISS if ISS[t] < 288 and t[0] in "KV"] + ["W6", "W7"]
    fk = sorted([t for t in final if t[0] in "KV"], key=lambda t: ISS[t]); assert 3 <= len(fk) <= 7
    OF = [0, 3, 1, 2, 4, 5] if OPT["kvlate"] == 8 else list(range(6))
    if OPT["kvlate"] == 8:
        init = X(0) + ["w0", "w1"] + X(1) + ["w2", "x20"]
        inh = list(zip(["x21", "x22", "w3"], X(0))) + [("x30", "w0"), ("x31", "w1")] + list(zip(["x32", "w4", "w5"], X(1))) + [("W6", "w2")] + \
              list(zip(["W7", fk[0], fk[1]], X(2))) + [(fk[2], "w3")] + list(zip(fk[3:], X(3) + ["w4"]))
    elif OPT["kvlate"] != 4:
        init = X(0) + ["w0"] + X(1) + ["w1", "K0", "K1"]
        inh = list(zip(X(2), X(0))) + [("w2", "w0")] + list(zip(["w3", "x30", "x31"], X(1))) + [("x32", "w1")] + \
              list(zip(["w4", "V0", "w5"], X(2))) + [("K2", "w2"), ("W6", "w3")] + list(zip(["V1", "W7", "K3"], X(3))) + ([("V2", "w4")] if len(fk) == 7 else [])
    else:
        init = X(0) + ["w0"] + X(1) + ["w1", "x20", "x21"]
        inh = list(zip(["x22", "w2", "w3"], X(0))) + [("x30", "w0")] + list(zip(["x31", "x32", "w4"], X(1))) + [("w5", "w1")] + \
              list(zip(["W6", "W7", fk[0]], X(2))) + [(fk[1], "w2"), (fk[2], "w3")] + list(zip(fk[3:], X(3) + ["w4"]))
    sl = {t: SLOT[t] for t in final}
    for new, old in reversed(inh):
        if new in sl: sl[old] = sl[new]
    free = [x for x in range(10) if x not in {sl[t] for t in init if t in sl}]
    for t in init:
        if t not in sl: sl[t] = free.pop()
    for new, old in inh: sl[new] = sl[old]
    def spec(t):
        if t[0] == "x": return ("X", int(t[2]), int(t[1]))
        if t[0] == "w": return ("W", OF[int(t[1])], 1)
        if t[0] == "W": return ("W", int(t[1]))
        return (t[0],)
    wsl = [sl[f"w{j}"] for j in range(6)] + [SLOT["W6"]]
    wb = [min(x, 6) for x in wsl[:6]] + [BASE["W6"]]
    rg = new_region("R1f")
    C.grp = 0
    xaddr = lambda s_, s: (f"v{S0 + 4*(s_ >> 2) + s}", (s_ & 3)*16384)
    sh = 1 if OPT["kvlate"] == 8 else 0
    dst = {sh: (1, lambda s, t: XA(4 + s, t)), 1 + sh: (2, lambda s, t: XA(8 + s, t)), 3: (3, QV)}
    pend = None; infos = []; xw = None
    for st in range(6):
        post = None; need = [f"w{st+1}" if st < 5 else "W6"]
        if st in dst:
            q, fn = dst[st]; need += X(q)
            post = (lambda q, fn: lambda g0, bar: reads_X(rg, xaddr, [sl[t] for t in X(q)], fn, g0 + 2 + BDW, g0 + 5 + BDW, [(bar, 0)]))(q, fn)
        pend, inf = w_step(rg, ORD[OF[st]][0], OF[st] in (0, 3), BopQ(OF[st]), pend, ("W", wsl[st], wb[st]), ("W", wsl[st+1], wb[st+1], wb[st]), need, xwait=xw, post=post)
        xw = inf.get("post"); infos.append(inf)
    rel = {"w%d" % j: infos[j]["bar"] for j in range(6)}
    for q, st in ((1, 1 + sh), (2, 2 + sh), (3, 4)):
        for t in X(q): rel[t] = infos[st]["xbar"]
    items = []; tcur = 0
    if OPT["kvlate"] == 8: seq = [(t, None) for t in ("w2", "x20", "x21", "x22", "w3")] + inh[3:]
    elif OPT["kvlate"] != 4:
        seq = [(t, None) for t in ("x20", "x21", "x22")] + inh[3:]
        kp = {0: (3, 4), 1: (8, 9), 2: (4, 9), 3: (9, 12), 5: (0, 5), 6: (3, 7), 7: (3, 4)}[OPT["kvlate"]]
        seq.insert(kp[0], ("K0", None)); seq.insert(kp[1], ("K1", None))
    else: seq = [(t, None) for t in ("x20", "x21", "x22", "w2", "w3")] + inh[3:]
    for new, old in seq:
        if old: tcur = max(tcur, rel[old].e)
        if 5 <= OPT["kvlate"] < 8 and new == "K3": tcur = max(tcur, 255)
        sp = OPT["fsp"] if (new[0] not in "KV" or OPT["kvlate"] not in (4, 8)) else OPT["fkv"]
        cnt = sum(1 for x in TIMES[new] if x < 288) if new in TIMES else 4
        if OPT["kvlate"] == 7 and new[0] in "KV":
            t0, sp = {"K0": (18, 11), "K1": (62, 11), "V0": (112, 9), "K2": (150, 11), "V1": (206, 8), "K3": (240, 9), "V2": (278, 2)}[new]
            items.append((new, spec(new), sl[new], t0, [(i, t0 + sp*i) for i in range(cnt)], rel[old] if old else None)); continue
        items.append((new, spec(new), sl[new], tcur, [(i, tcur + sp*i) for i in range(cnt)], rel[old] if old else None)); tcur += 4*sp + (1 if sp == OPT["fsp"] else OPT["fgap"])
    add_dmas(rg, items)
    next_setup(rg, 0)
    rg.pend = pend
    rg.schedule()
    rg.init = [(t, spec(t), sl[t]) for t in init[:8]]; rg.wb0 = wb[0]; rg.wso0 = (wsl[0] - wb[0])*16384
    rg.x0 = [xaddr(sl[t], 0) for t in X(0)]; rg.xsl0 = [sl[t] for t in X(0)]; rg.xaddr = xaddr
    return rg

RLD = [[R("v", QV0 + 4*g, 4) for g in range(8)],
       [R("v", QV0 + 32 + 4*g, 4) for g in range(4)] + [R("v", S0 + 4*g, 4) for g in range(3)] + ["v[236:239]"]]
vTo = vLane if not OPT['bst'] else 'v235'
vSt, vFl, vPo, vPr, vOut = vDK, vDV, vVb, vDX, vC
LAG = OPT['lag']; OSC = ['', ' sc1', ' nt', ' sc0 sc1'][OPT['osc']]
NTST = ' nt' if OPT['ntst'] else ''
LO = ["v249", "v250", "v251", "v253"]
def pack_store(chunk):
    res = []
    for t in range(3):
        for np_ in range(2):
            a, b = 4*chunk + 2*np_, 4*chunk + 2*np_ + 1
            src = [(OAr(a,t,0), OAr(a,t,1)), (OAr(a,t,2), OAr(a,t,3)), (OAr(b,t,0), OAr(b,t,1)), (OAr(b,t,2), OAr(b,t,3))]
            cv = []
            for j in range(4):
                cv.append(V(f"v_cvt_pk_bf16_f32 {OAr(a,t,j)}, {src[j][0]}, {src[j][1]}", rd=list(src[j]), wr=[OAr(a,t,j)], deps=([(cv[-1], 0)] if cv else [])))
            k = 2*t + np_
            sa = S(f"s_add_u32 {sU[k & 1]}, {sSt}, {k*8192}", wr=[sU[k & 1]])
            st = Op(f"buffer_store_dwordx4 {OA(a,t)}, {vSt}, {srdWS}, {sU[k & 1]} offen@SC", "vm", rd=[OA(a,t), vSt], deps=[(cv[-1], 1), (sa, 0)])
            res.append((cv, sa, st))
    return res
def reduce_ops(set_):
    X = [regs(r_) for r_ in RLD[set_]]
    tmp = [vA, vB]; ops = []; n = 0
    for k in range(4):
        ops += [V(f"v_lshlrev_b32 {LO[k]}, 16, {X[0][k]}", rd=[X[0][k]], wr=[LO[k]]),
                V(f"v_and_b32 {X[0][k]}, {sMask}, {X[0][k]}", rd=[X[0][k]], wr=[X[0][k]])]
        for g in range(1, 8):
            tm = tmp[n & 1]; n += 1
            ops += [V(f"v_lshlrev_b32 {tm}, 16, {X[g][k]}", rd=[X[g][k]], wr=[tm]),
                    V(f"v_and_b32 {X[g][k]}, {sMask}, {X[g][k]}", rd=[X[g][k]], wr=[X[g][k]]),
                    V(f"v_add_f32 {LO[k]}, {LO[k]}, {tm}", rd=[LO[k], tm], wr=[LO[k]]),
                    V(f"v_add_f32 {X[0][k]}, {X[0][k]}, {X[g][k]}", rd=[X[0][k], X[g][k]], wr=[X[0][k]])]
        ops.append(V(f"v_cvt_pk_bf16_f32 {X[0][k]}, {LO[k]}, {X[0][k]}", rd=[LO[k], X[0][k]], wr=[X[0][k]]))
    for a, b in zip(ops, ops[1:]): b.deps.append((a, 0))
    pl = []
    for j in range(2):
        pl.append(V8(f"v_permlane32_swap_b32 {X[0][j]}, {X[0][2+j]}", rd=[X[0][j], X[0][2+j]], wr=[X[0][j], X[0][2+j]], sdeps=[(ops[-1], 2)]))
    for j in range(2):
        pl.append(V8(f"v_permlane16_swap_b32 {X[0][j]}, {X[0][2+j]}", rd=[X[0][j], X[0][2+j]], wr=[X[0][j], X[0][2+j]], sdeps=[(pl[j], 2)]))
    st = Op(f"buffer_store_dwordx4 {RLD[set_][0]}, {vOut}, {srdO}, {sOut} offen{OSC}", "vm", rd=[RLD[set_][0], vOut, sOut], deps=[(pl[2], 1), (pl[3], 1)])
    return ops, pl, st
def red_loads(set_):
    return [Op(f"buffer_load_dwordx4 {RLD[set_][g]}, {vSt}, {srdWS}, {sLd if g < 4 else sLd2} offen offset:{(g & 3)*1024} sc1", "vm",
               rd=[vSt], wr=[RLD[set_][g]]) for g in range(8)]
def sig_ops():
    return [Op(f"buffer_store_dword {vSt}, {vFl}, {srdWS}, {sSig} offen@SC", "vm", rd=[vSt, vFl])]
def scal_A():
    return [f"s_sub_u32 {sTmp}, {sIt}, 1", f"s_and_b32 {sTmp}, {sTmp}, {sSlM}", f"s_mul_i32 {sTmp}, {sTmp}, {CHUNK}",
            f"s_add_u32 {sSt}, {sStR}, {sTmp}", f"s_add_u32 {sLd}, {sLdR}, {sTmp}", f"s_add_u32 {sLd2}, {sLd}, 0x1000",
            f"s_add_u32 {sSig}, {sSig}, 256"]
def scal_B():
    return [f"s_add_u32 {sOut}, {sOutR}, {sOc}", f"s_add_u32 {sOc}, {sOc}, 128", f"s_and_b32 {sOc}, {sOc}, 0x3ff", f"s_add_u32 {sIt}, {sIt}, 1"]

def build_G(first=False, left=()):
    rg = new_region("G0" if first else "G"); L = "F" if first else ""
    used = [SLOT[t] for t in NEXT]
    gs = used + [SLOT["K0"]] + [x for x in range(10) if x not in used and x not in (SLOT["K0"], SLOT["K1"], SLOT["V0"])][:1]
    assert len(gs) == 8
    gb = ringplan.bases(gs, BASE["W0"])[1]
    items = []; bars = {}; st_last = {}; rg.touch = []
    C.grp = 0
    def Bop(h): return (lambda s, t: ZA(h, s, t)) if h < 3 else (lambda s, t: OP(s, t))
    LD = [red_loads(0), red_loads(1)] if first else G_LD
    pend = None; prev_users = []
    if first:
        new = {}
        for o in left:
            dt, t = o.ot
            n = V(o.text, rd=list(o.rd), wr=list(o.wr)); new[id(o)] = n
            n.deps = [(new[id(p)], g) for (p, g) in o.deps if id(p) in new]
            n.e = 8 if dt >= 6 else -1
            n.d = (12*dt + 4*t - 1) if dt < 4 else (144 + 4*t + (dt >> 1) - 3)
            rg.F(n)
        cs = []
        for x in f"""v_mbcnt_lo_u32_b32 {vA}, -1, 0
v_mbcnt_hi_u32_b32 {vA}, -1, {vA}
v_lshlrev_b32 {vSt}, 4, {vA}
v_and_b32 {vPo}, 7, {vA}
v_lshlrev_b32 {vPo}, 2, {vPo}
v_lshrrev_b32 {vB}, 4, {vA}
v_bfe_u32 {vOut}, {vA}, 2, 2
v_and_b32 {vA}, 3, {vA}
v_lshl_add_u32 {vA}, {vOut}, 4, {vA}
v_lshlrev_b32 {vA}, 10, {vA}
v_lshl_add_u32 {vOut}, {vB}, 4, {vA}
v_mov_b32 {vFl}, {hex(OOB)}""".split("\n"):
            cs.append(rg.F(V(x, e=(0 if len(cs) < 3 else 40), d=110, deps=[(cs[-1], 0)] if cs else [])))
        sc = [rg.F(S(x)) for x in (f"s_lshl_b32 s5, {sG}, 2", f"s_cmp_eq_u32 {sWave}, 0", f"s_cselect_b32 s5, s5, {hex(OOB)}", f"s_mov_b32 {sMask}, 0xffff0000",
                                   f"s_mov_b32 {sLd}, {sLdR}", f"s_add_u32 {sLd2}, {sLd}, 0x1000", f"s_mov_b32 {sSig}, {sFlR}", f"s_mov_b32 {sExp}, 16")]
        wl = rg.F(V(f"v_writelane_b32 {vFl}, s5, 1", deps=[(cs[-1], 0), (sc[2], 0)], d=120))
        prev = None
        for k in range(2):
            if k: a1 = rg.F(S(f"s_add_u32 {sLd}, {sLd}, {CHUNK}", deps=[(prev, 1)])); a2 = rg.F(S(f"s_add_u32 {sLd2}, {sLd}, 0x1000"))
            for i, o in enumerate(red_loads(k)):
                o.text = o.text.replace(" sc1", ""); o.tag = "touch"
                o.e = (OPT["gdma"] + 84 if k else 8) + 4*i; o.d = o.e + 3
                o.deps = [(cs[2], 1), ((a2 if k else sc[5]), 0)] + ([(prev, 1)] if prev else []); rg.F(o); prev = o; rg.touch.append(o)
        last0 = prev
        f = 48; prevm = None
        seq = [(f"v_lshrrev_b32 v{f}, 4, {vSt}", 0), (f"v_lshrrev_b32 v{f+1}, 4, v{f}", 0), (f"v_and_b32 v{f+2}, 1, v{f}", 0), (f"v_lshlrev_b32 v{f+2}, 4, v{f+2}", 0),
               (f"v_mov_b32 v{f+3}, 0x3f80", 0), (f"v_lshlrev_b32 v{f+2}, v{f+2}, v{f+3}", 0), (f"v_bfe_u32 v{f+3}, v{f}, 1, 1", 0), (f"v_bfe_u32 v{f+4}, v{f}, 3, 1", 0),
               (f"v_lshl_add_u32 v{f+3}, v{f+4}, 1, v{f+3}", 0), (f"v_bfe_u32 v{f+4}, v{f}, 2, 1", 0), (f"v_lshlrev_b32 v{f+4}, 1, v{f+4}", 0), (f"v_add_u32 v{f+5}, 1, v{f+4}", 0),
               (f"v_cmp_eq_u32 vcc, v{f+1}, v{f+4}", 0), (f"v_cmp_eq_u32 {sBad}, v{f+1}, v{f+5}", 0),
               (f"v_cndmask_b32 v{f+6}, 0, v{f+2}, vcc", 2), (f"v_cndmask_b32 v{f+7}, 0, v{f+2}, {sBad}", 0)]
        for r_ in range(4):
            seq += [(f"v_cmp_eq_u32 vcc, {r_}, v{f+3}", 0), (f"v_cndmask_b32 v{f}, 0, v{f+6}, vcc", 2), (f"v_cndmask_b32 v{f+1}, 0, v{f+7}, vcc", 0),
                    (f"v_accvgpr_write_b32 a{48+r_}, v{f}", 0), (f"v_accvgpr_write_b32 a{52+r_}, v{f+1}", 0)]
        for x, n_ in seq:
            prevm = rg.F(V(x, rd=[f"v[{f}:{f+7}]"], wr=[f"v[{f}:{f+7}]"], e=152, d=188, deps=([(prevm, 0)] if prevm else []), sdeps=([(prevm, n_)] if n_ else [])))
    for hf in range(2):
        h0 = 192*hf
        do_st = not (first and hf == 0); do_sum = not first
        stores = []
        if do_st:
            for (cv, sa, st) in pack_store(1 - hf):
                for o in cv: o.e = h0 + 8; rg.F(o)
                if len(stores) >= 2: sa.deps.append((stores[-2], 1))
                rg.F(sa); st.e = h0 + 10 + OPT['gst']*len(stores); st.d = st.e + 3; rg.F(st); stores.append(st)
        if do_sum:
            sc = [rg.F(S(x, e=h0, deps=[(u, 1) for u in prev_users])) for x in scal_B()]
            if hf == 0: sB0 = sc[-1]
            cur = hf ^ 1
            w0 = rg.F(WAIT(h0 + OPT['gsum'], need_vm=LD[cur] + (G_LD0 if hf == 0 else []), late=1)); w0.e = h0 + OPT['gsum']
            o0, p0, s0_ = reduce_ops(cur)
            o0[0].deps.append((w0, 0))
            for o in o0 + p0 + [s0_]: rg.F(o)
            s0_.d = h0 + OPT['gout']; s0_.deps += [(sc[0], 0), (LD[hf][-1], 1)]
            prev_users = [s0_]
        infos = []
        for j in range(4):
            st = 4*hf + j
            n1 = (st + 1) & 7
            pend, inf = w_step(rg, hf, j == 0, Bop(j), pend, ("W", gs[st], gb[st]), ("W", gs[n1], gb[n1], gb[st]), [f"G{n1}"] + ([f"G{(st + 2) & 7}"] if OPT["gb2"] else []),
                               extra=(stores if j == 1 else ()), nobar=(OPT["gb2"] and not (j & 1)))
            infos.append(inf); bars[st] = inf["bar"]
            if OPT["gb2"] and (j & 1): bars[st - 1] = inf["bar"]
        if do_st:
            sig, = sig_ops(); bs = infos[1]["bar"]
            sig.deps = [(bs, 0)]; sig.d = bs.e + 1; rg.F(sig)
            rg.F(S(f"s_load_dwordx8 s[8:15], s[82:83], {sSig}", e=h0 + OPT['gpoll'], d=h0 + OPT['gpoll'] + 4))
            b2 = infos[2]["bar"]
            if b2 is None:
                b2 = rg.F(WAIT(h0 + 132, lg0=True, late=1)); b2.e = h0 + 132
            for x in ("s_and_b32 s8, s8, s9", "s_and_b32 s10, s10, s11", "s_and_b32 s12, s12, s13", "s_and_b32 s14, s14, s15",
                      "s_and_b32 s8, s8, s10", "s_and_b32 s12, s12, s14", "s_and_b32 s8, s8, s12", "s_bitcmp0_b32 s8, 4"): rg.F(S(x, deps=[(b2, 0)]))
            br = rg.F(Op(f"s_cbranch_scc1 L_spinG{hf}{L}@L\nL_backG{hf}{L}@L:", "s", d=b2.e + 12))
            prev = None
            for i, o in enumerate(LD[hf]):
                o.deps += [(br, 0)] + ([(prev, 1)] if prev else []); o.e = b2.e + 10 + OPT['gld']*i; o.d = o.e + 3; rg.F(o); prev = o
            lastld = LD[hf][-1]
        else: lastld = last0
        if first: rg.F(S(f"s_mov_b32 {sIt}, {hf + 1}", deps=[(lastld, 1)]))
        for i, x in enumerate(scal_A()): rg.F(S(x, deps=[(lastld, 1)] if i == 0 else []))
        for k in range(4):
            st = (4*hf - 2 + k) & 7
            items.append((f"G{st}", ("C", (1 + (st >> 2)) if (hf or k > 1) else 0, st & 3), gs[st], h0 + OPT["gdma"] + k*(4*OPT["gdsp"] + 1) + (4 if (OPT["gb2"] and k > 1) else 0), OPT["gdsp"],
                          bars[st] if (hf or k > 1) else None))
        if stores: st_last[hf] = stores[-1]
    add_dmas(rg, items)
    if not first:
        c1 = S(f"s_cmp_ge_u32 {sIt}, 7", deps=[(TILE["G7"][-1], 1)]); c2 = S("s_cselect_b32 s18, 0, s18", wr=["s18"], rd=["s18"])
        pos = rg.fill.index(sB0) + 1
        rg.fill[pos:pos] = [c1, c2]
        for i, o in enumerate(rg.fill): o.seq = i + 1
        rg.first_dma["G0"].deps.append((c2, 0))
        rg.first_dma["G6"].deps.append((st_last[0], 1))
    rg.first_dma["G2"].deps.append((st_last[1], 1))
    rg.LD = LD; rg.pend = pend
    rg.schedule()
    return rg

def stamp(kind=0):
    if not OPT["stamps"]: return []
    def put(x): return lin(f"v_mov_b32 {vA}, {x}") + [Op(f"buffer_store_dword {vA}, off, {srdWS}, s101", "vm")] + lin("s_add_u32 s101, s101, 4\ns_nop 1")
    if kind == 1: return put("s94") + put("s92") + ((lin("s_waitcnt lgkmcnt(0)") + put("s84") + put("s92") + put("s86") + put("s92")) if OPT["stamps"] == 4 else []) + stamp()
    if kind == 2: return lin("s_waitcnt vmcnt(0)") + stamp()
    return lin("s_memtime s[2:3]\ns_memrealtime s[4:5]\ns_waitcnt lgkmcnt(0)") + put("s2") + put("s4")

def code_pf(lbl, start, end, mask, r):
    if not OPT["pf"]: return []
    return lin(f"""s_getpc_b64 s[{r}:{r+1}]
{lbl}:
s_add_u32 s{r}, s{r}, {start}-{lbl}
s_addc_u32 s{r+1}, s{r+1}, {"-1" if start == KN else "0"}
s_mov_b32 s{r+2}, {end}-{start}
s_mov_b32 s{r+3}, 0x20000
s_lshl_b32 s5, {sIdx}, 2
s_add_u32 s5, s5, {sWave}
s_and_b32 s5, s5, {mask}
s_lshl_b32 s5, s5, 13
v_mbcnt_lo_u32_b32 {vA}, -1, 0
v_mbcnt_hi_u32_b32 {vA}, -1, {vA}
v_lshlrev_b32 {vA}, 7, {vA}""") + [Op(f"buffer_load_dword {vB}, {vA}, s[{r}:{r+3}], s5 offen", "vm")]

HROT = {0: "s_mov_b32 s5, 0", 1: "s_mov_b32 s5, s4", 2: f"s_mov_b32 s5, {sG}", 3: f"s_add_u32 s5, s4, {sG}", 4: f"s_lshr_b32 s5, {sG}, 1",
        5: f"s_lshr_b32 s5, {sB}, 3", 6: f"s_lshr_b32 s5, {sG}, 2\ns_lshl_b32 s3, {sG}, 1\ns_or_b32 s5, s5, s3", 7: f"s_sub_u32 s5, 0, {sG}", 8: f"s_lshl_b32 s5, {sG}, 2", 9: f"s_lshl_b32 s5, s4, 2"}[OPT["hrot"]]
if OPT["krot"] < 3:
    KROT = f"""{f"s_add_u32 s4, {sB}, {sG}" if OPT["krot"] == 2 else ""}
s_and_b32 s4, s4, {3 if OPT["krot"] else 0}
s_lshl_b32 {sDg[0]}, s4, 20
s_add_u32 {sDg[1]}, {sDg[0]}, 0x100000
s_and_b32 {sDg[1]}, {sDg[1]}, 0x3fffff
s_xor_b32 {sDg[2]}, {sDg[0]}, 0x200000
s_xor_b32 {sDg[3]}, {sDg[1]}, 0x200000"""
else:
    KROT = f"""{f"s_add_u32 s5, {sB}, {sG}" if OPT["krot"] == 3 else f"s_mov_b32 s5, {sG}"}
s_mul_i32 s3, s5, 43
s_lshr_b32 s3, s3, 7
s_mul_i32 s3, s3, 3
s_sub_u32 s5, s5, s3
s_add_u32 {sDg[3]}, s4, 3
s_add_u32 {sDg[0]}, s4, s5
s_cmp_eq_u32 s5, 2
s_cselect_b32 s3, -2, 1
s_add_u32 {sDg[1]}, {sDg[0]}, s3
s_cmp_eq_u32 s5, 0
s_cselect_b32 s3, 2, -1
s_add_u32 {sDg[2]}, {sDg[0]}, s3""" + "".join(f"\ns_and_b32 {sDg[q]}, {sDg[q]}, 3\ns_lshl_b32 {sDg[q]}, {sDg[q]}, 20" for q in range(4))
def prologue(F):
    init = F.init
    o = lin(f"""
s_cmp_lt_u32 s2, 256
s_cbranch_scc1 L_go
s_endpgm
L_go:
{"s_memrealtime s[92:93]" if (OPT["stamps"] or OPT["dbl"]) else ""}
{"s_memtime s[94:95]" if OPT["stamps"] else ""}
s_load_dwordx16 s[68:83], s[0:1], 0
v_lshrrev_b32 v1, 6, v0
v_and_b32 {vLane}, 63, v0
s_and_b32 s4, s2, 7
v_readfirstlane_b32 {sWave}, v1
s_lshr_b32 s5, s2, 3
s_mov_b32 {sIdx}, s5""")
    mp = {84: (1, 3, 2, 1, 2, 3), 48: (0, 2, 3, 0, 3, 7), 162: (2, 4, 1, 3, 1, 1)}[OPT["mapping"]]
    o += lin(f"""
s_lshr_b32 s6, s4, {mp[0]}
s_lshl_b32 s6, s6, {mp[1]}
s_lshr_b32 s7, s5, {mp[2]}
s_add_u32 {sB}, s6, s7
s_and_b32 s6, s4, {mp[3]}
s_lshl_b32 s6, s6, {mp[4]}
s_and_b32 s7, s5, {mp[5]}
s_add_u32 {sG}, s6, s7""")
    cbits = struct.unpack("<I", struct.pack("<f", math.log2(math.e)/math.sqrt(128)))[0]
    o += lin(f"""
s_lshl_b32 {sW4k}, {sWave}, 12
v_lshrrev_b32 v5, 4, {vLane}
v_and_b32 v6, 15, {vLane}
s_lshl_b32 s6, {sWave}, 4
v_add_u32 v1, s6, v5
s_lshl_b32 s6, {sWave}, 2
v_or_b32 v2, s6, v5
v_xor_b32 v2, v2, v6
v_lshlrev_b32 v2, 4, v2
v_lshl_add_u32 {vDX}, v1, 10, v2
v_lshl_add_u32 {vDK}, v1, 8, v2
v_lshrrev_b32 v7, 5, {vLane}
v_bfe_u32 v2, {vLane}, 3, 2
v_lshl_add_u32 v7, v7, 3, v2
s_lshl_b32 s6, {sWave}, 5
v_add_u32 v7, s6, v7
v_and_b32 v3, 7, {vLane}
v_lshlrev_b32 v4, 1, v5
v_xor_b32 v3, v3, v4
v_lshlrev_b32 v3, 4, v3
s_mov_b32 {sDY[1]}, 3072
s_mov_b32 {sDY[2]}, 6144
s_mov_b32 {sDY[3]}, 9216
s_mov_b32 {sD[1]}, {16*8192 - 1024}
s_mov_b32 {sD[2]}, {4*8192 - 2048}
s_mov_b32 {sD[3]}, {20*8192 - 3072}
s_lshr_b32 s4, {sB}, 2
{HROT}
s_bfe_u32 {sSw}, s5, {"0x10002" if OPT["hswap"] else "0x00002"}
s_and_b32 s5, s5, {3 if OPT["hrot"] else 0}
s_mov_b32 {sHr}, s5
s_lshl_b32 {sWcol}, s5, 8
s_lshl_b32 {sSw}, {sSw}, 7
s_or_b32 {sWcol}, {sWcol}, {sSw}
s_lshr_b32 {sSw}, {sSw}, 1
v_xor_b32 v7, {sSw}, v7
v_lshl_add_u32 {vDW}, v7, 13, v3
s_lshl_b32 {sKoff}, s5, 17
s_mov_b32 {sVoff}, {sKoff}
{KROT}
s_mul_i32 s7, {sB}, {0 if OPT["samex"] else 196608}
s_mov_b32 s22, 196608
s_mov_b32 s23, 0x20000
s_mov_b32 s19, 0x20000
s_lshl_b32 s4, {sG}, 10
{"s_mov_b32 s4, 0" if OPT["samew"] else ""}
s_sub_u32 s18, 0x400000, s4
s_waitcnt lgkmcnt(0)
s_add_u32 s20, s68, s7
s_addc_u32 s21, s69, 0
s_add_u32 s16, s74, s4
s_addc_u32 s17, s75, 0""")
    if OPT["tch"]:
        o += lin(f"""v_lshrrev_b32 v8, 1, {vLane}
v_and_b32 v9, 1, {vLane}
v_lshlrev_b32 v9, 7, v9
v_lshl_add_u32 v11, v8, 13, v9
v_lshl_add_u32 v8, v8, 10, v9
v_mov_b32 v10, {hex(OOB)}
v_cmp_gt_u32 vcc, 12, {vLane}
s_lshl_b32 s4, {sG}, 2
s_add_u32 s4, s4, {sWave}
s_mul_i32 s4, s4, 6144
v_cndmask_b32 v8, v10, v8, vcc
v_cmp_gt_u32 vcc, 16, {vLane}
s_and_b32 s5, {sB}, 3
s_lshl_b32 s5, s5, 2
s_add_u32 s5, s5, {sWave}
s_lshl_b32 s5, s5, 16
s_add_u32 s5, s5, {sWcol}
v_cndmask_b32 v11, v10, v11, vcc
v_add_u32 v8, s4, v8
v_add_u32 v11, s5, v11""")
        for q in range(OPT["tch"] - 1, 4):
            o += lin(f"s_lshr_b32 s3, {sDg[q]}, 12")
            o += [Op(f"buffer_load_dword {vB}, v8, {srdX}, s3 offen", "vm"), Op(f"buffer_load_dword {vB}, v11, {srdW}, {sDg[q]} offen", "vm")]
    if OPT["stamps"] == 4: o += lin("s_memtime s[84:85]")
    for j in range(4): o += dma_linear(*init[j])
    if OPT["stamps"] == 4: o += lin("s_memtime s[86:87]")
    o += lin(f"""s_lshl_b32 s3, {sB}, 22
s_lshl_b32 s7, {sG}, 19
s_add_u32 s3, s3, s7
{"s_mov_b32 s3, 0" if OPT["samekv"] else ""}
s_add_u32 s8, s70, s3
s_addc_u32 s9, s71, 0
s_mov_b32 s10, 0x80000
s_mov_b32 s11, 0x20000
s_add_u32 s12, s72, s3
s_addc_u32 s13, s73, 0
s_mov_b32 s14, 0x80000
s_mov_b32 s15, 0x20000
""")
    if OPT["tlb"]:
        o += [Op(f"buffer_load_dword {vB}, off, {srdK}, 0", "vm"), Op(f"buffer_load_dword {vB}, off, {srdV}, 0", "vm")]
        o += [Op(f"buffer_load_dword {vB}, off, {srdW}, {sDg[q]}", "vm") for q in (1, 2, 3)]
    o += code_pf("L_pc", KN, "L_g3", OPT["pf"] - 1, 88)
    o += lin(f"""
v_lshrrev_b32 v7, 3, {vLane}
v_add_u32 v7, s6, v7
v_lshl_add_u32 {vDWo}, v7, 10, v3
s_and_b32 s6, {sWave}, 1
s_lshl_b32 s6, s6, 2
v_or_b32 v2, s6, v5
v_lshlrev_b32 v2, 1, v2
v_xor_b32 v2, v2, v6
v_lshlrev_b32 v1, 8, v1
v_lshl_add_u32 {vDV}, v2, 4, v1
s_mov_b32 s24, s82
s_mov_b32 s25, s83
s_mov_b32 s26, {hex(WS_BYTES)}
s_mov_b32 s27, 0x20000
v_lshrrev_b32 v1, 3, {vLane}
v_and_b32 v2, 7, {vLane}
v_lshlrev_b32 v1, 8, v1
v_lshl_add_u32 v8, v2, 2, v1
s_lshl_b32 s6, {sB}, 11
s_add_u32 s6, s6, {hex(FLAG_BASE)}
s_or_b32 s7, {sG}, {sWave}
s_cmp_eq_u32 s7, 0
s_cselect_b32 {sTmp}, s6, {hex(OOB)}
v_mov_b32 v9, 0""")
    zst = Op(f"buffer_store_dword v9, v8, {srdWS}, {sTmp} offen sc1", "vm"); o.append(zst)

    o += lin(f"""
s_mov_b32 {sScale}, {hex(cbits)}
s_mov_b32 {sLo}, 0x30800000
s_mov_b32 {sHi}, 0x4e800000
s_mov_b32 {sHead}, 0
s_lshl_b32 {sW1k}, {sWave}, 10
s_mov_b32 s28, s78
s_mov_b32 s29, s79
s_mov_b32 s30, 0x600000
s_mov_b32 s31, 0x20000
s_mov_b32 s32, s80
s_mov_b32 s33, s81
s_mov_b32 s34, 0x100
s_mov_b32 s35, 0x20000

v_lshrrev_b32 v1, 2, v6
v_and_b32 v2, 3, v6
v_lshl_add_u32 v3, v1, 4, v2
v_lshlrev_b32 v3, 8, v3""")
    for s in range(4):
        o += lin(f"s_and_b32 s3, {sWcol}, 128\nv_add_u32 v4, {4*s}, v5\nv_xor_b32 v4, v4, v6\nv_lshl_add_u32 {vK[s]}, v4, 4, v3\nv_xor_b32 {vK[s]}, s3, {vK[s]}")
    o += lin(f"""
v_lshl_add_u32 v3, v5, 4, v1
v_lshlrev_b32 v3, 8, v3
v_and_b32 v4, 1, v5
v_lshl_add_u32 v7, v4, 2, v1
v_lshl_add_u32 v3, v7, 5, v3
v_lshl_add_u32 v3, v2, 3, v3
v_add_u32 {vVb}, {BASE["V7"]*16384}, v3
v_lshl_add_u32 v3, v5, 2, v1
v_lshlrev_b32 v3, 7, v3
v_lshrrev_b32 v7, 1, v1
v_lshl_add_u32 v7, v4, 1, v7
{"v_lshlrev_b32 v7, 1, v7" if OPT["nperm"] else "v_lshl_add_u32 v3, v7, 5, v3"}
{"v_xor_b32 v7, v7, v2" if OPT["nperm"] else ""}
{"v_lshl_add_u32 v7, v7, 4, v3" if OPT["nperm"] else "v_lshl_add_u32 v7, v2, 3, v3"}
v_add_u32 {vWb}, {F.wb0*16384}, v7
v_mov_b32 v3, 0x3f803f80
v_cmp_eq_u32 vcc, 0, v2
s_nop 1
{"v_cndmask_b32 v3, 0, v3, vcc" if OPT["ones4"] else ""}
v_accvgpr_write_b32 a252, v3
v_accvgpr_write_b32 a253, v3
v_accvgpr_write_b32 a254, v3
v_accvgpr_write_b32 a255, v3
""")
    for s in range(4):
        o += lin(f"v_add_u32 v{S0+s}, {sW1k}, {vK[s]}\nv_add_u32 v{S0+4+s}, 0x10000, v{S0+s}\nv_add_u32 v{S0+8+s}, 0x20000, v{S0+s}\nv_add_u32 {vK[s]}, {BASE['K7']*16384}, {vK[s]}")
    o += lin(f"s_add_u32 {sW1k}, {sW1k}, {lit((XB - BASE['K7'])*16384)}")
    for j in range(4, 8): o += dma_linear(*init[j])
    o += lin(f"""s_lshl_b32 s6, {sG}, 19
s_add_u32 s80, s76, s6
s_addc_u32 s81, s77, 0
s_mov_b32 {sGate}, 0
s_lshl_b32 {sH[0]}, {sHr}, 17
s_add_u32 {sH[1]}, {sH[0]}, 0x20000
s_and_b32 {sH[1]}, {sH[1]}, 0x7ffff
s_xor_b32 {sH[2]}, {sH[0]}, 0x40000
s_xor_b32 {sH[3]}, {sH[1]}, 0x40000
{"s_mov_b32 s73, s92" if OPT["dbl"] else ""}
s_getreg_b32 {sXcc}, hwreg(HW_REG_XCC_ID, 0, 3)
s_lshr_b32 {sRot}, {sB}, 2
s_and_b32 {sRot}, {sRot}, {7 if OPT["rot"] else 0}
s_lshl_b32 {sRot}, {sRot}, 7
s_lshl_b32 {sXcc}, {sXcc}, 2
s_lshl_b32 {sXcc}, 1, {sXcc}""" + "".join(f"\ns_add_u32 {sC[i]}, {sRot}, {128*(i+1)}\ns_and_b32 {sC[i]}, {sC[i]}, 0x3ff" for i in range(3))
      + "".join("\n" + "\n".join(x_t0(sN[NEXT.index('X' + 'abc'[a])], a, 3)) for a in range(3)) + f"""
s_mul_i32 s6, {sB}, {8*CHUNK + 4096}
s_mov_b32 s75, s6
s_add_u32 s6, s6, 4096
s_mul_i32 s7, {sWave}, 49152
s_add_u32 {sStR}, s6, s7
s_lshl_b32 s7, {sG}, 10
s_add_u32 {sStR}, {sStR}, s7
s_mul_i32 s7, {sG}, 3
s_add_u32 s7, s7, {sWave}
s_lshl_b32 s4, s7, 13
s_add_u32 {sLdR}, s6, s4
s_lshl_b32 {sFlR}, {sB}, 11
s_add_u32 {sFlR}, {sFlR}, {hex(FLAG_BASE - 256)}
s_lshr_b32 s4, s7, 1
s_mul_i32 s5, s4, 11
s_lshr_b32 s5, s5, 5
s_mul_i32 s3, s5, 3
s_sub_u32 s4, s4, s3
s_lshl_b32 s4, s4, 6
s_lshl_b32 s5, s5, 2
s_add_u32 s4, s4, s5
s_mul_i32 s5, {sB}, 192
s_add_u32 s4, s4, s5
s_lshl_b32 s4, s4, 10
s_and_b32 s5, s7, 1
s_lshl_b32 s5, s5, 6
s_add_u32 {sOutR}, s4, s5
s_mov_b32 {sOc}, {sRot}
s_cmp_eq_u32 {sWave}, 3
s_cselect_b32 {sLdR}, {hex(OOB)}, {sLdR}
s_cselect_b32 {sOutR}, {hex(OOB)}, {sOutR}
v_bfe_u32 v3, {vLane}, 3, 2
v_and_b32 v2, 3, {vLane}
v_lshlrev_b32 {vC}, 5, v3
v_lshl_add_u32 {vC}, v2, 3, {vC}
v_lshlrev_b32 v3, 1, v3
v_xor_b32 v2, v2, v3
v_lshlrev_b32 v2, 4, v2
v_sub_u32 {vC}, {vC}, v2""")
    if OPT["tlb"] == 2:
        o += lin(f"""s_mov_b32 s4, {hex(FLAG_BASE + 0x20080)}
s_mov_b32 s88, s80
s_mov_b32 s89, s81
s_mov_b32 s90, 0x80000
s_add_u32 s5, s75, {8*CHUNK + 4096}""") if False else lin(f"s_mov_b32 s4, {hex(FLAG_BASE + 0x20080)}\ns_add_u32 s5, s75, {8*CHUNK + 4096}")
        o += [Op(f"buffer_load_dword {vB}, off, {srd}, {so}", "vm") for srd, so in ((srdWS, "s75"), (srdWS, "s5"), (srdWS, "s4"), (srdO, sOutR))]
    if OPT["pf3"]:
        o += lin(f"""s_getpc_b64 s[76:77]
L_pc3:
s_add_u32 s76, s76, L_loop-L_pc3
s_addc_u32 s77, s77, 0
s_mov_b32 s78, L_R2-L_loop
s_mov_b32 s79, 0x20000
s_lshl_b32 s75, {sIdx}, 2
s_add_u32 s75, s75, {sWave}
s_and_b32 s75, s75, 15
s_lshl_b32 s75, s75, 13""")
    if OPT["stress"]: o += lin(f"s_lshl_b32 s75, s2, 20\ns_add_u32 s75, s75, 0x8000000\ns_mul_i32 s4, {sWave}, 0x3f000\ns_add_u32 s75, s75, s4")
    if OPT["stamps"]:
        o += lin(f"s_lshl_b32 s101, s2, 10\ns_lshl_b32 s6, {sWave}, 8\ns_add_u32 s101, s101, s6\ns_add_u32 s101, s101, {hex(STAMP_BASE)}")
    if OPT["stamps"] in (2, 4): o += stamp(1)
    o.append(WAIT(0, need_vm=[x[0] for x in init[:4]]))
    o += lin("s_barrier")
    if OPT["stamps"] in (2, 4): o += stamp()
    for t in range(3):
        for s in range(4): o += lin("ds_read_b128 %s, %s offset:%d" % ((XA(s, t),) + F.xaddr(F.xsl0[t], s)))
    for s in range(4):
        for p in range(2): o += lin(f"ds_read_b64_tr_b16 {FR(0, s, p)}, {vWb} offset:{F.wso0 + s*4096 + p*2048}")
    o += lin("s_waitcnt lgkmcnt(0)\ns_barrier")
    return o, zst

def glue0(zst):
    return [WAIT(0, need_vm=[zst])] + lin(f"""s_lshl_b32 s6, {sB}, 2
s_cmp_eq_u32 {sWave}, 0
s_cselect_b32 s6, s6, {hex(OOB)}
v_mov_b32 {vB}, {hex(OOB)}
v_writelane_b32 {vB}, 0, 0
v_mov_b32 {vA}, {sXcc}""") + [Op(f"buffer_atomic_add {vA}, {vB}, {srdD}, s6 offen sc1", "vm")]
def touch_setup():
    return lin(f"""s_cmp_eq_u32 {sSlM}, 1
s_cselect_b32 s4, 256, {hex(OOB)}
v_lshlrev_b32 {vA}, 1, {vA}
v_and_b32 {vA}, 0x700, {vA}
s_add_u32 s4, s4, {sFlR}""") + [Op(f"buffer_load_dword {vB}, {vA}, {srdWS}, s4 offen sc1", "vm")]
def mode_check(dbg):
    if OPT["bst"]: return lin(f"L_chkD:\nL_backD:\ns_mov_b32 {sSlM}, 1")
    return [WAIT(0, need_vm=[dbg])] + lin(f"""s_mov_b32 s3, 0
L_chkD:
v_readfirstlane_b32 s4, {vLane}
s_nop 3
s_lshr_b32 s5, s4, 4
s_and_b32 s5, s5, 0x0f0f0f0f
s_and_b32 s7, s4, 0x0f0f0f0f
s_add_u32 s5, s5, s7
s_mul_i32 s5, s5, 0x01010101
s_lshr_b32 s5, s5, 24
s_cmp_lg_u32 s5, 8
s_cbranch_scc1 L_spinD
L_backD:
s_lshl_b32 s5, {sXcc}, 3
{"s_mov_b32 s5, 0" if OPT["forceslow"] else ""}
s_cmp_eq_u32 s4, s5
s_cselect_b32 {sSlM}, 1, 7""")

def slow_path(placed, pendW0):
    vKo, vVo, vVo2, vKo2 = f"v{PV0+40}", f"v{PV0+41}", f"v{PV0+42}", f"v{PV0+43}"
    M = [f"v{PV0+36+t}" for t in range(3)]
    CN = [R("v", PV0 + 24 + 4*t, 4) for t in range(3)]
    Sx = [R("v", S0 + 4*t, 4) for t in range(3)]
    t_ = f"""
L_slow:
s_waitcnt vmcnt(0) lgkmcnt(0)
s_nop 7
v_mbcnt_lo_u32_b32 {vB}, -1, 0
v_mbcnt_hi_u32_b32 {vB}, -1, {vB}
v_and_b32 {vA}, 15, {vB}
v_lshrrev_b32 {vB}, 4, {vB}
v_lshlrev_b32 {vKo}, 8, {vA}
v_lshl_add_u32 {vKo}, {vB}, 4, {vKo}
s_and_b32 s4, {sWcol}, 128
s_xor_b32 s5, s4, 128
v_add_u32 {vKo2}, s5, {vKo}
v_add_u32 {vKo}, s4, {vKo}
v_lshlrev_b32 {vVo}, 10, {vB}
v_lshl_add_u32 {vVo}, {vA}, 1, {vVo}
v_add_u32 {vVo2}, 0x1000, {vVo}
s_add_u32 s4, {sHr}, {sHead}
s_and_b32 s4, s4, 3
s_lshl_b32 s4, s4, 17
s_mov_b32 s10, 0x80000
s_mov_b32 s14, 0x80000
s_add_u32 s5, s4, 0x20000
s_mov_b32 s6, s4
"""
    for t in range(3): t_ += f"v_mov_b32 {M[t]}, 0xff800000\n"
    t_ += "L_slow1:\n"
    for s in range(4): t_ += f"buffer_load_dwordx4 {FR(0, s)}, {vKo if s < 2 else vKo2}, {srdK}, s6 offen offset:{64*(s & 1)}\n"
    t_ += "s_waitcnt vmcnt(0)\n"
    for t in range(3):
        for s in range(4): t_ += f"v_mfma_f32_16x16x32_bf16 {Sx[t]}, {FR(0, s)}, {QV(s, t)}, {'0' if s == 0 else Sx[t]}\n"
    t_ += "s_nop 9\n"
    for t in range(3):
        t_ += f"v_max3_f32 {M[t]}, {M[t]}, v{S0+4*t}, v{S0+4*t+1}\nv_max3_f32 {M[t]}, {M[t]}, v{S0+4*t+2}, v{S0+4*t+3}\n"
    t_ += "s_add_u32 s6, s6, 0x1000\ns_cmp_lt_u32 s6, s5\ns_cbranch_scc1 L_slow1\n"
    for t in range(3):
        t_ += f"""v_mov_b32 {vA}, {M[t]}
s_nop 1
v_permlane32_swap_b32 {vA}, {M[t]}
s_nop 1
v_max_f32 {M[t]}, {vA}, {M[t]}
v_mov_b32 {vA}, {M[t]}
s_nop 1
v_permlane16_swap_b32 {vA}, {M[t]}
s_nop 1
v_max_f32 {M[t]}, {vA}, {M[t]}
"""
        for i in range(4): t_ += f"v_sub_f32 v{PV0+24+4*t+i}, 0, {M[t]}\n"
    for i in range(96): t_ += f"v_mov_b32 v{i}, 0\n"
    for i in range(12): t_ += f"v_accvgpr_write_b32 a{240+i}, 0\n"
    t_ += "s_mov_b32 s6, s4\nL_slow2:\n"
    for u in range(2):
        for s in range(4): t_ += f"buffer_load_dwordx4 {FR(0, s)}, {vKo if s < 2 else vKo2}, {srdK}, s6 offen offset:{64*(s & 1)}\n"
        t_ += "s_waitcnt vmcnt(0)\n"
        for t in range(3):
            for s in range(4): t_ += f"v_mfma_f32_16x16x32_bf16 {Sx[t]}, {FR(0, s)}, {QV(s, t)}, {CN[t] if s == 0 else Sx[t]}\n"
        t_ += "s_nop 9\n"
        for i in range(12): t_ += f"v_exp_f32 v{S0+i}, v{S0+i}\n"
        t_ += "s_nop 0\n"
        for t in range(3):
            for j in range(2): t_ += f"v_cvt_pk_bf16_f32 {PBr(0, 0, t, 2*u + j)}, v{S0+4*t+2*j}, v{S0+4*t+2*j+1}\n"
        if u == 0: t_ += "s_mov_b32 s7, s6\ns_add_u32 s6, s6, 0x1000\n"
    f = FA0 + 16
    for dt in range(8):
        for j in range(8):
            t_ += f"buffer_load_ushort v{FA0 + j}, {vVo if j < 4 else vVo2}, {srdV}, s7 offen offset:{(j & 3)*256 + 32*dt}\n"
        t_ += "s_waitcnt vmcnt(0)\n"
        for j in range(4): t_ += f"v_lshl_or_b32 v{f + j}, v{FA0 + 2*j + 1}, 16, v{FA0 + 2*j}\n"
        t_ += "s_nop 1\n"
        for t in range(3): t_ += f"v_mfma_f32_16x16x32_bf16 {OA(dt, t)}, v[{f}:{f+3}], {PB(0, 0, t)}, {OA(dt, t)}\n"
    for t in range(3): t_ += f"v_mfma_f32_16x16x32_bf16 {LA(t)}, {ONES}, {PB(0, 0, t)}, {LA(t)}\n"
    t_ += "s_add_u32 s6, s6, 0x1000\ns_cmp_lt_u32 s6, s5\ns_cbranch_scc1 L_slow2\ns_nop 9\n"
    for t in range(3): t_ += f"v_accvgpr_read_b32 {vRL[t]}, a{240+4*t}\n"
    for t in range(3): t_ += f"v_rcp_f32 {vRL[t]}, {vRL[t]}\n"
    t_ += "s_nop 0\n"
    for o in placed: t_ += o.text + "\n"
    for o in pendW0: t_ += o.text + "\n"
    t_ += "s_waitcnt lgkmcnt(0)\n"
    t_ += "s_branch L_join\n"
    return lin(t_)

def spin(lbl, back, reg, off_v, srd, soff, exp):
    return lin(f"""{lbl}:
s_mov_b32 s3, 0
{lbl}_l:
buffer_load_dword {reg}, {off_v}, {srd}, {soff}{' offen' if off_v != 'off' else ''} sc1
s_add_u32 s3, s3, 1
s_waitcnt vmcnt(0)
v_cmp_ne_u32 vcc, {exp}, {reg}
s_cmp_gt_u32 s3, 0x10000
s_cbranch_scc1 {back}
s_nop 2
s_cbranch_vccnz {lbl}_l
s_branch {back}""")

def pad_linear(ops):
    out = []
    for o in ops:
        need = 0
        for (p, n) in o.sdeps:
            if p in out: need = max(need, n - sum(x.w for x in out[out.index(p)+1:]))
        if need > 0:
            nop = Op(f"s_nop {need-1}", "x"); nop.w = need; out.append(nop)
        out.append(o)
    return out

def tail(G):
    X = (lambda: stamp()) if OPT["stamps"] == 3 else (lambda: [])
    def sums(set_, loads):
        o0, p0, s0_ = reduce_ops(set_)
        return [WAIT(0, need_vm=loads)] + pad_linear(o0 + p0 + [s0_])
    def msum(set_, loads):
        A0, A1, D0, D1 = "a[48:51]", "a[52:55]", FR(1, 0), FR(1, 1)
        r = []
        for g in range(8):
            r += [WAIT(0, need_vm=[loads[g]]), mfma(D0, A0, RLD[set_][g], "0" if g == 0 else D0), mfma(D1, A1, RLD[set_][g], "0" if g == 0 else D1)]
        d = regs(D0) + regs(D1); res = regs(FR(1, 2 + set_))
        r += lin("s_nop 7") + [V(f"v_cvt_pk_bf16_f32 {res[j]}, {d[2*j]}, {d[2*j+1]}", rd=[d[2*j], d[2*j+1]], wr=[res[j]]) for j in range(4)]
        return r + [Op(f"buffer_store_dwordx4 {FR(1, 2 + set_)}, {vOut}, {srdO}, {sOut} offen{OSC}", "vm", rd=[FR(1, 2 + set_)])]
    fin = msum if OPT["msum"] else sums
    o = lin("\n".join(scal_B()) + "\ns_nop 1")
    stores = []
    for (cv, sa, st) in pack_store(1):
        o += cv + [sa, st]; stores.append(st)
    o += X() + fin(1, G.LD[1]) + X()
    o += [WAIT(0, need_vm=stores)] + X() + lin("s_barrier") + sig_ops()
    o += lin("s_branch L_spinU@L\nL_backU@L:") + X()
    l7 = red_loads(0); o += l7
    o += lin(f"s_add_u32 {sOut}, {sOutR}, {sOc}")
    if OPT["stamps"] == 3: o += lin("s_waitcnt vmcnt(0)") + X()
    o += fin(0, l7) + X() + X()
    return o

def main():
    R2 = build_R2()
    placed = [o for o in R2.epi if o.gap is not None]; placed.sort(key=lambda o: o.pos)
    R1 = build_R1(R2.left)
    R1b = {h: build_R1b(h) for h in (1, 2, 3)}
    R1f = build_R1f()
    global G_LD, G_LD0
    G0 = build_G(True, R2.left)
    G_LD0 = G0.LD[1]; G_LD = [red_loads(0), red_loads(1)]
    G = build_G()
    bind_ext(R1, [R2.pendW0]); bind_ext(R2, [R1f.pend] + [R1b[h].pend for h in R1b]); bind_ext(G0, [R2.pendW0]); bind_ext(G, [G0.pend, G.pend])
    for h in R1b: bind_ext(R1b[h], [R1.pend])
    for w in R1f.xw: w.text = 's_nop 0'
    pro, zst = prologue(R1f)
    for j, t in enumerate(NEXT): TILE[f'G{j}'] += TILE[t]
    stg = lin(f"""{[f"s_mov_b32 s4, {sG}", f"s_and_b32 s4, {sB}, 3", f"s_mov_b32 s4, {sIdx}"][OPT["stagm"]]}
s_mul_i32 s4, s4, {OPT["stag"]}
L_stg:
s_cmp_eq_u32 s4, 0
s_cbranch_scc1 L_stg2
s_sub_u32 s4, s4, 1
s_branch L_stg
L_stg2:""") if OPT["stag"] else []
    p0 = glue0(zst) + stg + lin("s_branch L_R2")
    sel = lin(f"s_cmp_eq_u32 {sHead}, 2\ns_cbranch_scc1 L_v2\ns_cmp_eq_u32 {sHead}, 3\ns_cbranch_scc1 L_v3")
    v1 = R1b[1].out + lin("s_branch L_R2")
    v2 = lin("L_v2:") + R1b[2].out + lin("s_branch L_R2")
    assert OPT["pf"]
    v3 = lin("L_v3:") + R1b[3].out + mode_check(getattr(R1b[2], "dbg", None)) + (lin(f"v_mbcnt_lo_u32_b32 {vA}, -1, 0\nv_mbcnt_hi_u32_b32 {vA}, -1, {vA}\nv_lshlrev_b32 {vA}, 7, {vA}") if OPT["pf3"] else code_pf("L_pc2", "L_g3", "L_codeend", 15, 76)) + touch_setup()
    g2 = lin(f"s_or_b64 {sBad}, {sBad}, vcc\n{'s_nop 0' if OPT['stress'] else 's_cbranch_scc1 L_slow'}\nL_join:\ns_add_u32 {sHead}, {sHead}, 1\ns_cmp_lt_u32 {sHead}, 4")
    g3 = lin(f"s_cmp_eq_u32 {sSlM}, 7\ns_cbranch_scc1 L_G0S")
    g4 = lin(f"s_mov_b32 {sC[0]}, {sC[2]}\ns_add_u32 {sC[1]}, {sC[0]}, 128\ns_and_b32 {sC[1]}, {sC[1]}, 0x3ff\ns_add_u32 {sC[2]}, {sC[1]}, 128\ns_and_b32 {sC[2]}, {sC[2]}, 0x3ff\ns_cmp_lt_u32 {sIt}, 8")
    T = tail(G)
    sA, sB_, sC_, sD_, sE = stamp(1 if OPT['stamps'] in (1, 3) else 0), stamp(), stamp(), stamp(), stamp(2)
    if OPT["bst"]:
        def dump():
            return lin(f"v_mbcnt_lo_u32_b32 {vA}, -1, 0\nv_mbcnt_hi_u32_b32 {vA}, -1, {vA}\nv_lshlrev_b32 {vA}, 2, {vA}") + [Op(f"buffer_store_dword {vLane}, {vA}, {srdWS}, s101 offen", "vm")] + lin("s_add_u32 s101, s101, 256\ns_nop 1")
        sA = lin(f"s_lshl_b32 s101, s2, 2\ns_add_u32 s101, s101, {sWave}\ns_lshl_b32 s101, s101, 12\ns_add_u32 s101, s101, {hex(DUMP_BASE)}")
        sC_ = dump(); sD_ = dump()
    tr = pro + sA
    for hd in range(4):
        tr += [R1f.out + p0, R1.out + sel + v1, R1.out + sel + v2, R1.out + sel + v3][hd] + sB_ + R2.out + g2 + sC_
    tr += g3
    post = []
    for it in range(3): post += G.out + g4 + sD_
    post += T
    resolve_waits(tr + [x for x in G0.out if x.tag != "touch"] + g4 + sD_ + [x for x in post if x.tag != "fastonly"], TILE)
    tr += G0.out + g4 + sD_ + post
    resolve_waits(tr, TILE)
    errs = check(tr, "main")
    for e in errs[:20]: print(e, file=sys.stderr)
    assert not errs
    for rg in (R1f, R1, R1b[1], R1b[3], R2, G0, G): print(rg.name, "overfull:", rg.overlog, file=sys.stderr)
    out = [open(os.path.join(os.path.dirname(os.path.abspath(__file__)), "header.txt")).read().rstrip()]
    out.append("; @launch grid=(256,1,1) block=(256,1,1) lds=163840")
    out.append(f""".amdgcn_target "amdgcn-amd-amdhsa--gfx950"
; Fused attention block, generated by gen/kernel.py (own gap scheduler, gen/sched.py).
;  - 256 workgroups = (batch b, group g of 4 heads), 4 waves x 48 query rows, one wave per SIMD, 16x16x32 bf16 MFMA.
;    out^T = wo^T O^T; wq / K / V / wo / x tiles (16 KB) stream through a statically planned 10-slot LDS ring by LDS-DMA.
;  - softmax: exp2 of the pre-scaled scores, row sums by MFMA; a run-time range check of the row sums sends a wave to
;    L_slow (two passes with the true row max) whenever the unshifted exponentials could be unsafe.
;    They announce their die in d_debug; if all 8 share one L2 the exchange uses plain stores into two reused slots
;    (L_G0/L_G), otherwise write-through stores into fresh slots (L_G0S/L_GS).
.text
.globl {KN}
.p2align 8
.type {KN},@function
{KN}:""")
    def emit(ops, sc="", lb=""):
        for o in ops:
            if OPT["nobar"] and o.text == "s_barrier" and o.kind == "w": out.append("s_nop 0"); continue
            if OPT["nolg"] and o.kind == "w" and o.text.startswith("s_waitcnt") and "vmcnt" not in o.text: out.append("s_nop 0"); continue
            if OPT["nods"] and o.kind == "ds": continue
            if OPT["novalu"] and o.kind in ("v4", "v8") and o.gap is not None and ("exp" in o.text or "cvt" in o.text or "mul" in o.text or "perm" in o.text or "and" in o.text or "lshl" in o.text or "add_f32" in o.text): continue
            if OPT["nodma"] and o.text.endswith(" lds"): out.append("s_nop 0"); continue
            if OPT["nored"] and " sc1" in o.text and "dwordx4" in o.text: out.append("s_nop 0"); continue
            if getattr(o, "pre", None): out.append(o.pre)
            out.append(o.text.replace("@SC", sc).replace("@L", lb))
    def mark(n):
        return lin("s_memrealtime s[2:3]\ns_waitcnt lgkmcnt(0)\ns_sub_u32 s75, s2, s73") if OPT["dbl"] == n else []
    def idle(n, tag):
        if not n: return []
        return lin(f"""s_memrealtime s[2:3]
s_waitcnt lgkmcnt(0)
s_mov_b32 s5, s2
L_idle{tag}:
s_sleep 2
s_memrealtime s[2:3]
s_waitcnt lgkmcnt(0)
s_sub_u32 s4, s2, s5
s_cmp_lt_u32 s4, {n}
s_cbranch_scc1 L_idle{tag}""")
    def ex(n): return (stamp(2) + lin("s_endpgm")) if OPT["exitat"] == n else []
    emit(pro + mark(3) + idle(OPT['idle0'], 'a') + sA + ex(1) + R1f.out + mark(4) + p0)
    out.append("; ---- head loop: Q-projection steps 0-4, step 5 (three variants), steps 6-7 + attention ----")
    out.append("L_loop:"); emit(R1.out + sel + v1 + v2 + v3); out.append("L_R2:"); emit(idle(OPT['idle1'], 'b') + sB_ + R2.out + g2 + sC_)
    if OPT["dbl"] >= 10:
        emit(lin(f"s_cmp_lg_u32 {sHead}, {OPT['dbl'] - 9}\ns_cbranch_scc1 L_nomark") + mark(OPT["dbl"]) + lin(f"L_nomark:\ns_cmp_lt_u32 {sHead}, 4"))
    if OPT["stamps"] or OPT["bst"]: out.append(f"s_cmp_lt_u32 {sHead}, 4")
    out.append("s_cbranch_scc1 L_loop")
    out.append('; ---- output projection + exchange ----'); out.append('L_g3:'); emit(mark(5) + ex(3) + g3)
    for sc, lb in ((NTST, ""), (" sc1", "S")):
        out.append(f"L_G0{lb}:"); emit([(Op("s_nop 0", "x") if (lb and x.tag == "touch") else x) for x in G0.out] + g4 + sD_, sc, lb)
        out.append(f"L_G{lb}:"); emit(G.out + g4 + sD_, sc, lb)
        if OPT["stamps"] or OPT["bst"]: out.append(f"s_cmp_lt_u32 {sIt}, 8")
        out.append(f"s_cbranch_scc1 L_G{lb}")
        emit([(Op('s_nop 0', 'x') if (lb and x.tag == 'fastonly') else x) for x in T] + sE, sc, lb)
        if OPT["dbl"]:
            emit(lin(f"""s_waitcnt vmcnt(0)
s_memrealtime s[2:3]
s_waitcnt lgkmcnt(0)
{"s_sub_u32 s4, s2, s73" if OPT["dbl"] == 1 else ("s_mov_b32 s4, 500" if OPT["dbl"] == 2 else "s_mul_i32 s4, s75, 4")}
s_min_u32 s4, s4, 40000
s_mov_b32 s5, s2
L_dbl{lb}:
s_sleep 4
s_memrealtime s[2:3]
s_waitcnt lgkmcnt(0)
s_sub_u32 s6, s2, s5
s_cmp_lt_u32 s6, s4
s_cbranch_scc1 L_dbl{lb}"""))
        out.append("s_endpgm")
        if not lb: out.append("L_codeend:")
        for nm in ("G0", "G1", "G1F", "U"): emit(spin(f"L_spin{nm}{lb}", f"L_back{nm}{lb}", vPr, vPo, srdWS, sPoll, sExp))
    emit(lin(f"""L_spinD:
s_add_u32 s3, s3, 1
s_cmp_gt_u32 s3, 0x10000
s_cbranch_scc1 L_backD
s_lshl_b32 {sTmp}, {sB}, 2
buffer_load_dword {vLane}, off, {srdD}, {sTmp} sc1
s_waitcnt vmcnt(0)
s_branch L_chkD"""))
    out.append("; ---- exact-max fallback for one wave and one head ----")
    emit(slow_path(placed, R2.pendW0))
    out.append(f"""s_endpgm
.section .rodata,"a"
.p2align 6
.amdhsa_kernel {KN}
  .amdhsa_next_free_vgpr 512
  .amdhsa_next_free_sgpr 102
  .amdhsa_accum_offset 256
  .amdhsa_group_segment_fixed_size 0
  .amdhsa_kernarg_size 64
  .amdhsa_user_sgpr_count 2
  .amdhsa_user_sgpr_kernarg_segment_ptr 1
  .amdhsa_system_sgpr_workgroup_id_x 1
.end_amdhsa_kernel""")
    print("\n".join(out))
main()
```

```python
import sys, os, struct, math
sys.path.insert(0, os.path.dirname(os.path.abspath(__file__)))
from sched import *
import ringplan

OPT = dict(stamps=0, nt=1, stress=0, msum=1, tord=0, b0=1, clean=0, stag=0, stagm=0, mapping=48, nodma=0, samekv=0, nored=0, ntw=0, ntx=0, bst=0, lrate=2.5, lburst=4, rsp=8, rk=2, i0=-158, dk=75, ksp=18, wsp=7, gst=4, gld=4, gsig=1, gpoll=108, gsum=8, gdma=40, glc=0, rot=1, gout=189, gdsp=5, lag=1, forceslow=0, ntst=0, pf=128, hrot=9, hswap=1, plan=0, uni=1, fnt=1, ka=0, ka0=20, ka1=460, ntc=0, fntw=0, fntx=0, ones4=1, gb2=1, pf3=0, wstrict=1, rspw=10, samew=0, samex=0, krot=4, osc=0, idle0=0, idle1=0, exitat=0, wb=0, dbl=0, nperm=1, bdw=2, bda=1, vlate=0, tch=0, gtch=0, kvlate=4, tg=0, etch=0, gl3=1, ftch=1, tlb=0, fsp=2, fkv=6, fgap=3, nobar=0, nolg=0, nods=0, novalu=0)
for a in sys.argv[1:]:
    k, v = a.split("="); assert k in OPT, k; OPT[k] = float(v) if "." in v else int(v)
Region.LDSRATE = OPT["lrate"]; Region.LDSBURST = OPT["lburst"]
KN = "standalone__mha_block_cached__near_ridge_kernel"

def OA(mt, t): return R("v", (mt*3 + t)*4, 4)
def OAr(mt, t, i): return f"v{(mt*3 + t)*4 + i}"
QV0, PV0, S0, FA0 = 96, 144, 192, 204
def QV(s, t): return R("v", QV0 + (s*3 + t)*4, 4)
def QVr(s, t, i): return f"v{QV0 + (s*3 + t)*4 + i}"
def PB(buf, sg, t): return R("v", PV0 + 24*buf + (sg*3 + t)*4, 4)
def PBr(buf, sg, t, i): return f"v{PV0 + 24*buf + (sg*3 + t)*4 + i}"
def OP(s, t): return R("v", PV0 + (s*3 + t)*4, 4)
def OPr(s, t, i): return f"v{PV0 + (s*3 + t)*4 + i}"
def FR(buf, f, half=None):
    b = FA0 + 16*buf + 4*f
    return R("v", b, 4) if half is None else R("v", b + 2*half, 2)
vK = ["v236", "v237", "v238", "v239"]
vVb, vWb, vT = "v240", "v241", ["v242", "v243"]
vDK, vDV, vDW, vDX, vC = "v244", "v245", "v246", "v247", "v248"
vRL = ["v249", "v250", "v251"]
vLane, vDWo, vA, vB = "v252", "v253", "v254", "v255"
def XA(s, t): return R("a", (s*3 + t)*4, 4)
ZB = {0: 144, 1: 192, 2: 0}
def ZA(h, s, t): return R("a", ZB[h] + (s*3 + t)*4, 4)
def LA(t): return R("a", 240 + 4*t, 4)
ONES = "a[252:255]"

srdK, srdV, srdW, srdX, srdWS, srdO, srdD = (f"s[{i}:{i+3}]" for i in (8, 12, 16, 20, 24, 28, 32))
sW1k, sXcc, sRot, sOc = "s36", "s37", "s38", "s39"
sC = ["s40", "s41", "s42"]
sDg = ["s43", "s44", "s45", "s46"]
sIdx = "s99"
sH = ["s93", "s95", "s96", "s97"]; sHr = "s98"; sSw = "s3"
sKoff, sVoff, sWcol = "s47", "s48", "s49"
sD = [None, "s50", "s51", "s52"]
sDY = [None, "s53", "s54", "s55"]
sT = ["s56", "s57", "s58", "s59"]
sW4k, sHead, sScale, sWave, sB, sG, sLo, sHi = (f"s{i}" for i in range(60, 68))
sBad = "s[84:85]"
sN = [f"s{i}" for i in range(86, 92)]
sTmp = "s100"
sIt, sSt, sSig, sExp, sLd, sLd2, sOut = (f"s{i}" for i in range(86, 93))
sStR, sLdR, sFlR, sOutR, sSlM, sLdMin, sGate = (f"s{i}" for i in range(68, 75))
sPoll = sSig; sPo = "s99"; sTk, sTh, sTo = "s43", "s44", "s45"
sU = ["s4", "s5"]; sMask = "s6"
OOB = 0x40000000
FLAG_BASE = 0x3040000
STAMP_BASE = 0x3100000
DUMP_BASE = 0x4000000
WS_BYTES = 0x20000000 if OPT["stress"] else (0x8000000 if OPT["bst"] else 0x3200000)
CHUNK = 196608
ORD = [(0,0),(0,1),(0,2),(1,0),(0,3),(1,3),(1,1),(1,2)]
ORDG = [(j >> 2, j & 3) for j in range(8)]
NTKV = {"K": " nt" if OPT["nt"] in (1, 2) else "", "V": " nt" if OPT["nt"] in (1, 3) else ""}
NTW = " nt" if OPT["ntw"] else ""
NTX = " nt" if OPT["ntx"] else ""
def wq_lit(step): return ORD[step][1]*0x100000 + ORD[step][0]*128
def wo_lit(m): return (m & 3)*0x20000 + (m >> 2)*128

def S(text, rd=(), wr=(), **kw): return Op(text, "s", rd=rd, wr=wr, **kw)
def V(text, rd=(), wr=(), **kw): return Op(text, "v4", rd=rd, wr=wr, **kw)
def V8(text, rd=(), wr=(), **kw): return Op(text, "v8", rd=rd, wr=wr, **kw)
def WAIT(d, need_ds=(), need_vm=(), lg0=False, late=3, e=-1):
    o = Op("s_waitcnt ?", "w", e=e, d=d, late=late, deps=[(x, 1) for x in need_ds])
    o.need_ds, o.need_vm, o.lg0 = list(need_ds), list(need_vm), lg0
    return o
def lin(text):
    return [Op(l.strip(), "x") for l in text.strip().split("\n") if l.strip()]

class Ctx: pass
C = Ctx(); C.grp = 0

ringplan.setb(OPT["bdw"], OPT["bda"]); BDW, BDA = OPT["bdw"], OPT["bda"]
wI = {"W0": -210, "W1": -135, "W2": -55, "W3": 36 + BDW, "W4": 78, "W5": 112, "W6": 162, "W7": 186}
xI = {"Xa": -430, "Xb": -350, "Xc": -280}
PLANS = {
 8: {'Xa': -430, 'Xb': -350, 'Xc': -280, 'W0': -210, 'W1': -135, 'W2': -58, 'W3': 38, 'W4': 80, 'W5': 115, 'W6': 150, 'W7': 190, 'K0': -198, 'K1': -130, 'V0': -62, 'K2': 38, 'V1': 104, 'K3': 172, 'V2': 290, 'K4': 361, 'V3': 432, 'K5': 503, 'V4': 574, 'K6': 645, 'V5': 716, 'K7': 787, 'V6': 858, 'V7': 930},
 7: {'Xa': -430, 'Xb': -350, 'Xc': -280, 'W0': -210, 'W1': -135, 'W2': -58, 'W3': 38, 'W4': 80, 'W5': 110, 'W6': 162, 'W7': 186, 'K0': -167, 'K1': -93, 'V0': -19, 'K2': 58, 'V1': 136, 'K3': 214, 'V2': 290, 'K4': 365, 'V3': 439, 'K5': 513, 'V4': 587, 'K6': 661, 'V5': 735, 'K7': 809, 'V6': 884, 'V7': 959},
 5: {'Xa': -430, 'Xb': -350, 'Xc': -280, 'W0': -210, 'W1': -135, 'W2': -55, 'W3': 38, 'W4': 78, 'W5': 112, 'W6': 162, 'W7': 186, 'K0': -170, 'K1': -95, 'V0': -20, 'K2': 55, 'V1': 140, 'K3': 290, 'V2': 345, 'K4': 400, 'V3': 460, 'K5': 525, 'V4': 590, 'K6': 660, 'V5': 730, 'K7': 805, 'V6': 880, 'V7': 955},
 6: {'Xa': -430, 'Xb': -350, 'Xc': -280, 'W0': -210, 'W1': -135, 'W2': -55, 'W3': 38, 'W4': 78, 'W5': 112, 'W6': 162, 'W7': 186, 'K0': -170, 'K1': -95, 'V0': -20, 'K2': 135, 'V1': 290, 'K3': 335, 'V2': 385, 'K4': 435, 'V3': 490, 'K5': 545, 'V4': 605, 'K6': 665, 'V5': 730, 'K7': 805, 'V6': 880, 'V7': 955},
 3: {'Xa': -514, 'Xb': -444, 'Xc': -297, 'W0': -229, 'W1': -155, 'W2': -63, 'W3': 8, 'W4': 38, 'W5': 82, 'W6': 110, 'W7': 180, 'K0': -187, 'K1': -112, 'V0': -38, 'K2': 58, 'V1': 141, 'K3': 216, 'V2': 290, 'K4': 364, 'V3': 436, 'K5': 507, 'V4': 579, 'K6': 651, 'V5': 721, 'K7': 794, 'V6': 863, 'V7': 940},
 4: {'Xa': -514, 'Xb': -444, 'Xc': -297, 'W0': -229, 'W1': -155, 'W2': -63, 'W3': 8, 'W4': 38, 'W5': 82, 'W6': 110, 'W7': 180, 'K0': -180, 'K1': -108, 'V0': -36, 'K2': 58, 'V1': 141, 'K3': 216, 'V2': 290, 'K4': 364, 'V3': 438, 'K5': 512, 'V4': 586, 'K6': 660, 'V5': 734, 'K7': 808, 'V6': 878, 'V7': 950},
 1: {'Xa': -510, 'Xb': -430, 'Xc': -352, 'W0': -205, 'W1': -106, 'W2': -26, 'W3': 5, 'W4': 37, 'W5': 98, 'W6': 161, 'W7': 190, 'K0': -243, 'K1': -157, 'V0': -60, 'K2': 64, 'V1': 130, 'K3': 221, 'V2': 290, 'K4': 354, 'V3': 415, 'K5': 477, 'V4': 593, 'K6': 533, 'V5': 650, 'K7': 728, 'V6': 809, 'V7': 894},
 2: {'Xa': -496, 'Xb': -413, 'Xc': -333, 'W0': -252, 'W1': -103, 'W2': -30, 'W3': 5, 'W4': 38, 'W5': 99, 'W6': 130, 'W7': 188, 'K0': -210, 'K1': -148, 'V0': -54, 'K2': 67, 'V1': 155, 'K3': 221, 'V2': 291, 'K4': 349, 'V3': 409, 'K5': 473, 'V4': 534, 'K6': 598, 'V5': 662, 'K7': 829, 'V6': 747, 'V7': 904},
}
if OPT["plan"] == 9: wI = {"W0": -210, "W1": -135, "W2": -60, "W3": 6, "W4": 38, "W5": 80, "W6": 110, "W7": 150}
elif OPT["plan"] == 13: wI.update({"W0": -135, "W1": -85, "W2": -40})
elif OPT["plan"] == 14: wI.update({"W0": -112, "W1": -68, "W2": -30})
elif OPT["plan"] == 15: wI.update({"W0": -135, "W1": -85, "W2": -40, "W3": 40, "W4": 86, "W5": 130, "W6": 170, "W7": 206})
elif OPT["plan"] in (11, 12):
    wI.update(dict(zip(ringplan.KV, {11: [-135, -55, 25, 105, 180, 245, 300, 352, 404, 482, 564, 646, 728, 810, 892, 978],
                                     12: [-150, -72, 6, 84, 160, 228, 292, 354, 420, 498, 577, 656, 735, 814, 893, 972]}[OPT["plan"]])))
elif OPT["plan"] == 10: wI = {"W0": -215, "W1": -145, "W2": -75, "W3": 6, "W4": 38, "W5": 70, "W6": 104, "W7": 140}
elif OPT["plan"]: wI = PLANS[OPT["plan"]]; xI = {}
ISS, SLOT, _c, NEED = ringplan.plan(OPT["i0"], OPT["dk"], wI, xI)
assert SLOT is not None
SPR = {}; TIMES = {}
for t in ISS:
    m = ISS[t] % 1200
    sp = OPT["ksp"] if t[0] in "KV" else OPT["wsp"]
    if OPT["uni"] and t[0] in "KV":
        gap_ = min((ISS[u] - ISS[t] - 1) % 1200 + 1 for u in ISS if u[0] in "KV")
        ts_ = [ISS[t] + (gap_*i + 2)//4 for i in range(4)]
        for i in range(4):
            for edge in (0, 240, 288, 1200):
                if edge - 4 <= ts_[i] < edge + 2: ts_[i] = edge + 2
        TIMES[t] = ts_; continue
    if 228 <= m < 288: ISS[t] += 290 - m; m = 290
    SPR[t] = min(sp, ((240 if m < 288 else 1200) - 5 - m)//3); assert SPR[t] >= 1
    TIMES[t] = [ISS[t] + SPR[t]*i for i in range(4)]
BASE = {}
for ch in "KVW":
    for i, b in enumerate(ringplan.bases([SLOT[f"{ch}{i}"] for i in range(8)])[1]): BASE[f"{ch}{i}"] = b
XB = min(SLOT["Xa"], SLOT["Xb"], SLOT["Xc"]); assert max(SLOT["Xa"], SLOT["Xb"], SLOT["Xc"]) - XB <= 3
NEXT = sorted([t for t in ISS if ISS[t] < 0 and t[0] in "WX"], key=lambda t: (t != "W0", ISS[t]))
print("plan:", ISS, SLOT, BASE, NEXT, file=sys.stderr)
TILE = {}
def lit(x): return hex(x & 0xffffffff)
def rebase(rg, typ, old, new, e, d, after=()):
    if old == new: return []
    regs_ = vK if typ == "K" else [vVb if typ == "V" else vWb]
    return [rg.F(V(f"v_add_u32 {r}, {lit((new - old)*16384)}, {r}", rd=[r], wr=[r], e=e, d=d, deps=[(a, 0) for a in after if a])) for r in regs_]
def wq_t0(dst, step):
    hf, dg = ORD[step]
    return [f"s_add_u32 {dst}, {sWcol}, {sDg[dg]}"] + ([f"s_xor_b32 {dst}, {dst}, 128"] if hf else [])
def x_t0(dst, a, q):
    return [f"s_lshr_b32 {dst}, {sDg[q]}, 12"] + ([f"s_add_u32 {dst}, {dst}, {a*65536}"] if a else [])
def tile_src(spec):
    k = spec[0]
    if k == "W": return srdW, vDW, wq_t0(sT[0], spec[1]), sD, (" nt" if (len(spec) > 2 and OPT["fntw"]) else NTW)
    if k == "C": return srdW, vDW, [f"s_add_u32 {sT[0]}, {sC[spec[1]]}, {sH[spec[2]]}"], sD, (" nt" if OPT["ntc"] else "")
    if k == "N": return srdW, vDW, [f"s_mov_b32 {sT[0]}, {sN[spec[1]]}"], sD, NTW
    if k == "Y": return srdX, vDX, [f"s_mov_b32 {sT[0]}, {sN[spec[1]]}"], sDY, NTX
    if k == "X": return srdX, vDX, x_t0(sT[0], spec[1], spec[2]), sDY, (" nt" if (OPT["fntx"] == 1 or (OPT["fntx"] == 2 and spec[2] == 0)) else NTX)
def add_dmas(rg, items):
    ev = []
    for (name, spec, slot, e, sp, bar) in items:
        for i, t in (sp if isinstance(sp, list) else [(i, e + sp*i) for i in range(4)]): ev.append((t, e, i, name, spec, slot, bar))
    ev.sort(key=lambda x: (x[0], x[1]))
    prev = None; cur = None; wopen = None; ts = None; lastw = None; m0 = None
    for (t, e0, i, name, spec, slot, bar) in ev:
        deps = []
        if bar is not None: deps.append((bar, 0))
        if prev is not None: deps.append((prev, 1))
        if cur != slot:
            m0 = rg.F(Op(f"s_add_u32 m0, {sW4k}, {slot*16384}", "t", wr=["m0"], e=t - 6, deps=([(prev, 1)] if prev else []))); cur = slot
        deps.append((m0, 1))
        if spec[0] in "KV":
            so, vo, srd = (sKoff, vDK, srdK) if spec[0] == "K" else (sVoff, vDV, srdV)
            st = rg.inc.get(spec[0])
            if st is not None and i == 0: deps.append((st, 0))
            o = rg.F(Op(f"buffer_load_dwordx4 {vo}, {srd}, {so} offen offset:{i*1024}{NTKV[spec[0]] if (rg.name != 'R1f' or OPT['fnt']) else ''} lds", "vm", rd=[vo, so, "m0"], e=t, d=t + 4, deps=deps))
            if i == 3:
                inc = rg.F(Op(f"s_add_u32 {so}, {so}, 0x4000", "t", rd=[so], wr=[so], deps=[(o, 1)], d=t + 12))
                if name[1] == "7":
                    inc = rg.F(Op(f"s_and_b32 {so}, {so}, 0x7ffff", "t", rd=[so], wr=[so], deps=[(inc, 0)], d=t + 14))
                    nr = "s10" if name[0] == "K" else "s14"
                    rg.F(S(f"s_cmp_eq_u32 {sHead}, 3", deps=[(o, 1)])); inc2 = rg.F(S(f"s_cselect_b32 {nr}, 0, {nr}", d=t + 20))
                rg.inc[spec[0]] = inc
        else:
            srd, vo, t0, dl, fl = tile_src(spec)
            if i == 0:
                assert wopen is None, "W-type tiles may not interleave"
                wopen = name
                tt = rg.F(Op(t0[0], "t", wr=[sT[0]], e=t - 12, deps=([(lastw, 1)] if lastw else [])))
                for x in t0[1:]: tt = rg.F(Op(x, "t", wr=[sT[0]], deps=[(tt, 0)]))
                ts = [tt]
                ts += [rg.F(Op(f"s_add_u32 {sT[j]}, {sT[0]}, {dl[j]}", "t", wr=[sT[j]], deps=[(ts[0], 0)])) for j in (1, 2, 3)]
            o = rg.F(Op(f"buffer_load_dwordx4 {vo}, {srd}, {sT[i]} offen offset:{i*1024}{fl} lds", "vm", rd=[vo, sT[i], "m0"], e=t, d=t + 4, deps=deps + [(ts[i], 0)]))
            if i == 3: wopen = None; lastw = o
        if i == 3: TILE.setdefault(name, []).append(o)
        if i == 0: rg.first_dma[name] = o
        prev = o
    rg.lastw = lastw
def head_dmas(rg, lo, hi):
    items = []
    for t in ISS:
        mine = [(i, x % 1200 - lo) for i, x in enumerate(TIMES[t]) if lo <= x % 1200 < hi]
        if not mine: continue
        m = ISS[t] % 1200
        spec = (t[0],) if t[0] in "KV" else (("W", int(t[1])) if ISS[t] >= 0 else (("N" if t[0] == "W" else "Y"), NEXT.index(t)))
        cands = [g for g in rg.bars if g + lo <= m and any(SLOT[p] == SLOT[t] and NEED[p][1] % 1200 == g + lo for p in NEED)] if mine[0][0] == 0 else []
        bar = rg.bars[max(cands)] if cands else None
        items.append((t, spec, SLOT[t], mine[0][1], mine, bar))
    if OPT["ka"] and rg.name == "R2":
        n = OPT["ka"]; prev = rg.F(Op(f"s_and_b32 s74x, {sWcol}, 0x37f".replace("s74x", "s78"), "t", e=OPT["ka0"] - 25))
        prev = rg.F(Op("s_add_u32 s78, s78, s75", "t", deps=[(prev, 0)]))
        for j in range(n):
            g = OPT["ka0"] + j*(OPT["ka1"] - OPT["ka0"])//n
            o = rg.F(Op(f"buffer_load_dword {vB}, {vLane}, {srdW}, s78 offen", "vm", rd=[vLane], e=g, d=g + 8, deps=[(prev, 0)]))
            if j < n - 1: prev = rg.F(Op(f"s_add_u32 s78, s78, {(32//n)*8192}", "t", deps=[(o, 1)], d=g + 20))
    if OPT["stress"]:
        for g in range(lo + 20, hi - 12, OPT["stress"]):
            o = rg.F(Op(f"buffer_load_dword {vLane}, {vDK}, {srdWS}, s79 offen nt", "vm", e=g - lo, d=g - lo + 6))
            rg.F(Op("s_add_u32 s79, s79, 0x1000", "t", deps=[(o, 1)], d=g - lo + 10))
    add_dmas(rg, items)
def dma_linear(name, spec, slot):
    ops = lin(f"s_add_u32 m0, {sW4k}, {slot*16384}")
    if spec[0] in "KV":
        so, vo, srd = (sKoff, vDK, srdK) if spec[0] == "K" else (sVoff, vDV, srdV)
        d = [Op(f"buffer_load_dwordx4 {vo}, {srd}, {so} offen offset:{i*1024}{NTKV[spec[0]]} lds", "vm") for i in range(4)]
        ops += lin("s_nop 0") + d + lin(f"s_add_u32 {so}, {so}, 0x4000")
    else:
        srd, vo, t0, dl, fl = tile_src(spec)
        d = [Op(f"buffer_load_dwordx4 {vo}, {srd}, {sT[i]} offen offset:{i*1024}{fl} lds", "vm") for i in range(4)]
        ops += lin("\n".join(t0) + "\n" + "\n".join(f"s_add_u32 {sT[i]}, {sT[0]}, {dl[i]}" for i in (1, 2, 3))) + d
    TILE.setdefault(name, []).append(d[-1])
    return ops
def reads_X(rg, addr, slots, dst, e, d, deps, step=1):
    ops = []
    for t in range(3):
        for s in range(4):
            r_, imm = addr(slots[t], s)
            ops.append(rg.F(Op(f"ds_read_b128 {dst(s, t)}, {r_} offset:{imm}", "ds", rd=[r_], wr=[dst(s, t)], e=e, d=d + len(ops)*step,
                               deps=list(deps) + ([(ops[-1], 0)] if ops else []))))
    return ops

def new_region(name):
    rg = Region(name); rg.nst = {"R1": 0, "R1f": 0, "R2": 6, "G": 0, "G0": 0}.get(name, 5)
    ext_waits(rg)
    if OPT['wstrict']: rg.ldspol = (lambda k: (4, 3)) if name != 'R2' else (lambda k: (4, 3) if k < 90 else (OPT['lrate'], OPT['lburst']))
    rg.tuse = {0: [], 1: []}; rg.bars = {}; rg.inc = {}; rg.first_dma = {}; rg.wq = bool(OPT["nperm"]) and name[0] != "G"
    return rg

def xor_addr(rg, base, k, ti, e, d, after=()):
    if k == 0: return base, None
    deps = [(x, 0) for x in rg.tuse[ti]] + [(a, 0) for a in after]
    o = rg.F(V(f"v_xor_b32 {vT[ti]}, {k*32}, {base}", rd=[base], wr=[vT[ti]], e=e, d=d, deps=deps))
    rg.tuse[ti] = []
    return vT[ti], o
def reads_W(rg, so, mt, buf, e, deps=(), ups=(), rsp=None):
    if rg.wq:
        if mt == 2: a, xo = xor_addr(rg, vWb, 2, 0, e - 8, e, ups)
        else: a, xo = (vWb if mt < 2 else vT[0]), None
        so += 8*(mt & 1)
    else: a, xo = xor_addr(rg, vWb, mt, mt & 1, e - 8, e, ups)
    dp = list(deps) + ([(xo, 1)] if xo else [(u, 1) for u in ups])
    ops = []
    for s in range(4):
        for p in range(2):
            ops.append(rg.F(Op(f"ds_read_b64_tr_b16 {FR(buf, s, p)}, {a} offset:{so + s*4096 + p*2048}", "ds", rd=[a], wr=[FR(buf, s, p)],
                               e=e, d=min(e + 1 + len(ops)*(rsp or OPT['rspw' if OPT['wstrict'] else 'rsp'])//8, e + 9), deps=dp + ([(ops[-1], 0)] if ops else []))))
    if rg.wq:
        if mt >= 2: rg.tuse[0] = ops
    elif xo: rg.tuse[mt & 1] = ops
    rg.lastWr = ops
    return ops, xo
def reads_K(rg, so, u, buf, e, deps=(), ups=()):
    ops = []
    for s in range(4):
        ops.append(rg.F(Op(f"ds_read_b128 {FR(buf, s)}, {vK[s]} offset:{so + u*1024}", "ds", rd=[vK[s]], wr=[FR(buf, s)],
                           e=e, d=e + 3 + len(ops)*OPT['rk'], deps=list(deps) + [(x, 1) for x in ups] + ([(ops[-1], 0)] if ops else []))))
    return ops
def reads_V(rg, so, dp_, buf, e, deps=(), ups=(), late=0):
    ops = []; xs = []
    for k in range(2):
        dt = 2*dp_ + k
        a, xo = xor_addr(rg, vVb, dt, k, e - 10, e + 4*k, ups)
        if xo: xs.append(xo)
        dd = list(deps) + ([(xo, 1)] if xo else [(u, 1) for u in ups])
        mine = []
        for sg in range(2):
            for p in range(2):
                o = rg.F(Op(f"ds_read_b64_tr_b16 {FR(buf, 2*k + sg, p)}, {a} offset:{so + sg*2048 + p*1024}", "ds", rd=[a], wr=[FR(buf, 2*k + sg, p)],
                            e=e, d=(e + 2 + len(ops)*OPT['rsp']//8) if not late else (e + 3 + 2*len(ops) if k == 0 else e + 5 + (len(ops)*5)//4), deps=dd + ([(ops[-1], 0)] if ops else [])))
                ops.append(o); mine.append(o)
        if xo: rg.tuse[k] = mine
    return ops, xs

def barrier(rg, gap, last_reads, tiles, extra=(), lg0=True, st=True):
    w = rg.F(WAIT(gap - 1, need_ds=last_reads, need_vm=list(tiles) + list(extra), lg0=lg0, late=1))
    w.deps += [(x, 1) for x in extra if x in rg.fill]
    b = rg.F(Op("s_barrier", "w", e=gap, d=gap, deps=[(w, 1)])); rg.bars[gap] = b
    if OPT["bst"] and st:
        w.pre = "s_memtime s[2:3]"
        i = rg.nst; rg.nst += 1
        rg.F(V(f"v_writelane_b32 {vLane}, s2, {i}", e=gap + 1, d=gap + 8))
    return b
def xstamp(rg, gap, idx, dep):
    if OPT["bst"] < 2: return
    w = rg.F(Op("s_memtime s[2:3]\ns_waitcnt lgkmcnt(0)", "w", e=gap, d=gap, deps=[(dep, 1)]))
    rg.F(V(f"v_writelane_b32 {vLane}, s2, {idx}", deps=[(w, 0)], d=gap))
def ext_waits(rg):
    rg.xw = []
    for d in (-1, 1):
        w = WAIT(d, late=1); w.e = d; rg.F(w); rg.xw.append(w)
def bind_ext(rg, preds):
    rg.xw[0].alt_ds = [p[:4] for p in preds]; rg.xw[1].alt_ds = list(preds)
def frag_waits(rg, rd_ops, first_use, n_first, second_use, only_first=False):
    if rd_ops is None: return
    rg.F(WAIT(first_use - 1, need_ds=rd_ops[:n_first], late=2))
    if n_first < len(rd_ops) and not only_first: rg.F(WAIT(second_use - 1, need_ds=rd_ops, late=1))

def so_(sb): return (sb[0] - sb[1])*16384
def w_step(rg, half, zero, Bop, pend, cur, nxt, need, extra=(), more_reads=(), xwait=None, post=None, nobar=False):
    b0 = rg.n(); info = dict(b0=b0); xlast = None
    if xwait:
        for t in range(3): rg.F(WAIT(b0 + 4*t - 1, need_ds=xwait[:4*t + 4], late=1))
        info["xbar"] = barrier(rg, b0 + 10, xwait, (), lg0=False, st=False)
    for mt in range(4):
        buf = C.grp & 1; C.grp += 1
        g0 = b0 + 12*mt
        if pend is not None and (mt < 3 or BDW): frag_waits(rg, pend, g0, 4, g0 + 2, only_first=(mt == 3 and not nobar))
        for t in range(3):
            for s in range(4):
                acc = OA(4*half + mt, t)
                rg.M(mfma(acc, FR(buf, s), Bop(s, t), "0" if (zero and s == 0) else acc))
        if mt < 3:
            pend, xo = reads_W(rg, so_(cur[1:3]), mt + 1, buf ^ 1, g0 - 1 if (mt or b0) else g0)
            if xo: xlast = xo
            if mt == 0 and rg.wq: base_users = pend
            if mt == 2: bar = None if nobar else barrier(rg, g0 + 11 + BDW, pend + list(more_reads), need, extra)
        else:
            ups = rebase(rg, nxt[0], nxt[3], nxt[2], b0 + 20, g0 - 2, after=([xlast] + (base_users if rg.wq else [])) if nxt[0] == "W" else [])
            if nxt[0] == "W": pend, _ = reads_W(rg, so_(nxt[1:3]), 0, buf ^ 1, g0 - 1 + (0 if nobar else BDW), deps=([] if nobar else [(bar, 0)]), ups=ups, rsp=(4 if post else None))
            else: pend = reads_K(rg, so_(nxt[1:3]), 0, buf ^ 1, g0 - 1 + BDW, deps=[(bar, 0)], ups=ups)
            if post: info["post"] = post(g0, bar)
    info["bar"] = bar; info["end"] = rg.n() - 1
    return pend, info
def TS(name, prev=None):
    k, i = name[0], int(name[1])
    return (k, SLOT[name], BASE[name], BASE[f"{k}{(i - 1) % 8}"])

def softmax(rg, g0, u, Sr, pbuf, d_over, d_puse):
    sg = u >> 1
    for t in range(3):
        last = rg.mf[g0 + 4*t + 3]
        dl = min(d_over(t), d_puse(t) - 3)
        ex = [rg.F(V8(f"v_exp_f32 {Sr(t,i)}, {Sr(t,i)}", rd=[Sr(t,i)], wr=[Sr(t,i)], e=last.gap, sdeps=[(last, 8)], trans=True)) for i in range(4)]
        for j in range(2):
            dst = PBr(pbuf, sg, t, 2*(u & 1) + j)
            rg.F(V(f"v_cvt_pk_bf16_f32 {dst}, {Sr(t,2*j)}, {Sr(t,2*j+1)}", rd=[Sr(t,2*j), Sr(t,2*j+1)], wr=[dst], d=dl,
                   sdeps=[(ex[2*j], 1), (ex[2*j+1], 1)]))
def k_mfmas(rg, buf, Sd):
    for t in range(3):
        for s in range(4):
            rg.M(mfma(Sd(t), FR(buf, s), QV(s, t), "0" if s == 0 else Sd(t)))
def v_mfmas(rg, dp_, buf, pbuf, zero, tmajor=False):
    order = [(k, t) for t in range(3) for k in range(2)] if tmajor else [(k, t) for k in range(2) for t in range(3)]
    last = {}
    for k, t in order:
        for sg in range(2):
            acc = OA(2*dp_ + k, t)
            last[(2*dp_ + k, t)] = rg.M(mfma(acc, FR(buf, 2*k + sg), PB(pbuf, sg, t), "0" if (zero and sg == 0) else acc))
    return last
def sum_mfmas(rg, t, pbuf, zero):
    for sg in range(2):
        o = rg.M(mfma(LA(t), ONES, PB(pbuf, sg, t), "0" if (zero and sg == 0) else LA(t)))
    return o
def o_epilogue_ops(dt, t):
    mul = [V(f"v_mul_f32 {OAr(dt,t,i)}, {vRL[t]}, {OAr(dt,t,i)}", rd=[OAr(dt,t,i), vRL[t]], wr=[OAr(dt,t,i)]) for i in range(4)]
    cvt = []
    for j in range(2):
        dst = OPr(dt >> 1, t, 2*(dt & 1) + j)
        cvt.append(V(f"v_cvt_pk_bf16_f32 {dst}, {OAr(dt,t,2*j)}, {OAr(dt,t,2*j+1)}", rd=[OAr(dt,t,2*j), OAr(dt,t,2*j+1)], wr=[dst],
                     deps=[(mul[2*j], 0), (mul[2*j+1], 0)]))
    for o in mul + cvt: o.ot = (dt, t)
    return mul, cvt
def q_muls(rg, mt, t, last, **kw):
    return [rg.F(V(f"v_mul_f32 {OAr(mt,t,i)}, {sScale}, {OAr(mt,t,i)}", rd=[OAr(mt,t,i)], wr=[OAr(mt,t,i)],
                   e=(last.gap if last is not None else -1), sdeps=([(last, 8)] if last is not None else []), **kw)) for i in range(4)]
def q_epilogue(rg, sp, t, lastA, lastB, d_use, muls=True):
    cv = []
    for k, last in ((0, lastA), (1, lastB)):
        mt = 2*sp + k
        mul = q_muls(rg, mt, t, last) if muls else None
        for j in range(2):
            dst = QVr(sp, t, 2*k + j)
            cv.append(rg.F(V(f"v_cvt_pk_bf16_f32 {dst}, {OAr(mt,t,2*j)}, {OAr(mt,t,2*j+1)}", rd=[OAr(mt,t,2*j), OAr(mt,t,2*j+1)], wr=[dst],
                             deps=([(mul[2*j], 0), (mul[2*j+1], 0)] if muls else []))))
    if OPT["nperm"]:
        for o in cv: o.d = d_use - 3
        return
    for j in range(2):
        a, b = QVr(sp, t, j), QVr(sp, t, 2 + j)
        p1 = rg.F(V8(f"v_permlane32_swap_b32 {a}, {b}", rd=[a, b], wr=[a, b], sdeps=[(cv[j], 2), (cv[2+j], 2)]))
        rg.F(V8(f"v_permlane16_swap_b32 {a}, {b}", rd=[a, b], wr=[a, b], sdeps=[(p1, 2)], d=d_use - 3))

def BopQ(st):
    dg = ORD[st][1]
    return (lambda s, t: XA(4*dg + s, t)) if dg < 3 else (lambda s, t: QV(s, t))

def build_R2():
    rg = new_region("R2")
    C.grp = 24
    pend, i6 = w_step(rg, ORD[6][0], False, BopQ(6), None, TS("W6"), TS("W7"), ["W7"])
    pend, i7 = w_step(rg, ORD[7][0], False, BopQ(7), pend, TS("W7"), TS("K0"), ["K0"])
    a0 = rg.n(); b7 = i7["b0"]
    for sp in (0, 1):
        for t in range(3): q_epilogue(rg, sp, t, None, None, min(a0 + 4*t + sp, 20 + (sp*3 + t)*9), muls=True)
    for sp in (2, 3):
        for t in range(3):
            mA, mB = 2*sp - 4, 2*sp - 3
            q_epilogue(rg, sp, t, rg.mf[b7 + 12*mA + 4*t + 3], rg.mf[b7 + 12*mB + 4*t + 3], a0 + 4*t + sp)
    B = lambda i: a0 + 48 + 102*i
    def layout(i):
        order = ["KVKVKVKV", "KKVKVKVV", "KKKVKVVV", "KKKKVVVV"][OPT["b0"] if i == 0 else 0]
        res = []; off = 0; n = {"K": 0, "V": 0}
        for ch in order:
            res.append((ch, n[ch], off)); off += 12 + (2 if (ch == "V" and n[ch] < 3) else 0); n[ch] += 1
        return res
    def puse(i, sg, t): return (B(i) + [o for (k, j, o) in layout(i) if k == "V"][0] + 2*t + sg) if i < 7 else (B(7) + 4*t + sg)
    def so(n): return so_(TS(n)[1:3])
    def rb(n, e, d, after=()): x = TS(n); return rebase(rg, x[0], x[3], x[2], e, d, after)
    for u in range(4):
        buf = C.grp & 1; C.grp += 1; g0 = rg.n()
        if u < 3 or BDW: frag_waits(rg, pend, g0, 2, g0 + 2, only_first=(u == 3))
        k_mfmas(rg, buf, lambda t: OA(u, t))
        softmax(rg, g0, u, lambda t, i: OAr(u, t, i), 0, lambda t: 10**9, lambda t: puse(0, u >> 1, t))
        if u < 3:
            pend = reads_K(rg, so("K0"), u + 1, buf ^ 1, g0 - 1)
            if u == 2: bar = barrier(rg, g0 + 11 + BDW, pend, ["K1", "V0"]); lastK = pend
        else:
            ups = rb("K1", g0 - 12, g0 - 2, lastK)
            pend = reads_K(rg, so("K1"), 0, buf ^ 1, g0 - 1 + BDW, deps=[(bar, 0)], ups=ups)
            upsV = rb("V0", -1, g0)
    for i in range(7):
        b0 = rg.n(); assert b0 == B(i)
        lay = layout(i); usedV = False; tmp = 7
        for n_, (kind, u, off) in enumerate(lay):
            buf = C.grp & 1; C.grp += 1; g0 = rg.n(); assert g0 == b0 + off
            last = n_ == 7
            if kind == "K":
                frag_waits(rg, pend, g0, 2, g0 + 2)
                if lay[n_ + 1][0] == "K":
                    dt = tmp; tmp -= 1
                    vstart = b0 + [o for (k, j, o) in lay if k == "V" and j == dt >> 1][0]
                    Sd = (lambda dt: lambda t: OA(dt, t))(dt); Sr = (lambda dt: lambda t, j: OAr(dt, t, j))(dt)
                    dov = (lambda v, dt: lambda t: v + 6*(dt & 1) + 2*t - 1)(vstart, dt)
                else:
                    Sd = lambda t: R("v", S0 + 4*t, 4); Sr = lambda t, j: f"v{S0 + 4*t + j}"
                    later = [b0 + o for m_, (k, j, o) in enumerate(lay) if k == "K" and j > u and lay[m_ + 1][0] != "K"]
                    nxtK = later[0] if later else (B(i+1) if i < 6 else None)
                    dov = (lambda x: lambda t: x + 4*t - 1)(nxtK) if nxtK else (lambda t: 10**9)
                k_mfmas(rg, buf, Sd)
                softmax(rg, g0, u, Sr, (i + 1) & 1, dov, (lambda u: lambda t: puse(i + 1, u >> 1, t))(u))
            else:
                if not last or BDA: frag_waits(rg, pend, g0, 4, g0 + 6, only_first=last)
                v_mfmas(rg, u, buf, i & 1, i == 0)
                if u < 3: sum_mfmas(rg, u, i & 1, i == 0)
            if not last:
                nk, nu, _ = lay[n_ + 1]
                if nk == "K":
                    pend = reads_K(rg, so(f"K{i+1}"), nu, buf ^ 1, g0 - 1)
                    if nu == 3: lastK = pend
                else:
                    pend, xs = reads_V(rg, so(f"V{i}"), nu, buf ^ 1, g0 - 1, ups=(upsV if nu == 0 else ()), late=(OPT["vlate"] if nu < 3 else 0))
                    if nu == 3: bar = barrier(rg, b0 + 89 + BDA, pend, [f"K{i+2}", f"V{i+1}"] if i < 6 else ["V7"]); lastX = xs
            elif i < 6:
                ups = rb(f"K{i+2}", g0 - 20, g0 - 2, lastK)
                pend = reads_K(rg, so(f"K{i+2}"), 0, buf ^ 1, g0 - 1 + BDA, deps=[(bar, 0)], ups=ups)
                upsV = rb(f"V{i+1}", g0 - 10, g0 + 4, lastX)
            else:
                upsV = rb("V7", g0 - 10, g0 - 2, lastX)
                pend, _ = reads_V(rg, so("V7"), 0, buf ^ 1, g0 - 1 + BDA, late=0, deps=[(bar, 0)], ups=upsV)
    E = rg.n(); assert E == B(7)
    epi = []
    for p in range(4):
        buf = C.grp & 1; C.grp += 1; g0 = rg.n()
        if p == 0: frag_waits(rg, pend, g0, 4, g0 + 2)
        elif p < 3 or BDW: frag_waits(rg, pend, g0, 4, g0 + 6, only_first=(p == 3))
        last = v_mfmas(rg, p, buf, 1, False, tmajor=(p == 0))
        if p == 0:
            rl = []; lr = []
            for t in range(3):
                ls = sum_mfmas(rg, t, 1, False)
                lr.append(rg.F(V(f"v_accvgpr_read_b32 {vRL[t]}, a{240+4*t}", rd=[f"a{240+4*t}"], wr=[vRL[t]], e=ls.gap, sdeps=[(ls, 8)], d=E + 28)))
            mn = rg.F(V(f"v_min3_f32 {vA}, {vRL[0]}, {vRL[1]}, {vRL[2]}", rd=vRL, wr=[vA], deps=[(x, 0) for x in lr], d=E + 30))
            mx = rg.F(V(f"v_max3_f32 {vB}, {vRL[0]}, {vRL[1]}, {vRL[2]}", rd=vRL, wr=[vB], deps=[(x, 0) for x in lr], d=E + 30))
            rg.F(V(f"v_cmp_gt_f32 {sBad}, {sLo}, {vA}", rd=[vA], wr=[sBad], deps=[(mn, 0)], d=E + 40))
            rg.F(V(f"v_cmp_lt_f32 vcc, {sHi}, {vB}", rd=[vB], wr=["vcc"], deps=[(mx, 0)], d=E + 40))
            for t in range(3):
                rl.append(rg.F(V8(f"v_rcp_f32 {vRL[t]}, {vRL[t]}", rd=[vRL[t]], wr=[vRL[t]], deps=[(mn, 0), (mx, 0)], trans=True, d=E + 34)))
        for (dt, t), lm in last.items():
            mul, cvt = o_epilogue_ops(dt, t)
            for o in mul: o.e = lm.gap; o.sdeps = [(lm, 8), (rl[t], 1)]
            for o in mul + cvt:
                o.optional = True
                if dt >= 4 and o in cvt: o.e = 10**9
                rg.F(o); epi.append(o)
        if p < 3:
            pend, xs = reads_V(rg, so("V7"), p + 1, buf ^ 1, g0 - 1 if p != 0 else g0 + 3)
            if p == 2: bar = barrier(rg, g0 + 11 + BDW, pend, ["W0", "Xa", "Xb", "Xc"])
        else:
            ups = rb("W0", -1, g0 - 2, [])
            for o in ups: o.e = a0
            if OPT["nperm"]: ups = ups + [rg.F(V(f"v_mad_i32_i24 {vWb}, {vC}, {sGate}, {vWb}", rd=[vC, vWb], wr=[vWb], e=a0, d=g0 - 4))]
            pend, _ = reads_W(rg, so("W0"), 0, buf ^ 1, g0 - 1 + BDW, deps=[(bar, 0)], ups=ups, rsp=8)
    assert sorted(g + 288 for g in rg.bars) == ringplan.bS[6:] + [ringplan.bQ] + ringplan.bB + [ringplan.bP]
    if OPT["pf3"]:
        g = OPT["pf3"]
        c1 = rg.F(V(f"v_mbcnt_lo_u32_b32 {vA}, -1, 0", wr=[vA], e=g - 30, d=g - 3))
        c2 = rg.F(V(f"v_mbcnt_hi_u32_b32 {vA}, -1, {vA}", rd=[vA], wr=[vA], deps=[(c1, 0)], d=g - 2))
        c3 = rg.F(V(f"v_lshlrev_b32 {vA}, 7, {vA}", rd=[vA], wr=[vA], deps=[(c2, 0)], d=g - 1))
        rg.F(Op(f"buffer_load_dword {vB}, {vA}, s[76:79], s75 offen", "vm", rd=[vA], wr=[vB], deps=[(c3, 1)], e=g, d=g + 5))
    head_dmas(rg, 288, 1200)
    rg.pendW0 = pend; rg.epi = epi
    rg.schedule()
    return rg

def half0_muls(rg, b4):
    for mt in range(4):
        for t in range(3): q_muls(rg, mt, t, rg.mf[b4 + 12*mt + 4*t + 3])

def build_R1(left):
    rg = new_region("R1")
    C.grp = 0
    xa = [rg.F(V(f"v_add_u32 v{S0+s}, {sW1k}, {vK[s]}", rd=[vK[s]], wr=[f"v{S0+s}"], d=6)) for s in range(4)]
    xr = reads_X(rg, lambda sl, s: (f"v{S0+s}", (sl - XB)*16384), [SLOT["Xa"], SLOT["Xb"], SLOT["Xc"]], QV, 4, 9, [(a, 1) for a in xa], step=2)
    pend = None; infos = []
    for st in range(5):
        pend, inf = w_step(rg, ORD[st][0], st in (0, 3), BopQ(st), pend, TS(f"W{st}"), TS(f"W{st+1}"), [f"W{st+1}"], more_reads=(xr if st == 0 else ()))
        infos.append(inf)
    new = {}
    for o in left:
        dt, t = o.ot
        n = V(o.text, rd=list(o.rd), wr=list(o.wr)); n.ot = o.ot; new[id(o)] = n
        n.deps = [(new[id(p)], g) for (p, g) in o.deps if id(p) in new]
        n.e = 8 if dt >= 6 else -1
        n.d = ((12*dt + 4*t) if dt < 4 else (144 + 12*(dt - 4) + 4*t)) - 1
        rg.F(n)
    head_dmas(rg, 0, 240)
    rg.pend = pend
    rg.schedule()
    return rg

def build_R1b(h, zst=None):
    rg = new_region(f"R1b{h}")
    C.grp = 20
    pend, inf = w_step(rg, ORD[5][0], False, BopQ(5), None, TS("W5"), TS("W6"), ["W6"])
    for i in range(48): rg.F(V(f"v_accvgpr_write_b32 a{ZB[h-1] + i}, v{PV0 + i}", rd=[f"v{PV0+i}"], wr=[f"a{ZB[h-1]+i}"]))
    head_dmas(rg, 240, 288)
    next_setup(rg, h)
    rg.pend = pend
    rg.schedule()
    return rg

def next_setup(rg, h):
    T = lambda x, **kw: rg.F(S(x, **kw))
    if h < 3:
        T(f"s_add_u32 {sWcol}, {sWcol}, 256", deps=([(rg.lastw, 1)] if getattr(rg, "lastw", None) else []))
        T(f"s_and_b32 {sWcol}, {sWcol}, 0x3ff")
        for t in NEXT:
            if t[0] == "W":
                for x in wq_t0(sN[NEXT.index(t)], int(t[1])): T(x)
    if h == (3 if OPT["ka"] else 2):
        a = T(f"s_lshl_b32 {sTmp}, {sB}, 2")
        if not (OPT["bst"] or OPT["stress"]): rg.dbg = rg.F(Op(f"buffer_load_dword {vLane}, off, {srdD}, {sTmp} sc1", "vm", wr=[vLane], deps=[(a, 0)]))
    if h == 3:
        for x in ("s_mov_b32 s16, s80", "s_mov_b32 s17, s81", "s_mov_b32 s18, 0x80000", "s_mov_b32 s20, s80", "s_mov_b32 s21, s81", "s_mov_b32 s22, 0x80000",
                  f"s_mov_b32 {sGate}, 1") + ((f"s_mov_b32 s75, {hex(OOB)}",) if OPT["ka"] else ()): T(x)
        for i in (1, 2, 3): T(f"s_mov_b32 {sD[i]}, {7168*i}"); T(f"s_mov_b32 {sDY[i]}, {7168*i}")
        for m in range(6): T(f"s_add_u32 {sN[m]}, {sRot if m < 4 else sC[0]}, {sH[m & 3]}")
        if OPT["pf3"]:
            for x in ("s_add_u32 s76, s76, L_g3-L_loop", "s_addc_u32 s77, s77, 0", "s_mov_b32 s78, L_codeend-L_g3"): T(x)
        if OPT["tlb"] == 1:
            sw = T(f"s_mov_b32 {sTmp}, {hex(FLAG_BASE + 0x20080)}")
            for srd, so in ((srdW, "0"), (srdWS, "s75"), (srdWS, sTmp), (srdO, sOutR)):
                rg.F(Op(f"buffer_load_dword {vB}, off, {srd}, {so}", "vm", wr=[vB], deps=[(sw, 0)]))
        rg.F(V(f"v_mov_b32 {vDW}, {vDWo}", rd=[vDWo], wr=[vDW])); rg.F(V(f"v_mov_b32 {vDX}, {vDWo}", rd=[vDWo], wr=[vDX]))

def build_R1f():
    X = lambda q: [f"x{q}{a}" for a in range(3)]
    final = [t for t in ISS if ISS[t] < 288 and t[0] in "KV"] + ["W6", "W7"]
    fk = sorted([t for t in final if t[0] in "KV"], key=lambda t: ISS[t]); assert 3 <= len(fk) <= 7
    OF = [0, 3, 1, 2, 4, 5] if OPT["kvlate"] == 8 else list(range(6))
    if OPT["kvlate"] == 8:
        init = X(0) + ["w0", "w1"] + X(1) + ["w2", "x20"]
        inh = list(zip(["x21", "x22", "w3"], X(0))) + [("x30", "w0"), ("x31", "w1")] + list(zip(["x32", "w4", "w5"], X(1))) + [("W6", "w2")] + \
              list(zip(["W7", fk[0], fk[1]], X(2))) + [(fk[2], "w3")] + list(zip(fk[3:], X(3) + ["w4"]))
    elif OPT["kvlate"] != 4:
        init = X(0) + ["w0"] + X(1) + ["w1", "K0", "K1"]
        inh = list(zip(X(2), X(0))) + [("w2", "w0")] + list(zip(["w3", "x30", "x31"], X(1))) + [("x32", "w1")] + \
              list(zip(["w4", "V0", "w5"], X(2))) + [("K2", "w2"), ("W6", "w3")] + list(zip(["V1", "W7", "K3"], X(3))) + ([("V2", "w4")] if len(fk) == 7 else [])
    else:
        init = X(0) + ["w0"] + X(1) + ["w1", "x20", "x21"]
        inh = list(zip(["x22", "w2", "w3"], X(0))) + [("x30", "w0")] + list(zip(["x31", "x32", "w4"], X(1))) + [("w5", "w1")] + \
              list(zip(["W6", "W7", fk[0]], X(2))) + [(fk[1], "w2"), (fk[2], "w3")] + list(zip(fk[3:], X(3) + ["w4"]))
    sl = {t: SLOT[t] for t in final}
    for new, old in reversed(inh):
        if new in sl: sl[old] = sl[new]
    free = [x for x in range(10) if x not in {sl[t] for t in init if t in sl}]
    for t in init:
        if t not in sl: sl[t] = free.pop()
    for new, old in inh: sl[new] = sl[old]
    def spec(t):
        if t[0] == "x": return ("X", int(t[2]), int(t[1]))
        if t[0] == "w": return ("W", OF[int(t[1])], 1)
        if t[0] == "W": return ("W", int(t[1]))
        return (t[0],)
    wsl = [sl[f"w{j}"] for j in range(6)] + [SLOT["W6"]]
    wb = [min(x, 6) for x in wsl[:6]] + [BASE["W6"]]
    rg = new_region("R1f")
    C.grp = 0
    xaddr = lambda s_, s: (f"v{S0 + 4*(s_ >> 2) + s}", (s_ & 3)*16384)
    sh = 1 if OPT["kvlate"] == 8 else 0
    dst = {sh: (1, lambda s, t: XA(4 + s, t)), 1 + sh: (2, lambda s, t: XA(8 + s, t)), 3: (3, QV)}
    pend = None; infos = []; xw = None
    for st in range(6):
        post = None; need = [f"w{st+1}" if st < 5 else "W6"]
        if st in dst:
            q, fn = dst[st]; need += X(q)
            post = (lambda q, fn: lambda g0, bar: reads_X(rg, xaddr, [sl[t] for t in X(q)], fn, g0 + 2 + BDW, g0 + 5 + BDW, [(bar, 0)]))(q, fn)
        pend, inf = w_step(rg, ORD[OF[st]][0], OF[st] in (0, 3), BopQ(OF[st]), pend, ("W", wsl[st], wb[st]), ("W", wsl[st+1], wb[st+1], wb[st]), need, xwait=xw, post=post)
        xw = inf.get("post"); infos.append(inf)
    rel = {"w%d" % j: infos[j]["bar"] for j in range(6)}
    for q, st in ((1, 1 + sh), (2, 2 + sh), (3, 4)):
        for t in X(q): rel[t] = infos[st]["xbar"]
    items = []; tcur = 0
    if OPT["kvlate"] == 8: seq = [(t, None) for t in ("w2", "x20", "x21", "x22", "w3")] + inh[3:]
    elif OPT["kvlate"] != 4:
        seq = [(t, None) for t in ("x20", "x21", "x22")] + inh[3:]
        kp = {0: (3, 4), 1: (8, 9), 2: (4, 9), 3: (9, 12), 5: (0, 5), 6: (3, 7), 7: (3, 4)}[OPT["kvlate"]]
        seq.insert(kp[0], ("K0", None)); seq.insert(kp[1], ("K1", None))
    else: seq = [(t, None) for t in ("x20", "x21", "x22", "w2", "w3")] + inh[3:]
    for new, old in seq:
        if old: tcur = max(tcur, rel[old].e)
        if 5 <= OPT["kvlate"] < 8 and new == "K3": tcur = max(tcur, 255)
        sp = OPT["fsp"] if (new[0] not in "KV" or OPT["kvlate"] not in (4, 8)) else OPT["fkv"]
        cnt = sum(1 for x in TIMES[new] if x < 288) if new in TIMES else 4
        if OPT["kvlate"] == 7 and new[0] in "KV":
            t0, sp = {"K0": (18, 11), "K1": (62, 11), "V0": (112, 9), "K2": (150, 11), "V1": (206, 8), "K3": (240, 9), "V2": (278, 2)}[new]
            items.append((new, spec(new), sl[new], t0, [(i, t0 + sp*i) for i in range(cnt)], rel[old] if old else None)); continue
        items.append((new, spec(new), sl[new], tcur, [(i, tcur + sp*i) for i in range(cnt)], rel[old] if old else None)); tcur += 4*sp + (1 if sp == OPT["fsp"] else OPT["fgap"])
    add_dmas(rg, items)
    next_setup(rg, 0)
    rg.pend = pend
    rg.schedule()
    rg.init = [(t, spec(t), sl[t]) for t in init[:8]]; rg.wb0 = wb[0]; rg.wso0 = (wsl[0] - wb[0])*16384
    rg.x0 = [xaddr(sl[t], 0) for t in X(0)]; rg.xsl0 = [sl[t] for t in X(0)]; rg.xaddr = xaddr
    return rg

RLD = [[R("v", QV0 + 4*g, 4) for g in range(8)],
       [R("v", QV0 + 32 + 4*g, 4) for g in range(4)] + [R("v", S0 + 4*g, 4) for g in range(3)] + ["v[236:239]"]]
vTo = vLane if not OPT['bst'] else 'v235'
vSt, vFl, vPo, vPr, vOut = vDK, vDV, vVb, vDX, vC
LAG = OPT['lag']; OSC = ['', ' sc1', ' nt', ' sc0 sc1'][OPT['osc']]
NTST = ' nt' if OPT['ntst'] else ''
LO = ["v249", "v250", "v251", "v253"]
def pack_store(chunk):
    res = []
    for t in range(3):
        for np_ in range(2):
            a, b = 4*chunk + 2*np_, 4*chunk + 2*np_ + 1
            src = [(OAr(a,t,0), OAr(a,t,1)), (OAr(a,t,2), OAr(a,t,3)), (OAr(b,t,0), OAr(b,t,1)), (OAr(b,t,2), OAr(b,t,3))]
            cv = []
            for j in range(4):
                cv.append(V(f"v_cvt_pk_bf16_f32 {OAr(a,t,j)}, {src[j][0]}, {src[j][1]}", rd=list(src[j]), wr=[OAr(a,t,j)], deps=([(cv[-1], 0)] if cv else [])))
            k = 2*t + np_
            sa = S(f"s_add_u32 {sU[k & 1]}, {sSt}, {k*8192}", wr=[sU[k & 1]])
            st = Op(f"buffer_store_dwordx4 {OA(a,t)}, {vSt}, {srdWS}, {sU[k & 1]} offen@SC", "vm", rd=[OA(a,t), vSt], deps=[(cv[-1], 1), (sa, 0)])
            res.append((cv, sa, st))
    return res
def reduce_ops(set_):
    X = [regs(r_) for r_ in RLD[set_]]
    tmp = [vA, vB]; ops = []; n = 0
    for k in range(4):
        ops += [V(f"v_lshlrev_b32 {LO[k]}, 16, {X[0][k]}", rd=[X[0][k]], wr=[LO[k]]),
                V(f"v_and_b32 {X[0][k]}, {sMask}, {X[0][k]}", rd=[X[0][k]], wr=[X[0][k]])]
        for g in range(1, 8):
            tm = tmp[n & 1]; n += 1
            ops += [V(f"v_lshlrev_b32 {tm}, 16, {X[g][k]}", rd=[X[g][k]], wr=[tm]),
                    V(f"v_and_b32 {X[g][k]}, {sMask}, {X[g][k]}", rd=[X[g][k]], wr=[X[g][k]]),
                    V(f"v_add_f32 {LO[k]}, {LO[k]}, {tm}", rd=[LO[k], tm], wr=[LO[k]]),
                    V(f"v_add_f32 {X[0][k]}, {X[0][k]}, {X[g][k]}", rd=[X[0][k], X[g][k]], wr=[X[0][k]])]
        ops.append(V(f"v_cvt_pk_bf16_f32 {X[0][k]}, {LO[k]}, {X[0][k]}", rd=[LO[k], X[0][k]], wr=[X[0][k]]))
    for a, b in zip(ops, ops[1:]): b.deps.append((a, 0))
    pl = []
    for j in range(2):
        pl.append(V8(f"v_permlane32_swap_b32 {X[0][j]}, {X[0][2+j]}", rd=[X[0][j], X[0][2+j]], wr=[X[0][j], X[0][2+j]], sdeps=[(ops[-1], 2)]))
    for j in range(2):
        pl.append(V8(f"v_permlane16_swap_b32 {X[0][j]}, {X[0][2+j]}", rd=[X[0][j], X[0][2+j]], wr=[X[0][j], X[0][2+j]], sdeps=[(pl[j], 2)]))
    st = Op(f"buffer_store_dwordx4 {RLD[set_][0]}, {vOut}, {srdO}, {sOut} offen{OSC}", "vm", rd=[RLD[set_][0], vOut, sOut], deps=[(pl[2], 1), (pl[3], 1)])
    return ops, pl, st
def red_loads(set_):
    return [Op(f"buffer_load_dwordx4 {RLD[set_][g]}, {vSt}, {srdWS}, {sLd if g < 4 else sLd2} offen offset:{(g & 3)*1024} sc1", "vm",
               rd=[vSt], wr=[RLD[set_][g]]) for g in range(8)]
def sig_ops():
    return [Op(f"buffer_store_dword {vSt}, {vFl}, {srdWS}, {sSig} offen@SC", "vm", rd=[vSt, vFl])]
def scal_A():
    return [f"s_sub_u32 {sTmp}, {sIt}, 1", f"s_and_b32 {sTmp}, {sTmp}, {sSlM}", f"s_mul_i32 {sTmp}, {sTmp}, {CHUNK}",
            f"s_add_u32 {sSt}, {sStR}, {sTmp}", f"s_add_u32 {sLd}, {sLdR}, {sTmp}", f"s_add_u32 {sLd2}, {sLd}, 0x1000",
            f"s_add_u32 {sSig}, {sSig}, 256"]
def scal_B():
    return [f"s_add_u32 {sOut}, {sOutR}, {sOc}", f"s_add_u32 {sOc}, {sOc}, 128", f"s_and_b32 {sOc}, {sOc}, 0x3ff", f"s_add_u32 {sIt}, {sIt}, 1"]

def build_G(first=False, left=()):
    rg = new_region("G0" if first else "G"); L = "F" if first else ""
    used = [SLOT[t] for t in NEXT]
    gs = used + [SLOT["K0"]] + [x for x in range(10) if x not in used and x not in (SLOT["K0"], SLOT["K1"], SLOT["V0"])][:1]
    assert len(gs) == 8
    gb = ringplan.bases(gs, BASE["W0"])[1]
    items = []; bars = {}; st_last = {}; rg.touch = []
    C.grp = 0
    def Bop(h): return (lambda s, t: ZA(h, s, t)) if h < 3 else (lambda s, t: OP(s, t))
    LD = [red_loads(0), red_loads(1)] if first else G_LD
    pend = None; prev_users = []
    if first:
        new = {}
        for o in left:
            dt, t = o.ot
            n = V(o.text, rd=list(o.rd), wr=list(o.wr)); new[id(o)] = n
            n.deps = [(new[id(p)], g) for (p, g) in o.deps if id(p) in new]
            n.e = 8 if dt >= 6 else -1
            n.d = (12*dt + 4*t - 1) if dt < 4 else (144 + 4*t + (dt >> 1) - 3)
            rg.F(n)
        cs = []
        for x in f"""v_mbcnt_lo_u32_b32 {vA}, -1, 0
v_mbcnt_hi_u32_b32 {vA}, -1, {vA}
v_lshlrev_b32 {vSt}, 4, {vA}
v_and_b32 {vPo}, 7, {vA}
v_lshlrev_b32 {vPo}, 2, {vPo}
v_lshrrev_b32 {vB}, 4, {vA}
v_bfe_u32 {vOut}, {vA}, 2, 2
v_and_b32 {vA}, 3, {vA}
v_lshl_add_u32 {vA}, {vOut}, 4, {vA}
v_lshlrev_b32 {vA}, 10, {vA}
v_lshl_add_u32 {vOut}, {vB}, 4, {vA}
v_mov_b32 {vFl}, {hex(OOB)}""".split("\n"):
            cs.append(rg.F(V(x, e=(0 if len(cs) < 3 else 40), d=110, deps=[(cs[-1], 0)] if cs else [])))
        sc = [rg.F(S(x)) for x in (f"s_lshl_b32 s5, {sG}, 2", f"s_cmp_eq_u32 {sWave}, 0", f"s_cselect_b32 s5, s5, {hex(OOB)}", f"s_mov_b32 {sMask}, 0xffff0000",
                                   f"s_mov_b32 {sLd}, {sLdR}", f"s_add_u32 {sLd2}, {sLd}, 0x1000", f"s_mov_b32 {sSig}, {sFlR}", f"s_mov_b32 {sExp}, 16")]
        wl = rg.F(V(f"v_writelane_b32 {vFl}, s5, 1", deps=[(cs[-1], 0), (sc[2], 0)], d=120))
        prev = None
        for k in range(2):
            if k: a1 = rg.F(S(f"s_add_u32 {sLd}, {sLd}, {CHUNK}", deps=[(prev, 1)])); a2 = rg.F(S(f"s_add_u32 {sLd2}, {sLd}, 0x1000"))
            for i, o in enumerate(red_loads(k)):
                o.text = o.text.replace(" sc1", ""); o.tag = "touch"
                o.e = (OPT["gdma"] + 84 if k else 8) + 4*i; o.d = o.e + 3
                o.deps = [(cs[2], 1), ((a2 if k else sc[5]), 0)] + ([(prev, 1)] if prev else []); rg.F(o); prev = o; rg.touch.append(o)
        last0 = prev
        f = 48; prevm = None
        seq = [(f"v_lshrrev_b32 v{f}, 4, {vSt}", 0), (f"v_lshrrev_b32 v{f+1}, 4, v{f}", 0), (f"v_and_b32 v{f+2}, 1, v{f}", 0), (f"v_lshlrev_b32 v{f+2}, 4, v{f+2}", 0),
               (f"v_mov_b32 v{f+3}, 0x3f80", 0), (f"v_lshlrev_b32 v{f+2}, v{f+2}, v{f+3}", 0), (f"v_bfe_u32 v{f+3}, v{f}, 1, 1", 0), (f"v_bfe_u32 v{f+4}, v{f}, 3, 1", 0),
               (f"v_lshl_add_u32 v{f+3}, v{f+4}, 1, v{f+3}", 0), (f"v_bfe_u32 v{f+4}, v{f}, 2, 1", 0), (f"v_lshlrev_b32 v{f+4}, 1, v{f+4}", 0), (f"v_add_u32 v{f+5}, 1, v{f+4}", 0),
               (f"v_cmp_eq_u32 vcc, v{f+1}, v{f+4}", 0), (f"v_cmp_eq_u32 {sBad}, v{f+1}, v{f+5}", 0),
               (f"v_cndmask_b32 v{f+6}, 0, v{f+2}, vcc", 2), (f"v_cndmask_b32 v{f+7}, 0, v{f+2}, {sBad}", 0)]
        for r_ in range(4):
            seq += [(f"v_cmp_eq_u32 vcc, {r_}, v{f+3}", 0), (f"v_cndmask_b32 v{f}, 0, v{f+6}, vcc", 2), (f"v_cndmask_b32 v{f+1}, 0, v{f+7}, vcc", 0),
                    (f"v_accvgpr_write_b32 a{48+r_}, v{f}", 0), (f"v_accvgpr_write_b32 a{52+r_}, v{f+1}", 0)]
        for x, n_ in seq:
            prevm = rg.F(V(x, rd=[f"v[{f}:{f+7}]"], wr=[f"v[{f}:{f+7}]"], e=152, d=188, deps=([(prevm, 0)] if prevm else []), sdeps=([(prevm, n_)] if n_ else [])))
    for hf in range(2):
        h0 = 192*hf
        do_st = not (first and hf == 0); do_sum = not first
        stores = []
        if do_st:
            for (cv, sa, st) in pack_store(1 - hf):
                for o in cv: o.e = h0 + 8; rg.F(o)
                if len(stores) >= 2: sa.deps.append((stores[-2], 1))
                rg.F(sa); st.e = h0 + 10 + OPT['gst']*len(stores); st.d = st.e + 3; rg.F(st); stores.append(st)
        if do_sum:
            sc = [rg.F(S(x, e=h0, deps=[(u, 1) for u in prev_users])) for x in scal_B()]
            if hf == 0: sB0 = sc[-1]
            cur = hf ^ 1
            w0 = rg.F(WAIT(h0 + OPT['gsum'], need_vm=LD[cur] + (G_LD0 if hf == 0 else []), late=1)); w0.e = h0 + OPT['gsum']
            o0, p0, s0_ = reduce_ops(cur)
            o0[0].deps.append((w0, 0))
            for o in o0 + p0 + [s0_]: rg.F(o)
            s0_.d = h0 + OPT['gout']; s0_.deps += [(sc[0], 0), (LD[hf][-1], 1)]
            prev_users = [s0_]
        infos = []
        for j in range(4):
            st = 4*hf + j
            n1 = (st + 1) & 7
            pend, inf = w_step(rg, hf, j == 0, Bop(j), pend, ("W", gs[st], gb[st]), ("W", gs[n1], gb[n1], gb[st]), [f"G{n1}"] + ([f"G{(st + 2) & 7}"] if OPT["gb2"] else []),
                               extra=(stores if j == 1 else ()), nobar=(OPT["gb2"] and not (j & 1)))
            infos.append(inf); bars[st] = inf["bar"]
            if OPT["gb2"] and (j & 1): bars[st - 1] = inf["bar"]
        if do_st:
            sig, = sig_ops(); bs = infos[1]["bar"]
            sig.deps = [(bs, 0)]; sig.d = bs.e + 1; rg.F(sig)
            rg.F(S(f"s_load_dwordx8 s[8:15], s[82:83], {sSig}", e=h0 + OPT['gpoll'], d=h0 + OPT['gpoll'] + 4))
            b2 = infos[2]["bar"]
            if b2 is None:
                b2 = rg.F(WAIT(h0 + 132, lg0=True, late=1)); b2.e = h0 + 132
            for x in ("s_and_b32 s8, s8, s9", "s_and_b32 s10, s10, s11", "s_and_b32 s12, s12, s13", "s_and_b32 s14, s14, s15",
                      "s_and_b32 s8, s8, s10", "s_and_b32 s12, s12, s14", "s_and_b32 s8, s8, s12", "s_bitcmp0_b32 s8, 4"): rg.F(S(x, deps=[(b2, 0)]))
            br = rg.F(Op(f"s_cbranch_scc1 L_spinG{hf}{L}@L\nL_backG{hf}{L}@L:", "s", d=b2.e + 12))
            prev = None
            for i, o in enumerate(LD[hf]):
                o.deps += [(br, 0)] + ([(prev, 1)] if prev else []); o.e = b2.e + 10 + OPT['gld']*i; o.d = o.e + 3; rg.F(o); prev = o
            lastld = LD[hf][-1]
        else: lastld = last0
        if first: rg.F(S(f"s_mov_b32 {sIt}, {hf + 1}", deps=[(lastld, 1)]))
        for i, x in enumerate(scal_A()): rg.F(S(x, deps=[(lastld, 1)] if i == 0 else []))
        for k in range(4):
            st = (4*hf - 2 + k) & 7
            items.append((f"G{st}", ("C", (1 + (st >> 2)) if (hf or k > 1) else 0, st & 3), gs[st], h0 + OPT["gdma"] + k*(4*OPT["gdsp"] + 1) + (4 if (OPT["gb2"] and k > 1) else 0), OPT["gdsp"],
                          bars[st] if (hf or k > 1) else None))
        if stores: st_last[hf] = stores[-1]
    add_dmas(rg, items)
    if not first:
        c1 = S(f"s_cmp_ge_u32 {sIt}, 7", deps=[(TILE["G7"][-1], 1)]); c2 = S("s_cselect_b32 s18, 0, s18", wr=["s18"], rd=["s18"])
        pos = rg.fill.index(sB0) + 1
        rg.fill[pos:pos] = [c1, c2]
        for i, o in enumerate(rg.fill): o.seq = i + 1
        rg.first_dma["G0"].deps.append((c2, 0))
        rg.first_dma["G6"].deps.append((st_last[0], 1))
    rg.first_dma["G2"].deps.append((st_last[1], 1))
    rg.LD = LD; rg.pend = pend
    rg.schedule()
    return rg

def stamp(kind=0):
    if not OPT["stamps"]: return []
    def put(x): return lin(f"v_mov_b32 {vA}, {x}") + [Op(f"buffer_store_dword {vA}, off, {srdWS}, s101", "vm")] + lin("s_add_u32 s101, s101, 4\ns_nop 1")
    if kind == 1: return put("s94") + put("s92") + ((lin("s_waitcnt lgkmcnt(0)") + put("s84") + put("s92") + put("s86") + put("s92")) if OPT["stamps"] == 4 else []) + stamp()
    if kind == 2: return lin("s_waitcnt vmcnt(0)") + stamp()
    return lin("s_memtime s[2:3]\ns_memrealtime s[4:5]\ns_waitcnt lgkmcnt(0)") + put("s2") + put("s4")

def code_pf(lbl, start, end, mask, r):
    if not OPT["pf"]: return []
    return lin(f"""s_getpc_b64 s[{r}:{r+1}]
{lbl}:
s_add_u32 s{r}, s{r}, {start}-{lbl}
s_addc_u32 s{r+1}, s{r+1}, {"-1" if start == KN else "0"}
s_mov_b32 s{r+2}, {end}-{start}
s_mov_b32 s{r+3}, 0x20000
s_lshl_b32 s5, {sIdx}, 2
s_add_u32 s5, s5, {sWave}
s_and_b32 s5, s5, {mask}
s_lshl_b32 s5, s5, 13
v_mbcnt_lo_u32_b32 {vA}, -1, 0
v_mbcnt_hi_u32_b32 {vA}, -1, {vA}
v_lshlrev_b32 {vA}, 7, {vA}""") + [Op(f"buffer_load_dword {vB}, {vA}, s[{r}:{r+3}], s5 offen", "vm")]

HROT = {0: "s_mov_b32 s5, 0", 1: "s_mov_b32 s5, s4", 2: f"s_mov_b32 s5, {sG}", 3: f"s_add_u32 s5, s4, {sG}", 4: f"s_lshr_b32 s5, {sG}, 1",
        5: f"s_lshr_b32 s5, {sB}, 3", 6: f"s_lshr_b32 s5, {sG}, 2\ns_lshl_b32 s3, {sG}, 1\ns_or_b32 s5, s5, s3", 7: f"s_sub_u32 s5, 0, {sG}", 8: f"s_lshl_b32 s5, {sG}, 2", 9: f"s_lshl_b32 s5, s4, 2"}[OPT["hrot"]]
if OPT["krot"] < 3:
    KROT = f"""{f"s_add_u32 s4, {sB}, {sG}" if OPT["krot"] == 2 else ""}
s_and_b32 s4, s4, {3 if OPT["krot"] else 0}
s_lshl_b32 {sDg[0]}, s4, 20
s_add_u32 {sDg[1]}, {sDg[0]}, 0x100000
s_and_b32 {sDg[1]}, {sDg[1]}, 0x3fffff
s_xor_b32 {sDg[2]}, {sDg[0]}, 0x200000
s_xor_b32 {sDg[3]}, {sDg[1]}, 0x200000"""
else:
    KROT = f"""{f"s_add_u32 s5, {sB}, {sG}" if OPT["krot"] == 3 else f"s_mov_b32 s5, {sG}"}
s_mul_i32 s3, s5, 43
s_lshr_b32 s3, s3, 7
s_mul_i32 s3, s3, 3
s_sub_u32 s5, s5, s3
s_add_u32 {sDg[3]}, s4, 3
s_add_u32 {sDg[0]}, s4, s5
s_cmp_eq_u32 s5, 2
s_cselect_b32 s3, -2, 1
s_add_u32 {sDg[1]}, {sDg[0]}, s3
s_cmp_eq_u32 s5, 0
s_cselect_b32 s3, 2, -1
s_add_u32 {sDg[2]}, {sDg[0]}, s3""" + "".join(f"\ns_and_b32 {sDg[q]}, {sDg[q]}, 3\ns_lshl_b32 {sDg[q]}, {sDg[q]}, 20" for q in range(4))
def prologue(F):
    init = F.init
    o = lin(f"""
s_cmp_lt_u32 s2, 256
s_cbranch_scc1 L_go
s_endpgm
L_go:
{"s_memrealtime s[92:93]" if (OPT["stamps"] or OPT["dbl"]) else ""}
{"s_memtime s[94:95]" if (OPT["stamps"] or OPT["dbl"] == 6) else ""}
s_load_dwordx16 s[68:83], s[0:1], 0
v_lshrrev_b32 v1, 6, v0
v_and_b32 {vLane}, 63, v0
s_and_b32 s4, s2, 7
v_readfirstlane_b32 {sWave}, v1
s_lshr_b32 s5, s2, 3
s_mov_b32 {sIdx}, s5""")
    mp = {84: (1, 3, 2, 1, 2, 3), 48: (0, 2, 3, 0, 3, 7), 162: (2, 4, 1, 3, 1, 1)}[OPT["mapping"]]
    o += lin(f"""
s_lshr_b32 s6, s4, {mp[0]}
s_lshl_b32 s6, s6, {mp[1]}
s_lshr_b32 s7, s5, {mp[2]}
s_add_u32 {sB}, s6, s7
s_and_b32 s6, s4, {mp[3]}
s_lshl_b32 s6, s6, {mp[4]}
s_and_b32 s7, s5, {mp[5]}
s_add_u32 {sG}, s6, s7""")
    cbits = struct.unpack("<I", struct.pack("<f", math.log2(math.e)/math.sqrt(128)))[0]
    o += lin(f"""
s_lshl_b32 {sW4k}, {sWave}, 12
v_lshrrev_b32 v5, 4, {vLane}
v_and_b32 v6, 15, {vLane}
s_lshl_b32 s6, {sWave}, 4
v_add_u32 v1, s6, v5
s_lshl_b32 s6, {sWave}, 2
v_or_b32 v2, s6, v5
v_xor_b32 v2, v2, v6
v_lshlrev_b32 v2, 4, v2
v_lshl_add_u32 {vDX}, v1, 10, v2
v_lshl_add_u32 {vDK}, v1, 8, v2
v_lshrrev_b32 v7, 5, {vLane}
v_bfe_u32 v2, {vLane}, 3, 2
v_lshl_add_u32 v7, v7, 3, v2
s_lshl_b32 s6, {sWave}, 5
v_add_u32 v7, s6, v7
v_and_b32 v3, 7, {vLane}
v_lshlrev_b32 v4, 1, v5
v_xor_b32 v3, v3, v4
v_lshlrev_b32 v3, 4, v3
s_mov_b32 {sDY[1]}, 3072
s_mov_b32 {sDY[2]}, 6144
s_mov_b32 {sDY[3]}, 9216
s_mov_b32 {sD[1]}, {16*8192 - 1024}
s_mov_b32 {sD[2]}, {4*8192 - 2048}
s_mov_b32 {sD[3]}, {20*8192 - 3072}
s_lshr_b32 s4, {sB}, 2
{HROT}
s_bfe_u32 {sSw}, s5, {"0x10002" if OPT["hswap"] else "0x00002"}
s_and_b32 s5, s5, {3 if OPT["hrot"] else 0}
s_mov_b32 {sHr}, s5
s_lshl_b32 {sWcol}, s5, 8
s_lshl_b32 {sSw}, {sSw}, 7
s_or_b32 {sWcol}, {sWcol}, {sSw}
s_lshr_b32 {sSw}, {sSw}, 1
v_xor_b32 v7, {sSw}, v7
v_lshl_add_u32 {vDW}, v7, 13, v3
s_lshl_b32 {sKoff}, s5, 17
s_mov_b32 {sVoff}, {sKoff}
{KROT}
s_mul_i32 s7, {sB}, {0 if OPT["samex"] else 196608}
s_mov_b32 s22, 196608
s_mov_b32 s23, 0x20000
s_mov_b32 s19, 0x20000
s_lshl_b32 s4, {sG}, 10
{"s_mov_b32 s4, 0" if OPT["samew"] else ""}
s_sub_u32 s18, 0x400000, s4
s_waitcnt lgkmcnt(0)
s_add_u32 s20, s68, s7
s_addc_u32 s21, s69, 0
s_add_u32 s16, s74, s4
s_addc_u32 s17, s75, 0""")
    if OPT["tch"]:
        o += lin(f"""v_lshrrev_b32 v8, 1, {vLane}
v_and_b32 v9, 1, {vLane}
v_lshlrev_b32 v9, 7, v9
v_lshl_add_u32 v11, v8, 13, v9
v_lshl_add_u32 v8, v8, 10, v9
v_mov_b32 v10, {hex(OOB)}
v_cmp_gt_u32 vcc, 12, {vLane}
s_lshl_b32 s4, {sG}, 2
s_add_u32 s4, s4, {sWave}
s_mul_i32 s4, s4, 6144
v_cndmask_b32 v8, v10, v8, vcc
v_cmp_gt_u32 vcc, 16, {vLane}
s_and_b32 s5, {sB}, 3
s_lshl_b32 s5, s5, 2
s_add_u32 s5, s5, {sWave}
s_lshl_b32 s5, s5, 16
s_add_u32 s5, s5, {sWcol}
v_cndmask_b32 v11, v10, v11, vcc
v_add_u32 v8, s4, v8
v_add_u32 v11, s5, v11""")
        for q in range(OPT["tch"] - 1, 4):
            o += lin(f"s_lshr_b32 s3, {sDg[q]}, 12")
            o += [Op(f"buffer_load_dword {vB}, v8, {srdX}, s3 offen", "vm"), Op(f"buffer_load_dword {vB}, v11, {srdW}, {sDg[q]} offen", "vm")]
    if OPT["stamps"] == 4: o += lin("s_memtime s[84:85]")
    for j in range(4): o += dma_linear(*init[j])
    if OPT["stamps"] == 4: o += lin("s_memtime s[86:87]")
    o += lin(f"""s_lshl_b32 s3, {sB}, 22
s_lshl_b32 s7, {sG}, 19
s_add_u32 s3, s3, s7
{"s_mov_b32 s3, 0" if OPT["samekv"] else ""}
s_add_u32 s8, s70, s3
s_addc_u32 s9, s71, 0
s_mov_b32 s10, 0x80000
s_mov_b32 s11, 0x20000
s_add_u32 s12, s72, s3
s_addc_u32 s13, s73, 0
s_mov_b32 s14, 0x80000
s_mov_b32 s15, 0x20000
""")
    if OPT["tlb"]:
        o += [Op(f"buffer_load_dword {vB}, off, {srdK}, 0", "vm"), Op(f"buffer_load_dword {vB}, off, {srdV}, 0", "vm")]
        o += [Op(f"buffer_load_dword {vB}, off, {srdW}, {sDg[q]}", "vm") for q in (1, 2, 3)]
    o += code_pf("L_pc", KN, "L_g3", OPT["pf"] - 1, 88)
    o += lin(f"""
v_lshrrev_b32 v7, 3, {vLane}
v_add_u32 v7, s6, v7
v_lshl_add_u32 {vDWo}, v7, 10, v3
s_and_b32 s6, {sWave}, 1
s_lshl_b32 s6, s6, 2
v_or_b32 v2, s6, v5
v_lshlrev_b32 v2, 1, v2
v_xor_b32 v2, v2, v6
v_lshlrev_b32 v1, 8, v1
v_lshl_add_u32 {vDV}, v2, 4, v1
s_mov_b32 s24, s82
s_mov_b32 s25, s83
s_mov_b32 s26, {hex(WS_BYTES)}
s_mov_b32 s27, 0x20000
v_lshrrev_b32 v1, 3, {vLane}
v_and_b32 v2, 7, {vLane}
v_lshlrev_b32 v1, 8, v1
v_lshl_add_u32 v8, v2, 2, v1
s_lshl_b32 s6, {sB}, 11
s_add_u32 s6, s6, {hex(FLAG_BASE)}
s_or_b32 s7, {sG}, {sWave}
s_cmp_eq_u32 s7, 0
s_cselect_b32 {sTmp}, s6, {hex(OOB)}
v_mov_b32 v9, 0""")
    zst = Op(f"buffer_store_dword v9, v8, {srdWS}, {sTmp} offen sc1", "vm"); o.append(zst)

    o += lin(f"""
s_mov_b32 {sScale}, {hex(cbits)}
s_mov_b32 {sLo}, 0x30800000
s_mov_b32 {sHi}, 0x4e800000
s_mov_b32 {sHead}, 0
s_lshl_b32 {sW1k}, {sWave}, 10
s_mov_b32 s28, s78
s_mov_b32 s29, s79
s_mov_b32 s30, 0x600000
s_mov_b32 s31, 0x20000
s_mov_b32 s32, s80
s_mov_b32 s33, s81
s_mov_b32 s34, 0x100
s_mov_b32 s35, 0x20000

v_lshrrev_b32 v1, 2, v6
v_and_b32 v2, 3, v6
v_lshl_add_u32 v3, v1, 4, v2
v_lshlrev_b32 v3, 8, v3""")
    for s in range(4):
        o += lin(f"s_and_b32 s3, {sWcol}, 128\nv_add_u32 v4, {4*s}, v5\nv_xor_b32 v4, v4, v6\nv_lshl_add_u32 {vK[s]}, v4, 4, v3\nv_xor_b32 {vK[s]}, s3, {vK[s]}")
    o += lin(f"""
v_lshl_add_u32 v3, v5, 4, v1
v_lshlrev_b32 v3, 8, v3
v_and_b32 v4, 1, v5
v_lshl_add_u32 v7, v4, 2, v1
v_lshl_add_u32 v3, v7, 5, v3
v_lshl_add_u32 v3, v2, 3, v3
v_add_u32 {vVb}, {BASE["V7"]*16384}, v3
v_lshl_add_u32 v3, v5, 2, v1
v_lshlrev_b32 v3, 7, v3
v_lshrrev_b32 v7, 1, v1
v_lshl_add_u32 v7, v4, 1, v7
{"v_lshlrev_b32 v7, 1, v7" if OPT["nperm"] else "v_lshl_add_u32 v3, v7, 5, v3"}
{"v_xor_b32 v7, v7, v2" if OPT["nperm"] else ""}
{"v_lshl_add_u32 v7, v7, 4, v3" if OPT["nperm"] else "v_lshl_add_u32 v7, v2, 3, v3"}
v_add_u32 {vWb}, {F.wb0*16384}, v7
v_mov_b32 v3, 0x3f803f80
v_cmp_eq_u32 vcc, 0, v2
s_nop 1
{"v_cndmask_b32 v3, 0, v3, vcc" if OPT["ones4"] else ""}
v_accvgpr_write_b32 a252, v3
v_accvgpr_write_b32 a253, v3
v_accvgpr_write_b32 a254, v3
v_accvgpr_write_b32 a255, v3
""")
    for s in range(4):
        o += lin(f"v_add_u32 v{S0+s}, {sW1k}, {vK[s]}\nv_add_u32 v{S0+4+s}, 0x10000, v{S0+s}\nv_add_u32 v{S0+8+s}, 0x20000, v{S0+s}\nv_add_u32 {vK[s]}, {BASE['K7']*16384}, {vK[s]}")
    o += lin(f"s_add_u32 {sW1k}, {sW1k}, {lit((XB - BASE['K7'])*16384)}")
    for j in range(4, 8): o += dma_linear(*init[j])
    o += lin(f"""s_lshl_b32 s6, {sG}, 19
s_add_u32 s80, s76, s6
s_addc_u32 s81, s77, 0
s_mov_b32 {sGate}, 0
s_lshl_b32 {sH[0]}, {sHr}, 17
s_add_u32 {sH[1]}, {sH[0]}, 0x20000
s_and_b32 {sH[1]}, {sH[1]}, 0x7ffff
s_xor_b32 {sH[2]}, {sH[0]}, 0x40000
s_xor_b32 {sH[3]}, {sH[1]}, 0x40000
{("s_mov_b32 s73, s94" if OPT["dbl"] == 6 else "s_mov_b32 s73, s92") if OPT["dbl"] else ""}
s_getreg_b32 {sXcc}, hwreg(HW_REG_XCC_ID, 0, 3)
s_lshr_b32 {sRot}, {sB}, 2
s_and_b32 {sRot}, {sRot}, {7 if OPT["rot"] else 0}
s_lshl_b32 {sRot}, {sRot}, 7
s_lshl_b32 {sXcc}, {sXcc}, 2
s_lshl_b32 {sXcc}, 1, {sXcc}""" + "".join(f"\ns_add_u32 {sC[i]}, {sRot}, {128*(i+1)}\ns_and_b32 {sC[i]}, {sC[i]}, 0x3ff" for i in range(3))
      + "".join("\n" + "\n".join(x_t0(sN[NEXT.index('X' + 'abc'[a])], a, 3)) for a in range(3)) + f"""
s_mul_i32 s6, {sB}, {8*CHUNK + 4096}
s_mov_b32 s75, s6
s_add_u32 s6, s6, 4096
s_mul_i32 s7, {sWave}, 49152
s_add_u32 {sStR}, s6, s7
s_lshl_b32 s7, {sG}, 10
s_add_u32 {sStR}, {sStR}, s7
s_mul_i32 s7, {sG}, 3
s_add_u32 s7, s7, {sWave}
s_lshl_b32 s4, s7, 13
s_add_u32 {sLdR}, s6, s4
s_lshl_b32 {sFlR}, {sB}, 11
s_add_u32 {sFlR}, {sFlR}, {hex(FLAG_BASE - 256)}
s_lshr_b32 s4, s7, 1
s_mul_i32 s5, s4, 11
s_lshr_b32 s5, s5, 5
s_mul_i32 s3, s5, 3
s_sub_u32 s4, s4, s3
s_lshl_b32 s4, s4, 6
s_lshl_b32 s5, s5, 2
s_add_u32 s4, s4, s5
s_mul_i32 s5, {sB}, 192
s_add_u32 s4, s4, s5
s_lshl_b32 s4, s4, 10
s_and_b32 s5, s7, 1
s_lshl_b32 s5, s5, 6
s_add_u32 {sOutR}, s4, s5
s_mov_b32 {sOc}, {sRot}
s_cmp_eq_u32 {sWave}, 3
s_cselect_b32 {sLdR}, {hex(OOB)}, {sLdR}
s_cselect_b32 {sOutR}, {hex(OOB)}, {sOutR}
v_bfe_u32 v3, {vLane}, 3, 2
v_and_b32 v2, 3, {vLane}
v_lshlrev_b32 {vC}, 5, v3
v_lshl_add_u32 {vC}, v2, 3, {vC}
v_lshlrev_b32 v3, 1, v3
v_xor_b32 v2, v2, v3
v_lshlrev_b32 v2, 4, v2
v_sub_u32 {vC}, {vC}, v2""")
    if OPT["tlb"] == 2:
        o += lin(f"""s_mov_b32 s4, {hex(FLAG_BASE + 0x20080)}
s_mov_b32 s88, s80
s_mov_b32 s89, s81
s_mov_b32 s90, 0x80000
s_add_u32 s5, s75, {8*CHUNK + 4096}""") if False else lin(f"s_mov_b32 s4, {hex(FLAG_BASE + 0x20080)}\ns_add_u32 s5, s75, {8*CHUNK + 4096}")
        o += [Op(f"buffer_load_dword {vB}, off, {srd}, {so}", "vm") for srd, so in ((srdWS, "s75"), (srdWS, "s5"), (srdWS, "s4"), (srdO, sOutR))]
    if OPT["ka"]:
        o += lin(f"""v_lshrrev_b32 v8, 1, {vLane}
v_and_b32 v9, 1, {vLane}
v_lshlrev_b32 v9, 7, v9
v_lshl_add_u32 v8, v8, 13, v9
v_mov_b32 v10, {hex(OOB)}
v_cmp_gt_u32 vcc, {64//OPT["ka"]}, {vLane}
s_and_b32 s4, {sB}, 3
s_lshl_b32 s4, s4, 2
s_add_u32 s4, s4, {sWave}
v_cndmask_b32 {vLane}, v10, v8, vcc
s_lshl_b32 s75, s4, 18""")
    if OPT["pf3"]:
        o += lin(f"""s_getpc_b64 s[76:77]
L_pc3:
s_add_u32 s76, s76, L_loop-L_pc3
s_addc_u32 s77, s77, 0
s_mov_b32 s78, L_R2-L_loop
s_mov_b32 s79, 0x20000
s_lshl_b32 s75, {sIdx}, 2
s_add_u32 s75, s75, {sWave}
s_and_b32 s75, s75, 15
s_lshl_b32 s75, s75, 13""")
    if OPT["stress"]: o += lin(f"s_lshl_b32 s79, s2, 20\ns_add_u32 s79, s79, 0x8000000\ns_mul_i32 s4, {sWave}, 0x3f000\ns_add_u32 s79, s79, s4")
    if OPT["stamps"]:
        o += lin(f"s_lshl_b32 s101, s2, 10\ns_lshl_b32 s6, {sWave}, 8\ns_add_u32 s101, s101, s6\ns_add_u32 s101, s101, {hex(STAMP_BASE)}")
    if OPT["stamps"] in (2, 4): o += stamp(1)
    o.append(WAIT(0, need_vm=[x[0] for x in init[:4]]))
    o += lin("s_barrier")
    if OPT["stamps"] in (2, 4): o += stamp()
    for t in range(3):
        for s in range(4): o += lin("ds_read_b128 %s, %s offset:%d" % ((XA(s, t),) + F.xaddr(F.xsl0[t], s)))
    for s in range(4):
        for p in range(2): o += lin(f"ds_read_b64_tr_b16 {FR(0, s, p)}, {vWb} offset:{F.wso0 + s*4096 + p*2048}")
    o += lin("s_waitcnt lgkmcnt(0)\ns_barrier")
    return o, zst

def glue0(zst):
    return [WAIT(0, need_vm=[zst])] + lin(f"""s_lshl_b32 s6, {sB}, 2
s_cmp_eq_u32 {sWave}, 0
s_cselect_b32 s6, s6, {hex(OOB)}
v_mov_b32 {vB}, {hex(OOB)}
v_writelane_b32 {vB}, 0, 0
v_mov_b32 {vA}, {sXcc}""") + [Op(f"buffer_atomic_add {vA}, {vB}, {srdD}, s6 offen sc1", "vm")]
def touch_setup():
    return lin(f"""s_cmp_eq_u32 {sSlM}, 1
s_cselect_b32 s4, 256, {hex(OOB)}
v_lshlrev_b32 {vA}, 1, {vA}
v_and_b32 {vA}, 0x700, {vA}
s_add_u32 s4, s4, {sFlR}""") + [Op(f"buffer_load_dword {vB}, {vA}, {srdWS}, s4 offen sc1", "vm")]
def mode_check(dbg):
    if OPT["bst"] or OPT["stress"]: return lin(f"L_chkD:\nL_backD:\ns_mov_b32 {sSlM}, 1")
    return [WAIT(0, need_vm=[dbg])] + lin(f"""s_mov_b32 s3, 0
L_chkD:
v_readfirstlane_b32 s4, {vLane}
s_nop 3
s_lshr_b32 s5, s4, 4
s_and_b32 s5, s5, 0x0f0f0f0f
s_and_b32 s7, s4, 0x0f0f0f0f
s_add_u32 s5, s5, s7
s_mul_i32 s5, s5, 0x01010101
s_lshr_b32 s5, s5, 24
s_cmp_lg_u32 s5, 8
s_cbranch_scc1 L_spinD
L_backD:
s_lshl_b32 s5, {sXcc}, 3
{"s_mov_b32 s5, 0" if OPT["forceslow"] else ""}
s_cmp_eq_u32 s4, s5
s_cselect_b32 {sSlM}, 1, 7""")

def slow_path(placed, pendW0):
    vKo, vVo, vVo2, vKo2 = f"v{PV0+40}", f"v{PV0+41}", f"v{PV0+42}", f"v{PV0+43}"
    M = [f"v{PV0+36+t}" for t in range(3)]
    CN = [R("v", PV0 + 24 + 4*t, 4) for t in range(3)]
    Sx = [R("v", S0 + 4*t, 4) for t in range(3)]
    t_ = f"""
L_slow:
s_waitcnt vmcnt(0) lgkmcnt(0)
s_nop 7
v_mbcnt_lo_u32_b32 {vB}, -1, 0
v_mbcnt_hi_u32_b32 {vB}, -1, {vB}
v_and_b32 {vA}, 15, {vB}
v_lshrrev_b32 {vB}, 4, {vB}
v_lshlrev_b32 {vKo}, 8, {vA}
v_lshl_add_u32 {vKo}, {vB}, 4, {vKo}
s_and_b32 s4, {sWcol}, 128
s_xor_b32 s5, s4, 128
v_add_u32 {vKo2}, s5, {vKo}
v_add_u32 {vKo}, s4, {vKo}
v_lshlrev_b32 {vVo}, 10, {vB}
v_lshl_add_u32 {vVo}, {vA}, 1, {vVo}
v_add_u32 {vVo2}, 0x1000, {vVo}
s_add_u32 s4, {sHr}, {sHead}
s_and_b32 s4, s4, 3
s_lshl_b32 s4, s4, 17
s_mov_b32 s10, 0x80000
s_mov_b32 s14, 0x80000
s_add_u32 s5, s4, 0x20000
s_mov_b32 s6, s4
"""
    for t in range(3): t_ += f"v_mov_b32 {M[t]}, 0xff800000\n"
    t_ += "L_slow1:\n"
    for s in range(4): t_ += f"buffer_load_dwordx4 {FR(0, s)}, {vKo if s < 2 else vKo2}, {srdK}, s6 offen offset:{64*(s & 1)}\n"
    t_ += "s_waitcnt vmcnt(0)\n"
    for t in range(3):
        for s in range(4): t_ += f"v_mfma_f32_16x16x32_bf16 {Sx[t]}, {FR(0, s)}, {QV(s, t)}, {'0' if s == 0 else Sx[t]}\n"
    t_ += "s_nop 9\n"
    for t in range(3):
        t_ += f"v_max3_f32 {M[t]}, {M[t]}, v{S0+4*t}, v{S0+4*t+1}\nv_max3_f32 {M[t]}, {M[t]}, v{S0+4*t+2}, v{S0+4*t+3}\n"
    t_ += "s_add_u32 s6, s6, 0x1000\ns_cmp_lt_u32 s6, s5\ns_cbranch_scc1 L_slow1\n"
    for t in range(3):
        t_ += f"""v_mov_b32 {vA}, {M[t]}
s_nop 1
v_permlane32_swap_b32 {vA}, {M[t]}
s_nop 1
v_max_f32 {M[t]}, {vA}, {M[t]}
v_mov_b32 {vA}, {M[t]}
s_nop 1
v_permlane16_swap_b32 {vA}, {M[t]}
s_nop 1
v_max_f32 {M[t]}, {vA}, {M[t]}
"""
        for i in range(4): t_ += f"v_sub_f32 v{PV0+24+4*t+i}, 0, {M[t]}\n"
    for i in range(96): t_ += f"v_mov_b32 v{i}, 0\n"
    for i in range(12): t_ += f"v_accvgpr_write_b32 a{240+i}, 0\n"
    t_ += "s_mov_b32 s6, s4\nL_slow2:\n"
    for u in range(2):
        for s in range(4): t_ += f"buffer_load_dwordx4 {FR(0, s)}, {vKo if s < 2 else vKo2}, {srdK}, s6 offen offset:{64*(s & 1)}\n"
        t_ += "s_waitcnt vmcnt(0)\n"
        for t in range(3):
            for s in range(4): t_ += f"v_mfma_f32_16x16x32_bf16 {Sx[t]}, {FR(0, s)}, {QV(s, t)}, {CN[t] if s == 0 else Sx[t]}\n"
        t_ += "s_nop 9\n"
        for i in range(12): t_ += f"v_exp_f32 v{S0+i}, v{S0+i}\n"
        t_ += "s_nop 0\n"
        for t in range(3):
            for j in range(2): t_ += f"v_cvt_pk_bf16_f32 {PBr(0, 0, t, 2*u + j)}, v{S0+4*t+2*j}, v{S0+4*t+2*j+1}\n"
        if u == 0: t_ += "s_mov_b32 s7, s6\ns_add_u32 s6, s6, 0x1000\n"
    f = FA0 + 16
    for dt in range(8):
        for j in range(8):
            t_ += f"buffer_load_ushort v{FA0 + j}, {vVo if j < 4 else vVo2}, {srdV}, s7 offen offset:{(j & 3)*256 + 32*dt}\n"
        t_ += "s_waitcnt vmcnt(0)\n"
        for j in range(4): t_ += f"v_lshl_or_b32 v{f + j}, v{FA0 + 2*j + 1}, 16, v{FA0 + 2*j}\n"
        t_ += "s_nop 1\n"
        for t in range(3): t_ += f"v_mfma_f32_16x16x32_bf16 {OA(dt, t)}, v[{f}:{f+3}], {PB(0, 0, t)}, {OA(dt, t)}\n"
    for t in range(3): t_ += f"v_mfma_f32_16x16x32_bf16 {LA(t)}, {ONES}, {PB(0, 0, t)}, {LA(t)}\n"
    t_ += "s_add_u32 s6, s6, 0x1000\ns_cmp_lt_u32 s6, s5\ns_cbranch_scc1 L_slow2\ns_nop 9\n"
    for t in range(3): t_ += f"v_accvgpr_read_b32 {vRL[t]}, a{240+4*t}\n"
    for t in range(3): t_ += f"v_rcp_f32 {vRL[t]}, {vRL[t]}\n"
    t_ += "s_nop 0\n"
    for o in placed: t_ += o.text + "\n"
    for o in pendW0: t_ += o.text + "\n"
    t_ += "s_waitcnt lgkmcnt(0)\n"
    t_ += "s_branch L_join\n"
    return lin(t_)

def spin(lbl, back, reg, off_v, srd, soff, exp):
    return lin(f"""{lbl}:
s_mov_b32 s3, 0
{lbl}_l:
buffer_load_dword {reg}, {off_v}, {srd}, {soff}{' offen' if off_v != 'off' else ''} sc1
s_add_u32 s3, s3, 1
s_waitcnt vmcnt(0)
v_cmp_ne_u32 vcc, {exp}, {reg}
s_cmp_gt_u32 s3, 0x10000
s_cbranch_scc1 {back}
s_nop 2
s_cbranch_vccnz {lbl}_l
s_branch {back}""")

def pad_linear(ops):
    out = []
    for o in ops:
        need = 0
        for (p, n) in o.sdeps:
            if p in out: need = max(need, n - sum(x.w for x in out[out.index(p)+1:]))
        if need > 0:
            nop = Op(f"s_nop {need-1}", "x"); nop.w = need; out.append(nop)
        out.append(o)
    return out

def tail(G):
    X = (lambda: stamp()) if OPT["stamps"] == 3 else (lambda: [])
    def sums(set_, loads):
        o0, p0, s0_ = reduce_ops(set_)
        return [WAIT(0, need_vm=loads)] + pad_linear(o0 + p0 + [s0_])
    def msum(set_, loads):
        A0, A1, D0, D1 = "a[48:51]", "a[52:55]", FR(1, 0), FR(1, 1)
        r = []
        for g in range(8):
            r += [WAIT(0, need_vm=[loads[g]]), mfma(D0, A0, RLD[set_][g], "0" if g == 0 else D0), mfma(D1, A1, RLD[set_][g], "0" if g == 0 else D1)]
        d = regs(D0) + regs(D1); res = regs(FR(1, 2 + set_))
        r += lin("s_nop 7") + [V(f"v_cvt_pk_bf16_f32 {res[j]}, {d[2*j]}, {d[2*j+1]}", rd=[d[2*j], d[2*j+1]], wr=[res[j]]) for j in range(4)]
        return r + [Op(f"buffer_store_dwordx4 {FR(1, 2 + set_)}, {vOut}, {srdO}, {sOut} offen{OSC}", "vm", rd=[FR(1, 2 + set_)])]
    fin = msum if OPT["msum"] else sums
    o = lin("\n".join(scal_B()) + "\ns_nop 1")
    stores = []
    for (cv, sa, st) in pack_store(1):
        o += cv + [sa, st]; stores.append(st)
    o += X() + fin(1, G.LD[1]) + X()
    o += [WAIT(0, need_vm=stores)] + X() + lin("s_barrier") + sig_ops()
    o += lin("s_branch L_spinU@L\nL_backU@L:") + X()
    l7 = red_loads(0); o += l7
    o += lin(f"s_add_u32 {sOut}, {sOutR}, {sOc}")
    if OPT["stamps"] == 3: o += lin("s_waitcnt vmcnt(0)") + X()
    o += fin(0, l7) + X() + X()
    return o

def main():
    R2 = build_R2()
    placed = [o for o in R2.epi if o.gap is not None]; placed.sort(key=lambda o: o.pos)
    R1 = build_R1(R2.left)
    R1b = {h: build_R1b(h) for h in (1, 2, 3)}
    R1f = build_R1f()
    global G_LD, G_LD0
    G0 = build_G(True, R2.left)
    G_LD0 = G0.LD[1]; G_LD = [red_loads(0), red_loads(1)]
    G = build_G()
    bind_ext(R1, [R2.pendW0]); bind_ext(R2, [R1f.pend] + [R1b[h].pend for h in R1b]); bind_ext(G0, [R2.pendW0]); bind_ext(G, [G0.pend, G.pend])
    for h in R1b: bind_ext(R1b[h], [R1.pend])
    for w in R1f.xw: w.text = 's_nop 0'
    pro, zst = prologue(R1f)
    for j, t in enumerate(NEXT): TILE[f'G{j}'] += TILE[t]
    stg = lin(f"""{[f"s_mov_b32 s4, {sG}", f"s_and_b32 s4, {sB}, 3", f"s_mov_b32 s4, {sIdx}"][OPT["stagm"]]}
s_mul_i32 s4, s4, {OPT["stag"]}
L_stg:
s_cmp_eq_u32 s4, 0
s_cbranch_scc1 L_stg2
s_sub_u32 s4, s4, 1
s_branch L_stg
L_stg2:""") if OPT["stag"] else []
    p0 = glue0(zst) + stg + lin("s_branch L_R2")
    sel = lin(f"s_cmp_eq_u32 {sHead}, 2\ns_cbranch_scc1 L_v2\ns_cmp_eq_u32 {sHead}, 3\ns_cbranch_scc1 L_v3")
    v1 = R1b[1].out + lin("s_branch L_R2")
    v2 = lin("L_v2:") + R1b[2].out + lin("s_branch L_R2")
    assert OPT["pf"]
    v3 = lin("L_v3:") + R1b[3].out + mode_check(getattr(R1b[3 if OPT["ka"] else 2], "dbg", None)) + (lin(f"v_mbcnt_lo_u32_b32 {vA}, -1, 0\nv_mbcnt_hi_u32_b32 {vA}, -1, {vA}\nv_lshlrev_b32 {vA}, 7, {vA}") if (OPT["pf3"] or OPT["stress"]) else code_pf("L_pc2", "L_g3", "L_codeend", 15, 76)) + touch_setup()
    g2 = lin(f"s_or_b64 {sBad}, {sBad}, vcc\n{'s_nop 0' if OPT['stress'] else 's_cbranch_scc1 L_slow'}\nL_join:\ns_add_u32 {sHead}, {sHead}, 1\ns_cmp_lt_u32 {sHead}, 4")
    g3 = lin(f"s_cmp_eq_u32 {sSlM}, 7\ns_cbranch_scc1 L_G0S")
    g4 = lin(f"s_mov_b32 {sC[0]}, {sC[2]}\ns_add_u32 {sC[1]}, {sC[0]}, 128\ns_and_b32 {sC[1]}, {sC[1]}, 0x3ff\ns_add_u32 {sC[2]}, {sC[1]}, 128\ns_and_b32 {sC[2]}, {sC[2]}, 0x3ff\ns_cmp_lt_u32 {sIt}, 8")
    T = tail(G)
    sA, sB_, sC_, sD_, sE = stamp(1 if OPT['stamps'] in (1, 3) else 0), stamp(), stamp(), stamp(), stamp(2)
    if OPT["bst"]:
        def dump():
            return lin(f"v_mbcnt_lo_u32_b32 {vA}, -1, 0\nv_mbcnt_hi_u32_b32 {vA}, -1, {vA}\nv_lshlrev_b32 {vA}, 2, {vA}") + [Op(f"buffer_store_dword {vLane}, {vA}, {srdWS}, s101 offen", "vm")] + lin("s_add_u32 s101, s101, 256\ns_nop 1")
        sA = lin(f"s_lshl_b32 s101, s2, 2\ns_add_u32 s101, s101, {sWave}\ns_lshl_b32 s101, s101, 12\ns_add_u32 s101, s101, {hex(DUMP_BASE)}")
        sC_ = dump(); sD_ = dump()
    tr = pro + sA
    for hd in range(4):
        tr += [R1f.out + p0, R1.out + sel + v1, R1.out + sel + v2, R1.out + sel + v3][hd] + sB_ + R2.out + g2 + sC_
    tr += g3
    post = []
    for it in range(3): post += G.out + g4 + sD_
    post += T
    resolve_waits(tr + [x for x in G0.out if x.tag != "touch"] + g4 + sD_ + [x for x in post if x.tag != "fastonly"], TILE)
    tr += G0.out + g4 + sD_ + post
    resolve_waits(tr, TILE)
    errs = check(tr, "main")
    for e in errs[:20]: print(e, file=sys.stderr)
    assert not errs
    for rg in (R1f, R1, R1b[1], R1b[3], R2, G0, G): print(rg.name, "overfull:", rg.overlog, file=sys.stderr)
    out = [open(os.path.join(os.path.dirname(os.path.abspath(__file__)), "header.txt")).read().rstrip()]
    out.append("; @launch grid=(256,1,1) block=(256,1,1) lds=163840")
    out.append(f""".amdgcn_target "amdgcn-amd-amdhsa--gfx950"
; Fused attention block, generated by gen/kernel.py (own gap scheduler, gen/sched.py).
;  - 256 workgroups = (batch b, group g of 4 heads), 4 waves x 48 query rows, one wave per SIMD, 16x16x32 bf16 MFMA.
;    out^T = wo^T O^T; wq / K / V / wo / x tiles (16 KB) stream through a statically planned 10-slot LDS ring by LDS-DMA.
;  - softmax: exp2 of the pre-scaled scores, row sums by MFMA; a run-time range check of the row sums sends a wave to
;    L_slow (two passes with the true row max) whenever the unshifted exponentials could be unsafe.
;    They announce their die in d_debug; if all 8 share one L2 the exchange uses plain stores into two reused slots
;    (L_G0/L_G), otherwise write-through stores into fresh slots (L_G0S/L_GS).
.text
.globl {KN}
.p2align 8
.type {KN},@function
{KN}:""")
    def emit(ops, sc="", lb=""):
        for o in ops:
            if OPT["nobar"] and o.text == "s_barrier" and o.kind == "w": out.append("s_nop 0"); continue
            if OPT["nolg"] and o.kind == "w" and o.text.startswith("s_waitcnt") and "vmcnt" not in o.text: out.append("s_nop 0"); continue
            if OPT["nods"] and o.kind == "ds": continue
            if OPT["novalu"] and o.kind in ("v4", "v8") and o.gap is not None and ("exp" in o.text or "cvt" in o.text or "mul" in o.text or "perm" in o.text or "and" in o.text or "lshl" in o.text or "add_f32" in o.text): continue
            if OPT["nodma"] and o.text.endswith(" lds"): out.append("s_nop 0"); continue
            if OPT["nored"] and " sc1" in o.text and "dwordx4" in o.text: out.append("s_nop 0"); continue
            if getattr(o, "pre", None): out.append(o.pre)
            out.append(o.text.replace("@SC", sc).replace("@L", lb))
    def mark(n):
        return lin("s_memrealtime s[2:3]\ns_waitcnt lgkmcnt(0)\ns_sub_u32 s75, s2, s73") if OPT["dbl"] == n else []
    def idle(n, tag):
        if not n: return []
        return lin(f"""s_memrealtime s[2:3]
s_waitcnt lgkmcnt(0)
s_mov_b32 s5, s2
L_idle{tag}:
s_sleep 2
s_memrealtime s[2:3]
s_waitcnt lgkmcnt(0)
s_sub_u32 s4, s2, s5
s_cmp_lt_u32 s4, {n}
s_cbranch_scc1 L_idle{tag}""")
    def ex(n): return (stamp(2) + lin("s_endpgm")) if OPT["exitat"] == n else []
    emit(pro + mark(3) + idle(OPT['idle0'], 'a') + sA + ex(1) + R1f.out + mark(4) + p0)
    out.append("; ---- head loop: Q-projection steps 0-4, step 5 (three variants), steps 6-7 + attention ----")
    out.append("L_loop:"); emit(R1.out + sel + v1 + v2 + v3); out.append("L_R2:"); emit(idle(OPT['idle1'], 'b') + sB_ + R2.out + g2 + sC_)
    if OPT["dbl"] >= 10:
        emit(lin(f"s_cmp_lg_u32 {sHead}, {OPT['dbl'] - 9}\ns_cbranch_scc1 L_nomark") + mark(OPT["dbl"]) + lin(f"L_nomark:\ns_cmp_lt_u32 {sHead}, 4"))
    if OPT["stamps"] or OPT["bst"]: out.append(f"s_cmp_lt_u32 {sHead}, 4")
    out.append("s_cbranch_scc1 L_loop")
    out.append('; ---- output projection + exchange ----'); out.append('L_g3:'); emit(mark(5) + ex(3) + g3)
    for sc, lb in ((NTST, ""), (" sc1", "S")):
        out.append(f"L_G0{lb}:"); emit([(Op("s_nop 0", "x") if (lb and x.tag == "touch") else x) for x in G0.out] + g4 + sD_, sc, lb)
        out.append(f"L_G{lb}:"); emit(G.out + g4 + sD_, sc, lb)
        if OPT["stamps"] or OPT["bst"]: out.append(f"s_cmp_lt_u32 {sIt}, 8")
        out.append(f"s_cbranch_scc1 L_G{lb}")
        emit([(Op('s_nop 0', 'x') if (lb and x.tag == 'fastonly') else x) for x in T] + sE, sc, lb)
        if OPT["dbl"]:
            if OPT["dbl"] == 6: emit(lin("s_waitcnt vmcnt(0)\ns_memtime s[2:3]\ns_waitcnt lgkmcnt(0)\ns_sub_u32 s75, s2, s73\ns_lshr_b32 s75, s75, 6"))
            emit(lin(f"""s_waitcnt vmcnt(0)
s_memrealtime s[2:3]
s_waitcnt lgkmcnt(0)
{"s_sub_u32 s4, s2, s73" if OPT["dbl"] == 1 else ("s_mov_b32 s4, 500" if OPT["dbl"] == 2 else "s_mul_i32 s4, s75, 4")}
s_min_u32 s4, s4, 40000
s_mov_b32 s5, s2
L_dbl{lb}:
s_sleep 4
s_memrealtime s[2:3]
s_waitcnt lgkmcnt(0)
s_sub_u32 s6, s2, s5
s_cmp_lt_u32 s6, s4
s_cbranch_scc1 L_dbl{lb}"""))
        out.append("s_endpgm")
        if not lb: out.append("L_codeend:")
        for nm in ("G0", "G1", "G1F", "U"): emit(spin(f"L_spin{nm}{lb}", f"L_back{nm}{lb}", vPr, vPo, srdWS, sPoll, sExp))
    emit(lin(f"""L_spinD:
s_add_u32 s3, s3, 1
s_cmp_gt_u32 s3, 0x10000
s_cbranch_scc1 L_backD
s_lshl_b32 {sTmp}, {sB}, 2
buffer_load_dword {vLane}, off, {srdD}, {sTmp} sc1
s_waitcnt vmcnt(0)
s_branch L_chkD"""))
    out.append("; ---- exact-max fallback for one wave and one head ----")
    emit(slow_path(placed, R2.pendW0))
    out.append(f"""s_endpgm
.section .rodata,"a"
.p2align 6
.amdhsa_kernel {KN}
  .amdhsa_next_free_vgpr 512
  .amdhsa_next_free_sgpr 102
  .amdhsa_accum_offset 256
  .amdhsa_group_segment_fixed_size 0
  .amdhsa_kernarg_size 64
  .amdhsa_user_sgpr_count 2
  .amdhsa_user_sgpr_kernarg_segment_ptr 1
  .amdhsa_system_sgpr_workgroup_id_x 1
.end_amdhsa_kernel""")
    print("\n".join(out))
main()
```
